```python
import torch

def _softmax(x, axis=-1):
    return torch.softmax(x, dim=axis)
def _gelu(x):
    return torch.nn.functional.gelu(x, approximate="tanh")
def _silu(x):
    return torch.nn.functional.silu(x)
def _sigmoid(x):
    return torch.sigmoid(x)
def _layernorm(x, axis=-1, eps=1e-5):
    m = x.mean(dim=axis, keepdim=True)
    v = x.var(dim=axis, keepdim=True, unbiased=False)
    return (x - m) / torch.sqrt(v + eps)
def _scatter_add(tgt, idx, src, axis=0):
    return tgt.clone().index_add_(axis, idx, src)
def _segment_sum(src, seg, n):
    out = torch.zeros((n,) + src.shape[1:], dtype=src.dtype)
    return out.index_add_(0, seg, src)
def _pad(x, pw):
    flat = tuple(v for pair in reversed(pw) for v in pair)
    return torch.nn.functional.pad(x, flat)

kernel_name = 'concat_heads__mha_block__spectral_fnet__prompt'

def setup_inputs():

    _w = (lambda a: (lambda t: t.to(torch.bfloat16) if t.is_floating_point() else t)(torch.as_tensor(a)))
    def _A_setup():
        B, S, D, H = 1, 2048, 640, 32
        return {
            "x": _w((lambda *s: torch.randn(*s, dtype=torch.bfloat16) * 0.2)(B, S, D)),
            "wqkv": _w((lambda *s: torch.randn(*s, dtype=torch.bfloat16) * 0.8)(D, 3 * D)),
            "wo": _w((lambda *s: torch.randn(*s, dtype=torch.bfloat16) * 0.2)(D, D)),
        }
    _A_in = _A_setup()

    def _B_setup():
        B, S, D = 1, 2048, 640
        ns = torch.arange(S)[:, None] * torch.arange(S)[None, :]
        nd = torch.arange(D)[:, None] * torch.arange(D)[None, :]
        Ws_re = torch.cos(-2.0 * torch.pi * ns / S).to(float)
        Ws_im = torch.sin(-2.0 * torch.pi * ns / S).to(float)
        Wd_re = torch.cos(-2.0 * torch.pi * nd / D).to(float)
        Wd_im = torch.sin(-2.0 * torch.pi * nd / D).to(float)
        return {
            "x": _w((lambda *s: torch.randn(*s, dtype=torch.bfloat16) * 0.05)(B, S, D)),
            "dft_seq_re": _w(Ws_re),
            "dft_seq_im": _w(Ws_im),
            "dft_hid_re": _w(Wd_re),
            "dft_hid_im": _w(Wd_im),
        }
    _B_in = _B_setup()

    return {
        "A_x": _A_in["x"],
        "A_wqkv": _A_in["wqkv"],
        "A_wo": _A_in["wo"],
        "B_x": _B_in["x"],
        "B_dft_seq_re": _B_in["dft_seq_re"],
        "B_dft_seq_im": _B_in["dft_seq_im"],
        "B_dft_hid_re": _B_in["dft_hid_re"],
        "B_dft_hid_im": _B_in["dft_hid_im"],
    }

def reference(A_x, A_wqkv, A_wo, B_x, B_dft_seq_re, B_dft_seq_im, B_dft_hid_re, B_dft_hid_im):
    def _A_ref(x, wqkv, wo):
        B, S, D = x.shape
        H = 32
        Dh = D // H
        qkv = (lambda x, *d: x.permute(*d))((x @ wqkv).reshape(B, S, 3, H, Dh), 2, 0, 3, 1, 4)
        q, k, v = qkv[0], qkv[1], qkv[2]
        scores = torch.einsum("bhqd,bhkd->bhqk", q, k) * (Dh ** -0.5)
        p = _softmax(scores, axis=-1)
        o = torch.einsum("bhqk,bhkd->bhqd", p, v)
        return (lambda x, *d: x.permute(*d))(o, 0, 2, 1, 3).reshape(B, S, D) @ wo

    def _B_ref(x, dft_seq_re, dft_seq_im, dft_hid_re, dft_hid_im):
        a = torch.einsum("bsd,ed->bse", x, dft_hid_re)
        b = torch.einsum("bsd,ed->bse", x, dft_hid_im)
        y = torch.einsum("ts,bse->bte", dft_seq_re, a) - torch.einsum("ts,bse->bte", dft_seq_im, b)
        return y

    a = _A_ref(A_x, A_wqkv, A_wo)
    b = _B_ref(B_x, B_dft_seq_re, B_dft_seq_im, B_dft_hid_re, B_dft_hid_im)
    return torch.concatenate([a, b], axis=-1)
```

```python
class Asm:
    def __init__(self):
        self.lines = []
        self.nlab = 0
    def __call__(self, s=""):
        for l in s.split("\n"):
            l = l.strip()
            if not l: continue
            if l.endswith(":") or l.startswith("."):
                self.lines.append(l)
            else:
                self.lines.append("    " + l)
    def c(self, s):
        self.lines.append("    ; " + s)
    def label(self, base="L"):
        self.nlab += 1
        return f"{base}_{self.nlab}"
    def text(self):
        return "\n".join(self.lines) + "\n"

def vr(a, n=1):
    return f"v{a}" if n == 1 else f"v[{a}:{a+n-1}]"
def sr(a, n=1):
    return f"s{a}" if n == 1 else f"s[{a}:{a+n-1}]"

def kernel_header(a, name):
    a(f".globl {name}")
    a(".p2align 8")
    a(f".type {name},@function")
    a(f"{name}:")

def kernel_desc(name, nvgpr, nsgpr=96):
    acc = (nvgpr + 3) // 4 * 4
    return f""".amdhsa_kernel {name}
  .amdhsa_next_free_vgpr {nvgpr}
  .amdhsa_next_free_sgpr {nsgpr}
  .amdhsa_accum_offset {acc}
  .amdhsa_group_segment_fixed_size 0
  .amdhsa_kernarg_size 88
  .amdhsa_user_sgpr_count 2
  .amdhsa_user_sgpr_kernarg_segment_ptr 1
  .amdhsa_system_sgpr_workgroup_id_x 1
.end_amdhsa_kernel
"""

def make_srd(a, d, base, off, size):
    if off == 0:
        a(f"s_mov_b32 s{d}, s{base}")
        a(f"s_mov_b32 s{d+1}, s{base+1}")
    else:
        a(f"s_add_u32 s{d}, s{base}, {off}")
        a(f"s_addc_u32 s{d+1}, s{base+1}, 0")
    a(f"s_mov_b32 s{d+2}, {size}")
    a(f"s_mov_b32 s{d+3}, 0x00020000")
```

```python
import sys, struct
from lib import *

KV_OFF = 0; KV_HEAD = 163840; TILE_KV = 2560; KV_SIZE = 32*KV_HEAD
Q_OFF = 5242880; Q_HEAD = 81920; TILE_Q = 1280; Q_SIZE = 32*Q_HEAD
O_OFF = 7864320; O_SIZE = 2048*1280
U_OFF = 10485760; U_SIZE = 4*17*40*1024
AB_OFF = 13271040; AB_SIZE = 4*11*34*1024
X_SIZE = 2048*1280
OUT_SIZE = 2048*2560
HUGE = 0x40000000
QSCALE = (20 ** -0.5) * 1.4426950408889634
def f32bits(x): return struct.unpack('<I', struct.pack('<f', x))[0]

def gemm_loader(a, NS, NCH, strideB, sA, sB, sW):
    a.c("loader wave")
    a("v_and_b32 v1, 63, v0")
    a("v_lshrrev_b32 v2, 3, v1")
    a(f"s_lshl_b32 s30, s{sW}, 3")
    a("v_add_u32 v2, s30, v2")
    a("v_mul_u32_u24 v2, 1280, v2")
    a("v_lshrrev_b32 v3, 4, v1")
    a(f"s_and_b32 s30, s{sW}, 1")
    a("s_lshl_b32 s30, s30, 2")
    a("v_or_b32 v4, s30, v3")
    a("v_and_b32 v5, 7, v1")
    a("v_xor_b32 v4, v4, v5")
    a("v_lshl_add_u32 v10, v4, 4, v2")
    a(f"s_lshl_b32 s30, s{sW}, 2")
    a("v_add_u32 v2, s30, v3")
    a(f"v_mul_u32_u24 v2, {strideB}, v2")
    a("v_lshlrev_b32 v4, 2, v3")
    a("v_and_b32 v5, 15, v1")
    a("v_xor_b32 v4, v4, v5")
    a("v_lshl_add_u32 v11, v4, 4, v2")
    a(f"s_lshl_b32 s31, s{sW}, 10")
    def issue(c):
        sl = c % NS
        for j in range(4):
            a(f"s_add_u32 m0, s31, {sl*32768 + j*4096}")
            a(f"s_mov_b32 s30, {j*32*1280 + c*128}")
            a(f"buffer_load_dwordx4 v10, {sr(sA,4)}, s30 offen lds")
            a(f"s_add_u32 m0, s31, {sl*32768 + 16384 + j*4096}")
            a(f"s_mov_b32 s30, {j*16*strideB + c*64*strideB}")
            a(f"buffer_load_dwordx4 v11, {sr(sB,4)}, s30 offen lds")
    issued = min(NS, NCH)
    for c in range(issued): issue(c)
    for c in range(NCH):
        a(f"s_waitcnt vmcnt({8*(issued-c-1)})")
        a("s_barrier")
        if c >= 1 and issued < NCH:
            issue(issued); issued += 1
    a("s_endpgm")

AX = 8
AW = 20
FR = 32
ACC = 64
def gemm_compute_setup(a, NS, sW):
    nset = (NS + 1) // 2
    a("v_and_b32 v1, 63, v0")
    a("v_and_b32 v2, 31, v1")
    a("v_lshrrev_b32 v3, 5, v1")
    a(f"s_and_b32 s30, s{sW}, 1")
    a("s_lshl_b32 s30, s30, 6")
    a("v_add_u32 v4, s30, v2")
    a("v_lshlrev_b32 v4, 7, v4")
    a("v_bfe_u32 v5, v1, 1, 3")
    a("v_xor_b32 v5, v5, v3")
    for ks in range(4):
        a(f"v_xor_b32 v6, {2*ks}, v5")
        a(f"v_lshl_add_u32 v{AX+ks}, v6, 4, v4")
    a("v_bfe_u32 v4, v1, 2, 2")
    a("v_lshl_add_u32 v5, v3, 3, v4")
    a("v_lshlrev_b32 v5, 8, v5")
    a("v_and_b32 v6, 1, v1")
    a("v_lshl_add_u32 v5, v6, 3, v5")
    a("v_add_u32 v5, 16384, v5")
    a("v_bfe_u32 v6, v1, 4, 1")
    a("v_bfe_u32 v7, v1, 1, 1")
    a("v_lshl_add_u32 v6, v6, 1, v7")
    a(f"s_lshr_b32 s30, s{sW}, 1")
    a("s_lshl_b32 s30, s30, 3")
    a("v_add_u32 v6, s30, v6")
    a("v_lshlrev_b32 v4, 2, v4")
    for nt in range(2):
        a(f"v_add_u32 v7, {4*nt}, v6")
        a("v_xor_b32 v7, v7, v4")
        a(f"v_lshl_add_u32 v{AW+nt}, v7, 4, v5")
    for q in range(1, nset):
        for ks in range(4): a(f"v_add_u32 v{AX+4*q+ks}, {q*65536}, v{AX+ks}")
        for nt in range(2): a(f"v_add_u32 v{AW+2*q+nt}, {q*65536}, v{AW+nt}")

def gemm_loop(a, NS, NCH, swap):
    NK = NCH * 4
    def reads(k):
        c, ks = divmod(k, 4); sl = c % NS; q = sl >> 1; so = (sl & 1) * 32768
        b = FR + (k & 1) * 16
        r = []
        r.append(f"ds_read_b64_tr_b16 {vr(b+8,2)}, v{AW+2*q} offset:{so + ks*4096}")
        r.append(f"ds_read_b64_tr_b16 {vr(b+10,2)}, v{AW+2*q} offset:{so + ks*4096 + 1024}")
        r.append(f"ds_read_b128 {vr(b,4)}, v{AX+4*q+ks} offset:{so}")
        r.append(f"ds_read_b128 {vr(b+4,4)}, v{AX+4*q+ks} offset:{so + 4096}")
        r.append(f"ds_read_b64_tr_b16 {vr(b+12,2)}, v{AW+2*q+1} offset:{so + ks*4096}")
        r.append(f"ds_read_b64_tr_b16 {vr(b+14,2)}, v{AW+2*q+1} offset:{so + ks*4096 + 1024}")
        return r
    def mfma(k, nt, mt):
        b = FR + (k & 1) * 16
        d = vr(ACC + (2*nt+mt)*16, 16)
        w = vr(b + 8 + 4*nt, 4); x = vr(b + 4*mt, 4)
        cc = "0" if k == 0 else d
        return f"v_mfma_f32_32x32x16_bf16 {d}, {x}, {w}, {cc}" if swap else f"v_mfma_f32_32x32x16_bf16 {d}, {w}, {x}, {cc}"
    a("s_barrier")
    for r in reads(0): a(r)
    for k in range(NK):
        a("s_waitcnt lgkmcnt(0)")
        nx = reads(k+1) if k + 1 < NK else []
        a(mfma(k, 0, 0))
        if k % 4 == 3 and k + 1 < NK: a("s_barrier")
        for r in nx[0:2]: a(r)
        a(mfma(k, 0, 1))
        for r in nx[2:4]: a(r)
        a(mfma(k, 1, 0))
        for r in nx[4:6]: a(r)
        a(mfma(k, 1, 1))
    a("s_nop 15")

def k_qkv(a, NS=4):
    name = "qkv_kernel"
    kernel_header(a, name)
    a("s_cmp_ge_u32 s2, 256")
    a("s_cbranch_scc1 L_qkv_end")
    a("s_load_dwordx4 s[4:7], s[0:1], 0")
    a("s_load_dwordx2 s[8:9], s[0:1], 80")
    a("s_load_dwordx2 s[10:11], s[0:1], 24")
    a("v_lshrrev_b32 v1, 6, v0")
    a("s_and_b32 s27, s2, 7")
    a("v_readfirstlane_b32 s26, v1")
    a("s_lshr_b32 s28, s2, 3")
    a("s_cmp_ge_u32 s28, 30")
    a("s_cbranch_scc1 L_fold")
    a("s_lshr_b32 s29, s27, 2")
    a("s_mul_i32 s29, s29, 30")
    a("s_add_u32 s29, s29, s28")
    a("s_lshr_b32 s25, s29, 2")
    a("s_and_b32 s29, s29, 3")
    a("s_and_b32 s24, s27, 3")
    a("s_lshl_b32 s24, s24, 2")
    a("s_add_u32 s24, s24, s29")
    a("s_waitcnt lgkmcnt(0)")
    a("s_cmp_lt_u32 s26, 4")
    a("s_cbranch_scc1 L_qkv_compute")
    a("s_mul_i32 s29, s24, 163840")
    make_srd(a, 12, 4, "s29", 163840)
    a("s_lshl_b32 s29, s25, 8")
    a("s_sub_u32 s30, 2457600, s29")
    make_srd(a, 16, 6, "s29", "s30")
    a("s_sub_u32 s26, s26, 4")
    gemm_loader(a, NS, 10, 3840, 12, 16, 26)
    a("L_qkv_compute:")
    gemm_compute_setup(a, NS, 26)
    a("s_and_b32 s30, s26, 1")
    a("s_lshl_b32 s33, s24, 2")
    a("s_lshl_b32 s30, s30, 1")
    a("s_add_u32 s33, s33, s30")
    a("s_lshr_b32 s34, s26, 1")
    a("s_cmp_ge_u32 s25, 10")
    a("s_cbranch_scc1 L_qkv_v")
    a("s_cmp_ge_u32 s25, 5")
    for reg, k, q in [(35, KV_HEAD, Q_HEAD), (36, TILE_KV, TILE_Q), (37, f32bits(1.0), f32bits(QSCALE)), (38, KV_OFF, Q_OFF), (39, KV_SIZE, Q_SIZE)]:
        a(f"s_mov_b32 s{reg}, {q}")
        a(f"s_cmov_b32 s{reg}, {k}")
    a("s_cselect_b32 s30, 5, 0")
    make_srd(a, 20, 8, "s38", "s39")
    a("s_sub_u32 s30, s25, s30")
    a("s_lshl_b32 s30, s30, 5")
    a("s_lshl_b32 s31, s34, 4")
    a("s_add_u32 s30, s30, s31")
    a("s_mul_i32 s31, s33, s36")
    a("v_lshlrev_b32 v26, 4, v2")
    a("v_lshlrev_b32 v27, 3, v2")
    a("v_add_u32 v27, 1024, v27")
    EA = 128
    for nt in range(2):
        for j in range(4):
            e = EA + nt*4 + j
            a(f"s_add_u32 s32, s30, {8*nt + 2*j}")
            a("v_add_u32 v4, s32, v3")
            a("v_mul_u32_u24 v5, 205, v4")
            a("v_lshrrev_b32 v5, 10, v5")
            a("v_mul_u32_u24 v6, 5, v5")
            a("v_sub_u32 v4, v4, v6")
            a("v_lshrrev_b32 v6, 1, v4")
            a("v_lshl_add_u32 v6, v6, 9, v26")
            a("v_and_b32 v7, 1, v4")
            a("v_lshl_add_u32 v6, v7, 3, v6")
            a("v_cmp_gt_u32 vcc, 4, v4")
            a("v_mul_lo_u32 v5, v5, s35")
            a("v_add_u32 v5, s31, v5")
            a("v_cndmask_b32 v6, v27, v6, vcc")
            a(f"v_add_u32 v{e}, v5, v6")
    gemm_loop(a, NS, 10, False)
    for nt in range(2):
        for mt in range(2):
            b = ACC + (2*nt+mt)*16
            for r in range(16): a(f"v_mul_f32 v{b+r}, s37, v{b+r}")
            for r in range(8): a(f"v_cvt_pk_bf16_f32 v{b+r}, v{b+2*r}, v{b+2*r+1}")
            for j in range(4):
                so = "s36" if mt else "0"
                a(f"buffer_store_dwordx2 {vr(b+2*j,2)}, v{EA+nt*4+j}, s[20:23], {so} offen")
    a("s_endpgm")
    a("L_qkv_v:")
    make_srd(a, 20, 8, KV_OFF, KV_SIZE)
    a("s_sub_u32 s30, s25, 10")
    a("s_lshl_b32 s30, s30, 7")
    a("s_lshl_b32 s31, s34, 6")
    a("s_add_u32 s30, s30, s31")
    a(f"s_mul_i32 s31, s33, {TILE_KV}")
    a("s_add_u32 s31, s31, 1280")
    a(f"s_mov_b32 s35, {KV_HEAD}")
    for nt in range(2):
        a(f"s_add_u32 s32, s30, {32*nt}")
        a("v_add_u32 v4, s32, v2")
        a("v_mul_u32_u24 v5, 3277, v4")
        a("v_lshrrev_b32 v5, 16, v5")
        a("v_mul_u32_u24 v6, 20, v5")
        a("v_sub_u32 v4, v4, v6")
        a("v_mul_u32_u24 v6, 20, v3")
        a("v_add_u32 v4, v4, v6")
        a("v_mul_lo_u32 v5, v5, s35")
        a("v_add_u32 v5, s31, v5")
        a(f"v_lshl_add_u32 v{EA+nt}, v4, 4, v5")
    gemm_loop(a, NS, 10, True)
    for nt in range(2):
        for mt in range(2):
            b = ACC + (2*nt+mt)*16
            for r in range(8): a(f"v_cvt_pk_bf16_f32 v{b+r}, v{b+2*r}, v{b+2*r+1}")
            for jp in range(2):
                a(f"buffer_store_dwordx4 {vr(b+4*jp,4)}, v{EA+nt}, s[20:23], 0 offen offset:{mt*TILE_KV + jp*640}")
    a("s_endpgm")
    a("L_fold:")
    a("s_sub_u32 s28, s28, 30")
    a("s_lshl_b32 s28, s28, 3")
    a("s_add_u32 s28, s28, s27")
    a("s_lshl_b32 s28, s28, 3")
    a("s_add_u32 s28, s28, s26")
    a("s_waitcnt lgkmcnt(0)")
    make_srd(a, 12, 10, 0, X_SIZE)
    make_srd(a, 16, 8, U_OFF, U_SIZE)
    a("v_and_b32 v1, 63, v0")
    a("v_and_b32 v2, 19, v1")
    a("v_bfe_u32 v3, v1, 2, 1")
    a("v_lshl_or_b32 v2, v3, 3, v2")
    a("v_bfe_u32 v3, v1, 3, 1")
    a("v_lshl_or_b32 v2, v3, 2, v2")
    a("v_lshrrev_b32 v3, 5, v1")
    a("v_lshlrev_b32 v3, 4, v3")
    a("v_lshlrev_b32 v9, 4, v1")
    a(f"v_mov_b32 v8, {HUGE}")
    LD = 16
    NU = 6
    for n in range(NU):
        if n == NU - 1:
            a("s_cmp_ge_u32 s28, 40")
            a("s_cbranch_scc1 L_fold_ld_done")
        a(f"s_add_u32 s30, s28, {128*n}")
        a("s_mul_i32 s31, s30, 1639")
        a("s_lshr_b32 s31, s31, 16")
        a("s_mul_i32 s32, s31, 40")
        a("s_sub_u32 s32, s30, s32")
        a("s_lshl_b32 s32, s32, 5")
        a("s_lshl_b32 s33, s31, 5")
        a("v_add_u32 v4, s33, v2")
        a("v_mul_u32_u24 v5, 1280, v4")
        b = LD + 16*n
        a("v_cmp_ge_u32 vcc, 512, v4")
        a("v_add_u32 v6, v5, v3")
        a("v_sub_u32 v7, v3, v5")
        a(f"v_add_u32 v7, {2048*1280}, v7")
        a("v_cndmask_b32 v6, v8, v6, vcc")
        a("v_cndmask_b32 v7, v8, v7, vcc")
        a(f"buffer_load_dwordx4 {vr(b,4)}, v6, s[12:15], s32 offen")
        a(f"buffer_load_dwordx4 {vr(b+4,4)}, v7, s[12:15], s32 offen")
        a("v_cmp_gt_u32 vcc, 512, v4")
        a("v_sub_u32 v7, v3, v5")
        a(f"v_add_u32 v7, {1024*1280}, v7")
        a("v_cndmask_b32 v7, v8, v7, vcc")
        a("v_add_u32 v4, -1, v4")
        a("v_cmp_gt_u32 vcc, 511, v4")
        a("v_add_u32 v6, v5, v3")
        a(f"v_add_u32 v6, {1024*1280}, v6")
        a("v_cndmask_b32 v6, v8, v6, vcc")
        a(f"buffer_load_dwordx4 {vr(b+8,4)}, v7, s[12:15], s32 offen")
        a(f"buffer_load_dwordx4 {vr(b+12,4)}, v6, s[12:15], s32 offen")
    a("L_fold_ld_done:")
    T = 112
    a("s_mov_b32 s34, 0xffff0000")
    for n in range(NU):
        if n == NU - 1:
            a("s_cmp_ge_u32 s28, 40")
            a("s_cbranch_scc1 L_qkv_end")
        a("s_waitcnt vmcnt(%d)" % (20 if n == NU - 1 else 16))
        b = LD + 16*n
        for r in range(4):
            for d in range(4):
                a(f"v_lshlrev_b32 v{T+8*r+2*d}, 16, v{b+4*r+d}")
                a(f"v_and_b32 v{T+8*r+2*d+1}, s34, v{b+4*r+d}")
        R = 144
        for d in range(4):
            p = lambda r: vr(T+8*r+2*d, 2)
            q = lambda r: vr(R+8*r+2*d, 2)
            a(f"v_pk_add_f32 {q(0)}, {p(0)}, {p(1)}")
            a(f"v_pk_add_f32 {q(1)}, {p(0)}, {p(1)} neg_lo:[0,1] neg_hi:[0,1]")
            a(f"v_pk_add_f32 {q(2)}, {p(2)}, {p(3)}")
            a(f"v_pk_add_f32 {q(3)}, {p(2)}, {p(3)} neg_lo:[0,1] neg_hi:[0,1]")
            a(f"v_pk_add_f32 {p(0)}, {q(0)}, {q(2)}")
            a(f"v_pk_add_f32 {p(1)}, {q(0)}, {q(2)} neg_lo:[0,1] neg_hi:[0,1]")
            a(f"v_pk_add_f32 {p(2)}, {q(1)}, {q(3)} neg_lo:[0,1] neg_hi:[0,1]")
            a(f"v_pk_add_f32 {p(3)}, {q(1)}, {q(3)}")
        a(f"s_add_u32 s30, s28, {128*n}")
        a("s_lshl_b32 s30, s30, 10")
        for i in range(4):
            for d in range(4):
                a(f"v_cvt_pk_bf16_f32 v{b+4*i+d}, v{T+8*i+2*d}, v{T+8*i+2*d+1}")
            a(f"buffer_store_dwordx4 {vr(b+4*i,4)}, v9, s[16:19], s30 offen")
            if i < 3: a(f"s_add_u32 s30, s30, {17*40*1024}")
    a("L_qkv_end:")
    a("s_endpgm")
    return kernel_desc(name, 176)

def k_proj(a, NS=4):
    name = "proj_kernel"
    kernel_header(a, name)
    a("s_cmp_ge_u32 s2, 80")
    a("s_cbranch_scc1 L_proj_end")
    a("s_load_dwordx2 s[6:7], s[0:1], 16")
    a("s_load_dwordx2 s[4:5], s[0:1], 80")
    a("s_load_dwordx2 s[8:9], s[0:1], 64")
    a("v_lshrrev_b32 v1, 6, v0")
    a("s_and_b32 s24, s2, 15")
    a("v_readfirstlane_b32 s26, v1")
    a("s_lshr_b32 s25, s2, 4")
    a("s_waitcnt lgkmcnt(0)")
    a("s_cmp_lt_u32 s26, 4")
    a("s_cbranch_scc1 L_proj_compute")
    a("s_mul_i32 s29, s24, 163840")
    a(f"s_add_u32 s29, s29, {O_OFF}")
    make_srd(a, 12, 4, "s29", 163840)
    a("s_lshl_b32 s29, s25, 8")
    a("s_sub_u32 s30, 819200, s29")
    make_srd(a, 16, 6, "s29", "s30")
    a("s_sub_u32 s26, s26, 4")
    gemm_loader(a, NS, 10, 1280, 12, 16, 26)
    a("L_proj_compute:")
    gemm_compute_setup(a, NS, 26)
    make_srd(a, 20, 8, 0, OUT_SIZE)
    a("s_and_b32 s30, s26, 1")
    a("s_lshl_b32 s30, s30, 6")
    a("s_lshl_b32 s31, s24, 7")
    a("s_add_u32 s30, s30, s31")
    a("v_add_u32 v4, s30, v2")
    a("v_mul_u32_u24 v4, 2560, v4")
    a("s_lshr_b32 s30, s26, 1")
    a("s_lshl_b32 s30, s30, 7")
    a("s_lshl_b32 s31, s25, 8")
    a("s_add_u32 s30, s30, s31")
    a("v_add_u32 v4, s30, v4")
    a("v_lshl_add_u32 v128, v3, 3, v4")
    a("s_mov_b32 s36, 81920")
    gemm_loop(a, NS, 10, False)
    for nt in range(2):
        for mt in range(2):
            b = ACC + (2*nt+mt)*16
            for r in range(8): a(f"v_cvt_pk_bf16_f32 v{b+r}, v{b+2*r}, v{b+2*r+1}")
            for j in range(4):
                so = "s36" if mt else "0"
                a(f"buffer_store_dwordx2 {vr(b+2*j,2)}, v128, s[20:23], {so} offen offset:{(32*nt+8*j)*2}")
    a("L_proj_end:")
    a("s_endpgm")
    return kernel_desc(name, 136)

def wave_gemm(a, steps, DEPTH, FB):
    n = len(steps)
    def issue(k):
        b = FB + (k % DEPTH) * 8
        for l in steps[k][0](b): a(l)
        for l in steps[k][1](b + 4): a(l)
    for k in range(min(DEPTH, n)): issue(k)
    for k in range(n):
        issued = min(n, k + DEPTH)
        a(f"s_waitcnt vmcnt({2*(issued-k-1)})")
        b = FB + (k % DEPTH) * 8
        d = vr(steps[k][2], 16)
        a(f"v_mfma_f32_32x32x16_bf16 {d}, {vr(b,4)}, {vr(b+4,4)}, {'0' if steps[k][3] else d}")
        if k + DEPTH < n: issue(k + DEPTH)

def k_f1(a):
    name = "fone_kernel"
    kernel_header(a, name)
    a("v_lshrrev_b32 v1, 6, v0")
    a("s_lshl_b32 s24, s2, 2")
    a("v_readfirstlane_b32 s26, v1")
    a("s_load_dwordx4 s[4:7], s[0:1], 48")
    a("s_load_dwordx2 s[8:9], s[0:1], 80")
    a("s_add_u32 s24, s24, s26")
    a("s_cmp_ge_u32 s24, 748")
    a("s_cbranch_scc1 L_f1_end")
    a("s_mul_i32 s25, s24, 5958")
    a("s_lshr_b32 s25, s25, 16")
    a("s_mul_i32 s27, s25, 11")
    a("s_sub_u32 s27, s24, s27")
    a("s_mul_i32 s28, s25, 3856")
    a("s_lshr_b32 s28, s28, 16")
    a("s_mul_i32 s29, s28, 17")
    a("s_sub_u32 s29, s25, s29")
    a("s_waitcnt lgkmcnt(0)")
    a("s_cmp_ge_u32 s28, 2")
    a("s_cselect_b32 s4, s6, s4")
    a("s_cselect_b32 s5, s7, s5")
    make_srd(a, 12, 4, 0, 819200)
    a("s_mul_i32 s30, s25, 40960")
    a(f"s_add_u32 s30, s30, {U_OFF}")
    make_srd(a, 16, 8, "s30", 40960)
    make_srd(a, 20, 8, AB_OFF, AB_SIZE)
    a("v_and_b32 v1, 63, v0")
    a("v_lshlrev_b32 v2, 4, v1")
    a("v_and_b32 v3, 31, v1")
    a("s_lshl_b32 s30, s27, 5")
    a("v_add_u32 v3, s30, v3")
    a("v_mul_u32_u24 v3, 1280, v3")
    a("v_lshrrev_b32 v4, 5, v1")
    a("v_lshl_add_u32 v3, v4, 4, v3")
    steps = []
    for j in range(40):
        la = (lambda j: lambda r: ([f"s_mov_b32 s31, {(j//4)*4096}"] if j % 4 == 0 else []) + [f"buffer_load_dwordx4 {vr(r,4)}, v2, s[16:19], s31 offen offset:{(j%4)*1024}"])(j)
        lb = (lambda j: lambda r: [f"buffer_load_dwordx4 {vr(r,4)}, v3, s[12:15], 0 offen offset:{32*j}"])(j)
        steps.append((la, lb, 8, j == 0))
    wave_gemm(a, steps, 14, 24)
    a("s_mul_i32 s30, s28, 11")
    a("s_add_u32 s30, s30, s27")
    a("s_mul_i32 s30, s30, 34")
    a("s_lshl_b32 s31, s29, 1")
    a("s_add_u32 s30, s30, s31")
    a("s_lshl_b32 s30, s30, 10")
    a("s_nop 7")
    for r in range(8): a(f"v_cvt_pk_bf16_f32 v{8+r}, v{8+2*r}, v{8+2*r+1}")
    a("buffer_store_dwordx4 v[8:11], v2, s[20:23], s30 offen")
    a("buffer_store_dwordx4 v[12:15], v2, s[20:23], s30 offen offset:1024")
    a("L_f1_end:")
    a("s_endpgm")
    return kernel_desc(name, 136)

def k_f2(a):
    name = "ftwo_kernel"
    kernel_header(a, name)
    a("v_lshrrev_b32 v1, 6, v0")
    a("s_lshl_b32 s24, s2, 2")
    a("v_readfirstlane_b32 s26, v1")
    a("s_load_dwordx4 s[4:7], s[0:1], 32")
    a("s_load_dwordx2 s[8:9], s[0:1], 80")
    a("s_load_dwordx2 s[10:11], s[0:1], 64")
    a("s_add_u32 s24, s24, s26")
    a("s_cmp_ge_u32 s24, 363")
    a("s_cbranch_scc1 L_f2_end")
    a("s_mul_i32 s25, s24, 5958")
    a("s_lshr_b32 s25, s25, 16")
    a("s_mul_i32 s27, s25, 11")
    a("s_sub_u32 s27, s24, s27")
    a("s_and_b32 s28, s25, 1")
    a("s_lshr_b32 s29, s25, 1")
    a("s_waitcnt lgkmcnt(0)")
    make_srd(a, 12, 4, 0, 8388608)
    make_srd(a, 16, 6, 0, 8388608)
    a("s_mul_i32 s30, s28, 11")
    a("s_add_u32 s30, s30, s27")
    a(f"s_mul_i32 s30, s30, {34*1024}")
    a(f"s_add_u32 s30, s30, {AB_OFF}")
    make_srd(a, 20, 8, "s30", 34*1024)
    a(f"s_add_u32 s30, s30, {22*34*1024}")
    make_srd(a, 32, 8, "s30", 34*1024)
    make_srd(a, 36, 10, 0, OUT_SIZE)
    a("v_and_b32 v1, 63, v0")
    a("v_lshlrev_b32 v2, 4, v1")
    a("v_and_b32 v5, 31, v1")
    a("s_lshl_b32 s30, s29, 6")
    a("s_add_u32 s30, s30, s28")
    a("v_lshl_add_u32 v3, v5, 1, s30")
    a("v_lshlrev_b32 v3, 12, v3")
    a("v_lshrrev_b32 v4, 5, v1")
    a("v_lshl_add_u32 v3, v4, 4, v3")
    steps = []
    for k in range(33):
        for m in range(2):
            la = (lambda k, m: lambda r: [f"buffer_load_dwordx4 {vr(r,4)}, v3, {sr(12+4*m,4)}, 0 offen offset:{32*k}"])(k, m)
            lb = (lambda k, m: lambda r: ([f"s_mov_b32 s31, {(k//4)*4096}"] if (k % 4 == 0 and m == 0) else []) + [f"buffer_load_dwordx4 {vr(r,4)}, v2, {sr(20 if m == 0 else 32,4)}, s31 offen offset:{(k%4)*1024}"])(k, m)
            steps.append((la, lb, 8 + 16*m, k == 0))
    wave_gemm(a, steps, 14, 40)
    a("s_lshl_b32 s31, s27, 5")
    a("v_add_u32 v5, s31, v5")
    a(f"v_mov_b32 v6, {HUGE}")
    a("v_lshlrev_b32 v7, 1, v5")
    a("v_add_u32 v40, 1280, v7")
    a("v_cmp_ge_u32 vcc, 320, v5")
    a("v_sub_u32 v41, 2560, v7")
    a("v_add_u32 v7, -1, v5")
    a("v_cndmask_b32 v40, v6, v40, vcc")
    a("v_cmp_gt_u32 vcc, 319, v7")
    a("v_lshl_add_u32 v7, v4, 3, s30")
    a("v_mul_u32_u24 v7, 2560, v7")
    a("v_cndmask_b32 v41, v6, v41, vcc")
    a(f"v_sub_u32 v44, {(2048-54)*2560}, v7")
    a("v_add_u32 v42, v44, v40")
    a("v_add_u32 v43, v44, v41")
    a("v_add_u32 v40, v7, v40")
    a("v_add_u32 v41, v7, v41")
    for r in range(16):
        a(f"v_add_f32 v{48+r}, v{8+r}, v{24+r}")
        a(f"v_sub_f32 v{64+r}, v{8+r}, v{24+r}")
    for r in range(8):
        a(f"v_cvt_pk_bf16_f32 v{48+r}, v{48+2*r}, v{48+2*r+1}")
        a(f"v_cvt_pk_bf16_f32 v{64+r}, v{64+2*r}, v{64+2*r+1}")
    a("s_cmp_eq_u32 s25, 32")
    a("s_cbranch_scc1 L_f2_nyq")
    for r in range(16):
        ro = (r & 3) + 8 * (r >> 2)
        st = "buffer_store_short_d16_hi" if r & 1 else "buffer_store_short"
        a(f"s_mov_b32 s40, {ro*5120}")
        a(f"s_mov_b32 s41, {(27-ro)*5120}")
        a(f"{st} v{64+r//2}, v40, s[36:39], s40 offen")
        a(f"{st} v{48+r//2}, v41, s[36:39], s40 offen")
        if r == 0:
            a(f"v_add_u32 v45, {27*5120}, v42")
            a(f"v_add_u32 v46, {27*5120}, v43")
            a(f"{st} v48, v45, s[36:39], 0 offen")
            a(f"{st} v64, v46, s[36:39], 0 offen")
        else:
            a(f"{st} v{48+r//2}, v42, s[36:39], s41 offen")
            a(f"{st} v{64+r//2}, v43, s[36:39], s41 offen")
    a("s_endpgm")
    a("L_f2_nyq:")
    a("v_cmp_eq_u32 vcc, 0, v4")
    a("s_nop 1")
    a("v_cndmask_b32 v40, v6, v40, vcc")
    a("v_cndmask_b32 v41, v6, v41, vcc")
    a("buffer_store_short v64, v40, s[36:39], 0 offen")
    a("buffer_store_short v48, v41, s[36:39], 0 offen")
    a("L_f2_end:")
    a("s_endpgm")
    return kernel_desc(name, 152)

def k_attn(a):
    name = "attn_kernel"
    kernel_header(a, name)
    QA, QB = 4, 8
    AKA, AKB, AV = 10, 13, 16
    NEG = 32; S = [48, 64]; O = 80; P = 96
    KB = [104, 110]
    VB = [116, 124]
    a("s_cmp_ge_u32 s2, 256")
    a("s_cbranch_scc1 L_attn_end")
    a("s_load_dwordx2 s[4:5], s[0:1], 80")
    a("v_lshrrev_b32 v1, 6, v0")
    a("s_and_b32 s20, s2, 31")
    a("v_readfirstlane_b32 s22, v1")
    a("s_lshr_b32 s21, s2, 5")
    a("v_and_b32 v1, 63, v0")
    a("v_lshlrev_b32 v10, 4, v1")
    a("v_and_b32 v2, 31, v1")
    a("v_lshrrev_b32 v3, 5, v1")
    a("v_lshlrev_b32 v13, 3, v2")
    a("v_add_u32 v13, 1024, v13")
    a("v_mul_u32_u24 v16, 20, v3")
    a("v_add_u32 v16, v16, v2")
    a("v_lshlrev_b32 v16, 4, v16")
    a("v_add_u32 v16, 1280, v16")
    a(f"v_mov_b32 v19, {HUGE}")
    a("v_cmp_gt_u32 vcc, 32, v1")
    a("s_lshl_b32 s23, s21, 3")
    a("s_add_u32 s23, s23, s22")
    a("v_cndmask_b32 v19, v19, v13, vcc")
    a(f"s_mul_i32 s28, s23, {TILE_Q}")
    a("s_waitcnt lgkmcnt(0)")
    a(f"s_mul_i32 s29, s20, {Q_HEAD}")
    a(f"s_add_u32 s29, s29, {Q_OFF}")
    make_srd(a, 12, 4, "s29", Q_HEAD)
    a(f"s_mul_i32 s29, s20, {KV_HEAD}")
    make_srd(a, 8, 4, "s29", KV_HEAD)
    a(f"buffer_load_dwordx4 {vr(QA,4)}, v10, s[12:15], s28 offen")
    a(f"buffer_load_dwordx2 {vr(QB,2)}, v19, s[12:15], s28 offen")
    a("s_lshl_b32 s30, s22, 10")
    for j in range(20):
        a("s_mov_b32 m0, s30")
        a("s_nop 0")
        a("buffer_load_dwordx4 v10, s[8:11], s30 offen lds")
        if j < 19: a("s_add_u32 s30, s30, 8192")
    make_srd(a, 16, 4, O_OFF, O_SIZE)
    for q in (1, 2):
        a(f"v_add_u32 v{AKA+q}, {q*25*TILE_KV}, v{AKA}")
        a(f"v_add_u32 v{AKB+q}, {q*25*TILE_KV}, v{AKB}")
        a(f"v_add_u32 v{AV+q}, {q*25*TILE_KV}, v{AV}")
    a("s_mov_b32 s24, 0x000fffff")
    a("s_mov_b32 s25, 0x000fffff")
    a("v_mov_b32 v20, 0x3f803f80")
    a("v_cmp_eq_u32 vcc, 20, v2")
    a("s_mov_b32 s26, 0")
    a("s_nop 0")
    a(f"v_cndmask_b32 v{VB[0]}, 0, v20, vcc")
    for r in range(1, 16): a(f"v_mov_b32 v{VB[0]+r}, v{VB[0]}")
    def rdK(t):
        q, o = divmod(t, 25); b = KB[t & 1]
        return [f"ds_read_b128 {vr(b,4)}, v{AKA+q} offset:{o*TILE_KV}", f"ds_read_b64 {vr(b+4,2)}, v{AKB+q} offset:{o*TILE_KV}"]
    def rdV(t):
        q, o = divmod(t, 25); b = VB[t & 1]
        return ["s_mov_b64 exec, s[24:25]",
                f"ds_read_b128 {vr(b,4)}, v{AV+q} offset:{o*TILE_KV}", f"ds_read_b128 {vr(b+4,4)}, v{AV+q} offset:{o*TILE_KV+640}",
                "s_mov_b64 exec, -1"]
    def M1(t, c): return f"v_mfma_f32_32x32x16_bf16 {vr(S[t&1],16)}, {vr(KB[t&1],4)}, {vr(QA,4)}, {c}"
    def M2(t): return f"v_mfma_f32_32x32x8_bf16 {vr(S[t&1],16)}, {vr(KB[t&1]+4,2)}, {vr(QB,2)}, {vr(S[t&1],16)}"
    def M3(t): return f"v_mfma_f32_32x32x16_bf16 {vr(O,16)}, {vr(VB[t&1],4)}, {vr(P,4)}, {vr(O,16)}"
    def M4(t): return f"v_mfma_f32_32x32x16_bf16 {vr(O,16)}, {vr(VB[t&1]+4,4)}, {vr(P+4,4)}, {vr(O,16)}"
    def rowmax(src, dst, first):
        if first:
            a(f"v_max3_f32 v{dst}, v{src}, v{src+1}, v{src+2}")
            a(f"v_max_f32 v{dst}, v{dst}, v{src+15}")
            rng = range(3, 15, 2)
        else:
            rng = range(0, 16, 2)
        for r in rng: a(f"v_max3_f32 v{dst}, v{dst}, v{src+r}, v{src+r+1}")
    def cross_half_max(reg, tmp):
        a(f"v_mov_b32 v{tmp}, v{reg}")
        a("s_nop 1")
        a(f"v_permlane32_swap_b32 v{reg}, v{tmp}")
        a("s_nop 1")
        a(f"v_max_f32 v{reg}, v{reg}, v{tmp}")
    a("s_waitcnt vmcnt(19)")
    a("s_barrier")
    for r in rdK(0): a(r)
    a("s_waitcnt lgkmcnt(0)")
    a(M1(0, "0")); a(M2(0))
    a("s_nop 15")
    rowmax(S[0], 21, True)
    cross_half_max(21, 22)
    a("v_add_f32 v21, 0x42800000, v21")
    a("L_attn_pass:")
    a(f"v_sub_f32 v{NEG}, 0, v21")
    for r in range(1, 16): a(f"v_mov_b32 v{NEG+r}, v{NEG}")
    for r in rdK(0): a(r)
    for r in rdK(1): a(r)
    for r in rdV(0): a(r)
    for r in range(16): a(f"v_mov_b32 v{O+r}, 0")
    a("s_waitcnt lgkmcnt(0)")
    a(M1(0, vr(NEG,16))); a(M2(0))
    a("s_nop 15")
    syncs = {1: 4, 10: 10, 30: 20}
    E = lambda t, r: f"v_exp_f32 v{S[t&1]+r}, v{S[t&1]+r}"
    C = lambda t, j: f"v_cvt_pk_bf16_f32 v{P+j}, v{S[t&1]+2*j}, v{S[t&1]+2*j+1}"
    for t in range(64):
        a.c(f"tile {t}")
        if t in syncs:
            l = a.label("L_nosync")
            a("s_cmp_lg_u32 s26, 0")
            a(f"s_cbranch_scc1 {l}")
            a(f"s_waitcnt vmcnt({20 - syncs[t]})")
            a("s_barrier")
            a(f"{l}:")
        a(E(t,0)); a(E(t,1))
        if t > 0: a(M4(t-1))
        for r in (2,3,4): a(E(t,r))
        a("s_waitcnt lgkmcnt(0)")
        if t < 63: a(M1(t+1, vr(NEG,16)))
        if t + 2 < 64:
            for r in rdK(t+2): a(r)
        a(E(t,5))
        if t + 1 < 64:
            for r in rdV(t+1): a(r)
        a(E(t,6)); a(E(t,7))
        for j in range(4): a(C(t,j))
        if t < 63: a(M2(t+1))
        for r in range(8, 13): a(E(t,r))
        a(M3(t))
        for r in range(13, 16): a(E(t,r))
        for j in range(4, 8): a(C(t,j))
    a("s_nop 1")
    a(M4(63))
    a("s_nop 15")
    a(f"v_mov_b32 v22, v{O+8}")
    a("v_mov_b32 v23, 0")
    a("s_nop 0")
    a(f"v_permlane32_swap_b32 v{O+8}, v22")
    a("s_cmp_lg_u32 s26, 0")
    a("s_cbranch_scc1 L_attn_fin")
    for r in range(12): a(f"v_fma_f32 v23, v{O+r}, 0, v23")
    a("v_cmp_u_f32 s[30:31], v23, v23")
    a("v_mov_b32 v24, 0x76800000")
    a("v_cmp_nlt_f32 vcc, v22, v24")
    a("s_nop 1")
    a("s_or_b64 vcc, vcc, s[30:31]")
    a("s_cbranch_vccz L_attn_fin")
    a("s_mov_b32 s26, 1")
    a(f"v_mov_b32 v24, v{AKA}")
    a(f"v_mov_b32 v25, v{AKB}")
    a("v_mov_b32 v21, 0xff800000")
    a("s_mov_b32 s27, 0")
    a("L_attn_maxloop:")
    a(f"ds_read_b128 {vr(KB[0],4)}, v24")
    a(f"ds_read_b64 {vr(KB[0]+4,2)}, v25")
    a("s_waitcnt lgkmcnt(0)")
    a(M1(0, "0")); a(M2(0))
    a(f"v_add_u32 v24, {TILE_KV}, v24")
    a(f"v_add_u32 v25, {TILE_KV}, v25")
    a("s_nop 15")
    rowmax(S[0], 21, False)
    a("s_add_u32 s27, s27, 1")
    a("s_cmp_lt_u32 s27, 64")
    a("s_cbranch_scc1 L_attn_maxloop")
    cross_half_max(21, 22)
    a("s_branch L_attn_pass")
    a("L_attn_fin:")
    a("v_rcp_f32 v22, v22")
    a("s_lshl_b32 s28, s23, 5")
    a("v_add_u32 v24, s28, v2")
    a("v_mul_u32_u24 v24, 1280, v24")
    a("s_mul_i32 s28, s20, 40")
    a("v_lshl_add_u32 v24, v3, 3, v24")
    a(f"v_mov_b32 v25, {HUGE}")
    a("v_cmp_gt_u32 vcc, 32, v1")
    for r in range(12): a(f"v_mul_f32 v{O+r}, v{O+r}, v22")
    a("v_cndmask_b32 v25, v25, v24, vcc")
    for r in range(6): a(f"v_cvt_pk_bf16_f32 v{O+r}, v{O+2*r}, v{O+2*r+1}")
    a(f"buffer_store_dwordx2 {vr(O,2)}, v24, s[16:19], s28 offen")
    a(f"buffer_store_dwordx2 {vr(O+2,2)}, v24, s[16:19], s28 offen offset:16")
    a(f"buffer_store_dwordx2 {vr(O+4,2)}, v25, s[16:19], s28 offen offset:32")
    a("L_attn_end:")
    a("s_endpgm")
    return kernel_desc(name, 132)

HEADER = open('concat_heads__mha_block__spectral_fnet__prompt.s.ref').read().split("; Override")[0]

def main(out):
    a = Asm()
    launches = [
        "; @launch kernel=qkv_kernel grid=(256,1,1) block=(512,1,1) lds=131072",
        "; @launch kernel=fone_kernel grid=(187,1,1) block=(256,1,1) lds=0",
        "; @launch kernel=attn_kernel grid=(256,1,1) block=(512,1,1) lds=163840",
        "; @launch kernel=ftwo_kernel grid=(91,1,1) block=(256,1,1) lds=0",
        "; @launch kernel=proj_kernel grid=(80,1,1) block=(512,1,1) lds=131072",
    ]
    a('.amdgcn_target "amdgcn-amd-amdhsa--gfx950"')
    a(".text")
    descs = [k_qkv(a), k_f1(a), k_attn(a), k_f2(a), k_proj(a)]
    txt = HEADER + "\n".join(launches) + "\n" + a.text() + '.section .rodata,"a"\n' + "".join(".p2align 6\n" + d for d in descs)
    open(out, "w").write(txt)

if __name__ == "__main__":
    main(sys.argv[1] if len(sys.argv) > 1 else "concat_heads__mha_block__spectral_fnet__prompt.s")
```

```python
class Asm:
    def __init__(self):
        self.lines = []
        self.nlab = 0
    def __call__(self, s=""):
        for l in s.split("\n"):
            l = l.strip()
            if not l: continue
            if l.endswith(":") or l.startswith("."):
                self.lines.append(l)
            else:
                self.lines.append("    " + l)
    def c(self, s):
        self.lines.append("    ; " + s)
    def label(self, base="L"):
        self.nlab += 1
        return f"{base}_{self.nlab}"
    def text(self):
        return "\n".join(self.lines) + "\n"

def vr(a, n=1):
    return f"v{a}" if n == 1 else f"v[{a}:{a+n-1}]"
def sr(a, n=1):
    return f"s{a}" if n == 1 else f"s[{a}:{a+n-1}]"

def kernel_header(a, name):
    a(f".globl {name}")
    a(".p2align 8")
    a(f".type {name},@function")
    a(f"{name}:")

def kernel_desc(name, nvgpr, nsgpr=96):
    acc = (nvgpr + 3) // 4 * 4
    return f""".amdhsa_kernel {name}
  .amdhsa_next_free_vgpr {nvgpr}
  .amdhsa_next_free_sgpr {nsgpr}
  .amdhsa_accum_offset {acc}
  .amdhsa_group_segment_fixed_size 0
  .amdhsa_kernarg_size 88
  .amdhsa_user_sgpr_count 2
  .amdhsa_user_sgpr_kernarg_segment_ptr 1
  .amdhsa_system_sgpr_workgroup_id_x 1
.end_amdhsa_kernel
"""

def make_srd(a, d, base, off, size):
    if off == 0:
        a(f"s_mov_b32 s{d}, s{base}")
        a(f"s_mov_b32 s{d+1}, s{base+1}")
    else:
        a(f"s_add_u32 s{d}, s{base}, {off}")
        a(f"s_addc_u32 s{d+1}, s{base+1}, 0")
    a(f"s_mov_b32 s{d+2}, {size}")
    a(f"s_mov_b32 s{d+3}, 0x00020000")


STAMP = False
STAMP_OFF = 64 * 1024 * 1024
STAMPSET = 0
STAMPRT = False
def stamp(a, i, sset=0):
    if STAMP and (sset == STAMPSET or i in (0, 15)):
        a(f"{'s_memrealtime' if STAMPRT else 's_memtime'} s[{60+2*i}:{61+2*i}]")
def stamp_real(a, i, sset=None):
    if STAMP and (sset is None or sset == STAMPSET):
        a(f"s_memrealtime s[{60+2*i}:{61+2*i}]")
def stamp_flush(a, n, wsreg, wavereg, kidx, vt=2):
    if not STAMP: return
    a("s_waitcnt lgkmcnt(0)")
    make_srd(a, 28, wsreg, STAMP_OFF + kidx * 1048576, 1048576)
    a("s_lshl_b32 s32, s2, 4")
    a(f"s_add_u32 s32, s32, s{wavereg}")
    a("s_lshl_b32 s32, s32, 7")
    a(f"v_mov_b32 v{vt}, 0")
    for i in range(n):
        a(f"v_mov_b32 v{vt+1}, s{60+2*i}")
        a(f"buffer_store_dword v{vt+1}, v{vt}, s[28:31], s32 offen offset:{4*i}")
```

```python
import sys, struct
from lib import *
import lib

TKV = 2576; KV_HEAD = 64*TKV; KV_OFF = 0; KV_SIZE = 32*KV_HEAD
TQ = 1280; Q_HEAD = 64*TQ; Q_OFF = KV_SIZE; Q_SIZE = 32*Q_HEAD
O_OFF = Q_OFF + Q_SIZE; O_SIZE = 64*32*1280
U_OFF = O_OFF + O_SIZE; U_SIZE = 4*17*40*1024
HID_OFF = U_OFF + U_SIZE; HID_SIZE = 2*11*40*1024
SEQ_OFF = HID_OFF + HID_SIZE; SEQ_SIZE = 33*33*2*1024
AB_OFF = SEQ_OFF + SEQ_SIZE; AB_SIZE = 4*11*34*1024
WO_OFF = AB_OFF + AB_SIZE; WO_SIZE = 16*50*1024
FL_OFF = 20*1024*1024; FL_SIZE = 1024*128
FA, FF, FB = 0, 256, 768
X_SIZE = 2048*1280; OUT_SIZE = 2048*2560
HUGE = 0x40000000
QSCALE = (20 ** -0.5) * 1.4426950408889634
LDS_PROG = 159744
POLL_MAX = 200000
def f32bits(x): return struct.unpack('<I', struct.pack('<f', x))[0]
OPT = {}

sWAVE = 3
pX, pW, pWO, pBX, pOUT, pDBG, pWS = 4, 6, 8, 10, 12, 14, 16
sNON = 18
sFL = 20
sXCD, sSLOT = 24, 25
STG = 36864
NS = 4

def poll(a, vaddr, vtmp, cnt=40):
    l = a.label("L_poll"); d = a.label("L_pollok")
    a(f"s_mov_b32 s{cnt}, {POLL_MAX}")
    a(f"{l}:")
    a(f"buffer_load_dwordx2 {vr(vtmp,2)}, v{vaddr}, {sr(sFL,4)}, 0 offen sc1")
    a("s_waitcnt vmcnt(0)")
    a(f"v_cmp_ne_u64 vcc, {sr(sNON,2)}, {vr(vtmp,2)}")
    a(f"s_sub_u32 s{cnt}, s{cnt}, 1")
    a(f"s_cbranch_vccz {d}")
    a(f"s_cmp_eq_u32 s{cnt}, 0")
    a(f"s_cbranch_scc1 {d}")
    a("s_sleep 1")
    a(f"s_branch {l}")
    a(f"{d}:")

def get_nonce(a, vt, srd=28, cnt=40):
    make_srd(a, srd, pDBG, 0, 256)
    l = a.label("L_non"); d = a.label("L_nonok")
    a(f"v_mov_b32 v{vt}, 0")
    a(f"s_mov_b32 s{cnt}, {POLL_MAX}")
    a(f"{l}:")
    a(f"buffer_load_dwordx2 {vr(vt+2,2)}, v{vt}, {sr(srd,4)}, 0 offen sc1")
    a("s_waitcnt vmcnt(0)")
    a(f"v_readfirstlane_b32 s{sNON}, v{vt+2}")
    a(f"v_readfirstlane_b32 s{sNON+1}, v{vt+3}")
    a(f"s_sub_u32 s{cnt}, s{cnt}, 1")
    a(f"s_cmp_lg_u32 s{sNON}, 0")
    a(f"s_cbranch_scc1 {d}")
    a(f"s_cmp_eq_u32 s{cnt}, 0")
    a(f"s_cbranch_scc1 {d}")
    a("s_sleep 2")
    a(f"s_branch {l}")
    a(f"{d}:")

def set_flag(a, sidx, vt):
    a(f"v_mov_b32 v{vt}, s{sNON}")
    a(f"v_mov_b32 v{vt+1}, s{sNON+1}")
    a(f"v_mov_b32 v{vt+2}, 0")
    a("s_mov_b64 exec, 1")
    a(f"buffer_store_dwordx2 {vr(vt,2)}, v{vt+2}, {sr(sFL,4)}, s{sidx} offen sc1")
    a("s_mov_b64 exec, -1")

def gemm_loader(a):
    sA, sB = 28, 32
    a("L_loader:")
    a("s_mul_i32 s40, s26, 163840")
    make_srd(a, sA, pX, "s40", 163840)
    a("s_mul_i32 s40, s27, 320")
    a("s_sub_u32 s41, 2457600, s40")
    make_srd(a, sB, pW, "s40", "s41")
    a(f"s_sub_u32 s44, s{sWAVE}, 4")
    a("v_lshrrev_b32 v2, 3, v1")
    a("s_lshl_b32 s40, s44, 3")
    a("v_add_u32 v2, s40, v2")
    a("v_mul_u32_u24 v2, 1280, v2")
    a("v_lshrrev_b32 v3, 4, v1")
    a("s_and_b32 s40, s44, 1")
    a("s_lshl_b32 s40, s40, 2")
    a("v_or_b32 v4, s40, v3")
    a("v_and_b32 v5, 7, v1")
    a("v_xor_b32 v4, v4, v5")
    a("v_lshl_add_u32 v10, v4, 4, v2")
    a("s_mul_i32 s40, s44, 61440")
    for i in range(5):
        a(f"v_add_u32 v2, {64*i}, v1")
        a("v_mul_u32_u24 v3, 3277, v2")
        a("v_lshrrev_b32 v3, 16, v3")
        a("v_mul_u32_u24 v4, 20, v3")
        a("v_sub_u32 v2, v2, v4")
        a("v_mul_u32_u24 v3, 3840, v3")
        a("v_lshl_add_u32 v2, v2, 4, v3")
        a(f"v_add_u32 v{11+i}, s40, v2")
    a("s_lshl_b32 s45, s44, 10")
    a("s_mul_i32 s46, s44, 5120")
    a(f"s_lshr_b32 s40, s{sSLOT}, 2")
    a("s_lshl_b32 s40, s40, 1")
    a(f"s_and_b32 s41, s{sSLOT}, 3")
    a("s_mul_i32 s41, s41, 3")
    a("s_add_u32 s40, s40, s41")
    a(f"s_add_u32 s40, s40, s{sXCD}")
    if OPT.get('norot'): a("s_mov_b32 s40, 0")
    a("s_mul_i32 s41, s40, 6554")
    a("s_lshr_b32 s41, s41, 16")
    a("s_mul_i32 s41, s41, 10")
    a("s_sub_u32 s47, s40, s41")
    def issue(c):
        sl = c % NS
        a("s_lshl_b32 s48, s47, 7")
        a("s_mul_i32 s49, s47, 245760")
        for j in range(4):
            a(f"s_add_u32 m0, s45, {sl*STG + j*4096}")
            if j: a(f"s_add_u32 s48, s48, 40960")
            else: a("s_nop 0")
            a(f"buffer_load_dwordx4 v10, {sr(sA,4)}, s48 offen lds")
        for i in range(5):
            a(f"s_add_u32 m0, s46, {sl*STG + 16384 + i*1024}")
            if i == 0:
                a("s_add_u32 s47, s47, 1")
            elif i == 1:
                a("s_cmp_eq_u32 s47, 10")
                a("s_cmov_b32 s47, 0")
            else: a("s_nop 0")
            a(f"buffer_load_dwordx4 v{11+i}, {sr(sB,4)}, s49 offen lds")
    issued = 0
    for c in range(2): issue(c); issued += 1
    stamp(a, 1)
    for c in range(10):
        a(f"s_waitcnt vmcnt({9*(issued-c-1)})")
        if c in (0, 2, 5, 9): stamp(a, {0: 2, 2: 3, 5: 4, 9: 5}[c])
        a("s_barrier")
        n = 2 if c == 0 else 1
        for _ in range(n):
            if issued < 10: issue(issued); issued += 1
    get_nonce(a, 2)
    a("s_branch L_A_done")

AX, AWA, AWB, EA = 8, 12, 13, 16
FR = 24
ACC = 72
def gemm_loop(a, isv):
    def reads(kk):
        sl, ks = divmod(kk, 4); so = sl * STG
        b = FR + (kk & 1) * 24
        r = [f"ds_read_b128 {vr(b,4)}, v{AX+ks} offset:{so}"]
        for T in range(5):
            for t in range(2):
                o = so + (16*ks + 4*t) * 320
                if isv: r.append(f"ds_read_b64_tr_b16 {vr(b+4+4*T+2*t,2)}, v{AWA} offset:{o + 64*T}")
                elif T < 4: r.append(f"ds_read_b64_tr_b16 {vr(b+4+4*T+2*t,2)}, v{AWA} offset:{o + 80*T}")
                else: r.append(f"ds_read_b64_tr_b16 {vr(b+4+4*T+2*t,2)}, v{AWB} offset:{o}")
        return r
    def mfma(kk, T):
        b = FR + (kk & 1) * 24
        d = vr(ACC + 16*T, 16); w = vr(b + 4 + 4*T, 4); x = vr(b, 4)
        return f"v_mfma_f32_32x32x16_bf16 {d}, {x}, {w}, {d}" if isv else f"v_mfma_f32_32x32x16_bf16 {d}, {w}, {x}, {d}"
    for r in range(80): a(f"v_mov_b32 v{ACC+r}, 0")
    a(f"s_mov_b32 s40, {2*STG}")
    a("s_mov_b32 s41, 5")
    stamp(a, 1)
    a("s_barrier")
    stamp(a, 2)
    for r in reads(0): a(r)
    lp = a.label("L_gemm"); last = a.label("L_gemm_last"); done = a.label("L_gemm_done")
    a(".p2align 3")
    a(f"{lp}:")
    for kk in range(8):
        a("s_waitcnt lgkmcnt(0)")
        a(mfma(kk, 0))
        if kk == 7:
            a("s_sub_u32 s41, s41, 1")
            a("s_cmp_eq_u32 s41, 0")
            a(f"s_cbranch_scc1 {last}")
            for i in range(4): a(f"v_add_u32 v{AX+i}, s40, v{AX+i}")
            a(f"v_add_u32 v{AWA}, s40, v{AWA}")
            if not isv: a(f"v_add_u32 v{AWB}, s40, v{AWB}")
            a("s_sub_u32 s40, 0, s40")
        if kk in (3, 7): a("s_barrier")
        nx = reads((kk + 1) & 7)
        for r in nx[0:3]: a(r)
        a(mfma(kk, 1))
        for r in nx[3:6]: a(r)
        a(mfma(kk, 2))
        for r in nx[6:9]: a(r)
        a(mfma(kk, 3))
        for r in nx[9:11]: a(r)
        a(mfma(kk, 4))
    a(f"s_branch {lp}")
    a(f"{last}:")
    for T in range(1, 5): a(mfma(7, T))
    stamp(a, 5)

def gemm_compute(a):
    a("L_compute:")
    a("v_and_b32 v2, 31, v1")
    a("v_lshrrev_b32 v3, 5, v1")
    a(f"s_lshl_b32 s40, s{sWAVE}, 5")
    a("v_add_u32 v4, s40, v2")
    a("v_lshlrev_b32 v4, 7, v4")
    a("v_bfe_u32 v5, v1, 1, 3")
    a("v_xor_b32 v5, v5, v3")
    for ks in range(4):
        a(f"v_xor_b32 v6, {2*ks}, v5")
        a(f"v_lshl_add_u32 v{AX+ks}, v6, 4, v4")
    a("v_bfe_u32 v4, v1, 2, 2")
    a("v_lshl_add_u32 v4, v3, 3, v4")
    a("v_mul_u32_u24 v4, 320, v4")
    a("v_add_u32 v4, 16384, v4")
    a("v_and_b32 v5, 3, v1")
    a("v_bfe_u32 v6, v1, 4, 1")
    a("v_lshl_add_u32 v5, v6, 2, v5")
    a(f"v_lshl_add_u32 v{AWA}, v5, 3, v4")
    a("s_lshl_b32 s42, s26, 2")
    a(f"s_add_u32 s42, s42, s{sWAVE}")
    a("s_and_b32 s43, s27, 3")
    a("s_lshl_b32 s43, s43, 3")
    a("s_cmp_ge_u32 s27, 8")
    a("s_cbranch_scc1 L_compute_v")
    a(f"v_add_u32 v{AWA}, 8, v{AWA}")
    a("v_lshrrev_b32 v6, 1, v5")
    a("v_mul_u32_u24 v6, 80, v6")
    a("v_and_b32 v5, 1, v5")
    a("v_mul_u32_u24 v5, 72, v5")
    a(f"v_add3_u32 v{AWB}, v4, v5, v6")
    a("s_cmp_ge_u32 s27, 4")
    for reg, k, q in [(44, KV_HEAD, Q_HEAD), (45, TKV, TQ), (46, f32bits(1.0), f32bits(QSCALE)), (47, KV_OFF, Q_OFF), (48, KV_SIZE, Q_SIZE)]:
        a(f"s_mov_b32 s{reg}, {q}")
        a(f"s_cmov_b32 s{reg}, {k}")
    make_srd(a, 28, pWS, "s47", "s48")
    a("s_mul_i32 s47, s43, s44")
    a("s_mul_i32 s48, s42, s45")
    a("s_add_u32 s47, s47, s48")
    a(f"v_lshlrev_b32 v{EA}, 4, v1")
    a("v_mul_lo_u32 v4, v3, s44")
    a("v_lshl_add_u32 v4, v2, 3, v4")
    a(f"v_add_u32 v{EA+1}, 1024, v4")
    gemm_loop(a, False)
    a("s_mov_b32 s48, s47")
    a("s_nop 7")
    for T in range(5):
        b = ACC + 16*T
        if T == 4: a("s_nop 3")
        for r in range(16): a(f"v_mul_f32 v{b+r}, s46, v{b+r}")
        for r in range(8): a(f"v_cvt_pk_bf16_f32 v{b+r}, v{b+2*r}, v{b+2*r+1}")
        if T < 4:
            for hq in range(2):
                a(f"buffer_store_dwordx4 {vr(b+4*hq,4)}, v{EA}, s[28:31], s48 offen sc1")
                a("s_add_u32 s48, s48, s44")
        else:
            a("s_lshl_b32 s44, s44, 1")
            for j in range(4):
                a(f"buffer_store_dwordx2 {vr(b+2*j,2)}, v{EA+1}, s[28:31], s47 offen sc1")
                if j < 3: a("s_add_u32 s47, s47, s44")
    a("s_branch L_A_done")
    a("L_compute_v:")
    make_srd(a, 28, pWS, KV_OFF, KV_SIZE)
    a(f"s_mov_b32 s44, {KV_HEAD}")
    a("s_mul_i32 s47, s43, s44")
    a(f"s_mul_i32 s48, s42, {TKV}")
    a("s_add_u32 s47, s47, s48")
    a("v_mul_u32_u24 v7, 20, v3")
    for T in range(5):
        a(f"v_add_u32 v4, {32*T}, v2")
        a("v_mul_u32_u24 v5, 3277, v4")
        a("v_lshrrev_b32 v5, 16, v5")
        a("v_mul_u32_u24 v6, 20, v5")
        a("v_sub_u32 v4, v4, v6")
        a("v_add_u32 v4, v4, v7")
        a("v_mul_lo_u32 v5, v5, s44")
        a("v_lshl_add_u32 v4, v4, 4, v5")
        a(f"v_add_u32 v{EA+T}, 1280, v4")
    a("v_mul_lo_u32 v4, v1, s44")
    a("v_add_u32 v4, 2560, v4")
    a("v_cmp_gt_u32 vcc, 8, v1")
    a(f"v_mov_b32 v5, {HUGE}")
    for r in range(4): a(f"v_mov_b32 v{152+r}, 0x3f803f80")
    a(f"v_cndmask_b32 v{EA+5}, v5, v4, vcc")
    a(f"buffer_store_dwordx4 v[152:155], v{EA+5}, s[28:31], s47 offen sc1")
    gemm_loop(a, True)
    a("s_nop 8")
    for T in range(5):
        b = ACC + 16*T
        if T == 4: a("s_nop 3")
        for r in range(8): a(f"v_cvt_pk_bf16_f32 v{b+r}, v{b+2*r}, v{b+2*r+1}")
        for jp in range(2):
            a(f"buffer_store_dwordx4 {vr(b+4*jp,4)}, v{EA+T}, s[28:31], s47 offen offset:{jp*640} sc1")
    a("s_branch L_A_done")

def prep(a):
    a("L_prep:")
    a(f"s_sub_u32 s26, s{sSLOT}, 24")
    a("s_lshl_b32 s26, s26, 3")
    a(f"s_add_u32 s26, s26, s{sXCD}")
    a("s_lshl_b32 s26, s26, 3")
    a(f"s_add_u32 s26, s26, s{sWAVE}")
    make_srd(a, 28, pBX, 0, X_SIZE)
    make_srd(a, 32, pWO, 0, 819200)
    make_srd(a, 36, pWS, U_OFF, WO_OFF + WO_SIZE - U_OFF)
    a("v_and_b32 v2, 31, v1")
    a("v_lshrrev_b32 v3, 5, v1")
    a("v_lshlrev_b32 v9, 4, v1")
    a(f"v_mov_b32 v8, {HUGE}")
    WR = 128
    for n in range(2):
        if n == 1:
            a("s_cmp_ge_u32 s26, 288")
            a("s_cbranch_scc1 L_prep_wo_ld")
        a(f"s_add_u32 s40, s26, {512*n}")
        a("s_mul_i32 s41, s40, 1639")
        a("s_lshr_b32 s41, s41, 16")
        a("s_mul_i32 s42, s41, 40")
        a("s_sub_u32 s42, s40, s42")
        a("s_cmp_lt_u32 s42, 32")
        a("s_mul_i32 s43, s42, 20")
        a("s_mul_i32 s44, s42, 80")
        a("s_cselect_b32 s45, 4, 40")
        a("s_sub_u32 s44, s44, %d" % (32*80 - 16))
        a("s_cmp_lt_u32 s42, 32")
        a("s_cselect_b32 s43, s43, s44")
        a(f"s_mov_b32 s46, {20*1280}")
        a(f"s_cmov_b32 s46, {8*1280}")
        a("v_mul_u32_u24 v4, s45, v3")
        a("v_add_u32 v4, s43, v4")
        a("v_mul_u32_u24 v4, 1280, v4")
        a("s_lshl_b32 s43, s41, 6")
        a("v_lshl_add_u32 v4, v2, 1, v4")
        a("v_add_u32 v4, s43, v4")
        b = WR + 8*n
        for grp in range(2):
            so = "s46" if grp else "0"
            for i in range(4):
                a(f"buffer_load_ushort v{b+4*grp+i}, v4, s[32:35], {so} offen offset:{i*1280}")
        a("s_mul_i32 s43, s41, 52")
        a("s_lshr_b32 s43, s43, 8")
        a("s_mul_i32 s44, s43, 5")
        a("s_sub_u32 s44, s41, s44")
        a("s_mul_i32 s45, s42, 26")
        a("s_lshr_b32 s45, s45, 8")
        a("s_mul_i32 s47, s45, 10")
        a("s_sub_u32 s47, s42, s47")
        a("s_add_u32 s42, s42, 10")
        a("s_cmp_lt_u32 s44, 4")
        a("s_cselect_b32 s44, s44, s45")
        a("s_cselect_b32 s42, s42, s47")
        a("s_lshl_b32 s43, s43, 2")
        a("s_add_u32 s43, s43, s44")
        a("s_mul_i32 s43, s43, 50")
        a("s_add_u32 s43, s43, s42")
        a("s_lshl_b32 s43, s43, 10")
        a(f"s_add_u32 s{50+n}, s43, {WO_OFF - U_OFF}")
    a("L_prep_wo_ld:")
    a("v_and_b32 v4, 19, v1")
    a("v_bfe_u32 v5, v1, 2, 1")
    a("v_lshl_or_b32 v4, v5, 3, v4")
    a("v_bfe_u32 v5, v1, 3, 1")
    a("v_lshl_or_b32 v10, v5, 2, v4")
    a("v_lshlrev_b32 v11, 4, v3")
    LD = 24
    for n in range(2):
        if n == 1:
            a("s_cmp_ge_u32 s26, 168")
            a("s_cbranch_scc1 L_prep_fold_ld")
        a(f"s_add_u32 s40, s26, {512*n}")
        a("s_mul_i32 s41, s40, 1639")
        a("s_lshr_b32 s41, s41, 16")
        a("s_mul_i32 s42, s41, 40")
        a("s_sub_u32 s42, s40, s42")
        a("s_lshl_b32 s42, s42, 5")
        a("s_lshl_b32 s43, s41, 5")
        a("v_add_u32 v4, s43, v10")
        a("v_mul_u32_u24 v5, 1280, v4")
        b = LD + 16*n
        a("v_cmp_ge_u32 vcc, 512, v4")
        a("v_add_u32 v6, v5, v11")
        a("v_sub_u32 v7, v11, v5")
        a(f"v_add_u32 v7, {2048*1280}, v7")
        a("v_cndmask_b32 v6, v8, v6, vcc")
        a("v_cndmask_b32 v7, v8, v7, vcc")
        a(f"buffer_load_dwordx4 {vr(b,4)}, v6, s[28:31], s42 offen")
        a(f"buffer_load_dwordx4 {vr(b+4,4)}, v7, s[28:31], s42 offen")
        a("v_cmp_gt_u32 vcc, 512, v4")
        a("v_sub_u32 v7, v11, v5")
        a(f"v_add_u32 v7, {1024*1280}, v7")
        a("v_cndmask_b32 v7, v8, v7, vcc")
        a("v_add_u32 v4, -1, v4")
        a("v_cmp_gt_u32 vcc, 511, v4")
        a("v_add_u32 v6, v5, v11")
        a(f"v_add_u32 v6, {1024*1280}, v6")
        a("v_cndmask_b32 v6, v8, v6, vcc")
        a(f"buffer_load_dwordx4 {vr(b+8,4)}, v7, s[28:31], s42 offen")
        a(f"buffer_load_dwordx4 {vr(b+12,4)}, v6, s[28:31], s42 offen")
    a("L_prep_fold_ld:")
    G = 64
    a("s_mov_b32 s52, s26")
    a("v_lshlrev_b32 v12, 3, v3")
    a("L_prep_gen:")
    a("s_cmp_lt_u32 s52, 440")
    a("s_cbranch_scc0 L_prep_gen_seq")
    a("s_mul_i32 s41, s52, 1639")
    a("s_lshr_b32 s41, s41, 16")
    a("s_mul_i32 s42, s41, 40")
    a("s_sub_u32 s42, s52, s42")
    a("s_lshl_b32 s43, s41, 5")
    a("v_add_u32 v4, s43, v2")
    a(f"s_mov_b32 s44, {f32bits(1.0/640)}")
    a("s_lshl_b32 s45, s52, 10")
    a(f"s_add_u32 s45, s45, {HID_OFF - U_OFF}")
    a(f"s_add_u32 s46, s45, {440*1024}")
    a("s_branch L_prep_gen_go")
    a("L_prep_gen_seq:")
    a("s_sub_u32 s40, s52, 440")
    a("s_mul_i32 s41, s40, 1986")
    a("s_lshr_b32 s41, s41, 16")
    a("s_mul_i32 s42, s41, 33")
    a("s_sub_u32 s42, s40, s42")
    a("s_lshr_b32 s43, s41, 1")
    a("s_lshl_b32 s43, s43, 6")
    a("s_and_b32 s44, s41, 1")
    a("s_add_u32 s43, s43, s44")
    a("v_lshl_add_u32 v4, v2, 1, s43")
    a(f"s_mov_b32 s44, {f32bits(1.0/2048)}")
    a("s_lshl_b32 s45, s40, 11")
    a(f"s_add_u32 s45, s45, {SEQ_OFF - U_OFF}")
    a("s_add_u32 s46, s45, 1024")
    a("L_prep_gen_go:")
    a("s_lshl_b32 s42, s42, 4")
    a("v_add_u32 v5, s42, v12")
    a("v_mul_u32_u24 v5, v4, v5")
    a("v_cvt_f32_u32 v5, v5")
    a("v_cvt_f32_u32 v4, v4")
    for i in range(8):
        if i: a("v_add_f32 v5, v5, v4")
        a(f"v_mul_f32 v{G+i}, s44, v5")
    for i in range(8): a(f"v_fract_f32 v{G+i}, v{G+i}")
    for i in range(8):
        a(f"v_cos_f32 v{G+8+i}, v{G+i}")
        a(f"v_sin_f32 v{G+i}, v{G+i}")
    for i in range(4): a(f"v_cvt_pk_bf16_f32 v{G+16+i}, v{G+8+2*i}, v{G+9+2*i}")
    for i in range(4): a(f"v_cvt_pk_bf16_f32 v{G+20+i}, v{G+2*i}, v{G+1+2*i}")
    a(f"buffer_store_dwordx4 {vr(G+16,4)}, v9, s[36:39], s45 offen sc1")
    a(f"buffer_store_dwordx4 {vr(G+20,4)}, v9, s[36:39], s46 offen sc1")
    a("s_add_u32 s52, s52, 512")
    a("s_cmp_lt_u32 s52, 1529")
    a("s_cbranch_scc1 L_prep_gen")
    a("s_waitcnt vmcnt(0)")
    for i in range(4): a(f"v_lshl_or_b32 v{WR+i}, v{WR+2*i+1}, 16, v{WR+2*i}")
    a(f"buffer_store_dwordx4 {vr(WR,4)}, v9, s[36:39], s50 offen sc1")
    a("s_cmp_ge_u32 s26, 288")
    a("s_cbranch_scc1 L_prep_wo_st")
    for i in range(4): a(f"v_lshl_or_b32 v{WR+8+i}, v{WR+8+2*i+1}, 16, v{WR+8+2*i}")
    a(f"buffer_store_dwordx4 {vr(WR+8,4)}, v9, s[36:39], s51 offen sc1")
    a("L_prep_wo_st:")
    T = 64; R = 96
    a("s_mov_b32 s44, 0xffff0000")
    for n in range(2):
        if n == 1:
            a("s_cmp_ge_u32 s26, 168")
            a("s_cbranch_scc1 L_prep_done")
        b = LD + 16*n
        for r in range(4):
            for d in range(4):
                a(f"v_lshlrev_b32 v{T+8*r+2*d}, 16, v{b+4*r+d}")
                a(f"v_and_b32 v{T+8*r+2*d+1}, s44, v{b+4*r+d}")
        for d in range(4):
            p = lambda r: vr(T+8*r+2*d, 2)
            q = lambda r: vr(R+8*r+2*d, 2)
            ng = "neg_lo:[0,1] neg_hi:[0,1]"
            a(f"v_pk_add_f32 {q(0)}, {p(0)}, {p(1)}")
            a(f"v_pk_add_f32 {q(1)}, {p(0)}, {p(1)} {ng}")
            a(f"v_pk_add_f32 {q(2)}, {p(2)}, {p(3)}")
            a(f"v_pk_add_f32 {q(3)}, {p(2)}, {p(3)} {ng}")
            a(f"v_pk_add_f32 {p(0)}, {q(0)}, {q(2)}")
            a(f"v_pk_add_f32 {p(1)}, {q(0)}, {q(2)} {ng}")
            a(f"v_pk_add_f32 {p(2)}, {q(1)}, {q(3)} {ng}")
            a(f"v_pk_add_f32 {p(3)}, {q(1)}, {q(3)}")
        a(f"s_add_u32 s40, s26, {512*n}")
        a("s_lshl_b32 s40, s40, 10")
        for i in range(4):
            for d in range(4):
                a(f"v_cvt_pk_bf16_f32 v{b+4*i+d}, v{T+8*i+2*d}, v{T+8*i+2*d+1}")
            a(f"buffer_store_dwordx4 {vr(b+4*i,4)}, v9, s[36:39], s40 offen sc1")
            if i < 3: a(f"s_add_u32 s40, s40, {17*40*1024}")
    a("L_prep_done:")
    a(f"s_cmp_lt_u32 s{sWAVE}, 4")
    a("s_cbranch_scc1 L_A_done")
    get_nonce(a, 2)

def a_done(a):
    a("L_A_done:")
    stamp(a, 6)
    a("s_waitcnt vmcnt(0)")
    a("s_barrier")
    a("s_and_b32 s26, s2, 31")
    a("s_lshr_b32 s27, s2, 5")
    a(f"s_cmp_lg_u32 s{sWAVE}, 4")
    a("s_cbranch_scc1 L_A_wait")
    a("s_lshl_b32 s40, s2, 7")
    set_flag(a, 40, 2)
    a("s_lshr_b32 s41, s26, 3")
    a("v_and_b32 v2, 15, v1")
    a("v_and_b32 v3, 1, v1")
    a("s_lshl_b32 s42, s27, 1")
    a("v_add_u32 v3, s42, v3")
    a("v_cmp_gt_u32 vcc, 32, v1")
    a("v_lshrrev_b32 v4, 4, v1")
    a("v_lshl_add_u32 v4, v4, 2, 4")
    a("v_cndmask_b32 v2, v3, v2, vcc")
    a("v_cndmask_b32 v4, 0, v4, vcc")
    a("v_add_u32 v4, s41, v4")
    a("v_cmp_le_u32 vcc, 6, v4")
    a("v_and_b32 v5, 3, v2")
    a("v_lshrrev_b32 v2, 2, v2")
    a("v_cndmask_b32 v6, 0, 1, vcc")
    a("v_mul_u32_u24 v7, 6, v6")
    a("v_sub_u32 v4, v4, v7")
    a("v_lshl_add_u32 v4, v4, 2, v5")
    a("v_lshl_add_u32 v2, v6, 2, v2")
    a("v_lshl_add_u32 v4, v4, 3, v2")
    a("v_lshlrev_b32 v4, 7, v4")
    poll(a, 4, 6)
    a("L_A_wait:")
    a("s_barrier")
    stamp(a, 7)
    a(f"s_cmp_ge_u32 s{sWAVE}, 4")
    a("s_cbranch_scc1 L_aux")

def attention(a):
    AKA, AKB, AV0, AV1 = 4, 5, 6, 7
    QA = [8, 14]
    NEG = [32, 48]; S = [64, 80]; O = [96, 112]; P = 128
    KB = [136, 142]; VB = [148, 156]
    PR = 164
    a("L_attn:")
    a("s_setprio 2")
    a(f"s_mul_i32 s40, s26, {Q_HEAD}")
    a(f"s_add_u32 s40, s40, {Q_OFF}")
    make_srd(a, 28, pWS, "s40", Q_HEAD)
    a(f"s_mul_i32 s40, s26, {KV_HEAD}")
    make_srd(a, 32, pWS, "s40", KV_HEAD)
    a("v_and_b32 v2, 31, v1")
    a("v_lshrrev_b32 v3, 5, v1")
    a(f"v_lshlrev_b32 v{AKA}, 4, v1")
    a(f"v_lshlrev_b32 v{AKB}, 3, v2")
    a(f"v_add_u32 v{AKB}, 1024, v{AKB}")
    a(f"v_mov_b32 v20, {HUGE}")
    a("v_cmp_gt_u32 vcc, 32, v1")
    a("s_lshl_b32 s41, s27, 3")
    a(f"s_lshl_b32 s42, s{sWAVE}, 1")
    a("s_add_u32 s41, s41, s42")
    a(f"v_cndmask_b32 v20, v20, v{AKB}, vcc")
    a(f"s_mul_i32 s42, s41, {TQ}")
    for q in range(2):
        a(f"buffer_load_dwordx4 {vr(QA[q],4)}, v{AKA}, s[28:31], s42 offen offset:{q*TQ} sc1")
        a(f"buffer_load_dwordx2 {vr(QA[q]+4,2)}, v20, s[28:31], s42 offen offset:{q*TQ} sc1")
    a(f"buffer_load_dwordx4 {vr(KB[0],4)}, v{AKA}, s[32:35], 0 offen sc1")
    a(f"buffer_load_dwordx2 {vr(KB[0]+4,2)}, v{AKB}, s[32:35], 0 offen sc1")
    a("v_mul_u32_u24 v21, 20, v3")
    a("v_add_u32 v21, v21, v2")
    a("v_lshlrev_b32 v21, 4, v21")
    a("v_mov_b32 v22, 2560")
    a("v_cmp_gt_u32 vcc, 20, v2")
    a(f"v_add_u32 v{AV0}, 1280, v21")
    a(f"v_add_u32 v{AV1}, 1920, v21")
    a(f"v_cndmask_b32 v{AV0}, v22, v{AV0}, vcc")
    a(f"v_cndmask_b32 v{AV1}, v22, v{AV1}, vcc")
    a(f"s_mov_b32 s43, {TKV}")
    a(f"buffer_load_dwordx4 {vr(VB[0],4)}, v{AV0}, s[32:35], 0 offen sc1")
    a(f"buffer_load_dwordx4 {vr(KB[1],4)}, v{AKA}, s[32:35], s43 offen sc1")
    a(f"buffer_load_dwordx2 {vr(KB[1]+4,2)}, v{AKB}, s[32:35], s43 offen sc1")
    a(f"buffer_load_dwordx4 {vr(VB[0]+4,4)}, v{AV1}, s[32:35], 0 offen sc1")
    a(f"buffer_load_dwordx4 {vr(VB[1],4)}, v{AV0}, s[32:35], s43 offen sc1")
    a(f"buffer_load_dwordx4 {vr(VB[1]+4,4)}, v{AV1}, s[32:35], s43 offen sc1")
    make_srd(a, 36, pWS, O_OFF, O_SIZE)
    a(f"v_mov_b32 v23, {LDS_PROG}")
    for q in range(2):
        for r in range(16): a(f"v_mov_b32 v{O[q]+r}, 0")
    mm16 = "v_mfma_f32_32x32x16_bf16"; mm8 = "v_mfma_f32_32x32x8_bf16"
    def M1(s, t, q, c): return f"{mm16} {vr(s,16)}, {vr(KB[t&1],4)}, {vr(QA[q],4)}, {c}"
    def M2(s, t, q): return f"{mm8} {vr(s,16)}, {vr(KB[t&1]+4,2)}, {vr(QA[q]+4,2)}, {vr(s,16)}"
    def M3(t, q): return f"{mm16} {vr(O[q],16)}, {vr(VB[t&1],4)}, {vr(P,4)}, {vr(O[q],16)}"
    def M4(t, q): return f"{mm16} {vr(O[q],16)}, {vr(VB[t&1]+4,4)}, {vr(P+4,4)}, {vr(O[q],16)}"
    def rowmax(src, dst, first):
        if first:
            a(f"v_max3_f32 v{dst}, v{src}, v{src+1}, v{src+2}")
            a(f"v_max_f32 v{dst}, v{dst}, v{src+15}")
            rng = range(3, 15, 2)
        else: rng = range(0, 16, 2)
        for r in rng: a(f"v_max3_f32 v{dst}, v{dst}, v{src+r}, v{src+r+1}")
    def finish_neg(add):
        a("v_mov_b32 v26, v24")
        a("v_mov_b32 v27, v25")
        a("s_nop 1")
        a("v_permlane32_swap_b32 v24, v26")
        a("v_permlane32_swap_b32 v25, v27")
        a("s_nop 1")
        a("v_max_f32 v24, v24, v26")
        a("v_max_f32 v25, v25, v27")
        for q in range(2):
            a(f"v_sub_f32 v{NEG[q]}, {add}, v{24+q}")
            for r in range(1, 16): a(f"v_mov_b32 v{NEG[q]+r}, v{NEG[q]}")
    a("s_waitcnt vmcnt(6)")
    stamp(a, 8)
    for q in range(2): a(M1(S[q], 0, q, "0"))
    for q in range(2): a(M2(S[q], 0, q))
    a("s_nop 11")
    rowmax(S[0], 24, True)
    a("s_nop 1")
    rowmax(S[1], 25, True)
    finish_neg("0xc2800000")
    a(M1(S[0], 0, 0, vr(NEG[0],16)))
    a(M2(S[0], 0, 0))
    a(f"ds_read_b128 {vr(PR,4)}, v23")
    a("s_waitcnt vmcnt(0)")
    a("s_nop 9")
    def check(need):
        l = a.label("L_chk"); ok = a.label("L_chkok")
        a(f"{l}:")
        a("s_waitcnt lgkmcnt(0)")
        a(f"v_min3_u32 v{PR}, v{PR}, v{PR+1}, v{PR+2}")
        a(f"v_min_u32 v{PR}, v{PR}, v{PR+3}")
        a("s_nop 0")
        a(f"v_readfirstlane_b32 s44, v{PR}")
        a("s_nop 0")
        a(f"s_cmp_ge_u32 s44, {need}")
        a(f"s_cbranch_scc1 {ok}")
        a(f"ds_read_b128 {vr(PR,4)}, v23")
        a(f"s_branch {l}")
        a(f"{ok}:")
    def unit(t, q, s4=(), s1=(), s2=(), s3=(), first=False, nonext=False):
        s = S[q]; sn = S[q ^ 1]
        t1, q1 = (t, 1) if q == 0 else (t + 1, 0)
        tp, qp = (t - 1, 1) if q == 0 else (t, 0)
        E = lambda r: a(f"v_exp_f32 v{s+r}, v{s+r}")
        C = lambda j: a(f"v_cvt_pk_bf16_f32 v{P+j}, v{s+2*j}, v{s+2*j+1}")
        E(0); E(1)
        if not first: a(M4(tp, qp))
        for x in s4: a(x)
        E(2); E(3); E(4)
        if not nonext: a(M1(sn, t1, q1, vr(NEG[q1],16)))
        for x in s1: a(x)
        E(5); E(6); E(7)
        for j in range(4): C(j)
        if not nonext: a(M2(sn, t1, q1))
        for x in s2: a(x)
        for r in range(8, 13): E(r)
        a(M3(t, q))
        for x in s3: a(x)
        for r in range(13, 16): E(r)
        for j in range(4, 8): C(j)
    def period(t, o, extra3=()):
        if o is None:
            unit(t, 1, s4=["s_waitcnt lgkmcnt(0)"]); unit(t + 1, 0); return
        kb = KB[t & 1]; vb = VB[t & 1]
        unit(t, 1, s4=["s_waitcnt lgkmcnt(0)"],
             s1=[f"ds_read_b128 {vr(kb,4)}, v{AKA} offset:{o}"],
             s3=[f"ds_read_b64 {vr(kb+4,2)}, v{AKB} offset:{o}"])
        unit(t + 1, 0, s4=[f"ds_read_b128 {vr(vb,4)}, v{AV0} offset:{o}"],
             s1=[f"ds_read_b128 {vr(vb+4,4)}, v{AV1} offset:{o}"], s3=extra3)
    rdp = [f"ds_read_b128 {vr(PR,4)}, v23"]
    unit(0, 0, first=True)
    stamp(a, 9)
    check(2)
    for t in range(6):
        if t == 3: check(4)
        period(t, t * TKV, rdp if t in (2, 5) else ())
    for r in (AKA, AKB, AV0, AV1): a(f"v_add_u32 v{r}, {6*TKV}, v{r}")
    a("s_mov_b32 s45, 9")
    a("s_mov_b32 s46, 7")
    stamp(a, 10)
    a(".p2align 3")
    a("L_attn_loop:")
    a("s_cmp_gt_u32 s45, 39")
    a("s_cbranch_scc1 L_attn_nochk")
    check("s45")
    a("s_cmp_eq_u32 s45, 9")
    a("s_cselect_b32 s44, 14, 39")
    a("s_cmp_eq_u32 s45, 39")
    a("s_cselect_b32 s45, 40, s44")
    a("L_attn_nochk:")
    for k in range(8):
        ex = ()
        if k == 7: ex = rdp
        period(k, k * TKV, ex)
    for r in (AKA, AKB, AV0, AV1): a(f"v_add_u32 v{r}, {8*TKV}, v{r}")
    a("s_sub_u32 s46, s46, 1")
    a("s_cmp_lg_u32 s46, 0")
    a("s_cbranch_scc1 L_attn_loop")
    period(62, None)
    unit(63, 1, nonext=True)
    a("s_nop 1")
    a(M4(63, 1))
    stamp(a, 11)
    a("s_nop 15")
    a("L_attn_post:")
    for q in range(2): a(f"v_mov_b32 v{24+q}, v{O[q]+8}")
    a("v_mov_b32 v26, 0")
    a("s_nop 0")
    for q in range(2): a(f"v_permlane32_swap_b32 v{O[q]+8}, v{24+q}")
    a("s_cmp_eq_u32 s46, 0")
    a("s_cbranch_scc0 L_attn_fin")
    for q in range(2):
        for r in range(12): a(f"v_fma_f32 v26, v{O[q]+r}, 0, v26")
    a("v_max_f32 v27, v24, v25")
    a("v_fma_f32 v26, v24, 0, v26")
    a("v_fma_f32 v26, v25, 0, v26")
    a("v_mov_b32 v28, 0x76800000")
    a("v_cmp_u_f32 s[44:45], v26, v26")
    a("v_cmp_nlt_f32 vcc, v27, v28")
    a("s_nop 1")
    a("s_or_b64 vcc, vcc, s[44:45]")
    if OPT.get('forcefb'): a("s_mov_b64 vcc, -1")
    a("s_cbranch_vccnz L_attn_fallback")
    a("L_attn_fin:")
    a("v_rcp_f32 v24, v24")
    a("v_rcp_f32 v25, v25")
    a("s_lshl_b32 s42, s41, 5")
    a("s_add_u32 s42, s42, s26")
    a("s_mul_i32 s42, s42, 1280")
    a("v_lshlrev_b32 v21, 4, v1")
    for q in range(2):
        for r in range(12): a(f"v_mul_f32 v{O[q]+r}, v{O[q]+r}, v{24+q}")
        for r in range(6): a(f"v_cvt_pk_bf16_f32 v{O[q]+r}, v{O[q]+2*r}, v{O[q]+2*r+1}")
        a(f"buffer_store_dwordx4 {vr(O[q],4)}, v21, s[36:39], s42 offen sc1")
        a(f"buffer_store_dwordx2 {vr(O[q]+4,2)}, v20, s[36:39], s42 offen sc1")
        if q == 0: a(f"s_add_u32 s42, s42, {32*1280}")
    a("s_setprio 0")
    a("s_branch L_B_done")
    a("L_attn_fallback:")
    for r in (AKA, AKB, AV0, AV1): a(f"v_subrev_u32 v{r}, {62*TKV}, v{r}")
    a("v_mov_b32 v24, 0xff800000")
    a("v_mov_b32 v25, 0xff800000")
    a("s_mov_b32 s46, 0")
    a("L_fb_max:")
    a(f"buffer_load_dwordx4 {vr(KB[0],4)}, v{AKA}, s[32:35], s46 offen sc1")
    a(f"buffer_load_dwordx2 {vr(KB[0]+4,2)}, v{AKB}, s[32:35], s46 offen sc1")
    a("s_waitcnt vmcnt(0)")
    for q in range(2): a(M1(S[q], 0, q, "0"))
    for q in range(2): a(M2(S[q], 0, q))
    a("s_nop 15")
    rowmax(S[0], 24, False)
    rowmax(S[1], 25, False)
    a(f"s_add_u32 s46, s46, {TKV}")
    a(f"s_cmp_lt_u32 s46, {KV_HEAD}")
    a("s_cbranch_scc1 L_fb_max")
    finish_neg("0")
    for q in range(2):
        for r in range(16): a(f"v_mov_b32 v{O[q]+r}, 0")
    a("s_mov_b32 s46, 0")
    a("L_fb_main:")
    a(f"buffer_load_dwordx4 {vr(KB[0],4)}, v{AKA}, s[32:35], s46 offen sc1")
    a(f"buffer_load_dwordx2 {vr(KB[0]+4,2)}, v{AKB}, s[32:35], s46 offen sc1")
    a(f"buffer_load_dwordx4 {vr(VB[0],4)}, v{AV0}, s[32:35], s46 offen sc1")
    a(f"buffer_load_dwordx4 {vr(VB[0]+4,4)}, v{AV1}, s[32:35], s46 offen sc1")
    a("s_waitcnt vmcnt(0)")
    for q in range(2): a(M1(S[q], 0, q, vr(NEG[q],16)))
    for q in range(2): a(M2(S[q], 0, q))
    a("s_nop 15")
    for q in range(2):
        for r in range(16): a(f"v_exp_f32 v{S[q]+r}, v{S[q]+r}")
        a("s_nop 0")
        for j in range(8): a(f"v_cvt_pk_bf16_f32 v{P+j}, v{S[q]+2*j}, v{S[q]+2*j+1}")
        a("s_nop 1")
        a(M3(0, q)); a(M4(0, q))
    a(f"s_add_u32 s46, s46, {TKV}")
    a(f"s_cmp_lt_u32 s46, {KV_HEAD}")
    a("s_cbranch_scc1 L_fb_main")
    a("s_nop 15")
    a("s_branch L_attn_post")

def aux(a):
    a("L_aux:")
    a(f"s_sub_u32 s44, s{sWAVE}, 4")
    a(f"s_mul_i32 s40, s26, {KV_HEAD}")
    a(f"s_add_u32 s40, s40, {2*TKV}")
    make_srd(a, 28, pWS, "s40", 62*TKV)
    a("v_lshlrev_b32 v2, 4, v1")
    a("s_lshl_b32 s45, s44, 10")
    a("s_lshl_b32 s46, s44, 2")
    a(f"s_add_u32 s46, s46, {LDS_PROG}")
    a("v_mov_b32 v3, s46")
    def prog(j):
        a(f"v_mov_b32 v4, {j}")
        a("ds_write_b32 v3, v4")
    AH = 10
    cps = [2, 4, 9, 14]
    for j in range(39):
        a("s_mov_b32 m0, s45")
        a("s_nop 0")
        a("buffer_load_dwordx4 v2, s[28:31], s45 offen sc1 lds")
        if j < 38: a("s_add_u32 s45, s45, 4096")
        if j + 1 - AH in cps:
            a(f"s_waitcnt vmcnt({AH})")
            prog(j + 1 - AH)
    a("v_lshlrev_b32 v5, 7, v1")
    a(f"v_add_u32 v5, {192*128}, v5")
    a("s_waitcnt vmcnt(0)")
    prog(39)
    stamp(a, 8)
    poll(a, 5, 6)
    a("s_cmp_ge_u32 s44, 2")
    a("s_cbranch_scc1 L_f2")
    a("s_lshl_b32 s40, s44, 5")
    a(f"s_add_u32 s40, s40, s{sSLOT}")
    a("s_mul_i32 s41, s40, 373")
    a("s_lshr_b32 s41, s41, 12")
    a("s_mul_i32 s42, s41, 11")
    a("s_sub_u32 s42, s40, s42")
    a("s_lshl_b32 s41, s41, 3")
    a(f"s_add_u32 s41, s41, s{sXCD}")
    a("s_cmp_ge_u32 s41, 34")
    a("s_cbranch_scc1 L_wo")
    a("s_cmp_ge_u32 s41, 17")
    a("s_cselect_b32 s43, 1, 0")
    a("s_mul_i32 s47, s43, 17")
    a("s_sub_u32 s48, s41, s47")
    a("s_add_u32 s47, s41, s47")
    a("s_mul_i32 s47, s47, 40960")
    a(f"s_add_u32 s47, s47, {U_OFF}")
    make_srd(a, 28, pWS, "s47", 17*40960 + 40960)
    a("s_mul_i32 s47, s43, 11")
    a("s_add_u32 s47, s47, s42")
    a("s_mul_i32 s47, s47, 40960")
    a(f"s_add_u32 s47, s47, {HID_OFF}")
    make_srd(a, 32, pWS, "s47", 40960)
    make_srd(a, 36, pWS, AB_OFF, AB_SIZE)
    D = 16; FB = 40; AC = 8
    def issue1(k):
        b = FB + (k % D) * 12
        if k % 4 == 0:
            a(f"s_mov_b32 s49, {(k//4)*4096}")
            a(f"s_mov_b32 s50, {(k//4)*4096 + 17*40960}")
        a(f"buffer_load_dwordx4 {vr(b,4)}, v2, s[32:35], s49 offen offset:{(k%4)*1024} sc1")
        a(f"buffer_load_dwordx4 {vr(b+4,4)}, v2, s[28:31], s49 offen offset:{(k%4)*1024} sc1")
        a(f"buffer_load_dwordx4 {vr(b+8,4)}, v2, s[28:31], s50 offen offset:{(k%4)*1024} sc1")
    for k in range(D): issue1(k)
    for k in range(40):
        a(f"s_waitcnt vmcnt({3*(min(40, k+D)-k-1)})")
        b = FB + (k % D) * 12
        for m in range(2):
            d = vr(AC + 16*m, 16)
            a(f"v_mfma_f32_32x32x16_bf16 {d}, {vr(b+4+4*m,4)}, {vr(b,4)}, {'0' if k == 0 else d}")
        if k + D < 40: issue1(k + D)
    a("s_mul_i32 s47, s43, 22")
    a("s_add_u32 s47, s47, s42")
    a("s_mul_i32 s47, s47, 34")
    a("s_lshl_b32 s48, s48, 1")
    a("s_add_u32 s47, s47, s48")
    a("s_lshl_b32 s47, s47, 10")
    a(f"s_add_u32 s48, s47, {11*34*1024}")
    a("s_mul_i32 s49, s41, 11")
    a("s_add_u32 s49, s49, s42")
    a(f"s_add_u32 s49, s49, {FF}")
    a("s_lshl_b32 s49, s49, 7")
    a("s_nop 1")
    for m in range(2):
        b = AC + 16*m
        for r in range(8): a(f"v_cvt_pk_bf16_f32 v{b+r}, v{b+2*r}, v{b+2*r+1}")
        a(f"buffer_store_dwordx4 {vr(b,4)}, v2, s[36:39], s{47+m} offen sc1")
        a(f"buffer_store_dwordx4 {vr(b+4,4)}, v2, s[36:39], s{47+m} offen offset:1024 sc1")
    a("s_waitcnt vmcnt(0)")
    set_flag(a, 49, 40)
    a("s_branch L_wo")
    a("L_f2:")
    a("s_lshl_b32 s40, s44, 5")
    a(f"s_sub_u32 s40, s40, s{sSLOT}")
    a("s_sub_u32 s40, s40, 33")
    a("s_mul_i32 s41, s40, 373")
    a("s_lshr_b32 s41, s41, 12")
    a("s_mul_i32 s42, s41, 11")
    a("s_sub_u32 s42, s40, s42")
    a("s_lshl_b32 s41, s41, 3")
    a(f"s_add_u32 s41, s41, s{sXCD}")
    a("s_cmp_ge_u32 s41, 33")
    a("s_cbranch_scc1 L_wo")
    a(f"s_mul_i32 s47, s41, {66*1024}")
    a(f"s_add_u32 s47, s47, {SEQ_OFF}")
    make_srd(a, 28, pWS, "s47", 66*1024)
    a("s_and_b32 s43, s41, 1")
    a("s_mul_i32 s47, s43, 11")
    a("s_add_u32 s47, s47, s42")
    a(f"s_mul_i32 s47, s47, {34*1024}")
    a(f"s_add_u32 s47, s47, {AB_OFF}")
    make_srd(a, 32, pWS, "s47", 22*34*1024 + 34*1024)
    make_srd(a, 36, pOUT, 0, OUT_SIZE)
    D = 13; FB = 48; AC = 8
    def issueA(k):
        b = FB + (k % D) * 16
        if k % 2 == 0: a(f"s_mov_b32 s49, {(k//2)*4096}")
        a(f"buffer_load_dwordx4 {vr(b,4)}, v2, s[28:31], s49 offen offset:{(k%2)*2048} sc1")
        a(f"buffer_load_dwordx4 {vr(b+4,4)}, v2, s[28:31], s49 offen offset:{(k%2)*2048+1024} sc1")
    def issueB(k):
        b = FB + (k % D) * 16
        if k % 4 == 0:
            a(f"s_mov_b32 s50, {(k//4)*4096}")
            a(f"s_mov_b32 s51, {(k//4)*4096 + 22*34*1024}")
        a(f"buffer_load_dwordx4 {vr(b+8,4)}, v2, s[32:35], s50 offen offset:{(k%4)*1024} sc1")
        a(f"buffer_load_dwordx4 {vr(b+12,4)}, v2, s[32:35], s51 offen offset:{(k%4)*1024} sc1")
    for k in range(D): issueA(k)
    a("v_min_u32 v5, 33, v1")
    a("v_mul_u32_u24 v5, 11, v5")
    a(f"s_add_u32 s47, s42, {FF}")
    a("v_add_u32 v5, s47, v5")
    a("v_lshlrev_b32 v5, 7, v5")
    poll(a, 5, 6)
    stamp(a, 9)
    for k in range(D): issueB(k)
    for k in range(33):
        if k < D: n = 2*(D-k-1) + 4*(min(33, k+D) - D)
        else: n = 4*(min(33, k+D)-k-1)
        a(f"s_waitcnt vmcnt({n})")
        b = FB + (k % D) * 16
        for m in range(2):
            d = vr(AC + 16*m, 16)
            a(f"v_mfma_f32_32x32x16_bf16 {d}, {vr(b+4*m,4)}, {vr(b+8+4*m,4)}, {'0' if k == 0 else d}")
        if k + D < 33: issueA(k + D); issueB(k + D)
    a("v_and_b32 v5, 31, v1")
    a("v_lshrrev_b32 v4, 5, v1")
    a("s_lshr_b32 s47, s41, 1")
    a("s_lshl_b32 s47, s47, 6")
    a("s_add_u32 s47, s47, s43")
    a("s_lshl_b32 s48, s42, 5")
    a("v_add_u32 v5, s48, v5")
    a(f"v_mov_b32 v6, {HUGE}")
    a("v_lshlrev_b32 v7, 1, v5")
    a("v_add_u32 v40, 1280, v7")
    a("v_cmp_ge_u32 vcc, 320, v5")
    a("v_sub_u32 v41, 2560, v7")
    a("v_add_u32 v7, -1, v5")
    a("v_cndmask_b32 v40, v6, v40, vcc")
    a("v_cmp_gt_u32 vcc, 319, v7")
    a("v_lshl_add_u32 v7, v4, 3, s47")
    a("v_mul_u32_u24 v7, 2560, v7")
    a("v_cndmask_b32 v41, v6, v41, vcc")
    a(f"v_sub_u32 v44, {(2048-54)*2560}, v7")
    a("v_add_u32 v42, v44, v40")
    a("v_add_u32 v43, v44, v41")
    a("v_add_u32 v40, v7, v40")
    a("v_add_u32 v41, v7, v41")
    for r in range(0, 16, 2):
        a(f"v_pk_add_f32 {vr(48+r,2)}, {vr(8+r,2)}, {vr(24+r,2)}")
        a(f"v_pk_add_f32 {vr(64+r,2)}, {vr(8+r,2)}, {vr(24+r,2)} neg_lo:[0,1] neg_hi:[0,1]")
    for r in range(8):
        a(f"v_cvt_pk_bf16_f32 v{48+r}, v{48+2*r}, v{48+2*r+1}")
        a(f"v_cvt_pk_bf16_f32 v{64+r}, v{64+2*r}, v{64+2*r+1}")
    a("s_cmp_eq_u32 s41, 32")
    a("s_cbranch_scc1 L_f2_nyq")
    for r in range(16):
        ro = (r & 3) + 8 * (r >> 2)
        st = "buffer_store_short_d16_hi" if r & 1 else "buffer_store_short"
        a(f"s_mov_b32 s47, {ro*5120}")
        a(f"s_mov_b32 s48, {(27-ro)*5120}")
        a(f"{st} v{64+r//2}, v40, s[36:39], s47 offen")
        a(f"{st} v{48+r//2}, v41, s[36:39], s47 offen")
        if r == 0:
            a(f"v_add_u32 v45, {27*5120}, v42")
            a(f"v_add_u32 v46, {27*5120}, v43")
            a(f"{st} v48, v45, s[36:39], 0 offen")
            a(f"{st} v64, v46, s[36:39], 0 offen")
        else:
            a(f"{st} v{48+r//2}, v42, s[36:39], s48 offen")
            a(f"{st} v{64+r//2}, v43, s[36:39], s48 offen")
    a("s_branch L_wo")
    a("L_f2_nyq:")
    a("v_cmp_eq_u32 vcc, 0, v4")
    a("s_nop 1")
    a("v_cndmask_b32 v40, v6, v40, vcc")
    a("v_cndmask_b32 v41, v6, v41, vcc")
    a("buffer_store_short v64, v40, s[36:39], 0 offen")
    a("buffer_store_short v48, v41, s[36:39], 0 offen")
    a("L_wo:")
    stamp(a, 10)
    a("s_lshr_b32 s40, s26, 3")
    a("s_lshl_b32 s40, s40, 2")
    a("s_add_u32 s40, s40, s44")
    a(f"s_mul_i32 s40, s40, {50*1024}")
    a(f"s_add_u32 s40, s40, {WO_OFF}")
    make_srd(a, 28, pWS, "s40", 50*1024)
    a("s_waitcnt vmcnt(0)")
    for k in range(50):
        if k % 4 == 0: a(f"s_mov_b32 s49, {(k//4)*4096}")
        a(f"buffer_load_dwordx4 {vr(56+4*k,4)}, v2, s[28:31], s49 offen offset:{(k%4)*1024} sc1")

def tail(a):
    a("L_B_done:")
    a("s_waitcnt vmcnt(0)")
    stamp(a, 12)
    a("s_barrier")
    a("s_and_b32 s40, s26, 7")
    a("s_lshl_b32 s41, s27, 3")
    a("s_add_u32 s41, s41, s40")
    a(f"s_mul_i32 s40, s41, {32*1280}")
    a(f"s_add_u32 s40, s40, {O_OFF}")
    make_srd(a, 28, pWS, "s40", 32*1280)
    a("v_lshlrev_b32 v2, 4, v1")
    a(f"s_cmp_lg_u32 s{sWAVE}, 4")
    a("s_cbranch_scc1 L_B_wait")
    a(f"s_add_u32 s40, s2, {FB}")
    a("s_lshl_b32 s40, s40, 7")
    set_flag(a, 40, 4)
    a("v_and_b32 v4, 31, v1")
    a("s_lshl_b32 s40, s27, 5")
    a(f"s_add_u32 s40, s40, {FB}")
    a("v_add_u32 v4, s40, v4")
    a("v_lshlrev_b32 v4, 7, v4")
    poll(a, 4, 6)
    a("L_B_wait:")
    a("s_barrier")
    stamp(a, 13)
    a(f"s_lshl_b32 s40, s{sWAVE}, 10")
    for j in range(5):
        a("s_mov_b32 m0, s40")
        a("s_nop 0")
        a("buffer_load_dwordx4 v2, s[28:31], s40 offen sc1 lds")
        if j < 4: a("s_add_u32 s40, s40, 8192")
    a("v_and_b32 v3, 31, v1")
    a("v_lshrrev_b32 v4, 5, v1")
    a("v_mul_u32_u24 v5, 2560, v4")
    a("v_lshl_add_u32 v5, v3, 3, v5")
    a("v_add_u32 v5, 1024, v5")
    make_srd(a, 32, pOUT, 0, OUT_SIZE)
    a("s_lshl_b32 s41, s41, 5")
    a("v_add_u32 v6, s41, v3")
    a("v_mul_u32_u24 v6, 2560, v6")
    a("s_lshr_b32 s42, s26, 3")
    a("s_mul_i32 s42, s42, 320")
    a("s_waitcnt vmcnt(0)")
    a("s_barrier")
    a(f"s_cmp_lt_u32 s{sWAVE}, 4")
    a("s_cbranch_scc1 L_end")
    stamp(a, 14)
    if lib.STAMP: a("s_waitcnt lgkmcnt(0)")
    A5, AM, OB = 8, 24, 40
    a("s_mul_i32 s43, s44, 12800")
    a("v_add_u32 v7, s43, v2")
    def rd(buf, kap, base=None):
        b = OB + 4*buf
        if base is not None: return f"ds_read_b128 {vr(b,4)}, v{base} offset:{kap*1280}"
        if kap < 32: return f"ds_read_b128 {vr(b,4)}, v2 offset:{kap*1280}"
        o = (kap - 32) * 5120 // 8
        return None
    def rd_main(buf, kap):
        b = OB + 4*buf
        if kap < 32: return [f"ds_read_b128 {vr(b,4)}, v2 offset:{kap*1280}"]
        g = kap - 32
        return [f"ds_read_b64 {vr(b,2)}, v5 offset:{g*5120}", f"ds_read_b64 {vr(b+2,2)}, v5 offset:{g*5120+1280}"]
    def stream(steps):
        n = len(steps); cnt = [0]*n
        PF = 3
        for k in range(PF):
            r = steps[k][0](k % 4); cnt[k] = len(r)
            for x in r: a(x)
        for k in range(n):
            out = sum(cnt[k+1:min(n, k+PF)])
            a(f"s_waitcnt lgkmcnt({out})")
            d = vr(steps[k][1], 16)
            a(f"v_mfma_f32_32x32x16_bf16 {d}, {vr(steps[k][2],4)}, {vr(OB+4*(k%4),4)}, {'0' if steps[k][3] else d}")
            if k + PF < n:
                r = steps[k+PF][0]((k+PF) % 4); cnt[k+PF] = len(r)
                for x in r: a(x)
            if k == 13:
                for j in range(4): a(f"ds_write_b128 v3, {vr(A5+4*j,4)} offset:{j*1024}")
                cnt[k+PF] += 4
    main = [((lambda kap: lambda buf: rd_main(buf, kap))(kap), AM, 56 + 4*(10+kap), kap == 0) for kap in range(40)]
    a("s_lshl_b32 s43, s44, 12")
    a("s_add_u32 s43, s43, 40960")
    a("v_add_u32 v3, s43, v2")
    a("s_cmp_eq_u32 s44, 3")
    a("s_cbranch_scc1 L_tail3")
    q5 = [((lambda i: lambda buf: [f"ds_read_b128 {vr(OB+4*buf,4)}, v7 offset:{i*1280}"])(i), A5, 56 + 4*i, i == 0) for i in range(10)]
    stream(q5 + main)
    a("s_branch L_tail_join")
    a("L_tail3:")
    q5 = [((lambda i: lambda buf: rd_main(buf, 30 + i))(i), A5, 56 + 4*i, i == 0) for i in range(10)]
    stream(q5 + main)
    a("L_tail_join:")
    a("s_waitcnt lgkmcnt(0)")
    a("s_barrier")
    a("s_lshl_b32 s43, s44, 10")
    a("s_add_u32 s43, s43, 40960")
    a("v_add_u32 v3, s43, v2")
    for i in range(4): a(f"ds_read_b128 {vr(OB+4*i,4)}, v3 offset:{i*4096}")
    a("s_lshl_b32 s43, s44, 6")
    a("s_add_u32 s43, s43, s42")
    a("v_lshl_add_u32 v7, v4, 4, v6")
    a("s_nop 2")
    for r in range(8): a(f"v_cvt_pk_bf16_f32 v{AM+r}, v{AM+2*r}, v{AM+2*r+1}")
    a("s_nop 1")
    for h2 in range(2):
        a(f"v_permlane32_swap_b32 v{AM+4*h2}, v{AM+4*h2+2}")
        a(f"v_permlane32_swap_b32 v{AM+4*h2+1}, v{AM+4*h2+3}")
    for h2 in range(2):
        a(f"buffer_store_dwordx4 {vr(AM+4*h2,4)}, v7, s[32:35], s43 offen offset:{32*h2}")
    a("s_waitcnt lgkmcnt(0)")
    for i in range(1, 4):
        a(f"v_pk_add_f32 {vr(OB,2)}, {vr(OB,2)}, {vr(OB+4*i,2)}")
        a(f"v_pk_add_f32 {vr(OB+2,2)}, {vr(OB+2,2)}, {vr(OB+4*i+2,2)}")
    a("s_lshl_b32 s43, s44, 4")
    a("s_add_u32 s43, s43, s42")
    a("v_lshl_add_u32 v7, v4, 3, v6")
    a(f"v_cvt_pk_bf16_f32 v{OB}, v{OB}, v{OB+1}")
    a(f"v_cvt_pk_bf16_f32 v{OB+1}, v{OB+2}, v{OB+3}")
    a(f"buffer_store_dwordx2 {vr(OB,2)}, v7, s[32:35], s43 offen offset:256")
    a("L_end:")
    if lib.STAMP:
        a("s_waitcnt vmcnt(0)")
        stamp(a, 15); stamp_real(a, 17)
        stamp_flush(a, 18, pWS, sWAVE, 0)
    a("L_exit:")
    a("s_endpgm")

KNAME = "concat_heads__mha_block__spectral_fnet__prompt_kernel"
def kernel(a):
    kernel_header(a, KNAME)
    a("s_cmp_ge_u32 s2, 256")
    a("s_cbranch_scc1 L_exit")
    if lib.STAMP:
        for i in range(18): a(f"s_mov_b32 s{60+2*i}, 0")
    stamp(a, 0); stamp_real(a, 16)
    a("s_load_dwordx8 s[4:11], s[0:1], 0")
    a("s_load_dwordx4 s[12:15], s[0:1], 64")
    a("s_load_dwordx2 s[16:17], s[0:1], 80")
    a("v_lshrrev_b32 v1, 6, v0")
    a(f"s_and_b32 s{sXCD}, s2, 7")
    a(f"v_readfirstlane_b32 s{sWAVE}, v1")
    a(f"s_lshr_b32 s{sSLOT}, s2, 3")
    a("v_and_b32 v1, 63, v0")
    a(f"s_and_b32 s26, s{sXCD}, 3")
    a("s_lshl_b32 s26, s26, 2")
    a(f"s_and_b32 s27, s{sSLOT}, 3")
    a("s_add_u32 s26, s26, s27")
    a(f"s_lshr_b32 s27, s{sXCD}, 2")
    a("s_mul_i32 s27, s27, 6")
    a(f"s_lshr_b32 s40, s{sSLOT}, 2")
    a("s_add_u32 s27, s27, s40")
    a(f"s_lshl_b32 s40, s2, 3")
    a(f"s_add_u32 s40, s40, s{sWAVE}")
    a("s_waitcnt lgkmcnt(0)")
    make_srd(a, sFL, pWS, FL_OFF, FL_SIZE)
    a("s_cmp_lg_u32 s40, 7")
    a("s_cbranch_scc1 L_no_nonce")
    a("s_memrealtime s[40:41]")
    make_srd(a, 28, pDBG, 0, 256)
    a("s_waitcnt lgkmcnt(0)")
    a("s_or_b32 s40, s40, 1")
    a("v_mov_b32 v2, s40")
    a("v_mov_b32 v3, s41")
    a("v_mov_b32 v4, 0")
    a("buffer_store_dwordx2 v[2:3], v4, s[28:31], 0 offen sc1")
    a("L_no_nonce:")
    a(f"s_cmp_lg_u32 s{sWAVE}, 0")
    a("s_cbranch_scc1 L_no_init")
    a(f"v_mov_b32 v2, {LDS_PROG}")
    a("v_mov_b32 v4, 0")
    a("v_mov_b32 v5, 0")
    a("ds_write_b64 v2, v[4:5]")
    a("ds_write_b64 v2, v[4:5] offset:8")
    a("s_waitcnt lgkmcnt(0)")
    a("L_no_init:")
    a(f"s_cmp_ge_u32 s{sSLOT}, 24")
    a("s_cbranch_scc1 L_prep")
    a(f"s_cmp_lt_u32 s{sWAVE}, 4")
    a("s_cbranch_scc1 L_compute")
    gemm_loader(a)
    gemm_compute(a)
    prep(a)
    a_done(a)
    attention(a)
    aux(a)
    tail(a)
    return kernel_desc(KNAME, 256, 100)

HEADER = open('concat_heads__mha_block__spectral_fnet__prompt.s.ref').read().split("; Override")[0]
def main(out):
    a = Asm()
    a('.amdgcn_target "amdgcn-amd-amdhsa--gfx950"')
    a(".text")
    d = kernel(a)
    txt = HEADER + "; @launch grid=(256,1,1) block=(512,1,1) lds=163840\n" + a.text() + '.section .rodata,"a"\n.p2align 6\n' + d
    open(out, "w").write(txt)

if __name__ == "__main__":
    for x in sys.argv[2:]:
        if x == "stamp": lib.STAMP = True
        else:
            k, _, v = x.partition("=")
            OPT[k] = int(v) if v else 1
    main(sys.argv[1] if len(sys.argv) > 1 else "v2.s")
```

```python
import sys, struct
from lib import *
import lib

TKV = 2624; KV_HEAD = 64*TKV; KV_OFF = 0; KV_SIZE = 32*KV_HEAD
TQ = 1280; Q_HEAD = 64*TQ; Q_OFF = KV_SIZE; Q_SIZE = 32*Q_HEAD
O_OFF = Q_OFF + Q_SIZE; O_SIZE = 64*32*1280
SEQ_OFF = O_OFF + O_SIZE; SEQ_SIZE = 33*65*1024
AB_OFF = SEQ_OFF + SEQ_SIZE; AB_SIZE = 4*11*33*1024
WO_OFF = AB_OFF + AB_SIZE; WO_SIZE = 16*50*1024
FL_OFF = 16*1024*1024; FL_SIZE = 512*128
FA, FB = 0, 256
X_SIZE = 2048*1280; OUT_SIZE = 2048*2560
HUGE = 0x40000000
QSCALE = (20 ** -0.5) * 1.4426950408889634
NDMA = (62*TKV + 1023)//1024
LDS_PROG = NDMA*1024
def need(tile): return ((tile-1)*TKV + 4095)//4096
NEED = [need(4), need(7), need(15), need(23), 40]
POLL_MAX = 200000
def f32bits(x): return struct.unpack('<I', struct.pack('<f', x))[0]
OPT = {}

sWAVE = 3
pX, pW, pWO, pBX, pOUT, pDBG, pWS = 4, 6, 8, 10, 12, 14, 16
sNON = 18
sFL = 20
sXCD, sSLOT = 24, 25
STG = 36864
NS = 4

def poll(a, vaddr, vtmp, cnt=40, sleep=1):
    l = a.label("L_poll"); d = a.label("L_pollok")
    a(f"s_mov_b32 s{cnt}, {POLL_MAX}")
    a(f"{l}:")
    a(f"buffer_load_dwordx2 {vr(vtmp,2)}, v{vaddr}, {sr(sFL,4)}, 0 offen sc1")
    a("s_waitcnt vmcnt(0)")
    a(f"v_cmp_ne_u64 vcc, {sr(sNON,2)}, {vr(vtmp,2)}")
    a(f"s_sub_u32 s{cnt}, s{cnt}, 1")
    a(f"s_cbranch_vccz {d}")
    a(f"s_cmp_eq_u32 s{cnt}, 0")
    a(f"s_cbranch_scc1 {d}")
    if sleep: a(f"s_sleep {sleep}")
    a(f"s_branch {l}")
    a(f"{d}:")

def get_nonce(a, vt, srd=28, cnt=40):
    make_srd(a, srd, pDBG, 0, 256)
    l = a.label("L_non"); d = a.label("L_nonok")
    a(f"v_mov_b32 v{vt}, 0")
    a(f"s_mov_b32 s{cnt}, {POLL_MAX}")
    a(f"{l}:")
    a(f"buffer_load_dwordx2 {vr(vt+2,2)}, v{vt}, {sr(srd,4)}, 0 offen sc1")
    a("s_waitcnt vmcnt(0)")
    a(f"v_readfirstlane_b32 s{sNON}, v{vt+2}")
    a(f"v_readfirstlane_b32 s{sNON+1}, v{vt+3}")
    a(f"s_sub_u32 s{cnt}, s{cnt}, 1")
    a(f"s_cmp_lg_u32 s{sNON}, 0")
    a(f"s_cbranch_scc1 {d}")
    a(f"s_cmp_eq_u32 s{cnt}, 0")
    a(f"s_cbranch_scc1 {d}")
    a("s_sleep 2")
    a(f"s_branch {l}")
    a(f"{d}:")

def set_flag(a, sidx, vt):
    a(f"v_mov_b32 v{vt}, s{sNON}")
    a(f"v_mov_b32 v{vt+1}, s{sNON+1}")
    a(f"v_mov_b32 v{vt+2}, 0")
    a("s_mov_b64 exec, 1")
    a(f"buffer_store_dwordx2 {vr(vt,2)}, v{vt+2}, {sr(sFL,4)}, s{sidx} offen sc1")
    a("s_mov_b64 exec, -1")

def gemm_loader(a):
    sA, sB = 28, 32
    a("L_loader:")
    a("s_mul_i32 s40, s26, 163840")
    make_srd(a, sA, pX, "s40", 163840)
    a(f"s_sub_u32 s44, s{sWAVE}, 4")
    a("v_lshrrev_b32 v2, 3, v1")
    a("s_lshl_b32 s40, s44, 3")
    a("v_add_u32 v2, s40, v2")
    a("v_mul_u32_u24 v2, 1280, v2")
    a("v_lshrrev_b32 v3, 4, v1")
    a("s_and_b32 s40, s44, 1")
    a("s_lshl_b32 s40, s40, 2")
    a("v_or_b32 v4, s40, v3")
    a("v_and_b32 v5, 7, v1")
    a("v_xor_b32 v4, v4, v5")
    a("v_lshl_add_u32 v10, v4, 4, v2")
    a("s_lshl_b32 s45, s44, 10")
    a(f"s_lshr_b32 s40, s{sSLOT}, 2")
    a(f"s_mul_i32 s40, s40, {OPT.get('ra', 1)}")
    a(f"s_and_b32 s41, s{sSLOT}, 3")
    a(f"s_mul_i32 s41, s41, {OPT.get('rb', 1)}")
    a("s_add_u32 s40, s40, s41")
    a(f"s_mul_i32 s41, s{sXCD}, {OPT.get('rc', 3)}")
    a("s_add_u32 s40, s40, s41")
    a("s_mul_i32 s41, s40, 6554")
    a("s_lshr_b32 s41, s41, 16")
    a("s_mul_i32 s41, s41, 10")
    a("s_sub_u32 s47, s40, s41")
    def issue_x(c):
        sl = c % NS
        a("s_lshl_b32 s48, s47, 7")
        for j in range(4):
            a(f"s_add_u32 m0, s45, {sl*STG + j*4096}")
            if j: a(f"s_add_u32 s48, s48, 40960")
            else: a("s_mul_i32 s49, s47, 245760")
            a(f"buffer_load_dwordx4 v10, {sr(sA,4)}, s48 offen lds")
    def issue_w(c):
        sl = c % NS
        for i in range(5):
            a(f"s_add_u32 m0, s46, {sl*STG + 16384 + i*1024 - i*64}")
            if i == 0:
                a("s_add_u32 s47, s47, 1")
            elif i == 1:
                a("s_cmp_eq_u32 s47, 10")
                a("s_cmov_b32 s47, 0")
            else: a("s_nop 0")
            a(f"buffer_load_dwordx4 v11, {sr(sB,4)}, s49 offen offset:{i*64} lds")
    def issue(c): issue_x(c); issue_w(c)
    stamp(a, 12, 1)
    issue_x(0)
    stamp(a, 13, 1)
    a("s_mul_i32 s40, s27, 320")
    a("s_sub_u32 s41, 2457600, s40")
    make_srd(a, sB, pW, "s40", "s41")
    a("s_lshl_b32 s40, s44, 4")
    a("v_lshrrev_b32 v2, 2, v1")
    a("v_add_u32 v2, s40, v2")
    a("v_mul_u32_u24 v2, 3840, v2")
    a("v_and_b32 v3, 3, v1")
    a("v_lshl_add_u32 v11, v3, 4, v2")
    a("s_mul_i32 s46, s44, 5120")
    issue_w(0)
    stamp(a, 14, 1)
    issued = 1
    pre = OPT.get('pre', 2)
    for c in range(1, pre): issue(c); issued += 1
    for c in range(10):
        a(f"s_waitcnt vmcnt({9*(issued-c-1)})")
        if c in (0, 9): stamp(a, {0: 2, 9: 5}[c])
        stamp(a, c + 1, 1)
        a("s_barrier")
        if c == 0: stamp(a, 11, 1)
        while issued < min(10, c + 1 + (OPT.get('dep', 2) if c < OPT.get('depsw', 10) else 3)): issue(issued); issued += 1
    get_nonce(a, 2)
    a("s_branch L_A_done")

AX, AWA, EA = 8, 156, 16
FR = 24
ACC = 72
def gemm_loop(a, isv):
    def reads(kk):
        sl, ks = divmod(kk, 4); so = sl * STG
        b = FR + (kk & 1) * 24
        r = [f"ds_read_b128 {vr(b,4)}, v{AX+ks} offset:{so}"]
        for T in range(5):
            for t in range(2):
                o = so + ks*5120 + t*256
                if isv: r.append(f"ds_read_b64_tr_b16 {vr(b+4+4*T+2*t,2)}, v{AWA} offset:{o + 1024*T}")
                else: r.append(f"ds_read_b64_tr_b16 {vr(b+4+4*T+2*t,2)}, v{AWA+T} offset:{o}")
        return r
    def mfma(kk, T):
        b = FR + (kk & 1) * 24
        d = vr(ACC + 16*T, 16); w = vr(b + 4 + 4*T, 4); x = vr(b, 4)
        return f"v_mfma_f32_32x32x16_bf16 {d}, {x}, {w}, {d}" if isv else f"v_mfma_f32_32x32x16_bf16 {d}, {w}, {x}, {d}"
    for r in range(80): a(f"v_mov_b32 v{ACC+r}, 0")
    a(f"s_mov_b32 s40, {2*STG}")
    a("s_mov_b32 s41, 5")
    stamp(a, 1)
    a("s_barrier")
    stamp(a, 2)
    for r in reads(0): a(r)
    lp = a.label("L_gemm"); last = a.label("L_gemm_last"); done = a.label("L_gemm_done")
    a(".p2align 3")
    a(f"{lp}:")
    for kk in range(8):
        a("s_waitcnt lgkmcnt(0)")
        a(mfma(kk, 0))
        if kk == 7:
            a("s_sub_u32 s41, s41, 1")
            a("s_cmp_eq_u32 s41, 0")
            a(f"s_cbranch_scc1 {last}")
            for i in range(4): a(f"v_add_u32 v{AX+i}, s40, v{AX+i}")
            for i in range(1 if isv else 5): a(f"v_add_u32 v{AWA+i}, s40, v{AWA+i}")
            a("s_sub_u32 s40, 0, s40")
        if kk in (3, 7): a("s_barrier")
        nx = reads((kk + 1) & 7)
        for r in nx[0:3]: a(r)
        a(mfma(kk, 1))
        for r in nx[3:6]: a(r)
        a(mfma(kk, 2))
        for r in nx[6:9]: a(r)
        a(mfma(kk, 3))
        for r in nx[9:11]: a(r)
        a(mfma(kk, 4))
    a(f"s_branch {lp}")
    a(f"{last}:")
    for T in range(1, 5): a(mfma(7, T))
    stamp(a, 5)

def gemm_compute(a):
    a("L_compute:")
    a("v_and_b32 v2, 31, v1")
    a("v_lshrrev_b32 v3, 5, v1")
    a(f"s_lshl_b32 s40, s{sWAVE}, 5")
    a("v_add_u32 v4, s40, v2")
    a("v_lshlrev_b32 v4, 7, v4")
    a("v_bfe_u32 v5, v1, 1, 3")
    a("v_xor_b32 v5, v5, v3")
    for ks in range(4):
        a(f"v_xor_b32 v6, {2*ks}, v5")
        a(f"v_lshl_add_u32 v{AX+ks}, v6, 4, v4")
    a("v_bfe_u32 v4, v1, 2, 2")
    a("v_lshl_add_u32 v4, v3, 3, v4")
    a("v_lshlrev_b32 v4, 6, v4")
    a("v_add_u32 v4, 16384, v4")
    a("v_and_b32 v5, 3, v1")
    a("v_bfe_u32 v6, v1, 4, 1")
    a("v_lshl_add_u32 v5, v6, 2, v5")
    a(f"v_lshl_add_u32 v{AWA}, v5, 3, v4")
    a("s_lshl_b32 s42, s26, 2")
    a(f"s_add_u32 s42, s42, s{sWAVE}")
    a("s_and_b32 s43, s27, 3")
    a("s_lshl_b32 s43, s43, 3")
    a("s_cmp_ge_u32 s27, 8")
    a("s_cbranch_scc1 L_compute_v")
    for T in range(5):
        if T < 4: a(f"v_add_u32 v6, {10*T+1}, v5")
        else:
            a("v_lshrrev_b32 v6, 1, v5")
            a("v_mul_u32_u24 v6, 10, v6")
            a("v_and_b32 v7, 1, v5")
            a("v_mul_u32_u24 v7, 9, v7")
            a("v_add_u32 v6, v6, v7")
        a("v_and_b32 v7, 7, v6")
        a("v_lshl_add_u32 v7, v7, 3, v4")
        a("v_lshrrev_b32 v6, 3, v6")
        a(f"v_lshl_add_u32 v{AWA+T}, v6, 10, v7")
    a("s_cmp_ge_u32 s27, 4")
    for reg, k, q in [(44, KV_HEAD, Q_HEAD), (45, TKV, TQ), (46, f32bits(1.0), f32bits(QSCALE)), (47, KV_OFF, Q_OFF), (48, KV_SIZE, Q_SIZE)]:
        a(f"s_mov_b32 s{reg}, {q}")
        a(f"s_cmov_b32 s{reg}, {k}")
    make_srd(a, 28, pWS, "s47", "s48")
    a("s_mul_i32 s47, s43, s44")
    a("s_mul_i32 s48, s42, s45")
    a("s_add_u32 s47, s47, s48")
    a(f"v_lshlrev_b32 v{EA}, 4, v1")
    a("v_mul_lo_u32 v4, v3, s44")
    a("v_lshl_add_u32 v4, v2, 3, v4")
    a(f"v_add_u32 v{EA+1}, 1024, v4")
    gemm_loop(a, False)
    a("s_mov_b32 s48, s47")
    a("s_nop 7")
    for T in range(5):
        b = ACC + 16*T
        if T == 4: a("s_nop 3")
        for r in range(16): a(f"v_mul_f32 v{b+r}, s46, v{b+r}")
        for r in range(8): a(f"v_cvt_pk_bf16_f32 v{b+r}, v{b+2*r}, v{b+2*r+1}")
        if T < 4:
            for hq in range(2):
                a(f"buffer_store_dwordx4 {vr(b+4*hq,4)}, v{EA}, s[28:31], s48 offen sc1")
                a("s_add_u32 s48, s48, s44")
        else:
            a("s_lshl_b32 s44, s44, 1")
            for j in range(4):
                a(f"buffer_store_dwordx2 {vr(b+2*j,2)}, v{EA+1}, s[28:31], s47 offen sc1")
                if j < 3: a("s_add_u32 s47, s47, s44")
    a("s_branch L_A_done")
    a("L_compute_v:")
    make_srd(a, 28, pWS, KV_OFF, KV_SIZE)
    a(f"s_mov_b32 s44, {KV_HEAD}")
    a("s_mul_i32 s47, s43, s44")
    a(f"s_mul_i32 s48, s42, {TKV}")
    a("s_add_u32 s47, s47, s48")
    a("v_mul_u32_u24 v7, 20, v3")
    for T in range(5):
        a(f"v_add_u32 v4, {32*T}, v2")
        a("v_mul_u32_u24 v5, 3277, v4")
        a("v_lshrrev_b32 v5, 16, v5")
        a("v_mul_u32_u24 v6, 20, v5")
        a("v_sub_u32 v4, v4, v6")
        a("v_add_u32 v4, v4, v7")
        a("v_mul_lo_u32 v5, v5, s44")
        a("v_lshl_add_u32 v4, v4, 4, v5")
        a(f"v_add_u32 v{EA+T}, 1280, v4")
    a("v_lshrrev_b32 v4, 2, v1")
    a("v_mul_lo_u32 v4, v4, s44")
    a("v_and_b32 v5, 3, v1")
    a("v_lshl_add_u32 v4, v5, 4, v4")
    a("v_add_u32 v4, 2560, v4")
    a("v_cmp_gt_u32 vcc, 32, v1")
    a(f"v_mov_b32 v5, {HUGE}")
    for r in range(4): a(f"v_mov_b32 v{152+r}, 0x3f803f80")
    a(f"v_cndmask_b32 v{EA+5}, v5, v4, vcc")
    a(f"buffer_store_dwordx4 v[152:155], v{EA+5}, s[28:31], s47 offen sc1")
    gemm_loop(a, True)
    a("s_nop 8")
    for T in range(5):
        b = ACC + 16*T
        if T == 4: a("s_nop 3")
        for r in range(8): a(f"v_cvt_pk_bf16_f32 v{b+r}, v{b+2*r}, v{b+2*r+1}")
        for jp in range(2):
            a(f"buffer_store_dwordx4 {vr(b+4*jp,4)}, v{EA+T}, s[28:31], s47 offen offset:{jp*640} sc1")
    a("s_branch L_A_done")

def prep(a):
    a("L_prep:")
    a(f"s_sub_u32 s40, s{sSLOT}, 24")
    a("s_and_b32 s27, s40, 3")
    a("s_lshr_b32 s26, s40, 2")
    a("s_lshl_b32 s26, s26, 3")
    a(f"s_add_u32 s26, s26, s{sXCD}")
    make_srd(a, 28, pBX, 0, X_SIZE)
    a(f"s_and_b32 s41, s{sWAVE}, 3")
    a("s_lshl_b32 s42, s26, 5")
    a("s_lshl_b32 s43, s41, 3")
    a("s_add_u32 s42, s42, s43")
    a("v_lshrrev_b32 v2, 3, v1")
    a("v_and_b32 v3, 7, v1")
    a("v_add_u32 v4, s42, v2")
    a("v_mul_u32_u24 v5, 1280, v4")
    a("v_lshlrev_b32 v6, 4, v3")
    a("v_add_u32 v10, v5, v6")
    a("v_sub_u32 v7, v6, v5")
    a(f"v_add_u32 v11, {2048*1280}, v7")
    a(f"v_add_u32 v12, {1024*1280}, v7")
    a("v_cmp_ne_u32 vcc, 0, v4")
    a(f"v_mov_b32 v8, {HUGE}")
    a(f"v_add_u32 v13, {1024*1280}, v10")
    a("v_cndmask_b32 v13, v8, v13, vcc")
    a(f"s_lshr_b32 s44, s{sWAVE}, 2")
    a("s_lshl_b32 s45, s27, 1")
    a("s_add_u32 s44, s44, s45")
    for n in range(3):
        if n: a("s_add_u32 s44, s44, 2")
        for _ in range(2 if n == 0 else 1):
            a("s_cmp_ge_u32 s44, 5")
            a("s_cselect_b32 s45, 5, 0")
            a("s_sub_u32 s44, s44, s45")
        a(f"s_lshl_b32 s{96+n}, s44, 7")
    LD = 32
    for n in range(3):
        if n == 2:
            a(f"s_cmp_ge_u32 s{sWAVE}, 4")
            a("s_cbranch_scc1 L_fold_ld")
        for r in range(4):
            for hf in range(2):
                a(f"buffer_load_dwordx4 {vr(LD+32*n+8*r+4*hf,4)}, v{10+r}, s[28:31], s{96+n} offen offset:{640*hf}")
    a("L_fold_ld:")
    XL = 128
    a("s_cmp_lg_u32 s42, 0")
    a("s_cbranch_scc1 L_fold_nx")
    a(f"v_add_u32 v14, {512*1280}, v6")
    a(f"v_add_u32 v15, {1536*1280}, v6")
    a("v_cndmask_b32 v14, v14, v8, vcc")
    a("v_cndmask_b32 v15, v15, v8, vcc")
    for n in range(3):
        for r in range(2):
            for hf in range(2):
                a(f"buffer_load_dwordx4 {vr(XL+16*n+8*r+4*hf,4)}, v{14+r}, s[28:31], s{96+n} offen offset:{640*hf}")
    a("L_fold_nx:")
    make_srd(a, 36, pWS, SEQ_OFF, WO_OFF + WO_SIZE - SEQ_OFF)
    a("v_add_u32 v4, s43, v2")
    a("v_and_b32 v5, 19, v4")
    a("v_bfe_u32 v6, v4, 2, 1")
    a("v_lshl_or_b32 v5, v6, 3, v5")
    a("v_bfe_u32 v6, v4, 3, 1")
    a("v_lshl_or_b32 v5, v6, 2, v5")
    a("v_xor_b32 v5, v5, v3")
    a("v_and_b32 v6, 1, v3")
    a("v_lshl_add_u32 v5, v6, 5, v5")
    a("v_lshlrev_b32 v5, 4, v5")
    a("v_lshrrev_b32 v6, 1, v3")
    a("v_lshl_add_u32 v18, v6, 10, v5")
    a("v_lshlrev_b32 v5, 4, v3")
    a("v_add_u32 v17, 81920, v5")
    a("v_lshlrev_b32 v6, 4, v1")
    a("v_add_u32 v6, 83968, v6")
    a("v_cndmask_b32 v17, v17, v6, vcc")
    a("s_lshl_b32 s40, s26, 2")
    a("s_add_u32 s40, s40, s27")
    a("s_lshl_b32 s40, s40, 3")
    a(f"s_add_u32 s53, s40, s{sWAVE}")
    a("v_and_b32 v2, 31, v1")
    a("v_lshrrev_b32 v3, 5, v1")
    a("v_lshlrev_b32 v9, 4, v1")
    make_srd(a, 32, pWO, 0, 819200)
    WR = 240
    for n in range(2):
        if n == 1:
            a("s_cmp_ge_u32 s53, 288")
            a("s_cbranch_scc1 L_prep_wo_ld")
        a(f"s_add_u32 s40, s53, {512*n}")
        a("s_mul_i32 s41, s40, 1639")
        a("s_lshr_b32 s41, s41, 16")
        a("s_mul_i32 s58, s41, 40")
        a("s_sub_u32 s58, s40, s58")
        a("s_mul_i32 s59, s58, 20")
        a("s_mul_i32 s55, s58, 80")
        a("s_sub_u32 s55, s55, %d" % (32*80 - 16))
        a("s_cmp_lt_u32 s58, 32")
        a("s_cselect_b32 s45, 4, 40")
        a("s_cselect_b32 s59, s59, s55")
        a(f"s_mov_b32 s46, {20*1280}")
        a(f"s_cmov_b32 s46, {8*1280}")
        a("v_mul_u32_u24 v4, s45, v3")
        a("v_add_u32 v4, s59, v4")
        a("v_mul_u32_u24 v4, 1280, v4")
        a("s_lshl_b32 s59, s41, 6")
        a("v_lshl_add_u32 v4, v2, 1, v4")
        a("v_add_u32 v4, s59, v4")
        b = WR + 8*n
        for grp in range(2):
            so = "s46" if grp else "0"
            for i in range(4):
                a(f"buffer_load_ushort v{b+4*grp+i}, v4, s[32:35], {so} offen offset:{i*1280}")
        a("s_mul_i32 s59, s41, 52")
        a("s_lshr_b32 s59, s59, 8")
        a("s_mul_i32 s55, s59, 5")
        a("s_sub_u32 s55, s41, s55")
        a("s_mul_i32 s45, s58, 26")
        a("s_lshr_b32 s45, s45, 8")
        a("s_mul_i32 s47, s45, 10")
        a("s_sub_u32 s47, s58, s47")
        a("s_add_u32 s58, s58, 10")
        a("s_cmp_lt_u32 s55, 4")
        a("s_cselect_b32 s55, s55, s45")
        a("s_cselect_b32 s58, s58, s47")
        a("s_lshl_b32 s59, s59, 2")
        a("s_add_u32 s59, s59, s55")
        a("s_mul_i32 s59, s59, 50")
        a("s_add_u32 s59, s59, s58")
        a("s_lshl_b32 s59, s59, 10")
        a(f"s_add_u32 s{50+n}, s59, {WO_OFF - SEQ_OFF}")
    a("L_prep_wo_ld:")
    G = 176
    a("s_mov_b32 s54, s53")
    a("v_lshlrev_b32 v12, 3, v3")
    a(f"s_mov_b32 s55, {f32bits(1.0/2048)}")
    a("v_cmp_gt_u32 s[56:57], 32, v1")
    a("L_prep_gen:")
    a("s_lshr_b32 s41, s54, 5")
    a("s_and_b32 s58, s54, 31")
    a("s_lshr_b32 s59, s41, 1")
    a("s_lshl_b32 s59, s59, 6")
    a("s_and_b32 s47, s41, 1")
    a("s_add_u32 s59, s59, s47")
    a("v_lshl_add_u32 v4, v2, 1, s59")
    a("s_mul_i32 s45, s41, 65")
    a("s_add_u32 s45, s45, s58")
    a("s_lshl_b32 s45, s45, 10")
    a(f"s_add_u32 s46, s45, {33*1024}")
    a("s_lshl_b32 s48, s58, 4")
    a("v_add_u32 v5, s48, v12")
    a("v_mul_u32_u24 v5, v4, v5")
    a("v_cvt_f32_u32 v5, v5")
    a("v_cvt_f32_u32 v4, v4")
    for i in range(8):
        if i: a("v_add_f32 v5, v5, v4")
        a(f"v_mul_f32 v{G+i}, s55, v5")
    for i in range(8): a(f"v_fract_f32 v{G+i}, v{G+i}")
    for i in range(8): a(f"v_cos_f32 v{G+8+i}, v{G+i}")
    a("s_cmp_lg_u32 s58, 0")
    a("s_cbranch_scc1 L_gen_plain")
    a("v_mul_f32 v6, 0x3e800000, v4")
    a("v_fract_f32 v6, v6")
    a(f"v_cndmask_b32 v{G}, v{G}, v6, s[56:57]")
    a("v_cos_f32 v7, v6")
    a(f"v_mov_b32 v{G+25}, 0")
    a(f"v_mov_b32 v{G+26}, 0")
    a(f"v_mov_b32 v{G+27}, 0")
    a("v_cndmask_b32 v7, 0, v7, s[56:57]")
    a(f"v_cvt_pk_bf16_f32 v{G+24}, v7, 0")
    a(f"s_add_u32 s48, s45, {32*1024}")
    a(f"buffer_store_dwordx4 {vr(G+24,4)}, v9, s[36:39], s48 offen sc1")
    a("L_gen_plain:")
    for i in range(8): a(f"v_sin_f32 v{G+i}, v{G+i}")
    for i in range(4): a(f"v_cvt_pk_bf16_f32 v{G+16+i}, v{G+8+2*i}, v{G+9+2*i}")
    for i in range(4): a(f"v_cvt_pk_bf16_f32 v{G+20+i}, v{G+2*i}, v{G+1+2*i}")
    a(f"buffer_store_dwordx4 {vr(G+16,4)}, v9, s[36:39], s45 offen sc1")
    a(f"buffer_store_dwordx4 {vr(G+20,4)}, v9, s[36:39], s46 offen sc1")
    a("s_add_u32 s54, s54, 512")
    a("s_cmp_lt_u32 s54, 1056")
    a("s_cbranch_scc1 L_prep_gen")
    a("s_cmp_ge_u32 s27, 2")
    a("s_cselect_b32 s46, -1.0, 1.0")
    a("s_mov_b32 s47, s46")
    a("s_mov_b32 s48, 0xffff0000")
    T = 176; R = 208; H = 20
    ng = "neg_lo:[0,1] neg_hi:[0,1]"
    def dfold(src, dst):
        for d in range(4):
            a(f"v_lshlrev_b32 v{dst+2*d}, 16, v{src+d}")
            a(f"v_and_b32 v{dst+2*d+1}, s48, v{src+d}")
            a(f"v_lshlrev_b32 v{H+2*(d&1)}, 16, v{src+4+d}")
            a(f"v_and_b32 v{H+2*(d&1)+1}, s48, v{src+4+d}")
            a(f"v_pk_fma_f32 {vr(dst+2*d,2)}, {vr(H+2*(d&1),2)}, s[46:47], {vr(dst+2*d,2)}")
    for n in range(3):
        if n == 2:
            a(f"s_cmp_ge_u32 s{sWAVE}, 4")
            a("s_cbranch_scc1 L_fold_done")
        if n == 0: a("s_waitcnt vmcnt(12)")
        if n == 0: stamp(a, 9)
        b = LD + 32*n
        for r in range(4): dfold(b + 8*r, T + 8*r)
        for d in range(4):
            p = lambda r: vr(T+8*r+2*d, 2)
            q = lambda r: vr(R+8*r+2*d, 2)
            a(f"v_pk_add_f32 {q(0)}, {p(0)}, {p(1)}")
            a(f"v_pk_add_f32 {q(1)}, {p(0)}, {p(1)} {ng}")
            a(f"v_pk_add_f32 {q(2)}, {p(2)}, {p(3)}")
            a(f"v_pk_add_f32 {q(3)}, {p(2)}, {p(3)} {ng}")
            a(f"v_pk_add_f32 {p(0)}, {q(0)}, {q(2)}")
            a(f"v_pk_add_f32 {p(1)}, {q(0)}, {q(2)} {ng}")
            a(f"v_pk_add_f32 {p(2)}, {q(1)}, {q(3)} {ng}")
            a(f"v_pk_add_f32 {p(3)}, {q(1)}, {q(3)}")
        l = a.label("L_fold_sp")
        a("s_cmp_lg_u32 s42, 0")
        a(f"s_cbranch_scc1 {l}")
        a("s_waitcnt vmcnt(0)")
        dfold(XL + 16*n, R); dfold(XL + 16*n + 8, R + 8)
        for d in range(4):
            a(f"v_pk_add_f32 {vr(R+16+2*d,2)}, {vr(R+2*d,2)}, {vr(R+8+2*d,2)}")
            a(f"v_pk_add_f32 {vr(R+2*d,2)}, {vr(R+2*d,2)}, {vr(R+8+2*d,2)} {ng}")
        for e in range(8): a(f"v_cndmask_b32 v{T+24+e}, v{R+e}, v{T+24+e}, vcc")
        for d in range(4): a(f"v_cvt_pk_bf16_f32 v{R+d}, v{R+16+2*d}, v{R+17+2*d}")
        a(f"v_add_u32 v19, s{96+n}, v17")
        a(f"ds_write_b128 v19, {vr(R,4)}")
        a(f"{l}:")
        a(f"s_lshl_b32 s45, s{96+n}, 5")
        a("v_add_u32 v16, s45, v18")
        for i in range(4):
            for d in range(4): a(f"v_cvt_pk_bf16_f32 v{b+4*i+d}, v{T+8*i+2*d}, v{T+8*i+2*d+1}")
            a(f"ds_write_b128 v16, {vr(b+4*i,4)} offset:{i*20480}")
    a("L_fold_done:")
    a("s_waitcnt vmcnt(4)")
    for n in range(2):
        if n == 1:
            a("s_cmp_ge_u32 s53, 288")
            a("s_cbranch_scc1 L_prep_wo_st")
        b = WR + 8*n
        for i in range(4): a(f"v_lshl_or_b32 v{b+i}, v{b+2*i+1}, 16, v{b+2*i}")
        a(f"buffer_store_dwordx4 {vr(b,4)}, v9, s[36:39], s{50+n} offen sc1")
    a("L_prep_wo_st:")
    a("s_waitcnt lgkmcnt(0)")
    stamp(a, 14)
    a("s_barrier")
    stamp(a, 2)
    a(f"s_cmp_ge_u32 s{sWAVE}, 6")
    a("s_cbranch_scc1 L_prep_done")
    a(f"s_and_b32 s40, s{sWAVE}, 1")
    a(f"s_lshr_b32 s41, s{sWAVE}, 1")
    a(f"s_cmp_lt_u32 s{sWAVE}, 4")
    a("s_cselect_b32 s49, s40, 2")
    a("s_cselect_b32 s41, s41, s40")
    a("s_sub_u32 s50, 1, s41")
    a("s_mul_i32 s42, s27, 3")
    a("s_add_u32 s42, s42, s49")
    a("s_cmp_gt_u32 s42, 10")
    a("s_cbranch_scc1 L_prep_done")
    a("s_and_b32 s43, s27, 1")
    a("s_mul_i32 s43, s43, 3")
    a("s_add_u32 s43, s43, s49")
    a("s_lshl_b32 s43, s43, 6")
    a("s_lshr_b32 s44, s27, 1")
    a("s_add_u32 s43, s43, s44")
    a("v_lshl_add_u32 v4, v2, 1, s43")
    AU = 10; SB = [24, 32]; HB = [40, 44]; UB = [48, 60, 144, 156]; AC = 72; PH = 128
    a("s_mul_i32 s44, s50, 40960")
    for jj in range(4):
        a(f"v_xor_b32 v5, {2*jj}, v3")
        a("v_xor_b32 v5, v5, v2")
        a("v_lshl_add_u32 v5, v3, 5, v5")
        a("v_lshlrev_b32 v5, 4, v5")
        a(f"v_add_u32 v5, {jj*1024}, v5")
        a(f"v_add_u32 v{AU+jj}, s44, v5")
    a(f"v_lshlrev_b32 v{AU+4}, 4, v3")
    a(f"v_add_u32 v{AU+4}, 81920, v{AU+4}")
    def ureads(j, buf):
        jj = j & 3; o = (j >> 2) * 4096; b = UB[buf]
        return [f"ds_read_b128 {vr(b+4*i,4)}, v{AU+jj} offset:{o + i*20480}" for i in range(2)] + [f"ds_read_b128 {vr(b+8,4)}, v{AU+4} offset:{j*32}"]
    for x in ureads(0, 0) + ureads(1, 1): a(x)
    a(f"s_mov_b32 s44, {f32bits(1.0/640)}")
    a("s_cmp_lg_u32 s50, 0")
    a("s_cselect_b32 s45, 0x3e800000, 0")
    a("v_lshlrev_b32 v5, 3, v3")
    a("v_mul_u32_u24 v5, v4, v5")
    a("v_cvt_f32_u32 v5, v5")
    a("v_cvt_f32_u32 v4, v4")
    a("v_mul_f32 v6, 0x41800000, v4")
    for i in range(8):
        if i: a("v_add_f32 v5, v5, v4")
        a(f"v_mul_f32 v{PH+i}, s44, v5")
        a("v_sub_f32 v7, v5, v6")
        a(f"v_mul_f32 v{PH+8+i}, s44, v7")
    a("v_mul_f32 v6, s44, v6")
    a("v_fract_f32 v6, v6")
    for i in range(16): a(f"v_fract_f32 v{PH+i}, v{PH+i}")
    for i in range(16): a(f"v_subrev_f32 v{PH+i}, s45, v{PH+i}")
    a("v_cos_f32 v20, v6")
    for i in range(16): a(f"v_cos_f32 v{SB[0]+i}, v{PH+i}")
    a("v_add_f32 v20, v20, v20")
    for r in range(48): a(f"v_mov_b32 v{AC+r}, 0")
    def cvts(g):
        return [f"v_cvt_pk_bf16_f32 v{HB[g]+d}, v{SB[g]+2*d}, v{SB[g]+2*d+1}" for d in range(4)]
    def rot(cur):
        return [f"v_fma_f32 v{SB[cur^1]+i}, v20, v{SB[cur]+i}, -v{SB[cur^1]+i}" for i in range(8)]
    for x in cvts(0): a(x)
    a("s_mov_b32 s45, 5")
    a("s_or_b32 s51, s26, s50")
    a("s_cmp_eq_u32 s51, 0")
    a("s_cbranch_scc1 L_f1_loop3")
    for nm in (2, 3):
        a(f"L_f1_loop{nm}:")
        for jj in range(4):
            buf = jj & 1
            va = rot(buf) + cvts(buf ^ 1)
            rd = ureads(jj + 2, (jj + 2) & 3)[:nm]
            a(f"s_waitcnt lgkmcnt({nm})")
            a("s_nop 0")
            per = 12 // nm
            for m in range(nm):
                d = vr(AC + 16*m, 16)
                a(f"v_mfma_f32_32x32x16_bf16 {d}, {vr(UB[jj]+4*m,4)}, {vr(HB[buf],4)}, {d}")
                a(rd[m])
                for x in va[per*m:per*m+per]: a(x)
        for r in range(4): a(f"v_add_u32 v{AU+r}, 4096, v{AU+r}")
        a(f"v_add_u32 v{AU+4}, 128, v{AU+4}")
        a("s_sub_u32 s45, s45, 1")
        a("s_cmp_lg_u32 s45, 0")
        a(f"s_cbranch_scc1 L_f1_loop{nm}")
        if nm == 2: a("s_branch L_f1_done")
    a("L_f1_done:")
    stamp(a, 5)
    a("s_mul_i32 s43, s42, 33")
    a("s_lshl_b32 s44, s26, 1")
    a("s_add_u32 s44, s44, s43")
    a(f"s_mul_i32 s45, s50, {22*33}")
    a("s_add_u32 s44, s44, s45")
    a("s_lshl_b32 s44, s44, 10")
    a(f"s_add_u32 s44, s44, {AB_OFF - SEQ_OFF}")
    a("s_nop 3")
    for i in range(2):
        b = AC + 16*i
        for r in range(8): a(f"v_cvt_pk_bf16_f32 v{b+r}, v{b+2*r}, v{b+2*r+1}")
        a(f"buffer_store_dwordx4 {vr(b,4)}, v9, s[36:39], s44 offen sc1")
        a(f"buffer_store_dwordx4 {vr(b+4,4)}, v9, s[36:39], s44 offen offset:1024 sc1")
        if i < 1: a(f"s_add_u32 s44, s44, {11*33*1024}")
    a("s_waitcnt lgkmcnt(0)")
    a("s_cmp_lg_u32 s51, 0")
    a("s_cbranch_scc1 L_prep_done")
    b = AC + 32
    for r in range(4): a(f"v_cvt_pk_bf16_f32 v{b+r}, v{b+2*r}, v{b+2*r+1}")
    a("s_add_u32 s43, s43, 32")
    a("s_lshl_b32 s43, s43, 10")
    a(f"s_add_u32 s43, s43, {AB_OFF - SEQ_OFF}")
    a(f"buffer_store_dwordx4 {vr(b,4)}, v9, s[36:39], s43 offen sc1")
    a("L_prep_done:")
    a(f"s_cmp_lt_u32 s{sWAVE}, 4")
    a("s_cbranch_scc1 L_A_done")
    get_nonce(a, 2)

def a_done(a):
    a("L_A_done:")
    stamp(a, 6)
    a("s_waitcnt vmcnt(0)")
    stamp(a, 3)
    a("s_barrier")
    stamp(a, 4)
    a("s_and_b32 s26, s2, 31")
    a("s_lshr_b32 s27, s2, 5")
    a(f"s_cmp_lg_u32 s{sWAVE}, 4")
    a("s_cbranch_scc1 L_A_wait")
    a("s_lshl_b32 s40, s2, 7")
    set_flag(a, 40, 2)
    a("s_lshr_b32 s41, s26, 3")
    a("v_and_b32 v2, 15, v1")
    a("v_and_b32 v3, 1, v1")
    a("s_lshl_b32 s42, s27, 1")
    a("v_add_u32 v3, s42, v3")
    a("v_cmp_gt_u32 vcc, 32, v1")
    a("v_lshrrev_b32 v4, 4, v1")
    a("v_lshl_add_u32 v4, v4, 2, 4")
    a("v_cndmask_b32 v2, v3, v2, vcc")
    a("v_cndmask_b32 v4, 0, v4, vcc")
    a("v_add_u32 v4, s41, v4")
    a("v_cmp_le_u32 vcc, 6, v4")
    a("v_and_b32 v5, 3, v2")
    a("v_lshrrev_b32 v2, 2, v2")
    a("v_cndmask_b32 v6, 0, 1, vcc")
    a("v_mul_u32_u24 v7, 6, v6")
    a("v_sub_u32 v4, v4, v7")
    a("v_lshl_add_u32 v4, v4, 2, v5")
    a("v_lshl_add_u32 v2, v6, 2, v2")
    a("v_lshl_add_u32 v4, v4, 3, v2")
    a("v_lshlrev_b32 v4, 7, v4")
    poll(a, 4, 6, sleep=OPT.get('sl', 0))
    a("L_A_wait:")
    a("s_barrier")
    stamp(a, 7)
    a(f"s_cmp_ge_u32 s{sWAVE}, 4")
    a("s_cbranch_scc1 L_aux")

def attention(a):
    AKA, AKB, AV0, AV1 = 4, 5, 6, 7
    QA = [8, 14]
    NEG = [32, 48]; S = [64, 80]; O = [96, 112]; P = 128
    KB = [136, 142]; VB = [148, 156]
    PR = 164
    a("L_attn:")
    a(f"s_setprio {OPT.get('pattn', 2)}")
    a(f"s_mul_i32 s40, s26, {Q_HEAD}")
    a(f"s_add_u32 s40, s40, {Q_OFF}")
    make_srd(a, 28, pWS, "s40", Q_HEAD)
    a(f"s_mul_i32 s40, s26, {KV_HEAD}")
    make_srd(a, 32, pWS, "s40", KV_HEAD)
    a("v_and_b32 v2, 31, v1")
    a("v_lshrrev_b32 v3, 5, v1")
    a(f"v_lshlrev_b32 v{AKA}, 4, v1")
    a(f"v_lshlrev_b32 v{AKB}, 3, v2")
    a(f"v_add_u32 v{AKB}, 1024, v{AKB}")
    a(f"v_mov_b32 v20, {HUGE}")
    a("v_cmp_gt_u32 vcc, 32, v1")
    a("s_lshl_b32 s41, s27, 3")
    a(f"s_lshl_b32 s42, s{sWAVE}, 1")
    a("s_add_u32 s41, s41, s42")
    a(f"v_cndmask_b32 v20, v20, v{AKB}, vcc")
    a(f"s_mul_i32 s42, s41, {TQ}")
    for q in range(2):
        a(f"buffer_load_dwordx4 {vr(QA[q],4)}, v{AKA}, s[28:31], s42 offen offset:{q*TQ} sc1")
        a(f"buffer_load_dwordx2 {vr(QA[q]+4,2)}, v20, s[28:31], s42 offen offset:{q*TQ} sc1")
    a(f"buffer_load_dwordx4 {vr(KB[0],4)}, v{AKA}, s[32:35], 0 offen sc1")
    a(f"buffer_load_dwordx2 {vr(KB[0]+4,2)}, v{AKB}, s[32:35], 0 offen sc1")
    a("v_mul_u32_u24 v21, 20, v3")
    a("v_add_u32 v21, v21, v2")
    a("v_lshlrev_b32 v21, 4, v21")
    a("v_mov_b32 v22, 2560")
    a("v_cmp_gt_u32 vcc, 20, v2")
    a(f"v_add_u32 v{AV0}, 1280, v21")
    a(f"v_add_u32 v{AV1}, 1920, v21")
    a(f"v_cndmask_b32 v{AV0}, v22, v{AV0}, vcc")
    a(f"v_cndmask_b32 v{AV1}, v22, v{AV1}, vcc")
    a(f"s_mov_b32 s43, {TKV}")
    a(f"buffer_load_dwordx4 {vr(VB[0],4)}, v{AV0}, s[32:35], 0 offen sc1")
    a(f"buffer_load_dwordx4 {vr(KB[1],4)}, v{AKA}, s[32:35], s43 offen sc1")
    a(f"buffer_load_dwordx2 {vr(KB[1]+4,2)}, v{AKB}, s[32:35], s43 offen sc1")
    a(f"buffer_load_dwordx4 {vr(VB[0]+4,4)}, v{AV1}, s[32:35], 0 offen sc1")
    a(f"buffer_load_dwordx4 {vr(VB[1],4)}, v{AV0}, s[32:35], s43 offen sc1")
    a(f"buffer_load_dwordx4 {vr(VB[1]+4,4)}, v{AV1}, s[32:35], s43 offen sc1")
    make_srd(a, 36, pWS, O_OFF, O_SIZE)
    a(f"v_mov_b32 v23, {LDS_PROG}")
    for q in range(2):
        for r in range(16): a(f"v_mov_b32 v{O[q]+r}, 0")
    mm16 = "v_mfma_f32_32x32x16_bf16"; mm8 = "v_mfma_f32_32x32x8_bf16"
    def M1(s, t, q, c): return f"{mm16} {vr(s,16)}, {vr(KB[t&1],4)}, {vr(QA[q],4)}, {c}"
    def M2(s, t, q): return f"{mm8} {vr(s,16)}, {vr(KB[t&1]+4,2)}, {vr(QA[q]+4,2)}, {vr(s,16)}"
    def M3(t, q): return f"{mm16} {vr(O[q],16)}, {vr(VB[t&1],4)}, {vr(P,4)}, {vr(O[q],16)}"
    def M4(t, q): return f"{mm16} {vr(O[q],16)}, {vr(VB[t&1]+4,4)}, {vr(P+4,4)}, {vr(O[q],16)}"
    def rowmax(src, dst, first):
        if first:
            a(f"v_max3_f32 v{dst}, v{src}, v{src+1}, v{src+2}")
            a(f"v_max_f32 v{dst}, v{dst}, v{src+15}")
            rng = range(3, 15, 2)
        else: rng = range(0, 16, 2)
        for r in rng: a(f"v_max3_f32 v{dst}, v{dst}, v{src+r}, v{src+r+1}")
    def finish_neg(add):
        a("v_mov_b32 v26, v24")
        a("v_mov_b32 v27, v25")
        a("s_nop 1")
        a("v_permlane32_swap_b32 v24, v26")
        a("v_permlane32_swap_b32 v25, v27")
        a("s_nop 1")
        a("v_max_f32 v24, v24, v26")
        a("v_max_f32 v25, v25, v27")
        for q in range(2):
            a(f"v_sub_f32 v{NEG[q]}, {add}, v{24+q}")
            for r in range(1, 16): a(f"v_mov_b32 v{NEG[q]+r}, v{NEG[q]}")
    a("s_waitcnt vmcnt(6)")
    stamp(a, 8)
    for q in range(2): a(M1(S[q], 0, q, "0"))
    for q in range(2): a(M2(S[q], 0, q))
    a("s_nop 11")
    rowmax(S[0], 24, True)
    a("s_nop 1")
    rowmax(S[1], 25, True)
    finish_neg("0xc2800000")
    a(M1(S[0], 0, 0, vr(NEG[0],16)))
    a(M2(S[0], 0, 0))
    a(f"ds_read_b128 {vr(PR,4)}, v23")
    a("s_waitcnt vmcnt(0)")
    a("s_nop 9")
    def check(need):
        l = a.label("L_chk"); ok = a.label("L_chkok")
        a(f"{l}:")
        a("s_waitcnt lgkmcnt(0)")
        a(f"v_min3_u32 v{PR}, v{PR}, v{PR+1}, v{PR+2}")
        a(f"v_min_u32 v{PR}, v{PR}, v{PR+3}")
        a("s_nop 0")
        a(f"v_readfirstlane_b32 s44, v{PR}")
        a("s_nop 0")
        a(f"s_cmp_ge_u32 s44, {need}")
        a(f"s_cbranch_scc1 {ok}")
        a(f"ds_read_b128 {vr(PR,4)}, v23")
        a(f"s_branch {l}")
        a(".p2align 3")
        a(f"{ok}:")
    def unit(t, q, s4=(), s1=(), s2=(), s3=(), first=False, nonext=False):
        s = S[q]; sn = S[q ^ 1]
        t1, q1 = (t, 1) if q == 0 else (t + 1, 0)
        tp, qp = (t - 1, 1) if q == 0 else (t, 0)
        E = lambda r: a(f"v_exp_f32 v{s+r}, v{s+r}")
        C = lambda j: a(f"v_cvt_pk_bf16_f32 v{P+j}, v{s+2*j}, v{s+2*j+1}")
        al = OPT.get('al', 1)
        EW = lambda r: a(f"v_exp_f32_e64 v{s+r}, v{s+r}") if al else E(r)
        odd = lambda xs: sum(1 for x in xs if x.startswith("s_")) & 1
        E(0); E(1)
        if not first: a(M4(tp, qp))
        for x in s4: a(x)
        (E if odd(s4) else EW)(2); E(3); E(4)
        if not nonext: a(M1(sn, t1, q1, vr(NEG[q1],16)))
        for x in s1: a(x)
        EW(5); E(6); E(7)
        for j in range(4): C(j)
        if not nonext: a(M2(sn, t1, q1))
        for x in s2: a(x)
        EW(8)
        for r in range(9, 13): E(r)
        a(M3(t, q))
        for x in s3: a(x)
        EW(13); E(14); E(15)
        for j in range(4, 8): C(j)
    def period(t, o, extra3=()):
        if o is None:
            unit(t, 1, s4=["s_waitcnt lgkmcnt(0)"]); unit(t + 1, 0); return
        kb = KB[t & 1]; vb = VB[t & 1]
        unit(t, 1, s4=["s_waitcnt lgkmcnt(0)"],
             s1=[f"ds_read_b128 {vr(kb,4)}, v{AKA} offset:{o}"],
             s3=[f"ds_read_b64 {vr(kb+4,2)}, v{AKB} offset:{o}"])
        unit(t + 1, 0, s4=[f"ds_read_b128 {vr(vb,4)}, v{AV0} offset:{o}"],
             s1=[f"ds_read_b128 {vr(vb+4,4)}, v{AV1} offset:{o}"], s3=extra3)
    rdp = [f"ds_read_b128 {vr(PR,4)}, v23"]
    a(".p2align 3")
    unit(0, 0, first=True)
    stamp(a, 9)
    check(NEED[0])
    for t in range(6):
        if t == 3: check(NEED[1])
        period(t, t * TKV, rdp if t in (2, 5) else ())
    for r in (AKA, AKB, AV0, AV1): a(f"v_add_u32 v{r}, {6*TKV}, v{r}")
    a(f"s_lshl_b32 s45, s{sWAVE}, 2")
    a("v_add_u32 v24, s45, v23")
    a("ds_write_b32 v24, v23 offset:16")
    a(f"s_mov_b32 s45, {NEED[2]}")
    a("s_mov_b32 s46, 7")
    stamp(a, 10)
    a(".p2align 3")
    a("L_attn_loop:")
    a("s_cmp_gt_u32 s45, 40")
    a("s_cbranch_scc1 L_attn_nochk")
    check("s45")
    a(f"s_cmp_eq_u32 s45, {NEED[2]}")
    a(f"s_cselect_b32 s44, {NEED[3]}, 40")
    a("s_cmp_eq_u32 s45, 40")
    a("s_cselect_b32 s45, 41, s44")
    a(".p2align 3")
    a("L_attn_nochk:")
    for k in range(8):
        ex = ()
        if k == 7: ex = rdp
        period(k, k * TKV, ex)
    for r in (AKA, AKB, AV0, AV1): a(f"v_add_u32 v{r}, {8*TKV}, v{r}")
    a("s_sub_u32 s46, s46, 1")
    a("s_cmp_lg_u32 s46, 0")
    a("s_cbranch_scc1 L_attn_loop")
    period(62, None)
    unit(63, 1, nonext=True)
    a("s_nop 1")
    a(M4(63, 1))
    stamp(a, 11)
    a("s_nop 15")
    a("L_attn_post:")
    for q in range(2): a(f"v_mov_b32 v{24+q}, v{O[q]+8}")
    a("v_mov_b32 v26, 0")
    a("s_nop 0")
    for q in range(2): a(f"v_permlane32_swap_b32 v{O[q]+8}, v{24+q}")
    a("s_cmp_eq_u32 s46, 0")
    a("s_cbranch_scc0 L_attn_fin")
    for q in range(2):
        for r in range(12): a(f"v_fma_f32 v26, v{O[q]+r}, 0, v26")
    a("v_max_f32 v27, v24, v25")
    a("v_fma_f32 v26, v24, 0, v26")
    a("v_fma_f32 v26, v25, 0, v26")
    a("v_mov_b32 v28, 0x76800000")
    a("v_cmp_u_f32 s[44:45], v26, v26")
    a("v_cmp_nlt_f32 vcc, v27, v28")
    a("s_nop 1")
    a("s_or_b64 vcc, vcc, s[44:45]")
    if OPT.get('forcefb'): a("s_mov_b64 vcc, -1")
    a("s_cbranch_vccnz L_attn_fallback")
    a("L_attn_fin:")
    a("v_rcp_f32 v24, v24")
    a("v_rcp_f32 v25, v25")
    a("s_lshl_b32 s42, s41, 5")
    a("s_add_u32 s42, s42, s26")
    a("s_mul_i32 s42, s42, 1280")
    a("v_lshlrev_b32 v21, 4, v1")
    for q in range(2):
        for r in range(12): a(f"v_mul_f32 v{O[q]+r}, v{O[q]+r}, v{24+q}")
        for r in range(6): a(f"v_cvt_pk_bf16_f32 v{O[q]+r}, v{O[q]+2*r}, v{O[q]+2*r+1}")
        a(f"buffer_store_dwordx4 {vr(O[q],4)}, v21, s[36:39], s42 offen sc1")
        a(f"buffer_store_dwordx2 {vr(O[q]+4,2)}, v20, s[36:39], s42 offen sc1")
        if q == 0: a(f"s_add_u32 s42, s42, {32*1280}")
    a("s_setprio 0")
    a("s_branch L_B_done")
    a("L_attn_fallback:")
    for r in (AKA, AKB, AV0, AV1): a(f"v_subrev_u32 v{r}, {62*TKV}, v{r}")
    a("v_mov_b32 v24, 0xff800000")
    a("v_mov_b32 v25, 0xff800000")
    a("s_mov_b32 s46, 0")
    a("L_fb_max:")
    a(f"buffer_load_dwordx4 {vr(KB[0],4)}, v{AKA}, s[32:35], s46 offen sc1")
    a(f"buffer_load_dwordx2 {vr(KB[0]+4,2)}, v{AKB}, s[32:35], s46 offen sc1")
    a("s_waitcnt vmcnt(0)")
    for q in range(2): a(M1(S[q], 0, q, "0"))
    for q in range(2): a(M2(S[q], 0, q))
    a("s_nop 15")
    rowmax(S[0], 24, False)
    rowmax(S[1], 25, False)
    a(f"s_add_u32 s46, s46, {TKV}")
    a(f"s_cmp_lt_u32 s46, {KV_HEAD}")
    a("s_cbranch_scc1 L_fb_max")
    finish_neg("0")
    for q in range(2):
        for r in range(16): a(f"v_mov_b32 v{O[q]+r}, 0")
    a("s_mov_b32 s46, 0")
    a("L_fb_main:")
    a(f"buffer_load_dwordx4 {vr(KB[0],4)}, v{AKA}, s[32:35], s46 offen sc1")
    a(f"buffer_load_dwordx2 {vr(KB[0]+4,2)}, v{AKB}, s[32:35], s46 offen sc1")
    a(f"buffer_load_dwordx4 {vr(VB[0],4)}, v{AV0}, s[32:35], s46 offen sc1")
    a(f"buffer_load_dwordx4 {vr(VB[0]+4,4)}, v{AV1}, s[32:35], s46 offen sc1")
    a("s_waitcnt vmcnt(0)")
    for q in range(2): a(M1(S[q], 0, q, vr(NEG[q],16)))
    for q in range(2): a(M2(S[q], 0, q))
    a("s_nop 15")
    for q in range(2):
        for r in range(16): a(f"v_exp_f32 v{S[q]+r}, v{S[q]+r}")
        a("s_nop 0")
        for j in range(8): a(f"v_cvt_pk_bf16_f32 v{P+j}, v{S[q]+2*j}, v{S[q]+2*j+1}")
        a("s_nop 1")
        a(M3(0, q)); a(M4(0, q))
    a(f"s_add_u32 s46, s46, {TKV}")
    a(f"s_cmp_lt_u32 s46, {KV_HEAD}")
    a("s_cbranch_scc1 L_fb_main")
    a("s_nop 15")
    a("s_branch L_attn_post")

def aux(a):
    a("L_aux:")
    a(f"s_setprio {OPT.get('paux', 0)}")
    a(f"s_sub_u32 s44, s{sWAVE}, 4")
    a(f"s_mul_i32 s40, s26, {KV_HEAD}")
    a(f"s_add_u32 s40, s40, {2*TKV}")
    make_srd(a, 28, pWS, "s40", 62*TKV)
    a("v_lshlrev_b32 v2, 4, v1")
    a("s_lshl_b32 s45, s44, 10")
    a("s_lshl_b32 s46, s44, 2")
    a(f"s_add_u32 s46, s46, {LDS_PROG}")
    a("v_mov_b32 v3, s46")
    def prog(j):
        a(f"v_mov_b32 v4, {j}")
        a("ds_write_b32 v3, v4")
    AH = 10
    cps = NEED[:4]
    for j in range(40):
        if j == 39:
            a(f"s_cmp_ge_u32 s45, {NDMA*1024}")
            a("s_cbranch_scc1 L_kv_issued")
        a("s_mov_b32 m0, s45")
        a("s_nop 0")
        a("buffer_load_dwordx4 v2, s[28:31], s45 offen sc1 lds")
        if j < 39: a("s_add_u32 s45, s45, 4096")
        if j + 1 - AH in cps:
            a(f"s_waitcnt vmcnt({AH})")
            prog(j + 1 - AH)
    a("L_kv_issued:")
    a("v_lshlrev_b32 v5, 7, v1")
    a(f"v_add_u32 v5, {192*128}, v5")
    a("s_waitcnt vmcnt(0)")
    prog(40)
    stamp(a, 8)
    poll(a, 5, 6)
    a(f"s_setprio {OPT.get('pf2', 3)}")
    a("s_lshr_b32 s40, s44, 1")
    a("s_lshl_b32 s40, s40, 5")
    a(f"s_add_u32 s40, s40, s{sSLOT}")
    a("s_mul_i32 s41, s40, 373")
    a("s_lshr_b32 s41, s41, 12")
    a("s_mul_i32 s42, s41, 11")
    a("s_sub_u32 s42, s40, s42")
    a("s_lshl_b32 s41, s41, 3")
    a(f"s_add_u32 s41, s41, s{sXCD}")
    a("s_cmp_ge_u32 s41, 33")
    a("s_cbranch_scc1 L_wo")
    a("s_and_b32 s45, s44, 1")
    a("s_mul_i32 s47, s41, 65")
    a("s_mul_i32 s48, s45, 33")
    a("s_add_u32 s47, s47, s48")
    a("s_lshl_b32 s47, s47, 10")
    a(f"s_add_u32 s47, s47, {SEQ_OFF}")
    make_srd(a, 28, pWS, "s47", 33*1024)
    a("s_and_b32 s43, s41, 1")
    a("s_lshl_b32 s47, s45, 1")
    a("s_add_u32 s47, s47, s43")
    a("s_mul_i32 s48, s47, 11")
    a("s_add_u32 s48, s48, s42")
    a(f"s_mul_i32 s48, s48, {33*1024}")
    a(f"s_add_u32 s48, s48, {AB_OFF}")
    make_srd(a, 32, pWS, "s48", 33*1024)
    make_srd(a, 36, pOUT, 0, OUT_SIZE)
    D = OPT.get('f2d', 28); FB = 32; AC = 8
    a("s_cmp_lg_u32 s47, 0")
    a("s_cbranch_scc1 L_f2_nox")
    a(f"s_mov_b32 s49, {32*1024}")
    a("buffer_load_dwordx4 v[24:27], v2, s[28:31], s49 offen sc1")
    a("buffer_load_dwordx4 v[28:31], v2, s[32:35], s49 offen sc1")
    a("L_f2_nox:")
    def issue2(k):
        b = FB + (k % D) * 8
        if k % 4 == 0: a(f"s_mov_b32 s49, {(k//4)*4096}")
        a(f"buffer_load_dwordx4 {vr(b,4)}, v2, s[28:31], s49 offen offset:{(k%4)*1024} sc1")
        a(f"buffer_load_dwordx4 {vr(b+4,4)}, v2, s[32:35], s49 offen offset:{(k%4)*1024} sc1")
    for k in range(D): issue2(k)
    stamp(a, 9)
    for k in range(32):
        a(f"s_waitcnt vmcnt({2*(min(32, k+D)-k-1)})")
        b = FB + (k % D) * 8
        d = vr(AC, 16)
        a(f"v_mfma_f32_32x32x16_bf16 {d}, {vr(b,4)}, {vr(b+4,4)}, {'0' if k == 0 else d}")
        if k + D < 32: issue2(k + D)
    a("s_cmp_lg_u32 s47, 0")
    a("s_cbranch_scc1 L_f2_nox2")
    a(f"v_mfma_f32_32x32x16_bf16 {vr(AC,16)}, v[24:27], v[28:31], {vr(AC,16)}")
    a("L_f2_nox2:")
    a(f"v_mov_b32 v3, {LDS_PROG}")
    a("L_f2_dead:")
    a("ds_read_b128 v[40:43], v3 offset:16")
    a("s_waitcnt lgkmcnt(0)")
    a("v_min3_u32 v40, v40, v41, v42")
    a("v_min_u32 v40, v40, v43")
    a("s_nop 0")
    a("v_readfirstlane_b32 s48, v40")
    a("s_nop 0")
    a("s_cmp_eq_u32 s48, 0")
    a("s_cbranch_scc1 L_f2_dead")
    a("s_lshl_b32 s48, s44, 11")
    a("v_add_u32 v4, s48, v2")
    a("s_lshl_b32 s49, s44, 2")
    a("v_add_u32 v5, s49, v3")
    a("s_xor_b32 s48, s48, 2048")
    a("s_xor_b32 s49, s49, 4")
    a("v_add_u32 v6, s48, v2")
    a("v_add_u32 v7, s49, v3")
    a("s_cmp_lg_u32 s45, 0")
    a("s_cbranch_scc1 L_f2_h1")
    a("ds_write_b128 v4, v[16:19]")
    a("ds_write_b128 v4, v[20:23] offset:1024")
    a("s_branch L_f2_x")
    a("L_f2_h1:")
    a("ds_write_b128 v4, v[8:11]")
    a("ds_write_b128 v4, v[12:15] offset:1024")
    a("L_f2_x:")
    a("ds_write_b32 v5, v3 offset:32")
    a("v_and_b32 v5, 31, v1")
    a("v_lshrrev_b32 v4, 5, v1")
    a("s_lshr_b32 s47, s41, 1")
    a("s_lshl_b32 s47, s47, 6")
    a("s_add_u32 s47, s47, s43")
    a("s_lshl_b32 s48, s45, 5")
    a("s_add_u32 s47, s47, s48")
    a("s_cmp_ge_u32 s42, 6")
    a("s_cselect_b32 s48, 383, 0")
    a("s_lshl_b32 s49, s42, 6")
    a("s_sub_u32 s48, s49, s48")
    a("v_lshl_add_u32 v5, v5, 1, s48")
    a(f"v_mov_b32 v46, {HUGE}")
    a("v_lshlrev_b32 v47, 1, v5")
    a("v_add_u32 v40, 1280, v47")
    a("v_cmp_ge_u32 vcc, 320, v5")
    a("v_sub_u32 v41, 2560, v47")
    a("v_add_u32 v47, -1, v5")
    a("v_cndmask_b32 v40, v46, v40, vcc")
    a("v_cmp_gt_u32 vcc, 319, v47")
    a("v_lshl_add_u32 v47, v4, 3, s47")
    a("v_mul_u32_u24 v47, 2560, v47")
    a("v_cndmask_b32 v41, v46, v41, vcc")
    a(f"v_sub_u32 v44, {(2048-22)*2560}, v47")
    a("v_add_u32 v42, v44, v40")
    a("v_add_u32 v43, v44, v41")
    a("v_add_u32 v40, v47, v40")
    a("v_add_u32 v41, v47, v41")
    a("L_f2_wait:")
    a("ds_read_b32 v45, v7 offset:32")
    a("s_waitcnt lgkmcnt(0)")
    a("v_readfirstlane_b32 s48, v45")
    a("s_nop 0")
    a("s_cmp_lg_u32 s48, 0")
    a("s_cbranch_scc1 L_f2_got")
    a("s_sleep 2")
    a("s_branch L_f2_wait")
    a("L_f2_got:")
    a("s_cmp_lg_u32 s45, 0")
    a("s_cbranch_scc1 L_f2_h1b")
    a("ds_read_b128 v[16:19], v6")
    a("ds_read_b128 v[20:23], v6 offset:1024")
    a("s_branch L_f2_y")
    a("L_f2_h1b:")
    a("ds_read_b128 v[8:11], v6")
    a("ds_read_b128 v[12:15], v6 offset:1024")
    a("L_f2_y:")
    a("s_waitcnt lgkmcnt(0)")
    for r in range(0, 8, 2):
        a(f"v_pk_add_f32 {vr(48+r,2)}, {vr(8+r,2)}, {vr(16+r,2)}")
        a(f"v_pk_add_f32 {vr(56+r,2)}, {vr(8+r,2)}, {vr(16+r,2)} neg_lo:[0,1] neg_hi:[0,1]")
    for r in range(4):
        a(f"v_cvt_pk_bf16_f32 v{48+r}, v{48+2*r}, v{48+2*r+1}")
        a(f"v_cvt_pk_bf16_f32 v{56+r}, v{56+2*r}, v{56+2*r+1}")
    a("s_cmp_eq_u32 s41, 32")
    a("s_cbranch_scc1 L_f2_nyq")
    for r in range(8):
        ro = (r & 3) + 8 * (r >> 2)
        st = "buffer_store_short_d16_hi" if r & 1 else "buffer_store_short"
        a(f"s_mov_b32 s47, {ro*5120}")
        a(f"s_mov_b32 s48, {(11-ro)*5120}")
        a(f"{st} v{56+r//2}, v40, s[36:39], s47 offen")
        a(f"{st} v{48+r//2}, v41, s[36:39], s47 offen")
        if r == 0:
            a(f"v_add_u32 v44, {11*5120}, v42")
            a(f"v_add_u32 v45, {11*5120}, v43")
            a(f"{st} v48, v44, s[36:39], 0 offen")
            a(f"{st} v56, v45, s[36:39], 0 offen")
        else:
            a(f"{st} v{48+r//2}, v42, s[36:39], s48 offen")
            a(f"{st} v{56+r//2}, v43, s[36:39], s48 offen")
    a("s_branch L_f2_fin")
    a("L_f2_nyq:")
    a("s_cmp_lg_u32 s45, 0")
    a("s_cbranch_scc1 L_wo")
    a("v_cmp_eq_u32 vcc, 0, v4")
    a("s_nop 1")
    a("v_cndmask_b32 v40, v46, v40, vcc")
    a("v_cndmask_b32 v41, v46, v41, vcc")
    a("buffer_store_short v56, v40, s[36:39], 0 offen")
    a("buffer_store_short v48, v41, s[36:39], 0 offen")
    a("L_f2_fin:")
    if OPT.get('wb'):
        a("s_waitcnt vmcnt(0)")
        a("buffer_wbl2 sc1")
    a("L_wo:")
    stamp(a, 10)
    a("s_lshr_b32 s40, s26, 3")
    a("s_lshl_b32 s40, s40, 2")
    a("s_add_u32 s40, s40, s44")
    a(f"s_mul_i32 s40, s40, {50*1024}")
    a(f"s_add_u32 s40, s40, {WO_OFF}")
    make_srd(a, 28, pWS, "s40", 50*1024)
    a("s_waitcnt vmcnt(0)")
    for k in range(50):
        if k % 4 == 0: a(f"s_mov_b32 s49, {(k//4)*4096}")
        a(f"buffer_load_dwordx4 {vr(56+4*k,4)}, v2, s[28:31], s49 offen offset:{(k%4)*1024} sc1")

def tail(a):
    a("L_B_done:")
    a("s_waitcnt vmcnt(0)")
    stamp(a, 12)
    a("s_barrier")
    stamp(a, 1)
    a("s_and_b32 s40, s26, 7")
    a("s_lshl_b32 s41, s27, 3")
    a("s_add_u32 s41, s41, s40")
    a(f"s_mul_i32 s40, s41, {32*1280}")
    a(f"s_add_u32 s40, s40, {O_OFF}")
    make_srd(a, 28, pWS, "s40", 32*1280)
    a("v_lshlrev_b32 v2, 4, v1")
    a(f"s_cmp_lg_u32 s{sWAVE}, 4")
    a("s_cbranch_scc1 L_B_wait")
    a(f"s_add_u32 s40, s2, {FB}")
    a("s_lshl_b32 s40, s40, 7")
    set_flag(a, 40, 4)
    a("v_and_b32 v4, 31, v1")
    a("s_lshl_b32 s40, s27, 5")
    a(f"s_add_u32 s40, s40, {FB}")
    a("v_add_u32 v4, s40, v4")
    a("v_lshlrev_b32 v4, 7, v4")
    poll(a, 4, 6, sleep=OPT.get('sl', 0))
    a("L_B_wait:")
    a("s_barrier")
    stamp(a, 13)
    a(f"s_lshl_b32 s40, s{sWAVE}, 10")
    for j in range(5):
        a("s_mov_b32 m0, s40")
        a("s_nop 0")
        a("buffer_load_dwordx4 v2, s[28:31], s40 offen sc1 lds")
        if j < 4: a("s_add_u32 s40, s40, 8192")
    a("v_and_b32 v3, 31, v1")
    a("v_lshrrev_b32 v4, 5, v1")
    a("v_mul_u32_u24 v5, 2560, v4")
    a("v_lshl_add_u32 v5, v3, 3, v5")
    a("v_add_u32 v5, 1024, v5")
    make_srd(a, 32, pOUT, 0, OUT_SIZE)
    a("s_lshl_b32 s41, s41, 5")
    a("v_add_u32 v6, s41, v3")
    a("v_mul_u32_u24 v6, 2560, v6")
    a("s_lshr_b32 s42, s26, 3")
    a("s_mul_i32 s42, s42, 320")
    a("s_waitcnt vmcnt(0)")
    a("s_barrier")
    a(f"s_cmp_lt_u32 s{sWAVE}, 4")
    a("s_cbranch_scc1 L_end")
    stamp(a, 14)
    if lib.STAMP: a("s_waitcnt lgkmcnt(0)")
    A5, AM, OB = 8, 24, 40
    a("s_mul_i32 s43, s44, 12800")
    a("v_add_u32 v7, s43, v2")
    def rd(buf, kap, base=None):
        b = OB + 4*buf
        if base is not None: return f"ds_read_b128 {vr(b,4)}, v{base} offset:{kap*1280}"
        if kap < 32: return f"ds_read_b128 {vr(b,4)}, v2 offset:{kap*1280}"
        o = (kap - 32) * 5120 // 8
        return None
    def rd_main(buf, kap):
        b = OB + 4*buf
        if kap < 32: return [f"ds_read_b128 {vr(b,4)}, v2 offset:{kap*1280}"]
        g = kap - 32
        return [f"ds_read_b64 {vr(b,2)}, v5 offset:{g*5120}", f"ds_read_b64 {vr(b+2,2)}, v5 offset:{g*5120+1280}"]
    def stream(steps):
        n = len(steps); cnt = [0]*n
        PF = 3
        for k in range(PF):
            r = steps[k][0](k % 4); cnt[k] = len(r)
            for x in r: a(x)
        for k in range(n):
            out = sum(cnt[k+1:min(n, k+PF)])
            a(f"s_waitcnt lgkmcnt({out})")
            d = vr(steps[k][1], 16)
            a(f"v_mfma_f32_32x32x16_bf16 {d}, {vr(steps[k][2],4)}, {vr(OB+4*(k%4),4)}, {'0' if steps[k][3] else d}")
            if k + PF < n:
                r = steps[k+PF][0]((k+PF) % 4); cnt[k+PF] = len(r)
                for x in r: a(x)
            if k == 13:
                for j in range(4): a(f"ds_write_b128 v3, {vr(A5+4*j,4)} offset:{j*1024}")
                cnt[k+PF] += 4
    main = [((lambda kap: lambda buf: rd_main(buf, kap))(kap), AM, 56 + 4*(10+kap), kap == 0) for kap in range(40)]
    a("s_lshl_b32 s43, s44, 12")
    a("s_add_u32 s43, s43, 40960")
    a("v_add_u32 v3, s43, v2")
    a("s_cmp_eq_u32 s44, 3")
    a("s_cbranch_scc1 L_tail3")
    q5 = [((lambda i: lambda buf: [f"ds_read_b128 {vr(OB+4*buf,4)}, v7 offset:{i*1280}"])(i), A5, 56 + 4*i, i == 0) for i in range(10)]
    stream(q5 + main)
    a("s_branch L_tail_join")
    a("L_tail3:")
    q5 = [((lambda i: lambda buf: rd_main(buf, 30 + i))(i), A5, 56 + 4*i, i == 0) for i in range(10)]
    stream(q5 + main)
    a("L_tail_join:")
    stamp(a, 11)
    a("s_waitcnt lgkmcnt(0)")
    a("s_barrier")
    a("s_lshl_b32 s43, s44, 10")
    a("s_add_u32 s43, s43, 40960")
    a("v_add_u32 v3, s43, v2")
    for i in range(4): a(f"ds_read_b128 {vr(OB+4*i,4)}, v3 offset:{i*4096}")
    a("s_lshl_b32 s43, s44, 6")
    a("s_add_u32 s43, s43, s42")
    a("v_lshl_add_u32 v7, v4, 4, v6")
    a("s_nop 2")
    for r in range(8): a(f"v_cvt_pk_bf16_f32 v{AM+r}, v{AM+2*r}, v{AM+2*r+1}")
    a("s_nop 1")
    for h2 in range(2):
        a(f"v_permlane32_swap_b32 v{AM+4*h2}, v{AM+4*h2+2}")
        a(f"v_permlane32_swap_b32 v{AM+4*h2+1}, v{AM+4*h2+3}")
    for h2 in range(2):
        a(f"buffer_store_dwordx4 {vr(AM+4*h2,4)}, v7, s[32:35], s43 offen offset:{32*h2}")
    a("s_waitcnt lgkmcnt(0)")
    for i in range(1, 4):
        a(f"v_pk_add_f32 {vr(OB,2)}, {vr(OB,2)}, {vr(OB+4*i,2)}")
        a(f"v_pk_add_f32 {vr(OB+2,2)}, {vr(OB+2,2)}, {vr(OB+4*i+2,2)}")
    a("s_lshl_b32 s43, s44, 4")
    a("s_add_u32 s43, s43, s42")
    a("v_lshl_add_u32 v7, v4, 3, v6")
    a(f"v_cvt_pk_bf16_f32 v{OB}, v{OB}, v{OB+1}")
    a(f"v_cvt_pk_bf16_f32 v{OB+1}, v{OB+2}, v{OB+3}")
    a(f"buffer_store_dwordx2 {vr(OB,2)}, v7, s[32:35], s43 offen offset:256")
    a("L_end:")
    if lib.STAMP:
        a("s_waitcnt vmcnt(0)")
        stamp(a, 15); stamp_real(a, 17)
        stamp_flush(a, 18, pWS, sWAVE, 0)
    a("L_exit:")
    a("s_endpgm")

KNAME = "concat_heads__mha_block__spectral_fnet__prompt_kernel"
def kernel(a):
    kernel_header(a, KNAME)
    a("s_cmp_ge_u32 s2, 256")
    a("s_cbranch_scc1 L_exit")
    if lib.STAMP:
        for i in range(18): a(f"s_mov_b32 s{60+2*i}, 0")
    stamp(a, 0); stamp_real(a, 16)
    a("s_load_dwordx8 s[4:11], s[0:1], 0")
    a("s_load_dwordx4 s[12:15], s[0:1], 64")
    a("s_load_dwordx2 s[16:17], s[0:1], 80")
    a("v_lshrrev_b32 v1, 6, v0")
    a(f"s_and_b32 s{sXCD}, s2, 7")
    a(f"v_readfirstlane_b32 s{sWAVE}, v1")
    a(f"s_lshr_b32 s{sSLOT}, s2, 3")
    a("v_and_b32 v1, 63, v0")
    a(f"s_and_b32 s26, s{sXCD}, 3")
    a("s_lshl_b32 s26, s26, 2")
    a(f"s_and_b32 s27, s{sSLOT}, 3")
    a("s_add_u32 s26, s26, s27")
    a(f"s_lshr_b32 s27, s{sXCD}, 2")
    a("s_mul_i32 s27, s27, 6")
    a(f"s_lshr_b32 s40, s{sSLOT}, 2")
    a("s_add_u32 s27, s27, s40")
    a(f"s_lshl_b32 s40, s2, 3")
    a(f"s_add_u32 s40, s40, s{sWAVE}")
    a("s_waitcnt lgkmcnt(0)")
    make_srd(a, sFL, pWS, FL_OFF, FL_SIZE)
    a("s_cmp_lg_u32 s40, 7")
    a("s_cbranch_scc1 L_no_nonce")
    a("s_memrealtime s[40:41]")
    make_srd(a, 28, pDBG, 0, 256)
    a("s_waitcnt lgkmcnt(0)")
    a("s_or_b32 s40, s40, 1")
    a("v_mov_b32 v2, s40")
    a("v_mov_b32 v3, s41")
    a("v_mov_b32 v4, 0")
    a("buffer_store_dwordx2 v[2:3], v4, s[28:31], 0 offen sc1")
    a("L_no_nonce:")
    a(f"s_cmp_lg_u32 s{sWAVE}, 0")
    a("s_cbranch_scc1 L_no_init")
    a(f"v_mov_b32 v2, {LDS_PROG}")
    a("v_mov_b32 v4, 0")
    a("v_mov_b32 v5, 0")
    for i in range(6): a(f"ds_write_b64 v2, v[4:5] offset:{8*i}")
    a("s_waitcnt lgkmcnt(0)")
    a("L_no_init:")
    if OPT.get('touch'):
        a(f"s_cmp_lg_u32 s{sWAVE}, 1")
        a("s_cbranch_scc1 L_no_code")
        a("s_getpc_b64 s[40:41]")
        a("L_pc:")
        a(f"s_sub_u32 s40, s40, L_pc-{KNAME}")
        a("s_subb_u32 s41, s41, 0")
        a(f"s_and_b32 s42, s{sSLOT}, 7")
        a("s_lshl_b32 s42, s42, 12")
        a("v_lshlrev_b32 v2, 4, v1")
        a("v_add_u32 v2, s42, v2")
        a(f"v_min_u32 v2, L_exit-{KNAME}-3072-16, v2")
        for i in range(4): a(f"global_load_dwordx4 v[164:167], v2, s[40:41] offset:{i*1024}")
        a("L_no_code:")
        a(f"s_cmp_lg_u32 s{sWAVE}, 2")
        a("s_cbranch_scc1 L_no_tlb")
        make_srd(a, 28, pWS, 0, FL_OFF + FL_SIZE)
        a("v_mul_u32_u24 v2, 0x44000, v1")
        a("buffer_load_dword v164, v2, s[28:31], 0 offen sc1")
        make_srd(a, 28, pOUT, 0, OUT_SIZE)
        a("v_mul_u32_u24 v2, 0x14000, v1")
        a("buffer_load_dword v165, v2, s[28:31], 0 offen sc1")
        a("L_no_tlb:")
    a(f"s_cmp_ge_u32 s{sSLOT}, 24")
    a("s_cbranch_scc1 L_prep")
    a(f"s_cmp_lt_u32 s{sWAVE}, 4")
    a("s_cbranch_scc1 L_compute")
    gemm_loader(a)
    gemm_compute(a)
    prep(a)
    a_done(a)
    attention(a)
    aux(a)
    tail(a)
    return kernel_desc(KNAME, 256, 100)

HEADER = open('concat_heads__mha_block__spectral_fnet__prompt.s.ref').read().split("; Override")[0]
def main(out):
    a = Asm()
    a('.amdgcn_target "amdgcn-amd-amdhsa--gfx950"')
    a(".text")
    d = kernel(a)
    txt = HEADER + "; @launch grid=(256,1,1) block=(512,1,1) lds=163840\n" + a.text() + '.section .rodata,"a"\n.p2align 6\n' + d
    open(out, "w").write(txt)

if __name__ == "__main__":
    for x in sys.argv[2:]:
        if x == "stamp": lib.STAMP = True
        elif x == "gst": lib.STAMP = True; lib.STAMPSET = 1
        else:
            k, _, v = x.partition("=")
            OPT[k] = int(v) if v else 1
    main(sys.argv[1] if len(sys.argv) > 1 else "v5.s")
```

```python
import sys, struct
from lib import *
import lib

TKV = 2560; KV_HEAD = 64*TKV; KV_OFF = 0; KV_SIZE = 32*KV_HEAD
TQ = 1280; Q_HEAD = 64*TQ; Q_OFF = KV_SIZE; Q_SIZE = 32*Q_HEAD
O_OFF = Q_OFF + Q_SIZE; O_SIZE = 64*32*1280
SEQ_OFF = O_OFF + O_SIZE; SEQ_SIZE = 33*65*1024
AB_OFF = SEQ_OFF + SEQ_SIZE; AB_SIZE = 4*11*33*1024
WO_OFF = AB_OFF + AB_SIZE; WO_SIZE = 16*50*1024
FL_OFF = 16*1024*1024; FL_SIZE = 512*128
FA, FB = 0, 256
X_SIZE = 2048*1280; OUT_SIZE = 2048*2560
HUGE = 0x40000000
QSCALE = (20 ** -0.5) * 1.4426950408889634
NDMA = 155; LPAIR = 5184
LDS_PROG = 31*LPAIR
def lds_tile(t): return ((t-2)>>1)*LPAIR + ((t-2)&1)*TKV
def need(tile): return ((tile-1)*TKV + 4095)//4096
NEED = [need(4), need(7), need(15), need(23), 39]
POLL_MAX = 200000
def f32bits(x): return struct.unpack('<I', struct.pack('<f', x))[0]
OPT = {}

sWAVE = 3
pX, pW, pWO, pBX, pOUT, pDBG, pWS = 4, 6, 8, 10, 12, 14, 16
sNON = 18
sFL = 20
sXCD, sSLOT = 24, 25
STG = 36864
NS = 4

def poll(a, vaddr, vtmp, cnt=40, sleep=1):
    l = a.label("L_poll"); d = a.label("L_pollok")
    a(f"s_mov_b32 s{cnt}, {POLL_MAX}")
    a(f"{l}:")
    a(f"buffer_load_dwordx2 {vr(vtmp,2)}, v{vaddr}, {sr(sFL,4)}, 0 offen sc1")
    a("s_waitcnt vmcnt(0)")
    a(f"v_cmp_ne_u64 vcc, {sr(sNON,2)}, {vr(vtmp,2)}")
    a(f"s_sub_u32 s{cnt}, s{cnt}, 1")
    a(f"s_cbranch_vccz {d}")
    a(f"s_cmp_eq_u32 s{cnt}, 0")
    a(f"s_cbranch_scc1 {d}")
    if sleep: a(f"s_sleep {sleep}")
    a(f"s_branch {l}")
    a(f"{d}:")

def get_nonce(a, vt, srd=28, cnt=40):
    make_srd(a, srd, pDBG, 0, 256)
    l = a.label("L_non"); d = a.label("L_nonok")
    a(f"v_mov_b32 v{vt}, 0")
    a(f"s_mov_b32 s{cnt}, {POLL_MAX}")
    a(f"{l}:")
    a(f"buffer_load_dwordx2 {vr(vt+2,2)}, v{vt}, {sr(srd,4)}, 0 offen sc1")
    a("s_waitcnt vmcnt(0)")
    a(f"v_readfirstlane_b32 s{sNON}, v{vt+2}")
    a(f"v_readfirstlane_b32 s{sNON+1}, v{vt+3}")
    a(f"s_sub_u32 s{cnt}, s{cnt}, 1")
    a(f"s_cmp_lg_u32 s{sNON}, 0")
    a(f"s_cbranch_scc1 {d}")
    a(f"s_cmp_eq_u32 s{cnt}, 0")
    a(f"s_cbranch_scc1 {d}")
    a("s_sleep 2")
    a(f"s_branch {l}")
    a(f"{d}:")

def set_flag(a, sidx, vt):
    for i in range(4): a(f"v_mov_b32 v{vt+i}, s{sNON+(i&1)}")
    a(f"v_lshlrev_b32 v{vt+4}, 4, v1")
    a("s_mov_b64 exec, 0xff")
    a(f"buffer_store_dwordx4 {vr(vt,4)}, v{vt+4}, {sr(sFL,4)}, s{sidx} offen sc1")
    a("s_mov_b64 exec, -1")

def gemm_loader(a):
    sA, sB = 28, 32
    a("L_loader:")
    a("s_mul_i32 s40, s26, 163840")
    make_srd(a, sA, pX, "s40", 163840)
    a(f"s_sub_u32 s44, s{sWAVE}, 4")
    a("v_lshrrev_b32 v2, 3, v1")
    a("s_lshl_b32 s40, s44, 3")
    a("v_add_u32 v2, s40, v2")
    a("v_mul_u32_u24 v2, 1280, v2")
    a("v_lshrrev_b32 v3, 4, v1")
    a("s_and_b32 s40, s44, 1")
    a("s_lshl_b32 s40, s40, 2")
    a("v_or_b32 v4, s40, v3")
    a("v_and_b32 v5, 7, v1")
    a("v_xor_b32 v4, v4, v5")
    a("v_lshl_add_u32 v10, v4, 4, v2")
    a("s_lshl_b32 s45, s44, 10")
    a(f"s_lshr_b32 s40, s{sSLOT}, 2")
    a(f"s_mul_i32 s40, s40, {OPT.get('ra', 1)}")
    a(f"s_and_b32 s41, s{sSLOT}, 3")
    a(f"s_mul_i32 s41, s41, {OPT.get('rb', 1)}")
    a("s_add_u32 s40, s40, s41")
    a(f"s_mul_i32 s41, s{sXCD}, {OPT.get('rc', 3)}")
    a("s_add_u32 s40, s40, s41")
    a("s_mul_i32 s41, s40, 6554")
    a("s_lshr_b32 s41, s41, 16")
    a("s_mul_i32 s41, s41, 10")
    a("s_sub_u32 s47, s40, s41")
    def issue_x(c):
        sl = c % NS
        a("s_lshl_b32 s48, s47, 7")
        for j in range(4):
            a(f"s_add_u32 m0, s45, {sl*STG + j*4096}")
            if j: a(f"s_add_u32 s48, s48, 40960")
            else: a("s_mul_i32 s49, s47, 245760")
            a(f"buffer_load_dwordx4 v10, {sr(sA,4)}, s48 offen lds")
    def issue_w(c):
        sl = c % NS
        for i in range(5):
            a(f"s_add_u32 m0, s46, {sl*STG + 16384 + i*1024 - i*64}")
            if i == 0:
                a("s_add_u32 s47, s47, 1")
            elif i == 1:
                a("s_cmp_eq_u32 s47, 10")
                a("s_cmov_b32 s47, 0")
            else: a("s_nop 0")
            a(f"buffer_load_dwordx4 v11, {sr(sB,4)}, s49 offen offset:{i*64} lds")
    def issue(c): issue_x(c); issue_w(c)
    stamp(a, 12, 1)
    issue_x(0)
    stamp(a, 13, 1)
    a("s_mul_i32 s40, s27, 320")
    a("s_sub_u32 s41, 2457600, s40")
    make_srd(a, sB, pW, "s40", "s41")
    a("s_lshl_b32 s40, s44, 4")
    a("v_lshrrev_b32 v2, 2, v1")
    a("v_add_u32 v2, s40, v2")
    a("v_mul_u32_u24 v2, 3840, v2")
    a("v_and_b32 v3, 3, v1")
    a("v_lshl_add_u32 v11, v3, 4, v2")
    a("s_mul_i32 s46, s44, 5120")
    issue_w(0)
    stamp(a, 14, 1)
    issued = 1
    pre = OPT.get('pre', 2)
    for c in range(1, pre): issue(c); issued += 1
    for c in range(10):
        a(f"s_waitcnt vmcnt({9*(issued-c-1)})")
        if c in (0, 9): stamp(a, {0: 2, 9: 5}[c])
        stamp(a, c + 1, 1)
        a("s_barrier")
        if c == 0: stamp(a, 11, 1)
        while issued < min(10, c + 1 + (OPT.get('dep', 2) if c < OPT.get('depsw', 10) else 3)): issue(issued); issued += 1
    get_nonce(a, 2)
    a("s_branch L_A_done")

AX, AWA, EA = 8, 156, 16
FR = 24
ACC = 72
def gemm_loop(a, isv):
    def reads(kk):
        sl, ks = divmod(kk, 4); so = sl * STG
        b = FR + (kk & 1) * 24
        r = [f"ds_read_b128 {vr(b,4)}, v{AX+ks} offset:{so}"]
        for T in range(5):
            for t in range(2):
                o = so + ks*5120 + t*256
                if isv: r.append(f"ds_read_b64_tr_b16 {vr(b+4+4*T+2*t,2)}, v{AWA} offset:{o + 1024*T}")
                else: r.append(f"ds_read_b64_tr_b16 {vr(b+4+4*T+2*t,2)}, v{AWA+T} offset:{o}")
        return r
    def mfma(kk, T):
        b = FR + (kk & 1) * 24
        d = vr(ACC + 16*T, 16); w = vr(b + 4 + 4*T, 4); x = vr(b, 4)
        return f"v_mfma_f32_32x32x16_bf16 {d}, {x}, {w}, {d}" if isv else f"v_mfma_f32_32x32x16_bf16 {d}, {w}, {x}, {d}"
    for r in range(80): a(f"v_mov_b32 v{ACC+r}, 0")
    a(f"s_mov_b32 s40, {2*STG}")
    a("s_mov_b32 s41, 5")
    stamp(a, 1)
    a("s_barrier")
    stamp(a, 2)
    for r in reads(0): a(r)
    lp = a.label("L_gemm"); last = a.label("L_gemm_last"); done = a.label("L_gemm_done")
    a(".p2align 3")
    a(f"{lp}:")
    for kk in range(8):
        a("s_waitcnt lgkmcnt(0)")
        a(mfma(kk, 0))
        if kk == 7:
            a("s_sub_u32 s41, s41, 1")
            a("s_cmp_eq_u32 s41, 0")
            a(f"s_cbranch_scc1 {last}")
            for i in range(4): a(f"v_add_u32 v{AX+i}, s40, v{AX+i}")
            for i in range(1 if isv else 5): a(f"v_add_u32 v{AWA+i}, s40, v{AWA+i}")
            a("s_sub_u32 s40, 0, s40")
        if kk in (3, 7): a("s_barrier")
        nx = reads((kk + 1) & 7)
        for r in nx[0:3]: a(r)
        a(mfma(kk, 1))
        for r in nx[3:6]: a(r)
        a(mfma(kk, 2))
        for r in nx[6:9]: a(r)
        a(mfma(kk, 3))
        for r in nx[9:11]: a(r)
        a(mfma(kk, 4))
    a(f"s_branch {lp}")
    a(f"{last}:")
    for T in range(1, 5): a(mfma(7, T))
    stamp(a, 5)

def gemm_compute(a):
    a("L_compute:")
    a("v_and_b32 v2, 31, v1")
    a("v_lshrrev_b32 v3, 5, v1")
    a(f"s_lshl_b32 s40, s{sWAVE}, 5")
    a("v_add_u32 v4, s40, v2")
    a("v_lshlrev_b32 v4, 7, v4")
    a("v_bfe_u32 v5, v1, 1, 3")
    a("v_xor_b32 v5, v5, v3")
    for ks in range(4):
        a(f"v_xor_b32 v6, {2*ks}, v5")
        a(f"v_lshl_add_u32 v{AX+ks}, v6, 4, v4")
    a("v_bfe_u32 v4, v1, 2, 2")
    a("v_lshl_add_u32 v4, v3, 3, v4")
    a("v_lshlrev_b32 v4, 6, v4")
    a("v_add_u32 v4, 16384, v4")
    a("v_and_b32 v5, 3, v1")
    a("v_bfe_u32 v6, v1, 4, 1")
    a("v_lshl_add_u32 v5, v6, 2, v5")
    a(f"v_lshl_add_u32 v{AWA}, v5, 3, v4")
    a("s_lshl_b32 s42, s26, 2")
    a(f"s_add_u32 s42, s42, s{sWAVE}")
    a("s_and_b32 s43, s27, 3")
    a("s_lshl_b32 s43, s43, 3")
    a("s_cmp_ge_u32 s27, 8")
    a("s_cbranch_scc1 L_compute_v")
    for T in range(5):
        if T < 4: a(f"v_add_u32 v6, {10*T+1}, v5")
        else:
            a("v_lshrrev_b32 v6, 1, v5")
            a("v_mul_u32_u24 v6, 10, v6")
            a("v_and_b32 v7, 1, v5")
            a("v_mul_u32_u24 v7, 9, v7")
            a("v_add_u32 v6, v6, v7")
        a("v_and_b32 v7, 7, v6")
        a("v_lshl_add_u32 v7, v7, 3, v4")
        a("v_lshrrev_b32 v6, 3, v6")
        a(f"v_lshl_add_u32 v{AWA+T}, v6, 10, v7")
    a("s_cmp_ge_u32 s27, 4")
    for reg, k, q in [(44, KV_HEAD, Q_HEAD), (45, TKV, TQ), (46, f32bits(1.0), f32bits(QSCALE)), (47, KV_OFF, Q_OFF), (48, KV_SIZE, Q_SIZE)]:
        a(f"s_mov_b32 s{reg}, {q}")
        a(f"s_cmov_b32 s{reg}, {k}")
    make_srd(a, 28, pWS, "s47", "s48")
    a("s_mul_i32 s47, s43, s44")
    a("s_mul_i32 s48, s42, s45")
    a("s_add_u32 s47, s47, s48")
    a(f"v_lshlrev_b32 v{EA}, 4, v1")
    a("v_mul_lo_u32 v4, v3, s44")
    a("v_lshl_add_u32 v4, v2, 3, v4")
    a(f"v_add_u32 v{EA+1}, 1024, v4")
    gemm_loop(a, False)
    a("s_mov_b32 s48, s47")
    a("s_nop 7")
    for T in range(5):
        b = ACC + 16*T
        if T == 4: a("s_nop 3")
        for r in range(16): a(f"v_mul_f32 v{b+r}, s46, v{b+r}")
        for r in range(8): a(f"v_cvt_pk_bf16_f32 v{b+r}, v{b+2*r}, v{b+2*r+1}")
        if T < 4:
            for hq in range(2):
                a(f"buffer_store_dwordx4 {vr(b+4*hq,4)}, v{EA}, s[28:31], s48 offen sc1")
                a("s_add_u32 s48, s48, s44")
        else:
            a("s_lshl_b32 s44, s44, 1")
            for j in range(4):
                a(f"buffer_store_dwordx2 {vr(b+2*j,2)}, v{EA+1}, s[28:31], s47 offen sc1")
                if j < 3: a("s_add_u32 s47, s47, s44")
    a("s_branch L_A_done")
    a("L_compute_v:")
    make_srd(a, 28, pWS, KV_OFF, KV_SIZE)
    a(f"s_mov_b32 s44, {KV_HEAD}")
    a("s_mul_i32 s47, s43, s44")
    a(f"s_mul_i32 s48, s42, {TKV}")
    a("s_add_u32 s47, s47, s48")
    for T in range(5):
        a(f"v_add_u32 v4, {32*T}, v2")
        a("v_mul_u32_u24 v5, 3277, v4")
        a("v_lshrrev_b32 v5, 16, v5")
        a("v_mul_u32_u24 v6, 20, v5")
        a("v_sub_u32 v4, v4, v6")
        a("v_and_b32 v6, 28, v4")
        a("v_add_u32 v4, v4, v6")
        a("v_lshl_add_u32 v4, v3, 2, v4")
        a("v_mul_lo_u32 v5, v5, s44")
        a("v_lshl_add_u32 v4, v4, 4, v5")
        a(f"v_add_u32 v{EA+T}, 1280, v4")
    gemm_loop(a, True)
    a("s_nop 8")
    for T in range(5):
        b = ACC + 16*T
        if T == 4: a("s_nop 3")
        for r in range(8): a(f"v_cvt_pk_bf16_f32 v{b+r}, v{b+2*r}, v{b+2*r+1}")
        for jp in range(2):
            a(f"buffer_store_dwordx4 {vr(b+4*jp,4)}, v{EA+T}, s[28:31], s47 offen offset:{jp*640} sc1")
    a("s_branch L_A_done")

SWD = [42, 43, 44, 56, 57]
def side_work(a):
    a("s_sub_u32 s53, s2, 192")
    a("s_mul_i32 s53, s53, 3")
    a(f"s_add_u32 s53, s53, s{sWAVE}")
    a("s_sub_u32 s53, s53, 5")
    a("v_lshlrev_b32 v22, 4, v1")
    make_srd(a, 32, pWO, 0, 819200)
    make_srd(a, 28, pWS, SEQ_OFF, WO_OFF + WO_SIZE - SEQ_OFF)
    WR = 32
    for n in range(5):
        if n == 4:
            a("s_cmp_ge_u32 s53, 32")
            a("s_cbranch_scc1 L_sw_wo_ld")
        a(f"s_add_u32 s40, s53, {192*n}")
        a("s_mul_i32 s41, s40, 1639")
        a("s_lshr_b32 s41, s41, 16")
        a("s_mul_i32 s58, s41, 40")
        a("s_sub_u32 s58, s40, s58")
        a("s_mul_i32 s59, s58, 20")
        a("s_mul_i32 s55, s58, 80")
        a("s_sub_u32 s55, s55, %d" % (32*80 - 16))
        a("s_cmp_lt_u32 s58, 32")
        a("s_cselect_b32 s45, 4, 40")
        a("s_cselect_b32 s59, s59, s55")
        a(f"s_mov_b32 s46, {20*1280}")
        a(f"s_cmov_b32 s46, {8*1280}")
        a("v_mul_u32_u24 v4, s45, v3")
        a("v_add_u32 v4, s59, v4")
        a("v_mul_u32_u24 v4, 1280, v4")
        a("s_lshl_b32 s59, s41, 6")
        a("v_lshl_add_u32 v4, v2, 1, v4")
        a("v_add_u32 v4, s59, v4")
        b = WR + 8*n
        for grp in range(2):
            so = "s46" if grp else "0"
            for i in range(4):
                a(f"buffer_load_ushort v{b+4*grp+i}, v4, s[32:35], {so} offen offset:{i*1280}")
        a("s_mul_i32 s59, s41, 52")
        a("s_lshr_b32 s59, s59, 8")
        a("s_mul_i32 s55, s59, 5")
        a("s_sub_u32 s55, s41, s55")
        a("s_mul_i32 s45, s58, 26")
        a("s_lshr_b32 s45, s45, 8")
        a("s_mul_i32 s47, s45, 10")
        a("s_sub_u32 s47, s58, s47")
        a("s_add_u32 s58, s58, 10")
        a("s_cmp_lt_u32 s55, 4")
        a("s_cselect_b32 s55, s55, s45")
        a("s_cselect_b32 s58, s58, s47")
        a("s_lshl_b32 s59, s59, 2")
        a("s_add_u32 s59, s59, s55")
        a("s_mul_i32 s59, s59, 50")
        a("s_add_u32 s59, s59, s58")
        a("s_lshl_b32 s59, s59, 10")
        a(f"s_add_u32 s{SWD[n]}, s59, {WO_OFF - SEQ_OFF}")
    a("L_sw_wo_ld:")
    G = 80
    a("s_mov_b32 s54, s53")
    a("v_lshlrev_b32 v23, 3, v3")
    a(f"s_mov_b32 s55, {f32bits(1.0/2048)}")
    a("v_cmp_gt_u32 vcc, 32, v1")
    a("L_sw_gen:")
    a("s_lshr_b32 s41, s54, 5")
    a("s_and_b32 s58, s54, 31")
    a("s_lshr_b32 s59, s41, 1")
    a("s_lshl_b32 s59, s59, 6")
    a("s_and_b32 s47, s41, 1")
    a("s_add_u32 s59, s59, s47")
    a("v_lshl_add_u32 v4, v2, 1, s59")
    a("s_mul_i32 s45, s41, 65")
    a("s_add_u32 s45, s45, s58")
    a("s_lshl_b32 s45, s45, 10")
    a(f"s_add_u32 s46, s45, {33*1024}")
    a("s_lshl_b32 s48, s58, 4")
    a("v_add_u32 v5, s48, v23")
    a("v_mul_u32_u24 v5, v4, v5")
    a("v_cvt_f32_u32 v5, v5")
    a("v_cvt_f32_u32 v4, v4")
    for i in range(8):
        if i: a("v_add_f32 v5, v5, v4")
        a(f"v_mul_f32 v{G+i}, s55, v5")
    for i in range(8): a(f"v_fract_f32 v{G+i}, v{G+i}")
    for i in range(8): a(f"v_cos_f32 v{G+8+i}, v{G+i}")
    a("s_cmp_lg_u32 s58, 0")
    a("s_cbranch_scc1 L_gen_plain")
    a("v_mul_f32 v6, 0x3e800000, v4")
    a("v_fract_f32 v6, v6")
    a(f"v_cndmask_b32 v{G}, v{G}, v6, vcc")
    a("v_cos_f32 v7, v6")
    a(f"v_mov_b32 v{G+25}, 0")
    a(f"v_mov_b32 v{G+26}, 0")
    a(f"v_mov_b32 v{G+27}, 0")
    a("v_cndmask_b32 v7, 0, v7, vcc")
    a(f"v_cvt_pk_bf16_f32 v{G+24}, v7, 0")
    a(f"s_add_u32 s48, s45, {32*1024}")
    a(f"buffer_store_dwordx4 {vr(G+24,4)}, v22, s[28:31], s48 offen sc1")
    a("L_gen_plain:")
    for i in range(8): a(f"v_sin_f32 v{G+i}, v{G+i}")
    for i in range(4): a(f"v_cvt_pk_bf16_f32 v{G+16+i}, v{G+8+2*i}, v{G+9+2*i}")
    for i in range(4): a(f"v_cvt_pk_bf16_f32 v{G+20+i}, v{G+2*i}, v{G+1+2*i}")
    a(f"buffer_store_dwordx4 {vr(G+16,4)}, v22, s[28:31], s45 offen sc1")
    a(f"buffer_store_dwordx4 {vr(G+20,4)}, v22, s[28:31], s46 offen sc1")
    a("s_add_u32 s54, s54, 192")
    a("s_cmp_lt_u32 s54, 1056")
    a("s_cbranch_scc1 L_sw_gen")

def side_work_finish(a):
    WR = 32
    l = a.label("L_sw_fin")
    a("s_waitcnt vmcnt(10)")
    for n in range(5):
        if n == 4:
            a("s_cmp_ge_u32 s53, 32")
            a(f"s_cbranch_scc1 {l}")
        b = WR + 8*n
        for i in range(4): a(f"v_lshl_or_b32 v{b+i}, v{b+2*i+1}, 16, v{b+2*i}")
        a(f"buffer_store_dwordx4 {vr(b,4)}, v22, s[28:31], s{SWD[n]} offen sc1")
    a(f"{l}:")

def prep(a):
    a("L_prep:")
    a(f"s_sub_u32 s40, s{sSLOT}, 24")
    a("s_and_b32 s27, s40, 1")
    a("s_lshr_b32 s26, s40, 1")
    a("s_lshl_b32 s26, s26, 3")
    a(f"s_add_u32 s26, s26, s{sXCD}")
    make_srd(a, 36, pWS, AB_OFF, AB_SIZE)
    a(f"s_cmp_ge_u32 s{sWAVE}, 5")
    a("s_cbranch_scc1 L_fold_skip")
    make_srd(a, 28, pBX, 0, X_SIZE)
    a("s_lshl_b32 s42, s26, 4")
    a("v_lshrrev_b32 v2, 3, v1")
    a("v_and_b32 v3, 7, v1")
    a("v_add_u32 v4, s42, v2")
    a("v_mul_u32_u24 v5, 1280, v4")
    a("v_lshlrev_b32 v6, 4, v3")
    a("v_add_u32 v10, v5, v6")
    a("v_sub_u32 v7, v6, v5")
    a(f"s_lshl_b32 s44, s27, 1")
    a(f"s_add_u32 s44, s44, s{sWAVE}")
    a("s_cmp_ge_u32 s44, 5")
    a("s_cselect_b32 s45, 5, 0")
    a("s_sub_u32 s44, s44, s45")
    a("s_lshl_b32 s44, s44, 7")
    a("s_add_u32 s45, s44, 10240")
    a(f"v_add_u32 v11, {2048*1280}, v7")
    a(f"v_add_u32 v12, {1024*1280}, v7")
    a("v_cmp_ne_u32 vcc, 0, v4")
    a(f"v_mov_b32 v8, {HUGE}")
    a(f"v_add_u32 v9, {1024*1280}, v10")
    a("v_cndmask_b32 v13, v8, v9, vcc")
    LD = 32
    for hf in range(2):
        for r in range(4): a(f"buffer_load_dwordx4 {vr(LD+8*r+4*hf,4)}, v{10+r}, s[28:31], s44 offen offset:{640*hf}")
    a("v_subrev_u32 v11, 10240, v11")
    a("v_subrev_u32 v12, 10240, v12")
    for hf in range(2):
        for r, (vv, so) in enumerate([(10, 45), (11, 44), (12, 44), (9, 45)]):
            a(f"buffer_load_dwordx4 {vr(LD+32+8*r+4*hf,4)}, v{vv}, s[28:31], s{so} offen offset:{640*hf}")
    XL = 96
    a("s_cmp_lg_u32 s26, 0")
    a("s_cbranch_scc1 L_fold_nx")
    a(f"v_add_u32 v14, {512*1280}, v6")
    a(f"v_add_u32 v15, {1536*1280}, v6")
    a("v_cndmask_b32 v14, v14, v8, vcc")
    a("v_cndmask_b32 v15, v15, v8, vcc")
    for r in range(2):
        for hf in range(2):
            a(f"buffer_load_dwordx4 {vr(XL+8*r+4*hf,4)}, v{14+r}, s[28:31], s44 offen offset:{640*hf}")
    a("L_fold_nx:")
    a("v_and_b32 v5, 3, v2")
    a("v_lshrrev_b32 v4, 2, v2")
    a("v_lshl_or_b32 v5, v4, 3, v5")
    a("v_xor_b32 v5, v5, v3")
    a("v_and_b32 v4, 1, v3")
    a("v_lshl_add_u32 v5, v4, 5, v5")
    a("v_lshlrev_b32 v5, 4, v5")
    a("v_lshrrev_b32 v4, 1, v3")
    a("v_lshl_add_u32 v5, v4, 10, v5")
    a("s_lshl_b32 s45, s44, 5")
    a("v_add_u32 v16, s45, v5")
    a("v_xor_b32 v18, 64, v16")
    a("v_add_u32 v5, s44, v6")
    a("v_add_u32 v17, 40960, v5")
    a("v_lshlrev_b32 v6, 4, v1")
    a("v_add_u32 v6, 43008, v6")
    a("v_cndmask_b32 v17, v17, v6, vcc")
    a("L_fold_skip:")
    a("v_and_b32 v2, 31, v1")
    a("v_lshrrev_b32 v3, 5, v1")
    a("v_lshlrev_b32 v15, 4, v1")
    a(f"s_lshr_b32 s40, s{sWAVE}, 1")
    a("s_add_u32 s40, s40, 2")
    a(f"s_and_b32 s41, s{sWAVE}, 1")
    a(f"s_cmp_lt_u32 s{sWAVE}, 4")
    a(f"s_cselect_b32 s49, s{sWAVE}, s40")
    a("s_cselect_b32 s50, 0, s41")
    a("s_lshl_b32 s54, s49, 6")
    a("s_add_u32 s54, s54, s27")
    a("v_lshl_add_u32 v4, v2, 1, s54")
    AU = 10; SB = [[176, 184], [192, 200]]; HB = [[208, 212], [216, 220]]; UB = [72, 84, 96, 108]; ACC3 = [224, 240, 32]; PH = 112
    a("s_mul_i32 s52, s50, 20480")
    for jj in range(4):
        a(f"v_xor_b32 v5, {2*jj}, v3")
        a("v_xor_b32 v5, v5, v2")
        a("v_lshl_add_u32 v5, v3, 5, v5")
        a("v_lshlrev_b32 v5, 4, v5")
        a(f"v_add_u32 v5, {jj*1024}, v5")
        a(f"v_add_u32 v{AU+jj}, s52, v5")
    a(f"v_lshlrev_b32 v{AU+4}, 4, v3")
    a(f"v_add_u32 v{AU+4}, 40960, v{AU+4}")
    a(f"s_mov_b32 s52, {f32bits(1.0/640)}")
    a("s_cmp_lg_u32 s50, 0")
    a("s_cselect_b32 s53, 0x3e800000, 0")
    a("v_lshlrev_b32 v5, 3, v3")
    a("v_mul_u32_u24 v5, v4, v5")
    a("v_cvt_f32_u32 v5, v5")
    a("v_cvt_f32_u32 v4, v4")
    a("v_mul_f32 v6, 0x41800000, v4")
    for i in range(8):
        if i: a("v_add_f32 v5, v5, v4")
        a(f"v_mul_f32 v{PH+i}, s52, v5")
        a("v_sub_f32 v7, v5, v6")
        a(f"v_mul_f32 v{PH+8+i}, s52, v7")
    a("v_mul_f32 v6, s52, v6")
    a("v_fract_f32 v6, v6")
    for i in range(16): a(f"v_fract_f32 v{PH+i}, v{PH+i}")
    a("v_cos_f32 v19, v6")
    for i in range(16): a(f"v_sin_f32 v{SB[1][0]+i}, v{PH+i}")
    for i in range(16): a(f"v_subrev_f32 v{PH+i}, s53, v{PH+i}")
    for i in range(16): a(f"v_cos_f32 v{SB[0][0]+i}, v{PH+i}")
    a("v_add_f32 v19, v19, v19")
    for r in range(32): a(f"v_mov_b32 v{224+r}, 0")
    def cvts(jb, g): return [f"v_cvt_pk_bf16_f32 v{HB[jb][g]+d}, v{SB[jb][g]+2*d}, v{SB[jb][g]+2*d+1}" for d in range(4)]
    def rot(jb, cur): return [f"v_fma_f32 v{SB[jb][cur^1]+i}, v19, v{SB[jb][cur]+i}, -v{SB[jb][cur^1]+i}" for i in range(8)]
    for x in cvts(0, 0) + cvts(1, 0): a(x)
    a(f"s_cmp_lt_u32 s{sWAVE}, 5")
    a("s_cbranch_scc1 L_fold_go")
    side_work(a)
    side_work_finish(a)
    a("s_branch L_fold_done")
    a("L_fold_go:")
    a("s_cmp_lg_u32 s27, 0")
    a("s_cselect_b32 s46, -1.0, 1.0")
    a("s_mov_b32 s47, s46")
    a("s_mov_b32 s48, 0xffff0000")
    T = 112; R = 144; H = 20
    ng = "neg_lo:[0,1] neg_hi:[0,1]"
    def dfold(src, dst):
        for d in range(4):
            a(f"v_lshlrev_b32 v{dst+2*d}, 16, v{src+d}")
            a(f"v_and_b32 v{dst+2*d+1}, s48, v{src+d}")
            a(f"v_lshlrev_b32 v{H+2*(d&1)}, 16, v{src+4+d}")
            a(f"v_and_b32 v{H+2*(d&1)+1}, s48, v{src+4+d}")
            a(f"v_pk_fma_f32 {vr(dst+2*d,2)}, {vr(H+2*(d&1),2)}, s[46:47], {vr(dst+2*d,2)}")
    for n in range(2):
        a("s_waitcnt vmcnt(%d)" % (8 if n == 0 else 0))
        if n == 0: stamp(a, 9)
        b = LD + 32*n
        for r in range(4): dfold(b + 8*r, T + 8*r)
        for d in range(4):
            p = lambda r: vr(T+8*r+2*d, 2)
            q = lambda r: vr(R+8*r+2*d, 2)
            a(f"v_pk_add_f32 {q(0)}, {p(0)}, {p(1)}")
            a(f"v_pk_add_f32 {q(1)}, {p(0)}, {p(1)} {ng}")
            a(f"v_pk_add_f32 {q(2)}, {p(2)}, {p(3)}")
            a(f"v_pk_add_f32 {q(3)}, {p(2)}, {p(3)} {ng}")
            a(f"v_pk_add_f32 {p(0)}, {q(0)}, {q(2)}")
            a(f"v_pk_add_f32 {p(1)}, {q(0)}, {q(2)} {ng}")
            a(f"v_pk_add_f32 {p(2)}, {q(1)}, {q(3)} {ng}")
            a(f"v_pk_add_f32 {p(3)}, {q(1)}, {q(3)}")
        if n == 0:
            a("s_cmp_lg_u32 s26, 0")
            a("s_cbranch_scc1 L_fold_sp")
            a("s_waitcnt vmcnt(0)")
            dfold(XL, R); dfold(XL + 8, R + 8)
            for d in range(4):
                a(f"v_pk_add_f32 {vr(R+16+2*d,2)}, {vr(R+2*d,2)}, {vr(R+8+2*d,2)}")
                a(f"v_pk_add_f32 {vr(R+2*d,2)}, {vr(R+2*d,2)}, {vr(R+8+2*d,2)} {ng}")
            for e in range(8): a(f"v_cndmask_b32 v{T+24+e}, v{R+e}, v{T+24+e}, vcc")
            for d in range(4): a(f"v_cvt_pk_bf16_f32 v{R+d}, v{R+16+2*d}, v{R+17+2*d}")
            a(f"ds_write_b128 v17, {vr(R,4)}")
            a("L_fold_sp:")
        for i in range(4):
            for d in range(4): a(f"v_cvt_pk_bf16_f32 v{b+4*i+d}, v{T+8*i+2*d}, v{T+8*i+2*d+1}")
            a(f"ds_write_b128 v{16+2*n}, {vr(b+4*i,4)} offset:{(i>>1)*20480 + (i&1)*256}")
    a("L_fold_done:")
    for r in range(16): a(f"v_mov_b32 v{32+r}, 0")
    a("s_waitcnt lgkmcnt(0)")
    stamp(a, 14)
    a("s_barrier")
    stamp(a, 2)
    a("s_mul_i32 s42, s27, 6")
    a("s_add_u32 s42, s42, s49")
    a("s_cmp_gt_u32 s42, 10")
    a("s_cbranch_scc1 L_prep_done")
    def ureads(j, kinds):
        jj = j & 3; o = (j >> 2) * 4096; b = UB[j & 3]; r = []
        for k in kinds:
            if k == 2: r.append(f"ds_read_b128 {vr(b+8,4)}, v{AU+4} offset:{j*32}")
            else: r.append(f"ds_read_b128 {vr(b+4*k,4)}, v{AU+jj} offset:{o + k*20480}")
        return r
    a("s_mov_b32 s45, 5")
    a("s_or_b32 s51, s26, s50")
    a("s_cmp_eq_u32 s51, 0")
    a("s_cselect_b32 s40, 1, 0")
    a(f"s_cmp_lt_u32 s{sWAVE}, 4")
    a("s_cselect_b32 s41, 2, 0")
    a("s_add_u32 s40, s40, s41")
    variants = [[0], [0, 2], [0, 1], [0, 1, 2]]
    for v in range(1, 4):
        a(f"s_cmp_eq_u32 s40, {v}")
        a(f"s_cbranch_scc1 L_f1_v{v}")
    for v, kinds in enumerate(variants):
        a(f"L_f1_v{v}:")
        nm = len(kinds)
        for x in ureads(0, kinds) + ureads(1, kinds): a(x)
        a(f"L_f1_loop{v}:")
        for jj in range(4):
            buf = jj & 1
            va = rot(0, buf) + cvts(0, buf ^ 1)
            if 1 in kinds: va = rot(0, buf) + rot(1, buf) + cvts(0, buf ^ 1) + cvts(1, buf ^ 1)
            rd = ureads(jj + 2, kinds)
            a(f"s_waitcnt lgkmcnt({nm})")
            a("s_nop 0")
            per = len(va) // nm
            for m, k in enumerate(kinds):
                d = vr(ACC3[k], 16)
                a(f"v_mfma_f32_32x32x16_bf16 {d}, {vr(UB[jj]+4*k,4)}, {vr(HB[k & 1][buf],4)}, {d}")
                a(rd[m])
                for x in va[per*m:per*m+per]: a(x)
        for r in range(4): a(f"v_add_u32 v{AU+r}, 4096, v{AU+r}")
        if 2 in kinds: a(f"v_add_u32 v{AU+4}, 128, v{AU+4}")
        a("s_sub_u32 s45, s45, 1")
        a("s_cmp_lg_u32 s45, 0")
        a(f"s_cbranch_scc1 L_f1_loop{v}")
        if v < 3: a("s_branch L_f1_done")
    a("L_f1_done:")
    stamp(a, 5)
    a("s_mul_i32 s43, s42, 33")
    a("s_add_u32 s44, s26, s43")
    a(f"s_mul_i32 s45, s50, {22*33}")
    a("s_add_u32 s44, s44, s45")
    a("s_lshl_b32 s44, s44, 10")
    a("s_waitcnt lgkmcnt(0)")
    a("s_nop 5")
    for jb in range(2):
        b = ACC3[jb]
        if jb == 1:
            a(f"s_cmp_ge_u32 s{sWAVE}, 4")
            a("s_cbranch_scc1 L_f1_one")
        for r in range(8): a(f"v_cvt_pk_bf16_f32 v{b+r}, v{b+2*r}, v{b+2*r+1}")
        for hf in range(2):
            a(f"buffer_store_dwordx4 {vr(b+4*hf,4)}, v15, s[36:39], s44 offen sc1")
            a(f"s_add_u32 s44, s44, {11*33*1024}")
    a("L_f1_one:")
    a("s_cmp_lg_u32 s51, 0")
    a("s_cbranch_scc1 L_prep_done")
    b = ACC3[2]
    for r in range(4): a(f"v_cvt_pk_bf16_f32 v{b+r}, v{b+2*r}, v{b+2*r+1}")
    a("s_add_u32 s43, s43, 32")
    a("s_lshl_b32 s43, s43, 10")
    a(f"buffer_store_dwordx4 {vr(b,4)}, v15, s[36:39], s43 offen sc1")
    a("L_prep_done:")
    a(f"s_cmp_lt_u32 s{sWAVE}, 4")
    a("s_cbranch_scc1 L_A_done")
    get_nonce(a, 2)

def a_done(a):
    a("L_A_done:")
    stamp(a, 6)
    a("s_waitcnt vmcnt(0)")
    stamp(a, 3)
    a("s_barrier")
    stamp(a, 4)
    a("s_and_b32 s26, s2, 31")
    a("s_lshr_b32 s27, s2, 5")
    a(f"s_cmp_lg_u32 s{sWAVE}, 4")
    a("s_cbranch_scc1 L_A_wait")
    a("s_lshl_b32 s40, s2, 7")
    set_flag(a, 40, 8)
    a("s_lshr_b32 s41, s26, 3")
    a("v_and_b32 v2, 15, v1")
    a("v_and_b32 v3, 1, v1")
    a("s_lshl_b32 s42, s27, 1")
    a("v_add_u32 v3, s42, v3")
    a("v_cmp_gt_u32 vcc, 32, v1")
    a("v_lshrrev_b32 v4, 4, v1")
    a("v_lshl_add_u32 v4, v4, 2, 4")
    a("v_cndmask_b32 v2, v3, v2, vcc")
    a("v_cndmask_b32 v4, 0, v4, vcc")
    a("v_add_u32 v4, s41, v4")
    a("v_cmp_le_u32 vcc, 6, v4")
    a("v_and_b32 v5, 3, v2")
    a("v_lshrrev_b32 v2, 2, v2")
    a("v_cndmask_b32 v6, 0, 1, vcc")
    a("v_mul_u32_u24 v7, 6, v6")
    a("v_sub_u32 v4, v4, v7")
    a("v_lshl_add_u32 v4, v4, 2, v5")
    a("v_lshl_add_u32 v2, v6, 2, v2")
    a("v_lshl_add_u32 v4, v4, 3, v2")
    a("v_lshlrev_b32 v4, 7, v4")
    poll(a, 4, 6, sleep=OPT.get('sl', 0))
    a("L_A_wait:")
    a("s_barrier")
    stamp(a, 7)
    a(f"s_cmp_ge_u32 s{sWAVE}, 4")
    a("s_cbranch_scc1 L_aux")

def attention(a):
    AKA, AKB, AV = 4, 5, 168
    AREGS = [AKA, AKB, AV, AV+1, AV+2, AV+3]
    QA = [8, 14]
    NEG = [32, 48]; S = [64, 80]; O = [96, 112]; P = 128
    KB = [136, 142]; VB = [148, 156]
    PR = 164
    a("L_attn:")
    a(f"s_setprio {OPT.get('pattn', 2)}")
    a(f"s_mul_i32 s40, s26, {Q_HEAD}")
    a(f"s_add_u32 s40, s40, {Q_OFF}")
    make_srd(a, 28, pWS, "s40", Q_HEAD)
    a(f"s_mul_i32 s40, s26, {KV_HEAD}")
    make_srd(a, 32, pWS, "s40", KV_HEAD)
    a("v_and_b32 v2, 31, v1")
    a("v_lshrrev_b32 v3, 5, v1")
    a(f"v_lshlrev_b32 v{AKA}, 4, v1")
    a(f"v_lshlrev_b32 v{AKB}, 3, v2")
    a(f"v_add_u32 v{AKB}, 1024, v{AKB}")
    a(f"v_mov_b32 v20, {HUGE}")
    a("v_cmp_gt_u32 vcc, 32, v1")
    a("s_lshl_b32 s41, s27, 3")
    a(f"s_lshl_b32 s42, s{sWAVE}, 1")
    a("s_add_u32 s41, s41, s42")
    a(f"v_cndmask_b32 v20, v20, v{AKB}, vcc")
    a(f"s_mul_i32 s42, s41, {TQ}")
    for q in range(2):
        a(f"buffer_load_dwordx4 {vr(QA[q],4)}, v{AKA}, s[28:31], s42 offen offset:{q*TQ} sc1")
        a(f"buffer_load_dwordx2 {vr(QA[q]+4,2)}, v20, s[28:31], s42 offen offset:{q*TQ} sc1")
    a(f"buffer_load_dwordx4 {vr(KB[0],4)}, v{AKA}, s[32:35], 0 offen sc1")
    a(f"buffer_load_dwordx2 {vr(KB[0]+4,2)}, v{AKB}, s[32:35], 0 offen sc1")
    a("v_and_b32 v21, 28, v2")
    a("v_add_u32 v21, v21, v2")
    a("v_lshl_add_u32 v21, v3, 2, v21")
    a("v_lshlrev_b32 v21, 4, v21")
    a("v_add_u32 v29, 1280, v21")
    a("s_mov_b32 s48, 0x000fffff")
    a("s_mov_b32 s49, 0x000fffff")
    for r in range(16): a(f"v_mov_b32 v{VB[0]+r}, 0x3f803f80")
    a(f"s_mov_b32 s43, {TKV}")
    a(f"buffer_load_dwordx4 {vr(KB[1],4)}, v{AKA}, s[32:35], s43 offen sc1")
    a(f"buffer_load_dwordx2 {vr(KB[1]+4,2)}, v{AKB}, s[32:35], s43 offen sc1")
    a("s_mov_b64 exec, s[48:49]")
    a(f"buffer_load_dwordx4 {vr(VB[0],4)}, v29, s[32:35], 0 offen sc1")
    a(f"buffer_load_dwordx4 {vr(VB[0]+4,4)}, v29, s[32:35], 0 offen offset:640 sc1")
    a(f"buffer_load_dwordx4 {vr(VB[1],4)}, v29, s[32:35], s43 offen sc1")
    a(f"buffer_load_dwordx4 {vr(VB[1]+4,4)}, v29, s[32:35], s43 offen offset:640 sc1")
    a("s_mov_b64 exec, -1")
    a("v_mov_b32 v22, 5120")
    a("v_cmp_gt_u32 vcc, 20, v2")
    for i in range(4): a(f"v_add_u32 v{AV+i}, {(i>>1)*TKV + (i&1)*640}, v29")
    for i in range(4): a(f"v_cndmask_b32 v{AV+i}, v22, v{AV+i}, vcc")
    make_srd(a, 36, pWS, O_OFF, O_SIZE)
    a(f"v_mov_b32 v23, {LDS_PROG}")
    for q in range(2):
        for r in range(16): a(f"v_mov_b32 v{O[q]+r}, 0")
    mm16 = "v_mfma_f32_32x32x16_bf16"; mm8 = "v_mfma_f32_32x32x8_bf16"
    def M1(s, t, q, c): return f"{mm16} {vr(s,16)}, {vr(KB[t&1],4)}, {vr(QA[q],4)}, {c}"
    def M2(s, t, q): return f"{mm8} {vr(s,16)}, {vr(KB[t&1]+4,2)}, {vr(QA[q]+4,2)}, {vr(s,16)}"
    def M3(t, q): return f"{mm16} {vr(O[q],16)}, {vr(VB[t&1],4)}, {vr(P,4)}, {vr(O[q],16)}"
    def M4(t, q): return f"{mm16} {vr(O[q],16)}, {vr(VB[t&1]+4,4)}, {vr(P+4,4)}, {vr(O[q],16)}"
    def rowmax(src, dst, first):
        if first:
            a(f"v_max3_f32 v{dst}, v{src}, v{src+1}, v{src+2}")
            a(f"v_max_f32 v{dst}, v{dst}, v{src+15}")
            rng = range(3, 15, 2)
        else: rng = range(0, 16, 2)
        for r in rng: a(f"v_max3_f32 v{dst}, v{dst}, v{src+r}, v{src+r+1}")
    def finish_neg(add):
        a("v_mov_b32 v26, v24")
        a("v_mov_b32 v27, v25")
        a("s_nop 1")
        a("v_permlane32_swap_b32 v24, v26")
        a("v_permlane32_swap_b32 v25, v27")
        a("s_nop 1")
        a("v_max_f32 v24, v24, v26")
        a("v_max_f32 v25, v25, v27")
        for q in range(2):
            a(f"v_sub_f32 v{NEG[q]}, {add}, v{24+q}")
            for r in range(1, 16): a(f"v_mov_b32 v{NEG[q]+r}, v{NEG[q]}")
    a("s_waitcnt vmcnt(6)")
    stamp(a, 8)
    for q in range(2): a(M1(S[q], 0, q, "0"))
    for q in range(2): a(M2(S[q], 0, q))
    a("s_nop 11")
    rowmax(S[0], 24, True)
    a("s_nop 1")
    rowmax(S[1], 25, True)
    finish_neg("0xc2800000")
    a(M1(S[0], 0, 0, vr(NEG[0],16)))
    a(M2(S[0], 0, 0))
    a(f"ds_read_b128 {vr(PR,4)}, v23")
    a("s_waitcnt vmcnt(0)")
    a("s_nop 9")
    def check(need):
        l = a.label("L_chk"); ok = a.label("L_chkok")
        a(f"{l}:")
        a("s_waitcnt lgkmcnt(0)")
        a(f"v_min3_u32 v{PR}, v{PR}, v{PR+1}, v{PR+2}")
        a(f"v_min_u32 v{PR}, v{PR}, v{PR+3}")
        a("s_nop 0")
        a(f"v_readfirstlane_b32 s44, v{PR}")
        a("s_nop 0")
        a(f"s_cmp_ge_u32 s44, {need}")
        a(f"s_cbranch_scc1 {ok}")
        a(f"ds_read_b128 {vr(PR,4)}, v23")
        a(f"s_branch {l}")
        a(".p2align 3")
        a(f"{ok}:")
    def unit(t, q, s4=(), s1=(), s2=(), s3=(), first=False, nonext=False):
        s = S[q]; sn = S[q ^ 1]
        t1, q1 = (t, 1) if q == 0 else (t + 1, 0)
        tp, qp = (t - 1, 1) if q == 0 else (t, 0)
        E = lambda r: a(f"v_exp_f32 v{s+r}, v{s+r}")
        C = lambda j: a(f"v_cvt_pk_bf16_f32 v{P+j}, v{s+2*j}, v{s+2*j+1}")
        al = OPT.get('al', 1)
        EW = lambda r: a(f"v_exp_f32_e64 v{s+r}, v{s+r}") if al else E(r)
        odd = lambda xs: sum(1 for x in xs if x.startswith("s_")) & 1
        E(0); E(1)
        if not first: a(M4(tp, qp))
        for x in s4: a(x)
        (E if odd(s4) else EW)(2); E(3); E(4)
        if not nonext: a(M1(sn, t1, q1, vr(NEG[q1],16)))
        for x in s1: a(x)
        EW(5); E(6); E(7)
        for j in range(4): C(j)
        if not nonext: a(M2(sn, t1, q1))
        for x in s2: a(x)
        EW(8)
        for r in range(9, 13): E(r)
        a(M3(t, q))
        for x in s3: a(x)
        EW(13); E(14); E(15)
        for j in range(4, 8): C(j)
    def period(t, o, extra3=()):
        if o is None:
            unit(t, 1, s4=["s_waitcnt lgkmcnt(0)"]); unit(t + 1, 0); return
        kb = KB[t & 1]; vb = VB[t & 1]
        ok = lds_tile(o + 2); ov = (o >> 1) * LPAIR; av = AV + 2*(o & 1)
        unit(t, 1, s4=["s_waitcnt lgkmcnt(0)"],
             s1=[f"ds_read_b128 {vr(kb,4)}, v{AKA} offset:{ok}"],
             s3=[f"ds_read_b64 {vr(kb+4,2)}, v{AKB} offset:{ok}"])
        unit(t + 1, 0, s4=[f"ds_read_b128 {vr(vb,4)}, v{av} offset:{ov}"],
             s1=[f"ds_read_b128 {vr(vb+4,4)}, v{av+1} offset:{ov}"], s3=extra3)
    rdp = [f"ds_read_b128 {vr(PR,4)}, v23"]
    a(".p2align 3")
    unit(0, 0, first=True)
    stamp(a, 9)
    check(NEED[0])
    for t in range(6):
        if t == 3: check(NEED[1])
        period(t, t, rdp if t in (2, 5) else ())
    for r in AREGS: a(f"v_add_u32 v{r}, {3*LPAIR}, v{r}")
    a(f"s_lshl_b32 s45, s{sWAVE}, 2")
    a("v_add_u32 v24, s45, v23")
    a("ds_write_b32 v24, v23 offset:16")
    a(f"s_mov_b32 s45, {NEED[2]}")
    a("s_mov_b32 s46, 7")
    stamp(a, 10)
    a(".p2align 3")
    a("L_attn_loop:")
    a("s_cmp_gt_u32 s45, 39")
    a("s_cbranch_scc1 L_attn_nochk")
    check("s45")
    a(f"s_cmp_eq_u32 s45, {NEED[2]}")
    a(f"s_cselect_b32 s44, {NEED[3]}, 39")
    a("s_cmp_eq_u32 s45, 39")
    a("s_cselect_b32 s45, 40, s44")
    a(".p2align 3")
    a("L_attn_nochk:")
    for k in range(8):
        ex = ()
        if k == 7: ex = rdp
        period(k, k, ex)
    for r in AREGS: a(f"v_add_u32 v{r}, {4*LPAIR}, v{r}")
    a("s_sub_u32 s46, s46, 1")
    a("s_cmp_lg_u32 s46, 0")
    a("s_cbranch_scc1 L_attn_loop")
    period(62, None)
    unit(63, 1, nonext=True)
    a("s_nop 1")
    a(M4(63, 1))
    stamp(a, 11)
    a("s_nop 15")
    a("L_attn_post:")
    for q in range(2): a(f"v_mov_b32 v{24+q}, v{O[q]+8}")
    a("v_mov_b32 v26, 0")
    a("s_nop 0")
    for q in range(2): a(f"v_permlane32_swap_b32 v{O[q]+8}, v{24+q}")
    a("s_cmp_eq_u32 s46, 0")
    a("s_cbranch_scc0 L_attn_fin")
    for q in range(2):
        for r in range(12): a(f"v_fma_f32 v26, v{O[q]+r}, 0, v26")
    a("v_max_f32 v27, v24, v25")
    a("v_fma_f32 v26, v24, 0, v26")
    a("v_fma_f32 v26, v25, 0, v26")
    a("v_mov_b32 v28, 0x76800000")
    a("v_cmp_u_f32 s[44:45], v26, v26")
    a("v_cmp_nlt_f32 vcc, v27, v28")
    a("s_nop 1")
    a("s_or_b64 vcc, vcc, s[44:45]")
    if OPT.get('forcefb'): a("s_mov_b64 vcc, -1")
    a("s_cbranch_vccnz L_attn_fallback")
    a("L_attn_fin:")
    a("v_rcp_f32 v24, v24")
    a("v_rcp_f32 v25, v25")
    a("s_lshl_b32 s42, s41, 5")
    a("s_add_u32 s42, s42, s26")
    a("s_mul_i32 s42, s42, 1280")
    a("v_lshlrev_b32 v21, 4, v1")
    for q in range(2):
        for r in range(12): a(f"v_mul_f32 v{O[q]+r}, v{O[q]+r}, v{24+q}")
        for r in range(6): a(f"v_cvt_pk_bf16_f32 v{O[q]+r}, v{O[q]+2*r}, v{O[q]+2*r+1}")
        a(f"buffer_store_dwordx4 {vr(O[q],4)}, v21, s[36:39], s42 offen sc1")
        a(f"buffer_store_dwordx2 {vr(O[q]+4,2)}, v20, s[36:39], s42 offen sc1")
        if q == 0: a(f"s_add_u32 s42, s42, {32*1280}")
    a("s_setprio 0")
    a("s_branch L_B_done")
    a("L_attn_fallback:")
    for r in (AKA, AKB): a(f"v_subrev_u32 v{r}, {31*LPAIR}, v{r}")
    a("v_mov_b32 v24, 0xff800000")
    a("v_mov_b32 v25, 0xff800000")
    a("s_mov_b32 s46, 0")
    a("L_fb_max:")
    a(f"buffer_load_dwordx4 {vr(KB[0],4)}, v{AKA}, s[32:35], s46 offen sc1")
    a(f"buffer_load_dwordx2 {vr(KB[0]+4,2)}, v{AKB}, s[32:35], s46 offen sc1")
    a("s_waitcnt vmcnt(0)")
    for q in range(2): a(M1(S[q], 0, q, "0"))
    for q in range(2): a(M2(S[q], 0, q))
    a("s_nop 15")
    rowmax(S[0], 24, False)
    rowmax(S[1], 25, False)
    a(f"s_add_u32 s46, s46, {TKV}")
    a(f"s_cmp_lt_u32 s46, {KV_HEAD}")
    a("s_cbranch_scc1 L_fb_max")
    finish_neg("0")
    for q in range(2):
        for r in range(16): a(f"v_mov_b32 v{O[q]+r}, 0")
    a("s_mov_b32 s46, 0")
    a("L_fb_main:")
    a(f"buffer_load_dwordx4 {vr(KB[0],4)}, v{AKA}, s[32:35], s46 offen sc1")
    a(f"buffer_load_dwordx2 {vr(KB[0]+4,2)}, v{AKB}, s[32:35], s46 offen sc1")
    a("s_mov_b64 exec, s[48:49]")
    a(f"buffer_load_dwordx4 {vr(VB[0],4)}, v29, s[32:35], s46 offen sc1")
    a(f"buffer_load_dwordx4 {vr(VB[0]+4,4)}, v29, s[32:35], s46 offen offset:640 sc1")
    a("s_mov_b64 exec, -1")
    a("s_waitcnt vmcnt(0)")
    for q in range(2): a(M1(S[q], 0, q, vr(NEG[q],16)))
    for q in range(2): a(M2(S[q], 0, q))
    a("s_nop 15")
    for q in range(2):
        for r in range(16): a(f"v_exp_f32 v{S[q]+r}, v{S[q]+r}")
        a("s_nop 0")
        for j in range(8): a(f"v_cvt_pk_bf16_f32 v{P+j}, v{S[q]+2*j}, v{S[q]+2*j+1}")
        a("s_nop 1")
        a(M3(0, q)); a(M4(0, q))
    a(f"s_add_u32 s46, s46, {TKV}")
    a(f"s_cmp_lt_u32 s46, {KV_HEAD}")
    a("s_cbranch_scc1 L_fb_main")
    a("s_nop 15")
    a("s_branch L_attn_post")

def aux(a):
    a("L_aux:")
    a(f"s_setprio {OPT.get('paux', 0)}")
    a(f"s_sub_u32 s44, s{sWAVE}, 4")
    a(f"s_mul_i32 s40, s26, {KV_HEAD}")
    a(f"s_add_u32 s40, s40, {2*TKV}")
    make_srd(a, 28, pWS, "s40", 62*TKV)
    a("v_lshlrev_b32 v2, 4, v1")
    a("s_lshl_b32 s45, s44, 10")
    a("s_lshl_b32 s46, s44, 2")
    a(f"s_add_u32 s46, s46, {LDS_PROG}")
    a("v_mov_b32 v3, s46")
    def prog(j):
        a(f"v_mov_b32 v4, {j}")
        a("ds_write_b32 v3, v4")
    AH = 10
    cps = NEED[:4]
    a("s_mov_b32 s47, s44")
    for j in range(39):
        if j == 38:
            a(f"s_cmp_ge_u32 s47, {NDMA}")
            a("s_cbranch_scc1 L_kv_issued")
        a("s_mul_i32 s48, s47, 205")
        a("s_lshr_b32 s48, s48, 10")
        a("s_lshl_b32 s48, s48, 6")
        a("s_add_u32 m0, s45, s48")
        a("s_add_u32 s47, s47, 4")
        a("buffer_load_dwordx4 v2, s[28:31], s45 offen sc1 lds")
        if j < 38: a("s_add_u32 s45, s45, 4096")
        if j == 0:
            a(f"v_mul_u32_u24 v6, {LPAIR}, v1")
            a("v_min_u32 v6, %d, v6" % (30*LPAIR))
            for r in range(4): a(f"v_mov_b32 v{8+r}, 0x3f803f80")
            a("ds_write_b128 v6, v[8:11] offset:5120")
        if j + 1 - AH in cps:
            a(f"s_waitcnt vmcnt({AH})")
            prog(j + 1 - AH)
    a("L_kv_issued:")
    a("v_lshlrev_b32 v5, 7, v1")
    a(f"v_add_u32 v5, {192*128}, v5")
    a("s_waitcnt vmcnt(0)")
    prog(39)
    stamp(a, 8)
    poll(a, 5, 6, sleep=4)
    a(f"s_setprio {OPT.get('pf2', 3)}")
    a("s_lshr_b32 s40, s44, 1")
    a("s_lshl_b32 s40, s40, 5")
    a(f"s_add_u32 s40, s40, s{sSLOT}")
    a("s_mul_i32 s41, s40, 373")
    a("s_lshr_b32 s41, s41, 12")
    a("s_mul_i32 s42, s41, 11")
    a("s_sub_u32 s42, s40, s42")
    a("s_lshl_b32 s41, s41, 3")
    a(f"s_add_u32 s41, s41, s{sXCD}")
    a("s_cmp_ge_u32 s41, 33")
    a("s_cbranch_scc1 L_wo")
    a("s_and_b32 s45, s44, 1")
    a("s_mul_i32 s47, s41, 65")
    a("s_mul_i32 s48, s45, 33")
    a("s_add_u32 s47, s47, s48")
    a("s_lshl_b32 s47, s47, 10")
    a(f"s_add_u32 s47, s47, {SEQ_OFF}")
    make_srd(a, 28, pWS, "s47", 33*1024)
    a("s_and_b32 s43, s41, 1")
    a("s_lshl_b32 s47, s45, 1")
    a("s_add_u32 s47, s47, s43")
    a("s_mul_i32 s48, s47, 11")
    a("s_add_u32 s48, s48, s42")
    a(f"s_mul_i32 s48, s48, {33*1024}")
    a(f"s_add_u32 s48, s48, {AB_OFF}")
    make_srd(a, 32, pWS, "s48", 33*1024)
    make_srd(a, 36, pOUT, 0, OUT_SIZE)
    D = OPT.get('f2d', 28); FB = 32; AC = 8
    a("s_cmp_lg_u32 s47, 0")
    a("s_cbranch_scc1 L_f2_nox")
    a(f"s_mov_b32 s49, {32*1024}")
    a("buffer_load_dwordx4 v[24:27], v2, s[28:31], s49 offen sc1")
    a("buffer_load_dwordx4 v[28:31], v2, s[32:35], s49 offen sc1")
    a("L_f2_nox:")
    def issue2(k):
        b = FB + (k % D) * 8
        if k % 4 == 0: a(f"s_mov_b32 s49, {(k//4)*4096}")
        a(f"buffer_load_dwordx4 {vr(b,4)}, v2, s[28:31], s49 offen offset:{(k%4)*1024} sc1")
        a(f"buffer_load_dwordx4 {vr(b+4,4)}, v2, s[32:35], s49 offen offset:{(k%4)*1024} sc1")
    for k in range(D): issue2(k)
    stamp(a, 9)
    for k in range(32):
        a(f"s_waitcnt vmcnt({2*(min(32, k+D)-k-1)})")
        b = FB + (k % D) * 8
        d = vr(AC, 16)
        a(f"v_mfma_f32_32x32x16_bf16 {d}, {vr(b,4)}, {vr(b+4,4)}, {'0' if k == 0 else d}")
        if k + D < 32: issue2(k + D)
    a("s_cmp_lg_u32 s47, 0")
    a("s_cbranch_scc1 L_f2_nox2")
    a(f"v_mfma_f32_32x32x16_bf16 {vr(AC,16)}, v[24:27], v[28:31], {vr(AC,16)}")
    a("L_f2_nox2:")
    a(f"v_mov_b32 v3, {LDS_PROG}")
    a("L_f2_dead:")
    a("ds_read_b128 v[40:43], v3 offset:16")
    a("s_waitcnt lgkmcnt(0)")
    a("v_min3_u32 v40, v40, v41, v42")
    a("v_min_u32 v40, v40, v43")
    a("s_nop 0")
    a("v_readfirstlane_b32 s48, v40")
    a("s_nop 0")
    a("s_cmp_eq_u32 s48, 0")
    a("s_cbranch_scc1 L_f2_dead")
    a("s_lshl_b32 s48, s44, 11")
    a("v_add_u32 v4, s48, v2")
    a("s_lshl_b32 s49, s44, 2")
    a("v_add_u32 v5, s49, v3")
    a("s_xor_b32 s48, s48, 2048")
    a("s_xor_b32 s49, s49, 4")
    a("v_add_u32 v6, s48, v2")
    a("v_add_u32 v7, s49, v3")
    a("s_cmp_lg_u32 s45, 0")
    a("s_cbranch_scc1 L_f2_h1")
    a("ds_write_b128 v4, v[16:19]")
    a("ds_write_b128 v4, v[20:23] offset:1024")
    a("s_branch L_f2_x")
    a("L_f2_h1:")
    a("ds_write_b128 v4, v[8:11]")
    a("ds_write_b128 v4, v[12:15] offset:1024")
    a("L_f2_x:")
    a("ds_write_b32 v5, v3 offset:32")
    a("v_and_b32 v5, 31, v1")
    a("v_lshrrev_b32 v4, 5, v1")
    a("s_lshr_b32 s47, s41, 1")
    a("s_lshl_b32 s47, s47, 6")
    a("s_add_u32 s47, s47, s43")
    a("s_lshl_b32 s48, s45, 5")
    a("s_add_u32 s47, s47, s48")
    a("s_cmp_ge_u32 s42, 6")
    a("s_cselect_b32 s48, 383, 0")
    a("s_lshl_b32 s49, s42, 6")
    a("s_sub_u32 s48, s49, s48")
    a("v_lshl_add_u32 v5, v5, 1, s48")
    a(f"v_mov_b32 v46, {HUGE}")
    a("v_lshlrev_b32 v47, 1, v5")
    a("v_add_u32 v40, 1280, v47")
    a("v_cmp_ge_u32 vcc, 320, v5")
    a("v_sub_u32 v41, 2560, v47")
    a("v_add_u32 v47, -1, v5")
    a("v_cndmask_b32 v40, v46, v40, vcc")
    a("v_cmp_gt_u32 vcc, 319, v47")
    a("v_lshl_add_u32 v47, v4, 3, s47")
    a("v_mul_u32_u24 v47, 2560, v47")
    a("v_cndmask_b32 v41, v46, v41, vcc")
    a(f"v_sub_u32 v44, {(2048-22)*2560}, v47")
    a("v_add_u32 v42, v44, v40")
    a("v_add_u32 v43, v44, v41")
    a("v_add_u32 v40, v47, v40")
    a("v_add_u32 v41, v47, v41")
    a("L_f2_wait:")
    a("ds_read_b32 v45, v7 offset:32")
    a("s_waitcnt lgkmcnt(0)")
    a("v_readfirstlane_b32 s48, v45")
    a("s_nop 0")
    a("s_cmp_lg_u32 s48, 0")
    a("s_cbranch_scc1 L_f2_got")
    a("s_sleep 2")
    a("s_branch L_f2_wait")
    a("L_f2_got:")
    a("s_cmp_lg_u32 s45, 0")
    a("s_cbranch_scc1 L_f2_h1b")
    a("ds_read_b128 v[16:19], v6")
    a("ds_read_b128 v[20:23], v6 offset:1024")
    a("s_branch L_f2_y")
    a("L_f2_h1b:")
    a("ds_read_b128 v[8:11], v6")
    a("ds_read_b128 v[12:15], v6 offset:1024")
    a("L_f2_y:")
    a("s_waitcnt lgkmcnt(0)")
    for r in range(0, 8, 2):
        a(f"v_pk_add_f32 {vr(48+r,2)}, {vr(8+r,2)}, {vr(16+r,2)}")
        a(f"v_pk_add_f32 {vr(56+r,2)}, {vr(8+r,2)}, {vr(16+r,2)} neg_lo:[0,1] neg_hi:[0,1]")
    for r in range(4):
        a(f"v_cvt_pk_bf16_f32 v{48+r}, v{48+2*r}, v{48+2*r+1}")
        a(f"v_cvt_pk_bf16_f32 v{56+r}, v{56+2*r}, v{56+2*r+1}")
    a("s_cmp_eq_u32 s41, 32")
    a("s_cbranch_scc1 L_f2_nyq")
    for r in range(8):
        ro = (r & 3) + 8 * (r >> 2)
        st = "buffer_store_short_d16_hi" if r & 1 else "buffer_store_short"
        a(f"s_mov_b32 s47, {ro*5120}")
        a(f"s_mov_b32 s48, {(11-ro)*5120}")
        a(f"{st} v{56+r//2}, v40, s[36:39], s47 offen")
        a(f"{st} v{48+r//2}, v41, s[36:39], s47 offen")
        if r == 0:
            a(f"v_add_u32 v44, {11*5120}, v42")
            a(f"v_add_u32 v45, {11*5120}, v43")
            a(f"{st} v48, v44, s[36:39], 0 offen")
            a(f"{st} v56, v45, s[36:39], 0 offen")
        else:
            a(f"{st} v{48+r//2}, v42, s[36:39], s48 offen")
            a(f"{st} v{56+r//2}, v43, s[36:39], s48 offen")
    a("s_branch L_f2_fin")
    a("L_f2_nyq:")
    a("s_cmp_lg_u32 s45, 0")
    a("s_cbranch_scc1 L_wo")
    a("v_cmp_eq_u32 vcc, 0, v4")
    a("s_nop 1")
    a("v_cndmask_b32 v40, v46, v40, vcc")
    a("v_cndmask_b32 v41, v46, v41, vcc")
    a("buffer_store_short v56, v40, s[36:39], 0 offen")
    a("buffer_store_short v48, v41, s[36:39], 0 offen")
    a("L_f2_fin:")
    if OPT.get('wb'):
        a("s_waitcnt vmcnt(0)")
        a("buffer_wbl2 sc1")
    a("L_wo:")
    stamp(a, 10)
    a("s_lshr_b32 s40, s26, 3")
    a("s_lshl_b32 s40, s40, 2")
    a("s_add_u32 s40, s40, s44")
    a(f"s_mul_i32 s40, s40, {50*1024}")
    a(f"s_add_u32 s40, s40, {WO_OFF}")
    make_srd(a, 28, pWS, "s40", 50*1024)
    a("s_waitcnt vmcnt(0)")
    for k in range(50):
        if k % 4 == 0: a(f"s_mov_b32 s49, {(k//4)*4096}")
        a(f"buffer_load_dwordx4 {vr(56+4*k,4)}, v2, s[28:31], s49 offen offset:{(k%4)*1024} sc1")

def tail(a):
    a("L_B_done:")
    a("s_waitcnt vmcnt(0)")
    stamp(a, 12)
    a("s_barrier")
    stamp(a, 1)
    a("s_and_b32 s40, s26, 7")
    a("s_lshl_b32 s41, s27, 3")
    a("s_add_u32 s41, s41, s40")
    a(f"s_mul_i32 s40, s41, {32*1280}")
    a(f"s_add_u32 s40, s40, {O_OFF}")
    make_srd(a, 28, pWS, "s40", 32*1280)
    a("v_lshlrev_b32 v2, 4, v1")
    a(f"s_cmp_lg_u32 s{sWAVE}, 4")
    a("s_cbranch_scc1 L_B_wait")
    a(f"s_add_u32 s40, s2, {FB}")
    a("s_lshl_b32 s40, s40, 7")
    set_flag(a, 40, 8)
    a("v_and_b32 v4, 31, v1")
    a("s_lshl_b32 s40, s27, 5")
    a(f"s_add_u32 s40, s40, {FB}")
    a("v_add_u32 v4, s40, v4")
    a("v_lshlrev_b32 v4, 7, v4")
    poll(a, 4, 6, sleep=OPT.get('sl', 0))
    a("L_B_wait:")
    a("s_barrier")
    stamp(a, 13)
    a(f"s_lshl_b32 s40, s{sWAVE}, 10")
    for j in range(5):
        a("s_mov_b32 m0, s40")
        a("s_nop 0")
        a("buffer_load_dwordx4 v2, s[28:31], s40 offen sc1 lds")
        if j < 4: a("s_add_u32 s40, s40, 8192")
    a("v_and_b32 v3, 31, v1")
    a("v_lshrrev_b32 v4, 5, v1")
    a("v_mul_u32_u24 v5, 2560, v4")
    a("v_lshl_add_u32 v5, v3, 3, v5")
    a("v_add_u32 v5, 1024, v5")
    make_srd(a, 32, pOUT, 0, OUT_SIZE)
    a("s_lshl_b32 s41, s41, 5")
    a("v_add_u32 v6, s41, v3")
    a("v_mul_u32_u24 v6, 2560, v6")
    a("s_lshr_b32 s42, s26, 3")
    a("s_mul_i32 s42, s42, 320")
    a("s_waitcnt vmcnt(0)")
    a("s_barrier")
    a(f"s_cmp_lt_u32 s{sWAVE}, 4")
    a("s_cbranch_scc1 L_end")
    stamp(a, 14)
    if lib.STAMP: a("s_waitcnt lgkmcnt(0)")
    A5, AM, OB = 8, 24, 40
    a("s_mul_i32 s43, s44, 12800")
    a("v_add_u32 v7, s43, v2")
    def rd(buf, kap, base=None):
        b = OB + 4*buf
        if base is not None: return f"ds_read_b128 {vr(b,4)}, v{base} offset:{kap*1280}"
        if kap < 32: return f"ds_read_b128 {vr(b,4)}, v2 offset:{kap*1280}"
        o = (kap - 32) * 5120 // 8
        return None
    def rd_main(buf, kap):
        b = OB + 4*buf
        if kap < 32: return [f"ds_read_b128 {vr(b,4)}, v2 offset:{kap*1280}"]
        g = kap - 32
        return [f"ds_read_b64 {vr(b,2)}, v5 offset:{g*5120}", f"ds_read_b64 {vr(b+2,2)}, v5 offset:{g*5120+1280}"]
    def stream(steps):
        n = len(steps); cnt = [0]*n
        PF = 3
        for k in range(PF):
            r = steps[k][0](k % 4); cnt[k] = len(r)
            for x in r: a(x)
        for k in range(n):
            out = sum(cnt[k+1:min(n, k+PF)])
            a(f"s_waitcnt lgkmcnt({out})")
            d = vr(steps[k][1], 16)
            a(f"v_mfma_f32_32x32x16_bf16 {d}, {vr(steps[k][2],4)}, {vr(OB+4*(k%4),4)}, {'0' if steps[k][3] else d}")
            if k + PF < n:
                r = steps[k+PF][0]((k+PF) % 4); cnt[k+PF] = len(r)
                for x in r: a(x)
            if k == 13:
                for j in range(4): a(f"ds_write_b128 v3, {vr(A5+4*j,4)} offset:{j*1024}")
                cnt[k+PF] += 4
    main = [((lambda kap: lambda buf: rd_main(buf, kap))(kap), AM, 56 + 4*(10+kap), kap == 0) for kap in range(40)]
    a("s_lshl_b32 s43, s44, 12")
    a("s_add_u32 s43, s43, 40960")
    a("v_add_u32 v3, s43, v2")
    a("s_cmp_eq_u32 s44, 3")
    a("s_cbranch_scc1 L_tail3")
    q5 = [((lambda i: lambda buf: [f"ds_read_b128 {vr(OB+4*buf,4)}, v7 offset:{i*1280}"])(i), A5, 56 + 4*i, i == 0) for i in range(10)]
    stream(q5 + main)
    a("s_branch L_tail_join")
    a("L_tail3:")
    q5 = [((lambda i: lambda buf: rd_main(buf, 30 + i))(i), A5, 56 + 4*i, i == 0) for i in range(10)]
    stream(q5 + main)
    a("L_tail_join:")
    stamp(a, 11)
    a("s_waitcnt lgkmcnt(0)")
    a("s_barrier")
    a("s_lshl_b32 s43, s44, 10")
    a("s_add_u32 s43, s43, 40960")
    a("v_add_u32 v3, s43, v2")
    for i in range(4): a(f"ds_read_b128 {vr(OB+4*i,4)}, v3 offset:{i*4096}")
    a("s_lshl_b32 s43, s44, 6")
    a("s_add_u32 s43, s43, s42")
    a("v_lshl_add_u32 v7, v4, 4, v6")
    a("s_nop 2")
    for r in range(8): a(f"v_cvt_pk_bf16_f32 v{AM+r}, v{AM+2*r}, v{AM+2*r+1}")
    a("s_nop 1")
    for h2 in range(2):
        a(f"v_permlane32_swap_b32 v{AM+4*h2}, v{AM+4*h2+2}")
        a(f"v_permlane32_swap_b32 v{AM+4*h2+1}, v{AM+4*h2+3}")
    for h2 in range(2):
        a(f"buffer_store_dwordx4 {vr(AM+4*h2,4)}, v7, s[32:35], s43 offen offset:{32*h2}")
    a("s_waitcnt lgkmcnt(0)")
    for i in range(1, 4):
        a(f"v_pk_add_f32 {vr(OB,2)}, {vr(OB,2)}, {vr(OB+4*i,2)}")
        a(f"v_pk_add_f32 {vr(OB+2,2)}, {vr(OB+2,2)}, {vr(OB+4*i+2,2)}")
    a("s_lshl_b32 s43, s44, 4")
    a("s_add_u32 s43, s43, s42")
    a("v_lshl_add_u32 v7, v4, 3, v6")
    a(f"v_cvt_pk_bf16_f32 v{OB}, v{OB}, v{OB+1}")
    a(f"v_cvt_pk_bf16_f32 v{OB+1}, v{OB+2}, v{OB+3}")
    a(f"buffer_store_dwordx2 {vr(OB,2)}, v7, s[32:35], s43 offen offset:256")
    a("L_end:")
    if lib.STAMP:
        a("s_waitcnt vmcnt(0)")
        stamp(a, 15); stamp_real(a, 17)
        stamp_flush(a, 18, pWS, sWAVE, 0)
    a("L_exit:")
    a("s_endpgm")

KNAME = "concat_heads__mha_block__spectral_fnet__prompt_kernel"
def kernel(a):
    kernel_header(a, KNAME)
    a("s_cmp_ge_u32 s2, 256")
    a("s_cbranch_scc1 L_exit")
    if lib.STAMP:
        for i in range(18): a(f"s_mov_b32 s{60+2*i}, 0")
    stamp(a, 0); stamp_real(a, 16)
    a("s_load_dwordx8 s[4:11], s[0:1], 0")
    a("s_load_dwordx4 s[12:15], s[0:1], 64")
    a("s_load_dwordx2 s[16:17], s[0:1], 80")
    a("v_lshrrev_b32 v1, 6, v0")
    a(f"s_and_b32 s{sXCD}, s2, 7")
    a(f"v_readfirstlane_b32 s{sWAVE}, v1")
    a(f"s_lshr_b32 s{sSLOT}, s2, 3")
    a("v_and_b32 v1, 63, v0")
    a(f"s_and_b32 s26, s{sXCD}, 3")
    a("s_lshl_b32 s26, s26, 2")
    a(f"s_and_b32 s27, s{sSLOT}, 3")
    a("s_add_u32 s26, s26, s27")
    a(f"s_lshr_b32 s27, s{sXCD}, 2")
    a("s_mul_i32 s27, s27, 6")
    a(f"s_lshr_b32 s40, s{sSLOT}, 2")
    a("s_add_u32 s27, s27, s40")
    a(f"s_lshl_b32 s40, s2, 3")
    a(f"s_add_u32 s40, s40, s{sWAVE}")
    a("s_waitcnt lgkmcnt(0)")
    make_srd(a, sFL, pWS, FL_OFF, FL_SIZE)
    a("s_cmp_lg_u32 s40, 7")
    a("s_cbranch_scc1 L_no_nonce")
    a("s_memrealtime s[40:41]")
    make_srd(a, 28, pDBG, 0, 256)
    a("s_waitcnt lgkmcnt(0)")
    a("s_or_b32 s40, s40, 1")
    a("v_mov_b32 v2, s40")
    a("v_mov_b32 v3, s41")
    a("v_mov_b32 v4, 0")
    a("buffer_store_dwordx2 v[2:3], v4, s[28:31], 0 offen sc1")
    a("L_no_nonce:")
    a(f"s_cmp_lg_u32 s{sWAVE}, 0")
    a("s_cbranch_scc1 L_no_init")
    a(f"v_mov_b32 v2, {LDS_PROG}")
    a("v_mov_b32 v4, 0")
    a("v_mov_b32 v5, 0")
    for i in range(6): a(f"ds_write_b64 v2, v[4:5] offset:{8*i}")
    a("s_waitcnt lgkmcnt(0)")
    a("L_no_init:")
    if OPT.get('touch'):
        a(f"s_cmp_lg_u32 s{sWAVE}, 1")
        a("s_cbranch_scc1 L_no_code")
        a("s_getpc_b64 s[40:41]")
        a("L_pc:")
        a(f"s_sub_u32 s40, s40, L_pc-{KNAME}")
        a("s_subb_u32 s41, s41, 0")
        a(f"s_and_b32 s42, s{sSLOT}, 7")
        a("s_lshl_b32 s42, s42, 12")
        a("v_lshlrev_b32 v2, 4, v1")
        a("v_add_u32 v2, s42, v2")
        a(f"v_min_u32 v2, L_exit-{KNAME}-3072-16, v2")
        for i in range(4): a(f"global_load_dwordx4 v[164:167], v2, s[40:41] offset:{i*1024}")
        a("L_no_code:")
        a(f"s_cmp_lg_u32 s{sWAVE}, 2")
        a("s_cbranch_scc1 L_no_tlb")
        make_srd(a, 28, pWS, 0, FL_OFF + FL_SIZE)
        a("v_mul_u32_u24 v2, 0x44000, v1")
        a("buffer_load_dword v164, v2, s[28:31], 0 offen sc1")
        make_srd(a, 28, pOUT, 0, OUT_SIZE)
        a("v_mul_u32_u24 v2, 0x14000, v1")
        a("buffer_load_dword v165, v2, s[28:31], 0 offen sc1")
        a("L_no_tlb:")
    a(f"s_cmp_ge_u32 s{sSLOT}, 24")
    a("s_cbranch_scc1 L_prep")
    a(f"s_cmp_lt_u32 s{sWAVE}, 4")
    a("s_cbranch_scc1 L_compute")
    gemm_loader(a)
    gemm_compute(a)
    prep(a)
    a_done(a)
    attention(a)
    aux(a)
    tail(a)
    return kernel_desc(KNAME, 256, 100)

HEADER = open('concat_heads__mha_block__spectral_fnet__prompt.s.ref').read().split("; Override")[0]
def main(out):
    a = Asm()
    a('.amdgcn_target "amdgcn-amd-amdhsa--gfx950"')
    a(".text")
    d = kernel(a)
    txt = HEADER + "; @launch grid=(256,1,1) block=(512,1,1) lds=163840\n" + a.text() + '.section .rodata,"a"\n.p2align 6\n' + d
    open(out, "w").write(txt)

if __name__ == "__main__":
    for x in sys.argv[2:]:
        if x == "stamp": lib.STAMP = True
        elif x == "gst": lib.STAMP = True; lib.STAMPSET = 1
        else:
            k, _, v = x.partition("=")
            OPT[k] = int(v) if v else 1
    main(sys.argv[1] if len(sys.argv) > 1 else "v7.s")
```

```python
import sys, struct
from lib import *
import lib

TKV = 2560; KV_HEAD = 64*TKV; KV_OFF = 0; KV_SIZE = 32*KV_HEAD
TQ = 1280; Q_HEAD = 64*TQ; Q_OFF = KV_SIZE; Q_SIZE = 32*Q_HEAD
O_OFF = Q_OFF + Q_SIZE; O_SIZE = 64*32*1280
SEQ_OFF = O_OFF + O_SIZE; SEQ_SIZE = 33*65*1024
AB_OFF = SEQ_OFF + SEQ_SIZE; AB_SIZE = 4*11*33*1024
WO_OFF = AB_OFF + AB_SIZE; WO_SIZE = 16*50*1024
FL_OFF = 16*1024*1024; FL_SIZE = 1280*128
FA, FB = 0, 256
X_SIZE = 2048*1280; OUT_SIZE = 2048*2560
HUGE = 0x40000000
QSCALE = (20 ** -0.5) * 1.4426950408889634
NDMA = 155; LPAIR = 5184
LDS_PROG = 31*LPAIR
def lds_tile(t): return ((t-2)>>1)*LPAIR + ((t-2)&1)*TKV
def need(tile): return ((tile-1)*TKV + 4095)//4096
NEED = [need(4), need(7), need(15), need(23), 39]
POLL_MAX = 200000
def f32bits(x): return struct.unpack('<I', struct.pack('<f', x))[0]
OPT = {}
FLS = ['', ' sc1', ' nt', ' sc0 sc1', ' sc1 nt']
def FLP(): return FLS[OPT.get('flp', 0)]
def FLF(): return FLS[OPT.get('flf', 1)]

sWAVE = 3
pX, pW, pWO, pBX, pOUT, pDBG, pWS = 4, 6, 8, 10, 12, 14, 16
sNON = 18
sFL = 20
sXCD, sSLOT = 24, 25
STG = 36864
NS = 4

def poll(a, vaddr, vtmp, cnt=40, sleep=1):
    l = a.label("L_poll"); d = a.label("L_pollok")
    a(f"s_mov_b32 s{cnt}, {POLL_MAX}")
    a(f"{l}:")
    a(f"buffer_load_dwordx2 {vr(vtmp,2)}, v{vaddr}, {sr(sFL,4)}, 0 offen sc1")
    a("s_waitcnt vmcnt(0)")
    a(f"v_cmp_ne_u64 vcc, {sr(sNON,2)}, {vr(vtmp,2)}")
    a(f"s_sub_u32 s{cnt}, s{cnt}, 1")
    a(f"s_cbranch_vccz {d}")
    a(f"s_cmp_eq_u32 s{cnt}, 0")
    a(f"s_cbranch_scc1 {d}")
    if sleep: a(f"s_sleep {sleep}")
    a(f"s_branch {l}")
    a(f"{d}:")

def get_nonce(a, vt, srd=28, cnt=40):
    make_srd(a, srd, pDBG, 0, 256)
    l = a.label("L_non"); d = a.label("L_nonok")
    a(f"v_mov_b32 v{vt}, 0")
    a(f"s_mov_b32 s{cnt}, {POLL_MAX}")
    a(f"{l}:")
    a(f"buffer_load_dwordx2 {vr(vt+2,2)}, v{vt}, {sr(srd,4)}, 0 offen sc1")
    a("s_waitcnt vmcnt(0)")
    a(f"v_readfirstlane_b32 s{sNON}, v{vt+2}")
    a(f"v_readfirstlane_b32 s{sNON+1}, v{vt+3}")
    a(f"s_sub_u32 s{cnt}, s{cnt}, 1")
    a(f"s_cmp_lg_u32 s{sNON}, 0")
    a(f"s_cbranch_scc1 {d}")
    a(f"s_cmp_eq_u32 s{cnt}, 0")
    a(f"s_cbranch_scc1 {d}")
    a("s_sleep 2")
    a(f"s_branch {l}")
    a(f"{d}:")

def set_flag(a, sidx, vt):
    for i in range(4): a(f"v_mov_b32 v{vt+i}, s{sNON+(i&1)}")
    a(f"v_lshlrev_b32 v{vt+4}, 4, v1")
    a("s_mov_b64 exec, 0xff")
    a(f"buffer_store_dwordx4 {vr(vt,4)}, v{vt+4}, {sr(sFL,4)}, s{sidx} offen sc1")
    a("s_mov_b64 exec, -1")

def gemm_loader(a):
    sA, sB = 28, 32
    a("L_loader:")
    a("s_mul_i32 s40, s26, 163840")
    make_srd(a, sA, pX, "s40", 163840)
    a(f"s_sub_u32 s44, s{sWAVE}, 4")
    a("v_lshrrev_b32 v2, 3, v1")
    a("s_lshl_b32 s40, s44, 3")
    a("v_add_u32 v2, s40, v2")
    a("v_mul_u32_u24 v2, 1280, v2")
    a("v_lshrrev_b32 v3, 4, v1")
    a("s_and_b32 s40, s44, 1")
    a("s_lshl_b32 s40, s40, 2")
    a("v_or_b32 v4, s40, v3")
    a("v_and_b32 v5, 7, v1")
    a("v_xor_b32 v4, v4, v5")
    a("v_lshl_add_u32 v10, v4, 4, v2")
    a("s_lshl_b32 s45, s44, 10")
    a(f"s_lshr_b32 s40, s{sSLOT}, 2")
    a(f"s_mul_i32 s40, s40, {OPT.get('ra', 1)}")
    a(f"s_and_b32 s41, s{sSLOT}, 3")
    a(f"s_mul_i32 s41, s41, {OPT.get('rb', 1)}")
    a("s_add_u32 s40, s40, s41")
    a(f"s_mul_i32 s41, s{sXCD}, {OPT.get('rc', 3)}")
    a("s_add_u32 s40, s40, s41")
    a("s_mul_i32 s41, s40, 6554")
    a("s_lshr_b32 s41, s41, 16")
    a("s_mul_i32 s41, s41, 10")
    a("s_sub_u32 s47, s40, s41")
    def issue_x(c):
        sl = c % NS
        a("s_lshl_b32 s48, s47, 7")
        for j in range(4):
            a(f"s_add_u32 m0, s45, {sl*STG + j*4096}")
            if j: a(f"s_add_u32 s48, s48, 40960")
            else: a("s_mul_i32 s49, s47, 245760")
            a(f"buffer_load_dwordx4 v10, {sr(sA,4)}, s48 offen lds")
    def issue_w(c):
        sl = c % NS
        for i in range(5):
            a(f"s_add_u32 m0, s46, {sl*STG + 16384 + i*1024 - i*64}")
            if i == 0:
                a("s_add_u32 s47, s47, 1")
            elif i == 1:
                a("s_cmp_eq_u32 s47, 10")
                a("s_cmov_b32 s47, 0")
            else: a("s_nop 0")
            a(f"buffer_load_dwordx4 v11, {sr(sB,4)}, s49 offen offset:{i*64} lds")
    def issue(c): issue_x(c); issue_w(c)
    stamp(a, 12, 1)
    issue_x(0)
    stamp(a, 13, 1)
    a("s_mul_i32 s40, s27, 320")
    a("s_sub_u32 s41, 2457600, s40")
    make_srd(a, sB, pW, "s40", "s41")
    a("s_lshl_b32 s40, s44, 4")
    a("v_lshrrev_b32 v2, 2, v1")
    a("v_add_u32 v2, s40, v2")
    a("v_mul_u32_u24 v2, 3840, v2")
    a("v_and_b32 v3, 3, v1")
    a("v_lshl_add_u32 v11, v3, 4, v2")
    a("s_mul_i32 s46, s44, 5120")
    issue_w(0)
    stamp(a, 14, 1)
    issued = 1
    pre = OPT.get('pre', 2)
    for c in range(1, pre): issue(c); issued += 1
    for c in range(10):
        a(f"s_waitcnt vmcnt({9*(issued-c-1)})")
        if c in (0, 9): stamp(a, {0: 2, 9: 5}[c])
        stamp(a, c + 1, 1)
        a("s_barrier")
        if c == 0: stamp(a, 11, 1)
        while issued < min(10, c + 1 + (OPT.get('dep', 2) if c < OPT.get('depsw', 10) else 3)): issue(issued); issued += 1
    get_nonce(a, 2)
    a("s_branch L_A_done")

AX, AWA, EA = 8, 156, 16
FR = 24
ACC = 72
def gemm_loop(a, isv):
    def reads(kk):
        sl, ks = divmod(kk, 4); so = sl * STG
        b = FR + (kk & 1) * 24
        r = [f"ds_read_b128 {vr(b,4)}, v{AX+ks} offset:{so}"]
        for T in range(5):
            for t in range(2):
                o = so + ks*5120 + t*256
                if isv: r.append(f"ds_read_b64_tr_b16 {vr(b+4+4*T+2*t,2)}, v{AWA} offset:{o + 1024*T}")
                else: r.append(f"ds_read_b64_tr_b16 {vr(b+4+4*T+2*t,2)}, v{AWA+T} offset:{o}")
        return r
    def mfma(kk, T):
        b = FR + (kk & 1) * 24
        d = vr(ACC + 16*T, 16); w = vr(b + 4 + 4*T, 4); x = vr(b, 4)
        return f"v_mfma_f32_32x32x16_bf16 {d}, {x}, {w}, {d}" if isv else f"v_mfma_f32_32x32x16_bf16 {d}, {w}, {x}, {d}"
    for r in range(80): a(f"v_mov_b32 v{ACC+r}, 0")
    a(f"s_mov_b32 s40, {2*STG}")
    a("s_mov_b32 s41, 5")
    stamp(a, 1)
    a("s_barrier")
    stamp(a, 2)
    for r in reads(0): a(r)
    lp = a.label("L_gemm"); last = a.label("L_gemm_last"); done = a.label("L_gemm_done")
    a(".p2align 3")
    a(f"{lp}:")
    for kk in range(8):
        a("s_waitcnt lgkmcnt(0)")
        a(mfma(kk, 0))
        if kk == 7:
            a("s_sub_u32 s41, s41, 1")
            a("s_cmp_eq_u32 s41, 0")
            a(f"s_cbranch_scc1 {last}")
            for i in range(4): a(f"v_add_u32 v{AX+i}, s40, v{AX+i}")
            for i in range(1 if isv else 5): a(f"v_add_u32 v{AWA+i}, s40, v{AWA+i}")
            a("s_sub_u32 s40, 0, s40")
        if kk in (3, 7): a("s_barrier")
        nx = reads((kk + 1) & 7)
        for r in nx[0:3]: a(r)
        a(mfma(kk, 1))
        for r in nx[3:6]: a(r)
        a(mfma(kk, 2))
        for r in nx[6:9]: a(r)
        a(mfma(kk, 3))
        for r in nx[9:11]: a(r)
        a(mfma(kk, 4))
    a(f"s_branch {lp}")
    a(f"{last}:")
    for T in range(1, 5): a(mfma(7, T))
    stamp(a, 5)

def gemm_compute(a):
    a("L_compute:")
    a("v_and_b32 v2, 31, v1")
    a("v_lshrrev_b32 v3, 5, v1")
    a(f"s_lshl_b32 s40, s{sWAVE}, 5")
    a("v_add_u32 v4, s40, v2")
    a("v_lshlrev_b32 v4, 7, v4")
    a("v_bfe_u32 v5, v1, 1, 3")
    a("v_xor_b32 v5, v5, v3")
    for ks in range(4):
        a(f"v_xor_b32 v6, {2*ks}, v5")
        a(f"v_lshl_add_u32 v{AX+ks}, v6, 4, v4")
    a("v_bfe_u32 v4, v1, 2, 2")
    a("v_lshl_add_u32 v4, v3, 3, v4")
    a("v_lshlrev_b32 v4, 6, v4")
    a("v_add_u32 v4, 16384, v4")
    a("v_and_b32 v5, 3, v1")
    a("v_bfe_u32 v6, v1, 4, 1")
    a("v_lshl_add_u32 v5, v6, 2, v5")
    a(f"v_lshl_add_u32 v{AWA}, v5, 3, v4")
    a("s_lshl_b32 s42, s26, 2")
    a(f"s_add_u32 s42, s42, s{sWAVE}")
    a("s_and_b32 s43, s27, 3")
    a("s_lshl_b32 s43, s43, 3")
    a("s_cmp_ge_u32 s27, 8")
    a("s_cbranch_scc1 L_compute_v")
    for T in range(5):
        if T < 4: a(f"v_add_u32 v6, {10*T+1}, v5")
        else:
            a("v_lshrrev_b32 v6, 1, v5")
            a("v_mul_u32_u24 v6, 10, v6")
            a("v_and_b32 v7, 1, v5")
            a("v_mul_u32_u24 v7, 9, v7")
            a("v_add_u32 v6, v6, v7")
        a("v_and_b32 v7, 7, v6")
        a("v_lshl_add_u32 v7, v7, 3, v4")
        a("v_lshrrev_b32 v6, 3, v6")
        a(f"v_lshl_add_u32 v{AWA+T}, v6, 10, v7")
    a("s_cmp_ge_u32 s27, 4")
    for reg, k, q in [(44, KV_HEAD, Q_HEAD), (45, TKV, TQ), (46, f32bits(1.0), f32bits(QSCALE)), (47, KV_OFF, Q_OFF), (48, KV_SIZE, Q_SIZE)]:
        a(f"s_mov_b32 s{reg}, {q}")
        a(f"s_cmov_b32 s{reg}, {k}")
    make_srd(a, 28, pWS, "s47", "s48")
    a("s_mul_i32 s47, s43, s44")
    a("s_mul_i32 s48, s42, s45")
    a("s_add_u32 s47, s47, s48")
    a(f"v_lshlrev_b32 v{EA}, 4, v1")
    a("v_mul_lo_u32 v4, v3, s44")
    a("v_lshl_add_u32 v4, v2, 3, v4")
    a(f"v_add_u32 v{EA+1}, 1024, v4")
    gemm_loop(a, False)
    a("s_mov_b32 s48, s47")
    a("s_nop 7")
    for T in range(5):
        b = ACC + 16*T
        if T == 4: a("s_nop 3")
        for r in range(16): a(f"v_mul_f32 v{b+r}, s46, v{b+r}")
        for r in range(8): a(f"v_cvt_pk_bf16_f32 v{b+r}, v{b+2*r}, v{b+2*r+1}")
        if T < 4:
            for hq in range(2):
                a(f"buffer_store_dwordx4 {vr(b+4*hq,4)}, v{EA}, s[28:31], s48 offen sc1")
                a("s_add_u32 s48, s48, s44")
        else:
            a("s_lshl_b32 s44, s44, 1")
            for j in range(4):
                a(f"buffer_store_dwordx2 {vr(b+2*j,2)}, v{EA+1}, s[28:31], s47 offen sc1")
                if j < 3: a("s_add_u32 s47, s47, s44")
    a("s_branch L_A_done")
    a("L_compute_v:")
    make_srd(a, 28, pWS, KV_OFF, KV_SIZE)
    a(f"s_mov_b32 s44, {KV_HEAD}")
    a("s_mul_i32 s47, s43, s44")
    a(f"s_mul_i32 s48, s42, {TKV}")
    a("s_add_u32 s47, s47, s48")
    for T in range(5):
        a(f"v_add_u32 v4, {32*T}, v2")
        a("v_mul_u32_u24 v5, 3277, v4")
        a("v_lshrrev_b32 v5, 16, v5")
        a("v_mul_u32_u24 v6, 20, v5")
        a("v_sub_u32 v4, v4, v6")
        a("v_and_b32 v6, 28, v4")
        a("v_add_u32 v4, v4, v6")
        a("v_lshl_add_u32 v4, v3, 2, v4")
        a("v_mul_lo_u32 v5, v5, s44")
        a("v_lshl_add_u32 v4, v4, 4, v5")
        a(f"v_add_u32 v{EA+T}, 1280, v4")
    gemm_loop(a, True)
    a("s_nop 8")
    for T in range(5):
        b = ACC + 16*T
        if T == 4: a("s_nop 3")
        for r in range(8): a(f"v_cvt_pk_bf16_f32 v{b+r}, v{b+2*r}, v{b+2*r+1}")
        for jp in range(2):
            a(f"buffer_store_dwordx4 {vr(b+4*jp,4)}, v{EA+T}, s[28:31], s47 offen offset:{jp*640} sc1")
    a("s_branch L_A_done")

SWD = [42, 43, 44, 56, 57]
def side_work(a):
    a("s_sub_u32 s53, s2, 192")
    a("s_mul_i32 s53, s53, 3")
    a(f"s_add_u32 s53, s53, s{sWAVE}")
    a("s_sub_u32 s53, s53, 5")
    a("v_lshlrev_b32 v22, 4, v1")
    make_srd(a, 32, pWO, 0, 819200)
    make_srd(a, 28, pWS, SEQ_OFF, WO_OFF + WO_SIZE - SEQ_OFF)
    WR = 32
    for n in range(5):
        if n == 4:
            a("s_cmp_ge_u32 s53, 32")
            a("s_cbranch_scc1 L_sw_wo_ld")
        a(f"s_add_u32 s40, s53, {192*n}")
        a("s_mul_i32 s41, s40, 1639")
        a("s_lshr_b32 s41, s41, 16")
        a("s_mul_i32 s58, s41, 40")
        a("s_sub_u32 s58, s40, s58")
        a("s_mul_i32 s59, s58, 20")
        a("s_mul_i32 s55, s58, 80")
        a("s_sub_u32 s55, s55, %d" % (32*80 - 16))
        a("s_cmp_lt_u32 s58, 32")
        a("s_cselect_b32 s45, 4, 40")
        a("s_cselect_b32 s59, s59, s55")
        a(f"s_mov_b32 s46, {20*1280}")
        a(f"s_cmov_b32 s46, {8*1280}")
        a("v_mul_u32_u24 v4, s45, v3")
        a("v_add_u32 v4, s59, v4")
        a("v_mul_u32_u24 v4, 1280, v4")
        a("s_lshl_b32 s59, s41, 6")
        a("v_lshl_add_u32 v4, v2, 1, v4")
        a("v_add_u32 v4, s59, v4")
        b = WR + 8*n
        for grp in range(2):
            so = "s46" if grp else "0"
            for i in range(4):
                a(f"buffer_load_ushort v{b+4*grp+i}, v4, s[32:35], {so} offen offset:{i*1280}")
        a("s_mul_i32 s59, s41, 52")
        a("s_lshr_b32 s59, s59, 8")
        a("s_mul_i32 s55, s59, 5")
        a("s_sub_u32 s55, s41, s55")
        a("s_mul_i32 s45, s58, 26")
        a("s_lshr_b32 s45, s45, 8")
        a("s_mul_i32 s47, s45, 10")
        a("s_sub_u32 s47, s58, s47")
        a("s_add_u32 s58, s58, 10")
        a("s_cmp_lt_u32 s55, 4")
        a("s_cselect_b32 s55, s55, s45")
        a("s_cselect_b32 s58, s58, s47")
        a("s_lshl_b32 s59, s59, 2")
        a("s_add_u32 s59, s59, s55")
        a("s_mul_i32 s59, s59, 50")
        a("s_add_u32 s59, s59, s58")
        a("s_lshl_b32 s59, s59, 10")
        a(f"s_add_u32 s{SWD[n]}, s59, {WO_OFF - SEQ_OFF}")
    a("L_sw_wo_ld:")
    G = 80
    a("s_mov_b32 s54, s53")
    a("v_lshlrev_b32 v23, 3, v3")
    a(f"s_mov_b32 s55, {f32bits(1.0/2048)}")
    a("v_cmp_gt_u32 vcc, 32, v1")
    a("L_sw_gen:")
    a("s_lshr_b32 s41, s54, 5")
    a("s_and_b32 s58, s54, 31")
    a("s_lshr_b32 s59, s41, 1")
    a("s_lshl_b32 s59, s59, 6")
    a("s_and_b32 s47, s41, 1")
    a("s_add_u32 s59, s59, s47")
    a("v_lshl_add_u32 v4, v2, 1, s59")
    a("s_mul_i32 s45, s41, 65")
    a("s_add_u32 s45, s45, s58")
    a("s_lshl_b32 s45, s45, 10")
    a(f"s_add_u32 s46, s45, {33*1024}")
    a("s_lshl_b32 s48, s58, 4")
    a("v_add_u32 v5, s48, v23")
    a("v_mul_u32_u24 v5, v4, v5")
    a("v_cvt_f32_u32 v5, v5")
    a("v_cvt_f32_u32 v4, v4")
    for i in range(8):
        if i: a("v_add_f32 v5, v5, v4")
        a(f"v_mul_f32 v{G+i}, s55, v5")
    for i in range(8): a(f"v_fract_f32 v{G+i}, v{G+i}")
    for i in range(8): a(f"v_cos_f32 v{G+8+i}, v{G+i}")
    a("s_cmp_lg_u32 s58, 0")
    a("s_cbranch_scc1 L_gen_plain")
    a("v_mul_f32 v6, 0x3e800000, v4")
    a("v_fract_f32 v6, v6")
    a(f"v_cndmask_b32 v{G}, v{G}, v6, vcc")
    a("v_cos_f32 v7, v6")
    a(f"v_mov_b32 v{G+25}, 0")
    a(f"v_mov_b32 v{G+26}, 0")
    a(f"v_mov_b32 v{G+27}, 0")
    a("v_cndmask_b32 v7, 0, v7, vcc")
    a(f"v_cvt_pk_bf16_f32 v{G+24}, v7, 0")
    a(f"s_add_u32 s48, s45, {32*1024}")
    a(f"buffer_store_dwordx4 {vr(G+24,4)}, v22, s[28:31], s48 offen sc1")
    a("L_gen_plain:")
    for i in range(8): a(f"v_sin_f32 v{G+i}, v{G+i}")
    for i in range(4): a(f"v_cvt_pk_bf16_f32 v{G+16+i}, v{G+8+2*i}, v{G+9+2*i}")
    for i in range(4): a(f"v_cvt_pk_bf16_f32 v{G+20+i}, v{G+2*i}, v{G+1+2*i}")
    a(f"buffer_store_dwordx4 {vr(G+16,4)}, v22, s[28:31], s45 offen sc1")
    a(f"buffer_store_dwordx4 {vr(G+20,4)}, v22, s[28:31], s46 offen sc1")
    a("s_add_u32 s54, s54, 192")
    a("s_cmp_lt_u32 s54, 1056")
    a("s_cbranch_scc1 L_sw_gen")

def side_work_finish(a):
    WR = 32
    l = a.label("L_sw_fin")
    a("s_waitcnt vmcnt(10)")
    for n in range(5):
        if n == 4:
            a("s_cmp_ge_u32 s53, 32")
            a(f"s_cbranch_scc1 {l}")
        b = WR + 8*n
        for i in range(4): a(f"v_lshl_or_b32 v{b+i}, v{b+2*i+1}, 16, v{b+2*i}")
        a(f"buffer_store_dwordx4 {vr(b,4)}, v22, s[28:31], s{SWD[n]} offen sc1")
    a(f"{l}:")

def prep(a):
    a("L_prep:")
    a(f"s_sub_u32 s40, s{sSLOT}, 24")
    a("s_and_b32 s27, s40, 1")
    a("s_lshr_b32 s26, s40, 1")
    a("s_lshl_b32 s26, s26, 3")
    a(f"s_add_u32 s26, s26, s{sXCD}")
    make_srd(a, 36, pWS, AB_OFF, AB_SIZE)
    a(f"s_cmp_ge_u32 s{sWAVE}, 5")
    a("s_cbranch_scc1 L_fold_skip")
    make_srd(a, 28, pBX, 0, X_SIZE)
    a("s_lshl_b32 s42, s26, 4")
    a("v_lshrrev_b32 v2, 3, v1")
    a("v_and_b32 v3, 7, v1")
    a("v_add_u32 v4, s42, v2")
    a("v_mul_u32_u24 v5, 1280, v4")
    a("v_lshlrev_b32 v6, 4, v3")
    a("v_add_u32 v10, v5, v6")
    a("v_sub_u32 v7, v6, v5")
    a(f"s_lshl_b32 s44, s27, 1")
    a(f"s_add_u32 s44, s44, s{sWAVE}")
    a("s_cmp_ge_u32 s44, 5")
    a("s_cselect_b32 s45, 5, 0")
    a("s_sub_u32 s44, s44, s45")
    a("s_lshl_b32 s44, s44, 7")
    a("s_add_u32 s45, s44, 10240")
    a(f"v_add_u32 v11, {2048*1280}, v7")
    a(f"v_add_u32 v12, {1024*1280}, v7")
    a("v_cmp_ne_u32 vcc, 0, v4")
    a(f"v_mov_b32 v8, {HUGE}")
    a(f"v_add_u32 v9, {1024*1280}, v10")
    a("v_cndmask_b32 v13, v8, v9, vcc")
    LD = 32
    for hf in range(2):
        for r in range(4): a(f"buffer_load_dwordx4 {vr(LD+8*r+4*hf,4)}, v{10+r}, s[28:31], s44 offen offset:{640*hf}")
    a("v_subrev_u32 v11, 10240, v11")
    a("v_subrev_u32 v12, 10240, v12")
    for hf in range(2):
        for r, (vv, so) in enumerate([(10, 45), (11, 44), (12, 44), (9, 45)]):
            a(f"buffer_load_dwordx4 {vr(LD+32+8*r+4*hf,4)}, v{vv}, s[28:31], s{so} offen offset:{640*hf}")
    XL = 96
    a("s_cmp_lg_u32 s26, 0")
    a("s_cbranch_scc1 L_fold_nx")
    a(f"v_add_u32 v14, {512*1280}, v6")
    a(f"v_add_u32 v15, {1536*1280}, v6")
    a("v_cndmask_b32 v14, v14, v8, vcc")
    a("v_cndmask_b32 v15, v15, v8, vcc")
    for r in range(2):
        for hf in range(2):
            a(f"buffer_load_dwordx4 {vr(XL+8*r+4*hf,4)}, v{14+r}, s[28:31], s44 offen offset:{640*hf}")
    a("L_fold_nx:")
    a("v_and_b32 v5, 3, v2")
    a("v_lshrrev_b32 v4, 2, v2")
    a("v_lshl_or_b32 v5, v4, 3, v5")
    a("v_xor_b32 v5, v5, v3")
    a("v_and_b32 v4, 1, v3")
    a("v_lshl_add_u32 v5, v4, 5, v5")
    a("v_lshlrev_b32 v5, 4, v5")
    a("v_lshrrev_b32 v4, 1, v3")
    a("v_lshl_add_u32 v5, v4, 10, v5")
    a("s_lshl_b32 s45, s44, 5")
    a("v_add_u32 v16, s45, v5")
    a("v_xor_b32 v18, 64, v16")
    a("v_add_u32 v5, s44, v6")
    a("v_add_u32 v17, 40960, v5")
    a("v_lshlrev_b32 v6, 4, v1")
    a("v_add_u32 v6, 43008, v6")
    a("v_cndmask_b32 v17, v17, v6, vcc")
    a("L_fold_skip:")
    a("v_and_b32 v2, 31, v1")
    a("v_lshrrev_b32 v3, 5, v1")
    a("v_lshlrev_b32 v15, 4, v1")
    a(f"s_lshr_b32 s40, s{sWAVE}, 1")
    a("s_add_u32 s40, s40, 2")
    a(f"s_and_b32 s41, s{sWAVE}, 1")
    a(f"s_cmp_lt_u32 s{sWAVE}, 4")
    a(f"s_cselect_b32 s49, s{sWAVE}, s40")
    a("s_cselect_b32 s50, 0, s41")
    a("s_lshl_b32 s54, s49, 6")
    a("s_add_u32 s54, s54, s27")
    a("v_lshl_add_u32 v4, v2, 1, s54")
    AU = 10; SB = [[176, 184], [192, 200]]; HB = [[208, 212], [216, 220]]; UB = [72, 84, 96, 108]; ACC3 = [224, 240, 32]; PH = 112
    a("s_mul_i32 s52, s50, 20480")
    for jj in range(4):
        a(f"v_xor_b32 v5, {2*jj}, v3")
        a("v_xor_b32 v5, v5, v2")
        a("v_lshl_add_u32 v5, v3, 5, v5")
        a("v_lshlrev_b32 v5, 4, v5")
        a(f"v_add_u32 v5, {jj*1024}, v5")
        a(f"v_add_u32 v{AU+jj}, s52, v5")
    a(f"v_lshlrev_b32 v{AU+4}, 4, v3")
    a(f"v_add_u32 v{AU+4}, 40960, v{AU+4}")
    a(f"s_mov_b32 s52, {f32bits(1.0/640)}")
    a("s_cmp_lg_u32 s50, 0")
    a("s_cselect_b32 s53, 0x3e800000, 0")
    a("v_lshlrev_b32 v5, 3, v3")
    a("v_mul_u32_u24 v5, v4, v5")
    a("v_cvt_f32_u32 v5, v5")
    a("v_cvt_f32_u32 v4, v4")
    a("v_mul_f32 v6, 0x41800000, v4")
    for i in range(8):
        if i: a("v_add_f32 v5, v5, v4")
        a(f"v_mul_f32 v{PH+i}, s52, v5")
        a("v_sub_f32 v7, v5, v6")
        a(f"v_mul_f32 v{PH+8+i}, s52, v7")
    a("v_mul_f32 v6, s52, v6")
    a("v_fract_f32 v6, v6")
    for i in range(16): a(f"v_fract_f32 v{PH+i}, v{PH+i}")
    a("v_cos_f32 v19, v6")
    for i in range(16): a(f"v_sin_f32 v{SB[1][0]+i}, v{PH+i}")
    for i in range(16): a(f"v_subrev_f32 v{PH+i}, s53, v{PH+i}")
    for i in range(16): a(f"v_cos_f32 v{SB[0][0]+i}, v{PH+i}")
    a("v_add_f32 v19, v19, v19")
    for r in range(32): a(f"v_mov_b32 v{224+r}, 0")
    def cvts(jb, g): return [f"v_cvt_pk_bf16_f32 v{HB[jb][g]+d}, v{SB[jb][g]+2*d}, v{SB[jb][g]+2*d+1}" for d in range(4)]
    def rot(jb, cur): return [f"v_fma_f32 v{SB[jb][cur^1]+i}, v19, v{SB[jb][cur]+i}, -v{SB[jb][cur^1]+i}" for i in range(8)]
    for x in cvts(0, 0) + cvts(1, 0): a(x)
    a(f"s_cmp_lt_u32 s{sWAVE}, 5")
    a("s_cbranch_scc1 L_fold_go")
    side_work(a)
    side_work_finish(a)
    a("s_branch L_fold_done")
    a("L_fold_go:")
    a("s_cmp_lg_u32 s27, 0")
    a("s_cselect_b32 s46, -1.0, 1.0")
    a("s_mov_b32 s47, s46")
    a("s_mov_b32 s48, 0xffff0000")
    T = 112; R = 144; H = 20
    ng = "neg_lo:[0,1] neg_hi:[0,1]"
    def dfold(src, dst):
        for d in range(4):
            a(f"v_lshlrev_b32 v{dst+2*d}, 16, v{src+d}")
            a(f"v_and_b32 v{dst+2*d+1}, s48, v{src+d}")
            a(f"v_lshlrev_b32 v{H+2*(d&1)}, 16, v{src+4+d}")
            a(f"v_and_b32 v{H+2*(d&1)+1}, s48, v{src+4+d}")
            a(f"v_pk_fma_f32 {vr(dst+2*d,2)}, {vr(H+2*(d&1),2)}, s[46:47], {vr(dst+2*d,2)}")
    for n in range(2):
        a("s_waitcnt vmcnt(%d)" % (8 if n == 0 else 0))
        if n == 0: stamp(a, 9)
        b = LD + 32*n
        for r in range(4): dfold(b + 8*r, T + 8*r)
        for d in range(4):
            p = lambda r: vr(T+8*r+2*d, 2)
            q = lambda r: vr(R+8*r+2*d, 2)
            a(f"v_pk_add_f32 {q(0)}, {p(0)}, {p(1)}")
            a(f"v_pk_add_f32 {q(1)}, {p(0)}, {p(1)} {ng}")
            a(f"v_pk_add_f32 {q(2)}, {p(2)}, {p(3)}")
            a(f"v_pk_add_f32 {q(3)}, {p(2)}, {p(3)} {ng}")
            a(f"v_pk_add_f32 {p(0)}, {q(0)}, {q(2)}")
            a(f"v_pk_add_f32 {p(1)}, {q(0)}, {q(2)} {ng}")
            a(f"v_pk_add_f32 {p(2)}, {q(1)}, {q(3)} {ng}")
            a(f"v_pk_add_f32 {p(3)}, {q(1)}, {q(3)}")
        if n == 0:
            a("s_cmp_lg_u32 s26, 0")
            a("s_cbranch_scc1 L_fold_sp")
            a("s_waitcnt vmcnt(0)")
            dfold(XL, R); dfold(XL + 8, R + 8)
            for d in range(4):
                a(f"v_pk_add_f32 {vr(R+16+2*d,2)}, {vr(R+2*d,2)}, {vr(R+8+2*d,2)}")
                a(f"v_pk_add_f32 {vr(R+2*d,2)}, {vr(R+2*d,2)}, {vr(R+8+2*d,2)} {ng}")
            for e in range(8): a(f"v_cndmask_b32 v{T+24+e}, v{R+e}, v{T+24+e}, vcc")
            for d in range(4): a(f"v_cvt_pk_bf16_f32 v{R+d}, v{R+16+2*d}, v{R+17+2*d}")
            a(f"ds_write_b128 v17, {vr(R,4)}")
            a("L_fold_sp:")
        for i in range(4):
            for d in range(4): a(f"v_cvt_pk_bf16_f32 v{b+4*i+d}, v{T+8*i+2*d}, v{T+8*i+2*d+1}")
            a(f"ds_write_b128 v{16+2*n}, {vr(b+4*i,4)} offset:{(i>>1)*20480 + (i&1)*256}")
    a("L_fold_done:")
    for r in range(16): a(f"v_mov_b32 v{32+r}, 0")
    a("s_waitcnt lgkmcnt(0)")
    stamp(a, 14)
    a("s_barrier")
    stamp(a, 2)
    a("s_mul_i32 s42, s27, 6")
    a("s_add_u32 s42, s42, s49")
    a("s_cmp_gt_u32 s42, 10")
    a("s_cbranch_scc1 L_prep_done")
    def ureads(j, kinds):
        jj = j & 3; o = (j >> 2) * 4096; b = UB[j & 3]; r = []
        for k in kinds:
            if k == 2: r.append(f"ds_read_b128 {vr(b+8,4)}, v{AU+4} offset:{j*32}")
            else: r.append(f"ds_read_b128 {vr(b+4*k,4)}, v{AU+jj} offset:{o + k*20480}")
        return r
    a("s_mov_b32 s45, 5")
    a("s_or_b32 s51, s26, s50")
    a("s_cmp_eq_u32 s51, 0")
    a("s_cselect_b32 s40, 1, 0")
    a(f"s_cmp_lt_u32 s{sWAVE}, 4")
    a("s_cselect_b32 s41, 2, 0")
    a("s_add_u32 s40, s40, s41")
    variants = [[0], [0, 2], [0, 1], [0, 1, 2]]
    for v in range(1, 4):
        a(f"s_cmp_eq_u32 s40, {v}")
        a(f"s_cbranch_scc1 L_f1_v{v}")
    for v, kinds in enumerate(variants):
        a(f"L_f1_v{v}:")
        nm = len(kinds)
        for x in ureads(0, kinds) + ureads(1, kinds): a(x)
        a(f"L_f1_loop{v}:")
        for jj in range(4):
            buf = jj & 1
            va = rot(0, buf) + cvts(0, buf ^ 1)
            if 1 in kinds: va = rot(0, buf) + rot(1, buf) + cvts(0, buf ^ 1) + cvts(1, buf ^ 1)
            rd = ureads(jj + 2, kinds)
            a(f"s_waitcnt lgkmcnt({nm})")
            a("s_nop 0")
            per = len(va) // nm
            for m, k in enumerate(kinds):
                d = vr(ACC3[k], 16)
                a(f"v_mfma_f32_32x32x16_bf16 {d}, {vr(UB[jj]+4*k,4)}, {vr(HB[k & 1][buf],4)}, {d}")
                a(rd[m])
                for x in va[per*m:per*m+per]: a(x)
        for r in range(4): a(f"v_add_u32 v{AU+r}, 4096, v{AU+r}")
        if 2 in kinds: a(f"v_add_u32 v{AU+4}, 128, v{AU+4}")
        a("s_sub_u32 s45, s45, 1")
        a("s_cmp_lg_u32 s45, 0")
        a(f"s_cbranch_scc1 L_f1_loop{v}")
        if v < 3: a("s_branch L_f1_done")
    a("L_f1_done:")
    stamp(a, 5)
    a("s_mul_i32 s43, s42, 33")
    a("s_add_u32 s44, s26, s43")
    a(f"s_mul_i32 s45, s50, {22*33}")
    a("s_add_u32 s44, s44, s45")
    a("s_lshl_b32 s44, s44, 10")
    a("s_waitcnt lgkmcnt(0)")
    a("s_nop 5")
    for jb in range(2):
        b = ACC3[jb]
        if jb == 1:
            a(f"s_cmp_ge_u32 s{sWAVE}, 4")
            a("s_cbranch_scc1 L_f1_one")
        for r in range(8): a(f"v_cvt_pk_bf16_f32 v{b+r}, v{b+2*r}, v{b+2*r+1}")
        for hf in range(2):
            a(f"buffer_store_dwordx4 {vr(b+4*hf,4)}, v15, s[36:39], s44 offen sc1")
            a(f"s_add_u32 s44, s44, {11*33*1024}")
    a("L_f1_one:")
    a("s_cmp_lg_u32 s51, 0")
    a("s_cbranch_scc1 L_prep_done")
    b = ACC3[2]
    for r in range(4): a(f"v_cvt_pk_bf16_f32 v{b+r}, v{b+2*r}, v{b+2*r+1}")
    a("s_add_u32 s43, s43, 32")
    a("s_lshl_b32 s43, s43, 10")
    a(f"buffer_store_dwordx4 {vr(b,4)}, v15, s[36:39], s43 offen sc1")
    a("L_prep_done:")
    a(f"s_cmp_lt_u32 s{sWAVE}, 4")
    a("s_cbranch_scc1 L_A_done")
    get_nonce(a, 2)

W_PROG, W_GO, W_CNT, W_PASS, W_XCH, W_NON = 0, 4, 8, 16, 32, 48
def a_done(a):
    a("L_A_done:")
    stamp(a, 6)
    a(f"v_mov_b32 v23, {LDS_PROG}")
    a(f"s_cmp_lg_u32 s{sWAVE}, 4")
    a("s_cbranch_scc1 L_A_bar")
    a(f"v_mov_b32 v2, s{sNON}")
    a(f"v_mov_b32 v3, s{sNON+1}")
    a(f"ds_write_b64 v23, v[2:3] offset:{W_NON}")
    a("L_A_bar:")
    a("s_waitcnt lgkmcnt(0)")
    a("s_barrier")
    stamp(a, 4)
    a("s_and_b32 s26, s2, 31")
    a("s_lshr_b32 s27, s2, 5")
    a(f"s_cmp_ge_u32 s{sWAVE}, 4")
    a("s_cbranch_scc1 L_aux")

def drained(a, vt):
    a(f"v_mov_b32 v{vt}, 1")
    a("s_mov_b64 exec, 1")
    a(f"ds_add_u32 v23, v{vt} offset:{W_CNT}")
    a("s_mov_b64 exec, -1")

def attention(a):
    SL = OPT.get('slot', 1)
    AKA, AKB, AV, AKB2 = 4, 5, 168, 172
    AREGS = [AKA, AV, AV+1, AV+2, AV+3] + ([AKB2, AKB2+1] if SL else [AKB])
    QA = [8, 14]
    NEG = [32, 48]; S = [64, 80]; O = [96, 112]; P = 128
    KB = [136, 142]; VB = [148, 156]
    PR = 164
    a("L_attn:")
    a(f"ds_read_b32 v24, v23 offset:{W_GO}")
    a(f"ds_read_b64 v[26:27], v23 offset:{W_NON}")
    a(f"s_setprio {OPT.get('pattn', 2)}")
    a(f"s_mul_i32 s40, s26, {Q_HEAD}")
    a(f"s_add_u32 s40, s40, {Q_OFF}")
    make_srd(a, 28, pWS, "s40", Q_HEAD)
    a(f"s_mul_i32 s40, s26, {KV_HEAD}")
    make_srd(a, 32, pWS, "s40", KV_HEAD)
    a("v_and_b32 v2, 31, v1")
    a("v_lshrrev_b32 v3, 5, v1")
    a(f"v_lshlrev_b32 v{AKA}, 4, v1")
    a(f"v_lshlrev_b32 v{AKB}, 3, v2")
    a(f"v_add_u32 v{AKB}, 1024, v{AKB}")
    a(f"v_mov_b32 v20, {HUGE}")
    a("v_cmp_gt_u32 vcc, 32, v1")
    a("s_lshl_b32 s41, s27, 3")
    a(f"s_lshl_b32 s42, s{sWAVE}, 1")
    a("s_add_u32 s41, s41, s42")
    a(f"v_cndmask_b32 v20, v20, v{AKB}, vcc")
    a(f"s_mul_i32 s42, s41, {TQ}")
    a("v_and_b32 v21, 28, v2")
    a("v_add_u32 v21, v21, v2")
    a("v_lshl_add_u32 v21, v3, 2, v21")
    a("v_lshlrev_b32 v21, 4, v21")
    a("v_add_u32 v29, 1280, v21")
    a("s_mov_b32 s48, 0x000fffff")
    a("s_mov_b32 s49, 0x000fffff")
    a("s_waitcnt lgkmcnt(0)")
    a("v_readfirstlane_b32 s47, v24")
    a(f"v_readfirstlane_b32 s{sNON}, v26")
    a(f"v_readfirstlane_b32 s{sNON+1}, v27")
    a("s_mov_b32 s50, s47")
    a("s_cmp_lg_u32 s47, 0")
    a("s_cbranch_scc1 L_attn_go")
    a("s_waitcnt vmcnt(0)")
    stamp(a, 3)
    drained(a, 24)
    a("L_attn_spin:")
    a(f"ds_read_b32 v24, v23 offset:{W_GO}")
    a("s_waitcnt lgkmcnt(0)")
    a("v_readfirstlane_b32 s47, v24")
    a("s_nop 0")
    a("s_cmp_eq_u32 s47, 0")
    a("s_cbranch_scc1 L_attn_spin")
    a("L_attn_go:")
    stamp(a, 7); stamp(a, 7, 2); stamp_real(a, 8, 2)
    a("s_sub_u32 s47, s47, 1")
    a(f"s_mul_i32 s47, s47, {4*TKV}")
    for q in range(2):
        a(f"buffer_load_dwordx4 {vr(QA[q],4)}, v{AKA}, s[28:31], s42 offen offset:{q*TQ} sc1")
        a(f"buffer_load_dwordx2 {vr(QA[q]+4,2)}, v20, s[28:31], s42 offen offset:{q*TQ} sc1")
    a(f"buffer_load_dwordx4 {vr(KB[0],4)}, v{AKA}, s[32:35], s47 offen sc1")
    if SL:
        for b in KB:
            a(f"v_mov_b32 v{b+4}, 0x3f803f80")
            a(f"v_mov_b32 v{b+5}, 0x3f80")
        a("s_mov_b32 exec_hi, 0")
    a(f"buffer_load_dwordx2 {vr(KB[0]+4,2)}, v{AKB}, s[32:35], s47 offen sc1")
    if SL: a("s_mov_b64 exec, -1")
    a("v_mov_b32 v24, 0x3f803f80")
    a("v_cmp_eq_u32 vcc, 20, v2")
    a(f"s_add_u32 s43, s47, {TKV}")
    a("s_nop 0")
    a("v_cndmask_b32 v24, 0, v24, vcc")
    for r in range(16): a(f"v_mov_b32 v{VB[0]+r}, v24")
    a(f"buffer_load_dwordx4 {vr(KB[1],4)}, v{AKA}, s[32:35], s43 offen sc1")
    if SL: a("s_mov_b32 exec_hi, 0")
    a(f"buffer_load_dwordx2 {vr(KB[1]+4,2)}, v{AKB}, s[32:35], s43 offen sc1")
    a("s_mov_b64 exec, s[48:49]")
    a(f"buffer_load_dwordx4 {vr(VB[0],4)}, v29, s[32:35], s47 offen sc1")
    a(f"buffer_load_dwordx4 {vr(VB[0]+4,4)}, v29, s[32:35], s47 offen offset:640 sc1")
    a(f"buffer_load_dwordx4 {vr(VB[1],4)}, v29, s[32:35], s43 offen sc1")
    a(f"buffer_load_dwordx4 {vr(VB[1]+4,4)}, v29, s[32:35], s43 offen offset:640 sc1")
    a("s_mov_b64 exec, -1")
    a("s_cmp_eq_u32 s50, 0")
    a("s_cbranch_scc1 L_attn_cnt")
    a("s_waitcnt vmcnt(12)")
    stamp(a, 3)
    drained(a, 24)
    a("L_attn_cnt:")
    a("v_mov_b32 v22, 5120")
    if OPT.get('zr', 1):
        a("v_cmp_lt_u32 vcc, 20, v2")
        a("v_mov_b32 v21, 5136")
        a("s_nop 0")
        a("v_cndmask_b32 v22, v22, v21, vcc")
    a("v_cmp_gt_u32 vcc, 20, v2")
    for i in range(4): a(f"v_add_u32 v{AV+i}, {(i>>1)*TKV + (i&1)*640}, v29")
    for i in range(4): a(f"v_cndmask_b32 v{AV+i}, v22, v{AV+i}, vcc")
    if SL:
        a("v_cmp_gt_u32 vcc, 32, v1")
        a("v_mov_b32 v22, 5152")
        a(f"v_add_u32 v21, {TKV}, v{AKB}")
        a(f"v_cndmask_b32 v{AKB2}, v22, v{AKB}, vcc")
        a(f"v_cndmask_b32 v{AKB2+1}, v22, v21, vcc")
    make_srd(a, 36, pWS, O_OFF, O_SIZE)
    for q in range(2):
        for r in range(16): a(f"v_mov_b32 v{O[q]+r}, 0")
    mm16 = "v_mfma_f32_32x32x16_bf16"; mm8 = "v_mfma_f32_32x32x8_bf16"
    def M1(s, t, q, c): return f"{mm16} {vr(s,16)}, {vr(KB[t&1],4)}, {vr(QA[q],4)}, {c}"
    def M2(s, t, q): return f"{mm8} {vr(s,16)}, {vr(KB[t&1]+4,2)}, {vr(QA[q]+4,2)}, {vr(s,16)}"
    def M3(t, q): return "s_nop 1" if OPT.get('nopv') else f"{mm16} {vr(O[q],16)}, {vr(VB[t&1],4)}, {vr(P,4)}, {vr(O[q],16)}"
    def M4(t, q): return "s_nop 1" if OPT.get('nopv') else f"{mm16} {vr(O[q],16)}, {vr(VB[t&1]+4,4)}, {vr(P+4,4)}, {vr(O[q],16)}"
    def rowmax(src, dst, first):
        if first:
            a(f"v_max3_f32 v{dst}, v{src}, v{src+1}, v{src+2}")
            a(f"v_max_f32 v{dst}, v{dst}, v{src+15}")
            rng = range(3, 15, 2)
        else: rng = range(0, 16, 2)
        for r in rng: a(f"v_max3_f32 v{dst}, v{dst}, v{src+r}, v{src+r+1}")
    def finish_neg(add):
        a("v_mov_b32 v26, v24")
        a("v_mov_b32 v27, v25")
        a("s_nop 1")
        a("v_permlane32_swap_b32 v24, v26")
        a("v_permlane32_swap_b32 v25, v27")
        a("s_nop 1")
        a("v_max_f32 v24, v24, v26")
        a("v_max_f32 v25, v25, v27")
        if not SL:
            for q in range(2):
                a(f"v_sub_f32 v{NEG[q]}, {add}, v{24+q}")
                for r in range(1, 16): a(f"v_mov_b32 v{NEG[q]+r}, v{NEG[q]}")
            return
        a("s_mov_b32 s45, 0xffff0000")
        a("s_mov_b32 s46, 0x07060302")
        for q in range(2):
            a(f"v_sub_f32 v{24+q}, {add}, v{24+q}")
        for q in range(2):
            a(f"v_and_b32 v26, s45, v{24+q}")
            a(f"v_sub_f32 v27, v{24+q}, v26")
            a("v_and_b32 v28, s45, v27")
            a("v_sub_f32 v27, v27, v28")
            a("v_perm_b32 v26, v28, v26, s46")
            a("v_lshrrev_b32 v27, 16, v27")
            a("s_mov_b32 exec_lo, 0")
            a(f"v_mov_b32 v{QA[q]+4}, v26")
            a(f"v_mov_b32 v{QA[q]+5}, v27")
            a("s_mov_b64 exec, -1")
        a("s_nop 1")
    CNEG = lambda q: "0" if SL else vr(NEG[q], 16)
    a("s_waitcnt vmcnt(6)")
    stamp(a, 8)
    for q in range(2): a(M1(S[q], 0, q, "0"))
    for q in range(2): a(M2(S[q], 0, q))
    a("s_nop 11")
    rowmax(S[0], 24, True)
    a("s_nop 1")
    rowmax(S[1], 25, True)
    finish_neg(hex(f32bits(-float(OPT.get('off', 96)))))
    a(M1(S[0], 0, 0, CNEG(0)))
    a(M2(S[0], 0, 0))
    a(f"ds_read_b32 v{PR}, v23")
    a("s_waitcnt vmcnt(0)")
    a("s_nop 9")
    def check(need):
        l = a.label("L_chk"); ok = a.label("L_chkok")
        a(f"{l}:")
        a("s_waitcnt lgkmcnt(0)")
        a(f"v_readfirstlane_b32 s44, v{PR}")
        a("s_nop 0")
        a(f"s_cmp_ge_u32 s44, {need}")
        a(f"s_cbranch_scc1 {ok}")
        a(f"ds_read_b32 v{PR}, v23")
        a(f"s_branch {l}")
        a(".p2align 3")
        a(f"{ok}:")
    def unit(t, q, s4=(), s1=(), s2=(), s3=(), first=False, nonext=False):
        s = S[q]; sn = S[q ^ 1]
        t1, q1 = (t, 1) if q == 0 else (t + 1, 0)
        tp, qp = (t - 1, 1) if q == 0 else (t, 0)
        E = lambda r: a(f"v_exp_f32 v{s+r}, v{s+r}")
        C = lambda j: a(f"v_cvt_pk_bf16_f32 v{P+j}, v{s+2*j}, v{s+2*j+1}")
        al = OPT.get('al', 1)
        EW = lambda r: a(f"v_exp_f32_e64 v{s+r}, v{s+r}") if al else E(r)
        odd = lambda xs: sum(1 for x in xs if x.startswith("s_")) & 1
        E(0); E(1)
        if not first: a(M4(tp, qp))
        for x in s4: a(x)
        (E if odd(s4) else EW)(2); E(3); E(4)
        if not nonext: a(M1(sn, t1, q1, CNEG(q1)))
        for x in s1: a(x)
        EW(5); E(6); E(7)
        for j in range(4): C(j)
        if not nonext: a(M2(sn, t1, q1))
        for x in s2: a(x)
        EW(8)
        for r in range(9, 13): E(r)
        a(M3(t, q))
        for x in s3: a(x)
        EW(13); E(14); E(15)
        for j in range(4, 8): C(j)
    def period(t, o, extra3=()):
        if o is None:
            unit(t, 1, s4=["s_waitcnt lgkmcnt(0)"]); unit(t + 1, 0); return
        kb = KB[t & 1]; vb = VB[t & 1]
        ok = lds_tile(o + 2); ov = (o >> 1) * LPAIR; av = AV + 2*(o & 1)
        unit(t, 1, s4=["s_waitcnt lgkmcnt(0)"],
             s1=[f"ds_read_b128 {vr(kb,4)}, v{AKA} offset:{ok}"],
             s3=[f"ds_read_b64 {vr(kb+4,2)}, v{AKB2+(o&1)} offset:{ov}" if SL else f"ds_read_b64 {vr(kb+4,2)}, v{AKB} offset:{ok}"])
        unit(t + 1, 0, s4=[f"ds_read_b128 {vr(vb,4)}, v{av} offset:{ov}"],
             s1=[f"ds_read_b128 {vr(vb+4,4)}, v{av+1} offset:{ov}"], s3=extra3)
    rdp = [f"ds_read_b32 v{PR}, v23"]
    a(".p2align 3")
    unit(0, 0, first=True)
    stamp(a, 9)
    check(1)
    for t in range(6):
        if t == 2: check(2)
        period(t, t, rdp if t in (1, 5) else ())
    for r in AREGS: a(f"v_add_u32 v{r}, {3*LPAIR}, v{r}")
    a(f"s_lshl_b32 s45, s{sWAVE}, 2")
    a("v_add_u32 v24, s45, v23")
    a(f"ds_write_b32 v24, v23 offset:{W_PASS}")
    a("s_mov_b32 s45, 2")
    a("s_mov_b32 s46, 7")
    stamp(a, 10); stamp(a, 10, 2); stamp_real(a, 12, 2)
    a(".p2align 3")
    a("L_attn_loop:")
    a("s_cmp_eq_u32 s44, 16")
    a("s_cbranch_scc1 L_attn_nochk")
    a("s_add_u32 s45, s45, 2")
    check("s45")
    a(".p2align 3")
    a("L_attn_nochk:")
    for k in range(8):
        ex = ()
        if k == 7: ex = rdp
        period(k, k, ex)
    for r in AREGS: a(f"v_add_u32 v{r}, {4*LPAIR}, v{r}")
    a("s_sub_u32 s46, s46, 1")
    a("s_cmp_lg_u32 s46, 0")
    a("s_cbranch_scc1 L_attn_loop")
    period(62, None)
    unit(63, 1, nonext=True)
    a("s_nop 1")
    a(M4(63, 1))
    stamp(a, 11); stamp(a, 11, 2); stamp_real(a, 13, 2)
    a("s_nop 15")
    a("L_attn_post:")
    for q in range(2): a(f"v_mov_b32 v{24+q}, v{O[q]+8}")
    a("v_mov_b32 v26, 0")
    a("s_nop 0")
    for q in range(2): a(f"v_permlane32_swap_b32 v{O[q]+8}, v{24+q}")
    a("s_cmp_eq_u32 s46, 0")
    a("s_cbranch_scc0 L_attn_fin")
    for q in range(2):
        for r in range(12): a(f"v_fma_f32 v26, v{O[q]+r}, 0, v26")
    a("v_max_f32 v27, v24, v25")
    a("v_fma_f32 v26, v24, 0, v26")
    a("v_fma_f32 v26, v25, 0, v26")
    for q in range(2):
        a(f"v_max3_f32 v{30+q}, abs(v{O[q]}), abs(v{O[q]+1}), abs(v{O[q]+2})")
        a(f"v_max3_f32 v{30+q}, v{30+q}, abs(v{O[q]+3}), abs(v{O[q]+4})")
        a(f"v_max3_f32 v{30+q}, v{30+q}, abs(v{O[q]+5}), abs(v{O[q]+6})")
        a(f"v_max_f32 v{30+q}, v{30+q}, abs(v{O[q]+7})")
    a("v_min_f32 v30, v30, v31")
    a("v_mov_b32 v28, 0x76800000")
    a("v_mov_b32 v31, 0x08800000")
    a("v_cmp_u_f32 s[44:45], v26, v26")
    a("v_cmp_nlt_f32 vcc, v27, v28")
    a("v_cmp_lt_f32 s[50:51], v30, v31")
    a("s_nop 1")
    a("s_or_b64 vcc, vcc, s[44:45]")
    a("s_or_b64 vcc, vcc, s[50:51]")
    if OPT.get('forcefb'): a("s_mov_b64 vcc, -1")
    a("s_cbranch_vccnz L_attn_fallback")
    a("L_attn_fin:")
    a("v_rcp_f32 v24, v24")
    a("v_rcp_f32 v25, v25")
    a("s_lshl_b32 s42, s41, 5")
    a("s_add_u32 s42, s42, s26")
    a("s_mul_i32 s42, s42, 1280")
    a("v_lshlrev_b32 v21, 4, v1")
    for q in range(2):
        for r in range(12): a(f"v_mul_f32 v{O[q]+r}, v{O[q]+r}, v{24+q}")
        for r in range(6): a(f"v_cvt_pk_bf16_f32 v{O[q]+r}, v{O[q]+2*r}, v{O[q]+2*r+1}")
        a(f"buffer_store_dwordx4 {vr(O[q],4)}, v21, s[36:39], s42 offen sc1")
        a(f"buffer_store_dwordx2 {vr(O[q]+4,2)}, v20, s[36:39], s42 offen sc1")
        if q == 0: a(f"s_add_u32 s42, s42, {32*1280}")
    a("s_barrier")
    a("s_lshl_b32 s40, s2, 2")
    a(f"s_add_u32 s40, s40, s{sWAVE}")
    a(f"s_add_u32 s40, s40, {FB}")
    a("s_lshl_b32 s40, s40, 7")
    a("s_waitcnt vmcnt(0)")
    stamp(a, 12)
    set_flag(a, 40, 8)
    a("s_branch L_end")
    a("L_attn_fallback:")
    for r in ((AKA,) if SL else (AKA, AKB)): a(f"v_subrev_u32 v{r}, {31*LPAIR}, v{r}")
    if SL:
        a("s_mov_b32 exec_lo, 0")
        for q in range(2):
            a(f"v_mov_b32 v{QA[q]+4}, 0")
            a(f"v_mov_b32 v{QA[q]+5}, 0")
        a("s_mov_b64 exec, -1")
    a("v_mov_b32 v24, 0xff800000")
    a("v_mov_b32 v25, 0xff800000")
    a("s_mov_b32 s46, 0")
    a("L_fb_max:")
    a(f"buffer_load_dwordx4 {vr(KB[0],4)}, v{AKA}, s[32:35], s46 offen sc1")
    if SL: a("s_mov_b32 exec_hi, 0")
    a(f"buffer_load_dwordx2 {vr(KB[0]+4,2)}, v{AKB}, s[32:35], s46 offen sc1")
    if SL: a("s_mov_b64 exec, -1")
    a("s_waitcnt vmcnt(0)")
    for q in range(2): a(M1(S[q], 0, q, "0"))
    for q in range(2): a(M2(S[q], 0, q))
    a("s_nop 15")
    rowmax(S[0], 24, False)
    rowmax(S[1], 25, False)
    a(f"s_add_u32 s46, s46, {TKV}")
    a(f"s_cmp_lt_u32 s46, {KV_HEAD}")
    a("s_cbranch_scc1 L_fb_max")
    finish_neg("0")
    for q in range(2):
        for r in range(16): a(f"v_mov_b32 v{O[q]+r}, 0")
    a("s_mov_b32 s46, 0")
    a("L_fb_main:")
    a(f"buffer_load_dwordx4 {vr(KB[0],4)}, v{AKA}, s[32:35], s46 offen sc1")
    if SL: a("s_mov_b32 exec_hi, 0")
    a(f"buffer_load_dwordx2 {vr(KB[0]+4,2)}, v{AKB}, s[32:35], s46 offen sc1")
    if SL: a("s_mov_b64 exec, -1")
    a("s_mov_b64 exec, s[48:49]")
    a(f"buffer_load_dwordx4 {vr(VB[0],4)}, v29, s[32:35], s46 offen sc1")
    a(f"buffer_load_dwordx4 {vr(VB[0]+4,4)}, v29, s[32:35], s46 offen offset:640 sc1")
    a("s_mov_b64 exec, -1")
    a("s_waitcnt vmcnt(0)")
    for q in range(2): a(M1(S[q], 0, q, CNEG(q)))
    for q in range(2): a(M2(S[q], 0, q))
    a("s_nop 15")
    for q in range(2):
        for r in range(16): a(f"v_exp_f32 v{S[q]+r}, v{S[q]+r}")
        a("s_nop 0")
        for j in range(8): a(f"v_cvt_pk_bf16_f32 v{P+j}, v{S[q]+2*j}, v{S[q]+2*j+1}")
        a("s_nop 1")
        a(M3(0, q)); a(M4(0, q))
    a(f"s_add_u32 s46, s46, {TKV}")
    a(f"s_cmp_lt_u32 s46, {KV_HEAD}")
    a("s_cbranch_scc1 L_fb_main")
    a("s_nop 15")
    a("s_branch L_attn_post")

def aux(a):
    a("L_aux:")
    a(f"s_setprio {OPT.get('paux', 0)}")
    a(f"s_sub_u32 s44, s{sWAVE}, 4")
    a("v_lshlrev_b32 v2, 4, v1")
    a("s_waitcnt vmcnt(0)")
    drained(a, 3)
    a("s_cmp_eq_u32 s44, 0")
    a("s_cbranch_scc1 L_kv")
    a("s_cmp_lg_u32 s44, 1")
    a("s_cbranch_scc1 L_aux_wait")
    a("s_lshl_b32 s40, s2, 7")
    a("L_cnt_spin:")
    a(f"ds_read_b32 v3, v23 offset:{W_CNT}")
    a("s_waitcnt lgkmcnt(0)")
    a("v_readfirstlane_b32 s41, v3")
    a("s_nop 0")
    a("s_cmp_lt_u32 s41, 8")
    a("s_cbranch_scc1 L_cnt_spin")
    set_flag(a, 40, 8)
    a("L_aux_wait:")
    a("s_sleep 4")
    a(f"ds_read_b32 v3, v23 offset:{W_PROG}")
    a("s_waitcnt lgkmcnt(0)")
    a("v_readfirstlane_b32 s41, v3")
    a("s_nop 0")
    a(f"s_cmp_lt_u32 s41, {OPT.get('f2w', 6)}")
    a("s_cbranch_scc1 L_aux_wait")
    a("s_branch L_kv_done")
    a("L_kv:")
    a(f"s_mul_i32 s40, s26, {KV_HEAD}")
    make_srd(a, 28, pWS, "s40", KV_HEAD)
    a(f"v_mul_u32_u24 v6, {LPAIR}, v1")
    a("v_min_u32 v6, %d, v6" % (30*LPAIR))
    for r in range(4): a(f"v_mov_b32 v{8+r}, 0x3f803f80")
    a("ds_write_b128 v6, v[8:11] offset:5120")
    for r in range(4): a(f"v_mov_b32 v{12+r}, 0")
    a("ds_write_b128 v6, v[12:15] offset:5136")
    a("v_mov_b32 v16, 0x3f803f80")
    a("v_mov_b32 v17, 0x3f80")
    a("ds_write_b64 v6, v[16:17] offset:5152")
    a("s_lshr_b32 s41, s26, 3")
    a("v_and_b32 v3, 15, v1")
    a("v_and_b32 v4, 1, v1")
    a("s_lshl_b32 s42, s27, 1")
    a("v_add_u32 v4, s42, v4")
    a("v_cmp_gt_u32 vcc, 32, v1")
    a("v_lshrrev_b32 v5, 4, v1")
    a("v_lshl_add_u32 v5, v5, 2, 4")
    a("v_cndmask_b32 v3, v4, v3, vcc")
    a("v_cndmask_b32 v5, 0, v5, vcc")
    a("v_add_u32 v5, s41, v5")
    a("v_cmp_le_u32 vcc, 6, v5")
    a("v_and_b32 v4, 3, v3")
    a("v_lshrrev_b32 v3, 2, v3")
    a("v_cndmask_b32 v6, 0, 1, vcc")
    a("v_mul_u32_u24 v7, 6, v6")
    a("v_sub_u32 v5, v5, v7")
    a("v_lshl_add_u32 v5, v5, 2, v4")
    a("v_lshl_add_u32 v3, v6, 2, v3")
    a("v_lshl_add_u32 v5, v5, 3, v3")
    a("v_lshlrev_b32 v5, 7, v5")
    def poll_once():
        a(f"buffer_load_dwordx2 v[6:7], v5, {sr(sFL,4)}, 0 offen sc1")
        a("s_waitcnt vmcnt(0)")
        a(f"v_cmp_eq_u64 vcc, {sr(sNON,2)}, v[6:7]")
        a("s_sub_u32 s40, s40, 1")
        a("s_cselect_b32 s47, 0xffff, 0")
        a("s_lshr_b32 s45, vcc_lo, 16")
        a("s_and_b32 s45, s45, vcc_lo")
        a("s_or_b32 s45, s45, s47")
    def pub(off, sreg):
        a(f"v_mov_b32 v4, s{sreg}")
        a(f"ds_write_b32 v23, v4 offset:{off}")
    a(f"s_mov_b32 s40, {POLL_MAX}")
    a("L_kv_p1:")
    poll_once()
    a("s_cmp_lg_u32 s47, 0")
    a("s_cbranch_scc1 L_kv_first")
    a("s_cmp_eq_u32 vcc_hi, -1")
    a("s_cselect_b32 s48, s45, 0")
    a("s_cmp_eq_u32 s48, 0")
    a("s_cbranch_scc1 L_kv_p1")
    a("L_kv_first:")
    a("s_ff1_i32_b32 s48, s45")
    a("s_add_u32 s49, s48, 1")
    pub(W_GO, 49)
    stamp(a, 7)
    a("s_lshl_b32 s46, 1, s48")
    a(f"s_mul_i32 s48, s48, {4*TKV}")
    a(f"s_add_u32 s48, s48, {2*TKV}")
    for i in range(5):
        a(f"s_mov_b32 m0, {i*1024}")
        a("s_nop 0")
        a("buffer_load_dwordx4 v2, s[28:31], s48 offen sc1 lds")
        if i < 4: a("s_add_u32 s48, s48, 1024")
    a("s_mov_b32 s50, 1")
    a(f"s_mov_b32 s51, {LPAIR}")
    a("L_kv_next:")
    a("s_andn2_b32 s48, s45, s46")
    a("s_cbranch_scc0 L_kv_poll")
    a("s_ff1_i32_b32 s48, s48")
    a("s_bitset1_b32 s46, s48")
    a(f"s_mul_i32 s48, s48, {4*TKV}")
    for i in range(10):
        a(f"s_add_u32 m0, s51, {i*1024 + (64 if i >= 5 else 0)}")
        if i: a("s_add_u32 s48, s48, 1024")
        else: a("s_nop 0")
        a("buffer_load_dwordx4 v2, s[28:31], s48 offen sc1 lds")
    a(f"s_add_u32 s51, s51, {2*LPAIR}")
    a("s_cmp_eq_u32 s50, 1")
    a("s_cbranch_scc0 L_kv_w20")
    a("s_waitcnt vmcnt(10)")
    pub(W_PROG, 50)
    a("s_mov_b32 s50, 2")
    a("s_branch L_kv_next")
    a("L_kv_w20:")
    a("s_waitcnt vmcnt(20)")
    a("s_sub_u32 s49, s50, 1")
    pub(W_PROG, 49)
    a("s_add_u32 s50, s50, 1")
    a("s_branch L_kv_next")
    a("L_kv_poll:")
    a("s_waitcnt vmcnt(0)")
    pub(W_PROG, 50)
    a("s_cmp_eq_u32 s50, 16")
    a("s_cbranch_scc1 L_kv_done")
    poll_once()
    a("s_branch L_kv_next")
    a("L_kv_done:")
    stamp(a, 8)
    a("v_lshlrev_b32 v5, 7, v1")
    a(f"v_add_u32 v5, {192*128}, v5")
    poll(a, 5, 6, sleep=4)
    a(f"s_setprio {OPT.get('pf2', 3)}")
    a("s_lshr_b32 s40, s44, 1")
    a("s_lshl_b32 s40, s40, 5")
    a(f"s_add_u32 s40, s40, s{sSLOT}")
    a("s_mul_i32 s41, s40, 373")
    a("s_lshr_b32 s41, s41, 12")
    a("s_mul_i32 s42, s41, 11")
    a("s_sub_u32 s42, s40, s42")
    a("s_lshl_b32 s41, s41, 3")
    a(f"s_add_u32 s41, s41, s{sXCD}")
    a("s_cmp_ge_u32 s41, %d" % (0 if OPT.get('nof2') else 33))
    a("s_cbranch_scc1 L_wo")
    a("s_and_b32 s45, s44, 1")
    a("s_mul_i32 s47, s41, 65")
    a("s_mul_i32 s48, s45, 33")
    a("s_add_u32 s47, s47, s48")
    a("s_lshl_b32 s47, s47, 10")
    a(f"s_add_u32 s47, s47, {SEQ_OFF}")
    make_srd(a, 28, pWS, "s47", 33*1024)
    a("s_and_b32 s43, s41, 1")
    a("s_lshl_b32 s47, s45, 1")
    a("s_add_u32 s47, s47, s43")
    a("s_mul_i32 s48, s47, 11")
    a("s_add_u32 s48, s48, s42")
    a(f"s_mul_i32 s48, s48, {33*1024}")
    a(f"s_add_u32 s48, s48, {AB_OFF}")
    make_srd(a, 32, pWS, "s48", 33*1024)
    make_srd(a, 36, pOUT, 0, OUT_SIZE)
    D = OPT.get('f2d', 28); FB = 32; AC = 8
    a("s_cmp_lg_u32 s47, 0")
    a("s_cbranch_scc1 L_f2_nox")
    a(f"s_mov_b32 s49, {32*1024}")
    a("buffer_load_dwordx4 v[24:27], v2, s[28:31], s49 offen sc1")
    a("buffer_load_dwordx4 v[28:31], v2, s[32:35], s49 offen sc1")
    a("L_f2_nox:")
    def issue2(k):
        b = FB + (k % D) * 8
        if k % 4 == 0: a(f"s_mov_b32 s49, {(k//4)*4096}")
        a(f"buffer_load_dwordx4 {vr(b,4)}, v2, s[28:31], s49 offen offset:{(k%4)*1024} sc1")
        a(f"buffer_load_dwordx4 {vr(b+4,4)}, v2, s[32:35], s49 offen offset:{(k%4)*1024} sc1")
    for k in range(D): issue2(k)
    stamp(a, 9)
    for k in range(32):
        a(f"s_waitcnt vmcnt({2*(min(32, k+D)-k-1)})")
        b = FB + (k % D) * 8
        d = vr(AC, 16)
        a(f"v_mfma_f32_32x32x16_bf16 {d}, {vr(b,4)}, {vr(b+4,4)}, {'0' if k == 0 else d}")
        if k + D < 32: issue2(k + D)
    a("s_cmp_lg_u32 s47, 0")
    a("s_cbranch_scc1 L_f2_nox2")
    a(f"v_mfma_f32_32x32x16_bf16 {vr(AC,16)}, v[24:27], v[28:31], {vr(AC,16)}")
    a("L_f2_nox2:")
    a(f"v_mov_b32 v3, {LDS_PROG}")
    a("L_f2_dead:")
    a("ds_read_b128 v[40:43], v3 offset:16")
    a("s_waitcnt lgkmcnt(0)")
    a("v_min3_u32 v40, v40, v41, v42")
    a("v_min_u32 v40, v40, v43")
    a("s_nop 0")
    a("v_readfirstlane_b32 s48, v40")
    a("s_nop 0")
    a("s_cmp_eq_u32 s48, 0")
    a("s_cbranch_scc1 L_f2_dead")
    a("s_lshl_b32 s48, s44, 11")
    a("v_add_u32 v4, s48, v2")
    a("s_lshl_b32 s49, s44, 2")
    a("v_add_u32 v5, s49, v3")
    a("s_xor_b32 s48, s48, 2048")
    a("s_xor_b32 s49, s49, 4")
    a("v_add_u32 v6, s48, v2")
    a("v_add_u32 v7, s49, v3")
    a("s_cmp_lg_u32 s45, 0")
    a("s_cbranch_scc1 L_f2_h1")
    a("ds_write_b128 v4, v[16:19]")
    a("ds_write_b128 v4, v[20:23] offset:1024")
    a("s_branch L_f2_x")
    a("L_f2_h1:")
    a("ds_write_b128 v4, v[8:11]")
    a("ds_write_b128 v4, v[12:15] offset:1024")
    a("L_f2_x:")
    a("ds_write_b32 v5, v3 offset:32")
    a("v_and_b32 v5, 31, v1")
    a("v_lshrrev_b32 v4, 5, v1")
    a("s_lshr_b32 s47, s41, 1")
    a("s_lshl_b32 s47, s47, 6")
    a("s_add_u32 s47, s47, s43")
    a("s_lshl_b32 s48, s45, 5")
    a("s_add_u32 s47, s47, s48")
    a("s_cmp_ge_u32 s42, 6")
    a("s_cselect_b32 s48, 383, 0")
    a("s_lshl_b32 s49, s42, 6")
    a("s_sub_u32 s48, s49, s48")
    a("v_lshl_add_u32 v5, v5, 1, s48")
    a(f"v_mov_b32 v46, {HUGE}")
    a("v_lshlrev_b32 v47, 1, v5")
    a("v_add_u32 v40, 1280, v47")
    a("v_cmp_ge_u32 vcc, 320, v5")
    a("v_sub_u32 v41, 2560, v47")
    a("v_add_u32 v47, -1, v5")
    a("v_cndmask_b32 v40, v46, v40, vcc")
    a("v_cmp_gt_u32 vcc, 319, v47")
    a("v_lshl_add_u32 v47, v4, 3, s47")
    a("v_mul_u32_u24 v47, 2560, v47")
    a("v_cndmask_b32 v41, v46, v41, vcc")
    a(f"v_sub_u32 v44, {(2048-22)*2560}, v47")
    a("v_add_u32 v42, v44, v40")
    a("v_add_u32 v43, v44, v41")
    a("v_add_u32 v40, v47, v40")
    a("v_add_u32 v41, v47, v41")
    a("L_f2_wait:")
    a("ds_read_b32 v45, v7 offset:32")
    a("s_waitcnt lgkmcnt(0)")
    a("v_readfirstlane_b32 s48, v45")
    a("s_nop 0")
    a("s_cmp_lg_u32 s48, 0")
    a("s_cbranch_scc1 L_f2_got")
    a("s_sleep 2")
    a("s_branch L_f2_wait")
    a("L_f2_got:")
    a("s_cmp_lg_u32 s45, 0")
    a("s_cbranch_scc1 L_f2_h1b")
    a("ds_read_b128 v[16:19], v6")
    a("ds_read_b128 v[20:23], v6 offset:1024")
    a("s_branch L_f2_y")
    a("L_f2_h1b:")
    a("ds_read_b128 v[8:11], v6")
    a("ds_read_b128 v[12:15], v6 offset:1024")
    a("L_f2_y:")
    a("s_waitcnt lgkmcnt(0)")
    for r in range(0, 8, 2):
        a(f"v_pk_add_f32 {vr(48+r,2)}, {vr(8+r,2)}, {vr(16+r,2)}")
        a(f"v_pk_add_f32 {vr(56+r,2)}, {vr(8+r,2)}, {vr(16+r,2)} neg_lo:[0,1] neg_hi:[0,1]")
    for r in range(4):
        a(f"v_cvt_pk_bf16_f32 v{48+r}, v{48+2*r}, v{48+2*r+1}")
        a(f"v_cvt_pk_bf16_f32 v{56+r}, v{56+2*r}, v{56+2*r+1}")
    a("s_cmp_eq_u32 s41, 32")
    a("s_cbranch_scc1 L_f2_nyq")
    for r in range(8):
        ro = (r & 3) + 8 * (r >> 2)
        st = "buffer_store_short_d16_hi" if r & 1 else "buffer_store_short"
        a(f"s_mov_b32 s47, {ro*5120}")
        a(f"s_mov_b32 s48, {(11-ro)*5120}")
        a(f"{st} v{56+r//2}, v40, s[36:39], s47 offen{FLF()}")
        a(f"{st} v{48+r//2}, v41, s[36:39], s47 offen{FLF()}")
        if r == 0:
            a(f"v_add_u32 v44, {11*5120}, v42")
            a(f"v_add_u32 v45, {11*5120}, v43")
            a(f"{st} v48, v44, s[36:39], 0 offen{FLF()}")
            a(f"{st} v56, v45, s[36:39], 0 offen{FLF()}")
        else:
            a(f"{st} v{48+r//2}, v42, s[36:39], s48 offen{FLF()}")
            a(f"{st} v{56+r//2}, v43, s[36:39], s48 offen{FLF()}")
    a("s_branch L_f2_fin")
    a("L_f2_nyq:")
    a("s_cmp_lg_u32 s45, 0")
    a("s_cbranch_scc1 L_wo")
    a("v_cmp_eq_u32 vcc, 0, v4")
    a("s_nop 1")
    a("v_cndmask_b32 v40, v46, v40, vcc")
    a("v_cndmask_b32 v41, v46, v41, vcc")
    a(f"buffer_store_short v56, v40, s[36:39], 0 offen{FLF()}")
    a(f"buffer_store_short v48, v41, s[36:39], 0 offen{FLF()}")
    a("L_f2_fin:")
    if OPT.get('wb'):
        a("s_waitcnt vmcnt(0)")
        a("buffer_wbl2 sc1")
    a("L_wo:")
    stamp(a, 10)
    a("s_lshr_b32 s40, s26, 3")
    a("s_lshl_b32 s40, s40, 2")
    a("s_add_u32 s40, s40, s44")
    a(f"s_mul_i32 s40, s40, {50*1024}")
    a(f"s_add_u32 s40, s40, {WO_OFF}")
    make_srd(a, 28, pWS, "s40", 50*1024)
    a("s_waitcnt vmcnt(0)")
    for k in range(50):
        if k % 4 == 0: a(f"s_mov_b32 s49, {(k//4)*4096}")
        a(f"buffer_load_dwordx4 {vr(56+4*k,4)}, v2, s[28:31], s49 offen offset:{(k%4)*1024} sc1")

def tail(a):
    a("L_B_done:")
    a("s_and_b32 s40, s26, 7")
    a("s_lshl_b32 s41, s27, 3")
    a("s_add_u32 s41, s41, s40")
    a(f"s_mul_i32 s42, s41, {32*1280}")
    a(f"s_add_u32 s42, s42, {O_OFF}")
    make_srd(a, 28, pWS, "s42", 32*1280)
    a("v_and_b32 v4, 31, v1")
    a("s_lshl_b32 s42, s27, 7")
    a("s_lshr_b32 s40, s40, 1")
    a("s_add_u32 s42, s42, s40")
    a(f"s_add_u32 s42, s42, {FB}")
    a("v_lshl_add_u32 v4, v4, 2, s42")
    a("v_lshlrev_b32 v4, 7, v4")
    a("s_waitcnt vmcnt(0)")
    stamp(a, 12)
    a("s_barrier")
    stamp(a, 1)
    poll(a, 4, 6, sleep=OPT.get('sl', 0))
    stamp(a, 13)
    a("s_lshl_b32 s40, s44, 10")
    for j in range(10):
        a("s_mov_b32 m0, s40")
        a("s_nop 0")
        a("buffer_load_dwordx4 v2, s[28:31], s40 offen sc1 lds")
        if j < 9: a("s_add_u32 s40, s40, 4096")
    a("v_and_b32 v3, 31, v1")
    a("v_lshrrev_b32 v4, 5, v1")
    a("v_mul_u32_u24 v5, 2560, v4")
    a("v_lshl_add_u32 v5, v3, 3, v5")
    a("v_add_u32 v5, 1024, v5")
    make_srd(a, 32, pOUT, 0, OUT_SIZE)
    a("s_lshl_b32 s41, s41, 5")
    a("v_add_u32 v6, s41, v3")
    a("v_mul_u32_u24 v6, 2560, v6")
    a("s_lshr_b32 s42, s26, 3")
    a("s_mul_i32 s42, s42, 320")
    a("s_waitcnt vmcnt(0)")
    a("s_barrier")
    stamp(a, 14)
    if lib.STAMP: a("s_waitcnt lgkmcnt(0)")
    A5, AM, OB = 8, 24, 40
    a("s_mul_i32 s43, s44, 12800")
    a("v_add_u32 v7, s43, v2")
    def rd(buf, kap, base=None):
        b = OB + 4*buf
        if base is not None: return f"ds_read_b128 {vr(b,4)}, v{base} offset:{kap*1280}"
        if kap < 32: return f"ds_read_b128 {vr(b,4)}, v2 offset:{kap*1280}"
        o = (kap - 32) * 5120 // 8
        return None
    def rd_main(buf, kap):
        b = OB + 4*buf
        if kap < 32: return [f"ds_read_b128 {vr(b,4)}, v2 offset:{kap*1280}"]
        g = kap - 32
        return [f"ds_read_b64 {vr(b,2)}, v5 offset:{g*5120}", f"ds_read_b64 {vr(b+2,2)}, v5 offset:{g*5120+1280}"]
    def stream(steps):
        n = len(steps); cnt = [0]*n
        PF = 3
        for k in range(PF):
            r = steps[k][0](k % 4); cnt[k] = len(r)
            for x in r: a(x)
        for k in range(n):
            out = sum(cnt[k+1:min(n, k+PF)])
            a(f"s_waitcnt lgkmcnt({out})")
            d = vr(steps[k][1], 16)
            a(f"v_mfma_f32_32x32x16_bf16 {d}, {vr(steps[k][2],4)}, {vr(OB+4*(k%4),4)}, {'0' if steps[k][3] else d}")
            if k + PF < n:
                r = steps[k+PF][0]((k+PF) % 4); cnt[k+PF] = len(r)
                for x in r: a(x)
            if k == 13:
                for j in range(4): a(f"ds_write_b128 v3, {vr(A5+4*j,4)} offset:{j*1024}")
                cnt[k+PF] += 4
    main = [((lambda kap: lambda buf: rd_main(buf, kap))(kap), AM, 56 + 4*(10+kap), kap == 0) for kap in range(40)]
    a("s_lshl_b32 s43, s44, 12")
    a("s_add_u32 s43, s43, 40960")
    a("v_add_u32 v3, s43, v2")
    a("s_cmp_eq_u32 s44, 3")
    a("s_cbranch_scc1 L_tail3")
    q5 = [((lambda i: lambda buf: [f"ds_read_b128 {vr(OB+4*buf,4)}, v7 offset:{i*1280}"])(i), A5, 56 + 4*i, i == 0) for i in range(10)]
    stream(q5 + main)
    a("s_branch L_tail_join")
    a("L_tail3:")
    q5 = [((lambda i: lambda buf: rd_main(buf, 30 + i))(i), A5, 56 + 4*i, i == 0) for i in range(10)]
    stream(q5 + main)
    a("L_tail_join:")
    stamp(a, 11)
    a("s_waitcnt lgkmcnt(0)")
    a("s_barrier")
    a("s_lshl_b32 s43, s44, 10")
    a("s_add_u32 s43, s43, 40960")
    a("v_add_u32 v3, s43, v2")
    for i in range(4): a(f"ds_read_b128 {vr(OB+4*i,4)}, v3 offset:{i*4096}")
    a("s_lshl_b32 s43, s44, 6")
    a("s_add_u32 s43, s43, s42")
    a("v_lshl_add_u32 v7, v4, 4, v6")
    a("s_nop 2")
    for r in range(8): a(f"v_cvt_pk_bf16_f32 v{AM+r}, v{AM+2*r}, v{AM+2*r+1}")
    a("s_nop 1")
    for h2 in range(2):
        a(f"v_permlane32_swap_b32 v{AM+4*h2}, v{AM+4*h2+2}")
        a(f"v_permlane32_swap_b32 v{AM+4*h2+1}, v{AM+4*h2+3}")
    for h2 in range(2):
        a(f"buffer_store_dwordx4 {vr(AM+4*h2,4)}, v7, s[32:35], s43 offen offset:{32*h2}{FLP()}")
    a("s_waitcnt lgkmcnt(0)")
    for i in range(1, 4):
        a(f"v_pk_add_f32 {vr(OB,2)}, {vr(OB,2)}, {vr(OB+4*i,2)}")
        a(f"v_pk_add_f32 {vr(OB+2,2)}, {vr(OB+2,2)}, {vr(OB+4*i+2,2)}")
    a("s_lshl_b32 s43, s44, 4")
    a("s_add_u32 s43, s43, s42")
    a("v_lshl_add_u32 v7, v4, 3, v6")
    a(f"v_cvt_pk_bf16_f32 v{OB}, v{OB}, v{OB+1}")
    a(f"v_cvt_pk_bf16_f32 v{OB+1}, v{OB+2}, v{OB+3}")
    a(f"buffer_store_dwordx2 {vr(OB,2)}, v7, s[32:35], s43 offen offset:256{FLP()}")
    a("L_end:")
    if lib.STAMP:
        a("s_waitcnt vmcnt(0)")
        stamp(a, 15); stamp_real(a, 17)
        stamp_flush(a, 18, pWS, sWAVE, 0)
    a("L_exit:")
    a("s_endpgm")

KNAME = "concat_heads__mha_block__spectral_fnet__prompt_kernel"
def kernel(a):
    kernel_header(a, KNAME)
    a("s_cmp_ge_u32 s2, 256")
    a("s_cbranch_scc1 L_exit")
    if lib.STAMP:
        for i in range(18): a(f"s_mov_b32 s{60+2*i}, 0")
    stamp(a, 0); stamp_real(a, 16)
    a("s_load_dwordx8 s[4:11], s[0:1], 0")
    a("s_load_dwordx4 s[12:15], s[0:1], 64")
    a("s_load_dwordx2 s[16:17], s[0:1], 80")
    a("v_lshrrev_b32 v1, 6, v0")
    a(f"s_and_b32 s{sXCD}, s2, 7")
    a(f"v_readfirstlane_b32 s{sWAVE}, v1")
    a(f"s_lshr_b32 s{sSLOT}, s2, 3")
    a("v_and_b32 v1, 63, v0")
    a(f"s_and_b32 s26, s{sXCD}, 3")
    a("s_lshl_b32 s26, s26, 2")
    a(f"s_and_b32 s27, s{sSLOT}, 3")
    a("s_add_u32 s26, s26, s27")
    a(f"s_lshr_b32 s27, s{sXCD}, 2")
    a("s_mul_i32 s27, s27, 6")
    a(f"s_lshr_b32 s40, s{sSLOT}, 2")
    a("s_add_u32 s27, s27, s40")
    a(f"s_lshl_b32 s40, s2, 3")
    a(f"s_add_u32 s40, s40, s{sWAVE}")
    a("s_waitcnt lgkmcnt(0)")
    make_srd(a, sFL, pWS, FL_OFF, FL_SIZE)
    a("s_cmp_lg_u32 s40, 7")
    a("s_cbranch_scc1 L_no_nonce")
    a("s_memrealtime s[40:41]")
    make_srd(a, 28, pDBG, 0, 256)
    a("s_waitcnt lgkmcnt(0)")
    a("s_or_b32 s40, s40, 1")
    a("v_mov_b32 v2, s40")
    a("v_mov_b32 v3, s41")
    a("v_mov_b32 v4, 0")
    a("buffer_store_dwordx2 v[2:3], v4, s[28:31], 0 offen sc1")
    a("L_no_nonce:")
    a(f"s_cmp_lg_u32 s{sWAVE}, 0")
    a("s_cbranch_scc1 L_no_init")
    a(f"v_mov_b32 v2, {LDS_PROG}")
    a("v_mov_b32 v4, 0")
    a("v_mov_b32 v5, 0")
    for i in range(8): a(f"ds_write_b64 v2, v[4:5] offset:{8*i}")
    a("s_waitcnt lgkmcnt(0)")
    a("L_no_init:")
    if OPT.get('touch'):
        a(f"s_cmp_lg_u32 s{sWAVE}, 1")
        a("s_cbranch_scc1 L_no_code")
        a("s_getpc_b64 s[40:41]")
        a("L_pc:")
        a(f"s_sub_u32 s40, s40, L_pc-{KNAME}")
        a("s_subb_u32 s41, s41, 0")
        a(f"s_and_b32 s42, s{sSLOT}, 7")
        a("s_lshl_b32 s42, s42, 12")
        a("v_lshlrev_b32 v2, 4, v1")
        a("v_add_u32 v2, s42, v2")
        a(f"v_min_u32 v2, L_exit-{KNAME}-3072-16, v2")
        for i in range(4): a(f"global_load_dwordx4 v[164:167], v2, s[40:41] offset:{i*1024}")
        a("L_no_code:")
        a(f"s_cmp_lg_u32 s{sWAVE}, 2")
        a("s_cbranch_scc1 L_no_tlb")
        make_srd(a, 28, pWS, 0, FL_OFF + FL_SIZE)
        a("v_mul_u32_u24 v2, 0x44000, v1")
        a("buffer_load_dword v164, v2, s[28:31], 0 offen sc1")
        make_srd(a, 28, pOUT, 0, OUT_SIZE)
        a("v_mul_u32_u24 v2, 0x14000, v1")
        a("buffer_load_dword v165, v2, s[28:31], 0 offen sc1")
        a("L_no_tlb:")
    a(f"s_cmp_ge_u32 s{sSLOT}, 24")
    a("s_cbranch_scc1 L_prep")
    a(f"s_cmp_lt_u32 s{sWAVE}, 4")
    a("s_cbranch_scc1 L_compute")
    gemm_loader(a)
    gemm_compute(a)
    prep(a)
    a_done(a)
    attention(a)
    aux(a)
    tail(a)
    return kernel_desc(KNAME, 256, 100)

HEADER = open('concat_heads__mha_block__spectral_fnet__prompt.s.ref').read().split("; Override")[0]
def main(out):
    a = Asm()
    a('.amdgcn_target "amdgcn-amd-amdhsa--gfx950"')
    a(".text")
    d = kernel(a)
    txt = HEADER + "; @launch grid=(256,1,1) block=(512,1,1) lds=163840\n" + a.text() + '.section .rodata,"a"\n.p2align 6\n' + d
    open(out, "w").write(txt)

if __name__ == "__main__":
    for x in sys.argv[2:]:
        if x == "stamp": lib.STAMP = True
        elif x == "gst": lib.STAMP = True; lib.STAMPSET = 1
        elif x == "cst": lib.STAMP = True; lib.STAMPSET = 2
        else:
            k, _, v = x.partition("=")
            OPT[k] = int(v) if v else 1
    main(sys.argv[1] if len(sys.argv) > 1 else "v9.s")
```

```python
import sys, struct
from lib import *
import lib

TKV = 2560; KV_HEAD = 64*TKV; KV_OFF = 0; KV_SIZE = 32*KV_HEAD
TQ = 1280; Q_HEAD = 64*TQ; Q_OFF = KV_SIZE; Q_SIZE = 32*Q_HEAD
O_OFF = Q_OFF + Q_SIZE; O_SIZE = 64*32*1280
SEQ_OFF = O_OFF + O_SIZE; SEQ_SIZE = 33*65*1024
AB_OFF = SEQ_OFF + SEQ_SIZE; AB_SIZE = 4*11*33*1024
WO_OFF = AB_OFF + AB_SIZE; WO_SIZE = 16*50*1024
FL_OFF = 16*1024*1024; FL_SIZE = 1280*128
FA, FB = 0, 256
X_SIZE = 2048*1280; OUT_SIZE = 2048*2560
HUGE = 0x40000000
QSCALE = (20 ** -0.5) * 1.4426950408889634
NDMA = 155; LPAIR = 5184
LDS_PROG = 31*LPAIR
def lds_tile(t): return ((t-2)>>1)*LPAIR + ((t-2)&1)*TKV
def need(tile): return ((tile-1)*TKV + 4095)//4096
NEED = [need(4), need(7), need(15), need(23), 39]
POLL_MAX = 200000
def f32bits(x): return struct.unpack('<I', struct.pack('<f', x))[0]
OPT = {}
FLS = ['', ' sc1', ' nt', ' sc0 sc1', ' sc1 nt']
def FLP(): return FLS[OPT.get('flp', 0)]
def FLF(): return FLS[OPT.get('flf', 1)]

sWAVE = 3
pX, pW, pWO, pBX, pOUT, pDBG, pWS = 4, 6, 8, 10, 12, 14, 16
sNON = 18
sFL = 20
sXCD, sSLOT = 24, 25
STG = 36864
NS = 4

def poll(a, vaddr, vtmp, cnt=40, sleep=1):
    l = a.label("L_poll"); d = a.label("L_pollok")
    a(f"s_mov_b32 s{cnt}, {POLL_MAX}")
    a(f"{l}:")
    a(f"buffer_load_dwordx2 {vr(vtmp,2)}, v{vaddr}, {sr(sFL,4)}, 0 offen sc1")
    a("s_waitcnt vmcnt(0)")
    a(f"v_cmp_ne_u64 vcc, {sr(sNON,2)}, {vr(vtmp,2)}")
    a(f"s_sub_u32 s{cnt}, s{cnt}, 1")
    a(f"s_cbranch_vccz {d}")
    a(f"s_cmp_eq_u32 s{cnt}, 0")
    a(f"s_cbranch_scc1 {d}")
    if sleep: a(f"s_sleep {sleep}")
    a(f"s_branch {l}")
    a(f"{d}:")

def get_nonce(a, vt, srd=28, cnt=40):
    make_srd(a, srd, pDBG, 0, 256)
    l = a.label("L_non"); d = a.label("L_nonok")
    a(f"v_mov_b32 v{vt}, 0")
    a(f"s_mov_b32 s{cnt}, {POLL_MAX}")
    a(f"{l}:")
    a(f"buffer_load_dwordx2 {vr(vt+2,2)}, v{vt}, {sr(srd,4)}, 0 offen sc1")
    a("s_waitcnt vmcnt(0)")
    a(f"v_readfirstlane_b32 s{sNON}, v{vt+2}")
    a(f"v_readfirstlane_b32 s{sNON+1}, v{vt+3}")
    a(f"s_sub_u32 s{cnt}, s{cnt}, 1")
    a(f"s_cmp_lg_u32 s{sNON}, 0")
    a(f"s_cbranch_scc1 {d}")
    a(f"s_cmp_eq_u32 s{cnt}, 0")
    a(f"s_cbranch_scc1 {d}")
    a("s_sleep 2")
    a(f"s_branch {l}")
    a(f"{d}:")

def set_flag(a, sidx, vt):
    for i in range(4): a(f"v_mov_b32 v{vt+i}, s{sNON+(i&1)}")
    a(f"v_lshlrev_b32 v{vt+4}, 4, v1")
    a("s_mov_b64 exec, 0xff")
    a(f"buffer_store_dwordx4 {vr(vt,4)}, v{vt+4}, {sr(sFL,4)}, s{sidx} offen sc1")
    a("s_mov_b64 exec, -1")

def gemm_loader(a):
    sA, sB = 28, 32
    a("L_loader:")
    a("s_mul_i32 s40, s26, 163840")
    make_srd(a, sA, pX, "s40", 163840)
    a(f"s_sub_u32 s44, s{sWAVE}, 4")
    a("v_lshrrev_b32 v2, 3, v1")
    a("s_lshl_b32 s40, s44, 3")
    a("v_add_u32 v2, s40, v2")
    a("v_mul_u32_u24 v2, 1280, v2")
    a("v_lshrrev_b32 v3, 4, v1")
    a("s_and_b32 s40, s44, 1")
    a("s_lshl_b32 s40, s40, 2")
    a("v_or_b32 v4, s40, v3")
    a("v_and_b32 v5, 7, v1")
    a("v_xor_b32 v4, v4, v5")
    a("v_lshl_add_u32 v10, v4, 4, v2")
    a("s_lshl_b32 s45, s44, 10")
    a(f"s_lshr_b32 s40, s{sSLOT}, 2")
    a(f"s_mul_i32 s40, s40, {OPT.get('ra', 1)}")
    a(f"s_and_b32 s41, s{sSLOT}, 3")
    a(f"s_mul_i32 s41, s41, {OPT.get('rb', 1)}")
    a("s_add_u32 s40, s40, s41")
    a(f"s_mul_i32 s41, s{sXCD}, {OPT.get('rc', 3)}")
    a("s_add_u32 s40, s40, s41")
    a("s_mul_i32 s41, s40, 6554")
    a("s_lshr_b32 s41, s41, 16")
    a("s_mul_i32 s41, s41, 10")
    a("s_sub_u32 s47, s40, s41")
    def issue_x(c):
        sl = c % NS
        a("s_lshl_b32 s48, s47, 7")
        for j in range(4):
            a(f"s_add_u32 m0, s45, {sl*STG + j*4096}")
            if j: a(f"s_add_u32 s48, s48, 40960")
            else: a("s_mul_i32 s49, s47, 245760")
            a(f"buffer_load_dwordx4 v10, {sr(sA,4)}, s48 offen lds")
    def issue_w(c):
        sl = c % NS
        for i in range(5):
            a(f"s_add_u32 m0, s46, {sl*STG + 16384 + i*1024 - i*64}")
            if i == 0:
                a("s_add_u32 s47, s47, 1")
            elif i == 1:
                a("s_cmp_eq_u32 s47, 10")
                a("s_cmov_b32 s47, 0")
            else: a("s_nop 0")
            a(f"buffer_load_dwordx4 v11, {sr(sB,4)}, s49 offen offset:{i*64} lds")
    def issue(c): issue_x(c); issue_w(c)
    stamp(a, 12, 1)
    issue_x(0)
    stamp(a, 13, 1)
    a("s_mul_i32 s40, s27, 320")
    a("s_sub_u32 s41, 2457600, s40")
    make_srd(a, sB, pW, "s40", "s41")
    a("s_lshl_b32 s40, s44, 4")
    a("v_lshrrev_b32 v2, 2, v1")
    a("v_add_u32 v2, s40, v2")
    a("v_mul_u32_u24 v2, 3840, v2")
    a("v_and_b32 v3, 3, v1")
    a("v_lshl_add_u32 v11, v3, 4, v2")
    a("s_mul_i32 s46, s44, 5120")
    issue_w(0)
    stamp(a, 14, 1)
    issued = 1
    pre = OPT.get('pre', 2)
    for c in range(1, pre): issue(c); issued += 1
    for c in range(10):
        a(f"s_waitcnt vmcnt({9*(issued-c-1)})")
        if c in (0, 9): stamp(a, {0: 2, 9: 5}[c])
        stamp(a, c + 1, 1)
        a("s_barrier")
        if c == 0: stamp(a, 11, 1)
        while issued < min(10, c + 1 + (OPT.get('dep', 2) if c < OPT.get('depsw', 10) else 3)): issue(issued); issued += 1
    get_nonce(a, 2)
    a("s_branch L_A_done")

AX, AWA, EA = 8, 156, 16
FR = 24
ACC = 72
def gemm_loop(a, isv):
    def reads(kk):
        sl, ks = divmod(kk, 4); so = sl * STG
        b = FR + (kk & 1) * 24
        r = [f"ds_read_b128 {vr(b,4)}, v{AX+ks} offset:{so}"]
        for T in range(5):
            for t in range(2):
                o = so + ks*5120 + t*256
                if isv: r.append(f"ds_read_b64_tr_b16 {vr(b+4+4*T+2*t,2)}, v{AWA} offset:{o + 1024*T}")
                else: r.append(f"ds_read_b64_tr_b16 {vr(b+4+4*T+2*t,2)}, v{AWA+T} offset:{o}")
        return r
    def mfma(kk, T):
        b = FR + (kk & 1) * 24
        d = vr(ACC + 16*T, 16); w = vr(b + 4 + 4*T, 4); x = vr(b, 4)
        return f"v_mfma_f32_32x32x16_bf16 {d}, {x}, {w}, {d}" if isv else f"v_mfma_f32_32x32x16_bf16 {d}, {w}, {x}, {d}"
    for r in range(80): a(f"v_mov_b32 v{ACC+r}, 0")
    a(f"s_mov_b32 s40, {2*STG}")
    a("s_mov_b32 s41, 5")
    stamp(a, 1)
    a("s_barrier")
    stamp(a, 2)
    for r in reads(0): a(r)
    lp = a.label("L_gemm"); last = a.label("L_gemm_last"); done = a.label("L_gemm_done")
    a(".p2align 3")
    a(f"{lp}:")
    for kk in range(8):
        a("s_waitcnt lgkmcnt(0)")
        a(mfma(kk, 0))
        if kk == 7:
            a("s_sub_u32 s41, s41, 1")
            a("s_cmp_eq_u32 s41, 0")
            a(f"s_cbranch_scc1 {last}")
            for i in range(4): a(f"v_add_u32 v{AX+i}, s40, v{AX+i}")
            for i in range(1 if isv else 5): a(f"v_add_u32 v{AWA+i}, s40, v{AWA+i}")
            a("s_sub_u32 s40, 0, s40")
        if kk in (3, 7): a("s_barrier")
        nx = reads((kk + 1) & 7)
        for r in nx[0:3]: a(r)
        a(mfma(kk, 1))
        for r in nx[3:6]: a(r)
        a(mfma(kk, 2))
        for r in nx[6:9]: a(r)
        a(mfma(kk, 3))
        for r in nx[9:11]: a(r)
        a(mfma(kk, 4))
    a(f"s_branch {lp}")
    a(f"{last}:")
    for T in range(1, 5): a(mfma(7, T))
    stamp(a, 5)

def gemm_compute(a):
    a("L_compute:")
    a("v_and_b32 v2, 31, v1")
    a("v_lshrrev_b32 v3, 5, v1")
    a(f"s_lshl_b32 s40, s{sWAVE}, 5")
    a("v_add_u32 v4, s40, v2")
    a("v_lshlrev_b32 v4, 7, v4")
    a("v_bfe_u32 v5, v1, 1, 3")
    a("v_xor_b32 v5, v5, v3")
    for ks in range(4):
        a(f"v_xor_b32 v6, {2*ks}, v5")
        a(f"v_lshl_add_u32 v{AX+ks}, v6, 4, v4")
    a("v_bfe_u32 v4, v1, 2, 2")
    a("v_lshl_add_u32 v4, v3, 3, v4")
    a("v_lshlrev_b32 v4, 6, v4")
    a("v_add_u32 v4, 16384, v4")
    a("v_and_b32 v5, 3, v1")
    a("v_bfe_u32 v6, v1, 4, 1")
    a("v_lshl_add_u32 v5, v6, 2, v5")
    a(f"v_lshl_add_u32 v{AWA}, v5, 3, v4")
    a("s_lshl_b32 s42, s26, 2")
    a(f"s_add_u32 s42, s42, s{sWAVE}")
    a("s_and_b32 s43, s27, 3")
    a("s_lshl_b32 s43, s43, 3")
    a("s_cmp_ge_u32 s27, 8")
    a("s_cbranch_scc1 L_compute_v")
    for T in range(5):
        if T < 4: a(f"v_add_u32 v6, {10*T+1}, v5")
        else:
            a("v_lshrrev_b32 v6, 1, v5")
            a("v_mul_u32_u24 v6, 10, v6")
            a("v_and_b32 v7, 1, v5")
            a("v_mul_u32_u24 v7, 9, v7")
            a("v_add_u32 v6, v6, v7")
        a("v_and_b32 v7, 7, v6")
        a("v_lshl_add_u32 v7, v7, 3, v4")
        a("v_lshrrev_b32 v6, 3, v6")
        a(f"v_lshl_add_u32 v{AWA+T}, v6, 10, v7")
    a("s_cmp_ge_u32 s27, 4")
    for reg, k, q in [(44, KV_HEAD, Q_HEAD), (45, TKV, TQ), (46, f32bits(1.0), f32bits(QSCALE)), (47, KV_OFF, Q_OFF), (48, KV_SIZE, Q_SIZE)]:
        a(f"s_mov_b32 s{reg}, {q}")
        a(f"s_cmov_b32 s{reg}, {k}")
    make_srd(a, 28, pWS, "s47", "s48")
    a("s_mul_i32 s47, s43, s44")
    a("s_mul_i32 s48, s42, s45")
    a("s_add_u32 s47, s47, s48")
    a(f"v_lshlrev_b32 v{EA}, 4, v1")
    a("v_mul_lo_u32 v4, v3, s44")
    a("v_lshl_add_u32 v4, v2, 3, v4")
    a(f"v_add_u32 v{EA+1}, 1024, v4")
    gemm_loop(a, False)
    a("s_mov_b32 s48, s47")
    a("s_nop 7")
    for T in range(5):
        b = ACC + 16*T
        if T == 4: a("s_nop 3")
        for r in range(16): a(f"v_mul_f32 v{b+r}, s46, v{b+r}")
        for r in range(8): a(f"v_cvt_pk_bf16_f32 v{b+r}, v{b+2*r}, v{b+2*r+1}")
        if T < 4:
            for hq in range(2):
                a(f"buffer_store_dwordx4 {vr(b+4*hq,4)}, v{EA}, s[28:31], s48 offen sc1")
                a("s_add_u32 s48, s48, s44")
        else:
            a("s_lshl_b32 s44, s44, 1")
            for j in range(4):
                a(f"buffer_store_dwordx2 {vr(b+2*j,2)}, v{EA+1}, s[28:31], s47 offen sc1")
                if j < 3: a("s_add_u32 s47, s47, s44")
    a("s_branch L_A_done")
    a("L_compute_v:")
    make_srd(a, 28, pWS, KV_OFF, KV_SIZE)
    a(f"s_mov_b32 s44, {KV_HEAD}")
    a("s_mul_i32 s47, s43, s44")
    a(f"s_mul_i32 s48, s42, {TKV}")
    a("s_add_u32 s47, s47, s48")
    for T in range(5):
        a(f"v_add_u32 v4, {32*T}, v2")
        a("v_mul_u32_u24 v5, 3277, v4")
        a("v_lshrrev_b32 v5, 16, v5")
        a("v_mul_u32_u24 v6, 20, v5")
        a("v_sub_u32 v4, v4, v6")
        a("v_and_b32 v6, 28, v4")
        a("v_add_u32 v4, v4, v6")
        a("v_lshl_add_u32 v4, v3, 2, v4")
        a("v_mul_lo_u32 v5, v5, s44")
        a("v_lshl_add_u32 v4, v4, 4, v5")
        a(f"v_add_u32 v{EA+T}, 1280, v4")
    gemm_loop(a, True)
    a("s_nop 8")
    for T in range(5):
        b = ACC + 16*T
        if T == 4: a("s_nop 3")
        for r in range(8): a(f"v_cvt_pk_bf16_f32 v{b+r}, v{b+2*r}, v{b+2*r+1}")
        for jp in range(2):
            a(f"buffer_store_dwordx4 {vr(b+4*jp,4)}, v{EA+T}, s[28:31], s47 offen offset:{jp*640} sc1")
    a("s_branch L_A_done")

SWD = [42, 43, 44, 56, 57]
def side_work(a):
    a("s_sub_u32 s53, s2, 192")
    a("s_mul_i32 s53, s53, 3")
    a(f"s_add_u32 s53, s53, s{sWAVE}")
    a("s_sub_u32 s53, s53, 5")
    a("v_lshlrev_b32 v22, 4, v1")
    make_srd(a, 32, pWO, 0, 819200)
    make_srd(a, 28, pWS, SEQ_OFF, WO_OFF + WO_SIZE - SEQ_OFF)
    WR = 32
    for n in range(5):
        if n == 4:
            a("s_cmp_ge_u32 s53, 32")
            a("s_cbranch_scc1 L_sw_wo_ld")
        a(f"s_add_u32 s40, s53, {192*n}")
        a("s_mul_i32 s41, s40, 1639")
        a("s_lshr_b32 s41, s41, 16")
        a("s_mul_i32 s58, s41, 40")
        a("s_sub_u32 s58, s40, s58")
        a("s_mul_i32 s59, s58, 20")
        a("s_mul_i32 s55, s58, 80")
        a("s_sub_u32 s55, s55, %d" % (32*80 - 16))
        a("s_cmp_lt_u32 s58, 32")
        a("s_cselect_b32 s45, 4, 40")
        a("s_cselect_b32 s59, s59, s55")
        a(f"s_mov_b32 s46, {20*1280}")
        a(f"s_cmov_b32 s46, {8*1280}")
        a("v_mul_u32_u24 v4, s45, v3")
        a("v_add_u32 v4, s59, v4")
        a("v_mul_u32_u24 v4, 1280, v4")
        a("s_lshl_b32 s59, s41, 6")
        a("v_lshl_add_u32 v4, v2, 1, v4")
        a("v_add_u32 v4, s59, v4")
        b = WR + 8*n
        for grp in range(2):
            so = "s46" if grp else "0"
            for i in range(4):
                a(f"buffer_load_ushort v{b+4*grp+i}, v4, s[32:35], {so} offen offset:{i*1280}")
        a("s_mul_i32 s59, s41, 52")
        a("s_lshr_b32 s59, s59, 8")
        a("s_mul_i32 s55, s59, 5")
        a("s_sub_u32 s55, s41, s55")
        a("s_mul_i32 s45, s58, 26")
        a("s_lshr_b32 s45, s45, 8")
        a("s_mul_i32 s47, s45, 10")
        a("s_sub_u32 s47, s58, s47")
        a("s_add_u32 s58, s58, 10")
        a("s_cmp_lt_u32 s55, 4")
        a("s_cselect_b32 s55, s55, s45")
        a("s_cselect_b32 s58, s58, s47")
        a("s_lshl_b32 s59, s59, 2")
        a("s_add_u32 s59, s59, s55")
        a("s_mul_i32 s59, s59, 50")
        a("s_add_u32 s59, s59, s58")
        a("s_lshl_b32 s59, s59, 10")
        a(f"s_add_u32 s{SWD[n]}, s59, {WO_OFF - SEQ_OFF}")
    a("L_sw_wo_ld:")
    G = 80
    a("s_mov_b32 s54, s53")
    a("v_lshlrev_b32 v23, 3, v3")
    a(f"s_mov_b32 s55, {f32bits(1.0/2048)}")
    a("v_cmp_gt_u32 vcc, 32, v1")
    a("L_sw_gen:")
    a("s_lshr_b32 s41, s54, 5")
    a("s_and_b32 s58, s54, 31")
    a("s_lshr_b32 s59, s41, 1")
    a("s_lshl_b32 s59, s59, 6")
    a("s_and_b32 s47, s41, 1")
    a("s_add_u32 s59, s59, s47")
    a("v_lshl_add_u32 v4, v2, 1, s59")
    a("s_mul_i32 s45, s41, 65")
    a("s_add_u32 s45, s45, s58")
    a("s_lshl_b32 s45, s45, 10")
    a(f"s_add_u32 s46, s45, {33*1024}")
    a("s_lshl_b32 s48, s58, 4")
    a("v_add_u32 v5, s48, v23")
    a("v_mul_u32_u24 v5, v4, v5")
    a("v_cvt_f32_u32 v5, v5")
    a("v_cvt_f32_u32 v4, v4")
    for i in range(8):
        if i: a("v_add_f32 v5, v5, v4")
        a(f"v_mul_f32 v{G+i}, s55, v5")
    for i in range(8): a(f"v_fract_f32 v{G+i}, v{G+i}")
    for i in range(8): a(f"v_cos_f32 v{G+8+i}, v{G+i}")
    a("s_cmp_lg_u32 s58, 0")
    a("s_cbranch_scc1 L_gen_plain")
    a("v_mul_f32 v6, 0x3e800000, v4")
    a("v_fract_f32 v6, v6")
    a(f"v_cndmask_b32 v{G}, v{G}, v6, vcc")
    a("v_cos_f32 v7, v6")
    a(f"v_mov_b32 v{G+25}, 0")
    a(f"v_mov_b32 v{G+26}, 0")
    a(f"v_mov_b32 v{G+27}, 0")
    a("v_cndmask_b32 v7, 0, v7, vcc")
    a(f"v_cvt_pk_bf16_f32 v{G+24}, v7, 0")
    a(f"s_add_u32 s48, s45, {32*1024}")
    a(f"buffer_store_dwordx4 {vr(G+24,4)}, v22, s[28:31], s48 offen sc1")
    a("L_gen_plain:")
    for i in range(8): a(f"v_sin_f32 v{G+i}, v{G+i}")
    for i in range(4): a(f"v_cvt_pk_bf16_f32 v{G+16+i}, v{G+8+2*i}, v{G+9+2*i}")
    for i in range(4): a(f"v_cvt_pk_bf16_f32 v{G+20+i}, v{G+2*i}, v{G+1+2*i}")
    a(f"buffer_store_dwordx4 {vr(G+16,4)}, v22, s[28:31], s45 offen sc1")
    a(f"buffer_store_dwordx4 {vr(G+20,4)}, v22, s[28:31], s46 offen sc1")
    a("s_add_u32 s54, s54, 192")
    a("s_cmp_lt_u32 s54, 1056")
    a("s_cbranch_scc1 L_sw_gen")

def side_work_finish(a):
    WR = 32
    l = a.label("L_sw_fin")
    a("s_waitcnt vmcnt(10)")
    for n in range(5):
        if n == 4:
            a("s_cmp_ge_u32 s53, 32")
            a(f"s_cbranch_scc1 {l}")
        b = WR + 8*n
        for i in range(4): a(f"v_lshl_or_b32 v{b+i}, v{b+2*i+1}, 16, v{b+2*i}")
        a(f"buffer_store_dwordx4 {vr(b,4)}, v22, s[28:31], s{SWD[n]} offen sc1")
    a(f"{l}:")

def prep(a):
    a("L_prep:")
    a(f"s_sub_u32 s40, s{sSLOT}, 24")
    a("s_and_b32 s27, s40, 1")
    a("s_lshr_b32 s26, s40, 1")
    a("s_lshl_b32 s26, s26, 3")
    a(f"s_add_u32 s26, s26, s{sXCD}")
    make_srd(a, 36, pWS, AB_OFF, AB_SIZE)
    a(f"s_cmp_ge_u32 s{sWAVE}, 5")
    a("s_cbranch_scc1 L_fold_skip")
    make_srd(a, 28, pBX, 0, X_SIZE)
    a("s_lshl_b32 s42, s26, 4")
    a("v_lshrrev_b32 v2, 3, v1")
    a("v_and_b32 v3, 7, v1")
    a("v_add_u32 v4, s42, v2")
    a("v_mul_u32_u24 v5, 1280, v4")
    a("v_lshlrev_b32 v6, 4, v3")
    a("v_add_u32 v10, v5, v6")
    a("v_sub_u32 v7, v6, v5")
    a(f"s_lshl_b32 s44, s27, 1")
    a(f"s_add_u32 s44, s44, s{sWAVE}")
    a("s_cmp_ge_u32 s44, 5")
    a("s_cselect_b32 s45, 5, 0")
    a("s_sub_u32 s44, s44, s45")
    a("s_lshl_b32 s44, s44, 7")
    a("s_add_u32 s45, s44, 10240")
    a(f"v_add_u32 v11, {2048*1280}, v7")
    a(f"v_add_u32 v12, {1024*1280}, v7")
    a("v_cmp_ne_u32 vcc, 0, v4")
    a(f"v_mov_b32 v8, {HUGE}")
    a(f"v_add_u32 v9, {1024*1280}, v10")
    a("v_cndmask_b32 v13, v8, v9, vcc")
    LD = 32
    for hf in range(2):
        for r in range(4): a(f"buffer_load_dwordx4 {vr(LD+8*r+4*hf,4)}, v{10+r}, s[28:31], s44 offen offset:{640*hf}")
    a("v_subrev_u32 v11, 10240, v11")
    a("v_subrev_u32 v12, 10240, v12")
    for hf in range(2):
        for r, (vv, so) in enumerate([(10, 45), (11, 44), (12, 44), (9, 45)]):
            a(f"buffer_load_dwordx4 {vr(LD+32+8*r+4*hf,4)}, v{vv}, s[28:31], s{so} offen offset:{640*hf}")
    XL = 96
    a("s_cmp_lg_u32 s26, 0")
    a("s_cbranch_scc1 L_fold_nx")
    a(f"v_add_u32 v14, {512*1280}, v6")
    a(f"v_add_u32 v15, {1536*1280}, v6")
    a("v_cndmask_b32 v14, v14, v8, vcc")
    a("v_cndmask_b32 v15, v15, v8, vcc")
    for r in range(2):
        for hf in range(2):
            a(f"buffer_load_dwordx4 {vr(XL+8*r+4*hf,4)}, v{14+r}, s[28:31], s44 offen offset:{640*hf}")
    a("L_fold_nx:")
    a("v_and_b32 v5, 3, v2")
    a("v_lshrrev_b32 v4, 2, v2")
    a("v_lshl_or_b32 v5, v4, 3, v5")
    a("v_xor_b32 v5, v5, v3")
    a("v_and_b32 v4, 1, v3")
    a("v_lshl_add_u32 v5, v4, 5, v5")
    a("v_lshlrev_b32 v5, 4, v5")
    a("v_lshrrev_b32 v4, 1, v3")
    a("v_lshl_add_u32 v5, v4, 10, v5")
    a("s_lshl_b32 s45, s44, 5")
    a("v_add_u32 v16, s45, v5")
    a("v_xor_b32 v18, 64, v16")
    a("v_add_u32 v5, s44, v6")
    a("v_add_u32 v17, 40960, v5")
    a("v_lshlrev_b32 v6, 4, v1")
    a("v_add_u32 v6, 43008, v6")
    a("v_cndmask_b32 v17, v17, v6, vcc")
    a("L_fold_skip:")
    a("v_and_b32 v2, 31, v1")
    a("v_lshrrev_b32 v3, 5, v1")
    a("v_lshlrev_b32 v15, 4, v1")
    a(f"s_lshr_b32 s40, s{sWAVE}, 1")
    a("s_add_u32 s40, s40, 2")
    a(f"s_and_b32 s41, s{sWAVE}, 1")
    a(f"s_cmp_lt_u32 s{sWAVE}, 4")
    a(f"s_cselect_b32 s49, s{sWAVE}, s40")
    a("s_cselect_b32 s50, 0, s41")
    a("s_lshl_b32 s54, s49, 6")
    a("s_add_u32 s54, s54, s27")
    a("v_lshl_add_u32 v4, v2, 1, s54")
    AU = 10; SB = [[176, 184], [192, 200]]; HB = [[208, 212], [216, 220]]; UB = [72, 84, 96, 108]; ACC3 = [224, 240, 32]; PH = 112
    a("s_mul_i32 s52, s50, 20480")
    for jj in range(4):
        a(f"v_xor_b32 v5, {2*jj}, v3")
        a("v_xor_b32 v5, v5, v2")
        a("v_lshl_add_u32 v5, v3, 5, v5")
        a("v_lshlrev_b32 v5, 4, v5")
        a(f"v_add_u32 v5, {jj*1024}, v5")
        a(f"v_add_u32 v{AU+jj}, s52, v5")
    a(f"v_lshlrev_b32 v{AU+4}, 4, v3")
    a(f"v_add_u32 v{AU+4}, 40960, v{AU+4}")
    a(f"s_mov_b32 s52, {f32bits(1.0/640)}")
    a("s_cmp_lg_u32 s50, 0")
    a("s_cselect_b32 s53, 0x3e800000, 0")
    a("v_lshlrev_b32 v5, 3, v3")
    a("v_mul_u32_u24 v5, v4, v5")
    a("v_cvt_f32_u32 v5, v5")
    a("v_cvt_f32_u32 v4, v4")
    a("v_mul_f32 v6, 0x41800000, v4")
    for i in range(8):
        if i: a("v_add_f32 v5, v5, v4")
        a(f"v_mul_f32 v{PH+i}, s52, v5")
        a("v_sub_f32 v7, v5, v6")
        a(f"v_mul_f32 v{PH+8+i}, s52, v7")
    a("v_mul_f32 v6, s52, v6")
    a("v_fract_f32 v6, v6")
    for i in range(16): a(f"v_fract_f32 v{PH+i}, v{PH+i}")
    a("v_cos_f32 v19, v6")
    for i in range(16): a(f"v_sin_f32 v{SB[1][0]+i}, v{PH+i}")
    for i in range(16): a(f"v_subrev_f32 v{PH+i}, s53, v{PH+i}")
    for i in range(16): a(f"v_cos_f32 v{SB[0][0]+i}, v{PH+i}")
    a("v_add_f32 v19, v19, v19")
    for r in range(32): a(f"v_mov_b32 v{224+r}, 0")
    def cvts(jb, g): return [f"v_cvt_pk_bf16_f32 v{HB[jb][g]+d}, v{SB[jb][g]+2*d}, v{SB[jb][g]+2*d+1}" for d in range(4)]
    def rot(jb, cur): return [f"v_fma_f32 v{SB[jb][cur^1]+i}, v19, v{SB[jb][cur]+i}, -v{SB[jb][cur^1]+i}" for i in range(8)]
    for x in cvts(0, 0) + cvts(1, 0): a(x)
    a(f"s_cmp_lt_u32 s{sWAVE}, 5")
    a("s_cbranch_scc1 L_fold_go")
    side_work(a)
    side_work_finish(a)
    a("s_branch L_fold_done")
    a("L_fold_go:")
    a("s_cmp_lg_u32 s27, 0")
    a("s_cselect_b32 s46, -1.0, 1.0")
    a("s_mov_b32 s47, s46")
    a("s_mov_b32 s48, 0xffff0000")
    T = 112; R = 144; H = 20
    ng = "neg_lo:[0,1] neg_hi:[0,1]"
    def dfold(src, dst):
        for d in range(4):
            a(f"v_lshlrev_b32 v{dst+2*d}, 16, v{src+d}")
            a(f"v_and_b32 v{dst+2*d+1}, s48, v{src+d}")
            a(f"v_lshlrev_b32 v{H+2*(d&1)}, 16, v{src+4+d}")
            a(f"v_and_b32 v{H+2*(d&1)+1}, s48, v{src+4+d}")
            a(f"v_pk_fma_f32 {vr(dst+2*d,2)}, {vr(H+2*(d&1),2)}, s[46:47], {vr(dst+2*d,2)}")
    for n in range(2):
        a("s_waitcnt vmcnt(%d)" % (8 if n == 0 else 0))
        if n == 0: stamp(a, 9)
        b = LD + 32*n
        for r in range(4): dfold(b + 8*r, T + 8*r)
        for d in range(4):
            p = lambda r: vr(T+8*r+2*d, 2)
            q = lambda r: vr(R+8*r+2*d, 2)
            a(f"v_pk_add_f32 {q(0)}, {p(0)}, {p(1)}")
            a(f"v_pk_add_f32 {q(1)}, {p(0)}, {p(1)} {ng}")
            a(f"v_pk_add_f32 {q(2)}, {p(2)}, {p(3)}")
            a(f"v_pk_add_f32 {q(3)}, {p(2)}, {p(3)} {ng}")
            a(f"v_pk_add_f32 {p(0)}, {q(0)}, {q(2)}")
            a(f"v_pk_add_f32 {p(1)}, {q(0)}, {q(2)} {ng}")
            a(f"v_pk_add_f32 {p(2)}, {q(1)}, {q(3)} {ng}")
            a(f"v_pk_add_f32 {p(3)}, {q(1)}, {q(3)}")
        if n == 0:
            a("s_cmp_lg_u32 s26, 0")
            a("s_cbranch_scc1 L_fold_sp")
            a("s_waitcnt vmcnt(0)")
            dfold(XL, R); dfold(XL + 8, R + 8)
            for d in range(4):
                a(f"v_pk_add_f32 {vr(R+16+2*d,2)}, {vr(R+2*d,2)}, {vr(R+8+2*d,2)}")
                a(f"v_pk_add_f32 {vr(R+2*d,2)}, {vr(R+2*d,2)}, {vr(R+8+2*d,2)} {ng}")
            for e in range(8): a(f"v_cndmask_b32 v{T+24+e}, v{R+e}, v{T+24+e}, vcc")
            for d in range(4): a(f"v_cvt_pk_bf16_f32 v{R+d}, v{R+16+2*d}, v{R+17+2*d}")
            a(f"ds_write_b128 v17, {vr(R,4)}")
            a("L_fold_sp:")
        for i in range(4):
            for d in range(4): a(f"v_cvt_pk_bf16_f32 v{b+4*i+d}, v{T+8*i+2*d}, v{T+8*i+2*d+1}")
            a(f"ds_write_b128 v{16+2*n}, {vr(b+4*i,4)} offset:{(i>>1)*20480 + (i&1)*256}")
    a("L_fold_done:")
    for r in range(16): a(f"v_mov_b32 v{32+r}, 0")
    a("s_waitcnt lgkmcnt(0)")
    stamp(a, 14)
    a("s_barrier")
    stamp(a, 2)
    a("s_mul_i32 s42, s27, 6")
    a("s_add_u32 s42, s42, s49")
    a("s_cmp_gt_u32 s42, 10")
    a("s_cbranch_scc1 L_prep_done")
    def ureads(j, kinds):
        jj = j & 3; o = (j >> 2) * 4096; b = UB[j & 3]; r = []
        for k in kinds:
            if k == 2: r.append(f"ds_read_b128 {vr(b+8,4)}, v{AU+4} offset:{j*32}")
            else: r.append(f"ds_read_b128 {vr(b+4*k,4)}, v{AU+jj} offset:{o + k*20480}")
        return r
    a("s_mov_b32 s45, 5")
    a("s_or_b32 s51, s26, s50")
    a("s_cmp_eq_u32 s51, 0")
    a("s_cselect_b32 s40, 1, 0")
    a(f"s_cmp_lt_u32 s{sWAVE}, 4")
    a("s_cselect_b32 s41, 2, 0")
    a("s_add_u32 s40, s40, s41")
    variants = [[0], [0, 2], [0, 1], [0, 1, 2]]
    for v in range(1, 4):
        a(f"s_cmp_eq_u32 s40, {v}")
        a(f"s_cbranch_scc1 L_f1_v{v}")
    for v, kinds in enumerate(variants):
        a(f"L_f1_v{v}:")
        nm = len(kinds)
        for x in ureads(0, kinds) + ureads(1, kinds): a(x)
        a(f"L_f1_loop{v}:")
        for jj in range(4):
            buf = jj & 1
            va = rot(0, buf) + cvts(0, buf ^ 1)
            if 1 in kinds: va = rot(0, buf) + rot(1, buf) + cvts(0, buf ^ 1) + cvts(1, buf ^ 1)
            rd = ureads(jj + 2, kinds)
            a(f"s_waitcnt lgkmcnt({nm})")
            a("s_nop 0")
            per = len(va) // nm
            for m, k in enumerate(kinds):
                d = vr(ACC3[k], 16)
                a(f"v_mfma_f32_32x32x16_bf16 {d}, {vr(UB[jj]+4*k,4)}, {vr(HB[k & 1][buf],4)}, {d}")
                a(rd[m])
                for x in va[per*m:per*m+per]: a(x)
        for r in range(4): a(f"v_add_u32 v{AU+r}, 4096, v{AU+r}")
        if 2 in kinds: a(f"v_add_u32 v{AU+4}, 128, v{AU+4}")
        a("s_sub_u32 s45, s45, 1")
        a("s_cmp_lg_u32 s45, 0")
        a(f"s_cbranch_scc1 L_f1_loop{v}")
        if v < 3: a("s_branch L_f1_done")
    a("L_f1_done:")
    stamp(a, 5)
    a("s_mul_i32 s43, s42, 33")
    a("s_add_u32 s44, s26, s43")
    a(f"s_mul_i32 s45, s50, {22*33}")
    a("s_add_u32 s44, s44, s45")
    a("s_lshl_b32 s44, s44, 10")
    a("s_waitcnt lgkmcnt(0)")
    a("s_nop 5")
    for jb in range(2):
        b = ACC3[jb]
        if jb == 1:
            a(f"s_cmp_ge_u32 s{sWAVE}, 4")
            a("s_cbranch_scc1 L_f1_one")
        for r in range(8): a(f"v_cvt_pk_bf16_f32 v{b+r}, v{b+2*r}, v{b+2*r+1}")
        for hf in range(2):
            a(f"buffer_store_dwordx4 {vr(b+4*hf,4)}, v15, s[36:39], s44 offen sc1")
            a(f"s_add_u32 s44, s44, {11*33*1024}")
    a("L_f1_one:")
    a("s_cmp_lg_u32 s51, 0")
    a("s_cbranch_scc1 L_prep_done")
    b = ACC3[2]
    for r in range(4): a(f"v_cvt_pk_bf16_f32 v{b+r}, v{b+2*r}, v{b+2*r+1}")
    a("s_add_u32 s43, s43, 32")
    a("s_lshl_b32 s43, s43, 10")
    a(f"buffer_store_dwordx4 {vr(b,4)}, v15, s[36:39], s43 offen sc1")
    a("L_prep_done:")
    a(f"s_cmp_lt_u32 s{sWAVE}, 4")
    a("s_cbranch_scc1 L_A_done")
    get_nonce(a, 2)

W_PROG, W_GO, W_CNT, W_PASS, W_XCH, W_NON = 0, 4, 8, 16, 32, 48
def a_done(a):
    a("L_A_done:")
    stamp(a, 6)
    a(f"v_mov_b32 v23, {LDS_PROG}")
    a(f"s_cmp_lg_u32 s{sWAVE}, 4")
    a("s_cbranch_scc1 L_A_bar")
    a(f"v_mov_b32 v2, s{sNON}")
    a(f"v_mov_b32 v3, s{sNON+1}")
    a(f"ds_write_b64 v23, v[2:3] offset:{W_NON}")
    a("L_A_bar:")
    a("s_waitcnt lgkmcnt(0)")
    a("s_barrier")
    stamp(a, 4)
    a("s_and_b32 s26, s2, 31")
    a("s_lshr_b32 s27, s2, 5")
    a(f"s_cmp_ge_u32 s{sWAVE}, 4")
    a("s_cbranch_scc1 L_aux")

def drained(a, vt):
    a(f"v_mov_b32 v{vt}, 1")
    a("s_mov_b64 exec, 1")
    a(f"ds_add_u32 v23, v{vt} offset:{W_CNT}")
    a("s_mov_b64 exec, -1")

def attention(a):
    SL = OPT.get('slot', 1)
    AKA, AKB, AV, AKB2 = 4, 5, 168, 172
    AREGS = [AKA, AV, AV+1, AV+2, AV+3] + ([AKB2, AKB2+1] if SL else [AKB])
    QA = [8, 14]
    NEG = [32, 48]; S = [64, 80]; O = [96, 112]; P = 128
    KB = [136, 142]; VB = [148, 156]
    PR = 164
    a("L_attn:")
    a(f"ds_read_b32 v24, v23 offset:{W_GO}")
    a(f"ds_read_b64 v[26:27], v23 offset:{W_NON}")
    a(f"s_setprio {OPT.get('pattn', 2)}")
    a(f"s_mul_i32 s40, s26, {Q_HEAD}")
    a(f"s_add_u32 s40, s40, {Q_OFF}")
    make_srd(a, 28, pWS, "s40", Q_HEAD)
    a(f"s_mul_i32 s40, s26, {KV_HEAD}")
    make_srd(a, 32, pWS, "s40", KV_HEAD)
    a("v_and_b32 v2, 31, v1")
    a("v_lshrrev_b32 v3, 5, v1")
    a(f"v_lshlrev_b32 v{AKA}, 4, v1")
    a(f"v_lshlrev_b32 v{AKB}, 3, v2")
    a(f"v_add_u32 v{AKB}, 1024, v{AKB}")
    a(f"v_mov_b32 v20, {HUGE}")
    a("v_cmp_gt_u32 vcc, 32, v1")
    a("s_lshl_b32 s41, s27, 3")
    a(f"s_lshl_b32 s42, s{sWAVE}, 1")
    a("s_add_u32 s41, s41, s42")
    a(f"v_cndmask_b32 v20, v20, v{AKB}, vcc")
    a(f"s_mul_i32 s42, s41, {TQ}")
    a("v_and_b32 v21, 28, v2")
    a("v_add_u32 v21, v21, v2")
    a("v_lshl_add_u32 v21, v3, 2, v21")
    a("v_lshlrev_b32 v21, 4, v21")
    a("v_add_u32 v29, 1280, v21")
    a("s_mov_b32 s48, 0x000fffff")
    a("s_mov_b32 s49, 0x000fffff")
    a("s_waitcnt lgkmcnt(0)")
    a("v_readfirstlane_b32 s47, v24")
    a(f"v_readfirstlane_b32 s{sNON}, v26")
    a(f"v_readfirstlane_b32 s{sNON+1}, v27")
    a("s_mov_b32 s50, s47")
    a("s_cmp_lg_u32 s47, 0")
    a("s_cbranch_scc1 L_attn_go")
    a("s_waitcnt vmcnt(0)")
    stamp(a, 3)
    drained(a, 24)
    a("L_attn_spin:")
    a(f"ds_read_b32 v24, v23 offset:{W_GO}")
    a("s_waitcnt lgkmcnt(0)")
    a("v_readfirstlane_b32 s47, v24")
    a("s_nop 0")
    a("s_cmp_eq_u32 s47, 0")
    a("s_cbranch_scc1 L_attn_spin")
    a("L_attn_go:")
    stamp(a, 7); stamp(a, 7, 2); stamp_real(a, 8, 2)
    a("s_sub_u32 s47, s47, 1")
    a(f"s_mul_i32 s47, s47, {4*TKV}")
    for q in range(2):
        a(f"buffer_load_dwordx4 {vr(QA[q],4)}, v{AKA}, s[28:31], s42 offen offset:{q*TQ} sc1")
        a(f"buffer_load_dwordx2 {vr(QA[q]+4,2)}, v20, s[28:31], s42 offen offset:{q*TQ} sc1")
    a(f"buffer_load_dwordx4 {vr(KB[0],4)}, v{AKA}, s[32:35], s47 offen sc1")
    if SL:
        for b in KB:
            a(f"v_mov_b32 v{b+4}, 0x3f803f80")
            a(f"v_mov_b32 v{b+5}, 0x3f80")
        a("s_mov_b32 exec_hi, 0")
    a(f"buffer_load_dwordx2 {vr(KB[0]+4,2)}, v{AKB}, s[32:35], s47 offen sc1")
    if SL: a("s_mov_b64 exec, -1")
    a("v_mov_b32 v24, 0x3f803f80")
    a("v_cmp_eq_u32 vcc, 20, v2")
    a(f"s_add_u32 s43, s47, {TKV}")
    a("s_nop 0")
    a("v_cndmask_b32 v24, 0, v24, vcc")
    for r in range(16): a(f"v_mov_b32 v{VB[0]+r}, v24")
    a(f"buffer_load_dwordx4 {vr(KB[1],4)}, v{AKA}, s[32:35], s43 offen sc1")
    if SL: a("s_mov_b32 exec_hi, 0")
    a(f"buffer_load_dwordx2 {vr(KB[1]+4,2)}, v{AKB}, s[32:35], s43 offen sc1")
    a("s_mov_b64 exec, s[48:49]")
    a(f"buffer_load_dwordx4 {vr(VB[0],4)}, v29, s[32:35], s47 offen sc1")
    a(f"buffer_load_dwordx4 {vr(VB[0]+4,4)}, v29, s[32:35], s47 offen offset:640 sc1")
    a(f"buffer_load_dwordx4 {vr(VB[1],4)}, v29, s[32:35], s43 offen sc1")
    a(f"buffer_load_dwordx4 {vr(VB[1]+4,4)}, v29, s[32:35], s43 offen offset:640 sc1")
    a("s_mov_b64 exec, -1")
    a("s_cmp_eq_u32 s50, 0")
    a("s_cbranch_scc1 L_attn_cnt")
    a("s_waitcnt vmcnt(12)")
    stamp(a, 3)
    drained(a, 24)
    a("L_attn_cnt:")
    a("v_mov_b32 v22, 5120")
    if OPT.get('zr', 1):
        a("v_cmp_lt_u32 vcc, 20, v2")
        a("v_mov_b32 v21, 5136")
        a("s_nop 0")
        a("v_cndmask_b32 v22, v22, v21, vcc")
    a("v_cmp_gt_u32 vcc, 20, v2")
    for i in range(4): a(f"v_add_u32 v{AV+i}, {(i>>1)*TKV + (i&1)*640}, v29")
    for i in range(4): a(f"v_cndmask_b32 v{AV+i}, v22, v{AV+i}, vcc")
    if SL:
        a("v_cmp_gt_u32 vcc, 32, v1")
        a("v_mov_b32 v22, 5152")
        a(f"v_add_u32 v21, {TKV}, v{AKB}")
        a(f"v_cndmask_b32 v{AKB2}, v22, v{AKB}, vcc")
        a(f"v_cndmask_b32 v{AKB2+1}, v22, v21, vcc")
    make_srd(a, 36, pWS, O_OFF, O_SIZE)
    for q in range(2):
        for r in range(16): a(f"v_mov_b32 v{O[q]+r}, 0")
    mm16 = "v_mfma_f32_32x32x16_bf16"; mm8 = "v_mfma_f32_32x32x8_bf16"
    def M1(s, t, q, c): return f"{mm16} {vr(s,16)}, {vr(KB[t&1],4)}, {vr(QA[q],4)}, {c}"
    def M2(s, t, q): return f"{mm8} {vr(s,16)}, {vr(KB[t&1]+4,2)}, {vr(QA[q]+4,2)}, {vr(s,16)}"
    def M3(t, q): return "s_nop 1" if OPT.get('nopv') else f"{mm16} {vr(O[q],16)}, {vr(VB[t&1],4)}, {vr(P,4)}, {vr(O[q],16)}"
    def M4(t, q): return "s_nop 1" if OPT.get('nopv') else f"{mm16} {vr(O[q],16)}, {vr(VB[t&1]+4,4)}, {vr(P+4,4)}, {vr(O[q],16)}"
    def rowmax(src, dst, first):
        if first:
            a(f"v_max3_f32 v{dst}, v{src}, v{src+1}, v{src+2}")
            a(f"v_max_f32 v{dst}, v{dst}, v{src+15}")
            rng = range(3, 15, 2)
        else: rng = range(0, 16, 2)
        for r in rng: a(f"v_max3_f32 v{dst}, v{dst}, v{src+r}, v{src+r+1}")
    def finish_neg(add):
        a("v_mov_b32 v26, v24")
        a("v_mov_b32 v27, v25")
        a("s_nop 1")
        a("v_permlane32_swap_b32 v24, v26")
        a("v_permlane32_swap_b32 v25, v27")
        a("s_nop 1")
        a("v_max_f32 v24, v24, v26")
        a("v_max_f32 v25, v25, v27")
        if not SL:
            for q in range(2):
                a(f"v_sub_f32 v{NEG[q]}, {add}, v{24+q}")
                for r in range(1, 16): a(f"v_mov_b32 v{NEG[q]+r}, v{NEG[q]}")
            return
        a("s_mov_b32 s45, 0xffff0000")
        a("s_mov_b32 s46, 0x07060302")
        for q in range(2):
            a(f"v_sub_f32 v{24+q}, {add}, v{24+q}")
        for q in range(2):
            a(f"v_and_b32 v26, s45, v{24+q}")
            a(f"v_sub_f32 v27, v{24+q}, v26")
            a("v_and_b32 v28, s45, v27")
            a("v_sub_f32 v27, v27, v28")
            a("v_perm_b32 v26, v28, v26, s46")
            a("v_lshrrev_b32 v27, 16, v27")
            a("s_mov_b32 exec_lo, 0")
            a(f"v_mov_b32 v{QA[q]+4}, v26")
            a(f"v_mov_b32 v{QA[q]+5}, v27")
            a("s_mov_b64 exec, -1")
        a("s_nop 1")
    CNEG = lambda q: "0" if SL else vr(NEG[q], 16)
    a("s_waitcnt vmcnt(6)")
    stamp(a, 8)
    for q in range(2): a(M1(S[q], 0, q, "0"))
    for q in range(2): a(M2(S[q], 0, q))
    a("s_nop 11")
    rowmax(S[0], 24, True)
    a("s_nop 1")
    rowmax(S[1], 25, True)
    finish_neg(hex(f32bits(-float(OPT.get('off', 96)))))
    a(M1(S[0], 0, 0, CNEG(0)))
    a(M2(S[0], 0, 0))
    a(f"ds_read_b32 v{PR}, v23")
    a("s_waitcnt vmcnt(0)")
    a("s_nop 9")
    def check(need):
        l = a.label("L_chk"); ok = a.label("L_chkok")
        a(f"{l}:")
        a("s_waitcnt lgkmcnt(0)")
        a(f"v_readfirstlane_b32 s44, v{PR}")
        a("s_nop 0")
        a(f"s_cmp_ge_u32 s44, {need}")
        a(f"s_cbranch_scc1 {ok}")
        a(f"ds_read_b32 v{PR}, v23")
        a(f"s_branch {l}")
        a(".p2align 3")
        a(f"{ok}:")
    def unit(t, q, s4=(), s1=(), s2=(), s3=(), first=False, nonext=False):
        s = S[q]; sn = S[q ^ 1]
        t1, q1 = (t, 1) if q == 0 else (t + 1, 0)
        tp, qp = (t - 1, 1) if q == 0 else (t, 0)
        E = lambda r: a(f"v_exp_f32 v{s+r}, v{s+r}")
        C = lambda j: a(f"v_cvt_pk_bf16_f32 v{P+j}, v{s+2*j}, v{s+2*j+1}")
        al = OPT.get('al', 1)
        EW = lambda r: a(f"v_exp_f32_e64 v{s+r}, v{s+r}") if al else E(r)
        odd = lambda xs: sum(1 for x in xs if x.startswith("s_")) & 1
        E(0); E(1)
        if not first: a(M4(tp, qp))
        for x in s4: a(x)
        (E if odd(s4) else EW)(2); E(3); E(4)
        if not nonext: a(M1(sn, t1, q1, CNEG(q1)))
        for x in s1: a(x)
        EW(5); E(6); E(7)
        for j in range(4): C(j)
        if not nonext: a(M2(sn, t1, q1))
        for x in s2: a(x)
        EW(8)
        for r in range(9, 13): E(r)
        a(M3(t, q))
        for x in s3: a(x)
        EW(13); E(14); E(15)
        for j in range(4, 8): C(j)
    def period(t, o, extra3=()):
        if o is None:
            unit(t, 1, s4=["s_waitcnt lgkmcnt(0)"]); unit(t + 1, 0); return
        kb = KB[t & 1]; vb = VB[t & 1]
        ok = lds_tile(o + 2); ov = (o >> 1) * LPAIR; av = AV + 2*(o & 1)
        unit(t, 1, s4=["s_waitcnt lgkmcnt(0)"],
             s1=[f"ds_read_b128 {vr(kb,4)}, v{AKA} offset:{ok}"],
             s3=[f"ds_read_b64 {vr(kb+4,2)}, v{AKB2+(o&1)} offset:{ov}" if SL else f"ds_read_b64 {vr(kb+4,2)}, v{AKB} offset:{ok}"])
        unit(t + 1, 0, s4=[f"ds_read_b128 {vr(vb,4)}, v{av} offset:{ov}"],
             s1=[f"ds_read_b128 {vr(vb+4,4)}, v{av+1} offset:{ov}"], s3=extra3)
    rdp = [f"ds_read_b32 v{PR}, v23"]
    a(".p2align 3")
    unit(0, 0, first=True)
    stamp(a, 9)
    check(1)
    for t in range(6):
        if t == 2: check(2)
        period(t, t, rdp if t in (1, 5) else ())
    for r in AREGS: a(f"v_add_u32 v{r}, {3*LPAIR}, v{r}")
    a(f"s_lshl_b32 s45, s{sWAVE}, 2")
    a("v_add_u32 v24, s45, v23")
    a(f"ds_write_b32 v24, v23 offset:{W_PASS}")
    a("s_mov_b32 s45, 2")
    a("s_mov_b32 s46, 7")
    stamp(a, 10); stamp(a, 10, 2); stamp_real(a, 12, 2)
    a(".p2align 3")
    a("L_attn_loop:")
    a("s_cmp_eq_u32 s44, 16")
    a("s_cbranch_scc1 L_attn_nochk")
    a("s_add_u32 s45, s45, 2")
    check("s45")
    a(".p2align 3")
    a("L_attn_nochk:")
    for k in range(8):
        ex = ()
        if k == 7: ex = rdp
        period(k, k, ex)
    for r in AREGS: a(f"v_add_u32 v{r}, {4*LPAIR}, v{r}")
    a("s_sub_u32 s46, s46, 1")
    a("s_cmp_lg_u32 s46, 0")
    a("s_cbranch_scc1 L_attn_loop")
    period(62, None)
    unit(63, 1, nonext=True)
    a("s_nop 1")
    a(M4(63, 1))
    stamp(a, 11); stamp(a, 11, 2); stamp_real(a, 13, 2)
    a("s_nop 15")
    a("L_attn_post:")
    for q in range(2): a(f"v_mov_b32 v{24+q}, v{O[q]+8}")
    a("v_mov_b32 v26, 0")
    a("s_nop 0")
    for q in range(2): a(f"v_permlane32_swap_b32 v{O[q]+8}, v{24+q}")
    a("s_cmp_eq_u32 s46, 0")
    a("s_cbranch_scc0 L_attn_fin")
    for q in range(2):
        for r in range(12): a(f"v_fma_f32 v26, v{O[q]+r}, 0, v26")
    a("v_max_f32 v27, v24, v25")
    a("v_fma_f32 v26, v24, 0, v26")
    a("v_fma_f32 v26, v25, 0, v26")
    for q in range(2):
        a(f"v_max3_f32 v{30+q}, abs(v{O[q]}), abs(v{O[q]+1}), abs(v{O[q]+2})")
        a(f"v_max3_f32 v{30+q}, v{30+q}, abs(v{O[q]+3}), abs(v{O[q]+4})")
        a(f"v_max3_f32 v{30+q}, v{30+q}, abs(v{O[q]+5}), abs(v{O[q]+6})")
        a(f"v_max_f32 v{30+q}, v{30+q}, abs(v{O[q]+7})")
    a("v_min_f32 v30, v30, v31")
    a("v_mov_b32 v28, 0x76800000")
    a("v_mov_b32 v31, 0x08800000")
    a("v_cmp_u_f32 s[44:45], v26, v26")
    a("v_cmp_nlt_f32 vcc, v27, v28")
    a("v_cmp_lt_f32 s[50:51], v30, v31")
    a("s_nop 1")
    a("s_or_b64 vcc, vcc, s[44:45]")
    a("s_or_b64 vcc, vcc, s[50:51]")
    if OPT.get('forcefb'): a("s_mov_b64 vcc, -1")
    a("s_cbranch_vccnz L_attn_fallback")
    a("L_attn_fin:")
    a("v_rcp_f32 v24, v24")
    a("v_rcp_f32 v25, v25")
    a("s_lshl_b32 s42, s41, 5")
    a("s_add_u32 s42, s42, s26")
    a("s_mul_i32 s42, s42, 1280")
    a("v_lshlrev_b32 v21, 4, v1")
    for q in range(2):
        for r in range(12): a(f"v_mul_f32 v{O[q]+r}, v{O[q]+r}, v{24+q}")
        for r in range(6): a(f"v_cvt_pk_bf16_f32 v{O[q]+r}, v{O[q]+2*r}, v{O[q]+2*r+1}")
        a(f"buffer_store_dwordx4 {vr(O[q],4)}, v21, s[36:39], s42 offen sc1")
        a(f"buffer_store_dwordx2 {vr(O[q]+4,2)}, v20, s[36:39], s42 offen sc1")
        if q == 0: a(f"s_add_u32 s42, s42, {32*1280}")
    a("s_barrier")
    a("s_lshl_b32 s40, s2, 2")
    a(f"s_add_u32 s40, s40, s{sWAVE}")
    a(f"s_add_u32 s40, s40, {FB}")
    a("s_lshl_b32 s40, s40, 7")
    a("s_waitcnt vmcnt(0)")
    stamp(a, 12)
    set_flag(a, 40, 8)
    a("s_branch L_end")
    a("L_attn_fallback:")
    for r in ((AKA,) if SL else (AKA, AKB)): a(f"v_subrev_u32 v{r}, {31*LPAIR}, v{r}")
    if SL:
        a("s_mov_b32 exec_lo, 0")
        for q in range(2):
            a(f"v_mov_b32 v{QA[q]+4}, 0")
            a(f"v_mov_b32 v{QA[q]+5}, 0")
        a("s_mov_b64 exec, -1")
    a("v_mov_b32 v24, 0xff800000")
    a("v_mov_b32 v25, 0xff800000")
    a("s_mov_b32 s46, 0")
    a("L_fb_max:")
    a(f"buffer_load_dwordx4 {vr(KB[0],4)}, v{AKA}, s[32:35], s46 offen sc1")
    if SL: a("s_mov_b32 exec_hi, 0")
    a(f"buffer_load_dwordx2 {vr(KB[0]+4,2)}, v{AKB}, s[32:35], s46 offen sc1")
    if SL: a("s_mov_b64 exec, -1")
    a("s_waitcnt vmcnt(0)")
    for q in range(2): a(M1(S[q], 0, q, "0"))
    for q in range(2): a(M2(S[q], 0, q))
    a("s_nop 15")
    rowmax(S[0], 24, False)
    rowmax(S[1], 25, False)
    a(f"s_add_u32 s46, s46, {TKV}")
    a(f"s_cmp_lt_u32 s46, {KV_HEAD}")
    a("s_cbranch_scc1 L_fb_max")
    finish_neg("0")
    for q in range(2):
        for r in range(16): a(f"v_mov_b32 v{O[q]+r}, 0")
    a("s_mov_b32 s46, 0")
    a("L_fb_main:")
    a(f"buffer_load_dwordx4 {vr(KB[0],4)}, v{AKA}, s[32:35], s46 offen sc1")
    if SL: a("s_mov_b32 exec_hi, 0")
    a(f"buffer_load_dwordx2 {vr(KB[0]+4,2)}, v{AKB}, s[32:35], s46 offen sc1")
    if SL: a("s_mov_b64 exec, -1")
    a("s_mov_b64 exec, s[48:49]")
    a(f"buffer_load_dwordx4 {vr(VB[0],4)}, v29, s[32:35], s46 offen sc1")
    a(f"buffer_load_dwordx4 {vr(VB[0]+4,4)}, v29, s[32:35], s46 offen offset:640 sc1")
    a("s_mov_b64 exec, -1")
    a("s_waitcnt vmcnt(0)")
    for q in range(2): a(M1(S[q], 0, q, CNEG(q)))
    for q in range(2): a(M2(S[q], 0, q))
    a("s_nop 15")
    for q in range(2):
        for r in range(16): a(f"v_exp_f32 v{S[q]+r}, v{S[q]+r}")
        a("s_nop 0")
        for j in range(8): a(f"v_cvt_pk_bf16_f32 v{P+j}, v{S[q]+2*j}, v{S[q]+2*j+1}")
        a("s_nop 1")
        a(M3(0, q)); a(M4(0, q))
    a(f"s_add_u32 s46, s46, {TKV}")
    a(f"s_cmp_lt_u32 s46, {KV_HEAD}")
    a("s_cbranch_scc1 L_fb_main")
    a("s_nop 15")
    a("s_branch L_attn_post")

def aux(a):
    a("L_aux:")
    a(f"s_setprio {OPT.get('paux', 0)}")
    a(f"s_sub_u32 s44, s{sWAVE}, 4")
    a("v_lshlrev_b32 v2, 4, v1")
    a("s_waitcnt vmcnt(0)")
    drained(a, 3)
    a("s_cmp_eq_u32 s44, 0")
    a("s_cbranch_scc1 L_kv")
    a("s_cmp_lg_u32 s44, 1")
    a("s_cbranch_scc1 L_aux_wait")
    a("s_lshl_b32 s40, s2, 7")
    a("L_cnt_spin:")
    a(f"ds_read_b32 v3, v23 offset:{W_CNT}")
    a("s_waitcnt lgkmcnt(0)")
    a("v_readfirstlane_b32 s41, v3")
    a("s_nop 0")
    a("s_cmp_lt_u32 s41, 8")
    a("s_cbranch_scc1 L_cnt_spin")
    set_flag(a, 40, 8)
    a("L_aux_wait:")
    a("s_sleep 4")
    a(f"ds_read_b32 v3, v23 offset:{W_PROG}")
    a("s_waitcnt lgkmcnt(0)")
    a("v_readfirstlane_b32 s41, v3")
    a("s_nop 0")
    a(f"s_cmp_lt_u32 s41, {OPT.get('f2w', 6)}")
    a("s_cbranch_scc1 L_aux_wait")
    a("s_branch L_kv_done")
    a("L_kv:")
    a(f"s_mul_i32 s40, s26, {KV_HEAD}")
    make_srd(a, 28, pWS, "s40", KV_HEAD)
    a(f"v_mul_u32_u24 v6, {LPAIR}, v1")
    a("v_min_u32 v6, %d, v6" % (30*LPAIR))
    for r in range(4): a(f"v_mov_b32 v{8+r}, 0x3f803f80")
    a("ds_write_b128 v6, v[8:11] offset:5120")
    for r in range(4): a(f"v_mov_b32 v{12+r}, 0")
    a("ds_write_b128 v6, v[12:15] offset:5136")
    a("v_mov_b32 v16, 0x3f803f80")
    a("v_mov_b32 v17, 0x3f80")
    a("ds_write_b64 v6, v[16:17] offset:5152")
    a("s_lshr_b32 s41, s26, 3")
    a("v_and_b32 v3, 15, v1")
    a("v_and_b32 v4, 1, v1")
    a("s_lshl_b32 s42, s27, 1")
    a("v_add_u32 v4, s42, v4")
    a("v_cmp_gt_u32 vcc, 32, v1")
    a("v_lshrrev_b32 v5, 4, v1")
    a("v_lshl_add_u32 v5, v5, 2, 4")
    a("v_cndmask_b32 v3, v4, v3, vcc")
    a("v_cndmask_b32 v5, 0, v5, vcc")
    a("v_add_u32 v5, s41, v5")
    a("v_cmp_le_u32 vcc, 6, v5")
    a("v_and_b32 v4, 3, v3")
    a("v_lshrrev_b32 v3, 2, v3")
    a("v_cndmask_b32 v6, 0, 1, vcc")
    a("v_mul_u32_u24 v7, 6, v6")
    a("v_sub_u32 v5, v5, v7")
    a("v_lshl_add_u32 v5, v5, 2, v4")
    a("v_lshl_add_u32 v3, v6, 2, v3")
    a("v_lshl_add_u32 v5, v5, 3, v3")
    a("v_lshlrev_b32 v5, 7, v5")
    def poll_once():
        a(f"buffer_load_dwordx2 v[6:7], v5, {sr(sFL,4)}, 0 offen sc1")
        a("s_waitcnt vmcnt(0)")
        a(f"v_cmp_eq_u64 vcc, {sr(sNON,2)}, v[6:7]")
        a("s_sub_u32 s40, s40, 1")
        a("s_cselect_b32 s47, 0xffff, 0")
        a("s_lshr_b32 s45, vcc_lo, 16")
        a("s_and_b32 s45, s45, vcc_lo")
        a("s_or_b32 s45, s45, s47")
    def pub(off, sreg):
        a(f"v_mov_b32 v4, s{sreg}")
        a(f"ds_write_b32 v23, v4 offset:{off}")
    a(f"s_mov_b32 s40, {POLL_MAX}")
    a("L_kv_p1:")
    poll_once()
    a("s_cmp_lg_u32 s47, 0")
    a("s_cbranch_scc1 L_kv_first")
    a("s_cmp_eq_u32 vcc_hi, -1")
    a("s_cselect_b32 s48, s45, 0")
    a("s_cmp_eq_u32 s48, 0")
    a("s_cbranch_scc1 L_kv_p1")
    a("L_kv_first:")
    a("s_ff1_i32_b32 s48, s45")
    a("s_add_u32 s49, s48, 1")
    pub(W_GO, 49)
    stamp(a, 7)
    a("s_lshl_b32 s46, 1, s48")
    a(f"s_mul_i32 s48, s48, {4*TKV}")
    a(f"s_add_u32 s48, s48, {2*TKV}")
    for i in range(5):
        a(f"s_mov_b32 m0, {i*1024}")
        a("s_nop 0")
        a("buffer_load_dwordx4 v2, s[28:31], s48 offen sc1 lds")
        if i < 4: a("s_add_u32 s48, s48, 1024")
    a("s_mov_b32 s50, 1")
    a(f"s_mov_b32 s51, {LPAIR}")
    a("L_kv_next:")
    a("s_andn2_b32 s48, s45, s46")
    a("s_cbranch_scc0 L_kv_poll")
    a("s_ff1_i32_b32 s48, s48")
    a("s_bitset1_b32 s46, s48")
    a(f"s_mul_i32 s48, s48, {4*TKV}")
    for i in range(10):
        a(f"s_add_u32 m0, s51, {i*1024 + (64 if i >= 5 else 0)}")
        if i: a("s_add_u32 s48, s48, 1024")
        else: a("s_nop 0")
        a("buffer_load_dwordx4 v2, s[28:31], s48 offen sc1 lds")
    a(f"s_add_u32 s51, s51, {2*LPAIR}")
    a("s_cmp_eq_u32 s50, 1")
    a("s_cbranch_scc0 L_kv_w20")
    a("s_waitcnt vmcnt(10)")
    pub(W_PROG, 50)
    a("s_mov_b32 s50, 2")
    a("s_branch L_kv_next")
    a("L_kv_w20:")
    a("s_waitcnt vmcnt(20)")
    a("s_sub_u32 s49, s50, 1")
    pub(W_PROG, 49)
    a("s_add_u32 s50, s50, 1")
    a("s_branch L_kv_next")
    a("L_kv_poll:")
    a("s_waitcnt vmcnt(0)")
    pub(W_PROG, 50)
    a("s_cmp_eq_u32 s50, 16")
    a("s_cbranch_scc1 L_kv_done")
    poll_once()
    a("s_branch L_kv_next")
    a("L_kv_done:")
    stamp(a, 8)
    a("v_lshlrev_b32 v5, 7, v1")
    a(f"v_add_u32 v5, {192*128}, v5")
    poll(a, 5, 6, sleep=4)
    a(f"s_setprio {OPT.get('pf2', 3)}")
    a("s_lshr_b32 s40, s44, 1")
    a("s_lshl_b32 s40, s40, 5")
    a(f"s_add_u32 s40, s40, s{sSLOT}")
    a("s_mul_i32 s41, s40, 373")
    a("s_lshr_b32 s41, s41, 12")
    a("s_mul_i32 s42, s41, 11")
    a("s_sub_u32 s42, s40, s42")
    a("s_lshl_b32 s41, s41, 3")
    a(f"s_add_u32 s41, s41, s{sXCD}")
    a("s_cmp_ge_u32 s41, %d" % (0 if OPT.get('nof2') else 33))
    a("s_cbranch_scc1 L_wo")
    a("s_and_b32 s45, s44, 1")
    a("s_mul_i32 s47, s41, 65")
    a("s_mul_i32 s48, s45, 33")
    a("s_add_u32 s47, s47, s48")
    a("s_lshl_b32 s47, s47, 10")
    a(f"s_add_u32 s47, s47, {SEQ_OFF}")
    make_srd(a, 28, pWS, "s47", 33*1024)
    a("s_and_b32 s43, s41, 1")
    a("s_lshl_b32 s47, s45, 1")
    a("s_add_u32 s47, s47, s43")
    a("s_mul_i32 s48, s47, 11")
    a("s_add_u32 s48, s48, s42")
    a(f"s_mul_i32 s48, s48, {33*1024}")
    a(f"s_add_u32 s48, s48, {AB_OFF}")
    make_srd(a, 32, pWS, "s48", 33*1024)
    make_srd(a, 36, pOUT, 0, OUT_SIZE)
    D = OPT.get('f2d', 28); FB = 32; AC = 8
    a("s_cmp_lg_u32 s47, 0")
    a("s_cbranch_scc1 L_f2_nox")
    a(f"s_mov_b32 s49, {32*1024}")
    a("buffer_load_dwordx4 v[24:27], v2, s[28:31], s49 offen sc1")
    a("buffer_load_dwordx4 v[28:31], v2, s[32:35], s49 offen sc1")
    a("L_f2_nox:")
    def issue2(k):
        b = FB + (k % D) * 8
        if k % 4 == 0: a(f"s_mov_b32 s49, {(k//4)*4096}")
        a(f"buffer_load_dwordx4 {vr(b,4)}, v2, s[28:31], s49 offen offset:{(k%4)*1024} sc1")
        a(f"buffer_load_dwordx4 {vr(b+4,4)}, v2, s[32:35], s49 offen offset:{(k%4)*1024} sc1")
    for k in range(D): issue2(k)
    stamp(a, 9)
    for k in range(32):
        a(f"s_waitcnt vmcnt({2*(min(32, k+D)-k-1)})")
        b = FB + (k % D) * 8
        d = vr(AC, 16)
        a(f"v_mfma_f32_32x32x16_bf16 {d}, {vr(b,4)}, {vr(b+4,4)}, {'0' if k == 0 else d}")
        if k + D < 32: issue2(k + D)
    a("s_cmp_lg_u32 s47, 0")
    a("s_cbranch_scc1 L_f2_nox2")
    a(f"v_mfma_f32_32x32x16_bf16 {vr(AC,16)}, v[24:27], v[28:31], {vr(AC,16)}")
    a("L_f2_nox2:")
    a(f"v_mov_b32 v3, {LDS_PROG}")
    a("L_f2_dead:")
    a("ds_read_b128 v[40:43], v3 offset:16")
    a("s_waitcnt lgkmcnt(0)")
    a("v_min3_u32 v40, v40, v41, v42")
    a("v_min_u32 v40, v40, v43")
    a("s_nop 0")
    a("v_readfirstlane_b32 s48, v40")
    a("s_nop 0")
    a("s_cmp_eq_u32 s48, 0")
    a("s_cbranch_scc1 L_f2_dead")
    a("s_lshl_b32 s48, s44, 11")
    a("v_add_u32 v4, s48, v2")
    a("s_lshl_b32 s49, s44, 2")
    a("v_add_u32 v5, s49, v3")
    a("s_xor_b32 s48, s48, 2048")
    a("s_xor_b32 s49, s49, 4")
    a("v_add_u32 v6, s48, v2")
    a("v_add_u32 v7, s49, v3")
    a("s_cmp_lg_u32 s45, 0")
    a("s_cbranch_scc1 L_f2_h1")
    a("ds_write_b128 v4, v[16:19]")
    a("ds_write_b128 v4, v[20:23] offset:1024")
    a("s_branch L_f2_x")
    a("L_f2_h1:")
    a("ds_write_b128 v4, v[8:11]")
    a("ds_write_b128 v4, v[12:15] offset:1024")
    a("L_f2_x:")
    a("ds_write_b32 v5, v3 offset:32")
    a("v_and_b32 v5, 31, v1")
    a("v_lshrrev_b32 v4, 5, v1")
    a("s_lshr_b32 s47, s41, 1")
    a("s_lshl_b32 s47, s47, 6")
    a("s_add_u32 s47, s47, s43")
    a("s_lshl_b32 s48, s45, 5")
    a("s_add_u32 s47, s47, s48")
    a("s_cmp_ge_u32 s42, 6")
    a("s_cselect_b32 s48, 383, 0")
    a("s_lshl_b32 s49, s42, 6")
    a("s_sub_u32 s48, s49, s48")
    a("v_lshl_add_u32 v5, v5, 1, s48")
    a(f"v_mov_b32 v46, {HUGE}")
    a("v_lshlrev_b32 v47, 1, v5")
    a("v_add_u32 v40, 1280, v47")
    a("v_cmp_ge_u32 vcc, 320, v5")
    a("v_sub_u32 v41, 2560, v47")
    a("v_add_u32 v47, -1, v5")
    a("v_cndmask_b32 v40, v46, v40, vcc")
    a("v_cmp_gt_u32 vcc, 319, v47")
    a("v_lshl_add_u32 v47, v4, 3, s47")
    a("v_mul_u32_u24 v47, 2560, v47")
    a("v_cndmask_b32 v41, v46, v41, vcc")
    a(f"v_sub_u32 v44, {(2048-22)*2560}, v47")
    a("v_add_u32 v42, v44, v40")
    a("v_add_u32 v43, v44, v41")
    a("v_add_u32 v40, v47, v40")
    a("v_add_u32 v41, v47, v41")
    a("L_f2_wait:")
    a("ds_read_b32 v45, v7 offset:32")
    a("s_waitcnt lgkmcnt(0)")
    a("v_readfirstlane_b32 s48, v45")
    a("s_nop 0")
    a("s_cmp_lg_u32 s48, 0")
    a("s_cbranch_scc1 L_f2_got")
    a("s_sleep 2")
    a("s_branch L_f2_wait")
    a("L_f2_got:")
    a("s_cmp_lg_u32 s45, 0")
    a("s_cbranch_scc1 L_f2_h1b")
    a("ds_read_b128 v[16:19], v6")
    a("ds_read_b128 v[20:23], v6 offset:1024")
    a("s_branch L_f2_y")
    a("L_f2_h1b:")
    a("ds_read_b128 v[8:11], v6")
    a("ds_read_b128 v[12:15], v6 offset:1024")
    a("L_f2_y:")
    a("s_waitcnt lgkmcnt(0)")
    for r in range(0, 8, 2):
        a(f"v_pk_add_f32 {vr(48+r,2)}, {vr(8+r,2)}, {vr(16+r,2)}")
        a(f"v_pk_add_f32 {vr(56+r,2)}, {vr(8+r,2)}, {vr(16+r,2)} neg_lo:[0,1] neg_hi:[0,1]")
    for r in range(4):
        a(f"v_cvt_pk_bf16_f32 v{48+r}, v{48+2*r}, v{48+2*r+1}")
        a(f"v_cvt_pk_bf16_f32 v{56+r}, v{56+2*r}, v{56+2*r+1}")
    a("s_cmp_eq_u32 s41, 32")
    a("s_cbranch_scc1 L_f2_nyq")
    for r in range(8):
        ro = (r & 3) + 8 * (r >> 2)
        st = "buffer_store_short_d16_hi" if r & 1 else "buffer_store_short"
        a(f"s_mov_b32 s47, {ro*5120}")
        a(f"s_mov_b32 s48, {(11-ro)*5120}")
        a(f"{st} v{56+r//2}, v40, s[36:39], s47 offen{FLF()}")
        a(f"{st} v{48+r//2}, v41, s[36:39], s47 offen{FLF()}")
        if r == 0:
            a(f"v_add_u32 v44, {11*5120}, v42")
            a(f"v_add_u32 v45, {11*5120}, v43")
            a(f"{st} v48, v44, s[36:39], 0 offen{FLF()}")
            a(f"{st} v56, v45, s[36:39], 0 offen{FLF()}")
        else:
            a(f"{st} v{48+r//2}, v42, s[36:39], s48 offen{FLF()}")
            a(f"{st} v{56+r//2}, v43, s[36:39], s48 offen{FLF()}")
    a("s_branch L_f2_fin")
    a("L_f2_nyq:")
    a("s_cmp_lg_u32 s45, 0")
    a("s_cbranch_scc1 L_wo")
    a("v_cmp_eq_u32 vcc, 0, v4")
    a("s_nop 1")
    a("v_cndmask_b32 v40, v46, v40, vcc")
    a("v_cndmask_b32 v41, v46, v41, vcc")
    a(f"buffer_store_short v56, v40, s[36:39], 0 offen{FLF()}")
    a(f"buffer_store_short v48, v41, s[36:39], 0 offen{FLF()}")
    a("L_f2_fin:")
    if OPT.get('wb'):
        a("s_waitcnt vmcnt(0)")
        a("buffer_wbl2 sc1")
    a("L_wo:")
    stamp(a, 10)
    a("s_lshr_b32 s40, s26, 3")
    a("s_lshl_b32 s40, s40, 2")
    a("s_add_u32 s40, s40, s44")
    a(f"s_mul_i32 s40, s40, {50*1024}")
    a(f"s_add_u32 s40, s40, {WO_OFF}")
    make_srd(a, 28, pWS, "s40", 50*1024)
    a("s_waitcnt vmcnt(0)")
    for k in range(50):
        if k % 4 == 0: a(f"s_mov_b32 s49, {(k//4)*4096}")
        a(f"buffer_load_dwordx4 {vr(56+4*k,4)}, v2, s[28:31], s49 offen offset:{(k%4)*1024} sc1")

def tail(a):
    a("L_B_done:")
    a("s_and_b32 s40, s26, 7")
    a("s_lshl_b32 s41, s27, 3")
    a("s_add_u32 s41, s41, s40")
    a(f"s_mul_i32 s42, s41, {32*1280}")
    a(f"s_add_u32 s42, s42, {O_OFF}")
    make_srd(a, 28, pWS, "s42", 32*1280)
    a("v_and_b32 v4, 31, v1")
    a("s_lshl_b32 s42, s27, 7")
    a("s_lshr_b32 s40, s40, 1")
    a("s_add_u32 s42, s42, s40")
    a(f"s_add_u32 s42, s42, {FB}")
    a("v_lshl_add_u32 v4, v4, 2, s42")
    a("v_lshlrev_b32 v4, 7, v4")
    a("s_waitcnt vmcnt(0)")
    stamp(a, 12)
    a("s_barrier")
    stamp(a, 1)
    poll(a, 4, 6, sleep=OPT.get('sl', 0))
    stamp(a, 13)
    a("s_lshl_b32 s40, s44, 10")
    for j in range(10):
        a("s_mov_b32 m0, s40")
        a("s_nop 0")
        a("buffer_load_dwordx4 v2, s[28:31], s40 offen sc1 lds")
        if j < 9: a("s_add_u32 s40, s40, 4096")
    a("v_and_b32 v3, 31, v1")
    a("v_lshrrev_b32 v4, 5, v1")
    a("v_mul_u32_u24 v5, 2560, v4")
    a("v_lshl_add_u32 v5, v3, 3, v5")
    a("v_add_u32 v5, 1024, v5")
    make_srd(a, 32, pOUT, 0, OUT_SIZE)
    a("s_lshl_b32 s41, s41, 5")
    a("v_add_u32 v6, s41, v3")
    a("v_mul_u32_u24 v6, 2560, v6")
    a("s_lshr_b32 s42, s26, 3")
    a("s_mul_i32 s42, s42, 320")
    a("s_waitcnt vmcnt(0)")
    a("s_barrier")
    stamp(a, 14)
    if lib.STAMP: a("s_waitcnt lgkmcnt(0)")
    A5, AM, OB = 8, 24, 40
    a("s_mul_i32 s43, s44, 12800")
    a("v_add_u32 v7, s43, v2")
    def rd(buf, kap, base=None):
        b = OB + 4*buf
        if base is not None: return f"ds_read_b128 {vr(b,4)}, v{base} offset:{kap*1280}"
        if kap < 32: return f"ds_read_b128 {vr(b,4)}, v2 offset:{kap*1280}"
        o = (kap - 32) * 5120 // 8
        return None
    def rd_main(buf, kap):
        b = OB + 4*buf
        if kap < 32: return [f"ds_read_b128 {vr(b,4)}, v2 offset:{kap*1280}"]
        g = kap - 32
        return [f"ds_read_b64 {vr(b,2)}, v5 offset:{g*5120}", f"ds_read_b64 {vr(b+2,2)}, v5 offset:{g*5120+1280}"]
    def stream(steps):
        n = len(steps); cnt = [0]*n
        PF = 3
        for k in range(PF):
            r = steps[k][0](k % 4); cnt[k] = len(r)
            for x in r: a(x)
        for k in range(n):
            out = sum(cnt[k+1:min(n, k+PF)])
            a(f"s_waitcnt lgkmcnt({out})")
            d = vr(steps[k][1], 16)
            a(f"v_mfma_f32_32x32x16_bf16 {d}, {vr(steps[k][2],4)}, {vr(OB+4*(k%4),4)}, {'0' if steps[k][3] else d}")
            if k + PF < n:
                r = steps[k+PF][0]((k+PF) % 4); cnt[k+PF] = len(r)
                for x in r: a(x)
            if k == 13:
                for j in range(4): a(f"ds_write_b128 v3, {vr(A5+4*j,4)} offset:{j*1024}")
                cnt[k+PF] += 4
    main = [((lambda kap: lambda buf: rd_main(buf, kap))(kap), AM, 56 + 4*(10+kap), kap == 0) for kap in range(40)]
    a("s_lshl_b32 s43, s44, 12")
    a("s_add_u32 s43, s43, 40960")
    a("v_add_u32 v3, s43, v2")
    a("s_cmp_eq_u32 s44, 3")
    a("s_cbranch_scc1 L_tail3")
    q5 = [((lambda i: lambda buf: [f"ds_read_b128 {vr(OB+4*buf,4)}, v7 offset:{i*1280}"])(i), A5, 56 + 4*i, i == 0) for i in range(10)]
    stream(q5 + main)
    a("s_branch L_tail_join")
    a("L_tail3:")
    q5 = [((lambda i: lambda buf: rd_main(buf, 30 + i))(i), A5, 56 + 4*i, i == 0) for i in range(10)]
    stream(q5 + main)
    a("L_tail_join:")
    stamp(a, 11)
    a("s_waitcnt lgkmcnt(0)")
    a("s_barrier")
    a("s_lshl_b32 s43, s44, 10")
    a("s_add_u32 s43, s43, 40960")
    a("v_add_u32 v3, s43, v2")
    for i in range(4): a(f"ds_read_b128 {vr(OB+4*i,4)}, v3 offset:{i*4096}")
    a("s_lshl_b32 s43, s44, 6")
    a("s_add_u32 s43, s43, s42")
    a("v_lshl_add_u32 v7, v4, 4, v6")
    a("s_nop 2")
    for r in range(8): a(f"v_cvt_pk_bf16_f32 v{AM+r}, v{AM+2*r}, v{AM+2*r+1}")
    a("s_nop 1")
    for h2 in range(2):
        a(f"v_permlane32_swap_b32 v{AM+4*h2}, v{AM+4*h2+2}")
        a(f"v_permlane32_swap_b32 v{AM+4*h2+1}, v{AM+4*h2+3}")
    for h2 in range(2):
        a(f"buffer_store_dwordx4 {vr(AM+4*h2,4)}, v7, s[32:35], s43 offen offset:{32*h2}{FLP()}")
    a("s_waitcnt lgkmcnt(0)")
    for i in range(1, 4):
        a(f"v_pk_add_f32 {vr(OB,2)}, {vr(OB,2)}, {vr(OB+4*i,2)}")
        a(f"v_pk_add_f32 {vr(OB+2,2)}, {vr(OB+2,2)}, {vr(OB+4*i+2,2)}")
    a("s_lshl_b32 s43, s44, 4")
    a("s_add_u32 s43, s43, s42")
    a("v_lshl_add_u32 v7, v4, 3, v6")
    a(f"v_cvt_pk_bf16_f32 v{OB}, v{OB}, v{OB+1}")
    a(f"v_cvt_pk_bf16_f32 v{OB+1}, v{OB+2}, v{OB+3}")
    a(f"buffer_store_dwordx2 {vr(OB,2)}, v7, s[32:35], s43 offen offset:256{FLP()}")
    a("L_end:")
    if OPT.get('pad'):
        a("L_pad:")
        a("s_memrealtime s[40:41]")
        a("s_waitcnt lgkmcnt(0)")
        a(f"s_sub_u32 s40, s40, s{sNON}")
        a(f"s_cmp_lt_u32 s40, {OPT['pad']}")
        a("s_cbranch_scc1 L_pad")
    if lib.STAMP:
        a("s_waitcnt vmcnt(0)")
        stamp(a, 15); stamp_real(a, 17)
        stamp_flush(a, 18, pWS, sWAVE, 0)
    a("L_exit:")
    a("s_endpgm")

KNAME = "concat_heads__mha_block__spectral_fnet__prompt_kernel"
def kernel(a):
    kernel_header(a, KNAME)
    a("s_cmp_ge_u32 s2, 256")
    a("s_cbranch_scc1 L_exit")
    if lib.STAMP:
        for i in range(18): a(f"s_mov_b32 s{60+2*i}, 0")
    stamp(a, 0); stamp_real(a, 16)
    a("s_load_dwordx8 s[4:11], s[0:1], 0")
    a("s_load_dwordx4 s[12:15], s[0:1], 64")
    a("s_load_dwordx2 s[16:17], s[0:1], 80")
    a("v_lshrrev_b32 v1, 6, v0")
    a(f"s_and_b32 s{sXCD}, s2, 7")
    a(f"v_readfirstlane_b32 s{sWAVE}, v1")
    a(f"s_lshr_b32 s{sSLOT}, s2, 3")
    a("v_and_b32 v1, 63, v0")
    a(f"s_and_b32 s26, s{sXCD}, 3")
    a("s_lshl_b32 s26, s26, 2")
    a(f"s_and_b32 s27, s{sSLOT}, 3")
    a("s_add_u32 s26, s26, s27")
    a(f"s_lshr_b32 s27, s{sXCD}, 2")
    a("s_mul_i32 s27, s27, 6")
    a(f"s_lshr_b32 s40, s{sSLOT}, 2")
    a("s_add_u32 s27, s27, s40")
    a(f"s_lshl_b32 s40, s2, 3")
    a(f"s_add_u32 s40, s40, s{sWAVE}")
    a("s_waitcnt lgkmcnt(0)")
    make_srd(a, sFL, pWS, FL_OFF, FL_SIZE)
    a("s_cmp_lg_u32 s40, 7")
    a("s_cbranch_scc1 L_no_nonce")
    a("s_memrealtime s[40:41]")
    make_srd(a, 28, pDBG, 0, 256)
    a("s_waitcnt lgkmcnt(0)")
    a("s_or_b32 s40, s40, 1")
    a("v_mov_b32 v2, s40")
    a("v_mov_b32 v3, s41")
    a("v_mov_b32 v4, 0")
    a("buffer_store_dwordx2 v[2:3], v4, s[28:31], 0 offen sc1")
    a("L_no_nonce:")
    a(f"s_cmp_lg_u32 s{sWAVE}, 0")
    a("s_cbranch_scc1 L_no_init")
    a(f"v_mov_b32 v2, {LDS_PROG}")
    a("v_mov_b32 v4, 0")
    a("v_mov_b32 v5, 0")
    for i in range(8): a(f"ds_write_b64 v2, v[4:5] offset:{8*i}")
    a("s_waitcnt lgkmcnt(0)")
    a("L_no_init:")
    if OPT.get('touch'):
        a(f"s_cmp_lg_u32 s{sWAVE}, 1")
        a("s_cbranch_scc1 L_no_code")
        a("s_getpc_b64 s[40:41]")
        a("L_pc:")
        a(f"s_sub_u32 s40, s40, L_pc-{KNAME}")
        a("s_subb_u32 s41, s41, 0")
        a(f"s_and_b32 s42, s{sSLOT}, 7")
        a("s_lshl_b32 s42, s42, 12")
        a("v_lshlrev_b32 v2, 4, v1")
        a("v_add_u32 v2, s42, v2")
        a(f"v_min_u32 v2, L_exit-{KNAME}-3072-16, v2")
        for i in range(4): a(f"global_load_dwordx4 v[164:167], v2, s[40:41] offset:{i*1024}")
        a("L_no_code:")
        a(f"s_cmp_lg_u32 s{sWAVE}, 2")
        a("s_cbranch_scc1 L_no_tlb")
        make_srd(a, 28, pWS, 0, FL_OFF + FL_SIZE)
        a("v_mul_u32_u24 v2, 0x44000, v1")
        a("buffer_load_dword v164, v2, s[28:31], 0 offen sc1")
        make_srd(a, 28, pOUT, 0, OUT_SIZE)
        a("v_mul_u32_u24 v2, 0x14000, v1")
        a("buffer_load_dword v165, v2, s[28:31], 0 offen sc1")
        a("L_no_tlb:")
    a(f"s_cmp_ge_u32 s{sSLOT}, 24")
    a("s_cbranch_scc1 L_prep")
    a(f"s_cmp_lt_u32 s{sWAVE}, 4")
    a("s_cbranch_scc1 L_compute")
    gemm_loader(a)
    gemm_compute(a)
    prep(a)
    a_done(a)
    attention(a)
    aux(a)
    tail(a)
    return kernel_desc(KNAME, 256, 100)

HEADER = open('concat_heads__mha_block__spectral_fnet__prompt.s.ref').read().split("; Override")[0]
def main(out):
    a = Asm()
    a('.amdgcn_target "amdgcn-amd-amdhsa--gfx950"')
    a(".text")
    d = kernel(a)
    txt = HEADER + "; @launch grid=(256,1,1) block=(512,1,1) lds=163840\n" + a.text() + '.section .rodata,"a"\n.p2align 6\n' + d
    open(out, "w").write(txt)

if __name__ == "__main__":
    for x in sys.argv[2:]:
        if x == "stamp": lib.STAMP = True
        elif x == "gst": lib.STAMP = True; lib.STAMPSET = 1
        elif x == "cst": lib.STAMP = True; lib.STAMPSET = 2
        else:
            k, _, v = x.partition("=")
            OPT[k] = int(v) if v else 1
    main(sys.argv[1] if len(sys.argv) > 1 else "v9.s")
```

```python
import sys, struct
from lib import *
import lib

TKV = 2560; KV_HEAD = 64*TKV; KV_OFF = 0; KV_SIZE = 32*KV_HEAD
TQ = 1280; Q_HEAD = 64*TQ; Q_OFF = KV_SIZE; Q_SIZE = 32*Q_HEAD
O_OFF = Q_OFF + Q_SIZE; O_SIZE = 64*32*1280
SEQ_OFF = O_OFF + O_SIZE; SEQ_SIZE = 33*65*1024
AB_OFF = SEQ_OFF + SEQ_SIZE; AB_SIZE = 4*11*33*1024
WO_OFF = AB_OFF + AB_SIZE; WO_SIZE = 16*50*1024
FL_OFF = 16*1024*1024; FL_SIZE = 1280*128
FA, FB = 0, 256
X_SIZE = 2048*1280; OUT_SIZE = 2048*2560
HUGE = 0x40000000
QSCALE = (20 ** -0.5) * 1.4426950408889634
NDMA = 155; LPAIR = 5184
LDS_PROG = 31*LPAIR
def lds_tile(t): return ((t-2)>>1)*LPAIR + ((t-2)&1)*TKV
def need(tile): return ((tile-1)*TKV + 4095)//4096
NEED = [need(4), need(7), need(15), need(23), 39]
POLL_MAX = 200000
def f32bits(x): return struct.unpack('<I', struct.pack('<f', x))[0]
OPT = {}
FLS = ['', ' sc1', ' nt', ' sc0 sc1', ' sc1 nt']
def FLP(): return FLS[OPT.get('flp', 0)]
def FLF(): return FLS[OPT.get('flf', 1)]

sWAVE = 3
pX, pW, pWO, pBX, pOUT, pDBG, pWS = 4, 6, 8, 10, 12, 14, 16
sNON = 18
sFL = 20
sXCD, sSLOT = 24, 25
STG = 36864
NS = 4

def poll(a, vaddr, vtmp, cnt=40, sleep=1):
    l = a.label("L_poll"); d = a.label("L_pollok")
    a(f"s_mov_b32 s{cnt}, {POLL_MAX}")
    a(f"{l}:")
    a(f"buffer_load_dwordx2 {vr(vtmp,2)}, v{vaddr}, {sr(sFL,4)}, 0 offen sc1")
    a("s_waitcnt vmcnt(0)")
    a(f"v_cmp_ne_u64 vcc, {sr(sNON,2)}, {vr(vtmp,2)}")
    a(f"s_sub_u32 s{cnt}, s{cnt}, 1")
    a(f"s_cbranch_vccz {d}")
    a(f"s_cmp_eq_u32 s{cnt}, 0")
    a(f"s_cbranch_scc1 {d}")
    if sleep: a(f"s_sleep {sleep}")
    a(f"s_branch {l}")
    a(f"{d}:")

def get_nonce(a, vt, srd=28, cnt=40):
    make_srd(a, srd, pDBG, 0, 256)
    l = a.label("L_non"); d = a.label("L_nonok")
    a(f"v_mov_b32 v{vt}, 0")
    a(f"s_mov_b32 s{cnt}, {POLL_MAX}")
    a(f"{l}:")
    a(f"buffer_load_dwordx2 {vr(vt+2,2)}, v{vt}, {sr(srd,4)}, 0 offen sc1")
    a("s_waitcnt vmcnt(0)")
    a(f"v_readfirstlane_b32 s{sNON}, v{vt+2}")
    a(f"v_readfirstlane_b32 s{sNON+1}, v{vt+3}")
    a(f"s_sub_u32 s{cnt}, s{cnt}, 1")
    a(f"s_cmp_lg_u32 s{sNON}, 0")
    a(f"s_cbranch_scc1 {d}")
    a(f"s_cmp_eq_u32 s{cnt}, 0")
    a(f"s_cbranch_scc1 {d}")
    a("s_sleep 2")
    a(f"s_branch {l}")
    a(f"{d}:")

def set_flag(a, sidx, vt):
    for i in range(4): a(f"v_mov_b32 v{vt+i}, s{sNON+(i&1)}")
    a(f"v_lshlrev_b32 v{vt+4}, 4, v1")
    a("s_mov_b64 exec, 0xff")
    a(f"buffer_store_dwordx4 {vr(vt,4)}, v{vt+4}, {sr(sFL,4)}, s{sidx} offen sc1")
    a("s_mov_b64 exec, -1")

def gemm_loader(a):
    sA, sB = 28, 32
    a("L_loader:")
    a("s_mul_i32 s40, s26, 163840")
    make_srd(a, sA, pX, "s40", 163840)
    a(f"s_sub_u32 s44, s{sWAVE}, 4")
    a("v_lshrrev_b32 v2, 3, v1")
    a("s_lshl_b32 s40, s44, 3")
    a("v_add_u32 v2, s40, v2")
    a("v_mul_u32_u24 v2, 1280, v2")
    a("v_lshrrev_b32 v3, 4, v1")
    a("s_and_b32 s40, s44, 1")
    a("s_lshl_b32 s40, s40, 2")
    a("v_or_b32 v4, s40, v3")
    a("v_and_b32 v5, 7, v1")
    a("v_xor_b32 v4, v4, v5")
    a("v_lshl_add_u32 v10, v4, 4, v2")
    a("s_lshl_b32 s45, s44, 10")
    a(f"s_lshr_b32 s40, s{sSLOT}, 2")
    a(f"s_mul_i32 s40, s40, {OPT.get('ra', 1)}")
    a(f"s_and_b32 s41, s{sSLOT}, 3")
    a(f"s_mul_i32 s41, s41, {OPT.get('rb', 1)}")
    a("s_add_u32 s40, s40, s41")
    a(f"s_mul_i32 s41, s{sXCD}, {OPT.get('rc', 3)}")
    a("s_add_u32 s40, s40, s41")
    a("s_mul_i32 s41, s40, 6554")
    a("s_lshr_b32 s41, s41, 16")
    a("s_mul_i32 s41, s41, 10")
    a("s_sub_u32 s47, s40, s41")
    def issue_x(c):
        sl = c % NS
        a("s_lshl_b32 s48, s47, 7")
        for j in range(4):
            a(f"s_add_u32 m0, s45, {sl*STG + j*4096}")
            if j: a(f"s_add_u32 s48, s48, 40960")
            else: a("s_mul_i32 s49, s47, 245760")
            a(f"buffer_load_dwordx4 v10, {sr(sA,4)}, s48 offen lds")
    def issue_w(c):
        sl = c % NS
        for i in range(5):
            a(f"s_add_u32 m0, s46, {sl*STG + 16384 + i*1024 - i*64}")
            if i == 0:
                a("s_add_u32 s47, s47, 1")
            elif i == 1:
                a("s_cmp_eq_u32 s47, 10")
                a("s_cmov_b32 s47, 0")
            else: a("s_nop 0")
            a(f"buffer_load_dwordx4 v11, {sr(sB,4)}, s49 offen offset:{i*64} lds")
    def issue(c): issue_x(c); issue_w(c)
    stamp(a, 12, 1)
    issue_x(0)
    stamp(a, 13, 1)
    a("s_mul_i32 s40, s27, 320")
    a("s_sub_u32 s41, 2457600, s40")
    make_srd(a, sB, pW, "s40", "s41")
    a("s_lshl_b32 s40, s44, 4")
    a("v_lshrrev_b32 v2, 2, v1")
    a("v_add_u32 v2, s40, v2")
    a("v_mul_u32_u24 v2, 3840, v2")
    a("v_and_b32 v3, 3, v1")
    a("v_lshl_add_u32 v11, v3, 4, v2")
    a("s_mul_i32 s46, s44, 5120")
    issue_w(0)
    stamp(a, 14, 1)
    issued = 1
    pre = OPT.get('pre', 2)
    for c in range(1, pre): issue(c); issued += 1
    for c in range(10):
        a(f"s_waitcnt vmcnt({9*(issued-c-1)})")
        if c in (0, 9): stamp(a, {0: 2, 9: 5}[c])
        stamp(a, c + 1, 1)
        a("s_barrier")
        if c == 0: stamp(a, 11, 1)
        while issued < min(10, c + 1 + (OPT.get('dep', 2) if c < OPT.get('depsw', 10) else 3)): issue(issued); issued += 1
    get_nonce(a, 2)
    a("s_branch L_A_done")

AX, AWA, EA = 8, 156, 16
FR = 24
ACC = 72
def gemm_loop(a, isv):
    def reads(kk):
        sl, ks = divmod(kk, 4); so = sl * STG
        b = FR + (kk & 1) * 24
        r = [f"ds_read_b128 {vr(b,4)}, v{AX+ks} offset:{so}"]
        for T in range(5):
            for t in range(2):
                o = so + ks*5120 + t*256
                if isv: r.append(f"ds_read_b64_tr_b16 {vr(b+4+4*T+2*t,2)}, v{AWA} offset:{o + 1024*T}")
                else: r.append(f"ds_read_b64_tr_b16 {vr(b+4+4*T+2*t,2)}, v{AWA+T} offset:{o}")
        return r
    def mfma(kk, T):
        b = FR + (kk & 1) * 24
        d = vr(ACC + 16*T, 16); w = vr(b + 4 + 4*T, 4); x = vr(b, 4)
        return f"v_mfma_f32_32x32x16_bf16 {d}, {x}, {w}, {d}" if isv else f"v_mfma_f32_32x32x16_bf16 {d}, {w}, {x}, {d}"
    for r in range(80): a(f"v_mov_b32 v{ACC+r}, 0")
    a(f"s_mov_b32 s40, {2*STG}")
    a("s_mov_b32 s41, 5")
    stamp(a, 1)
    a("s_barrier")
    stamp(a, 2)
    for r in reads(0): a(r)
    lp = a.label("L_gemm"); last = a.label("L_gemm_last"); done = a.label("L_gemm_done")
    a(".p2align 3")
    a(f"{lp}:")
    for kk in range(8):
        a("s_waitcnt lgkmcnt(0)")
        a(mfma(kk, 0))
        if kk == 7:
            a("s_sub_u32 s41, s41, 1")
            a("s_cmp_eq_u32 s41, 0")
            a(f"s_cbranch_scc1 {last}")
            for i in range(4): a(f"v_add_u32 v{AX+i}, s40, v{AX+i}")
            for i in range(1 if isv else 5): a(f"v_add_u32 v{AWA+i}, s40, v{AWA+i}")
            a("s_sub_u32 s40, 0, s40")
        if kk in (3, 7): a("s_barrier")
        nx = reads((kk + 1) & 7)
        for r in nx[0:3]: a(r)
        a(mfma(kk, 1))
        for r in nx[3:6]: a(r)
        a(mfma(kk, 2))
        for r in nx[6:9]: a(r)
        a(mfma(kk, 3))
        for r in nx[9:11]: a(r)
        a(mfma(kk, 4))
    a(f"s_branch {lp}")
    a(f"{last}:")
    for T in range(1, 5): a(mfma(7, T))
    stamp(a, 5)

def gemm_compute(a):
    a("L_compute:")
    a("v_and_b32 v2, 31, v1")
    a("v_lshrrev_b32 v3, 5, v1")
    a(f"s_lshl_b32 s40, s{sWAVE}, 5")
    a("v_add_u32 v4, s40, v2")
    a("v_lshlrev_b32 v4, 7, v4")
    a("v_bfe_u32 v5, v1, 1, 3")
    a("v_xor_b32 v5, v5, v3")
    for ks in range(4):
        a(f"v_xor_b32 v6, {2*ks}, v5")
        a(f"v_lshl_add_u32 v{AX+ks}, v6, 4, v4")
    a("v_bfe_u32 v4, v1, 2, 2")
    a("v_lshl_add_u32 v4, v3, 3, v4")
    a("v_lshlrev_b32 v4, 6, v4")
    a("v_add_u32 v4, 16384, v4")
    a("v_and_b32 v5, 3, v1")
    a("v_bfe_u32 v6, v1, 4, 1")
    a("v_lshl_add_u32 v5, v6, 2, v5")
    a(f"v_lshl_add_u32 v{AWA}, v5, 3, v4")
    a("s_lshl_b32 s42, s26, 2")
    a(f"s_add_u32 s42, s42, s{sWAVE}")
    a("s_and_b32 s43, s27, 3")
    a("s_lshl_b32 s43, s43, 3")
    a("s_cmp_ge_u32 s27, 8")
    a("s_cbranch_scc1 L_compute_v")
    for T in range(5):
        if T < 4: a(f"v_add_u32 v6, {10*T+1}, v5")
        else:
            a("v_lshrrev_b32 v6, 1, v5")
            a("v_mul_u32_u24 v6, 10, v6")
            a("v_and_b32 v7, 1, v5")
            a("v_mul_u32_u24 v7, 9, v7")
            a("v_add_u32 v6, v6, v7")
        a("v_and_b32 v7, 7, v6")
        a("v_lshl_add_u32 v7, v7, 3, v4")
        a("v_lshrrev_b32 v6, 3, v6")
        a(f"v_lshl_add_u32 v{AWA+T}, v6, 10, v7")
    a("s_cmp_ge_u32 s27, 4")
    for reg, k, q in [(44, KV_HEAD, Q_HEAD), (45, TKV, TQ), (46, f32bits(1.0), f32bits(QSCALE)), (47, KV_OFF, Q_OFF), (48, KV_SIZE, Q_SIZE)]:
        a(f"s_mov_b32 s{reg}, {q}")
        a(f"s_cmov_b32 s{reg}, {k}")
    make_srd(a, 28, pWS, "s47", "s48")
    a("s_mul_i32 s47, s43, s44")
    a("s_mul_i32 s48, s42, s45")
    a("s_add_u32 s47, s47, s48")
    a(f"v_lshlrev_b32 v{EA}, 4, v1")
    a("v_mul_lo_u32 v4, v3, s44")
    a("v_lshl_add_u32 v4, v2, 3, v4")
    a(f"v_add_u32 v{EA+1}, 1024, v4")
    gemm_loop(a, False)
    a("s_mov_b32 s48, s47")
    a("s_nop 7")
    for T in range(5):
        b = ACC + 16*T
        if T == 4: a("s_nop 3")
        for r in range(16): a(f"v_mul_f32 v{b+r}, s46, v{b+r}")
        for r in range(8): a(f"v_cvt_pk_bf16_f32 v{b+r}, v{b+2*r}, v{b+2*r+1}")
        if T < 4:
            for hq in range(2):
                a(f"buffer_store_dwordx4 {vr(b+4*hq,4)}, v{EA}, s[28:31], s48 offen sc1")
                a("s_add_u32 s48, s48, s44")
        else:
            a("s_lshl_b32 s44, s44, 1")
            for j in range(4):
                a(f"buffer_store_dwordx2 {vr(b+2*j,2)}, v{EA+1}, s[28:31], s47 offen sc1")
                if j < 3: a("s_add_u32 s47, s47, s44")
    a("s_branch L_A_done")
    a("L_compute_v:")
    make_srd(a, 28, pWS, KV_OFF, KV_SIZE)
    a(f"s_mov_b32 s44, {KV_HEAD}")
    a("s_mul_i32 s47, s43, s44")
    a(f"s_mul_i32 s48, s42, {TKV}")
    a("s_add_u32 s47, s47, s48")
    for T in range(5):
        a(f"v_add_u32 v4, {32*T}, v2")
        a("v_mul_u32_u24 v5, 3277, v4")
        a("v_lshrrev_b32 v5, 16, v5")
        a("v_mul_u32_u24 v6, 20, v5")
        a("v_sub_u32 v4, v4, v6")
        a("v_and_b32 v6, 28, v4")
        a("v_add_u32 v4, v4, v6")
        a("v_lshl_add_u32 v4, v3, 2, v4")
        a("v_mul_lo_u32 v5, v5, s44")
        a("v_lshl_add_u32 v4, v4, 4, v5")
        a(f"v_add_u32 v{EA+T}, 1280, v4")
    gemm_loop(a, True)
    a("s_nop 8")
    for T in range(5):
        b = ACC + 16*T
        if T == 4: a("s_nop 3")
        for r in range(8): a(f"v_cvt_pk_bf16_f32 v{b+r}, v{b+2*r}, v{b+2*r+1}")
        for jp in range(2):
            a(f"buffer_store_dwordx4 {vr(b+4*jp,4)}, v{EA+T}, s[28:31], s47 offen offset:{jp*640} sc1")
    a("s_branch L_A_done")

SWD = [42, 43, 44, 56, 57]
def side_work(a):
    a("s_sub_u32 s53, s2, 192")
    a("s_mul_i32 s53, s53, 3")
    a(f"s_add_u32 s53, s53, s{sWAVE}")
    a("s_sub_u32 s53, s53, 5")
    a("v_lshlrev_b32 v22, 4, v1")
    make_srd(a, 32, pWO, 0, 819200)
    make_srd(a, 28, pWS, SEQ_OFF, WO_OFF + WO_SIZE - SEQ_OFF)
    WR = 32
    for n in range(5):
        if n == 4:
            a("s_cmp_ge_u32 s53, 32")
            a("s_cbranch_scc1 L_sw_wo_ld")
        a(f"s_add_u32 s40, s53, {192*n}")
        a("s_mul_i32 s41, s40, 1639")
        a("s_lshr_b32 s41, s41, 16")
        a("s_mul_i32 s58, s41, 40")
        a("s_sub_u32 s58, s40, s58")
        a("s_mul_i32 s59, s58, 20")
        a("s_mul_i32 s55, s58, 80")
        a("s_sub_u32 s55, s55, %d" % (32*80 - 16))
        a("s_cmp_lt_u32 s58, 32")
        a("s_cselect_b32 s45, 4, 40")
        a("s_cselect_b32 s59, s59, s55")
        a(f"s_mov_b32 s46, {20*1280}")
        a(f"s_cmov_b32 s46, {8*1280}")
        a("v_mul_u32_u24 v4, s45, v3")
        a("v_add_u32 v4, s59, v4")
        a("v_mul_u32_u24 v4, 1280, v4")
        a("s_lshl_b32 s59, s41, 6")
        a("v_lshl_add_u32 v4, v2, 1, v4")
        a("v_add_u32 v4, s59, v4")
        b = WR + 8*n
        for grp in range(2):
            so = "s46" if grp else "0"
            for i in range(4):
                a(f"buffer_load_ushort v{b+4*grp+i}, v4, s[32:35], {so} offen offset:{i*1280}")
        a("s_mul_i32 s59, s41, 52")
        a("s_lshr_b32 s59, s59, 8")
        a("s_mul_i32 s55, s59, 5")
        a("s_sub_u32 s55, s41, s55")
        a("s_mul_i32 s45, s58, 26")
        a("s_lshr_b32 s45, s45, 8")
        a("s_mul_i32 s47, s45, 10")
        a("s_sub_u32 s47, s58, s47")
        a("s_add_u32 s58, s58, 10")
        a("s_cmp_lt_u32 s55, 4")
        a("s_cselect_b32 s55, s55, s45")
        a("s_cselect_b32 s58, s58, s47")
        a("s_lshl_b32 s59, s59, 2")
        a("s_add_u32 s59, s59, s55")
        a("s_mul_i32 s59, s59, 50")
        a("s_add_u32 s59, s59, s58")
        a("s_lshl_b32 s59, s59, 10")
        a(f"s_add_u32 s{SWD[n]}, s59, {WO_OFF - SEQ_OFF}")
    a("L_sw_wo_ld:")
    G = 80
    a("s_mov_b32 s54, s53")
    a("v_lshlrev_b32 v23, 3, v3")
    a(f"s_mov_b32 s55, {f32bits(1.0/2048)}")
    a("v_cmp_gt_u32 vcc, 32, v1")
    a("L_sw_gen:")
    a("s_lshr_b32 s41, s54, 5")
    a("s_and_b32 s58, s54, 31")
    a("s_lshr_b32 s59, s41, 1")
    a("s_lshl_b32 s59, s59, 6")
    a("s_and_b32 s47, s41, 1")
    a("s_add_u32 s59, s59, s47")
    a("v_lshl_add_u32 v4, v2, 1, s59")
    a("s_mul_i32 s45, s41, 65")
    a("s_add_u32 s45, s45, s58")
    a("s_lshl_b32 s45, s45, 10")
    a(f"s_add_u32 s46, s45, {33*1024}")
    a("s_lshl_b32 s48, s58, 4")
    a("v_add_u32 v5, s48, v23")
    a("v_mul_u32_u24 v5, v4, v5")
    a("v_cvt_f32_u32 v5, v5")
    a("v_cvt_f32_u32 v4, v4")
    for i in range(8):
        if i: a("v_add_f32 v5, v5, v4")
        a(f"v_mul_f32 v{G+i}, s55, v5")
    for i in range(8): a(f"v_fract_f32 v{G+i}, v{G+i}")
    for i in range(8): a(f"v_cos_f32 v{G+8+i}, v{G+i}")
    a("s_cmp_lg_u32 s58, 0")
    a("s_cbranch_scc1 L_gen_plain")
    a("v_mul_f32 v6, 0x3e800000, v4")
    a("v_fract_f32 v6, v6")
    a(f"v_cndmask_b32 v{G}, v{G}, v6, vcc")
    a("v_cos_f32 v7, v6")
    a(f"v_mov_b32 v{G+25}, 0")
    a(f"v_mov_b32 v{G+26}, 0")
    a(f"v_mov_b32 v{G+27}, 0")
    a("v_cndmask_b32 v7, 0, v7, vcc")
    a(f"v_cvt_pk_bf16_f32 v{G+24}, v7, 0")
    a(f"s_add_u32 s48, s45, {32*1024}")
    a(f"buffer_store_dwordx4 {vr(G+24,4)}, v22, s[28:31], s48 offen sc1")
    a("L_gen_plain:")
    for i in range(8): a(f"v_sin_f32 v{G+i}, v{G+i}")
    for i in range(4): a(f"v_cvt_pk_bf16_f32 v{G+16+i}, v{G+8+2*i}, v{G+9+2*i}")
    for i in range(4): a(f"v_cvt_pk_bf16_f32 v{G+20+i}, v{G+2*i}, v{G+1+2*i}")
    a(f"buffer_store_dwordx4 {vr(G+16,4)}, v22, s[28:31], s45 offen sc1")
    a(f"buffer_store_dwordx4 {vr(G+20,4)}, v22, s[28:31], s46 offen sc1")
    a("s_add_u32 s54, s54, 192")
    a("s_cmp_lt_u32 s54, 1056")
    a("s_cbranch_scc1 L_sw_gen")

def side_work_finish(a):
    WR = 32
    l = a.label("L_sw_fin")
    a("s_waitcnt vmcnt(10)")
    for n in range(5):
        if n == 4:
            a("s_cmp_ge_u32 s53, 32")
            a(f"s_cbranch_scc1 {l}")
        b = WR + 8*n
        for i in range(4): a(f"v_lshl_or_b32 v{b+i}, v{b+2*i+1}, 16, v{b+2*i}")
        a(f"buffer_store_dwordx4 {vr(b,4)}, v22, s[28:31], s{SWD[n]} offen sc1")
    a(f"{l}:")

def prep(a):
    a("L_prep:")
    a(f"s_sub_u32 s40, s{sSLOT}, 24")
    a("s_and_b32 s27, s40, 1")
    a("s_lshr_b32 s26, s40, 1")
    a("s_lshl_b32 s26, s26, 3")
    a(f"s_add_u32 s26, s26, s{sXCD}")
    make_srd(a, 36, pWS, AB_OFF, AB_SIZE)
    a(f"s_cmp_ge_u32 s{sWAVE}, 5")
    a("s_cbranch_scc1 L_fold_skip")
    make_srd(a, 28, pBX, 0, X_SIZE)
    a("s_lshl_b32 s42, s26, 4")
    a("v_lshrrev_b32 v2, 3, v1")
    a("v_and_b32 v3, 7, v1")
    a("v_add_u32 v4, s42, v2")
    a("v_mul_u32_u24 v5, 1280, v4")
    a("v_lshlrev_b32 v6, 4, v3")
    a("v_add_u32 v10, v5, v6")
    a("v_sub_u32 v7, v6, v5")
    a(f"s_lshl_b32 s44, s27, 1")
    a(f"s_add_u32 s44, s44, s{sWAVE}")
    a("s_cmp_ge_u32 s44, 5")
    a("s_cselect_b32 s45, 5, 0")
    a("s_sub_u32 s44, s44, s45")
    a("s_lshl_b32 s44, s44, 7")
    a("s_add_u32 s45, s44, 10240")
    a(f"v_add_u32 v11, {2048*1280}, v7")
    a(f"v_add_u32 v12, {1024*1280}, v7")
    a("v_cmp_ne_u32 vcc, 0, v4")
    a(f"v_mov_b32 v8, {HUGE}")
    a(f"v_add_u32 v9, {1024*1280}, v10")
    a("v_cndmask_b32 v13, v8, v9, vcc")
    LD = 32
    for hf in range(2):
        for r in range(4): a(f"buffer_load_dwordx4 {vr(LD+8*r+4*hf,4)}, v{10+r}, s[28:31], s44 offen offset:{640*hf}")
    a("v_subrev_u32 v11, 10240, v11")
    a("v_subrev_u32 v12, 10240, v12")
    for hf in range(2):
        for r, (vv, so) in enumerate([(10, 45), (11, 44), (12, 44), (9, 45)]):
            a(f"buffer_load_dwordx4 {vr(LD+32+8*r+4*hf,4)}, v{vv}, s[28:31], s{so} offen offset:{640*hf}")
    XL = 96
    a("s_cmp_lg_u32 s26, 0")
    a("s_cbranch_scc1 L_fold_nx")
    a(f"v_add_u32 v14, {512*1280}, v6")
    a(f"v_add_u32 v15, {1536*1280}, v6")
    a("v_cndmask_b32 v14, v14, v8, vcc")
    a("v_cndmask_b32 v15, v15, v8, vcc")
    for r in range(2):
        for hf in range(2):
            a(f"buffer_load_dwordx4 {vr(XL+8*r+4*hf,4)}, v{14+r}, s[28:31], s44 offen offset:{640*hf}")
    a("L_fold_nx:")
    a("v_and_b32 v5, 3, v2")
    a("v_lshrrev_b32 v4, 2, v2")
    a("v_lshl_or_b32 v5, v4, 3, v5")
    a("v_xor_b32 v5, v5, v3")
    a("v_and_b32 v4, 1, v3")
    a("v_lshl_add_u32 v5, v4, 5, v5")
    a("v_lshlrev_b32 v5, 4, v5")
    a("v_lshrrev_b32 v4, 1, v3")
    a("v_lshl_add_u32 v5, v4, 10, v5")
    a("s_lshl_b32 s45, s44, 5")
    a("v_add_u32 v16, s45, v5")
    a("v_xor_b32 v18, 64, v16")
    a("v_add_u32 v5, s44, v6")
    a("v_add_u32 v17, 40960, v5")
    a("v_lshlrev_b32 v6, 4, v1")
    a("v_add_u32 v6, 43008, v6")
    a("v_cndmask_b32 v17, v17, v6, vcc")
    a("L_fold_skip:")
    a("v_and_b32 v2, 31, v1")
    a("v_lshrrev_b32 v3, 5, v1")
    a("v_lshlrev_b32 v15, 4, v1")
    a(f"s_lshr_b32 s40, s{sWAVE}, 1")
    a("s_add_u32 s40, s40, 2")
    a(f"s_and_b32 s41, s{sWAVE}, 1")
    a(f"s_cmp_lt_u32 s{sWAVE}, 4")
    a(f"s_cselect_b32 s49, s{sWAVE}, s40")
    a("s_cselect_b32 s50, 0, s41")
    a("s_lshl_b32 s54, s49, 6")
    a("s_add_u32 s54, s54, s27")
    a("v_lshl_add_u32 v4, v2, 1, s54")
    AU = 10; SB = [[176, 184], [192, 200]]; HB = [[208, 212], [216, 220]]; UB = [72, 84, 96, 108]; ACC3 = [224, 240, 32]; PH = 112
    a("s_mul_i32 s52, s50, 20480")
    for jj in range(4):
        a(f"v_xor_b32 v5, {2*jj}, v3")
        a("v_xor_b32 v5, v5, v2")
        a("v_lshl_add_u32 v5, v3, 5, v5")
        a("v_lshlrev_b32 v5, 4, v5")
        a(f"v_add_u32 v5, {jj*1024}, v5")
        a(f"v_add_u32 v{AU+jj}, s52, v5")
    a(f"v_lshlrev_b32 v{AU+4}, 4, v3")
    a(f"v_add_u32 v{AU+4}, 40960, v{AU+4}")
    a(f"s_mov_b32 s52, {f32bits(1.0/640)}")
    a("s_cmp_lg_u32 s50, 0")
    a("s_cselect_b32 s53, 0x3e800000, 0")
    a("v_lshlrev_b32 v5, 3, v3")
    a("v_mul_u32_u24 v5, v4, v5")
    a("v_cvt_f32_u32 v5, v5")
    a("v_cvt_f32_u32 v4, v4")
    a("v_mul_f32 v6, 0x41800000, v4")
    for i in range(8):
        if i: a("v_add_f32 v5, v5, v4")
        a(f"v_mul_f32 v{PH+i}, s52, v5")
        a("v_sub_f32 v7, v5, v6")
        a(f"v_mul_f32 v{PH+8+i}, s52, v7")
    a("v_mul_f32 v6, s52, v6")
    a("v_fract_f32 v6, v6")
    for i in range(16): a(f"v_fract_f32 v{PH+i}, v{PH+i}")
    a("v_cos_f32 v19, v6")
    for i in range(16): a(f"v_sin_f32 v{SB[1][0]+i}, v{PH+i}")
    for i in range(16): a(f"v_subrev_f32 v{PH+i}, s53, v{PH+i}")
    for i in range(16): a(f"v_cos_f32 v{SB[0][0]+i}, v{PH+i}")
    a("v_add_f32 v19, v19, v19")
    for r in range(32): a(f"v_mov_b32 v{224+r}, 0")
    def cvts(jb, g): return [f"v_cvt_pk_bf16_f32 v{HB[jb][g]+d}, v{SB[jb][g]+2*d}, v{SB[jb][g]+2*d+1}" for d in range(4)]
    def rot(jb, cur): return [f"v_fma_f32 v{SB[jb][cur^1]+i}, v19, v{SB[jb][cur]+i}, -v{SB[jb][cur^1]+i}" for i in range(8)]
    for x in cvts(0, 0) + cvts(1, 0): a(x)
    a(f"s_cmp_lt_u32 s{sWAVE}, 5")
    a("s_cbranch_scc1 L_fold_go")
    side_work(a)
    side_work_finish(a)
    a("s_branch L_fold_done")
    a("L_fold_go:")
    a("s_cmp_lg_u32 s27, 0")
    a("s_cselect_b32 s46, -1.0, 1.0")
    a("s_mov_b32 s47, s46")
    a("s_mov_b32 s48, 0xffff0000")
    T = 112; R = 144; H = 20
    ng = "neg_lo:[0,1] neg_hi:[0,1]"
    def dfold(src, dst):
        for d in range(4):
            a(f"v_lshlrev_b32 v{dst+2*d}, 16, v{src+d}")
            a(f"v_and_b32 v{dst+2*d+1}, s48, v{src+d}")
            a(f"v_lshlrev_b32 v{H+2*(d&1)}, 16, v{src+4+d}")
            a(f"v_and_b32 v{H+2*(d&1)+1}, s48, v{src+4+d}")
            a(f"v_pk_fma_f32 {vr(dst+2*d,2)}, {vr(H+2*(d&1),2)}, s[46:47], {vr(dst+2*d,2)}")
    for n in range(2):
        a("s_waitcnt vmcnt(%d)" % (8 if n == 0 else 0))
        if n == 0: stamp(a, 9)
        b = LD + 32*n
        for r in range(4): dfold(b + 8*r, T + 8*r)
        for d in range(4):
            p = lambda r: vr(T+8*r+2*d, 2)
            q = lambda r: vr(R+8*r+2*d, 2)
            a(f"v_pk_add_f32 {q(0)}, {p(0)}, {p(1)}")
            a(f"v_pk_add_f32 {q(1)}, {p(0)}, {p(1)} {ng}")
            a(f"v_pk_add_f32 {q(2)}, {p(2)}, {p(3)}")
            a(f"v_pk_add_f32 {q(3)}, {p(2)}, {p(3)} {ng}")
            a(f"v_pk_add_f32 {p(0)}, {q(0)}, {q(2)}")
            a(f"v_pk_add_f32 {p(1)}, {q(0)}, {q(2)} {ng}")
            a(f"v_pk_add_f32 {p(2)}, {q(1)}, {q(3)} {ng}")
            a(f"v_pk_add_f32 {p(3)}, {q(1)}, {q(3)}")
        if n == 0:
            a("s_cmp_lg_u32 s26, 0")
            a("s_cbranch_scc1 L_fold_sp")
            a("s_waitcnt vmcnt(0)")
            dfold(XL, R); dfold(XL + 8, R + 8)
            for d in range(4):
                a(f"v_pk_add_f32 {vr(R+16+2*d,2)}, {vr(R+2*d,2)}, {vr(R+8+2*d,2)}")
                a(f"v_pk_add_f32 {vr(R+2*d,2)}, {vr(R+2*d,2)}, {vr(R+8+2*d,2)} {ng}")
            for e in range(8): a(f"v_cndmask_b32 v{T+24+e}, v{R+e}, v{T+24+e}, vcc")
            for d in range(4): a(f"v_cvt_pk_bf16_f32 v{R+d}, v{R+16+2*d}, v{R+17+2*d}")
            a(f"ds_write_b128 v17, {vr(R,4)}")
            a("L_fold_sp:")
        for i in range(4):
            for d in range(4): a(f"v_cvt_pk_bf16_f32 v{b+4*i+d}, v{T+8*i+2*d}, v{T+8*i+2*d+1}")
            a(f"ds_write_b128 v{16+2*n}, {vr(b+4*i,4)} offset:{(i>>1)*20480 + (i&1)*256}")
    a("L_fold_done:")
    for r in range(16): a(f"v_mov_b32 v{32+r}, 0")
    a("s_waitcnt lgkmcnt(0)")
    stamp(a, 14)
    a("s_barrier")
    stamp(a, 2)
    a("s_mul_i32 s42, s27, 6")
    a("s_add_u32 s42, s42, s49")
    a("s_cmp_gt_u32 s42, 10")
    a("s_cbranch_scc1 L_prep_done")
    def ureads(j, kinds):
        jj = j & 3; o = (j >> 2) * 4096; b = UB[j & 3]; r = []
        for k in kinds:
            if k == 2: r.append(f"ds_read_b128 {vr(b+8,4)}, v{AU+4} offset:{j*32}")
            else: r.append(f"ds_read_b128 {vr(b+4*k,4)}, v{AU+jj} offset:{o + k*20480}")
        return r
    a("s_mov_b32 s45, 5")
    a("s_or_b32 s51, s26, s50")
    a("s_cmp_eq_u32 s51, 0")
    a("s_cselect_b32 s40, 1, 0")
    a(f"s_cmp_lt_u32 s{sWAVE}, 4")
    a("s_cselect_b32 s41, 2, 0")
    a("s_add_u32 s40, s40, s41")
    variants = [[0], [0, 2], [0, 1], [0, 1, 2]]
    for v in range(1, 4):
        a(f"s_cmp_eq_u32 s40, {v}")
        a(f"s_cbranch_scc1 L_f1_v{v}")
    for v, kinds in enumerate(variants):
        a(f"L_f1_v{v}:")
        nm = len(kinds)
        for x in ureads(0, kinds) + ureads(1, kinds): a(x)
        a(f"L_f1_loop{v}:")
        for jj in range(4):
            buf = jj & 1
            va = rot(0, buf) + cvts(0, buf ^ 1)
            if 1 in kinds: va = rot(0, buf) + rot(1, buf) + cvts(0, buf ^ 1) + cvts(1, buf ^ 1)
            rd = ureads(jj + 2, kinds)
            a(f"s_waitcnt lgkmcnt({nm})")
            a("s_nop 0")
            per = len(va) // nm
            for m, k in enumerate(kinds):
                d = vr(ACC3[k], 16)
                a(f"v_mfma_f32_32x32x16_bf16 {d}, {vr(UB[jj]+4*k,4)}, {vr(HB[k & 1][buf],4)}, {d}")
                a(rd[m])
                for x in va[per*m:per*m+per]: a(x)
        for r in range(4): a(f"v_add_u32 v{AU+r}, 4096, v{AU+r}")
        if 2 in kinds: a(f"v_add_u32 v{AU+4}, 128, v{AU+4}")
        a("s_sub_u32 s45, s45, 1")
        a("s_cmp_lg_u32 s45, 0")
        a(f"s_cbranch_scc1 L_f1_loop{v}")
        if v < 3: a("s_branch L_f1_done")
    a("L_f1_done:")
    stamp(a, 5)
    a("s_mul_i32 s43, s42, 33")
    a("s_add_u32 s44, s26, s43")
    a(f"s_mul_i32 s45, s50, {22*33}")
    a("s_add_u32 s44, s44, s45")
    a("s_lshl_b32 s44, s44, 10")
    a("s_waitcnt lgkmcnt(0)")
    a("s_nop 5")
    for jb in range(2):
        b = ACC3[jb]
        if jb == 1:
            a(f"s_cmp_ge_u32 s{sWAVE}, 4")
            a("s_cbranch_scc1 L_f1_one")
        for r in range(8): a(f"v_cvt_pk_bf16_f32 v{b+r}, v{b+2*r}, v{b+2*r+1}")
        for hf in range(2):
            a(f"buffer_store_dwordx4 {vr(b+4*hf,4)}, v15, s[36:39], s44 offen sc1")
            a(f"s_add_u32 s44, s44, {11*33*1024}")
    a("L_f1_one:")
    a("s_cmp_lg_u32 s51, 0")
    a("s_cbranch_scc1 L_prep_done")
    b = ACC3[2]
    for r in range(4): a(f"v_cvt_pk_bf16_f32 v{b+r}, v{b+2*r}, v{b+2*r+1}")
    a("s_add_u32 s43, s43, 32")
    a("s_lshl_b32 s43, s43, 10")
    a(f"buffer_store_dwordx4 {vr(b,4)}, v15, s[36:39], s43 offen sc1")
    a("L_prep_done:")
    a(f"s_cmp_lt_u32 s{sWAVE}, 4")
    a("s_cbranch_scc1 L_A_done")
    get_nonce(a, 2)

W_PROG, W_GO, W_CNT, W_PASS, W_XCH, W_NON = 0, 4, 8, 16, 32, 48
def a_done(a):
    a("L_A_done:")
    stamp(a, 6)
    a(f"v_mov_b32 v23, {LDS_PROG}")
    a(f"s_cmp_lg_u32 s{sWAVE}, 4")
    a("s_cbranch_scc1 L_A_bar")
    a(f"v_mov_b32 v2, s{sNON}")
    a(f"v_mov_b32 v3, s{sNON+1}")
    a(f"ds_write_b64 v23, v[2:3] offset:{W_NON}")
    a("L_A_bar:")
    a("s_waitcnt lgkmcnt(0)")
    a("s_barrier")
    stamp(a, 4)
    a("s_and_b32 s26, s2, 31")
    a("s_lshr_b32 s27, s2, 5")
    a(f"s_cmp_ge_u32 s{sWAVE}, 4")
    a("s_cbranch_scc1 L_aux")

def drained(a, vt):
    a(f"v_mov_b32 v{vt}, 1")
    a("s_mov_b64 exec, 1")
    a(f"ds_add_u32 v23, v{vt} offset:{W_CNT}")
    a("s_mov_b64 exec, -1")

def attention(a):
    SL = OPT.get('slot', 1)
    AKA, AKB, AV, AKB2 = 4, 5, 168, 172
    AREGS = [AKA, AV, AV+1, AV+2, AV+3] + ([AKB2, AKB2+1] if SL else [AKB])
    QA = [8, 14]
    NEG = [32, 48]; S = [64, 80]; O = [96, 112]; P = 128
    KB = [136, 142]; VB = [148, 156]
    PR = 164
    a("L_attn:")
    a(f"ds_read_b32 v24, v23 offset:{W_GO}")
    a(f"ds_read_b64 v[26:27], v23 offset:{W_NON}")
    a(f"s_setprio {OPT.get('pattn', 2)}")
    a(f"s_mul_i32 s40, s26, {Q_HEAD}")
    a(f"s_add_u32 s40, s40, {Q_OFF}")
    make_srd(a, 28, pWS, "s40", Q_HEAD)
    a(f"s_mul_i32 s40, s26, {KV_HEAD}")
    make_srd(a, 32, pWS, "s40", KV_HEAD)
    a("v_and_b32 v2, 31, v1")
    a("v_lshrrev_b32 v3, 5, v1")
    a(f"v_lshlrev_b32 v{AKA}, 4, v1")
    a(f"v_lshlrev_b32 v{AKB}, 3, v2")
    a(f"v_add_u32 v{AKB}, 1024, v{AKB}")
    a(f"v_mov_b32 v20, {HUGE}")
    a("v_cmp_gt_u32 vcc, 32, v1")
    a("s_lshl_b32 s41, s27, 3")
    a(f"s_lshl_b32 s42, s{sWAVE}, 1")
    a("s_add_u32 s41, s41, s42")
    a(f"v_cndmask_b32 v20, v20, v{AKB}, vcc")
    a(f"s_mul_i32 s42, s41, {TQ}")
    a("v_and_b32 v21, 28, v2")
    a("v_add_u32 v21, v21, v2")
    a("v_lshl_add_u32 v21, v3, 2, v21")
    a("v_lshlrev_b32 v21, 4, v21")
    a("v_add_u32 v29, 1280, v21")
    a("s_mov_b32 s48, 0x000fffff")
    a("s_mov_b32 s49, 0x000fffff")
    a("s_waitcnt lgkmcnt(0)")
    a("v_readfirstlane_b32 s47, v24")
    a(f"v_readfirstlane_b32 s{sNON}, v26")
    a(f"v_readfirstlane_b32 s{sNON+1}, v27")
    a("s_mov_b32 s50, s47")
    a("s_cmp_lg_u32 s47, 0")
    a("s_cbranch_scc1 L_attn_go")
    a("s_waitcnt vmcnt(0)")
    stamp(a, 3)
    drained(a, 24)
    a("L_attn_spin:")
    a(f"ds_read_b32 v24, v23 offset:{W_GO}")
    a("s_waitcnt lgkmcnt(0)")
    a("v_readfirstlane_b32 s47, v24")
    a("s_nop 0")
    a("s_cmp_eq_u32 s47, 0")
    a("s_cbranch_scc1 L_attn_spin")
    a("L_attn_go:")
    stamp(a, 7); stamp(a, 7, 2); stamp_real(a, 8, 2)
    a("s_sub_u32 s47, s47, 1")
    a(f"s_mul_i32 s47, s47, {4*TKV}")
    for q in range(2):
        a(f"buffer_load_dwordx4 {vr(QA[q],4)}, v{AKA}, s[28:31], s42 offen offset:{q*TQ} sc1")
        a(f"buffer_load_dwordx2 {vr(QA[q]+4,2)}, v20, s[28:31], s42 offen offset:{q*TQ} sc1")
    a(f"buffer_load_dwordx4 {vr(KB[0],4)}, v{AKA}, s[32:35], s47 offen sc1")
    if SL:
        for b in KB:
            a(f"v_mov_b32 v{b+4}, 0x3f803f80")
            a(f"v_mov_b32 v{b+5}, 0x3f80")
        a("s_mov_b32 exec_hi, 0")
    a(f"buffer_load_dwordx2 {vr(KB[0]+4,2)}, v{AKB}, s[32:35], s47 offen sc1")
    if SL: a("s_mov_b64 exec, -1")
    a("v_mov_b32 v24, 0x3f803f80")
    a("v_cmp_eq_u32 vcc, 20, v2")
    a(f"s_add_u32 s43, s47, {TKV}")
    a("s_nop 0")
    a("v_cndmask_b32 v24, 0, v24, vcc")
    for r in range(16): a(f"v_mov_b32 v{VB[0]+r}, v24")
    a(f"buffer_load_dwordx4 {vr(KB[1],4)}, v{AKA}, s[32:35], s43 offen sc1")
    if SL: a("s_mov_b32 exec_hi, 0")
    a(f"buffer_load_dwordx2 {vr(KB[1]+4,2)}, v{AKB}, s[32:35], s43 offen sc1")
    a("s_mov_b64 exec, s[48:49]")
    a(f"buffer_load_dwordx4 {vr(VB[0],4)}, v29, s[32:35], s47 offen sc1")
    a(f"buffer_load_dwordx4 {vr(VB[0]+4,4)}, v29, s[32:35], s47 offen offset:640 sc1")
    a(f"buffer_load_dwordx4 {vr(VB[1],4)}, v29, s[32:35], s43 offen sc1")
    a(f"buffer_load_dwordx4 {vr(VB[1]+4,4)}, v29, s[32:35], s43 offen offset:640 sc1")
    a("s_mov_b64 exec, -1")
    a("s_cmp_eq_u32 s50, 0")
    a("s_cbranch_scc1 L_attn_cnt")
    a("s_waitcnt vmcnt(12)")
    stamp(a, 3)
    drained(a, 24)
    a("L_attn_cnt:")
    a("v_mov_b32 v22, 5120")
    if OPT.get('zr', 1):
        a("v_cmp_lt_u32 vcc, 20, v2")
        a("v_mov_b32 v21, 5136")
        a("s_nop 0")
        a("v_cndmask_b32 v22, v22, v21, vcc")
    a("v_cmp_gt_u32 vcc, 20, v2")
    for i in range(4): a(f"v_add_u32 v{AV+i}, {(i>>1)*TKV + (i&1)*640}, v29")
    for i in range(4): a(f"v_cndmask_b32 v{AV+i}, v22, v{AV+i}, vcc")
    if SL:
        a("v_cmp_gt_u32 vcc, 32, v1")
        a("v_mov_b32 v22, 5152")
        a(f"v_add_u32 v21, {TKV}, v{AKB}")
        a(f"v_cndmask_b32 v{AKB2}, v22, v{AKB}, vcc")
        a(f"v_cndmask_b32 v{AKB2+1}, v22, v21, vcc")
    make_srd(a, 36, pWS, O_OFF, O_SIZE)
    for q in range(2):
        for r in range(16): a(f"v_mov_b32 v{O[q]+r}, 0")
    mm16 = "v_mfma_f32_32x32x16_bf16"; mm8 = "v_mfma_f32_32x32x8_bf16"
    def M1(s, t, q, c): return f"{mm16} {vr(s,16)}, {vr(KB[t&1],4)}, {vr(QA[q],4)}, {c}"
    def M2(s, t, q): return f"{mm8} {vr(s,16)}, {vr(KB[t&1]+4,2)}, {vr(QA[q]+4,2)}, {vr(s,16)}"
    def M3(t, q): return "s_nop 1" if OPT.get('nopv') else f"{mm16} {vr(O[q],16)}, {vr(VB[t&1],4)}, {vr(P,4)}, {vr(O[q],16)}"
    def M4(t, q): return "s_nop 1" if OPT.get('nopv') else f"{mm16} {vr(O[q],16)}, {vr(VB[t&1]+4,4)}, {vr(P+4,4)}, {vr(O[q],16)}"
    def rowmax(src, dst, first):
        if first:
            a(f"v_max3_f32 v{dst}, v{src}, v{src+1}, v{src+2}")
            a(f"v_max_f32 v{dst}, v{dst}, v{src+15}")
            rng = range(3, 15, 2)
        else: rng = range(0, 16, 2)
        for r in rng: a(f"v_max3_f32 v{dst}, v{dst}, v{src+r}, v{src+r+1}")
    def finish_neg(add):
        a("v_mov_b32 v26, v24")
        a("v_mov_b32 v27, v25")
        a("s_nop 1")
        a("v_permlane32_swap_b32 v24, v26")
        a("v_permlane32_swap_b32 v25, v27")
        a("s_nop 1")
        a("v_max_f32 v24, v24, v26")
        a("v_max_f32 v25, v25, v27")
        if not SL:
            for q in range(2):
                a(f"v_sub_f32 v{NEG[q]}, {add}, v{24+q}")
                for r in range(1, 16): a(f"v_mov_b32 v{NEG[q]+r}, v{NEG[q]}")
            return
        a("s_mov_b32 s45, 0xffff0000")
        a("s_mov_b32 s46, 0x07060302")
        for q in range(2):
            a(f"v_sub_f32 v{24+q}, {add}, v{24+q}")
        for q in range(2):
            a(f"v_and_b32 v26, s45, v{24+q}")
            a(f"v_sub_f32 v27, v{24+q}, v26")
            a("v_and_b32 v28, s45, v27")
            a("v_sub_f32 v27, v27, v28")
            a("v_perm_b32 v26, v28, v26, s46")
            a("v_lshrrev_b32 v27, 16, v27")
            a("s_mov_b32 exec_lo, 0")
            a(f"v_mov_b32 v{QA[q]+4}, v26")
            a(f"v_mov_b32 v{QA[q]+5}, v27")
            a("s_mov_b64 exec, -1")
        a("s_nop 1")
    CNEG = lambda q: "0" if SL else vr(NEG[q], 16)
    a("s_waitcnt vmcnt(6)")
    stamp(a, 8)
    for q in range(2): a(M1(S[q], 0, q, "0"))
    for q in range(2): a(M2(S[q], 0, q))
    a("s_nop 11")
    rowmax(S[0], 24, True)
    a("s_nop 1")
    rowmax(S[1], 25, True)
    finish_neg(hex(f32bits(-float(OPT.get('off', 96)))))
    a(M1(S[0], 0, 0, CNEG(0)))
    a(M2(S[0], 0, 0))
    a(f"ds_read_b32 v{PR}, v23")
    a("s_waitcnt vmcnt(0)")
    a("s_nop 9")
    def check(need):
        l = a.label("L_chk"); ok = a.label("L_chkok")
        a(f"{l}:")
        a("s_waitcnt lgkmcnt(0)")
        a(f"v_readfirstlane_b32 s44, v{PR}")
        a("s_nop 0")
        a(f"s_cmp_ge_u32 s44, {need}")
        a(f"s_cbranch_scc1 {ok}")
        a(f"ds_read_b32 v{PR}, v23")
        a(f"s_branch {l}")
        a(".p2align 3")
        a(f"{ok}:")
    def unit(t, q, s4=(), s1=(), s2=(), s3=(), first=False, nonext=False):
        s = S[q]; sn = S[q ^ 1]
        t1, q1 = (t, 1) if q == 0 else (t + 1, 0)
        tp, qp = (t - 1, 1) if q == 0 else (t, 0)
        E = lambda r: a(f"v_exp_f32 v{s+r}, v{s+r}")
        C = lambda j: a(f"v_cvt_pk_bf16_f32 v{P+j}, v{s+2*j}, v{s+2*j+1}")
        al = OPT.get('al', 1)
        EW = lambda r: a(f"v_exp_f32_e64 v{s+r}, v{s+r}") if al else E(r)
        odd = lambda xs: sum(1 for x in xs if x.startswith("s_")) & 1
        E(0); E(1)
        if not first: a(M4(tp, qp))
        for x in s4: a(x)
        (E if odd(s4) else EW)(2); E(3); E(4)
        if not nonext: a(M1(sn, t1, q1, CNEG(q1)))
        for x in s1: a(x)
        EW(5); E(6); E(7)
        for j in range(4): C(j)
        if not nonext: a(M2(sn, t1, q1))
        for x in s2: a(x)
        EW(8)
        for r in range(9, 13): E(r)
        a(M3(t, q))
        for x in s3: a(x)
        EW(13); E(14); E(15)
        for j in range(4, 8): C(j)
    def period(t, o, extra3=()):
        if o is None:
            unit(t, 1, s4=["s_waitcnt lgkmcnt(0)"]); unit(t + 1, 0); return
        kb = KB[t & 1]; vb = VB[t & 1]
        ok = lds_tile(o + 2); ov = (o >> 1) * LPAIR; av = AV + 2*(o & 1)
        unit(t, 1, s4=["s_waitcnt lgkmcnt(0)"],
             s1=[f"ds_read_b128 {vr(kb,4)}, v{AKA} offset:{ok}"],
             s3=[f"ds_read_b64 {vr(kb+4,2)}, v{AKB2+(o&1)} offset:{ov}" if SL else f"ds_read_b64 {vr(kb+4,2)}, v{AKB} offset:{ok}"])
        unit(t + 1, 0, s4=[f"ds_read_b128 {vr(vb,4)}, v{av} offset:{ov}"],
             s1=[f"ds_read_b128 {vr(vb+4,4)}, v{av+1} offset:{ov}"], s3=extra3)
    rdp = [f"ds_read_b32 v{PR}, v23"]
    a(".p2align 3")
    unit(0, 0, first=True)
    stamp(a, 9)
    check(1)
    for t in range(6):
        if t == 2: check(2)
        period(t, t, rdp if t in (1, 5) else ())
    for r in AREGS: a(f"v_add_u32 v{r}, {3*LPAIR}, v{r}")
    a(f"s_lshl_b32 s45, s{sWAVE}, 2")
    a("v_add_u32 v24, s45, v23")
    a(f"ds_write_b32 v24, v23 offset:{W_PASS}")
    a("s_mov_b32 s45, 2")
    a("s_mov_b32 s46, 7")
    stamp(a, 10); stamp(a, 10, 2); stamp_real(a, 12, 2)
    a(".p2align 3")
    a("L_attn_loop:")
    a("s_cmp_eq_u32 s44, 16")
    a("s_cbranch_scc1 L_attn_nochk")
    a("s_add_u32 s45, s45, 2")
    check("s45")
    a(".p2align 3")
    a("L_attn_nochk:")
    for k in range(8):
        ex = ()
        if k == 7: ex = rdp
        period(k, k, ex)
    for r in AREGS: a(f"v_add_u32 v{r}, {4*LPAIR}, v{r}")
    a("s_sub_u32 s46, s46, 1")
    a("s_cmp_lg_u32 s46, 0")
    a("s_cbranch_scc1 L_attn_loop")
    period(62, None)
    unit(63, 1, nonext=True)
    a("s_nop 1")
    a(M4(63, 1))
    stamp(a, 11); stamp(a, 11, 2); stamp_real(a, 13, 2)
    a("s_nop 15")
    a("L_attn_post:")
    for q in range(2): a(f"v_mov_b32 v{24+q}, v{O[q]+8}")
    a("v_mov_b32 v26, 0")
    a("s_nop 0")
    for q in range(2): a(f"v_permlane32_swap_b32 v{O[q]+8}, v{24+q}")
    a("s_cmp_eq_u32 s46, 0")
    a("s_cbranch_scc0 L_attn_fin")
    for q in range(2):
        for r in range(12): a(f"v_fma_f32 v26, v{O[q]+r}, 0, v26")
    a("v_max_f32 v27, v24, v25")
    a("v_fma_f32 v26, v24, 0, v26")
    a("v_fma_f32 v26, v25, 0, v26")
    for q in range(2):
        a(f"v_max3_f32 v{30+q}, abs(v{O[q]}), abs(v{O[q]+1}), abs(v{O[q]+2})")
        a(f"v_max3_f32 v{30+q}, v{30+q}, abs(v{O[q]+3}), abs(v{O[q]+4})")
        a(f"v_max3_f32 v{30+q}, v{30+q}, abs(v{O[q]+5}), abs(v{O[q]+6})")
        a(f"v_max_f32 v{30+q}, v{30+q}, abs(v{O[q]+7})")
    a("v_min_f32 v30, v30, v31")
    a("v_mov_b32 v28, 0x76800000")
    a("v_mov_b32 v31, 0x08800000")
    a("v_cmp_u_f32 s[44:45], v26, v26")
    a("v_cmp_nlt_f32 vcc, v27, v28")
    a("v_cmp_lt_f32 s[50:51], v30, v31")
    a("s_nop 1")
    a("s_or_b64 vcc, vcc, s[44:45]")
    a("s_or_b64 vcc, vcc, s[50:51]")
    if OPT.get('forcefb'): a("s_mov_b64 vcc, -1")
    a("s_cbranch_vccnz L_attn_fallback")
    a("L_attn_fin:")
    a("v_rcp_f32 v24, v24")
    a("v_rcp_f32 v25, v25")
    a("s_lshl_b32 s42, s41, 5")
    a("s_add_u32 s42, s42, s26")
    a("s_mul_i32 s42, s42, 1280")
    a("v_lshlrev_b32 v21, 4, v1")
    for q in range(2):
        for r in range(12): a(f"v_mul_f32 v{O[q]+r}, v{O[q]+r}, v{24+q}")
        for r in range(6): a(f"v_cvt_pk_bf16_f32 v{O[q]+r}, v{O[q]+2*r}, v{O[q]+2*r+1}")
        a(f"buffer_store_dwordx4 {vr(O[q],4)}, v21, s[36:39], s42 offen sc1")
        a(f"buffer_store_dwordx2 {vr(O[q]+4,2)}, v20, s[36:39], s42 offen sc1")
        if q == 0: a(f"s_add_u32 s42, s42, {32*1280}")
    a("s_barrier")
    a("s_lshl_b32 s40, s2, 2")
    a(f"s_add_u32 s40, s40, s{sWAVE}")
    a(f"s_add_u32 s40, s40, {FB}")
    a("s_lshl_b32 s40, s40, 7")
    a("s_waitcnt vmcnt(0)")
    stamp(a, 12)
    set_flag(a, 40, 8)
    a("s_branch L_end")
    a("L_attn_fallback:")
    for r in ((AKA,) if SL else (AKA, AKB)): a(f"v_subrev_u32 v{r}, {31*LPAIR}, v{r}")
    if SL:
        a("s_mov_b32 exec_lo, 0")
        for q in range(2):
            a(f"v_mov_b32 v{QA[q]+4}, 0")
            a(f"v_mov_b32 v{QA[q]+5}, 0")
        a("s_mov_b64 exec, -1")
    a("v_mov_b32 v24, 0xff800000")
    a("v_mov_b32 v25, 0xff800000")
    a("s_mov_b32 s46, 0")
    a("L_fb_max:")
    a(f"buffer_load_dwordx4 {vr(KB[0],4)}, v{AKA}, s[32:35], s46 offen sc1")
    if SL: a("s_mov_b32 exec_hi, 0")
    a(f"buffer_load_dwordx2 {vr(KB[0]+4,2)}, v{AKB}, s[32:35], s46 offen sc1")
    if SL: a("s_mov_b64 exec, -1")
    a("s_waitcnt vmcnt(0)")
    for q in range(2): a(M1(S[q], 0, q, "0"))
    for q in range(2): a(M2(S[q], 0, q))
    a("s_nop 15")
    rowmax(S[0], 24, False)
    rowmax(S[1], 25, False)
    a(f"s_add_u32 s46, s46, {TKV}")
    a(f"s_cmp_lt_u32 s46, {KV_HEAD}")
    a("s_cbranch_scc1 L_fb_max")
    finish_neg("0")
    for q in range(2):
        for r in range(16): a(f"v_mov_b32 v{O[q]+r}, 0")
    a("s_mov_b32 s46, 0")
    a("L_fb_main:")
    a(f"buffer_load_dwordx4 {vr(KB[0],4)}, v{AKA}, s[32:35], s46 offen sc1")
    if SL: a("s_mov_b32 exec_hi, 0")
    a(f"buffer_load_dwordx2 {vr(KB[0]+4,2)}, v{AKB}, s[32:35], s46 offen sc1")
    if SL: a("s_mov_b64 exec, -1")
    a("s_mov_b64 exec, s[48:49]")
    a(f"buffer_load_dwordx4 {vr(VB[0],4)}, v29, s[32:35], s46 offen sc1")
    a(f"buffer_load_dwordx4 {vr(VB[0]+4,4)}, v29, s[32:35], s46 offen offset:640 sc1")
    a("s_mov_b64 exec, -1")
    a("s_waitcnt vmcnt(0)")
    for q in range(2): a(M1(S[q], 0, q, CNEG(q)))
    for q in range(2): a(M2(S[q], 0, q))
    a("s_nop 15")
    for q in range(2):
        for r in range(16): a(f"v_exp_f32 v{S[q]+r}, v{S[q]+r}")
        a("s_nop 0")
        for j in range(8): a(f"v_cvt_pk_bf16_f32 v{P+j}, v{S[q]+2*j}, v{S[q]+2*j+1}")
        a("s_nop 1")
        a(M3(0, q)); a(M4(0, q))
    a(f"s_add_u32 s46, s46, {TKV}")
    a(f"s_cmp_lt_u32 s46, {KV_HEAD}")
    a("s_cbranch_scc1 L_fb_main")
    a("s_nop 15")
    a("s_branch L_attn_post")

def aux(a):
    a("L_aux:")
    a(f"s_setprio {OPT.get('paux', 0)}")
    a(f"s_sub_u32 s44, s{sWAVE}, 4")
    a("v_lshlrev_b32 v2, 4, v1")
    a("s_waitcnt vmcnt(0)")
    drained(a, 3)
    a("s_cmp_eq_u32 s44, 0")
    a("s_cbranch_scc1 L_kv")
    a("s_cmp_lg_u32 s44, 1")
    a("s_cbranch_scc1 L_aux_wait")
    a("s_lshl_b32 s40, s2, 7")
    a("L_cnt_spin:")
    a(f"ds_read_b32 v3, v23 offset:{W_CNT}")
    a("s_waitcnt lgkmcnt(0)")
    a("v_readfirstlane_b32 s41, v3")
    a("s_nop 0")
    a("s_cmp_lt_u32 s41, 8")
    a("s_cbranch_scc1 L_cnt_spin")
    set_flag(a, 40, 8)
    a("L_aux_wait:")
    a("s_sleep 4")
    a(f"ds_read_b32 v3, v23 offset:{W_PROG}")
    a("s_waitcnt lgkmcnt(0)")
    a("v_readfirstlane_b32 s41, v3")
    a("s_nop 0")
    a(f"s_cmp_lt_u32 s41, {OPT.get('f2w', 6)}")
    a("s_cbranch_scc1 L_aux_wait")
    a("s_branch L_kv_done")
    a("L_kv:")
    a(f"s_mul_i32 s40, s26, {KV_HEAD}")
    make_srd(a, 28, pWS, "s40", KV_HEAD)
    a(f"v_mul_u32_u24 v6, {LPAIR}, v1")
    a("v_min_u32 v6, %d, v6" % (30*LPAIR))
    for r in range(4): a(f"v_mov_b32 v{8+r}, 0x3f803f80")
    a("ds_write_b128 v6, v[8:11] offset:5120")
    for r in range(4): a(f"v_mov_b32 v{12+r}, 0")
    a("ds_write_b128 v6, v[12:15] offset:5136")
    a("v_mov_b32 v16, 0x3f803f80")
    a("v_mov_b32 v17, 0x3f80")
    a("ds_write_b64 v6, v[16:17] offset:5152")
    a("s_lshr_b32 s41, s26, 3")
    a("v_and_b32 v3, 15, v1")
    a("v_and_b32 v4, 1, v1")
    a("s_lshl_b32 s42, s27, 1")
    a("v_add_u32 v4, s42, v4")
    a("v_cmp_gt_u32 vcc, 32, v1")
    a("v_lshrrev_b32 v5, 4, v1")
    a("v_lshl_add_u32 v5, v5, 2, 4")
    a("v_cndmask_b32 v3, v4, v3, vcc")
    a("v_cndmask_b32 v5, 0, v5, vcc")
    a("v_add_u32 v5, s41, v5")
    a("v_cmp_le_u32 vcc, 6, v5")
    a("v_and_b32 v4, 3, v3")
    a("v_lshrrev_b32 v3, 2, v3")
    a("v_cndmask_b32 v6, 0, 1, vcc")
    a("v_mul_u32_u24 v7, 6, v6")
    a("v_sub_u32 v5, v5, v7")
    a("v_lshl_add_u32 v5, v5, 2, v4")
    a("v_lshl_add_u32 v3, v6, 2, v3")
    a("v_lshl_add_u32 v5, v5, 3, v3")
    a("v_lshlrev_b32 v5, 7, v5")
    def poll_once():
        a(f"buffer_load_dwordx2 v[6:7], v5, {sr(sFL,4)}, 0 offen sc1")
        a("s_waitcnt vmcnt(0)")
        a(f"v_cmp_eq_u64 vcc, {sr(sNON,2)}, v[6:7]")
        a("s_sub_u32 s40, s40, 1")
        a("s_cselect_b32 s47, 0xffff, 0")
        a("s_lshr_b32 s45, vcc_lo, 16")
        a("s_and_b32 s45, s45, vcc_lo")
        a("s_or_b32 s45, s45, s47")
    def pub(off, sreg):
        a(f"v_mov_b32 v4, s{sreg}")
        a(f"ds_write_b32 v23, v4 offset:{off}")
    a(f"s_mov_b32 s40, {POLL_MAX}")
    a("L_kv_p1:")
    poll_once()
    a("s_cmp_lg_u32 s47, 0")
    a("s_cbranch_scc1 L_kv_first")
    a("s_cmp_eq_u32 vcc_hi, -1")
    a("s_cselect_b32 s48, s45, 0")
    a("s_cmp_eq_u32 s48, 0")
    a("s_cbranch_scc1 L_kv_p1")
    a("L_kv_first:")
    a("s_ff1_i32_b32 s48, s45")
    a("s_add_u32 s49, s48, 1")
    pub(W_GO, 49)
    stamp(a, 7)
    a("s_lshl_b32 s46, 1, s48")
    a(f"s_mul_i32 s48, s48, {4*TKV}")
    a(f"s_add_u32 s48, s48, {2*TKV}")
    for i in range(5):
        a(f"s_mov_b32 m0, {i*1024}")
        a("s_nop 0")
        a("buffer_load_dwordx4 v2, s[28:31], s48 offen sc1 lds")
        if i < 4: a("s_add_u32 s48, s48, 1024")
    a("s_mov_b32 s50, 1")
    a(f"s_mov_b32 s51, {LPAIR}")
    a("L_kv_next:")
    a("s_andn2_b32 s48, s45, s46")
    a("s_cbranch_scc0 L_kv_poll")
    a("s_ff1_i32_b32 s48, s48")
    a("s_bitset1_b32 s46, s48")
    a(f"s_mul_i32 s48, s48, {4*TKV}")
    for i in range(10):
        a(f"s_add_u32 m0, s51, {i*1024 + (64 if i >= 5 else 0)}")
        if i: a("s_add_u32 s48, s48, 1024")
        else: a("s_nop 0")
        a("buffer_load_dwordx4 v2, s[28:31], s48 offen sc1 lds")
    a(f"s_add_u32 s51, s51, {2*LPAIR}")
    a("s_cmp_eq_u32 s50, 1")
    a("s_cbranch_scc0 L_kv_w20")
    a("s_waitcnt vmcnt(10)")
    pub(W_PROG, 50)
    a("s_mov_b32 s50, 2")
    a("s_branch L_kv_next")
    a("L_kv_w20:")
    a("s_waitcnt vmcnt(20)")
    a("s_sub_u32 s49, s50, 1")
    pub(W_PROG, 49)
    a("s_add_u32 s50, s50, 1")
    a("s_branch L_kv_next")
    a("L_kv_poll:")
    a("s_waitcnt vmcnt(0)")
    pub(W_PROG, 50)
    a("s_cmp_eq_u32 s50, 16")
    a("s_cbranch_scc1 L_kv_done")
    poll_once()
    a("s_branch L_kv_next")
    a("L_kv_done:")
    stamp(a, 8)
    a("v_lshlrev_b32 v5, 7, v1")
    a(f"v_add_u32 v5, {192*128}, v5")
    poll(a, 5, 6, sleep=4)
    a(f"s_setprio {OPT.get('pf2', 3)}")
    a("s_lshr_b32 s40, s44, 1")
    if OPT.get('swp', 1): a("s_xor_b32 s40, s40, 1")
    a("s_lshl_b32 s40, s40, 5")
    a(f"s_add_u32 s40, s40, s{sSLOT}")
    a("s_mul_i32 s41, s40, 373")
    a("s_lshr_b32 s41, s41, 12")
    a("s_mul_i32 s42, s41, 11")
    a("s_sub_u32 s42, s40, s42")
    a("s_lshl_b32 s41, s41, 3")
    a(f"s_add_u32 s41, s41, s{sXCD}")
    a("s_cmp_ge_u32 s41, %d" % (0 if OPT.get('nof2') else 33))
    a("s_cbranch_scc1 L_wo")
    a("s_and_b32 s45, s44, 1")
    a("s_mul_i32 s47, s41, 65")
    a("s_mul_i32 s48, s45, 33")
    a("s_add_u32 s47, s47, s48")
    a("s_lshl_b32 s47, s47, 10")
    a(f"s_add_u32 s47, s47, {SEQ_OFF}")
    make_srd(a, 28, pWS, "s47", 33*1024)
    a("s_and_b32 s43, s41, 1")
    a("s_lshl_b32 s47, s45, 1")
    a("s_add_u32 s47, s47, s43")
    a("s_mul_i32 s48, s47, 11")
    a("s_add_u32 s48, s48, s42")
    a(f"s_mul_i32 s48, s48, {33*1024}")
    a(f"s_add_u32 s48, s48, {AB_OFF}")
    make_srd(a, 32, pWS, "s48", 33*1024)
    make_srd(a, 36, pOUT, 0, OUT_SIZE)
    D = OPT.get('f2d', 28); FB = 32; AC = 8
    a("s_cmp_lg_u32 s47, 0")
    a("s_cbranch_scc1 L_f2_nox")
    a(f"s_mov_b32 s49, {32*1024}")
    a("buffer_load_dwordx4 v[24:27], v2, s[28:31], s49 offen sc1")
    a("buffer_load_dwordx4 v[28:31], v2, s[32:35], s49 offen sc1")
    a("L_f2_nox:")
    def issue2(k):
        b = FB + (k % D) * 8
        if k % 4 == 0: a(f"s_mov_b32 s49, {(k//4)*4096}")
        a(f"buffer_load_dwordx4 {vr(b,4)}, v2, s[28:31], s49 offen offset:{(k%4)*1024} sc1")
        a(f"buffer_load_dwordx4 {vr(b+4,4)}, v2, s[32:35], s49 offen offset:{(k%4)*1024} sc1")
    for k in range(D): issue2(k)
    stamp(a, 9)
    for k in range(32):
        a(f"s_waitcnt vmcnt({2*(min(32, k+D)-k-1)})")
        b = FB + (k % D) * 8
        d = vr(AC, 16)
        a(f"v_mfma_f32_32x32x16_bf16 {d}, {vr(b,4)}, {vr(b+4,4)}, {'0' if k == 0 else d}")
        if k + D < 32: issue2(k + D)
    a("s_cmp_lg_u32 s47, 0")
    a("s_cbranch_scc1 L_f2_nox2")
    a(f"v_mfma_f32_32x32x16_bf16 {vr(AC,16)}, v[24:27], v[28:31], {vr(AC,16)}")
    a("L_f2_nox2:")
    a(f"v_mov_b32 v3, {LDS_PROG}")
    a("L_f2_dead:")
    a("ds_read_b128 v[40:43], v3 offset:16")
    a("s_waitcnt lgkmcnt(0)")
    a("v_min3_u32 v40, v40, v41, v42")
    a("v_min_u32 v40, v40, v43")
    a("s_nop 0")
    a("v_readfirstlane_b32 s48, v40")
    a("s_nop 0")
    a("s_cmp_eq_u32 s48, 0")
    a("s_cbranch_scc1 L_f2_dead")
    a("s_lshl_b32 s48, s44, 11")
    a("v_add_u32 v4, s48, v2")
    a("s_lshl_b32 s49, s44, 2")
    a("v_add_u32 v5, s49, v3")
    a("s_xor_b32 s48, s48, 2048")
    a("s_xor_b32 s49, s49, 4")
    a("v_add_u32 v6, s48, v2")
    a("v_add_u32 v7, s49, v3")
    a("s_cmp_lg_u32 s45, 0")
    a("s_cbranch_scc1 L_f2_h1")
    a("ds_write_b128 v4, v[16:19]")
    a("ds_write_b128 v4, v[20:23] offset:1024")
    a("s_branch L_f2_x")
    a("L_f2_h1:")
    a("ds_write_b128 v4, v[8:11]")
    a("ds_write_b128 v4, v[12:15] offset:1024")
    a("L_f2_x:")
    a("ds_write_b32 v5, v3 offset:32")
    a("v_and_b32 v5, 31, v1")
    a("v_lshrrev_b32 v4, 5, v1")
    a("s_lshr_b32 s47, s41, 1")
    a("s_lshl_b32 s47, s47, 6")
    a("s_add_u32 s47, s47, s43")
    a("s_lshl_b32 s48, s45, 5")
    a("s_add_u32 s47, s47, s48")
    a("s_cmp_ge_u32 s42, 6")
    a("s_cselect_b32 s48, 383, 0")
    a("s_lshl_b32 s49, s42, 6")
    a("s_sub_u32 s48, s49, s48")
    a("v_lshl_add_u32 v5, v5, 1, s48")
    a(f"v_mov_b32 v46, {HUGE}")
    a("v_lshlrev_b32 v47, 1, v5")
    a("v_add_u32 v40, 1280, v47")
    a("v_cmp_ge_u32 vcc, 320, v5")
    a("v_sub_u32 v41, 2560, v47")
    a("v_add_u32 v47, -1, v5")
    a("v_cndmask_b32 v40, v46, v40, vcc")
    a("v_cmp_gt_u32 vcc, 319, v47")
    a("v_lshl_add_u32 v47, v4, 3, s47")
    a("v_mul_u32_u24 v47, 2560, v47")
    a("v_cndmask_b32 v41, v46, v41, vcc")
    a(f"v_sub_u32 v44, {(2048-22)*2560}, v47")
    a("v_add_u32 v42, v44, v40")
    a("v_add_u32 v43, v44, v41")
    a("v_add_u32 v40, v47, v40")
    a("v_add_u32 v41, v47, v41")
    a("L_f2_wait:")
    a("ds_read_b32 v45, v7 offset:32")
    a("s_waitcnt lgkmcnt(0)")
    a("v_readfirstlane_b32 s48, v45")
    a("s_nop 0")
    a("s_cmp_lg_u32 s48, 0")
    a("s_cbranch_scc1 L_f2_got")
    a("s_sleep 2")
    a("s_branch L_f2_wait")
    a("L_f2_got:")
    a("s_cmp_lg_u32 s45, 0")
    a("s_cbranch_scc1 L_f2_h1b")
    a("ds_read_b128 v[16:19], v6")
    a("ds_read_b128 v[20:23], v6 offset:1024")
    a("s_branch L_f2_y")
    a("L_f2_h1b:")
    a("ds_read_b128 v[8:11], v6")
    a("ds_read_b128 v[12:15], v6 offset:1024")
    a("L_f2_y:")
    a("s_waitcnt lgkmcnt(0)")
    for r in range(0, 8, 2):
        a(f"v_pk_add_f32 {vr(48+r,2)}, {vr(8+r,2)}, {vr(16+r,2)}")
        a(f"v_pk_add_f32 {vr(56+r,2)}, {vr(8+r,2)}, {vr(16+r,2)} neg_lo:[0,1] neg_hi:[0,1]")
    for r in range(4):
        a(f"v_cvt_pk_bf16_f32 v{48+r}, v{48+2*r}, v{48+2*r+1}")
        a(f"v_cvt_pk_bf16_f32 v{56+r}, v{56+2*r}, v{56+2*r+1}")
    a("s_cmp_eq_u32 s41, 32")
    a("s_cbranch_scc1 L_f2_nyq")
    for r in range(8):
        ro = (r & 3) + 8 * (r >> 2)
        st = "buffer_store_short_d16_hi" if r & 1 else "buffer_store_short"
        a(f"s_mov_b32 s47, {ro*5120}")
        a(f"s_mov_b32 s48, {(11-ro)*5120}")
        a(f"{st} v{56+r//2}, v40, s[36:39], s47 offen{FLF()}")
        a(f"{st} v{48+r//2}, v41, s[36:39], s47 offen{FLF()}")
        if r == 0:
            a(f"v_add_u32 v44, {11*5120}, v42")
            a(f"v_add_u32 v45, {11*5120}, v43")
            a(f"{st} v48, v44, s[36:39], 0 offen{FLF()}")
            a(f"{st} v56, v45, s[36:39], 0 offen{FLF()}")
        else:
            a(f"{st} v{48+r//2}, v42, s[36:39], s48 offen{FLF()}")
            a(f"{st} v{56+r//2}, v43, s[36:39], s48 offen{FLF()}")
    a("s_branch L_f2_fin")
    a("L_f2_nyq:")
    a("s_cmp_lg_u32 s45, 0")
    a("s_cbranch_scc1 L_wo")
    a("v_cmp_eq_u32 vcc, 0, v4")
    a("s_nop 1")
    a("v_cndmask_b32 v40, v46, v40, vcc")
    a("v_cndmask_b32 v41, v46, v41, vcc")
    a(f"buffer_store_short v56, v40, s[36:39], 0 offen{FLF()}")
    a(f"buffer_store_short v48, v41, s[36:39], 0 offen{FLF()}")
    a("L_f2_fin:")
    if OPT.get('wb'):
        a("s_waitcnt vmcnt(0)")
        a("buffer_wbl2 sc1")
    a("L_wo:")
    stamp(a, 10)
    a("s_lshr_b32 s40, s26, 3")
    a("s_lshl_b32 s40, s40, 2")
    a("s_add_u32 s40, s40, s44")
    a(f"s_mul_i32 s40, s40, {50*1024}")
    a(f"s_add_u32 s40, s40, {WO_OFF}")
    make_srd(a, 28, pWS, "s40", 50*1024)
    a("s_waitcnt vmcnt(0)")
    for k in range(50):
        if k % 4 == 0: a(f"s_mov_b32 s49, {(k//4)*4096}")
        a(f"buffer_load_dwordx4 {vr(56+4*k,4)}, v2, s[28:31], s49 offen offset:{(k%4)*1024} sc1")

def tail(a):
    a("L_B_done:")
    a("s_and_b32 s40, s26, 7")
    a("s_lshl_b32 s41, s27, 3")
    a("s_add_u32 s41, s41, s40")
    a(f"s_mul_i32 s42, s41, {32*1280}")
    a(f"s_add_u32 s42, s42, {O_OFF}")
    make_srd(a, 28, pWS, "s42", 32*1280)
    a("v_and_b32 v4, 31, v1")
    a("s_lshl_b32 s42, s27, 7")
    a("s_lshr_b32 s40, s40, 1")
    a("s_add_u32 s42, s42, s40")
    a(f"s_add_u32 s42, s42, {FB}")
    a("v_lshl_add_u32 v4, v4, 2, s42")
    a("v_lshlrev_b32 v4, 7, v4")
    a("s_waitcnt vmcnt(0)")
    stamp(a, 12)
    a("s_barrier")
    stamp(a, 1)
    poll(a, 4, 6, sleep=OPT.get('sl', 0))
    stamp(a, 13)
    a("s_lshl_b32 s40, s44, 10")
    for j in range(10):
        a("s_mov_b32 m0, s40")
        a("s_nop 0")
        a("buffer_load_dwordx4 v2, s[28:31], s40 offen sc1 lds")
        if j < 9: a("s_add_u32 s40, s40, 4096")
    a("v_and_b32 v3, 31, v1")
    a("v_lshrrev_b32 v4, 5, v1")
    a("v_mul_u32_u24 v5, 2560, v4")
    a("v_lshl_add_u32 v5, v3, 3, v5")
    a("v_add_u32 v5, 1024, v5")
    make_srd(a, 32, pOUT, 0, OUT_SIZE)
    a("s_lshl_b32 s41, s41, 5")
    a("v_add_u32 v6, s41, v3")
    a("v_mul_u32_u24 v6, 2560, v6")
    a("s_lshr_b32 s42, s26, 3")
    a("s_mul_i32 s42, s42, 320")
    a("s_waitcnt vmcnt(0)")
    a("s_barrier")
    stamp(a, 14)
    if lib.STAMP: a("s_waitcnt lgkmcnt(0)")
    A5, AM, OB = 8, 24, 40
    a("s_mul_i32 s43, s44, 12800")
    a("v_add_u32 v7, s43, v2")
    def rd(buf, kap, base=None):
        b = OB + 4*buf
        if base is not None: return f"ds_read_b128 {vr(b,4)}, v{base} offset:{kap*1280}"
        if kap < 32: return f"ds_read_b128 {vr(b,4)}, v2 offset:{kap*1280}"
        o = (kap - 32) * 5120 // 8
        return None
    def rd_main(buf, kap):
        b = OB + 4*buf
        if kap < 32: return [f"ds_read_b128 {vr(b,4)}, v2 offset:{kap*1280}"]
        g = kap - 32
        return [f"ds_read_b64 {vr(b,2)}, v5 offset:{g*5120}", f"ds_read_b64 {vr(b+2,2)}, v5 offset:{g*5120+1280}"]
    def stream(steps):
        n = len(steps); cnt = [0]*n
        PF = 3
        for k in range(PF):
            r = steps[k][0](k % 4); cnt[k] = len(r)
            for x in r: a(x)
        for k in range(n):
            out = sum(cnt[k+1:min(n, k+PF)])
            a(f"s_waitcnt lgkmcnt({out})")
            d = vr(steps[k][1], 16)
            a(f"v_mfma_f32_32x32x16_bf16 {d}, {vr(steps[k][2],4)}, {vr(OB+4*(k%4),4)}, {'0' if steps[k][3] else d}")
            if k + PF < n:
                r = steps[k+PF][0]((k+PF) % 4); cnt[k+PF] = len(r)
                for x in r: a(x)
            if k == 13:
                for j in range(4): a(f"ds_write_b128 v3, {vr(A5+4*j,4)} offset:{j*1024}")
                cnt[k+PF] += 4
    main = [((lambda kap: lambda buf: rd_main(buf, kap))(kap), AM, 56 + 4*(10+kap), kap == 0) for kap in range(40)]
    a("s_lshl_b32 s43, s44, 12")
    a("s_add_u32 s43, s43, 40960")
    a("v_add_u32 v3, s43, v2")
    a("s_cmp_eq_u32 s44, 3")
    a("s_cbranch_scc1 L_tail3")
    q5 = [((lambda i: lambda buf: [f"ds_read_b128 {vr(OB+4*buf,4)}, v7 offset:{i*1280}"])(i), A5, 56 + 4*i, i == 0) for i in range(10)]
    stream(q5 + main)
    a("s_branch L_tail_join")
    a("L_tail3:")
    q5 = [((lambda i: lambda buf: rd_main(buf, 30 + i))(i), A5, 56 + 4*i, i == 0) for i in range(10)]
    stream(q5 + main)
    a("L_tail_join:")
    stamp(a, 11)
    a("s_waitcnt lgkmcnt(0)")
    a("s_barrier")
    a("s_lshl_b32 s43, s44, 10")
    a("s_add_u32 s43, s43, 40960")
    a("v_add_u32 v3, s43, v2")
    for i in range(4): a(f"ds_read_b128 {vr(OB+4*i,4)}, v3 offset:{i*4096}")
    a("s_lshl_b32 s43, s44, 6")
    a("s_add_u32 s43, s43, s42")
    a("v_lshl_add_u32 v7, v4, 4, v6")
    a("s_nop 2")
    for r in range(8): a(f"v_cvt_pk_bf16_f32 v{AM+r}, v{AM+2*r}, v{AM+2*r+1}")
    a("s_nop 1")
    for h2 in range(2):
        a(f"v_permlane32_swap_b32 v{AM+4*h2}, v{AM+4*h2+2}")
        a(f"v_permlane32_swap_b32 v{AM+4*h2+1}, v{AM+4*h2+3}")
    for h2 in range(2):
        a(f"buffer_store_dwordx4 {vr(AM+4*h2,4)}, v7, s[32:35], s43 offen offset:{32*h2}{FLP()}")
    a("s_waitcnt lgkmcnt(0)")
    for i in range(1, 4):
        a(f"v_pk_add_f32 {vr(OB,2)}, {vr(OB,2)}, {vr(OB+4*i,2)}")
        a(f"v_pk_add_f32 {vr(OB+2,2)}, {vr(OB+2,2)}, {vr(OB+4*i+2,2)}")
    a("s_lshl_b32 s43, s44, 4")
    a("s_add_u32 s43, s43, s42")
    a("v_lshl_add_u32 v7, v4, 3, v6")
    a(f"v_cvt_pk_bf16_f32 v{OB}, v{OB}, v{OB+1}")
    a(f"v_cvt_pk_bf16_f32 v{OB+1}, v{OB+2}, v{OB+3}")
    a(f"buffer_store_dwordx2 {vr(OB,2)}, v7, s[32:35], s43 offen offset:256{FLP()}")
    a("L_end:")
    if OPT.get('pad'):
        a("L_pad:")
        a("s_memrealtime s[40:41]")
        a("s_waitcnt lgkmcnt(0)")
        a(f"s_sub_u32 s40, s40, s{sNON}")
        a(f"s_cmp_lt_u32 s40, {OPT['pad']}")
        a("s_cbranch_scc1 L_pad")
    if lib.STAMP:
        a("s_waitcnt vmcnt(0)")
        stamp(a, 15); stamp_real(a, 17)
        stamp_flush(a, 18, pWS, sWAVE, 0)
    a("L_exit:")
    a("s_endpgm")

KNAME = "concat_heads__mha_block__spectral_fnet__prompt_kernel"
def kernel(a):
    kernel_header(a, KNAME)
    if OPT.get('early'): a("s_memrealtime s[98:99]")
    a("s_cmp_ge_u32 s2, 256")
    a("s_cbranch_scc1 L_exit")
    if lib.STAMP:
        for i in range(18): a(f"s_mov_b32 s{60+2*i}, 0")
    stamp(a, 0); stamp_real(a, 16)
    a("s_load_dwordx8 s[4:11], s[0:1], 0")
    a("s_load_dwordx4 s[12:15], s[0:1], 64")
    a("s_load_dwordx2 s[16:17], s[0:1], 80")
    a("v_lshrrev_b32 v1, 6, v0")
    a(f"s_and_b32 s{sXCD}, s2, 7")
    a(f"v_readfirstlane_b32 s{sWAVE}, v1")
    a(f"s_lshr_b32 s{sSLOT}, s2, 3")
    a("v_and_b32 v1, 63, v0")
    a(f"s_and_b32 s26, s{sXCD}, 3")
    a("s_lshl_b32 s26, s26, 2")
    a(f"s_and_b32 s27, s{sSLOT}, 3")
    a("s_add_u32 s26, s26, s27")
    a(f"s_lshr_b32 s27, s{sXCD}, 2")
    a("s_mul_i32 s27, s27, 6")
    a(f"s_lshr_b32 s40, s{sSLOT}, 2")
    a("s_add_u32 s27, s27, s40")
    a(f"s_lshl_b32 s40, s2, 3")
    a(f"s_add_u32 s40, s40, s{sWAVE}")
    a("s_waitcnt lgkmcnt(0)")
    make_srd(a, sFL, pWS, FL_OFF, FL_SIZE)
    a("s_cmp_lg_u32 s40, 7")
    a("s_cbranch_scc1 L_no_nonce")
    if OPT.get('early'): a("s_mov_b64 s[40:41], s[98:99]")
    else: a("s_memrealtime s[40:41]")
    make_srd(a, 28, pDBG, 0, 256)
    a("s_waitcnt lgkmcnt(0)")
    a("s_or_b32 s40, s40, 1")
    a("v_mov_b32 v2, s40")
    a("v_mov_b32 v3, s41")
    a("v_mov_b32 v4, 0")
    a("buffer_store_dwordx2 v[2:3], v4, s[28:31], 0 offen sc1")
    a("L_no_nonce:")
    a(f"s_cmp_lg_u32 s{sWAVE}, 0")
    a("s_cbranch_scc1 L_no_init")
    a(f"v_mov_b32 v2, {LDS_PROG}")
    a("v_mov_b32 v4, 0")
    a("v_mov_b32 v5, 0")
    for i in range(8): a(f"ds_write_b64 v2, v[4:5] offset:{8*i}")
    a("s_waitcnt lgkmcnt(0)")
    a("L_no_init:")
    if OPT.get('touch'):
        a(f"s_cmp_lg_u32 s{sWAVE}, 1")
        a("s_cbranch_scc1 L_no_code")
        a("s_getpc_b64 s[40:41]")
        a("L_pc:")
        a(f"s_sub_u32 s40, s40, L_pc-{KNAME}")
        a("s_subb_u32 s41, s41, 0")
        a(f"s_and_b32 s42, s{sSLOT}, 7")
        a("s_lshl_b32 s42, s42, 12")
        a("v_lshlrev_b32 v2, 4, v1")
        a("v_add_u32 v2, s42, v2")
        a(f"v_min_u32 v2, L_exit-{KNAME}-3072-16, v2")
        for i in range(4): a(f"global_load_dwordx4 v[164:167], v2, s[40:41] offset:{i*1024}")
        a("L_no_code:")
        a(f"s_cmp_lg_u32 s{sWAVE}, 2")
        a("s_cbranch_scc1 L_no_tlb")
        make_srd(a, 28, pWS, 0, FL_OFF + FL_SIZE)
        a("v_mul_u32_u24 v2, 0x44000, v1")
        a("buffer_load_dword v164, v2, s[28:31], 0 offen sc1")
        make_srd(a, 28, pOUT, 0, OUT_SIZE)
        a("v_mul_u32_u24 v2, 0x14000, v1")
        a("buffer_load_dword v165, v2, s[28:31], 0 offen sc1")
        a("L_no_tlb:")
    a(f"s_cmp_ge_u32 s{sSLOT}, 24")
    a("s_cbranch_scc1 L_prep")
    a(f"s_cmp_lt_u32 s{sWAVE}, 4")
    a("s_cbranch_scc1 L_compute")
    gemm_loader(a)
    gemm_compute(a)
    prep(a)
    a_done(a)
    attention(a)
    aux(a)
    tail(a)
    return kernel_desc(KNAME, 256, 100)

HEADER = open('concat_heads__mha_block__spectral_fnet__prompt.s.ref').read().split("; Override")[0]
def main(out):
    a = Asm()
    a('.amdgcn_target "amdgcn-amd-amdhsa--gfx950"')
    a(".text")
    d = kernel(a)
    txt = HEADER + "; @launch grid=(256,1,1) block=(512,1,1) lds=163840\n" + a.text() + '.section .rodata,"a"\n.p2align 6\n' + d
    open(out, "w").write(txt)

if __name__ == "__main__":
    for x in sys.argv[2:]:
        if x == "stamp": lib.STAMP = True
        elif x == "gst": lib.STAMP = True; lib.STAMPSET = 1
        elif x == "cst": lib.STAMP = True; lib.STAMPSET = 2
        else:
            k, _, v = x.partition("=")
            OPT[k] = int(v) if v else 1
    main(sys.argv[1] if len(sys.argv) > 1 else "v9.s")
```

```python
import sys, struct
from lib import *
import lib

TKV = 2560; KV_HEAD = 64*TKV; KV_OFF = 0; KV_SIZE = 32*KV_HEAD
TQ = 1280; Q_HEAD = 64*TQ; Q_OFF = KV_SIZE; Q_SIZE = 32*Q_HEAD
O_OFF = Q_OFF + Q_SIZE; O_SIZE = 64*32*1280
SEQ_OFF = O_OFF + O_SIZE; SEQ_SIZE = 33*65*1024
AB_OFF = SEQ_OFF + SEQ_SIZE; AB_SIZE = 4*11*33*1024
WO_OFF = AB_OFF + AB_SIZE; WO_SIZE = 16*50*1024
FL_OFF = 16*1024*1024; FL_SIZE = 1280*128
FA, FB = 0, 256
X_SIZE = 2048*1280; OUT_SIZE = 2048*2560
HUGE = 0x40000000
QSCALE = (20 ** -0.5) * 1.4426950408889634
NDMA = 155; LPAIR = 5184
LDS_PROG = 31*LPAIR
def lds_tile(t): return ((t-2)>>1)*LPAIR + ((t-2)&1)*TKV
def need(tile): return ((tile-1)*TKV + 4095)//4096
NEED = [need(4), need(7), need(15), need(23), 39]
POLL_MAX = 200000
def f32bits(x): return struct.unpack('<I', struct.pack('<f', x))[0]
OPT = {}
FLS = ['', ' sc1', ' nt', ' sc0 sc1', ' sc1 nt']
def FLP(): return FLS[OPT.get('flp', 0)]
def FLF(): return FLS[OPT.get('flf', 1)]

sWAVE = 3
pX, pW, pWO, pBX, pOUT, pDBG, pWS = 4, 6, 8, 10, 12, 14, 16
sNON = 18
sFL = 20
sXCD, sSLOT = 24, 25
STG = 36864
NS = 4

def poll(a, vaddr, vtmp, cnt=40, sleep=1):
    l = a.label("L_poll"); d = a.label("L_pollok")
    a(f"s_mov_b32 s{cnt}, {POLL_MAX}")
    a(f"{l}:")
    a(f"buffer_load_dwordx2 {vr(vtmp,2)}, v{vaddr}, {sr(sFL,4)}, 0 offen sc1")
    a("s_waitcnt vmcnt(0)")
    a(f"v_cmp_ne_u64 vcc, {sr(sNON,2)}, {vr(vtmp,2)}")
    a(f"s_sub_u32 s{cnt}, s{cnt}, 1")
    a(f"s_cbranch_vccz {d}")
    a(f"s_cmp_eq_u32 s{cnt}, 0")
    a(f"s_cbranch_scc1 {d}")
    if sleep: a(f"s_sleep {sleep}")
    a(f"s_branch {l}")
    a(f"{d}:")

def get_nonce(a, vt, srd=28, cnt=40):
    make_srd(a, srd, pDBG, 0, 256)
    l = a.label("L_non"); d = a.label("L_nonok")
    a(f"v_mov_b32 v{vt}, 0")
    a(f"s_mov_b32 s{cnt}, {POLL_MAX}")
    a(f"{l}:")
    a(f"buffer_load_dwordx2 {vr(vt+2,2)}, v{vt}, {sr(srd,4)}, 0 offen sc1")
    a("s_waitcnt vmcnt(0)")
    a(f"v_readfirstlane_b32 s{sNON}, v{vt+2}")
    a(f"v_readfirstlane_b32 s{sNON+1}, v{vt+3}")
    a(f"s_sub_u32 s{cnt}, s{cnt}, 1")
    a(f"s_cmp_lg_u32 s{sNON}, 0")
    a(f"s_cbranch_scc1 {d}")
    a(f"s_cmp_eq_u32 s{cnt}, 0")
    a(f"s_cbranch_scc1 {d}")
    a("s_sleep 2")
    a(f"s_branch {l}")
    a(f"{d}:")

def set_flag(a, sidx, vt):
    for i in range(4): a(f"v_mov_b32 v{vt+i}, s{sNON+(i&1)}")
    a(f"v_lshlrev_b32 v{vt+4}, 4, v1")
    a("s_mov_b64 exec, 0xff")
    a(f"buffer_store_dwordx4 {vr(vt,4)}, v{vt+4}, {sr(sFL,4)}, s{sidx} offen sc1")
    a("s_mov_b64 exec, -1")

def gemm_loader(a):
    sA, sB = 28, 32
    a("L_loader:")
    a("s_mul_i32 s40, s26, 163840")
    make_srd(a, sA, pX, "s40", 163840)
    a(f"s_sub_u32 s44, s{sWAVE}, 4")
    a("v_lshrrev_b32 v2, 3, v1")
    a("s_lshl_b32 s40, s44, 3")
    a("v_add_u32 v2, s40, v2")
    a("v_mul_u32_u24 v2, 1280, v2")
    a("v_lshrrev_b32 v3, 4, v1")
    a("s_and_b32 s40, s44, 1")
    a("s_lshl_b32 s40, s40, 2")
    a("v_or_b32 v4, s40, v3")
    a("v_and_b32 v5, 7, v1")
    a("v_xor_b32 v4, v4, v5")
    a("v_lshl_add_u32 v10, v4, 4, v2")
    a("s_lshl_b32 s45, s44, 10")
    a(f"s_lshr_b32 s40, s{sSLOT}, 2")
    a(f"s_mul_i32 s40, s40, {OPT.get('ra', 1)}")
    a(f"s_and_b32 s41, s{sSLOT}, 3")
    a(f"s_mul_i32 s41, s41, {OPT.get('rb', 1)}")
    a("s_add_u32 s40, s40, s41")
    a(f"s_mul_i32 s41, s{sXCD}, {OPT.get('rc', 3)}")
    a("s_add_u32 s40, s40, s41")
    a("s_mul_i32 s41, s40, 6554")
    a("s_lshr_b32 s41, s41, 16")
    a("s_mul_i32 s41, s41, 10")
    a("s_sub_u32 s47, s40, s41")
    def issue_x(c):
        sl = c % NS
        a("s_lshl_b32 s48, s47, 7")
        for j in range(4):
            a(f"s_add_u32 m0, s45, {sl*STG + j*4096}")
            if j: a(f"s_add_u32 s48, s48, 40960")
            else: a("s_mul_i32 s49, s47, 245760")
            a(f"buffer_load_dwordx4 v10, {sr(sA,4)}, s48 offen lds")
    def issue_w(c):
        sl = c % NS
        for i in range(5):
            a(f"s_add_u32 m0, s46, {sl*STG + 16384 + i*1024 - i*64}")
            if i == 0:
                a("s_add_u32 s47, s47, 1")
            elif i == 1:
                a("s_cmp_eq_u32 s47, 10")
                a("s_cmov_b32 s47, 0")
            else: a("s_nop 0")
            a(f"buffer_load_dwordx4 v11, {sr(sB,4)}, s49 offen offset:{i*64} lds")
    def issue(c): issue_x(c); issue_w(c)
    stamp(a, 12, 1)
    issue_x(0)
    stamp(a, 13, 1)
    a("s_mul_i32 s40, s27, 320")
    a("s_sub_u32 s41, 2457600, s40")
    make_srd(a, sB, pW, "s40", "s41")
    a("s_lshl_b32 s40, s44, 4")
    a("v_lshrrev_b32 v2, 2, v1")
    a("v_add_u32 v2, s40, v2")
    a("v_mul_u32_u24 v2, 3840, v2")
    a("v_and_b32 v3, 3, v1")
    a("v_lshrrev_b32 v4, 5, v1")
    a("v_lshlrev_b32 v4, 1, v4")
    a("v_xor_b32 v3, v3, v4")
    a("v_lshl_add_u32 v11, v3, 4, v2")
    a("s_mul_i32 s46, s44, 5120")
    issue_w(0)
    stamp(a, 14, 1)
    issued = 1
    pre = OPT.get('pre', 2)
    for c in range(1, pre): issue(c); issued += 1
    for c in range(10):
        a(f"s_waitcnt vmcnt({9*(issued-c-1)})")
        if c in (0, 9): stamp(a, {0: 2, 9: 5}[c])
        stamp(a, c + 1, 1)
        a("s_barrier")
        if c == 0: stamp(a, 11, 1)
        while issued < min(10, c + 1 + (OPT.get('dep', 2) if c < OPT.get('depsw', 10) else 3)): issue(issued); issued += 1
    get_nonce(a, 2)
    a("s_branch L_A_done")

AX, AWA, EA = 8, 10, 16
FR = 24
ACC = 96
def gemm_loop(a, isv, epi):
    XB = [FR, FR + 36]
    def rdx(kk, m): sl, st = divmod(kk, 2); return f"ds_read_b128 {vr(XB[kk&1]+4*m,4)}, v{AX+st} offset:{sl*STG + m*2048}"
    def rdw(kk, T): sl, st = divmod(kk, 2); return [f"ds_read_b64_tr_b16 {vr(XB[kk&1]+16+4*T+2*t,2)}, v{AWA+T} offset:{sl*STG + st*10240 + t*256}" for t in range(2)]
    def reads(kk):
        r = rdw(kk, 0) + [rdx(kk, m) for m in range(4)]
        for T in range(1, 5): r += rdw(kk, T)
        return r
    def mfma(kk, T, m):
        b = XB[kk & 1]
        d = vr(ACC + 16*T + 4*m, 4); w = vr(b + 16 + 4*T, 4); x = vr(b + 4*m, 4)
        return f"v_mfma_f32_16x16x32_bf16 {d}, {x}, {w}, {d}" if isv else f"v_mfma_f32_16x16x32_bf16 {d}, {w}, {x}, {d}"
    for r in range(80): a(f"v_mov_b32 v{ACC+r}, 0")
    a(f"s_mov_b32 s40, {2*STG}")
    a("s_mov_b32 s41, 5")
    a("s_barrier")
    stamp(a, 2)
    for r in reads(0): a(r)
    lp = a.label("L_gemm"); last = a.label("L_gemm_last")
    a(".p2align 3")
    a(f"{lp}:")
    for kk in range(4):
        a("s_waitcnt lgkmcnt(0)")
        ms = [mfma(kk, T, m) for T in range(5) for m in range(4)]
        a(ms[0])
        if kk == 1:
            a("s_sub_u32 s41, s41, 1")
            a("s_barrier")
            a("s_cmp_eq_u32 s41, 0")
            a(f"s_cbranch_scc1 {last}")
        if kk == 3:
            for i in range(2): a(f"v_add_u32 v{AX+i}, s40, v{AX+i}")
            for i in range(5): a(f"v_add_u32 v{AWA+i}, s40, v{AWA+i}")
            a("s_sub_u32 s40, 0, s40")
            a("s_barrier")
        nx = reads((kk + 1) & 3)
        for i in range(1, 20):
            if i - 1 < len(nx): a(nx[i-1])
            a(ms[i])
    a(f"s_branch {lp}")
    a(f"{last}:")
    ms = [mfma(1, T, m) for T in range(5) for m in range(4)]
    nx = reads(2)
    for i in range(1, 20):
        if i - 1 < len(nx): a(nx[i-1])
        a(ms[i])
    nx = reads(3)
    a("s_waitcnt lgkmcnt(0)")
    pos = 0
    for T in range(5):
        e = epi(T - 2) if T >= 2 else []
        per = -(-len(e) // 8)
        for i in range(8):
            kk = 2 + (i >> 2)
            if T == 0 and i == 4: a(f"s_waitcnt lgkmcnt({pos - 6})")
            if T == 1 and i == 4: a("s_waitcnt lgkmcnt(0)")
            a(mfma(kk, T, i & 3))
            for _ in range(2):
                if pos < len(nx): a(nx[pos]); pos += 1
            for x in e[per*i:per*(i+1)]: a(x)
    stamp(a, 5)
    for x in epi(3): a(x)
    for x in epi(4): a(x)

def gemm_compute(a):
    a("L_compute:")
    a("v_and_b32 v2, 15, v1")
    a("v_lshrrev_b32 v3, 4, v1")
    a(f"s_and_b32 s42, s{sWAVE}, 1")
    a(f"s_lshr_b32 s43, s{sWAVE}, 1")
    a("s_lshl_b32 s40, s42, 6")
    a("v_add_u32 v4, s40, v2")
    a("v_lshlrev_b32 v4, 7, v4")
    a("v_lshrrev_b32 v5, 1, v2")
    a("v_xor_b32 v5, v5, v3")
    a(f"v_lshl_add_u32 v{AX}, v5, 4, v4")
    a(f"v_xor_b32 v{AX+1}, 64, v{AX}")
    a("v_lshrrev_b32 v4, 5, v1")
    a("v_mul_u32_u24 v4, 5120, v4")
    a("v_and_b32 v5, 1, v3")
    a("v_lshrrev_b32 v6, 2, v2")
    a("v_lshl_add_u32 v6, v5, 3, v6")
    a("v_lshl_add_u32 v4, v6, 6, v4")
    a("v_add_u32 v4, 16384, v4")
    a("v_lshlrev_b32 v5, 2, v5")
    a("v_and_b32 v6, 3, v1")
    a("s_mul_i32 s44, s43, 20")
    def waddr(T, g):
        a(f"v_and_b32 v15, 7, v{g}")
        a("v_xor_b32 v15, v15, v5")
        a("v_lshl_add_u32 v15, v15, 3, v4")
        a(f"v_lshrrev_b32 v{g}, 3, v{g}")
        a(f"v_lshl_add_u32 v{AWA+T}, v{g}, 10, v15")
    a("s_lshl_b32 s45, s26, 2")
    a("s_lshl_b32 s42, s42, 1")
    a("s_add_u32 s42, s42, s45")
    a("s_and_b32 s45, s27, 3")
    a("s_lshl_b32 s45, s45, 3")
    a("s_lshl_b32 s43, s43, 2")
    a("s_add_u32 s43, s43, s45")
    a("s_cmp_ge_u32 s27, 8")
    a("s_cbranch_scc1 L_compute_v")
    for T in range(5):
        if T < 4:
            a(f"s_add_u32 s45, s44, {5*T}")
            a("v_add_u32 v7, s45, v6")
        else:
            a("s_add_u32 s45, s44, 4")
            a("v_mad_u32_u24 v7, v6, 5, s45")
        waddr(T, 7)
    a("s_cmp_ge_u32 s27, 4")
    for reg, k, q in [(44, KV_HEAD, Q_HEAD), (45, TKV, TQ), (46, f32bits(1.0), f32bits(QSCALE)), (47, KV_OFF, Q_OFF), (48, KV_SIZE, Q_SIZE)]:
        a(f"s_mov_b32 s{reg}, {q}")
        a(f"s_cmov_b32 s{reg}, {k}")
    make_srd(a, 28, pWS, "s47", "s48")
    a("s_mul_i32 s47, s43, s44")
    a("s_mul_i32 s48, s42, s45")
    a("s_add_u32 s47, s47, s48")
    a(f"v_lshlrev_b32 v{EA}, 4, v1")
    a(f"v_add_u32 v{EA+1}, s45, v{EA}")
    a("v_lshrrev_b32 v4, 5, v1")
    a("v_mul_lo_u32 v4, v4, s44")
    a("v_and_b32 v5, 31, v1")
    a("v_lshlrev_b32 v5, 3, v5")
    a("v_lshl_add_u32 v4, v4, 1, v5")
    a(f"v_add_u32 v{EA+2}, 1024, v4")
    a(f"v_add_u32 v{EA+3}, s45, v{EA+2}")
    a("s_mov_b32 s48, s47")
    a("s_add_u32 s49, s47, s44")
    def epi_qk(T):
        b = ACC + 16*T; e = []
        for r in range(16): e.append(f"v_mul_f32 v{b+r}, s46, v{b+r}")
        for r in range(8): e.append(f"v_cvt_pk_bf16_f32 v{b+r}, v{b+2*r}, v{b+2*r+1}")
        e.append("s_nop 0")
        for u in range(2):
            e.append(f"v_permlane16_swap_b32 v{b+4*u}, v{b+4*u+2}")
            e.append(f"v_permlane16_swap_b32 v{b+4*u+1}, v{b+4*u+3}")
        for u in range(2):
            if T < 4: e.append(f"buffer_store_dwordx4 {vr(b+4*u,4)}, v{EA+u}, s[28:31], s48 offen sc1")
            else:
                e.append(f"buffer_store_dwordx2 {vr(b+4*u,2)}, v{EA+2+u}, s[28:31], s47 offen sc1")
                e.append(f"buffer_store_dwordx2 {vr(b+4*u+2,2)}, v{EA+2+u}, s[28:31], s49 offen sc1")
        if T < 3: e.append("s_add_u32 s48, s48, s44")
        return e
    gemm_loop(a, False, epi_qk)
    a("s_branch L_A_done")
    a("L_compute_v:")
    for T in range(5):
        a(f"s_add_u32 s45, s44, {4*T}")
        a("v_add_u32 v7, s45, v6")
        waddr(T, 7)
    make_srd(a, 28, pWS, KV_OFF, KV_SIZE)
    a(f"s_mov_b32 s44, {KV_HEAD}")
    a("s_mul_i32 s47, s43, s44")
    a(f"s_mul_i32 s48, s42, {TKV}")
    a("s_add_u32 s47, s47, s48")
    a("v_lshrrev_b32 v7, 5, v1")
    a("v_mul_u32_u24 v7, 640, v7")
    a("v_and_b32 v15, 1, v3")
    a("v_lshl_add_u32 v7, v15, 6, v7")
    a("v_add_u32 v7, 1280, v7")
    for T in range(5):
        a(f"v_add_u32 v4, {16*T}, v2")
        a("v_mul_u32_u24 v5, 3277, v4")
        a("v_lshrrev_b32 v5, 16, v5")
        a("v_mul_u32_u24 v6, 20, v5")
        a("v_sub_u32 v4, v4, v6")
        a("v_and_b32 v6, 28, v4")
        a("v_add_u32 v4, v4, v6")
        a("v_mul_lo_u32 v5, v5, s44")
        a("v_lshl_add_u32 v4, v4, 4, v5")
        a(f"v_add_u32 v{EA+T}, v7, v4")
    def epi_v(T):
        b = ACC + 16*T; e = []
        for r in range(8): e.append(f"v_cvt_pk_bf16_f32 v{b+r}, v{b+2*r}, v{b+2*r+1}")
        e.append("s_nop 0")
        for u in range(2):
            e.append(f"v_permlane32_swap_b32 v{b+4*u}, v{b+4*u+2}")
            e.append(f"v_permlane32_swap_b32 v{b+4*u+1}, v{b+4*u+3}")
        for u in range(2): e.append(f"buffer_store_dwordx4 {vr(b+4*u,4)}, v{EA+T}, s[28:31], s47 offen offset:{u*TKV} sc1")
        return e
    gemm_loop(a, True, epi_v)
    a("s_branch L_A_done")

SWD = [42, 43, 44, 56, 57]
def side_work(a):
    a("s_sub_u32 s53, s2, 192")
    a("s_mul_i32 s53, s53, 3")
    a(f"s_add_u32 s53, s53, s{sWAVE}")
    a("s_sub_u32 s53, s53, 5")
    a("v_lshlrev_b32 v22, 4, v1")
    make_srd(a, 32, pWO, 0, 819200)
    make_srd(a, 28, pWS, SEQ_OFF, WO_OFF + WO_SIZE - SEQ_OFF)
    WR = 32
    for n in range(5):
        if n == 4:
            a("s_cmp_ge_u32 s53, 32")
            a("s_cbranch_scc1 L_sw_wo_ld")
        a(f"s_add_u32 s40, s53, {192*n}")
        a("s_mul_i32 s41, s40, 1639")
        a("s_lshr_b32 s41, s41, 16")
        a("s_mul_i32 s58, s41, 40")
        a("s_sub_u32 s58, s40, s58")
        a("s_mul_i32 s59, s58, 20")
        a("s_mul_i32 s55, s58, 80")
        a("s_sub_u32 s55, s55, %d" % (32*80 - 16))
        a("s_cmp_lt_u32 s58, 32")
        a("s_cselect_b32 s45, 4, 40")
        a("s_cselect_b32 s59, s59, s55")
        a(f"s_mov_b32 s46, {20*1280}")
        a(f"s_cmov_b32 s46, {8*1280}")
        a("v_mul_u32_u24 v4, s45, v3")
        a("v_add_u32 v4, s59, v4")
        a("v_mul_u32_u24 v4, 1280, v4")
        a("s_lshl_b32 s59, s41, 6")
        a("v_lshl_add_u32 v4, v2, 1, v4")
        a("v_add_u32 v4, s59, v4")
        b = WR + 8*n
        for grp in range(2):
            so = "s46" if grp else "0"
            for i in range(4):
                a(f"buffer_load_ushort v{b+4*grp+i}, v4, s[32:35], {so} offen offset:{i*1280}")
        a("s_mul_i32 s59, s41, 52")
        a("s_lshr_b32 s59, s59, 8")
        a("s_mul_i32 s55, s59, 5")
        a("s_sub_u32 s55, s41, s55")
        a("s_mul_i32 s45, s58, 26")
        a("s_lshr_b32 s45, s45, 8")
        a("s_mul_i32 s47, s45, 10")
        a("s_sub_u32 s47, s58, s47")
        a("s_add_u32 s58, s58, 10")
        a("s_cmp_lt_u32 s55, 4")
        a("s_cselect_b32 s55, s55, s45")
        a("s_cselect_b32 s58, s58, s47")
        a("s_lshl_b32 s59, s59, 2")
        a("s_add_u32 s59, s59, s55")
        a("s_mul_i32 s59, s59, 50")
        a("s_add_u32 s59, s59, s58")
        a("s_lshl_b32 s59, s59, 10")
        a(f"s_add_u32 s{SWD[n]}, s59, {WO_OFF - SEQ_OFF}")
    a("L_sw_wo_ld:")
    G = 80
    a("s_mov_b32 s54, s53")
    a("v_lshlrev_b32 v23, 3, v3")
    a(f"s_mov_b32 s55, {f32bits(1.0/2048)}")
    a("v_cmp_gt_u32 vcc, 32, v1")
    a("L_sw_gen:")
    a("s_lshr_b32 s41, s54, 5")
    a("s_and_b32 s58, s54, 31")
    a("s_lshr_b32 s59, s41, 1")
    a("s_lshl_b32 s59, s59, 6")
    a("s_and_b32 s47, s41, 1")
    a("s_add_u32 s59, s59, s47")
    a("v_lshl_add_u32 v4, v2, 1, s59")
    a("s_mul_i32 s45, s41, 65")
    a("s_add_u32 s45, s45, s58")
    a("s_lshl_b32 s45, s45, 10")
    a(f"s_add_u32 s46, s45, {33*1024}")
    a("s_lshl_b32 s48, s58, 4")
    a("v_add_u32 v5, s48, v23")
    a("v_mul_u32_u24 v5, v4, v5")
    a("v_cvt_f32_u32 v5, v5")
    a("v_cvt_f32_u32 v4, v4")
    for i in range(8):
        if i: a("v_add_f32 v5, v5, v4")
        a(f"v_mul_f32 v{G+i}, s55, v5")
    for i in range(8): a(f"v_fract_f32 v{G+i}, v{G+i}")
    for i in range(8): a(f"v_cos_f32 v{G+8+i}, v{G+i}")
    a("s_cmp_lg_u32 s58, 0")
    a("s_cbranch_scc1 L_gen_plain")
    a("v_mul_f32 v6, 0x3e800000, v4")
    a("v_fract_f32 v6, v6")
    a(f"v_cndmask_b32 v{G}, v{G}, v6, vcc")
    a("v_cos_f32 v7, v6")
    a(f"v_mov_b32 v{G+25}, 0")
    a(f"v_mov_b32 v{G+26}, 0")
    a(f"v_mov_b32 v{G+27}, 0")
    a("v_cndmask_b32 v7, 0, v7, vcc")
    a(f"v_cvt_pk_bf16_f32 v{G+24}, v7, 0")
    a(f"s_add_u32 s48, s45, {32*1024}")
    a(f"buffer_store_dwordx4 {vr(G+24,4)}, v22, s[28:31], s48 offen sc1")
    a("L_gen_plain:")
    for i in range(8): a(f"v_sin_f32 v{G+i}, v{G+i}")
    for i in range(4): a(f"v_cvt_pk_bf16_f32 v{G+16+i}, v{G+8+2*i}, v{G+9+2*i}")
    for i in range(4): a(f"v_cvt_pk_bf16_f32 v{G+20+i}, v{G+2*i}, v{G+1+2*i}")
    a(f"buffer_store_dwordx4 {vr(G+16,4)}, v22, s[28:31], s45 offen sc1")
    a(f"buffer_store_dwordx4 {vr(G+20,4)}, v22, s[28:31], s46 offen sc1")
    a("s_add_u32 s54, s54, 192")
    a("s_cmp_lt_u32 s54, 1056")
    a("s_cbranch_scc1 L_sw_gen")

def side_work_finish(a):
    WR = 32
    l = a.label("L_sw_fin")
    a("s_waitcnt vmcnt(10)")
    for n in range(5):
        if n == 4:
            a("s_cmp_ge_u32 s53, 32")
            a(f"s_cbranch_scc1 {l}")
        b = WR + 8*n
        for i in range(4): a(f"v_lshl_or_b32 v{b+i}, v{b+2*i+1}, 16, v{b+2*i}")
        a(f"buffer_store_dwordx4 {vr(b,4)}, v22, s[28:31], s{SWD[n]} offen sc1")
    a(f"{l}:")

def prep(a):
    a("L_prep:")
    a(f"s_sub_u32 s40, s{sSLOT}, 24")
    a("s_and_b32 s27, s40, 1")
    a("s_lshr_b32 s26, s40, 1")
    a("s_lshl_b32 s26, s26, 3")
    a(f"s_add_u32 s26, s26, s{sXCD}")
    make_srd(a, 36, pWS, AB_OFF, AB_SIZE)
    a(f"s_cmp_ge_u32 s{sWAVE}, 5")
    a("s_cbranch_scc1 L_fold_skip")
    make_srd(a, 28, pBX, 0, X_SIZE)
    a("s_lshl_b32 s42, s26, 4")
    a("v_lshrrev_b32 v2, 3, v1")
    a("v_and_b32 v3, 7, v1")
    a("v_add_u32 v4, s42, v2")
    a("v_mul_u32_u24 v5, 1280, v4")
    a("v_lshlrev_b32 v6, 4, v3")
    a("v_add_u32 v10, v5, v6")
    a("v_sub_u32 v7, v6, v5")
    a(f"s_lshl_b32 s44, s27, 1")
    a(f"s_add_u32 s44, s44, s{sWAVE}")
    a("s_cmp_ge_u32 s44, 5")
    a("s_cselect_b32 s45, 5, 0")
    a("s_sub_u32 s44, s44, s45")
    a("s_lshl_b32 s44, s44, 7")
    a("s_add_u32 s45, s44, 10240")
    a(f"v_add_u32 v11, {2048*1280}, v7")
    a(f"v_add_u32 v12, {1024*1280}, v7")
    a("v_cmp_ne_u32 vcc, 0, v4")
    a(f"v_mov_b32 v8, {HUGE}")
    a(f"v_add_u32 v9, {1024*1280}, v10")
    a("v_cndmask_b32 v13, v8, v9, vcc")
    LD = 32
    for hf in range(2):
        for r in range(4): a(f"buffer_load_dwordx4 {vr(LD+8*r+4*hf,4)}, v{10+r}, s[28:31], s44 offen offset:{640*hf}")
    a("v_subrev_u32 v11, 10240, v11")
    a("v_subrev_u32 v12, 10240, v12")
    for hf in range(2):
        for r, (vv, so) in enumerate([(10, 45), (11, 44), (12, 44), (9, 45)]):
            a(f"buffer_load_dwordx4 {vr(LD+32+8*r+4*hf,4)}, v{vv}, s[28:31], s{so} offen offset:{640*hf}")
    XL = 96
    a("s_cmp_lg_u32 s26, 0")
    a("s_cbranch_scc1 L_fold_nx")
    a(f"v_add_u32 v14, {512*1280}, v6")
    a(f"v_add_u32 v15, {1536*1280}, v6")
    a("v_cndmask_b32 v14, v14, v8, vcc")
    a("v_cndmask_b32 v15, v15, v8, vcc")
    for r in range(2):
        for hf in range(2):
            a(f"buffer_load_dwordx4 {vr(XL+8*r+4*hf,4)}, v{14+r}, s[28:31], s44 offen offset:{640*hf}")
    a("L_fold_nx:")
    a("v_and_b32 v5, 3, v2")
    a("v_lshrrev_b32 v4, 2, v2")
    a("v_lshl_or_b32 v5, v4, 3, v5")
    a("v_xor_b32 v5, v5, v3")
    a("v_and_b32 v4, 1, v3")
    a("v_lshl_add_u32 v5, v4, 5, v5")
    a("v_lshlrev_b32 v5, 4, v5")
    a("v_lshrrev_b32 v4, 1, v3")
    a("v_lshl_add_u32 v5, v4, 10, v5")
    a("s_lshl_b32 s45, s44, 5")
    a("v_add_u32 v16, s45, v5")
    a("v_xor_b32 v18, 64, v16")
    a("v_add_u32 v5, s44, v6")
    a("v_add_u32 v17, 40960, v5")
    a("v_lshlrev_b32 v6, 4, v1")
    a("v_add_u32 v6, 43008, v6")
    a("v_cndmask_b32 v17, v17, v6, vcc")
    a("L_fold_skip:")
    a("v_and_b32 v2, 31, v1")
    a("v_lshrrev_b32 v3, 5, v1")
    a("v_lshlrev_b32 v15, 4, v1")
    a(f"s_lshr_b32 s40, s{sWAVE}, 1")
    a("s_add_u32 s40, s40, 2")
    a(f"s_and_b32 s41, s{sWAVE}, 1")
    a(f"s_cmp_lt_u32 s{sWAVE}, 4")
    a(f"s_cselect_b32 s49, s{sWAVE}, s40")
    a("s_cselect_b32 s50, 0, s41")
    a("s_lshl_b32 s54, s49, 6")
    a("s_add_u32 s54, s54, s27")
    a("v_lshl_add_u32 v4, v2, 1, s54")
    AU = 10; SB = [[176, 184], [192, 200]]; HB = [[208, 212], [216, 220]]; UB = [72, 84, 96, 108]; ACC3 = [224, 240, 32]; PH = 112
    a("s_mul_i32 s52, s50, 20480")
    for jj in range(4):
        a(f"v_xor_b32 v5, {2*jj}, v3")
        a("v_xor_b32 v5, v5, v2")
        a("v_lshl_add_u32 v5, v3, 5, v5")
        a("v_lshlrev_b32 v5, 4, v5")
        a(f"v_add_u32 v5, {jj*1024}, v5")
        a(f"v_add_u32 v{AU+jj}, s52, v5")
    a(f"v_lshlrev_b32 v{AU+4}, 4, v3")
    a(f"v_add_u32 v{AU+4}, 40960, v{AU+4}")
    a(f"s_mov_b32 s52, {f32bits(1.0/640)}")
    a("s_cmp_lg_u32 s50, 0")
    a("s_cselect_b32 s53, 0x3e800000, 0")
    a("v_lshlrev_b32 v5, 3, v3")
    a("v_mul_u32_u24 v5, v4, v5")
    a("v_cvt_f32_u32 v5, v5")
    a("v_cvt_f32_u32 v4, v4")
    a("v_mul_f32 v6, 0x41800000, v4")
    for i in range(8):
        if i: a("v_add_f32 v5, v5, v4")
        a(f"v_mul_f32 v{PH+i}, s52, v5")
        a("v_sub_f32 v7, v5, v6")
        a(f"v_mul_f32 v{PH+8+i}, s52, v7")
    a("v_mul_f32 v6, s52, v6")
    a("v_fract_f32 v6, v6")
    for i in range(16): a(f"v_fract_f32 v{PH+i}, v{PH+i}")
    a("v_cos_f32 v19, v6")
    for i in range(16): a(f"v_sin_f32 v{SB[1][0]+i}, v{PH+i}")
    for i in range(16): a(f"v_subrev_f32 v{PH+i}, s53, v{PH+i}")
    for i in range(16): a(f"v_cos_f32 v{SB[0][0]+i}, v{PH+i}")
    a("v_add_f32 v19, v19, v19")
    for r in range(32): a(f"v_mov_b32 v{224+r}, 0")
    def cvts(jb, g): return [f"v_cvt_pk_bf16_f32 v{HB[jb][g]+d}, v{SB[jb][g]+2*d}, v{SB[jb][g]+2*d+1}" for d in range(4)]
    def rot(jb, cur): return [f"v_fma_f32 v{SB[jb][cur^1]+i}, v19, v{SB[jb][cur]+i}, -v{SB[jb][cur^1]+i}" for i in range(8)]
    for x in cvts(0, 0) + cvts(1, 0): a(x)
    a(f"s_cmp_lt_u32 s{sWAVE}, 5")
    a("s_cbranch_scc1 L_fold_go")
    side_work(a)
    side_work_finish(a)
    a("s_branch L_fold_done")
    a("L_fold_go:")
    a("s_cmp_lg_u32 s27, 0")
    a("s_cselect_b32 s46, -1.0, 1.0")
    a("s_mov_b32 s47, s46")
    a("s_mov_b32 s48, 0xffff0000")
    T = 112; R = 144; H = 20
    ng = "neg_lo:[0,1] neg_hi:[0,1]"
    def dfold(src, dst):
        for d in range(4):
            a(f"v_lshlrev_b32 v{dst+2*d}, 16, v{src+d}")
            a(f"v_and_b32 v{dst+2*d+1}, s48, v{src+d}")
            a(f"v_lshlrev_b32 v{H+2*(d&1)}, 16, v{src+4+d}")
            a(f"v_and_b32 v{H+2*(d&1)+1}, s48, v{src+4+d}")
            a(f"v_pk_fma_f32 {vr(dst+2*d,2)}, {vr(H+2*(d&1),2)}, s[46:47], {vr(dst+2*d,2)}")
    for n in range(2):
        a("s_waitcnt vmcnt(%d)" % (8 if n == 0 else 0))
        if n == 0: stamp(a, 9)
        b = LD + 32*n
        for r in range(4): dfold(b + 8*r, T + 8*r)
        for d in range(4):
            p = lambda r: vr(T+8*r+2*d, 2)
            q = lambda r: vr(R+8*r+2*d, 2)
            a(f"v_pk_add_f32 {q(0)}, {p(0)}, {p(1)}")
            a(f"v_pk_add_f32 {q(1)}, {p(0)}, {p(1)} {ng}")
            a(f"v_pk_add_f32 {q(2)}, {p(2)}, {p(3)}")
            a(f"v_pk_add_f32 {q(3)}, {p(2)}, {p(3)} {ng}")
            a(f"v_pk_add_f32 {p(0)}, {q(0)}, {q(2)}")
            a(f"v_pk_add_f32 {p(1)}, {q(0)}, {q(2)} {ng}")
            a(f"v_pk_add_f32 {p(2)}, {q(1)}, {q(3)} {ng}")
            a(f"v_pk_add_f32 {p(3)}, {q(1)}, {q(3)}")
        if n == 0:
            a("s_cmp_lg_u32 s26, 0")
            a("s_cbranch_scc1 L_fold_sp")
            a("s_waitcnt vmcnt(0)")
            dfold(XL, R); dfold(XL + 8, R + 8)
            for d in range(4):
                a(f"v_pk_add_f32 {vr(R+16+2*d,2)}, {vr(R+2*d,2)}, {vr(R+8+2*d,2)}")
                a(f"v_pk_add_f32 {vr(R+2*d,2)}, {vr(R+2*d,2)}, {vr(R+8+2*d,2)} {ng}")
            for e in range(8): a(f"v_cndmask_b32 v{T+24+e}, v{R+e}, v{T+24+e}, vcc")
            for d in range(4): a(f"v_cvt_pk_bf16_f32 v{R+d}, v{R+16+2*d}, v{R+17+2*d}")
            a(f"ds_write_b128 v17, {vr(R,4)}")
            a("L_fold_sp:")
        for i in range(4):
            for d in range(4): a(f"v_cvt_pk_bf16_f32 v{b+4*i+d}, v{T+8*i+2*d}, v{T+8*i+2*d+1}")
            a(f"ds_write_b128 v{16+2*n}, {vr(b+4*i,4)} offset:{(i>>1)*20480 + (i&1)*256}")
    a("L_fold_done:")
    for r in range(16): a(f"v_mov_b32 v{32+r}, 0")
    a("s_waitcnt lgkmcnt(0)")
    stamp(a, 14)
    a("s_barrier")
    stamp(a, 2)
    a("s_mul_i32 s42, s27, 6")
    a("s_add_u32 s42, s42, s49")
    a("s_cmp_gt_u32 s42, 10")
    a("s_cbranch_scc1 L_prep_done")
    def ureads(j, kinds):
        jj = j & 3; o = (j >> 2) * 4096; b = UB[j & 3]; r = []
        for k in kinds:
            if k == 2: r.append(f"ds_read_b128 {vr(b+8,4)}, v{AU+4} offset:{j*32}")
            else: r.append(f"ds_read_b128 {vr(b+4*k,4)}, v{AU+jj} offset:{o + k*20480}")
        return r
    a("s_mov_b32 s45, 5")
    a("s_or_b32 s51, s26, s50")
    a("s_cmp_eq_u32 s51, 0")
    a("s_cselect_b32 s40, 1, 0")
    a(f"s_cmp_lt_u32 s{sWAVE}, 4")
    a("s_cselect_b32 s41, 2, 0")
    a("s_add_u32 s40, s40, s41")
    variants = [[0], [0, 2], [0, 1], [0, 1, 2]]
    for v in range(1, 4):
        a(f"s_cmp_eq_u32 s40, {v}")
        a(f"s_cbranch_scc1 L_f1_v{v}")
    for v, kinds in enumerate(variants):
        a(f"L_f1_v{v}:")
        nm = len(kinds)
        for x in ureads(0, kinds) + ureads(1, kinds): a(x)
        a(f"L_f1_loop{v}:")
        for jj in range(4):
            buf = jj & 1
            va = rot(0, buf) + cvts(0, buf ^ 1)
            if 1 in kinds: va = rot(0, buf) + rot(1, buf) + cvts(0, buf ^ 1) + cvts(1, buf ^ 1)
            rd = ureads(jj + 2, kinds)
            a(f"s_waitcnt lgkmcnt({nm})")
            a("s_nop 0")
            per = len(va) // nm
            for m, k in enumerate(kinds):
                d = vr(ACC3[k], 16)
                a(f"v_mfma_f32_32x32x16_bf16 {d}, {vr(UB[jj]+4*k,4)}, {vr(HB[k & 1][buf],4)}, {d}")
                a(rd[m])
                for x in va[per*m:per*m+per]: a(x)
        for r in range(4): a(f"v_add_u32 v{AU+r}, 4096, v{AU+r}")
        if 2 in kinds: a(f"v_add_u32 v{AU+4}, 128, v{AU+4}")
        a("s_sub_u32 s45, s45, 1")
        a("s_cmp_lg_u32 s45, 0")
        a(f"s_cbranch_scc1 L_f1_loop{v}")
        if v < 3: a("s_branch L_f1_done")
    a("L_f1_done:")
    stamp(a, 5)
    a("s_mul_i32 s43, s42, 33")
    a("s_add_u32 s44, s26, s43")
    a(f"s_mul_i32 s45, s50, {22*33}")
    a("s_add_u32 s44, s44, s45")
    a("s_lshl_b32 s44, s44, 10")
    a("s_waitcnt lgkmcnt(0)")
    a("s_nop 5")
    for jb in range(2):
        b = ACC3[jb]
        if jb == 1:
            a(f"s_cmp_ge_u32 s{sWAVE}, 4")
            a("s_cbranch_scc1 L_f1_one")
        for r in range(8): a(f"v_cvt_pk_bf16_f32 v{b+r}, v{b+2*r}, v{b+2*r+1}")
        for hf in range(2):
            a(f"buffer_store_dwordx4 {vr(b+4*hf,4)}, v15, s[36:39], s44 offen sc1")
            a(f"s_add_u32 s44, s44, {11*33*1024}")
    a("L_f1_one:")
    a("s_cmp_lg_u32 s51, 0")
    a("s_cbranch_scc1 L_prep_done")
    b = ACC3[2]
    for r in range(4): a(f"v_cvt_pk_bf16_f32 v{b+r}, v{b+2*r}, v{b+2*r+1}")
    a("s_add_u32 s43, s43, 32")
    a("s_lshl_b32 s43, s43, 10")
    a(f"buffer_store_dwordx4 {vr(b,4)}, v15, s[36:39], s43 offen sc1")
    a("L_prep_done:")
    a(f"s_cmp_lt_u32 s{sWAVE}, 4")
    a("s_cbranch_scc1 L_A_done")
    get_nonce(a, 2)

W_PROG, W_GO, W_CNT, W_PASS, W_XCH, W_NON = 0, 4, 8, 16, 32, 48
def a_done(a):
    a("L_A_done:")
    stamp(a, 6)
    a(f"v_mov_b32 v23, {LDS_PROG}")
    a(f"s_cmp_lg_u32 s{sWAVE}, 4")
    a("s_cbranch_scc1 L_A_bar")
    a(f"v_mov_b32 v2, s{sNON}")
    a(f"v_mov_b32 v3, s{sNON+1}")
    a(f"ds_write_b64 v23, v[2:3] offset:{W_NON}")
    a("L_A_bar:")
    a("s_waitcnt lgkmcnt(0)")
    a("s_barrier")
    stamp(a, 4)
    a("s_and_b32 s26, s2, 31")
    a("s_lshr_b32 s27, s2, 5")
    a(f"s_cmp_ge_u32 s{sWAVE}, 4")
    a("s_cbranch_scc1 L_aux")

def drained(a, vt):
    a(f"v_mov_b32 v{vt}, 1")
    a("s_mov_b64 exec, 1")
    a(f"ds_add_u32 v23, v{vt} offset:{W_CNT}")
    a("s_mov_b64 exec, -1")

def attention(a):
    SL = OPT.get('slot', 1)
    AKA, AKB, AV, AKB2 = 4, 5, 168, 172
    AREGS = [AKA, AV, AV+1, AV+2, AV+3] + ([AKB2, AKB2+1] if SL else [AKB])
    QA = [8, 14]
    NEG = [32, 48]; S = [64, 80]; O = [96, 112]; P = 128
    KB = [136, 142]; VB = [148, 156]
    PR = 164
    a("L_attn:")
    a(f"ds_read_b32 v24, v23 offset:{W_GO}")
    a(f"ds_read_b64 v[26:27], v23 offset:{W_NON}")
    a(f"s_setprio {OPT.get('pattn', 2)}")
    a(f"s_mul_i32 s40, s26, {Q_HEAD}")
    a(f"s_add_u32 s40, s40, {Q_OFF}")
    make_srd(a, 28, pWS, "s40", Q_HEAD)
    a(f"s_mul_i32 s40, s26, {KV_HEAD}")
    make_srd(a, 32, pWS, "s40", KV_HEAD)
    a("v_and_b32 v2, 31, v1")
    a("v_lshrrev_b32 v3, 5, v1")
    a(f"v_lshlrev_b32 v{AKA}, 4, v1")
    a(f"v_lshlrev_b32 v{AKB}, 3, v2")
    a(f"v_add_u32 v{AKB}, 1024, v{AKB}")
    a(f"v_mov_b32 v20, {HUGE}")
    a("v_cmp_gt_u32 vcc, 32, v1")
    a("s_lshl_b32 s41, s27, 3")
    a(f"s_lshl_b32 s42, s{sWAVE}, 1")
    a("s_add_u32 s41, s41, s42")
    a(f"v_cndmask_b32 v20, v20, v{AKB}, vcc")
    a(f"s_mul_i32 s42, s41, {TQ}")
    a("v_and_b32 v21, 28, v2")
    a("v_add_u32 v21, v21, v2")
    a("v_lshl_add_u32 v21, v3, 2, v21")
    a("v_lshlrev_b32 v21, 4, v21")
    a("v_add_u32 v29, 1280, v21")
    a("s_mov_b32 s48, 0x000fffff")
    a("s_mov_b32 s49, 0x000fffff")
    a("s_waitcnt lgkmcnt(0)")
    a("v_readfirstlane_b32 s47, v24")
    a(f"v_readfirstlane_b32 s{sNON}, v26")
    a(f"v_readfirstlane_b32 s{sNON+1}, v27")
    a("s_mov_b32 s50, s47")
    a("s_cmp_lg_u32 s47, 0")
    a("s_cbranch_scc1 L_attn_go")
    a("s_waitcnt vmcnt(0)")
    stamp(a, 3)
    drained(a, 24)
    a("L_attn_spin:")
    if OPT.get('asl'): a(f"s_sleep {OPT['asl']}")
    a(f"ds_read_b32 v24, v23 offset:{W_GO}")
    a("s_waitcnt lgkmcnt(0)")
    a("v_readfirstlane_b32 s47, v24")
    a("s_nop 0")
    a("s_cmp_eq_u32 s47, 0")
    a("s_cbranch_scc1 L_attn_spin")
    a("L_attn_go:")
    stamp(a, 7); stamp(a, 7, 2); stamp_real(a, 8, 2)
    a("s_sub_u32 s47, s47, 1")
    a(f"s_mul_i32 s47, s47, {4*TKV}")
    for q in range(2):
        a(f"buffer_load_dwordx4 {vr(QA[q],4)}, v{AKA}, s[28:31], s42 offen offset:{q*TQ} sc1")
        a(f"buffer_load_dwordx2 {vr(QA[q]+4,2)}, v20, s[28:31], s42 offen offset:{q*TQ} sc1")
    a(f"buffer_load_dwordx4 {vr(KB[0],4)}, v{AKA}, s[32:35], s47 offen sc1")
    if SL:
        for b in KB:
            a(f"v_mov_b32 v{b+4}, 0x3f803f80")
            a(f"v_mov_b32 v{b+5}, 0x3f80")
        a("s_mov_b32 exec_hi, 0")
    a(f"buffer_load_dwordx2 {vr(KB[0]+4,2)}, v{AKB}, s[32:35], s47 offen sc1")
    if SL: a("s_mov_b64 exec, -1")
    a("v_mov_b32 v24, 0x3f803f80")
    a("v_cmp_eq_u32 vcc, 20, v2")
    a(f"s_add_u32 s43, s47, {TKV}")
    a("s_nop 0")
    a("v_cndmask_b32 v24, 0, v24, vcc")
    for r in range(16): a(f"v_mov_b32 v{VB[0]+r}, v24")
    a(f"buffer_load_dwordx4 {vr(KB[1],4)}, v{AKA}, s[32:35], s43 offen sc1")
    if SL: a("s_mov_b32 exec_hi, 0")
    a(f"buffer_load_dwordx2 {vr(KB[1]+4,2)}, v{AKB}, s[32:35], s43 offen sc1")
    a("s_mov_b64 exec, s[48:49]")
    a(f"buffer_load_dwordx4 {vr(VB[0],4)}, v29, s[32:35], s47 offen sc1")
    a(f"buffer_load_dwordx4 {vr(VB[0]+4,4)}, v29, s[32:35], s47 offen offset:640 sc1")
    a(f"buffer_load_dwordx4 {vr(VB[1],4)}, v29, s[32:35], s43 offen sc1")
    a(f"buffer_load_dwordx4 {vr(VB[1]+4,4)}, v29, s[32:35], s43 offen offset:640 sc1")
    a("s_mov_b64 exec, -1")
    a("s_cmp_eq_u32 s50, 0")
    a("s_cbranch_scc1 L_attn_cnt")
    a("s_waitcnt vmcnt(12)")
    stamp(a, 3)
    drained(a, 24)
    a("L_attn_cnt:")
    a("v_mov_b32 v22, 5120")
    if OPT.get('zr', 1):
        a("v_cmp_lt_u32 vcc, 20, v2")
        a("v_mov_b32 v21, 5136")
        a("s_nop 0")
        a("v_cndmask_b32 v22, v22, v21, vcc")
    a("v_cmp_gt_u32 vcc, 20, v2")
    for i in range(4): a(f"v_add_u32 v{AV+i}, {(i>>1)*TKV + (i&1)*640}, v29")
    for i in range(4): a(f"v_cndmask_b32 v{AV+i}, v22, v{AV+i}, vcc")
    if SL:
        a("v_cmp_gt_u32 vcc, 32, v1")
        a("v_mov_b32 v22, 5152")
        a(f"v_add_u32 v21, {TKV}, v{AKB}")
        a(f"v_cndmask_b32 v{AKB2}, v22, v{AKB}, vcc")
        a(f"v_cndmask_b32 v{AKB2+1}, v22, v21, vcc")
    make_srd(a, 36, pWS, O_OFF, O_SIZE)
    for q in range(2):
        for r in range(16): a(f"v_mov_b32 v{O[q]+r}, 0")
    mm16 = "v_mfma_f32_32x32x16_bf16"; mm8 = "v_mfma_f32_32x32x8_bf16"
    def M1(s, t, q, c): return f"{mm16} {vr(s,16)}, {vr(KB[t&1],4)}, {vr(QA[q],4)}, {c}"
    def M2(s, t, q): return f"{mm8} {vr(s,16)}, {vr(KB[t&1]+4,2)}, {vr(QA[q]+4,2)}, {vr(s,16)}"
    def M3(t, q): return "s_nop 1" if OPT.get('nopv') else f"{mm16} {vr(O[q],16)}, {vr(VB[t&1],4)}, {vr(P,4)}, {vr(O[q],16)}"
    def M4(t, q): return "s_nop 1" if OPT.get('nopv') else f"{mm16} {vr(O[q],16)}, {vr(VB[t&1]+4,4)}, {vr(P+4,4)}, {vr(O[q],16)}"
    def rowmax(src, dst, first):
        if first:
            a(f"v_max3_f32 v{dst}, v{src}, v{src+1}, v{src+2}")
            a(f"v_max_f32 v{dst}, v{dst}, v{src+15}")
            rng = range(3, 15, 2)
        else: rng = range(0, 16, 2)
        for r in rng: a(f"v_max3_f32 v{dst}, v{dst}, v{src+r}, v{src+r+1}")
    def finish_neg(add):
        a("v_mov_b32 v26, v24")
        a("v_mov_b32 v27, v25")
        a("s_nop 1")
        a("v_permlane32_swap_b32 v24, v26")
        a("v_permlane32_swap_b32 v25, v27")
        a("s_nop 1")
        a("v_max_f32 v24, v24, v26")
        a("v_max_f32 v25, v25, v27")
        if not SL:
            for q in range(2):
                a(f"v_sub_f32 v{NEG[q]}, {add}, v{24+q}")
                for r in range(1, 16): a(f"v_mov_b32 v{NEG[q]+r}, v{NEG[q]}")
            return
        a("s_mov_b32 s45, 0xffff0000")
        a("s_mov_b32 s46, 0x07060302")
        for q in range(2):
            a(f"v_sub_f32 v{24+q}, {add}, v{24+q}")
        for q in range(2):
            a(f"v_and_b32 v26, s45, v{24+q}")
            a(f"v_sub_f32 v27, v{24+q}, v26")
            a("v_and_b32 v28, s45, v27")
            a("v_sub_f32 v27, v27, v28")
            a("v_perm_b32 v26, v28, v26, s46")
            a("v_lshrrev_b32 v27, 16, v27")
            a("s_mov_b32 exec_lo, 0")
            a(f"v_mov_b32 v{QA[q]+4}, v26")
            a(f"v_mov_b32 v{QA[q]+5}, v27")
            a("s_mov_b64 exec, -1")
        a("s_nop 1")
    CNEG = lambda q: "0" if SL else vr(NEG[q], 16)
    a("s_waitcnt vmcnt(6)")
    stamp(a, 8)
    for q in range(2): a(M1(S[q], 0, q, "0"))
    for q in range(2): a(M2(S[q], 0, q))
    a("s_nop 11")
    rowmax(S[0], 24, True)
    a("s_nop 1")
    rowmax(S[1], 25, True)
    finish_neg(hex(f32bits(-float(OPT.get('off', 96)))))
    a(M1(S[0], 0, 0, CNEG(0)))
    a(M2(S[0], 0, 0))
    a(f"ds_read_b32 v{PR}, v23")
    a("s_waitcnt vmcnt(0)")
    a("s_nop 9")
    def check(need):
        l = a.label("L_chk"); ok = a.label("L_chkok")
        a(f"{l}:")
        a("s_waitcnt lgkmcnt(0)")
        a(f"v_readfirstlane_b32 s44, v{PR}")
        a("s_nop 0")
        a(f"s_cmp_ge_u32 s44, {need}")
        a(f"s_cbranch_scc1 {ok}")
        a(f"ds_read_b32 v{PR}, v23")
        a(f"s_branch {l}")
        a(".p2align 3")
        a(f"{ok}:")
    def unit(t, q, s4=(), s1=(), s2=(), s3=(), first=False, nonext=False):
        s = S[q]; sn = S[q ^ 1]
        t1, q1 = (t, 1) if q == 0 else (t + 1, 0)
        tp, qp = (t - 1, 1) if q == 0 else (t, 0)
        E = lambda r: a(f"v_exp_f32 v{s+r}, v{s+r}")
        C = lambda j: a(f"v_cvt_pk_bf16_f32 v{P+j}, v{s+2*j}, v{s+2*j+1}")
        al = OPT.get('al', 1)
        EW = lambda r: a(f"v_exp_f32_e64 v{s+r}, v{s+r}") if al else E(r)
        odd = lambda xs: sum(1 for x in xs if x.startswith("s_")) & 1
        E(0); E(1)
        if not first: a(M4(tp, qp))
        for x in s4: a(x)
        (E if odd(s4) else EW)(2); E(3); E(4)
        if not nonext: a(M1(sn, t1, q1, CNEG(q1)))
        for x in s1: a(x)
        EW(5); E(6); E(7)
        for j in range(4): C(j)
        if not nonext: a(M2(sn, t1, q1))
        for x in s2: a(x)
        EW(8)
        for r in range(9, 13): E(r)
        a(M3(t, q))
        for x in s3: a(x)
        EW(13); E(14); E(15)
        for j in range(4, 8): C(j)
    def period(t, o, extra3=()):
        if o is None:
            unit(t, 1, s4=["s_waitcnt lgkmcnt(0)"]); unit(t + 1, 0); return
        kb = KB[t & 1]; vb = VB[t & 1]
        ok = lds_tile(o + 2); ov = (o >> 1) * LPAIR; av = AV + 2*(o & 1)
        unit(t, 1, s4=["s_waitcnt lgkmcnt(0)"],
             s1=[f"ds_read_b128 {vr(kb,4)}, v{AKA} offset:{ok}"],
             s3=[f"ds_read_b64 {vr(kb+4,2)}, v{AKB2+(o&1)} offset:{ov}" if SL else f"ds_read_b64 {vr(kb+4,2)}, v{AKB} offset:{ok}"])
        unit(t + 1, 0, s4=[f"ds_read_b128 {vr(vb,4)}, v{av} offset:{ov}"],
             s1=[f"ds_read_b128 {vr(vb+4,4)}, v{av+1} offset:{ov}"], s3=extra3)
    rdp = [f"ds_read_b32 v{PR}, v23"]
    a(".p2align 3")
    unit(0, 0, first=True)
    stamp(a, 9)
    check(1)
    for t in range(6):
        if t == 2: check(2)
        period(t, t, rdp if t in (1, 5) else ())
    for r in AREGS: a(f"v_add_u32 v{r}, {3*LPAIR}, v{r}")
    a(f"s_lshl_b32 s45, s{sWAVE}, 2")
    a("v_add_u32 v24, s45, v23")
    a(f"ds_write_b32 v24, v23 offset:{W_PASS}")
    a("s_mov_b32 s45, 2")
    a("s_mov_b32 s46, 7")
    stamp(a, 10); stamp(a, 10, 2); stamp_real(a, 12, 2)
    a(".p2align 3")
    a("L_attn_loop:")
    a("s_cmp_eq_u32 s44, 16")
    a("s_cbranch_scc1 L_attn_nochk")
    a("s_add_u32 s45, s45, 2")
    check("s45")
    a(".p2align 3")
    a("L_attn_nochk:")
    for k in range(8):
        ex = ()
        if k == 7: ex = rdp
        period(k, k, ex)
    for r in AREGS: a(f"v_add_u32 v{r}, {4*LPAIR}, v{r}")
    a("s_sub_u32 s46, s46, 1")
    a("s_cmp_lg_u32 s46, 0")
    a("s_cbranch_scc1 L_attn_loop")
    period(62, None)
    unit(63, 1, nonext=True)
    a("s_nop 1")
    a(M4(63, 1))
    stamp(a, 11); stamp(a, 11, 2); stamp_real(a, 13, 2)
    a("s_nop 15")
    a("L_attn_post:")
    for q in range(2): a(f"v_mov_b32 v{24+q}, v{O[q]+8}")
    a("v_mov_b32 v26, 0")
    a("s_nop 0")
    for q in range(2): a(f"v_permlane32_swap_b32 v{O[q]+8}, v{24+q}")
    a("s_cmp_eq_u32 s46, 0")
    a("s_cbranch_scc0 L_attn_fin")
    for q in range(2):
        for r in range(12): a(f"v_fma_f32 v26, v{O[q]+r}, 0, v26")
    a("v_max_f32 v27, v24, v25")
    a("v_fma_f32 v26, v24, 0, v26")
    a("v_fma_f32 v26, v25, 0, v26")
    for q in range(2):
        a(f"v_max3_f32 v{30+q}, abs(v{O[q]}), abs(v{O[q]+1}), abs(v{O[q]+2})")
        a(f"v_max3_f32 v{30+q}, v{30+q}, abs(v{O[q]+3}), abs(v{O[q]+4})")
        a(f"v_max3_f32 v{30+q}, v{30+q}, abs(v{O[q]+5}), abs(v{O[q]+6})")
        a(f"v_max_f32 v{30+q}, v{30+q}, abs(v{O[q]+7})")
    a("v_min_f32 v30, v30, v31")
    a("v_mov_b32 v28, 0x76800000")
    a("v_mov_b32 v31, 0x08800000")
    a("v_cmp_u_f32 s[44:45], v26, v26")
    a("v_cmp_nlt_f32 vcc, v27, v28")
    a("v_cmp_lt_f32 s[50:51], v30, v31")
    a("s_nop 1")
    a("s_or_b64 vcc, vcc, s[44:45]")
    a("s_or_b64 vcc, vcc, s[50:51]")
    if OPT.get('forcefb'): a("s_mov_b64 vcc, -1")
    a("s_cbranch_vccnz L_attn_fallback")
    a("L_attn_fin:")
    a("v_rcp_f32 v24, v24")
    a("v_rcp_f32 v25, v25")
    a("s_lshl_b32 s42, s41, 5")
    a("s_add_u32 s42, s42, s26")
    a("s_mul_i32 s42, s42, 1280")
    a("v_lshlrev_b32 v21, 4, v1")
    for q in range(2):
        for r in range(12): a(f"v_mul_f32 v{O[q]+r}, v{O[q]+r}, v{24+q}")
        for r in range(6): a(f"v_cvt_pk_bf16_f32 v{O[q]+r}, v{O[q]+2*r}, v{O[q]+2*r+1}")
        a(f"buffer_store_dwordx4 {vr(O[q],4)}, v21, s[36:39], s42 offen sc1")
        a(f"buffer_store_dwordx2 {vr(O[q]+4,2)}, v20, s[36:39], s42 offen sc1")
        if q == 0: a(f"s_add_u32 s42, s42, {32*1280}")
    a("s_barrier")
    a("s_lshl_b32 s40, s2, 2")
    a(f"s_add_u32 s40, s40, s{sWAVE}")
    a(f"s_add_u32 s40, s40, {FB}")
    a("s_lshl_b32 s40, s40, 7")
    a("s_waitcnt vmcnt(0)")
    stamp(a, 12)
    set_flag(a, 40, 8)
    a("s_branch L_end")
    a("L_attn_fallback:")
    for r in ((AKA,) if SL else (AKA, AKB)): a(f"v_subrev_u32 v{r}, {31*LPAIR}, v{r}")
    if SL:
        a("s_mov_b32 exec_lo, 0")
        for q in range(2):
            a(f"v_mov_b32 v{QA[q]+4}, 0")
            a(f"v_mov_b32 v{QA[q]+5}, 0")
        a("s_mov_b64 exec, -1")
    a("v_mov_b32 v24, 0xff800000")
    a("v_mov_b32 v25, 0xff800000")
    a("s_mov_b32 s46, 0")
    a("L_fb_max:")
    a(f"buffer_load_dwordx4 {vr(KB[0],4)}, v{AKA}, s[32:35], s46 offen sc1")
    if SL: a("s_mov_b32 exec_hi, 0")
    a(f"buffer_load_dwordx2 {vr(KB[0]+4,2)}, v{AKB}, s[32:35], s46 offen sc1")
    if SL: a("s_mov_b64 exec, -1")
    a("s_waitcnt vmcnt(0)")
    for q in range(2): a(M1(S[q], 0, q, "0"))
    for q in range(2): a(M2(S[q], 0, q))
    a("s_nop 15")
    rowmax(S[0], 24, False)
    rowmax(S[1], 25, False)
    a(f"s_add_u32 s46, s46, {TKV}")
    a(f"s_cmp_lt_u32 s46, {KV_HEAD}")
    a("s_cbranch_scc1 L_fb_max")
    finish_neg("0")
    for q in range(2):
        for r in range(16): a(f"v_mov_b32 v{O[q]+r}, 0")
    a("s_mov_b32 s46, 0")
    a("L_fb_main:")
    a(f"buffer_load_dwordx4 {vr(KB[0],4)}, v{AKA}, s[32:35], s46 offen sc1")
    if SL: a("s_mov_b32 exec_hi, 0")
    a(f"buffer_load_dwordx2 {vr(KB[0]+4,2)}, v{AKB}, s[32:35], s46 offen sc1")
    if SL: a("s_mov_b64 exec, -1")
    a("s_mov_b64 exec, s[48:49]")
    a(f"buffer_load_dwordx4 {vr(VB[0],4)}, v29, s[32:35], s46 offen sc1")
    a(f"buffer_load_dwordx4 {vr(VB[0]+4,4)}, v29, s[32:35], s46 offen offset:640 sc1")
    a("s_mov_b64 exec, -1")
    a("s_waitcnt vmcnt(0)")
    for q in range(2): a(M1(S[q], 0, q, CNEG(q)))
    for q in range(2): a(M2(S[q], 0, q))
    a("s_nop 15")
    for q in range(2):
        for r in range(16): a(f"v_exp_f32 v{S[q]+r}, v{S[q]+r}")
        a("s_nop 0")
        for j in range(8): a(f"v_cvt_pk_bf16_f32 v{P+j}, v{S[q]+2*j}, v{S[q]+2*j+1}")
        a("s_nop 1")
        a(M3(0, q)); a(M4(0, q))
    a(f"s_add_u32 s46, s46, {TKV}")
    a(f"s_cmp_lt_u32 s46, {KV_HEAD}")
    a("s_cbranch_scc1 L_fb_main")
    a("s_nop 15")
    a("s_branch L_attn_post")

def aux(a):
    a("L_aux:")
    a(f"s_setprio {OPT.get('paux', 0)}")
    a(f"s_sub_u32 s44, s{sWAVE}, 4")
    a("v_lshlrev_b32 v2, 4, v1")
    a("s_waitcnt vmcnt(0)")
    drained(a, 3)
    a("s_cmp_eq_u32 s44, 0")
    a("s_cbranch_scc1 L_kv")
    a("s_cmp_lg_u32 s44, 1")
    a("s_cbranch_scc1 L_aux_wait")
    a("s_lshl_b32 s40, s2, 7")
    a("L_cnt_spin:")
    a(f"ds_read_b32 v3, v23 offset:{W_CNT}")
    a("s_waitcnt lgkmcnt(0)")
    a("v_readfirstlane_b32 s41, v3")
    a("s_nop 0")
    a("s_cmp_lt_u32 s41, 8")
    a("s_cbranch_scc1 L_cnt_spin")
    set_flag(a, 40, 8)
    a("L_aux_wait:")
    a("s_sleep 4")
    a(f"ds_read_b32 v3, v23 offset:{W_PROG}")
    a("s_waitcnt lgkmcnt(0)")
    a("v_readfirstlane_b32 s41, v3")
    a("s_nop 0")
    a(f"s_cmp_lt_u32 s41, {OPT.get('f2w', 6)}")
    a("s_cbranch_scc1 L_aux_wait")
    a("s_branch L_kv_done")
    a("L_kv:")
    a(f"s_mul_i32 s40, s26, {KV_HEAD}")
    make_srd(a, 28, pWS, "s40", KV_HEAD)
    a(f"v_mul_u32_u24 v6, {LPAIR}, v1")
    a("v_min_u32 v6, %d, v6" % (30*LPAIR))
    for r in range(4): a(f"v_mov_b32 v{8+r}, 0x3f803f80")
    a("ds_write_b128 v6, v[8:11] offset:5120")
    for r in range(4): a(f"v_mov_b32 v{12+r}, 0")
    a("ds_write_b128 v6, v[12:15] offset:5136")
    a("v_mov_b32 v16, 0x3f803f80")
    a("v_mov_b32 v17, 0x3f80")
    a("ds_write_b64 v6, v[16:17] offset:5152")
    a("s_lshr_b32 s41, s26, 3")
    a("v_and_b32 v3, 15, v1")
    a("v_and_b32 v4, 1, v1")
    a("s_lshl_b32 s42, s27, 1")
    a("v_add_u32 v4, s42, v4")
    a("v_cmp_gt_u32 vcc, 32, v1")
    a("v_lshrrev_b32 v5, 4, v1")
    a("v_lshl_add_u32 v5, v5, 2, 4")
    a("v_cndmask_b32 v3, v4, v3, vcc")
    a("v_cndmask_b32 v5, 0, v5, vcc")
    a("v_add_u32 v5, s41, v5")
    a("v_cmp_le_u32 vcc, 6, v5")
    a("v_and_b32 v4, 3, v3")
    a("v_lshrrev_b32 v3, 2, v3")
    a("v_cndmask_b32 v6, 0, 1, vcc")
    a("v_mul_u32_u24 v7, 6, v6")
    a("v_sub_u32 v5, v5, v7")
    a("v_lshl_add_u32 v5, v5, 2, v4")
    a("v_lshl_add_u32 v3, v6, 2, v3")
    a("v_lshl_add_u32 v5, v5, 3, v3")
    a("v_lshlrev_b32 v5, 7, v5")
    def poll_once():
        a(f"buffer_load_dwordx2 v[6:7], v5, {sr(sFL,4)}, 0 offen sc1")
        a("s_waitcnt vmcnt(0)")
        a(f"v_cmp_eq_u64 vcc, {sr(sNON,2)}, v[6:7]")
        a("s_sub_u32 s40, s40, 1")
        a("s_cselect_b32 s47, 0xffff, 0")
        a("s_lshr_b32 s45, vcc_lo, 16")
        a("s_and_b32 s45, s45, vcc_lo")
        a("s_or_b32 s45, s45, s47")
    def pub(off, sreg):
        a(f"v_mov_b32 v4, s{sreg}")
        a(f"ds_write_b32 v23, v4 offset:{off}")
    a(f"s_mov_b32 s40, {POLL_MAX}")
    a("L_kv_p1:")
    if OPT.get('ksl'): a(f"s_sleep {OPT['ksl']}")
    poll_once()
    a("s_cmp_lg_u32 s47, 0")
    a("s_cbranch_scc1 L_kv_first")
    a("s_cmp_eq_u32 vcc_hi, -1")
    a("s_cselect_b32 s48, s45, 0")
    a("s_cmp_eq_u32 s48, 0")
    a("s_cbranch_scc1 L_kv_p1")
    a("L_kv_first:")
    a("s_ff1_i32_b32 s48, s45")
    a("s_add_u32 s49, s48, 1")
    pub(W_GO, 49)
    stamp(a, 7)
    a("s_lshl_b32 s46, 1, s48")
    a(f"s_mul_i32 s48, s48, {4*TKV}")
    a(f"s_add_u32 s48, s48, {2*TKV}")
    for i in range(5):
        a(f"s_mov_b32 m0, {i*1024}")
        a("s_nop 0")
        a("buffer_load_dwordx4 v2, s[28:31], s48 offen sc1 lds")
        if i < 4: a("s_add_u32 s48, s48, 1024")
    a("s_mov_b32 s50, 1")
    a(f"s_mov_b32 s51, {LPAIR}")
    a("L_kv_next:")
    a("s_andn2_b32 s48, s45, s46")
    a("s_cbranch_scc0 L_kv_poll")
    a("s_ff1_i32_b32 s48, s48")
    a("s_bitset1_b32 s46, s48")
    a(f"s_mul_i32 s48, s48, {4*TKV}")
    for i in range(10):
        a(f"s_add_u32 m0, s51, {i*1024 + (64 if i >= 5 else 0)}")
        if i: a("s_add_u32 s48, s48, 1024")
        else: a("s_nop 0")
        a("buffer_load_dwordx4 v2, s[28:31], s48 offen sc1 lds")
    a(f"s_add_u32 s51, s51, {2*LPAIR}")
    a("s_cmp_eq_u32 s50, 1")
    a("s_cbranch_scc0 L_kv_w20")
    a("s_waitcnt vmcnt(10)")
    pub(W_PROG, 50)
    a("s_mov_b32 s50, 2")
    a("s_branch L_kv_next")
    a("L_kv_w20:")
    a("s_waitcnt vmcnt(20)")
    a("s_sub_u32 s49, s50, 1")
    pub(W_PROG, 49)
    a("s_add_u32 s50, s50, 1")
    a("s_branch L_kv_next")
    a("L_kv_poll:")
    a("s_waitcnt vmcnt(0)")
    pub(W_PROG, 50)
    a("s_cmp_eq_u32 s50, 16")
    a("s_cbranch_scc1 L_kv_done")
    poll_once()
    a("s_branch L_kv_next")
    a("L_kv_done:")
    stamp(a, 8)
    a("v_lshlrev_b32 v5, 7, v1")
    a(f"v_add_u32 v5, {192*128}, v5")
    poll(a, 5, 6, sleep=4)
    a(f"s_setprio {OPT.get('pf2', 3)}")
    a("s_lshr_b32 s40, s44, 1")
    if OPT.get('swp', 0): a("s_xor_b32 s40, s40, 1")
    a("s_lshl_b32 s40, s40, 5")
    a(f"s_add_u32 s40, s40, s{sSLOT}")
    a("s_mul_i32 s41, s40, 373")
    a("s_lshr_b32 s41, s41, 12")
    a("s_mul_i32 s42, s41, 11")
    a("s_sub_u32 s42, s40, s42")
    a("s_lshl_b32 s41, s41, 3")
    a(f"s_add_u32 s41, s41, s{sXCD}")
    a("s_cmp_ge_u32 s41, %d" % (0 if OPT.get('nof2') else 33))
    a("s_cbranch_scc1 L_wo")
    a("s_and_b32 s45, s44, 1")
    a("s_mul_i32 s47, s41, 65")
    a("s_mul_i32 s48, s45, 33")
    a("s_add_u32 s47, s47, s48")
    a("s_lshl_b32 s47, s47, 10")
    a(f"s_add_u32 s47, s47, {SEQ_OFF}")
    make_srd(a, 28, pWS, "s47", 33*1024)
    a("s_and_b32 s43, s41, 1")
    a("s_lshl_b32 s47, s45, 1")
    a("s_add_u32 s47, s47, s43")
    a("s_mul_i32 s48, s47, 11")
    a("s_add_u32 s48, s48, s42")
    a(f"s_mul_i32 s48, s48, {33*1024}")
    a(f"s_add_u32 s48, s48, {AB_OFF}")
    make_srd(a, 32, pWS, "s48", 33*1024)
    make_srd(a, 36, pOUT, 0, OUT_SIZE)
    D = OPT.get('f2d', 28); FB = 32; AC = 8
    a("s_cmp_lg_u32 s47, 0")
    a("s_cbranch_scc1 L_f2_nox")
    a(f"s_mov_b32 s49, {32*1024}")
    a("buffer_load_dwordx4 v[24:27], v2, s[28:31], s49 offen sc1")
    a("buffer_load_dwordx4 v[28:31], v2, s[32:35], s49 offen sc1")
    a("L_f2_nox:")
    def issue2(k):
        b = FB + (k % D) * 8
        if k % 4 == 0: a(f"s_mov_b32 s49, {(k//4)*4096}")
        a(f"buffer_load_dwordx4 {vr(b,4)}, v2, s[28:31], s49 offen offset:{(k%4)*1024} sc1")
        a(f"buffer_load_dwordx4 {vr(b+4,4)}, v2, s[32:35], s49 offen offset:{(k%4)*1024} sc1")
    for k in range(D): issue2(k)
    stamp(a, 9)
    for k in range(32):
        a(f"s_waitcnt vmcnt({2*(min(32, k+D)-k-1)})")
        b = FB + (k % D) * 8
        d = vr(AC, 16)
        a(f"v_mfma_f32_32x32x16_bf16 {d}, {vr(b,4)}, {vr(b+4,4)}, {'0' if k == 0 else d}")
        if k + D < 32: issue2(k + D)
    a("s_cmp_lg_u32 s47, 0")
    a("s_cbranch_scc1 L_f2_nox2")
    a(f"v_mfma_f32_32x32x16_bf16 {vr(AC,16)}, v[24:27], v[28:31], {vr(AC,16)}")
    a("L_f2_nox2:")
    a(f"v_mov_b32 v3, {LDS_PROG}")
    a("L_f2_dead:")
    a("ds_read_b128 v[40:43], v3 offset:16")
    a("s_waitcnt lgkmcnt(0)")
    a("v_min3_u32 v40, v40, v41, v42")
    a("v_min_u32 v40, v40, v43")
    a("s_nop 0")
    a("v_readfirstlane_b32 s48, v40")
    a("s_nop 0")
    a("s_cmp_eq_u32 s48, 0")
    a("s_cbranch_scc1 L_f2_dead")
    a("s_lshl_b32 s48, s44, 11")
    a("v_add_u32 v4, s48, v2")
    a("s_lshl_b32 s49, s44, 2")
    a("v_add_u32 v5, s49, v3")
    a("s_xor_b32 s48, s48, 2048")
    a("s_xor_b32 s49, s49, 4")
    a("v_add_u32 v6, s48, v2")
    a("v_add_u32 v7, s49, v3")
    a("s_cmp_lg_u32 s45, 0")
    a("s_cbranch_scc1 L_f2_h1")
    a("ds_write_b128 v4, v[16:19]")
    a("ds_write_b128 v4, v[20:23] offset:1024")
    a("s_branch L_f2_x")
    a("L_f2_h1:")
    a("ds_write_b128 v4, v[8:11]")
    a("ds_write_b128 v4, v[12:15] offset:1024")
    a("L_f2_x:")
    a("ds_write_b32 v5, v3 offset:32")
    a("v_and_b32 v5, 31, v1")
    a("v_lshrrev_b32 v4, 5, v1")
    a("s_lshr_b32 s47, s41, 1")
    a("s_lshl_b32 s47, s47, 6")
    a("s_add_u32 s47, s47, s43")
    a("s_lshl_b32 s48, s45, 5")
    a("s_add_u32 s47, s47, s48")
    a("s_cmp_ge_u32 s42, 6")
    a("s_cselect_b32 s48, 383, 0")
    a("s_lshl_b32 s49, s42, 6")
    a("s_sub_u32 s48, s49, s48")
    a("v_lshl_add_u32 v5, v5, 1, s48")
    a(f"v_mov_b32 v46, {HUGE}")
    a("v_lshlrev_b32 v47, 1, v5")
    a("v_add_u32 v40, 1280, v47")
    a("v_cmp_ge_u32 vcc, 320, v5")
    a("v_sub_u32 v41, 2560, v47")
    a("v_add_u32 v47, -1, v5")
    a("v_cndmask_b32 v40, v46, v40, vcc")
    a("v_cmp_gt_u32 vcc, 319, v47")
    a("v_lshl_add_u32 v47, v4, 3, s47")
    a("v_mul_u32_u24 v47, 2560, v47")
    a("v_cndmask_b32 v41, v46, v41, vcc")
    a(f"v_sub_u32 v44, {(2048-22)*2560}, v47")
    a("v_add_u32 v42, v44, v40")
    a("v_add_u32 v43, v44, v41")
    a("v_add_u32 v40, v47, v40")
    a("v_add_u32 v41, v47, v41")
    a("L_f2_wait:")
    a("ds_read_b32 v45, v7 offset:32")
    a("s_waitcnt lgkmcnt(0)")
    a("v_readfirstlane_b32 s48, v45")
    a("s_nop 0")
    a("s_cmp_lg_u32 s48, 0")
    a("s_cbranch_scc1 L_f2_got")
    a("s_sleep 2")
    a("s_branch L_f2_wait")
    a("L_f2_got:")
    a("s_cmp_lg_u32 s45, 0")
    a("s_cbranch_scc1 L_f2_h1b")
    a("ds_read_b128 v[16:19], v6")
    a("ds_read_b128 v[20:23], v6 offset:1024")
    a("s_branch L_f2_y")
    a("L_f2_h1b:")
    a("ds_read_b128 v[8:11], v6")
    a("ds_read_b128 v[12:15], v6 offset:1024")
    a("L_f2_y:")
    a("s_waitcnt lgkmcnt(0)")
    for r in range(0, 8, 2):
        a(f"v_pk_add_f32 {vr(48+r,2)}, {vr(8+r,2)}, {vr(16+r,2)}")
        a(f"v_pk_add_f32 {vr(56+r,2)}, {vr(8+r,2)}, {vr(16+r,2)} neg_lo:[0,1] neg_hi:[0,1]")
    for r in range(4):
        a(f"v_cvt_pk_bf16_f32 v{48+r}, v{48+2*r}, v{48+2*r+1}")
        a(f"v_cvt_pk_bf16_f32 v{56+r}, v{56+2*r}, v{56+2*r+1}")
    a("s_cmp_eq_u32 s41, 32")
    a("s_cbranch_scc1 L_f2_nyq")
    for r in range(8):
        ro = (r & 3) + 8 * (r >> 2)
        st = "buffer_store_short_d16_hi" if r & 1 else "buffer_store_short"
        a(f"s_mov_b32 s47, {ro*5120}")
        a(f"s_mov_b32 s48, {(11-ro)*5120}")
        a(f"{st} v{56+r//2}, v40, s[36:39], s47 offen{FLF()}")
        a(f"{st} v{48+r//2}, v41, s[36:39], s47 offen{FLF()}")
        if r == 0:
            a(f"v_add_u32 v44, {11*5120}, v42")
            a(f"v_add_u32 v45, {11*5120}, v43")
            a(f"{st} v48, v44, s[36:39], 0 offen{FLF()}")
            a(f"{st} v56, v45, s[36:39], 0 offen{FLF()}")
        else:
            a(f"{st} v{48+r//2}, v42, s[36:39], s48 offen{FLF()}")
            a(f"{st} v{56+r//2}, v43, s[36:39], s48 offen{FLF()}")
    a("s_branch L_f2_fin")
    a("L_f2_nyq:")
    a("s_cmp_lg_u32 s45, 0")
    a("s_cbranch_scc1 L_wo")
    a("v_cmp_eq_u32 vcc, 0, v4")
    a("s_nop 1")
    a("v_cndmask_b32 v40, v46, v40, vcc")
    a("v_cndmask_b32 v41, v46, v41, vcc")
    a(f"buffer_store_short v56, v40, s[36:39], 0 offen{FLF()}")
    a(f"buffer_store_short v48, v41, s[36:39], 0 offen{FLF()}")
    a("L_f2_fin:")
    if OPT.get('wb'):
        a("s_waitcnt vmcnt(0)")
        a("buffer_wbl2 sc1")
    a("L_wo:")
    stamp(a, 10)
    a("s_lshr_b32 s40, s26, 3")
    a("s_lshl_b32 s40, s40, 2")
    a("s_add_u32 s40, s40, s44")
    a(f"s_mul_i32 s40, s40, {50*1024}")
    a(f"s_add_u32 s40, s40, {WO_OFF}")
    make_srd(a, 28, pWS, "s40", 50*1024)
    a("s_waitcnt vmcnt(0)")
    for k in range(50):
        if k % 4 == 0: a(f"s_mov_b32 s49, {(k//4)*4096}")
        a(f"buffer_load_dwordx4 {vr(56+4*k,4)}, v2, s[28:31], s49 offen offset:{(k%4)*1024} sc1")

def tail(a):
    a("L_B_done:")
    a("s_and_b32 s40, s26, 7")
    a("s_lshl_b32 s41, s27, 3")
    a("s_add_u32 s41, s41, s40")
    a(f"s_mul_i32 s42, s41, {32*1280}")
    a(f"s_add_u32 s42, s42, {O_OFF}")
    make_srd(a, 28, pWS, "s42", 32*1280)
    a("v_and_b32 v4, 31, v1")
    a("s_lshl_b32 s42, s27, 7")
    a("s_lshr_b32 s40, s40, 1")
    a("s_add_u32 s42, s42, s40")
    a(f"s_add_u32 s42, s42, {FB}")
    a("v_lshl_add_u32 v4, v4, 2, s42")
    a("v_lshlrev_b32 v4, 7, v4")
    a("s_waitcnt vmcnt(0)")
    stamp(a, 12)
    a("s_barrier")
    stamp(a, 1)
    poll(a, 4, 6, sleep=OPT.get('sl', 0))
    stamp(a, 13)
    a("s_lshl_b32 s40, s44, 10")
    for j in range(10):
        a("s_mov_b32 m0, s40")
        a("s_nop 0")
        a("buffer_load_dwordx4 v2, s[28:31], s40 offen sc1 lds")
        if j < 9: a("s_add_u32 s40, s40, 4096")
    a("v_and_b32 v3, 31, v1")
    a("v_lshrrev_b32 v4, 5, v1")
    a("v_mul_u32_u24 v5, 2560, v4")
    a("v_lshl_add_u32 v5, v3, 3, v5")
    a("v_add_u32 v5, 1024, v5")
    make_srd(a, 32, pOUT, 0, OUT_SIZE)
    a("s_lshl_b32 s41, s41, 5")
    a("v_add_u32 v6, s41, v3")
    a("v_mul_u32_u24 v6, 2560, v6")
    a("s_lshr_b32 s42, s26, 3")
    a("s_mul_i32 s42, s42, 320")
    a("s_waitcnt vmcnt(0)")
    a("s_barrier")
    stamp(a, 14)
    if lib.STAMP: a("s_waitcnt lgkmcnt(0)")
    A5, AM, OB = 8, 24, 40
    a("s_mul_i32 s43, s44, 12800")
    a("v_add_u32 v7, s43, v2")
    def rd(buf, kap, base=None):
        b = OB + 4*buf
        if base is not None: return f"ds_read_b128 {vr(b,4)}, v{base} offset:{kap*1280}"
        if kap < 32: return f"ds_read_b128 {vr(b,4)}, v2 offset:{kap*1280}"
        o = (kap - 32) * 5120 // 8
        return None
    def rd_main(buf, kap):
        b = OB + 4*buf
        if kap < 32: return [f"ds_read_b128 {vr(b,4)}, v2 offset:{kap*1280}"]
        g = kap - 32
        return [f"ds_read_b64 {vr(b,2)}, v5 offset:{g*5120}", f"ds_read_b64 {vr(b+2,2)}, v5 offset:{g*5120+1280}"]
    def stream(steps):
        n = len(steps); cnt = [0]*n
        PF = 3
        for k in range(PF):
            r = steps[k][0](k % 4); cnt[k] = len(r)
            for x in r: a(x)
        for k in range(n):
            out = sum(cnt[k+1:min(n, k+PF)])
            a(f"s_waitcnt lgkmcnt({out})")
            d = vr(steps[k][1], 16)
            a(f"v_mfma_f32_32x32x16_bf16 {d}, {vr(steps[k][2],4)}, {vr(OB+4*(k%4),4)}, {'0' if steps[k][3] else d}")
            if k + PF < n:
                r = steps[k+PF][0]((k+PF) % 4); cnt[k+PF] = len(r)
                for x in r: a(x)
            if k == 13:
                for j in range(4): a(f"ds_write_b128 v3, {vr(A5+4*j,4)} offset:{j*1024}")
                cnt[k+PF] += 4
    main = [((lambda kap: lambda buf: rd_main(buf, kap))(kap), AM, 56 + 4*(10+kap), kap == 0) for kap in range(40)]
    a("s_lshl_b32 s43, s44, 12")
    a("s_add_u32 s43, s43, 40960")
    a("v_add_u32 v3, s43, v2")
    a("s_cmp_eq_u32 s44, 3")
    a("s_cbranch_scc1 L_tail3")
    q5 = [((lambda i: lambda buf: [f"ds_read_b128 {vr(OB+4*buf,4)}, v7 offset:{i*1280}"])(i), A5, 56 + 4*i, i == 0) for i in range(10)]
    stream(q5 + main)
    a("s_branch L_tail_join")
    a("L_tail3:")
    q5 = [((lambda i: lambda buf: rd_main(buf, 30 + i))(i), A5, 56 + 4*i, i == 0) for i in range(10)]
    stream(q5 + main)
    a("L_tail_join:")
    stamp(a, 11)
    a("s_waitcnt lgkmcnt(0)")
    a("s_barrier")
    a("s_lshl_b32 s43, s44, 10")
    a("s_add_u32 s43, s43, 40960")
    a("v_add_u32 v3, s43, v2")
    for i in range(4): a(f"ds_read_b128 {vr(OB+4*i,4)}, v3 offset:{i*4096}")
    a("s_lshl_b32 s43, s44, 6")
    a("s_add_u32 s43, s43, s42")
    a("v_lshl_add_u32 v7, v4, 4, v6")
    a("s_nop 2")
    for r in range(8): a(f"v_cvt_pk_bf16_f32 v{AM+r}, v{AM+2*r}, v{AM+2*r+1}")
    a("s_nop 1")
    for h2 in range(2):
        a(f"v_permlane32_swap_b32 v{AM+4*h2}, v{AM+4*h2+2}")
        a(f"v_permlane32_swap_b32 v{AM+4*h2+1}, v{AM+4*h2+3}")
    for h2 in range(2):
        a(f"buffer_store_dwordx4 {vr(AM+4*h2,4)}, v7, s[32:35], s43 offen offset:{32*h2}{FLP()}")
    a("s_waitcnt lgkmcnt(0)")
    for i in range(1, 4):
        a(f"v_pk_add_f32 {vr(OB,2)}, {vr(OB,2)}, {vr(OB+4*i,2)}")
        a(f"v_pk_add_f32 {vr(OB+2,2)}, {vr(OB+2,2)}, {vr(OB+4*i+2,2)}")
    a("s_lshl_b32 s43, s44, 4")
    a("s_add_u32 s43, s43, s42")
    a("v_lshl_add_u32 v7, v4, 3, v6")
    a(f"v_cvt_pk_bf16_f32 v{OB}, v{OB}, v{OB+1}")
    a(f"v_cvt_pk_bf16_f32 v{OB+1}, v{OB+2}, v{OB+3}")
    a(f"buffer_store_dwordx2 {vr(OB,2)}, v7, s[32:35], s43 offen offset:256{FLP()}")
    a("L_end:")
    if OPT.get('pad'):
        a("L_pad:")
        a("s_memrealtime s[40:41]")
        a("s_waitcnt lgkmcnt(0)")
        a(f"s_sub_u32 s40, s40, s{sNON}")
        a(f"s_cmp_lt_u32 s40, {OPT['pad']}")
        a("s_cbranch_scc1 L_pad")
    if lib.STAMP:
        a("s_waitcnt vmcnt(0)")
        stamp(a, 15); stamp_real(a, 17)
        stamp_flush(a, 18, pWS, sWAVE, 0)
    a("L_exit:")
    a("s_endpgm")

KNAME = "concat_heads__mha_block__spectral_fnet__prompt_kernel"
def kernel(a):
    kernel_header(a, KNAME)
    if OPT.get('early'): a("s_memrealtime s[98:99]")
    a("s_cmp_ge_u32 s2, 256")
    a("s_cbranch_scc1 L_exit")
    if lib.STAMP:
        for i in range(18): a(f"s_mov_b32 s{60+2*i}, 0")
    stamp(a, 0); stamp_real(a, 16)
    a("s_load_dwordx8 s[4:11], s[0:1], 0")
    a("s_load_dwordx4 s[12:15], s[0:1], 64")
    a("s_load_dwordx2 s[16:17], s[0:1], 80")
    a("v_lshrrev_b32 v1, 6, v0")
    a(f"s_and_b32 s{sXCD}, s2, 7")
    a(f"v_readfirstlane_b32 s{sWAVE}, v1")
    a(f"s_lshr_b32 s{sSLOT}, s2, 3")
    a("v_and_b32 v1, 63, v0")
    a(f"s_and_b32 s26, s{sXCD}, 3")
    a("s_lshl_b32 s26, s26, 2")
    a(f"s_and_b32 s27, s{sSLOT}, 3")
    a("s_add_u32 s26, s26, s27")
    a(f"s_lshr_b32 s27, s{sXCD}, 2")
    a("s_mul_i32 s27, s27, 6")
    a(f"s_lshr_b32 s40, s{sSLOT}, 2")
    a("s_add_u32 s27, s27, s40")
    a(f"s_lshl_b32 s40, s2, 3")
    a(f"s_add_u32 s40, s40, s{sWAVE}")
    a("s_waitcnt lgkmcnt(0)")
    make_srd(a, sFL, pWS, FL_OFF, FL_SIZE)
    a("s_cmp_lg_u32 s40, 7")
    a("s_cbranch_scc1 L_no_nonce")
    if OPT.get('early'): a("s_mov_b64 s[40:41], s[98:99]")
    else: a("s_memrealtime s[40:41]")
    make_srd(a, 28, pDBG, 0, 256)
    a("s_waitcnt lgkmcnt(0)")
    a("s_or_b32 s40, s40, 1")
    a("v_mov_b32 v2, s40")
    a("v_mov_b32 v3, s41")
    a("v_mov_b32 v4, 0")
    a("buffer_store_dwordx2 v[2:3], v4, s[28:31], 0 offen sc1")
    a("L_no_nonce:")
    a(f"s_cmp_lg_u32 s{sWAVE}, 0")
    a("s_cbranch_scc1 L_no_init")
    a(f"v_mov_b32 v2, {LDS_PROG}")
    a("v_mov_b32 v4, 0")
    a("v_mov_b32 v5, 0")
    for i in range(8): a(f"ds_write_b64 v2, v[4:5] offset:{8*i}")
    a("s_waitcnt lgkmcnt(0)")
    a("L_no_init:")
    if OPT.get('touch'):
        a(f"s_cmp_lg_u32 s{sWAVE}, 1")
        a("s_cbranch_scc1 L_no_code")
        a("s_getpc_b64 s[40:41]")
        a("L_pc:")
        a(f"s_sub_u32 s40, s40, L_pc-{KNAME}")
        a("s_subb_u32 s41, s41, 0")
        a(f"s_and_b32 s42, s{sSLOT}, 7")
        a("s_lshl_b32 s42, s42, 12")
        a("v_lshlrev_b32 v2, 4, v1")
        a("v_add_u32 v2, s42, v2")
        a(f"v_min_u32 v2, L_exit-{KNAME}-3072-16, v2")
        for i in range(4): a(f"global_load_dwordx4 v[164:167], v2, s[40:41] offset:{i*1024}")
        a("L_no_code:")
        a(f"s_cmp_lg_u32 s{sWAVE}, 2")
        a("s_cbranch_scc1 L_no_tlb")
        make_srd(a, 28, pWS, 0, FL_OFF + FL_SIZE)
        a("v_mul_u32_u24 v2, 0x44000, v1")
        a("buffer_load_dword v164, v2, s[28:31], 0 offen sc1")
        make_srd(a, 28, pOUT, 0, OUT_SIZE)
        a("v_mul_u32_u24 v2, 0x14000, v1")
        a("buffer_load_dword v165, v2, s[28:31], 0 offen sc1")
        a("L_no_tlb:")
    a(f"s_cmp_ge_u32 s{sSLOT}, 24")
    a("s_cbranch_scc1 L_prep")
    a(f"s_cmp_lt_u32 s{sWAVE}, 4")
    a("s_cbranch_scc1 L_compute")
    gemm_loader(a)
    gemm_compute(a)
    prep(a)
    a_done(a)
    attention(a)
    aux(a)
    tail(a)
    return kernel_desc(KNAME, 256, 100)

HEADER = open('concat_heads__mha_block__spectral_fnet__prompt.s.ref').read().split("; Override")[0]
def main(out):
    a = Asm()
    a('.amdgcn_target "amdgcn-amd-amdhsa--gfx950"')
    a(".text")
    d = kernel(a)
    txt = HEADER + "; @launch grid=(256,1,1) block=(512,1,1) lds=163840\n" + a.text() + '.section .rodata,"a"\n.p2align 6\n' + d
    open(out, "w").write(txt)

if __name__ == "__main__":
    for x in sys.argv[2:]:
        if x == "stamp": lib.STAMP = True
        elif x == "rt": lib.STAMP = True; lib.STAMPRT = True
        elif x == "gst": lib.STAMP = True; lib.STAMPSET = 1
        elif x == "cst": lib.STAMP = True; lib.STAMPSET = 2
        else:
            k, _, v = x.partition("=")
            OPT[k] = int(v) if v else 1
    main(sys.argv[1] if len(sys.argv) > 1 else "v12.s")
```

```python
import sys, struct
from lib import *
import lib

TKV = 2560; KV_HEAD = 64*TKV; KV_OFF = 0; KV_SIZE = 32*KV_HEAD
TQ = 1280; Q_HEAD = 64*TQ; Q_OFF = KV_SIZE; Q_SIZE = 32*Q_HEAD
O_OFF = Q_OFF + Q_SIZE; O_SIZE = 64*32*1280
SEQ_OFF = O_OFF + O_SIZE; SEQ_SIZE = 17*65*1024
AB_OFF = SEQ_OFF + SEQ_SIZE; AB_SIZE = 4*11*33*1024
WO_OFF = AB_OFF + AB_SIZE; WO_SIZE = 16*50*1024
FL_OFF = 16*1024*1024; FL_SIZE = 1280*128
FA, FB = 0, 256
X_SIZE = 2048*1280; OUT_SIZE = 2048*2560
HUGE = 0x40000000
QSCALE = (20 ** -0.5) * 1.4426950408889634
NDMA = 155; LPAIR = 5184
LDS_PROG = 31*LPAIR
def lds_tile(t): return ((t-2)>>1)*LPAIR + ((t-2)&1)*TKV
def need(tile): return ((tile-1)*TKV + 4095)//4096
NEED = [need(4), need(7), need(15), need(23), 39]
POLL_MAX = 200000
def f32bits(x): return struct.unpack('<I', struct.pack('<f', x))[0]
OPT = {}
FLS = ['', ' sc1', ' nt', ' sc0 sc1', ' sc1 nt']
def FLP(): return FLS[OPT.get('flp', 0)]
def FLF(): return FLS[OPT.get('flf', 1)]

sWAVE = 3
pX, pW, pWO, pBX, pOUT, pDBG, pWS = 4, 6, 8, 10, 12, 14, 16
sNON = 18
sFL = 20
sXCD, sSLOT = 24, 25
STG = 36864
NS = 4

def poll(a, vaddr, vtmp, cnt=40, sleep=1):
    l = a.label("L_poll"); d = a.label("L_pollok")
    a(f"s_mov_b32 s{cnt}, {POLL_MAX}")
    a(f"{l}:")
    a(f"buffer_load_dwordx2 {vr(vtmp,2)}, v{vaddr}, {sr(sFL,4)}, 0 offen sc1")
    a("s_waitcnt vmcnt(0)")
    a(f"v_cmp_ne_u64 vcc, {sr(sNON,2)}, {vr(vtmp,2)}")
    a(f"s_sub_u32 s{cnt}, s{cnt}, 1")
    a(f"s_cbranch_vccz {d}")
    a(f"s_cmp_eq_u32 s{cnt}, 0")
    a(f"s_cbranch_scc1 {d}")
    if sleep: a(f"s_sleep {sleep}")
    a(f"s_branch {l}")
    a(f"{d}:")

def get_nonce(a, vt, srd=28, cnt=40):
    make_srd(a, srd, pDBG, 0, 256)
    l = a.label("L_non"); d = a.label("L_nonok")
    a(f"v_mov_b32 v{vt}, 0")
    a(f"s_mov_b32 s{cnt}, {POLL_MAX}")
    a(f"{l}:")
    a(f"buffer_load_dwordx2 {vr(vt+2,2)}, v{vt}, {sr(srd,4)}, 0 offen sc1")
    a("s_waitcnt vmcnt(0)")
    a(f"v_readfirstlane_b32 s{sNON}, v{vt+2}")
    a(f"v_readfirstlane_b32 s{sNON+1}, v{vt+3}")
    a(f"s_sub_u32 s{cnt}, s{cnt}, 1")
    a(f"s_cmp_lg_u32 s{sNON}, 0")
    a(f"s_cbranch_scc1 {d}")
    a(f"s_cmp_eq_u32 s{cnt}, 0")
    a(f"s_cbranch_scc1 {d}")
    a("s_sleep 2")
    a(f"s_branch {l}")
    a(f"{d}:")

def set_flag(a, sidx, vt):
    for i in range(4): a(f"v_mov_b32 v{vt+i}, s{sNON+(i&1)}")
    a(f"v_lshlrev_b32 v{vt+4}, 4, v1")
    a("s_mov_b64 exec, 0xff")
    a(f"buffer_store_dwordx4 {vr(vt,4)}, v{vt+4}, {sr(sFL,4)}, s{sidx} offen sc1")
    a("s_mov_b64 exec, -1")

def gemm_loader(a):
    sA, sB = 28, 32
    a("L_loader:")
    a("s_mul_i32 s40, s26, 163840")
    make_srd(a, sA, pX, "s40", 163840)
    a(f"s_sub_u32 s44, s{sWAVE}, 4")
    a("v_lshrrev_b32 v2, 3, v1")
    a("s_lshl_b32 s40, s44, 3")
    a("v_add_u32 v2, s40, v2")
    a("v_mul_u32_u24 v2, 1280, v2")
    a("v_lshrrev_b32 v3, 4, v1")
    a("s_and_b32 s40, s44, 1")
    a("s_lshl_b32 s40, s40, 2")
    a("v_or_b32 v4, s40, v3")
    a("v_and_b32 v5, 7, v1")
    a("v_xor_b32 v4, v4, v5")
    a("v_lshl_add_u32 v10, v4, 4, v2")
    a("s_lshl_b32 s45, s44, 10")
    a(f"s_lshr_b32 s40, s{sSLOT}, 2")
    a(f"s_mul_i32 s40, s40, {OPT.get('ra', 1)}")
    a(f"s_and_b32 s41, s{sSLOT}, 3")
    a(f"s_mul_i32 s41, s41, {OPT.get('rb', 1)}")
    a("s_add_u32 s40, s40, s41")
    a(f"s_mul_i32 s41, s{sXCD}, {OPT.get('rc', 3)}")
    a("s_add_u32 s40, s40, s41")
    a("s_mul_i32 s41, s40, 6554")
    a("s_lshr_b32 s41, s41, 16")
    a("s_mul_i32 s41, s41, 10")
    a("s_sub_u32 s47, s40, s41")
    def issue_x(c):
        sl = c % NS
        a("s_lshl_b32 s48, s47, 7")
        for j in range(4):
            a(f"s_add_u32 m0, s45, {sl*STG + j*4096}")
            if j: a(f"s_add_u32 s48, s48, 40960")
            else: a("s_mul_i32 s49, s47, 245760")
            a(f"buffer_load_dwordx4 v10, {sr(sA,4)}, s48 offen lds")
    def issue_w(c):
        sl = c % NS
        for i in range(5):
            a(f"s_add_u32 m0, s46, {sl*STG + 16384 + i*1024 - i*64}")
            if i == 0:
                a("s_add_u32 s47, s47, 1")
            elif i == 1:
                a("s_cmp_eq_u32 s47, 10")
                a("s_cmov_b32 s47, 0")
            else: a("s_nop 0")
            a(f"buffer_load_dwordx4 v11, {sr(sB,4)}, s49 offen offset:{i*64} lds")
    def issue(c): issue_x(c); issue_w(c)
    stamp(a, 12, 1)
    issue_x(0)
    stamp(a, 13, 1)
    a("s_mul_i32 s40, s27, 320")
    a("s_sub_u32 s41, 2457600, s40")
    make_srd(a, sB, pW, "s40", "s41")
    a("s_lshl_b32 s40, s44, 4")
    a("v_lshrrev_b32 v2, 2, v1")
    a("v_add_u32 v2, s40, v2")
    a("v_mul_u32_u24 v2, 3840, v2")
    a("v_and_b32 v3, 3, v1")
    a("v_lshrrev_b32 v4, 5, v1")
    a("v_lshlrev_b32 v4, 1, v4")
    a("v_xor_b32 v3, v3, v4")
    a("v_lshl_add_u32 v11, v3, 4, v2")
    a("s_mul_i32 s46, s44, 5120")
    issue_w(0)
    stamp(a, 14, 1)
    issued = 1
    pre = OPT.get('pre', 2)
    for c in range(1, pre): issue(c); issued += 1
    for c in range(10):
        a(f"s_waitcnt vmcnt({9*(issued-c-1)})")
        if c in (0, 9): stamp(a, {0: 2, 9: 5}[c])
        stamp(a, c + 1, 1)
        a("s_barrier")
        if c == 0: stamp(a, 11, 1)
        while issued < min(10, c + 1 + (OPT.get('dep', 2) if c < OPT.get('depsw', 10) else 3)): issue(issued); issued += 1
    get_nonce(a, 2)
    a("s_branch L_A_done")

AX, AWA, EA = 8, 10, 16
FR = 24
ACC = 96
def gemm_loop(a, isv, epi):
    XB = [FR, FR + 36]
    def rdx(kk, m): sl, st = divmod(kk, 2); return f"ds_read_b128 {vr(XB[kk&1]+4*m,4)}, v{AX+st} offset:{sl*STG + m*2048}"
    def rdw(kk, T): sl, st = divmod(kk, 2); return [f"ds_read_b64_tr_b16 {vr(XB[kk&1]+16+4*T+2*t,2)}, v{AWA+T} offset:{sl*STG + st*10240 + t*256}" for t in range(2)]
    def reads(kk):
        r = rdw(kk, 0) + [rdx(kk, m) for m in range(4)]
        for T in range(1, 5): r += rdw(kk, T)
        return r
    def mfma(kk, T, m):
        b = XB[kk & 1]
        d = vr(ACC + 16*T + 4*m, 4); w = vr(b + 16 + 4*T, 4); x = vr(b + 4*m, 4)
        return f"v_mfma_f32_16x16x32_bf16 {d}, {x}, {w}, {d}" if isv else f"v_mfma_f32_16x16x32_bf16 {d}, {w}, {x}, {d}"
    for r in range(80): a(f"v_mov_b32 v{ACC+r}, 0")
    a(f"s_mov_b32 s40, {2*STG}")
    a("s_mov_b32 s41, 5")
    a("s_barrier")
    stamp(a, 2)
    for r in reads(0): a(r)
    lp = a.label("L_gemm"); last = a.label("L_gemm_last")
    a(".p2align 3")
    a(f"{lp}:")
    for kk in range(4):
        a("s_waitcnt lgkmcnt(0)")
        ms = [mfma(kk, T, m) for T in range(5) for m in range(4)]
        a(ms[0])
        if kk == 1:
            a("s_sub_u32 s41, s41, 1")
            a("s_barrier")
            a("s_cmp_eq_u32 s41, 0")
            a(f"s_cbranch_scc1 {last}")
        if kk == 3:
            for i in range(2): a(f"v_add_u32 v{AX+i}, s40, v{AX+i}")
            for i in range(5): a(f"v_add_u32 v{AWA+i}, s40, v{AWA+i}")
            a("s_sub_u32 s40, 0, s40")
            a("s_barrier")
        nx = reads((kk + 1) & 3)
        for i in range(1, 20):
            if i - 1 < len(nx): a(nx[i-1])
            a(ms[i])
    a(f"s_branch {lp}")
    a(f"{last}:")
    ms = [mfma(1, T, m) for T in range(5) for m in range(4)]
    nx = reads(2)
    for i in range(1, 20):
        if i - 1 < len(nx): a(nx[i-1])
        a(ms[i])
    nx = reads(3)
    a("s_waitcnt lgkmcnt(0)")
    pos = 0
    for T in range(5):
        e = epi(T - 2) if T >= 2 else []
        per = -(-len(e) // 8)
        for i in range(8):
            kk = 2 + (i >> 2)
            if T == 0 and i == 4: a(f"s_waitcnt lgkmcnt({pos - 6})")
            if T == 1 and i == 4: a("s_waitcnt lgkmcnt(0)")
            a(mfma(kk, T, i & 3))
            for _ in range(2):
                if pos < len(nx): a(nx[pos]); pos += 1
            for x in e[per*i:per*(i+1)]: a(x)
    stamp(a, 5)
    for x in epi(3): a(x)
    for x in epi(4): a(x)

def gemm_compute(a):
    a("L_compute:")
    a("v_and_b32 v2, 15, v1")
    a("v_lshrrev_b32 v3, 4, v1")
    a(f"s_and_b32 s42, s{sWAVE}, 1")
    a(f"s_lshr_b32 s43, s{sWAVE}, 1")
    a("s_lshl_b32 s40, s42, 6")
    a("v_add_u32 v4, s40, v2")
    a("v_lshlrev_b32 v4, 7, v4")
    a("v_lshrrev_b32 v5, 1, v2")
    a("v_xor_b32 v5, v5, v3")
    a(f"v_lshl_add_u32 v{AX}, v5, 4, v4")
    a(f"v_xor_b32 v{AX+1}, 64, v{AX}")
    a("v_lshrrev_b32 v4, 5, v1")
    a("v_mul_u32_u24 v4, 5120, v4")
    a("v_and_b32 v5, 1, v3")
    a("v_lshrrev_b32 v6, 2, v2")
    a("v_lshl_add_u32 v6, v5, 3, v6")
    a("v_lshl_add_u32 v4, v6, 6, v4")
    a("v_add_u32 v4, 16384, v4")
    a("v_lshlrev_b32 v5, 2, v5")
    a("v_and_b32 v6, 3, v1")
    a("s_mul_i32 s44, s43, 20")
    def waddr(T, g):
        a(f"v_and_b32 v15, 7, v{g}")
        a("v_xor_b32 v15, v15, v5")
        a("v_lshl_add_u32 v15, v15, 3, v4")
        a(f"v_lshrrev_b32 v{g}, 3, v{g}")
        a(f"v_lshl_add_u32 v{AWA+T}, v{g}, 10, v15")
    a("s_lshl_b32 s45, s26, 2")
    a("s_lshl_b32 s42, s42, 1")
    a("s_add_u32 s42, s42, s45")
    a("s_and_b32 s45, s27, 3")
    a("s_lshl_b32 s45, s45, 3")
    a("s_lshl_b32 s43, s43, 2")
    a("s_add_u32 s43, s43, s45")
    a("s_cmp_ge_u32 s27, 8")
    a("s_cbranch_scc1 L_compute_v")
    for T in range(5):
        if T < 4:
            a(f"s_add_u32 s45, s44, {5*T}")
            a("v_add_u32 v7, s45, v6")
        else:
            a("s_add_u32 s45, s44, 4")
            a("v_mad_u32_u24 v7, v6, 5, s45")
        waddr(T, 7)
    a("s_cmp_ge_u32 s27, 4")
    for reg, k, q in [(44, KV_HEAD, Q_HEAD), (45, TKV, TQ), (46, f32bits(1.0), f32bits(QSCALE)), (47, KV_OFF, Q_OFF), (48, KV_SIZE, Q_SIZE)]:
        a(f"s_mov_b32 s{reg}, {q}")
        a(f"s_cmov_b32 s{reg}, {k}")
    make_srd(a, 28, pWS, "s47", "s48")
    a("s_mul_i32 s47, s43, s44")
    a("s_mul_i32 s48, s42, s45")
    a("s_add_u32 s47, s47, s48")
    a(f"v_lshlrev_b32 v{EA}, 4, v1")
    a(f"v_add_u32 v{EA+1}, s45, v{EA}")
    a("v_lshrrev_b32 v4, 5, v1")
    a("v_mul_lo_u32 v4, v4, s44")
    a("v_and_b32 v5, 31, v1")
    a("v_lshlrev_b32 v5, 3, v5")
    a("v_lshl_add_u32 v4, v4, 1, v5")
    a(f"v_add_u32 v{EA+2}, 1024, v4")
    a(f"v_add_u32 v{EA+3}, s45, v{EA+2}")
    a("s_mov_b32 s48, s47")
    a("s_add_u32 s49, s47, s44")
    def epi_qk(T):
        b = ACC + 16*T; e = []
        for r in range(16): e.append(f"v_mul_f32 v{b+r}, s46, v{b+r}")
        for r in range(8): e.append(f"v_cvt_pk_bf16_f32 v{b+r}, v{b+2*r}, v{b+2*r+1}")
        e.append("s_nop 0")
        for u in range(2):
            e.append(f"v_permlane16_swap_b32 v{b+4*u}, v{b+4*u+2}")
            e.append(f"v_permlane16_swap_b32 v{b+4*u+1}, v{b+4*u+3}")
        for u in range(2):
            if T < 4: e.append(f"buffer_store_dwordx4 {vr(b+4*u,4)}, v{EA+u}, s[28:31], s48 offen sc1")
            else:
                e.append(f"buffer_store_dwordx2 {vr(b+4*u,2)}, v{EA+2+u}, s[28:31], s47 offen sc1")
                e.append(f"buffer_store_dwordx2 {vr(b+4*u+2,2)}, v{EA+2+u}, s[28:31], s49 offen sc1")
        if T < 3: e.append("s_add_u32 s48, s48, s44")
        return e
    gemm_loop(a, False, epi_qk)
    a("s_branch L_A_done")
    a("L_compute_v:")
    for T in range(5):
        a(f"s_add_u32 s45, s44, {4*T}")
        a("v_add_u32 v7, s45, v6")
        waddr(T, 7)
    make_srd(a, 28, pWS, KV_OFF, KV_SIZE)
    a(f"s_mov_b32 s44, {KV_HEAD}")
    a("s_mul_i32 s47, s43, s44")
    a(f"s_mul_i32 s48, s42, {TKV}")
    a("s_add_u32 s47, s47, s48")
    a("v_lshrrev_b32 v7, 5, v1")
    a("v_mul_u32_u24 v7, 640, v7")
    a("v_and_b32 v15, 1, v3")
    a("v_lshl_add_u32 v7, v15, 6, v7")
    a("v_add_u32 v7, 1280, v7")
    for T in range(5):
        a(f"v_add_u32 v4, {16*T}, v2")
        a("v_mul_u32_u24 v5, 3277, v4")
        a("v_lshrrev_b32 v5, 16, v5")
        a("v_mul_u32_u24 v6, 20, v5")
        a("v_sub_u32 v4, v4, v6")
        a("v_and_b32 v6, 28, v4")
        a("v_add_u32 v4, v4, v6")
        a("v_mul_lo_u32 v5, v5, s44")
        a("v_lshl_add_u32 v4, v4, 4, v5")
        a(f"v_add_u32 v{EA+T}, v7, v4")
    def epi_v(T):
        b = ACC + 16*T; e = []
        for r in range(8): e.append(f"v_cvt_pk_bf16_f32 v{b+r}, v{b+2*r}, v{b+2*r+1}")
        e.append("s_nop 0")
        for u in range(2):
            e.append(f"v_permlane32_swap_b32 v{b+4*u}, v{b+4*u+2}")
            e.append(f"v_permlane32_swap_b32 v{b+4*u+1}, v{b+4*u+3}")
        for u in range(2): e.append(f"buffer_store_dwordx4 {vr(b+4*u,4)}, v{EA+T}, s[28:31], s47 offen offset:{u*TKV} sc1")
        return e
    gemm_loop(a, True, epi_v)
    a("s_branch L_A_done")

SWD = [42, 43, 44, 56, 57]
def side_work(a):
    a("s_sub_u32 s53, s2, 192")
    a("s_mul_i32 s53, s53, 3")
    a(f"s_add_u32 s53, s53, s{sWAVE}")
    a("s_sub_u32 s53, s53, 5")
    a("v_lshlrev_b32 v22, 4, v1")
    make_srd(a, 32, pWO, 0, 819200)
    make_srd(a, 28, pWS, SEQ_OFF, WO_OFF + WO_SIZE - SEQ_OFF)
    WR = 32
    for n in range(5):
        if n == 4:
            a("s_cmp_ge_u32 s53, 32")
            a("s_cbranch_scc1 L_sw_wo_ld")
        a(f"s_add_u32 s40, s53, {192*n}")
        a("s_mul_i32 s41, s40, 1639")
        a("s_lshr_b32 s41, s41, 16")
        a("s_mul_i32 s58, s41, 40")
        a("s_sub_u32 s58, s40, s58")
        a("s_mul_i32 s59, s58, 20")
        a("s_mul_i32 s55, s58, 80")
        a("s_sub_u32 s55, s55, %d" % (32*80 - 16))
        a("s_cmp_lt_u32 s58, 32")
        a("s_cselect_b32 s45, 4, 40")
        a("s_cselect_b32 s59, s59, s55")
        a(f"s_mov_b32 s46, {20*1280}")
        a(f"s_cmov_b32 s46, {8*1280}")
        a("v_mul_u32_u24 v4, s45, v3")
        a("v_add_u32 v4, s59, v4")
        a("v_mul_u32_u24 v4, 1280, v4")
        a("s_lshl_b32 s59, s41, 6")
        a("v_lshl_add_u32 v4, v2, 1, v4")
        a("v_add_u32 v4, s59, v4")
        b = WR + 8*n
        for grp in range(2):
            so = "s46" if grp else "0"
            for i in range(4):
                a(f"buffer_load_ushort v{b+4*grp+i}, v4, s[32:35], {so} offen offset:{i*1280}")
        a("s_mul_i32 s59, s41, 52")
        a("s_lshr_b32 s59, s59, 8")
        a("s_mul_i32 s55, s59, 5")
        a("s_sub_u32 s55, s41, s55")
        a("s_mul_i32 s45, s58, 26")
        a("s_lshr_b32 s45, s45, 8")
        a("s_mul_i32 s47, s45, 10")
        a("s_sub_u32 s47, s58, s47")
        a("s_add_u32 s58, s58, 10")
        a("s_cmp_lt_u32 s55, 4")
        a("s_cselect_b32 s55, s55, s45")
        a("s_cselect_b32 s58, s58, s47")
        a("s_lshl_b32 s59, s59, 2")
        a("s_add_u32 s59, s59, s55")
        a("s_mul_i32 s59, s59, 50")
        a("s_add_u32 s59, s59, s58")
        a("s_lshl_b32 s59, s59, 10")
        a(f"s_add_u32 s{SWD[n]}, s59, {WO_OFF - SEQ_OFF}")
    a("L_sw_wo_ld:")
    G = 80
    a("s_mov_b32 s54, s53")
    a("v_lshlrev_b32 v23, 4, v3")
    a(f"s_mov_b32 s55, {f32bits(1.0/2048)}")
    a("v_cmp_gt_u32 vcc, 32, v1")
    a("L_sw_gen:")
    a("s_lshr_b32 s41, s54, 5")
    a("s_and_b32 s58, s54, 31")
    a("s_lshr_b32 s59, s41, 1")
    a("s_lshl_b32 s59, s59, 6")
    a("s_and_b32 s47, s41, 1")
    a("s_add_u32 s59, s59, s47")
    a("v_lshl_add_u32 v4, v2, 1, s59")
    a("s_lshr_b32 s47, s58, 4")
    a("s_mul_i32 s45, s41, 65")
    a("s_add_u32 s45, s45, s58")
    a("s_add_u32 s46, s45, 33")
    a("s_add_u32 s45, s45, s47")
    a("s_lshl_b32 s45, s45, 10")
    a("s_lshl_b32 s46, s46, 10")
    a("s_and_b32 s48, s58, 15")
    a("s_lshl_b32 s48, s48, 5")
    a("s_add_u32 s48, s48, s47")
    a("v_add_u32 v5, s48, v23")
    a("v_mul_u32_u24 v5, v4, v5")
    a("v_cvt_f32_u32 v5, v5")
    a("v_cvt_f32_u32 v4, v4")
    for i in range(8):
        if i: a("v_fma_f32 v5, 2.0, v4, v5")
        a(f"v_mul_f32 v{G+i}, s55, v5")
    for i in range(8): a(f"v_fract_f32 v{G+i}, v{G+i}")
    for i in range(8): a(f"v_cos_f32 v{G+8+i}, v{G+i}")
    a("s_cmp_lg_u32 s58, 0")
    a("s_cbranch_scc1 L_gen_plain")
    a("v_mul_f32 v6, 0x3e800000, v4")
    a("v_fract_f32 v6, v6")
    a(f"v_cndmask_b32 v{G}, v{G}, v6, vcc")
    a("v_cos_f32 v7, v6")
    a(f"v_mov_b32 v{G+25}, 0")
    a(f"v_mov_b32 v{G+26}, 0")
    a(f"v_mov_b32 v{G+27}, 0")
    a("v_cndmask_b32 v7, 0, v7, vcc")
    a(f"v_cvt_pk_bf16_f32 v{G+24}, v7, 0")
    a(f"s_add_u32 s48, s45, {16*1024}")
    a(f"buffer_store_dwordx4 {vr(G+24,4)}, v22, s[28:31], s48 offen sc1")
    a("L_gen_plain:")
    for i in range(8): a(f"v_sin_f32 v{G+i}, v{G+i}")
    for i in range(4): a(f"v_cvt_pk_bf16_f32 v{G+16+i}, v{G+8+2*i}, v{G+9+2*i}")
    for i in range(4): a(f"v_cvt_pk_bf16_f32 v{G+20+i}, v{G+2*i}, v{G+1+2*i}")
    a(f"buffer_store_dwordx4 {vr(G+16,4)}, v22, s[28:31], s45 offen sc1")
    a(f"buffer_store_dwordx4 {vr(G+20,4)}, v22, s[28:31], s46 offen sc1")
    a("s_add_u32 s54, s54, 192")
    a("s_cmp_lt_u32 s54, 544")
    a("s_cbranch_scc1 L_sw_gen")

def side_work_finish(a):
    WR = 32
    l = a.label("L_sw_fin")
    a("s_waitcnt vmcnt(4)")
    for n in range(5):
        if n == 4:
            a("s_cmp_ge_u32 s53, 32")
            a(f"s_cbranch_scc1 {l}")
        b = WR + 8*n
        for i in range(4): a(f"v_lshl_or_b32 v{b+i}, v{b+2*i+1}, 16, v{b+2*i}")
        a(f"buffer_store_dwordx4 {vr(b,4)}, v22, s[28:31], s{SWD[n]} offen sc1")
    a(f"{l}:")

def prep(a):
    a("L_prep:")
    a(f"s_sub_u32 s40, s{sSLOT}, 24")
    a("s_and_b32 s27, s40, 1")
    a("s_lshr_b32 s26, s40, 1")
    a("s_lshl_b32 s26, s26, 3")
    a(f"s_add_u32 s26, s26, s{sXCD}")
    make_srd(a, 36, pWS, AB_OFF, AB_SIZE)
    a(f"s_cmp_ge_u32 s{sWAVE}, 5")
    a("s_cbranch_scc1 L_fold_skip")
    make_srd(a, 28, pBX, 0, X_SIZE)
    a("s_lshr_b32 s42, s26, 1")
    a("s_lshl_b32 s42, s42, 5")
    a("s_and_b32 s43, s26, 1")
    a("s_add_u32 s42, s42, s43")
    a("v_lshrrev_b32 v2, 3, v1")
    a("v_and_b32 v3, 7, v1")
    a("v_lshl_add_u32 v4, v2, 1, s42")
    a("v_mul_u32_u24 v5, 1280, v4")
    a("v_lshlrev_b32 v6, 4, v3")
    a("v_add_u32 v10, v5, v6")
    a("v_sub_u32 v7, v6, v5")
    a(f"s_lshl_b32 s44, s27, 1")
    a(f"s_add_u32 s44, s44, s{sWAVE}")
    a("s_cmp_ge_u32 s44, 5")
    a("s_cselect_b32 s45, 5, 0")
    a("s_sub_u32 s44, s44, s45")
    a("s_lshl_b32 s44, s44, 7")
    a("s_add_u32 s45, s44, 20480")
    a(f"v_add_u32 v11, {2048*1280}, v7")
    a(f"v_add_u32 v12, {1024*1280}, v7")
    a("v_cmp_ne_u32 vcc, 0, v4")
    a(f"v_mov_b32 v8, {HUGE}")
    a(f"v_add_u32 v9, {1024*1280}, v10")
    a("v_cndmask_b32 v13, v8, v9, vcc")
    LD = 32
    for hf in range(2):
        for r in range(4): a(f"buffer_load_dwordx4 {vr(LD+8*r+4*hf,4)}, v{10+r}, s[28:31], s44 offen offset:{640*hf}")
    a("v_subrev_u32 v11, 20480, v11")
    a("v_subrev_u32 v12, 20480, v12")
    for hf in range(2):
        for r, (vv, so) in enumerate([(10, 45), (11, 44), (12, 44), (9, 45)]):
            a(f"buffer_load_dwordx4 {vr(LD+32+8*r+4*hf,4)}, v{vv}, s[28:31], s{so} offen offset:{640*hf}")
    XL = 96
    a("s_cmp_lg_u32 s26, 0")
    a("s_cbranch_scc1 L_fold_nx")
    a(f"v_add_u32 v14, {512*1280}, v6")
    a(f"v_add_u32 v15, {1536*1280}, v6")
    a("v_cndmask_b32 v14, v14, v8, vcc")
    a("v_cndmask_b32 v15, v15, v8, vcc")
    for r in range(2):
        for hf in range(2):
            a(f"buffer_load_dwordx4 {vr(XL+8*r+4*hf,4)}, v{14+r}, s[28:31], s44 offen offset:{640*hf}")
    a("L_fold_nx:")
    a("v_and_b32 v5, 3, v2")
    a("v_lshrrev_b32 v4, 2, v2")
    a("v_lshl_or_b32 v5, v4, 3, v5")
    a("v_xor_b32 v5, v5, v3")
    a("v_and_b32 v4, 1, v3")
    a("v_lshl_add_u32 v5, v4, 5, v5")
    a("v_lshlrev_b32 v5, 4, v5")
    a("v_lshrrev_b32 v4, 1, v3")
    a("v_lshl_add_u32 v5, v4, 10, v5")
    a("s_lshl_b32 s45, s44, 5")
    a("v_add_u32 v16, s45, v5")
    a("v_xor_b32 v18, 64, v16")
    a("v_add_u32 v5, s44, v6")
    a("v_add_u32 v17, 40960, v5")
    a("v_lshlrev_b32 v6, 4, v1")
    a("v_add_u32 v6, 43008, v6")
    a("v_cndmask_b32 v17, v17, v6, vcc")
    a("L_fold_skip:")
    a("v_and_b32 v2, 31, v1")
    a("v_lshrrev_b32 v3, 5, v1")
    a("v_lshlrev_b32 v15, 4, v1")
    a(f"s_lshr_b32 s40, s{sWAVE}, 1")
    a("s_add_u32 s40, s40, 2")
    a(f"s_and_b32 s41, s{sWAVE}, 1")
    a(f"s_cmp_lt_u32 s{sWAVE}, 4")
    a(f"s_cselect_b32 s49, s{sWAVE}, s40")
    a("s_cselect_b32 s50, 0, s41")
    a("s_lshl_b32 s54, s49, 6")
    a("s_add_u32 s54, s54, s27")
    a("v_lshl_add_u32 v4, v2, 1, s54")
    AU = 10; SB = [[176, 184], [192, 200]]; HB = [[208, 212], [216, 220]]; UB = [72, 84, 96, 108]; ACC3 = [224, 240, 32]; PH = 112
    a("s_mul_i32 s52, s50, 20480")
    for jj in range(4):
        a(f"v_xor_b32 v5, {2*jj}, v3")
        a("v_xor_b32 v5, v5, v2")
        a("v_lshl_add_u32 v5, v3, 5, v5")
        a("v_lshlrev_b32 v5, 4, v5")
        a(f"v_add_u32 v5, {jj*1024}, v5")
        a(f"v_add_u32 v{AU+jj}, s52, v5")
    a(f"v_lshlrev_b32 v{AU+4}, 4, v3")
    a(f"v_add_u32 v{AU+4}, 40960, v{AU+4}")
    a(f"s_mov_b32 s52, {f32bits(1.0/640)}")
    a("s_cmp_lg_u32 s50, 0")
    a("s_cselect_b32 s53, 0x3e800000, 0")
    a("v_lshlrev_b32 v5, 3, v3")
    a("v_mul_u32_u24 v5, v4, v5")
    a("v_cvt_f32_u32 v5, v5")
    a("v_cvt_f32_u32 v4, v4")
    a("v_mul_f32 v6, 0x41800000, v4")
    for i in range(8):
        if i: a("v_add_f32 v5, v5, v4")
        a(f"v_mul_f32 v{PH+i}, s52, v5")
        a("v_sub_f32 v7, v5, v6")
        a(f"v_mul_f32 v{PH+8+i}, s52, v7")
    a("v_mul_f32 v6, s52, v6")
    a("v_fract_f32 v6, v6")
    for i in range(16): a(f"v_fract_f32 v{PH+i}, v{PH+i}")
    a("v_cos_f32 v19, v6")
    for i in range(16): a(f"v_sin_f32 v{SB[1][0]+i}, v{PH+i}")
    for i in range(16): a(f"v_subrev_f32 v{PH+i}, s53, v{PH+i}")
    for i in range(16): a(f"v_cos_f32 v{SB[0][0]+i}, v{PH+i}")
    a("v_add_f32 v19, v19, v19")
    for r in range(32): a(f"v_mov_b32 v{224+r}, 0")
    def cvts(jb, g): return [f"v_cvt_pk_bf16_f32 v{HB[jb][g]+d}, v{SB[jb][g]+2*d}, v{SB[jb][g]+2*d+1}" for d in range(4)]
    def rot(jb, cur): return [f"v_fma_f32 v{SB[jb][cur^1]+i}, v19, v{SB[jb][cur]+i}, -v{SB[jb][cur^1]+i}" for i in range(8)]
    for x in cvts(0, 0) + cvts(1, 0): a(x)
    a(f"s_cmp_lt_u32 s{sWAVE}, 5")
    a("s_cbranch_scc1 L_fold_go")
    side_work(a)
    side_work_finish(a)
    a("s_branch L_fold_done")
    a("L_fold_go:")
    a("s_cmp_lg_u32 s27, 0")
    a("s_cselect_b32 s46, -1.0, 1.0")
    a("s_mov_b32 s47, s46")
    a("s_mov_b32 s48, 0xffff0000")
    T = 112; R = 144; H = 20
    ng = "neg_lo:[0,1] neg_hi:[0,1]"
    def dfold(src, dst):
        for d in range(4):
            a(f"v_lshlrev_b32 v{dst+2*d}, 16, v{src+d}")
            a(f"v_and_b32 v{dst+2*d+1}, s48, v{src+d}")
            a(f"v_lshlrev_b32 v{H+2*(d&1)}, 16, v{src+4+d}")
            a(f"v_and_b32 v{H+2*(d&1)+1}, s48, v{src+4+d}")
            a(f"v_pk_fma_f32 {vr(dst+2*d,2)}, {vr(H+2*(d&1),2)}, s[46:47], {vr(dst+2*d,2)}")
    for n in range(2):
        a("s_waitcnt vmcnt(%d)" % (8 if n == 0 else 0))
        if n == 0: stamp(a, 9)
        b = LD + 32*n
        for r in range(4): dfold(b + 8*r, T + 8*r)
        for d in range(4):
            p = lambda r: vr(T+8*r+2*d, 2)
            q = lambda r: vr(R+8*r+2*d, 2)
            a(f"v_pk_add_f32 {q(0)}, {p(0)}, {p(1)}")
            a(f"v_pk_add_f32 {q(1)}, {p(0)}, {p(1)} {ng}")
            a(f"v_pk_add_f32 {q(2)}, {p(2)}, {p(3)}")
            a(f"v_pk_add_f32 {q(3)}, {p(2)}, {p(3)} {ng}")
            a(f"v_pk_add_f32 {p(0)}, {q(0)}, {q(2)}")
            a(f"v_pk_add_f32 {p(1)}, {q(0)}, {q(2)} {ng}")
            a(f"v_pk_add_f32 {p(2)}, {q(1)}, {q(3)} {ng}")
            a(f"v_pk_add_f32 {p(3)}, {q(1)}, {q(3)}")
        if n == 0:
            a("s_cmp_lg_u32 s26, 0")
            a("s_cbranch_scc1 L_fold_sp")
            a("s_waitcnt vmcnt(0)")
            dfold(XL, R); dfold(XL + 8, R + 8)
            for d in range(4):
                a(f"v_pk_add_f32 {vr(R+16+2*d,2)}, {vr(R+2*d,2)}, {vr(R+8+2*d,2)}")
                a(f"v_pk_add_f32 {vr(R+2*d,2)}, {vr(R+2*d,2)}, {vr(R+8+2*d,2)} {ng}")
            for e in range(8): a(f"v_cndmask_b32 v{T+24+e}, v{R+e}, v{T+24+e}, vcc")
            for d in range(4): a(f"v_cvt_pk_bf16_f32 v{R+d}, v{R+16+2*d}, v{R+17+2*d}")
            a(f"ds_write_b128 v17, {vr(R,4)}")
            a("L_fold_sp:")
        for i in range(4):
            for d in range(4): a(f"v_cvt_pk_bf16_f32 v{b+4*i+d}, v{T+8*i+2*d}, v{T+8*i+2*d+1}")
            a(f"ds_write_b128 v{16+2*n}, {vr(b+4*i,4)} offset:{(i>>1)*20480 + (i&1)*256}")
    a("L_fold_done:")
    for r in range(16): a(f"v_mov_b32 v{32+r}, 0")
    a("s_waitcnt lgkmcnt(0)")
    stamp(a, 14)
    a("s_barrier")
    stamp(a, 2)
    a("s_mul_i32 s42, s27, 6")
    a("s_add_u32 s42, s42, s49")
    a("s_cmp_gt_u32 s42, 10")
    a("s_cbranch_scc1 L_prep_done")
    def ureads(j, kinds):
        jj = j & 3; o = (j >> 2) * 4096; b = UB[j & 3]; r = []
        for k in kinds:
            if k == 2: r.append(f"ds_read_b128 {vr(b+8,4)}, v{AU+4} offset:{j*32}")
            else: r.append(f"ds_read_b128 {vr(b+4*k,4)}, v{AU+jj} offset:{o + k*20480}")
        return r
    a("s_mov_b32 s45, 5")
    a("s_or_b32 s51, s26, s50")
    a("s_cmp_eq_u32 s51, 0")
    a("s_cselect_b32 s40, 1, 0")
    a(f"s_cmp_lt_u32 s{sWAVE}, 4")
    a("s_cselect_b32 s41, 2, 0")
    a("s_add_u32 s40, s40, s41")
    variants = [[0], [0, 2], [0, 1], [0, 1, 2]]
    for v in range(1, 4):
        a(f"s_cmp_eq_u32 s40, {v}")
        a(f"s_cbranch_scc1 L_f1_v{v}")
    for v, kinds in enumerate(variants):
        a(f"L_f1_v{v}:")
        nm = len(kinds)
        for x in ureads(0, kinds) + ureads(1, kinds): a(x)
        a(f"L_f1_loop{v}:")
        for jj in range(4):
            buf = jj & 1
            va = rot(0, buf) + cvts(0, buf ^ 1)
            if 1 in kinds: va = rot(0, buf) + rot(1, buf) + cvts(0, buf ^ 1) + cvts(1, buf ^ 1)
            rd = ureads(jj + 2, kinds)
            a(f"s_waitcnt lgkmcnt({nm})")
            a("s_nop 0")
            per = len(va) // nm
            for m, k in enumerate(kinds):
                d = vr(ACC3[k], 16)
                a(f"v_mfma_f32_32x32x16_bf16 {d}, {vr(UB[jj]+4*k,4)}, {vr(HB[k & 1][buf],4)}, {d}")
                a(rd[m])
                for x in va[per*m:per*m+per]: a(x)
        for r in range(4): a(f"v_add_u32 v{AU+r}, 4096, v{AU+r}")
        if 2 in kinds: a(f"v_add_u32 v{AU+4}, 128, v{AU+4}")
        a("s_sub_u32 s45, s45, 1")
        a("s_cmp_lg_u32 s45, 0")
        a(f"s_cbranch_scc1 L_f1_loop{v}")
        if v < 3: a("s_branch L_f1_done")
    a("L_f1_done:")
    stamp(a, 5)
    a("s_mul_i32 s43, s42, 33")
    a("s_and_b32 s44, s26, 1")
    a("s_lshl_b32 s44, s44, 4")
    a("s_lshr_b32 s45, s26, 1")
    a("s_add_u32 s44, s44, s45")
    a("s_add_u32 s44, s44, s43")
    a(f"s_mul_i32 s45, s50, {22*33}")
    a("s_add_u32 s44, s44, s45")
    a("s_lshl_b32 s44, s44, 10")
    a("s_waitcnt lgkmcnt(0)")
    a("s_nop 5")
    for jb in range(2):
        b = ACC3[jb]
        if jb == 1:
            a(f"s_cmp_ge_u32 s{sWAVE}, 4")
            a("s_cbranch_scc1 L_f1_one")
        for r in range(8): a(f"v_cvt_pk_bf16_f32 v{b+r}, v{b+2*r}, v{b+2*r+1}")
        for hf in range(2):
            a(f"buffer_store_dwordx4 {vr(b+4*hf,4)}, v15, s[36:39], s44 offen sc1")
            a(f"s_add_u32 s44, s44, {11*33*1024}")
    a("L_f1_one:")
    a("s_cmp_lg_u32 s51, 0")
    a("s_cbranch_scc1 L_prep_done")
    b = ACC3[2]
    for r in range(4): a(f"v_cvt_pk_bf16_f32 v{b+r}, v{b+2*r}, v{b+2*r+1}")
    a("s_add_u32 s43, s43, 32")
    a("s_lshl_b32 s43, s43, 10")
    a(f"buffer_store_dwordx4 {vr(b,4)}, v15, s[36:39], s43 offen sc1")
    a("L_prep_done:")
    a(f"s_cmp_lt_u32 s{sWAVE}, 4")
    a("s_cbranch_scc1 L_A_done")
    get_nonce(a, 2)

W_PROG, W_GO, W_CNT, W_PASS, W_XCH, W_NON = 0, 4, 8, 16, 32, 48
def a_done(a):
    a("L_A_done:")
    stamp(a, 6)
    a(f"v_mov_b32 v23, {LDS_PROG}")
    a(f"s_cmp_lg_u32 s{sWAVE}, 4")
    a("s_cbranch_scc1 L_A_bar")
    a(f"v_mov_b32 v2, s{sNON}")
    a(f"v_mov_b32 v3, s{sNON+1}")
    a(f"ds_write_b64 v23, v[2:3] offset:{W_NON}")
    a("L_A_bar:")
    a("s_waitcnt lgkmcnt(0)")
    a("s_barrier")
    stamp(a, 4)
    a("s_and_b32 s26, s2, 31")
    a("s_lshr_b32 s27, s2, 5")
    a(f"s_cmp_ge_u32 s{sWAVE}, 4")
    a("s_cbranch_scc1 L_aux")

def drained(a, vt):
    a(f"v_mov_b32 v{vt}, 1")
    a("s_mov_b64 exec, 1")
    a(f"ds_add_u32 v23, v{vt} offset:{W_CNT}")
    a("s_mov_b64 exec, -1")

def attention(a):
    SL = OPT.get('slot', 1)
    AKA, AKB, AV, AKB2 = 4, 5, 168, 172
    AREGS = [AKA, AV, AV+1, AV+2, AV+3] + ([AKB2, AKB2+1] if SL else [AKB])
    QA = [8, 14]
    NEG = [32, 48]; S = [64, 80]; O = [96, 112]; P = 128
    KB = [136, 142]; VB = [148, 156]
    PR = 164
    a("L_attn:")
    a(f"ds_read_b32 v24, v23 offset:{W_GO}")
    a(f"ds_read_b64 v[26:27], v23 offset:{W_NON}")
    a(f"s_setprio {OPT.get('pattn', 2)}")
    a(f"s_mul_i32 s40, s26, {Q_HEAD}")
    a(f"s_add_u32 s40, s40, {Q_OFF}")
    make_srd(a, 28, pWS, "s40", Q_HEAD)
    a(f"s_mul_i32 s40, s26, {KV_HEAD}")
    make_srd(a, 32, pWS, "s40", KV_HEAD)
    a("v_and_b32 v2, 31, v1")
    a("v_lshrrev_b32 v3, 5, v1")
    a(f"v_lshlrev_b32 v{AKA}, 4, v1")
    a(f"v_lshlrev_b32 v{AKB}, 3, v2")
    a(f"v_add_u32 v{AKB}, 1024, v{AKB}")
    a(f"v_mov_b32 v20, {HUGE}")
    a("v_cmp_gt_u32 vcc, 32, v1")
    a("s_lshl_b32 s41, s27, 3")
    a(f"s_lshl_b32 s42, s{sWAVE}, 1")
    a("s_add_u32 s41, s41, s42")
    a(f"v_cndmask_b32 v20, v20, v{AKB}, vcc")
    a(f"s_mul_i32 s42, s41, {TQ}")
    a("v_and_b32 v21, 28, v2")
    a("v_add_u32 v21, v21, v2")
    a("v_lshl_add_u32 v21, v3, 2, v21")
    a("v_lshlrev_b32 v21, 4, v21")
    a("v_add_u32 v29, 1280, v21")
    a("s_mov_b32 s48, 0x000fffff")
    a("s_mov_b32 s49, 0x000fffff")
    a("s_waitcnt lgkmcnt(0)")
    a("v_readfirstlane_b32 s47, v24")
    a(f"v_readfirstlane_b32 s{sNON}, v26")
    a(f"v_readfirstlane_b32 s{sNON+1}, v27")
    a("s_mov_b32 s50, s47")
    a("s_cmp_lg_u32 s47, 0")
    a("s_cbranch_scc1 L_attn_go")
    a("s_waitcnt vmcnt(0)")
    stamp(a, 3)
    drained(a, 24)
    a("L_attn_spin:")
    if OPT.get('asl'): a(f"s_sleep {OPT['asl']}")
    a(f"ds_read_b32 v24, v23 offset:{W_GO}")
    a("s_waitcnt lgkmcnt(0)")
    a("v_readfirstlane_b32 s47, v24")
    a("s_nop 0")
    a("s_cmp_eq_u32 s47, 0")
    a("s_cbranch_scc1 L_attn_spin")
    a("L_attn_go:")
    stamp(a, 7); stamp(a, 7, 2); stamp_real(a, 8, 2)
    a("s_sub_u32 s47, s47, 1")
    a(f"s_mul_i32 s47, s47, {4*TKV}")
    for q in range(2):
        a(f"buffer_load_dwordx4 {vr(QA[q],4)}, v{AKA}, s[28:31], s42 offen offset:{q*TQ} sc1")
        a(f"buffer_load_dwordx2 {vr(QA[q]+4,2)}, v20, s[28:31], s42 offen offset:{q*TQ} sc1")
    a(f"buffer_load_dwordx4 {vr(KB[0],4)}, v{AKA}, s[32:35], s47 offen sc1")
    if SL:
        for b in KB:
            a(f"v_mov_b32 v{b+4}, 0x3f803f80")
            a(f"v_mov_b32 v{b+5}, 0x3f80")
        a("s_mov_b32 exec_hi, 0")
    a(f"buffer_load_dwordx2 {vr(KB[0]+4,2)}, v{AKB}, s[32:35], s47 offen sc1")
    if SL: a("s_mov_b64 exec, -1")
    a("v_mov_b32 v24, 0x3f803f80")
    a("v_cmp_eq_u32 vcc, 20, v2")
    a(f"s_add_u32 s43, s47, {TKV}")
    a("s_nop 0")
    a("v_cndmask_b32 v24, 0, v24, vcc")
    for r in range(16): a(f"v_mov_b32 v{VB[0]+r}, v24")
    a(f"buffer_load_dwordx4 {vr(KB[1],4)}, v{AKA}, s[32:35], s43 offen sc1")
    if SL: a("s_mov_b32 exec_hi, 0")
    a(f"buffer_load_dwordx2 {vr(KB[1]+4,2)}, v{AKB}, s[32:35], s43 offen sc1")
    a("s_mov_b64 exec, s[48:49]")
    a(f"buffer_load_dwordx4 {vr(VB[0],4)}, v29, s[32:35], s47 offen sc1")
    a(f"buffer_load_dwordx4 {vr(VB[0]+4,4)}, v29, s[32:35], s47 offen offset:640 sc1")
    a(f"buffer_load_dwordx4 {vr(VB[1],4)}, v29, s[32:35], s43 offen sc1")
    a(f"buffer_load_dwordx4 {vr(VB[1]+4,4)}, v29, s[32:35], s43 offen offset:640 sc1")
    a("s_mov_b64 exec, -1")
    a("s_cmp_eq_u32 s50, 0")
    a("s_cbranch_scc1 L_attn_cnt")
    a("s_waitcnt vmcnt(12)")
    stamp(a, 3)
    drained(a, 24)
    a("L_attn_cnt:")
    a("v_mov_b32 v22, 5120")
    if OPT.get('zr', 1):
        a("v_cmp_lt_u32 vcc, 20, v2")
        a("v_mov_b32 v21, 5136")
        a("s_nop 0")
        a("v_cndmask_b32 v22, v22, v21, vcc")
    a("v_cmp_gt_u32 vcc, 20, v2")
    for i in range(4): a(f"v_add_u32 v{AV+i}, {(i>>1)*TKV + (i&1)*640}, v29")
    for i in range(4): a(f"v_cndmask_b32 v{AV+i}, v22, v{AV+i}, vcc")
    if SL:
        a("v_cmp_gt_u32 vcc, 32, v1")
        a("v_mov_b32 v22, 5152")
        a(f"v_add_u32 v21, {TKV}, v{AKB}")
        a(f"v_cndmask_b32 v{AKB2}, v22, v{AKB}, vcc")
        a(f"v_cndmask_b32 v{AKB2+1}, v22, v21, vcc")
    make_srd(a, 36, pWS, O_OFF, O_SIZE)
    for q in range(2):
        for r in range(16): a(f"v_mov_b32 v{O[q]+r}, 0")
    mm16 = "v_mfma_f32_32x32x16_bf16"; mm8 = "v_mfma_f32_32x32x8_bf16"
    def M1(s, t, q, c): return f"{mm16} {vr(s,16)}, {vr(KB[t&1],4)}, {vr(QA[q],4)}, {c}"
    def M2(s, t, q): return f"{mm8} {vr(s,16)}, {vr(KB[t&1]+4,2)}, {vr(QA[q]+4,2)}, {vr(s,16)}"
    def M3(t, q): return "s_nop 1" if OPT.get('nopv') else f"{mm16} {vr(O[q],16)}, {vr(VB[t&1],4)}, {vr(P,4)}, {vr(O[q],16)}"
    def M4(t, q): return "s_nop 1" if OPT.get('nopv') else f"{mm16} {vr(O[q],16)}, {vr(VB[t&1]+4,4)}, {vr(P+4,4)}, {vr(O[q],16)}"
    def rowmax(src, dst, first):
        if first:
            a(f"v_max3_f32 v{dst}, v{src}, v{src+1}, v{src+2}")
            a(f"v_max_f32 v{dst}, v{dst}, v{src+15}")
            rng = range(3, 15, 2)
        else: rng = range(0, 16, 2)
        for r in rng: a(f"v_max3_f32 v{dst}, v{dst}, v{src+r}, v{src+r+1}")
    def finish_neg(add):
        a("v_mov_b32 v26, v24")
        a("v_mov_b32 v27, v25")
        a("s_nop 1")
        a("v_permlane32_swap_b32 v24, v26")
        a("v_permlane32_swap_b32 v25, v27")
        a("s_nop 1")
        a("v_max_f32 v24, v24, v26")
        a("v_max_f32 v25, v25, v27")
        if not SL:
            for q in range(2):
                a(f"v_sub_f32 v{NEG[q]}, {add}, v{24+q}")
                for r in range(1, 16): a(f"v_mov_b32 v{NEG[q]+r}, v{NEG[q]}")
            return
        a("s_mov_b32 s45, 0xffff0000")
        a("s_mov_b32 s46, 0x07060302")
        for q in range(2):
            a(f"v_sub_f32 v{24+q}, {add}, v{24+q}")
        for q in range(2):
            a(f"v_and_b32 v26, s45, v{24+q}")
            a(f"v_sub_f32 v27, v{24+q}, v26")
            a("v_and_b32 v28, s45, v27")
            a("v_sub_f32 v27, v27, v28")
            a("v_perm_b32 v26, v28, v26, s46")
            a("v_lshrrev_b32 v27, 16, v27")
            a("s_mov_b32 exec_lo, 0")
            a(f"v_mov_b32 v{QA[q]+4}, v26")
            a(f"v_mov_b32 v{QA[q]+5}, v27")
            a("s_mov_b64 exec, -1")
        a("s_nop 1")
    CNEG = lambda q: "0" if SL else vr(NEG[q], 16)
    a("s_waitcnt vmcnt(6)")
    stamp(a, 8)
    for q in range(2): a(M1(S[q], 0, q, "0"))
    for q in range(2): a(M2(S[q], 0, q))
    a("s_nop 11")
    rowmax(S[0], 24, True)
    a("s_nop 1")
    rowmax(S[1], 25, True)
    finish_neg(hex(f32bits(-float(OPT.get('off', 96)))))
    a(M1(S[0], 0, 0, CNEG(0)))
    a(M2(S[0], 0, 0))
    a(f"ds_read_b32 v{PR}, v23")
    a("s_waitcnt vmcnt(0)")
    a("s_nop 9")
    def check(need):
        l = a.label("L_chk"); ok = a.label("L_chkok")
        a(f"{l}:")
        a("s_waitcnt lgkmcnt(0)")
        a(f"v_readfirstlane_b32 s44, v{PR}")
        a("s_nop 0")
        a(f"s_cmp_ge_u32 s44, {need}")
        a(f"s_cbranch_scc1 {ok}")
        a(f"ds_read_b32 v{PR}, v23")
        a(f"s_branch {l}")
        a(".p2align 3")
        a(f"{ok}:")
    def unit(t, q, s4=(), s1=(), s2=(), s3=(), first=False, nonext=False):
        s = S[q]; sn = S[q ^ 1]
        t1, q1 = (t, 1) if q == 0 else (t + 1, 0)
        tp, qp = (t - 1, 1) if q == 0 else (t, 0)
        E = lambda r: a(f"v_exp_f32 v{s+r}, v{s+r}")
        C = lambda j: a(f"v_cvt_pk_bf16_f32 v{P+j}, v{s+2*j}, v{s+2*j+1}")
        al = OPT.get('al', 1)
        EW = lambda r: a(f"v_exp_f32_e64 v{s+r}, v{s+r}") if al else E(r)
        odd = lambda xs: sum(1 for x in xs if x.startswith("s_")) & 1
        E(0); E(1)
        if not first: a(M4(tp, qp))
        for x in s4: a(x)
        (E if odd(s4) else EW)(2); E(3); E(4)
        if not nonext: a(M1(sn, t1, q1, CNEG(q1)))
        for x in s1: a(x)
        EW(5); E(6); E(7)
        for j in range(4): C(j)
        if not nonext: a(M2(sn, t1, q1))
        for x in s2: a(x)
        EW(8)
        for r in range(9, 13): E(r)
        a(M3(t, q))
        for x in s3: a(x)
        (E if odd(s3) else EW)(13); E(14); E(15)
        for j in range(4, 8): C(j)
    def period(t, o, extra3=()):
        if o is None:
            unit(t, 1, s4=["s_waitcnt lgkmcnt(0)"]); unit(t + 1, 0); return
        kb = KB[t & 1]; vb = VB[t & 1]
        ok = lds_tile(o + 2); ov = (o >> 1) * LPAIR; av = AV + 2*(o & 1)
        unit(t, 1, s4=["s_waitcnt lgkmcnt(0)"],
             s1=[f"ds_read_b128 {vr(kb,4)}, v{AKA} offset:{ok}"],
             s3=[f"ds_read_b64 {vr(kb+4,2)}, v{AKB2+(o&1)} offset:{ov}" if SL else f"ds_read_b64 {vr(kb+4,2)}, v{AKB} offset:{ok}"])
        unit(t + 1, 0, s4=[f"ds_read_b128 {vr(vb,4)}, v{av} offset:{ov}"],
             s1=[f"ds_read_b128 {vr(vb+4,4)}, v{av+1} offset:{ov}"], s3=extra3)
    rdp = [f"ds_read_b32 v{PR}, v23"]
    a(".p2align 3")
    unit(0, 0, first=True)
    stamp(a, 9)
    check(1)
    for t in range(6):
        if t == 2: check(2)
        period(t, t, rdp if t in (1, 5) else ())
    for r in AREGS: a(f"v_add_u32 v{r}, {3*LPAIR}, v{r}")
    a(f"s_lshl_b32 s45, s{sWAVE}, 2")
    a("v_add_u32 v24, s45, v23")
    a(f"ds_write_b32 v24, v23 offset:{W_PASS}")
    a("s_mov_b32 s45, 2")
    a("s_mov_b32 s46, 7")
    stamp(a, 10); stamp(a, 10, 2); stamp_real(a, 12, 2)
    def body(chk):
        for k in range(8):
            ex = ()
            if k == 7: ex = (rdp if chk else [])
            if k == 6: ex = ["s_sub_u32 s46, s46, 1"]
            if k == 7 and not chk: ex = ["s_cmp_lg_u32 s46, 0"]
            period(k, k, ex)
        for r in AREGS: a(f"v_add_u32 v{r}, {4*LPAIR}, v{r}")
    a("s_cmp_eq_u32 s44, 16")
    a("s_cbranch_scc1 L_attn_fast")
    a(".p2align 3")
    a("L_attn_loop:")
    a("s_add_u32 s45, s45, 2")
    check("s45")
    body(True)
    a("s_cmp_eq_u32 s46, 0")
    a("s_cbranch_scc1 L_attn_last")
    a("s_cmp_lg_u32 s44, 16")
    a("s_cbranch_scc1 L_attn_loop")
    a(".p2align 3")
    a("L_attn_fast:")
    body(False)
    a("s_cbranch_scc1 L_attn_fast")
    a(".p2align 3")
    a("L_attn_last:")
    period(62, None)
    unit(63, 1, nonext=True)
    a("s_nop 1")
    a(M4(63, 1))
    stamp(a, 11); stamp(a, 11, 2); stamp_real(a, 13, 2)
    a("L_attn_post:")
    a("s_lshl_b32 s42, s41, 5")
    a("s_add_u32 s42, s42, s26")
    a("s_mul_i32 s42, s42, 1280")
    a("v_lshlrev_b32 v21, 4, v1")
    for q in range(2):
        a(f"v_mov_b32 v{24+q}, v{O[q]+8}")
        a(f"v_mov_b32 v26, v{O[q]+8}")
        a("s_nop 1")
        a(f"v_permlane32_swap_b32 v26, v{24+q}")
        a("s_nop 0")
        a(f"v_rcp_f32 v26, v{24+q}")
        a("s_nop 0")
        for r in range(12): a(f"v_mul_f32 v{S[q]+r}, v{O[q]+r}, v26")
        for r in range(6): a(f"v_cvt_pk_bf16_f32 v{S[q]+r}, v{S[q]+2*r}, v{S[q]+2*r+1}")
        a(f"buffer_store_dwordx4 {vr(S[q],4)}, v21, s[36:39], s42 offen sc1")
        a(f"buffer_store_dwordx2 {vr(S[q]+4,2)}, v20, s[36:39], s42 offen sc1")
        if q == 0: a(f"s_add_u32 s42, s42, {32*1280}")
    a("s_cmp_eq_u32 s46, 0")
    a("s_cbranch_scc0 L_attn_fin")
    for q in range(2):
        a(f"v_max3_f32 v{30+q}, abs(v{O[q]}), abs(v{O[q]+1}), abs(v{O[q]+2})")
        a(f"v_mul_f32 v{26+q}, 0, v{24+q}")
    for r in range(12):
        for q in range(2): a(f"v_fma_f32 v{26+q}, v{O[q]+r}, 0, v{26+q}")
    for q in range(2):
        a(f"v_max3_f32 v{30+q}, v{30+q}, abs(v{O[q]+3}), abs(v{O[q]+4})")
        a(f"v_max3_f32 v{30+q}, v{30+q}, abs(v{O[q]+5}), abs(v{O[q]+6})")
        a(f"v_max_f32 v{30+q}, v{30+q}, abs(v{O[q]+7})")
    a("v_max_f32 v24, v24, v25")
    a("v_min_f32 v30, v30, v31")
    a("v_mov_b32 v28, 0x76800000")
    a("v_mov_b32 v31, 0x08800000")
    a("v_cmp_u_f32 s[44:45], v26, v27")
    a("v_cmp_nlt_f32 vcc, v24, v28")
    a("v_cmp_lt_f32 s[50:51], v30, v31")
    a("s_nop 1")
    a("s_or_b64 vcc, vcc, s[44:45]")
    a("s_or_b64 vcc, vcc, s[50:51]")
    if OPT.get('forcefb'): a("s_mov_b64 vcc, -1")
    a("s_cbranch_vccnz L_attn_fallback")
    a("L_attn_fin:")
    a("s_lshl_b32 s40, s2, 2")
    a(f"s_add_u32 s40, s40, s{sWAVE}")
    a(f"s_add_u32 s40, s40, {FB}")
    a("s_lshl_b32 s40, s40, 7")
    for i in range(4): a(f"v_mov_b32 v{8+i}, s{sNON+(i&1)}")
    a("s_waitcnt vmcnt(0)")
    stamp(a, 12)
    a("s_mov_b64 exec, 0xff")
    a(f"buffer_store_dwordx4 v[8:11], v21, {sr(sFL,4)}, s40 offen sc1")
    a("s_mov_b64 exec, -1")
    a("s_barrier")
    a("s_branch L_end")
    a("L_attn_fallback:")
    a("s_waitcnt vmcnt(0)")
    for r in ((AKA,) if SL else (AKA, AKB)): a(f"v_subrev_u32 v{r}, {31*LPAIR}, v{r}")
    if SL:
        a("s_mov_b32 exec_lo, 0")
        for q in range(2):
            a(f"v_mov_b32 v{QA[q]+4}, 0")
            a(f"v_mov_b32 v{QA[q]+5}, 0")
        a("s_mov_b64 exec, -1")
    a("v_mov_b32 v24, 0xff800000")
    a("v_mov_b32 v25, 0xff800000")
    a("s_mov_b32 s46, 0")
    a("L_fb_max:")
    a(f"buffer_load_dwordx4 {vr(KB[0],4)}, v{AKA}, s[32:35], s46 offen sc1")
    if SL: a("s_mov_b32 exec_hi, 0")
    a(f"buffer_load_dwordx2 {vr(KB[0]+4,2)}, v{AKB}, s[32:35], s46 offen sc1")
    if SL: a("s_mov_b64 exec, -1")
    a("s_waitcnt vmcnt(0)")
    for q in range(2): a(M1(S[q], 0, q, "0"))
    for q in range(2): a(M2(S[q], 0, q))
    a("s_nop 15")
    rowmax(S[0], 24, False)
    rowmax(S[1], 25, False)
    a(f"s_add_u32 s46, s46, {TKV}")
    a(f"s_cmp_lt_u32 s46, {KV_HEAD}")
    a("s_cbranch_scc1 L_fb_max")
    finish_neg("0")
    for q in range(2):
        for r in range(16): a(f"v_mov_b32 v{O[q]+r}, 0")
    a("s_mov_b32 s46, 0")
    a("L_fb_main:")
    a(f"buffer_load_dwordx4 {vr(KB[0],4)}, v{AKA}, s[32:35], s46 offen sc1")
    if SL: a("s_mov_b32 exec_hi, 0")
    a(f"buffer_load_dwordx2 {vr(KB[0]+4,2)}, v{AKB}, s[32:35], s46 offen sc1")
    if SL: a("s_mov_b64 exec, -1")
    a("s_mov_b64 exec, s[48:49]")
    a(f"buffer_load_dwordx4 {vr(VB[0],4)}, v29, s[32:35], s46 offen sc1")
    a(f"buffer_load_dwordx4 {vr(VB[0]+4,4)}, v29, s[32:35], s46 offen offset:640 sc1")
    a("s_mov_b64 exec, -1")
    a("s_waitcnt vmcnt(0)")
    for q in range(2): a(M1(S[q], 0, q, CNEG(q)))
    for q in range(2): a(M2(S[q], 0, q))
    a("s_nop 15")
    for q in range(2):
        for r in range(16): a(f"v_exp_f32 v{S[q]+r}, v{S[q]+r}")
        a("s_nop 0")
        for j in range(8): a(f"v_cvt_pk_bf16_f32 v{P+j}, v{S[q]+2*j}, v{S[q]+2*j+1}")
        a("s_nop 1")
        a(M3(0, q)); a(M4(0, q))
    a(f"s_add_u32 s46, s46, {TKV}")
    a(f"s_cmp_lt_u32 s46, {KV_HEAD}")
    a("s_cbranch_scc1 L_fb_main")
    a("s_nop 15")
    a("s_branch L_attn_post")

def aux(a):
    a("L_aux:")
    a(f"s_setprio {OPT.get('paux', 0)}")
    a(f"s_sub_u32 s44, s{sWAVE}, 4")
    a("v_lshlrev_b32 v2, 4, v1")
    a("s_waitcnt vmcnt(0)")
    drained(a, 3)
    a("s_cmp_eq_u32 s44, 0")
    a("s_cbranch_scc1 L_kv")
    a("s_cmp_lg_u32 s44, 1")
    a("s_cbranch_scc1 L_aux_wait")
    a("s_lshl_b32 s40, s2, 7")
    a("L_cnt_spin:")
    a(f"ds_read_b32 v3, v23 offset:{W_CNT}")
    a("s_waitcnt lgkmcnt(0)")
    a("v_readfirstlane_b32 s41, v3")
    a("s_nop 0")
    a("s_cmp_lt_u32 s41, 8")
    a("s_cbranch_scc1 L_cnt_spin")
    set_flag(a, 40, 8)
    a("L_aux_wait:")
    a("s_sleep 4")
    a(f"ds_read_b32 v3, v23 offset:{W_PROG}")
    a("s_waitcnt lgkmcnt(0)")
    a("v_readfirstlane_b32 s41, v3")
    a("s_nop 0")
    a(f"s_cmp_lt_u32 s41, {OPT.get('f2w', 6)}")
    a("s_cbranch_scc1 L_aux_wait")
    if OPT.get('dyn', 1):
        a("s_cmp_lg_u32 s44, 1")
        a("s_cbranch_scc1 L_kv_done")
        make_srd(a, 28, pDBG, 0, 256)
        a("v_mov_b32 v3, 1")
        a("v_mov_b32 v4, 128")
        a("s_mov_b64 exec, 1")
        a("buffer_atomic_add v3, v4, s[28:31], 0 offen sc0")
        a("s_waitcnt vmcnt(0)")
        a("v_add_u32 v3, 1, v3")
        a("ds_write_b32 v23, v3 offset:12")
        a("s_mov_b64 exec, -1")
    a("s_branch L_kv_done")
    a("L_kv:")
    a(f"s_mul_i32 s40, s26, {KV_HEAD}")
    make_srd(a, 28, pWS, "s40", KV_HEAD)
    a(f"v_mul_u32_u24 v6, {LPAIR}, v1")
    a("v_min_u32 v6, %d, v6" % (30*LPAIR))
    for r in range(4): a(f"v_mov_b32 v{8+r}, 0x3f803f80")
    a("ds_write_b128 v6, v[8:11] offset:5120")
    for r in range(4): a(f"v_mov_b32 v{12+r}, 0")
    a("ds_write_b128 v6, v[12:15] offset:5136")
    a("v_mov_b32 v16, 0x3f803f80")
    a("v_mov_b32 v17, 0x3f80")
    a("ds_write_b64 v6, v[16:17] offset:5152")
    a("s_lshr_b32 s41, s26, 3")
    a("v_and_b32 v3, 15, v1")
    a("v_and_b32 v4, 1, v1")
    a("s_lshl_b32 s42, s27, 1")
    a("v_add_u32 v4, s42, v4")
    a("v_cmp_gt_u32 vcc, 32, v1")
    a("v_lshrrev_b32 v5, 4, v1")
    a("v_lshl_add_u32 v5, v5, 2, 4")
    a("v_cndmask_b32 v3, v4, v3, vcc")
    a("v_cndmask_b32 v5, 0, v5, vcc")
    a("v_add_u32 v5, s41, v5")
    a("v_cmp_le_u32 vcc, 6, v5")
    a("v_and_b32 v4, 3, v3")
    a("v_lshrrev_b32 v3, 2, v3")
    a("v_cndmask_b32 v6, 0, 1, vcc")
    a("v_mul_u32_u24 v7, 6, v6")
    a("v_sub_u32 v5, v5, v7")
    a("v_lshl_add_u32 v5, v5, 2, v4")
    a("v_lshl_add_u32 v3, v6, 2, v3")
    a("v_lshl_add_u32 v5, v5, 3, v3")
    a("v_lshlrev_b32 v5, 7, v5")
    def poll_once():
        a(f"buffer_load_dwordx2 v[6:7], v5, {sr(sFL,4)}, 0 offen sc1")
        a("s_waitcnt vmcnt(0)")
        a(f"v_cmp_eq_u64 vcc, {sr(sNON,2)}, v[6:7]")
        a("s_sub_u32 s40, s40, 1")
        a("s_cselect_b32 s47, 0xffff, 0")
        a("s_lshr_b32 s45, vcc_lo, 16")
        a("s_and_b32 s45, s45, vcc_lo")
        a("s_or_b32 s45, s45, s47")
    def pub(off, sreg):
        a(f"v_mov_b32 v4, s{sreg}")
        a(f"ds_write_b32 v23, v4 offset:{off}")
    a(f"s_mov_b32 s40, {POLL_MAX}")
    if OPT.get('padgo'):
        a("L_padgo:")
        a("s_memrealtime s[42:43]")
        a("s_waitcnt lgkmcnt(0)")
        a(f"s_sub_u32 s42, s42, s{sNON}")
        a(f"s_cmp_lt_u32 s42, {OPT['padgo']}")
        a("s_cbranch_scc1 L_padgo")
    a("L_kv_p1:")
    if OPT.get('ksl'): a(f"s_sleep {OPT['ksl']}")
    poll_once()
    a("s_cmp_lg_u32 s47, 0")
    a("s_cbranch_scc1 L_kv_first")
    a("s_cmp_eq_u32 vcc_hi, -1")
    a("s_cselect_b32 s48, s45, 0")
    a("s_cmp_eq_u32 s48, 0")
    a("s_cbranch_scc1 L_kv_p1")
    a("L_kv_first:")
    a("s_ff1_i32_b32 s48, s45")
    a("s_add_u32 s49, s48, 1")
    pub(W_GO, 49)
    stamp(a, 7)
    a("s_lshl_b32 s46, 1, s48")
    a(f"s_mul_i32 s48, s48, {4*TKV}")
    a(f"s_add_u32 s48, s48, {2*TKV}")
    for i in range(5):
        a(f"s_mov_b32 m0, {i*1024}")
        a("s_nop 0")
        a("buffer_load_dwordx4 v2, s[28:31], s48 offen sc1 lds")
        if i < 4: a("s_add_u32 s48, s48, 1024")
    a("s_mov_b32 s50, 1")
    a(f"s_mov_b32 s51, {LPAIR}")
    a("L_kv_next:")
    a("s_andn2_b32 s48, s45, s46")
    a("s_cbranch_scc0 L_kv_poll")
    a("s_ff1_i32_b32 s48, s48")
    a("s_bitset1_b32 s46, s48")
    a(f"s_mul_i32 s48, s48, {4*TKV}")
    for i in range(10):
        a(f"s_add_u32 m0, s51, {i*1024 + (64 if i >= 5 else 0)}")
        if i: a("s_add_u32 s48, s48, 1024")
        else: a("s_nop 0")
        a("buffer_load_dwordx4 v2, s[28:31], s48 offen sc1 lds")
    a(f"s_add_u32 s51, s51, {2*LPAIR}")
    a("s_cmp_eq_u32 s50, 1")
    a("s_cbranch_scc0 L_kv_w20")
    a("s_waitcnt vmcnt(10)")
    pub(W_PROG, 50)
    a("s_mov_b32 s50, 2")
    a("s_branch L_kv_next")
    a("L_kv_w20:")
    a("s_waitcnt vmcnt(20)")
    a("s_sub_u32 s49, s50, 1")
    pub(W_PROG, 49)
    a("s_add_u32 s50, s50, 1")
    a("s_branch L_kv_next")
    a("L_kv_poll:")
    a("s_waitcnt vmcnt(0)")
    pub(W_PROG, 50)
    a("s_cmp_eq_u32 s50, 16")
    a("s_cbranch_scc1 L_kv_done")
    poll_once()
    a("s_branch L_kv_next")
    a("L_kv_done:")
    stamp(a, 8)
    a("v_lshlrev_b32 v5, 7, v1")
    a(f"v_add_u32 v5, {192*128}, v5")
    poll(a, 5, 6, sleep=4)
    a(f"s_setprio {OPT.get('pf2', 3)}")
    if OPT.get('dyn', 1):
        a("L_item:")
        a("ds_read_b32 v3, v23 offset:12")
        a("s_waitcnt lgkmcnt(0)")
        a("v_readfirstlane_b32 s40, v3")
        a("s_nop 0")
        a("s_cmp_eq_u32 s40, 0")
        a("s_cbranch_scc1 L_item")
        a("s_sub_u32 s40, s40, 1")
    else:
        a(f"s_sub_u32 s40, 31, s{sSLOT}")
        a("s_cmp_ge_u32 s40, 24")
        a("s_cbranch_scc1 L_wo")
        a(f"s_mul_i32 s41, s{sXCD}, 24")
        a("s_add_u32 s40, s40, s41")
    a("s_cmp_ge_u32 s40, %d" % (0 if OPT.get('nof2') else 187))
    a("s_cbranch_scc1 L_wo")
    a("s_mul_i32 s41, s40, 373")
    a("s_lshr_b32 s41, s41, 12")
    a("s_mul_i32 s42, s41, 11")
    a("s_sub_u32 s42, s40, s42")
    a("s_lshl_b32 s41, s41, 1")
    a("s_cmp_ge_u32 s41, 18")
    a("s_cselect_b32 s43, 17, 0")
    a("s_sub_u32 s41, s41, s43")
    a("s_and_b32 s43, s41, 1")
    a("s_lshl_b32 s45, s44, 4")
    a("s_min_u32 s46, s44, 1")
    a("s_add_u32 s46, s46, s45")
    a("s_mul_i32 s47, s41, 65")
    a("s_add_u32 s47, s47, s46")
    a("s_lshl_b32 s47, s47, 10")
    a(f"s_add_u32 s47, s47, {SEQ_OFF}")
    make_srd(a, 28, pWS, "s47", 17*1024)
    a("s_and_b32 s47, s44, 2")
    a("s_add_u32 s47, s47, s43")
    a("s_mul_i32 s48, s47, 11")
    a("s_add_u32 s48, s48, s42")
    a("s_mul_i32 s48, s48, 33")
    a("s_and_b32 s45, s45, 16")
    a("s_add_u32 s48, s48, s45")
    a("s_lshl_b32 s48, s48, 10")
    a(f"s_add_u32 s48, s48, {AB_OFF}")
    make_srd(a, 32, pWS, "s48", 33*1024)
    make_srd(a, 36, pOUT, 0, OUT_SIZE)
    FB = 64; AC = 8
    a("s_or_b32 s47, s44, s43")
    a("s_cmp_lg_u32 s47, 0")
    a("s_cbranch_scc1 L_f2_nox")
    a(f"s_mov_b32 s49, {16*1024}")
    a("buffer_load_dwordx4 v[24:27], v2, s[28:31], s49 offen sc1")
    a(f"s_mov_b32 s49, {32*1024}")
    a("buffer_load_dwordx4 v[28:31], v2, s[32:35], s49 offen sc1")
    a("L_f2_nox:")
    for k in range(16):
        b = FB + k * 8
        if k % 4 == 0: a(f"s_mov_b32 s49, {(k//4)*4096}")
        a(f"buffer_load_dwordx4 {vr(b,4)}, v2, s[28:31], s49 offen offset:{(k%4)*1024} sc1")
        a(f"buffer_load_dwordx4 {vr(b+4,4)}, v2, s[32:35], s49 offen offset:{(k%4)*1024} sc1")
    stamp(a, 9)
    a("v_and_b32 v5, 31, v1")
    a("v_lshrrev_b32 v4, 5, v1")
    a("s_lshr_b32 s48, s41, 1")
    a("s_lshl_b32 s48, s48, 6")
    a("s_add_u32 s48, s48, s43")
    a("s_lshl_b32 s49, s44, 4")
    a("s_add_u32 s48, s48, s49")
    a("v_lshl_add_u32 v47, v4, 3, s48")
    a("v_mul_u32_u24 v47, 2560, v47")
    a("s_cmp_ge_u32 s42, 6")
    a("s_cselect_b32 s48, 383, 0")
    a("s_lshl_b32 s49, s42, 6")
    a("s_sub_u32 s48, s49, s48")
    a("v_lshl_add_u32 v5, v5, 1, s48")
    a(f"v_mov_b32 v46, {HUGE}")
    a("v_lshlrev_b32 v6, 1, v5")
    a("v_add_u32 v40, 1280, v6")
    a("v_cmp_ge_u32 vcc, 320, v5")
    a("v_sub_u32 v41, 2560, v6")
    a("v_add_u32 v6, -1, v5")
    a("v_cndmask_b32 v40, v46, v40, vcc")
    a("v_cmp_gt_u32 vcc, 319, v6")
    a(f"v_add_u32 v33, {(2048-6)*2560}, v40")
    a("v_sub_u32 v33, v33, v47")
    a("v_cndmask_b32 v41, v46, v41, vcc")
    a("v_add_u32 v32, v47, v40")
    a("v_add_u32 v36, v47, v41")
    a(f"v_add_u32 v37, {(2048-6)*2560}, v41")
    a("v_sub_u32 v37, v37, v47")
    a(f"v_subrev_u32 v34, {1024*2560}, v33")
    a(f"v_subrev_u32 v38, {1024*2560}, v37")
    a(f"v_add_u32 v35, {1024*2560}, v32")
    a(f"v_add_u32 v39, {1024*2560}, v36")
    a(f"v_add_u32 v42, {3*5120}, v33")
    a(f"v_add_u32 v43, {3*5120}, v37")
    a(f"v_mov_b32 v3, {LDS_PROG}")
    a("s_lshl_b32 s48, s44, 10")
    a("v_add_u32 v6, s48, v2")
    a("s_add_u32 s49, s48, 12288")
    a("s_lshl_b32 s50, s44, 12")
    a("s_add_u32 s51, s50, 3072")
    a("s_cmp_eq_u32 s44, 3")
    a(f"s_cmov_b32 s49, {LDS_PROG + 1024}")
    a(f"s_cmov_b32 s51, {LDS_PROG + 1024}")
    a("v_add_u32 v7, s49, v2")
    a("v_add_u32 v44, s50, v2")
    a("v_add_u32 v45, s51, v2")
    a("s_lshl_b32 s49, s44, 2")
    a("v_add_u32 v5, s49, v3")
    for k in range(16):
        a(f"s_waitcnt vmcnt({2*(15-k)})")
        b = FB + k * 8
        d = vr(AC, 16)
        a(f"v_mfma_f32_32x32x16_bf16 {d}, {vr(b,4)}, {vr(b+4,4)}, {'0' if k == 0 else d}")
    a("s_cmp_lg_u32 s47, 0")
    a("s_cbranch_scc1 L_f2_nox2")
    a(f"v_mfma_f32_32x32x16_bf16 {vr(AC,16)}, v[24:27], v[28:31], {vr(AC,16)}")
    a("L_f2_nox2:")
    def spin_min(lbl, off, sl):
        a(f"{lbl}:")
        a(f"ds_read_b128 v[48:51], v3 offset:{off}")
        a("s_waitcnt lgkmcnt(0)")
        a("v_min3_u32 v48, v48, v49, v50")
        a("v_min_u32 v48, v48, v51")
        a("s_nop 0")
        a("v_readfirstlane_b32 s48, v48")
        a("s_nop 0")
        a("s_cmp_lg_u32 s48, 0")
        a(f"s_cbranch_scc1 {lbl}_ok")
        a(f"s_sleep {sl}")
        a(f"s_branch {lbl}")
        a(f"{lbl}_ok:")
    spin_min("L_f2_dead", W_PASS, 4)
    a("s_nop 3")
    for j in range(3): a(f"ds_write_b128 v6, {vr(AC+4*j,4)} offset:{j*4096}")
    a(f"ds_write_b128 v7, {vr(AC+12,4)}")
    a(f"ds_write_b32 v5, v3 offset:{W_XCH}")
    spin_min("L_f2_wait", W_XCH, 2)
    for i in range(3): a(f"ds_read_b128 {vr(8+4*i,4)}, v44 offset:{i*1024}")
    a("ds_read_b128 v[20:23], v45")
    a("s_waitcnt lgkmcnt(0)")
    ng = "neg_lo:[0,1] neg_hi:[0,1]"
    for r in (0, 2):
        a(f"v_pk_add_f32 {vr(48+r,2)}, {vr(8+r,2)}, {vr(12+r,2)}")
        a(f"v_pk_add_f32 {vr(52+r,2)}, {vr(8+r,2)}, {vr(12+r,2)} {ng}")
        a(f"v_pk_add_f32 {vr(56+r,2)}, {vr(20+r,2)}, {vr(16+r,2)}")
        a(f"v_pk_add_f32 {vr(60+r,2)}, {vr(20+r,2)}, {vr(16+r,2)} {ng}")
    for r in (0, 2):
        a(f"v_pk_add_f32 {vr(8+r,2)}, {vr(48+r,2)}, {vr(56+r,2)} {ng}")
        a(f"v_pk_add_f32 {vr(12+r,2)}, {vr(48+r,2)}, {vr(56+r,2)}")
        a(f"v_pk_add_f32 {vr(16+r,2)}, {vr(52+r,2)}, {vr(60+r,2)} {ng}")
        a(f"v_pk_add_f32 {vr(20+r,2)}, {vr(52+r,2)}, {vr(60+r,2)}")
    for k in range(8): a(f"v_cvt_pk_bf16_f32 v{48+k}, v{8+2*k}, v{9+2*k}")
    a("s_cmp_eq_u32 s41, 16")
    a("s_cbranch_scc1 L_f2_nyq")
    for i in range(4):
        st = "buffer_store_short_d16_hi" if i & 1 else "buffer_store_short"
        m1, p1, m2, p2 = (48 + 2*k + (i >> 1) for k in range(4))
        a(f"s_mov_b32 s47, {i*5120}")
        a(f"s_mov_b32 s48, {(3-i)*5120}")
        for val, adr, so in [(m1, 32, "s47"), (p1, 36, "s47"), (p2, 35, "s47"), (m2, 39, "s47"), (m2, 34, "s48"), (p2, 38, "s48"),
                             (p1, 33 if i else 42, "s48" if i else "0"), (m1, 37 if i else 43, "s48" if i else "0")]:
            a(f"{st} v{val}, v{adr}, s[36:39], {so} offen{FLF()}")
    a("s_branch L_wo")
    a("L_f2_nyq:")
    a("s_cmp_lg_u32 s44, 0")
    a("s_cbranch_scc1 L_wo")
    a("s_mov_b32 exec_hi, 0")
    for val, adr in [(48, 32), (50, 36), (50, 42), (48, 43)]:
        a(f"buffer_store_short v{val}, v{adr}, s[36:39], 0 offen{FLF()}")
    a("s_mov_b64 exec, -1")
    a("L_wo:")
    stamp(a, 10)
    a("s_lshr_b32 s40, s26, 3")
    a("s_lshl_b32 s40, s40, 2")
    a("s_add_u32 s40, s40, s44")
    a(f"s_mul_i32 s40, s40, {50*1024}")
    a(f"s_add_u32 s40, s40, {WO_OFF}")
    make_srd(a, 28, pWS, "s40", 50*1024)
    a("s_waitcnt vmcnt(0)")
    for k in range(50):
        if k % 4 == 0: a(f"s_mov_b32 s49, {(k//4)*4096}")
        a(f"buffer_load_dwordx4 {vr(56+4*k,4)}, v2, s[28:31], s49 offen offset:{(k%4)*1024} sc1")

def tail(a):
    a("L_B_done:")
    a("s_and_b32 s40, s26, 7")
    a("s_lshl_b32 s41, s27, 3")
    a("s_add_u32 s41, s41, s40")
    a(f"s_mul_i32 s42, s41, {32*1280}")
    a(f"s_add_u32 s42, s42, {O_OFF}")
    make_srd(a, 28, pWS, "s42", 32*1280)
    a("v_and_b32 v4, 31, v1")
    a("s_lshl_b32 s42, s27, 7")
    a("s_lshr_b32 s40, s40, 1")
    a("s_add_u32 s42, s42, s40")
    a(f"s_add_u32 s42, s42, {FB}")
    a("v_lshl_add_u32 v4, v4, 2, s42")
    a("v_lshlrev_b32 v4, 7, v4")
    a("s_waitcnt vmcnt(0)")
    stamp(a, 12)
    a("s_barrier")
    stamp(a, 1)
    poll(a, 4, 6, sleep=OPT.get('sl', 0))
    stamp(a, 13)
    a("s_lshl_b32 s40, s44, 10")
    for j in range(10):
        a("s_mov_b32 m0, s40")
        a("s_nop 0")
        a("buffer_load_dwordx4 v2, s[28:31], s40 offen sc1 lds")
        if j < 9: a("s_add_u32 s40, s40, 4096")
    a("v_and_b32 v3, 31, v1")
    a("v_lshrrev_b32 v4, 5, v1")
    a("v_mul_u32_u24 v5, 2560, v4")
    a("v_lshl_add_u32 v5, v3, 3, v5")
    a("v_add_u32 v5, 1024, v5")
    make_srd(a, 32, pOUT, 0, OUT_SIZE)
    a("s_lshl_b32 s41, s41, 5")
    a("v_add_u32 v6, s41, v3")
    a("v_mul_u32_u24 v6, 2560, v6")
    a("s_lshr_b32 s42, s26, 3")
    a("s_mul_i32 s42, s42, 320")
    a("s_mul_i32 s43, s44, 12800")
    a("v_add_u32 v7, s43, v2")
    a("s_lshl_b32 s43, s44, 12")
    a("s_add_u32 s43, s43, 40960")
    a("v_add_u32 v3, s43, v2")
    a("s_lshl_b32 s43, s44, 10")
    a("s_add_u32 s43, s43, 40960")
    a("v_add_u32 v1, s43, v2")
    a("s_lshl_b32 s45, s44, 4")
    a("s_add_u32 s45, s45, s42")
    a("v_lshl_add_u32 v0, v4, 3, v6")
    a("s_lshl_b32 s43, s44, 6")
    a("s_add_u32 s43, s43, s42")
    a("v_lshl_add_u32 v6, v4, 4, v6")
    a("s_waitcnt vmcnt(0)")
    a("s_barrier")
    stamp(a, 14)
    if lib.STAMP: a("s_waitcnt lgkmcnt(0)")
    A5, AM, OB = 8, 24, 40
    def rd(buf, kap, base=None):
        b = OB + 4*buf
        if base is not None: return f"ds_read_b128 {vr(b,4)}, v{base} offset:{kap*1280}"
        if kap < 32: return f"ds_read_b128 {vr(b,4)}, v2 offset:{kap*1280}"
        o = (kap - 32) * 5120 // 8
        return None
    def rd_main(buf, kap):
        b = OB + 4*buf
        if kap < 32: return [f"ds_read_b128 {vr(b,4)}, v2 offset:{kap*1280}"]
        g = kap - 32
        return [f"ds_read_b64 {vr(b,2)}, v5 offset:{g*5120}", f"ds_read_b64 {vr(b+2,2)}, v5 offset:{g*5120+1280}"]
    def stream(steps):
        n = len(steps); cnt = [0]*n
        PF = 3
        for k in range(PF):
            r = steps[k][0](k % 4); cnt[k] = len(r)
            for x in r: a(x)
        for k in range(n):
            out = sum(cnt[k+1:min(n, k+PF)])
            a(f"s_waitcnt lgkmcnt({out})")
            d = vr(steps[k][1], 16)
            a(f"v_mfma_f32_32x32x16_bf16 {d}, {vr(steps[k][2],4)}, {vr(OB+4*(k%4),4)}, {'0' if steps[k][3] else d}")
            if k + PF < n:
                r = steps[k+PF][0]((k+PF) % 4); cnt[k+PF] = len(r)
                for x in r: a(x)
            if k == 13:
                for j in range(4): a(f"ds_write_b128 v3, {vr(A5+4*j,4)} offset:{j*1024}")
                cnt[k+PF] += 4
            if k == 24:
                a("s_barrier")
                for i in range(4): a(f"ds_read_b128 {vr(A5+4*i,4)}, v1 offset:{i*4096}")
                cnt[k+PF] += 4
            if k == 30:
                for i in range(1, 4):
                    a(f"v_pk_add_f32 {vr(A5,2)}, {vr(A5,2)}, {vr(A5+4*i,2)}")
                    a(f"v_pk_add_f32 {vr(A5+2,2)}, {vr(A5+2,2)}, {vr(A5+4*i+2,2)}")
            if k == 32:
                a(f"v_cvt_pk_bf16_f32 v{A5}, v{A5}, v{A5+1}")
                a(f"v_cvt_pk_bf16_f32 v{A5+1}, v{A5+2}, v{A5+3}")
                a(f"buffer_store_dwordx2 {vr(A5,2)}, v0, s[32:35], s45 offen offset:256{FLP()}")
    main = [((lambda kap: lambda buf: rd_main(buf, kap))(kap), AM, 56 + 4*(10+kap), kap == 0) for kap in range(40)]
    a("s_cmp_eq_u32 s44, 3")
    a("s_cbranch_scc1 L_tail3")
    q5 = [((lambda i: lambda buf: [f"ds_read_b128 {vr(OB+4*buf,4)}, v7 offset:{i*1280}"])(i), A5, 56 + 4*i, i == 0) for i in range(10)]
    stream(q5 + main)
    a("s_branch L_tail_join")
    a("L_tail3:")
    q5 = [((lambda i: lambda buf: rd_main(buf, 30 + i))(i), A5, 56 + 4*i, i == 0) for i in range(10)]
    stream(q5 + main)
    a("L_tail_join:")
    stamp(a, 11)
    a("s_nop 10")
    for r in range(8): a(f"v_cvt_pk_bf16_f32 v{AM+r}, v{AM+2*r}, v{AM+2*r+1}")
    a("s_nop 1")
    for h2 in range(2):
        a(f"v_permlane32_swap_b32 v{AM+4*h2}, v{AM+4*h2+2}")
        a(f"v_permlane32_swap_b32 v{AM+4*h2+1}, v{AM+4*h2+3}")
    for h2 in range(2):
        a(f"buffer_store_dwordx4 {vr(AM+4*h2,4)}, v6, s[32:35], s43 offen offset:{32*h2}{FLP()}")
    a("L_end:")
    if OPT.get('pad'):
        a("L_pad:")
        a("s_memrealtime s[40:41]")
        a("s_waitcnt lgkmcnt(0)")
        a(f"s_sub_u32 s40, s40, s{sNON}")
        a(f"s_cmp_lt_u32 s40, {OPT['pad']}")
        a("s_cbranch_scc1 L_pad")
    if lib.STAMP:
        a("s_waitcnt vmcnt(0)")
        stamp(a, 15); stamp_real(a, 17)
        stamp_flush(a, 18, pWS, sWAVE, 0)
    a("L_exit:")
    a("s_endpgm")

KNAME = "concat_heads__mha_block__spectral_fnet__prompt_kernel"
def kernel(a):
    kernel_header(a, KNAME)
    if OPT.get('early'): a("s_memrealtime s[98:99]")
    a("s_cmp_ge_u32 s2, 256")
    a("s_cbranch_scc1 L_exit")
    if lib.STAMP:
        for i in range(18): a(f"s_mov_b32 s{60+2*i}, 0")
    stamp(a, 0); stamp_real(a, 16)
    a("s_load_dwordx8 s[4:11], s[0:1], 0")
    a("s_load_dwordx4 s[12:15], s[0:1], 64")
    a("s_load_dwordx2 s[16:17], s[0:1], 80")
    a("v_lshrrev_b32 v1, 6, v0")
    a(f"s_and_b32 s{sXCD}, s2, 7")
    a(f"v_readfirstlane_b32 s{sWAVE}, v1")
    a(f"s_lshr_b32 s{sSLOT}, s2, 3")
    a("v_and_b32 v1, 63, v0")
    a(f"s_and_b32 s26, s{sXCD}, 3")
    a("s_lshl_b32 s26, s26, 2")
    a(f"s_and_b32 s27, s{sSLOT}, 3")
    a("s_add_u32 s26, s26, s27")
    a(f"s_lshr_b32 s27, s{sXCD}, 2")
    a("s_mul_i32 s27, s27, 6")
    a(f"s_lshr_b32 s40, s{sSLOT}, 2")
    a("s_add_u32 s27, s27, s40")
    a(f"s_lshl_b32 s40, s2, 3")
    a(f"s_add_u32 s40, s40, s{sWAVE}")
    a("s_waitcnt lgkmcnt(0)")
    make_srd(a, sFL, pWS, FL_OFF, FL_SIZE)
    a("s_cmp_lg_u32 s40, 7")
    a("s_cbranch_scc1 L_no_nonce")
    if OPT.get('early'): a("s_mov_b64 s[40:41], s[98:99]")
    else: a("s_memrealtime s[40:41]")
    make_srd(a, 28, pDBG, 0, 256)
    a("s_waitcnt lgkmcnt(0)")
    a("s_or_b32 s40, s40, 1")
    a("v_mov_b32 v2, s40")
    a("v_mov_b32 v3, s41")
    a("v_mov_b32 v4, 0")
    a("buffer_store_dwordx2 v[2:3], v4, s[28:31], 0 offen sc1")
    a("L_no_nonce:")
    a(f"s_cmp_lg_u32 s{sWAVE}, 0")
    a("s_cbranch_scc1 L_no_init")
    a(f"v_mov_b32 v2, {LDS_PROG}")
    a("v_mov_b32 v4, 0")
    a("v_mov_b32 v5, 0")
    for i in range(8): a(f"ds_write_b64 v2, v[4:5] offset:{8*i}")
    a("s_waitcnt lgkmcnt(0)")
    a("L_no_init:")
    if OPT.get('touch', 0) & 1:
        a(f"s_cmp_lg_u32 s{sWAVE}, 1")
        a("s_cbranch_scc1 L_no_code")
        a("s_getpc_b64 s[40:41]")
        a("L_pc:")
        a(f"s_sub_u32 s40, s40, L_pc-{KNAME}")
        a("s_subb_u32 s41, s41, 0")
        a(f"s_mul_i32 s42, s{sSLOT}, 1280")
        a("v_lshlrev_b32 v2, 4, v1")
        a("v_add_u32 v2, s42, v2")
        a(f"v_min_u32 v2, L_exit-{KNAME}-1024-16, v2")
        for i in range(2): a(f"global_load_dwordx4 v[240:243], v2, s[40:41] offset:{i*1024}")
        a("L_no_code:")
    if OPT.get('touch', 0) & 2:
        a(f"s_cmp_lg_u32 s{sWAVE}, 2")
        a("s_cbranch_scc1 L_no_tlb")
        make_srd(a, 28, pWS, 0, FL_OFF + FL_SIZE)
        a(f"v_mul_u32_u24 v2, {OPT.get('tstr', 0x44000)}, v1")
        a("buffer_load_dword v240, v2, s[28:31], 0 offen sc1")
        make_srd(a, 28, pOUT, 0, OUT_SIZE)
        a("v_mul_u32_u24 v2, 0x14000, v1")
        a("buffer_load_dword v241, v2, s[28:31], 0 offen sc1")
        a("L_no_tlb:")
    a(f"s_cmp_ge_u32 s{sSLOT}, 24")
    a("s_cbranch_scc1 L_prep")
    a(f"s_cmp_lt_u32 s{sWAVE}, 4")
    a("s_cbranch_scc1 L_compute")
    gemm_loader(a)
    gemm_compute(a)
    prep(a)
    a_done(a)
    attention(a)
    aux(a)
    tail(a)
    return kernel_desc(KNAME, 256, 100)

HEADER = open('concat_heads__mha_block__spectral_fnet__prompt.s.ref').read().split("; Override")[0]
def main(out):
    a = Asm()
    a('.amdgcn_target "amdgcn-amd-amdhsa--gfx950"')
    a(".text")
    d = kernel(a)
    txt = HEADER + "; @launch grid=(256,1,1) block=(512,1,1) lds=163840\n" + a.text() + '.section .rodata,"a"\n.p2align 6\n' + d
    open(out, "w").write(txt)

if __name__ == "__main__":
    for x in sys.argv[2:]:
        if x == "stamp": lib.STAMP = True
        elif x == "rt": lib.STAMP = True; lib.STAMPRT = True
        elif x == "gst": lib.STAMP = True; lib.STAMPSET = 1
        elif x == "cst": lib.STAMP = True; lib.STAMPSET = 2
        else:
            k, _, v = x.partition("=")
            OPT[k] = int(v) if v else 1
    main(sys.argv[1] if len(sys.argv) > 1 else "v15.s")
```

```python
import sys, struct
from lib import *
import lib

TKV = 2560; KV_HEAD = 64*TKV; KV_OFF = 0; KV_SIZE = 32*KV_HEAD
TQ = 1280; Q_HEAD = 64*TQ; Q_OFF = KV_SIZE; Q_SIZE = 32*Q_HEAD
O_OFF = Q_OFF + Q_SIZE; O_SIZE = 64*32*1280
SEQ_OFF = O_OFF + O_SIZE; SEQ_SIZE = 17*65*1024
AB_OFF = SEQ_OFF + SEQ_SIZE; AB_SIZE = 4*11*33*1024
WO_OFF = AB_OFF + AB_SIZE; WO_SIZE = 16*50*1024
FL_OFF = 16*1024*1024; FL_SIZE = 1280*128
FA, FB = 0, 256
X_SIZE = 2048*1280; OUT_SIZE = 2048*2560
HUGE = 0x40000000
QSCALE = (20 ** -0.5) * 1.4426950408889634
NDMA = 155; LPAIR = 5184
LDS_PROG = 31*LPAIR
def lds_tile(t): return ((t-2)>>1)*LPAIR + ((t-2)&1)*TKV
def need(tile): return ((tile-1)*TKV + 4095)//4096
NEED = [need(4), need(7), need(15), need(23), 39]
POLL_MAX = 200000
def f32bits(x): return struct.unpack('<I', struct.pack('<f', x))[0]
OPT = {}
FLS = ['', ' sc1', ' nt', ' sc0 sc1', ' sc1 nt']
def FLP(): return FLS[OPT.get('flp', 0)]
def FLF(): return FLS[OPT.get('flf', 1)]

sWAVE = 3
pX, pW, pWO, pBX, pOUT, pDBG, pWS = 4, 6, 8, 10, 12, 14, 16
sNON = 18
sFL = 20
sXCD, sSLOT = 24, 25
STG = 36864
NS = 4

def poll(a, vaddr, vtmp, cnt=40, sleep=1):
    l = a.label("L_poll"); d = a.label("L_pollok")
    a(f"s_mov_b32 s{cnt}, {POLL_MAX}")
    a(f"{l}:")
    a(f"buffer_load_dwordx2 {vr(vtmp,2)}, v{vaddr}, {sr(sFL,4)}, 0 offen sc1")
    a("s_waitcnt vmcnt(0)")
    a(f"v_cmp_ne_u64 vcc, {sr(sNON,2)}, {vr(vtmp,2)}")
    a(f"s_sub_u32 s{cnt}, s{cnt}, 1")
    a(f"s_cbranch_vccz {d}")
    a(f"s_cmp_eq_u32 s{cnt}, 0")
    a(f"s_cbranch_scc1 {d}")
    if sleep: a(f"s_sleep {sleep}")
    a(f"s_branch {l}")
    a(f"{d}:")

def get_nonce(a, vt, srd=28, cnt=40):
    make_srd(a, srd, pDBG, 0, 256)
    l = a.label("L_non"); d = a.label("L_nonok")
    a(f"v_mov_b32 v{vt}, 0")
    a(f"s_mov_b32 s{cnt}, {POLL_MAX}")
    a(f"{l}:")
    a(f"buffer_load_dwordx2 {vr(vt+2,2)}, v{vt}, {sr(srd,4)}, 0 offen sc1")
    a("s_waitcnt vmcnt(0)")
    a(f"v_readfirstlane_b32 s{sNON}, v{vt+2}")
    a(f"v_readfirstlane_b32 s{sNON+1}, v{vt+3}")
    a(f"s_sub_u32 s{cnt}, s{cnt}, 1")
    a(f"s_cmp_lg_u32 s{sNON}, 0")
    a(f"s_cbranch_scc1 {d}")
    a(f"s_cmp_eq_u32 s{cnt}, 0")
    a(f"s_cbranch_scc1 {d}")
    a("s_sleep 2")
    a(f"s_branch {l}")
    a(f"{d}:")

def set_flag(a, sidx, vt):
    for i in range(4): a(f"v_mov_b32 v{vt+i}, s{sNON+(i&1)}")
    a(f"v_lshlrev_b32 v{vt+4}, 4, v1")
    a("s_mov_b64 exec, 0xff")
    a(f"buffer_store_dwordx4 {vr(vt,4)}, v{vt+4}, {sr(sFL,4)}, s{sidx} offen sc1")
    a("s_mov_b64 exec, -1")

def gemm_loader(a):
    sA, sB = 28, 32
    a("L_loader:")
    a("s_mul_i32 s40, s26, 163840")
    make_srd(a, sA, pX, "s40", 163840)
    a(f"s_sub_u32 s44, s{sWAVE}, 4")
    a("v_lshrrev_b32 v2, 3, v1")
    a("s_lshl_b32 s40, s44, 3")
    a("v_add_u32 v2, s40, v2")
    a("v_mul_u32_u24 v2, 1280, v2")
    a("v_lshrrev_b32 v3, 4, v1")
    a("s_and_b32 s40, s44, 1")
    a("s_lshl_b32 s40, s40, 2")
    a("v_or_b32 v4, s40, v3")
    a("v_and_b32 v5, 7, v1")
    a("v_xor_b32 v4, v4, v5")
    a("v_lshl_add_u32 v10, v4, 4, v2")
    a("s_lshl_b32 s45, s44, 10")
    a(f"s_lshr_b32 s40, s{sSLOT}, 3")
    a(f"s_mul_i32 s40, s40, {OPT.get('ra', 5)}")
    a(f"s_and_b32 s41, s{sSLOT}, 7")
    a(f"s_mul_i32 s41, s41, {OPT.get('rb', 5)}")
    a("s_add_u32 s40, s40, s41")
    a(f"s_mul_i32 s41, s{sXCD}, {OPT.get('rc', 3)}")
    a("s_add_u32 s40, s40, s41")
    a("s_mul_i32 s41, s40, 6554")
    a("s_lshr_b32 s41, s41, 16")
    a("s_mul_i32 s41, s41, 10")
    a("s_sub_u32 s47, s40, s41")
    def issue_x(c):
        sl = c % NS
        a("s_lshl_b32 s48, s47, 7")
        for j in range(4):
            a(f"s_add_u32 m0, s45, {sl*STG + j*4096}")
            if j: a(f"s_add_u32 s48, s48, 40960")
            else: a("s_mul_i32 s49, s47, 245760")
            a(f"buffer_load_dwordx4 v10, {sr(sA,4)}, s48 offen lds")
    def issue_w(c):
        sl = c % NS
        for i in range(5):
            a(f"s_add_u32 m0, s46, {sl*STG + 16384 + i*1024 - i*64}")
            if i == 0:
                a("s_add_u32 s47, s47, 1")
            elif i == 1:
                a("s_cmp_eq_u32 s47, 10")
                a("s_cmov_b32 s47, 0")
            else: a("s_nop 0")
            a(f"buffer_load_dwordx4 v11, {sr(sB,4)}, s49 offen offset:{i*64} lds")
    def issue(c): issue_x(c); issue_w(c)
    stamp(a, 12, 1)
    issue_x(0)
    stamp(a, 13, 1)
    a("s_mul_i32 s40, s27, 320")
    a("s_sub_u32 s41, 2457600, s40")
    make_srd(a, sB, pW, "s40", "s41")
    a("s_lshl_b32 s40, s44, 4")
    a("v_lshrrev_b32 v2, 2, v1")
    a("v_add_u32 v2, s40, v2")
    a("v_mul_u32_u24 v2, 3840, v2")
    a("v_and_b32 v3, 3, v1")
    a("v_lshrrev_b32 v4, 5, v1")
    a("v_lshlrev_b32 v4, 1, v4")
    a("v_xor_b32 v3, v3, v4")
    a("v_lshl_add_u32 v11, v3, 4, v2")
    a("s_mul_i32 s46, s44, 5120")
    issue_w(0)
    stamp(a, 14, 1)
    issued = 1
    pre = OPT.get('pre', 2)
    for c in range(1, pre): issue(c); issued += 1
    for c in range(10):
        a(f"s_waitcnt vmcnt({9*(issued-c-1)})")
        if c in (0, 9): stamp(a, {0: 2, 9: 5}[c])
        stamp(a, c + 1, 1)
        a("s_barrier")
        if c == 0: stamp(a, 11, 1)
        while issued < min(10, c + 1 + (OPT.get('dep', 2) if c < OPT.get('depsw', 10) else 3)): issue(issued); issued += 1
    get_nonce(a, 2)
    a("s_branch L_A_done")

AX, AWA, EA = 8, 10, 16
FR = 24
ACC = 96
def gemm_loop(a, isv, epi):
    XB = [FR, FR + 36]
    def rdx(kk, m): sl, st = divmod(kk, 2); return f"ds_read_b128 {vr(XB[kk&1]+4*m,4)}, v{AX+st} offset:{sl*STG + m*2048}"
    def rdw(kk, T): sl, st = divmod(kk, 2); return [f"ds_read_b64_tr_b16 {vr(XB[kk&1]+16+4*T+2*t,2)}, v{AWA+T} offset:{sl*STG + st*10240 + t*256}" for t in range(2)]
    def reads(kk):
        r = rdw(kk, 0) + [rdx(kk, m) for m in range(4)]
        for T in range(1, 5): r += rdw(kk, T)
        return r
    def mfma(kk, T, m):
        b = XB[kk & 1]
        d = vr(ACC + 16*T + 4*m, 4); w = vr(b + 16 + 4*T, 4); x = vr(b + 4*m, 4)
        return f"v_mfma_f32_16x16x32_bf16 {d}, {x}, {w}, {d}" if isv else f"v_mfma_f32_16x16x32_bf16 {d}, {w}, {x}, {d}"
    for r in range(80): a(f"v_mov_b32 v{ACC+r}, 0")
    a(f"s_mov_b32 s40, {2*STG}")
    a("s_mov_b32 s41, 5")
    a("s_barrier")
    stamp(a, 2)
    for r in reads(0): a(r)
    lp = a.label("L_gemm"); last = a.label("L_gemm_last")
    a(".p2align 3")
    a(f"{lp}:")
    for kk in range(4):
        a("s_waitcnt lgkmcnt(0)")
        ms = [mfma(kk, T, m) for T in range(5) for m in range(4)]
        a(ms[0])
        if kk == 1:
            a("s_sub_u32 s41, s41, 1")
            a("s_barrier")
            a("s_cmp_eq_u32 s41, 0")
            a(f"s_cbranch_scc1 {last}")
        if kk == 3:
            for i in range(2): a(f"v_add_u32 v{AX+i}, s40, v{AX+i}")
            for i in range(5): a(f"v_add_u32 v{AWA+i}, s40, v{AWA+i}")
            a("s_sub_u32 s40, 0, s40")
            a("s_barrier")
        nx = reads((kk + 1) & 3)
        for i in range(1, 20):
            if i - 1 < len(nx): a(nx[i-1])
            a(ms[i])
    a(f"s_branch {lp}")
    a(f"{last}:")
    ms = [mfma(1, T, m) for T in range(5) for m in range(4)]
    nx = reads(2)
    for i in range(1, 20):
        if i - 1 < len(nx): a(nx[i-1])
        a(ms[i])
    nx = reads(3)
    a("s_waitcnt lgkmcnt(0)")
    pos = 0
    for T in range(5):
        e = epi(T - 2) if T >= 2 else []
        per = -(-len(e) // 8)
        for i in range(8):
            kk = 2 + (i >> 2)
            if T == 0 and i == 4: a(f"s_waitcnt lgkmcnt({pos - 6})")
            if T == 1 and i == 4: a("s_waitcnt lgkmcnt(0)")
            a(mfma(kk, T, i & 3))
            for _ in range(2):
                if pos < len(nx): a(nx[pos]); pos += 1
            for x in e[per*i:per*(i+1)]: a(x)
    stamp(a, 5)
    for x in epi(3): a(x)
    for x in epi(4): a(x)

def gemm_compute(a):
    a("L_compute:")
    a("v_and_b32 v2, 15, v1")
    a("v_lshrrev_b32 v3, 4, v1")
    a(f"s_and_b32 s42, s{sWAVE}, 1")
    a(f"s_lshr_b32 s43, s{sWAVE}, 1")
    a("s_lshl_b32 s40, s42, 6")
    a("v_add_u32 v4, s40, v2")
    a("v_lshlrev_b32 v4, 7, v4")
    a("v_lshrrev_b32 v5, 1, v2")
    a("v_xor_b32 v5, v5, v3")
    a(f"v_lshl_add_u32 v{AX}, v5, 4, v4")
    a(f"v_xor_b32 v{AX+1}, 64, v{AX}")
    a("v_lshrrev_b32 v4, 5, v1")
    a("v_mul_u32_u24 v4, 5120, v4")
    a("v_and_b32 v5, 1, v3")
    a("v_lshrrev_b32 v6, 2, v2")
    a("v_lshl_add_u32 v6, v5, 3, v6")
    a("v_lshl_add_u32 v4, v6, 6, v4")
    a("v_add_u32 v4, 16384, v4")
    a("v_lshlrev_b32 v5, 2, v5")
    a("v_and_b32 v6, 3, v1")
    a("s_mul_i32 s44, s43, 20")
    def waddr(T, g):
        a(f"v_and_b32 v15, 7, v{g}")
        a("v_xor_b32 v15, v15, v5")
        a("v_lshl_add_u32 v15, v15, 3, v4")
        a(f"v_lshrrev_b32 v{g}, 3, v{g}")
        a(f"v_lshl_add_u32 v{AWA+T}, v{g}, 10, v15")
    a("s_lshl_b32 s45, s26, 2")
    a("s_lshl_b32 s42, s42, 1")
    a("s_add_u32 s42, s42, s45")
    a("s_and_b32 s45, s27, 3")
    a("s_lshl_b32 s45, s45, 3")
    a("s_lshl_b32 s43, s43, 2")
    a("s_add_u32 s43, s43, s45")
    a("s_cmp_ge_u32 s27, 8")
    a("s_cbranch_scc1 L_compute_v")
    for T in range(5):
        if T < 4:
            a(f"s_add_u32 s45, s44, {5*T}")
            a("v_add_u32 v7, s45, v6")
        else:
            a("s_add_u32 s45, s44, 4")
            a("v_mad_u32_u24 v7, v6, 5, s45")
        waddr(T, 7)
    a("s_cmp_ge_u32 s27, 4")
    for reg, k, q in [(44, KV_HEAD, Q_HEAD), (45, TKV, TQ), (46, f32bits(1.0), f32bits(QSCALE)), (47, KV_OFF, Q_OFF), (48, KV_SIZE, Q_SIZE)]:
        a(f"s_mov_b32 s{reg}, {q}")
        a(f"s_cmov_b32 s{reg}, {k}")
    make_srd(a, 28, pWS, "s47", "s48")
    a("s_mul_i32 s47, s43, s44")
    a("s_mul_i32 s48, s42, s45")
    a("s_add_u32 s47, s47, s48")
    a(f"v_lshlrev_b32 v{EA}, 4, v1")
    a(f"v_add_u32 v{EA+1}, s45, v{EA}")
    a("v_lshrrev_b32 v4, 5, v1")
    a("v_mul_lo_u32 v4, v4, s44")
    a("v_and_b32 v5, 31, v1")
    a("v_lshlrev_b32 v5, 3, v5")
    a("v_lshl_add_u32 v4, v4, 1, v5")
    a(f"v_add_u32 v{EA+2}, 1024, v4")
    a(f"v_add_u32 v{EA+3}, s45, v{EA+2}")
    a("s_mov_b32 s48, s47")
    a("s_add_u32 s49, s47, s44")
    def epi_qk(T):
        b = ACC + 16*T; e = []
        for r in range(16): e.append(f"v_mul_f32 v{b+r}, s46, v{b+r}")
        for r in range(8): e.append(f"v_cvt_pk_bf16_f32 v{b+r}, v{b+2*r}, v{b+2*r+1}")
        e.append("s_nop 0")
        for u in range(2):
            e.append(f"v_permlane16_swap_b32 v{b+4*u}, v{b+4*u+2}")
            e.append(f"v_permlane16_swap_b32 v{b+4*u+1}, v{b+4*u+3}")
        for u in range(2):
            if T < 4: e.append(f"buffer_store_dwordx4 {vr(b+4*u,4)}, v{EA+u}, s[28:31], s48 offen sc1")
            else:
                e.append(f"buffer_store_dwordx2 {vr(b+4*u,2)}, v{EA+2+u}, s[28:31], s47 offen sc1")
                e.append(f"buffer_store_dwordx2 {vr(b+4*u+2,2)}, v{EA+2+u}, s[28:31], s49 offen sc1")
        if T < 3: e.append("s_add_u32 s48, s48, s44")
        return e
    gemm_loop(a, False, epi_qk)
    a("s_branch L_A_done")
    a("L_compute_v:")
    for T in range(5):
        a(f"s_add_u32 s45, s44, {4*T}")
        a("v_add_u32 v7, s45, v6")
        waddr(T, 7)
    make_srd(a, 28, pWS, KV_OFF, KV_SIZE)
    a(f"s_mov_b32 s44, {KV_HEAD}")
    a("s_mul_i32 s47, s43, s44")
    a(f"s_mul_i32 s48, s42, {TKV}")
    a("s_add_u32 s47, s47, s48")
    a("v_lshrrev_b32 v7, 5, v1")
    a("v_mul_u32_u24 v7, 640, v7")
    a("v_and_b32 v15, 1, v3")
    a("v_lshl_add_u32 v7, v15, 6, v7")
    a("v_add_u32 v7, 1280, v7")
    for T in range(5):
        a(f"v_add_u32 v4, {16*T}, v2")
        a("v_mul_u32_u24 v5, 3277, v4")
        a("v_lshrrev_b32 v5, 16, v5")
        a("v_mul_u32_u24 v6, 20, v5")
        a("v_sub_u32 v4, v4, v6")
        a("v_and_b32 v6, 28, v4")
        a("v_add_u32 v4, v4, v6")
        a("v_mul_lo_u32 v5, v5, s44")
        a("v_lshl_add_u32 v4, v4, 4, v5")
        a(f"v_add_u32 v{EA+T}, v7, v4")
    def epi_v(T):
        b = ACC + 16*T; e = []
        for r in range(8): e.append(f"v_cvt_pk_bf16_f32 v{b+r}, v{b+2*r}, v{b+2*r+1}")
        e.append("s_nop 0")
        for u in range(2):
            e.append(f"v_permlane32_swap_b32 v{b+4*u}, v{b+4*u+2}")
            e.append(f"v_permlane32_swap_b32 v{b+4*u+1}, v{b+4*u+3}")
        for u in range(2): e.append(f"buffer_store_dwordx4 {vr(b+4*u,4)}, v{EA+T}, s[28:31], s47 offen offset:{u*TKV} sc1")
        return e
    gemm_loop(a, True, epi_v)
    a("s_branch L_A_done")

SWD = [42, 43, 44, 56, 57]
def side_work(a):
    a("s_sub_u32 s53, s2, 192")
    a("s_mul_i32 s53, s53, 3")
    a(f"s_add_u32 s53, s53, s{sWAVE}")
    a("s_sub_u32 s53, s53, 5")
    a("v_lshlrev_b32 v22, 4, v1")
    make_srd(a, 32, pWO, 0, 819200)
    make_srd(a, 28, pWS, SEQ_OFF, WO_OFF + WO_SIZE - SEQ_OFF)
    WR = 32
    for n in range(5):
        if n == 4:
            a("s_cmp_ge_u32 s53, 32")
            a("s_cbranch_scc1 L_sw_wo_ld")
        a(f"s_add_u32 s40, s53, {192*n}")
        a("s_mul_i32 s41, s40, 1639")
        a("s_lshr_b32 s41, s41, 16")
        a("s_mul_i32 s58, s41, 40")
        a("s_sub_u32 s58, s40, s58")
        a("s_mul_i32 s59, s58, 20")
        a("s_mul_i32 s55, s58, 80")
        a("s_sub_u32 s55, s55, %d" % (32*80 - 16))
        a("s_cmp_lt_u32 s58, 32")
        a("s_cselect_b32 s45, 4, 40")
        a("s_cselect_b32 s59, s59, s55")
        a(f"s_mov_b32 s46, {20*1280}")
        a(f"s_cmov_b32 s46, {8*1280}")
        a("v_mul_u32_u24 v4, s45, v3")
        a("v_add_u32 v4, s59, v4")
        a("v_mul_u32_u24 v4, 1280, v4")
        a("s_lshl_b32 s59, s41, 6")
        a("v_lshl_add_u32 v4, v2, 1, v4")
        a("v_add_u32 v4, s59, v4")
        b = WR + 8*n
        for grp in range(2):
            so = "s46" if grp else "0"
            for i in range(4):
                a(f"buffer_load_ushort v{b+4*grp+i}, v4, s[32:35], {so} offen offset:{i*1280}")
        a("s_mul_i32 s59, s41, 52")
        a("s_lshr_b32 s59, s59, 8")
        a("s_mul_i32 s55, s59, 5")
        a("s_sub_u32 s55, s41, s55")
        a("s_mul_i32 s45, s58, 26")
        a("s_lshr_b32 s45, s45, 8")
        a("s_mul_i32 s47, s45, 10")
        a("s_sub_u32 s47, s58, s47")
        a("s_add_u32 s58, s58, 10")
        a("s_cmp_lt_u32 s55, 4")
        a("s_cselect_b32 s55, s55, s45")
        a("s_cselect_b32 s58, s58, s47")
        a("s_lshl_b32 s59, s59, 2")
        a("s_add_u32 s59, s59, s55")
        a("s_mul_i32 s59, s59, 50")
        a("s_add_u32 s59, s59, s58")
        a("s_lshl_b32 s59, s59, 10")
        a(f"s_add_u32 s{SWD[n]}, s59, {WO_OFF - SEQ_OFF}")
    a("L_sw_wo_ld:")
    G = 80
    a("s_mov_b32 s54, s53")
    a("v_lshlrev_b32 v23, 4, v3")
    a(f"s_mov_b32 s55, {f32bits(1.0/2048)}")
    a("v_cmp_gt_u32 vcc, 32, v1")
    a("L_sw_gen:")
    a("s_lshr_b32 s41, s54, 5")
    a("s_and_b32 s58, s54, 31")
    a("s_lshr_b32 s59, s41, 1")
    a("s_lshl_b32 s59, s59, 6")
    a("s_and_b32 s47, s41, 1")
    a("s_add_u32 s59, s59, s47")
    a("v_lshl_add_u32 v4, v2, 1, s59")
    a("s_lshr_b32 s47, s58, 4")
    a("s_mul_i32 s45, s41, 65")
    a("s_add_u32 s45, s45, s58")
    a("s_add_u32 s46, s45, 33")
    a("s_add_u32 s45, s45, s47")
    a("s_lshl_b32 s45, s45, 10")
    a("s_lshl_b32 s46, s46, 10")
    a("s_and_b32 s48, s58, 15")
    a("s_lshl_b32 s48, s48, 5")
    a("s_add_u32 s48, s48, s47")
    a("v_add_u32 v5, s48, v23")
    a("v_mul_u32_u24 v5, v4, v5")
    a("v_cvt_f32_u32 v5, v5")
    a("v_cvt_f32_u32 v4, v4")
    for i in range(8):
        if i: a("v_fma_f32 v5, 2.0, v4, v5")
        a(f"v_mul_f32 v{G+i}, s55, v5")
    for i in range(8): a(f"v_fract_f32 v{G+i}, v{G+i}")
    for i in range(8): a(f"v_cos_f32 v{G+8+i}, v{G+i}")
    a("s_cmp_lg_u32 s58, 0")
    a("s_cbranch_scc1 L_gen_plain")
    a("v_mul_f32 v6, 0x3e800000, v4")
    a("v_fract_f32 v6, v6")
    a(f"v_cndmask_b32 v{G}, v{G}, v6, vcc")
    a("v_cos_f32 v7, v6")
    a(f"v_mov_b32 v{G+25}, 0")
    a(f"v_mov_b32 v{G+26}, 0")
    a(f"v_mov_b32 v{G+27}, 0")
    a("v_cndmask_b32 v7, 0, v7, vcc")
    a(f"v_cvt_pk_bf16_f32 v{G+24}, v7, 0")
    a(f"s_add_u32 s48, s45, {16*1024}")
    a(f"buffer_store_dwordx4 {vr(G+24,4)}, v22, s[28:31], s48 offen sc1")
    a("L_gen_plain:")
    for i in range(8): a(f"v_sin_f32 v{G+i}, v{G+i}")
    for i in range(4): a(f"v_cvt_pk_bf16_f32 v{G+16+i}, v{G+8+2*i}, v{G+9+2*i}")
    for i in range(4): a(f"v_cvt_pk_bf16_f32 v{G+20+i}, v{G+2*i}, v{G+1+2*i}")
    a(f"buffer_store_dwordx4 {vr(G+16,4)}, v22, s[28:31], s45 offen sc1")
    a(f"buffer_store_dwordx4 {vr(G+20,4)}, v22, s[28:31], s46 offen sc1")
    a("s_add_u32 s54, s54, 192")
    a("s_cmp_lt_u32 s54, 544")
    a("s_cbranch_scc1 L_sw_gen")

def side_work_finish(a):
    WR = 32
    l = a.label("L_sw_fin")
    a("s_waitcnt vmcnt(4)")
    for n in range(5):
        if n == 4:
            a("s_cmp_ge_u32 s53, 32")
            a(f"s_cbranch_scc1 {l}")
        b = WR + 8*n
        for i in range(4): a(f"v_lshl_or_b32 v{b+i}, v{b+2*i+1}, 16, v{b+2*i}")
        a(f"buffer_store_dwordx4 {vr(b,4)}, v22, s[28:31], s{SWD[n]} offen sc1")
    a(f"{l}:")

def prep(a):
    a("L_prep:")
    a(f"s_sub_u32 s40, s{sSLOT}, 24")
    a("s_and_b32 s27, s40, 1")
    a("s_lshr_b32 s26, s40, 1")
    a("s_lshl_b32 s26, s26, 3")
    a(f"s_add_u32 s26, s26, s{sXCD}")
    make_srd(a, 36, pWS, AB_OFF, AB_SIZE)
    a(f"s_cmp_ge_u32 s{sWAVE}, 5")
    a("s_cbranch_scc1 L_fold_skip")
    make_srd(a, 28, pBX, 0, X_SIZE)
    a("s_lshr_b32 s42, s26, 1")
    a("s_lshl_b32 s42, s42, 5")
    a("s_and_b32 s43, s26, 1")
    a("s_add_u32 s42, s42, s43")
    a("v_lshrrev_b32 v2, 3, v1")
    a("v_and_b32 v3, 7, v1")
    a("v_lshl_add_u32 v4, v2, 1, s42")
    a("v_mul_u32_u24 v5, 1280, v4")
    a("v_lshlrev_b32 v6, 4, v3")
    a("v_add_u32 v10, v5, v6")
    a("v_sub_u32 v7, v6, v5")
    a(f"s_lshl_b32 s44, s27, 1")
    a(f"s_add_u32 s44, s44, s{sWAVE}")
    a("s_cmp_ge_u32 s44, 5")
    a("s_cselect_b32 s45, 5, 0")
    a("s_sub_u32 s44, s44, s45")
    a("s_lshl_b32 s44, s44, 7")
    a("s_add_u32 s45, s44, 20480")
    a(f"v_add_u32 v11, {2048*1280}, v7")
    a(f"v_add_u32 v12, {1024*1280}, v7")
    a("v_cmp_ne_u32 vcc, 0, v4")
    a(f"v_mov_b32 v8, {HUGE}")
    a(f"v_add_u32 v9, {1024*1280}, v10")
    a("v_cndmask_b32 v13, v8, v9, vcc")
    LD = 32
    for hf in range(2):
        for r in range(4): a(f"buffer_load_dwordx4 {vr(LD+8*r+4*hf,4)}, v{10+r}, s[28:31], s44 offen offset:{640*hf}")
    a("v_subrev_u32 v11, 20480, v11")
    a("v_subrev_u32 v12, 20480, v12")
    for hf in range(2):
        for r, (vv, so) in enumerate([(10, 45), (11, 44), (12, 44), (9, 45)]):
            a(f"buffer_load_dwordx4 {vr(LD+32+8*r+4*hf,4)}, v{vv}, s[28:31], s{so} offen offset:{640*hf}")
    XL = 96
    a("s_cmp_lg_u32 s26, 0")
    a("s_cbranch_scc1 L_fold_nx")
    a(f"v_add_u32 v14, {512*1280}, v6")
    a(f"v_add_u32 v15, {1536*1280}, v6")
    a("v_cndmask_b32 v14, v14, v8, vcc")
    a("v_cndmask_b32 v15, v15, v8, vcc")
    for r in range(2):
        for hf in range(2):
            a(f"buffer_load_dwordx4 {vr(XL+8*r+4*hf,4)}, v{14+r}, s[28:31], s44 offen offset:{640*hf}")
    a("L_fold_nx:")
    a("v_and_b32 v5, 3, v2")
    a("v_lshrrev_b32 v4, 2, v2")
    a("v_lshl_or_b32 v5, v4, 3, v5")
    a("v_xor_b32 v5, v5, v3")
    a("v_and_b32 v4, 1, v3")
    a("v_lshl_add_u32 v5, v4, 5, v5")
    a("v_lshlrev_b32 v5, 4, v5")
    a("v_lshrrev_b32 v4, 1, v3")
    a("v_lshl_add_u32 v5, v4, 10, v5")
    a("s_lshl_b32 s45, s44, 5")
    a("v_add_u32 v16, s45, v5")
    a("v_xor_b32 v18, 64, v16")
    a("v_add_u32 v5, s44, v6")
    a("v_add_u32 v17, 40960, v5")
    a("v_lshlrev_b32 v6, 4, v1")
    a("v_add_u32 v6, 43008, v6")
    a("v_cndmask_b32 v17, v17, v6, vcc")
    a("L_fold_skip:")
    a("v_and_b32 v2, 31, v1")
    a("v_lshrrev_b32 v3, 5, v1")
    a("v_lshlrev_b32 v15, 4, v1")
    a(f"s_lshr_b32 s40, s{sWAVE}, 1")
    a("s_add_u32 s40, s40, 2")
    a(f"s_and_b32 s41, s{sWAVE}, 1")
    a(f"s_cmp_lt_u32 s{sWAVE}, 4")
    a(f"s_cselect_b32 s49, s{sWAVE}, s40")
    a("s_cselect_b32 s50, 0, s41")
    a("s_lshl_b32 s54, s49, 6")
    a("s_add_u32 s54, s54, s27")
    a("v_lshl_add_u32 v4, v2, 1, s54")
    AU = 10; SB = [[176, 184], [192, 200]]; HB = [[208, 212], [216, 220]]; UB = [72, 84, 96, 108]; ACC3 = [224, 240, 32]; PH = 112
    a("s_mul_i32 s52, s50, 20480")
    for jj in range(4):
        a(f"v_xor_b32 v5, {2*jj}, v3")
        a("v_xor_b32 v5, v5, v2")
        a("v_lshl_add_u32 v5, v3, 5, v5")
        a("v_lshlrev_b32 v5, 4, v5")
        a(f"v_add_u32 v5, {jj*1024}, v5")
        a(f"v_add_u32 v{AU+jj}, s52, v5")
    a(f"v_lshlrev_b32 v{AU+4}, 4, v3")
    a(f"v_add_u32 v{AU+4}, 40960, v{AU+4}")
    a(f"s_mov_b32 s52, {f32bits(1.0/640)}")
    a("s_cmp_lg_u32 s50, 0")
    a("s_cselect_b32 s53, 0x3e800000, 0")
    a("v_lshlrev_b32 v5, 3, v3")
    a("v_mul_u32_u24 v5, v4, v5")
    a("v_cvt_f32_u32 v5, v5")
    a("v_cvt_f32_u32 v4, v4")
    a("v_mul_f32 v6, 0x41800000, v4")
    for i in range(8):
        if i: a("v_add_f32 v5, v5, v4")
        a(f"v_mul_f32 v{PH+i}, s52, v5")
        a("v_sub_f32 v7, v5, v6")
        a(f"v_mul_f32 v{PH+8+i}, s52, v7")
    a("v_mul_f32 v6, s52, v6")
    a("v_fract_f32 v6, v6")
    for i in range(16): a(f"v_fract_f32 v{PH+i}, v{PH+i}")
    a("v_cos_f32 v19, v6")
    for i in range(16): a(f"v_sin_f32 v{SB[1][0]+i}, v{PH+i}")
    for i in range(16): a(f"v_subrev_f32 v{PH+i}, s53, v{PH+i}")
    for i in range(16): a(f"v_cos_f32 v{SB[0][0]+i}, v{PH+i}")
    a("v_add_f32 v19, v19, v19")
    for r in range(32): a(f"v_mov_b32 v{224+r}, 0")
    def cvts(jb, g): return [f"v_cvt_pk_bf16_f32 v{HB[jb][g]+d}, v{SB[jb][g]+2*d}, v{SB[jb][g]+2*d+1}" for d in range(4)]
    def rot(jb, cur): return [f"v_fma_f32 v{SB[jb][cur^1]+i}, v19, v{SB[jb][cur]+i}, -v{SB[jb][cur^1]+i}" for i in range(8)]
    for x in cvts(0, 0) + cvts(1, 0): a(x)
    a(f"s_cmp_lt_u32 s{sWAVE}, 5")
    a("s_cbranch_scc1 L_fold_go")
    side_work(a)
    side_work_finish(a)
    a("s_branch L_fold_done")
    a("L_fold_go:")
    a("s_cmp_lg_u32 s27, 0")
    a("s_cselect_b32 s46, -1.0, 1.0")
    a("s_mov_b32 s47, s46")
    a("s_mov_b32 s48, 0xffff0000")
    T = 112; R = 144; H = 20
    ng = "neg_lo:[0,1] neg_hi:[0,1]"
    def dfold(src, dst):
        for d in range(4):
            a(f"v_lshlrev_b32 v{dst+2*d}, 16, v{src+d}")
            a(f"v_and_b32 v{dst+2*d+1}, s48, v{src+d}")
            a(f"v_lshlrev_b32 v{H+2*(d&1)}, 16, v{src+4+d}")
            a(f"v_and_b32 v{H+2*(d&1)+1}, s48, v{src+4+d}")
            a(f"v_pk_fma_f32 {vr(dst+2*d,2)}, {vr(H+2*(d&1),2)}, s[46:47], {vr(dst+2*d,2)}")
    for n in range(2):
        a("s_waitcnt vmcnt(%d)" % (8 if n == 0 else 0))
        if n == 0: stamp(a, 9)
        b = LD + 32*n
        for r in range(4): dfold(b + 8*r, T + 8*r)
        for d in range(4):
            p = lambda r: vr(T+8*r+2*d, 2)
            q = lambda r: vr(R+8*r+2*d, 2)
            a(f"v_pk_add_f32 {q(0)}, {p(0)}, {p(1)}")
            a(f"v_pk_add_f32 {q(1)}, {p(0)}, {p(1)} {ng}")
            a(f"v_pk_add_f32 {q(2)}, {p(2)}, {p(3)}")
            a(f"v_pk_add_f32 {q(3)}, {p(2)}, {p(3)} {ng}")
            a(f"v_pk_add_f32 {p(0)}, {q(0)}, {q(2)}")
            a(f"v_pk_add_f32 {p(1)}, {q(0)}, {q(2)} {ng}")
            a(f"v_pk_add_f32 {p(2)}, {q(1)}, {q(3)} {ng}")
            a(f"v_pk_add_f32 {p(3)}, {q(1)}, {q(3)}")
        if n == 0:
            a("s_cmp_lg_u32 s26, 0")
            a("s_cbranch_scc1 L_fold_sp")
            a("s_waitcnt vmcnt(0)")
            dfold(XL, R); dfold(XL + 8, R + 8)
            for d in range(4):
                a(f"v_pk_add_f32 {vr(R+16+2*d,2)}, {vr(R+2*d,2)}, {vr(R+8+2*d,2)}")
                a(f"v_pk_add_f32 {vr(R+2*d,2)}, {vr(R+2*d,2)}, {vr(R+8+2*d,2)} {ng}")
            for e in range(8): a(f"v_cndmask_b32 v{T+24+e}, v{R+e}, v{T+24+e}, vcc")
            for d in range(4): a(f"v_cvt_pk_bf16_f32 v{R+d}, v{R+16+2*d}, v{R+17+2*d}")
            a(f"ds_write_b128 v17, {vr(R,4)}")
            a("L_fold_sp:")
        for i in range(4):
            for d in range(4): a(f"v_cvt_pk_bf16_f32 v{b+4*i+d}, v{T+8*i+2*d}, v{T+8*i+2*d+1}")
            a(f"ds_write_b128 v{16+2*n}, {vr(b+4*i,4)} offset:{(i>>1)*20480 + (i&1)*256}")
    a("L_fold_done:")
    for r in range(16): a(f"v_mov_b32 v{32+r}, 0")
    a("s_waitcnt lgkmcnt(0)")
    stamp(a, 14)
    a("s_barrier")
    stamp(a, 2)
    a("s_mul_i32 s42, s27, 6")
    a("s_add_u32 s42, s42, s49")
    a("s_cmp_gt_u32 s42, 10")
    a("s_cbranch_scc1 L_prep_done")
    def ureads(j, kinds):
        jj = j & 3; o = (j >> 2) * 4096; b = UB[j & 3]; r = []
        for k in kinds:
            if k == 2: r.append(f"ds_read_b128 {vr(b+8,4)}, v{AU+4} offset:{j*32}")
            else: r.append(f"ds_read_b128 {vr(b+4*k,4)}, v{AU+jj} offset:{o + k*20480}")
        return r
    a("s_mov_b32 s45, 5")
    a("s_or_b32 s51, s26, s50")
    a("s_cmp_eq_u32 s51, 0")
    a("s_cselect_b32 s40, 1, 0")
    a(f"s_cmp_lt_u32 s{sWAVE}, 4")
    a("s_cselect_b32 s41, 2, 0")
    a("s_add_u32 s40, s40, s41")
    variants = [[0], [0, 2], [0, 1], [0, 1, 2]]
    for v in range(1, 4):
        a(f"s_cmp_eq_u32 s40, {v}")
        a(f"s_cbranch_scc1 L_f1_v{v}")
    for v, kinds in enumerate(variants):
        a(f"L_f1_v{v}:")
        nm = len(kinds)
        for x in ureads(0, kinds) + ureads(1, kinds): a(x)
        a(f"L_f1_loop{v}:")
        for jj in range(4):
            buf = jj & 1
            va = rot(0, buf) + cvts(0, buf ^ 1)
            if 1 in kinds: va = rot(0, buf) + rot(1, buf) + cvts(0, buf ^ 1) + cvts(1, buf ^ 1)
            rd = ureads(jj + 2, kinds)
            a(f"s_waitcnt lgkmcnt({nm})")
            a("s_nop 0")
            per = len(va) // nm
            for m, k in enumerate(kinds):
                d = vr(ACC3[k], 16)
                a(f"v_mfma_f32_32x32x16_bf16 {d}, {vr(UB[jj]+4*k,4)}, {vr(HB[k & 1][buf],4)}, {d}")
                a(rd[m])
                for x in va[per*m:per*m+per]: a(x)
        for r in range(4): a(f"v_add_u32 v{AU+r}, 4096, v{AU+r}")
        if 2 in kinds: a(f"v_add_u32 v{AU+4}, 128, v{AU+4}")
        a("s_sub_u32 s45, s45, 1")
        a("s_cmp_lg_u32 s45, 0")
        a(f"s_cbranch_scc1 L_f1_loop{v}")
        if v < 3: a("s_branch L_f1_done")
    a("L_f1_done:")
    stamp(a, 5)
    a("s_mul_i32 s43, s42, 33")
    a("s_and_b32 s44, s26, 1")
    a("s_lshl_b32 s44, s44, 4")
    a("s_lshr_b32 s45, s26, 1")
    a("s_add_u32 s44, s44, s45")
    a("s_add_u32 s44, s44, s43")
    a(f"s_mul_i32 s45, s50, {22*33}")
    a("s_add_u32 s44, s44, s45")
    a("s_lshl_b32 s44, s44, 10")
    a("s_waitcnt lgkmcnt(0)")
    a("s_nop 5")
    for jb in range(2):
        b = ACC3[jb]
        if jb == 1:
            a(f"s_cmp_ge_u32 s{sWAVE}, 4")
            a("s_cbranch_scc1 L_f1_one")
        for r in range(8): a(f"v_cvt_pk_bf16_f32 v{b+r}, v{b+2*r}, v{b+2*r+1}")
        for hf in range(2):
            a(f"buffer_store_dwordx4 {vr(b+4*hf,4)}, v15, s[36:39], s44 offen sc1")
            a(f"s_add_u32 s44, s44, {11*33*1024}")
    a("L_f1_one:")
    a("s_cmp_lg_u32 s51, 0")
    a("s_cbranch_scc1 L_prep_done")
    b = ACC3[2]
    for r in range(4): a(f"v_cvt_pk_bf16_f32 v{b+r}, v{b+2*r}, v{b+2*r+1}")
    a("s_add_u32 s43, s43, 32")
    a("s_lshl_b32 s43, s43, 10")
    a(f"buffer_store_dwordx4 {vr(b,4)}, v15, s[36:39], s43 offen sc1")
    a("L_prep_done:")
    a(f"s_cmp_lt_u32 s{sWAVE}, 4")
    a("s_cbranch_scc1 L_A_done")
    get_nonce(a, 2)

W_PROG, W_GO, W_CNT, W_PASS, W_XCH, W_NON = 0, 4, 8, 16, 32, 48
def a_done(a):
    a("L_A_done:")
    stamp(a, 6)
    a(f"v_mov_b32 v23, {LDS_PROG}")
    a(f"s_cmp_lg_u32 s{sWAVE}, 4")
    a("s_cbranch_scc1 L_A_bar")
    a(f"v_mov_b32 v2, s{sNON}")
    a(f"v_mov_b32 v3, s{sNON+1}")
    a(f"ds_write_b64 v23, v[2:3] offset:{W_NON}")
    a("L_A_bar:")
    a("s_waitcnt lgkmcnt(0)")
    a("s_barrier")
    stamp(a, 4)
    a(f"s_lshl_b32 s26, s{sXCD}, 2")
    a(f"s_and_b32 s27, s{sSLOT}, 3")
    a("s_add_u32 s26, s26, s27")
    a("s_lshr_b32 s27, s2, 5")
    a(f"s_cmp_ge_u32 s{sWAVE}, 4")
    a("s_cbranch_scc1 L_aux")

def drained(a, vt):
    a(f"v_mov_b32 v{vt}, 1")
    a("s_mov_b64 exec, 1")
    a(f"ds_add_u32 v23, v{vt} offset:{W_CNT}")
    a("s_mov_b64 exec, -1")

def attention(a):
    SL = OPT.get('slot', 1)
    AKA, AKB, AV, AKB2 = 4, 5, 168, 172
    AREGS = [AKA, AV, AV+1, AV+2, AV+3] + ([AKB2, AKB2+1] if SL else [AKB])
    QA = [8, 14]
    NEG = [32, 48]; S = [64, 80]; O = [96, 112]; P = 128
    KB = [136, 142]; VB = [148, 156]
    PR = 164
    a("L_attn:")
    a(f"ds_read_b32 v24, v23 offset:{W_GO}")
    a(f"ds_read_b64 v[26:27], v23 offset:{W_NON}")
    a(f"s_setprio {OPT.get('pattn', 2)}")
    a(f"s_mul_i32 s40, s26, {Q_HEAD}")
    a(f"s_add_u32 s40, s40, {Q_OFF}")
    make_srd(a, 28, pWS, "s40", Q_HEAD)
    a(f"s_mul_i32 s40, s26, {KV_HEAD}")
    make_srd(a, 32, pWS, "s40", KV_HEAD)
    a("v_and_b32 v2, 31, v1")
    a("v_lshrrev_b32 v3, 5, v1")
    a(f"v_lshlrev_b32 v{AKA}, 4, v1")
    a(f"v_lshlrev_b32 v{AKB}, 3, v2")
    a(f"v_add_u32 v{AKB}, 1024, v{AKB}")
    a(f"v_mov_b32 v20, {HUGE}")
    a("v_cmp_gt_u32 vcc, 32, v1")
    a("s_lshl_b32 s41, s27, 3")
    a(f"s_lshl_b32 s42, s{sWAVE}, 1")
    a("s_add_u32 s41, s41, s42")
    a(f"v_cndmask_b32 v20, v20, v{AKB}, vcc")
    a(f"s_mul_i32 s42, s41, {TQ}")
    a("v_and_b32 v21, 28, v2")
    a("v_add_u32 v21, v21, v2")
    a("v_lshl_add_u32 v21, v3, 2, v21")
    a("v_lshlrev_b32 v21, 4, v21")
    a("v_add_u32 v29, 1280, v21")
    a("s_mov_b32 s48, 0x000fffff")
    a("s_mov_b32 s49, 0x000fffff")
    a("s_mov_b32 s52, 0x07060302")
    a("s_waitcnt lgkmcnt(0)")
    a("v_readfirstlane_b32 s47, v24")
    a(f"v_readfirstlane_b32 s{sNON}, v26")
    a(f"v_readfirstlane_b32 s{sNON+1}, v27")
    a("s_mov_b32 s50, s47")
    a("s_cmp_lg_u32 s47, 0")
    a("s_cbranch_scc1 L_attn_go")
    a("s_waitcnt vmcnt(0)")
    stamp(a, 3)
    drained(a, 24)
    a("L_attn_spin:")
    a(f"s_sleep {OPT.get('asl', 1)}")
    a(f"ds_read_b32 v24, v23 offset:{W_GO}")
    a("s_waitcnt lgkmcnt(0)")
    a("v_readfirstlane_b32 s47, v24")
    a("s_nop 0")
    a("s_cmp_eq_u32 s47, 0")
    a("s_cbranch_scc1 L_attn_spin")
    a("L_attn_go:")
    stamp(a, 7); stamp(a, 7, 2); stamp_real(a, 8, 2)
    a("s_sub_u32 s47, s47, 1")
    a(f"s_mul_i32 s47, s47, {4*TKV}")
    for q in range(2):
        a(f"buffer_load_dwordx4 {vr(QA[q],4)}, v{AKA}, s[28:31], s42 offen offset:{q*TQ} sc1")
        a(f"buffer_load_dwordx2 {vr(QA[q]+4,2)}, v20, s[28:31], s42 offen offset:{q*TQ} sc1")
    a(f"buffer_load_dwordx4 {vr(KB[0],4)}, v{AKA}, s[32:35], s47 offen sc1")
    if SL:
        for b in KB:
            a(f"v_mov_b32 v{b+4}, 0x3f803f80")
            a(f"v_mov_b32 v{b+5}, 0x3f80")
        a("s_mov_b32 exec_hi, 0")
    a(f"buffer_load_dwordx2 {vr(KB[0]+4,2)}, v{AKB}, s[32:35], s47 offen sc1")
    if SL: a("s_mov_b64 exec, -1")
    a("v_mov_b32 v24, 0x3f803f80")
    a("v_cmp_eq_u32 vcc, 20, v2")
    a(f"s_add_u32 s43, s47, {TKV}")
    a("s_nop 0")
    a("v_cndmask_b32 v24, 0, v24, vcc")
    for r in range(16): a(f"v_mov_b32 v{VB[0]+r}, v24")
    a(f"buffer_load_dwordx4 {vr(KB[1],4)}, v{AKA}, s[32:35], s43 offen sc1")
    if SL: a("s_mov_b32 exec_hi, 0")
    a(f"buffer_load_dwordx2 {vr(KB[1]+4,2)}, v{AKB}, s[32:35], s43 offen sc1")
    a("s_mov_b64 exec, s[48:49]")
    a(f"buffer_load_dwordx4 {vr(VB[0],4)}, v29, s[32:35], s47 offen sc1")
    a(f"buffer_load_dwordx4 {vr(VB[0]+4,4)}, v29, s[32:35], s47 offen offset:640 sc1")
    a(f"buffer_load_dwordx4 {vr(VB[1],4)}, v29, s[32:35], s43 offen sc1")
    a(f"buffer_load_dwordx4 {vr(VB[1]+4,4)}, v29, s[32:35], s43 offen offset:640 sc1")
    a("s_mov_b64 exec, -1")
    a("s_cmp_eq_u32 s50, 0")
    a("s_cbranch_scc1 L_attn_cnt")
    a("s_waitcnt vmcnt(12)")
    stamp(a, 3)
    drained(a, 24)
    a("L_attn_cnt:")
    a("v_mov_b32 v22, 5120")
    if OPT.get('zr', 1):
        a("v_cmp_lt_u32 vcc, 20, v2")
        a("v_mov_b32 v21, 5136")
        a("s_nop 0")
        a("v_cndmask_b32 v22, v22, v21, vcc")
    a("v_cmp_gt_u32 vcc, 20, v2")
    for i in range(4): a(f"v_add_u32 v{AV+i}, {(i>>1)*TKV + (i&1)*640}, v29")
    for i in range(4): a(f"v_cndmask_b32 v{AV+i}, v22, v{AV+i}, vcc")
    if SL:
        a("v_cmp_gt_u32 vcc, 32, v1")
        a("v_mov_b32 v22, 5152")
        a(f"v_add_u32 v21, {TKV}, v{AKB}")
        a(f"v_cndmask_b32 v{AKB2}, v22, v{AKB}, vcc")
        a(f"v_cndmask_b32 v{AKB2+1}, v22, v21, vcc")
    make_srd(a, 36, pWS, O_OFF, O_SIZE)
    for q in range(2):
        for r in range(16): a(f"v_mov_b32 v{O[q]+r}, 0")
    LOOPED = [False]
    mm16 = "v_mfma_f32_32x32x16_bf16"; mm8 = "v_mfma_f32_32x32x8_bf16"
    def M1(s, t, q, c): return "s_nop 1" if OPT.get('nom1') and c == "0" and LOOPED[0] else f"{mm16} {vr(s,16)}, {vr(KB[t&1],4)}, {vr(QA[q],4)}, {c}"
    def M2(s, t, q): return "s_nop 0" if OPT.get('nom2') and LOOPED[0] else f"{mm8} {vr(s,16)}, {vr(KB[t&1]+4,2)}, {vr(QA[q]+4,2)}, {vr(s,16)}"
    def M3(t, q): return "s_nop 1" if OPT.get('nopv') else f"{mm16} {vr(O[q],16)}, {vr(VB[t&1],4)}, {vr(P,4)}, {vr(O[q],16)}"
    def M4(t, q): return "s_nop 1" if OPT.get('nopv') else f"{mm16} {vr(O[q],16)}, {vr(VB[t&1]+4,4)}, {vr(P+4,4)}, {vr(O[q],16)}"
    def rowmax(src, dst, first):
        if first:
            a(f"v_max3_f32 v{dst}, v{src}, v{src+1}, v{src+2}")
            a(f"v_max_f32 v{dst}, v{dst}, v{src+15}")
            rng = range(3, 15, 2)
        else: rng = range(0, 16, 2)
        for r in rng: a(f"v_max3_f32 v{dst}, v{dst}, v{src+r}, v{src+r+1}")
    def finish_neg(add):
        a("v_mov_b32 v26, v24")
        a("v_mov_b32 v27, v25")
        a("s_nop 1")
        a("v_permlane32_swap_b32 v24, v26")
        a("v_permlane32_swap_b32 v25, v27")
        a("s_nop 1")
        a("v_max_f32 v24, v24, v26")
        a("v_max_f32 v25, v25, v27")
        if not SL:
            for q in range(2):
                a(f"v_sub_f32 v{NEG[q]}, {add}, v{24+q}")
                for r in range(1, 16): a(f"v_mov_b32 v{NEG[q]+r}, v{NEG[q]}")
            return
        a("s_mov_b32 s45, 0xffff0000")
        a("s_mov_b32 s46, 0x07060302")
        for q in range(2):
            a(f"v_sub_f32 v{24+q}, {add}, v{24+q}")
        for q in range(2):
            a(f"v_and_b32 v26, s45, v{24+q}")
            a(f"v_sub_f32 v27, v{24+q}, v26")
            a("v_and_b32 v28, s45, v27")
            a("v_sub_f32 v27, v27, v28")
            a("v_perm_b32 v26, v28, v26, s46")
            a("v_lshrrev_b32 v27, 16, v27")
            a("s_mov_b32 exec_lo, 0")
            a(f"v_mov_b32 v{QA[q]+4}, v26")
            a(f"v_mov_b32 v{QA[q]+5}, v27")
            a("s_mov_b64 exec, -1")
        a("s_nop 1")
    CNEG = lambda q: "0" if SL else vr(NEG[q], 16)
    a("s_waitcnt vmcnt(6)")
    stamp(a, 8)
    for q in range(2): a(M1(S[q], 0, q, "0"))
    for q in range(2): a(M2(S[q], 0, q))
    a("s_nop 11")
    rowmax(S[0], 24, True)
    a("s_nop 1")
    rowmax(S[1], 25, True)
    finish_neg(hex(f32bits(-float(OPT.get('off', 100)))))
    a(M1(S[0], 0, 0, CNEG(0)))
    a(M2(S[0], 0, 0))
    a(f"ds_read_b32 v{PR}, v23")
    a("s_waitcnt vmcnt(0)")
    a("s_nop 9")
    def check(need):
        l = a.label("L_chk"); ok = a.label("L_chkok")
        a(f"{l}:")
        a("s_waitcnt lgkmcnt(0)")
        a(f"v_readfirstlane_b32 s44, v{PR}")
        a("s_nop 0")
        a(f"s_cmp_ge_u32 s44, {need}")
        a(f"s_cbranch_scc1 {ok}")
        a(f"ds_read_b32 v{PR}, v23")
        a(f"s_branch {l}")
        a(".p2align 3")
        a(f"{ok}:")
    def unit(t, q, s4=(), s1=(), s2=(), s3=(), first=False, nonext=False):
        s = S[q]; sn = S[q ^ 1]
        t1, q1 = (t, 1) if q == 0 else (t + 1, 0)
        tp, qp = (t - 1, 1) if q == 0 else (t, 0)
        E = lambda r: a(f"v_exp_f32 v{s+r}, v{s+r}")
        C = lambda j: a(f"v_perm_b32 v{P+j}, v{s+2*j+1}, v{s+2*j}, s52" if OPT.get('perm') else f"v_cvt_pk_bf16_f32 v{P+j}, v{s+2*j}, v{s+2*j+1}")
        al = OPT.get('al', 1)
        EW = lambda r: a(f"v_exp_f32_e64 v{s+r}, v{s+r}") if al else E(r)
        odd = lambda xs: sum(1 for x in xs if x.startswith("s_")) & 1
        E(0); E(1)
        if not first: a(M4(tp, qp))
        for x in s4: a(x)
        (E if odd(s4) else EW)(2); E(3); E(4)
        if not nonext: a(M1(sn, t1, q1, CNEG(q1)))
        for x in s1: a(x)
        EW(5); E(6); E(7)
        for j in range(4): C(j)
        if not nonext: a(M2(sn, t1, q1))
        for x in s2: a(x)
        EW(8)
        for r in range(9, 13): E(r)
        a(M3(t, q))
        for x in s3: a(x)
        (E if odd(s3) else EW)(13); E(14); E(15)
        for j in range(4, 8): C(j)
    def period(t, o, extra3=()):
        if OPT.get('nods') and LOOPED[0]: o = None
        if o is None:
            if extra3:
                unit(t, 1, s4=["s_waitcnt lgkmcnt(0)"]); unit(t + 1, 0, s3=extra3); return
            unit(t, 1, s4=["s_waitcnt lgkmcnt(0)"]); unit(t + 1, 0); return
        kb = KB[t & 1]; vb = VB[t & 1]
        ok = lds_tile(o + 2); ov = (o >> 1) * LPAIR; av = AV + 2*(o & 1)
        unit(t, 1, s4=["s_waitcnt lgkmcnt(0)"],
             s1=[f"ds_read_b128 {vr(kb,4)}, v{AKA} offset:{ok}"],
             s3=[f"ds_read_b64 {vr(kb+4,2)}, v{AKB2+(o&1)} offset:{ov}" if SL else f"ds_read_b64 {vr(kb+4,2)}, v{AKB} offset:{ok}"])
        unit(t + 1, 0, s4=[f"ds_read_b128 {vr(vb,4)}, v{av} offset:{ov}"],
             s1=[f"ds_read_b128 {vr(vb+4,4)}, v{av+1} offset:{ov}"], s3=extra3)
    rdp = [f"ds_read_b32 v{PR}, v23"]
    a(".p2align 3")
    unit(0, 0, first=True)
    stamp(a, 9)
    check(1)
    for t in range(6):
        if t == 2: check(2)
        period(t, t, rdp if t in (1, 5) else ())
    for r in AREGS: a(f"v_add_u32 v{r}, {3*LPAIR}, v{r}")
    a(f"s_lshl_b32 s45, s{sWAVE}, 2")
    a("v_add_u32 v24, s45, v23")
    a(f"ds_write_b32 v24, v23 offset:{W_PASS}")
    a("s_mov_b32 s45, 2")
    a("s_mov_b32 s46, 7")
    stamp(a, 10); stamp(a, 10, 2); stamp_real(a, 12, 2)
    LOOPED[0] = True
    def body(chk):
        for k in range(8):
            ex = ()
            if k == 7: ex = (rdp if chk else [])
            if k == 6: ex = ["s_sub_u32 s46, s46, 1"]
            if k == 7 and not chk: ex = ["s_cmp_lg_u32 s46, 0"]
            period(k, k, ex)
        for r in AREGS: a(f"v_add_u32 v{r}, {4*LPAIR}, v{r}")
    a("s_cmp_eq_u32 s44, 16")
    a("s_cbranch_scc1 L_attn_fast")
    a(".p2align 3")
    a("L_attn_loop:")
    a("s_add_u32 s45, s45, 2")
    check("s45")
    body(True)
    a("s_cmp_eq_u32 s46, 0")
    a("s_cbranch_scc1 L_attn_last")
    a("s_cmp_lg_u32 s44, 16")
    a("s_cbranch_scc1 L_attn_loop")
    a(".p2align 3")
    a("L_attn_fast:")
    body(False)
    a("s_cbranch_scc1 L_attn_fast")
    a(".p2align 3")
    a("L_attn_last:")
    period(62, None)
    unit(63, 1, nonext=True)
    a("s_nop 1")
    a(M4(63, 1))
    stamp(a, 11); stamp(a, 11, 2); stamp_real(a, 13, 2)
    a("L_attn_post:")
    a("s_lshl_b32 s42, s41, 5")
    a("s_add_u32 s42, s42, s26")
    a("s_mul_i32 s42, s42, 1280")
    a("v_lshlrev_b32 v21, 4, v1")
    for q in range(2):
        a(f"v_mov_b32 v{24+q}, v{O[q]+8}")
        a(f"v_mov_b32 v26, v{O[q]+8}")
        a("s_nop 1")
        a(f"v_permlane32_swap_b32 v26, v{24+q}")
        a("s_nop 0")
        a(f"v_rcp_f32 v26, v{24+q}")
        a("s_nop 0")
        for r in range(12): a(f"v_mul_f32 v{S[q]+r}, v{O[q]+r}, v26")
        for r in range(6): a(f"v_cvt_pk_bf16_f32 v{S[q]+r}, v{S[q]+2*r}, v{S[q]+2*r+1}")
        a(f"buffer_store_dwordx4 {vr(S[q],4)}, v21, s[36:39], s42 offen sc1")
        a(f"buffer_store_dwordx2 {vr(S[q]+4,2)}, v20, s[36:39], s42 offen sc1")
        if q == 0: a(f"s_add_u32 s42, s42, {32*1280}")
    a("s_cmp_eq_u32 s46, 0")
    a("s_cbranch_scc0 L_attn_fin")
    for q in range(2):
        a(f"v_max3_f32 v{30+q}, abs(v{O[q]}), abs(v{O[q]+1}), abs(v{O[q]+2})")
        a(f"v_mul_f32 v{26+q}, 0, v{24+q}")
    for r in range(12):
        for q in range(2): a(f"v_fma_f32 v{26+q}, v{O[q]+r}, 0, v{26+q}")
    for q in range(2):
        a(f"v_max3_f32 v{30+q}, v{30+q}, abs(v{O[q]+3}), abs(v{O[q]+4})")
        a(f"v_max3_f32 v{30+q}, v{30+q}, abs(v{O[q]+5}), abs(v{O[q]+6})")
        a(f"v_max_f32 v{30+q}, v{30+q}, abs(v{O[q]+7})")
    a("v_max_f32 v24, v24, v25")
    a("v_min_f32 v30, v30, v31")
    a("v_mov_b32 v28, 0x76800000")
    a("v_mov_b32 v31, 0x08800000")
    a("v_cmp_u_f32 s[44:45], v26, v27")
    a("v_cmp_nlt_f32 vcc, v24, v28")
    a("v_cmp_lt_f32 s[50:51], v30, v31")
    a("s_nop 1")
    a("s_or_b64 vcc, vcc, s[44:45]")
    a("s_or_b64 vcc, vcc, s[50:51]")
    if OPT.get('forcefb'): a("s_mov_b64 vcc, -1")
    a("s_cbranch_vccnz L_attn_fallback")
    a("L_attn_fin:")
    a("s_lshl_b32 s40, s2, 2")
    a(f"s_add_u32 s40, s40, s{sWAVE}")
    a(f"s_add_u32 s40, s40, {FB}")
    a("s_lshl_b32 s40, s40, 7")
    for i in range(4): a(f"v_mov_b32 v{8+i}, s{sNON+(i&1)}")
    a("s_waitcnt vmcnt(0)")
    stamp(a, 12)
    a("s_mov_b64 exec, 0xff")
    a(f"buffer_store_dwordx4 v[8:11], v21, {sr(sFL,4)}, s40 offen sc1")
    a("s_mov_b64 exec, -1")
    a("s_barrier")
    a("s_branch L_end")
    a("L_attn_fallback:")
    a("s_waitcnt vmcnt(0)")
    for r in ((AKA,) if SL else (AKA, AKB)): a(f"v_subrev_u32 v{r}, {31*LPAIR}, v{r}")
    if SL:
        a("s_mov_b32 exec_lo, 0")
        for q in range(2):
            a(f"v_mov_b32 v{QA[q]+4}, 0")
            a(f"v_mov_b32 v{QA[q]+5}, 0")
        a("s_mov_b64 exec, -1")
    a("v_mov_b32 v24, 0xff800000")
    a("v_mov_b32 v25, 0xff800000")
    a("s_mov_b32 s46, 0")
    a("L_fb_max:")
    a(f"buffer_load_dwordx4 {vr(KB[0],4)}, v{AKA}, s[32:35], s46 offen sc1")
    if SL: a("s_mov_b32 exec_hi, 0")
    a(f"buffer_load_dwordx2 {vr(KB[0]+4,2)}, v{AKB}, s[32:35], s46 offen sc1")
    if SL: a("s_mov_b64 exec, -1")
    a("s_waitcnt vmcnt(0)")
    for q in range(2): a(M1(S[q], 0, q, "0"))
    for q in range(2): a(M2(S[q], 0, q))
    a("s_nop 15")
    rowmax(S[0], 24, False)
    rowmax(S[1], 25, False)
    a(f"s_add_u32 s46, s46, {TKV}")
    a(f"s_cmp_lt_u32 s46, {KV_HEAD}")
    a("s_cbranch_scc1 L_fb_max")
    finish_neg("0")
    for q in range(2):
        for r in range(16): a(f"v_mov_b32 v{O[q]+r}, 0")
    a("s_mov_b32 s46, 0")
    a("L_fb_main:")
    a(f"buffer_load_dwordx4 {vr(KB[0],4)}, v{AKA}, s[32:35], s46 offen sc1")
    if SL: a("s_mov_b32 exec_hi, 0")
    a(f"buffer_load_dwordx2 {vr(KB[0]+4,2)}, v{AKB}, s[32:35], s46 offen sc1")
    if SL: a("s_mov_b64 exec, -1")
    a("s_mov_b64 exec, s[48:49]")
    a(f"buffer_load_dwordx4 {vr(VB[0],4)}, v29, s[32:35], s46 offen sc1")
    a(f"buffer_load_dwordx4 {vr(VB[0]+4,4)}, v29, s[32:35], s46 offen offset:640 sc1")
    a("s_mov_b64 exec, -1")
    a("s_waitcnt vmcnt(0)")
    for q in range(2): a(M1(S[q], 0, q, CNEG(q)))
    for q in range(2): a(M2(S[q], 0, q))
    a("s_nop 15")
    for q in range(2):
        for r in range(16): a(f"v_exp_f32 v{S[q]+r}, v{S[q]+r}")
        a("s_nop 0")
        for j in range(8): a(f"v_cvt_pk_bf16_f32 v{P+j}, v{S[q]+2*j}, v{S[q]+2*j+1}")
        a("s_nop 1")
        a(M3(0, q)); a(M4(0, q))
    a(f"s_add_u32 s46, s46, {TKV}")
    a(f"s_cmp_lt_u32 s46, {KV_HEAD}")
    a("s_cbranch_scc1 L_fb_main")
    a("s_nop 15")
    a("s_branch L_attn_post")

def aux(a):
    a("L_aux:")
    a(f"s_setprio {OPT.get('paux', 0)}")
    a(f"s_sub_u32 s44, s{sWAVE}, 4")
    a("v_lshlrev_b32 v2, 4, v1")
    a("s_waitcnt vmcnt(0)")
    drained(a, 3)
    a("s_cmp_eq_u32 s44, 0")
    a("s_cbranch_scc1 L_kv")
    a("s_cmp_lg_u32 s44, 1")
    a("s_cbranch_scc1 L_aux_wait")
    a("s_lshl_b32 s40, s2, 7")
    a("L_cnt_spin:")
    a(f"s_sleep {OPT.get('asl', 1)}")
    a(f"ds_read_b32 v3, v23 offset:{W_CNT}")
    a("s_waitcnt lgkmcnt(0)")
    a("v_readfirstlane_b32 s41, v3")
    a("s_nop 0")
    a("s_cmp_lt_u32 s41, 8")
    a("s_cbranch_scc1 L_cnt_spin")
    set_flag(a, 40, 8)
    a("L_aux_wait:")
    a("s_sleep 4")
    a(f"ds_read_b32 v3, v23 offset:{W_PROG}")
    a("s_waitcnt lgkmcnt(0)")
    a("v_readfirstlane_b32 s41, v3")
    a("s_nop 0")
    a(f"s_cmp_lt_u32 s41, {OPT.get('f2w', 6)}")
    a("s_cbranch_scc1 L_aux_wait")
    if OPT.get('dyn', 1):
        a("s_cmp_lg_u32 s44, 1")
        a("s_cbranch_scc1 L_kv_done")
        make_srd(a, 28, pDBG, 0, 256)
        a("v_mov_b32 v3, 1")
        a("v_mov_b32 v4, 128")
        a("s_mov_b64 exec, 1")
        a("buffer_atomic_add v3, v4, s[28:31], 0 offen sc0")
        a("s_waitcnt vmcnt(0)")
        a("v_add_u32 v3, 1, v3")
        a("ds_write_b32 v23, v3 offset:12")
        a("s_mov_b64 exec, -1")
    a("s_branch L_kv_done")
    a("L_kv:")
    a(f"s_mul_i32 s40, s26, {KV_HEAD}")
    make_srd(a, 28, pWS, "s40", KV_HEAD)
    a(f"v_mul_u32_u24 v6, {LPAIR}, v1")
    a("v_min_u32 v6, %d, v6" % (30*LPAIR))
    for r in range(4): a(f"v_mov_b32 v{8+r}, 0x3f803f80")
    a("ds_write_b128 v6, v[8:11] offset:5120")
    for r in range(4): a(f"v_mov_b32 v{12+r}, 0")
    a("ds_write_b128 v6, v[12:15] offset:5136")
    a("v_mov_b32 v16, 0x3f803f80")
    a("v_mov_b32 v17, 0x3f80")
    a("ds_write_b64 v6, v[16:17] offset:5152")
    a("s_lshr_b32 s41, s26, 3")
    a("v_and_b32 v3, 15, v1")
    a("v_and_b32 v4, 1, v1")
    a("s_lshl_b32 s42, s27, 1")
    a("v_add_u32 v4, s42, v4")
    a("v_cmp_gt_u32 vcc, 32, v1")
    a("v_lshrrev_b32 v5, 4, v1")
    a("v_add_u32 v5, 1, v5")
    a("v_cndmask_b32 v3, v4, v3, vcc")
    a("v_cndmask_b32 v5, 0, v5, vcc")
    a("v_and_b32 v4, 7, v3")
    a("v_lshl_add_u32 v5, v5, 3, v4")
    a("v_lshrrev_b32 v3, 3, v3")
    a("s_lshl_b32 s41, s41, 1")
    a("v_add_u32 v3, s41, v3")
    a("v_lshl_add_u32 v5, v5, 3, v3")
    a("v_lshlrev_b32 v5, 7, v5")
    def poll_once():
        a(f"buffer_load_dwordx2 v[6:7], v5, {sr(sFL,4)}, 0 offen sc1")
        a("s_waitcnt vmcnt(0)")
        a(f"v_cmp_eq_u64 vcc, {sr(sNON,2)}, v[6:7]")
        a("s_sub_u32 s40, s40, 1")
        a("s_cselect_b32 s47, 0xffff, 0")
        a("s_lshr_b32 s45, vcc_lo, 16")
        a("s_and_b32 s45, s45, vcc_lo")
        a("s_or_b32 s45, s45, s47")
    def pub(off, sreg):
        a(f"v_mov_b32 v4, s{sreg}")
        a(f"ds_write_b32 v23, v4 offset:{off}")
    a(f"s_mov_b32 s40, {POLL_MAX}")
    if OPT.get('padgo'):
        a("L_padgo:")
        a("s_memrealtime s[42:43]")
        a("s_waitcnt lgkmcnt(0)")
        a(f"s_sub_u32 s42, s42, s{sNON}")
        a(f"s_cmp_lt_u32 s42, {OPT['padgo']}")
        a("s_cbranch_scc1 L_padgo")
    a("L_kv_p1:")
    a(f"s_sleep {OPT.get('ksl', 2)}")
    poll_once()
    a("s_cmp_lg_u32 s47, 0")
    a("s_cbranch_scc1 L_kv_first")
    a("s_cmp_eq_u32 vcc_hi, -1")
    a("s_cselect_b32 s48, s45, 0")
    a("s_cmp_eq_u32 s48, 0")
    a("s_cbranch_scc1 L_kv_p1")
    a("L_kv_first:")
    a("s_ff1_i32_b32 s48, s45")
    a("s_add_u32 s49, s48, 1")
    pub(W_GO, 49)
    stamp(a, 7)
    a("s_lshl_b32 s46, 1, s48")
    a(f"s_mul_i32 s48, s48, {4*TKV}")
    a(f"s_add_u32 s48, s48, {2*TKV}")
    for i in range(5):
        a(f"s_mov_b32 m0, {i*1024}")
        a("s_nop 0")
        a("buffer_load_dwordx4 v2, s[28:31], s48 offen sc1 lds")
        if i < 4: a("s_add_u32 s48, s48, 1024")
    a("s_mov_b32 s50, 1")
    a(f"s_mov_b32 s51, {LPAIR}")
    a("L_kv_next:")
    a("s_andn2_b32 s48, s45, s46")
    a("s_cbranch_scc0 L_kv_poll")
    a("s_ff1_i32_b32 s48, s48")
    a("s_bitset1_b32 s46, s48")
    a(f"s_mul_i32 s48, s48, {4*TKV}")
    for i in range(10):
        a(f"s_add_u32 m0, s51, {i*1024 + (64 if i >= 5 else 0)}")
        if i: a("s_add_u32 s48, s48, 1024")
        else: a("s_nop 0")
        a("buffer_load_dwordx4 v2, s[28:31], s48 offen sc1 lds")
    a(f"s_add_u32 s51, s51, {2*LPAIR}")
    a("s_cmp_eq_u32 s50, 1")
    a("s_cbranch_scc0 L_kv_w20")
    a("s_waitcnt vmcnt(10)")
    pub(W_PROG, 50)
    a("s_mov_b32 s50, 2")
    a("s_branch L_kv_next")
    a("L_kv_w20:")
    a("s_waitcnt vmcnt(20)")
    a("s_sub_u32 s49, s50, 1")
    pub(W_PROG, 49)
    a("s_add_u32 s50, s50, 1")
    a("s_branch L_kv_next")
    a("L_kv_poll:")
    a("s_waitcnt vmcnt(0)")
    pub(W_PROG, 50)
    a("s_cmp_eq_u32 s50, 16")
    a("s_cbranch_scc1 L_kv_done")
    poll_once()
    a("s_branch L_kv_next")
    a("L_kv_done:")
    stamp(a, 8)
    a("v_lshlrev_b32 v5, 7, v1")
    a(f"v_add_u32 v5, {192*128}, v5")
    poll(a, 5, 6, sleep=4)
    a(f"s_setprio {OPT.get('pf2', 3)}")
    if OPT.get('dyn', 1):
        a("L_item:")
        a("ds_read_b32 v3, v23 offset:12")
        a("s_waitcnt lgkmcnt(0)")
        a("v_readfirstlane_b32 s40, v3")
        a("s_nop 0")
        a("s_cmp_eq_u32 s40, 0")
        a("s_cbranch_scc1 L_item")
        a("s_sub_u32 s40, s40, 1")
    else:
        a(f"s_sub_u32 s40, 31, s{sSLOT}")
        a("s_cmp_ge_u32 s40, 24")
        a("s_cbranch_scc1 L_wo")
        a(f"s_mul_i32 s41, s{sXCD}, 24")
        a("s_add_u32 s40, s40, s41")
    a("s_cmp_ge_u32 s40, %d" % (0 if OPT.get('nof2') else 187))
    a("s_cbranch_scc1 L_wo")
    a("s_mul_i32 s41, s40, 373")
    a("s_lshr_b32 s41, s41, 12")
    a("s_mul_i32 s42, s41, 11")
    a("s_sub_u32 s42, s40, s42")
    a("s_lshl_b32 s41, s41, 1")
    a("s_cmp_ge_u32 s41, 18")
    a("s_cselect_b32 s43, 17, 0")
    a("s_sub_u32 s41, s41, s43")
    a("s_and_b32 s43, s41, 1")
    a("s_lshl_b32 s45, s44, 4")
    a("s_min_u32 s46, s44, 1")
    a("s_add_u32 s46, s46, s45")
    a("s_mul_i32 s47, s41, 65")
    a("s_add_u32 s47, s47, s46")
    a("s_lshl_b32 s47, s47, 10")
    a(f"s_add_u32 s47, s47, {SEQ_OFF}")
    make_srd(a, 28, pWS, "s47", 17*1024)
    a("s_and_b32 s47, s44, 2")
    a("s_add_u32 s47, s47, s43")
    a("s_mul_i32 s48, s47, 11")
    a("s_add_u32 s48, s48, s42")
    a("s_mul_i32 s48, s48, 33")
    a("s_and_b32 s45, s45, 16")
    a("s_add_u32 s48, s48, s45")
    a("s_lshl_b32 s48, s48, 10")
    a(f"s_add_u32 s48, s48, {AB_OFF}")
    make_srd(a, 32, pWS, "s48", 33*1024)
    make_srd(a, 36, pOUT, 0, OUT_SIZE)
    FB = 64; AC = 8
    a("s_or_b32 s47, s44, s43")
    a("s_cmp_lg_u32 s47, 0")
    a("s_cbranch_scc1 L_f2_nox")
    a(f"s_mov_b32 s49, {16*1024}")
    a("buffer_load_dwordx4 v[24:27], v2, s[28:31], s49 offen sc1")
    a(f"s_mov_b32 s49, {32*1024}")
    a("buffer_load_dwordx4 v[28:31], v2, s[32:35], s49 offen sc1")
    a("L_f2_nox:")
    for k in range(16):
        b = FB + k * 8
        if k % 4 == 0: a(f"s_mov_b32 s49, {(k//4)*4096}")
        a(f"buffer_load_dwordx4 {vr(b,4)}, v2, s[28:31], s49 offen offset:{(k%4)*1024} sc1")
        a(f"buffer_load_dwordx4 {vr(b+4,4)}, v2, s[32:35], s49 offen offset:{(k%4)*1024} sc1")
    stamp(a, 9)
    a("v_and_b32 v5, 31, v1")
    a("v_lshrrev_b32 v4, 5, v1")
    a("s_lshr_b32 s48, s41, 1")
    a("s_lshl_b32 s48, s48, 6")
    a("s_add_u32 s48, s48, s43")
    a("s_lshl_b32 s49, s44, 4")
    a("s_add_u32 s48, s48, s49")
    a("v_lshl_add_u32 v47, v4, 3, s48")
    a("v_mul_u32_u24 v47, 2560, v47")
    a("s_cmp_ge_u32 s42, 6")
    a("s_cselect_b32 s48, 383, 0")
    a("s_lshl_b32 s49, s42, 6")
    a("s_sub_u32 s48, s49, s48")
    a("v_lshl_add_u32 v5, v5, 1, s48")
    a(f"v_mov_b32 v46, {HUGE}")
    a("v_lshlrev_b32 v6, 1, v5")
    a("v_add_u32 v40, 1280, v6")
    a("v_cmp_ge_u32 vcc, 320, v5")
    a("v_sub_u32 v41, 2560, v6")
    a("v_add_u32 v6, -1, v5")
    a("v_cndmask_b32 v40, v46, v40, vcc")
    a("v_cmp_gt_u32 vcc, 319, v6")
    a(f"v_add_u32 v33, {(2048-6)*2560}, v40")
    a("v_sub_u32 v33, v33, v47")
    a("v_cndmask_b32 v41, v46, v41, vcc")
    a("v_add_u32 v32, v47, v40")
    a("v_add_u32 v36, v47, v41")
    a(f"v_add_u32 v37, {(2048-6)*2560}, v41")
    a("v_sub_u32 v37, v37, v47")
    a(f"v_subrev_u32 v34, {1024*2560}, v33")
    a(f"v_subrev_u32 v38, {1024*2560}, v37")
    a(f"v_add_u32 v35, {1024*2560}, v32")
    a(f"v_add_u32 v39, {1024*2560}, v36")
    a(f"v_add_u32 v42, {3*5120}, v33")
    a(f"v_add_u32 v43, {3*5120}, v37")
    a(f"v_mov_b32 v3, {LDS_PROG}")
    a("s_lshl_b32 s48, s44, 10")
    a("v_add_u32 v6, s48, v2")
    a("s_add_u32 s49, s48, 12288")
    a("s_lshl_b32 s50, s44, 12")
    a("s_add_u32 s51, s50, 3072")
    a("s_cmp_eq_u32 s44, 3")
    a(f"s_cmov_b32 s49, {LDS_PROG + 1024}")
    a(f"s_cmov_b32 s51, {LDS_PROG + 1024}")
    a("v_add_u32 v7, s49, v2")
    a("v_add_u32 v44, s50, v2")
    a("v_add_u32 v45, s51, v2")
    a("s_lshl_b32 s49, s44, 2")
    a("v_add_u32 v5, s49, v3")
    for k in range(16):
        a(f"s_waitcnt vmcnt({2*(15-k)})")
        b = FB + k * 8
        d = vr(AC, 16)
        a(f"v_mfma_f32_32x32x16_bf16 {d}, {vr(b,4)}, {vr(b+4,4)}, {'0' if k == 0 else d}")
    a("s_cmp_lg_u32 s47, 0")
    a("s_cbranch_scc1 L_f2_nox2")
    a(f"v_mfma_f32_32x32x16_bf16 {vr(AC,16)}, v[24:27], v[28:31], {vr(AC,16)}")
    a("L_f2_nox2:")
    def spin_min(lbl, off, sl):
        a(f"{lbl}:")
        a(f"ds_read_b128 v[48:51], v3 offset:{off}")
        a("s_waitcnt lgkmcnt(0)")
        a("v_min3_u32 v48, v48, v49, v50")
        a("v_min_u32 v48, v48, v51")
        a("s_nop 0")
        a("v_readfirstlane_b32 s48, v48")
        a("s_nop 0")
        a("s_cmp_lg_u32 s48, 0")
        a(f"s_cbranch_scc1 {lbl}_ok")
        a(f"s_sleep {sl}")
        a(f"s_branch {lbl}")
        a(f"{lbl}_ok:")
    spin_min("L_f2_dead", W_PASS, 4)
    a("s_nop 3")
    for j in range(3): a(f"ds_write_b128 v6, {vr(AC+4*j,4)} offset:{j*4096}")
    a(f"ds_write_b128 v7, {vr(AC+12,4)}")
    a(f"ds_write_b32 v5, v3 offset:{W_XCH}")
    spin_min("L_f2_wait", W_XCH, 2)
    for i in range(3): a(f"ds_read_b128 {vr(8+4*i,4)}, v44 offset:{i*1024}")
    a("ds_read_b128 v[20:23], v45")
    a("s_waitcnt lgkmcnt(0)")
    ng = "neg_lo:[0,1] neg_hi:[0,1]"
    for r in (0, 2):
        a(f"v_pk_add_f32 {vr(48+r,2)}, {vr(8+r,2)}, {vr(12+r,2)}")
        a(f"v_pk_add_f32 {vr(52+r,2)}, {vr(8+r,2)}, {vr(12+r,2)} {ng}")
        a(f"v_pk_add_f32 {vr(56+r,2)}, {vr(20+r,2)}, {vr(16+r,2)}")
        a(f"v_pk_add_f32 {vr(60+r,2)}, {vr(20+r,2)}, {vr(16+r,2)} {ng}")
    for r in (0, 2):
        a(f"v_pk_add_f32 {vr(8+r,2)}, {vr(48+r,2)}, {vr(56+r,2)} {ng}")
        a(f"v_pk_add_f32 {vr(12+r,2)}, {vr(48+r,2)}, {vr(56+r,2)}")
        a(f"v_pk_add_f32 {vr(16+r,2)}, {vr(52+r,2)}, {vr(60+r,2)} {ng}")
        a(f"v_pk_add_f32 {vr(20+r,2)}, {vr(52+r,2)}, {vr(60+r,2)}")
    for k in range(8): a(f"v_cvt_pk_bf16_f32 v{48+k}, v{8+2*k}, v{9+2*k}")
    a("s_cmp_eq_u32 s41, 16")
    a("s_cbranch_scc1 L_f2_nyq")
    for i in range(4):
        st = "buffer_store_short_d16_hi" if i & 1 else "buffer_store_short"
        m1, p1, m2, p2 = (48 + 2*k + (i >> 1) for k in range(4))
        a(f"s_mov_b32 s47, {i*5120}")
        a(f"s_mov_b32 s48, {(3-i)*5120}")
        for val, adr, so in [(m1, 32, "s47"), (p1, 36, "s47"), (p2, 35, "s47"), (m2, 39, "s47"), (m2, 34, "s48"), (p2, 38, "s48"),
                             (p1, 33 if i else 42, "s48" if i else "0"), (m1, 37 if i else 43, "s48" if i else "0")]:
            a(f"{st} v{val}, v{adr}, s[36:39], {so} offen{FLF()}")
    a("s_branch L_wo")
    a("L_f2_nyq:")
    a("s_cmp_lg_u32 s44, 0")
    a("s_cbranch_scc1 L_wo")
    a("s_mov_b32 exec_hi, 0")
    for val, adr in [(48, 32), (50, 36), (50, 42), (48, 43)]:
        a(f"buffer_store_short v{val}, v{adr}, s[36:39], 0 offen{FLF()}")
    a("s_mov_b64 exec, -1")
    a("L_wo:")
    stamp(a, 10)
    a("s_and_b32 s40, s26, 3")
    a("s_lshl_b32 s40, s40, 2")
    a("s_add_u32 s40, s40, s44")
    a(f"s_mul_i32 s40, s40, {50*1024}")
    a(f"s_add_u32 s40, s40, {WO_OFF}")
    make_srd(a, 28, pWS, "s40", 50*1024)
    a("s_waitcnt vmcnt(0)")
    for k in range(OPT.get('nwo', 50)):
        if k % 4 == 0: a(f"s_mov_b32 s49, {(k//4)*4096}")
        a(f"buffer_load_dwordx4 {vr(56+4*k,4)}, v2, s[28:31], s49 offen offset:{(k%4)*1024} sc1")

def tail(a):
    a("L_B_done:")
    a(f"s_mov_b32 s40, s{sXCD}")
    a("s_lshl_b32 s41, s27, 3")
    a("s_add_u32 s41, s41, s40")
    a(f"s_mul_i32 s42, s41, {32*1280}")
    a(f"s_add_u32 s42, s42, {O_OFF}")
    make_srd(a, 28, pWS, "s42", 32*1280)
    a("v_and_b32 v4, 31, v1")
    a("s_lshl_b32 s42, s27, 7")
    a("s_lshr_b32 s40, s40, 1")
    a("s_add_u32 s42, s42, s40")
    a(f"s_add_u32 s42, s42, {FB}")
    a("v_lshl_add_u32 v4, v4, 2, s42")
    a("v_lshlrev_b32 v4, 7, v4")
    a("s_waitcnt vmcnt(0)")
    stamp(a, 12)
    a("s_barrier")
    stamp(a, 1)
    poll(a, 4, 6, sleep=OPT.get('sl', 0))
    stamp(a, 13)
    a("s_lshl_b32 s40, s44, 10")
    for j in range(10):
        a("s_mov_b32 m0, s40")
        a("s_nop 0")
        a("buffer_load_dwordx4 v2, s[28:31], s40 offen sc1 lds")
        if j < 9: a("s_add_u32 s40, s40, 4096")
    a("v_and_b32 v3, 31, v1")
    a("v_lshrrev_b32 v4, 5, v1")
    a("v_mul_u32_u24 v5, 2560, v4")
    a("v_lshl_add_u32 v5, v3, 3, v5")
    a("v_add_u32 v5, 1024, v5")
    make_srd(a, 32, pOUT, 0, OUT_SIZE)
    a("s_lshl_b32 s41, s41, 5")
    a("v_add_u32 v6, s41, v3")
    a("v_mul_u32_u24 v6, 2560, v6")
    a("s_and_b32 s42, s26, 3")
    a("s_mul_i32 s42, s42, 320")
    a("s_mul_i32 s43, s44, 12800")
    a("v_add_u32 v7, s43, v2")
    a("s_lshl_b32 s43, s44, 12")
    a("s_add_u32 s43, s43, 40960")
    a("v_add_u32 v3, s43, v2")
    a("s_lshl_b32 s43, s44, 10")
    a("s_add_u32 s43, s43, 40960")
    a("v_add_u32 v1, s43, v2")
    a("s_lshl_b32 s45, s44, 4")
    a("s_add_u32 s45, s45, s42")
    a("v_lshl_add_u32 v0, v4, 3, v6")
    a("s_lshl_b32 s43, s44, 6")
    a("s_add_u32 s43, s43, s42")
    a("v_lshl_add_u32 v6, v4, 4, v6")
    a("s_waitcnt vmcnt(%d)" % (6 if OPT.get('prog', 1) else 0))
    a("s_barrier")
    stamp(a, 14)
    if lib.STAMP: a("s_waitcnt lgkmcnt(0)")
    A5, AM, OB = 8, 24, 40
    def rd(buf, kap, base=None):
        b = OB + 4*buf
        if base is not None: return f"ds_read_b128 {vr(b,4)}, v{base} offset:{kap*1280}"
        if kap < 32: return f"ds_read_b128 {vr(b,4)}, v2 offset:{kap*1280}"
        o = (kap - 32) * 5120 // 8
        return None
    def rd_main(buf, kap):
        b = OB + 4*buf
        if kap < 32: return [f"ds_read_b128 {vr(b,4)}, v2 offset:{kap*1280}"]
        g = kap - 32
        return [f"ds_read_b64 {vr(b,2)}, v5 offset:{g*5120}", f"ds_read_b64 {vr(b+2,2)}, v5 offset:{g*5120+1280}"]
    PG = 10 if OPT.get('prog', 1) else 0
    def stream(steps):
        n = len(steps); cnt = [0]*n
        PF = 3
        for k in range(PF):
            r = steps[k][0](k % 4); cnt[k] = len(r)
            for x in r: a(x)
        for k in range(n):
            out = sum(cnt[k+1:min(n, k+PF)])
            a(f"s_waitcnt lgkmcnt({out})")
            d = vr(steps[k][1], 16)
            a(f"v_mfma_f32_32x32x16_bf16 {d}, {vr(steps[k][2],4)}, {vr(OB+4*(k%4),4)}, {'0' if steps[k][3] else d}")
            if PG and k + PF == PG:
                a("s_waitcnt vmcnt(0)")
                a("s_barrier")
            if k + PF < n:
                r = steps[k+PF][0]((k+PF) % 4); cnt[k+PF] = len(r)
                for x in r: a(x)
            if k == PG + 13:
                for j in range(4): a(f"ds_write_b128 v3, {vr(A5+4*j,4)} offset:{j*1024}")
                cnt[k+PF] += 4
            if k == 32:
                a("s_barrier")
                for i in range(4): a(f"ds_read_b128 {vr(A5+4*i,4)}, v1 offset:{i*4096}")
                cnt[k+PF] += 4
            if k == 38:
                for i in range(1, 4):
                    a(f"v_pk_add_f32 {vr(A5,2)}, {vr(A5,2)}, {vr(A5+4*i,2)}")
                    a(f"v_pk_add_f32 {vr(A5+2,2)}, {vr(A5+2,2)}, {vr(A5+4*i+2,2)}")
            if k == 40:
                a(f"v_cvt_pk_bf16_f32 v{A5}, v{A5}, v{A5+1}")
                a(f"v_cvt_pk_bf16_f32 v{A5+1}, v{A5+2}, v{A5+3}")
                a(f"buffer_store_dwordx2 {vr(A5,2)}, v0, s[32:35], s45 offen offset:256{FLP()}")
    main = [((lambda kap: lambda buf: rd_main(buf, kap))(kap), AM, 56 + 4*(10+kap), kap == 0) for kap in range(40)]
    a("s_cmp_eq_u32 s44, 3")
    a("s_cbranch_scc1 L_tail3")
    q5 = [((lambda i: lambda buf: [f"ds_read_b128 {vr(OB+4*buf,4)}, v7 offset:{i*1280}"])(i), A5, 56 + 4*i, i == 0) for i in range(10)]
    stream(main[:PG] + q5 + main[PG:])
    a("s_branch L_tail_join")
    a("L_tail3:")
    q5 = [((lambda i: lambda buf: rd_main(buf, 30 + i))(i), A5, 56 + 4*i, i == 0) for i in range(10)]
    stream(main[:PG] + q5 + main[PG:])
    a("L_tail_join:")
    stamp(a, 11)
    a("s_nop 10")
    for r in range(8): a(f"v_cvt_pk_bf16_f32 v{AM+r}, v{AM+2*r}, v{AM+2*r+1}")
    a("s_nop 1")
    for h2 in range(2):
        a(f"v_permlane32_swap_b32 v{AM+4*h2}, v{AM+4*h2+2}")
        a(f"v_permlane32_swap_b32 v{AM+4*h2+1}, v{AM+4*h2+3}")
    for h2 in range(2):
        a(f"buffer_store_dwordx4 {vr(AM+4*h2,4)}, v6, s[32:35], s43 offen offset:{32*h2}{FLP()}")
    a("L_end:")
    if OPT.get('pad'):
        a("L_pad:")
        a("s_memrealtime s[40:41]")
        a("s_waitcnt lgkmcnt(0)")
        a(f"s_sub_u32 s40, s40, s{sNON}")
        a(f"s_cmp_lt_u32 s40, {OPT['pad']}")
        a("s_cbranch_scc1 L_pad")
    if lib.STAMP:
        a("s_waitcnt vmcnt(0)")
        stamp(a, 15); stamp_real(a, 17)
        stamp_flush(a, 18, pWS, sWAVE, 0)
    a("L_exit:")
    a("s_endpgm")

KNAME = "concat_heads__mha_block__spectral_fnet__prompt_kernel"
def kernel(a):
    kernel_header(a, KNAME)
    if OPT.get('early'): a("s_memrealtime s[98:99]")
    a("s_cmp_ge_u32 s2, 256")
    a("s_cbranch_scc1 L_exit")
    if lib.STAMP:
        for i in range(18): a(f"s_mov_b32 s{60+2*i}, 0")
    stamp(a, 0); stamp_real(a, 16)
    a("s_load_dwordx8 s[4:11], s[0:1], 0")
    a("s_load_dwordx4 s[12:15], s[0:1], 64")
    a("s_load_dwordx2 s[16:17], s[0:1], 80")
    a("v_lshrrev_b32 v1, 6, v0")
    a(f"s_and_b32 s{sXCD}, s2, 7")
    a(f"v_readfirstlane_b32 s{sWAVE}, v1")
    a(f"s_lshr_b32 s{sSLOT}, s2, 3")
    a("v_and_b32 v1, 63, v0")
    a(f"s_and_b32 s26, s{sXCD}, 1")
    a("s_lshl_b32 s26, s26, 3")
    a(f"s_and_b32 s27, s{sSLOT}, 7")
    a("s_add_u32 s26, s26, s27")
    a(f"s_lshr_b32 s27, s{sSLOT}, 3")
    a("s_lshl_b32 s27, s27, 2")
    a(f"s_lshr_b32 s40, s{sXCD}, 1")
    a("s_add_u32 s27, s27, s40")
    a(f"s_lshl_b32 s40, s2, 3")
    a(f"s_add_u32 s40, s40, s{sWAVE}")
    a("s_waitcnt lgkmcnt(0)")
    make_srd(a, sFL, pWS, FL_OFF, FL_SIZE)
    a("s_cmp_lg_u32 s40, 7")
    a("s_cbranch_scc1 L_no_nonce")
    if OPT.get('early'): a("s_mov_b64 s[40:41], s[98:99]")
    else: a("s_memrealtime s[40:41]")
    make_srd(a, 28, pDBG, 0, 256)
    a("s_waitcnt lgkmcnt(0)")
    a("s_or_b32 s40, s40, 1")
    a("v_mov_b32 v2, s40")
    a("v_mov_b32 v3, s41")
    a("v_mov_b32 v4, 0")
    a("buffer_store_dwordx2 v[2:3], v4, s[28:31], 0 offen sc1")
    a("L_no_nonce:")
    a(f"s_cmp_lg_u32 s{sWAVE}, 0")
    a("s_cbranch_scc1 L_no_init")
    a(f"v_mov_b32 v2, {LDS_PROG}")
    a("v_mov_b32 v4, 0")
    a("v_mov_b32 v5, 0")
    for i in range(8): a(f"ds_write_b64 v2, v[4:5] offset:{8*i}")
    a("s_waitcnt lgkmcnt(0)")
    a("L_no_init:")
    if OPT.get('touch', 0) & 1:
        a(f"s_cmp_lg_u32 s{sWAVE}, 1")
        a("s_cbranch_scc1 L_no_code")
        a("s_getpc_b64 s[40:41]")
        a("L_pc:")
        a(f"s_sub_u32 s40, s40, L_pc-{KNAME}")
        a("s_subb_u32 s41, s41, 0")
        a(f"s_mul_i32 s42, s{sSLOT}, 1280")
        a("v_lshlrev_b32 v2, 4, v1")
        a("v_add_u32 v2, s42, v2")
        a(f"v_min_u32 v2, L_exit-{KNAME}-1024-16, v2")
        for i in range(2): a(f"global_load_dwordx4 v[240:243], v2, s[40:41] offset:{i*1024}")
        a("L_no_code:")
    if OPT.get('touch', 0) & 2:
        a(f"s_cmp_lg_u32 s{sWAVE}, 2")
        a("s_cbranch_scc1 L_no_tlb")
        make_srd(a, 28, pWS, 0, FL_OFF + FL_SIZE)
        a(f"v_mul_u32_u24 v2, {OPT.get('tstr', 0x44000)}, v1")
        a("buffer_load_dword v240, v2, s[28:31], 0 offen sc1")
        make_srd(a, 28, pOUT, 0, OUT_SIZE)
        a("v_mul_u32_u24 v2, 0x14000, v1")
        a("buffer_load_dword v241, v2, s[28:31], 0 offen sc1")
        a("L_no_tlb:")
    a(f"s_cmp_ge_u32 s{sSLOT}, 24")
    a("s_cbranch_scc1 L_prep")
    a(f"s_cmp_lt_u32 s{sWAVE}, 4")
    a("s_cbranch_scc1 L_compute")
    gemm_loader(a)
    gemm_compute(a)
    prep(a)
    a_done(a)
    attention(a)
    aux(a)
    tail(a)
    return kernel_desc(KNAME, 256, 100)

HEADER = open('concat_heads__mha_block__spectral_fnet__prompt.s.ref').read().split("; Override")[0]
def main(out):
    a = Asm()
    a('.amdgcn_target "amdgcn-amd-amdhsa--gfx950"')
    a(".text")
    d = kernel(a)
    txt = HEADER + "; @launch grid=(256,1,1) block=(512,1,1) lds=163840\n" + a.text() + '.section .rodata,"a"\n.p2align 6\n' + d
    open(out, "w").write(txt)

if __name__ == "__main__":
    for x in sys.argv[2:]:
        if x == "stamp": lib.STAMP = True
        elif x == "rt": lib.STAMP = True; lib.STAMPRT = True
        elif x == "gst": lib.STAMP = True; lib.STAMPSET = 1
        elif x == "cst": lib.STAMP = True; lib.STAMPSET = 2
        else:
            k, _, v = x.partition("=")
            OPT[k] = int(v) if v else 1
    main(sys.argv[1] if len(sys.argv) > 1 else "v16.s")
```

```python
import sys, struct
from lib import *
import lib

TKV = 2560; KV_HEAD = 64*TKV; KV_OFF = 0; KV_SIZE = 32*KV_HEAD
TQ = 1280; Q_HEAD = 64*TQ; Q_OFF = KV_SIZE; Q_SIZE = 32*Q_HEAD
O_OFF = Q_OFF + Q_SIZE; O_SIZE = 64*32*1280
SEQ_OFF = O_OFF + O_SIZE; SEQ_SIZE = 17*65*1024
AB_OFF = SEQ_OFF + SEQ_SIZE; AB_SIZE = 4*11*33*1024
WO_OFF = AB_OFF + AB_SIZE; WO_SIZE = 16*50*1024
FL_OFF = 16*1024*1024; FL_SIZE = 1536*128
FA, FB, FL1 = 0, 256, 1280
X_SIZE = 2048*1280; OUT_SIZE = 2048*2560
HUGE = 0x40000000
QSCALE = (20 ** -0.5) * 1.4426950408889634
NDMA = 155; LPAIR = 5184
LDS_PROG = 31*LPAIR
def lds_tile(t): return ((t-2)>>1)*LPAIR + ((t-2)&1)*TKV
def need(tile): return ((tile-1)*TKV + 4095)//4096
NEED = [need(4), need(7), need(15), need(23), 39]
POLL_MAX = 200000
def f32bits(x): return struct.unpack('<I', struct.pack('<f', x))[0]
OPT = {}
FLS = ['', ' sc1', ' nt', ' sc0 sc1', ' sc1 nt']
def FLP(): return FLS[OPT.get('flp', 0)]
def FLF(): return FLS[OPT.get('flf', 1)]

sWAVE = 3
pX, pW, pWO, pBX, pOUT, pDBG, pWS = 4, 6, 8, 10, 12, 14, 16
sNON = 18
sFL = 20
sXCD, sSLOT = 24, 25
STG = 36864
NS = 4

def poll(a, vaddr, vtmp, cnt=40, sleep=1):
    l = a.label("L_poll"); d = a.label("L_pollok")
    a(f"s_mov_b32 s{cnt}, {POLL_MAX}")
    a(f"{l}:")
    a(f"buffer_load_dwordx2 {vr(vtmp,2)}, v{vaddr}, {sr(sFL,4)}, 0 offen sc1")
    a("s_waitcnt vmcnt(0)")
    a(f"v_cmp_ne_u64 vcc, {sr(sNON,2)}, {vr(vtmp,2)}")
    a(f"s_sub_u32 s{cnt}, s{cnt}, 1")
    a(f"s_cbranch_vccz {d}")
    a(f"s_cmp_eq_u32 s{cnt}, 0")
    a(f"s_cbranch_scc1 {d}")
    if sleep: a(f"s_sleep {sleep}")
    a(f"s_branch {l}")
    a(f"{d}:")

def get_nonce(a, vt, srd=28, cnt=40):
    make_srd(a, srd, pDBG, 0, 256)
    l = a.label("L_non"); d = a.label("L_nonok")
    a(f"v_mov_b32 v{vt}, 0")
    a(f"s_mov_b32 s{cnt}, {POLL_MAX}")
    a(f"{l}:")
    a(f"buffer_load_dwordx2 {vr(vt+2,2)}, v{vt}, {sr(srd,4)}, 0 offen sc1")
    a("s_waitcnt vmcnt(0)")
    a(f"v_readfirstlane_b32 s{sNON}, v{vt+2}")
    a(f"v_readfirstlane_b32 s{sNON+1}, v{vt+3}")
    a(f"s_sub_u32 s{cnt}, s{cnt}, 1")
    a(f"s_cmp_lg_u32 s{sNON}, 0")
    a(f"s_cbranch_scc1 {d}")
    a(f"s_cmp_eq_u32 s{cnt}, 0")
    a(f"s_cbranch_scc1 {d}")
    a("s_sleep 2")
    a(f"s_branch {l}")
    a(f"{d}:")

def set_flag(a, sidx, vt, also=None):
    for i in range(4): a(f"v_mov_b32 v{vt+i}, s{sNON+(i&1)}")
    a(f"v_lshlrev_b32 v{vt+4}, 4, v1")
    a("s_mov_b64 exec, 0xff")
    if also is not None:
        a(f"s_add_u32 s41, s{sidx}, {also}")
        a(f"buffer_store_dwordx4 {vr(vt,4)}, v{vt+4}, {sr(sFL,4)}, s41 offen")
    a(f"buffer_store_dwordx4 {vr(vt,4)}, v{vt+4}, {sr(sFL,4)}, s{sidx} offen sc1")
    a("s_mov_b64 exec, -1")

def gemm_loader(a):
    sA, sB = 28, 32
    a("L_loader:")
    a("s_mul_i32 s40, s26, 163840")
    make_srd(a, sA, pX, "s40", 163840)
    a(f"s_sub_u32 s44, s{sWAVE}, 4")
    a("v_lshrrev_b32 v2, 3, v1")
    a("s_lshl_b32 s40, s44, 3")
    a("v_add_u32 v2, s40, v2")
    a("v_mul_u32_u24 v2, 1280, v2")
    a("v_lshrrev_b32 v3, 4, v1")
    a("s_and_b32 s40, s44, 1")
    a("s_lshl_b32 s40, s40, 2")
    a("v_or_b32 v4, s40, v3")
    a("v_and_b32 v5, 7, v1")
    a("v_xor_b32 v4, v4, v5")
    a("v_lshl_add_u32 v10, v4, 4, v2")
    a("s_lshl_b32 s45, s44, 10")
    a(f"s_lshr_b32 s40, s{sSLOT}, 3")
    a(f"s_mul_i32 s40, s40, {OPT.get('ra', 5)}")
    a(f"s_and_b32 s41, s{sSLOT}, 7")
    a(f"s_mul_i32 s41, s41, {OPT.get('rb', 5)}")
    a("s_add_u32 s40, s40, s41")
    a(f"s_mul_i32 s41, s{sXCD}, {OPT.get('rc', 3)}")
    a("s_add_u32 s40, s40, s41")
    a("s_mul_i32 s41, s40, 6554")
    a("s_lshr_b32 s41, s41, 16")
    a("s_mul_i32 s41, s41, 10")
    a("s_sub_u32 s47, s40, s41")
    def issue_x(c):
        sl = c % NS
        a("s_lshl_b32 s48, s47, 7")
        for j in range(4):
            a(f"s_add_u32 m0, s45, {sl*STG + j*4096}")
            if j: a(f"s_add_u32 s48, s48, 40960")
            else: a("s_mul_i32 s49, s47, 245760")
            a(f"buffer_load_dwordx4 v10, {sr(sA,4)}, s48 offen lds")
    def issue_w(c):
        sl = c % NS
        for i in range(5):
            a(f"s_add_u32 m0, s46, {sl*STG + 16384 + i*1024 - i*64}")
            if i == 0:
                a("s_add_u32 s47, s47, 1")
            elif i == 1:
                a("s_cmp_eq_u32 s47, 10")
                a("s_cmov_b32 s47, 0")
            else: a("s_nop 0")
            a(f"buffer_load_dwordx4 v11, {sr(sB,4)}, s49 offen offset:{i*64} lds")
    def issue(c): issue_x(c); issue_w(c)
    stamp(a, 12, 1)
    issue_x(0)
    stamp(a, 13, 1)
    a("s_mul_i32 s40, s27, 320")
    a("s_sub_u32 s41, 2457600, s40")
    make_srd(a, sB, pW, "s40", "s41")
    a("s_lshl_b32 s40, s44, 4")
    a("v_lshrrev_b32 v2, 2, v1")
    a("v_add_u32 v2, s40, v2")
    a("v_mul_u32_u24 v2, 3840, v2")
    a("v_and_b32 v3, 3, v1")
    a("v_lshrrev_b32 v4, 5, v1")
    a("v_lshlrev_b32 v4, 1, v4")
    a("v_xor_b32 v3, v3, v4")
    a("v_lshl_add_u32 v11, v3, 4, v2")
    a("s_mul_i32 s46, s44, 5120")
    issue_w(0)
    stamp(a, 14, 1)
    issued = 1
    pre = OPT.get('pre', 2)
    for c in range(1, pre): issue(c); issued += 1
    for c in range(10):
        a(f"s_waitcnt vmcnt({9*(issued-c-1)})")
        if c in (0, 9): stamp(a, {0: 2, 9: 5}[c])
        stamp(a, c + 1, 1)
        a("s_barrier")
        if c == 0: stamp(a, 11, 1)
        while issued < min(10, c + 1 + (OPT.get('dep', 2) if c < OPT.get('depsw', 10) else 3)): issue(issued); issued += 1
    get_nonce(a, 2)
    a("s_branch L_A_done")

AX, AWA, EA = 8, 10, 16
FR = 24
ACC = 96
def gemm_loop(a, isv, epi):
    XB = [FR, FR + 36, 176, 212]
    def rdx(kk, m, b): sl, st = divmod(kk, 2); return f"ds_read_b128 {vr(b+4*m,4)}, v{AX+st} offset:{sl*STG + m*2048}"
    def rdw(kk, T, b): sl, st = divmod(kk, 2); return [f"ds_read_b64_tr_b16 {vr(b+16+4*T+2*t,2)}, v{AWA+T} offset:{sl*STG + st*10240 + t*256}" for t in range(2)]
    def reads(kk, b):
        r = rdw(kk, 0, b) + [rdx(kk, m, b) for m in range(4)]
        for T in range(1, 5): r += rdw(kk, T, b)
        return r
    def mfma(b, T, m):
        d = vr(ACC + 16*T + 4*m, 4); w = vr(b + 16 + 4*T, 4); x = vr(b + 4*m, 4)
        return f"v_mfma_f32_16x16x32_bf16 {d}, {x}, {w}, {d}" if isv else f"v_mfma_f32_16x16x32_bf16 {d}, {w}, {x}, {d}"
    for r in range(80): a(f"v_mov_b32 v{ACC+r}, 0")
    a(f"s_mov_b32 s40, {2*STG}")
    a("s_mov_b32 s41, 4")
    a("s_barrier")
    stamp(a, 2)
    for r in reads(0, XB[0]): a(r)
    lp = a.label("L_gemm"); last = a.label("L_gemm_last")
    a(".p2align 3")
    a(f"{lp}:")
    for kk in range(4):
        a("s_waitcnt lgkmcnt(0)")
        ms = [mfma(XB[kk & 1], T, m) for T in range(5) for m in range(4)]
        a(ms[0])
        if kk == 1: a("s_barrier")
        if kk == 3:
            for i in range(2): a(f"v_add_u32 v{AX+i}, s40, v{AX+i}")
            for i in range(5): a(f"v_add_u32 v{AWA+i}, s40, v{AWA+i}")
            a("s_sub_u32 s40, 0, s40")
            a("s_sub_u32 s41, s41, 1")
            a("s_barrier")
            a("s_cmp_eq_u32 s41, 0")
            a(f"s_cbranch_scc1 {last}")
        nx = reads((kk + 1) & 3, XB[(kk + 1) & 1])
        for i in range(1, 20):
            if i - 1 < len(nx): a(nx[i-1])
            a(ms[i])
    a(f"s_branch {lp}")
    a(f"{last}:")
    bufs = [XB[0], XB[2], XB[3], XB[1]]
    def order(k0):
        r = []
        for k in (k0, k0 + 1): r += rdw(k, 0, bufs[k]) + [rdx(k, m, bufs[k]) for m in range(4)]
        return r
    first = order(0)
    rest01 = [x for T in range(1, 5) for k in (0, 1) for x in rdw(k, T, bufs[k])]
    second = order(2)
    rest23 = [[x for k in (2, 3) for x in rdw(k, T, bufs[k])] for T in range(5)]
    ms = [mfma(XB[1], T, m) for T in range(5) for m in range(4)]
    q = first + rest01
    pos = 0
    for i in range(1, 20):
        for _ in range(2 if i < 10 else 1):
            if pos < len(q): a(q[pos]); pos += 1
        a(ms[i])
    a("s_barrier")
    q = second + rest23[1] + rest23[2] + rest23[3] + rest23[4]
    a("s_waitcnt lgkmcnt(0)")
    pos = 0
    for T in range(5):
        e = epi(T - 1) if T >= 1 else []
        per = -(-len(e) // 12)
        for i in range(16):
            if i == 8 and T < 2: a(f"s_waitcnt lgkmcnt({min(15, pos - (12 + 4*T))})" if T == 0 else "s_waitcnt lgkmcnt(0)")
            a(mfma(bufs[i >> 2], T, i & 3))
            for _ in range(2):
                if pos < len(q): a(q[pos]); pos += 1
            if i >= 4:
                for x in e[per*(i-4):per*(i-3)]: a(x)
    stamp(a, 5)
    a("s_nop 7")
    for x in epi(4): a(x)

def gemm_compute(a):
    a("L_compute:")
    a("v_and_b32 v2, 15, v1")
    a("v_lshrrev_b32 v3, 4, v1")
    a(f"s_and_b32 s42, s{sWAVE}, 1")
    a(f"s_lshr_b32 s43, s{sWAVE}, 1")
    a("s_lshl_b32 s40, s42, 6")
    a("v_add_u32 v4, s40, v2")
    a("v_lshlrev_b32 v4, 7, v4")
    a("v_lshrrev_b32 v5, 1, v2")
    a("v_xor_b32 v5, v5, v3")
    a(f"v_lshl_add_u32 v{AX}, v5, 4, v4")
    a(f"v_xor_b32 v{AX+1}, 64, v{AX}")
    a("v_lshrrev_b32 v4, 5, v1")
    a("v_mul_u32_u24 v4, 5120, v4")
    a("v_and_b32 v5, 1, v3")
    a("v_lshrrev_b32 v6, 2, v2")
    a("v_lshl_add_u32 v6, v5, 3, v6")
    a("v_lshl_add_u32 v4, v6, 6, v4")
    a("v_add_u32 v4, 16384, v4")
    a("v_lshlrev_b32 v5, 2, v5")
    a("v_and_b32 v6, 3, v1")
    a("s_mul_i32 s44, s43, 20")
    def waddr(T, g):
        a(f"v_and_b32 v15, 7, v{g}")
        a("v_xor_b32 v15, v15, v5")
        a("v_lshl_add_u32 v15, v15, 3, v4")
        a(f"v_lshrrev_b32 v{g}, 3, v{g}")
        a(f"v_lshl_add_u32 v{AWA+T}, v{g}, 10, v15")
    a("s_lshl_b32 s45, s26, 2")
    a("s_lshl_b32 s42, s42, 1")
    a("s_add_u32 s42, s42, s45")
    a("s_and_b32 s45, s27, 3")
    a("s_lshl_b32 s45, s45, 3")
    a("s_lshl_b32 s43, s43, 2")
    a("s_add_u32 s43, s43, s45")
    a("s_cmp_ge_u32 s27, 8")
    a("s_cbranch_scc1 L_compute_v")
    for T in range(5):
        if T < 4:
            a(f"s_add_u32 s45, s44, {5*T}")
            a("v_add_u32 v7, s45, v6")
        else:
            a("s_add_u32 s45, s44, 4")
            a("v_mad_u32_u24 v7, v6, 5, s45")
        waddr(T, 7)
    a("s_cmp_ge_u32 s27, 4")
    for reg, k, q in [(44, KV_HEAD, Q_HEAD), (45, TKV, TQ), (46, f32bits(1.0), f32bits(QSCALE)), (47, KV_OFF, Q_OFF), (48, KV_SIZE, Q_SIZE)]:
        a(f"s_mov_b32 s{reg}, {q}")
        a(f"s_cmov_b32 s{reg}, {k}")
    make_srd(a, 28, pWS, "s47", "s48")
    a("s_mul_i32 s47, s43, s44")
    a("s_mul_i32 s48, s42, s45")
    a("s_add_u32 s47, s47, s48")
    a(f"v_lshlrev_b32 v{EA}, 4, v1")
    a(f"v_add_u32 v{EA+1}, s45, v{EA}")
    a("v_lshrrev_b32 v4, 5, v1")
    a("v_mul_lo_u32 v4, v4, s44")
    a("v_and_b32 v5, 31, v1")
    a("v_lshlrev_b32 v5, 3, v5")
    a("v_lshl_add_u32 v4, v4, 1, v5")
    a(f"v_add_u32 v{EA+2}, 1024, v4")
    a(f"v_add_u32 v{EA+3}, s45, v{EA+2}")
    a("s_mov_b32 s48, s47")
    a("s_add_u32 s49, s47, s44")
    def epi_qk(T):
        b = ACC + 16*T; e = []
        for r in range(16): e.append(f"v_mul_f32 v{b+r}, s46, v{b+r}")
        for r in range(8): e.append(f"v_cvt_pk_bf16_f32 v{b+r}, v{b+2*r}, v{b+2*r+1}")
        e.append("s_nop 0")
        for u in range(2):
            e.append(f"v_permlane16_swap_b32 v{b+4*u}, v{b+4*u+2}")
            e.append(f"v_permlane16_swap_b32 v{b+4*u+1}, v{b+4*u+3}")
        for u in range(2):
            if T < 4: e.append(f"buffer_store_dwordx4 {vr(b+4*u,4)}, v{EA+u}, s[28:31], s48 offen sc1")
            else:
                e.append(f"buffer_store_dwordx2 {vr(b+4*u,2)}, v{EA+2+u}, s[28:31], s47 offen sc1")
                e.append(f"buffer_store_dwordx2 {vr(b+4*u+2,2)}, v{EA+2+u}, s[28:31], s49 offen sc1")
        if T < 3: e.append("s_add_u32 s48, s48, s44")
        return e
    gemm_loop(a, False, epi_qk)
    a("s_branch L_A_done")
    a("L_compute_v:")
    for T in range(5):
        a(f"s_add_u32 s45, s44, {4*T}")
        a("v_add_u32 v7, s45, v6")
        waddr(T, 7)
    make_srd(a, 28, pWS, KV_OFF, KV_SIZE)
    a(f"s_mov_b32 s44, {KV_HEAD}")
    a("s_mul_i32 s47, s43, s44")
    a(f"s_mul_i32 s48, s42, {TKV}")
    a("s_add_u32 s47, s47, s48")
    a("v_lshrrev_b32 v7, 5, v1")
    a("v_mul_u32_u24 v7, 640, v7")
    a("v_and_b32 v15, 1, v3")
    a("v_lshl_add_u32 v7, v15, 6, v7")
    a("v_add_u32 v7, 1280, v7")
    for T in range(5):
        a(f"v_add_u32 v4, {16*T}, v2")
        a("v_mul_u32_u24 v5, 3277, v4")
        a("v_lshrrev_b32 v5, 16, v5")
        a("v_mul_u32_u24 v6, 20, v5")
        a("v_sub_u32 v4, v4, v6")
        a("v_and_b32 v6, 28, v4")
        a("v_add_u32 v4, v4, v6")
        a("v_mul_lo_u32 v5, v5, s44")
        a("v_lshl_add_u32 v4, v4, 4, v5")
        a(f"v_add_u32 v{EA+T}, v7, v4")
    def epi_v(T):
        b = ACC + 16*T; e = []
        for r in range(8): e.append(f"v_cvt_pk_bf16_f32 v{b+r}, v{b+2*r}, v{b+2*r+1}")
        e.append("s_nop 0")
        for u in range(2):
            e.append(f"v_permlane32_swap_b32 v{b+4*u}, v{b+4*u+2}")
            e.append(f"v_permlane32_swap_b32 v{b+4*u+1}, v{b+4*u+3}")
        for u in range(2): e.append(f"buffer_store_dwordx4 {vr(b+4*u,4)}, v{EA+T}, s[28:31], s47 offen offset:{u*TKV} sc1")
        return e
    gemm_loop(a, True, epi_v)
    a("s_branch L_A_done")

SWD = [42, 43, 44, 56, 57]
def side_work(a):
    a("s_sub_u32 s53, s2, 192")
    a("s_mul_i32 s53, s53, 3")
    a(f"s_add_u32 s53, s53, s{sWAVE}")
    a("s_sub_u32 s53, s53, 5")
    a("v_lshlrev_b32 v22, 4, v1")
    make_srd(a, 32, pWO, 0, 819200)
    make_srd(a, 28, pWS, SEQ_OFF, WO_OFF + WO_SIZE - SEQ_OFF)
    WR = 32
    for n in range(5):
        if n == 4:
            a("s_cmp_ge_u32 s53, 32")
            a("s_cbranch_scc1 L_sw_wo_ld")
        a(f"s_add_u32 s40, s53, {192*n}")
        a("s_mul_i32 s41, s40, 1639")
        a("s_lshr_b32 s41, s41, 16")
        a("s_mul_i32 s58, s41, 40")
        a("s_sub_u32 s58, s40, s58")
        a("s_mul_i32 s59, s58, 20")
        a("s_mul_i32 s55, s58, 80")
        a("s_sub_u32 s55, s55, %d" % (32*80 - 16))
        a("s_cmp_lt_u32 s58, 32")
        a("s_cselect_b32 s45, 4, 40")
        a("s_cselect_b32 s59, s59, s55")
        a(f"s_mov_b32 s46, {20*1280}")
        a(f"s_cmov_b32 s46, {8*1280}")
        a("v_mul_u32_u24 v4, s45, v3")
        a("v_add_u32 v4, s59, v4")
        a("v_mul_u32_u24 v4, 1280, v4")
        a("s_lshl_b32 s59, s41, 6")
        a("v_lshl_add_u32 v4, v2, 1, v4")
        a("v_add_u32 v4, s59, v4")
        b = WR + 8*n
        for grp in range(2):
            so = "s46" if grp else "0"
            for i in range(4):
                a(f"buffer_load_ushort v{b+4*grp+i}, v4, s[32:35], {so} offen offset:{i*1280}")
        a("s_mul_i32 s59, s41, 52")
        a("s_lshr_b32 s59, s59, 8")
        a("s_mul_i32 s55, s59, 5")
        a("s_sub_u32 s55, s41, s55")
        a("s_mul_i32 s45, s58, 26")
        a("s_lshr_b32 s45, s45, 8")
        a("s_mul_i32 s47, s45, 10")
        a("s_sub_u32 s47, s58, s47")
        a("s_add_u32 s58, s58, 10")
        a("s_cmp_lt_u32 s55, 4")
        a("s_cselect_b32 s55, s55, s45")
        a("s_cselect_b32 s58, s58, s47")
        a("s_lshl_b32 s59, s59, 2")
        a("s_add_u32 s59, s59, s55")
        a("s_mul_i32 s59, s59, 50")
        a("s_add_u32 s59, s59, s58")
        a("s_lshl_b32 s59, s59, 10")
        a(f"s_add_u32 s{SWD[n]}, s59, {WO_OFF - SEQ_OFF}")
    a("L_sw_wo_ld:")
    G = 80
    a("s_mov_b32 s54, s53")
    a("v_lshlrev_b32 v23, 4, v3")
    a(f"s_mov_b32 s55, {f32bits(1.0/2048)}")
    a("v_cmp_gt_u32 vcc, 32, v1")
    a("L_sw_gen:")
    a("s_lshr_b32 s41, s54, 5")
    a("s_and_b32 s58, s54, 31")
    a("s_lshr_b32 s59, s41, 1")
    a("s_lshl_b32 s59, s59, 6")
    a("s_and_b32 s47, s41, 1")
    a("s_add_u32 s59, s59, s47")
    a("v_lshl_add_u32 v4, v2, 1, s59")
    a("s_lshr_b32 s47, s58, 4")
    a("s_mul_i32 s45, s41, 65")
    a("s_add_u32 s45, s45, s58")
    a("s_add_u32 s46, s45, 33")
    a("s_add_u32 s45, s45, s47")
    a("s_lshl_b32 s45, s45, 10")
    a("s_lshl_b32 s46, s46, 10")
    a("s_and_b32 s48, s58, 15")
    a("s_lshl_b32 s48, s48, 5")
    a("s_add_u32 s48, s48, s47")
    a("v_add_u32 v5, s48, v23")
    a("v_mul_u32_u24 v5, v4, v5")
    a("v_cvt_f32_u32 v5, v5")
    a("v_cvt_f32_u32 v4, v4")
    for i in range(8):
        if i: a("v_fma_f32 v5, 2.0, v4, v5")
        a(f"v_mul_f32 v{G+i}, s55, v5")
    for i in range(8): a(f"v_fract_f32 v{G+i}, v{G+i}")
    for i in range(8): a(f"v_cos_f32 v{G+8+i}, v{G+i}")
    a("s_cmp_lg_u32 s58, 0")
    a("s_cbranch_scc1 L_gen_plain")
    a("v_mul_f32 v6, 0x3e800000, v4")
    a("v_fract_f32 v6, v6")
    a(f"v_cndmask_b32 v{G}, v{G}, v6, vcc")
    a("v_cos_f32 v7, v6")
    a(f"v_mov_b32 v{G+25}, 0")
    a(f"v_mov_b32 v{G+26}, 0")
    a(f"v_mov_b32 v{G+27}, 0")
    a("v_cndmask_b32 v7, 0, v7, vcc")
    a(f"v_cvt_pk_bf16_f32 v{G+24}, v7, 0")
    a(f"s_add_u32 s48, s45, {16*1024}")
    a(f"buffer_store_dwordx4 {vr(G+24,4)}, v22, s[28:31], s48 offen sc1")
    a("L_gen_plain:")
    for i in range(8): a(f"v_sin_f32 v{G+i}, v{G+i}")
    for i in range(4): a(f"v_cvt_pk_bf16_f32 v{G+16+i}, v{G+8+2*i}, v{G+9+2*i}")
    for i in range(4): a(f"v_cvt_pk_bf16_f32 v{G+20+i}, v{G+2*i}, v{G+1+2*i}")
    a(f"buffer_store_dwordx4 {vr(G+16,4)}, v22, s[28:31], s45 offen sc1")
    a(f"buffer_store_dwordx4 {vr(G+20,4)}, v22, s[28:31], s46 offen sc1")
    a("s_add_u32 s54, s54, 192")
    a("s_cmp_lt_u32 s54, 544")
    a("s_cbranch_scc1 L_sw_gen")

def side_work_finish(a):
    WR = 32
    l = a.label("L_sw_fin")
    a("s_waitcnt vmcnt(4)")
    for n in range(5):
        if n == 4:
            a("s_cmp_ge_u32 s53, 32")
            a(f"s_cbranch_scc1 {l}")
        b = WR + 8*n
        for i in range(4): a(f"v_lshl_or_b32 v{b+i}, v{b+2*i+1}, 16, v{b+2*i}")
        a(f"buffer_store_dwordx4 {vr(b,4)}, v22, s[28:31], s{SWD[n]} offen sc1")
    a(f"{l}:")

def prep(a):
    a("L_prep:")
    a(f"s_sub_u32 s40, s{sSLOT}, 24")
    a("s_and_b32 s27, s40, 1")
    a("s_lshr_b32 s26, s40, 1")
    a("s_lshl_b32 s26, s26, 3")
    a(f"s_add_u32 s26, s26, s{sXCD}")
    make_srd(a, 36, pWS, AB_OFF, AB_SIZE)
    a(f"s_cmp_ge_u32 s{sWAVE}, 5")
    a("s_cbranch_scc1 L_fold_skip")
    make_srd(a, 28, pBX, 0, X_SIZE)
    a("s_lshr_b32 s42, s26, 1")
    a("s_lshl_b32 s42, s42, 5")
    a("s_and_b32 s43, s26, 1")
    a("s_add_u32 s42, s42, s43")
    a("v_lshrrev_b32 v2, 3, v1")
    a("v_and_b32 v3, 7, v1")
    a("v_lshl_add_u32 v4, v2, 1, s42")
    a("v_mul_u32_u24 v5, 1280, v4")
    a("v_lshlrev_b32 v6, 4, v3")
    a("v_add_u32 v10, v5, v6")
    a("v_sub_u32 v7, v6, v5")
    a(f"s_lshl_b32 s44, s27, 1")
    a(f"s_add_u32 s44, s44, s{sWAVE}")
    a("s_cmp_ge_u32 s44, 5")
    a("s_cselect_b32 s45, 5, 0")
    a("s_sub_u32 s44, s44, s45")
    a("s_lshl_b32 s44, s44, 7")
    a("s_add_u32 s45, s44, 20480")
    a(f"v_add_u32 v11, {2048*1280}, v7")
    a(f"v_add_u32 v12, {1024*1280}, v7")
    a("v_cmp_ne_u32 vcc, 0, v4")
    a(f"v_mov_b32 v8, {HUGE}")
    a(f"v_add_u32 v9, {1024*1280}, v10")
    a("v_cndmask_b32 v13, v8, v9, vcc")
    LD = 32
    for hf in range(2):
        for r in range(4): a(f"buffer_load_dwordx4 {vr(LD+8*r+4*hf,4)}, v{10+r}, s[28:31], s44 offen offset:{640*hf}")
    a("v_subrev_u32 v11, 20480, v11")
    a("v_subrev_u32 v12, 20480, v12")
    for hf in range(2):
        for r, (vv, so) in enumerate([(10, 45), (11, 44), (12, 44), (9, 45)]):
            a(f"buffer_load_dwordx4 {vr(LD+32+8*r+4*hf,4)}, v{vv}, s[28:31], s{so} offen offset:{640*hf}")
    XL = 96
    a("s_cmp_lg_u32 s26, 0")
    a("s_cbranch_scc1 L_fold_nx")
    a(f"v_add_u32 v14, {512*1280}, v6")
    a(f"v_add_u32 v15, {1536*1280}, v6")
    a("v_cndmask_b32 v14, v14, v8, vcc")
    a("v_cndmask_b32 v15, v15, v8, vcc")
    for r in range(2):
        for hf in range(2):
            a(f"buffer_load_dwordx4 {vr(XL+8*r+4*hf,4)}, v{14+r}, s[28:31], s44 offen offset:{640*hf}")
    a("L_fold_nx:")
    a("v_and_b32 v5, 3, v2")
    a("v_lshrrev_b32 v4, 2, v2")
    a("v_lshl_or_b32 v5, v4, 3, v5")
    a("v_xor_b32 v5, v5, v3")
    a("v_and_b32 v4, 1, v3")
    a("v_lshl_add_u32 v5, v4, 5, v5")
    a("v_lshlrev_b32 v5, 4, v5")
    a("v_lshrrev_b32 v4, 1, v3")
    a("v_lshl_add_u32 v5, v4, 10, v5")
    a("s_lshl_b32 s45, s44, 5")
    a("v_add_u32 v16, s45, v5")
    a("v_xor_b32 v18, 64, v16")
    a("v_add_u32 v5, s44, v6")
    a("v_add_u32 v17, 40960, v5")
    a("v_lshlrev_b32 v6, 4, v1")
    a("v_add_u32 v6, 43008, v6")
    a("v_cndmask_b32 v17, v17, v6, vcc")
    a("L_fold_skip:")
    a("v_and_b32 v2, 31, v1")
    a("v_lshrrev_b32 v3, 5, v1")
    a("v_lshlrev_b32 v15, 4, v1")
    a(f"s_lshr_b32 s40, s{sWAVE}, 1")
    a("s_add_u32 s40, s40, 2")
    a(f"s_and_b32 s41, s{sWAVE}, 1")
    a(f"s_cmp_lt_u32 s{sWAVE}, 4")
    a(f"s_cselect_b32 s49, s{sWAVE}, s40")
    a("s_cselect_b32 s50, 0, s41")
    a("s_lshl_b32 s54, s49, 6")
    a("s_add_u32 s54, s54, s27")
    a("v_lshl_add_u32 v4, v2, 1, s54")
    AU = 10; SB = [[176, 184], [192, 200]]; HB = [[208, 212], [216, 220]]; UB = [72, 84, 96, 108]; ACC3 = [224, 240, 32]; PH = 112
    a("s_mul_i32 s52, s50, 20480")
    for jj in range(4):
        a(f"v_xor_b32 v5, {2*jj}, v3")
        a("v_xor_b32 v5, v5, v2")
        a("v_lshl_add_u32 v5, v3, 5, v5")
        a("v_lshlrev_b32 v5, 4, v5")
        a(f"v_add_u32 v5, {jj*1024}, v5")
        a(f"v_add_u32 v{AU+jj}, s52, v5")
    a(f"v_lshlrev_b32 v{AU+4}, 4, v3")
    a(f"v_add_u32 v{AU+4}, 40960, v{AU+4}")
    a(f"s_mov_b32 s52, {f32bits(1.0/640)}")
    a("s_cmp_lg_u32 s50, 0")
    a("s_cselect_b32 s53, 0x3e800000, 0")
    a("v_lshlrev_b32 v5, 3, v3")
    a("v_mul_u32_u24 v5, v4, v5")
    a("v_cvt_f32_u32 v5, v5")
    a("v_cvt_f32_u32 v4, v4")
    a("v_mul_f32 v6, 0x41800000, v4")
    for i in range(8):
        if i: a("v_add_f32 v5, v5, v4")
        a(f"v_mul_f32 v{PH+i}, s52, v5")
        a("v_sub_f32 v7, v5, v6")
        a(f"v_mul_f32 v{PH+8+i}, s52, v7")
    a("v_mul_f32 v6, s52, v6")
    a("v_fract_f32 v6, v6")
    for i in range(16): a(f"v_fract_f32 v{PH+i}, v{PH+i}")
    a("v_cos_f32 v19, v6")
    for i in range(16): a(f"v_sin_f32 v{SB[1][0]+i}, v{PH+i}")
    for i in range(16): a(f"v_subrev_f32 v{PH+i}, s53, v{PH+i}")
    for i in range(16): a(f"v_cos_f32 v{SB[0][0]+i}, v{PH+i}")
    a("v_add_f32 v19, v19, v19")
    for r in range(32): a(f"v_mov_b32 v{224+r}, 0")
    def cvts(jb, g): return [f"v_cvt_pk_bf16_f32 v{HB[jb][g]+d}, v{SB[jb][g]+2*d}, v{SB[jb][g]+2*d+1}" for d in range(4)]
    def rot(jb, cur): return [f"v_fma_f32 v{SB[jb][cur^1]+i}, v19, v{SB[jb][cur]+i}, -v{SB[jb][cur^1]+i}" for i in range(8)]
    for x in cvts(0, 0) + cvts(1, 0): a(x)
    a(f"s_cmp_lt_u32 s{sWAVE}, 5")
    a("s_cbranch_scc1 L_fold_go")
    side_work(a)
    side_work_finish(a)
    a("s_branch L_fold_done")
    a("L_fold_go:")
    a("s_cmp_lg_u32 s27, 0")
    a("s_cselect_b32 s46, -1.0, 1.0")
    a("s_mov_b32 s47, s46")
    a("s_mov_b32 s48, 0xffff0000")
    T = 112; R = 144; H = 20
    ng = "neg_lo:[0,1] neg_hi:[0,1]"
    def dfold(src, dst):
        for d in range(4):
            a(f"v_lshlrev_b32 v{dst+2*d}, 16, v{src+d}")
            a(f"v_and_b32 v{dst+2*d+1}, s48, v{src+d}")
            a(f"v_lshlrev_b32 v{H+2*(d&1)}, 16, v{src+4+d}")
            a(f"v_and_b32 v{H+2*(d&1)+1}, s48, v{src+4+d}")
            a(f"v_pk_fma_f32 {vr(dst+2*d,2)}, {vr(H+2*(d&1),2)}, s[46:47], {vr(dst+2*d,2)}")
    for n in range(2):
        a("s_waitcnt vmcnt(%d)" % (8 if n == 0 else 0))
        if n == 0: stamp(a, 9)
        b = LD + 32*n
        for r in range(4): dfold(b + 8*r, T + 8*r)
        for d in range(4):
            p = lambda r: vr(T+8*r+2*d, 2)
            q = lambda r: vr(R+8*r+2*d, 2)
            a(f"v_pk_add_f32 {q(0)}, {p(0)}, {p(1)}")
            a(f"v_pk_add_f32 {q(1)}, {p(0)}, {p(1)} {ng}")
            a(f"v_pk_add_f32 {q(2)}, {p(2)}, {p(3)}")
            a(f"v_pk_add_f32 {q(3)}, {p(2)}, {p(3)} {ng}")
            a(f"v_pk_add_f32 {p(0)}, {q(0)}, {q(2)}")
            a(f"v_pk_add_f32 {p(1)}, {q(0)}, {q(2)} {ng}")
            a(f"v_pk_add_f32 {p(2)}, {q(1)}, {q(3)} {ng}")
            a(f"v_pk_add_f32 {p(3)}, {q(1)}, {q(3)}")
        if n == 0:
            a("s_cmp_lg_u32 s26, 0")
            a("s_cbranch_scc1 L_fold_sp")
            a("s_waitcnt vmcnt(0)")
            dfold(XL, R); dfold(XL + 8, R + 8)
            for d in range(4):
                a(f"v_pk_add_f32 {vr(R+16+2*d,2)}, {vr(R+2*d,2)}, {vr(R+8+2*d,2)}")
                a(f"v_pk_add_f32 {vr(R+2*d,2)}, {vr(R+2*d,2)}, {vr(R+8+2*d,2)} {ng}")
            for e in range(8): a(f"v_cndmask_b32 v{T+24+e}, v{R+e}, v{T+24+e}, vcc")
            for d in range(4): a(f"v_cvt_pk_bf16_f32 v{R+d}, v{R+16+2*d}, v{R+17+2*d}")
            a(f"ds_write_b128 v17, {vr(R,4)}")
            a("L_fold_sp:")
        for i in range(4):
            for d in range(4): a(f"v_cvt_pk_bf16_f32 v{b+4*i+d}, v{T+8*i+2*d}, v{T+8*i+2*d+1}")
            a(f"ds_write_b128 v{16+2*n}, {vr(b+4*i,4)} offset:{(i>>1)*20480 + (i&1)*256}")
    a("L_fold_done:")
    for r in range(16): a(f"v_mov_b32 v{32+r}, 0")
    a("s_waitcnt lgkmcnt(0)")
    stamp(a, 14)
    a("s_barrier")
    stamp(a, 2)
    a("s_mul_i32 s42, s27, 6")
    a("s_add_u32 s42, s42, s49")
    a("s_cmp_gt_u32 s42, 10")
    a("s_cbranch_scc1 L_prep_done")
    def ureads(j, kinds):
        jj = j & 3; o = (j >> 2) * 4096; b = UB[j & 3]; r = []
        for k in kinds:
            if k == 2: r.append(f"ds_read_b128 {vr(b+8,4)}, v{AU+4} offset:{j*32}")
            else: r.append(f"ds_read_b128 {vr(b+4*k,4)}, v{AU+jj} offset:{o + k*20480}")
        return r
    a("s_mov_b32 s45, 5")
    a("s_or_b32 s51, s26, s50")
    a("s_cmp_eq_u32 s51, 0")
    a("s_cselect_b32 s40, 1, 0")
    a(f"s_cmp_lt_u32 s{sWAVE}, 4")
    a("s_cselect_b32 s41, 2, 0")
    a("s_add_u32 s40, s40, s41")
    variants = [[0], [0, 2], [0, 1], [0, 1, 2]]
    for v in range(1, 4):
        a(f"s_cmp_eq_u32 s40, {v}")
        a(f"s_cbranch_scc1 L_f1_v{v}")
    for v, kinds in enumerate(variants):
        a(f"L_f1_v{v}:")
        nm = len(kinds)
        for x in ureads(0, kinds) + ureads(1, kinds): a(x)
        a(f"L_f1_loop{v}:")
        for jj in range(4):
            buf = jj & 1
            va = rot(0, buf) + cvts(0, buf ^ 1)
            if 1 in kinds: va = rot(0, buf) + rot(1, buf) + cvts(0, buf ^ 1) + cvts(1, buf ^ 1)
            rd = ureads(jj + 2, kinds)
            a(f"s_waitcnt lgkmcnt({nm})")
            a("s_nop 0")
            per = len(va) // nm
            for m, k in enumerate(kinds):
                d = vr(ACC3[k], 16)
                a(f"v_mfma_f32_32x32x16_bf16 {d}, {vr(UB[jj]+4*k,4)}, {vr(HB[k & 1][buf],4)}, {d}")
                a(rd[m])
                for x in va[per*m:per*m+per]: a(x)
        for r in range(4): a(f"v_add_u32 v{AU+r}, 4096, v{AU+r}")
        if 2 in kinds: a(f"v_add_u32 v{AU+4}, 128, v{AU+4}")
        a("s_sub_u32 s45, s45, 1")
        a("s_cmp_lg_u32 s45, 0")
        a(f"s_cbranch_scc1 L_f1_loop{v}")
        if v < 3: a("s_branch L_f1_done")
    a("L_f1_done:")
    stamp(a, 5)
    a("s_mul_i32 s43, s42, 33")
    a("s_and_b32 s44, s26, 1")
    a("s_lshl_b32 s44, s44, 4")
    a("s_lshr_b32 s45, s26, 1")
    a("s_add_u32 s44, s44, s45")
    a("s_add_u32 s44, s44, s43")
    a(f"s_mul_i32 s45, s50, {22*33}")
    a("s_add_u32 s44, s44, s45")
    a("s_lshl_b32 s44, s44, 10")
    a("s_waitcnt lgkmcnt(0)")
    a("s_nop 5")
    for jb in range(2):
        b = ACC3[jb]
        if jb == 1:
            a(f"s_cmp_ge_u32 s{sWAVE}, 4")
            a("s_cbranch_scc1 L_f1_one")
        for r in range(8): a(f"v_cvt_pk_bf16_f32 v{b+r}, v{b+2*r}, v{b+2*r+1}")
        for hf in range(2):
            a(f"buffer_store_dwordx4 {vr(b+4*hf,4)}, v15, s[36:39], s44 offen sc1")
            a(f"s_add_u32 s44, s44, {11*33*1024}")
    a("L_f1_one:")
    a("s_cmp_lg_u32 s51, 0")
    a("s_cbranch_scc1 L_prep_done")
    b = ACC3[2]
    for r in range(4): a(f"v_cvt_pk_bf16_f32 v{b+r}, v{b+2*r}, v{b+2*r+1}")
    a("s_add_u32 s43, s43, 32")
    a("s_lshl_b32 s43, s43, 10")
    a(f"buffer_store_dwordx4 {vr(b,4)}, v15, s[36:39], s43 offen sc1")
    a("L_prep_done:")
    a(f"s_cmp_lt_u32 s{sWAVE}, 4")
    a("s_cbranch_scc1 L_A_done")
    get_nonce(a, 2)

W_PROG, W_GO, W_CNT, W_PASS, W_XCH, W_NON = 0, 4, 8, 16, 32, 48
def a_done(a):
    a("L_A_done:")
    stamp(a, 6)
    a(f"v_mov_b32 v23, {LDS_PROG}")
    a(f"s_cmp_lg_u32 s{sWAVE}, 4")
    a("s_cbranch_scc1 L_A_bar")
    a(f"v_mov_b32 v2, s{sNON}")
    a(f"v_mov_b32 v3, s{sNON+1}")
    a(f"ds_write_b64 v23, v[2:3] offset:{W_NON}")
    a("L_A_bar:")
    a("s_waitcnt lgkmcnt(0)")
    a("s_barrier")
    stamp(a, 4)
    a(f"s_lshr_b32 s26, s{sXCD}, 1")
    a("s_lshl_b32 s26, s26, 3")
    a(f"s_and_b32 s27, s{sSLOT}, 7")
    a("s_add_u32 s26, s26, s27")
    a(f"s_and_b32 s27, s{sXCD}, 1")
    a("s_lshl_b32 s27, s27, 2")
    a(f"s_lshr_b32 s40, s{sSLOT}, 3")
    a("s_add_u32 s27, s27, s40")
    a(f"s_cmp_ge_u32 s{sWAVE}, 4")
    a("s_cbranch_scc1 L_aux")

def drained(a, vt):
    a(f"v_mov_b32 v{vt}, 1")
    a("s_mov_b64 exec, 1")
    a(f"ds_add_u32 v23, v{vt} offset:{W_CNT}")
    a("s_mov_b64 exec, -1")

def attention(a):
    SL = OPT.get('slot', 1)
    AKA, AKB, AV, AKB2 = 4, 5, 168, 172
    AREGS = [AKA, AV, AV+1, AV+2, AV+3] + ([AKB2, AKB2+1] if SL else [AKB])
    QA = [8, 14]
    NEG = [32, 48]; S = [64, 80]; O = [96, 112]; P = 128
    KB = [136, 142]; VB = [148, 156]
    PR = 164
    a("L_attn:")
    a(f"ds_read_b32 v24, v23 offset:{W_GO}")
    a(f"ds_read_b64 v[26:27], v23 offset:{W_NON}")
    a(f"s_setprio {OPT.get('pattn', 2)}")
    a(f"s_mul_i32 s40, s26, {Q_HEAD}")
    a(f"s_add_u32 s40, s40, {Q_OFF}")
    make_srd(a, 28, pWS, "s40", Q_HEAD)
    a(f"s_mul_i32 s40, s26, {KV_HEAD}")
    make_srd(a, 32, pWS, "s40", KV_HEAD)
    a("v_and_b32 v2, 31, v1")
    a("v_lshrrev_b32 v3, 5, v1")
    a(f"v_lshlrev_b32 v{AKA}, 4, v1")
    a(f"v_lshlrev_b32 v{AKB}, 3, v2")
    a(f"v_add_u32 v{AKB}, 1024, v{AKB}")
    a(f"v_mov_b32 v20, {HUGE}")
    a("v_cmp_gt_u32 vcc, 32, v1")
    a("s_lshl_b32 s41, s27, 3")
    a(f"s_lshl_b32 s42, s{sWAVE}, 1")
    a("s_add_u32 s41, s41, s42")
    a(f"v_cndmask_b32 v20, v20, v{AKB}, vcc")
    a(f"s_mul_i32 s42, s41, {TQ}")
    a("v_and_b32 v21, 28, v2")
    a("v_add_u32 v21, v21, v2")
    a("v_lshl_add_u32 v21, v3, 2, v21")
    a("v_lshlrev_b32 v21, 4, v21")
    a("v_add_u32 v29, 1280, v21")
    a("s_mov_b32 s48, 0x000fffff")
    a("s_mov_b32 s49, 0x000fffff")
    a("s_mov_b32 s52, 0x07060302")
    a("s_waitcnt lgkmcnt(0)")
    a("v_readfirstlane_b32 s47, v24")
    a(f"v_readfirstlane_b32 s{sNON}, v26")
    a(f"v_readfirstlane_b32 s{sNON+1}, v27")
    a("s_mov_b32 s50, s47")
    a("s_cmp_lg_u32 s47, 0")
    a("s_cbranch_scc1 L_attn_go")
    a("s_waitcnt vmcnt(0)")
    stamp(a, 3)
    drained(a, 24)
    a("L_attn_spin:")
    a(f"s_sleep {OPT.get('asl', 1)}")
    a(f"ds_read_b32 v24, v23 offset:{W_GO}")
    a("s_waitcnt lgkmcnt(0)")
    a("v_readfirstlane_b32 s47, v24")
    a("s_nop 0")
    a("s_cmp_eq_u32 s47, 0")
    a("s_cbranch_scc1 L_attn_spin")
    a("L_attn_go:")
    stamp(a, 7); stamp(a, 7, 2); stamp_real(a, 8, 2)
    a("s_sub_u32 s47, s47, 1")
    a(f"s_mul_i32 s47, s47, {4*TKV}")
    for q in range(2):
        a(f"buffer_load_dwordx4 {vr(QA[q],4)}, v{AKA}, s[28:31], s42 offen offset:{q*TQ} sc1")
        a(f"buffer_load_dwordx2 {vr(QA[q]+4,2)}, v20, s[28:31], s42 offen offset:{q*TQ} sc1")
    a(f"buffer_load_dwordx4 {vr(KB[0],4)}, v{AKA}, s[32:35], s47 offen sc1")
    if SL:
        for b in KB:
            a(f"v_mov_b32 v{b+4}, 0x3f803f80")
            a(f"v_mov_b32 v{b+5}, 0x3f80")
        a("s_mov_b32 exec_hi, 0")
    a(f"buffer_load_dwordx2 {vr(KB[0]+4,2)}, v{AKB}, s[32:35], s47 offen sc1")
    if SL: a("s_mov_b64 exec, -1")
    a("v_mov_b32 v24, 0x3f803f80")
    a("v_cmp_eq_u32 vcc, 20, v2")
    a(f"s_add_u32 s43, s47, {TKV}")
    a("s_nop 0")
    a("v_cndmask_b32 v24, 0, v24, vcc")
    for r in range(16): a(f"v_mov_b32 v{VB[0]+r}, v24")
    a(f"buffer_load_dwordx4 {vr(KB[1],4)}, v{AKA}, s[32:35], s43 offen sc1")
    if SL: a("s_mov_b32 exec_hi, 0")
    a(f"buffer_load_dwordx2 {vr(KB[1]+4,2)}, v{AKB}, s[32:35], s43 offen sc1")
    a("s_mov_b64 exec, s[48:49]")
    a(f"buffer_load_dwordx4 {vr(VB[0],4)}, v29, s[32:35], s47 offen sc1")
    a(f"buffer_load_dwordx4 {vr(VB[0]+4,4)}, v29, s[32:35], s47 offen offset:640 sc1")
    a(f"buffer_load_dwordx4 {vr(VB[1],4)}, v29, s[32:35], s43 offen sc1")
    a(f"buffer_load_dwordx4 {vr(VB[1]+4,4)}, v29, s[32:35], s43 offen offset:640 sc1")
    a("s_mov_b64 exec, -1")
    a("s_cmp_eq_u32 s50, 0")
    a("s_cbranch_scc1 L_attn_cnt")
    a("s_waitcnt vmcnt(12)")
    stamp(a, 3)
    drained(a, 24)
    a("L_attn_cnt:")
    a("v_mov_b32 v22, 5120")
    if OPT.get('zr', 1):
        a("v_cmp_lt_u32 vcc, 20, v2")
        a("v_mov_b32 v21, 5136")
        a("s_nop 0")
        a("v_cndmask_b32 v22, v22, v21, vcc")
    a("v_cmp_gt_u32 vcc, 20, v2")
    for i in range(4): a(f"v_add_u32 v{AV+i}, {(i>>1)*TKV + (i&1)*640}, v29")
    for i in range(4): a(f"v_cndmask_b32 v{AV+i}, v22, v{AV+i}, vcc")
    if SL:
        a("v_cmp_gt_u32 vcc, 32, v1")
        a("v_mov_b32 v22, 5152")
        a(f"v_add_u32 v21, {TKV}, v{AKB}")
        a(f"v_cndmask_b32 v{AKB2}, v22, v{AKB}, vcc")
        a(f"v_cndmask_b32 v{AKB2+1}, v22, v21, vcc")
    make_srd(a, 36, pWS, O_OFF, O_SIZE)
    for q in range(2):
        for r in range(16): a(f"v_mov_b32 v{O[q]+r}, 0")
    LOOPED = [False]
    mm16 = "v_mfma_f32_32x32x16_bf16"; mm8 = "v_mfma_f32_32x32x8_bf16"
    def M1(s, t, q, c): return "s_nop 1" if OPT.get('nom1') and c == "0" and LOOPED[0] else f"{mm16} {vr(s,16)}, {vr(KB[t&1],4)}, {vr(QA[q],4)}, {c}"
    def M2(s, t, q): return "s_nop 0" if OPT.get('nom2') and LOOPED[0] else f"{mm8} {vr(s,16)}, {vr(KB[t&1]+4,2)}, {vr(QA[q]+4,2)}, {vr(s,16)}"
    def M3(t, q): return "s_nop 1" if OPT.get('nopv') else f"{mm16} {vr(O[q],16)}, {vr(VB[t&1],4)}, {vr(P,4)}, {vr(O[q],16)}"
    def M4(t, q): return "s_nop 1" if OPT.get('nopv') else f"{mm16} {vr(O[q],16)}, {vr(VB[t&1]+4,4)}, {vr(P+4,4)}, {vr(O[q],16)}"
    def rowmax(src, dst, first):
        if first:
            a(f"v_max3_f32 v{dst}, v{src}, v{src+1}, v{src+2}")
            a(f"v_max_f32 v{dst}, v{dst}, v{src+15}")
            rng = range(3, 15, 2)
        else: rng = range(0, 16, 2)
        for r in rng: a(f"v_max3_f32 v{dst}, v{dst}, v{src+r}, v{src+r+1}")
    def finish_neg(add):
        a("v_mov_b32 v26, v24")
        a("v_mov_b32 v27, v25")
        a("s_nop 1")
        a("v_permlane32_swap_b32 v24, v26")
        a("v_permlane32_swap_b32 v25, v27")
        a("s_nop 1")
        a("v_max_f32 v24, v24, v26")
        a("v_max_f32 v25, v25, v27")
        if not SL:
            for q in range(2):
                a(f"v_sub_f32 v{NEG[q]}, {add}, v{24+q}")
                for r in range(1, 16): a(f"v_mov_b32 v{NEG[q]+r}, v{NEG[q]}")
            return
        a("s_mov_b32 s45, 0xffff0000")
        a("s_mov_b32 s46, 0x07060302")
        for q in range(2):
            a(f"v_sub_f32 v{24+q}, {add}, v{24+q}")
        for q in range(2):
            a(f"v_and_b32 v26, s45, v{24+q}")
            a(f"v_sub_f32 v27, v{24+q}, v26")
            a("v_and_b32 v28, s45, v27")
            a("v_sub_f32 v27, v27, v28")
            a("v_perm_b32 v26, v28, v26, s46")
            a("v_lshrrev_b32 v27, 16, v27")
            a("s_mov_b32 exec_lo, 0")
            a(f"v_mov_b32 v{QA[q]+4}, v26")
            a(f"v_mov_b32 v{QA[q]+5}, v27")
            a("s_mov_b64 exec, -1")
        a("s_nop 1")
    CNEG = lambda q: "0" if SL else vr(NEG[q], 16)
    a("s_waitcnt vmcnt(6)")
    stamp(a, 8)
    for q in range(2): a(M1(S[q], 0, q, "0"))
    for q in range(2): a(M2(S[q], 0, q))
    a("s_nop 11")
    rowmax(S[0], 24, True)
    a("s_nop 1")
    rowmax(S[1], 25, True)
    finish_neg(hex(f32bits(-float(OPT.get('off', 100)))))
    a(M1(S[0], 0, 0, CNEG(0)))
    a(M2(S[0], 0, 0))
    a(f"ds_read_b32 v{PR}, v23")
    a("s_waitcnt vmcnt(0)")
    a("s_nop 9")
    def check(need):
        l = a.label("L_chk"); ok = a.label("L_chkok")
        a(f"{l}:")
        a("s_waitcnt lgkmcnt(0)")
        a(f"v_readfirstlane_b32 s44, v{PR}")
        a("s_nop 0")
        a(f"s_cmp_ge_u32 s44, {need}")
        a(f"s_cbranch_scc1 {ok}")
        a(f"ds_read_b32 v{PR}, v23")
        a(f"s_branch {l}")
        a(".p2align 3")
        a(f"{ok}:")
    def unit(t, q, s4=(), s1=(), s2=(), s3=(), first=False, nonext=False):
        s = S[q]; sn = S[q ^ 1]
        t1, q1 = (t, 1) if q == 0 else (t + 1, 0)
        tp, qp = (t - 1, 1) if q == 0 else (t, 0)
        E = lambda r: a(f"v_exp_f32 v{s+r}, v{s+r}")
        C = lambda j: a(f"v_perm_b32 v{P+j}, v{s+2*j+1}, v{s+2*j}, s52" if OPT.get('perm') else f"v_cvt_pk_bf16_f32 v{P+j}, v{s+2*j}, v{s+2*j+1}")
        al = OPT.get('al', 1)
        EW = lambda r: a(f"v_exp_f32_e64 v{s+r}, v{s+r}") if al else E(r)
        odd = lambda xs: sum(1 for x in xs if x.startswith("s_")) & 1
        E(0); E(1)
        if not first: a(M4(tp, qp))
        for x in s4: a(x)
        (E if odd(s4) else EW)(2); E(3); E(4)
        if not nonext: a(M1(sn, t1, q1, CNEG(q1)))
        for x in s1: a(x)
        EW(5); E(6); E(7)
        for j in range(4): C(j)
        if not nonext: a(M2(sn, t1, q1))
        for x in s2: a(x)
        EW(8)
        for r in range(9, 13): E(r)
        a(M3(t, q))
        for x in s3: a(x)
        (E if odd(s3) else EW)(13); E(14); E(15)
        for j in range(4, 8): C(j)
    def period(t, o, extra3=()):
        if OPT.get('nods') and LOOPED[0]: o = None
        if o is None:
            if extra3:
                unit(t, 1, s4=["s_waitcnt lgkmcnt(0)"]); unit(t + 1, 0, s3=extra3); return
            unit(t, 1, s4=["s_waitcnt lgkmcnt(0)"]); unit(t + 1, 0); return
        kb = KB[t & 1]; vb = VB[t & 1]
        ok = lds_tile(o + 2); ov = (o >> 1) * LPAIR; av = AV + 2*(o & 1)
        unit(t, 1, s4=["s_waitcnt lgkmcnt(0)"],
             s1=[f"ds_read_b128 {vr(kb,4)}, v{AKA} offset:{ok}"],
             s3=[f"ds_read_b64 {vr(kb+4,2)}, v{AKB2+(o&1)} offset:{ov}" if SL else f"ds_read_b64 {vr(kb+4,2)}, v{AKB} offset:{ok}"])
        unit(t + 1, 0, s4=[f"ds_read_b128 {vr(vb,4)}, v{av} offset:{ov}"],
             s1=[f"ds_read_b128 {vr(vb+4,4)}, v{av+1} offset:{ov}"], s3=extra3)
    rdp = [f"ds_read_b32 v{PR}, v23"]
    a(".p2align 3")
    unit(0, 0, first=True)
    stamp(a, 9)
    check(1)
    for t in range(6):
        if t == 2: check(2)
        period(t, t, rdp if t in (1, 5) else ())
    for r in AREGS: a(f"v_add_u32 v{r}, {3*LPAIR}, v{r}")
    a(f"s_lshl_b32 s45, s{sWAVE}, 2")
    a("v_add_u32 v24, s45, v23")
    a(f"ds_write_b32 v24, v23 offset:{W_PASS}")
    a("s_mov_b32 s45, 2")
    a("s_mov_b32 s46, 7")
    stamp(a, 10); stamp(a, 10, 2); stamp_real(a, 12, 2)
    LOOPED[0] = True
    def body(chk):
        for k in range(8):
            ex = ()
            if k == 7: ex = (rdp if chk else [])
            if k == 6: ex = ["s_sub_u32 s46, s46, 1"]
            if k == 7 and not chk: ex = ["s_cmp_lg_u32 s46, 0"]
            period(k, k, ex)
        for r in AREGS: a(f"v_add_u32 v{r}, {4*LPAIR}, v{r}")
    a("s_cmp_eq_u32 s44, 16")
    a("s_cbranch_scc1 L_attn_fast")
    a(".p2align 3")
    a("L_attn_loop:")
    a("s_add_u32 s45, s45, 2")
    check("s45")
    body(True)
    a("s_cmp_eq_u32 s46, 0")
    a("s_cbranch_scc1 L_attn_last")
    a("s_cmp_lg_u32 s44, 16")
    a("s_cbranch_scc1 L_attn_loop")
    a(".p2align 3")
    a("L_attn_fast:")
    body(False)
    a("s_cbranch_scc1 L_attn_fast")
    a(".p2align 3")
    a("L_attn_last:")
    period(62, None)
    unit(63, 1, nonext=True)
    a("s_nop 1")
    a(M4(63, 1))
    stamp(a, 11); stamp(a, 11, 2); stamp_real(a, 13, 2)
    a("L_attn_post:")
    a("s_lshl_b32 s42, s41, 5")
    a("s_add_u32 s42, s42, s26")
    a("s_mul_i32 s42, s42, 1280")
    a("v_lshlrev_b32 v21, 4, v1")
    for q in range(2):
        a(f"v_mov_b32 v{24+q}, v{O[q]+8}")
        a(f"v_mov_b32 v26, v{O[q]+8}")
        a("s_nop 1")
        a(f"v_permlane32_swap_b32 v26, v{24+q}")
        a("s_nop 0")
        a(f"v_rcp_f32 v26, v{24+q}")
        a("s_nop 0")
        for r in range(12): a(f"v_mul_f32 v{S[q]+r}, v{O[q]+r}, v26")
        for r in range(6): a(f"v_cvt_pk_bf16_f32 v{S[q]+r}, v{S[q]+2*r}, v{S[q]+2*r+1}")
        a(f"buffer_store_dwordx4 {vr(S[q],4)}, v21, s[36:39], s42 offen sc1")
        a(f"buffer_store_dwordx2 {vr(S[q]+4,2)}, v20, s[36:39], s42 offen sc1")
        if q == 0: a(f"s_add_u32 s42, s42, {32*1280}")
    a("s_cmp_eq_u32 s46, 0")
    a("s_cbranch_scc0 L_attn_fin")
    for q in range(2):
        a(f"v_max3_f32 v{30+q}, abs(v{O[q]}), abs(v{O[q]+1}), abs(v{O[q]+2})")
        a(f"v_mul_f32 v{26+q}, 0, v{24+q}")
    for r in range(12):
        for q in range(2): a(f"v_fma_f32 v{26+q}, v{O[q]+r}, 0, v{26+q}")
    for q in range(2):
        a(f"v_max3_f32 v{30+q}, v{30+q}, abs(v{O[q]+3}), abs(v{O[q]+4})")
        a(f"v_max3_f32 v{30+q}, v{30+q}, abs(v{O[q]+5}), abs(v{O[q]+6})")
        a(f"v_max_f32 v{30+q}, v{30+q}, abs(v{O[q]+7})")
    a("v_max_f32 v24, v24, v25")
    a("v_min_f32 v30, v30, v31")
    a("v_mov_b32 v28, 0x76800000")
    a("v_mov_b32 v31, 0x08800000")
    a("v_cmp_u_f32 s[44:45], v26, v27")
    a("v_cmp_nlt_f32 vcc, v24, v28")
    a("v_cmp_lt_f32 s[50:51], v30, v31")
    a("s_nop 1")
    a("s_or_b64 vcc, vcc, s[44:45]")
    a("s_or_b64 vcc, vcc, s[50:51]")
    if OPT.get('forcefb'): a("s_mov_b64 vcc, -1")
    a("s_cbranch_vccnz L_attn_fallback")
    a("L_attn_fin:")
    a("s_lshl_b32 s40, s2, 2")
    a(f"s_add_u32 s40, s40, s{sWAVE}")
    a(f"s_add_u32 s40, s40, {FB}")
    a("s_lshl_b32 s40, s40, 7")
    for i in range(4): a(f"v_mov_b32 v{8+i}, s{sNON+(i&1)}")
    a("s_waitcnt vmcnt(0)")
    stamp(a, 12)
    a("s_mov_b64 exec, 0xff")
    a(f"buffer_store_dwordx4 v[8:11], v21, {sr(sFL,4)}, s40 offen sc1")
    a("s_mov_b64 exec, -1")
    a("s_barrier")
    a("s_branch L_end")
    a("L_attn_fallback:")
    a("s_waitcnt vmcnt(0)")
    for r in ((AKA,) if SL else (AKA, AKB)): a(f"v_subrev_u32 v{r}, {31*LPAIR}, v{r}")
    if SL:
        a("s_mov_b32 exec_lo, 0")
        for q in range(2):
            a(f"v_mov_b32 v{QA[q]+4}, 0")
            a(f"v_mov_b32 v{QA[q]+5}, 0")
        a("s_mov_b64 exec, -1")
    a("v_mov_b32 v24, 0xff800000")
    a("v_mov_b32 v25, 0xff800000")
    a("s_mov_b32 s46, 0")
    a("L_fb_max:")
    a(f"buffer_load_dwordx4 {vr(KB[0],4)}, v{AKA}, s[32:35], s46 offen sc1")
    if SL: a("s_mov_b32 exec_hi, 0")
    a(f"buffer_load_dwordx2 {vr(KB[0]+4,2)}, v{AKB}, s[32:35], s46 offen sc1")
    if SL: a("s_mov_b64 exec, -1")
    a("s_waitcnt vmcnt(0)")
    for q in range(2): a(M1(S[q], 0, q, "0"))
    for q in range(2): a(M2(S[q], 0, q))
    a("s_nop 15")
    rowmax(S[0], 24, False)
    rowmax(S[1], 25, False)
    a(f"s_add_u32 s46, s46, {TKV}")
    a(f"s_cmp_lt_u32 s46, {KV_HEAD}")
    a("s_cbranch_scc1 L_fb_max")
    finish_neg("0")
    for q in range(2):
        for r in range(16): a(f"v_mov_b32 v{O[q]+r}, 0")
    a("s_mov_b32 s46, 0")
    a("L_fb_main:")
    a(f"buffer_load_dwordx4 {vr(KB[0],4)}, v{AKA}, s[32:35], s46 offen sc1")
    if SL: a("s_mov_b32 exec_hi, 0")
    a(f"buffer_load_dwordx2 {vr(KB[0]+4,2)}, v{AKB}, s[32:35], s46 offen sc1")
    if SL: a("s_mov_b64 exec, -1")
    a("s_mov_b64 exec, s[48:49]")
    a(f"buffer_load_dwordx4 {vr(VB[0],4)}, v29, s[32:35], s46 offen sc1")
    a(f"buffer_load_dwordx4 {vr(VB[0]+4,4)}, v29, s[32:35], s46 offen offset:640 sc1")
    a("s_mov_b64 exec, -1")
    a("s_waitcnt vmcnt(0)")
    for q in range(2): a(M1(S[q], 0, q, CNEG(q)))
    for q in range(2): a(M2(S[q], 0, q))
    a("s_nop 15")
    for q in range(2):
        for r in range(16): a(f"v_exp_f32 v{S[q]+r}, v{S[q]+r}")
        a("s_nop 0")
        for j in range(8): a(f"v_cvt_pk_bf16_f32 v{P+j}, v{S[q]+2*j}, v{S[q]+2*j+1}")
        a("s_nop 1")
        a(M3(0, q)); a(M4(0, q))
    a(f"s_add_u32 s46, s46, {TKV}")
    a(f"s_cmp_lt_u32 s46, {KV_HEAD}")
    a("s_cbranch_scc1 L_fb_main")
    a("s_nop 15")
    a("s_branch L_attn_post")

def aux(a):
    a("L_aux:")
    a(f"s_setprio {OPT.get('paux', 0)}")
    a(f"s_sub_u32 s44, s{sWAVE}, 4")
    a("v_lshlrev_b32 v2, 4, v1")
    a("s_waitcnt vmcnt(0)")
    drained(a, 3)
    a("s_cmp_eq_u32 s44, 0")
    a("s_cbranch_scc1 L_kv")
    a("s_cmp_lg_u32 s44, 1")
    a("s_cbranch_scc1 L_aux_wait")
    a("s_lshl_b32 s40, s2, 7")
    a("L_cnt_spin:")
    a(f"s_sleep {OPT.get('asl', 1)}")
    a(f"ds_read_b32 v3, v23 offset:{W_CNT}")
    a("s_waitcnt lgkmcnt(0)")
    a("v_readfirstlane_b32 s41, v3")
    a("s_nop 0")
    a("s_cmp_lt_u32 s41, 8")
    a("s_cbranch_scc1 L_cnt_spin")
    stamp(a, 7)
    set_flag(a, 40, 8, also=FL1*128 if OPT.get('lf', 1) else None)
    a("L_aux_wait:")
    a("s_sleep 4")
    a(f"ds_read_b32 v3, v23 offset:{W_PROG}")
    a("s_waitcnt lgkmcnt(0)")
    a("v_readfirstlane_b32 s41, v3")
    a("s_nop 0")
    a(f"s_cmp_lt_u32 s41, {OPT.get('f2w', 6)}")
    a("s_cbranch_scc1 L_aux_wait")
    if OPT.get('dyn', 1):
        a("s_cmp_lg_u32 s44, 1")
        a("s_cbranch_scc1 L_kv_done")
        make_srd(a, 28, pDBG, 0, 256)
        a("v_mov_b32 v3, 1")
        a("v_mov_b32 v4, 128")
        a("s_mov_b64 exec, 1")
        a("buffer_atomic_add v3, v4, s[28:31], 0 offen sc0")
        a("s_waitcnt vmcnt(0)")
        a("v_add_u32 v3, 1, v3")
        a("ds_write_b32 v23, v3 offset:12")
        a("s_mov_b64 exec, -1")
    a("s_branch L_kv_done")
    a("L_kv:")
    a(f"s_mul_i32 s40, s26, {KV_HEAD}")
    make_srd(a, 28, pWS, "s40", KV_HEAD)
    a(f"v_mul_u32_u24 v6, {LPAIR}, v1")
    a("v_min_u32 v6, %d, v6" % (30*LPAIR))
    for r in range(4): a(f"v_mov_b32 v{8+r}, 0x3f803f80")
    a("ds_write_b128 v6, v[8:11] offset:5120")
    for r in range(4): a(f"v_mov_b32 v{12+r}, 0")
    a("ds_write_b128 v6, v[12:15] offset:5136")
    a("v_mov_b32 v16, 0x3f803f80")
    a("v_mov_b32 v17, 0x3f80")
    a("ds_write_b64 v6, v[16:17] offset:5152")
    a("s_lshr_b32 s41, s26, 3")
    a("s_lshl_b32 s41, s41, 1")
    a(f"s_and_b32 s43, s{sXCD}, 1")
    a("s_lshl_b32 s43, s43, 3")
    a("s_lshl_b32 s42, s27, 1")
    a("v_and_b32 v3, 15, v1")
    a("v_lshrrev_b32 v5, 4, v1")
    a("v_add_u32 v5, 1, v5")
    a("v_and_b32 v4, 7, v1")
    a("v_add_u32 v4, s43, v4")
    a("v_bfe_u32 v6, v1, 3, 1")
    a("v_add_u32 v6, 1, v6")
    a("v_cmp_gt_u32 vcc, 32, v1")
    a("v_and_b32 v7, 1, v1")
    a("v_add_u32 v7, s42, v7")
    a("v_cndmask_b32 v3, v4, v3, vcc")
    a("v_cndmask_b32 v5, v6, v5, vcc")
    a("v_cmp_gt_u32 vcc, 48, v1")
    a("v_add_u32 v6, -48, v1")
    a(f"v_mov_b32 v4, {FL1}")
    a("v_cndmask_b32 v3, v7, v3, vcc")
    a("v_cndmask_b32 v5, 0, v5, vcc")
    a("v_cmp_gt_u32 vcc, 2, v6")
    a("v_cmp_gt_u32 s[46:47], 32, v1")
    a("v_and_b32 v7, 7, v3")
    a("v_lshl_add_u32 v5, v5, 3, v7")
    a("s_or_b64 vcc, vcc, s[46:47]")
    a("v_lshrrev_b32 v3, 3, v3")
    a("v_add_u32 v3, s41, v3")
    a("v_cndmask_b32 v4, v4, 0, vcc")
    a("v_lshl_add_u32 v5, v5, 3, v3")
    a("v_add_u32 v5, v5, v4")
    a("v_lshlrev_b32 v5, 7, v5")
    def poll_once(first=False):
        if first and OPT.get('lf', 1):
            a("s_and_b32 s48, s40, 7")
            a("s_cmp_eq_u32 s48, 0")
            a("s_cselect_b32 exec_lo, -1, 0")
            a("s_cselect_b32 exec_hi, -1, 0xcffff")
        a(f"buffer_load_dwordx2 v[6:7], v5, {sr(sFL,4)}, 0 offen sc1")
        if first and OPT.get('lf', 1): a("s_mov_b64 exec, -1")
        a("s_waitcnt vmcnt(0)")
        a(f"v_cmp_eq_u64 vcc, {sr(sNON,2)}, v[6:7]")
        a("s_sub_u32 s40, s40, 1")
        a("s_cselect_b32 s47, 0xffff, 0")
        a("s_and_b32 s48, vcc_hi, 0xff")
        a("s_lshl_b32 s48, s48, s43")
        a("s_or_b32 s48, s48, vcc_lo")
        a("s_bfe_u32 s49, vcc_hi, 0x80008")
        a("s_lshl_b32 s49, s49, s43")
        a("s_lshr_b32 s45, vcc_lo, 16")
        a("s_or_b32 s45, s45, s49")
        a("s_and_b32 s45, s45, s48")
        a("s_or_b32 s45, s45, s47")
    def pub(off, sreg):
        a(f"v_mov_b32 v4, s{sreg}")
        a(f"ds_write_b32 v23, v4 offset:{off}")
    a(f"s_mov_b32 s40, {POLL_MAX - 1}")
    a("v_mov_b32 v6, 0")
    a("v_mov_b32 v7, 0")
    if OPT.get('padgo'):
        a("L_padgo:")
        a("s_memrealtime s[42:43]")
        a("s_waitcnt lgkmcnt(0)")
        a(f"s_sub_u32 s42, s42, s{sNON}")
        a(f"s_cmp_lt_u32 s42, {OPT['padgo']}")
        a("s_cbranch_scc1 L_padgo")
    a("L_kv_p1:")
    a(f"s_sleep {OPT.get('ksl', 1)}")
    poll_once(True)
    a("s_cmp_lg_u32 s47, 0")
    a("s_cbranch_scc1 L_kv_first")
    a("s_lshr_b32 s48, vcc_hi, 16")
    a("s_lshr_b32 s49, vcc_hi, 18")
    a("s_or_b32 s48, s48, s49")
    a("s_and_b32 s48, s48, 3")
    a("s_cmp_eq_u32 s48, 3")
    a("s_cselect_b32 s48, s45, 0")
    a("s_cmp_eq_u32 s48, 0")
    a("s_cbranch_scc1 L_kv_p1")
    a("L_kv_first:")
    a("s_ff1_i32_b32 s48, s45")
    a("s_add_u32 s49, s48, 1")
    pub(W_GO, 49)
    stamp(a, 7)
    a("s_lshl_b32 s46, 1, s48")
    a(f"s_mul_i32 s48, s48, {4*TKV}")
    a(f"s_add_u32 s48, s48, {2*TKV}")
    for i in range(5):
        a(f"s_mov_b32 m0, {i*1024}")
        a("s_nop 0")
        a("buffer_load_dwordx4 v2, s[28:31], s48 offen sc1 lds")
        if i < 4: a("s_add_u32 s48, s48, 1024")
    a("s_mov_b32 s50, 1")
    a(f"s_mov_b32 s51, {LPAIR}")
    a("L_kv_next:")
    a("s_andn2_b32 s48, s45, s46")
    a("s_cbranch_scc0 L_kv_poll")
    a("s_ff1_i32_b32 s48, s48")
    a("s_bitset1_b32 s46, s48")
    a(f"s_mul_i32 s48, s48, {4*TKV}")
    for i in range(10):
        a(f"s_add_u32 m0, s51, {i*1024 + (64 if i >= 5 else 0)}")
        if i: a("s_add_u32 s48, s48, 1024")
        else: a("s_nop 0")
        a("buffer_load_dwordx4 v2, s[28:31], s48 offen sc1 lds")
    a(f"s_add_u32 s51, s51, {2*LPAIR}")
    a("s_cmp_eq_u32 s50, 1")
    a("s_cbranch_scc0 L_kv_w20")
    a("s_waitcnt vmcnt(10)")
    pub(W_PROG, 50)
    a("s_mov_b32 s50, 2")
    a("s_branch L_kv_next")
    a("L_kv_w20:")
    a("s_waitcnt vmcnt(20)")
    a("s_sub_u32 s49, s50, 1")
    pub(W_PROG, 49)
    a("s_add_u32 s50, s50, 1")
    a("s_branch L_kv_next")
    a("L_kv_poll:")
    a("s_waitcnt vmcnt(0)")
    pub(W_PROG, 50)
    a("s_cmp_eq_u32 s50, 16")
    a("s_cbranch_scc1 L_kv_done")
    poll_once()
    a("s_branch L_kv_next")
    a("L_kv_done:")
    stamp(a, 8)
    a("v_lshlrev_b32 v5, 7, v1")
    a(f"v_add_u32 v5, {192*128}, v5")
    poll(a, 5, 6, sleep=4)
    a(f"s_setprio {OPT.get('pf2', 3)}")
    if OPT.get('dyn', 1):
        a("L_item:")
        a("ds_read_b32 v3, v23 offset:12")
        a("s_waitcnt lgkmcnt(0)")
        a("v_readfirstlane_b32 s40, v3")
        a("s_nop 0")
        a("s_cmp_eq_u32 s40, 0")
        a("s_cbranch_scc1 L_item")
        a("s_sub_u32 s40, s40, 1")
    else:
        a(f"s_sub_u32 s40, 31, s{sSLOT}")
        a("s_cmp_ge_u32 s40, 24")
        a("s_cbranch_scc1 L_wo")
        a(f"s_mul_i32 s41, s{sXCD}, 24")
        a("s_add_u32 s40, s40, s41")
    a("s_cmp_ge_u32 s40, %d" % (0 if OPT.get('nof2') else 187))
    a("s_cbranch_scc1 L_wo")
    a("s_mul_i32 s41, s40, 373")
    a("s_lshr_b32 s41, s41, 12")
    a("s_mul_i32 s42, s41, 11")
    a("s_sub_u32 s42, s40, s42")
    a("s_lshl_b32 s41, s41, 1")
    a("s_cmp_ge_u32 s41, 18")
    a("s_cselect_b32 s43, 17, 0")
    a("s_sub_u32 s41, s41, s43")
    a("s_and_b32 s43, s41, 1")
    a("s_lshl_b32 s45, s44, 4")
    a("s_min_u32 s46, s44, 1")
    a("s_add_u32 s46, s46, s45")
    a("s_mul_i32 s47, s41, 65")
    a("s_add_u32 s47, s47, s46")
    a("s_lshl_b32 s47, s47, 10")
    a(f"s_add_u32 s47, s47, {SEQ_OFF}")
    make_srd(a, 28, pWS, "s47", 17*1024)
    a("s_and_b32 s47, s44, 2")
    a("s_add_u32 s47, s47, s43")
    a("s_mul_i32 s48, s47, 11")
    a("s_add_u32 s48, s48, s42")
    a("s_mul_i32 s48, s48, 33")
    a("s_and_b32 s45, s45, 16")
    a("s_add_u32 s48, s48, s45")
    a("s_lshl_b32 s48, s48, 10")
    a(f"s_add_u32 s48, s48, {AB_OFF}")
    make_srd(a, 32, pWS, "s48", 33*1024)
    make_srd(a, 36, pOUT, 0, OUT_SIZE)
    FB = 64; AC = 8
    a("s_or_b32 s47, s44, s43")
    a("s_cmp_lg_u32 s47, 0")
    a("s_cbranch_scc1 L_f2_nox")
    a(f"s_mov_b32 s49, {16*1024}")
    a("buffer_load_dwordx4 v[24:27], v2, s[28:31], s49 offen sc1")
    a(f"s_mov_b32 s49, {32*1024}")
    a("buffer_load_dwordx4 v[28:31], v2, s[32:35], s49 offen sc1")
    a("L_f2_nox:")
    for k in range(16):
        b = FB + k * 8
        if k % 4 == 0: a(f"s_mov_b32 s49, {(k//4)*4096}")
        a(f"buffer_load_dwordx4 {vr(b,4)}, v2, s[28:31], s49 offen offset:{(k%4)*1024} sc1")
        a(f"buffer_load_dwordx4 {vr(b+4,4)}, v2, s[32:35], s49 offen offset:{(k%4)*1024} sc1")
    stamp(a, 9)
    a("v_and_b32 v5, 31, v1")
    a("v_lshrrev_b32 v4, 5, v1")
    a("s_lshr_b32 s48, s41, 1")
    a("s_lshl_b32 s48, s48, 6")
    a("s_add_u32 s48, s48, s43")
    a("s_lshl_b32 s49, s44, 4")
    a("s_add_u32 s48, s48, s49")
    a("v_lshl_add_u32 v47, v4, 3, s48")
    a("v_mul_u32_u24 v47, 2560, v47")
    a("s_cmp_ge_u32 s42, 6")
    a("s_cselect_b32 s48, 383, 0")
    a("s_lshl_b32 s49, s42, 6")
    a("s_sub_u32 s48, s49, s48")
    a("v_lshl_add_u32 v5, v5, 1, s48")
    a(f"v_mov_b32 v46, {HUGE}")
    a("v_lshlrev_b32 v6, 1, v5")
    a("v_add_u32 v40, 1280, v6")
    a("v_cmp_ge_u32 vcc, 320, v5")
    a("v_sub_u32 v41, 2560, v6")
    a("v_add_u32 v6, -1, v5")
    a("v_cndmask_b32 v40, v46, v40, vcc")
    a("v_cmp_gt_u32 vcc, 319, v6")
    a(f"v_add_u32 v33, {(2048-6)*2560}, v40")
    a("v_sub_u32 v33, v33, v47")
    a("v_cndmask_b32 v41, v46, v41, vcc")
    a("v_add_u32 v32, v47, v40")
    a("v_add_u32 v36, v47, v41")
    a(f"v_add_u32 v37, {(2048-6)*2560}, v41")
    a("v_sub_u32 v37, v37, v47")
    a(f"v_subrev_u32 v34, {1024*2560}, v33")
    a(f"v_subrev_u32 v38, {1024*2560}, v37")
    a(f"v_add_u32 v35, {1024*2560}, v32")
    a(f"v_add_u32 v39, {1024*2560}, v36")
    a(f"v_add_u32 v42, {3*5120}, v33")
    a(f"v_add_u32 v43, {3*5120}, v37")
    a(f"v_mov_b32 v3, {LDS_PROG}")
    a("s_lshl_b32 s48, s44, 10")
    a("v_add_u32 v6, s48, v2")
    a("s_add_u32 s49, s48, 12288")
    a("s_lshl_b32 s50, s44, 12")
    a("s_add_u32 s51, s50, 3072")
    a("s_cmp_eq_u32 s44, 3")
    a(f"s_cmov_b32 s49, {LDS_PROG + 1024}")
    a(f"s_cmov_b32 s51, {LDS_PROG + 1024}")
    a("v_add_u32 v7, s49, v2")
    a("v_add_u32 v44, s50, v2")
    a("v_add_u32 v45, s51, v2")
    a("s_lshl_b32 s49, s44, 2")
    a("v_add_u32 v5, s49, v3")
    for k in range(16):
        a(f"s_waitcnt vmcnt({2*(15-k)})")
        b = FB + k * 8
        d = vr(AC, 16)
        a(f"v_mfma_f32_32x32x16_bf16 {d}, {vr(b,4)}, {vr(b+4,4)}, {'0' if k == 0 else d}")
    a("s_cmp_lg_u32 s47, 0")
    a("s_cbranch_scc1 L_f2_nox2")
    a(f"v_mfma_f32_32x32x16_bf16 {vr(AC,16)}, v[24:27], v[28:31], {vr(AC,16)}")
    a("L_f2_nox2:")
    def spin_min(lbl, off, sl):
        a(f"{lbl}:")
        a(f"ds_read_b128 v[48:51], v3 offset:{off}")
        a("s_waitcnt lgkmcnt(0)")
        a("v_min3_u32 v48, v48, v49, v50")
        a("v_min_u32 v48, v48, v51")
        a("s_nop 0")
        a("v_readfirstlane_b32 s48, v48")
        a("s_nop 0")
        a("s_cmp_lg_u32 s48, 0")
        a(f"s_cbranch_scc1 {lbl}_ok")
        a(f"s_sleep {sl}")
        a(f"s_branch {lbl}")
        a(f"{lbl}_ok:")
    spin_min("L_f2_dead", W_PASS, 4)
    a("s_nop 3")
    for j in range(3): a(f"ds_write_b128 v6, {vr(AC+4*j,4)} offset:{j*4096}")
    a(f"ds_write_b128 v7, {vr(AC+12,4)}")
    a(f"ds_write_b32 v5, v3 offset:{W_XCH}")
    spin_min("L_f2_wait", W_XCH, 2)
    for i in range(3): a(f"ds_read_b128 {vr(8+4*i,4)}, v44 offset:{i*1024}")
    a("ds_read_b128 v[20:23], v45")
    a("s_waitcnt lgkmcnt(0)")
    ng = "neg_lo:[0,1] neg_hi:[0,1]"
    for r in (0, 2):
        a(f"v_pk_add_f32 {vr(48+r,2)}, {vr(8+r,2)}, {vr(12+r,2)}")
        a(f"v_pk_add_f32 {vr(52+r,2)}, {vr(8+r,2)}, {vr(12+r,2)} {ng}")
        a(f"v_pk_add_f32 {vr(56+r,2)}, {vr(20+r,2)}, {vr(16+r,2)}")
        a(f"v_pk_add_f32 {vr(60+r,2)}, {vr(20+r,2)}, {vr(16+r,2)} {ng}")
    for r in (0, 2):
        a(f"v_pk_add_f32 {vr(8+r,2)}, {vr(48+r,2)}, {vr(56+r,2)} {ng}")
        a(f"v_pk_add_f32 {vr(12+r,2)}, {vr(48+r,2)}, {vr(56+r,2)}")
        a(f"v_pk_add_f32 {vr(16+r,2)}, {vr(52+r,2)}, {vr(60+r,2)} {ng}")
        a(f"v_pk_add_f32 {vr(20+r,2)}, {vr(52+r,2)}, {vr(60+r,2)}")
    for k in range(8): a(f"v_cvt_pk_bf16_f32 v{48+k}, v{8+2*k}, v{9+2*k}")
    a("s_cmp_eq_u32 s41, 16")
    a("s_cbranch_scc1 L_f2_nyq")
    for i in range(4):
        st = "buffer_store_short_d16_hi" if i & 1 else "buffer_store_short"
        m1, p1, m2, p2 = (48 + 2*k + (i >> 1) for k in range(4))
        a(f"s_mov_b32 s47, {i*5120}")
        a(f"s_mov_b32 s48, {(3-i)*5120}")
        for val, adr, so in [(m1, 32, "s47"), (p1, 36, "s47"), (p2, 35, "s47"), (m2, 39, "s47"), (m2, 34, "s48"), (p2, 38, "s48"),
                             (p1, 33 if i else 42, "s48" if i else "0"), (m1, 37 if i else 43, "s48" if i else "0")]:
            a(f"{st} v{val}, v{adr}, s[36:39], {so} offen{FLF()}")
    a("s_branch L_wo")
    a("L_f2_nyq:")
    a("s_cmp_lg_u32 s44, 0")
    a("s_cbranch_scc1 L_wo")
    a("s_mov_b32 exec_hi, 0")
    for val, adr in [(48, 32), (50, 36), (50, 42), (48, 43)]:
        a(f"buffer_store_short v{val}, v{adr}, s[36:39], 0 offen{FLF()}")
    a("s_mov_b64 exec, -1")
    a("L_wo:")
    stamp(a, 10)
    a("s_and_b32 s40, s26, 3")
    a("s_lshl_b32 s40, s40, 2")
    a("s_add_u32 s40, s40, s44")
    a(f"s_mul_i32 s40, s40, {50*1024}")
    a(f"s_add_u32 s40, s40, {WO_OFF}")
    make_srd(a, 28, pWS, "s40", 50*1024)
    a("s_waitcnt vmcnt(0)")
    for k in range(OPT.get('nwo', 50)):
        if k % 4 == 0: a(f"s_mov_b32 s49, {(k//4)*4096}")
        a(f"buffer_load_dwordx4 {vr(56+4*k,4)}, v2, s[28:31], s49 offen offset:{(k%4)*1024} sc1")

def tail(a):
    a("L_B_done:")
    a("s_lshr_b32 s40, s26, 2")
    a("s_lshl_b32 s41, s27, 3")
    a("s_add_u32 s41, s41, s40")
    a(f"s_mul_i32 s42, s41, {32*1280}")
    a(f"s_add_u32 s42, s42, {O_OFF}")
    make_srd(a, 28, pWS, "s42", 32*1280)
    a("v_and_b32 v4, 7, v1")
    a("v_bfe_u32 v5, v1, 3, 2")
    a("v_lshlrev_b32 v5, 1, v5")
    a("v_lshl_add_u32 v4, v4, 3, v5")
    a("s_and_b32 s42, s27, 3")
    a("s_lshl_b32 s42, s42, 6")
    a("s_lshr_b32 s43, s27, 2")
    a("s_add_u32 s42, s42, s43")
    a("s_lshl_b32 s42, s42, 2")
    a("s_lshr_b32 s40, s40, 1")
    a("s_add_u32 s42, s42, s40")
    a(f"s_add_u32 s42, s42, {FB}")
    a("v_lshl_add_u32 v4, v4, 2, s42")
    a("v_lshlrev_b32 v4, 7, v4")
    a("s_waitcnt vmcnt(0)")
    stamp(a, 12)
    a("s_barrier")
    stamp(a, 1)
    poll(a, 4, 6, sleep=OPT.get('sl', 0))
    stamp(a, 13)
    a("s_lshl_b32 s40, s44, 10")
    for j in range(10):
        a("s_mov_b32 m0, s40")
        a("s_nop 0")
        a("buffer_load_dwordx4 v2, s[28:31], s40 offen sc1 lds")
        if j < 9: a("s_add_u32 s40, s40, 4096")
    a("v_and_b32 v3, 31, v1")
    a("v_lshrrev_b32 v4, 5, v1")
    a("v_mul_u32_u24 v5, 2560, v4")
    a("v_lshl_add_u32 v5, v3, 3, v5")
    a("v_add_u32 v5, 1024, v5")
    make_srd(a, 32, pOUT, 0, OUT_SIZE)
    a("s_lshl_b32 s41, s41, 5")
    a("v_add_u32 v6, s41, v3")
    a("v_mul_u32_u24 v6, 2560, v6")
    a("s_and_b32 s42, s26, 3")
    a("s_mul_i32 s42, s42, 320")
    a("s_mul_i32 s43, s44, 12800")
    a("v_add_u32 v7, s43, v2")
    a("s_lshl_b32 s43, s44, 12")
    a("s_add_u32 s43, s43, 40960")
    a("v_add_u32 v3, s43, v2")
    a("s_lshl_b32 s43, s44, 10")
    a("s_add_u32 s43, s43, 40960")
    a("v_add_u32 v1, s43, v2")
    a("s_lshl_b32 s45, s44, 4")
    a("s_add_u32 s45, s45, s42")
    a("v_lshl_add_u32 v0, v4, 3, v6")
    a("s_lshl_b32 s43, s44, 6")
    a("s_add_u32 s43, s43, s42")
    a("v_lshl_add_u32 v6, v4, 4, v6")
    a("s_waitcnt vmcnt(%d)" % (6 if OPT.get('prog', 1) else 0))
    a("s_barrier")
    stamp(a, 14)
    if lib.STAMP: a("s_waitcnt lgkmcnt(0)")
    A5, AM, OB = 8, 24, 40
    def rd(buf, kap, base=None):
        b = OB + 4*buf
        if base is not None: return f"ds_read_b128 {vr(b,4)}, v{base} offset:{kap*1280}"
        if kap < 32: return f"ds_read_b128 {vr(b,4)}, v2 offset:{kap*1280}"
        o = (kap - 32) * 5120 // 8
        return None
    def rd_main(buf, kap):
        b = OB + 4*buf
        if kap < 32: return [f"ds_read_b128 {vr(b,4)}, v2 offset:{kap*1280}"]
        g = kap - 32
        return [f"ds_read_b64 {vr(b,2)}, v5 offset:{g*5120}", f"ds_read_b64 {vr(b+2,2)}, v5 offset:{g*5120+1280}"]
    PG = 10 if OPT.get('prog', 1) else 0
    def stream(steps):
        n = len(steps); cnt = [0]*n
        PF = 3
        for k in range(PF):
            r = steps[k][0](k % 4); cnt[k] = len(r)
            for x in r: a(x)
        for k in range(n):
            out = sum(cnt[k+1:min(n, k+PF)])
            a(f"s_waitcnt lgkmcnt({out})")
            d = vr(steps[k][1], 16)
            a(f"v_mfma_f32_32x32x16_bf16 {d}, {vr(steps[k][2],4)}, {vr(OB+4*(k%4),4)}, {'0' if steps[k][3] else d}")
            if PG and k + PF == PG:
                a("s_waitcnt vmcnt(0)")
                a("s_barrier")
            if k + PF < n:
                r = steps[k+PF][0]((k+PF) % 4); cnt[k+PF] = len(r)
                for x in r: a(x)
            if k == PG + 13:
                for j in range(4): a(f"ds_write_b128 v3, {vr(A5+4*j,4)} offset:{j*1024}")
                cnt[k+PF] += 4
            if k == 32:
                a("s_barrier")
                for i in range(4): a(f"ds_read_b128 {vr(A5+4*i,4)}, v1 offset:{i*4096}")
                cnt[k+PF] += 4
            if k == 38:
                for i in range(1, 4):
                    a(f"v_pk_add_f32 {vr(A5,2)}, {vr(A5,2)}, {vr(A5+4*i,2)}")
                    a(f"v_pk_add_f32 {vr(A5+2,2)}, {vr(A5+2,2)}, {vr(A5+4*i+2,2)}")
            if k == 40:
                a(f"v_cvt_pk_bf16_f32 v{A5}, v{A5}, v{A5+1}")
                a(f"v_cvt_pk_bf16_f32 v{A5+1}, v{A5+2}, v{A5+3}")
                a(f"buffer_store_dwordx2 {vr(A5,2)}, v0, s[32:35], s45 offen offset:256{FLP()}")
    main = [((lambda kap: lambda buf: rd_main(buf, kap))(kap), AM, 56 + 4*(10+kap), kap == 0) for kap in range(40)]
    a("s_cmp_eq_u32 s44, 3")
    a("s_cbranch_scc1 L_tail3")
    q5 = [((lambda i: lambda buf: [f"ds_read_b128 {vr(OB+4*buf,4)}, v7 offset:{i*1280}"])(i), A5, 56 + 4*i, i == 0) for i in range(10)]
    stream(main[:PG] + q5 + main[PG:])
    a("s_branch L_tail_join")
    a("L_tail3:")
    q5 = [((lambda i: lambda buf: rd_main(buf, 30 + i))(i), A5, 56 + 4*i, i == 0) for i in range(10)]
    stream(main[:PG] + q5 + main[PG:])
    a("L_tail_join:")
    stamp(a, 11)
    a("s_nop 10")
    for r in range(8): a(f"v_cvt_pk_bf16_f32 v{AM+r}, v{AM+2*r}, v{AM+2*r+1}")
    a("s_nop 1")
    for h2 in range(2):
        a(f"v_permlane32_swap_b32 v{AM+4*h2}, v{AM+4*h2+2}")
        a(f"v_permlane32_swap_b32 v{AM+4*h2+1}, v{AM+4*h2+3}")
    for h2 in range(2):
        a(f"buffer_store_dwordx4 {vr(AM+4*h2,4)}, v6, s[32:35], s43 offen offset:{32*h2}{FLP()}")
    a("L_end:")
    if OPT.get('pad'):
        a("L_pad:")
        a("s_memrealtime s[40:41]")
        a("s_waitcnt lgkmcnt(0)")
        a(f"s_sub_u32 s40, s40, s{sNON}")
        a(f"s_cmp_lt_u32 s40, {OPT['pad']}")
        a("s_cbranch_scc1 L_pad")
    if lib.STAMP:
        a("s_waitcnt vmcnt(0)")
        stamp(a, 15); stamp_real(a, 17)
        stamp_flush(a, 18, pWS, sWAVE, 0)
    a("L_exit:")
    a("s_endpgm")

KNAME = "concat_heads__mha_block__spectral_fnet__prompt_kernel"
def kernel(a):
    kernel_header(a, KNAME)
    if OPT.get('early'): a("s_memrealtime s[98:99]")
    a("s_cmp_ge_u32 s2, 256")
    a("s_cbranch_scc1 L_exit")
    if lib.STAMP:
        for i in range(18): a(f"s_mov_b32 s{60+2*i}, 0")
    stamp(a, 0); stamp_real(a, 16)
    a("s_load_dwordx8 s[4:11], s[0:1], 0")
    a("s_load_dwordx4 s[12:15], s[0:1], 64")
    a("s_load_dwordx2 s[16:17], s[0:1], 80")
    a("v_lshrrev_b32 v1, 6, v0")
    a(f"s_and_b32 s{sXCD}, s2, 7")
    a(f"v_readfirstlane_b32 s{sWAVE}, v1")
    a(f"s_lshr_b32 s{sSLOT}, s2, 3")
    a("v_and_b32 v1, 63, v0")
    a(f"s_and_b32 s26, s{sXCD}, 1")
    a("s_lshl_b32 s26, s26, 3")
    a(f"s_and_b32 s27, s{sSLOT}, 7")
    a("s_add_u32 s26, s26, s27")
    a(f"s_lshr_b32 s27, s{sSLOT}, 3")
    a("s_lshl_b32 s27, s27, 2")
    a(f"s_lshr_b32 s40, s{sXCD}, 1")
    a("s_add_u32 s27, s27, s40")
    a(f"s_lshl_b32 s40, s2, 3")
    a(f"s_add_u32 s40, s40, s{sWAVE}")
    a("s_waitcnt lgkmcnt(0)")
    make_srd(a, sFL, pWS, FL_OFF, FL_SIZE)
    a("s_cmp_lg_u32 s40, 7")
    a("s_cbranch_scc1 L_no_nonce")
    if OPT.get('early'): a("s_mov_b64 s[40:41], s[98:99]")
    else: a("s_memrealtime s[40:41]")
    make_srd(a, 28, pDBG, 0, 256)
    a("s_waitcnt lgkmcnt(0)")
    a("s_or_b32 s40, s40, 1")
    a("v_mov_b32 v2, s40")
    a("v_mov_b32 v3, s41")
    a("v_mov_b32 v4, 0")
    a("buffer_store_dwordx2 v[2:3], v4, s[28:31], 0 offen sc1")
    a("L_no_nonce:")
    a(f"s_cmp_lg_u32 s{sWAVE}, 0")
    a("s_cbranch_scc1 L_no_init")
    a(f"v_mov_b32 v2, {LDS_PROG}")
    a("v_mov_b32 v4, 0")
    a("v_mov_b32 v5, 0")
    for i in range(8): a(f"ds_write_b64 v2, v[4:5] offset:{8*i}")
    a("s_waitcnt lgkmcnt(0)")
    a("L_no_init:")
    if OPT.get('touch', 0) & 1:
        a(f"s_cmp_lg_u32 s{sWAVE}, 1")
        a("s_cbranch_scc1 L_no_code")
        a("s_getpc_b64 s[40:41]")
        a("L_pc:")
        a(f"s_sub_u32 s40, s40, L_pc-{KNAME}")
        a("s_subb_u32 s41, s41, 0")
        a(f"s_mul_i32 s42, s{sSLOT}, 1280")
        a("v_lshlrev_b32 v2, 4, v1")
        a("v_add_u32 v2, s42, v2")
        a(f"v_min_u32 v2, L_exit-{KNAME}-1024-16, v2")
        for i in range(2): a(f"global_load_dwordx4 v[240:243], v2, s[40:41] offset:{i*1024}")
        a("L_no_code:")
    if OPT.get('touch', 0) & 2:
        a(f"s_cmp_lg_u32 s{sWAVE}, 2")
        a("s_cbranch_scc1 L_no_tlb")
        make_srd(a, 28, pWS, 0, FL_OFF + FL_SIZE)
        a(f"v_mul_u32_u24 v2, {OPT.get('tstr', 0x44000)}, v1")
        a("buffer_load_dword v240, v2, s[28:31], 0 offen sc1")
        make_srd(a, 28, pOUT, 0, OUT_SIZE)
        a("v_mul_u32_u24 v2, 0x14000, v1")
        a("buffer_load_dword v241, v2, s[28:31], 0 offen sc1")
        a("L_no_tlb:")
    a(f"s_cmp_ge_u32 s{sSLOT}, 24")
    a("s_cbranch_scc1 L_prep")
    a(f"s_cmp_lt_u32 s{sWAVE}, 4")
    a("s_cbranch_scc1 L_compute")
    gemm_loader(a)
    gemm_compute(a)
    prep(a)
    a_done(a)
    attention(a)
    aux(a)
    tail(a)
    return kernel_desc(KNAME, 256, 100)

HEADER = open('concat_heads__mha_block__spectral_fnet__prompt.s.ref').read().split("; Override")[0]
def main(out):
    a = Asm()
    a('.amdgcn_target "amdgcn-amd-amdhsa--gfx950"')
    a(".text")
    d = kernel(a)
    txt = HEADER + "; @launch grid=(256,1,1) block=(512,1,1) lds=163840\n" + a.text() + '.section .rodata,"a"\n.p2align 6\n' + d
    open(out, "w").write(txt)

if __name__ == "__main__":
    for x in sys.argv[2:]:
        if x == "stamp": lib.STAMP = True
        elif x == "rt": lib.STAMP = True; lib.STAMPRT = True
        elif x == "gst": lib.STAMP = True; lib.STAMPSET = 1
        elif x == "cst": lib.STAMP = True; lib.STAMPSET = 2
        else:
            k, _, v = x.partition("=")
            OPT[k] = int(v) if v else 1
    main(sys.argv[1] if len(sys.argv) > 1 else "v20.s")
```

```python
import sys, struct
from lib import *
import lib

TKV = 2560; KV_HEAD = 64*TKV; KV_OFF = 0; KV_SIZE = 32*KV_HEAD
TQ = 1280; Q_HEAD = 64*TQ; Q_OFF = KV_SIZE; Q_SIZE = 32*Q_HEAD
O_OFF = Q_OFF + Q_SIZE; O_SIZE = 64*32*1280
SEQ_OFF = O_OFF + O_SIZE; SEQ_SIZE = 17*65*1024
AB_OFF = SEQ_OFF + SEQ_SIZE; AB_SIZE = 4*11*33*1024
WO_OFF = AB_OFF + AB_SIZE; WO_SIZE = 16*50*1024
FL_OFF = 16*1024*1024; FL_SIZE = 1536*128
FA, FB, FL1 = 0, 256, 1280
X_SIZE = 2048*1280; OUT_SIZE = 2048*2560
HUGE = 0x40000000
QSCALE = (20 ** -0.5) * 1.4426950408889634
NDMA = 155; LPAIR = 5184
LDS_PROG = 31*LPAIR
def lds_tile(t): return ((t-2)>>1)*LPAIR + ((t-2)&1)*TKV
def need(tile): return ((tile-1)*TKV + 4095)//4096
NEED = [need(4), need(7), need(15), need(23), 39]
POLL_MAX = 200000
def f32bits(x): return struct.unpack('<I', struct.pack('<f', x))[0]
OPT = {}
FLS = ['', ' sc1', ' nt', ' sc0 sc1', ' sc1 nt']
def FLP(): return FLS[OPT.get('flp', 0)]
def FLF(): return FLS[OPT.get('flf', 1)]

sWAVE = 3
pX, pW, pWO, pBX, pOUT, pDBG, pWS = 4, 6, 8, 10, 12, 14, 16
sNON = 18
sFL = 20
sXCD, sSLOT = 24, 25
STG = 36864
NS = 4

def poll(a, vaddr, vtmp, cnt=40, sleep=1):
    l = a.label("L_poll"); d = a.label("L_pollok")
    a(f"s_mov_b32 s{cnt}, {POLL_MAX}")
    a(f"{l}:")
    a(f"buffer_load_dwordx2 {vr(vtmp,2)}, v{vaddr}, {sr(sFL,4)}, 0 offen sc1")
    a("s_waitcnt vmcnt(0)")
    a(f"v_cmp_ne_u64 vcc, {sr(sNON,2)}, {vr(vtmp,2)}")
    a(f"s_sub_u32 s{cnt}, s{cnt}, 1")
    a(f"s_cbranch_vccz {d}")
    a(f"s_cmp_eq_u32 s{cnt}, 0")
    a(f"s_cbranch_scc1 {d}")
    if sleep: a(f"s_sleep {sleep}")
    a(f"s_branch {l}")
    a(f"{d}:")

def get_nonce(a, vt, srd=28, cnt=40):
    make_srd(a, srd, pDBG, 0, 256)
    l = a.label("L_non"); d = a.label("L_nonok")
    a(f"v_mov_b32 v{vt}, 0")
    a(f"s_mov_b32 s{cnt}, {POLL_MAX}")
    a(f"{l}:")
    a(f"buffer_load_dwordx2 {vr(vt+2,2)}, v{vt}, {sr(srd,4)}, 0 offen sc1")
    a("s_waitcnt vmcnt(0)")
    a(f"v_readfirstlane_b32 s{sNON}, v{vt+2}")
    a(f"v_readfirstlane_b32 s{sNON+1}, v{vt+3}")
    a(f"s_sub_u32 s{cnt}, s{cnt}, 1")
    a(f"s_cmp_lg_u32 s{sNON}, 0")
    a(f"s_cbranch_scc1 {d}")
    a(f"s_cmp_eq_u32 s{cnt}, 0")
    a(f"s_cbranch_scc1 {d}")
    a("s_sleep 2")
    a(f"s_branch {l}")
    a(f"{d}:")

def set_flag(a, sidx, vt, also=None):
    for i in range(4): a(f"v_mov_b32 v{vt+i}, s{sNON+(i&1)}")
    a(f"v_lshlrev_b32 v{vt+4}, 4, v1")
    a("s_mov_b64 exec, 0xff")
    if also is not None:
        a(f"s_add_u32 s41, s{sidx}, {also}")
        a(f"buffer_store_dwordx4 {vr(vt,4)}, v{vt+4}, {sr(sFL,4)}, s41 offen")
    a(f"buffer_store_dwordx4 {vr(vt,4)}, v{vt+4}, {sr(sFL,4)}, s{sidx} offen sc1")
    a("s_mov_b64 exec, -1")

def gemm_loader(a):
    sA, sB = 28, 32
    a("L_loader:")
    a(f"s_sub_u32 s44, s{sWAVE}, 4")
    a("v_lshrrev_b32 v2, 3, v1")
    a("s_lshl_b32 s40, s44, 3")
    a("v_add_u32 v2, s40, v2")
    a("v_mul_u32_u24 v2, 1280, v2")
    a("v_lshrrev_b32 v3, 4, v1")
    a("s_and_b32 s40, s44, 1")
    a("s_lshl_b32 s40, s40, 2")
    a("v_or_b32 v4, s40, v3")
    a("v_and_b32 v5, 7, v1")
    a("v_xor_b32 v4, v4, v5")
    a("v_lshl_add_u32 v10, v4, 4, v2")
    a("s_lshl_b32 s45, s44, 10")
    a(f"s_lshr_b32 s40, s{sSLOT}, 3")
    a(f"s_mul_i32 s40, s40, {OPT.get('ra', 5)}")
    a(f"s_and_b32 s41, s{sSLOT}, 7")
    a(f"s_mul_i32 s41, s41, {OPT.get('rb', 5)}")
    a("s_add_u32 s40, s40, s41")
    a(f"s_mul_i32 s41, s{sXCD}, {OPT.get('rc', 3)}")
    a("s_add_u32 s40, s40, s41")
    a("s_mul_i32 s41, s40, 6554")
    a("s_lshr_b32 s41, s41, 16")
    a("s_mul_i32 s41, s41, 10")
    a("s_sub_u32 s47, s40, s41")
    a("s_lshl_b32 s40, s44, 4")
    a("v_lshrrev_b32 v2, 2, v1")
    a("v_add_u32 v2, s40, v2")
    a("v_mul_u32_u24 v2, 3840, v2")
    a("v_and_b32 v3, 3, v1")
    a("v_lshrrev_b32 v4, 5, v1")
    a("v_lshlrev_b32 v4, 1, v4")
    a("v_xor_b32 v3, v3, v4")
    a("v_lshl_add_u32 v11, v3, 4, v2")
    a("s_mul_i32 s46, s44, 5120")
    a("s_mul_i32 s50, s26, 163840")
    a("s_mul_i32 s51, s27, 320")
    a("s_sub_u32 s52, 2457600, s51")
    a("s_waitcnt lgkmcnt(0)")
    make_srd(a, sA, pX, "s50", 163840)
    def issue_x(c):
        sl = c % NS
        a("s_lshl_b32 s48, s47, 7")
        for j in range(4):
            a(f"s_add_u32 m0, s45, {sl*STG + j*4096}")
            if j: a(f"s_add_u32 s48, s48, 40960")
            else: a("s_mul_i32 s49, s47, 245760")
            a(f"buffer_load_dwordx4 v10, {sr(sA,4)}, s48 offen lds")
    def issue_w(c):
        sl = c % NS
        for i in range(5):
            a(f"s_add_u32 m0, s46, {sl*STG + 16384 + i*1024 - i*64}")
            if i == 0:
                a("s_add_u32 s47, s47, 1")
            elif i == 1:
                a("s_cmp_eq_u32 s47, 10")
                a("s_cmov_b32 s47, 0")
            else: a("s_nop 0")
            a(f"buffer_load_dwordx4 v11, {sr(sB,4)}, s49 offen offset:{i*64} lds")
    def issue(c): issue_x(c); issue_w(c)
    stamp(a, 12, 1)
    issue_x(0)
    stamp(a, 13, 1)
    make_srd(a, sB, pW, "s51", "s52")
    issue_w(0)
    stamp(a, 14, 1)
    issued = 1
    pre = OPT.get('pre', 2)
    for c in range(1, pre): issue(c); issued += 1
    for c in range(10):
        a(f"s_waitcnt vmcnt({9*(issued-c-1)})")
        if c in (0, 9): stamp(a, {0: 2, 9: 5}[c])
        stamp(a, c + 1, 1)
        a("s_barrier")
        if c == 0: stamp(a, 11, 1)
        while issued < min(10, c + 1 + (OPT.get('dep', 2) if c < OPT.get('depsw', 10) else 3)): issue(issued); issued += 1
    make_srd(a, sFL, pWS, FL_OFF, FL_SIZE)
    get_nonce(a, 2)
    a("s_branch L_A_done")

AX, AWA, EA = 8, 10, 16
FR = 24
ACC = 96
def gemm_loop(a, isv, epi):
    XB = [FR, FR + 36, 176, 212]
    def rdx(kk, m, b): sl, st = divmod(kk, 2); return f"ds_read_b128 {vr(b+4*m,4)}, v{AX+st} offset:{sl*STG + m*2048}"
    def rdw(kk, T, b): sl, st = divmod(kk, 2); return [f"ds_read_b64_tr_b16 {vr(b+16+4*T+2*t,2)}, v{AWA+T} offset:{sl*STG + st*10240 + t*256}" for t in range(2)]
    def reads(kk, b):
        r = rdw(kk, 0, b) + [rdx(kk, m, b) for m in range(4)]
        for T in range(1, 5): r += rdw(kk, T, b)
        return r
    def mfma(b, T, m):
        d = vr(ACC + 16*T + 4*m, 4); w = vr(b + 16 + 4*T, 4); x = vr(b + 4*m, 4)
        return f"v_mfma_f32_16x16x32_bf16 {d}, {x}, {w}, {d}" if isv else f"v_mfma_f32_16x16x32_bf16 {d}, {w}, {x}, {d}"
    for r in range(80): a(f"v_mov_b32 v{ACC+r}, 0")
    a(f"s_mov_b32 s40, {2*STG}")
    a("s_mov_b32 s41, 4")
    a("s_barrier")
    stamp(a, 2)
    for r in reads(0, XB[0]): a(r)
    lp = a.label("L_gemm"); last = a.label("L_gemm_last")
    a(".p2align 3")
    a(f"{lp}:")
    for kk in range(4):
        a("s_waitcnt lgkmcnt(0)")
        ms = [mfma(XB[kk & 1], T, m) for T in range(5) for m in range(4)]
        a(ms[0])
        if kk == 1: a("s_barrier")
        if kk == 3:
            for i in range(2): a(f"v_add_u32 v{AX+i}, s40, v{AX+i}")
            for i in range(5): a(f"v_add_u32 v{AWA+i}, s40, v{AWA+i}")
            a("s_sub_u32 s40, 0, s40")
            a("s_sub_u32 s41, s41, 1")
            a("s_barrier")
            a("s_cmp_eq_u32 s41, 0")
            a(f"s_cbranch_scc1 {last}")
        nx = reads((kk + 1) & 3, XB[(kk + 1) & 1])
        for i in range(1, 20):
            if i - 1 < len(nx): a(nx[i-1])
            a(ms[i])
    a(f"s_branch {lp}")
    a(f"{last}:")
    bufs = [XB[0], XB[2], XB[3], XB[1]]
    def order(k0):
        r = []
        for k in (k0, k0 + 1): r += rdw(k, 0, bufs[k]) + [rdx(k, m, bufs[k]) for m in range(4)]
        return r
    first = order(0)
    rest01 = [x for T in range(1, 5) for k in (0, 1) for x in rdw(k, T, bufs[k])]
    second = order(2)
    rest23 = [[x for k in (2, 3) for x in rdw(k, T, bufs[k])] for T in range(5)]
    ms = [mfma(XB[1], T, m) for T in range(5) for m in range(4)]
    q = first + rest01
    pos = 0
    for i in range(1, 20):
        for _ in range(2 if i < 10 else 1):
            if pos < len(q): a(q[pos]); pos += 1
        a(ms[i])
    a("s_barrier")
    q = second + rest23[1] + rest23[2] + rest23[3] + rest23[4]
    a("s_waitcnt lgkmcnt(0)")
    pos = 0
    for T in range(5):
        e = epi(T - 1) if T >= 1 else []
        per = -(-len(e) // 12)
        for i in range(16):
            if i == 8 and T < 2: a(f"s_waitcnt lgkmcnt({min(15, pos - (12 + 4*T))})" if T == 0 else "s_waitcnt lgkmcnt(0)")
            a(mfma(bufs[i >> 2], T, i & 3))
            for _ in range(2):
                if pos < len(q): a(q[pos]); pos += 1
            if i >= 4:
                for x in e[per*(i-4):per*(i-3)]: a(x)
    stamp(a, 5)
    a("s_nop 7")
    for x in epi(4): a(x)

def gemm_compute(a):
    a("L_compute:")
    a("v_and_b32 v2, 15, v1")
    a("v_lshrrev_b32 v3, 4, v1")
    a(f"s_and_b32 s42, s{sWAVE}, 1")
    a(f"s_lshr_b32 s43, s{sWAVE}, 1")
    a("s_lshl_b32 s40, s42, 6")
    a("v_add_u32 v4, s40, v2")
    a("v_lshlrev_b32 v4, 7, v4")
    a("v_lshrrev_b32 v5, 1, v2")
    a("v_xor_b32 v5, v5, v3")
    a(f"v_lshl_add_u32 v{AX}, v5, 4, v4")
    a(f"v_xor_b32 v{AX+1}, 64, v{AX}")
    a("v_lshrrev_b32 v4, 5, v1")
    a("v_mul_u32_u24 v4, 5120, v4")
    a("v_and_b32 v5, 1, v3")
    a("v_lshrrev_b32 v6, 2, v2")
    a("v_lshl_add_u32 v6, v5, 3, v6")
    a("v_lshl_add_u32 v4, v6, 6, v4")
    a("v_add_u32 v4, 16384, v4")
    a("v_lshlrev_b32 v5, 2, v5")
    a("v_and_b32 v6, 3, v1")
    a("s_mul_i32 s44, s43, 20")
    def waddr(T, g):
        a(f"v_and_b32 v15, 7, v{g}")
        a("v_xor_b32 v15, v15, v5")
        a("v_lshl_add_u32 v15, v15, 3, v4")
        a(f"v_lshrrev_b32 v{g}, 3, v{g}")
        a(f"v_lshl_add_u32 v{AWA+T}, v{g}, 10, v15")
    a("s_lshl_b32 s45, s26, 2")
    a("s_lshl_b32 s42, s42, 1")
    a("s_add_u32 s42, s42, s45")
    a("s_and_b32 s45, s27, 3")
    a("s_lshl_b32 s45, s45, 3")
    a("s_lshl_b32 s43, s43, 2")
    a("s_add_u32 s43, s43, s45")
    a("s_cmp_ge_u32 s27, 8")
    a("s_cbranch_scc1 L_compute_v")
    for T in range(5):
        if T < 4:
            a(f"s_add_u32 s45, s44, {5*T}")
            a("v_add_u32 v7, s45, v6")
        else:
            a("s_add_u32 s45, s44, 4")
            a("v_mad_u32_u24 v7, v6, 5, s45")
        waddr(T, 7)
    a("s_cmp_ge_u32 s27, 4")
    for reg, k, q in [(44, KV_HEAD, Q_HEAD), (45, TKV, TQ), (46, f32bits(1.0), f32bits(QSCALE)), (47, KV_OFF, Q_OFF), (48, KV_SIZE, Q_SIZE)]:
        a(f"s_mov_b32 s{reg}, {q}")
        a(f"s_cmov_b32 s{reg}, {k}")
    make_srd(a, 28, pWS, "s47", "s48")
    a("s_mul_i32 s47, s43, s44")
    a("s_mul_i32 s48, s42, s45")
    a("s_add_u32 s47, s47, s48")
    a(f"v_lshlrev_b32 v{EA}, 4, v1")
    a(f"v_add_u32 v{EA+1}, s45, v{EA}")
    a("v_lshrrev_b32 v4, 5, v1")
    a("v_mul_lo_u32 v4, v4, s44")
    a("v_and_b32 v5, 31, v1")
    a("v_lshlrev_b32 v5, 3, v5")
    a("v_lshl_add_u32 v4, v4, 1, v5")
    a(f"v_add_u32 v{EA+2}, 1024, v4")
    a(f"v_add_u32 v{EA+3}, s45, v{EA+2}")
    a("s_mov_b32 s48, s47")
    a("s_add_u32 s49, s47, s44")
    def epi_qk(T):
        b = ACC + 16*T; e = []
        for r in range(16): e.append(f"v_mul_f32 v{b+r}, s46, v{b+r}")
        for r in range(8): e.append(f"v_cvt_pk_bf16_f32 v{b+r}, v{b+2*r}, v{b+2*r+1}")
        e.append("s_nop 0")
        for u in range(2):
            e.append(f"v_permlane16_swap_b32 v{b+4*u}, v{b+4*u+2}")
            e.append(f"v_permlane16_swap_b32 v{b+4*u+1}, v{b+4*u+3}")
        for u in range(2):
            if T < 4: e.append(f"buffer_store_dwordx4 {vr(b+4*u,4)}, v{EA+u}, s[28:31], s48 offen sc1")
            else:
                e.append(f"buffer_store_dwordx2 {vr(b+4*u,2)}, v{EA+2+u}, s[28:31], s47 offen sc1")
                e.append(f"buffer_store_dwordx2 {vr(b+4*u+2,2)}, v{EA+2+u}, s[28:31], s49 offen sc1")
        if T < 3: e.append("s_add_u32 s48, s48, s44")
        return e
    gemm_loop(a, False, epi_qk)
    a("s_branch L_A_done")
    a("L_compute_v:")
    for T in range(5):
        a(f"s_add_u32 s45, s44, {4*T}")
        a("v_add_u32 v7, s45, v6")
        waddr(T, 7)
    make_srd(a, 28, pWS, KV_OFF, KV_SIZE)
    a(f"s_mov_b32 s44, {KV_HEAD}")
    a("s_mul_i32 s47, s43, s44")
    a(f"s_mul_i32 s48, s42, {TKV}")
    a("s_add_u32 s47, s47, s48")
    a("v_lshrrev_b32 v7, 5, v1")
    a("v_mul_u32_u24 v7, 640, v7")
    a("v_and_b32 v15, 1, v3")
    a("v_lshl_add_u32 v7, v15, 6, v7")
    a("v_add_u32 v7, 1280, v7")
    for T in range(5):
        a(f"v_add_u32 v4, {16*T}, v2")
        a("v_mul_u32_u24 v5, 3277, v4")
        a("v_lshrrev_b32 v5, 16, v5")
        a("v_mul_u32_u24 v6, 20, v5")
        a("v_sub_u32 v4, v4, v6")
        a("v_and_b32 v6, 28, v4")
        a("v_add_u32 v4, v4, v6")
        a("v_mul_lo_u32 v5, v5, s44")
        a("v_lshl_add_u32 v4, v4, 4, v5")
        a(f"v_add_u32 v{EA+T}, v7, v4")
    def epi_v(T):
        b = ACC + 16*T; e = []
        for r in range(8): e.append(f"v_cvt_pk_bf16_f32 v{b+r}, v{b+2*r}, v{b+2*r+1}")
        e.append("s_nop 0")
        for u in range(2):
            e.append(f"v_permlane32_swap_b32 v{b+4*u}, v{b+4*u+2}")
            e.append(f"v_permlane32_swap_b32 v{b+4*u+1}, v{b+4*u+3}")
        for u in range(2): e.append(f"buffer_store_dwordx4 {vr(b+4*u,4)}, v{EA+T}, s[28:31], s47 offen offset:{u*TKV} sc1")
        return e
    gemm_loop(a, True, epi_v)
    a("s_branch L_A_done")

SWD = [42, 43, 44, 56, 57]
def side_work(a):
    a("s_sub_u32 s53, s2, 192")
    a("s_mul_i32 s53, s53, 3")
    a(f"s_add_u32 s53, s53, s{sWAVE}")
    a("s_sub_u32 s53, s53, 5")
    a("v_lshlrev_b32 v22, 4, v1")
    make_srd(a, 32, pWO, 0, 819200)
    make_srd(a, 28, pWS, SEQ_OFF, WO_OFF + WO_SIZE - SEQ_OFF)
    WR = 32
    for n in range(5):
        if n == 4:
            a("s_cmp_ge_u32 s53, 32")
            a("s_cbranch_scc1 L_sw_wo_ld")
        a(f"s_add_u32 s40, s53, {192*n}")
        a("s_mul_i32 s41, s40, 1639")
        a("s_lshr_b32 s41, s41, 16")
        a("s_mul_i32 s58, s41, 40")
        a("s_sub_u32 s58, s40, s58")
        a("s_mul_i32 s59, s58, 20")
        a("s_mul_i32 s55, s58, 80")
        a("s_sub_u32 s55, s55, %d" % (32*80 - 16))
        a("s_cmp_lt_u32 s58, 32")
        a("s_cselect_b32 s45, 4, 40")
        a("s_cselect_b32 s59, s59, s55")
        a(f"s_mov_b32 s46, {20*1280}")
        a(f"s_cmov_b32 s46, {8*1280}")
        a("v_mul_u32_u24 v4, s45, v3")
        a("v_add_u32 v4, s59, v4")
        a("v_mul_u32_u24 v4, 1280, v4")
        a("s_lshl_b32 s59, s41, 6")
        a("v_lshl_add_u32 v4, v2, 1, v4")
        a("v_add_u32 v4, s59, v4")
        b = WR + 8*n
        for grp in range(2):
            so = "s46" if grp else "0"
            for i in range(4):
                a(f"buffer_load_ushort v{b+4*grp+i}, v4, s[32:35], {so} offen offset:{i*1280}")
        a("s_mul_i32 s59, s41, 52")
        a("s_lshr_b32 s59, s59, 8")
        a("s_mul_i32 s55, s59, 5")
        a("s_sub_u32 s55, s41, s55")
        a("s_mul_i32 s45, s58, 26")
        a("s_lshr_b32 s45, s45, 8")
        a("s_mul_i32 s47, s45, 10")
        a("s_sub_u32 s47, s58, s47")
        a("s_add_u32 s58, s58, 10")
        a("s_cmp_lt_u32 s55, 4")
        a("s_cselect_b32 s55, s55, s45")
        a("s_cselect_b32 s58, s58, s47")
        a("s_lshl_b32 s59, s59, 2")
        a("s_add_u32 s59, s59, s55")
        a("s_mul_i32 s59, s59, 50")
        a("s_add_u32 s59, s59, s58")
        a("s_lshl_b32 s59, s59, 10")
        a(f"s_add_u32 s{SWD[n]}, s59, {WO_OFF - SEQ_OFF}")
    a("L_sw_wo_ld:")
    G = 80
    a("s_mov_b32 s54, s53")
    a("v_lshlrev_b32 v23, 4, v3")
    a(f"s_mov_b32 s55, {f32bits(1.0/2048)}")
    a("v_cmp_gt_u32 vcc, 32, v1")
    a("L_sw_gen:")
    a("s_lshr_b32 s41, s54, 5")
    a("s_and_b32 s58, s54, 31")
    a("s_lshr_b32 s59, s41, 1")
    a("s_lshl_b32 s59, s59, 6")
    a("s_and_b32 s47, s41, 1")
    a("s_add_u32 s59, s59, s47")
    a("v_lshl_add_u32 v4, v2, 1, s59")
    a("s_lshr_b32 s47, s58, 4")
    a("s_mul_i32 s45, s41, 65")
    a("s_add_u32 s45, s45, s58")
    a("s_add_u32 s46, s45, 33")
    a("s_add_u32 s45, s45, s47")
    a("s_lshl_b32 s45, s45, 10")
    a("s_lshl_b32 s46, s46, 10")
    a("s_and_b32 s48, s58, 15")
    a("s_lshl_b32 s48, s48, 5")
    a("s_add_u32 s48, s48, s47")
    a("v_add_u32 v5, s48, v23")
    a("v_mul_u32_u24 v5, v4, v5")
    a("v_cvt_f32_u32 v5, v5")
    a("v_cvt_f32_u32 v4, v4")
    for i in range(8):
        if i: a("v_fma_f32 v5, 2.0, v4, v5")
        a(f"v_mul_f32 v{G+i}, s55, v5")
    for i in range(8): a(f"v_fract_f32 v{G+i}, v{G+i}")
    for i in range(8): a(f"v_cos_f32 v{G+8+i}, v{G+i}")
    a("s_cmp_lg_u32 s58, 0")
    a("s_cbranch_scc1 L_gen_plain")
    a("v_mul_f32 v6, 0x3e800000, v4")
    a("v_fract_f32 v6, v6")
    a(f"v_cndmask_b32 v{G}, v{G}, v6, vcc")
    a("v_cos_f32 v7, v6")
    a(f"v_mov_b32 v{G+25}, 0")
    a(f"v_mov_b32 v{G+26}, 0")
    a(f"v_mov_b32 v{G+27}, 0")
    a("v_cndmask_b32 v7, 0, v7, vcc")
    a(f"v_cvt_pk_bf16_f32 v{G+24}, v7, 0")
    a(f"s_add_u32 s48, s45, {16*1024}")
    a(f"buffer_store_dwordx4 {vr(G+24,4)}, v22, s[28:31], s48 offen sc1")
    a("L_gen_plain:")
    for i in range(8): a(f"v_sin_f32 v{G+i}, v{G+i}")
    for i in range(4): a(f"v_cvt_pk_bf16_f32 v{G+16+i}, v{G+8+2*i}, v{G+9+2*i}")
    for i in range(4): a(f"v_cvt_pk_bf16_f32 v{G+20+i}, v{G+2*i}, v{G+1+2*i}")
    a(f"buffer_store_dwordx4 {vr(G+16,4)}, v22, s[28:31], s45 offen sc1")
    a(f"buffer_store_dwordx4 {vr(G+20,4)}, v22, s[28:31], s46 offen sc1")
    a("s_add_u32 s54, s54, 192")
    a("s_cmp_lt_u32 s54, 544")
    a("s_cbranch_scc1 L_sw_gen")

def side_work_finish(a):
    WR = 32
    l = a.label("L_sw_fin")
    a("s_waitcnt vmcnt(4)")
    for n in range(5):
        if n == 4:
            a("s_cmp_ge_u32 s53, 32")
            a(f"s_cbranch_scc1 {l}")
        b = WR + 8*n
        for i in range(4): a(f"v_lshl_or_b32 v{b+i}, v{b+2*i+1}, 16, v{b+2*i}")
        a(f"buffer_store_dwordx4 {vr(b,4)}, v22, s[28:31], s{SWD[n]} offen sc1")
    a(f"{l}:")

def prep(a):
    a("L_prep:")
    a(f"s_sub_u32 s40, s{sSLOT}, 24")
    a("s_and_b32 s27, s40, 1")
    a("s_lshr_b32 s26, s40, 1")
    a("s_lshl_b32 s26, s26, 3")
    a(f"s_add_u32 s26, s26, s{sXCD}")
    make_srd(a, 36, pWS, AB_OFF, AB_SIZE)
    a(f"s_cmp_ge_u32 s{sWAVE}, 5")
    a("s_cbranch_scc1 L_fold_skip")
    make_srd(a, 28, pBX, 0, X_SIZE)
    a("s_lshr_b32 s42, s26, 1")
    a("s_lshl_b32 s42, s42, 5")
    a("s_and_b32 s43, s26, 1")
    a("s_add_u32 s42, s42, s43")
    a("v_lshrrev_b32 v2, 3, v1")
    a("v_and_b32 v3, 7, v1")
    a("v_lshl_add_u32 v4, v2, 1, s42")
    a("v_mul_u32_u24 v5, 1280, v4")
    a("v_lshlrev_b32 v6, 4, v3")
    a("v_add_u32 v10, v5, v6")
    a("v_sub_u32 v7, v6, v5")
    a(f"s_lshl_b32 s44, s27, 1")
    a(f"s_add_u32 s44, s44, s{sWAVE}")
    a("s_cmp_ge_u32 s44, 5")
    a("s_cselect_b32 s45, 5, 0")
    a("s_sub_u32 s44, s44, s45")
    a("s_lshl_b32 s44, s44, 7")
    a("s_add_u32 s45, s44, 20480")
    a(f"v_add_u32 v11, {2048*1280}, v7")
    a(f"v_add_u32 v12, {1024*1280}, v7")
    a("v_cmp_ne_u32 vcc, 0, v4")
    a(f"v_mov_b32 v8, {HUGE}")
    a(f"v_add_u32 v9, {1024*1280}, v10")
    a("v_cndmask_b32 v13, v8, v9, vcc")
    LD = 32
    for hf in range(2):
        for r in range(4): a(f"buffer_load_dwordx4 {vr(LD+8*r+4*hf,4)}, v{10+r}, s[28:31], s44 offen offset:{640*hf}")
    a("v_subrev_u32 v11, 20480, v11")
    a("v_subrev_u32 v12, 20480, v12")
    for hf in range(2):
        for r, (vv, so) in enumerate([(10, 45), (11, 44), (12, 44), (9, 45)]):
            a(f"buffer_load_dwordx4 {vr(LD+32+8*r+4*hf,4)}, v{vv}, s[28:31], s{so} offen offset:{640*hf}")
    XL = 96
    a("s_cmp_lg_u32 s26, 0")
    a("s_cbranch_scc1 L_fold_nx")
    a(f"v_add_u32 v14, {512*1280}, v6")
    a(f"v_add_u32 v15, {1536*1280}, v6")
    a("v_cndmask_b32 v14, v14, v8, vcc")
    a("v_cndmask_b32 v15, v15, v8, vcc")
    for r in range(2):
        for hf in range(2):
            a(f"buffer_load_dwordx4 {vr(XL+8*r+4*hf,4)}, v{14+r}, s[28:31], s44 offen offset:{640*hf}")
    a("L_fold_nx:")
    a("v_and_b32 v5, 3, v2")
    a("v_lshrrev_b32 v4, 2, v2")
    a("v_lshl_or_b32 v5, v4, 3, v5")
    a("v_xor_b32 v5, v5, v3")
    a("v_and_b32 v4, 1, v3")
    a("v_lshl_add_u32 v5, v4, 5, v5")
    a("v_lshlrev_b32 v5, 4, v5")
    a("v_lshrrev_b32 v4, 1, v3")
    a("v_lshl_add_u32 v5, v4, 10, v5")
    a("s_lshl_b32 s45, s44, 5")
    a("v_add_u32 v16, s45, v5")
    a("v_xor_b32 v18, 64, v16")
    a("v_add_u32 v5, s44, v6")
    a("v_add_u32 v17, 40960, v5")
    a("v_lshlrev_b32 v6, 4, v1")
    a("v_add_u32 v6, 43008, v6")
    a("v_cndmask_b32 v17, v17, v6, vcc")
    a("L_fold_skip:")
    a("v_and_b32 v2, 31, v1")
    a("v_lshrrev_b32 v3, 5, v1")
    a("v_lshlrev_b32 v15, 4, v1")
    a(f"s_lshr_b32 s40, s{sWAVE}, 1")
    a("s_add_u32 s40, s40, 2")
    a(f"s_and_b32 s41, s{sWAVE}, 1")
    a(f"s_cmp_lt_u32 s{sWAVE}, 4")
    a(f"s_cselect_b32 s49, s{sWAVE}, s40")
    a("s_cselect_b32 s50, 0, s41")
    a("s_lshl_b32 s54, s49, 6")
    a("s_add_u32 s54, s54, s27")
    a("v_lshl_add_u32 v4, v2, 1, s54")
    AU = 10; SB = [[176, 184], [192, 200]]; HB = [[208, 212], [216, 220]]; UB = [72, 84, 96, 108]; ACC3 = [224, 240, 32]; PH = 112
    a("s_mul_i32 s52, s50, 20480")
    for jj in range(4):
        a(f"v_xor_b32 v5, {2*jj}, v3")
        a("v_xor_b32 v5, v5, v2")
        a("v_lshl_add_u32 v5, v3, 5, v5")
        a("v_lshlrev_b32 v5, 4, v5")
        a(f"v_add_u32 v5, {jj*1024}, v5")
        a(f"v_add_u32 v{AU+jj}, s52, v5")
    a(f"v_lshlrev_b32 v{AU+4}, 4, v3")
    a(f"v_add_u32 v{AU+4}, 40960, v{AU+4}")
    a(f"s_mov_b32 s52, {f32bits(1.0/640)}")
    a("s_cmp_lg_u32 s50, 0")
    a("s_cselect_b32 s53, 0x3e800000, 0")
    a("v_lshlrev_b32 v5, 3, v3")
    a("v_mul_u32_u24 v5, v4, v5")
    a("v_cvt_f32_u32 v5, v5")
    a("v_cvt_f32_u32 v4, v4")
    a("v_mul_f32 v6, 0x41800000, v4")
    for i in range(8):
        if i: a("v_add_f32 v5, v5, v4")
        a(f"v_mul_f32 v{PH+i}, s52, v5")
        a("v_sub_f32 v7, v5, v6")
        a(f"v_mul_f32 v{PH+8+i}, s52, v7")
    a("v_mul_f32 v6, s52, v6")
    a("v_fract_f32 v6, v6")
    for i in range(16): a(f"v_fract_f32 v{PH+i}, v{PH+i}")
    a("v_cos_f32 v19, v6")
    for i in range(16): a(f"v_sin_f32 v{SB[1][0]+i}, v{PH+i}")
    for i in range(16): a(f"v_subrev_f32 v{PH+i}, s53, v{PH+i}")
    for i in range(16): a(f"v_cos_f32 v{SB[0][0]+i}, v{PH+i}")
    a("v_add_f32 v19, v19, v19")
    for r in range(32): a(f"v_mov_b32 v{224+r}, 0")
    def cvts(jb, g): return [f"v_cvt_pk_bf16_f32 v{HB[jb][g]+d}, v{SB[jb][g]+2*d}, v{SB[jb][g]+2*d+1}" for d in range(4)]
    def rot(jb, cur): return [f"v_fma_f32 v{SB[jb][cur^1]+i}, v19, v{SB[jb][cur]+i}, -v{SB[jb][cur^1]+i}" for i in range(8)]
    for x in cvts(0, 0) + cvts(1, 0): a(x)
    a(f"s_cmp_lt_u32 s{sWAVE}, 5")
    a("s_cbranch_scc1 L_fold_go")
    side_work(a)
    side_work_finish(a)
    a("s_branch L_fold_done")
    a("L_fold_go:")
    a("s_cmp_lg_u32 s27, 0")
    a("s_cselect_b32 s46, -1.0, 1.0")
    a("s_mov_b32 s47, s46")
    a("s_mov_b32 s48, 0xffff0000")
    T = 112; R = 144; H = 20
    ng = "neg_lo:[0,1] neg_hi:[0,1]"
    def dfold(src, dst):
        for d in range(4):
            a(f"v_lshlrev_b32 v{dst+2*d}, 16, v{src+d}")
            a(f"v_and_b32 v{dst+2*d+1}, s48, v{src+d}")
            a(f"v_lshlrev_b32 v{H+2*(d&1)}, 16, v{src+4+d}")
            a(f"v_and_b32 v{H+2*(d&1)+1}, s48, v{src+4+d}")
            a(f"v_pk_fma_f32 {vr(dst+2*d,2)}, {vr(H+2*(d&1),2)}, s[46:47], {vr(dst+2*d,2)}")
    for n in range(2):
        a("s_waitcnt vmcnt(%d)" % (8 if n == 0 else 0))
        if n == 0: stamp(a, 9)
        b = LD + 32*n
        for r in range(4): dfold(b + 8*r, T + 8*r)
        for d in range(4):
            p = lambda r: vr(T+8*r+2*d, 2)
            q = lambda r: vr(R+8*r+2*d, 2)
            a(f"v_pk_add_f32 {q(0)}, {p(0)}, {p(1)}")
            a(f"v_pk_add_f32 {q(1)}, {p(0)}, {p(1)} {ng}")
            a(f"v_pk_add_f32 {q(2)}, {p(2)}, {p(3)}")
            a(f"v_pk_add_f32 {q(3)}, {p(2)}, {p(3)} {ng}")
            a(f"v_pk_add_f32 {p(0)}, {q(0)}, {q(2)}")
            a(f"v_pk_add_f32 {p(1)}, {q(0)}, {q(2)} {ng}")
            a(f"v_pk_add_f32 {p(2)}, {q(1)}, {q(3)} {ng}")
            a(f"v_pk_add_f32 {p(3)}, {q(1)}, {q(3)}")
        if n == 0:
            a("s_cmp_lg_u32 s26, 0")
            a("s_cbranch_scc1 L_fold_sp")
            a("s_waitcnt vmcnt(0)")
            dfold(XL, R); dfold(XL + 8, R + 8)
            for d in range(4):
                a(f"v_pk_add_f32 {vr(R+16+2*d,2)}, {vr(R+2*d,2)}, {vr(R+8+2*d,2)}")
                a(f"v_pk_add_f32 {vr(R+2*d,2)}, {vr(R+2*d,2)}, {vr(R+8+2*d,2)} {ng}")
            for e in range(8): a(f"v_cndmask_b32 v{T+24+e}, v{R+e}, v{T+24+e}, vcc")
            for d in range(4): a(f"v_cvt_pk_bf16_f32 v{R+d}, v{R+16+2*d}, v{R+17+2*d}")
            a(f"ds_write_b128 v17, {vr(R,4)}")
            a("L_fold_sp:")
        for i in range(4):
            for d in range(4): a(f"v_cvt_pk_bf16_f32 v{b+4*i+d}, v{T+8*i+2*d}, v{T+8*i+2*d+1}")
            a(f"ds_write_b128 v{16+2*n}, {vr(b+4*i,4)} offset:{(i>>1)*20480 + (i&1)*256}")
    a("L_fold_done:")
    for r in range(16): a(f"v_mov_b32 v{32+r}, 0")
    a("s_waitcnt lgkmcnt(0)")
    stamp(a, 14)
    a("s_barrier")
    stamp(a, 2)
    a("s_mul_i32 s42, s27, 6")
    a("s_add_u32 s42, s42, s49")
    a("s_cmp_gt_u32 s42, 10")
    a("s_cbranch_scc1 L_prep_done")
    def ureads(j, kinds):
        jj = j & 3; o = (j >> 2) * 4096; b = UB[j & 3]; r = []
        for k in kinds:
            if k == 2: r.append(f"ds_read_b128 {vr(b+8,4)}, v{AU+4} offset:{j*32}")
            else: r.append(f"ds_read_b128 {vr(b+4*k,4)}, v{AU+jj} offset:{o + k*20480}")
        return r
    a("s_mov_b32 s45, 5")
    a("s_or_b32 s51, s26, s50")
    a("s_cmp_eq_u32 s51, 0")
    a("s_cselect_b32 s40, 1, 0")
    a(f"s_cmp_lt_u32 s{sWAVE}, 4")
    a("s_cselect_b32 s41, 2, 0")
    a("s_add_u32 s40, s40, s41")
    variants = [[0], [0, 2], [0, 1], [0, 1, 2]]
    for v in range(1, 4):
        a(f"s_cmp_eq_u32 s40, {v}")
        a(f"s_cbranch_scc1 L_f1_v{v}")
    for v, kinds in enumerate(variants):
        a(f"L_f1_v{v}:")
        nm = len(kinds)
        for x in ureads(0, kinds) + ureads(1, kinds): a(x)
        a(f"L_f1_loop{v}:")
        for jj in range(4):
            buf = jj & 1
            va = rot(0, buf) + cvts(0, buf ^ 1)
            if 1 in kinds: va = rot(0, buf) + rot(1, buf) + cvts(0, buf ^ 1) + cvts(1, buf ^ 1)
            rd = ureads(jj + 2, kinds)
            a(f"s_waitcnt lgkmcnt({nm})")
            a("s_nop 0")
            per = len(va) // nm
            for m, k in enumerate(kinds):
                d = vr(ACC3[k], 16)
                a(f"v_mfma_f32_32x32x16_bf16 {d}, {vr(UB[jj]+4*k,4)}, {vr(HB[k & 1][buf],4)}, {d}")
                a(rd[m])
                for x in va[per*m:per*m+per]: a(x)
        for r in range(4): a(f"v_add_u32 v{AU+r}, 4096, v{AU+r}")
        if 2 in kinds: a(f"v_add_u32 v{AU+4}, 128, v{AU+4}")
        a("s_sub_u32 s45, s45, 1")
        a("s_cmp_lg_u32 s45, 0")
        a(f"s_cbranch_scc1 L_f1_loop{v}")
        if v < 3: a("s_branch L_f1_done")
    a("L_f1_done:")
    stamp(a, 5)
    a("s_mul_i32 s43, s42, 33")
    a("s_and_b32 s44, s26, 1")
    a("s_lshl_b32 s44, s44, 4")
    a("s_lshr_b32 s45, s26, 1")
    a("s_add_u32 s44, s44, s45")
    a("s_add_u32 s44, s44, s43")
    a(f"s_mul_i32 s45, s50, {22*33}")
    a("s_add_u32 s44, s44, s45")
    a("s_lshl_b32 s44, s44, 10")
    a("s_waitcnt lgkmcnt(0)")
    a("s_nop 5")
    for jb in range(2):
        b = ACC3[jb]
        if jb == 1:
            a(f"s_cmp_ge_u32 s{sWAVE}, 4")
            a("s_cbranch_scc1 L_f1_one")
        for r in range(8): a(f"v_cvt_pk_bf16_f32 v{b+r}, v{b+2*r}, v{b+2*r+1}")
        for hf in range(2):
            a(f"buffer_store_dwordx4 {vr(b+4*hf,4)}, v15, s[36:39], s44 offen sc1")
            a(f"s_add_u32 s44, s44, {11*33*1024}")
    a("L_f1_one:")
    a("s_cmp_lg_u32 s51, 0")
    a("s_cbranch_scc1 L_prep_done")
    b = ACC3[2]
    for r in range(4): a(f"v_cvt_pk_bf16_f32 v{b+r}, v{b+2*r}, v{b+2*r+1}")
    a("s_add_u32 s43, s43, 32")
    a("s_lshl_b32 s43, s43, 10")
    a(f"buffer_store_dwordx4 {vr(b,4)}, v15, s[36:39], s43 offen sc1")
    a("L_prep_done:")
    a(f"s_cmp_lt_u32 s{sWAVE}, 4")
    a("s_cbranch_scc1 L_A_done")
    get_nonce(a, 2)

W_PROG, W_GO, W_CNT, W_PASS, W_XCH, W_NON = 0, 4, 8, 16, 32, 48
def a_done(a):
    a("L_A_done:")
    stamp(a, 6)
    a(f"v_mov_b32 v23, {LDS_PROG}")
    a(f"s_cmp_lg_u32 s{sWAVE}, 4")
    a("s_cbranch_scc1 L_A_bar")
    a(f"v_mov_b32 v2, s{sNON}")
    a(f"v_mov_b32 v3, s{sNON+1}")
    a(f"ds_write_b64 v23, v[2:3] offset:{W_NON}")
    a("L_A_bar:")
    a("s_waitcnt lgkmcnt(0)")
    a("s_barrier")
    stamp(a, 4)
    a(f"s_lshr_b32 s26, s{sXCD}, 1")
    a("s_lshl_b32 s26, s26, 3")
    a(f"s_and_b32 s27, s{sSLOT}, 7")
    a("s_add_u32 s26, s26, s27")
    a(f"s_and_b32 s27, s{sXCD}, 1")
    a("s_lshl_b32 s27, s27, 2")
    a(f"s_lshr_b32 s40, s{sSLOT}, 3")
    a("s_add_u32 s27, s27, s40")
    a(f"s_cmp_ge_u32 s{sWAVE}, 4")
    a("s_cbranch_scc1 L_aux")

def drained(a, vt):
    a(f"v_mov_b32 v{vt}, 1")
    a("s_mov_b64 exec, 1")
    a(f"ds_add_u32 v23, v{vt} offset:{W_CNT}")
    a("s_mov_b64 exec, -1")

def attention(a):
    SL = OPT.get('slot', 1)
    AKA, AKB, AV, AKB2 = 4, 5, 168, 172
    AREGS = [AKA, AV, AV+1, AV+2, AV+3] + ([AKB2, AKB2+1] if SL else [AKB])
    QA = [8, 14]
    NEG = [32, 48]; S = [64, 80]; O = [96, 112]; P = 128
    KB = [136, 142]; VB = [148, 156]
    PR = 164
    a("L_attn:")
    a(f"ds_read_b32 v24, v23 offset:{W_GO}")
    a(f"ds_read_b64 v[26:27], v23 offset:{W_NON}")
    a(f"s_setprio {OPT.get('pattn', 2)}")
    a(f"s_mul_i32 s40, s26, {Q_HEAD}")
    a(f"s_add_u32 s40, s40, {Q_OFF}")
    make_srd(a, 28, pWS, "s40", Q_HEAD)
    a(f"s_mul_i32 s40, s26, {KV_HEAD}")
    make_srd(a, 32, pWS, "s40", KV_HEAD)
    a("v_and_b32 v2, 31, v1")
    a("v_lshrrev_b32 v3, 5, v1")
    a(f"v_lshlrev_b32 v{AKA}, 4, v1")
    a(f"v_lshlrev_b32 v{AKB}, 3, v2")
    a(f"v_add_u32 v{AKB}, 1024, v{AKB}")
    a(f"v_mov_b32 v20, {HUGE}")
    a("v_cmp_gt_u32 vcc, 32, v1")
    a("s_lshl_b32 s41, s27, 3")
    a(f"s_lshl_b32 s42, s{sWAVE}, 1")
    a("s_add_u32 s41, s41, s42")
    a(f"v_cndmask_b32 v20, v20, v{AKB}, vcc")
    a(f"s_mul_i32 s42, s41, {TQ}")
    a("v_and_b32 v21, 28, v2")
    a("v_add_u32 v21, v21, v2")
    a("v_lshl_add_u32 v21, v3, 2, v21")
    a("v_lshlrev_b32 v21, 4, v21")
    a("v_add_u32 v29, 1280, v21")
    a("s_mov_b32 s48, 0x000fffff")
    a("s_mov_b32 s49, 0x000fffff")
    a("s_mov_b32 s52, 0x07060302")
    a("s_waitcnt lgkmcnt(0)")
    a("v_readfirstlane_b32 s47, v24")
    a(f"v_readfirstlane_b32 s{sNON}, v26")
    a(f"v_readfirstlane_b32 s{sNON+1}, v27")
    a("s_mov_b32 s50, s47")
    a("s_cmp_lg_u32 s47, 0")
    a("s_cbranch_scc1 L_attn_go")
    a("s_waitcnt vmcnt(0)")
    stamp(a, 3)
    drained(a, 24)
    a("L_attn_spin:")
    a(f"s_sleep {OPT.get('asl', 1)}")
    a(f"ds_read_b32 v24, v23 offset:{W_GO}")
    a("s_waitcnt lgkmcnt(0)")
    a("v_readfirstlane_b32 s47, v24")
    a("s_nop 0")
    a("s_cmp_eq_u32 s47, 0")
    a("s_cbranch_scc1 L_attn_spin")
    a("L_attn_go:")
    stamp(a, 7); stamp(a, 7, 2); stamp_real(a, 8, 2)
    a("s_sub_u32 s47, s47, 1")
    a(f"s_mul_i32 s47, s47, {4*TKV}")
    for q in range(2):
        a(f"buffer_load_dwordx4 {vr(QA[q],4)}, v{AKA}, s[28:31], s42 offen offset:{q*TQ} sc1")
        a(f"buffer_load_dwordx2 {vr(QA[q]+4,2)}, v20, s[28:31], s42 offen offset:{q*TQ} sc1")
    a(f"buffer_load_dwordx4 {vr(KB[0],4)}, v{AKA}, s[32:35], s47 offen sc1")
    if SL:
        for b in KB:
            a(f"v_mov_b32 v{b+4}, 0x3f803f80")
            a(f"v_mov_b32 v{b+5}, 0x3f80")
        a("s_mov_b32 exec_hi, 0")
    a(f"buffer_load_dwordx2 {vr(KB[0]+4,2)}, v{AKB}, s[32:35], s47 offen sc1")
    if SL: a("s_mov_b64 exec, -1")
    a("v_mov_b32 v24, 0x3f803f80")
    a("v_cmp_eq_u32 vcc, 20, v2")
    a(f"s_add_u32 s43, s47, {TKV}")
    a("s_nop 0")
    a("v_cndmask_b32 v24, 0, v24, vcc")
    for r in range(16): a(f"v_mov_b32 v{VB[0]+r}, v24")
    a(f"buffer_load_dwordx4 {vr(KB[1],4)}, v{AKA}, s[32:35], s43 offen sc1")
    if SL: a("s_mov_b32 exec_hi, 0")
    a(f"buffer_load_dwordx2 {vr(KB[1]+4,2)}, v{AKB}, s[32:35], s43 offen sc1")
    a("s_mov_b64 exec, s[48:49]")
    a(f"buffer_load_dwordx4 {vr(VB[0],4)}, v29, s[32:35], s47 offen sc1")
    a(f"buffer_load_dwordx4 {vr(VB[0]+4,4)}, v29, s[32:35], s47 offen offset:640 sc1")
    a(f"buffer_load_dwordx4 {vr(VB[1],4)}, v29, s[32:35], s43 offen sc1")
    a(f"buffer_load_dwordx4 {vr(VB[1]+4,4)}, v29, s[32:35], s43 offen offset:640 sc1")
    a("s_mov_b64 exec, -1")
    a("s_cmp_eq_u32 s50, 0")
    a("s_cbranch_scc1 L_attn_cnt")
    a("s_waitcnt vmcnt(12)")
    stamp(a, 3)
    drained(a, 24)
    a("L_attn_cnt:")
    a("v_mov_b32 v22, 5120")
    if OPT.get('zr', 1):
        a("v_cmp_lt_u32 vcc, 20, v2")
        a("v_mov_b32 v21, 5136")
        a("s_nop 0")
        a("v_cndmask_b32 v22, v22, v21, vcc")
    a("v_cmp_gt_u32 vcc, 20, v2")
    for i in range(4): a(f"v_add_u32 v{AV+i}, {(i>>1)*TKV + (i&1)*640}, v29")
    for i in range(4): a(f"v_cndmask_b32 v{AV+i}, v22, v{AV+i}, vcc")
    if SL:
        a("v_cmp_gt_u32 vcc, 32, v1")
        a("v_mov_b32 v22, 5152")
        a(f"v_add_u32 v21, {TKV}, v{AKB}")
        a(f"v_cndmask_b32 v{AKB2}, v22, v{AKB}, vcc")
        a(f"v_cndmask_b32 v{AKB2+1}, v22, v21, vcc")
    make_srd(a, 36, pWS, O_OFF, O_SIZE)
    for q in range(2):
        for r in range(16): a(f"v_mov_b32 v{O[q]+r}, 0")
    LOOPED = [False]
    mm16 = "v_mfma_f32_32x32x16_bf16"; mm8 = "v_mfma_f32_32x32x8_bf16"
    def M1(s, t, q, c): return "s_nop 1" if OPT.get('nom1') and c == "0" and LOOPED[0] else f"{mm16} {vr(s,16)}, {vr(KB[t&1],4)}, {vr(QA[q],4)}, {c}"
    def M2(s, t, q): return "s_nop 0" if OPT.get('nom2') and LOOPED[0] else f"{mm8} {vr(s,16)}, {vr(KB[t&1]+4,2)}, {vr(QA[q]+4,2)}, {vr(s,16)}"
    def M3(t, q): return "s_nop 1" if OPT.get('nopv') else f"{mm16} {vr(O[q],16)}, {vr(VB[t&1],4)}, {vr(P,4)}, {vr(O[q],16)}"
    def M4(t, q): return "s_nop 1" if OPT.get('nopv') else f"{mm16} {vr(O[q],16)}, {vr(VB[t&1]+4,4)}, {vr(P+4,4)}, {vr(O[q],16)}"
    def rowmax(src, dst, first):
        if first:
            a(f"v_max3_f32 v{dst}, v{src}, v{src+1}, v{src+2}")
            a(f"v_max_f32 v{dst}, v{dst}, v{src+15}")
            rng = range(3, 15, 2)
        else: rng = range(0, 16, 2)
        for r in rng: a(f"v_max3_f32 v{dst}, v{dst}, v{src+r}, v{src+r+1}")
    def finish_neg(add):
        a("v_mov_b32 v26, v24")
        a("v_mov_b32 v27, v25")
        a("s_nop 1")
        a("v_permlane32_swap_b32 v24, v26")
        a("v_permlane32_swap_b32 v25, v27")
        a("s_nop 1")
        a("v_max_f32 v24, v24, v26")
        a("v_max_f32 v25, v25, v27")
        if not SL:
            for q in range(2):
                a(f"v_sub_f32 v{NEG[q]}, {add}, v{24+q}")
                for r in range(1, 16): a(f"v_mov_b32 v{NEG[q]+r}, v{NEG[q]}")
            return
        a("s_mov_b32 s45, 0xffff0000")
        a("s_mov_b32 s46, 0x07060302")
        for q in range(2):
            a(f"v_sub_f32 v{24+q}, {add}, v{24+q}")
        for q in range(2):
            a(f"v_and_b32 v26, s45, v{24+q}")
            a(f"v_sub_f32 v27, v{24+q}, v26")
            a("v_and_b32 v28, s45, v27")
            a("v_sub_f32 v27, v27, v28")
            a("v_perm_b32 v26, v28, v26, s46")
            a("v_lshrrev_b32 v27, 16, v27")
            a("s_mov_b32 exec_lo, 0")
            a(f"v_mov_b32 v{QA[q]+4}, v26")
            a(f"v_mov_b32 v{QA[q]+5}, v27")
            a("s_mov_b64 exec, -1")
        a("s_nop 1")
    CNEG = lambda q: "0" if SL else vr(NEG[q], 16)
    a("s_waitcnt vmcnt(6)")
    stamp(a, 8)
    for q in range(2): a(M1(S[q], 0, q, "0"))
    for q in range(2): a(M2(S[q], 0, q))
    a("s_nop 11")
    rowmax(S[0], 24, True)
    a("s_nop 1")
    rowmax(S[1], 25, True)
    finish_neg(hex(f32bits(-float(OPT.get('off', 100)))))
    a(M1(S[0], 0, 0, CNEG(0)))
    a(M2(S[0], 0, 0))
    a(f"ds_read_b32 v{PR}, v23")
    a("s_waitcnt vmcnt(0)")
    a("s_nop 9")
    def check(need):
        l = a.label("L_chk"); ok = a.label("L_chkok")
        a(f"{l}:")
        a("s_waitcnt lgkmcnt(0)")
        a(f"v_readfirstlane_b32 s44, v{PR}")
        a("s_nop 0")
        a(f"s_cmp_ge_u32 s44, {need}")
        a(f"s_cbranch_scc1 {ok}")
        a(f"ds_read_b32 v{PR}, v23")
        a(f"s_branch {l}")
        a(".p2align 3")
        a(f"{ok}:")
    def unit(t, q, s4=(), s1=(), s2=(), s3=(), first=False, nonext=False):
        s = S[q]; sn = S[q ^ 1]
        t1, q1 = (t, 1) if q == 0 else (t + 1, 0)
        tp, qp = (t - 1, 1) if q == 0 else (t, 0)
        E = lambda r: a(f"v_exp_f32 v{s+r}, v{s+r}")
        C = lambda j: a(f"v_perm_b32 v{P+j}, v{s+2*j+1}, v{s+2*j}, s52" if OPT.get('perm') else f"v_cvt_pk_bf16_f32 v{P+j}, v{s+2*j}, v{s+2*j+1}")
        al = OPT.get('al', 1)
        EW = lambda r: a(f"v_exp_f32_e64 v{s+r}, v{s+r}") if al else E(r)
        odd = lambda xs: sum(1 for x in xs if x.startswith("s_")) & 1
        E(0); E(1)
        if not first: a(M4(tp, qp))
        for x in s4: a(x)
        (E if odd(s4) else EW)(2); E(3); E(4)
        if not nonext: a(M1(sn, t1, q1, CNEG(q1)))
        for x in s1: a(x)
        EW(5); E(6); E(7)
        for j in range(4): C(j)
        if not nonext: a(M2(sn, t1, q1))
        for x in s2: a(x)
        EW(8)
        for r in range(9, 13): E(r)
        a(M3(t, q))
        for x in s3: a(x)
        (E if odd(s3) else EW)(13); E(14); E(15)
        for j in range(4, 8): C(j)
    def period(t, o, extra3=()):
        if OPT.get('nods') and LOOPED[0]: o = None
        if o is None:
            if extra3:
                unit(t, 1, s4=["s_waitcnt lgkmcnt(0)"]); unit(t + 1, 0, s3=extra3); return
            unit(t, 1, s4=["s_waitcnt lgkmcnt(0)"]); unit(t + 1, 0); return
        kb = KB[t & 1]; vb = VB[t & 1]
        ok = lds_tile(o + 2); ov = (o >> 1) * LPAIR; av = AV + 2*(o & 1)
        unit(t, 1, s4=["s_waitcnt lgkmcnt(0)"],
             s1=[f"ds_read_b128 {vr(kb,4)}, v{AKA} offset:{ok}"],
             s3=[f"ds_read_b64 {vr(kb+4,2)}, v{AKB2+(o&1)} offset:{ov}" if SL else f"ds_read_b64 {vr(kb+4,2)}, v{AKB} offset:{ok}"])
        unit(t + 1, 0, s4=[f"ds_read_b128 {vr(vb,4)}, v{av} offset:{ov}"],
             s1=[f"ds_read_b128 {vr(vb+4,4)}, v{av+1} offset:{ov}"], s3=extra3)
    rdp = [f"ds_read_b32 v{PR}, v23"]
    a(".p2align 3")
    unit(0, 0, first=True)
    stamp(a, 9)
    check(1)
    for t in range(6):
        if t == 2: check(2)
        period(t, t, rdp if t in (1, 5) else ())
    for r in AREGS: a(f"v_add_u32 v{r}, {3*LPAIR}, v{r}")
    a(f"s_lshl_b32 s45, s{sWAVE}, 2")
    a("v_add_u32 v24, s45, v23")
    a(f"ds_write_b32 v24, v23 offset:{W_PASS}")
    a("s_mov_b32 s45, 2")
    a("s_mov_b32 s46, 7")
    stamp(a, 10); stamp(a, 10, 2); stamp_real(a, 12, 2)
    LOOPED[0] = True
    def body(chk):
        for k in range(8):
            ex = ()
            if k == 7: ex = (rdp if chk else [])
            if k == 6: ex = ["s_sub_u32 s46, s46, 1"]
            if k == 7 and not chk: ex = ["s_cmp_lg_u32 s46, 0"]
            period(k, k, ex)
        for r in AREGS: a(f"v_add_u32 v{r}, {4*LPAIR}, v{r}")
    a("s_cmp_eq_u32 s44, 16")
    a("s_cbranch_scc1 L_attn_fast")
    a(".p2align 3")
    a("L_attn_loop:")
    a("s_add_u32 s45, s45, 2")
    check("s45")
    body(True)
    a("s_cmp_eq_u32 s46, 0")
    a("s_cbranch_scc1 L_attn_last")
    a("s_cmp_lg_u32 s44, 16")
    a("s_cbranch_scc1 L_attn_loop")
    a(".p2align 3")
    a("L_attn_fast:")
    body(False)
    a("s_cbranch_scc1 L_attn_fast")
    a(".p2align 3")
    a("L_attn_last:")
    period(62, None)
    unit(63, 1, nonext=True)
    a("s_nop 1")
    a(M4(63, 1))
    stamp(a, 11); stamp(a, 11, 2); stamp_real(a, 13, 2)
    a("L_attn_post:")
    a("s_lshl_b32 s42, s41, 5")
    a("s_add_u32 s42, s42, s26")
    a("s_mul_i32 s42, s42, 1280")
    a("v_lshlrev_b32 v21, 4, v1")
    for q in range(2):
        a(f"v_mov_b32 v{24+q}, v{O[q]+8}")
        a(f"v_mov_b32 v26, v{O[q]+8}")
        a("s_nop 1")
        a(f"v_permlane32_swap_b32 v26, v{24+q}")
        a("s_nop 0")
        a(f"v_rcp_f32 v26, v{24+q}")
        a("s_nop 0")
        for r in range(12): a(f"v_mul_f32 v{S[q]+r}, v{O[q]+r}, v26")
        for r in range(6): a(f"v_cvt_pk_bf16_f32 v{S[q]+r}, v{S[q]+2*r}, v{S[q]+2*r+1}")
        a(f"buffer_store_dwordx4 {vr(S[q],4)}, v21, s[36:39], s42 offen sc1")
        a(f"buffer_store_dwordx2 {vr(S[q]+4,2)}, v20, s[36:39], s42 offen sc1")
        if q == 0: a(f"s_add_u32 s42, s42, {32*1280}")
    a("s_cmp_eq_u32 s46, 0")
    a("s_cbranch_scc0 L_attn_fin")
    for q in range(2):
        a(f"v_max3_f32 v{30+q}, abs(v{O[q]}), abs(v{O[q]+1}), abs(v{O[q]+2})")
        a(f"v_mul_f32 v{26+q}, 0, v{24+q}")
    for r in range(12):
        for q in range(2): a(f"v_fma_f32 v{26+q}, v{O[q]+r}, 0, v{26+q}")
    for q in range(2):
        a(f"v_max3_f32 v{30+q}, v{30+q}, abs(v{O[q]+3}), abs(v{O[q]+4})")
        a(f"v_max3_f32 v{30+q}, v{30+q}, abs(v{O[q]+5}), abs(v{O[q]+6})")
        a(f"v_max_f32 v{30+q}, v{30+q}, abs(v{O[q]+7})")
    a("v_max_f32 v24, v24, v25")
    a("v_min_f32 v30, v30, v31")
    a("v_mov_b32 v28, 0x76800000")
    a("v_mov_b32 v31, 0x08800000")
    a("v_cmp_u_f32 s[44:45], v26, v27")
    a("v_cmp_nlt_f32 vcc, v24, v28")
    a("v_cmp_lt_f32 s[50:51], v30, v31")
    a("s_nop 1")
    a("s_or_b64 vcc, vcc, s[44:45]")
    a("s_or_b64 vcc, vcc, s[50:51]")
    if OPT.get('forcefb'): a("s_mov_b64 vcc, -1")
    a("s_cbranch_vccnz L_attn_fallback")
    a("L_attn_fin:")
    a("s_lshl_b32 s40, s2, 2")
    a(f"s_add_u32 s40, s40, s{sWAVE}")
    a(f"s_add_u32 s40, s40, {FB}")
    a("s_lshl_b32 s40, s40, 7")
    for i in range(4): a(f"v_mov_b32 v{8+i}, s{sNON+(i&1)}")
    a("s_waitcnt vmcnt(0)")
    stamp(a, 12)
    a("s_mov_b64 exec, 0xff")
    a(f"buffer_store_dwordx4 v[8:11], v21, {sr(sFL,4)}, s40 offen sc1")
    a("s_mov_b64 exec, -1")
    a("s_barrier")
    a("s_branch L_end")
    a("L_attn_fallback:")
    a("s_waitcnt vmcnt(0)")
    for r in ((AKA,) if SL else (AKA, AKB)): a(f"v_subrev_u32 v{r}, {31*LPAIR}, v{r}")
    if SL:
        a("s_mov_b32 exec_lo, 0")
        for q in range(2):
            a(f"v_mov_b32 v{QA[q]+4}, 0")
            a(f"v_mov_b32 v{QA[q]+5}, 0")
        a("s_mov_b64 exec, -1")
    a("v_mov_b32 v24, 0xff800000")
    a("v_mov_b32 v25, 0xff800000")
    a("s_mov_b32 s46, 0")
    a("L_fb_max:")
    a(f"buffer_load_dwordx4 {vr(KB[0],4)}, v{AKA}, s[32:35], s46 offen sc1")
    if SL: a("s_mov_b32 exec_hi, 0")
    a(f"buffer_load_dwordx2 {vr(KB[0]+4,2)}, v{AKB}, s[32:35], s46 offen sc1")
    if SL: a("s_mov_b64 exec, -1")
    a("s_waitcnt vmcnt(0)")
    for q in range(2): a(M1(S[q], 0, q, "0"))
    for q in range(2): a(M2(S[q], 0, q))
    a("s_nop 15")
    rowmax(S[0], 24, False)
    rowmax(S[1], 25, False)
    a(f"s_add_u32 s46, s46, {TKV}")
    a(f"s_cmp_lt_u32 s46, {KV_HEAD}")
    a("s_cbranch_scc1 L_fb_max")
    finish_neg("0")
    for q in range(2):
        for r in range(16): a(f"v_mov_b32 v{O[q]+r}, 0")
    a("s_mov_b32 s46, 0")
    a("L_fb_main:")
    a(f"buffer_load_dwordx4 {vr(KB[0],4)}, v{AKA}, s[32:35], s46 offen sc1")
    if SL: a("s_mov_b32 exec_hi, 0")
    a(f"buffer_load_dwordx2 {vr(KB[0]+4,2)}, v{AKB}, s[32:35], s46 offen sc1")
    if SL: a("s_mov_b64 exec, -1")
    a("s_mov_b64 exec, s[48:49]")
    a(f"buffer_load_dwordx4 {vr(VB[0],4)}, v29, s[32:35], s46 offen sc1")
    a(f"buffer_load_dwordx4 {vr(VB[0]+4,4)}, v29, s[32:35], s46 offen offset:640 sc1")
    a("s_mov_b64 exec, -1")
    a("s_waitcnt vmcnt(0)")
    for q in range(2): a(M1(S[q], 0, q, CNEG(q)))
    for q in range(2): a(M2(S[q], 0, q))
    a("s_nop 15")
    for q in range(2):
        for r in range(16): a(f"v_exp_f32 v{S[q]+r}, v{S[q]+r}")
        a("s_nop 0")
        for j in range(8): a(f"v_cvt_pk_bf16_f32 v{P+j}, v{S[q]+2*j}, v{S[q]+2*j+1}")
        a("s_nop 1")
        a(M3(0, q)); a(M4(0, q))
    a(f"s_add_u32 s46, s46, {TKV}")
    a(f"s_cmp_lt_u32 s46, {KV_HEAD}")
    a("s_cbranch_scc1 L_fb_main")
    a("s_nop 15")
    a("s_branch L_attn_post")

def aux(a):
    a("L_aux:")
    a(f"s_setprio {OPT.get('paux', 0)}")
    a(f"s_sub_u32 s44, s{sWAVE}, 4")
    a("v_lshlrev_b32 v2, 4, v1")
    a("s_waitcnt vmcnt(0)")
    drained(a, 3)
    a("s_cmp_eq_u32 s44, 0")
    a("s_cbranch_scc1 L_kv")
    a("s_cmp_lg_u32 s44, 1")
    a("s_cbranch_scc1 L_aux_wait")
    a("s_lshl_b32 s40, s2, 7")
    a("L_cnt_spin:")
    a(f"s_sleep {OPT.get('asl', 1)}")
    a(f"ds_read_b32 v3, v23 offset:{W_CNT}")
    a("s_waitcnt lgkmcnt(0)")
    a("v_readfirstlane_b32 s41, v3")
    a("s_nop 0")
    a("s_cmp_lt_u32 s41, 8")
    a("s_cbranch_scc1 L_cnt_spin")
    stamp(a, 7)
    set_flag(a, 40, 8, also=FL1*128 if OPT.get('lf', 1) else None)
    a("L_aux_wait:")
    a("s_sleep 4")
    a(f"ds_read_b32 v3, v23 offset:{W_PROG}")
    a("s_waitcnt lgkmcnt(0)")
    a("v_readfirstlane_b32 s41, v3")
    a("s_nop 0")
    a(f"s_cmp_lt_u32 s41, {OPT.get('f2w', 6)}")
    a("s_cbranch_scc1 L_aux_wait")
    if OPT.get('dyn', 1):
        a("s_cmp_lg_u32 s44, 1")
        a("s_cbranch_scc1 L_kv_done")
        make_srd(a, 28, pDBG, 0, 256)
        a("v_mov_b32 v3, 1")
        a("v_mov_b32 v4, 128")
        a("s_mov_b64 exec, 1")
        a("buffer_atomic_add v3, v4, s[28:31], 0 offen sc0")
        a("s_waitcnt vmcnt(0)")
        a("v_add_u32 v3, 1, v3")
        a("ds_write_b32 v23, v3 offset:12")
        a("s_mov_b64 exec, -1")
    a("s_branch L_kv_done")
    a("L_kv:")
    a(f"s_mul_i32 s40, s26, {KV_HEAD}")
    make_srd(a, 28, pWS, "s40", KV_HEAD)
    a(f"v_mul_u32_u24 v6, {LPAIR}, v1")
    a("v_min_u32 v6, %d, v6" % (30*LPAIR))
    for r in range(4): a(f"v_mov_b32 v{8+r}, 0x3f803f80")
    a("ds_write_b128 v6, v[8:11] offset:5120")
    for r in range(4): a(f"v_mov_b32 v{12+r}, 0")
    a("ds_write_b128 v6, v[12:15] offset:5136")
    a("v_mov_b32 v16, 0x3f803f80")
    a("v_mov_b32 v17, 0x3f80")
    a("ds_write_b64 v6, v[16:17] offset:5152")
    a("s_lshr_b32 s41, s26, 3")
    a("s_lshl_b32 s41, s41, 1")
    a(f"s_and_b32 s43, s{sXCD}, 1")
    a("s_lshl_b32 s43, s43, 3")
    a("s_lshl_b32 s42, s27, 1")
    a("v_and_b32 v3, 15, v1")
    a("v_lshrrev_b32 v5, 4, v1")
    a("v_add_u32 v5, 1, v5")
    a("v_and_b32 v4, 7, v1")
    a("v_add_u32 v4, s43, v4")
    a("v_bfe_u32 v6, v1, 3, 1")
    a("v_add_u32 v6, 1, v6")
    a("v_cmp_gt_u32 vcc, 32, v1")
    a("v_and_b32 v7, 1, v1")
    a("v_add_u32 v7, s42, v7")
    a("v_cndmask_b32 v3, v4, v3, vcc")
    a("v_cndmask_b32 v5, v6, v5, vcc")
    a("v_cmp_gt_u32 vcc, 48, v1")
    a("v_add_u32 v6, -48, v1")
    a(f"v_mov_b32 v4, {FL1}")
    a("v_cndmask_b32 v3, v7, v3, vcc")
    a("v_cndmask_b32 v5, 0, v5, vcc")
    a("v_cmp_gt_u32 vcc, 2, v6")
    a("v_cmp_gt_u32 s[46:47], 32, v1")
    a("v_and_b32 v7, 7, v3")
    a("v_lshl_add_u32 v5, v5, 3, v7")
    a("s_or_b64 vcc, vcc, s[46:47]")
    a("v_lshrrev_b32 v3, 3, v3")
    a("v_add_u32 v3, s41, v3")
    a("v_cndmask_b32 v4, v4, 0, vcc")
    a("v_lshl_add_u32 v5, v5, 3, v3")
    a("v_add_u32 v5, v5, v4")
    a("v_lshlrev_b32 v5, 7, v5")
    def poll_once(first=False):
        if first and OPT.get('lf', 1):
            a("s_and_b32 s48, s40, 7")
            a("s_cmp_eq_u32 s48, 0")
            a("s_cselect_b32 exec_lo, -1, 0")
            a("s_cselect_b32 exec_hi, -1, 0xcffff")
        a(f"buffer_load_dwordx2 v[6:7], v5, {sr(sFL,4)}, 0 offen sc1")
        if first and OPT.get('lf', 1): a("s_mov_b64 exec, -1")
        a("s_waitcnt vmcnt(0)")
        a(f"v_cmp_eq_u64 vcc, {sr(sNON,2)}, v[6:7]")
        a("s_sub_u32 s40, s40, 1")
        a("s_cselect_b32 s47, 0xffff, 0")
        a("s_and_b32 s48, vcc_hi, 0xff")
        a("s_lshl_b32 s48, s48, s43")
        a("s_or_b32 s48, s48, vcc_lo")
        a("s_bfe_u32 s49, vcc_hi, 0x80008")
        a("s_lshl_b32 s49, s49, s43")
        a("s_lshr_b32 s45, vcc_lo, 16")
        a("s_or_b32 s45, s45, s49")
        a("s_and_b32 s45, s45, s48")
        a("s_or_b32 s45, s45, s47")
    def pub(off, sreg):
        a(f"v_mov_b32 v4, s{sreg}")
        a(f"ds_write_b32 v23, v4 offset:{off}")
    a(f"s_mov_b32 s40, {POLL_MAX - 1}")
    a("v_mov_b32 v6, 0")
    a("v_mov_b32 v7, 0")
    if OPT.get('padgo'):
        a("L_padgo:")
        a("s_memrealtime s[42:43]")
        a("s_waitcnt lgkmcnt(0)")
        a(f"s_sub_u32 s42, s42, s{sNON}")
        a(f"s_cmp_lt_u32 s42, {OPT['padgo']}")
        a("s_cbranch_scc1 L_padgo")
    a("L_kv_p1:")
    a(f"s_sleep {OPT.get('ksl', 1)}")
    poll_once(True)
    a("s_cmp_lg_u32 s47, 0")
    a("s_cbranch_scc1 L_kv_first")
    a("s_lshr_b32 s48, vcc_hi, 16")
    a("s_lshr_b32 s49, vcc_hi, 18")
    a("s_or_b32 s48, s48, s49")
    a("s_and_b32 s48, s48, 3")
    a("s_cmp_eq_u32 s48, 3")
    a("s_cselect_b32 s48, s45, 0")
    a("s_cmp_eq_u32 s48, 0")
    a("s_cbranch_scc1 L_kv_p1")
    a("L_kv_first:")
    a("s_ff1_i32_b32 s48, s45")
    a("s_add_u32 s49, s48, 1")
    pub(W_GO, 49)
    stamp(a, 7)
    a("s_lshl_b32 s46, 1, s48")
    a(f"s_mul_i32 s48, s48, {4*TKV}")
    a(f"s_add_u32 s48, s48, {2*TKV}")
    for i in range(5):
        a(f"s_mov_b32 m0, {i*1024}")
        a("s_nop 0")
        a("buffer_load_dwordx4 v2, s[28:31], s48 offen sc1 lds")
        if i < 4: a("s_add_u32 s48, s48, 1024")
    a("s_mov_b32 s50, 1")
    a(f"s_mov_b32 s51, {LPAIR}")
    a("L_kv_next:")
    a("s_andn2_b32 s48, s45, s46")
    a("s_cbranch_scc0 L_kv_poll")
    a("s_ff1_i32_b32 s48, s48")
    a("s_bitset1_b32 s46, s48")
    a(f"s_mul_i32 s48, s48, {4*TKV}")
    for i in range(10):
        a(f"s_add_u32 m0, s51, {i*1024 + (64 if i >= 5 else 0)}")
        if i: a("s_add_u32 s48, s48, 1024")
        else: a("s_nop 0")
        a("buffer_load_dwordx4 v2, s[28:31], s48 offen sc1 lds")
    a(f"s_add_u32 s51, s51, {2*LPAIR}")
    a("s_cmp_eq_u32 s50, 1")
    a("s_cbranch_scc0 L_kv_w20")
    a("s_waitcnt vmcnt(10)")
    pub(W_PROG, 50)
    a("s_mov_b32 s50, 2")
    a("s_branch L_kv_next")
    a("L_kv_w20:")
    a("s_waitcnt vmcnt(20)")
    a("s_sub_u32 s49, s50, 1")
    pub(W_PROG, 49)
    a("s_add_u32 s50, s50, 1")
    a("s_branch L_kv_next")
    a("L_kv_poll:")
    a("s_waitcnt vmcnt(0)")
    pub(W_PROG, 50)
    a("s_cmp_eq_u32 s50, 16")
    a("s_cbranch_scc1 L_kv_done")
    poll_once()
    a("s_branch L_kv_next")
    a("L_kv_done:")
    stamp(a, 8)
    a("v_lshlrev_b32 v5, 7, v1")
    a(f"v_add_u32 v5, {192*128}, v5")
    poll(a, 5, 6, sleep=4)
    a(f"s_setprio {OPT.get('pf2', 3)}")
    if OPT.get('dyn', 1):
        a("L_item:")
        a("ds_read_b32 v3, v23 offset:12")
        a("s_waitcnt lgkmcnt(0)")
        a("v_readfirstlane_b32 s40, v3")
        a("s_nop 0")
        a("s_cmp_eq_u32 s40, 0")
        a("s_cbranch_scc1 L_item")
        a("s_sub_u32 s40, s40, 1")
    else:
        a(f"s_sub_u32 s40, 31, s{sSLOT}")
        a("s_cmp_ge_u32 s40, 24")
        a("s_cbranch_scc1 L_wo")
        a(f"s_mul_i32 s41, s{sXCD}, 24")
        a("s_add_u32 s40, s40, s41")
    a("s_cmp_ge_u32 s40, %d" % (0 if OPT.get('nof2') else 187))
    a("s_cbranch_scc1 L_wo")
    a("s_mul_i32 s41, s40, 373")
    a("s_lshr_b32 s41, s41, 12")
    a("s_mul_i32 s42, s41, 11")
    a("s_sub_u32 s42, s40, s42")
    a("s_lshl_b32 s41, s41, 1")
    a("s_cmp_ge_u32 s41, 18")
    a("s_cselect_b32 s43, 17, 0")
    a("s_sub_u32 s41, s41, s43")
    a("s_and_b32 s43, s41, 1")
    a("s_lshl_b32 s45, s44, 4")
    a("s_min_u32 s46, s44, 1")
    a("s_add_u32 s46, s46, s45")
    a("s_mul_i32 s47, s41, 65")
    a("s_add_u32 s47, s47, s46")
    a("s_lshl_b32 s47, s47, 10")
    a(f"s_add_u32 s47, s47, {SEQ_OFF}")
    make_srd(a, 28, pWS, "s47", 17*1024)
    a("s_and_b32 s47, s44, 2")
    a("s_add_u32 s47, s47, s43")
    a("s_mul_i32 s48, s47, 11")
    a("s_add_u32 s48, s48, s42")
    a("s_mul_i32 s48, s48, 33")
    a("s_and_b32 s45, s45, 16")
    a("s_add_u32 s48, s48, s45")
    a("s_lshl_b32 s48, s48, 10")
    a(f"s_add_u32 s48, s48, {AB_OFF}")
    make_srd(a, 32, pWS, "s48", 33*1024)
    make_srd(a, 36, pOUT, 0, OUT_SIZE)
    FB = 64; AC = 8
    a("s_or_b32 s47, s44, s43")
    a("s_cmp_lg_u32 s47, 0")
    a("s_cbranch_scc1 L_f2_nox")
    a(f"s_mov_b32 s49, {16*1024}")
    a("buffer_load_dwordx4 v[24:27], v2, s[28:31], s49 offen sc1")
    a(f"s_mov_b32 s49, {32*1024}")
    a("buffer_load_dwordx4 v[28:31], v2, s[32:35], s49 offen sc1")
    a("L_f2_nox:")
    for k in range(16):
        b = FB + k * 8
        if k % 4 == 0: a(f"s_mov_b32 s49, {(k//4)*4096}")
        a(f"buffer_load_dwordx4 {vr(b,4)}, v2, s[28:31], s49 offen offset:{(k%4)*1024} sc1")
        a(f"buffer_load_dwordx4 {vr(b+4,4)}, v2, s[32:35], s49 offen offset:{(k%4)*1024} sc1")
    stamp(a, 9)
    a("v_and_b32 v5, 31, v1")
    a("v_lshrrev_b32 v4, 5, v1")
    a("s_lshr_b32 s48, s41, 1")
    a("s_lshl_b32 s48, s48, 6")
    a("s_add_u32 s48, s48, s43")
    a("s_lshl_b32 s49, s44, 4")
    a("s_add_u32 s48, s48, s49")
    a("v_lshl_add_u32 v47, v4, 3, s48")
    a("v_mul_u32_u24 v47, 2560, v47")
    a("s_cmp_ge_u32 s42, 6")
    a("s_cselect_b32 s48, 383, 0")
    a("s_lshl_b32 s49, s42, 6")
    a("s_sub_u32 s48, s49, s48")
    a("v_lshl_add_u32 v5, v5, 1, s48")
    a(f"v_mov_b32 v46, {HUGE}")
    a("v_lshlrev_b32 v6, 1, v5")
    a("v_add_u32 v40, 1280, v6")
    a("v_cmp_ge_u32 vcc, 320, v5")
    a("v_sub_u32 v41, 2560, v6")
    a("v_add_u32 v6, -1, v5")
    a("v_cndmask_b32 v40, v46, v40, vcc")
    a("v_cmp_gt_u32 vcc, 319, v6")
    a(f"v_add_u32 v33, {(2048-6)*2560}, v40")
    a("v_sub_u32 v33, v33, v47")
    a("v_cndmask_b32 v41, v46, v41, vcc")
    a("v_add_u32 v32, v47, v40")
    a("v_add_u32 v36, v47, v41")
    a(f"v_add_u32 v37, {(2048-6)*2560}, v41")
    a("v_sub_u32 v37, v37, v47")
    a(f"v_subrev_u32 v34, {1024*2560}, v33")
    a(f"v_subrev_u32 v38, {1024*2560}, v37")
    a(f"v_add_u32 v35, {1024*2560}, v32")
    a(f"v_add_u32 v39, {1024*2560}, v36")
    a(f"v_add_u32 v42, {3*5120}, v33")
    a(f"v_add_u32 v43, {3*5120}, v37")
    a(f"v_mov_b32 v3, {LDS_PROG}")
    a("s_lshl_b32 s48, s44, 10")
    a("v_add_u32 v6, s48, v2")
    a("s_add_u32 s49, s48, 12288")
    a("s_lshl_b32 s50, s44, 12")
    a("s_add_u32 s51, s50, 3072")
    a("s_cmp_eq_u32 s44, 3")
    a(f"s_cmov_b32 s49, {LDS_PROG + 1024}")
    a(f"s_cmov_b32 s51, {LDS_PROG + 1024}")
    a("v_add_u32 v7, s49, v2")
    a("v_add_u32 v44, s50, v2")
    a("v_add_u32 v45, s51, v2")
    a("s_lshl_b32 s49, s44, 2")
    a("v_add_u32 v5, s49, v3")
    for k in range(16):
        a(f"s_waitcnt vmcnt({2*(15-k)})")
        b = FB + k * 8
        d = vr(AC, 16)
        a(f"v_mfma_f32_32x32x16_bf16 {d}, {vr(b,4)}, {vr(b+4,4)}, {'0' if k == 0 else d}")
    a("s_cmp_lg_u32 s47, 0")
    a("s_cbranch_scc1 L_f2_nox2")
    a(f"v_mfma_f32_32x32x16_bf16 {vr(AC,16)}, v[24:27], v[28:31], {vr(AC,16)}")
    a("L_f2_nox2:")
    def spin_min(lbl, off, sl):
        a(f"{lbl}:")
        a(f"ds_read_b128 v[48:51], v3 offset:{off}")
        a("s_waitcnt lgkmcnt(0)")
        a("v_min3_u32 v48, v48, v49, v50")
        a("v_min_u32 v48, v48, v51")
        a("s_nop 0")
        a("v_readfirstlane_b32 s48, v48")
        a("s_nop 0")
        a("s_cmp_lg_u32 s48, 0")
        a(f"s_cbranch_scc1 {lbl}_ok")
        a(f"s_sleep {sl}")
        a(f"s_branch {lbl}")
        a(f"{lbl}_ok:")
    spin_min("L_f2_dead", W_PASS, 4)
    a("s_nop 3")
    for j in range(3): a(f"ds_write_b128 v6, {vr(AC+4*j,4)} offset:{j*4096}")
    a(f"ds_write_b128 v7, {vr(AC+12,4)}")
    a(f"ds_write_b32 v5, v3 offset:{W_XCH}")
    spin_min("L_f2_wait", W_XCH, 2)
    for i in range(3): a(f"ds_read_b128 {vr(8+4*i,4)}, v44 offset:{i*1024}")
    a("ds_read_b128 v[20:23], v45")
    a("s_waitcnt lgkmcnt(0)")
    ng = "neg_lo:[0,1] neg_hi:[0,1]"
    for r in (0, 2):
        a(f"v_pk_add_f32 {vr(48+r,2)}, {vr(8+r,2)}, {vr(12+r,2)}")
        a(f"v_pk_add_f32 {vr(52+r,2)}, {vr(8+r,2)}, {vr(12+r,2)} {ng}")
        a(f"v_pk_add_f32 {vr(56+r,2)}, {vr(20+r,2)}, {vr(16+r,2)}")
        a(f"v_pk_add_f32 {vr(60+r,2)}, {vr(20+r,2)}, {vr(16+r,2)} {ng}")
    for r in (0, 2):
        a(f"v_pk_add_f32 {vr(8+r,2)}, {vr(48+r,2)}, {vr(56+r,2)} {ng}")
        a(f"v_pk_add_f32 {vr(12+r,2)}, {vr(48+r,2)}, {vr(56+r,2)}")
        a(f"v_pk_add_f32 {vr(16+r,2)}, {vr(52+r,2)}, {vr(60+r,2)} {ng}")
        a(f"v_pk_add_f32 {vr(20+r,2)}, {vr(52+r,2)}, {vr(60+r,2)}")
    for k in range(8): a(f"v_cvt_pk_bf16_f32 v{48+k}, v{8+2*k}, v{9+2*k}")
    a("s_cmp_eq_u32 s41, 16")
    a("s_cbranch_scc1 L_f2_nyq")
    for i in range(4):
        st = "buffer_store_short_d16_hi" if i & 1 else "buffer_store_short"
        m1, p1, m2, p2 = (48 + 2*k + (i >> 1) for k in range(4))
        a(f"s_mov_b32 s47, {i*5120}")
        a(f"s_mov_b32 s48, {(3-i)*5120}")
        for val, adr, so in [(m1, 32, "s47"), (p1, 36, "s47"), (p2, 35, "s47"), (m2, 39, "s47"), (m2, 34, "s48"), (p2, 38, "s48"),
                             (p1, 33 if i else 42, "s48" if i else "0"), (m1, 37 if i else 43, "s48" if i else "0")]:
            a(f"{st} v{val}, v{adr}, s[36:39], {so} offen{FLF()}")
    a("s_branch L_wo")
    a("L_f2_nyq:")
    a("s_cmp_lg_u32 s44, 0")
    a("s_cbranch_scc1 L_wo")
    a("s_mov_b32 exec_hi, 0")
    for val, adr in [(48, 32), (50, 36), (50, 42), (48, 43)]:
        a(f"buffer_store_short v{val}, v{adr}, s[36:39], 0 offen{FLF()}")
    a("s_mov_b64 exec, -1")
    a("L_wo:")
    stamp(a, 10)
    a("s_and_b32 s40, s26, 3")
    a("s_lshl_b32 s40, s40, 2")
    a("s_add_u32 s40, s40, s44")
    a(f"s_mul_i32 s40, s40, {50*1024}")
    a(f"s_add_u32 s40, s40, {WO_OFF}")
    make_srd(a, 28, pWS, "s40", 50*1024)
    a("s_waitcnt vmcnt(0)")
    for k in range(OPT.get('nwo', 50)):
        if k % 4 == 0: a(f"s_mov_b32 s49, {(k//4)*4096}")
        a(f"buffer_load_dwordx4 {vr(56+4*k,4)}, v2, s[28:31], s49 offen offset:{(k%4)*1024} sc1")

def tail(a):
    a("L_B_done:")
    a("s_lshr_b32 s40, s26, 2")
    a("s_lshl_b32 s41, s27, 3")
    a("s_add_u32 s41, s41, s40")
    a(f"s_mul_i32 s42, s41, {32*1280}")
    a(f"s_add_u32 s42, s42, {O_OFF}")
    make_srd(a, 28, pWS, "s42", 32*1280)
    a("v_and_b32 v4, 7, v1")
    a("v_bfe_u32 v5, v1, 3, 2")
    a("v_lshlrev_b32 v5, 1, v5")
    a("v_lshl_add_u32 v4, v4, 3, v5")
    a("s_and_b32 s42, s27, 3")
    a("s_lshl_b32 s42, s42, 6")
    a("s_lshr_b32 s43, s27, 2")
    a("s_add_u32 s42, s42, s43")
    a("s_lshl_b32 s42, s42, 2")
    a("s_lshr_b32 s40, s40, 1")
    a("s_add_u32 s42, s42, s40")
    a(f"s_add_u32 s42, s42, {FB}")
    a("v_lshl_add_u32 v4, v4, 2, s42")
    a("v_lshlrev_b32 v4, 7, v4")
    a("s_waitcnt vmcnt(0)")
    stamp(a, 12)
    a("s_barrier")
    stamp(a, 1)
    poll(a, 4, 6, sleep=OPT.get('sl', 0))
    stamp(a, 13)
    a("s_lshl_b32 s40, s44, 10")
    for j in range(10):
        a("s_mov_b32 m0, s40")
        a("s_nop 0")
        a("buffer_load_dwordx4 v2, s[28:31], s40 offen sc1 lds")
        if j < 9: a("s_add_u32 s40, s40, 4096")
    a("v_and_b32 v3, 31, v1")
    a("v_lshrrev_b32 v4, 5, v1")
    a("v_mul_u32_u24 v5, 2560, v4")
    a("v_lshl_add_u32 v5, v3, 3, v5")
    a("v_add_u32 v5, 1024, v5")
    make_srd(a, 32, pOUT, 0, OUT_SIZE)
    a("s_lshl_b32 s41, s41, 5")
    a("v_add_u32 v6, s41, v3")
    a("v_mul_u32_u24 v6, 2560, v6")
    a("s_and_b32 s42, s26, 3")
    a("s_mul_i32 s42, s42, 320")
    a("s_mul_i32 s43, s44, 12800")
    a("v_add_u32 v7, s43, v2")
    a("s_lshl_b32 s43, s44, 12")
    a("s_add_u32 s43, s43, 40960")
    a("v_add_u32 v3, s43, v2")
    a("s_lshl_b32 s43, s44, 10")
    a("s_add_u32 s43, s43, 40960")
    a("v_add_u32 v1, s43, v2")
    a("s_lshl_b32 s45, s44, 4")
    a("s_add_u32 s45, s45, s42")
    a("v_lshl_add_u32 v0, v4, 3, v6")
    a("s_lshl_b32 s43, s44, 6")
    a("s_add_u32 s43, s43, s42")
    a("v_lshl_add_u32 v6, v4, 4, v6")
    a("s_waitcnt vmcnt(%d)" % (6 if OPT.get('prog', 1) else 0))
    a("s_barrier")
    stamp(a, 14)
    if lib.STAMP: a("s_waitcnt lgkmcnt(0)")
    A5, AM, OB = 8, 24, 40
    def rd(buf, kap, base=None):
        b = OB + 4*buf
        if base is not None: return f"ds_read_b128 {vr(b,4)}, v{base} offset:{kap*1280}"
        if kap < 32: return f"ds_read_b128 {vr(b,4)}, v2 offset:{kap*1280}"
        o = (kap - 32) * 5120 // 8
        return None
    def rd_main(buf, kap):
        b = OB + 4*buf
        if kap < 32: return [f"ds_read_b128 {vr(b,4)}, v2 offset:{kap*1280}"]
        g = kap - 32
        return [f"ds_read_b64 {vr(b,2)}, v5 offset:{g*5120}", f"ds_read_b64 {vr(b+2,2)}, v5 offset:{g*5120+1280}"]
    PG = 10 if OPT.get('prog', 1) else 0
    def stream(steps):
        n = len(steps); cnt = [0]*n
        PF = 3
        for k in range(PF):
            r = steps[k][0](k % 4); cnt[k] = len(r)
            for x in r: a(x)
        for k in range(n):
            out = sum(cnt[k+1:min(n, k+PF)])
            a(f"s_waitcnt lgkmcnt({out})")
            d = vr(steps[k][1], 16)
            a(f"v_mfma_f32_32x32x16_bf16 {d}, {vr(steps[k][2],4)}, {vr(OB+4*(k%4),4)}, {'0' if steps[k][3] else d}")
            if PG and k + PF == PG:
                a("s_waitcnt vmcnt(0)")
                a("s_barrier")
            if k + PF < n:
                r = steps[k+PF][0]((k+PF) % 4); cnt[k+PF] = len(r)
                for x in r: a(x)
            if k == PG + 13:
                for j in range(4): a(f"ds_write_b128 v3, {vr(A5+4*j,4)} offset:{j*1024}")
                cnt[k+PF] += 4
            if k == 32:
                a("s_barrier")
                for i in range(4): a(f"ds_read_b128 {vr(A5+4*i,4)}, v1 offset:{i*4096}")
                cnt[k+PF] += 4
            if k == 38:
                for i in range(1, 4):
                    a(f"v_pk_add_f32 {vr(A5,2)}, {vr(A5,2)}, {vr(A5+4*i,2)}")
                    a(f"v_pk_add_f32 {vr(A5+2,2)}, {vr(A5+2,2)}, {vr(A5+4*i+2,2)}")
            if k == 40:
                a(f"v_cvt_pk_bf16_f32 v{A5}, v{A5}, v{A5+1}")
                a(f"v_cvt_pk_bf16_f32 v{A5+1}, v{A5+2}, v{A5+3}")
                a(f"buffer_store_dwordx2 {vr(A5,2)}, v0, s[32:35], s45 offen offset:256{FLP()}")
    main = [((lambda kap: lambda buf: rd_main(buf, kap))(kap), AM, 56 + 4*(10+kap), kap == 0) for kap in range(40)]
    a("s_cmp_eq_u32 s44, 3")
    a("s_cbranch_scc1 L_tail3")
    q5 = [((lambda i: lambda buf: [f"ds_read_b128 {vr(OB+4*buf,4)}, v7 offset:{i*1280}"])(i), A5, 56 + 4*i, i == 0) for i in range(10)]
    stream(main[:PG] + q5 + main[PG:])
    a("s_branch L_tail_join")
    a("L_tail3:")
    q5 = [((lambda i: lambda buf: rd_main(buf, 30 + i))(i), A5, 56 + 4*i, i == 0) for i in range(10)]
    stream(main[:PG] + q5 + main[PG:])
    a("L_tail_join:")
    stamp(a, 11)
    a("s_nop 10")
    for r in range(8): a(f"v_cvt_pk_bf16_f32 v{AM+r}, v{AM+2*r}, v{AM+2*r+1}")
    a("s_nop 1")
    for h2 in range(2):
        a(f"v_permlane32_swap_b32 v{AM+4*h2}, v{AM+4*h2+2}")
        a(f"v_permlane32_swap_b32 v{AM+4*h2+1}, v{AM+4*h2+3}")
    for h2 in range(2):
        a(f"buffer_store_dwordx4 {vr(AM+4*h2,4)}, v6, s[32:35], s43 offen offset:{32*h2}{FLP()}")
    a("L_end:")
    if OPT.get('pad'):
        a("L_pad:")
        a("s_memrealtime s[40:41]")
        a("s_waitcnt lgkmcnt(0)")
        a(f"s_sub_u32 s40, s40, s{sNON}")
        a(f"s_cmp_lt_u32 s40, {OPT['pad']}")
        a("s_cbranch_scc1 L_pad")
    if lib.STAMP:
        a("s_waitcnt vmcnt(0)")
        stamp(a, 15); stamp_real(a, 17)
        stamp_flush(a, 18, pWS, sWAVE, 0)
    a("L_exit:")
    a("s_endpgm")

KNAME = "concat_heads__mha_block__spectral_fnet__prompt_kernel"
def kernel(a):
    kernel_header(a, KNAME)
    if OPT.get('early'): a("s_memrealtime s[98:99]")
    a("s_cmp_ge_u32 s2, 256")
    a("s_cbranch_scc1 L_exit")
    if lib.STAMP:
        for i in range(18): a(f"s_mov_b32 s{60+2*i}, 0")
    stamp(a, 0); stamp_real(a, 16)
    a("s_load_dwordx8 s[4:11], s[0:1], 0")
    a("s_load_dwordx4 s[12:15], s[0:1], 64")
    a("s_load_dwordx2 s[16:17], s[0:1], 80")
    a("v_lshrrev_b32 v1, 6, v0")
    a(f"s_and_b32 s{sXCD}, s2, 7")
    a(f"v_readfirstlane_b32 s{sWAVE}, v1")
    a(f"s_lshr_b32 s{sSLOT}, s2, 3")
    a("v_and_b32 v1, 63, v0")
    a(f"s_and_b32 s26, s{sXCD}, 1")
    a("s_lshl_b32 s26, s26, 3")
    a(f"s_and_b32 s27, s{sSLOT}, 7")
    a("s_add_u32 s26, s26, s27")
    a(f"s_lshr_b32 s27, s{sSLOT}, 3")
    a("s_lshl_b32 s27, s27, 2")
    a(f"s_lshr_b32 s40, s{sXCD}, 1")
    a("s_add_u32 s27, s27, s40")
    a(f"s_cmp_ge_u32 s{sSLOT}, 24")
    a("s_cselect_b32 s40, 0, s%d" % sWAVE)
    a("s_cmp_lt_u32 s40, 4")
    a("s_cbranch_scc1 L_other")
    gemm_loader(a)
    a("L_other:")
    a("s_waitcnt lgkmcnt(0)")
    make_srd(a, sFL, pWS, FL_OFF, FL_SIZE)
    a(f"s_cmp_lg_u32 s{sWAVE}, 0")
    a("s_cbranch_scc1 L_no_init")
    a(f"v_mov_b32 v2, {LDS_PROG}")
    a("v_mov_b32 v4, 0")
    a("v_mov_b32 v5, 0")
    for i in range(8): a(f"ds_write_b64 v2, v[4:5] offset:{8*i}")
    a("s_cmp_lg_u32 s2, 0")
    a("s_cbranch_scc1 L_no_nonce")
    if OPT.get('early'): a("s_mov_b64 s[40:41], s[98:99]")
    else: a("s_memrealtime s[40:41]")
    make_srd(a, 28, pDBG, 0, 256)
    a("s_waitcnt lgkmcnt(0)")
    a("s_or_b32 s40, s40, 1")
    a("v_mov_b32 v2, s40")
    a("v_mov_b32 v3, s41")
    a("buffer_store_dwordx2 v[2:3], v4, s[28:31], 0 offen sc1")
    a("L_no_nonce:")
    a("s_waitcnt lgkmcnt(0)")
    a("L_no_init:")
    if OPT.get('touch', 1) & 1:
        a(f"s_cmp_lg_u32 s{sWAVE}, 1")
        a("s_cbranch_scc1 L_no_code")
        a("s_getpc_b64 s[40:41]")
        a("L_pc:")
        a(f"s_sub_u32 s40, s40, L_pc-{KNAME}")
        a("s_subb_u32 s41, s41, 0")
        a(f"s_mul_i32 s42, s{sSLOT}, 1280")
        a("v_lshlrev_b32 v2, 4, v1")
        a("v_add_u32 v2, s42, v2")
        a(f"v_min_u32 v2, L_exit-{KNAME}-1024-16, v2")
        for i in range(2): a(f"global_load_dwordx4 v[240:243], v2, s[40:41] offset:{i*1024}")
        a("L_no_code:")
    if OPT.get('touch', 1) & 2:
        a(f"s_cmp_lg_u32 s{sWAVE}, 2")
        a("s_cbranch_scc1 L_no_tlb")
        make_srd(a, 28, pWS, 0, FL_OFF + FL_SIZE)
        a(f"v_mul_u32_u24 v2, {OPT.get('tstr', 0x44000)}, v1")
        a("buffer_load_dword v240, v2, s[28:31], 0 offen sc1")
        make_srd(a, 28, pOUT, 0, OUT_SIZE)
        a("v_mul_u32_u24 v2, 0x14000, v1")
        a("buffer_load_dword v241, v2, s[28:31], 0 offen sc1")
        a("L_no_tlb:")
    a(f"s_cmp_ge_u32 s{sSLOT}, 24")
    a("s_cbranch_scc1 L_prep")
    gemm_compute(a)
    prep(a)
    a_done(a)
    attention(a)
    aux(a)
    tail(a)
    return kernel_desc(KNAME, 256, 100)

HEADER = open('concat_heads__mha_block__spectral_fnet__prompt.s.ref').read().split("; Override")[0]
def main(out):
    a = Asm()
    a('.amdgcn_target "amdgcn-amd-amdhsa--gfx950"')
    a(".text")
    d = kernel(a)
    txt = HEADER + "; @launch grid=(256,1,1) block=(512,1,1) lds=163840\n" + a.text() + '.section .rodata,"a"\n.p2align 6\n' + d
    open(out, "w").write(txt)

if __name__ == "__main__":
    for x in sys.argv[2:]:
        if x == "stamp": lib.STAMP = True
        elif x == "rt": lib.STAMP = True; lib.STAMPRT = True
        elif x == "gst": lib.STAMP = True; lib.STAMPSET = 1
        elif x == "cst": lib.STAMP = True; lib.STAMPSET = 2
        else:
            k, _, v = x.partition("=")
            OPT[k] = int(v) if v else 1
    main(sys.argv[1] if len(sys.argv) > 1 else "v21.s")
```

```python
import sys, struct
from lib import *
import lib

TKV = 2560; KV_HEAD = 64*TKV; KV_OFF = 0; KV_SIZE = 32*KV_HEAD
TQ = 1280; Q_HEAD = 64*TQ; Q_OFF = KV_SIZE; Q_SIZE = 32*Q_HEAD
O_OFF = Q_OFF + Q_SIZE; O_SIZE = 64*32*1280
SEQ_OFF = O_OFF + O_SIZE; SEQ_SIZE = 17*65*1024
AB_OFF = SEQ_OFF + SEQ_SIZE; AB_SIZE = 4*11*33*1024
WO_OFF = AB_OFF + AB_SIZE; WO_SIZE = 16*50*1024
FL_OFF = 16*1024*1024; FL_SIZE = 1536*128
FA, FB, FL1 = 0, 256, 1280
X_SIZE = 2048*1280; OUT_SIZE = 2048*2560
HUGE = 0x40000000
QSCALE = (20 ** -0.5) * 1.4426950408889634
NDMA = 155; LPAIR = 5184
LDS_PROG = 31*LPAIR
def lds_tile(t): return ((t-2)>>1)*LPAIR + ((t-2)&1)*TKV
def need(tile): return ((tile-1)*TKV + 4095)//4096
NEED = [need(4), need(7), need(15), need(23), 39]
POLL_MAX = 200000
def f32bits(x): return struct.unpack('<I', struct.pack('<f', x))[0]
OPT = {}
FLS = ['', ' sc1', ' nt', ' sc0 sc1', ' sc1 nt']
def FLP(): return FLS[OPT.get('flp', 0)]
def FLF(): return FLS[OPT.get('flf', 1)]

sWAVE = 3
pX, pW, pWO, pBX, pOUT, pDBG, pWS = 4, 6, 8, 10, 12, 14, 16
sNON = 18
sFL = 20
sXCD, sSLOT = 24, 25
STG = 36864
NS = 4

def poll(a, vaddr, vtmp, cnt=40, sleep=1):
    l = a.label("L_poll"); d = a.label("L_pollok")
    a(f"s_mov_b32 s{cnt}, {POLL_MAX}")
    a(f"{l}:")
    a(f"buffer_load_dwordx2 {vr(vtmp,2)}, v{vaddr}, {sr(sFL,4)}, 0 offen sc1")
    a("s_waitcnt vmcnt(0)")
    a(f"v_cmp_ne_u64 vcc, {sr(sNON,2)}, {vr(vtmp,2)}")
    a(f"s_sub_u32 s{cnt}, s{cnt}, 1")
    a(f"s_cbranch_vccz {d}")
    a(f"s_cmp_eq_u32 s{cnt}, 0")
    a(f"s_cbranch_scc1 {d}")
    if sleep: a(f"s_sleep {sleep}")
    a(f"s_branch {l}")
    a(f"{d}:")

def get_nonce(a, vt, srd=28, cnt=40):
    make_srd(a, srd, pDBG, 0, 256)
    l = a.label("L_non"); d = a.label("L_nonok")
    a(f"v_mov_b32 v{vt}, 0")
    a(f"s_mov_b32 s{cnt}, {POLL_MAX}")
    a(f"{l}:")
    a(f"buffer_load_dwordx2 {vr(vt+2,2)}, v{vt}, {sr(srd,4)}, 0 offen sc1")
    a("s_waitcnt vmcnt(0)")
    a(f"v_readfirstlane_b32 s{sNON}, v{vt+2}")
    a(f"v_readfirstlane_b32 s{sNON+1}, v{vt+3}")
    a(f"s_sub_u32 s{cnt}, s{cnt}, 1")
    a(f"s_cmp_lg_u32 s{sNON}, 0")
    a(f"s_cbranch_scc1 {d}")
    a(f"s_cmp_eq_u32 s{cnt}, 0")
    a(f"s_cbranch_scc1 {d}")
    a("s_sleep 2")
    a(f"s_branch {l}")
    a(f"{d}:")

def set_flag(a, sidx, vt, also=None):
    for i in range(4): a(f"v_mov_b32 v{vt+i}, s{sNON+(i&1)}")
    a(f"v_lshlrev_b32 v{vt+4}, 4, v1")
    a("s_mov_b64 exec, 0xff")
    if also is not None:
        a(f"s_add_u32 s41, s{sidx}, {also}")
        a(f"buffer_store_dwordx4 {vr(vt,4)}, v{vt+4}, {sr(sFL,4)}, s41 offen")
    a(f"buffer_store_dwordx4 {vr(vt,4)}, v{vt+4}, {sr(sFL,4)}, s{sidx} offen sc1")
    a("s_mov_b64 exec, -1")

def gemm_loader(a):
    sA, sB = 28, 32
    a("L_loader:")
    a(f"s_sub_u32 s44, s{sWAVE}, 4")
    a("v_lshrrev_b32 v2, 3, v1")
    a("s_lshl_b32 s40, s44, 3")
    a("v_add_u32 v2, s40, v2")
    a("v_mul_u32_u24 v2, 1280, v2")
    a("v_lshrrev_b32 v3, 4, v1")
    a("s_and_b32 s40, s44, 1")
    a("s_lshl_b32 s40, s40, 2")
    a("v_or_b32 v4, s40, v3")
    a("v_and_b32 v5, 7, v1")
    a("v_xor_b32 v4, v4, v5")
    a("v_lshl_add_u32 v10, v4, 4, v2")
    a("s_lshl_b32 s45, s44, 10")
    a(f"s_lshr_b32 s40, s{sSLOT}, 3")
    a(f"s_mul_i32 s40, s40, {OPT.get('ra', 5)}")
    a(f"s_and_b32 s41, s{sSLOT}, 7")
    a(f"s_mul_i32 s41, s41, {OPT.get('rb', 5)}")
    a("s_add_u32 s40, s40, s41")
    a(f"s_mul_i32 s41, s{sXCD}, {OPT.get('rc', 3)}")
    a("s_add_u32 s40, s40, s41")
    a("s_mul_i32 s41, s40, 6554")
    a("s_lshr_b32 s41, s41, 16")
    a("s_mul_i32 s41, s41, 10")
    a("s_sub_u32 s47, s40, s41")
    a("s_lshl_b32 s40, s44, 4")
    a("v_lshrrev_b32 v2, 2, v1")
    a("v_add_u32 v2, s40, v2")
    a("v_mul_u32_u24 v2, 3840, v2")
    a("v_and_b32 v3, 3, v1")
    a("v_lshrrev_b32 v4, 5, v1")
    a("v_lshlrev_b32 v4, 1, v4")
    a("v_xor_b32 v3, v3, v4")
    a("v_lshl_add_u32 v11, v3, 4, v2")
    a("s_mul_i32 s46, s44, 5120")
    a("s_mul_i32 s50, s26, 163840")
    a("s_mul_i32 s51, s27, 320")
    a("s_sub_u32 s52, 2457600, s51")
    a("s_waitcnt lgkmcnt(0)")
    make_srd(a, sA, pX, "s50", 163840)
    def issue_x(c):
        sl = c % NS
        a("s_lshl_b32 s48, s47, 7")
        for j in range(4):
            a(f"s_add_u32 m0, s45, {sl*STG + j*4096}")
            if j: a(f"s_add_u32 s48, s48, 40960")
            else: a("s_mul_i32 s49, s47, 245760")
            a(f"buffer_load_dwordx4 v10, {sr(sA,4)}, s48 offen lds")
    def issue_w(c):
        sl = c % NS
        for i in range(5):
            a(f"s_add_u32 m0, s46, {sl*STG + 16384 + i*1024 - i*64}")
            if i == 0:
                a("s_add_u32 s47, s47, 1")
            elif i == 1:
                a("s_cmp_eq_u32 s47, 10")
                a("s_cmov_b32 s47, 0")
            else: a("s_nop 0")
            a(f"buffer_load_dwordx4 v11, {sr(sB,4)}, s49 offen offset:{i*64} lds")
    def issue(c): issue_x(c); issue_w(c)
    stamp(a, 12, 1)
    issue_x(0)
    stamp(a, 13, 1)
    make_srd(a, sB, pW, "s51", "s52")
    issue_w(0)
    stamp(a, 14, 1)
    issued = 1
    pre = OPT.get('pre', 2)
    for c in range(1, pre): issue(c); issued += 1
    for c in range(10):
        a(f"s_waitcnt vmcnt({9*(issued-c-1)})")
        if c in (0, 9): stamp(a, {0: 2, 9: 5}[c])
        stamp(a, c + 1, 1)
        a("s_barrier")
        if c == 0: stamp(a, 11, 1)
        while issued < min(10, c + 1 + (OPT.get('dep', 2) if c < OPT.get('depsw', 10) else 3)): issue(issued); issued += 1
    make_srd(a, sFL, pWS, FL_OFF, FL_SIZE)
    get_nonce(a, 2)
    a("s_branch L_A_done")

AX, AWA, EA = 8, 10, 16
FR = 24
ACC = 96
def gemm_loop(a, isv, epi):
    XB = [FR, FR + 36, 176, 212]
    def rdx(kk, m, b): sl, st = divmod(kk, 2); return f"ds_read_b128 {vr(b+4*m,4)}, v{AX+st} offset:{sl*STG + m*2048}"
    def rdw(kk, T, b): sl, st = divmod(kk, 2); return [f"ds_read_b64_tr_b16 {vr(b+16+4*T+2*t,2)}, v{AWA+T} offset:{sl*STG + st*10240 + t*256}" for t in range(2)]
    def reads(kk, b):
        r = rdw(kk, 0, b) + [rdx(kk, m, b) for m in range(4)]
        for T in range(1, 5): r += rdw(kk, T, b)
        return r
    def mfma(b, T, m):
        d = vr(ACC + 16*T + 4*m, 4); w = vr(b + 16 + 4*T, 4); x = vr(b + 4*m, 4)
        return f"v_mfma_f32_16x16x32_bf16 {d}, {x}, {w}, {d}" if isv else f"v_mfma_f32_16x16x32_bf16 {d}, {w}, {x}, {d}"
    for r in range(80): a(f"v_mov_b32 v{ACC+r}, 0")
    a(f"s_mov_b32 s40, {2*STG}")
    a("s_mov_b32 s41, 4")
    a("s_barrier")
    stamp(a, 2)
    for r in reads(0, XB[0]): a(r)
    lp = a.label("L_gemm"); last = a.label("L_gemm_last")
    a(".p2align 3")
    a(f"{lp}:")
    for kk in range(4):
        a("s_waitcnt lgkmcnt(0)")
        ms = [mfma(XB[kk & 1], T, m) for T in range(5) for m in range(4)]
        a(ms[0])
        if kk == 1: a("s_barrier")
        if kk == 3:
            for i in range(2): a(f"v_add_u32 v{AX+i}, s40, v{AX+i}")
            for i in range(5): a(f"v_add_u32 v{AWA+i}, s40, v{AWA+i}")
            a("s_sub_u32 s40, 0, s40")
            a("s_sub_u32 s41, s41, 1")
            a("s_barrier")
            a("s_cmp_eq_u32 s41, 0")
            a(f"s_cbranch_scc1 {last}")
        nx = reads((kk + 1) & 3, XB[(kk + 1) & 1])
        for i in range(1, 20):
            if i - 1 < len(nx): a(nx[i-1])
            a(ms[i])
    a(f"s_branch {lp}")
    a(f"{last}:")
    bufs = [XB[0], XB[2], XB[3], XB[1]]
    def order(k0):
        r = []
        for k in (k0, k0 + 1): r += rdw(k, 0, bufs[k]) + [rdx(k, m, bufs[k]) for m in range(4)]
        return r
    first = order(0)
    rest01 = [x for T in range(1, 5) for k in (0, 1) for x in rdw(k, T, bufs[k])]
    second = order(2)
    rest23 = [[x for k in (2, 3) for x in rdw(k, T, bufs[k])] for T in range(5)]
    ms = [mfma(XB[1], T, m) for T in range(5) for m in range(4)]
    q = first + rest01
    pos = 0
    for i in range(1, 20):
        for _ in range(2 if i < 10 else 1):
            if pos < len(q): a(q[pos]); pos += 1
        a(ms[i])
    a("s_barrier")
    q = second + rest23[1] + rest23[2] + rest23[3] + rest23[4]
    a("s_waitcnt lgkmcnt(0)")
    pos = 0
    for T in range(5):
        e = epi(T - 1) if T >= 1 else []
        per = -(-len(e) // 12)
        for i in range(16):
            if i == 8 and T < 2: a(f"s_waitcnt lgkmcnt({min(15, pos - (12 + 4*T))})" if T == 0 else "s_waitcnt lgkmcnt(0)")
            a(mfma(bufs[i >> 2], T, i & 3))
            for _ in range(2):
                if pos < len(q): a(q[pos]); pos += 1
            if i >= 4:
                for x in e[per*(i-4):per*(i-3)]: a(x)
    stamp(a, 5)
    a("s_nop 7")
    for x in epi(4): a(x)

def gemm_compute(a):
    a("L_compute:")
    a("v_and_b32 v2, 15, v1")
    a("v_lshrrev_b32 v3, 4, v1")
    a(f"s_and_b32 s42, s{sWAVE}, 1")
    a(f"s_lshr_b32 s43, s{sWAVE}, 1")
    a("s_lshl_b32 s40, s42, 6")
    a("v_add_u32 v4, s40, v2")
    a("v_lshlrev_b32 v4, 7, v4")
    a("v_lshrrev_b32 v5, 1, v2")
    a("v_xor_b32 v5, v5, v3")
    a(f"v_lshl_add_u32 v{AX}, v5, 4, v4")
    a(f"v_xor_b32 v{AX+1}, 64, v{AX}")
    a("v_lshrrev_b32 v4, 5, v1")
    a("v_mul_u32_u24 v4, 5120, v4")
    a("v_and_b32 v5, 1, v3")
    a("v_lshrrev_b32 v6, 2, v2")
    a("v_lshl_add_u32 v6, v5, 3, v6")
    a("v_lshl_add_u32 v4, v6, 6, v4")
    a("v_add_u32 v4, 16384, v4")
    a("v_lshlrev_b32 v5, 2, v5")
    a("v_and_b32 v6, 3, v1")
    a("s_mul_i32 s44, s43, 20")
    def waddr(T, g):
        a(f"v_and_b32 v15, 7, v{g}")
        a("v_xor_b32 v15, v15, v5")
        a("v_lshl_add_u32 v15, v15, 3, v4")
        a(f"v_lshrrev_b32 v{g}, 3, v{g}")
        a(f"v_lshl_add_u32 v{AWA+T}, v{g}, 10, v15")
    a("s_lshl_b32 s45, s26, 2")
    a("s_lshl_b32 s42, s42, 1")
    a("s_add_u32 s42, s42, s45")
    a("s_and_b32 s45, s27, 3")
    a("s_lshl_b32 s45, s45, 3")
    a("s_lshl_b32 s43, s43, 2")
    a("s_add_u32 s43, s43, s45")
    a("s_cmp_ge_u32 s27, 8")
    a("s_cbranch_scc1 L_compute_v")
    for T in range(5):
        if T < 4:
            a(f"s_add_u32 s45, s44, {5*T}")
            a("v_add_u32 v7, s45, v6")
        else:
            a("s_add_u32 s45, s44, 4")
            a("v_mad_u32_u24 v7, v6, 5, s45")
        waddr(T, 7)
    a("s_cmp_ge_u32 s27, 4")
    for reg, k, q in [(44, KV_HEAD, Q_HEAD), (45, TKV, TQ), (46, f32bits(1.0), f32bits(QSCALE)), (47, KV_OFF, Q_OFF), (48, KV_SIZE, Q_SIZE)]:
        a(f"s_mov_b32 s{reg}, {q}")
        a(f"s_cmov_b32 s{reg}, {k}")
    make_srd(a, 28, pWS, "s47", "s48")
    a("s_mul_i32 s47, s43, s44")
    a("s_mul_i32 s48, s42, s45")
    a("s_add_u32 s47, s47, s48")
    a(f"v_lshlrev_b32 v{EA}, 4, v1")
    a(f"v_add_u32 v{EA+1}, s45, v{EA}")
    a("v_lshrrev_b32 v4, 5, v1")
    a("v_mul_lo_u32 v4, v4, s44")
    a("v_and_b32 v5, 31, v1")
    a("v_lshlrev_b32 v5, 3, v5")
    a("v_lshl_add_u32 v4, v4, 1, v5")
    a(f"v_add_u32 v{EA+2}, 1024, v4")
    a(f"v_add_u32 v{EA+3}, s45, v{EA+2}")
    a("s_mov_b32 s48, s47")
    a("s_add_u32 s49, s47, s44")
    def epi_qk(T):
        b = ACC + 16*T; e = []
        for r in range(16): e.append(f"v_mul_f32 v{b+r}, s46, v{b+r}")
        for r in range(8): e.append(f"v_cvt_pk_bf16_f32 v{b+r}, v{b+2*r}, v{b+2*r+1}")
        e.append("s_nop 0")
        for u in range(2):
            e.append(f"v_permlane16_swap_b32 v{b+4*u}, v{b+4*u+2}")
            e.append(f"v_permlane16_swap_b32 v{b+4*u+1}, v{b+4*u+3}")
        for u in range(2):
            if T < 4: e.append(f"buffer_store_dwordx4 {vr(b+4*u,4)}, v{EA+u}, s[28:31], s48 offen sc1")
            else:
                e.append(f"buffer_store_dwordx2 {vr(b+4*u,2)}, v{EA+2+u}, s[28:31], s47 offen sc1")
                e.append(f"buffer_store_dwordx2 {vr(b+4*u+2,2)}, v{EA+2+u}, s[28:31], s49 offen sc1")
        if T < 3: e.append("s_add_u32 s48, s48, s44")
        return e
    gemm_loop(a, False, epi_qk)
    a("s_branch L_A_done")
    a("L_compute_v:")
    for T in range(5):
        a(f"s_add_u32 s45, s44, {4*T}")
        a("v_add_u32 v7, s45, v6")
        waddr(T, 7)
    make_srd(a, 28, pWS, KV_OFF, KV_SIZE)
    a(f"s_mov_b32 s44, {KV_HEAD}")
    a("s_mul_i32 s47, s43, s44")
    a(f"s_mul_i32 s48, s42, {TKV}")
    a("s_add_u32 s47, s47, s48")
    a("v_lshrrev_b32 v7, 5, v1")
    a("v_mul_u32_u24 v7, 640, v7")
    a("v_and_b32 v15, 1, v3")
    a("v_lshl_add_u32 v7, v15, 6, v7")
    a("v_add_u32 v7, 1280, v7")
    for T in range(5):
        a(f"v_add_u32 v4, {16*T}, v2")
        a("v_mul_u32_u24 v5, 3277, v4")
        a("v_lshrrev_b32 v5, 16, v5")
        a("v_mul_u32_u24 v6, 20, v5")
        a("v_sub_u32 v4, v4, v6")
        a("v_and_b32 v6, 28, v4")
        a("v_add_u32 v4, v4, v6")
        a("v_mul_lo_u32 v5, v5, s44")
        a("v_lshl_add_u32 v4, v4, 4, v5")
        a(f"v_add_u32 v{EA+T}, v7, v4")
    def epi_v(T):
        b = ACC + 16*T; e = []
        for r in range(8): e.append(f"v_cvt_pk_bf16_f32 v{b+r}, v{b+2*r}, v{b+2*r+1}")
        e.append("s_nop 0")
        for u in range(2):
            e.append(f"v_permlane32_swap_b32 v{b+4*u}, v{b+4*u+2}")
            e.append(f"v_permlane32_swap_b32 v{b+4*u+1}, v{b+4*u+3}")
        for u in range(2): e.append(f"buffer_store_dwordx4 {vr(b+4*u,4)}, v{EA+T}, s[28:31], s47 offen offset:{u*TKV} sc1")
        return e
    gemm_loop(a, True, epi_v)
    a("s_branch L_A_done")

SWD = [42, 43, 44, 56, 57]
def side_work(a):
    a("s_sub_u32 s53, s2, 192")
    a("s_mul_i32 s53, s53, 3")
    a(f"s_add_u32 s53, s53, s{sWAVE}")
    a("s_sub_u32 s53, s53, 5")
    a("v_lshlrev_b32 v22, 4, v1")
    make_srd(a, 32, pWO, 0, 819200)
    make_srd(a, 28, pWS, SEQ_OFF, WO_OFF + WO_SIZE - SEQ_OFF)
    WR = 32
    for n in range(5):
        if n == 4:
            a("s_cmp_ge_u32 s53, 32")
            a("s_cbranch_scc1 L_sw_wo_ld")
        a(f"s_add_u32 s40, s53, {192*n}")
        a("s_mul_i32 s41, s40, 1639")
        a("s_lshr_b32 s41, s41, 16")
        a("s_mul_i32 s58, s41, 40")
        a("s_sub_u32 s58, s40, s58")
        a("s_mul_i32 s59, s58, 20")
        a("s_mul_i32 s55, s58, 80")
        a("s_sub_u32 s55, s55, %d" % (32*80 - 16))
        a("s_cmp_lt_u32 s58, 32")
        a("s_cselect_b32 s45, 4, 40")
        a("s_cselect_b32 s59, s59, s55")
        a(f"s_mov_b32 s46, {20*1280}")
        a(f"s_cmov_b32 s46, {8*1280}")
        a("v_mul_u32_u24 v4, s45, v3")
        a("v_add_u32 v4, s59, v4")
        a("v_mul_u32_u24 v4, 1280, v4")
        a("s_lshl_b32 s59, s41, 6")
        a("v_lshl_add_u32 v4, v2, 1, v4")
        a("v_add_u32 v4, s59, v4")
        b = WR + 8*n
        for grp in range(2):
            so = "s46" if grp else "0"
            for i in range(4):
                a(f"buffer_load_ushort v{b+4*grp+i}, v4, s[32:35], {so} offen offset:{i*1280}")
        a("s_mul_i32 s59, s41, 52")
        a("s_lshr_b32 s59, s59, 8")
        a("s_mul_i32 s55, s59, 5")
        a("s_sub_u32 s55, s41, s55")
        a("s_mul_i32 s45, s58, 26")
        a("s_lshr_b32 s45, s45, 8")
        a("s_mul_i32 s47, s45, 10")
        a("s_sub_u32 s47, s58, s47")
        a("s_add_u32 s58, s58, 10")
        a("s_cmp_lt_u32 s55, 4")
        a("s_cselect_b32 s55, s55, s45")
        a("s_cselect_b32 s58, s58, s47")
        a("s_lshl_b32 s59, s59, 2")
        a("s_add_u32 s59, s59, s55")
        a("s_mul_i32 s59, s59, 50")
        a("s_add_u32 s59, s59, s58")
        a("s_lshl_b32 s59, s59, 10")
        a(f"s_add_u32 s{SWD[n]}, s59, {WO_OFF - SEQ_OFF}")
    a("L_sw_wo_ld:")
    G = 80
    a("s_mov_b32 s54, s53")
    a("v_lshlrev_b32 v23, 4, v3")
    a(f"s_mov_b32 s55, {f32bits(1.0/2048)}")
    a("v_cmp_gt_u32 vcc, 32, v1")
    a("L_sw_gen:")
    a("s_lshr_b32 s41, s54, 5")
    a("s_and_b32 s58, s54, 31")
    a("s_lshr_b32 s59, s41, 1")
    a("s_lshl_b32 s59, s59, 6")
    a("s_and_b32 s47, s41, 1")
    a("s_add_u32 s59, s59, s47")
    a("v_lshl_add_u32 v4, v2, 1, s59")
    a("s_lshr_b32 s47, s58, 4")
    a("s_mul_i32 s45, s41, 65")
    a("s_add_u32 s45, s45, s58")
    a("s_add_u32 s46, s45, 33")
    a("s_add_u32 s45, s45, s47")
    a("s_lshl_b32 s45, s45, 10")
    a("s_lshl_b32 s46, s46, 10")
    a("s_and_b32 s48, s58, 15")
    a("s_lshl_b32 s48, s48, 5")
    a("s_add_u32 s48, s48, s47")
    a("v_add_u32 v5, s48, v23")
    a("v_mul_u32_u24 v5, v4, v5")
    a("v_cvt_f32_u32 v5, v5")
    a("v_cvt_f32_u32 v4, v4")
    for i in range(8):
        if i: a("v_fma_f32 v5, 2.0, v4, v5")
        a(f"v_mul_f32 v{G+i}, s55, v5")
    for i in range(8): a(f"v_fract_f32 v{G+i}, v{G+i}")
    for i in range(8): a(f"v_cos_f32 v{G+8+i}, v{G+i}")
    a("s_cmp_lg_u32 s58, 0")
    a("s_cbranch_scc1 L_gen_plain")
    a("v_mul_f32 v6, 0x3e800000, v4")
    a("v_fract_f32 v6, v6")
    a(f"v_cndmask_b32 v{G}, v{G}, v6, vcc")
    a("v_cos_f32 v7, v6")
    a(f"v_mov_b32 v{G+25}, 0")
    a(f"v_mov_b32 v{G+26}, 0")
    a(f"v_mov_b32 v{G+27}, 0")
    a("v_cndmask_b32 v7, 0, v7, vcc")
    a(f"v_cvt_pk_bf16_f32 v{G+24}, v7, 0")
    a(f"s_add_u32 s48, s45, {16*1024}")
    a(f"buffer_store_dwordx4 {vr(G+24,4)}, v22, s[28:31], s48 offen sc1")
    a("L_gen_plain:")
    for i in range(8): a(f"v_sin_f32 v{G+i}, v{G+i}")
    for i in range(4): a(f"v_cvt_pk_bf16_f32 v{G+16+i}, v{G+8+2*i}, v{G+9+2*i}")
    for i in range(4): a(f"v_cvt_pk_bf16_f32 v{G+20+i}, v{G+2*i}, v{G+1+2*i}")
    a(f"buffer_store_dwordx4 {vr(G+16,4)}, v22, s[28:31], s45 offen sc1")
    a(f"buffer_store_dwordx4 {vr(G+20,4)}, v22, s[28:31], s46 offen sc1")
    a("s_add_u32 s54, s54, 192")
    a("s_cmp_lt_u32 s54, 544")
    a("s_cbranch_scc1 L_sw_gen")

def side_work_finish(a):
    WR = 32
    l = a.label("L_sw_fin")
    a("s_waitcnt vmcnt(4)")
    for n in range(5):
        if n == 4:
            a("s_cmp_ge_u32 s53, 32")
            a(f"s_cbranch_scc1 {l}")
        b = WR + 8*n
        for i in range(4): a(f"v_lshl_or_b32 v{b+i}, v{b+2*i+1}, 16, v{b+2*i}")
        a(f"buffer_store_dwordx4 {vr(b,4)}, v22, s[28:31], s{SWD[n]} offen sc1")
    a(f"{l}:")

def prep(a):
    a("L_prep:")
    a(f"s_sub_u32 s40, s{sSLOT}, 24")
    a("s_and_b32 s27, s40, 1")
    a("s_lshr_b32 s26, s40, 1")
    a("s_lshl_b32 s26, s26, 3")
    a(f"s_add_u32 s26, s26, s{sXCD}")
    make_srd(a, 36, pWS, AB_OFF, AB_SIZE)
    a(f"s_cmp_ge_u32 s{sWAVE}, 5")
    a("s_cbranch_scc1 L_fold_skip")
    make_srd(a, 28, pBX, 0, X_SIZE)
    a("s_lshr_b32 s42, s26, 1")
    a("s_lshl_b32 s42, s42, 5")
    a("s_and_b32 s43, s26, 1")
    a("s_add_u32 s42, s42, s43")
    a("v_lshrrev_b32 v2, 3, v1")
    a("v_and_b32 v3, 7, v1")
    a("v_lshl_add_u32 v4, v2, 1, s42")
    a("v_mul_u32_u24 v5, 1280, v4")
    a("v_lshlrev_b32 v6, 4, v3")
    a("v_add_u32 v10, v5, v6")
    a("v_sub_u32 v7, v6, v5")
    a(f"s_lshl_b32 s44, s27, 1")
    a(f"s_add_u32 s44, s44, s{sWAVE}")
    a("s_cmp_ge_u32 s44, 5")
    a("s_cselect_b32 s45, 5, 0")
    a("s_sub_u32 s44, s44, s45")
    a("s_lshl_b32 s44, s44, 7")
    a("s_add_u32 s45, s44, 20480")
    a(f"v_add_u32 v11, {2048*1280}, v7")
    a(f"v_add_u32 v12, {1024*1280}, v7")
    a("v_cmp_ne_u32 vcc, 0, v4")
    a(f"v_mov_b32 v8, {HUGE}")
    a(f"v_add_u32 v9, {1024*1280}, v10")
    a("v_cndmask_b32 v13, v8, v9, vcc")
    LD = 32
    for hf in range(2):
        for r in range(4): a(f"buffer_load_dwordx4 {vr(LD+8*r+4*hf,4)}, v{10+r}, s[28:31], s44 offen offset:{640*hf}")
    a("v_subrev_u32 v11, 20480, v11")
    a("v_subrev_u32 v12, 20480, v12")
    for hf in range(2):
        for r, (vv, so) in enumerate([(10, 45), (11, 44), (12, 44), (9, 45)]):
            a(f"buffer_load_dwordx4 {vr(LD+32+8*r+4*hf,4)}, v{vv}, s[28:31], s{so} offen offset:{640*hf}")
    XL = 96
    a("s_cmp_lg_u32 s26, 0")
    a("s_cbranch_scc1 L_fold_nx")
    a(f"v_add_u32 v14, {512*1280}, v6")
    a(f"v_add_u32 v15, {1536*1280}, v6")
    a("v_cndmask_b32 v14, v14, v8, vcc")
    a("v_cndmask_b32 v15, v15, v8, vcc")
    for r in range(2):
        for hf in range(2):
            a(f"buffer_load_dwordx4 {vr(XL+8*r+4*hf,4)}, v{14+r}, s[28:31], s44 offen offset:{640*hf}")
    a("L_fold_nx:")
    a("v_and_b32 v5, 3, v2")
    a("v_lshrrev_b32 v4, 2, v2")
    a("v_lshl_or_b32 v5, v4, 3, v5")
    a("v_xor_b32 v5, v5, v3")
    a("v_and_b32 v4, 1, v3")
    a("v_lshl_add_u32 v5, v4, 5, v5")
    a("v_lshlrev_b32 v5, 4, v5")
    a("v_lshrrev_b32 v4, 1, v3")
    a("v_lshl_add_u32 v5, v4, 10, v5")
    a("s_lshl_b32 s45, s44, 5")
    a("v_add_u32 v16, s45, v5")
    a("v_xor_b32 v18, 64, v16")
    a("v_add_u32 v5, s44, v6")
    a("v_add_u32 v17, 40960, v5")
    a("v_lshlrev_b32 v6, 4, v1")
    a("v_add_u32 v6, 43008, v6")
    a("v_cndmask_b32 v17, v17, v6, vcc")
    a("L_fold_skip:")
    a("v_and_b32 v2, 31, v1")
    a("v_lshrrev_b32 v3, 5, v1")
    a("v_lshlrev_b32 v15, 4, v1")
    a(f"s_lshr_b32 s40, s{sWAVE}, 1")
    a("s_add_u32 s40, s40, 2")
    a(f"s_and_b32 s41, s{sWAVE}, 1")
    a(f"s_cmp_lt_u32 s{sWAVE}, 4")
    a(f"s_cselect_b32 s49, s{sWAVE}, s40")
    a("s_cselect_b32 s50, 0, s41")
    a("s_lshl_b32 s54, s49, 6")
    a("s_add_u32 s54, s54, s27")
    a("v_lshl_add_u32 v4, v2, 1, s54")
    AU = 10; SB = [[176, 184], [192, 200]]; HB = [[208, 212], [216, 220]]; UB = [72, 84, 96, 108]; ACC3 = [224, 240, 32]; PH = 112
    a("s_mul_i32 s52, s50, 20480")
    for jj in range(4):
        a(f"v_xor_b32 v5, {2*jj}, v3")
        a("v_xor_b32 v5, v5, v2")
        a("v_lshl_add_u32 v5, v3, 5, v5")
        a("v_lshlrev_b32 v5, 4, v5")
        a(f"v_add_u32 v5, {jj*1024}, v5")
        a(f"v_add_u32 v{AU+jj}, s52, v5")
    a(f"v_lshlrev_b32 v{AU+4}, 4, v3")
    a(f"v_add_u32 v{AU+4}, 40960, v{AU+4}")
    a(f"s_mov_b32 s52, {f32bits(1.0/640)}")
    a("s_cmp_lg_u32 s50, 0")
    a("s_cselect_b32 s53, 0x3e800000, 0")
    a("v_lshlrev_b32 v5, 3, v3")
    a("v_mul_u32_u24 v5, v4, v5")
    a("v_cvt_f32_u32 v5, v5")
    a("v_cvt_f32_u32 v4, v4")
    a("v_mul_f32 v6, 0x41800000, v4")
    for i in range(8):
        if i: a("v_add_f32 v5, v5, v4")
        a(f"v_mul_f32 v{PH+i}, s52, v5")
        a("v_sub_f32 v7, v5, v6")
        a(f"v_mul_f32 v{PH+8+i}, s52, v7")
    a("v_mul_f32 v6, s52, v6")
    a("v_fract_f32 v6, v6")
    for i in range(16): a(f"v_fract_f32 v{PH+i}, v{PH+i}")
    a("v_cos_f32 v19, v6")
    for i in range(16): a(f"v_sin_f32 v{SB[1][0]+i}, v{PH+i}")
    for i in range(16): a(f"v_subrev_f32 v{PH+i}, s53, v{PH+i}")
    for i in range(16): a(f"v_cos_f32 v{SB[0][0]+i}, v{PH+i}")
    a("v_add_f32 v19, v19, v19")
    for r in range(32): a(f"v_mov_b32 v{224+r}, 0")
    def cvts(jb, g): return [f"v_cvt_pk_bf16_f32 v{HB[jb][g]+d}, v{SB[jb][g]+2*d}, v{SB[jb][g]+2*d+1}" for d in range(4)]
    def rot(jb, cur): return [f"v_fma_f32 v{SB[jb][cur^1]+i}, v19, v{SB[jb][cur]+i}, -v{SB[jb][cur^1]+i}" for i in range(8)]
    for x in cvts(0, 0) + cvts(1, 0): a(x)
    a(f"s_cmp_lt_u32 s{sWAVE}, 5")
    a("s_cbranch_scc1 L_fold_go")
    side_work(a)
    side_work_finish(a)
    a("s_branch L_fold_done")
    a("L_fold_go:")
    a("s_cmp_lg_u32 s27, 0")
    a("s_cselect_b32 s46, -1.0, 1.0")
    a("s_mov_b32 s47, s46")
    a("s_mov_b32 s48, 0xffff0000")
    T = 112; R = 144; H = 20
    ng = "neg_lo:[0,1] neg_hi:[0,1]"
    def dfold(src, dst):
        for d in range(4):
            a(f"v_lshlrev_b32 v{dst+2*d}, 16, v{src+d}")
            a(f"v_and_b32 v{dst+2*d+1}, s48, v{src+d}")
            a(f"v_lshlrev_b32 v{H+2*(d&1)}, 16, v{src+4+d}")
            a(f"v_and_b32 v{H+2*(d&1)+1}, s48, v{src+4+d}")
            a(f"v_pk_fma_f32 {vr(dst+2*d,2)}, {vr(H+2*(d&1),2)}, s[46:47], {vr(dst+2*d,2)}")
    for n in range(2):
        a("s_waitcnt vmcnt(%d)" % (8 if n == 0 else 0))
        if n == 0: stamp(a, 9)
        b = LD + 32*n
        for r in range(4): dfold(b + 8*r, T + 8*r)
        for d in range(4):
            p = lambda r: vr(T+8*r+2*d, 2)
            q = lambda r: vr(R+8*r+2*d, 2)
            a(f"v_pk_add_f32 {q(0)}, {p(0)}, {p(1)}")
            a(f"v_pk_add_f32 {q(1)}, {p(0)}, {p(1)} {ng}")
            a(f"v_pk_add_f32 {q(2)}, {p(2)}, {p(3)}")
            a(f"v_pk_add_f32 {q(3)}, {p(2)}, {p(3)} {ng}")
            a(f"v_pk_add_f32 {p(0)}, {q(0)}, {q(2)}")
            a(f"v_pk_add_f32 {p(1)}, {q(0)}, {q(2)} {ng}")
            a(f"v_pk_add_f32 {p(2)}, {q(1)}, {q(3)} {ng}")
            a(f"v_pk_add_f32 {p(3)}, {q(1)}, {q(3)}")
        if n == 0:
            a("s_cmp_lg_u32 s26, 0")
            a("s_cbranch_scc1 L_fold_sp")
            a("s_waitcnt vmcnt(0)")
            dfold(XL, R); dfold(XL + 8, R + 8)
            for d in range(4):
                a(f"v_pk_add_f32 {vr(R+16+2*d,2)}, {vr(R+2*d,2)}, {vr(R+8+2*d,2)}")
                a(f"v_pk_add_f32 {vr(R+2*d,2)}, {vr(R+2*d,2)}, {vr(R+8+2*d,2)} {ng}")
            for e in range(8): a(f"v_cndmask_b32 v{T+24+e}, v{R+e}, v{T+24+e}, vcc")
            for d in range(4): a(f"v_cvt_pk_bf16_f32 v{R+d}, v{R+16+2*d}, v{R+17+2*d}")
            a(f"ds_write_b128 v17, {vr(R,4)}")
            a("L_fold_sp:")
        for i in range(4):
            for d in range(4): a(f"v_cvt_pk_bf16_f32 v{b+4*i+d}, v{T+8*i+2*d}, v{T+8*i+2*d+1}")
            a(f"ds_write_b128 v{16+2*n}, {vr(b+4*i,4)} offset:{(i>>1)*20480 + (i&1)*256}")
    a("L_fold_done:")
    for r in range(16): a(f"v_mov_b32 v{32+r}, 0")
    a("s_waitcnt lgkmcnt(0)")
    stamp(a, 14)
    a("s_barrier")
    stamp(a, 2)
    a("s_mul_i32 s42, s27, 6")
    a("s_add_u32 s42, s42, s49")
    a("s_cmp_gt_u32 s42, 10")
    a("s_cbranch_scc1 L_prep_done")
    def ureads(j, kinds):
        jj = j & 3; o = (j >> 2) * 4096; b = UB[j & 3]; r = []
        for k in kinds:
            if k == 2: r.append(f"ds_read_b128 {vr(b+8,4)}, v{AU+4} offset:{j*32}")
            else: r.append(f"ds_read_b128 {vr(b+4*k,4)}, v{AU+jj} offset:{o + k*20480}")
        return r
    a("s_mov_b32 s45, 5")
    a("s_or_b32 s51, s26, s50")
    a("s_cmp_eq_u32 s51, 0")
    a("s_cselect_b32 s40, 1, 0")
    a(f"s_cmp_lt_u32 s{sWAVE}, 4")
    a("s_cselect_b32 s41, 2, 0")
    a("s_add_u32 s40, s40, s41")
    variants = [[0], [0, 2], [0, 1], [0, 1, 2]]
    for v in range(1, 4):
        a(f"s_cmp_eq_u32 s40, {v}")
        a(f"s_cbranch_scc1 L_f1_v{v}")
    for v, kinds in enumerate(variants):
        a(f"L_f1_v{v}:")
        nm = len(kinds)
        for x in ureads(0, kinds) + ureads(1, kinds): a(x)
        a(f"L_f1_loop{v}:")
        for jj in range(4):
            buf = jj & 1
            va = rot(0, buf) + cvts(0, buf ^ 1)
            if 1 in kinds: va = rot(0, buf) + rot(1, buf) + cvts(0, buf ^ 1) + cvts(1, buf ^ 1)
            rd = ureads(jj + 2, kinds)
            a(f"s_waitcnt lgkmcnt({nm})")
            a("s_nop 0")
            per = len(va) // nm
            for m, k in enumerate(kinds):
                d = vr(ACC3[k], 16)
                a(f"v_mfma_f32_32x32x16_bf16 {d}, {vr(UB[jj]+4*k,4)}, {vr(HB[k & 1][buf],4)}, {d}")
                a(rd[m])
                for x in va[per*m:per*m+per]: a(x)
        for r in range(4): a(f"v_add_u32 v{AU+r}, 4096, v{AU+r}")
        if 2 in kinds: a(f"v_add_u32 v{AU+4}, 128, v{AU+4}")
        a("s_sub_u32 s45, s45, 1")
        a("s_cmp_lg_u32 s45, 0")
        a(f"s_cbranch_scc1 L_f1_loop{v}")
        if v < 3: a("s_branch L_f1_done")
    a("L_f1_done:")
    stamp(a, 5)
    a("s_mul_i32 s43, s42, 33")
    a("s_and_b32 s44, s26, 1")
    a("s_lshl_b32 s44, s44, 4")
    a("s_lshr_b32 s45, s26, 1")
    a("s_add_u32 s44, s44, s45")
    a("s_add_u32 s44, s44, s43")
    a(f"s_mul_i32 s45, s50, {22*33}")
    a("s_add_u32 s44, s44, s45")
    a("s_lshl_b32 s44, s44, 10")
    a("s_waitcnt lgkmcnt(0)")
    a("s_nop 5")
    for jb in range(2):
        b = ACC3[jb]
        if jb == 1:
            a(f"s_cmp_ge_u32 s{sWAVE}, 4")
            a("s_cbranch_scc1 L_f1_one")
        for r in range(8): a(f"v_cvt_pk_bf16_f32 v{b+r}, v{b+2*r}, v{b+2*r+1}")
        for hf in range(2):
            a(f"buffer_store_dwordx4 {vr(b+4*hf,4)}, v15, s[36:39], s44 offen sc1")
            a(f"s_add_u32 s44, s44, {11*33*1024}")
    a("L_f1_one:")
    a("s_cmp_lg_u32 s51, 0")
    a("s_cbranch_scc1 L_prep_done")
    b = ACC3[2]
    for r in range(4): a(f"v_cvt_pk_bf16_f32 v{b+r}, v{b+2*r}, v{b+2*r+1}")
    a("s_add_u32 s43, s43, 32")
    a("s_lshl_b32 s43, s43, 10")
    a(f"buffer_store_dwordx4 {vr(b,4)}, v15, s[36:39], s43 offen sc1")
    a("L_prep_done:")
    a(f"s_cmp_lt_u32 s{sWAVE}, 4")
    a("s_cbranch_scc1 L_A_done")
    get_nonce(a, 2)

W_PROG, W_GO, W_CNT, W_PASS, W_XCH, W_NON = 0, 4, 8, 16, 32, 48
def a_done(a):
    a("L_A_done:")
    stamp(a, 6)
    a(f"v_mov_b32 v23, {LDS_PROG}")
    a(f"s_cmp_lg_u32 s{sWAVE}, 4")
    a("s_cbranch_scc1 L_A_bar")
    a(f"v_mov_b32 v2, s{sNON}")
    a(f"v_mov_b32 v3, s{sNON+1}")
    a(f"ds_write_b64 v23, v[2:3] offset:{W_NON}")
    a("L_A_bar:")
    a("s_waitcnt lgkmcnt(0)")
    a("s_barrier")
    stamp(a, 4)
    a(f"s_lshr_b32 s26, s{sXCD}, 1")
    a("s_lshl_b32 s26, s26, 3")
    a(f"s_and_b32 s27, s{sSLOT}, 7")
    a("s_add_u32 s26, s26, s27")
    a(f"s_and_b32 s27, s{sXCD}, 1")
    a("s_lshl_b32 s27, s27, 2")
    a(f"s_lshr_b32 s40, s{sSLOT}, 3")
    a("s_add_u32 s27, s27, s40")
    a(f"s_cmp_ge_u32 s{sWAVE}, 4")
    a("s_cbranch_scc1 L_aux")

def drained(a, vt):
    a(f"v_mov_b32 v{vt}, 1")
    a("s_mov_b64 exec, 1")
    a(f"ds_add_u32 v23, v{vt} offset:{W_CNT}")
    a("s_mov_b64 exec, -1")

def attention(a):
    SL = OPT.get('slot', 1)
    AKA, AKB, AV, AKB2 = 4, 5, 168, 172
    AREGS = [AKA, AV, AV+1, AV+2, AV+3] + ([AKB2, AKB2+1] if SL else [AKB])
    QA = [8, 14]
    NEG = [32, 48]; S = [64, 80]; O = [96, 112]; P = 128
    KB = [136, 142]; VB = [148, 156]
    PR = 164
    a("L_attn:")
    a(f"ds_read_b32 v24, v23 offset:{W_GO}")
    a(f"ds_read_b64 v[26:27], v23 offset:{W_NON}")
    a(f"s_setprio {OPT.get('pattn', 2)}")
    a(f"s_mul_i32 s40, s26, {Q_HEAD}")
    a(f"s_add_u32 s40, s40, {Q_OFF}")
    make_srd(a, 28, pWS, "s40", Q_HEAD)
    a(f"s_mul_i32 s40, s26, {KV_HEAD}")
    make_srd(a, 32, pWS, "s40", KV_HEAD)
    a("v_and_b32 v2, 31, v1")
    a("v_lshrrev_b32 v3, 5, v1")
    a(f"v_lshlrev_b32 v{AKA}, 4, v1")
    a(f"v_lshlrev_b32 v{AKB}, 3, v2")
    a(f"v_add_u32 v{AKB}, 1024, v{AKB}")
    a(f"v_mov_b32 v20, {HUGE}")
    a("v_cmp_gt_u32 vcc, 32, v1")
    a("s_lshl_b32 s41, s27, 3")
    a(f"s_lshl_b32 s42, s{sWAVE}, 1")
    a("s_add_u32 s41, s41, s42")
    a(f"v_cndmask_b32 v20, v20, v{AKB}, vcc")
    a(f"s_mul_i32 s42, s41, {TQ}")
    a("v_and_b32 v21, 28, v2")
    a("v_add_u32 v21, v21, v2")
    a("v_lshl_add_u32 v21, v3, 2, v21")
    a("v_lshlrev_b32 v21, 4, v21")
    a("v_add_u32 v29, 1280, v21")
    a("s_mov_b32 s48, 0x000fffff")
    a("s_mov_b32 s49, 0x000fffff")
    a("s_mov_b32 s52, 0x07060302")
    a("s_waitcnt lgkmcnt(0)")
    a("v_readfirstlane_b32 s47, v24")
    a(f"v_readfirstlane_b32 s{sNON}, v26")
    a(f"v_readfirstlane_b32 s{sNON+1}, v27")
    a("s_mov_b32 s50, s47")
    a("s_cmp_lg_u32 s47, 0")
    a("s_cbranch_scc1 L_attn_go")
    a("s_waitcnt vmcnt(0)")
    stamp(a, 3)
    drained(a, 24)
    a("L_attn_spin:")
    a(f"s_sleep {OPT.get('asl', 1)}")
    a(f"ds_read_b32 v24, v23 offset:{W_GO}")
    a("s_waitcnt lgkmcnt(0)")
    a("v_readfirstlane_b32 s47, v24")
    a("s_nop 0")
    a("s_cmp_eq_u32 s47, 0")
    a("s_cbranch_scc1 L_attn_spin")
    a("L_attn_go:")
    stamp(a, 7); stamp(a, 7, 2); stamp_real(a, 8, 2)
    a("s_sub_u32 s47, s47, 1")
    a(f"s_mul_i32 s47, s47, {4*TKV}")
    for q in range(2):
        a(f"buffer_load_dwordx4 {vr(QA[q],4)}, v{AKA}, s[28:31], s42 offen offset:{q*TQ} sc1")
        a(f"buffer_load_dwordx2 {vr(QA[q]+4,2)}, v20, s[28:31], s42 offen offset:{q*TQ} sc1")
    a(f"buffer_load_dwordx4 {vr(KB[0],4)}, v{AKA}, s[32:35], s47 offen sc1")
    if SL:
        for b in KB:
            a(f"v_mov_b32 v{b+4}, 0x3f803f80")
            a(f"v_mov_b32 v{b+5}, 0x3f80")
        a("s_mov_b32 exec_hi, 0")
    a(f"buffer_load_dwordx2 {vr(KB[0]+4,2)}, v{AKB}, s[32:35], s47 offen sc1")
    if SL: a("s_mov_b64 exec, -1")
    a("v_mov_b32 v24, 0x3f803f80")
    a("v_cmp_eq_u32 vcc, 20, v2")
    a(f"s_add_u32 s43, s47, {TKV}")
    a("s_nop 0")
    a("v_cndmask_b32 v24, 0, v24, vcc")
    for r in range(16): a(f"v_mov_b32 v{VB[0]+r}, v24")
    a(f"buffer_load_dwordx4 {vr(KB[1],4)}, v{AKA}, s[32:35], s43 offen sc1")
    if SL: a("s_mov_b32 exec_hi, 0")
    a(f"buffer_load_dwordx2 {vr(KB[1]+4,2)}, v{AKB}, s[32:35], s43 offen sc1")
    a("s_mov_b64 exec, s[48:49]")
    a(f"buffer_load_dwordx4 {vr(VB[0],4)}, v29, s[32:35], s47 offen sc1")
    a(f"buffer_load_dwordx4 {vr(VB[0]+4,4)}, v29, s[32:35], s47 offen offset:640 sc1")
    a(f"buffer_load_dwordx4 {vr(VB[1],4)}, v29, s[32:35], s43 offen sc1")
    a(f"buffer_load_dwordx4 {vr(VB[1]+4,4)}, v29, s[32:35], s43 offen offset:640 sc1")
    a("s_mov_b64 exec, -1")
    a("s_cmp_eq_u32 s50, 0")
    a("s_cbranch_scc1 L_attn_cnt")
    a("s_waitcnt vmcnt(12)")
    stamp(a, 3)
    drained(a, 24)
    a("L_attn_cnt:")
    a("v_mov_b32 v22, 5120")
    if OPT.get('zr', 1):
        a("v_cmp_lt_u32 vcc, 20, v2")
        a("v_mov_b32 v21, 5136")
        a("s_nop 0")
        a("v_cndmask_b32 v22, v22, v21, vcc")
    a("v_cmp_gt_u32 vcc, 20, v2")
    for i in range(4): a(f"v_add_u32 v{AV+i}, {(i>>1)*TKV + (i&1)*640}, v29")
    for i in range(4): a(f"v_cndmask_b32 v{AV+i}, v22, v{AV+i}, vcc")
    if SL:
        a("v_cmp_gt_u32 vcc, 32, v1")
        a("v_mov_b32 v22, 5152")
        a(f"v_add_u32 v21, {TKV}, v{AKB}")
        a(f"v_cndmask_b32 v{AKB2}, v22, v{AKB}, vcc")
        a(f"v_cndmask_b32 v{AKB2+1}, v22, v21, vcc")
    make_srd(a, 36, pWS, O_OFF, O_SIZE)
    for q in range(2):
        for r in range(16): a(f"v_mov_b32 v{O[q]+r}, 0")
    LOOPED = [False]
    mm16 = "v_mfma_f32_32x32x16_bf16"; mm8 = "v_mfma_f32_32x32x8_bf16"
    def M1(s, t, q, c): return "s_nop 1" if OPT.get('nom1') and c == "0" and LOOPED[0] else f"{mm16} {vr(s,16)}, {vr(KB[t&1],4)}, {vr(QA[q],4)}, {c}"
    def M2(s, t, q): return "s_nop 0" if OPT.get('nom2') and LOOPED[0] else f"{mm8} {vr(s,16)}, {vr(KB[t&1]+4,2)}, {vr(QA[q]+4,2)}, {vr(s,16)}"
    def M3(t, q): return "s_nop 1" if OPT.get('nopv') else f"{mm16} {vr(O[q],16)}, {vr(VB[t&1],4)}, {vr(P,4)}, {vr(O[q],16)}"
    def M4(t, q): return "s_nop 1" if OPT.get('nopv') else f"{mm16} {vr(O[q],16)}, {vr(VB[t&1]+4,4)}, {vr(P+4,4)}, {vr(O[q],16)}"
    def rowmax(src, dst, first):
        if first:
            a(f"v_max3_f32 v{dst}, v{src}, v{src+1}, v{src+2}")
            a(f"v_max_f32 v{dst}, v{dst}, v{src+15}")
            rng = range(3, 15, 2)
        else: rng = range(0, 16, 2)
        for r in rng: a(f"v_max3_f32 v{dst}, v{dst}, v{src+r}, v{src+r+1}")
    def finish_neg(add):
        a("v_mov_b32 v26, v24")
        a("v_mov_b32 v27, v25")
        a("s_nop 1")
        a("v_permlane32_swap_b32 v24, v26")
        a("v_permlane32_swap_b32 v25, v27")
        a("s_nop 1")
        a("v_max_f32 v24, v24, v26")
        a("v_max_f32 v25, v25, v27")
        if not SL:
            for q in range(2):
                a(f"v_sub_f32 v{NEG[q]}, {add}, v{24+q}")
                for r in range(1, 16): a(f"v_mov_b32 v{NEG[q]+r}, v{NEG[q]}")
            return
        a("s_mov_b32 s45, 0xffff0000")
        a("s_mov_b32 s46, 0x07060302")
        for q in range(2):
            a(f"v_sub_f32 v{24+q}, {add}, v{24+q}")
        for q in range(2):
            a(f"v_and_b32 v26, s45, v{24+q}")
            a(f"v_sub_f32 v27, v{24+q}, v26")
            a("v_and_b32 v28, s45, v27")
            a("v_sub_f32 v27, v27, v28")
            a("v_perm_b32 v26, v28, v26, s46")
            a("v_lshrrev_b32 v27, 16, v27")
            a("s_mov_b32 exec_lo, 0")
            a(f"v_mov_b32 v{QA[q]+4}, v26")
            a(f"v_mov_b32 v{QA[q]+5}, v27")
            a("s_mov_b64 exec, -1")
        a("s_nop 1")
    CNEG = lambda q: "0" if SL else vr(NEG[q], 16)
    a("s_waitcnt vmcnt(6)")
    stamp(a, 8)
    for q in range(2): a(M1(S[q], 0, q, "0"))
    for q in range(2): a(M2(S[q], 0, q))
    a("s_nop 11")
    rowmax(S[0], 24, True)
    a("s_nop 1")
    rowmax(S[1], 25, True)
    finish_neg(hex(f32bits(-float(OPT.get('off', 100)))))
    a(M1(S[0], 0, 0, CNEG(0)))
    a(M2(S[0], 0, 0))
    a(f"ds_read_b32 v{PR}, v23")
    a("s_waitcnt vmcnt(0)")
    a("s_nop 9")
    def check(need):
        l = a.label("L_chk"); ok = a.label("L_chkok")
        a(f"{l}:")
        a("s_waitcnt lgkmcnt(0)")
        a(f"v_readfirstlane_b32 s44, v{PR}")
        a("s_nop 0")
        a(f"s_cmp_ge_u32 s44, {need}")
        a(f"s_cbranch_scc1 {ok}")
        a(f"ds_read_b32 v{PR}, v23")
        a(f"s_branch {l}")
        a(".p2align 3")
        a(f"{ok}:")
    def unit(t, q, s4=(), s1=(), s2=(), s3=(), first=False, nonext=False):
        s = S[q]; sn = S[q ^ 1]
        t1, q1 = (t, 1) if q == 0 else (t + 1, 0)
        tp, qp = (t - 1, 1) if q == 0 else (t, 0)
        E = lambda r: a(f"v_exp_f32 v{s+r}, v{s+r}")
        C = lambda j: a(f"v_perm_b32 v{P+j}, v{s+2*j+1}, v{s+2*j}, s52" if OPT.get('perm') else f"v_cvt_pk_bf16_f32 v{P+j}, v{s+2*j}, v{s+2*j+1}")
        al = OPT.get('al', 1)
        EW = lambda r: a(f"v_exp_f32_e64 v{s+r}, v{s+r}") if al else E(r)
        odd = lambda xs: sum(1 for x in xs if x.startswith("s_")) & 1
        E(0); E(1)
        if not first: a(M4(tp, qp))
        for x in s4: a(x)
        (E if odd(s4) else EW)(2); E(3); E(4)
        if not nonext: a(M1(sn, t1, q1, CNEG(q1)))
        for x in s1: a(x)
        EW(5); E(6); E(7)
        for j in range(4): C(j)
        if not nonext: a(M2(sn, t1, q1))
        for x in s2: a(x)
        EW(8)
        for r in range(9, 13): E(r)
        a(M3(t, q))
        for x in s3: a(x)
        (E if odd(s3) else EW)(13); E(14); E(15)
        for j in range(4, 8): C(j)
    def period(t, o, extra3=()):
        if OPT.get('nods') and LOOPED[0]: o = None
        if o is None:
            if extra3:
                unit(t, 1, s4=["s_waitcnt lgkmcnt(0)"]); unit(t + 1, 0, s3=extra3); return
            unit(t, 1, s4=["s_waitcnt lgkmcnt(0)"]); unit(t + 1, 0); return
        kb = KB[t & 1]; vb = VB[t & 1]
        ok = lds_tile(o + 2); ov = (o >> 1) * LPAIR; av = AV + 2*(o & 1)
        unit(t, 1, s4=["s_waitcnt lgkmcnt(0)"],
             s1=[f"ds_read_b128 {vr(kb,4)}, v{AKA} offset:{ok}"],
             s3=[f"ds_read_b64 {vr(kb+4,2)}, v{AKB2+(o&1)} offset:{ov}" if SL else f"ds_read_b64 {vr(kb+4,2)}, v{AKB} offset:{ok}"])
        unit(t + 1, 0, s4=[f"ds_read_b128 {vr(vb,4)}, v{av} offset:{ov}"],
             s1=[f"ds_read_b128 {vr(vb+4,4)}, v{av+1} offset:{ov}"], s3=extra3)
    rdp = [f"ds_read_b32 v{PR}, v23"]
    a(".p2align 3")
    unit(0, 0, first=True)
    stamp(a, 9)
    check(1)
    for t in range(6):
        if t == 2: check(2)
        period(t, t, rdp if t in (1, 5) else ())
    for r in AREGS: a(f"v_add_u32 v{r}, {3*LPAIR}, v{r}")
    a(f"s_lshl_b32 s45, s{sWAVE}, 2")
    a("v_add_u32 v24, s45, v23")
    a(f"ds_write_b32 v24, v23 offset:{W_PASS}")
    a("s_mov_b32 s45, 2")
    a("s_mov_b32 s46, 7")
    stamp(a, 10); stamp(a, 10, 2); stamp_real(a, 12, 2)
    LOOPED[0] = True
    def body(chk):
        for k in range(8):
            ex = ()
            if k == 7: ex = (rdp if chk else [])
            if k == 6: ex = ["s_sub_u32 s46, s46, 1"]
            if k == 7 and not chk: ex = ["s_cmp_lg_u32 s46, 0"]
            period(k, k, ex)
        for r in AREGS: a(f"v_add_u32 v{r}, {4*LPAIR}, v{r}")
    a("s_cmp_eq_u32 s44, 16")
    a("s_cbranch_scc1 L_attn_fast")
    a(".p2align 3")
    a("L_attn_loop:")
    a("s_add_u32 s45, s45, 2")
    check("s45")
    body(True)
    a("s_cmp_eq_u32 s46, 0")
    a("s_cbranch_scc1 L_attn_last")
    a("s_cmp_lg_u32 s44, 16")
    a("s_cbranch_scc1 L_attn_loop")
    a(".p2align 3")
    a("L_attn_fast:")
    body(False)
    a("s_cbranch_scc1 L_attn_fast")
    a(".p2align 3")
    a("L_attn_last:")
    period(62, None)
    unit(63, 1, nonext=True)
    a("s_nop 1")
    a(M4(63, 1))
    stamp(a, 11); stamp(a, 11, 2); stamp_real(a, 13, 2)
    a("L_attn_post:")
    a("s_lshl_b32 s42, s41, 5")
    a("s_add_u32 s42, s42, s26")
    a("s_mul_i32 s42, s42, 1280")
    a("v_lshlrev_b32 v21, 4, v1")
    for q in range(2):
        a(f"v_mov_b32 v{24+q}, v{O[q]+8}")
        a(f"v_mov_b32 v26, v{O[q]+8}")
        a("s_nop 1")
        a(f"v_permlane32_swap_b32 v26, v{24+q}")
        a("s_nop 0")
        a(f"v_rcp_f32 v26, v{24+q}")
        a("s_nop 0")
        for r in range(12): a(f"v_mul_f32 v{S[q]+r}, v{O[q]+r}, v26")
        for r in range(6): a(f"v_cvt_pk_bf16_f32 v{S[q]+r}, v{S[q]+2*r}, v{S[q]+2*r+1}")
        a(f"buffer_store_dwordx4 {vr(S[q],4)}, v21, s[36:39], s42 offen sc1")
        a(f"buffer_store_dwordx2 {vr(S[q]+4,2)}, v20, s[36:39], s42 offen sc1")
        if q == 0: a(f"s_add_u32 s42, s42, {32*1280}")
    a("s_cmp_eq_u32 s46, 0")
    a("s_cbranch_scc0 L_attn_fin")
    for q in range(2):
        a(f"v_max3_f32 v{30+q}, abs(v{O[q]}), abs(v{O[q]+1}), abs(v{O[q]+2})")
        a(f"v_mul_f32 v{26+q}, 0, v{24+q}")
    for r in range(12):
        for q in range(2): a(f"v_fma_f32 v{26+q}, v{O[q]+r}, 0, v{26+q}")
    for q in range(2):
        a(f"v_max3_f32 v{30+q}, v{30+q}, abs(v{O[q]+3}), abs(v{O[q]+4})")
        a(f"v_max3_f32 v{30+q}, v{30+q}, abs(v{O[q]+5}), abs(v{O[q]+6})")
        a(f"v_max_f32 v{30+q}, v{30+q}, abs(v{O[q]+7})")
    a("v_max_f32 v24, v24, v25")
    a("v_min_f32 v30, v30, v31")
    a("v_mov_b32 v28, 0x76800000")
    a("v_mov_b32 v31, 0x08800000")
    a("v_cmp_u_f32 s[44:45], v26, v27")
    a("v_cmp_nlt_f32 vcc, v24, v28")
    a("v_cmp_lt_f32 s[50:51], v30, v31")
    a("s_nop 1")
    a("s_or_b64 vcc, vcc, s[44:45]")
    a("s_or_b64 vcc, vcc, s[50:51]")
    if OPT.get('forcefb'): a("s_mov_b64 vcc, -1")
    a("s_cbranch_vccnz L_attn_fallback")
    a("L_attn_fin:")
    a("s_lshl_b32 s40, s2, 2")
    a(f"s_add_u32 s40, s40, s{sWAVE}")
    a(f"s_add_u32 s40, s40, {FB}")
    a("s_lshl_b32 s40, s40, 7")
    for i in range(4): a(f"v_mov_b32 v{8+i}, s{sNON+(i&1)}")
    a("s_waitcnt vmcnt(0)")
    stamp(a, 12)
    a("s_mov_b64 exec, 0xff")
    a(f"buffer_store_dwordx4 v[8:11], v21, {sr(sFL,4)}, s40 offen sc1")
    a("s_mov_b64 exec, -1")
    a("s_barrier")
    a("s_branch L_end")
    a("L_attn_fallback:")
    a("s_waitcnt vmcnt(0)")
    for r in ((AKA,) if SL else (AKA, AKB)): a(f"v_subrev_u32 v{r}, {31*LPAIR}, v{r}")
    if SL:
        a("s_mov_b32 exec_lo, 0")
        for q in range(2):
            a(f"v_mov_b32 v{QA[q]+4}, 0")
            a(f"v_mov_b32 v{QA[q]+5}, 0")
        a("s_mov_b64 exec, -1")
    a("v_mov_b32 v24, 0xff800000")
    a("v_mov_b32 v25, 0xff800000")
    a("s_mov_b32 s46, 0")
    a("L_fb_max:")
    a(f"buffer_load_dwordx4 {vr(KB[0],4)}, v{AKA}, s[32:35], s46 offen sc1")
    if SL: a("s_mov_b32 exec_hi, 0")
    a(f"buffer_load_dwordx2 {vr(KB[0]+4,2)}, v{AKB}, s[32:35], s46 offen sc1")
    if SL: a("s_mov_b64 exec, -1")
    a("s_waitcnt vmcnt(0)")
    for q in range(2): a(M1(S[q], 0, q, "0"))
    for q in range(2): a(M2(S[q], 0, q))
    a("s_nop 15")
    rowmax(S[0], 24, False)
    rowmax(S[1], 25, False)
    a(f"s_add_u32 s46, s46, {TKV}")
    a(f"s_cmp_lt_u32 s46, {KV_HEAD}")
    a("s_cbranch_scc1 L_fb_max")
    finish_neg("0")
    for q in range(2):
        for r in range(16): a(f"v_mov_b32 v{O[q]+r}, 0")
    a("s_mov_b32 s46, 0")
    a("L_fb_main:")
    a(f"buffer_load_dwordx4 {vr(KB[0],4)}, v{AKA}, s[32:35], s46 offen sc1")
    if SL: a("s_mov_b32 exec_hi, 0")
    a(f"buffer_load_dwordx2 {vr(KB[0]+4,2)}, v{AKB}, s[32:35], s46 offen sc1")
    if SL: a("s_mov_b64 exec, -1")
    a("s_mov_b64 exec, s[48:49]")
    a(f"buffer_load_dwordx4 {vr(VB[0],4)}, v29, s[32:35], s46 offen sc1")
    a(f"buffer_load_dwordx4 {vr(VB[0]+4,4)}, v29, s[32:35], s46 offen offset:640 sc1")
    a("s_mov_b64 exec, -1")
    a("s_waitcnt vmcnt(0)")
    for q in range(2): a(M1(S[q], 0, q, CNEG(q)))
    for q in range(2): a(M2(S[q], 0, q))
    a("s_nop 15")
    for q in range(2):
        for r in range(16): a(f"v_exp_f32 v{S[q]+r}, v{S[q]+r}")
        a("s_nop 0")
        for j in range(8): a(f"v_cvt_pk_bf16_f32 v{P+j}, v{S[q]+2*j}, v{S[q]+2*j+1}")
        a("s_nop 1")
        a(M3(0, q)); a(M4(0, q))
    a(f"s_add_u32 s46, s46, {TKV}")
    a(f"s_cmp_lt_u32 s46, {KV_HEAD}")
    a("s_cbranch_scc1 L_fb_main")
    a("s_nop 15")
    a("s_branch L_attn_post")

def aux(a):
    a("L_aux:")
    a(f"s_setprio {OPT.get('paux', 0)}")
    a(f"s_sub_u32 s44, s{sWAVE}, 4")
    a("v_lshlrev_b32 v2, 4, v1")
    a("s_waitcnt vmcnt(0)")
    drained(a, 3)
    a("s_cmp_eq_u32 s44, 0")
    a("s_cbranch_scc1 L_kv")
    a("s_cmp_lg_u32 s44, 1")
    a("s_cbranch_scc1 L_aux_wait")
    a("s_lshl_b32 s40, s2, 7")
    a("L_cnt_spin:")
    a(f"s_sleep {OPT.get('asl', 1)}")
    a(f"ds_read_b32 v3, v23 offset:{W_CNT}")
    a("s_waitcnt lgkmcnt(0)")
    a("v_readfirstlane_b32 s41, v3")
    a("s_nop 0")
    a("s_cmp_lt_u32 s41, 8")
    a("s_cbranch_scc1 L_cnt_spin")
    stamp(a, 7)
    set_flag(a, 40, 8, also=FL1*128 if OPT.get('lf', 1) else None)
    a("L_aux_wait:")
    a("s_sleep 4")
    a(f"ds_read_b32 v3, v23 offset:{W_PROG}")
    a("s_waitcnt lgkmcnt(0)")
    a("v_readfirstlane_b32 s41, v3")
    a("s_nop 0")
    a(f"s_cmp_lt_u32 s41, {OPT.get('f2w', 6)}")
    a("s_cbranch_scc1 L_aux_wait")
    if OPT.get('dyn', 1):
        a("s_cmp_lg_u32 s44, 1")
        a("s_cbranch_scc1 L_kv_done")
        make_srd(a, 28, pDBG, 0, 256)
        a("v_mov_b32 v3, 1")
        a("v_mov_b32 v4, 128")
        a("s_mov_b64 exec, 1")
        a("buffer_atomic_add v3, v4, s[28:31], 0 offen sc0")
        a("s_waitcnt vmcnt(0)")
        a("v_add_u32 v3, 1, v3")
        a("ds_write_b32 v23, v3 offset:12")
        a("s_mov_b64 exec, -1")
    a("s_branch L_kv_done")
    a("L_kv:")
    a(f"s_mul_i32 s40, s26, {KV_HEAD}")
    make_srd(a, 28, pWS, "s40", KV_HEAD)
    a(f"v_mul_u32_u24 v6, {LPAIR}, v1")
    a("v_min_u32 v6, %d, v6" % (30*LPAIR))
    for r in range(4): a(f"v_mov_b32 v{8+r}, 0x3f803f80")
    a("ds_write_b128 v6, v[8:11] offset:5120")
    for r in range(4): a(f"v_mov_b32 v{12+r}, 0")
    a("ds_write_b128 v6, v[12:15] offset:5136")
    a("v_mov_b32 v16, 0x3f803f80")
    a("v_mov_b32 v17, 0x3f80")
    a("ds_write_b64 v6, v[16:17] offset:5152")
    a("s_lshr_b32 s41, s26, 3")
    a("s_lshl_b32 s41, s41, 1")
    a(f"s_and_b32 s43, s{sXCD}, 1")
    a("s_lshl_b32 s43, s43, 3")
    a("s_lshl_b32 s42, s27, 1")
    a("v_and_b32 v3, 15, v1")
    a("v_lshrrev_b32 v5, 4, v1")
    a("v_add_u32 v5, 1, v5")
    a("v_and_b32 v4, 7, v1")
    a("v_add_u32 v4, s43, v4")
    a("v_bfe_u32 v6, v1, 3, 1")
    a("v_add_u32 v6, 1, v6")
    a("v_cmp_gt_u32 vcc, 32, v1")
    a("v_and_b32 v7, 1, v1")
    a("v_add_u32 v7, s42, v7")
    a("v_cndmask_b32 v3, v4, v3, vcc")
    a("v_cndmask_b32 v5, v6, v5, vcc")
    a("v_cmp_gt_u32 vcc, 48, v1")
    a("v_add_u32 v6, -48, v1")
    a(f"v_mov_b32 v4, {FL1}")
    a("v_cndmask_b32 v3, v7, v3, vcc")
    a("v_cndmask_b32 v5, 0, v5, vcc")
    a("v_cmp_gt_u32 vcc, 2, v6")
    a("v_cmp_gt_u32 s[46:47], 32, v1")
    a("v_and_b32 v7, 7, v3")
    a("v_lshl_add_u32 v5, v5, 3, v7")
    a("s_or_b64 vcc, vcc, s[46:47]")
    a("v_lshrrev_b32 v3, 3, v3")
    a("v_add_u32 v3, s41, v3")
    a("v_cndmask_b32 v4, v4, 0, vcc")
    a("v_lshl_add_u32 v5, v5, 3, v3")
    a("v_add_u32 v5, v5, v4")
    a("v_lshlrev_b32 v5, 7, v5")
    def poll_once(first=False):
        if first and OPT.get('lf', 1):
            a("s_and_b32 s48, s40, 7")
            a("s_cmp_eq_u32 s48, 0")
            a("s_cselect_b32 exec_lo, -1, 0")
            a("s_cselect_b32 exec_hi, -1, 0xcffff")
        a(f"buffer_load_dwordx2 v[6:7], v5, {sr(sFL,4)}, 0 offen sc1")
        if first and OPT.get('lf', 1): a("s_mov_b64 exec, -1")
        a("s_waitcnt vmcnt(0)")
        a(f"v_cmp_eq_u64 vcc, {sr(sNON,2)}, v[6:7]")
        a("s_sub_u32 s40, s40, 1")
        a("s_cselect_b32 s47, 0xffff, 0")
        a("s_and_b32 s48, vcc_hi, 0xff")
        a("s_lshl_b32 s48, s48, s43")
        a("s_or_b32 s48, s48, vcc_lo")
        a("s_bfe_u32 s49, vcc_hi, 0x80008")
        a("s_lshl_b32 s49, s49, s43")
        a("s_lshr_b32 s45, vcc_lo, 16")
        a("s_or_b32 s45, s45, s49")
        a("s_and_b32 s45, s45, s48")
        a("s_or_b32 s45, s45, s47")
    def pub(off, sreg):
        a(f"v_mov_b32 v4, s{sreg}")
        a(f"ds_write_b32 v23, v4 offset:{off}")
    a(f"s_mov_b32 s40, {POLL_MAX - 1}")
    a("v_mov_b32 v6, 0")
    a("v_mov_b32 v7, 0")
    if OPT.get('padgo'):
        a("L_padgo:")
        a("s_memrealtime s[42:43]")
        a("s_waitcnt lgkmcnt(0)")
        a(f"s_sub_u32 s42, s42, s{sNON}")
        a(f"s_cmp_lt_u32 s42, {OPT['padgo']}")
        a("s_cbranch_scc1 L_padgo")
    a("L_kv_p1:")
    a(f"s_sleep {OPT.get('ksl', 1)}")
    poll_once(True)
    a("s_cmp_lg_u32 s47, 0")
    a("s_cbranch_scc1 L_kv_first")
    a("s_lshr_b32 s48, vcc_hi, 16")
    a("s_lshr_b32 s49, vcc_hi, 18")
    a("s_or_b32 s48, s48, s49")
    a("s_and_b32 s48, s48, 3")
    a("s_cmp_eq_u32 s48, 3")
    a("s_cselect_b32 s48, s45, 0")
    a("s_cmp_eq_u32 s48, 0")
    a("s_cbranch_scc1 L_kv_p1")
    a("L_kv_first:")
    a("s_ff1_i32_b32 s48, s45")
    a("s_add_u32 s49, s48, 1")
    pub(W_GO, 49)
    stamp(a, 7)
    a("s_lshl_b32 s46, 1, s48")
    a(f"s_mul_i32 s48, s48, {4*TKV}")
    a(f"s_add_u32 s48, s48, {2*TKV}")
    for i in range(5):
        a(f"s_mov_b32 m0, {i*1024}")
        a("s_nop 0")
        a("buffer_load_dwordx4 v2, s[28:31], s48 offen sc1 lds")
        if i < 4: a("s_add_u32 s48, s48, 1024")
    a("s_mov_b32 s50, 1")
    a(f"s_mov_b32 s51, {LPAIR}")
    a("L_kv_next:")
    a("s_andn2_b32 s48, s45, s46")
    a("s_cbranch_scc0 L_kv_poll")
    a("s_ff1_i32_b32 s48, s48")
    a("s_bitset1_b32 s46, s48")
    a(f"s_mul_i32 s48, s48, {4*TKV}")
    for i in range(10):
        a(f"s_add_u32 m0, s51, {i*1024 + (64 if i >= 5 else 0)}")
        if i: a("s_add_u32 s48, s48, 1024")
        else: a("s_nop 0")
        a("buffer_load_dwordx4 v2, s[28:31], s48 offen sc1 lds")
    a(f"s_add_u32 s51, s51, {2*LPAIR}")
    a("s_cmp_eq_u32 s50, 1")
    a("s_cbranch_scc0 L_kv_w20")
    a("s_waitcnt vmcnt(10)")
    pub(W_PROG, 50)
    a("s_mov_b32 s50, 2")
    a("s_branch L_kv_next")
    a("L_kv_w20:")
    a("s_waitcnt vmcnt(20)")
    a("s_sub_u32 s49, s50, 1")
    pub(W_PROG, 49)
    a("s_add_u32 s50, s50, 1")
    a("s_branch L_kv_next")
    a("L_kv_poll:")
    a("s_waitcnt vmcnt(0)")
    pub(W_PROG, 50)
    a("s_cmp_eq_u32 s50, 16")
    a("s_cbranch_scc1 L_kv_done")
    poll_once()
    a("s_branch L_kv_next")
    a("L_kv_done:")
    stamp(a, 8)
    a("v_lshlrev_b32 v5, 7, v1")
    a(f"v_add_u32 v5, {192*128}, v5")
    poll(a, 5, 6, sleep=4)
    a(f"s_setprio {OPT.get('pf2', 3)}")
    if OPT.get('dyn', 1):
        a("L_item:")
        a("ds_read_b32 v3, v23 offset:12")
        a("s_waitcnt lgkmcnt(0)")
        a("v_readfirstlane_b32 s40, v3")
        a("s_nop 0")
        a("s_cmp_eq_u32 s40, 0")
        a("s_cbranch_scc1 L_item")
        a("s_sub_u32 s40, s40, 1")
    else:
        a(f"s_sub_u32 s40, 31, s{sSLOT}")
        a("s_cmp_ge_u32 s40, 24")
        a("s_cbranch_scc1 L_wo")
        a(f"s_mul_i32 s41, s{sXCD}, 24")
        a("s_add_u32 s40, s40, s41")
    a("s_cmp_ge_u32 s40, %d" % (0 if OPT.get('nof2') else 187))
    a("s_cbranch_scc1 L_wo")
    a("s_mul_i32 s41, s40, 373")
    a("s_lshr_b32 s41, s41, 12")
    a("s_mul_i32 s42, s41, 11")
    a("s_sub_u32 s42, s40, s42")
    a("s_lshl_b32 s41, s41, 1")
    a("s_cmp_ge_u32 s41, 18")
    a("s_cselect_b32 s43, 17, 0")
    a("s_sub_u32 s41, s41, s43")
    a("s_and_b32 s43, s41, 1")
    a("s_lshl_b32 s45, s44, 4")
    a("s_min_u32 s46, s44, 1")
    a("s_add_u32 s46, s46, s45")
    a("s_mul_i32 s47, s41, 65")
    a("s_add_u32 s47, s47, s46")
    a("s_lshl_b32 s47, s47, 10")
    a(f"s_add_u32 s47, s47, {SEQ_OFF}")
    make_srd(a, 28, pWS, "s47", 17*1024)
    a("s_and_b32 s47, s44, 2")
    a("s_add_u32 s47, s47, s43")
    a("s_mul_i32 s48, s47, 11")
    a("s_add_u32 s48, s48, s42")
    a("s_mul_i32 s48, s48, 33")
    a("s_and_b32 s45, s45, 16")
    a("s_add_u32 s48, s48, s45")
    a("s_lshl_b32 s48, s48, 10")
    a(f"s_add_u32 s48, s48, {AB_OFF}")
    make_srd(a, 32, pWS, "s48", 33*1024)
    make_srd(a, 36, pOUT, 0, OUT_SIZE)
    FB = 64; AC = 8
    a("s_or_b32 s47, s44, s43")
    a("s_cmp_lg_u32 s47, 0")
    a("s_cbranch_scc1 L_f2_nox")
    a(f"s_mov_b32 s49, {16*1024}")
    a("buffer_load_dwordx4 v[24:27], v2, s[28:31], s49 offen sc1")
    a(f"s_mov_b32 s49, {32*1024}")
    a("buffer_load_dwordx4 v[28:31], v2, s[32:35], s49 offen sc1")
    a("L_f2_nox:")
    for k in range(16):
        b = FB + k * 8
        if k % 4 == 0: a(f"s_mov_b32 s49, {(k//4)*4096}")
        a(f"buffer_load_dwordx4 {vr(b,4)}, v2, s[28:31], s49 offen offset:{(k%4)*1024} sc1")
        a(f"buffer_load_dwordx4 {vr(b+4,4)}, v2, s[32:35], s49 offen offset:{(k%4)*1024} sc1")
    stamp(a, 9)
    a("v_and_b32 v5, 31, v1")
    a("v_lshrrev_b32 v4, 5, v1")
    a("s_lshr_b32 s48, s41, 1")
    a("s_lshl_b32 s48, s48, 6")
    a("s_add_u32 s48, s48, s43")
    a("s_lshl_b32 s49, s44, 4")
    a("s_add_u32 s48, s48, s49")
    a("v_lshl_add_u32 v47, v4, 3, s48")
    a("v_mul_u32_u24 v47, 2560, v47")
    a("s_cmp_ge_u32 s42, 6")
    a("s_cselect_b32 s48, 383, 0")
    a("s_lshl_b32 s49, s42, 6")
    a("s_sub_u32 s48, s49, s48")
    a("v_lshl_add_u32 v5, v5, 1, s48")
    a(f"v_mov_b32 v46, {HUGE}")
    a("v_lshlrev_b32 v6, 1, v5")
    a("v_add_u32 v40, 1280, v6")
    a("v_cmp_ge_u32 vcc, 320, v5")
    a("v_sub_u32 v41, 2560, v6")
    a("v_add_u32 v6, -1, v5")
    a("v_cndmask_b32 v40, v46, v40, vcc")
    a("v_cmp_gt_u32 vcc, 319, v6")
    a(f"v_add_u32 v33, {(2048-6)*2560}, v40")
    a("v_sub_u32 v33, v33, v47")
    a("v_cndmask_b32 v41, v46, v41, vcc")
    a("v_add_u32 v32, v47, v40")
    a("v_add_u32 v36, v47, v41")
    a(f"v_add_u32 v37, {(2048-6)*2560}, v41")
    a("v_sub_u32 v37, v37, v47")
    a(f"v_subrev_u32 v34, {1024*2560}, v33")
    a(f"v_subrev_u32 v38, {1024*2560}, v37")
    a(f"v_add_u32 v35, {1024*2560}, v32")
    a(f"v_add_u32 v39, {1024*2560}, v36")
    a(f"v_add_u32 v42, {3*5120}, v33")
    a(f"v_add_u32 v43, {3*5120}, v37")
    a(f"v_mov_b32 v3, {LDS_PROG}")
    a("s_lshl_b32 s48, s44, 10")
    a("v_add_u32 v6, s48, v2")
    a("s_add_u32 s49, s48, 12288")
    a("s_lshl_b32 s50, s44, 12")
    a("s_add_u32 s51, s50, 3072")
    a("s_cmp_eq_u32 s44, 3")
    a(f"s_cmov_b32 s49, {LDS_PROG + 1024}")
    a(f"s_cmov_b32 s51, {LDS_PROG + 1024}")
    a("v_add_u32 v7, s49, v2")
    a("v_add_u32 v44, s50, v2")
    a("v_add_u32 v45, s51, v2")
    a("s_lshl_b32 s49, s44, 2")
    a("v_add_u32 v5, s49, v3")
    for k in range(16):
        a(f"s_waitcnt vmcnt({2*(15-k)})")
        b = FB + k * 8
        d = vr(AC, 16)
        a(f"v_mfma_f32_32x32x16_bf16 {d}, {vr(b,4)}, {vr(b+4,4)}, {'0' if k == 0 else d}")
    a("s_cmp_lg_u32 s47, 0")
    a("s_cbranch_scc1 L_f2_nox2")
    a(f"v_mfma_f32_32x32x16_bf16 {vr(AC,16)}, v[24:27], v[28:31], {vr(AC,16)}")
    a("L_f2_nox2:")
    def spin_min(lbl, off, sl):
        a(f"{lbl}:")
        a(f"ds_read_b128 v[48:51], v3 offset:{off}")
        a("s_waitcnt lgkmcnt(0)")
        a("v_min3_u32 v48, v48, v49, v50")
        a("v_min_u32 v48, v48, v51")
        a("s_nop 0")
        a("v_readfirstlane_b32 s48, v48")
        a("s_nop 0")
        a("s_cmp_lg_u32 s48, 0")
        a(f"s_cbranch_scc1 {lbl}_ok")
        a(f"s_sleep {sl}")
        a(f"s_branch {lbl}")
        a(f"{lbl}_ok:")
    spin_min("L_f2_dead", W_PASS, 4)
    a("s_nop 3")
    for j in range(3): a(f"ds_write_b128 v6, {vr(AC+4*j,4)} offset:{j*4096}")
    a(f"ds_write_b128 v7, {vr(AC+12,4)}")
    a(f"ds_write_b32 v5, v3 offset:{W_XCH}")
    spin_min("L_f2_wait", W_XCH, 2)
    for i in range(3): a(f"ds_read_b128 {vr(8+4*i,4)}, v44 offset:{i*1024}")
    a("ds_read_b128 v[20:23], v45")
    a("s_waitcnt lgkmcnt(0)")
    ng = "neg_lo:[0,1] neg_hi:[0,1]"
    for r in (0, 2):
        a(f"v_pk_add_f32 {vr(48+r,2)}, {vr(8+r,2)}, {vr(12+r,2)}")
        a(f"v_pk_add_f32 {vr(52+r,2)}, {vr(8+r,2)}, {vr(12+r,2)} {ng}")
        a(f"v_pk_add_f32 {vr(56+r,2)}, {vr(20+r,2)}, {vr(16+r,2)}")
        a(f"v_pk_add_f32 {vr(60+r,2)}, {vr(20+r,2)}, {vr(16+r,2)} {ng}")
    for r in (0, 2):
        a(f"v_pk_add_f32 {vr(8+r,2)}, {vr(48+r,2)}, {vr(56+r,2)} {ng}")
        a(f"v_pk_add_f32 {vr(12+r,2)}, {vr(48+r,2)}, {vr(56+r,2)}")
        a(f"v_pk_add_f32 {vr(16+r,2)}, {vr(52+r,2)}, {vr(60+r,2)} {ng}")
        a(f"v_pk_add_f32 {vr(20+r,2)}, {vr(52+r,2)}, {vr(60+r,2)}")
    for k in range(8): a(f"v_cvt_pk_bf16_f32 v{48+k}, v{8+2*k}, v{9+2*k}")
    a("s_cmp_eq_u32 s41, 16")
    a("s_cbranch_scc1 L_f2_nyq")
    for i in range(4):
        st = "buffer_store_short_d16_hi" if i & 1 else "buffer_store_short"
        m1, p1, m2, p2 = (48 + 2*k + (i >> 1) for k in range(4))
        a(f"s_mov_b32 s47, {i*5120}")
        a(f"s_mov_b32 s48, {(3-i)*5120}")
        for val, adr, so in [(m1, 32, "s47"), (p1, 36, "s47"), (p2, 35, "s47"), (m2, 39, "s47"), (m2, 34, "s48"), (p2, 38, "s48"),
                             (p1, 33 if i else 42, "s48" if i else "0"), (m1, 37 if i else 43, "s48" if i else "0")]:
            a(f"{st} v{val}, v{adr}, s[36:39], {so} offen{FLF()}")
    a("s_branch L_wo")
    a("L_f2_nyq:")
    a("s_cmp_lg_u32 s44, 0")
    a("s_cbranch_scc1 L_wo")
    a("s_mov_b32 exec_hi, 0")
    for val, adr in [(48, 32), (50, 36), (50, 42), (48, 43)]:
        a(f"buffer_store_short v{val}, v{adr}, s[36:39], 0 offen{FLF()}")
    a("s_mov_b64 exec, -1")
    a("L_wo:")
    stamp(a, 10)
    a("s_and_b32 s40, s26, 3")
    a("s_lshl_b32 s40, s40, 2")
    a("s_add_u32 s40, s40, s44")
    a(f"s_mul_i32 s40, s40, {50*1024}")
    a(f"s_add_u32 s40, s40, {WO_OFF}")
    make_srd(a, 28, pWS, "s40", 50*1024)
    a("s_waitcnt vmcnt(0)")
    for k in range(OPT.get('nwo', 50)):
        if k % 4 == 0: a(f"s_mov_b32 s49, {(k//4)*4096}")
        a(f"buffer_load_dwordx4 {vr(56+4*k,4)}, v2, s[28:31], s49 offen offset:{(k%4)*1024} sc1")

def tail(a):
    a("L_B_done:")
    a("s_lshr_b32 s40, s26, 2")
    a("s_lshl_b32 s41, s27, 3")
    a("s_add_u32 s41, s41, s40")
    a(f"s_mul_i32 s42, s41, {32*1280}")
    a(f"s_add_u32 s42, s42, {O_OFF}")
    make_srd(a, 28, pWS, "s42", 32*1280)
    a("v_and_b32 v4, 7, v1")
    a("v_bfe_u32 v5, v1, 3, 2")
    a("v_lshlrev_b32 v5, 1, v5")
    a("v_lshl_add_u32 v4, v4, 3, v5")
    a("s_and_b32 s42, s27, 3")
    a("s_lshl_b32 s42, s42, 6")
    a("s_lshr_b32 s43, s27, 2")
    a("s_add_u32 s42, s42, s43")
    a("s_lshl_b32 s42, s42, 2")
    a("s_lshr_b32 s40, s40, 1")
    a("s_add_u32 s42, s42, s40")
    a(f"s_add_u32 s42, s42, {FB}")
    a("v_lshl_add_u32 v4, v4, 2, s42")
    a("v_lshlrev_b32 v4, 7, v4")
    a("s_waitcnt vmcnt(0)")
    stamp(a, 12)
    a("s_barrier")
    stamp(a, 1)
    poll(a, 4, 6, sleep=OPT.get('sl', 0))
    stamp(a, 13)
    a("s_lshl_b32 s40, s44, 10")
    for j in range(10):
        a("s_mov_b32 m0, s40")
        a("s_nop 0")
        a("buffer_load_dwordx4 v2, s[28:31], s40 offen sc1 lds")
        if j < 9: a("s_add_u32 s40, s40, 4096")
    a("v_and_b32 v3, 31, v1")
    a("v_lshrrev_b32 v4, 5, v1")
    a("v_mul_u32_u24 v5, 2560, v4")
    a("v_lshl_add_u32 v5, v3, 3, v5")
    a("v_add_u32 v5, 1024, v5")
    make_srd(a, 32, pOUT, 0, OUT_SIZE)
    a("s_lshl_b32 s41, s41, 5")
    a("v_add_u32 v6, s41, v3")
    a("v_mul_u32_u24 v6, 2560, v6")
    a("s_and_b32 s42, s26, 3")
    a("s_mul_i32 s42, s42, 320")
    a("s_mul_i32 s43, s44, 12800")
    a("v_add_u32 v7, s43, v2")
    a("s_lshl_b32 s43, s44, 12")
    a("s_add_u32 s43, s43, 40960")
    a("v_add_u32 v3, s43, v2")
    a("s_lshl_b32 s43, s44, 10")
    a("s_add_u32 s43, s43, 40960")
    a("v_add_u32 v1, s43, v2")
    a("s_lshl_b32 s45, s44, 4")
    a("s_add_u32 s45, s45, s42")
    a("v_lshl_add_u32 v0, v4, 3, v6")
    a("s_lshl_b32 s43, s44, 6")
    a("s_add_u32 s43, s43, s42")
    a("v_lshl_add_u32 v6, v4, 4, v6")
    a("s_waitcnt vmcnt(%d)" % (6 if OPT.get('prog', 1) else 0))
    a("s_barrier")
    stamp(a, 14)
    if lib.STAMP: a("s_waitcnt lgkmcnt(0)")
    A5, AM, OB = 8, 24, 40
    def rd(buf, kap, base=None):
        b = OB + 4*buf
        if base is not None: return f"ds_read_b128 {vr(b,4)}, v{base} offset:{kap*1280}"
        if kap < 32: return f"ds_read_b128 {vr(b,4)}, v2 offset:{kap*1280}"
        o = (kap - 32) * 5120 // 8
        return None
    def rd_main(buf, kap):
        b = OB + 4*buf
        if kap < 32: return [f"ds_read_b128 {vr(b,4)}, v2 offset:{kap*1280}"]
        g = kap - 32
        return [f"ds_read_b64 {vr(b,2)}, v5 offset:{g*5120}", f"ds_read_b64 {vr(b+2,2)}, v5 offset:{g*5120+1280}"]
    PG = 10 if OPT.get('prog', 1) else 0
    def stream(steps):
        n = len(steps); cnt = [0]*n
        PF = 3
        for k in range(PF):
            r = steps[k][0](k % 4); cnt[k] = len(r)
            for x in r: a(x)
        for k in range(n):
            out = sum(cnt[k+1:min(n, k+PF)])
            a(f"s_waitcnt lgkmcnt({out})")
            d = vr(steps[k][1], 16)
            a(f"v_mfma_f32_32x32x16_bf16 {d}, {vr(steps[k][2],4)}, {vr(OB+4*(k%4),4)}, {'0' if steps[k][3] else d}")
            if PG and k + PF == PG:
                a("s_waitcnt vmcnt(0)")
                a("s_barrier")
            if k + PF < n:
                r = steps[k+PF][0]((k+PF) % 4); cnt[k+PF] = len(r)
                for x in r: a(x)
            if k == PG + 13:
                for j in range(4): a(f"ds_write_b128 v3, {vr(A5+4*j,4)} offset:{j*1024}")
                cnt[k+PF] += 4
            if k == 32:
                a("s_barrier")
                for i in range(4): a(f"ds_read_b128 {vr(A5+4*i,4)}, v1 offset:{i*4096}")
                cnt[k+PF] += 4
            if k == 38:
                for i in range(1, 4):
                    a(f"v_pk_add_f32 {vr(A5,2)}, {vr(A5,2)}, {vr(A5+4*i,2)}")
                    a(f"v_pk_add_f32 {vr(A5+2,2)}, {vr(A5+2,2)}, {vr(A5+4*i+2,2)}")
            if k == 40:
                a(f"v_cvt_pk_bf16_f32 v{A5}, v{A5}, v{A5+1}")
                a(f"v_cvt_pk_bf16_f32 v{A5+1}, v{A5+2}, v{A5+3}")
                a(f"buffer_store_dwordx2 {vr(A5,2)}, v0, s[32:35], s45 offen offset:256{FLP()}")
    main = [((lambda kap: lambda buf: rd_main(buf, kap))(kap), AM, 56 + 4*(10+kap), kap == 0) for kap in range(40)]
    a("s_cmp_eq_u32 s44, 3")
    a("s_cbranch_scc1 L_tail3")
    q5 = [((lambda i: lambda buf: [f"ds_read_b128 {vr(OB+4*buf,4)}, v7 offset:{i*1280}"])(i), A5, 56 + 4*i, i == 0) for i in range(10)]
    stream(main[:PG] + q5 + main[PG:])
    a("s_branch L_tail_join")
    a("L_tail3:")
    q5 = [((lambda i: lambda buf: rd_main(buf, 30 + i))(i), A5, 56 + 4*i, i == 0) for i in range(10)]
    stream(main[:PG] + q5 + main[PG:])
    a("L_tail_join:")
    stamp(a, 11)
    a("s_nop 10")
    for r in range(8): a(f"v_cvt_pk_bf16_f32 v{AM+r}, v{AM+2*r}, v{AM+2*r+1}")
    a("s_nop 1")
    for h2 in range(2):
        a(f"v_permlane32_swap_b32 v{AM+4*h2}, v{AM+4*h2+2}")
        a(f"v_permlane32_swap_b32 v{AM+4*h2+1}, v{AM+4*h2+3}")
    for h2 in range(2):
        a(f"buffer_store_dwordx4 {vr(AM+4*h2,4)}, v6, s[32:35], s43 offen offset:{32*h2}{FLP()}")
    a("L_end:")
    if OPT.get('pad'):
        a("L_pad:")
        a("s_memrealtime s[40:41]")
        a("s_waitcnt lgkmcnt(0)")
        a(f"s_sub_u32 s40, s40, s{sNON}")
        a(f"s_cmp_lt_u32 s40, {OPT['pad']}")
        a("s_cbranch_scc1 L_pad")
    if lib.STAMP:
        a("s_waitcnt vmcnt(0)")
        stamp(a, 15); stamp_real(a, 17)
        stamp_flush(a, 18, pWS, sWAVE, 0)
    a("L_exit:")
    a("s_endpgm")

KNAME = "concat_heads__mha_block__spectral_fnet__prompt_kernel"
def kernel(a):
    kernel_header(a, KNAME)
    if OPT.get('early'): a("s_memrealtime s[98:99]")
    a("s_cmp_ge_u32 s2, 256")
    a("s_cbranch_scc1 L_exit")
    if lib.STAMP:
        for i in range(18): a(f"s_mov_b32 s{60+2*i}, 0")
    stamp(a, 0); stamp_real(a, 16)
    a("s_load_dwordx8 s[4:11], s[0:1], 0")
    a("s_load_dwordx4 s[12:15], s[0:1], 64")
    a("s_load_dwordx2 s[16:17], s[0:1], 80")
    a("v_lshrrev_b32 v1, 6, v0")
    a(f"s_and_b32 s{sXCD}, s2, 7")
    a(f"v_readfirstlane_b32 s{sWAVE}, v1")
    a(f"s_lshr_b32 s{sSLOT}, s2, 3")
    a("v_and_b32 v1, 63, v0")
    a(f"s_and_b32 s26, s{sXCD}, 1")
    a("s_lshl_b32 s26, s26, 3")
    a(f"s_and_b32 s27, s{sSLOT}, 7")
    a("s_add_u32 s26, s26, s27")
    a(f"s_lshr_b32 s27, s{sSLOT}, 3")
    a("s_lshl_b32 s27, s27, 2")
    a(f"s_lshr_b32 s40, s{sXCD}, 1")
    a("s_add_u32 s27, s27, s40")
    a(f"s_cmp_ge_u32 s{sSLOT}, 24")
    a("s_cselect_b32 s40, 0, s%d" % sWAVE)
    a("s_cmp_lt_u32 s40, 4")
    a("s_cbranch_scc1 L_other")
    gemm_loader(a)
    a("L_other:")
    a("s_waitcnt lgkmcnt(0)")
    make_srd(a, sFL, pWS, FL_OFF, FL_SIZE)
    a(f"s_cmp_lg_u32 s{sWAVE}, 0")
    a("s_cbranch_scc1 L_no_init")
    a(f"v_mov_b32 v2, {LDS_PROG}")
    a("v_mov_b32 v4, 0")
    a("v_mov_b32 v5, 0")
    for i in range(8): a(f"ds_write_b64 v2, v[4:5] offset:{8*i}")
    a("s_cmp_lg_u32 s2, 0")
    a("s_cbranch_scc1 L_no_nonce")
    if OPT.get('early'): a("s_mov_b64 s[40:41], s[98:99]")
    else: a("s_memrealtime s[40:41]")
    make_srd(a, 28, pDBG, 0, 256)
    a("s_waitcnt lgkmcnt(0)")
    a("s_or_b32 s40, s40, 1")
    a("v_mov_b32 v2, s40")
    a("v_mov_b32 v3, s41")
    a("buffer_store_dwordx2 v[2:3], v4, s[28:31], 0 offen sc1")
    a("L_no_nonce:")
    a("s_waitcnt lgkmcnt(0)")
    a("L_no_init:")
    a(f"s_cmp_ge_u32 s{sSLOT}, 24")
    a("s_cbranch_scc1 L_prep")
    if OPT.get('touch', 1):
        a(f"s_cmp_lg_u32 s{sWAVE}, 1")
        a("s_cbranch_scc1 L_no_code")
        a("s_getpc_b64 s[40:41]")
        a("L_pc:")
        a(f"s_sub_u32 s40, s40, L_pc-{KNAME}")
        a("s_subb_u32 s41, s41, 0")
        a(f"s_mul_i32 s42, s{sSLOT}, 1792")
        a("v_lshlrev_b32 v2, 4, v1")
        a("v_add_u32 v2, s42, v2")
        a(f"v_min_u32 v2, L_exit-{KNAME}-1024-16, v2")
        for i in range(2): a(f"global_load_dwordx4 v[250:253], v2, s[40:41] offset:{i*1024}")
        a("L_no_code:")
    gemm_compute(a)
    prep(a)
    a_done(a)
    attention(a)
    aux(a)
    tail(a)
    return kernel_desc(KNAME, 256, 100)

HEADER = open('concat_heads__mha_block__spectral_fnet__prompt.s.ref').read().split("; Override")[0]
def main(out):
    a = Asm()
    a('.amdgcn_target "amdgcn-amd-amdhsa--gfx950"')
    a(".text")
    d = kernel(a)
    txt = HEADER + "; @launch grid=(256,1,1) block=(512,1,1) lds=163840\n" + a.text() + '.section .rodata,"a"\n.p2align 6\n' + d
    open(out, "w").write(txt)

if __name__ == "__main__":
    for x in sys.argv[2:]:
        if x == "stamp": lib.STAMP = True
        elif x == "rt": lib.STAMP = True; lib.STAMPRT = True
        elif x == "gst": lib.STAMP = True; lib.STAMPSET = 1
        elif x == "cst": lib.STAMP = True; lib.STAMPSET = 2
        else:
            k, _, v = x.partition("=")
            OPT[k] = int(v) if v else 1
    main(sys.argv[1] if len(sys.argv) > 1 else "v21.s")
```

```python
import sys, struct
from lib import *
import lib

TKV = 2560; KV_HEAD = 64*TKV; KV_OFF = 0; KV_SIZE = 32*KV_HEAD
TQ = 1280; Q_HEAD = 64*TQ; Q_OFF = KV_SIZE; Q_SIZE = 32*Q_HEAD
O_OFF = Q_OFF + Q_SIZE; O_SIZE = 64*32*1280
SEQ_OFF = O_OFF + O_SIZE; SEQ_SIZE = 17*65*1024
AB_OFF = SEQ_OFF + SEQ_SIZE; AB_SIZE = 4*11*33*1024
WO_OFF = AB_OFF + AB_SIZE; WO_SIZE = 16*50*1024
FL_OFF = 16*1024*1024; FL_SIZE = 1536*128
FA, FB, FL1 = 0, 256, 1280
X_SIZE = 2048*1280; OUT_SIZE = 2048*2560
HUGE = 0x40000000
QSCALE = (20 ** -0.5) * 1.4426950408889634
NDMA = 155; LPAIR = 5184
LDS_PROG = 31*LPAIR
def lds_tile(t): return ((t-2)>>1)*LPAIR + ((t-2)&1)*TKV
def need(tile): return ((tile-1)*TKV + 4095)//4096
NEED = [need(4), need(7), need(15), need(23), 39]
POLL_MAX = 200000
def f32bits(x): return struct.unpack('<I', struct.pack('<f', x))[0]
OPT = {}
FLS = ['', ' sc1', ' nt', ' sc0 sc1', ' sc1 nt']
def FLP(): return FLS[OPT.get('flp', 0)]
def FLF(): return FLS[OPT.get('flf', 1)]

sWAVE = 3
pX, pW, pWO, pBX, pOUT, pDBG, pWS = 4, 6, 8, 10, 12, 14, 16
sNON = 18
sFL = 20
sXCD, sSLOT = 24, 25
STG = 36864
NS = 4

def poll(a, vaddr, vtmp, cnt=40, sleep=1):
    l = a.label("L_poll"); d = a.label("L_pollok")
    a(f"s_mov_b32 s{cnt}, {POLL_MAX}")
    a(f"{l}:")
    a(f"buffer_load_dwordx2 {vr(vtmp,2)}, v{vaddr}, {sr(sFL,4)}, 0 offen sc1")
    a("s_waitcnt vmcnt(0)")
    a(f"v_cmp_ne_u64 vcc, {sr(sNON,2)}, {vr(vtmp,2)}")
    a(f"s_sub_u32 s{cnt}, s{cnt}, 1")
    a(f"s_cbranch_vccz {d}")
    a(f"s_cmp_eq_u32 s{cnt}, 0")
    a(f"s_cbranch_scc1 {d}")
    if sleep: a(f"s_sleep {sleep}")
    a(f"s_branch {l}")
    a(f"{d}:")

def get_nonce(a, vt, srd=28, cnt=40):
    make_srd(a, srd, pDBG, 0, 256)
    l = a.label("L_non"); d = a.label("L_nonok")
    a(f"v_mov_b32 v{vt}, 0")
    a(f"s_mov_b32 s{cnt}, {POLL_MAX}")
    a(f"{l}:")
    a(f"buffer_load_dwordx2 {vr(vt+2,2)}, v{vt}, {sr(srd,4)}, 0 offen sc1")
    a("s_waitcnt vmcnt(0)")
    a(f"v_readfirstlane_b32 s{sNON}, v{vt+2}")
    a(f"v_readfirstlane_b32 s{sNON+1}, v{vt+3}")
    a(f"s_sub_u32 s{cnt}, s{cnt}, 1")
    a(f"s_cmp_lg_u32 s{sNON}, 0")
    a(f"s_cbranch_scc1 {d}")
    a(f"s_cmp_eq_u32 s{cnt}, 0")
    a(f"s_cbranch_scc1 {d}")
    a("s_sleep 2")
    a(f"s_branch {l}")
    a(f"{d}:")

def set_flag(a, sidx, vt, also=None):
    for i in range(4): a(f"v_mov_b32 v{vt+i}, s{sNON+(i&1)}")
    a(f"v_lshlrev_b32 v{vt+4}, 4, v1")
    a("s_mov_b64 exec, 0xff")
    if also is not None:
        a(f"s_add_u32 s41, s{sidx}, {also}")
        a(f"buffer_store_dwordx4 {vr(vt,4)}, v{vt+4}, {sr(sFL,4)}, s41 offen")
    a(f"buffer_store_dwordx4 {vr(vt,4)}, v{vt+4}, {sr(sFL,4)}, s{sidx} offen sc1")
    a("s_mov_b64 exec, -1")

def gemm_loader(a):
    sA, sB = 28, 32
    a("L_loader:")
    a(f"s_sub_u32 s44, s{sWAVE}, 4")
    a("v_lshrrev_b32 v2, 3, v1")
    a("s_lshl_b32 s40, s44, 3")
    a("v_add_u32 v2, s40, v2")
    a("v_mul_u32_u24 v2, 1280, v2")
    a("v_lshrrev_b32 v3, 4, v1")
    a("s_and_b32 s40, s44, 1")
    a("s_lshl_b32 s40, s40, 2")
    a("v_or_b32 v4, s40, v3")
    a("v_and_b32 v5, 7, v1")
    a("v_xor_b32 v4, v4, v5")
    a("v_lshl_add_u32 v10, v4, 4, v2")
    a("s_lshl_b32 s45, s44, 10")
    a(f"s_lshr_b32 s40, s{sSLOT}, 3")
    a(f"s_mul_i32 s40, s40, {OPT.get('ra', 5)}")
    a(f"s_and_b32 s41, s{sSLOT}, 7")
    a(f"s_mul_i32 s41, s41, {OPT.get('rb', 5)}")
    a("s_add_u32 s40, s40, s41")
    a(f"s_mul_i32 s41, s{sXCD}, {OPT.get('rc', 3)}")
    a("s_add_u32 s40, s40, s41")
    a("s_mul_i32 s41, s40, 6554")
    a("s_lshr_b32 s41, s41, 16")
    a("s_mul_i32 s41, s41, 10")
    a("s_sub_u32 s47, s40, s41")
    a("s_lshl_b32 s40, s44, 4")
    a("v_lshrrev_b32 v2, 2, v1")
    a("v_add_u32 v2, s40, v2")
    a("v_mul_u32_u24 v2, 3840, v2")
    a("v_and_b32 v3, 3, v1")
    a("v_lshrrev_b32 v4, 5, v1")
    a("v_lshlrev_b32 v4, 1, v4")
    a("v_xor_b32 v3, v3, v4")
    a("v_lshl_add_u32 v11, v3, 4, v2")
    a("s_mul_i32 s46, s44, 5120")
    a("s_mul_i32 s50, s26, 163840")
    a("s_mul_i32 s51, s27, 320")
    a("s_sub_u32 s52, 2457600, s51")
    a("s_waitcnt lgkmcnt(0)")
    make_srd(a, sA, pX, "s50", 163840)
    def issue_x(c):
        sl = c % NS
        a("s_lshl_b32 s48, s47, 7")
        for j in range(4):
            a(f"s_add_u32 m0, s45, {sl*STG + j*4096}")
            if j: a(f"s_add_u32 s48, s48, 40960")
            else: a("s_mul_i32 s49, s47, 245760")
            a(f"buffer_load_dwordx4 v10, {sr(sA,4)}, s48 offen lds")
    def issue_w(c):
        sl = c % NS
        for i in range(5):
            a(f"s_add_u32 m0, s46, {sl*STG + 16384 + i*1024 - i*64}")
            if i == 0:
                a("s_add_u32 s47, s47, 1")
            elif i == 1:
                a("s_cmp_eq_u32 s47, 10")
                a("s_cmov_b32 s47, 0")
            else: a("s_nop 0")
            a(f"buffer_load_dwordx4 v11, {sr(sB,4)}, s49 offen offset:{i*64} lds")
    def issue(c): issue_x(c); issue_w(c)
    stamp(a, 12, 1)
    issue_x(0)
    stamp(a, 13, 1)
    make_srd(a, sB, pW, "s51", "s52")
    issue_w(0)
    stamp(a, 14, 1)
    issued = 1
    pre = OPT.get('pre', 2)
    for c in range(1, pre): issue(c); issued += 1
    for c in range(10):
        a(f"s_waitcnt vmcnt({9*(issued-c-1)})")
        if c in (0, 9): stamp(a, {0: 2, 9: 5}[c])
        stamp(a, c + 1, 1)
        a("s_barrier")
        if c == 0: stamp(a, 11, 1)
        while issued < min(10, c + 1 + (OPT.get('dep', 2) if c < OPT.get('depsw', 10) else 3)): issue(issued); issued += 1
    make_srd(a, sFL, pWS, FL_OFF, FL_SIZE)
    get_nonce(a, 2)
    a("s_branch L_A_done")

AX, AWA, EA = 8, 10, 16
FR = 24
ACC = 96
def gemm_loop(a, isv, epi):
    XB = [FR, FR + 36, 176, 212]
    def rdx(kk, m, b): sl, st = divmod(kk, 2); return f"ds_read_b128 {vr(b+4*m,4)}, v{AX+st} offset:{sl*STG + m*2048}"
    def rdw(kk, T, b): sl, st = divmod(kk, 2); return [f"ds_read_b64_tr_b16 {vr(b+16+4*T+2*t,2)}, v{AWA+T} offset:{sl*STG + st*10240 + t*256}" for t in range(2)]
    def reads(kk, b):
        r = rdw(kk, 0, b) + [rdx(kk, m, b) for m in range(4)]
        for T in range(1, 5): r += rdw(kk, T, b)
        return r
    def mfma(b, T, m):
        d = vr(ACC + 16*T + 4*m, 4); w = vr(b + 16 + 4*T, 4); x = vr(b + 4*m, 4)
        return f"v_mfma_f32_16x16x32_bf16 {d}, {x}, {w}, {d}" if isv else f"v_mfma_f32_16x16x32_bf16 {d}, {w}, {x}, {d}"
    for r in range(80): a(f"v_mov_b32 v{ACC+r}, 0")
    a(f"s_mov_b32 s40, {2*STG}")
    a("s_mov_b32 s41, 4")
    a("s_barrier")
    stamp(a, 2)
    for r in reads(0, XB[0]): a(r)
    lp = a.label("L_gemm"); last = a.label("L_gemm_last")
    a(".p2align 3")
    a(f"{lp}:")
    for kk in range(4):
        a("s_waitcnt lgkmcnt(0)")
        ms = [mfma(XB[kk & 1], T, m) for T in range(5) for m in range(4)]
        a(ms[0])
        if kk == 1: a("s_barrier")
        if kk == 3:
            for i in range(2): a(f"v_add_u32 v{AX+i}, s40, v{AX+i}")
            for i in range(5): a(f"v_add_u32 v{AWA+i}, s40, v{AWA+i}")
            a("s_sub_u32 s40, 0, s40")
            a("s_sub_u32 s41, s41, 1")
            a("s_barrier")
            a("s_cmp_eq_u32 s41, 0")
            a(f"s_cbranch_scc1 {last}")
        nx = reads((kk + 1) & 3, XB[(kk + 1) & 1])
        for i in range(1, 20):
            if i - 1 < len(nx): a(nx[i-1])
            a(ms[i])
    a(f"s_branch {lp}")
    a(f"{last}:")
    bufs = [XB[0], XB[2], XB[3], XB[1]]
    def order(k0):
        r = []
        for k in (k0, k0 + 1): r += rdw(k, 0, bufs[k]) + [rdx(k, m, bufs[k]) for m in range(4)]
        return r
    first = order(0)
    rest01 = [x for T in range(1, 5) for k in (0, 1) for x in rdw(k, T, bufs[k])]
    second = order(2)
    rest23 = [[x for k in (2, 3) for x in rdw(k, T, bufs[k])] for T in range(5)]
    ms = [mfma(XB[1], T, m) for T in range(5) for m in range(4)]
    q = first + rest01
    pos = 0
    for i in range(1, 20):
        for _ in range(2 if i < 10 else 1):
            if pos < len(q): a(q[pos]); pos += 1
        a(ms[i])
    a("s_barrier")
    q = second + rest23[1] + rest23[2] + rest23[3] + rest23[4]
    a("s_waitcnt lgkmcnt(0)")
    pos = 0
    for T in range(5):
        e = epi(T - 1) if T >= 1 else []
        per = -(-len(e) // 12)
        for i in range(16):
            if i == 8 and T < 2: a(f"s_waitcnt lgkmcnt({min(15, pos - (12 + 4*T))})" if T == 0 else "s_waitcnt lgkmcnt(0)")
            a(mfma(bufs[i >> 2], T, i & 3))
            for _ in range(2):
                if pos < len(q): a(q[pos]); pos += 1
            if i >= 4:
                for x in e[per*(i-4):per*(i-3)]: a(x)
    stamp(a, 5)
    a("s_nop 7")
    for x in epi(4): a(x)

def gemm_compute(a):
    a("L_compute:")
    a("v_and_b32 v2, 15, v1")
    a("v_lshrrev_b32 v3, 4, v1")
    a(f"s_and_b32 s42, s{sWAVE}, 1")
    a(f"s_lshr_b32 s43, s{sWAVE}, 1")
    a("s_lshl_b32 s40, s42, 6")
    a("v_add_u32 v4, s40, v2")
    a("v_lshlrev_b32 v4, 7, v4")
    a("v_lshrrev_b32 v5, 1, v2")
    a("v_xor_b32 v5, v5, v3")
    a(f"v_lshl_add_u32 v{AX}, v5, 4, v4")
    a(f"v_xor_b32 v{AX+1}, 64, v{AX}")
    a("v_lshrrev_b32 v4, 5, v1")
    a("v_mul_u32_u24 v4, 5120, v4")
    a("v_and_b32 v5, 1, v3")
    a("v_lshrrev_b32 v6, 2, v2")
    a("v_lshl_add_u32 v6, v5, 3, v6")
    a("v_lshl_add_u32 v4, v6, 6, v4")
    a("v_add_u32 v4, 16384, v4")
    a("v_lshlrev_b32 v5, 2, v5")
    a("v_and_b32 v6, 3, v1")
    a("s_mul_i32 s44, s43, 20")
    def waddr(T, g):
        a(f"v_and_b32 v15, 7, v{g}")
        a("v_xor_b32 v15, v15, v5")
        a("v_lshl_add_u32 v15, v15, 3, v4")
        a(f"v_lshrrev_b32 v{g}, 3, v{g}")
        a(f"v_lshl_add_u32 v{AWA+T}, v{g}, 10, v15")
    a("s_lshl_b32 s45, s26, 2")
    a("s_lshl_b32 s42, s42, 1")
    a("s_add_u32 s42, s42, s45")
    a("s_and_b32 s45, s27, 3")
    a("s_lshl_b32 s45, s45, 3")
    a("s_lshl_b32 s43, s43, 2")
    a("s_add_u32 s43, s43, s45")
    a("s_cmp_ge_u32 s27, 8")
    a("s_cbranch_scc1 L_compute_v")
    for T in range(5):
        if T < 4:
            a(f"s_add_u32 s45, s44, {5*T}")
            a("v_add_u32 v7, s45, v6")
        else:
            a("s_add_u32 s45, s44, 4")
            a("v_mad_u32_u24 v7, v6, 5, s45")
        waddr(T, 7)
    a("s_cmp_ge_u32 s27, 4")
    for reg, k, q in [(44, KV_HEAD, Q_HEAD), (45, TKV, TQ), (46, f32bits(1.0), f32bits(QSCALE)), (47, KV_OFF, Q_OFF), (48, KV_SIZE, Q_SIZE)]:
        a(f"s_mov_b32 s{reg}, {q}")
        a(f"s_cmov_b32 s{reg}, {k}")
    make_srd(a, 28, pWS, "s47", "s48")
    a("s_mul_i32 s47, s43, s44")
    a("s_mul_i32 s48, s42, s45")
    a("s_add_u32 s47, s47, s48")
    a(f"v_lshlrev_b32 v{EA}, 4, v1")
    a(f"v_add_u32 v{EA+1}, s45, v{EA}")
    a("v_lshrrev_b32 v4, 5, v1")
    a("v_mul_lo_u32 v4, v4, s44")
    a("v_and_b32 v5, 31, v1")
    a("v_lshlrev_b32 v5, 3, v5")
    a("v_lshl_add_u32 v4, v4, 1, v5")
    a(f"v_add_u32 v{EA+2}, 1024, v4")
    a(f"v_add_u32 v{EA+3}, s45, v{EA+2}")
    a("s_mov_b32 s48, s47")
    a("s_add_u32 s49, s47, s44")
    def epi_qk(T):
        b = ACC + 16*T; e = []
        for r in range(16): e.append(f"v_mul_f32 v{b+r}, s46, v{b+r}")
        for r in range(8): e.append(f"v_cvt_pk_bf16_f32 v{b+r}, v{b+2*r}, v{b+2*r+1}")
        e.append("s_nop 0")
        for u in range(2):
            e.append(f"v_permlane16_swap_b32 v{b+4*u}, v{b+4*u+2}")
            e.append(f"v_permlane16_swap_b32 v{b+4*u+1}, v{b+4*u+3}")
        for u in range(2):
            if T < 4: e.append(f"buffer_store_dwordx4 {vr(b+4*u,4)}, v{EA+u}, s[28:31], s48 offen sc1")
            else:
                e.append(f"buffer_store_dwordx2 {vr(b+4*u,2)}, v{EA+2+u}, s[28:31], s47 offen sc1")
                e.append(f"buffer_store_dwordx2 {vr(b+4*u+2,2)}, v{EA+2+u}, s[28:31], s49 offen sc1")
        if T < 3: e.append("s_add_u32 s48, s48, s44")
        return e
    gemm_loop(a, False, epi_qk)
    a("s_branch L_A_done")
    a("L_compute_v:")
    for T in range(5):
        a(f"s_add_u32 s45, s44, {4*T}")
        a("v_add_u32 v7, s45, v6")
        waddr(T, 7)
    make_srd(a, 28, pWS, KV_OFF, KV_SIZE)
    a(f"s_mov_b32 s44, {KV_HEAD}")
    a("s_mul_i32 s47, s43, s44")
    a(f"s_mul_i32 s48, s42, {TKV}")
    a("s_add_u32 s47, s47, s48")
    a("v_lshrrev_b32 v7, 5, v1")
    a("v_mul_u32_u24 v7, 640, v7")
    a("v_and_b32 v15, 1, v3")
    a("v_lshl_add_u32 v7, v15, 6, v7")
    a("v_add_u32 v7, 1280, v7")
    for T in range(5):
        a(f"v_add_u32 v4, {16*T}, v2")
        a("v_mul_u32_u24 v5, 3277, v4")
        a("v_lshrrev_b32 v5, 16, v5")
        a("v_mul_u32_u24 v6, 20, v5")
        a("v_sub_u32 v4, v4, v6")
        a("v_and_b32 v6, 28, v4")
        a("v_add_u32 v4, v4, v6")
        a("v_mul_lo_u32 v5, v5, s44")
        a("v_lshl_add_u32 v4, v4, 4, v5")
        a(f"v_add_u32 v{EA+T}, v7, v4")
    def epi_v(T):
        b = ACC + 16*T; e = []
        for r in range(8): e.append(f"v_cvt_pk_bf16_f32 v{b+r}, v{b+2*r}, v{b+2*r+1}")
        e.append("s_nop 0")
        for u in range(2):
            e.append(f"v_permlane32_swap_b32 v{b+4*u}, v{b+4*u+2}")
            e.append(f"v_permlane32_swap_b32 v{b+4*u+1}, v{b+4*u+3}")
        for u in range(2): e.append(f"buffer_store_dwordx4 {vr(b+4*u,4)}, v{EA+T}, s[28:31], s47 offen offset:{u*TKV} sc1")
        return e
    gemm_loop(a, True, epi_v)
    a("s_branch L_A_done")

SWD = [42, 43, 44, 56, 57]
def side_work(a):
    a("s_sub_u32 s53, s2, 192")
    a("s_mul_i32 s53, s53, 3")
    a(f"s_add_u32 s53, s53, s{sWAVE}")
    a("s_sub_u32 s53, s53, 5")
    a("v_lshlrev_b32 v22, 4, v1")
    make_srd(a, 32, pWO, 0, 819200)
    make_srd(a, 28, pWS, SEQ_OFF, WO_OFF + WO_SIZE - SEQ_OFF)
    WR = 32
    for n in range(5):
        if n == 4:
            a("s_cmp_ge_u32 s53, 32")
            a("s_cbranch_scc1 L_sw_wo_ld")
        a(f"s_add_u32 s40, s53, {192*n}")
        a("s_mul_i32 s41, s40, 1639")
        a("s_lshr_b32 s41, s41, 16")
        a("s_mul_i32 s58, s41, 40")
        a("s_sub_u32 s58, s40, s58")
        a("s_mul_i32 s59, s58, 20")
        a("s_mul_i32 s55, s58, 80")
        a("s_sub_u32 s55, s55, %d" % (32*80 - 16))
        a("s_cmp_lt_u32 s58, 32")
        a("s_cselect_b32 s45, 4, 40")
        a("s_cselect_b32 s59, s59, s55")
        a(f"s_mov_b32 s46, {20*1280}")
        a(f"s_cmov_b32 s46, {8*1280}")
        a("v_mul_u32_u24 v4, s45, v3")
        a("v_add_u32 v4, s59, v4")
        a("v_mul_u32_u24 v4, 1280, v4")
        a("s_lshl_b32 s59, s41, 6")
        a("v_lshl_add_u32 v4, v2, 1, v4")
        a("v_add_u32 v4, s59, v4")
        b = WR + 8*n
        for grp in range(2):
            so = "s46" if grp else "0"
            for i in range(4):
                a(f"buffer_load_ushort v{b+4*grp+i}, v4, s[32:35], {so} offen offset:{i*1280}")
        a("s_mul_i32 s59, s41, 52")
        a("s_lshr_b32 s59, s59, 8")
        a("s_mul_i32 s55, s59, 5")
        a("s_sub_u32 s55, s41, s55")
        a("s_mul_i32 s45, s58, 26")
        a("s_lshr_b32 s45, s45, 8")
        a("s_mul_i32 s47, s45, 10")
        a("s_sub_u32 s47, s58, s47")
        a("s_add_u32 s58, s58, 10")
        a("s_cmp_lt_u32 s55, 4")
        a("s_cselect_b32 s55, s55, s45")
        a("s_cselect_b32 s58, s58, s47")
        a("s_lshl_b32 s59, s59, 2")
        a("s_add_u32 s59, s59, s55")
        a("s_mul_i32 s59, s59, 50")
        a("s_add_u32 s59, s59, s58")
        a("s_lshl_b32 s59, s59, 10")
        a(f"s_add_u32 s{SWD[n]}, s59, {WO_OFF - SEQ_OFF}")
    a("L_sw_wo_ld:")
    G = 80
    a("s_mov_b32 s54, s53")
    a("v_lshlrev_b32 v23, 4, v3")
    a(f"s_mov_b32 s55, {f32bits(1.0/2048)}")
    a("v_cmp_gt_u32 vcc, 32, v1")
    a("L_sw_gen:")
    a("s_lshr_b32 s41, s54, 5")
    a("s_and_b32 s58, s54, 31")
    a("s_lshr_b32 s59, s41, 1")
    a("s_lshl_b32 s59, s59, 6")
    a("s_and_b32 s47, s41, 1")
    a("s_add_u32 s59, s59, s47")
    a("v_lshl_add_u32 v4, v2, 1, s59")
    a("s_lshr_b32 s47, s58, 4")
    a("s_mul_i32 s45, s41, 65")
    a("s_add_u32 s45, s45, s58")
    a("s_add_u32 s46, s45, 33")
    a("s_add_u32 s45, s45, s47")
    a("s_lshl_b32 s45, s45, 10")
    a("s_lshl_b32 s46, s46, 10")
    a("s_and_b32 s48, s58, 15")
    a("s_lshl_b32 s48, s48, 5")
    a("s_add_u32 s48, s48, s47")
    a("v_add_u32 v5, s48, v23")
    a("v_mul_u32_u24 v5, v4, v5")
    a("v_cvt_f32_u32 v5, v5")
    a("v_cvt_f32_u32 v4, v4")
    for i in range(8):
        if i: a("v_fma_f32 v5, 2.0, v4, v5")
        a(f"v_mul_f32 v{G+i}, s55, v5")
    for i in range(8): a(f"v_fract_f32 v{G+i}, v{G+i}")
    for i in range(8): a(f"v_cos_f32 v{G+8+i}, v{G+i}")
    a("s_cmp_lg_u32 s58, 0")
    a("s_cbranch_scc1 L_gen_plain")
    a("v_mul_f32 v6, 0x3e800000, v4")
    a("v_fract_f32 v6, v6")
    a(f"v_cndmask_b32 v{G}, v{G}, v6, vcc")
    a("v_cos_f32 v7, v6")
    a(f"v_mov_b32 v{G+25}, 0")
    a(f"v_mov_b32 v{G+26}, 0")
    a(f"v_mov_b32 v{G+27}, 0")
    a("v_cndmask_b32 v7, 0, v7, vcc")
    a(f"v_cvt_pk_bf16_f32 v{G+24}, v7, 0")
    a(f"s_add_u32 s48, s45, {16*1024}")
    a(f"buffer_store_dwordx4 {vr(G+24,4)}, v22, s[28:31], s48 offen sc1")
    a("L_gen_plain:")
    for i in range(8): a(f"v_sin_f32 v{G+i}, v{G+i}")
    for i in range(4): a(f"v_cvt_pk_bf16_f32 v{G+16+i}, v{G+8+2*i}, v{G+9+2*i}")
    for i in range(4): a(f"v_cvt_pk_bf16_f32 v{G+20+i}, v{G+2*i}, v{G+1+2*i}")
    a(f"buffer_store_dwordx4 {vr(G+16,4)}, v22, s[28:31], s45 offen sc1")
    a(f"buffer_store_dwordx4 {vr(G+20,4)}, v22, s[28:31], s46 offen sc1")
    a("s_add_u32 s54, s54, 192")
    a("s_cmp_lt_u32 s54, 544")
    a("s_cbranch_scc1 L_sw_gen")

def side_work_finish(a):
    WR = 32
    l = a.label("L_sw_fin")
    a("s_waitcnt vmcnt(4)")
    for n in range(5):
        if n == 4:
            a("s_cmp_ge_u32 s53, 32")
            a(f"s_cbranch_scc1 {l}")
        b = WR + 8*n
        for i in range(4): a(f"v_lshl_or_b32 v{b+i}, v{b+2*i+1}, 16, v{b+2*i}")
        a(f"buffer_store_dwordx4 {vr(b,4)}, v22, s[28:31], s{SWD[n]} offen sc1")
    a(f"{l}:")

def prep(a):
    a("L_prep:")
    a(f"s_sub_u32 s40, s{sSLOT}, 24")
    a("s_and_b32 s27, s40, 1")
    a("s_lshr_b32 s26, s40, 1")
    a("s_lshl_b32 s26, s26, 3")
    a(f"s_add_u32 s26, s26, s{sXCD}")
    make_srd(a, 36, pWS, AB_OFF, AB_SIZE)
    a(f"s_cmp_ge_u32 s{sWAVE}, 5")
    a("s_cbranch_scc1 L_fold_skip")
    make_srd(a, 28, pBX, 0, X_SIZE)
    a("s_lshr_b32 s42, s26, 1")
    a("s_lshl_b32 s42, s42, 5")
    a("s_and_b32 s43, s26, 1")
    a("s_add_u32 s42, s42, s43")
    a("v_lshrrev_b32 v2, 3, v1")
    a("v_and_b32 v3, 7, v1")
    a("v_lshl_add_u32 v4, v2, 1, s42")
    a("v_mul_u32_u24 v5, 1280, v4")
    a("v_lshlrev_b32 v6, 4, v3")
    a("v_add_u32 v10, v5, v6")
    a("v_sub_u32 v7, v6, v5")
    a(f"s_lshl_b32 s44, s27, 1")
    a(f"s_add_u32 s44, s44, s{sWAVE}")
    a("s_cmp_ge_u32 s44, 5")
    a("s_cselect_b32 s45, 5, 0")
    a("s_sub_u32 s44, s44, s45")
    a("s_lshl_b32 s44, s44, 7")
    a("s_add_u32 s45, s44, 20480")
    a(f"v_add_u32 v11, {2048*1280}, v7")
    a(f"v_add_u32 v12, {1024*1280}, v7")
    a("v_cmp_ne_u32 vcc, 0, v4")
    a(f"v_mov_b32 v8, {HUGE}")
    a(f"v_add_u32 v9, {1024*1280}, v10")
    a("v_cndmask_b32 v13, v8, v9, vcc")
    LD = 32
    for hf in range(2):
        for r in range(4): a(f"buffer_load_dwordx4 {vr(LD+8*r+4*hf,4)}, v{10+r}, s[28:31], s44 offen offset:{640*hf}")
    a("v_subrev_u32 v11, 20480, v11")
    a("v_subrev_u32 v12, 20480, v12")
    for hf in range(2):
        for r, (vv, so) in enumerate([(10, 45), (11, 44), (12, 44), (9, 45)]):
            a(f"buffer_load_dwordx4 {vr(LD+32+8*r+4*hf,4)}, v{vv}, s[28:31], s{so} offen offset:{640*hf}")
    XL = 96
    a("s_cmp_lg_u32 s26, 0")
    a("s_cbranch_scc1 L_fold_nx")
    a(f"v_add_u32 v14, {512*1280}, v6")
    a(f"v_add_u32 v15, {1536*1280}, v6")
    a("v_cndmask_b32 v14, v14, v8, vcc")
    a("v_cndmask_b32 v15, v15, v8, vcc")
    for r in range(2):
        for hf in range(2):
            a(f"buffer_load_dwordx4 {vr(XL+8*r+4*hf,4)}, v{14+r}, s[28:31], s44 offen offset:{640*hf}")
    a("L_fold_nx:")
    a("v_and_b32 v5, 3, v2")
    a("v_lshrrev_b32 v4, 2, v2")
    a("v_lshl_or_b32 v5, v4, 3, v5")
    a("v_xor_b32 v5, v5, v3")
    a("v_and_b32 v4, 1, v3")
    a("v_lshl_add_u32 v5, v4, 5, v5")
    a("v_lshlrev_b32 v5, 4, v5")
    a("v_lshrrev_b32 v4, 1, v3")
    a("v_lshl_add_u32 v5, v4, 10, v5")
    a("s_lshl_b32 s45, s44, 5")
    a("v_add_u32 v16, s45, v5")
    a("v_xor_b32 v18, 64, v16")
    a("v_add_u32 v5, s44, v6")
    a("v_add_u32 v17, 40960, v5")
    a("v_lshlrev_b32 v6, 4, v1")
    a("v_add_u32 v6, 43008, v6")
    a("v_cndmask_b32 v17, v17, v6, vcc")
    a("L_fold_skip:")
    a("v_and_b32 v2, 31, v1")
    a("v_lshrrev_b32 v3, 5, v1")
    a("v_lshlrev_b32 v15, 4, v1")
    a(f"s_lshr_b32 s40, s{sWAVE}, 1")
    a("s_add_u32 s40, s40, 2")
    a(f"s_and_b32 s41, s{sWAVE}, 1")
    a(f"s_cmp_lt_u32 s{sWAVE}, 4")
    a(f"s_cselect_b32 s49, s{sWAVE}, s40")
    a("s_cselect_b32 s50, 0, s41")
    a("s_lshl_b32 s54, s49, 6")
    a("s_add_u32 s54, s54, s27")
    a("v_lshl_add_u32 v4, v2, 1, s54")
    AU = 10; SB = [[176, 184], [192, 200]]; HB = [[208, 212], [216, 220]]; UB = [72, 84, 96, 108]; ACC3 = [224, 240, 32]; PH = 112
    a("s_mul_i32 s52, s50, 20480")
    for jj in range(4):
        a(f"v_xor_b32 v5, {2*jj}, v3")
        a("v_xor_b32 v5, v5, v2")
        a("v_lshl_add_u32 v5, v3, 5, v5")
        a("v_lshlrev_b32 v5, 4, v5")
        a(f"v_add_u32 v5, {jj*1024}, v5")
        a(f"v_add_u32 v{AU+jj}, s52, v5")
    a(f"v_lshlrev_b32 v{AU+4}, 4, v3")
    a(f"v_add_u32 v{AU+4}, 40960, v{AU+4}")
    a(f"s_mov_b32 s52, {f32bits(1.0/640)}")
    a("s_cmp_lg_u32 s50, 0")
    a("s_cselect_b32 s53, 0x3e800000, 0")
    a("v_lshlrev_b32 v5, 3, v3")
    a("v_mul_u32_u24 v5, v4, v5")
    a("v_cvt_f32_u32 v5, v5")
    a("v_cvt_f32_u32 v4, v4")
    a("v_mul_f32 v6, 0x41800000, v4")
    for i in range(8):
        if i: a("v_add_f32 v5, v5, v4")
        a(f"v_mul_f32 v{PH+i}, s52, v5")
        a("v_sub_f32 v7, v5, v6")
        a(f"v_mul_f32 v{PH+8+i}, s52, v7")
    a("v_mul_f32 v6, s52, v6")
    a("v_fract_f32 v6, v6")
    for i in range(16): a(f"v_fract_f32 v{PH+i}, v{PH+i}")
    a("v_cos_f32 v19, v6")
    for i in range(16): a(f"v_sin_f32 v{SB[1][0]+i}, v{PH+i}")
    for i in range(16): a(f"v_subrev_f32 v{PH+i}, s53, v{PH+i}")
    for i in range(16): a(f"v_cos_f32 v{SB[0][0]+i}, v{PH+i}")
    a("v_add_f32 v19, v19, v19")
    for r in range(32): a(f"v_mov_b32 v{224+r}, 0")
    def cvts(jb, g): return [f"v_cvt_pk_bf16_f32 v{HB[jb][g]+d}, v{SB[jb][g]+2*d}, v{SB[jb][g]+2*d+1}" for d in range(4)]
    def rot(jb, cur): return [f"v_fma_f32 v{SB[jb][cur^1]+i}, v19, v{SB[jb][cur]+i}, -v{SB[jb][cur^1]+i}" for i in range(8)]
    for x in cvts(0, 0) + cvts(1, 0): a(x)
    a(f"s_cmp_lt_u32 s{sWAVE}, 5")
    a("s_cbranch_scc1 L_fold_go")
    side_work(a)
    side_work_finish(a)
    a("s_branch L_fold_done")
    a("L_fold_go:")
    a("s_cmp_lg_u32 s27, 0")
    a("s_cselect_b32 s46, -1.0, 1.0")
    a("s_mov_b32 s47, s46")
    a("s_mov_b32 s48, 0xffff0000")
    T = 112; R = 144; H = 20
    ng = "neg_lo:[0,1] neg_hi:[0,1]"
    def dfold(src, dst):
        for d in range(4):
            a(f"v_lshlrev_b32 v{dst+2*d}, 16, v{src+d}")
            a(f"v_and_b32 v{dst+2*d+1}, s48, v{src+d}")
            a(f"v_lshlrev_b32 v{H+2*(d&1)}, 16, v{src+4+d}")
            a(f"v_and_b32 v{H+2*(d&1)+1}, s48, v{src+4+d}")
            a(f"v_pk_fma_f32 {vr(dst+2*d,2)}, {vr(H+2*(d&1),2)}, s[46:47], {vr(dst+2*d,2)}")
    for n in range(2):
        a("s_waitcnt vmcnt(%d)" % (8 if n == 0 else 0))
        if n == 0: stamp(a, 9)
        b = LD + 32*n
        for r in range(4): dfold(b + 8*r, T + 8*r)
        for d in range(4):
            p = lambda r: vr(T+8*r+2*d, 2)
            q = lambda r: vr(R+8*r+2*d, 2)
            a(f"v_pk_add_f32 {q(0)}, {p(0)}, {p(1)}")
            a(f"v_pk_add_f32 {q(1)}, {p(0)}, {p(1)} {ng}")
            a(f"v_pk_add_f32 {q(2)}, {p(2)}, {p(3)}")
            a(f"v_pk_add_f32 {q(3)}, {p(2)}, {p(3)} {ng}")
            a(f"v_pk_add_f32 {p(0)}, {q(0)}, {q(2)}")
            a(f"v_pk_add_f32 {p(1)}, {q(0)}, {q(2)} {ng}")
            a(f"v_pk_add_f32 {p(2)}, {q(1)}, {q(3)} {ng}")
            a(f"v_pk_add_f32 {p(3)}, {q(1)}, {q(3)}")
        if n == 0:
            a("s_cmp_lg_u32 s26, 0")
            a("s_cbranch_scc1 L_fold_sp")
            a("s_waitcnt vmcnt(0)")
            dfold(XL, R); dfold(XL + 8, R + 8)
            for d in range(4):
                a(f"v_pk_add_f32 {vr(R+16+2*d,2)}, {vr(R+2*d,2)}, {vr(R+8+2*d,2)}")
                a(f"v_pk_add_f32 {vr(R+2*d,2)}, {vr(R+2*d,2)}, {vr(R+8+2*d,2)} {ng}")
            for e in range(8): a(f"v_cndmask_b32 v{T+24+e}, v{R+e}, v{T+24+e}, vcc")
            for d in range(4): a(f"v_cvt_pk_bf16_f32 v{R+d}, v{R+16+2*d}, v{R+17+2*d}")
            a(f"ds_write_b128 v17, {vr(R,4)}")
            a("L_fold_sp:")
        for i in range(4):
            for d in range(4): a(f"v_cvt_pk_bf16_f32 v{b+4*i+d}, v{T+8*i+2*d}, v{T+8*i+2*d+1}")
            a(f"ds_write_b128 v{16+2*n}, {vr(b+4*i,4)} offset:{(i>>1)*20480 + (i&1)*256}")
    a("L_fold_done:")
    for r in range(16): a(f"v_mov_b32 v{32+r}, 0")
    a("s_waitcnt lgkmcnt(0)")
    stamp(a, 14)
    a("s_barrier")
    stamp(a, 2)
    a("s_mul_i32 s42, s27, 6")
    a("s_add_u32 s42, s42, s49")
    a("s_cmp_gt_u32 s42, 10")
    a("s_cbranch_scc1 L_prep_done")
    def ureads(j, kinds):
        jj = j & 3; o = (j >> 2) * 4096; b = UB[j & 3]; r = []
        for k in kinds:
            if k == 2: r.append(f"ds_read_b128 {vr(b+8,4)}, v{AU+4} offset:{j*32}")
            else: r.append(f"ds_read_b128 {vr(b+4*k,4)}, v{AU+jj} offset:{o + k*20480}")
        return r
    a("s_mov_b32 s45, 5")
    a("s_or_b32 s51, s26, s50")
    a("s_cmp_eq_u32 s51, 0")
    a("s_cselect_b32 s40, 1, 0")
    a(f"s_cmp_lt_u32 s{sWAVE}, 4")
    a("s_cselect_b32 s41, 2, 0")
    a("s_add_u32 s40, s40, s41")
    variants = [[0], [0, 2], [0, 1], [0, 1, 2]]
    for v in range(1, 4):
        a(f"s_cmp_eq_u32 s40, {v}")
        a(f"s_cbranch_scc1 L_f1_v{v}")
    for v, kinds in enumerate(variants):
        a(f"L_f1_v{v}:")
        nm = len(kinds)
        for x in ureads(0, kinds) + ureads(1, kinds): a(x)
        a(f"L_f1_loop{v}:")
        for jj in range(4):
            buf = jj & 1
            va = rot(0, buf) + cvts(0, buf ^ 1)
            if 1 in kinds: va = rot(0, buf) + rot(1, buf) + cvts(0, buf ^ 1) + cvts(1, buf ^ 1)
            rd = ureads(jj + 2, kinds)
            a(f"s_waitcnt lgkmcnt({nm})")
            a("s_nop 0")
            per = len(va) // nm
            for m, k in enumerate(kinds):
                d = vr(ACC3[k], 16)
                a(f"v_mfma_f32_32x32x16_bf16 {d}, {vr(UB[jj]+4*k,4)}, {vr(HB[k & 1][buf],4)}, {d}")
                a(rd[m])
                for x in va[per*m:per*m+per]: a(x)
        for r in range(4): a(f"v_add_u32 v{AU+r}, 4096, v{AU+r}")
        if 2 in kinds: a(f"v_add_u32 v{AU+4}, 128, v{AU+4}")
        a("s_sub_u32 s45, s45, 1")
        a("s_cmp_lg_u32 s45, 0")
        a(f"s_cbranch_scc1 L_f1_loop{v}")
        if v < 3: a("s_branch L_f1_done")
    a("L_f1_done:")
    stamp(a, 5)
    a("s_mul_i32 s43, s42, 33")
    a("s_and_b32 s44, s26, 1")
    a("s_lshl_b32 s44, s44, 4")
    a("s_lshr_b32 s45, s26, 1")
    a("s_add_u32 s44, s44, s45")
    a("s_add_u32 s44, s44, s43")
    a(f"s_mul_i32 s45, s50, {22*33}")
    a("s_add_u32 s44, s44, s45")
    a("s_lshl_b32 s44, s44, 10")
    a("s_waitcnt lgkmcnt(0)")
    a("s_nop 5")
    for jb in range(2):
        b = ACC3[jb]
        if jb == 1:
            a(f"s_cmp_ge_u32 s{sWAVE}, 4")
            a("s_cbranch_scc1 L_f1_one")
        for r in range(8): a(f"v_cvt_pk_bf16_f32 v{b+r}, v{b+2*r}, v{b+2*r+1}")
        for hf in range(2):
            a(f"buffer_store_dwordx4 {vr(b+4*hf,4)}, v15, s[36:39], s44 offen sc1")
            a(f"s_add_u32 s44, s44, {11*33*1024}")
    a("L_f1_one:")
    a("s_cmp_lg_u32 s51, 0")
    a("s_cbranch_scc1 L_prep_done")
    b = ACC3[2]
    for r in range(4): a(f"v_cvt_pk_bf16_f32 v{b+r}, v{b+2*r}, v{b+2*r+1}")
    a("s_add_u32 s43, s43, 32")
    a("s_lshl_b32 s43, s43, 10")
    a(f"buffer_store_dwordx4 {vr(b,4)}, v15, s[36:39], s43 offen sc1")
    a("L_prep_done:")
    a(f"s_cmp_lt_u32 s{sWAVE}, 4")
    a("s_cbranch_scc1 L_A_done")
    get_nonce(a, 2)

W_PROG, W_GO, W_CNT, W_PASS, W_XCH, W_NON = 0, 4, 8, 16, 32, 48
def a_done(a):
    a("L_A_done:")
    stamp(a, 6)
    a(f"v_mov_b32 v23, {LDS_PROG}")
    a(f"s_cmp_lg_u32 s{sWAVE}, 4")
    a("s_cbranch_scc1 L_A_bar")
    a(f"v_mov_b32 v2, s{sNON}")
    a(f"v_mov_b32 v3, s{sNON+1}")
    a(f"ds_write_b64 v23, v[2:3] offset:{W_NON}")
    a("L_A_bar:")
    a("s_waitcnt lgkmcnt(0)")
    a("s_barrier")
    stamp(a, 4)
    a(f"s_lshr_b32 s26, s{sXCD}, 1")
    a("s_lshl_b32 s26, s26, 3")
    a(f"s_and_b32 s27, s{sSLOT}, 7")
    a("s_add_u32 s26, s26, s27")
    a(f"s_and_b32 s27, s{sXCD}, 1")
    a("s_lshl_b32 s27, s27, 2")
    a(f"s_lshr_b32 s40, s{sSLOT}, 3")
    a("s_add_u32 s27, s27, s40")
    a(f"s_cmp_ge_u32 s{sWAVE}, 4")
    a("s_cbranch_scc1 L_aux")

def drained(a, vt):
    a(f"v_mov_b32 v{vt}, 1")
    a("s_mov_b64 exec, 1")
    a(f"ds_add_u32 v23, v{vt} offset:{W_CNT}")
    a("s_mov_b64 exec, -1")

def attention(a):
    SL = OPT.get('slot', 1)
    AKA, AKB, AV, AKB2 = 4, 5, 168, 172
    AREGS = [AKA, AV, AV+1, AV+2, AV+3] + ([AKB2, AKB2+1] if SL else [AKB])
    QA = [8, 14]
    NEG = [32, 48]; S = [64, 80]; O = [96, 112]; P = 128
    KB = [136, 142]; VB = [148, 156]
    PR = 164
    a("L_attn:")
    a(f"ds_read_b32 v24, v23 offset:{W_GO}")
    a(f"ds_read_b64 v[26:27], v23 offset:{W_NON}")
    a(f"s_setprio {OPT.get('pattn', 2)}")
    a(f"s_mul_i32 s40, s26, {Q_HEAD}")
    a(f"s_add_u32 s40, s40, {Q_OFF}")
    make_srd(a, 28, pWS, "s40", Q_HEAD)
    a(f"s_mul_i32 s40, s26, {KV_HEAD}")
    make_srd(a, 32, pWS, "s40", KV_HEAD)
    a("v_and_b32 v2, 31, v1")
    a("v_lshrrev_b32 v3, 5, v1")
    a(f"v_lshlrev_b32 v{AKA}, 4, v1")
    a(f"v_lshlrev_b32 v{AKB}, 3, v2")
    a(f"v_add_u32 v{AKB}, 1024, v{AKB}")
    a(f"v_mov_b32 v20, {HUGE}")
    a("v_cmp_gt_u32 vcc, 32, v1")
    a("s_lshl_b32 s41, s27, 3")
    a(f"s_lshl_b32 s42, s{sWAVE}, 1")
    a("s_add_u32 s41, s41, s42")
    a(f"v_cndmask_b32 v20, v20, v{AKB}, vcc")
    a(f"s_mul_i32 s42, s41, {TQ}")
    a("v_and_b32 v21, 28, v2")
    a("v_add_u32 v21, v21, v2")
    a("v_lshl_add_u32 v21, v3, 2, v21")
    a("v_lshlrev_b32 v21, 4, v21")
    a("v_add_u32 v29, 1280, v21")
    a("s_mov_b32 s48, 0x000fffff")
    a("s_mov_b32 s49, 0x000fffff")
    a("s_mov_b32 s52, 0x07060302")
    a("s_waitcnt lgkmcnt(0)")
    a("v_readfirstlane_b32 s47, v24")
    a(f"v_readfirstlane_b32 s{sNON}, v26")
    a(f"v_readfirstlane_b32 s{sNON+1}, v27")
    a("s_mov_b32 s50, s47")
    a("s_cmp_lg_u32 s47, 0")
    a("s_cbranch_scc1 L_attn_go")
    a("s_waitcnt vmcnt(0)")
    stamp(a, 3)
    drained(a, 24)
    a("L_attn_spin:")
    a(f"s_sleep {OPT.get('asl', 1)}")
    a(f"ds_read_b32 v24, v23 offset:{W_GO}")
    a("s_waitcnt lgkmcnt(0)")
    a("v_readfirstlane_b32 s47, v24")
    a("s_nop 0")
    a("s_cmp_eq_u32 s47, 0")
    a("s_cbranch_scc1 L_attn_spin")
    a("L_attn_go:")
    stamp(a, 7); stamp(a, 7, 2); stamp_real(a, 8, 2)
    a("s_sub_u32 s47, s47, 1")
    a(f"s_mul_i32 s47, s47, {4*TKV}")
    for q in range(2):
        a(f"buffer_load_dwordx4 {vr(QA[q],4)}, v{AKA}, s[28:31], s42 offen offset:{q*TQ} sc1")
        a(f"buffer_load_dwordx2 {vr(QA[q]+4,2)}, v20, s[28:31], s42 offen offset:{q*TQ} sc1")
    a(f"buffer_load_dwordx4 {vr(KB[0],4)}, v{AKA}, s[32:35], s47 offen sc1")
    if SL:
        for b in KB:
            a(f"v_mov_b32 v{b+4}, 0x3f803f80")
            a(f"v_mov_b32 v{b+5}, 0x3f80")
        a("s_mov_b32 exec_hi, 0")
    a(f"buffer_load_dwordx2 {vr(KB[0]+4,2)}, v{AKB}, s[32:35], s47 offen sc1")
    if SL: a("s_mov_b64 exec, -1")
    a("v_mov_b32 v24, 0x3f803f80")
    a("v_cmp_eq_u32 vcc, 20, v2")
    a(f"s_add_u32 s43, s47, {TKV}")
    a("s_nop 0")
    a("v_cndmask_b32 v24, 0, v24, vcc")
    for r in range(16): a(f"v_mov_b32 v{VB[0]+r}, v24")
    a(f"buffer_load_dwordx4 {vr(KB[1],4)}, v{AKA}, s[32:35], s43 offen sc1")
    if SL: a("s_mov_b32 exec_hi, 0")
    a(f"buffer_load_dwordx2 {vr(KB[1]+4,2)}, v{AKB}, s[32:35], s43 offen sc1")
    a("s_mov_b64 exec, s[48:49]")
    a(f"buffer_load_dwordx4 {vr(VB[0],4)}, v29, s[32:35], s47 offen sc1")
    a(f"buffer_load_dwordx4 {vr(VB[0]+4,4)}, v29, s[32:35], s47 offen offset:640 sc1")
    a(f"buffer_load_dwordx4 {vr(VB[1],4)}, v29, s[32:35], s43 offen sc1")
    a(f"buffer_load_dwordx4 {vr(VB[1]+4,4)}, v29, s[32:35], s43 offen offset:640 sc1")
    a("s_mov_b64 exec, -1")
    a("s_cmp_eq_u32 s50, 0")
    a("s_cbranch_scc1 L_attn_cnt")
    a("s_waitcnt vmcnt(12)")
    stamp(a, 3)
    drained(a, 24)
    a("L_attn_cnt:")
    a("v_mov_b32 v22, 5120")
    if OPT.get('zr', 1):
        a("v_cmp_lt_u32 vcc, 20, v2")
        a("v_mov_b32 v21, 5136")
        a("s_nop 0")
        a("v_cndmask_b32 v22, v22, v21, vcc")
    a("v_cmp_gt_u32 vcc, 20, v2")
    for i in range(4): a(f"v_add_u32 v{AV+i}, {(i>>1)*TKV + (i&1)*640}, v29")
    for i in range(4): a(f"v_cndmask_b32 v{AV+i}, v22, v{AV+i}, vcc")
    if SL:
        a("v_cmp_gt_u32 vcc, 32, v1")
        a("v_mov_b32 v22, 5152")
        a(f"v_add_u32 v21, {TKV}, v{AKB}")
        a(f"v_cndmask_b32 v{AKB2}, v22, v{AKB}, vcc")
        a(f"v_cndmask_b32 v{AKB2+1}, v22, v21, vcc")
    make_srd(a, 36, pWS, O_OFF, O_SIZE)
    for q in range(2):
        for r in range(16): a(f"v_mov_b32 v{O[q]+r}, 0")
    LOOPED = [False]
    mm16 = "v_mfma_f32_32x32x16_bf16"; mm8 = "v_mfma_f32_32x32x8_bf16"
    def M1(s, t, q, c): return "s_nop 1" if OPT.get('nom1') and c == "0" and LOOPED[0] else f"{mm16} {vr(s,16)}, {vr(KB[t&1],4)}, {vr(QA[q],4)}, {c}"
    def M2(s, t, q): return "s_nop 0" if OPT.get('nom2') and LOOPED[0] else f"{mm8} {vr(s,16)}, {vr(KB[t&1]+4,2)}, {vr(QA[q]+4,2)}, {vr(s,16)}"
    def M3(t, q): return "s_nop 1" if OPT.get('nopv') else f"{mm16} {vr(O[q],16)}, {vr(VB[t&1],4)}, {vr(P,4)}, {vr(O[q],16)}"
    def M4(t, q): return "s_nop 1" if OPT.get('nopv') else f"{mm16} {vr(O[q],16)}, {vr(VB[t&1]+4,4)}, {vr(P+4,4)}, {vr(O[q],16)}"
    def rowmax(src, dst, first):
        if first:
            a(f"v_max3_f32 v{dst}, v{src}, v{src+1}, v{src+2}")
            a(f"v_max_f32 v{dst}, v{dst}, v{src+15}")
            rng = range(3, 15, 2)
        else: rng = range(0, 16, 2)
        for r in rng: a(f"v_max3_f32 v{dst}, v{dst}, v{src+r}, v{src+r+1}")
    def finish_neg(add):
        a("v_mov_b32 v26, v24")
        a("v_mov_b32 v27, v25")
        a("s_nop 1")
        a("v_permlane32_swap_b32 v24, v26")
        a("v_permlane32_swap_b32 v25, v27")
        a("s_nop 1")
        a("v_max_f32 v24, v24, v26")
        a("v_max_f32 v25, v25, v27")
        if not SL:
            for q in range(2):
                a(f"v_sub_f32 v{NEG[q]}, {add}, v{24+q}")
                for r in range(1, 16): a(f"v_mov_b32 v{NEG[q]+r}, v{NEG[q]}")
            return
        a("s_mov_b32 s45, 0xffff0000")
        a("s_mov_b32 s46, 0x07060302")
        for q in range(2):
            a(f"v_sub_f32 v{24+q}, {add}, v{24+q}")
        for q in range(2):
            a(f"v_and_b32 v26, s45, v{24+q}")
            a(f"v_sub_f32 v27, v{24+q}, v26")
            a("v_and_b32 v28, s45, v27")
            a("v_sub_f32 v27, v27, v28")
            a("v_perm_b32 v26, v28, v26, s46")
            a("v_lshrrev_b32 v27, 16, v27")
            a("s_mov_b32 exec_lo, 0")
            a(f"v_mov_b32 v{QA[q]+4}, v26")
            a(f"v_mov_b32 v{QA[q]+5}, v27")
            a("s_mov_b64 exec, -1")
        a("s_nop 1")
    CNEG = lambda q: "0" if SL else vr(NEG[q], 16)
    a("s_waitcnt vmcnt(6)")
    stamp(a, 8)
    for q in range(2): a(M1(S[q], 0, q, "0"))
    for q in range(2): a(M2(S[q], 0, q))
    a("s_nop 11")
    rowmax(S[0], 24, True)
    a("s_nop 1")
    rowmax(S[1], 25, True)
    finish_neg(hex(f32bits(-float(OPT.get('off', 100)))))
    a(M1(S[0], 0, 0, CNEG(0)))
    a(M2(S[0], 0, 0))
    a(f"ds_read_b32 v{PR}, v23")
    a("s_waitcnt vmcnt(0)")
    a("s_nop 9")
    def check(need):
        l = a.label("L_chk"); ok = a.label("L_chkok")
        a(f"{l}:")
        a("s_waitcnt lgkmcnt(0)")
        a(f"v_readfirstlane_b32 s44, v{PR}")
        a("s_nop 0")
        a(f"s_cmp_ge_u32 s44, {need}")
        a(f"s_cbranch_scc1 {ok}")
        a(f"ds_read_b32 v{PR}, v23")
        a(f"s_branch {l}")
        a(".p2align 3")
        a(f"{ok}:")
    def unit(t, q, s4=(), s1=(), s2=(), s3=(), first=False, nonext=False):
        s = S[q]; sn = S[q ^ 1]
        t1, q1 = (t, 1) if q == 0 else (t + 1, 0)
        tp, qp = (t - 1, 1) if q == 0 else (t, 0)
        E = lambda r: a(f"v_exp_f32 v{s+r}, v{s+r}")
        C = lambda j: a(f"v_perm_b32 v{P+j}, v{s+2*j+1}, v{s+2*j}, s52" if OPT.get('perm') else f"v_cvt_pk_bf16_f32 v{P+j}, v{s+2*j}, v{s+2*j+1}")
        al = OPT.get('al', 1)
        EW = lambda r: a(f"v_exp_f32_e64 v{s+r}, v{s+r}") if al else E(r)
        odd = lambda xs: sum(1 for x in xs if x.startswith("s_")) & 1
        E(0); E(1)
        if not first: a(M4(tp, qp))
        for x in s4: a(x)
        (E if odd(s4) else EW)(2); E(3); E(4)
        if not nonext: a(M1(sn, t1, q1, CNEG(q1)))
        for x in s1: a(x)
        EW(5); E(6); E(7)
        for j in range(4): C(j)
        if not nonext: a(M2(sn, t1, q1))
        for x in s2: a(x)
        EW(8)
        for r in range(9, 13): E(r)
        a(M3(t, q))
        for x in s3: a(x)
        (E if odd(s3) else EW)(13); E(14); E(15)
        for j in range(4, 8): C(j)
    def period(t, o, extra3=()):
        if OPT.get('nods') and LOOPED[0]: o = None
        if o is None:
            if extra3:
                unit(t, 1, s4=["s_waitcnt lgkmcnt(0)"]); unit(t + 1, 0, s3=extra3); return
            unit(t, 1, s4=["s_waitcnt lgkmcnt(0)"]); unit(t + 1, 0); return
        kb = KB[t & 1]; vb = VB[t & 1]
        ok = lds_tile(o + 2); ov = (o >> 1) * LPAIR; av = AV + 2*(o & 1)
        unit(t, 1, s4=["s_waitcnt lgkmcnt(0)"],
             s1=[f"ds_read_b128 {vr(kb,4)}, v{AKA} offset:{ok}"],
             s3=[f"ds_read_b64 {vr(kb+4,2)}, v{AKB2+(o&1)} offset:{ov}" if SL else f"ds_read_b64 {vr(kb+4,2)}, v{AKB} offset:{ok}"])
        unit(t + 1, 0, s4=[f"ds_read_b128 {vr(vb,4)}, v{av} offset:{ov}"],
             s1=[f"ds_read_b128 {vr(vb+4,4)}, v{av+1} offset:{ov}"], s3=extra3)
    rdp = [f"ds_read_b32 v{PR}, v23"]
    a(".p2align 3")
    unit(0, 0, first=True)
    stamp(a, 9)
    check(1)
    for t in range(6):
        if t == 2: check(2)
        period(t, t, rdp if t in (1, 5) else ())
    for r in AREGS: a(f"v_add_u32 v{r}, {3*LPAIR}, v{r}")
    a(f"s_lshl_b32 s45, s{sWAVE}, 2")
    a("v_add_u32 v24, s45, v23")
    a(f"ds_write_b32 v24, v23 offset:{W_PASS}")
    a("s_mov_b32 s45, 2")
    a("s_mov_b32 s46, 7")
    stamp(a, 10); stamp(a, 10, 2); stamp_real(a, 12, 2)
    LOOPED[0] = True
    def body(chk):
        for k in range(8):
            ex = ()
            if k == 7: ex = (rdp if chk else [])
            if k == 6: ex = ["s_sub_u32 s46, s46, 1"]
            if k == 7 and not chk: ex = ["s_cmp_lg_u32 s46, 0"]
            period(k, k, ex)
        for r in AREGS: a(f"v_add_u32 v{r}, {4*LPAIR}, v{r}")
    a("s_cmp_eq_u32 s44, 16")
    a("s_cbranch_scc1 L_attn_fast")
    a(".p2align 3")
    a("L_attn_loop:")
    a("s_add_u32 s45, s45, 2")
    check("s45")
    body(True)
    a("s_cmp_eq_u32 s46, 0")
    a("s_cbranch_scc1 L_attn_last")
    a("s_cmp_lg_u32 s44, 16")
    a("s_cbranch_scc1 L_attn_loop")
    a(".p2align 3")
    a("L_attn_fast:")
    body(False)
    a("s_cbranch_scc1 L_attn_fast")
    a(".p2align 3")
    a("L_attn_last:")
    period(62, None)
    unit(63, 1, nonext=True)
    a("s_nop 1")
    a(M4(63, 1))
    stamp(a, 11); stamp(a, 11, 2); stamp_real(a, 13, 2)
    a("L_attn_post:")
    a("s_lshl_b32 s42, s41, 5")
    a("s_add_u32 s42, s42, s26")
    a("s_mul_i32 s42, s42, 1280")
    a("v_lshlrev_b32 v21, 4, v1")
    for q in range(2):
        a(f"v_mov_b32 v{24+q}, v{O[q]+8}")
        a(f"v_mov_b32 v26, v{O[q]+8}")
        a("s_nop 1")
        a(f"v_permlane32_swap_b32 v26, v{24+q}")
        a("s_nop 0")
        a(f"v_rcp_f32 v26, v{24+q}")
        a("s_nop 0")
        for r in range(12): a(f"v_mul_f32 v{S[q]+r}, v{O[q]+r}, v26")
        for r in range(6): a(f"v_cvt_pk_bf16_f32 v{S[q]+r}, v{S[q]+2*r}, v{S[q]+2*r+1}")
        a(f"buffer_store_dwordx4 {vr(S[q],4)}, v21, s[36:39], s42 offen sc1")
        a(f"buffer_store_dwordx2 {vr(S[q]+4,2)}, v20, s[36:39], s42 offen sc1")
        if q == 0: a(f"s_add_u32 s42, s42, {32*1280}")
    a("s_cmp_eq_u32 s46, 0")
    a("s_cbranch_scc0 L_attn_fin")
    for q in range(2):
        a(f"v_max3_f32 v{30+q}, abs(v{O[q]}), abs(v{O[q]+1}), abs(v{O[q]+2})")
        a(f"v_mul_f32 v{26+q}, 0, v{24+q}")
    for r in range(12):
        for q in range(2): a(f"v_fma_f32 v{26+q}, v{O[q]+r}, 0, v{26+q}")
    for q in range(2):
        a(f"v_max3_f32 v{30+q}, v{30+q}, abs(v{O[q]+3}), abs(v{O[q]+4})")
        a(f"v_max3_f32 v{30+q}, v{30+q}, abs(v{O[q]+5}), abs(v{O[q]+6})")
        a(f"v_max_f32 v{30+q}, v{30+q}, abs(v{O[q]+7})")
    a("v_max_f32 v24, v24, v25")
    a("v_min_f32 v30, v30, v31")
    a("v_mov_b32 v28, 0x76800000")
    a("v_mov_b32 v31, 0x08800000")
    a("v_cmp_u_f32 s[44:45], v26, v27")
    a("v_cmp_nlt_f32 vcc, v24, v28")
    a("v_cmp_lt_f32 s[50:51], v30, v31")
    a("s_nop 1")
    a("s_or_b64 vcc, vcc, s[44:45]")
    a("s_or_b64 vcc, vcc, s[50:51]")
    if OPT.get('forcefb'): a("s_mov_b64 vcc, -1")
    a("s_cbranch_vccnz L_attn_fallback")
    a("L_attn_fin:")
    a("s_lshl_b32 s40, s2, 2")
    a(f"s_add_u32 s40, s40, s{sWAVE}")
    a(f"s_add_u32 s40, s40, {FB}")
    a("s_lshl_b32 s40, s40, 7")
    for i in range(4): a(f"v_mov_b32 v{8+i}, s{sNON+(i&1)}")
    a("s_waitcnt vmcnt(0)")
    stamp(a, 12)
    a("s_mov_b64 exec, 0xff")
    a(f"buffer_store_dwordx4 v[8:11], v21, {sr(sFL,4)}, s40 offen sc1")
    a("s_mov_b64 exec, -1")
    a("s_barrier")
    a("s_branch L_end")
    a("L_attn_fallback:")
    a("s_waitcnt vmcnt(0)")
    for r in ((AKA,) if SL else (AKA, AKB)): a(f"v_subrev_u32 v{r}, {31*LPAIR}, v{r}")
    if SL:
        a("s_mov_b32 exec_lo, 0")
        for q in range(2):
            a(f"v_mov_b32 v{QA[q]+4}, 0")
            a(f"v_mov_b32 v{QA[q]+5}, 0")
        a("s_mov_b64 exec, -1")
    a("v_mov_b32 v24, 0xff800000")
    a("v_mov_b32 v25, 0xff800000")
    a("s_mov_b32 s46, 0")
    a("L_fb_max:")
    a(f"buffer_load_dwordx4 {vr(KB[0],4)}, v{AKA}, s[32:35], s46 offen sc1")
    if SL: a("s_mov_b32 exec_hi, 0")
    a(f"buffer_load_dwordx2 {vr(KB[0]+4,2)}, v{AKB}, s[32:35], s46 offen sc1")
    if SL: a("s_mov_b64 exec, -1")
    a("s_waitcnt vmcnt(0)")
    for q in range(2): a(M1(S[q], 0, q, "0"))
    for q in range(2): a(M2(S[q], 0, q))
    a("s_nop 15")
    rowmax(S[0], 24, False)
    rowmax(S[1], 25, False)
    a(f"s_add_u32 s46, s46, {TKV}")
    a(f"s_cmp_lt_u32 s46, {KV_HEAD}")
    a("s_cbranch_scc1 L_fb_max")
    finish_neg("0")
    for q in range(2):
        for r in range(16): a(f"v_mov_b32 v{O[q]+r}, 0")
    a("s_mov_b32 s46, 0")
    a("L_fb_main:")
    a(f"buffer_load_dwordx4 {vr(KB[0],4)}, v{AKA}, s[32:35], s46 offen sc1")
    if SL: a("s_mov_b32 exec_hi, 0")
    a(f"buffer_load_dwordx2 {vr(KB[0]+4,2)}, v{AKB}, s[32:35], s46 offen sc1")
    if SL: a("s_mov_b64 exec, -1")
    a("s_mov_b64 exec, s[48:49]")
    a(f"buffer_load_dwordx4 {vr(VB[0],4)}, v29, s[32:35], s46 offen sc1")
    a(f"buffer_load_dwordx4 {vr(VB[0]+4,4)}, v29, s[32:35], s46 offen offset:640 sc1")
    a("s_mov_b64 exec, -1")
    a("s_waitcnt vmcnt(0)")
    for q in range(2): a(M1(S[q], 0, q, CNEG(q)))
    for q in range(2): a(M2(S[q], 0, q))
    a("s_nop 15")
    for q in range(2):
        for r in range(16): a(f"v_exp_f32 v{S[q]+r}, v{S[q]+r}")
        a("s_nop 0")
        for j in range(8): a(f"v_cvt_pk_bf16_f32 v{P+j}, v{S[q]+2*j}, v{S[q]+2*j+1}")
        a("s_nop 1")
        a(M3(0, q)); a(M4(0, q))
    a(f"s_add_u32 s46, s46, {TKV}")
    a(f"s_cmp_lt_u32 s46, {KV_HEAD}")
    a("s_cbranch_scc1 L_fb_main")
    a("s_nop 15")
    a("s_branch L_attn_post")

def aux(a):
    a("L_aux:")
    a(f"s_setprio {OPT.get('paux', 0)}")
    a(f"s_sub_u32 s44, s{sWAVE}, 4")
    a("v_lshlrev_b32 v2, 4, v1")
    a("s_waitcnt vmcnt(0)")
    drained(a, 3)
    a("s_cmp_eq_u32 s44, 0")
    a("s_cbranch_scc1 L_kv")
    a("s_cmp_lg_u32 s44, 1")
    a("s_cbranch_scc1 L_aux_wait")
    a("s_lshl_b32 s40, s2, 7")
    a("L_cnt_spin:")
    a(f"s_sleep {OPT.get('asl', 1)}")
    a(f"ds_read_b32 v3, v23 offset:{W_CNT}")
    a("s_waitcnt lgkmcnt(0)")
    a("v_readfirstlane_b32 s41, v3")
    a("s_nop 0")
    a("s_cmp_lt_u32 s41, 8")
    a("s_cbranch_scc1 L_cnt_spin")
    stamp(a, 7)
    set_flag(a, 40, 8, also=FL1*128 if OPT.get('lf', 1) else None)
    a("L_aux_wait:")
    a(f"s_sleep {OPT.get('wsl', 16)}")
    a(f"ds_read_b32 v3, v23 offset:{W_PROG}")
    a("s_waitcnt lgkmcnt(0)")
    a("v_readfirstlane_b32 s41, v3")
    a("s_nop 0")
    a(f"s_cmp_lt_u32 s41, {OPT.get('f2w', 6)}")
    a("s_cbranch_scc1 L_aux_wait")
    if OPT.get('dyn', 1):
        a("s_cmp_lg_u32 s44, 1")
        a("s_cbranch_scc1 L_kv_done")
        make_srd(a, 28, pDBG, 0, 256)
        a("v_mov_b32 v3, 1")
        a("v_mov_b32 v4, 128")
        a("s_mov_b64 exec, 1")
        a("buffer_atomic_add v3, v4, s[28:31], 0 offen sc0")
        a("s_waitcnt vmcnt(0)")
        a("v_add_u32 v3, 1, v3")
        a("ds_write_b32 v23, v3 offset:12")
        a("s_mov_b64 exec, -1")
    a("s_branch L_kv_done")
    a("L_kv:")
    a(f"s_mul_i32 s40, s26, {KV_HEAD}")
    make_srd(a, 28, pWS, "s40", KV_HEAD)
    a(f"v_mul_u32_u24 v6, {LPAIR}, v1")
    a("v_min_u32 v6, %d, v6" % (30*LPAIR))
    for r in range(4): a(f"v_mov_b32 v{8+r}, 0x3f803f80")
    a("ds_write_b128 v6, v[8:11] offset:5120")
    for r in range(4): a(f"v_mov_b32 v{12+r}, 0")
    a("ds_write_b128 v6, v[12:15] offset:5136")
    a("v_mov_b32 v16, 0x3f803f80")
    a("v_mov_b32 v17, 0x3f80")
    a("ds_write_b64 v6, v[16:17] offset:5152")
    a("s_lshr_b32 s41, s26, 3")
    a("s_lshl_b32 s41, s41, 1")
    a(f"s_and_b32 s43, s{sXCD}, 1")
    a("s_lshl_b32 s43, s43, 3")
    a("s_lshl_b32 s42, s27, 1")
    a("v_and_b32 v3, 15, v1")
    a("v_lshrrev_b32 v5, 4, v1")
    a("v_add_u32 v5, 1, v5")
    a("v_and_b32 v4, 7, v1")
    a("v_add_u32 v4, s43, v4")
    a("v_bfe_u32 v6, v1, 3, 1")
    a("v_add_u32 v6, 1, v6")
    a("v_cmp_gt_u32 vcc, 32, v1")
    a("v_and_b32 v7, 1, v1")
    a("v_add_u32 v7, s42, v7")
    a("v_cndmask_b32 v3, v4, v3, vcc")
    a("v_cndmask_b32 v5, v6, v5, vcc")
    a("v_cmp_gt_u32 vcc, 48, v1")
    a("v_add_u32 v6, -48, v1")
    a(f"v_mov_b32 v4, {FL1}")
    a("v_cndmask_b32 v3, v7, v3, vcc")
    a("v_cndmask_b32 v5, 0, v5, vcc")
    a("v_cmp_gt_u32 vcc, 2, v6")
    a("v_cmp_gt_u32 s[46:47], 32, v1")
    a("v_and_b32 v7, 7, v3")
    a("v_lshl_add_u32 v5, v5, 3, v7")
    a("s_or_b64 vcc, vcc, s[46:47]")
    a("v_lshrrev_b32 v3, 3, v3")
    a("v_add_u32 v3, s41, v3")
    a("v_cndmask_b32 v4, v4, 0, vcc")
    a("v_lshl_add_u32 v5, v5, 3, v3")
    a("v_add_u32 v5, v5, v4")
    a("v_lshlrev_b32 v5, 7, v5")
    def poll_once(first=False):
        if first and OPT.get('lf', 1):
            a("s_and_b32 s48, s40, 7")
            a("s_cmp_eq_u32 s48, 0")
            a("s_cselect_b32 exec_lo, -1, 0")
            a("s_cselect_b32 exec_hi, -1, 0xcffff")
        a(f"buffer_load_dwordx2 v[6:7], v5, {sr(sFL,4)}, 0 offen sc1")
        if first and OPT.get('lf', 1): a("s_mov_b64 exec, -1")
        a("s_waitcnt vmcnt(0)")
        a(f"v_cmp_eq_u64 vcc, {sr(sNON,2)}, v[6:7]")
        a("s_sub_u32 s40, s40, 1")
        a("s_cselect_b32 s47, 0xffff, 0")
        a("s_and_b32 s48, vcc_hi, 0xff")
        a("s_lshl_b32 s48, s48, s43")
        a("s_or_b32 s48, s48, vcc_lo")
        a("s_bfe_u32 s49, vcc_hi, 0x80008")
        a("s_lshl_b32 s49, s49, s43")
        a("s_lshr_b32 s45, vcc_lo, 16")
        a("s_or_b32 s45, s45, s49")
        a("s_and_b32 s45, s45, s48")
        a("s_or_b32 s45, s45, s47")
    def pub(off, sreg):
        a(f"v_mov_b32 v4, s{sreg}")
        a(f"ds_write_b32 v23, v4 offset:{off}")
    a(f"s_mov_b32 s40, {POLL_MAX - 1}")
    a("v_mov_b32 v6, 0")
    a("v_mov_b32 v7, 0")
    if OPT.get('padgo'):
        a("L_padgo:")
        a("s_memrealtime s[42:43]")
        a("s_waitcnt lgkmcnt(0)")
        a(f"s_sub_u32 s42, s42, s{sNON}")
        a(f"s_cmp_lt_u32 s42, {OPT['padgo']}")
        a("s_cbranch_scc1 L_padgo")
    a("L_kv_p1:")
    a(f"s_sleep {OPT.get('ksl', 1)}")
    poll_once(True)
    a("s_cmp_lg_u32 s47, 0")
    a("s_cbranch_scc1 L_kv_first")
    a("s_lshr_b32 s48, vcc_hi, 16")
    a("s_lshr_b32 s49, vcc_hi, 18")
    a("s_or_b32 s48, s48, s49")
    a("s_and_b32 s48, s48, 3")
    a("s_cmp_eq_u32 s48, 3")
    a("s_cselect_b32 s48, s45, 0")
    a("s_cmp_eq_u32 s48, 0")
    a("s_cbranch_scc1 L_kv_p1")
    a("L_kv_first:")
    a("s_ff1_i32_b32 s48, s45")
    a("s_add_u32 s49, s48, 1")
    pub(W_GO, 49)
    stamp(a, 7)
    a("s_lshl_b32 s46, 1, s48")
    a(f"s_mul_i32 s48, s48, {4*TKV}")
    a(f"s_add_u32 s48, s48, {2*TKV}")
    for i in range(5):
        a(f"s_mov_b32 m0, {i*1024}")
        a("s_nop 0")
        a("buffer_load_dwordx4 v2, s[28:31], s48 offen sc1 lds")
        if i < 4: a("s_add_u32 s48, s48, 1024")
    a("s_mov_b32 s50, 1")
    a(f"s_mov_b32 s51, {LPAIR}")
    a("L_kv_next:")
    a("s_andn2_b32 s48, s45, s46")
    a("s_cbranch_scc0 L_kv_poll")
    a("s_ff1_i32_b32 s48, s48")
    a("s_bitset1_b32 s46, s48")
    a(f"s_mul_i32 s48, s48, {4*TKV}")
    for i in range(10):
        a(f"s_add_u32 m0, s51, {i*1024 + (64 if i >= 5 else 0)}")
        if i: a("s_add_u32 s48, s48, 1024")
        else: a("s_nop 0")
        a("buffer_load_dwordx4 v2, s[28:31], s48 offen sc1 lds")
    a(f"s_add_u32 s51, s51, {2*LPAIR}")
    a("s_cmp_eq_u32 s50, 1")
    a("s_cbranch_scc0 L_kv_w20")
    a("s_waitcnt vmcnt(10)")
    pub(W_PROG, 50)
    a("s_mov_b32 s50, 2")
    a("s_branch L_kv_next")
    a("L_kv_w20:")
    a("s_waitcnt vmcnt(20)")
    a("s_sub_u32 s49, s50, 1")
    pub(W_PROG, 49)
    a("s_add_u32 s50, s50, 1")
    a("s_branch L_kv_next")
    a("L_kv_poll:")
    a("s_waitcnt vmcnt(0)")
    pub(W_PROG, 50)
    a("s_cmp_eq_u32 s50, 16")
    a("s_cbranch_scc1 L_kv_done")
    poll_once()
    a("s_branch L_kv_next")
    a("L_kv_done:")
    if OPT.get('f2s', 16):
        a("s_branch L_all0")
        a("L_all:")
        a(f"s_sleep {OPT.get('wsl', 16)}")
        a("L_all0:")
        a(f"ds_read_b32 v3, v23 offset:{W_PROG}")
        a("s_waitcnt lgkmcnt(0)")
        a("v_readfirstlane_b32 s41, v3")
        a("s_nop 0")
        a(f"s_cmp_lt_u32 s41, {OPT.get('f2s', 16)}")
        a("s_cbranch_scc1 L_all")
    stamp(a, 8)
    a("v_lshlrev_b32 v5, 7, v1")
    a(f"v_add_u32 v5, {192*128}, v5")
    poll(a, 5, 6, sleep=4)
    a(f"s_setprio {OPT.get('pf2', 3)}")
    if OPT.get('dyn', 1):
        a("s_branch L_item0")
        a("L_item:")
        a("s_sleep 8")
        a("L_item0:")
        a("ds_read_b32 v3, v23 offset:12")
        a("s_waitcnt lgkmcnt(0)")
        a("v_readfirstlane_b32 s40, v3")
        a("s_nop 0")
        a("s_cmp_eq_u32 s40, 0")
        a("s_cbranch_scc1 L_item")
        a("s_sub_u32 s40, s40, 1")
    else:
        a(f"s_sub_u32 s40, 31, s{sSLOT}")
        a("s_cmp_ge_u32 s40, 24")
        a("s_cbranch_scc1 L_wo")
        a(f"s_mul_i32 s41, s{sXCD}, 24")
        a("s_add_u32 s40, s40, s41")
    a("s_cmp_ge_u32 s40, %d" % (0 if OPT.get('nof2') else 187))
    a("s_cbranch_scc1 L_wo")
    a("s_mul_i32 s41, s40, 373")
    a("s_lshr_b32 s41, s41, 12")
    a("s_mul_i32 s42, s41, 11")
    a("s_sub_u32 s42, s40, s42")
    a("s_lshl_b32 s41, s41, 1")
    a("s_cmp_ge_u32 s41, 18")
    a("s_cselect_b32 s43, 17, 0")
    a("s_sub_u32 s41, s41, s43")
    a("s_and_b32 s43, s41, 1")
    a("s_lshl_b32 s45, s44, 4")
    a("s_min_u32 s46, s44, 1")
    a("s_add_u32 s46, s46, s45")
    a("s_mul_i32 s47, s41, 65")
    a("s_add_u32 s47, s47, s46")
    a("s_lshl_b32 s47, s47, 10")
    a(f"s_add_u32 s47, s47, {SEQ_OFF}")
    make_srd(a, 28, pWS, "s47", 17*1024)
    a("s_and_b32 s47, s44, 2")
    a("s_add_u32 s47, s47, s43")
    a("s_mul_i32 s48, s47, 11")
    a("s_add_u32 s48, s48, s42")
    a("s_mul_i32 s48, s48, 33")
    a("s_and_b32 s45, s45, 16")
    a("s_add_u32 s48, s48, s45")
    a("s_lshl_b32 s48, s48, 10")
    a(f"s_add_u32 s48, s48, {AB_OFF}")
    make_srd(a, 32, pWS, "s48", 33*1024)
    make_srd(a, 36, pOUT, 0, OUT_SIZE)
    FB = 64; AC = 8
    a("s_or_b32 s47, s44, s43")
    a("s_cmp_lg_u32 s47, 0")
    a("s_cbranch_scc1 L_f2_nox")
    a(f"s_mov_b32 s49, {16*1024}")
    a("buffer_load_dwordx4 v[24:27], v2, s[28:31], s49 offen sc1")
    a(f"s_mov_b32 s49, {32*1024}")
    a("buffer_load_dwordx4 v[28:31], v2, s[32:35], s49 offen sc1")
    a("L_f2_nox:")
    for k in range(16):
        b = FB + k * 8
        if k % 4 == 0: a(f"s_mov_b32 s49, {(k//4)*4096}")
        a(f"buffer_load_dwordx4 {vr(b,4)}, v2, s[28:31], s49 offen offset:{(k%4)*1024} sc1")
        a(f"buffer_load_dwordx4 {vr(b+4,4)}, v2, s[32:35], s49 offen offset:{(k%4)*1024} sc1")
    stamp(a, 9)
    a("v_and_b32 v5, 31, v1")
    a("v_lshrrev_b32 v4, 5, v1")
    a("s_lshr_b32 s48, s41, 1")
    a("s_lshl_b32 s48, s48, 6")
    a("s_add_u32 s48, s48, s43")
    a("s_lshl_b32 s49, s44, 4")
    a("s_add_u32 s48, s48, s49")
    a("v_lshl_add_u32 v47, v4, 3, s48")
    a("v_mul_u32_u24 v47, 2560, v47")
    a("s_cmp_ge_u32 s42, 6")
    a("s_cselect_b32 s48, 383, 0")
    a("s_lshl_b32 s49, s42, 6")
    a("s_sub_u32 s48, s49, s48")
    a("v_lshl_add_u32 v5, v5, 1, s48")
    a(f"v_mov_b32 v46, {HUGE}")
    a("v_lshlrev_b32 v6, 1, v5")
    a("v_add_u32 v40, 1280, v6")
    a("v_cmp_ge_u32 vcc, 320, v5")
    a("v_sub_u32 v41, 2560, v6")
    a("v_add_u32 v6, -1, v5")
    a("v_cndmask_b32 v40, v46, v40, vcc")
    a("v_cmp_gt_u32 vcc, 319, v6")
    a(f"v_add_u32 v33, {(2048-6)*2560}, v40")
    a("v_sub_u32 v33, v33, v47")
    a("v_cndmask_b32 v41, v46, v41, vcc")
    a("v_add_u32 v32, v47, v40")
    a("v_add_u32 v36, v47, v41")
    a(f"v_add_u32 v37, {(2048-6)*2560}, v41")
    a("v_sub_u32 v37, v37, v47")
    a(f"v_subrev_u32 v34, {1024*2560}, v33")
    a(f"v_subrev_u32 v38, {1024*2560}, v37")
    a(f"v_add_u32 v35, {1024*2560}, v32")
    a(f"v_add_u32 v39, {1024*2560}, v36")
    a(f"v_add_u32 v42, {3*5120}, v33")
    a(f"v_add_u32 v43, {3*5120}, v37")
    a(f"v_mov_b32 v3, {LDS_PROG}")
    a("s_lshl_b32 s48, s44, 10")
    a("v_add_u32 v6, s48, v2")
    a("s_add_u32 s49, s48, 12288")
    a("s_lshl_b32 s50, s44, 12")
    a("s_add_u32 s51, s50, 3072")
    a("s_cmp_eq_u32 s44, 3")
    a(f"s_cmov_b32 s49, {LDS_PROG + 1024}")
    a(f"s_cmov_b32 s51, {LDS_PROG + 1024}")
    a("v_add_u32 v7, s49, v2")
    a("v_add_u32 v44, s50, v2")
    a("v_add_u32 v45, s51, v2")
    a("s_lshl_b32 s49, s44, 2")
    a("v_add_u32 v5, s49, v3")
    a(f"s_setprio {OPT.get('pmf', 1)}")
    for k in range(16):
        a(f"s_waitcnt vmcnt({2*(15-k)})")
        b = FB + k * 8
        d = vr(AC, 16)
        a(f"v_mfma_f32_32x32x16_bf16 {d}, {vr(b,4)}, {vr(b+4,4)}, {'0' if k == 0 else d}")
    a("s_cmp_lg_u32 s47, 0")
    a("s_cbranch_scc1 L_f2_nox2")
    a(f"v_mfma_f32_32x32x16_bf16 {vr(AC,16)}, v[24:27], v[28:31], {vr(AC,16)}")
    a("L_f2_nox2:")
    a(f"s_setprio {OPT.get('pep', 3)}")
    def spin_min(lbl, off, sl):
        a(f"{lbl}:")
        a(f"ds_read_b128 v[48:51], v3 offset:{off}")
        a("s_waitcnt lgkmcnt(0)")
        a("v_min3_u32 v48, v48, v49, v50")
        a("v_min_u32 v48, v48, v51")
        a("s_nop 0")
        a("v_readfirstlane_b32 s48, v48")
        a("s_nop 0")
        a("s_cmp_lg_u32 s48, 0")
        a(f"s_cbranch_scc1 {lbl}_ok")
        a(f"s_sleep {sl}")
        a(f"s_branch {lbl}")
        a(f"{lbl}_ok:")
    spin_min("L_f2_dead", W_PASS, 16)
    a("s_nop 3")
    for j in range(3): a(f"ds_write_b128 v6, {vr(AC+4*j,4)} offset:{j*4096}")
    a(f"ds_write_b128 v7, {vr(AC+12,4)}")
    a(f"ds_write_b32 v5, v3 offset:{W_XCH}")
    spin_min("L_f2_wait", W_XCH, OPT.get('xsl', 8))
    for i in range(3): a(f"ds_read_b128 {vr(8+4*i,4)}, v44 offset:{i*1024}")
    a("ds_read_b128 v[20:23], v45")
    a("s_waitcnt lgkmcnt(0)")
    ng = "neg_lo:[0,1] neg_hi:[0,1]"
    for r in (0, 2):
        a(f"v_pk_add_f32 {vr(48+r,2)}, {vr(8+r,2)}, {vr(12+r,2)}")
        a(f"v_pk_add_f32 {vr(52+r,2)}, {vr(8+r,2)}, {vr(12+r,2)} {ng}")
        a(f"v_pk_add_f32 {vr(56+r,2)}, {vr(20+r,2)}, {vr(16+r,2)}")
        a(f"v_pk_add_f32 {vr(60+r,2)}, {vr(20+r,2)}, {vr(16+r,2)} {ng}")
    for r in (0, 2):
        a(f"v_pk_add_f32 {vr(8+r,2)}, {vr(48+r,2)}, {vr(56+r,2)} {ng}")
        a(f"v_pk_add_f32 {vr(12+r,2)}, {vr(48+r,2)}, {vr(56+r,2)}")
        a(f"v_pk_add_f32 {vr(16+r,2)}, {vr(52+r,2)}, {vr(60+r,2)} {ng}")
        a(f"v_pk_add_f32 {vr(20+r,2)}, {vr(52+r,2)}, {vr(60+r,2)}")
    for k in range(8): a(f"v_cvt_pk_bf16_f32 v{48+k}, v{8+2*k}, v{9+2*k}")
    a("s_cmp_eq_u32 s41, 16")
    a("s_cbranch_scc1 L_f2_nyq")
    for i in range(4):
        st = "buffer_store_short_d16_hi" if i & 1 else "buffer_store_short"
        m1, p1, m2, p2 = (48 + 2*k + (i >> 1) for k in range(4))
        a(f"s_mov_b32 s47, {i*5120}")
        a(f"s_mov_b32 s48, {(3-i)*5120}")
        for val, adr, so in [(m1, 32, "s47"), (p1, 36, "s47"), (p2, 35, "s47"), (m2, 39, "s47"), (m2, 34, "s48"), (p2, 38, "s48"),
                             (p1, 33 if i else 42, "s48" if i else "0"), (m1, 37 if i else 43, "s48" if i else "0")]:
            a(f"{st} v{val}, v{adr}, s[36:39], {so} offen{FLF()}")
    a("s_branch L_wo")
    a("L_f2_nyq:")
    a("s_cmp_lg_u32 s44, 0")
    a("s_cbranch_scc1 L_wo")
    a("s_mov_b32 exec_hi, 0")
    for val, adr in [(48, 32), (50, 36), (50, 42), (48, 43)]:
        a(f"buffer_store_short v{val}, v{adr}, s[36:39], 0 offen{FLF()}")
    a("s_mov_b64 exec, -1")
    a("L_wo:")
    a(f"s_setprio {OPT.get('pwo', 3)}")
    stamp(a, 10)
    a("s_and_b32 s40, s26, 3")
    a("s_lshl_b32 s40, s40, 2")
    a("s_add_u32 s40, s40, s44")
    a(f"s_mul_i32 s40, s40, {50*1024}")
    a(f"s_add_u32 s40, s40, {WO_OFF}")
    make_srd(a, 28, pWS, "s40", 50*1024)
    a("s_waitcnt vmcnt(0)")
    for k in range(OPT.get('nwo', 50)):
        if k % 4 == 0: a(f"s_mov_b32 s49, {(k//4)*4096}")
        a(f"buffer_load_dwordx4 {vr(56+4*k,4)}, v2, s[28:31], s49 offen offset:{(k%4)*1024} sc1")

def tail(a):
    PADS = OPT.get('pads', 1)
    padn = [0]
    def pad(chain, last=None):
        if not PADS: return
        a(f"L_pad_{chain}_{padn[0]}:")
        padn[0] += 1
        a(f"s_cbranch_vccnz {last or f'L_pad_{chain}_{padn[0]}'}")
    a("L_B_done:")
    a("s_lshr_b32 s40, s26, 2")
    a("s_lshl_b32 s41, s27, 3")
    a("s_add_u32 s41, s41, s40")
    a(f"s_mul_i32 s42, s41, {32*1280}")
    a(f"s_add_u32 s42, s42, {O_OFF}")
    make_srd(a, 28, pWS, "s42", 32*1280)
    a("v_and_b32 v4, 7, v1")
    a("v_bfe_u32 v5, v1, 3, 2")
    a("v_lshlrev_b32 v5, 1, v5")
    a("v_lshl_add_u32 v4, v4, 3, v5")
    a("s_and_b32 s42, s27, 3")
    a("s_lshl_b32 s42, s42, 6")
    a("s_lshr_b32 s43, s27, 2")
    a("s_add_u32 s42, s42, s43")
    a("s_lshl_b32 s42, s42, 2")
    a("s_lshr_b32 s40, s40, 1")
    a("s_add_u32 s42, s42, s40")
    a(f"s_add_u32 s42, s42, {FB}")
    a("v_lshl_add_u32 v4, v4, 2, s42")
    a("v_lshlrev_b32 v4, 7, v4")
    a("v_mov_b32 v8, v4")
    a("v_and_b32 v3, 31, v1")
    a("v_lshrrev_b32 v4, 5, v1")
    a("v_mul_u32_u24 v5, 2560, v4")
    a("v_lshl_add_u32 v5, v3, 3, v5")
    a("v_add_u32 v5, 1024, v5")
    make_srd(a, 32, pOUT, 0, OUT_SIZE)
    a("s_lshl_b32 s41, s41, 5")
    a("v_add_u32 v6, s41, v3")
    a("v_mul_u32_u24 v6, 2560, v6")
    a("s_and_b32 s42, s26, 3")
    a("s_mul_i32 s42, s42, 320")
    a("s_mul_i32 s43, s44, 12800")
    a("v_add_u32 v7, s43, v2")
    a("s_lshl_b32 s43, s44, 12")
    a("s_add_u32 s43, s43, 40960")
    a("v_add_u32 v3, s43, v2")
    a("s_lshl_b32 s43, s44, 10")
    a("s_add_u32 s43, s43, 40960")
    a("v_add_u32 v1, s43, v2")
    a("s_lshl_b32 s45, s44, 4")
    a("s_add_u32 s45, s45, s42")
    a("v_lshl_add_u32 v0, v4, 3, v6")
    a("s_lshl_b32 s43, s44, 6")
    a("s_add_u32 s43, s43, s42")
    a("v_lshl_add_u32 v6, v4, 4, v6")
    if PADS:
        a("s_mov_b64 vcc, -1")
        a("s_nop 0")
        a("s_branch L_pad_a_0")
        a("L_pad_ret:")
        a("s_setprio 3")
    a("s_waitcnt vmcnt(0)")
    stamp(a, 12)
    a("s_barrier")
    stamp(a, 1)
    poll(a, 8, 10, sleep=OPT.get('sl', 0))
    stamp(a, 13)
    if PADS: a("s_mov_b64 vcc, 0")
    a("s_lshl_b32 s40, s44, 10")
    for j in range(10):
        if j % 3 == 0: pad('a')
        a("s_mov_b32 m0, s40")
        a("s_nop 0")
        a("buffer_load_dwordx4 v2, s[28:31], s40 offen sc1 lds")
        if j < 9: a("s_add_u32 s40, s40, 4096")
    a("s_waitcnt vmcnt(%d)" % (6 if OPT.get('prog', 1) else 0))
    a("s_barrier")
    stamp(a, 14)
    if lib.STAMP: a("s_waitcnt lgkmcnt(0)")
    A5, AM, OB = 8, 24, 40
    def rd(buf, kap, base=None):
        b = OB + 4*buf
        if base is not None: return f"ds_read_b128 {vr(b,4)}, v{base} offset:{kap*1280}"
        if kap < 32: return f"ds_read_b128 {vr(b,4)}, v2 offset:{kap*1280}"
        o = (kap - 32) * 5120 // 8
        return None
    def rd_main(buf, kap):
        b = OB + 4*buf
        if kap < 32: return [f"ds_read_b128 {vr(b,4)}, v2 offset:{kap*1280}"]
        g = kap - 32
        return [f"ds_read_b64 {vr(b,2)}, v5 offset:{g*5120}", f"ds_read_b64 {vr(b+2,2)}, v5 offset:{g*5120+1280}"]
    PG = 10 if OPT.get('prog', 1) else 0
    def stream(steps, chain):
        padn[0] = 0
        n = len(steps); cnt = [0]*n
        PF = 3
        for k in range(PF):
            r = steps[k][0](k % 4); cnt[k] = len(r)
            for x in r: a(x)
        for k in range(n):
            out = sum(cnt[k+1:min(n, k+PF)])
            a(f"s_waitcnt lgkmcnt({out})")
            d = vr(steps[k][1], 16)
            a(f"v_mfma_f32_32x32x16_bf16 {d}, {vr(steps[k][2],4)}, {vr(OB+4*(k%4),4)}, {'0' if steps[k][3] else d}")
            if k % 2 == 0 or k in (PG + 13, 32, 38, 40): pad(chain, "L_pad_z_0" if k == n - 2 else None)
            if PG and k + PF == PG:
                a("s_waitcnt vmcnt(0)")
                a("s_barrier")
            if k + PF < n:
                r = steps[k+PF][0]((k+PF) % 4); cnt[k+PF] = len(r)
                for x in r: a(x)
            if k == PG + 13:
                for j in range(4): a(f"ds_write_b128 v3, {vr(A5+4*j,4)} offset:{j*1024}")
                cnt[k+PF] += 4
            if k == 32:
                a("s_barrier")
                for i in range(4): a(f"ds_read_b128 {vr(A5+4*i,4)}, v1 offset:{i*4096}")
                cnt[k+PF] += 4
            if k == 38:
                for i in range(1, 4):
                    a(f"v_pk_add_f32 {vr(A5,2)}, {vr(A5,2)}, {vr(A5+4*i,2)}")
                    a(f"v_pk_add_f32 {vr(A5+2,2)}, {vr(A5+2,2)}, {vr(A5+4*i+2,2)}")
            if k == 40:
                a(f"v_cvt_pk_bf16_f32 v{A5}, v{A5}, v{A5+1}")
                a(f"v_cvt_pk_bf16_f32 v{A5+1}, v{A5+2}, v{A5+3}")
                a(f"buffer_store_dwordx2 {vr(A5,2)}, v0, s[32:35], s45 offen offset:256{FLP()}")
    main = [((lambda kap: lambda buf: rd_main(buf, kap))(kap), AM, 56 + 4*(10+kap), kap == 0) for kap in range(40)]
    if PADS:
        a(f"L_pad_a_{padn[0]}:")
        a("s_cmp_eq_u32 s44, 3")
        a("s_cbranch_vccz L_nopad")
        a("s_cbranch_scc1 L_pad_c_0")
        a("s_branch L_pad_b_0")
        a("L_nopad:")
    a("s_cmp_eq_u32 s44, 3")
    a("s_cbranch_scc1 L_tail3")
    q5 = [((lambda i: lambda buf: [f"ds_read_b128 {vr(OB+4*buf,4)}, v7 offset:{i*1280}"])(i), A5, 56 + 4*i, i == 0) for i in range(10)]
    stream(main[:PG] + q5 + main[PG:], 'b')
    a("s_branch L_tail_join")
    a("L_tail3:")
    q5 = [((lambda i: lambda buf: rd_main(buf, 30 + i))(i), A5, 56 + 4*i, i == 0) for i in range(10)]
    stream(main[:PG] + q5 + main[PG:], 'c')
    a("L_tail_join:")
    stamp(a, 11)
    padn[0] = 0
    pad('z')
    a("s_nop 11")
    for r in range(8): a(f"v_cvt_pk_bf16_f32 v{AM+r}, v{AM+2*r}, v{AM+2*r+1}")
    pad('z', "L_pad_ret")
    a("s_nop 1")
    for h2 in range(2):
        a(f"v_permlane32_swap_b32 v{AM+4*h2}, v{AM+4*h2+2}")
        a(f"v_permlane32_swap_b32 v{AM+4*h2+1}, v{AM+4*h2+3}")
    for h2 in range(2):
        a(f"buffer_store_dwordx4 {vr(AM+4*h2,4)}, v6, s[32:35], s43 offen offset:{32*h2}{FLP()}")
    a("L_end:")
    if OPT.get('pad'):
        a("L_pad:")
        a("s_memrealtime s[40:41]")
        a("s_waitcnt lgkmcnt(0)")
        a(f"s_sub_u32 s40, s40, s{sNON}")
        a(f"s_cmp_lt_u32 s40, {OPT['pad']}")
        a("s_cbranch_scc1 L_pad")
    if lib.STAMP:
        a("s_waitcnt vmcnt(0)")
        stamp(a, 15); stamp_real(a, 17)
        stamp_flush(a, 18, pWS, sWAVE, 0)
    a("L_exit:")
    a("s_endpgm")

KNAME = "concat_heads__mha_block__spectral_fnet__prompt_kernel"
def kernel(a):
    kernel_header(a, KNAME)
    if OPT.get('early'): a("s_memrealtime s[98:99]")
    a("s_cmp_ge_u32 s2, 256")
    a("s_cbranch_scc1 L_exit")
    if lib.STAMP:
        for i in range(18): a(f"s_mov_b32 s{60+2*i}, 0")
    stamp(a, 0); stamp_real(a, 16)
    a("s_load_dwordx8 s[4:11], s[0:1], 0")
    a("s_load_dwordx4 s[12:15], s[0:1], 64")
    a("s_load_dwordx2 s[16:17], s[0:1], 80")
    a("v_lshrrev_b32 v1, 6, v0")
    a(f"s_and_b32 s{sXCD}, s2, 7")
    a(f"v_readfirstlane_b32 s{sWAVE}, v1")
    a(f"s_lshr_b32 s{sSLOT}, s2, 3")
    a("v_and_b32 v1, 63, v0")
    a(f"s_and_b32 s26, s{sXCD}, 1")
    a("s_lshl_b32 s26, s26, 3")
    a(f"s_and_b32 s27, s{sSLOT}, 7")
    a("s_add_u32 s26, s26, s27")
    a(f"s_lshr_b32 s27, s{sSLOT}, 3")
    a("s_lshl_b32 s27, s27, 2")
    a(f"s_lshr_b32 s40, s{sXCD}, 1")
    a("s_add_u32 s27, s27, s40")
    a(f"s_cmp_ge_u32 s{sSLOT}, 24")
    a("s_cselect_b32 s40, 0, s%d" % sWAVE)
    a("s_cmp_lt_u32 s40, 4")
    a("s_cbranch_scc1 L_other")
    gemm_loader(a)
    a("L_other:")
    a("s_waitcnt lgkmcnt(0)")
    make_srd(a, sFL, pWS, FL_OFF, FL_SIZE)
    a(f"s_cmp_lg_u32 s{sWAVE}, 0")
    a("s_cbranch_scc1 L_no_init")
    a(f"v_mov_b32 v2, {LDS_PROG}")
    a("v_mov_b32 v4, 0")
    a("v_mov_b32 v5, 0")
    for i in range(8): a(f"ds_write_b64 v2, v[4:5] offset:{8*i}")
    a("s_cmp_lg_u32 s2, 0")
    a("s_cbranch_scc1 L_no_nonce")
    if OPT.get('early'): a("s_mov_b64 s[40:41], s[98:99]")
    else: a("s_memrealtime s[40:41]")
    make_srd(a, 28, pDBG, 0, 256)
    a("s_waitcnt lgkmcnt(0)")
    a("s_or_b32 s40, s40, 1")
    a("v_mov_b32 v2, s40")
    a("v_mov_b32 v3, s41")
    a("buffer_store_dwordx2 v[2:3], v4, s[28:31], 0 offen sc1")
    a("L_no_nonce:")
    a("s_waitcnt lgkmcnt(0)")
    a("L_no_init:")
    a(f"s_cmp_ge_u32 s{sSLOT}, 24")
    a("s_cbranch_scc1 L_prep")
    if OPT.get('touch', 1):
        a(f"s_cmp_lg_u32 s{sWAVE}, 1")
        a("s_cbranch_scc1 L_no_code")
        a("s_getpc_b64 s[40:41]")
        a("L_pc:")
        a(f"s_sub_u32 s40, s40, L_pc-{KNAME}")
        a("s_subb_u32 s41, s41, 0")
        a(f"s_mul_i32 s42, s{sSLOT}, 1792")
        a("v_lshlrev_b32 v2, 4, v1")
        a("v_add_u32 v2, s42, v2")
        a(f"v_min_u32 v2, L_exit-{KNAME}-1024-16, v2")
        for i in range(2): a(f"global_load_dwordx4 v[250:253], v2, s[40:41] offset:{i*1024}")
        a("L_no_code:")
    gemm_compute(a)
    prep(a)
    a_done(a)
    attention(a)
    aux(a)
    tail(a)
    return kernel_desc(KNAME, 256, 100)

HEADER = open('concat_heads__mha_block__spectral_fnet__prompt.s.ref').read().split("; Override")[0]
def main(out):
    a = Asm()
    a('.amdgcn_target "amdgcn-amd-amdhsa--gfx950"')
    a(".text")
    d = kernel(a)
    txt = HEADER + "; @launch grid=(256,1,1) block=(512,1,1) lds=163840\n" + a.text() + '.section .rodata,"a"\n.p2align 6\n' + d
    open(out, "w").write(txt)

if __name__ == "__main__":
    for x in sys.argv[2:]:
        if x == "stamp": lib.STAMP = True
        elif x == "rt": lib.STAMP = True; lib.STAMPRT = True
        elif x == "gst": lib.STAMP = True; lib.STAMPSET = 1
        elif x == "cst": lib.STAMP = True; lib.STAMPSET = 2
        else:
            k, _, v = x.partition("=")
            OPT[k] = int(v) if v else 1
    main(sys.argv[1] if len(sys.argv) > 1 else "v25.s")
```

```python
import sys, struct
from lib import *
import lib

TKV = 2560; KV_HEAD = 64*TKV; KV_OFF = 0; KV_SIZE = 32*KV_HEAD
TQ = 1280; Q_HEAD = 64*TQ; Q_OFF = KV_SIZE; Q_SIZE = 32*Q_HEAD
O_OFF = Q_OFF + Q_SIZE; O_SIZE = 64*32*1280
SEQ_OFF = O_OFF + O_SIZE; SEQ_SIZE = 17*65*1024
AB_OFF = SEQ_OFF + SEQ_SIZE; AB_SIZE = 4*11*33*1024
WO_OFF = AB_OFF + AB_SIZE; WO_SIZE = 16*50*1024
FL_OFF = 16*1024*1024; FL_SIZE = 1536*128
FA, FB, FL1 = 0, 256, 1280
X_SIZE = 2048*1280; OUT_SIZE = 2048*2560
HUGE = 0x40000000
QSCALE = (20 ** -0.5) * 1.4426950408889634
NDMA = 155; LPAIR = 5184
LDS_PROG = 31*LPAIR
def lds_tile(t): return ((t-2)>>1)*LPAIR + ((t-2)&1)*TKV
def need(tile): return ((tile-1)*TKV + 4095)//4096
NEED = [need(4), need(7), need(15), need(23), 39]
POLL_MAX = 200000
def f32bits(x): return struct.unpack('<I', struct.pack('<f', x))[0]
OPT = {}
FLS = ['', ' sc1', ' nt', ' sc0 sc1', ' sc1 nt']
def FLP(): return FLS[OPT.get('flp', 0)]
def FLF(): return FLS[OPT.get('flf', 1)]

sWAVE = 3
pX, pW, pWO, pBX, pOUT, pDBG, pWS = 4, 6, 8, 10, 12, 14, 16
sNON = 18
sFL = 20
sXCD, sSLOT = 24, 25
STG = 36864
NS = 4

def poll(a, vaddr, vtmp, cnt=40, sleep=1):
    l = a.label("L_poll"); d = a.label("L_pollok")
    a(f"s_mov_b32 s{cnt}, {POLL_MAX}")
    a(f"{l}:")
    a(f"buffer_load_dwordx2 {vr(vtmp,2)}, v{vaddr}, {sr(sFL,4)}, 0 offen sc1")
    a("s_waitcnt vmcnt(0)")
    a(f"v_cmp_ne_u64 vcc, {sr(sNON,2)}, {vr(vtmp,2)}")
    a(f"s_sub_u32 s{cnt}, s{cnt}, 1")
    a(f"s_cbranch_vccz {d}")
    a(f"s_cmp_eq_u32 s{cnt}, 0")
    a(f"s_cbranch_scc1 {d}")
    if sleep: a(f"s_sleep {sleep}")
    a(f"s_branch {l}")
    a(f"{d}:")

def get_nonce(a, vt, srd=28, cnt=40):
    make_srd(a, srd, pDBG, 0, 256)
    l = a.label("L_non"); d = a.label("L_nonok")
    a(f"v_mov_b32 v{vt}, 0")
    a(f"s_mov_b32 s{cnt}, {POLL_MAX}")
    a(f"{l}:")
    a(f"buffer_load_dwordx2 {vr(vt+2,2)}, v{vt}, {sr(srd,4)}, 0 offen sc1")
    a("s_waitcnt vmcnt(0)")
    a(f"v_readfirstlane_b32 s{sNON}, v{vt+2}")
    a(f"v_readfirstlane_b32 s{sNON+1}, v{vt+3}")
    a(f"s_sub_u32 s{cnt}, s{cnt}, 1")
    a(f"s_cmp_lg_u32 s{sNON}, 0")
    a(f"s_cbranch_scc1 {d}")
    a(f"s_cmp_eq_u32 s{cnt}, 0")
    a(f"s_cbranch_scc1 {d}")
    a("s_sleep 2")
    a(f"s_branch {l}")
    a(f"{d}:")

def set_flag(a, sidx, vt, also=None):
    for i in range(4): a(f"v_mov_b32 v{vt+i}, s{sNON+(i&1)}")
    a(f"v_lshlrev_b32 v{vt+4}, 4, v1")
    a("s_mov_b64 exec, 0xff")
    if also is not None:
        a(f"s_add_u32 s41, s{sidx}, {also}")
        a(f"buffer_store_dwordx4 {vr(vt,4)}, v{vt+4}, {sr(sFL,4)}, s41 offen")
    a(f"buffer_store_dwordx4 {vr(vt,4)}, v{vt+4}, {sr(sFL,4)}, s{sidx} offen sc1")
    a("s_mov_b64 exec, -1")

def gemm_loader(a):
    sA, sB = 28, 32
    a("L_loader:")
    a(f"s_sub_u32 s44, s{sWAVE}, 4")
    a("v_lshrrev_b32 v2, 3, v1")
    a("s_lshl_b32 s40, s44, 3")
    a("v_add_u32 v2, s40, v2")
    a("v_mul_u32_u24 v2, 1280, v2")
    a("v_lshrrev_b32 v3, 4, v1")
    a("s_and_b32 s40, s44, 1")
    a("s_lshl_b32 s40, s40, 2")
    a("v_or_b32 v4, s40, v3")
    a("v_and_b32 v5, 7, v1")
    a("v_xor_b32 v4, v4, v5")
    a("v_lshl_add_u32 v10, v4, 4, v2")
    a("s_lshl_b32 s45, s44, 10")
    a(f"s_lshr_b32 s40, s{sSLOT}, 3")
    a(f"s_mul_i32 s40, s40, {OPT.get('ra', 5)}")
    a(f"s_and_b32 s41, s{sSLOT}, 7")
    a(f"s_mul_i32 s41, s41, {OPT.get('rb', 5)}")
    a("s_add_u32 s40, s40, s41")
    if OPT.get('ph'):
        n = OPT['ph']
        a(f"s_lshr_b32 s40, s{sSLOT}, 3")
        a(f"s_and_b32 s41, s{sSLOT}, 7")
        a("s_add_u32 s40, s40, s41")
        a(f"s_mul_i32 s41, s40, {(256 + n - 1)//n}")
        a("s_lshr_b32 s41, s41, 8")
        a(f"s_mul_i32 s41, s41, {n}")
        a("s_sub_u32 s40, s40, s41")
        a(f"s_mul_i32 s40, s40, {OPT.get('pstep', 3)}")
    a(f"s_mul_i32 s41, s{sXCD}, {OPT.get('rc', 3)}")
    a("s_add_u32 s40, s40, s41")
    a("s_mul_i32 s41, s40, 6554")
    a("s_lshr_b32 s41, s41, 16")
    a("s_mul_i32 s41, s41, 10")
    a("s_sub_u32 s47, s40, s41")
    a("s_lshl_b32 s40, s44, 4")
    a("v_lshrrev_b32 v2, 2, v1")
    a("v_add_u32 v2, s40, v2")
    a("v_mul_u32_u24 v2, 3840, v2")
    a("v_and_b32 v3, 3, v1")
    a("v_lshrrev_b32 v4, 5, v1")
    a("v_lshlrev_b32 v4, 1, v4")
    a("v_xor_b32 v3, v3, v4")
    a("v_lshl_add_u32 v11, v3, 4, v2")
    a("s_mul_i32 s46, s44, 5120")
    a("s_mul_i32 s50, s26, 163840")
    a("s_mul_i32 s51, s27, 320")
    a("s_sub_u32 s52, 2457600, s51")
    a("s_waitcnt lgkmcnt(0)")
    make_srd(a, sA, pX, "s50", 163840)
    def issue_x(c):
        sl = c % NS
        a("s_lshl_b32 s48, s47, 7")
        for j in range(4):
            a(f"s_add_u32 m0, s45, {sl*STG + j*4096}")
            if j: a(f"s_add_u32 s48, s48, 40960")
            else: a("s_mul_i32 s49, s47, 245760")
            a(f"buffer_load_dwordx4 v10, {sr(sA,4)}, s48 offen lds")
    def issue_w(c):
        sl = c % NS
        for i in range(5):
            a(f"s_add_u32 m0, s46, {sl*STG + 16384 + i*1024 - i*64}")
            if i == 0:
                a("s_add_u32 s47, s47, 1")
            elif i == 1:
                a("s_cmp_eq_u32 s47, 10")
                a("s_cmov_b32 s47, 0")
            else: a("s_nop 0")
            a(f"buffer_load_dwordx4 v11, {sr(sB,4)}, s49 offen offset:{i*64} lds")
    def issue(c): issue_x(c); issue_w(c)
    stamp(a, 3)
    issue_x(0)
    make_srd(a, sB, pW, "s51", "s52")
    issue_w(0)
    issued = 1
    pre = OPT.get('pre', 2)
    for c in range(1, pre): issue(c); issued += 1
    for c in range(10):
        a(f"s_waitcnt vmcnt({9*(issued-c-1)})")
        if c in (0, 9): stamp(a, {0: 2, 9: 5}[c])
        stamp(a, c + 1, 1)
        a("s_barrier")
        if c in (1, 3, 5, 7): stamp(a, 11 + c // 2, 1)
        while issued < min(10, c + 1 + (OPT.get('dep', 2) if c < OPT.get('depsw', 10) else 3)): issue(issued); issued += 1
    make_srd(a, sFL, pWS, FL_OFF, FL_SIZE)
    get_nonce(a, 2)
    a("s_branch L_A_done")

AX, AWA, EA = 8, 10, 16
FR = 24
ACC = 96
def gemm_loop(a, isv, epi):
    XB = [FR, FR + 36, 176, 212]
    def rdx(kk, m, b): sl, st = divmod(kk, 2); return f"ds_read_b128 {vr(b+4*m,4)}, v{AX+st} offset:{sl*STG + m*2048}"
    def rdw(kk, T, b): sl, st = divmod(kk, 2); return [f"ds_read_b64_tr_b16 {vr(b+16+4*T+2*t,2)}, v{AWA+T} offset:{sl*STG + st*10240 + t*256}" for t in range(2)]
    def reads(kk, b):
        r = rdw(kk, 0, b) + [rdx(kk, m, b) for m in range(4)]
        for T in range(1, 5): r += rdw(kk, T, b)
        return r
    def mfma(b, T, m):
        d = vr(ACC + 16*T + 4*m, 4); w = vr(b + 16 + 4*T, 4); x = vr(b + 4*m, 4)
        return f"v_mfma_f32_16x16x32_bf16 {d}, {x}, {w}, {d}" if isv else f"v_mfma_f32_16x16x32_bf16 {d}, {w}, {x}, {d}"
    for r in range(80): a(f"v_mov_b32 v{ACC+r}, 0")
    a(f"s_mov_b32 s40, {2*STG}")
    a("s_mov_b32 s41, 4")
    stamp(a, 13)
    a("s_barrier")
    stamp(a, 2)
    for r in reads(0, XB[0]): a(r)
    lp = a.label("L_gemm"); last = a.label("L_gemm_last")
    a(".p2align 3")
    a(f"{lp}:")
    for kk in range(4):
        a("s_waitcnt lgkmcnt(0)")
        ms = [mfma(XB[kk & 1], T, m) for T in range(5) for m in range(4)]
        a(ms[0])
        if kk == 1: a("s_barrier")
        if kk == 3:
            for i in range(2): a(f"v_add_u32 v{AX+i}, s40, v{AX+i}")
            for i in range(5): a(f"v_add_u32 v{AWA+i}, s40, v{AWA+i}")
            a("s_sub_u32 s40, 0, s40")
            a("s_sub_u32 s41, s41, 1")
            a("s_barrier")
            a("s_cmp_eq_u32 s41, 0")
            a(f"s_cbranch_scc1 {last}")
        nx = reads((kk + 1) & 3, XB[(kk + 1) & 1])
        for i in range(1, 20):
            if i - 1 < len(nx): a(nx[i-1])
            a(ms[i])
    a(f"s_branch {lp}")
    a(f"{last}:")
    bufs = [XB[0], XB[2], XB[3], XB[1]]
    def order(k0):
        r = []
        for k in (k0, k0 + 1): r += rdw(k, 0, bufs[k]) + [rdx(k, m, bufs[k]) for m in range(4)]
        return r
    first = order(0)
    rest01 = [x for T in range(1, 5) for k in (0, 1) for x in rdw(k, T, bufs[k])]
    second = order(2)
    rest23 = [[x for k in (2, 3) for x in rdw(k, T, bufs[k])] for T in range(5)]
    ms = [mfma(XB[1], T, m) for T in range(5) for m in range(4)]
    q = first + rest01
    pos = 0
    for i in range(1, 20):
        for _ in range(2 if i < 10 else 1):
            if pos < len(q): a(q[pos]); pos += 1
        a(ms[i])
    a("s_barrier")
    q = second + rest23[1] + rest23[2] + rest23[3] + rest23[4]
    a("s_waitcnt lgkmcnt(0)")
    pos = 0
    for T in range(5):
        e = epi(T - 1) if T >= 1 else []
        per = -(-len(e) // 12)
        for i in range(16):
            if i == 8 and T < 2: a(f"s_waitcnt lgkmcnt({min(15, pos - (12 + 4*T))})" if T == 0 else "s_waitcnt lgkmcnt(0)")
            a(mfma(bufs[i >> 2], T, i & 3))
            for _ in range(2):
                if pos < len(q): a(q[pos]); pos += 1
            if i >= 4:
                for x in e[per*(i-4):per*(i-3)]: a(x)
    stamp(a, 5)
    a("s_nop 7")
    for x in epi(4): a(x)

def gemm_compute(a):
    a("L_compute:")
    a("v_and_b32 v2, 15, v1")
    a("v_lshrrev_b32 v3, 4, v1")
    a(f"s_and_b32 s42, s{sWAVE}, 1")
    a(f"s_lshr_b32 s43, s{sWAVE}, 1")
    a("s_lshl_b32 s40, s42, 6")
    a("v_add_u32 v4, s40, v2")
    a("v_lshlrev_b32 v4, 7, v4")
    a("v_lshrrev_b32 v5, 1, v2")
    a("v_xor_b32 v5, v5, v3")
    a(f"v_lshl_add_u32 v{AX}, v5, 4, v4")
    a(f"v_xor_b32 v{AX+1}, 64, v{AX}")
    a("v_lshrrev_b32 v4, 5, v1")
    a("v_mul_u32_u24 v4, 5120, v4")
    a("v_and_b32 v5, 1, v3")
    a("v_lshrrev_b32 v6, 2, v2")
    a("v_lshl_add_u32 v6, v5, 3, v6")
    a("v_lshl_add_u32 v4, v6, 6, v4")
    a("v_add_u32 v4, 16384, v4")
    a("v_lshlrev_b32 v5, 2, v5")
    a("v_and_b32 v6, 3, v1")
    a("s_mul_i32 s44, s43, 20")
    def waddr(T, g):
        a(f"v_and_b32 v15, 7, v{g}")
        a("v_xor_b32 v15, v15, v5")
        a("v_lshl_add_u32 v15, v15, 3, v4")
        a(f"v_lshrrev_b32 v{g}, 3, v{g}")
        a(f"v_lshl_add_u32 v{AWA+T}, v{g}, 10, v15")
    a("s_lshl_b32 s45, s26, 2")
    a("s_lshl_b32 s42, s42, 1")
    a("s_add_u32 s42, s42, s45")
    a("s_and_b32 s45, s27, 3")
    a("s_lshl_b32 s45, s45, 3")
    a("s_lshl_b32 s43, s43, 2")
    a("s_add_u32 s43, s43, s45")
    a("s_cmp_ge_u32 s27, 8")
    a("s_cbranch_scc1 L_compute_v")
    for T in range(5):
        if T < 4:
            a(f"s_add_u32 s45, s44, {5*T}")
            a("v_add_u32 v7, s45, v6")
        else:
            a("s_add_u32 s45, s44, 4")
            a("v_mad_u32_u24 v7, v6, 5, s45")
        waddr(T, 7)
    a("s_cmp_ge_u32 s27, 4")
    for reg, k, q in [(44, KV_HEAD, Q_HEAD), (45, TKV, TQ), (46, f32bits(1.0), f32bits(QSCALE)), (47, KV_OFF, Q_OFF), (48, KV_SIZE, Q_SIZE)]:
        a(f"s_mov_b32 s{reg}, {q}")
        a(f"s_cmov_b32 s{reg}, {k}")
    make_srd(a, 28, pWS, "s47", "s48")
    a("s_mul_i32 s47, s43, s44")
    a("s_mul_i32 s48, s42, s45")
    a("s_add_u32 s47, s47, s48")
    a(f"v_lshlrev_b32 v{EA}, 4, v1")
    a(f"v_add_u32 v{EA+1}, s45, v{EA}")
    a("v_lshrrev_b32 v4, 5, v1")
    a("v_mul_lo_u32 v4, v4, s44")
    a("v_and_b32 v5, 31, v1")
    a("v_lshlrev_b32 v5, 3, v5")
    a("v_lshl_add_u32 v4, v4, 1, v5")
    a(f"v_add_u32 v{EA+2}, 1024, v4")
    a(f"v_add_u32 v{EA+3}, s45, v{EA+2}")
    a("s_mov_b32 s48, s47")
    a("s_add_u32 s49, s47, s44")
    def epi_qk(T):
        b = ACC + 16*T; e = []
        for r in range(16): e.append(f"v_mul_f32 v{b+r}, s46, v{b+r}")
        for r in range(8): e.append(f"v_cvt_pk_bf16_f32 v{b+r}, v{b+2*r}, v{b+2*r+1}")
        e.append("s_nop 0")
        for u in range(2):
            e.append(f"v_permlane16_swap_b32 v{b+4*u}, v{b+4*u+2}")
            e.append(f"v_permlane16_swap_b32 v{b+4*u+1}, v{b+4*u+3}")
        for u in range(2):
            if T < 4: e.append(f"buffer_store_dwordx4 {vr(b+4*u,4)}, v{EA+u}, s[28:31], s48 offen sc1")
            else:
                e.append(f"buffer_store_dwordx2 {vr(b+4*u,2)}, v{EA+2+u}, s[28:31], s47 offen sc1")
                e.append(f"buffer_store_dwordx2 {vr(b+4*u+2,2)}, v{EA+2+u}, s[28:31], s49 offen sc1")
        if T < 3: e.append("s_add_u32 s48, s48, s44")
        return e
    gemm_loop(a, False, epi_qk)
    a("s_branch L_A_done")
    a("L_compute_v:")
    for T in range(5):
        a(f"s_add_u32 s45, s44, {4*T}")
        a("v_add_u32 v7, s45, v6")
        waddr(T, 7)
    make_srd(a, 28, pWS, KV_OFF, KV_SIZE)
    a(f"s_mov_b32 s44, {KV_HEAD}")
    a("s_mul_i32 s47, s43, s44")
    a(f"s_mul_i32 s48, s42, {TKV}")
    a("s_add_u32 s47, s47, s48")
    a("v_lshrrev_b32 v7, 5, v1")
    a("v_mul_u32_u24 v7, 640, v7")
    a("v_and_b32 v15, 1, v3")
    a("v_lshl_add_u32 v7, v15, 6, v7")
    a("v_add_u32 v7, 1280, v7")
    for T in range(5):
        a(f"v_add_u32 v4, {16*T}, v2")
        a("v_mul_u32_u24 v5, 3277, v4")
        a("v_lshrrev_b32 v5, 16, v5")
        a("v_mul_u32_u24 v6, 20, v5")
        a("v_sub_u32 v4, v4, v6")
        a("v_and_b32 v6, 28, v4")
        a("v_add_u32 v4, v4, v6")
        a("v_mul_lo_u32 v5, v5, s44")
        a("v_lshl_add_u32 v4, v4, 4, v5")
        a(f"v_add_u32 v{EA+T}, v7, v4")
    def epi_v(T):
        b = ACC + 16*T; e = []
        for r in range(8): e.append(f"v_cvt_pk_bf16_f32 v{b+r}, v{b+2*r}, v{b+2*r+1}")
        e.append("s_nop 0")
        for u in range(2):
            e.append(f"v_permlane32_swap_b32 v{b+4*u}, v{b+4*u+2}")
            e.append(f"v_permlane32_swap_b32 v{b+4*u+1}, v{b+4*u+3}")
        for u in range(2): e.append(f"buffer_store_dwordx4 {vr(b+4*u,4)}, v{EA+T}, s[28:31], s47 offen offset:{u*TKV} sc1")
        return e
    gemm_loop(a, True, epi_v)
    a("s_branch L_A_done")

SWD = [42, 43, 44, 56, 57]
def side_work(a):
    a("s_sub_u32 s53, s2, 192")
    a("s_mul_i32 s53, s53, 3")
    a(f"s_add_u32 s53, s53, s{sWAVE}")
    a("s_sub_u32 s53, s53, 5")
    a("v_lshlrev_b32 v22, 4, v1")
    make_srd(a, 32, pWO, 0, 819200)
    make_srd(a, 28, pWS, SEQ_OFF, WO_OFF + WO_SIZE - SEQ_OFF)
    WR = 32
    for n in range(5):
        if n == 4:
            a("s_cmp_ge_u32 s53, 32")
            a("s_cbranch_scc1 L_sw_wo_ld")
        a(f"s_add_u32 s40, s53, {192*n}")
        a("s_mul_i32 s41, s40, 1639")
        a("s_lshr_b32 s41, s41, 16")
        a("s_mul_i32 s58, s41, 40")
        a("s_sub_u32 s58, s40, s58")
        a("s_mul_i32 s59, s58, 20")
        a("s_mul_i32 s55, s58, 80")
        a("s_sub_u32 s55, s55, %d" % (32*80 - 16))
        a("s_cmp_lt_u32 s58, 32")
        a("s_cselect_b32 s45, 4, 40")
        a("s_cselect_b32 s59, s59, s55")
        a(f"s_mov_b32 s46, {20*1280}")
        a(f"s_cmov_b32 s46, {8*1280}")
        a("v_mul_u32_u24 v4, s45, v3")
        a("v_add_u32 v4, s59, v4")
        a("v_mul_u32_u24 v4, 1280, v4")
        a("s_lshl_b32 s59, s41, 6")
        a("v_lshl_add_u32 v4, v2, 1, v4")
        a("v_add_u32 v4, s59, v4")
        b = WR + 8*n
        for grp in range(2):
            so = "s46" if grp else "0"
            for i in range(4):
                a(f"buffer_load_ushort v{b+4*grp+i}, v4, s[32:35], {so} offen offset:{i*1280}")
        a("s_mul_i32 s59, s41, 52")
        a("s_lshr_b32 s59, s59, 8")
        a("s_mul_i32 s55, s59, 5")
        a("s_sub_u32 s55, s41, s55")
        a("s_mul_i32 s45, s58, 26")
        a("s_lshr_b32 s45, s45, 8")
        a("s_mul_i32 s47, s45, 10")
        a("s_sub_u32 s47, s58, s47")
        a("s_add_u32 s58, s58, 10")
        a("s_cmp_lt_u32 s55, 4")
        a("s_cselect_b32 s55, s55, s45")
        a("s_cselect_b32 s58, s58, s47")
        a("s_lshl_b32 s59, s59, 2")
        a("s_add_u32 s59, s59, s55")
        a("s_mul_i32 s59, s59, 50")
        a("s_add_u32 s59, s59, s58")
        a("s_lshl_b32 s59, s59, 10")
        a(f"s_add_u32 s{SWD[n]}, s59, {WO_OFF - SEQ_OFF}")
    a("L_sw_wo_ld:")
    G = 80
    a("s_mov_b32 s54, s53")
    a("v_lshlrev_b32 v23, 4, v3")
    a(f"s_mov_b32 s55, {f32bits(1.0/2048)}")
    a("v_cmp_gt_u32 vcc, 32, v1")
    a("L_sw_gen:")
    a("s_lshr_b32 s41, s54, 5")
    a("s_and_b32 s58, s54, 31")
    a("s_lshr_b32 s59, s41, 1")
    a("s_lshl_b32 s59, s59, 6")
    a("s_and_b32 s47, s41, 1")
    a("s_add_u32 s59, s59, s47")
    a("v_lshl_add_u32 v4, v2, 1, s59")
    a("s_lshr_b32 s47, s58, 4")
    a("s_mul_i32 s45, s41, 65")
    a("s_add_u32 s45, s45, s58")
    a("s_add_u32 s46, s45, 33")
    a("s_add_u32 s45, s45, s47")
    a("s_lshl_b32 s45, s45, 10")
    a("s_lshl_b32 s46, s46, 10")
    a("s_and_b32 s48, s58, 15")
    a("s_lshl_b32 s48, s48, 5")
    a("s_add_u32 s48, s48, s47")
    a("v_add_u32 v5, s48, v23")
    a("v_mul_u32_u24 v5, v4, v5")
    a("v_cvt_f32_u32 v5, v5")
    a("v_cvt_f32_u32 v4, v4")
    for i in range(8):
        if i: a("v_fma_f32 v5, 2.0, v4, v5")
        a(f"v_mul_f32 v{G+i}, s55, v5")
    for i in range(8): a(f"v_fract_f32 v{G+i}, v{G+i}")
    for i in range(8): a(f"v_cos_f32 v{G+8+i}, v{G+i}")
    a("s_cmp_lg_u32 s58, 0")
    a("s_cbranch_scc1 L_gen_plain")
    a("v_mul_f32 v6, 0x3e800000, v4")
    a("v_fract_f32 v6, v6")
    a(f"v_cndmask_b32 v{G}, v{G}, v6, vcc")
    a("v_cos_f32 v7, v6")
    a(f"v_mov_b32 v{G+25}, 0")
    a(f"v_mov_b32 v{G+26}, 0")
    a(f"v_mov_b32 v{G+27}, 0")
    a("v_cndmask_b32 v7, 0, v7, vcc")
    a(f"v_cvt_pk_bf16_f32 v{G+24}, v7, 0")
    a(f"s_add_u32 s48, s45, {16*1024}")
    a(f"buffer_store_dwordx4 {vr(G+24,4)}, v22, s[28:31], s48 offen sc1")
    a("L_gen_plain:")
    for i in range(8): a(f"v_sin_f32 v{G+i}, v{G+i}")
    for i in range(4): a(f"v_cvt_pk_bf16_f32 v{G+16+i}, v{G+8+2*i}, v{G+9+2*i}")
    for i in range(4): a(f"v_cvt_pk_bf16_f32 v{G+20+i}, v{G+2*i}, v{G+1+2*i}")
    a(f"buffer_store_dwordx4 {vr(G+16,4)}, v22, s[28:31], s45 offen sc1")
    a(f"buffer_store_dwordx4 {vr(G+20,4)}, v22, s[28:31], s46 offen sc1")
    a("s_add_u32 s54, s54, 192")
    a("s_cmp_lt_u32 s54, 544")
    a("s_cbranch_scc1 L_sw_gen")

def side_work_finish(a):
    WR = 32
    l = a.label("L_sw_fin")
    a("s_waitcnt vmcnt(4)")
    for n in range(5):
        if n == 4:
            a("s_cmp_ge_u32 s53, 32")
            a(f"s_cbranch_scc1 {l}")
        b = WR + 8*n
        for i in range(4): a(f"v_lshl_or_b32 v{b+i}, v{b+2*i+1}, 16, v{b+2*i}")
        a(f"buffer_store_dwordx4 {vr(b,4)}, v22, s[28:31], s{SWD[n]} offen sc1")
    a(f"{l}:")

def prep(a):
    a("L_prep:")
    a(f"s_sub_u32 s40, s{sSLOT}, 24")
    a("s_and_b32 s27, s40, 1")
    a("s_lshr_b32 s26, s40, 1")
    a("s_lshl_b32 s26, s26, 3")
    a(f"s_add_u32 s26, s26, s{sXCD}")
    make_srd(a, 36, pWS, AB_OFF, AB_SIZE)
    a(f"s_cmp_ge_u32 s{sWAVE}, 5")
    a("s_cbranch_scc1 L_fold_skip")
    make_srd(a, 28, pBX, 0, X_SIZE)
    a("s_lshr_b32 s42, s26, 1")
    a("s_lshl_b32 s42, s42, 5")
    a("s_and_b32 s43, s26, 1")
    a("s_add_u32 s42, s42, s43")
    a("v_lshrrev_b32 v2, 3, v1")
    a("v_and_b32 v3, 7, v1")
    a("v_lshl_add_u32 v4, v2, 1, s42")
    a("v_mul_u32_u24 v5, 1280, v4")
    a("v_lshlrev_b32 v6, 4, v3")
    a("v_add_u32 v10, v5, v6")
    a("v_sub_u32 v7, v6, v5")
    a(f"s_lshl_b32 s44, s27, 1")
    a(f"s_add_u32 s44, s44, s{sWAVE}")
    a("s_cmp_ge_u32 s44, 5")
    a("s_cselect_b32 s45, 5, 0")
    a("s_sub_u32 s44, s44, s45")
    a("s_lshl_b32 s44, s44, 7")
    a("s_add_u32 s45, s44, 20480")
    a(f"v_add_u32 v11, {2048*1280}, v7")
    a(f"v_add_u32 v12, {1024*1280}, v7")
    a("v_cmp_ne_u32 vcc, 0, v4")
    a(f"v_mov_b32 v8, {HUGE}")
    a(f"v_add_u32 v9, {1024*1280}, v10")
    a("v_cndmask_b32 v13, v8, v9, vcc")
    LD = 32
    for hf in range(2):
        for r in range(4): a(f"buffer_load_dwordx4 {vr(LD+8*r+4*hf,4)}, v{10+r}, s[28:31], s44 offen offset:{640*hf}")
    a("v_subrev_u32 v11, 20480, v11")
    a("v_subrev_u32 v12, 20480, v12")
    for hf in range(2):
        for r, (vv, so) in enumerate([(10, 45), (11, 44), (12, 44), (9, 45)]):
            a(f"buffer_load_dwordx4 {vr(LD+32+8*r+4*hf,4)}, v{vv}, s[28:31], s{so} offen offset:{640*hf}")
    XL = 96
    a("s_cmp_lg_u32 s26, 0")
    a("s_cbranch_scc1 L_fold_nx")
    a(f"v_add_u32 v14, {512*1280}, v6")
    a(f"v_add_u32 v15, {1536*1280}, v6")
    a("v_cndmask_b32 v14, v14, v8, vcc")
    a("v_cndmask_b32 v15, v15, v8, vcc")
    for r in range(2):
        for hf in range(2):
            a(f"buffer_load_dwordx4 {vr(XL+8*r+4*hf,4)}, v{14+r}, s[28:31], s44 offen offset:{640*hf}")
    a("L_fold_nx:")
    a("v_and_b32 v5, 3, v2")
    a("v_lshrrev_b32 v4, 2, v2")
    a("v_lshl_or_b32 v5, v4, 3, v5")
    a("v_xor_b32 v5, v5, v3")
    a("v_and_b32 v4, 1, v3")
    a("v_lshl_add_u32 v5, v4, 5, v5")
    a("v_lshlrev_b32 v5, 4, v5")
    a("v_lshrrev_b32 v4, 1, v3")
    a("v_lshl_add_u32 v5, v4, 10, v5")
    a("s_lshl_b32 s45, s44, 5")
    a("v_add_u32 v16, s45, v5")
    a("v_xor_b32 v18, 64, v16")
    a("v_add_u32 v5, s44, v6")
    a("v_add_u32 v17, 40960, v5")
    a("v_lshlrev_b32 v6, 4, v1")
    a("v_add_u32 v6, 43008, v6")
    a("v_cndmask_b32 v17, v17, v6, vcc")
    a("L_fold_skip:")
    a("v_and_b32 v2, 31, v1")
    a("v_lshrrev_b32 v3, 5, v1")
    a("v_lshlrev_b32 v15, 4, v1")
    a(f"s_lshr_b32 s40, s{sWAVE}, 1")
    a("s_add_u32 s40, s40, 2")
    a(f"s_and_b32 s41, s{sWAVE}, 1")
    a(f"s_cmp_lt_u32 s{sWAVE}, 4")
    a(f"s_cselect_b32 s49, s{sWAVE}, s40")
    a("s_cselect_b32 s50, 0, s41")
    a("s_lshl_b32 s54, s49, 6")
    a("s_add_u32 s54, s54, s27")
    a("v_lshl_add_u32 v4, v2, 1, s54")
    AU = 10; SB = [[176, 184], [192, 200]]; HB = [[208, 212], [216, 220]]; UB = [72, 84, 96, 108]; ACC3 = [224, 240, 32]; PH = 112
    a("s_mul_i32 s52, s50, 20480")
    for jj in range(4):
        a(f"v_xor_b32 v5, {2*jj}, v3")
        a("v_xor_b32 v5, v5, v2")
        a("v_lshl_add_u32 v5, v3, 5, v5")
        a("v_lshlrev_b32 v5, 4, v5")
        a(f"v_add_u32 v5, {jj*1024}, v5")
        a(f"v_add_u32 v{AU+jj}, s52, v5")
    a(f"v_lshlrev_b32 v{AU+4}, 4, v3")
    a(f"v_add_u32 v{AU+4}, 40960, v{AU+4}")
    a(f"s_mov_b32 s52, {f32bits(1.0/640)}")
    a("s_cmp_lg_u32 s50, 0")
    a("s_cselect_b32 s53, 0x3e800000, 0")
    a("v_lshlrev_b32 v5, 3, v3")
    a("v_mul_u32_u24 v5, v4, v5")
    a("v_cvt_f32_u32 v5, v5")
    a("v_cvt_f32_u32 v4, v4")
    a("v_mul_f32 v6, 0x41800000, v4")
    for i in range(8):
        if i: a("v_add_f32 v5, v5, v4")
        a(f"v_mul_f32 v{PH+i}, s52, v5")
        a("v_sub_f32 v7, v5, v6")
        a(f"v_mul_f32 v{PH+8+i}, s52, v7")
    a("v_mul_f32 v6, s52, v6")
    a("v_fract_f32 v6, v6")
    for i in range(16): a(f"v_fract_f32 v{PH+i}, v{PH+i}")
    a("v_cos_f32 v19, v6")
    for i in range(16): a(f"v_sin_f32 v{SB[1][0]+i}, v{PH+i}")
    for i in range(16): a(f"v_subrev_f32 v{PH+i}, s53, v{PH+i}")
    for i in range(16): a(f"v_cos_f32 v{SB[0][0]+i}, v{PH+i}")
    a("v_add_f32 v19, v19, v19")
    for r in range(32): a(f"v_mov_b32 v{224+r}, 0")
    def cvts(jb, g): return [f"v_cvt_pk_bf16_f32 v{HB[jb][g]+d}, v{SB[jb][g]+2*d}, v{SB[jb][g]+2*d+1}" for d in range(4)]
    def rot(jb, cur): return [f"v_fma_f32 v{SB[jb][cur^1]+i}, v19, v{SB[jb][cur]+i}, -v{SB[jb][cur^1]+i}" for i in range(8)]
    for x in cvts(0, 0) + cvts(1, 0): a(x)
    a(f"s_cmp_lt_u32 s{sWAVE}, 5")
    a("s_cbranch_scc1 L_fold_go")
    if not OPT.get('sw2'):
        side_work(a)
        side_work_finish(a)
    a("s_branch L_fold_done")
    a("L_fold_go:")
    a("s_cmp_lg_u32 s27, 0")
    a("s_cselect_b32 s46, -1.0, 1.0")
    a("s_mov_b32 s47, s46")
    a("s_mov_b32 s48, 0xffff0000")
    T = 112; R = 144; H = 20
    ng = "neg_lo:[0,1] neg_hi:[0,1]"
    def dfold(src, dst):
        for d in range(4):
            a(f"v_lshlrev_b32 v{dst+2*d}, 16, v{src+d}")
            a(f"v_and_b32 v{dst+2*d+1}, s48, v{src+d}")
            a(f"v_lshlrev_b32 v{H+2*(d&1)}, 16, v{src+4+d}")
            a(f"v_and_b32 v{H+2*(d&1)+1}, s48, v{src+4+d}")
            a(f"v_pk_fma_f32 {vr(dst+2*d,2)}, {vr(H+2*(d&1),2)}, s[46:47], {vr(dst+2*d,2)}")
    for n in range(2):
        a("s_waitcnt vmcnt(%d)" % (8 if n == 0 else 0))
        if n == 0: stamp(a, 9)
        b = LD + 32*n
        for r in range(4): dfold(b + 8*r, T + 8*r)
        for d in range(4):
            p = lambda r: vr(T+8*r+2*d, 2)
            q = lambda r: vr(R+8*r+2*d, 2)
            a(f"v_pk_add_f32 {q(0)}, {p(0)}, {p(1)}")
            a(f"v_pk_add_f32 {q(1)}, {p(0)}, {p(1)} {ng}")
            a(f"v_pk_add_f32 {q(2)}, {p(2)}, {p(3)}")
            a(f"v_pk_add_f32 {q(3)}, {p(2)}, {p(3)} {ng}")
            a(f"v_pk_add_f32 {p(0)}, {q(0)}, {q(2)}")
            a(f"v_pk_add_f32 {p(1)}, {q(0)}, {q(2)} {ng}")
            a(f"v_pk_add_f32 {p(2)}, {q(1)}, {q(3)} {ng}")
            a(f"v_pk_add_f32 {p(3)}, {q(1)}, {q(3)}")
        if n == 0:
            a("s_cmp_lg_u32 s26, 0")
            a("s_cbranch_scc1 L_fold_sp")
            a("s_waitcnt vmcnt(0)")
            dfold(XL, R); dfold(XL + 8, R + 8)
            for d in range(4):
                a(f"v_pk_add_f32 {vr(R+16+2*d,2)}, {vr(R+2*d,2)}, {vr(R+8+2*d,2)}")
                a(f"v_pk_add_f32 {vr(R+2*d,2)}, {vr(R+2*d,2)}, {vr(R+8+2*d,2)} {ng}")
            for e in range(8): a(f"v_cndmask_b32 v{T+24+e}, v{R+e}, v{T+24+e}, vcc")
            for d in range(4): a(f"v_cvt_pk_bf16_f32 v{R+d}, v{R+16+2*d}, v{R+17+2*d}")
            a(f"ds_write_b128 v17, {vr(R,4)}")
            a("L_fold_sp:")
        for i in range(4):
            for d in range(4): a(f"v_cvt_pk_bf16_f32 v{b+4*i+d}, v{T+8*i+2*d}, v{T+8*i+2*d+1}")
            a(f"ds_write_b128 v{16+2*n}, {vr(b+4*i,4)} offset:{(i>>1)*20480 + (i&1)*256}")
    a("L_fold_done:")
    for r in range(16): a(f"v_mov_b32 v{32+r}, 0")
    a("s_waitcnt lgkmcnt(0)")
    stamp(a, 14)
    a("s_barrier")
    stamp(a, 2)
    a("s_mul_i32 s42, s27, 6")
    a("s_add_u32 s42, s42, s49")
    a("s_cmp_gt_u32 s42, 10")
    a("s_cbranch_scc1 L_prep_done")
    def ureads(j, kinds):
        jj = j & 3; o = (j >> 2) * 4096; b = UB[j & 3]; r = []
        for k in kinds:
            if k == 2: r.append(f"ds_read_b128 {vr(b+8,4)}, v{AU+4} offset:{j*32}")
            else: r.append(f"ds_read_b128 {vr(b+4*k,4)}, v{AU+jj} offset:{o + k*20480}")
        return r
    a("s_mov_b32 s45, 5")
    a("s_or_b32 s51, s26, s50")
    a("s_cmp_eq_u32 s51, 0")
    a("s_cselect_b32 s40, 1, 0")
    a(f"s_cmp_lt_u32 s{sWAVE}, 4")
    a("s_cselect_b32 s41, 2, 0")
    a("s_add_u32 s40, s40, s41")
    variants = [[0], [0, 2], [0, 1], [0, 1, 2]]
    for v in range(1, 4):
        a(f"s_cmp_eq_u32 s40, {v}")
        a(f"s_cbranch_scc1 L_f1_v{v}")
    for v, kinds in enumerate(variants):
        a(f"L_f1_v{v}:")
        nm = len(kinds)
        for x in ureads(0, kinds) + ureads(1, kinds): a(x)
        a(f"L_f1_loop{v}:")
        for jj in range(4):
            buf = jj & 1
            va = rot(0, buf) + cvts(0, buf ^ 1)
            if 1 in kinds: va = rot(0, buf) + rot(1, buf) + cvts(0, buf ^ 1) + cvts(1, buf ^ 1)
            rd = ureads(jj + 2, kinds)
            a(f"s_waitcnt lgkmcnt({nm})")
            a("s_nop 0")
            per = len(va) // nm
            for m, k in enumerate(kinds):
                d = vr(ACC3[k], 16)
                a(f"v_mfma_f32_32x32x16_bf16 {d}, {vr(UB[jj]+4*k,4)}, {vr(HB[k & 1][buf],4)}, {d}")
                a(rd[m])
                for x in va[per*m:per*m+per]: a(x)
        for r in range(4): a(f"v_add_u32 v{AU+r}, 4096, v{AU+r}")
        if 2 in kinds: a(f"v_add_u32 v{AU+4}, 128, v{AU+4}")
        a("s_sub_u32 s45, s45, 1")
        a("s_cmp_lg_u32 s45, 0")
        a(f"s_cbranch_scc1 L_f1_loop{v}")
        if v < 3: a("s_branch L_f1_done")
    a("L_f1_done:")
    stamp(a, 5)
    a("s_mul_i32 s43, s42, 33")
    a("s_and_b32 s44, s26, 1")
    a("s_lshl_b32 s44, s44, 4")
    a("s_lshr_b32 s45, s26, 1")
    a("s_add_u32 s44, s44, s45")
    a("s_add_u32 s44, s44, s43")
    a(f"s_mul_i32 s45, s50, {22*33}")
    a("s_add_u32 s44, s44, s45")
    a("s_lshl_b32 s44, s44, 10")
    a("s_waitcnt lgkmcnt(0)")
    a("s_nop 5")
    for jb in range(2):
        b = ACC3[jb]
        if jb == 1:
            a(f"s_cmp_ge_u32 s{sWAVE}, 4")
            a("s_cbranch_scc1 L_f1_one")
        for r in range(8): a(f"v_cvt_pk_bf16_f32 v{b+r}, v{b+2*r}, v{b+2*r+1}")
        for hf in range(2):
            a(f"buffer_store_dwordx4 {vr(b+4*hf,4)}, v15, s[36:39], s44 offen sc1")
            a(f"s_add_u32 s44, s44, {11*33*1024}")
    a("L_f1_one:")
    a("s_cmp_lg_u32 s51, 0")
    a("s_cbranch_scc1 L_prep_done")
    b = ACC3[2]
    for r in range(4): a(f"v_cvt_pk_bf16_f32 v{b+r}, v{b+2*r}, v{b+2*r+1}")
    a("s_add_u32 s43, s43, 32")
    a("s_lshl_b32 s43, s43, 10")
    a(f"buffer_store_dwordx4 {vr(b,4)}, v15, s[36:39], s43 offen sc1")
    a("L_prep_done:")
    if OPT.get('sw2'):
        a(f"s_cmp_lt_u32 s{sWAVE}, 5")
        a("s_cbranch_scc1 L_prep_fin")
        side_work(a)
        side_work_finish(a)
        a("L_prep_fin:")
    a(f"s_cmp_lt_u32 s{sWAVE}, 4")
    a("s_cbranch_scc1 L_A_done")
    get_nonce(a, 2)

W_PROG, W_GO, W_CNT, W_PASS, W_XCH, W_NON = 0, 4, 8, 16, 32, 48
def a_done(a):
    a("L_A_done:")
    stamp(a, 6)
    a(f"v_mov_b32 v23, {LDS_PROG}")
    a(f"s_cmp_lg_u32 s{sWAVE}, 4")
    a("s_cbranch_scc1 L_A_bar")
    a(f"v_mov_b32 v2, s{sNON}")
    a(f"v_mov_b32 v3, s{sNON+1}")
    a(f"ds_write_b64 v23, v[2:3] offset:{W_NON}")
    a("L_A_bar:")
    a("s_waitcnt lgkmcnt(0)")
    a("s_barrier")
    stamp(a, 4)
    a(f"s_lshr_b32 s26, s{sXCD}, 1")
    a("s_lshl_b32 s26, s26, 3")
    a(f"s_and_b32 s27, s{sSLOT}, 7")
    a("s_add_u32 s26, s26, s27")
    a(f"s_and_b32 s27, s{sXCD}, 1")
    a("s_lshl_b32 s27, s27, 2")
    a(f"s_lshr_b32 s40, s{sSLOT}, 3")
    a("s_add_u32 s27, s27, s40")
    a(f"s_cmp_ge_u32 s{sWAVE}, 4")
    a("s_cbranch_scc1 L_aux")

def drained(a, vt):
    a(f"v_mov_b32 v{vt}, 1")
    a("s_mov_b64 exec, 1")
    a(f"ds_add_u32 v23, v{vt} offset:{W_CNT}")
    a("s_mov_b64 exec, -1")

def attention(a):
    SL = OPT.get('slot', 1)
    AKA, AKB, AV, AKB2 = 4, 5, 168, 172
    AREGS = [AKA, AV, AV+1, AV+2, AV+3] + ([AKB2, AKB2+1] if SL else [AKB])
    QA = [8, 14]
    NEG = [32, 48]; S = [64, 80]; O = [96, 112]; P = 128
    KB = [136, 142]; VB = [148, 156]
    PR = 164
    a("L_attn:")
    a(f"ds_read_b32 v24, v23 offset:{W_GO}")
    a(f"ds_read_b64 v[26:27], v23 offset:{W_NON}")
    a(f"s_setprio {OPT.get('pattn', 2)}")
    a(f"s_mul_i32 s40, s26, {Q_HEAD}")
    a(f"s_add_u32 s40, s40, {Q_OFF}")
    make_srd(a, 28, pWS, "s40", Q_HEAD)
    a(f"s_mul_i32 s40, s26, {KV_HEAD}")
    make_srd(a, 32, pWS, "s40", KV_HEAD)
    a("v_and_b32 v2, 31, v1")
    a("v_lshrrev_b32 v3, 5, v1")
    a(f"v_lshlrev_b32 v{AKA}, 4, v1")
    a(f"v_lshlrev_b32 v{AKB}, 3, v2")
    a(f"v_add_u32 v{AKB}, 1024, v{AKB}")
    a(f"v_mov_b32 v20, {HUGE}")
    a("v_cmp_gt_u32 vcc, 32, v1")
    a("s_lshl_b32 s41, s27, 3")
    a(f"s_lshl_b32 s42, s{sWAVE}, 1")
    a("s_add_u32 s41, s41, s42")
    a(f"v_cndmask_b32 v20, v20, v{AKB}, vcc")
    a(f"s_mul_i32 s42, s41, {TQ}")
    a("v_and_b32 v21, 28, v2")
    a("v_add_u32 v21, v21, v2")
    a("v_lshl_add_u32 v21, v3, 2, v21")
    a("v_lshlrev_b32 v21, 4, v21")
    a("v_add_u32 v29, 1280, v21")
    a("s_mov_b32 s48, 0x000fffff")
    a("s_mov_b32 s49, 0x000fffff")
    a("s_mov_b32 s52, 0x07060302")
    a("s_waitcnt lgkmcnt(0)")
    a("v_readfirstlane_b32 s47, v24")
    a(f"v_readfirstlane_b32 s{sNON}, v26")
    a(f"v_readfirstlane_b32 s{sNON+1}, v27")
    a("s_mov_b32 s50, s47")
    a("s_cmp_lg_u32 s47, 0")
    a("s_cbranch_scc1 L_attn_go")
    a("s_waitcnt vmcnt(0)")
    stamp(a, 3)
    drained(a, 24)
    a("L_attn_spin:")
    a(f"s_sleep {OPT.get('asl', 1)}")
    a(f"ds_read_b32 v24, v23 offset:{W_GO}")
    a("s_waitcnt lgkmcnt(0)")
    a("v_readfirstlane_b32 s47, v24")
    a("s_nop 0")
    a("s_cmp_eq_u32 s47, 0")
    a("s_cbranch_scc1 L_attn_spin")
    a("L_attn_go:")
    stamp(a, 7); stamp(a, 7, 2); stamp_real(a, 8, 2)
    a("s_sub_u32 s47, s47, 1")
    a(f"s_mul_i32 s47, s47, {4*TKV}")
    for q in range(2):
        a(f"buffer_load_dwordx4 {vr(QA[q],4)}, v{AKA}, s[28:31], s42 offen offset:{q*TQ} sc1")
        a(f"buffer_load_dwordx2 {vr(QA[q]+4,2)}, v20, s[28:31], s42 offen offset:{q*TQ} sc1")
    a(f"buffer_load_dwordx4 {vr(KB[0],4)}, v{AKA}, s[32:35], s47 offen sc1")
    if SL:
        for b in KB:
            a(f"v_mov_b32 v{b+4}, 0x3f803f80")
            a(f"v_mov_b32 v{b+5}, 0x3f80")
        a("s_mov_b32 exec_hi, 0")
    a(f"buffer_load_dwordx2 {vr(KB[0]+4,2)}, v{AKB}, s[32:35], s47 offen sc1")
    if SL: a("s_mov_b64 exec, -1")
    a("v_mov_b32 v24, 0x3f803f80")
    a("v_cmp_eq_u32 vcc, 20, v2")
    a(f"s_add_u32 s43, s47, {TKV}")
    a("s_nop 0")
    a("v_cndmask_b32 v24, 0, v24, vcc")
    for r in range(16): a(f"v_mov_b32 v{VB[0]+r}, v24")
    a(f"buffer_load_dwordx4 {vr(KB[1],4)}, v{AKA}, s[32:35], s43 offen sc1")
    if SL: a("s_mov_b32 exec_hi, 0")
    a(f"buffer_load_dwordx2 {vr(KB[1]+4,2)}, v{AKB}, s[32:35], s43 offen sc1")
    a("s_mov_b64 exec, s[48:49]")
    a(f"buffer_load_dwordx4 {vr(VB[0],4)}, v29, s[32:35], s47 offen sc1")
    a(f"buffer_load_dwordx4 {vr(VB[0]+4,4)}, v29, s[32:35], s47 offen offset:640 sc1")
    a(f"buffer_load_dwordx4 {vr(VB[1],4)}, v29, s[32:35], s43 offen sc1")
    a(f"buffer_load_dwordx4 {vr(VB[1]+4,4)}, v29, s[32:35], s43 offen offset:640 sc1")
    a("s_mov_b64 exec, -1")
    a("s_cmp_eq_u32 s50, 0")
    a("s_cbranch_scc1 L_attn_cnt")
    a("s_waitcnt vmcnt(12)")
    stamp(a, 3)
    drained(a, 24)
    a("L_attn_cnt:")
    a("v_mov_b32 v22, 5120")
    if OPT.get('zr', 1):
        a("v_cmp_lt_u32 vcc, 20, v2")
        a("v_mov_b32 v21, 5136")
        a("s_nop 0")
        a("v_cndmask_b32 v22, v22, v21, vcc")
    a("v_cmp_gt_u32 vcc, 20, v2")
    for i in range(4): a(f"v_add_u32 v{AV+i}, {(i>>1)*TKV + (i&1)*640}, v29")
    for i in range(4): a(f"v_cndmask_b32 v{AV+i}, v22, v{AV+i}, vcc")
    if SL:
        a("v_cmp_gt_u32 vcc, 32, v1")
        a("v_mov_b32 v22, 5152")
        a(f"v_add_u32 v21, {TKV}, v{AKB}")
        a(f"v_cndmask_b32 v{AKB2}, v22, v{AKB}, vcc")
        a(f"v_cndmask_b32 v{AKB2+1}, v22, v21, vcc")
    make_srd(a, 36, pWS, O_OFF, O_SIZE)
    for q in range(2):
        for r in range(16): a(f"v_mov_b32 v{O[q]+r}, 0")
    LOOPED = [False]
    mm16 = "v_mfma_f32_32x32x16_bf16"; mm8 = "v_mfma_f32_32x32x8_bf16"
    def M1(s, t, q, c): return "s_nop 1" if OPT.get('nom1') and c == "0" and LOOPED[0] else f"{mm16} {vr(s,16)}, {vr(KB[t&1],4)}, {vr(QA[q],4)}, {c}"
    def M2(s, t, q): return "s_nop 0" if OPT.get('nom2') and LOOPED[0] else f"{mm8} {vr(s,16)}, {vr(KB[t&1]+4,2)}, {vr(QA[q]+4,2)}, {vr(s,16)}"
    def M3(t, q): return "s_nop 1" if OPT.get('nopv') else f"{mm16} {vr(O[q],16)}, {vr(VB[t&1],4)}, {vr(P,4)}, {vr(O[q],16)}"
    def M4(t, q): return "s_nop 1" if OPT.get('nopv') else f"{mm16} {vr(O[q],16)}, {vr(VB[t&1]+4,4)}, {vr(P+4,4)}, {vr(O[q],16)}"
    def rowmax(src, dst, first):
        if first:
            a(f"v_max3_f32 v{dst}, v{src}, v{src+1}, v{src+2}")
            a(f"v_max_f32 v{dst}, v{dst}, v{src+15}")
            rng = range(3, 15, 2)
        else: rng = range(0, 16, 2)
        for r in rng: a(f"v_max3_f32 v{dst}, v{dst}, v{src+r}, v{src+r+1}")
    def finish_neg(add):
        a("v_mov_b32 v26, v24")
        a("v_mov_b32 v27, v25")
        a("s_nop 1")
        a("v_permlane32_swap_b32 v24, v26")
        a("v_permlane32_swap_b32 v25, v27")
        a("s_nop 1")
        a("v_max_f32 v24, v24, v26")
        a("v_max_f32 v25, v25, v27")
        if not SL:
            for q in range(2):
                a(f"v_sub_f32 v{NEG[q]}, {add}, v{24+q}")
                for r in range(1, 16): a(f"v_mov_b32 v{NEG[q]+r}, v{NEG[q]}")
            return
        a("s_mov_b32 s45, 0xffff0000")
        a("s_mov_b32 s46, 0x07060302")
        for q in range(2):
            a(f"v_sub_f32 v{24+q}, {add}, v{24+q}")
        for q in range(2):
            a(f"v_and_b32 v26, s45, v{24+q}")
            a(f"v_sub_f32 v27, v{24+q}, v26")
            a("v_and_b32 v28, s45, v27")
            a("v_sub_f32 v27, v27, v28")
            a("v_perm_b32 v26, v28, v26, s46")
            a("v_lshrrev_b32 v27, 16, v27")
            a("s_mov_b32 exec_lo, 0")
            a(f"v_mov_b32 v{QA[q]+4}, v26")
            a(f"v_mov_b32 v{QA[q]+5}, v27")
            a("s_mov_b64 exec, -1")
        a("s_nop 1")
    CNEG = lambda q: "0" if SL else vr(NEG[q], 16)
    a("s_waitcnt vmcnt(6)")
    stamp(a, 8)
    for q in range(2): a(M1(S[q], 0, q, "0"))
    for q in range(2): a(M2(S[q], 0, q))
    a("s_nop 11")
    rowmax(S[0], 24, True)
    a("s_nop 1")
    rowmax(S[1], 25, True)
    finish_neg(hex(f32bits(-float(OPT.get('off', 100)))))
    a(M1(S[0], 0, 0, CNEG(0)))
    a(M2(S[0], 0, 0))
    a(f"ds_read_b32 v{PR}, v23")
    a("s_waitcnt vmcnt(0)")
    a("s_nop 9")
    def check(need):
        l = a.label("L_chk"); ok = a.label("L_chkok")
        a(f"{l}:")
        a("s_waitcnt lgkmcnt(0)")
        a(f"v_readfirstlane_b32 s44, v{PR}")
        a("s_nop 0")
        a(f"s_cmp_ge_u32 s44, {need}")
        a(f"s_cbranch_scc1 {ok}")
        a(f"ds_read_b32 v{PR}, v23")
        a(f"s_branch {l}")
        a(".p2align 3")
        a(f"{ok}:")
    def unit(t, q, s4=(), s1=(), s2=(), s3=(), first=False, nonext=False):
        s = S[q]; sn = S[q ^ 1]
        t1, q1 = (t, 1) if q == 0 else (t + 1, 0)
        tp, qp = (t - 1, 1) if q == 0 else (t, 0)
        E = lambda r: a(f"v_exp_f32 v{s+r}, v{s+r}")
        C = lambda j: a(f"v_perm_b32 v{P+j}, v{s+2*j+1}, v{s+2*j}, s52" if OPT.get('perm') else f"v_cvt_pk_bf16_f32 v{P+j}, v{s+2*j}, v{s+2*j+1}")
        al = OPT.get('al', 1)
        EW = lambda r: a(f"v_exp_f32_e64 v{s+r}, v{s+r}") if al else E(r)
        odd = lambda xs: sum(1 for x in xs if x.startswith("s_")) & 1
        E(0); E(1)
        if not first: a(M4(tp, qp))
        for x in s4: a(x)
        (E if odd(s4) else EW)(2); E(3); E(4)
        if not nonext: a(M1(sn, t1, q1, CNEG(q1)))
        for x in s1: a(x)
        EW(5); E(6); E(7)
        for j in range(4): C(j)
        if not nonext: a(M2(sn, t1, q1))
        for x in s2: a(x)
        EW(8)
        for r in range(9, 13): E(r)
        a(M3(t, q))
        for x in s3: a(x)
        (E if odd(s3) else EW)(13); E(14); E(15)
        for j in range(4, 8): C(j)
    def period(t, o, extra3=()):
        if OPT.get('nods') and LOOPED[0]: o = None
        if o is None:
            if extra3:
                unit(t, 1, s4=["s_waitcnt lgkmcnt(0)"]); unit(t + 1, 0, s3=extra3); return
            unit(t, 1, s4=["s_waitcnt lgkmcnt(0)"]); unit(t + 1, 0); return
        kb = KB[t & 1]; vb = VB[t & 1]
        ok = lds_tile(o + 2); ov = (o >> 1) * LPAIR; av = AV + 2*(o & 1)
        unit(t, 1, s4=["s_waitcnt lgkmcnt(0)"],
             s1=[f"ds_read_b128 {vr(kb,4)}, v{AKA} offset:{ok}"],
             s3=[f"ds_read_b64 {vr(kb+4,2)}, v{AKB2+(o&1)} offset:{ov}" if SL else f"ds_read_b64 {vr(kb+4,2)}, v{AKB} offset:{ok}"])
        unit(t + 1, 0, s4=[f"ds_read_b128 {vr(vb,4)}, v{av} offset:{ov}"],
             s1=[f"ds_read_b128 {vr(vb+4,4)}, v{av+1} offset:{ov}"], s3=extra3)
    rdp = [f"ds_read_b32 v{PR}, v23"]
    a(".p2align 3")
    unit(0, 0, first=True)
    stamp(a, 9)
    check(1)
    for t in range(6):
        if t == 2: check(2)
        period(t, t, rdp if t in (1, 5) else ())
    for r in AREGS: a(f"v_add_u32 v{r}, {3*LPAIR}, v{r}")
    a(f"s_lshl_b32 s45, s{sWAVE}, 2")
    a("v_add_u32 v24, s45, v23")
    a(f"ds_write_b32 v24, v23 offset:{W_PASS}")
    a("s_mov_b32 s45, 2")
    a("s_mov_b32 s46, 7")
    stamp(a, 10); stamp(a, 10, 2); stamp_real(a, 12, 2)
    LOOPED[0] = True
    def body(chk):
        for k in range(8):
            ex = ()
            if k == 7: ex = (rdp if chk else [])
            if k == 6: ex = ["s_sub_u32 s46, s46, 1"]
            if k == 7 and not chk: ex = ["s_cmp_lg_u32 s46, 0"]
            period(k, k, ex)
        for r in AREGS: a(f"v_add_u32 v{r}, {4*LPAIR}, v{r}")
    a("s_cmp_eq_u32 s44, 16")
    a("s_cbranch_scc1 L_attn_fast")
    a(".p2align 3")
    a("L_attn_loop:")
    a("s_add_u32 s45, s45, 2")
    check("s45")
    body(True)
    a("s_cmp_eq_u32 s46, 0")
    a("s_cbranch_scc1 L_attn_last")
    a("s_cmp_lg_u32 s44, 16")
    a("s_cbranch_scc1 L_attn_loop")
    a(".p2align 3")
    a("L_attn_fast:")
    body(False)
    a("s_cbranch_scc1 L_attn_fast")
    a(".p2align 3")
    a("L_attn_last:")
    period(62, None)
    unit(63, 1, nonext=True)
    a("s_nop 1")
    a(M4(63, 1))
    stamp(a, 11); stamp(a, 11, 2); stamp_real(a, 13, 2)
    a("L_attn_post:")
    a("s_lshl_b32 s42, s41, 5")
    a("s_add_u32 s42, s42, s26")
    a("s_mul_i32 s42, s42, 1280")
    a("v_lshlrev_b32 v21, 4, v1")
    for q in range(2):
        a(f"v_mov_b32 v{24+q}, v{O[q]+8}")
        a(f"v_mov_b32 v26, v{O[q]+8}")
        a("s_nop 1")
        a(f"v_permlane32_swap_b32 v26, v{24+q}")
        a("s_nop 0")
        a(f"v_rcp_f32 v26, v{24+q}")
        a("s_nop 0")
        for r in range(12): a(f"v_mul_f32 v{S[q]+r}, v{O[q]+r}, v26")
        for r in range(6): a(f"v_cvt_pk_bf16_f32 v{S[q]+r}, v{S[q]+2*r}, v{S[q]+2*r+1}")
        a(f"buffer_store_dwordx4 {vr(S[q],4)}, v21, s[36:39], s42 offen sc1")
        a(f"buffer_store_dwordx2 {vr(S[q]+4,2)}, v20, s[36:39], s42 offen sc1")
        if q == 0: a(f"s_add_u32 s42, s42, {32*1280}")
    a("s_cmp_eq_u32 s46, 0")
    a("s_cbranch_scc0 L_attn_fin")
    for q in range(2):
        a(f"v_max3_f32 v{30+q}, abs(v{O[q]}), abs(v{O[q]+1}), abs(v{O[q]+2})")
        a(f"v_mul_f32 v{26+q}, 0, v{24+q}")
    for r in range(12):
        for q in range(2): a(f"v_fma_f32 v{26+q}, v{O[q]+r}, 0, v{26+q}")
    for q in range(2):
        a(f"v_max3_f32 v{30+q}, v{30+q}, abs(v{O[q]+3}), abs(v{O[q]+4})")
        a(f"v_max3_f32 v{30+q}, v{30+q}, abs(v{O[q]+5}), abs(v{O[q]+6})")
        a(f"v_max_f32 v{30+q}, v{30+q}, abs(v{O[q]+7})")
    a("v_max_f32 v24, v24, v25")
    a("v_min_f32 v30, v30, v31")
    a("v_mov_b32 v28, 0x76800000")
    a("v_mov_b32 v31, 0x08800000")
    a("v_cmp_u_f32 s[44:45], v26, v27")
    a("v_cmp_nlt_f32 vcc, v24, v28")
    a("v_cmp_lt_f32 s[50:51], v30, v31")
    a("s_nop 1")
    a("s_or_b64 vcc, vcc, s[44:45]")
    a("s_or_b64 vcc, vcc, s[50:51]")
    if OPT.get('forcefb'): a("s_mov_b64 vcc, -1")
    a("s_cbranch_vccnz L_attn_fallback")
    a("L_attn_fin:")
    a("s_lshl_b32 s40, s2, 2")
    a(f"s_add_u32 s40, s40, s{sWAVE}")
    a(f"s_add_u32 s40, s40, {FB}")
    a("s_lshl_b32 s40, s40, 7")
    for i in range(4): a(f"v_mov_b32 v{8+i}, s{sNON+(i&1)}")
    a("s_waitcnt vmcnt(0)")
    stamp(a, 12)
    a("s_mov_b64 exec, 0xff")
    a(f"buffer_store_dwordx4 v[8:11], v21, {sr(sFL,4)}, s40 offen sc1")
    a("s_mov_b64 exec, -1")
    a("s_barrier")
    a("s_branch L_end")
    a("L_attn_fallback:")
    a("s_waitcnt vmcnt(0)")
    for r in ((AKA,) if SL else (AKA, AKB)): a(f"v_subrev_u32 v{r}, {31*LPAIR}, v{r}")
    if SL:
        a("s_mov_b32 exec_lo, 0")
        for q in range(2):
            a(f"v_mov_b32 v{QA[q]+4}, 0")
            a(f"v_mov_b32 v{QA[q]+5}, 0")
        a("s_mov_b64 exec, -1")
    a("v_mov_b32 v24, 0xff800000")
    a("v_mov_b32 v25, 0xff800000")
    a("s_mov_b32 s46, 0")
    a("L_fb_max:")
    a(f"buffer_load_dwordx4 {vr(KB[0],4)}, v{AKA}, s[32:35], s46 offen sc1")
    if SL: a("s_mov_b32 exec_hi, 0")
    a(f"buffer_load_dwordx2 {vr(KB[0]+4,2)}, v{AKB}, s[32:35], s46 offen sc1")
    if SL: a("s_mov_b64 exec, -1")
    a("s_waitcnt vmcnt(0)")
    for q in range(2): a(M1(S[q], 0, q, "0"))
    for q in range(2): a(M2(S[q], 0, q))
    a("s_nop 15")
    rowmax(S[0], 24, False)
    rowmax(S[1], 25, False)
    a(f"s_add_u32 s46, s46, {TKV}")
    a(f"s_cmp_lt_u32 s46, {KV_HEAD}")
    a("s_cbranch_scc1 L_fb_max")
    finish_neg("0")
    for q in range(2):
        for r in range(16): a(f"v_mov_b32 v{O[q]+r}, 0")
    a("s_mov_b32 s46, 0")
    a("L_fb_main:")
    a(f"buffer_load_dwordx4 {vr(KB[0],4)}, v{AKA}, s[32:35], s46 offen sc1")
    if SL: a("s_mov_b32 exec_hi, 0")
    a(f"buffer_load_dwordx2 {vr(KB[0]+4,2)}, v{AKB}, s[32:35], s46 offen sc1")
    if SL: a("s_mov_b64 exec, -1")
    a("s_mov_b64 exec, s[48:49]")
    a(f"buffer_load_dwordx4 {vr(VB[0],4)}, v29, s[32:35], s46 offen sc1")
    a(f"buffer_load_dwordx4 {vr(VB[0]+4,4)}, v29, s[32:35], s46 offen offset:640 sc1")
    a("s_mov_b64 exec, -1")
    a("s_waitcnt vmcnt(0)")
    for q in range(2): a(M1(S[q], 0, q, CNEG(q)))
    for q in range(2): a(M2(S[q], 0, q))
    a("s_nop 15")
    for q in range(2):
        for r in range(16): a(f"v_exp_f32 v{S[q]+r}, v{S[q]+r}")
        a("s_nop 0")
        for j in range(8): a(f"v_cvt_pk_bf16_f32 v{P+j}, v{S[q]+2*j}, v{S[q]+2*j+1}")
        a("s_nop 1")
        a(M3(0, q)); a(M4(0, q))
    a(f"s_add_u32 s46, s46, {TKV}")
    a(f"s_cmp_lt_u32 s46, {KV_HEAD}")
    a("s_cbranch_scc1 L_fb_main")
    a("s_nop 15")
    a("s_branch L_attn_post")

def aux(a):
    a("L_aux:")
    a(f"s_setprio {OPT.get('paux', 0)}")
    a(f"s_sub_u32 s44, s{sWAVE}, 4")
    a("v_lshlrev_b32 v2, 4, v1")
    a("s_waitcnt vmcnt(0)")
    drained(a, 3)
    a("s_cmp_eq_u32 s44, 0")
    a("s_cbranch_scc1 L_kv")
    a("s_cmp_lg_u32 s44, 1")
    a("s_cbranch_scc1 L_aux_wait")
    a("s_lshl_b32 s40, s2, 7")
    a("L_cnt_spin:")
    a(f"s_sleep {OPT.get('asl', 1)}")
    a(f"ds_read_b32 v3, v23 offset:{W_CNT}")
    a("s_waitcnt lgkmcnt(0)")
    a("v_readfirstlane_b32 s41, v3")
    a("s_nop 0")
    a("s_cmp_lt_u32 s41, 8")
    a("s_cbranch_scc1 L_cnt_spin")
    stamp(a, 7)
    set_flag(a, 40, 8, also=FL1*128 if OPT.get('lf', 1) else None)
    a("L_aux_wait:")
    a(f"s_sleep {OPT.get('wsl', 16)}")
    a(f"ds_read_b32 v3, v23 offset:{W_PROG}")
    a("s_waitcnt lgkmcnt(0)")
    a("v_readfirstlane_b32 s41, v3")
    a("s_nop 0")
    a(f"s_cmp_lt_u32 s41, {OPT.get('f2w', 6)}")
    a("s_cbranch_scc1 L_aux_wait")
    if OPT.get('dyn', 1):
        a("s_cmp_lg_u32 s44, 1")
        a("s_cbranch_scc1 L_kv_done")
        make_srd(a, 28, pDBG, 0, 256)
        a("v_mov_b32 v3, 1")
        a("v_mov_b32 v4, 128")
        a("s_mov_b64 exec, 1")
        a("buffer_atomic_add v3, v4, s[28:31], 0 offen sc0")
        a("s_waitcnt vmcnt(0)")
        a("v_add_u32 v3, 1, v3")
        a("ds_write_b32 v23, v3 offset:12")
        a("s_mov_b64 exec, -1")
    a("s_branch L_kv_done")
    a("L_kv:")
    a(f"s_mul_i32 s40, s26, {KV_HEAD}")
    make_srd(a, 28, pWS, "s40", KV_HEAD)
    a(f"v_mul_u32_u24 v6, {LPAIR}, v1")
    a("v_min_u32 v6, %d, v6" % (30*LPAIR))
    for r in range(4): a(f"v_mov_b32 v{8+r}, 0x3f803f80")
    a("ds_write_b128 v6, v[8:11] offset:5120")
    for r in range(4): a(f"v_mov_b32 v{12+r}, 0")
    a("ds_write_b128 v6, v[12:15] offset:5136")
    a("v_mov_b32 v16, 0x3f803f80")
    a("v_mov_b32 v17, 0x3f80")
    a("ds_write_b64 v6, v[16:17] offset:5152")
    a("s_lshr_b32 s41, s26, 3")
    a("s_lshl_b32 s41, s41, 1")
    a(f"s_and_b32 s43, s{sXCD}, 1")
    a("s_lshl_b32 s43, s43, 3")
    a("s_lshl_b32 s42, s27, 1")
    a("v_and_b32 v3, 15, v1")
    a("v_lshrrev_b32 v5, 4, v1")
    a("v_add_u32 v5, 1, v5")
    a("v_and_b32 v4, 7, v1")
    a("v_add_u32 v4, s43, v4")
    a("v_bfe_u32 v6, v1, 3, 1")
    a("v_add_u32 v6, 1, v6")
    a("v_cmp_gt_u32 vcc, 32, v1")
    a("v_and_b32 v7, 1, v1")
    a("v_add_u32 v7, s42, v7")
    a("v_cndmask_b32 v3, v4, v3, vcc")
    a("v_cndmask_b32 v5, v6, v5, vcc")
    a("v_cmp_gt_u32 vcc, 48, v1")
    a("v_add_u32 v6, -48, v1")
    a(f"v_mov_b32 v4, {FL1}")
    a("v_cndmask_b32 v3, v7, v3, vcc")
    a("v_cndmask_b32 v5, 0, v5, vcc")
    a("v_cmp_gt_u32 vcc, 2, v6")
    a("v_cmp_gt_u32 s[46:47], 32, v1")
    a("v_and_b32 v7, 7, v3")
    a("v_lshl_add_u32 v5, v5, 3, v7")
    a("s_or_b64 vcc, vcc, s[46:47]")
    a("v_lshrrev_b32 v3, 3, v3")
    a("v_add_u32 v3, s41, v3")
    a("v_cndmask_b32 v4, v4, 0, vcc")
    a("v_lshl_add_u32 v5, v5, 3, v3")
    a("v_add_u32 v5, v5, v4")
    a("v_lshlrev_b32 v5, 7, v5")
    def poll_once(first=False):
        if first and OPT.get('lf', 1):
            a("s_and_b32 s48, s40, 7")
            a("s_cmp_eq_u32 s48, 0")
            a("s_cselect_b32 exec_lo, -1, 0")
            a("s_cselect_b32 exec_hi, -1, 0xcffff")
        a(f"buffer_load_dwordx2 v[6:7], v5, {sr(sFL,4)}, 0 offen sc1")
        if first and OPT.get('lf', 1): a("s_mov_b64 exec, -1")
        a("s_waitcnt vmcnt(0)")
        a(f"v_cmp_eq_u64 vcc, {sr(sNON,2)}, v[6:7]")
        a("s_sub_u32 s40, s40, 1")
        a("s_cselect_b32 s47, 0xffff, 0")
        a("s_and_b32 s48, vcc_hi, 0xff")
        a("s_lshl_b32 s48, s48, s43")
        a("s_or_b32 s48, s48, vcc_lo")
        a("s_bfe_u32 s49, vcc_hi, 0x80008")
        a("s_lshl_b32 s49, s49, s43")
        a("s_lshr_b32 s45, vcc_lo, 16")
        a("s_or_b32 s45, s45, s49")
        a("s_and_b32 s45, s45, s48")
        a("s_or_b32 s45, s45, s47")
    def pub(off, sreg):
        a(f"v_mov_b32 v4, s{sreg}")
        a(f"ds_write_b32 v23, v4 offset:{off}")
    a(f"s_mov_b32 s40, {POLL_MAX - 1}")
    a("v_mov_b32 v6, 0")
    a("v_mov_b32 v7, 0")
    if OPT.get('padgo'):
        a("L_padgo:")
        a("s_memrealtime s[42:43]")
        a("s_waitcnt lgkmcnt(0)")
        a(f"s_sub_u32 s42, s42, s{sNON}")
        a(f"s_cmp_lt_u32 s42, {OPT['padgo']}")
        a("s_cbranch_scc1 L_padgo")
    a("L_kv_p1:")
    a(f"s_sleep {OPT.get('ksl', 1)}")
    poll_once(True)
    a("s_cmp_lg_u32 s47, 0")
    a("s_cbranch_scc1 L_kv_first")
    a("s_lshr_b32 s48, vcc_hi, 16")
    a("s_lshr_b32 s49, vcc_hi, 18")
    a("s_or_b32 s48, s48, s49")
    a("s_and_b32 s48, s48, 3")
    a("s_cmp_eq_u32 s48, 3")
    a("s_cselect_b32 s48, s45, 0")
    a("s_cmp_eq_u32 s48, 0")
    a("s_cbranch_scc1 L_kv_p1")
    a("L_kv_first:")
    a("s_ff1_i32_b32 s48, s45")
    a("s_add_u32 s49, s48, 1")
    pub(W_GO, 49)
    stamp(a, 7)
    a("s_lshl_b32 s46, 1, s48")
    a(f"s_mul_i32 s48, s48, {4*TKV}")
    a(f"s_add_u32 s48, s48, {2*TKV}")
    for i in range(5):
        a(f"s_mov_b32 m0, {i*1024}")
        a("s_nop 0")
        a("buffer_load_dwordx4 v2, s[28:31], s48 offen sc1 lds")
        if i < 4: a("s_add_u32 s48, s48, 1024")
    a("s_mov_b32 s50, 1")
    a(f"s_mov_b32 s51, {LPAIR}")
    a("L_kv_next:")
    a("s_andn2_b32 s48, s45, s46")
    a("s_cbranch_scc0 L_kv_poll")
    a("s_ff1_i32_b32 s48, s48")
    a("s_bitset1_b32 s46, s48")
    a(f"s_mul_i32 s48, s48, {4*TKV}")
    for i in range(10):
        a(f"s_add_u32 m0, s51, {i*1024 + (64 if i >= 5 else 0)}")
        if i: a("s_add_u32 s48, s48, 1024")
        else: a("s_nop 0")
        a("buffer_load_dwordx4 v2, s[28:31], s48 offen sc1 lds")
    a(f"s_add_u32 s51, s51, {2*LPAIR}")
    a("s_cmp_eq_u32 s50, 1")
    a("s_cbranch_scc0 L_kv_w20")
    a("s_waitcnt vmcnt(10)")
    pub(W_PROG, 50)
    a("s_mov_b32 s50, 2")
    a("s_branch L_kv_next")
    a("L_kv_w20:")
    a("s_waitcnt vmcnt(20)")
    a("s_sub_u32 s49, s50, 1")
    pub(W_PROG, 49)
    a("s_add_u32 s50, s50, 1")
    a("s_branch L_kv_next")
    a("L_kv_poll:")
    a("s_waitcnt vmcnt(0)")
    pub(W_PROG, 50)
    a("s_cmp_eq_u32 s50, 16")
    a("s_cbranch_scc1 L_kv_done")
    poll_once()
    a("s_branch L_kv_next")
    a("L_kv_done:")
    if OPT.get('f2s', 16):
        a("s_branch L_all0")
        a("L_all:")
        a(f"s_sleep {OPT.get('wsl', 16)}")
        a("L_all0:")
        a(f"ds_read_b32 v3, v23 offset:{W_PROG}")
        a("s_waitcnt lgkmcnt(0)")
        a("v_readfirstlane_b32 s41, v3")
        a("s_nop 0")
        a(f"s_cmp_lt_u32 s41, {OPT.get('f2s', 16)}")
        a("s_cbranch_scc1 L_all")
    stamp(a, 8)
    a("v_lshlrev_b32 v5, 7, v1")
    a(f"v_add_u32 v5, {192*128}, v5")
    poll(a, 5, 6, sleep=4)
    a(f"s_setprio {OPT.get('pf2', 3)}")
    if OPT.get('dyn', 1):
        a("s_branch L_item0")
        a("L_item:")
        a("s_sleep 8")
        a("L_item0:")
        a("ds_read_b32 v3, v23 offset:12")
        a("s_waitcnt lgkmcnt(0)")
        a("v_readfirstlane_b32 s40, v3")
        a("s_nop 0")
        a("s_cmp_eq_u32 s40, 0")
        a("s_cbranch_scc1 L_item")
        a("s_sub_u32 s40, s40, 1")
    else:
        a(f"s_sub_u32 s40, 31, s{sSLOT}")
        a("s_cmp_ge_u32 s40, 24")
        a("s_cbranch_scc1 L_wo")
        a(f"s_mul_i32 s41, s{sXCD}, 24")
        a("s_add_u32 s40, s40, s41")
    a("s_cmp_ge_u32 s40, %d" % (0 if OPT.get('nof2') else 187))
    a("s_cbranch_scc1 L_wo")
    a("s_mul_i32 s41, s40, 373")
    a("s_lshr_b32 s41, s41, 12")
    a("s_mul_i32 s42, s41, 11")
    a("s_sub_u32 s42, s40, s42")
    a("s_lshl_b32 s41, s41, 1")
    a("s_cmp_ge_u32 s41, 18")
    a("s_cselect_b32 s43, 17, 0")
    a("s_sub_u32 s41, s41, s43")
    a("s_and_b32 s43, s41, 1")
    a("s_lshl_b32 s45, s44, 4")
    a("s_min_u32 s46, s44, 1")
    a("s_add_u32 s46, s46, s45")
    a("s_mul_i32 s47, s41, 65")
    a("s_add_u32 s47, s47, s46")
    a("s_lshl_b32 s47, s47, 10")
    a(f"s_add_u32 s47, s47, {SEQ_OFF}")
    make_srd(a, 28, pWS, "s47", 17*1024)
    a("s_and_b32 s47, s44, 2")
    a("s_add_u32 s47, s47, s43")
    a("s_mul_i32 s48, s47, 11")
    a("s_add_u32 s48, s48, s42")
    a("s_mul_i32 s48, s48, 33")
    a("s_and_b32 s45, s45, 16")
    a("s_add_u32 s48, s48, s45")
    a("s_lshl_b32 s48, s48, 10")
    a(f"s_add_u32 s48, s48, {AB_OFF}")
    make_srd(a, 32, pWS, "s48", 33*1024)
    make_srd(a, 36, pOUT, 0, OUT_SIZE)
    FB = 64; AC = 8
    a("s_or_b32 s47, s44, s43")
    a("s_cmp_lg_u32 s47, 0")
    a("s_cbranch_scc1 L_f2_nox")
    a(f"s_mov_b32 s49, {16*1024}")
    a("buffer_load_dwordx4 v[24:27], v2, s[28:31], s49 offen sc1")
    a(f"s_mov_b32 s49, {32*1024}")
    a("buffer_load_dwordx4 v[28:31], v2, s[32:35], s49 offen sc1")
    a("L_f2_nox:")
    for k in range(16):
        b = FB + k * 8
        if k % 4 == 0: a(f"s_mov_b32 s49, {(k//4)*4096}")
        a(f"buffer_load_dwordx4 {vr(b,4)}, v2, s[28:31], s49 offen offset:{(k%4)*1024} sc1")
        a(f"buffer_load_dwordx4 {vr(b+4,4)}, v2, s[32:35], s49 offen offset:{(k%4)*1024} sc1")
    stamp(a, 9)
    a("v_and_b32 v5, 31, v1")
    a("v_lshrrev_b32 v4, 5, v1")
    a("s_lshr_b32 s48, s41, 1")
    a("s_lshl_b32 s48, s48, 6")
    a("s_add_u32 s48, s48, s43")
    a("s_lshl_b32 s49, s44, 4")
    a("s_add_u32 s48, s48, s49")
    a("v_lshl_add_u32 v47, v4, 3, s48")
    a("v_mul_u32_u24 v47, 2560, v47")
    a("s_cmp_ge_u32 s42, 6")
    a("s_cselect_b32 s48, 383, 0")
    a("s_lshl_b32 s49, s42, 6")
    a("s_sub_u32 s48, s49, s48")
    a("v_lshl_add_u32 v5, v5, 1, s48")
    a(f"v_mov_b32 v46, {HUGE}")
    a("v_lshlrev_b32 v6, 1, v5")
    a("v_add_u32 v40, 1280, v6")
    a("v_cmp_ge_u32 vcc, 320, v5")
    a("v_sub_u32 v41, 2560, v6")
    a("v_add_u32 v6, -1, v5")
    a("v_cndmask_b32 v40, v46, v40, vcc")
    a("v_cmp_gt_u32 vcc, 319, v6")
    a(f"v_add_u32 v33, {(2048-6)*2560}, v40")
    a("v_sub_u32 v33, v33, v47")
    a("v_cndmask_b32 v41, v46, v41, vcc")
    a("v_add_u32 v32, v47, v40")
    a("v_add_u32 v36, v47, v41")
    a(f"v_add_u32 v37, {(2048-6)*2560}, v41")
    a("v_sub_u32 v37, v37, v47")
    a(f"v_subrev_u32 v34, {1024*2560}, v33")
    a(f"v_subrev_u32 v38, {1024*2560}, v37")
    a(f"v_add_u32 v35, {1024*2560}, v32")
    a(f"v_add_u32 v39, {1024*2560}, v36")
    a(f"v_add_u32 v42, {3*5120}, v33")
    a(f"v_add_u32 v43, {3*5120}, v37")
    a(f"v_mov_b32 v3, {LDS_PROG}")
    a("s_lshl_b32 s48, s44, 10")
    a("v_add_u32 v6, s48, v2")
    a("s_add_u32 s49, s48, 12288")
    a("s_lshl_b32 s50, s44, 12")
    a("s_add_u32 s51, s50, 3072")
    a("s_cmp_eq_u32 s44, 3")
    a(f"s_cmov_b32 s49, {LDS_PROG + 1024}")
    a(f"s_cmov_b32 s51, {LDS_PROG + 1024}")
    a("v_add_u32 v7, s49, v2")
    a("v_add_u32 v44, s50, v2")
    a("v_add_u32 v45, s51, v2")
    a("s_lshl_b32 s49, s44, 2")
    a("v_add_u32 v5, s49, v3")
    a(f"s_setprio {OPT.get('pmf', 1)}")
    for k in range(16):
        a(f"s_waitcnt vmcnt({2*(15-k)})")
        b = FB + k * 8
        d = vr(AC, 16)
        a(f"v_mfma_f32_32x32x16_bf16 {d}, {vr(b,4)}, {vr(b+4,4)}, {'0' if k == 0 else d}")
    a("s_cmp_lg_u32 s47, 0")
    a("s_cbranch_scc1 L_f2_nox2")
    a(f"v_mfma_f32_32x32x16_bf16 {vr(AC,16)}, v[24:27], v[28:31], {vr(AC,16)}")
    a("L_f2_nox2:")
    a(f"s_setprio {OPT.get('pep', 3)}")
    def spin_min(lbl, off, sl):
        a(f"{lbl}:")
        a(f"ds_read_b128 v[48:51], v3 offset:{off}")
        a("s_waitcnt lgkmcnt(0)")
        a("v_min3_u32 v48, v48, v49, v50")
        a("v_min_u32 v48, v48, v51")
        a("s_nop 0")
        a("v_readfirstlane_b32 s48, v48")
        a("s_nop 0")
        a("s_cmp_lg_u32 s48, 0")
        a(f"s_cbranch_scc1 {lbl}_ok")
        a(f"s_sleep {sl}")
        a(f"s_branch {lbl}")
        a(f"{lbl}_ok:")
    spin_min("L_f2_dead", W_PASS, 16)
    a("s_nop 3")
    for j in range(3): a(f"ds_write_b128 v6, {vr(AC+4*j,4)} offset:{j*4096}")
    a(f"ds_write_b128 v7, {vr(AC+12,4)}")
    a(f"ds_write_b32 v5, v3 offset:{W_XCH}")
    spin_min("L_f2_wait", W_XCH, OPT.get('xsl', 8))
    for i in range(3): a(f"ds_read_b128 {vr(8+4*i,4)}, v44 offset:{i*1024}")
    a("ds_read_b128 v[20:23], v45")
    a("s_waitcnt lgkmcnt(0)")
    ng = "neg_lo:[0,1] neg_hi:[0,1]"
    for r in (0, 2):
        a(f"v_pk_add_f32 {vr(48+r,2)}, {vr(8+r,2)}, {vr(12+r,2)}")
        a(f"v_pk_add_f32 {vr(52+r,2)}, {vr(8+r,2)}, {vr(12+r,2)} {ng}")
        a(f"v_pk_add_f32 {vr(56+r,2)}, {vr(20+r,2)}, {vr(16+r,2)}")
        a(f"v_pk_add_f32 {vr(60+r,2)}, {vr(20+r,2)}, {vr(16+r,2)} {ng}")
    for r in (0, 2):
        a(f"v_pk_add_f32 {vr(8+r,2)}, {vr(48+r,2)}, {vr(56+r,2)} {ng}")
        a(f"v_pk_add_f32 {vr(12+r,2)}, {vr(48+r,2)}, {vr(56+r,2)}")
        a(f"v_pk_add_f32 {vr(16+r,2)}, {vr(52+r,2)}, {vr(60+r,2)} {ng}")
        a(f"v_pk_add_f32 {vr(20+r,2)}, {vr(52+r,2)}, {vr(60+r,2)}")
    for k in range(8): a(f"v_cvt_pk_bf16_f32 v{48+k}, v{8+2*k}, v{9+2*k}")
    a("s_cmp_eq_u32 s41, 16")
    a("s_cbranch_scc1 L_f2_nyq")
    for i in range(4):
        st = "buffer_store_short_d16_hi" if i & 1 else "buffer_store_short"
        m1, p1, m2, p2 = (48 + 2*k + (i >> 1) for k in range(4))
        a(f"s_mov_b32 s47, {i*5120}")
        a(f"s_mov_b32 s48, {(3-i)*5120}")
        for val, adr, so in [(m1, 32, "s47"), (p1, 36, "s47"), (p2, 35, "s47"), (m2, 39, "s47"), (m2, 34, "s48"), (p2, 38, "s48"),
                             (p1, 33 if i else 42, "s48" if i else "0"), (m1, 37 if i else 43, "s48" if i else "0")]:
            a(f"{st} v{val}, v{adr}, s[36:39], {so} offen{FLF()}")
    a("s_branch L_wo")
    a("L_f2_nyq:")
    a("s_cmp_lg_u32 s44, 0")
    a("s_cbranch_scc1 L_wo")
    a("s_mov_b32 exec_hi, 0")
    for val, adr in [(48, 32), (50, 36), (50, 42), (48, 43)]:
        a(f"buffer_store_short v{val}, v{adr}, s[36:39], 0 offen{FLF()}")
    a("s_mov_b64 exec, -1")
    a("L_wo:")
    a(f"s_setprio {OPT.get('pwo', 3)}")
    stamp(a, 10)
    a("s_and_b32 s40, s26, 3")
    a("s_lshl_b32 s40, s40, 2")
    a("s_add_u32 s40, s40, s44")
    a(f"s_mul_i32 s40, s40, {50*1024}")
    a(f"s_add_u32 s40, s40, {WO_OFF}")
    make_srd(a, 28, pWS, "s40", 50*1024)
    a("s_waitcnt vmcnt(0)")
    for k in range(OPT.get('nwo', 50)):
        if k % 4 == 0: a(f"s_mov_b32 s49, {(k//4)*4096}")
        a(f"buffer_load_dwordx4 {vr(56+4*k,4)}, v2, s[28:31], s49 offen offset:{(k%4)*1024} sc1")

def tail(a):
    PADS = OPT.get('pads', 1)
    padn = [0]
    def pad(chain, last=None):
        if not PADS: return
        a(f"L_pad_{chain}_{padn[0]}:")
        padn[0] += 1
        a(f"s_cbranch_vccnz {last or f'L_pad_{chain}_{padn[0]}'}")
    a("L_B_done:")
    a("s_lshr_b32 s40, s26, 2")
    a("s_lshl_b32 s41, s27, 3")
    a("s_add_u32 s41, s41, s40")
    a(f"s_mul_i32 s42, s41, {32*1280}")
    a(f"s_add_u32 s42, s42, {O_OFF}")
    make_srd(a, 28, pWS, "s42", 32*1280)
    a("v_and_b32 v4, 7, v1")
    a("v_bfe_u32 v5, v1, 3, 2")
    a("v_lshlrev_b32 v5, 1, v5")
    a("v_lshl_add_u32 v4, v4, 3, v5")
    a("s_and_b32 s42, s27, 3")
    a("s_lshl_b32 s42, s42, 6")
    a("s_lshr_b32 s43, s27, 2")
    a("s_add_u32 s42, s42, s43")
    a("s_lshl_b32 s42, s42, 2")
    a("s_lshr_b32 s40, s40, 1")
    a("s_add_u32 s42, s42, s40")
    a(f"s_add_u32 s42, s42, {FB}")
    a("v_lshl_add_u32 v4, v4, 2, s42")
    a("v_lshlrev_b32 v4, 7, v4")
    a("v_mov_b32 v8, v4")
    a("v_and_b32 v3, 31, v1")
    a("v_lshrrev_b32 v4, 5, v1")
    a("v_mul_u32_u24 v5, 2560, v4")
    a("v_lshl_add_u32 v5, v3, 3, v5")
    a("v_add_u32 v5, 1024, v5")
    make_srd(a, 32, pOUT, 0, OUT_SIZE)
    a("s_lshl_b32 s41, s41, 5")
    a("v_add_u32 v6, s41, v3")
    a("v_mul_u32_u24 v6, 2560, v6")
    a("s_and_b32 s42, s26, 3")
    a("s_mul_i32 s42, s42, 320")
    a("s_mul_i32 s43, s44, 12800")
    a("v_add_u32 v7, s43, v2")
    a("s_lshl_b32 s43, s44, 12")
    a("s_add_u32 s43, s43, 40960")
    a("v_add_u32 v3, s43, v2")
    a("s_lshl_b32 s43, s44, 10")
    a("s_add_u32 s43, s43, 40960")
    a("v_add_u32 v1, s43, v2")
    a("s_lshl_b32 s45, s44, 4")
    a("s_add_u32 s45, s45, s42")
    a("v_lshl_add_u32 v0, v4, 3, v6")
    a("s_lshl_b32 s43, s44, 6")
    a("s_add_u32 s43, s43, s42")
    a("v_lshl_add_u32 v6, v4, 4, v6")
    if PADS:
        a("s_mov_b64 vcc, -1")
        a("s_nop 0")
        a("s_branch L_pad_a_0")
        a("L_pad_ret:")
        a("s_setprio 3")
    a("s_waitcnt vmcnt(0)")
    stamp(a, 12)
    a("s_barrier")
    stamp(a, 1)
    poll(a, 8, 10, sleep=OPT.get('sl', 0))
    stamp(a, 13)
    if PADS: a("s_mov_b64 vcc, 0")
    a("s_lshl_b32 s40, s44, 10")
    for j in range(10):
        if j % 3 == 0: pad('a')
        a("s_mov_b32 m0, s40")
        a("s_nop 0")
        a("buffer_load_dwordx4 v2, s[28:31], s40 offen sc1 lds")
        if j < 9: a("s_add_u32 s40, s40, 4096")
    a("s_waitcnt vmcnt(%d)" % (6 if OPT.get('prog', 1) else 0))
    a("s_barrier")
    stamp(a, 14)
    if lib.STAMP: a("s_waitcnt lgkmcnt(0)")
    A5, AM, OB = 8, 24, 40
    def rd(buf, kap, base=None):
        b = OB + 4*buf
        if base is not None: return f"ds_read_b128 {vr(b,4)}, v{base} offset:{kap*1280}"
        if kap < 32: return f"ds_read_b128 {vr(b,4)}, v2 offset:{kap*1280}"
        o = (kap - 32) * 5120 // 8
        return None
    def rd_main(buf, kap):
        b = OB + 4*buf
        if kap < 32: return [f"ds_read_b128 {vr(b,4)}, v2 offset:{kap*1280}"]
        g = kap - 32
        return [f"ds_read_b64 {vr(b,2)}, v5 offset:{g*5120}", f"ds_read_b64 {vr(b+2,2)}, v5 offset:{g*5120+1280}"]
    PG = 10 if OPT.get('prog', 1) else 0
    def stream(steps, chain):
        padn[0] = 0
        n = len(steps); cnt = [0]*n
        PF = 3
        for k in range(PF):
            r = steps[k][0](k % 4); cnt[k] = len(r)
            for x in r: a(x)
        for k in range(n):
            out = sum(cnt[k+1:min(n, k+PF)])
            a(f"s_waitcnt lgkmcnt({out})")
            d = vr(steps[k][1], 16)
            a(f"v_mfma_f32_32x32x16_bf16 {d}, {vr(steps[k][2],4)}, {vr(OB+4*(k%4),4)}, {'0' if steps[k][3] else d}")
            if k % 2 == 0 or k in (PG + 13, 32, 38, 40): pad(chain, "L_pad_z_0" if k == n - 2 else None)
            if PG and k + PF == PG:
                a("s_waitcnt vmcnt(0)")
                a("s_barrier")
            if k + PF < n:
                r = steps[k+PF][0]((k+PF) % 4); cnt[k+PF] = len(r)
                for x in r: a(x)
            if k == PG + 13:
                for j in range(4): a(f"ds_write_b128 v3, {vr(A5+4*j,4)} offset:{j*1024}")
                cnt[k+PF] += 4
            if k == 32:
                a("s_barrier")
                for i in range(4): a(f"ds_read_b128 {vr(A5+4*i,4)}, v1 offset:{i*4096}")
                cnt[k+PF] += 4
            if k == 38:
                for i in range(1, 4):
                    a(f"v_pk_add_f32 {vr(A5,2)}, {vr(A5,2)}, {vr(A5+4*i,2)}")
                    a(f"v_pk_add_f32 {vr(A5+2,2)}, {vr(A5+2,2)}, {vr(A5+4*i+2,2)}")
            if k == 40:
                a(f"v_cvt_pk_bf16_f32 v{A5}, v{A5}, v{A5+1}")
                a(f"v_cvt_pk_bf16_f32 v{A5+1}, v{A5+2}, v{A5+3}")
                a(f"buffer_store_dwordx2 {vr(A5,2)}, v0, s[32:35], s45 offen offset:256{FLP()}")
    main = [((lambda kap: lambda buf: rd_main(buf, kap))(kap), AM, 56 + 4*(10+kap), kap == 0) for kap in range(40)]
    if PADS:
        a(f"L_pad_a_{padn[0]}:")
        a("s_cmp_eq_u32 s44, 3")
        a("s_cbranch_vccz L_nopad")
        a("s_cbranch_scc1 L_pad_c_0")
        a("s_branch L_pad_b_0")
        a("L_nopad:")
    a("s_cmp_eq_u32 s44, 3")
    a("s_cbranch_scc1 L_tail3")
    q5 = [((lambda i: lambda buf: [f"ds_read_b128 {vr(OB+4*buf,4)}, v7 offset:{i*1280}"])(i), A5, 56 + 4*i, i == 0) for i in range(10)]
    stream(main[:PG] + q5 + main[PG:], 'b')
    a("s_branch L_tail_join")
    a("L_tail3:")
    q5 = [((lambda i: lambda buf: rd_main(buf, 30 + i))(i), A5, 56 + 4*i, i == 0) for i in range(10)]
    stream(main[:PG] + q5 + main[PG:], 'c')
    a("L_tail_join:")
    stamp(a, 11)
    padn[0] = 0
    pad('z')
    a("s_nop 11")
    for r in range(8): a(f"v_cvt_pk_bf16_f32 v{AM+r}, v{AM+2*r}, v{AM+2*r+1}")
    pad('z', "L_pad_ret")
    a("s_nop 1")
    for h2 in range(2):
        a(f"v_permlane32_swap_b32 v{AM+4*h2}, v{AM+4*h2+2}")
        a(f"v_permlane32_swap_b32 v{AM+4*h2+1}, v{AM+4*h2+3}")
    for h2 in range(2):
        a(f"buffer_store_dwordx4 {vr(AM+4*h2,4)}, v6, s[32:35], s43 offen offset:{32*h2}{FLP()}")
    a("L_end:")
    if OPT.get('pad'):
        a("L_pad:")
        a("s_memrealtime s[40:41]")
        a("s_waitcnt lgkmcnt(0)")
        a(f"s_sub_u32 s40, s40, s{sNON}")
        a(f"s_cmp_lt_u32 s40, {OPT['pad']}")
        a("s_cbranch_scc1 L_pad")
    if lib.STAMP:
        a("s_waitcnt vmcnt(0)")
        stamp(a, 15); stamp_real(a, 17)
        stamp_flush(a, 18, pWS, sWAVE, 0)
    a("L_exit:")
    a("s_endpgm")

KNAME = "concat_heads__mha_block__spectral_fnet__prompt_kernel"
def kernel(a):
    kernel_header(a, KNAME)
    if OPT.get('early'): a("s_memrealtime s[98:99]")
    a("s_cmp_ge_u32 s2, 256")
    a("s_cbranch_scc1 L_exit")
    if lib.STAMP:
        for i in range(18): a(f"s_mov_b32 s{60+2*i}, 0")
    stamp(a, 0); stamp_real(a, 16)
    a("s_load_dwordx8 s[4:11], s[0:1], 0")
    a("s_load_dwordx4 s[12:15], s[0:1], 64")
    a("s_load_dwordx2 s[16:17], s[0:1], 80")
    a("v_lshrrev_b32 v1, 6, v0")
    a(f"s_and_b32 s{sXCD}, s2, 7")
    a(f"v_readfirstlane_b32 s{sWAVE}, v1")
    a(f"s_lshr_b32 s{sSLOT}, s2, 3")
    a("v_and_b32 v1, 63, v0")
    a(f"s_and_b32 s26, s{sXCD}, 1")
    a("s_lshl_b32 s26, s26, 3")
    a(f"s_and_b32 s27, s{sSLOT}, 7")
    a("s_add_u32 s26, s26, s27")
    a(f"s_lshr_b32 s27, s{sSLOT}, 3")
    a("s_lshl_b32 s27, s27, 2")
    a(f"s_lshr_b32 s40, s{sXCD}, 1")
    a("s_add_u32 s27, s27, s40")
    a(f"s_cmp_ge_u32 s{sSLOT}, 24")
    a("s_cselect_b32 s40, 0, s%d" % sWAVE)
    a("s_cmp_lt_u32 s40, 4")
    a("s_cbranch_scc1 L_other")
    gemm_loader(a)
    a("L_other:")
    a("s_waitcnt lgkmcnt(0)")
    make_srd(a, sFL, pWS, FL_OFF, FL_SIZE)
    a(f"s_cmp_lg_u32 s{sWAVE}, 0")
    a("s_cbranch_scc1 L_no_init")
    a(f"v_mov_b32 v2, {LDS_PROG}")
    a("v_mov_b32 v4, 0")
    a("v_mov_b32 v5, 0")
    for i in range(8): a(f"ds_write_b64 v2, v[4:5] offset:{8*i}")
    a("s_cmp_lg_u32 s2, 0")
    a("s_cbranch_scc1 L_no_nonce")
    if OPT.get('early'): a("s_mov_b64 s[40:41], s[98:99]")
    else: a("s_memrealtime s[40:41]")
    make_srd(a, 28, pDBG, 0, 256)
    a("s_waitcnt lgkmcnt(0)")
    a("s_or_b32 s40, s40, 1")
    a("v_mov_b32 v2, s40")
    a("v_mov_b32 v3, s41")
    a("buffer_store_dwordx2 v[2:3], v4, s[28:31], 0 offen sc1")
    a("L_no_nonce:")
    a("s_waitcnt lgkmcnt(0)")
    a("L_no_init:")
    a(f"s_cmp_ge_u32 s{sSLOT}, 24")
    a("s_cbranch_scc1 L_prep")
    if OPT.get('touch', 1):
        a(f"s_cmp_lg_u32 s{sWAVE}, 1")
        a("s_cbranch_scc1 L_no_code")
        a("s_getpc_b64 s[40:41]")
        a("L_pc:")
        a(f"s_sub_u32 s40, s40, L_pc-{KNAME}")
        a("s_subb_u32 s41, s41, 0")
        a(f"s_mul_i32 s42, s{sSLOT}, 1792")
        a("v_lshlrev_b32 v2, 4, v1")
        a("v_add_u32 v2, s42, v2")
        a(f"v_min_u32 v2, L_exit-{KNAME}-1024-16, v2")
        for i in range(2): a(f"global_load_dwordx4 v[250:253], v2, s[40:41] offset:{i*1024}")
        a("L_no_code:")
    gemm_compute(a)
    prep(a)
    a_done(a)
    attention(a)
    aux(a)
    tail(a)
    return kernel_desc(KNAME, 256, 100)

HEADER = open('concat_heads__mha_block__spectral_fnet__prompt.s.ref').read().split("; Override")[0]
def main(out):
    a = Asm()
    a('.amdgcn_target "amdgcn-amd-amdhsa--gfx950"')
    a(".text")
    d = kernel(a)
    txt = HEADER + "; @launch grid=(256,1,1) block=(512,1,1) lds=163840\n" + a.text() + '.section .rodata,"a"\n.p2align 6\n' + d
    open(out, "w").write(txt)

if __name__ == "__main__":
    for x in sys.argv[2:]:
        if x == "stamp": lib.STAMP = True
        elif x == "rt": lib.STAMP = True; lib.STAMPRT = True
        elif x == "gst": lib.STAMP = True; lib.STAMPSET = 1; lib.STAMPRT = True
        elif x == "cst": lib.STAMP = True; lib.STAMPSET = 2
        else:
            k, _, v = x.partition("=")
            OPT[k] = int(v) if v else 1
    main(sys.argv[1] if len(sys.argv) > 1 else "v25.s")
```

```python
import sys, struct
from lib import *
import lib

TKV = 2560; KV_HEAD = 64*TKV; KV_OFF = 0; KV_SIZE = 32*KV_HEAD
TQ = 1280; Q_HEAD = 64*TQ; Q_OFF = KV_SIZE; Q_SIZE = 32*Q_HEAD
O_OFF = Q_OFF + Q_SIZE; O_SIZE = 64*32*1280
SEQ_OFF = O_OFF + O_SIZE; SEQ_SIZE = 17*65*1024
AB_OFF = SEQ_OFF + SEQ_SIZE; AB_SIZE = 4*11*33*1024
WO_OFF = AB_OFF + AB_SIZE; WO_SIZE = 16*50*1024
FL_OFF = 16*1024*1024; FL_SIZE = 1536*128
FA, FB, FL1 = 0, 256, 1280
X_SIZE = 2048*1280; OUT_SIZE = 2048*2560
HUGE = 0x40000000
QSCALE = (20 ** -0.5) * 1.4426950408889634
NDMA = 155; LPAIR = 5184
LDS_PROG = 31*LPAIR
def lds_tile(t): return ((t-2)>>1)*LPAIR + ((t-2)&1)*TKV
def need(tile): return ((tile-1)*TKV + 4095)//4096
NEED = [need(4), need(7), need(15), need(23), 39]
POLL_MAX = 200000
def f32bits(x): return struct.unpack('<I', struct.pack('<f', x))[0]
OPT = {}
FLS = ['', ' sc1', ' nt', ' sc0 sc1', ' sc1 nt']
def FLP(): return FLS[OPT.get('flp', 0)]
def FLF(): return FLS[OPT.get('flf', 1)]

sWAVE = 3
pX, pW, pWO, pBX, pOUT, pDBG, pWS = 4, 6, 8, 10, 12, 14, 16
sNON = 18
sFL = 20
sXCD, sSLOT = 24, 25
STG = 36864
NS = 4

def poll(a, vaddr, vtmp, cnt=40, sleep=1):
    l = a.label("L_poll"); d = a.label("L_pollok")
    a(f"s_mov_b32 s{cnt}, {POLL_MAX}")
    a(f"{l}:")
    a(f"buffer_load_dwordx2 {vr(vtmp,2)}, v{vaddr}, {sr(sFL,4)}, 0 offen sc1")
    a("s_waitcnt vmcnt(0)")
    a(f"v_cmp_ne_u64 vcc, {sr(sNON,2)}, {vr(vtmp,2)}")
    a(f"s_sub_u32 s{cnt}, s{cnt}, 1")
    a(f"s_cbranch_vccz {d}")
    a(f"s_cmp_eq_u32 s{cnt}, 0")
    a(f"s_cbranch_scc1 {d}")
    if sleep: a(f"s_sleep {sleep}")
    a(f"s_branch {l}")
    a(f"{d}:")

def poll_piped(a, vaddr, vtmp, depth, cnt=40):
    l = a.label("L_ppoll"); d = a.label("L_ppollok")
    a(f"s_mov_b32 s{cnt}, {POLL_MAX}")
    for i in range(depth - 1):
        a(f"buffer_load_dwordx2 {vr(vtmp+2*i,2)}, v{vaddr}, {sr(sFL,4)}, 0 offen sc1")
        a(f"s_sleep {OPT.get('pgap', 4)}")
    a(f"{l}:")
    for i in range(depth):
        a(f"buffer_load_dwordx2 {vr(vtmp+2*((i+depth-1)%depth),2)}, v{vaddr}, {sr(sFL,4)}, 0 offen sc1")
        a(f"s_waitcnt vmcnt({depth-1})")
        a(f"v_cmp_ne_u64 vcc, {sr(sNON,2)}, {vr(vtmp+2*i,2)}")
        a(f"s_sub_u32 s{cnt}, s{cnt}, 1")
        a(f"s_cbranch_vccz {d}")
        a(f"s_cbranch_scc1 {d}")
    a(f"s_branch {l}")
    a(f"{d}:")

def prod_flags(a, vd, vt):
    a("s_lshr_b32 s40, s26, 3")
    a(f"v_and_b32 v{vd}, 7, v1")
    a(f"v_bfe_u32 v{vt}, v1, 3, 2")
    a(f"v_lshlrev_b32 v{vt}, 1, v{vt}")
    a(f"v_lshl_add_u32 v{vd}, v{vd}, 3, v{vt}")
    a("s_and_b32 s42, s27, 3")
    a("s_lshl_b32 s42, s42, 6")
    a("s_lshr_b32 s43, s27, 2")
    a("s_add_u32 s42, s42, s43")
    a("s_lshl_b32 s42, s42, 2")
    a("s_add_u32 s42, s42, s40")
    a(f"s_add_u32 s42, s42, {FB}")
    a(f"v_lshl_add_u32 v{vd}, v{vd}, 2, s42")
    a(f"v_lshlrev_b32 v{vd}, 7, v{vd}")

def get_nonce(a, vt, srd=28, cnt=40):
    make_srd(a, srd, pDBG, 0, 256)
    l = a.label("L_non"); d = a.label("L_nonok")
    a(f"v_mov_b32 v{vt}, 0")
    a(f"s_mov_b32 s{cnt}, {POLL_MAX}")
    a(f"{l}:")
    a(f"buffer_load_dwordx2 {vr(vt+2,2)}, v{vt}, {sr(srd,4)}, 0 offen sc1")
    a("s_waitcnt vmcnt(0)")
    a(f"v_readfirstlane_b32 s{sNON}, v{vt+2}")
    a(f"v_readfirstlane_b32 s{sNON+1}, v{vt+3}")
    a(f"s_sub_u32 s{cnt}, s{cnt}, 1")
    a(f"s_cmp_lg_u32 s{sNON}, 0")
    a(f"s_cbranch_scc1 {d}")
    a(f"s_cmp_eq_u32 s{cnt}, 0")
    a(f"s_cbranch_scc1 {d}")
    a("s_sleep 2")
    a(f"s_branch {l}")
    a(f"{d}:")

def set_flag(a, sidx, vt, also=None):
    for i in range(4): a(f"v_mov_b32 v{vt+i}, s{sNON+(i&1)}")
    a(f"v_lshlrev_b32 v{vt+4}, 4, v1")
    a("s_mov_b64 exec, 0xff")
    if also is not None:
        a(f"s_add_u32 s41, s{sidx}, {also}")
        a(f"buffer_store_dwordx4 {vr(vt,4)}, v{vt+4}, {sr(sFL,4)}, s41 offen")
    a(f"buffer_store_dwordx4 {vr(vt,4)}, v{vt+4}, {sr(sFL,4)}, s{sidx} offen sc1")
    a("s_mov_b64 exec, -1")

def gemm_loader(a):
    sA, sB = 28, 32
    a("L_loader:")
    a(f"s_sub_u32 s44, s{sWAVE}, 4")
    a("v_lshrrev_b32 v2, 3, v1")
    a("s_lshl_b32 s40, s44, 3")
    a("v_add_u32 v2, s40, v2")
    a("v_mul_u32_u24 v2, 1280, v2")
    a("v_lshrrev_b32 v3, 4, v1")
    a("s_and_b32 s40, s44, 1")
    a("s_lshl_b32 s40, s40, 2")
    a("v_or_b32 v4, s40, v3")
    a("v_and_b32 v5, 7, v1")
    a("v_xor_b32 v4, v4, v5")
    a("v_lshl_add_u32 v10, v4, 4, v2")
    a("s_lshl_b32 s45, s44, 10")
    a(f"s_lshr_b32 s40, s{sSLOT}, 3")
    a(f"s_mul_i32 s40, s40, {OPT.get('ra', 5)}")
    a(f"s_and_b32 s41, s{sSLOT}, 7")
    a(f"s_mul_i32 s41, s41, {OPT.get('rb', 5)}")
    a("s_add_u32 s40, s40, s41")
    if OPT.get('ph'):
        n = OPT['ph']
        a(f"s_lshr_b32 s40, s{sSLOT}, 3")
        a(f"s_and_b32 s41, s{sSLOT}, 7")
        a("s_add_u32 s40, s40, s41")
        a(f"s_mul_i32 s41, s40, {(256 + n - 1)//n}")
        a("s_lshr_b32 s41, s41, 8")
        a(f"s_mul_i32 s41, s41, {n}")
        a("s_sub_u32 s40, s40, s41")
        a(f"s_mul_i32 s40, s40, {OPT.get('pstep', 3)}")
    a(f"s_mul_i32 s41, s{sXCD}, {OPT.get('rc', 3)}")
    a("s_add_u32 s40, s40, s41")
    a("s_mul_i32 s41, s40, 6554")
    a("s_lshr_b32 s41, s41, 16")
    a("s_mul_i32 s41, s41, 10")
    a("s_sub_u32 s47, s40, s41")
    a("s_lshl_b32 s40, s44, 4")
    a("v_lshrrev_b32 v2, 2, v1")
    a("v_add_u32 v2, s40, v2")
    a("v_mul_u32_u24 v2, 3840, v2")
    a("v_and_b32 v3, 3, v1")
    a("v_lshrrev_b32 v4, 5, v1")
    a("v_lshlrev_b32 v4, 1, v4")
    a("v_xor_b32 v3, v3, v4")
    a("v_lshl_add_u32 v11, v3, 4, v2")
    a("s_mul_i32 s46, s44, 5120")
    a("s_mul_i32 s50, s26, 163840")
    a("s_mul_i32 s51, s27, 320")
    a("s_sub_u32 s52, 2457600, s51")
    a("s_waitcnt lgkmcnt(0)")
    make_srd(a, sA, pX, "s50", 163840)
    def issue_x(c):
        sl = c % NS
        a("s_lshl_b32 s48, s47, 7")
        for j in range(4):
            a(f"s_add_u32 m0, s45, {sl*STG + j*4096}")
            if j: a(f"s_add_u32 s48, s48, 40960")
            else: a("s_mul_i32 s49, s47, 245760")
            a(f"buffer_load_dwordx4 v10, {sr(sA,4)}, s48 offen lds")
    def issue_w(c):
        sl = c % NS
        for i in range(5):
            a(f"s_add_u32 m0, s46, {sl*STG + 16384 + i*1024 - i*64}")
            if i == 0:
                a("s_add_u32 s47, s47, 1")
            elif i == 1:
                a("s_cmp_eq_u32 s47, 10")
                a("s_cmov_b32 s47, 0")
            else: a("s_nop 0")
            a(f"buffer_load_dwordx4 v11, {sr(sB,4)}, s49 offen offset:{i*64} lds")
    def issue(c): issue_x(c); issue_w(c)
    stamp(a, 3)
    issue_x(0)
    make_srd(a, sB, pW, "s51", "s52")
    issue_w(0)
    issued = 1
    pre = OPT.get('pre', 2)
    for c in range(1, pre): issue(c); issued += 1
    for c in range(10):
        a(f"s_waitcnt vmcnt({9*(issued-c-1)})")
        if c in (0, 9): stamp(a, {0: 2, 9: 5}[c])
        stamp(a, c + 1, 1)
        a("s_barrier")
        if c in (1, 3, 5, 7): stamp(a, 11 + c // 2, 1)
        while issued < min(10, c + 1 + (OPT.get('dep', 2) if c < OPT.get('depsw', 10) else 3)): issue(issued); issued += 1
    make_srd(a, sFL, pWS, FL_OFF, FL_SIZE)
    get_nonce(a, 2)
    a("s_branch L_A_done")

AX, AWA, EA = 8, 10, 16
FR = 24
ACC = 96
def gemm_loop(a, isv, epi):
    XB = [FR, FR + 36, 176, 212]
    def rdx(kk, m, b): sl, st = divmod(kk, 2); return f"ds_read_b128 {vr(b+4*m,4)}, v{AX+st} offset:{sl*STG + m*2048}"
    def rdw(kk, T, b): sl, st = divmod(kk, 2); return [f"ds_read_b64_tr_b16 {vr(b+16+4*T+2*t,2)}, v{AWA+T} offset:{sl*STG + st*10240 + t*256}" for t in range(2)]
    def reads(kk, b):
        r = rdw(kk, 0, b) + [rdx(kk, m, b) for m in range(4)]
        for T in range(1, 5): r += rdw(kk, T, b)
        return r
    def mfma(b, T, m):
        d = vr(ACC + 16*T + 4*m, 4); w = vr(b + 16 + 4*T, 4); x = vr(b + 4*m, 4)
        return f"v_mfma_f32_16x16x32_bf16 {d}, {x}, {w}, {d}" if isv else f"v_mfma_f32_16x16x32_bf16 {d}, {w}, {x}, {d}"
    for r in range(80): a(f"v_mov_b32 v{ACC+r}, 0")
    a(f"s_mov_b32 s40, {2*STG}")
    a("s_mov_b32 s41, 4")
    stamp(a, 13)
    a("s_barrier")
    stamp(a, 2)
    for r in reads(0, XB[0]): a(r)
    lp = a.label("L_gemm"); last = a.label("L_gemm_last")
    a(".p2align 3")
    a(f"{lp}:")
    for kk in range(4):
        a("s_waitcnt lgkmcnt(0)")
        ms = [mfma(XB[kk & 1], T, m) for T in range(5) for m in range(4)]
        a(ms[0])
        if kk == 1: a("s_barrier")
        if kk == 3:
            for i in range(2): a(f"v_add_u32 v{AX+i}, s40, v{AX+i}")
            for i in range(5): a(f"v_add_u32 v{AWA+i}, s40, v{AWA+i}")
            a("s_sub_u32 s40, 0, s40")
            a("s_sub_u32 s41, s41, 1")
            a("s_barrier")
            a("s_cmp_eq_u32 s41, 0")
            a(f"s_cbranch_scc1 {last}")
        nx = reads((kk + 1) & 3, XB[(kk + 1) & 1])
        for i in range(1, 20):
            if i - 1 < len(nx): a(nx[i-1])
            a(ms[i])
    a(f"s_branch {lp}")
    a(f"{last}:")
    bufs = [XB[0], XB[2], XB[3], XB[1]]
    def order(k0):
        r = []
        for k in (k0, k0 + 1): r += rdw(k, 0, bufs[k]) + [rdx(k, m, bufs[k]) for m in range(4)]
        return r
    first = order(0)
    rest01 = [x for T in range(1, 5) for k in (0, 1) for x in rdw(k, T, bufs[k])]
    second = order(2)
    rest23 = [[x for k in (2, 3) for x in rdw(k, T, bufs[k])] for T in range(5)]
    ms = [mfma(XB[1], T, m) for T in range(5) for m in range(4)]
    q = first + rest01
    pos = 0
    for i in range(1, 20):
        for _ in range(2 if i < 10 else 1):
            if pos < len(q): a(q[pos]); pos += 1
        a(ms[i])
    a("s_barrier")
    q = second + rest23[1] + rest23[2] + rest23[3] + rest23[4]
    a("s_waitcnt lgkmcnt(0)")
    pos = 0
    for T in range(5):
        e = epi(T - 1) if T >= 1 else []
        per = -(-len(e) // 12)
        for i in range(16):
            if i == 8 and T < 2: a(f"s_waitcnt lgkmcnt({min(15, pos - (12 + 4*T))})" if T == 0 else "s_waitcnt lgkmcnt(0)")
            a(mfma(bufs[i >> 2], T, i & 3))
            for _ in range(2):
                if pos < len(q): a(q[pos]); pos += 1
            if i >= 4:
                for x in e[per*(i-4):per*(i-3)]: a(x)
    stamp(a, 5)
    a("s_nop 7")
    for x in epi(4): a(x)

def gemm_compute(a):
    a("L_compute:")
    a("v_and_b32 v2, 15, v1")
    a("v_lshrrev_b32 v3, 4, v1")
    a(f"s_and_b32 s42, s{sWAVE}, 1")
    a(f"s_lshr_b32 s43, s{sWAVE}, 1")
    a("s_lshl_b32 s40, s42, 6")
    a("v_add_u32 v4, s40, v2")
    a("v_lshlrev_b32 v4, 7, v4")
    a("v_lshrrev_b32 v5, 1, v2")
    a("v_xor_b32 v5, v5, v3")
    a(f"v_lshl_add_u32 v{AX}, v5, 4, v4")
    a(f"v_xor_b32 v{AX+1}, 64, v{AX}")
    a("v_lshrrev_b32 v4, 5, v1")
    a("v_mul_u32_u24 v4, 5120, v4")
    a("v_and_b32 v5, 1, v3")
    a("v_lshrrev_b32 v6, 2, v2")
    a("v_lshl_add_u32 v6, v5, 3, v6")
    a("v_lshl_add_u32 v4, v6, 6, v4")
    a("v_add_u32 v4, 16384, v4")
    a("v_lshlrev_b32 v5, 2, v5")
    a("v_and_b32 v6, 3, v1")
    a("s_mul_i32 s44, s43, 20")
    def waddr(T, g):
        a(f"v_and_b32 v15, 7, v{g}")
        a("v_xor_b32 v15, v15, v5")
        a("v_lshl_add_u32 v15, v15, 3, v4")
        a(f"v_lshrrev_b32 v{g}, 3, v{g}")
        a(f"v_lshl_add_u32 v{AWA+T}, v{g}, 10, v15")
    a("s_lshl_b32 s45, s26, 2")
    a("s_lshl_b32 s42, s42, 1")
    a("s_add_u32 s42, s42, s45")
    a("s_and_b32 s45, s27, 3")
    a("s_lshl_b32 s45, s45, 3")
    a("s_lshl_b32 s43, s43, 2")
    a("s_add_u32 s43, s43, s45")
    a("s_cmp_ge_u32 s27, 8")
    a("s_cbranch_scc1 L_compute_v")
    for T in range(5):
        if T < 4:
            a(f"s_add_u32 s45, s44, {5*T}")
            a("v_add_u32 v7, s45, v6")
        else:
            a("s_add_u32 s45, s44, 4")
            a("v_mad_u32_u24 v7, v6, 5, s45")
        waddr(T, 7)
    a("s_cmp_ge_u32 s27, 4")
    for reg, k, q in [(44, KV_HEAD, Q_HEAD), (45, TKV, TQ), (46, f32bits(1.0), f32bits(QSCALE)), (47, KV_OFF, Q_OFF), (48, KV_SIZE, Q_SIZE)]:
        a(f"s_mov_b32 s{reg}, {q}")
        a(f"s_cmov_b32 s{reg}, {k}")
    make_srd(a, 28, pWS, "s47", "s48")
    a("s_mul_i32 s47, s43, s44")
    a("s_mul_i32 s48, s42, s45")
    a("s_add_u32 s47, s47, s48")
    a(f"v_lshlrev_b32 v{EA}, 4, v1")
    a(f"v_add_u32 v{EA+1}, s45, v{EA}")
    a("v_lshrrev_b32 v4, 5, v1")
    a("v_mul_lo_u32 v4, v4, s44")
    a("v_and_b32 v5, 31, v1")
    a("v_lshlrev_b32 v5, 3, v5")
    a("v_lshl_add_u32 v4, v4, 1, v5")
    a(f"v_add_u32 v{EA+2}, 1024, v4")
    a(f"v_add_u32 v{EA+3}, s45, v{EA+2}")
    a("s_mov_b32 s48, s47")
    a("s_add_u32 s49, s47, s44")
    def epi_qk(T):
        b = ACC + 16*T; e = []
        for r in range(16): e.append(f"v_mul_f32 v{b+r}, s46, v{b+r}")
        for r in range(8): e.append(f"v_cvt_pk_bf16_f32 v{b+r}, v{b+2*r}, v{b+2*r+1}")
        e.append("s_nop 0")
        for u in range(2):
            e.append(f"v_permlane16_swap_b32 v{b+4*u}, v{b+4*u+2}")
            e.append(f"v_permlane16_swap_b32 v{b+4*u+1}, v{b+4*u+3}")
        for u in range(2):
            if T < 4: e.append(f"buffer_store_dwordx4 {vr(b+4*u,4)}, v{EA+u}, s[28:31], s48 offen sc1")
            else:
                e.append(f"buffer_store_dwordx2 {vr(b+4*u,2)}, v{EA+2+u}, s[28:31], s47 offen sc1")
                e.append(f"buffer_store_dwordx2 {vr(b+4*u+2,2)}, v{EA+2+u}, s[28:31], s49 offen sc1")
        if T < 3: e.append("s_add_u32 s48, s48, s44")
        return e
    gemm_loop(a, False, epi_qk)
    a("s_branch L_A_done")
    a("L_compute_v:")
    for T in range(5):
        a(f"s_add_u32 s45, s44, {4*T}")
        a("v_add_u32 v7, s45, v6")
        waddr(T, 7)
    make_srd(a, 28, pWS, KV_OFF, KV_SIZE)
    a(f"s_mov_b32 s44, {KV_HEAD}")
    a("s_mul_i32 s47, s43, s44")
    a(f"s_mul_i32 s48, s42, {TKV}")
    a("s_add_u32 s47, s47, s48")
    a("v_lshrrev_b32 v7, 5, v1")
    a("v_mul_u32_u24 v7, 640, v7")
    a("v_and_b32 v15, 1, v3")
    a("v_lshl_add_u32 v7, v15, 6, v7")
    a("v_add_u32 v7, 1280, v7")
    for T in range(5):
        a(f"v_add_u32 v4, {16*T}, v2")
        a("v_mul_u32_u24 v5, 3277, v4")
        a("v_lshrrev_b32 v5, 16, v5")
        a("v_mul_u32_u24 v6, 20, v5")
        a("v_sub_u32 v4, v4, v6")
        a("v_and_b32 v6, 28, v4")
        a("v_add_u32 v4, v4, v6")
        a("v_mul_lo_u32 v5, v5, s44")
        a("v_lshl_add_u32 v4, v4, 4, v5")
        a(f"v_add_u32 v{EA+T}, v7, v4")
    def epi_v(T):
        b = ACC + 16*T; e = []
        for r in range(8): e.append(f"v_cvt_pk_bf16_f32 v{b+r}, v{b+2*r}, v{b+2*r+1}")
        e.append("s_nop 0")
        for u in range(2):
            e.append(f"v_permlane32_swap_b32 v{b+4*u}, v{b+4*u+2}")
            e.append(f"v_permlane32_swap_b32 v{b+4*u+1}, v{b+4*u+3}")
        for u in range(2): e.append(f"buffer_store_dwordx4 {vr(b+4*u,4)}, v{EA+T}, s[28:31], s47 offen offset:{u*TKV} sc1")
        return e
    gemm_loop(a, True, epi_v)
    a("s_branch L_A_done")

SWD = [42, 43, 44, 56, 57]
def side_work(a):
    a("s_sub_u32 s53, s2, 192")
    a("s_mul_i32 s53, s53, 3")
    a(f"s_add_u32 s53, s53, s{sWAVE}")
    a("s_sub_u32 s53, s53, 5")
    a("v_lshlrev_b32 v22, 4, v1")
    make_srd(a, 32, pWO, 0, 819200)
    make_srd(a, 28, pWS, SEQ_OFF, WO_OFF + WO_SIZE - SEQ_OFF)
    WR = 32
    for n in range(5):
        if n == 4:
            a("s_cmp_ge_u32 s53, 32")
            a("s_cbranch_scc1 L_sw_wo_ld")
        a(f"s_add_u32 s40, s53, {192*n}")
        a("s_mul_i32 s41, s40, 1639")
        a("s_lshr_b32 s41, s41, 16")
        a("s_mul_i32 s58, s41, 40")
        a("s_sub_u32 s58, s40, s58")
        a("s_mul_i32 s59, s58, 20")
        a("s_mul_i32 s55, s58, 80")
        a("s_sub_u32 s55, s55, %d" % (32*80 - 16))
        a("s_cmp_lt_u32 s58, 32")
        a("s_cselect_b32 s45, 4, 40")
        a("s_cselect_b32 s59, s59, s55")
        a(f"s_mov_b32 s46, {20*1280}")
        a(f"s_cmov_b32 s46, {8*1280}")
        a("v_mul_u32_u24 v4, s45, v3")
        a("v_add_u32 v4, s59, v4")
        a("v_mul_u32_u24 v4, 1280, v4")
        a("s_lshl_b32 s59, s41, 6")
        a("v_lshl_add_u32 v4, v2, 1, v4")
        a("v_add_u32 v4, s59, v4")
        b = WR + 8*n
        for grp in range(2):
            so = "s46" if grp else "0"
            for i in range(4):
                a(f"buffer_load_ushort v{b+4*grp+i}, v4, s[32:35], {so} offen offset:{i*1280}")
        a("s_mul_i32 s59, s41, 52")
        a("s_lshr_b32 s59, s59, 8")
        a("s_mul_i32 s55, s59, 5")
        a("s_sub_u32 s55, s41, s55")
        a("s_mul_i32 s45, s58, 26")
        a("s_lshr_b32 s45, s45, 8")
        a("s_mul_i32 s47, s45, 10")
        a("s_sub_u32 s47, s58, s47")
        a("s_add_u32 s58, s58, 10")
        a("s_cmp_lt_u32 s55, 4")
        a("s_cselect_b32 s55, s55, s45")
        a("s_cselect_b32 s58, s58, s47")
        a("s_lshl_b32 s59, s59, 2")
        a("s_add_u32 s59, s59, s55")
        a("s_mul_i32 s59, s59, 50")
        a("s_add_u32 s59, s59, s58")
        a("s_lshl_b32 s59, s59, 10")
        a(f"s_add_u32 s{SWD[n]}, s59, {WO_OFF - SEQ_OFF}")
    a("L_sw_wo_ld:")
    G = 80
    a("s_mov_b32 s54, s53")
    a("v_lshlrev_b32 v23, 4, v3")
    a(f"s_mov_b32 s55, {f32bits(1.0/2048)}")
    a("v_cmp_gt_u32 vcc, 32, v1")
    a("L_sw_gen:")
    a("s_lshr_b32 s41, s54, 5")
    a("s_and_b32 s58, s54, 31")
    a("s_lshr_b32 s59, s41, 1")
    a("s_lshl_b32 s59, s59, 6")
    a("s_and_b32 s47, s41, 1")
    a("s_add_u32 s59, s59, s47")
    a("v_lshl_add_u32 v4, v2, 1, s59")
    a("s_lshr_b32 s47, s58, 4")
    a("s_mul_i32 s45, s41, 65")
    a("s_add_u32 s45, s45, s58")
    a("s_add_u32 s46, s45, 33")
    a("s_add_u32 s45, s45, s47")
    a("s_lshl_b32 s45, s45, 10")
    a("s_lshl_b32 s46, s46, 10")
    a("s_and_b32 s48, s58, 15")
    a("s_lshl_b32 s48, s48, 5")
    a("s_add_u32 s48, s48, s47")
    a("v_add_u32 v5, s48, v23")
    a("v_mul_u32_u24 v5, v4, v5")
    a("v_cvt_f32_u32 v5, v5")
    a("v_cvt_f32_u32 v4, v4")
    for i in range(8):
        if i: a("v_fma_f32 v5, 2.0, v4, v5")
        a(f"v_mul_f32 v{G+i}, s55, v5")
    for i in range(8): a(f"v_fract_f32 v{G+i}, v{G+i}")
    for i in range(8): a(f"v_cos_f32 v{G+8+i}, v{G+i}")
    a("s_cmp_lg_u32 s58, 0")
    a("s_cbranch_scc1 L_gen_plain")
    a("v_mul_f32 v6, 0x3e800000, v4")
    a("v_fract_f32 v6, v6")
    a(f"v_cndmask_b32 v{G}, v{G}, v6, vcc")
    a("v_cos_f32 v7, v6")
    a(f"v_mov_b32 v{G+25}, 0")
    a(f"v_mov_b32 v{G+26}, 0")
    a(f"v_mov_b32 v{G+27}, 0")
    a("v_cndmask_b32 v7, 0, v7, vcc")
    a(f"v_cvt_pk_bf16_f32 v{G+24}, v7, 0")
    a(f"s_add_u32 s48, s45, {16*1024}")
    a(f"buffer_store_dwordx4 {vr(G+24,4)}, v22, s[28:31], s48 offen sc1")
    a("L_gen_plain:")
    for i in range(8): a(f"v_sin_f32 v{G+i}, v{G+i}")
    for i in range(4): a(f"v_cvt_pk_bf16_f32 v{G+16+i}, v{G+8+2*i}, v{G+9+2*i}")
    for i in range(4): a(f"v_cvt_pk_bf16_f32 v{G+20+i}, v{G+2*i}, v{G+1+2*i}")
    a(f"buffer_store_dwordx4 {vr(G+16,4)}, v22, s[28:31], s45 offen sc1")
    a(f"buffer_store_dwordx4 {vr(G+20,4)}, v22, s[28:31], s46 offen sc1")
    a("s_add_u32 s54, s54, 192")
    a("s_cmp_lt_u32 s54, 544")
    a("s_cbranch_scc1 L_sw_gen")

def side_work_finish(a):
    WR = 32
    l = a.label("L_sw_fin")
    a("s_waitcnt vmcnt(4)")
    for n in range(5):
        if n == 4:
            a("s_cmp_ge_u32 s53, 32")
            a(f"s_cbranch_scc1 {l}")
        b = WR + 8*n
        for i in range(4): a(f"v_lshl_or_b32 v{b+i}, v{b+2*i+1}, 16, v{b+2*i}")
        a(f"buffer_store_dwordx4 {vr(b,4)}, v22, s[28:31], s{SWD[n]} offen sc1")
    a(f"{l}:")

def prep(a):
    a("L_prep:")
    a(f"s_sub_u32 s40, s{sSLOT}, 24")
    a("s_and_b32 s27, s40, 1")
    a("s_lshr_b32 s26, s40, 1")
    a("s_lshl_b32 s26, s26, 3")
    a(f"s_add_u32 s26, s26, s{sXCD}")
    make_srd(a, 36, pWS, AB_OFF, AB_SIZE)
    a(f"s_cmp_ge_u32 s{sWAVE}, 5")
    a("s_cbranch_scc1 L_fold_skip")
    make_srd(a, 28, pBX, 0, X_SIZE)
    a("s_lshr_b32 s42, s26, 1")
    a("s_lshl_b32 s42, s42, 5")
    a("s_and_b32 s43, s26, 1")
    a("s_add_u32 s42, s42, s43")
    a("v_lshrrev_b32 v2, 3, v1")
    a("v_and_b32 v3, 7, v1")
    a("v_lshl_add_u32 v4, v2, 1, s42")
    a("v_mul_u32_u24 v5, 1280, v4")
    a("v_lshlrev_b32 v6, 4, v3")
    a("v_add_u32 v10, v5, v6")
    a("v_sub_u32 v7, v6, v5")
    a(f"s_lshl_b32 s44, s27, 1")
    a(f"s_add_u32 s44, s44, s{sWAVE}")
    a("s_cmp_ge_u32 s44, 5")
    a("s_cselect_b32 s45, 5, 0")
    a("s_sub_u32 s44, s44, s45")
    a("s_lshl_b32 s44, s44, 7")
    a("s_add_u32 s45, s44, 20480")
    a(f"v_add_u32 v11, {2048*1280}, v7")
    a(f"v_add_u32 v12, {1024*1280}, v7")
    a("v_cmp_ne_u32 vcc, 0, v4")
    a(f"v_mov_b32 v8, {HUGE}")
    a(f"v_add_u32 v9, {1024*1280}, v10")
    a("v_cndmask_b32 v13, v8, v9, vcc")
    LD = 32
    for hf in range(2):
        for r in range(4): a(f"buffer_load_dwordx4 {vr(LD+8*r+4*hf,4)}, v{10+r}, s[28:31], s44 offen offset:{640*hf}")
    a("v_subrev_u32 v11, 20480, v11")
    a("v_subrev_u32 v12, 20480, v12")
    for hf in range(2):
        for r, (vv, so) in enumerate([(10, 45), (11, 44), (12, 44), (9, 45)]):
            a(f"buffer_load_dwordx4 {vr(LD+32+8*r+4*hf,4)}, v{vv}, s[28:31], s{so} offen offset:{640*hf}")
    XL = 96
    a("s_cmp_lg_u32 s26, 0")
    a("s_cbranch_scc1 L_fold_nx")
    a(f"v_add_u32 v14, {512*1280}, v6")
    a(f"v_add_u32 v15, {1536*1280}, v6")
    a("v_cndmask_b32 v14, v14, v8, vcc")
    a("v_cndmask_b32 v15, v15, v8, vcc")
    for r in range(2):
        for hf in range(2):
            a(f"buffer_load_dwordx4 {vr(XL+8*r+4*hf,4)}, v{14+r}, s[28:31], s44 offen offset:{640*hf}")
    a("L_fold_nx:")
    a("v_and_b32 v5, 3, v2")
    a("v_lshrrev_b32 v4, 2, v2")
    a("v_lshl_or_b32 v5, v4, 3, v5")
    a("v_xor_b32 v5, v5, v3")
    a("v_and_b32 v4, 1, v3")
    a("v_lshl_add_u32 v5, v4, 5, v5")
    a("v_lshlrev_b32 v5, 4, v5")
    a("v_lshrrev_b32 v4, 1, v3")
    a("v_lshl_add_u32 v5, v4, 10, v5")
    a("s_lshl_b32 s45, s44, 5")
    a("v_add_u32 v16, s45, v5")
    a("v_xor_b32 v18, 64, v16")
    a("v_add_u32 v5, s44, v6")
    a("v_add_u32 v17, 40960, v5")
    a("v_lshlrev_b32 v6, 4, v1")
    a("v_add_u32 v6, 43008, v6")
    a("v_cndmask_b32 v17, v17, v6, vcc")
    a("L_fold_skip:")
    a("v_and_b32 v2, 31, v1")
    a("v_lshrrev_b32 v3, 5, v1")
    a("v_lshlrev_b32 v15, 4, v1")
    a(f"s_lshr_b32 s40, s{sWAVE}, 1")
    a("s_add_u32 s40, s40, 2")
    a(f"s_and_b32 s41, s{sWAVE}, 1")
    a(f"s_cmp_lt_u32 s{sWAVE}, 4")
    a(f"s_cselect_b32 s49, s{sWAVE}, s40")
    a("s_cselect_b32 s50, 0, s41")
    a("s_lshl_b32 s54, s49, 6")
    a("s_add_u32 s54, s54, s27")
    a("v_lshl_add_u32 v4, v2, 1, s54")
    AU = 10; SB = [[176, 184], [192, 200]]; HB = [[208, 212], [216, 220]]; UB = [72, 84, 96, 108]; ACC3 = [224, 240, 32]; PH = 112
    a("s_mul_i32 s52, s50, 20480")
    for jj in range(4):
        a(f"v_xor_b32 v5, {2*jj}, v3")
        a("v_xor_b32 v5, v5, v2")
        a("v_lshl_add_u32 v5, v3, 5, v5")
        a("v_lshlrev_b32 v5, 4, v5")
        a(f"v_add_u32 v5, {jj*1024}, v5")
        a(f"v_add_u32 v{AU+jj}, s52, v5")
    a(f"v_lshlrev_b32 v{AU+4}, 4, v3")
    a(f"v_add_u32 v{AU+4}, 40960, v{AU+4}")
    a(f"s_mov_b32 s52, {f32bits(1.0/640)}")
    a("s_cmp_lg_u32 s50, 0")
    a("s_cselect_b32 s53, 0x3e800000, 0")
    a("v_lshlrev_b32 v5, 3, v3")
    a("v_mul_u32_u24 v5, v4, v5")
    a("v_cvt_f32_u32 v5, v5")
    a("v_cvt_f32_u32 v4, v4")
    a("v_mul_f32 v6, 0x41800000, v4")
    for i in range(8):
        if i: a("v_add_f32 v5, v5, v4")
        a(f"v_mul_f32 v{PH+i}, s52, v5")
        a("v_sub_f32 v7, v5, v6")
        a(f"v_mul_f32 v{PH+8+i}, s52, v7")
    a("v_mul_f32 v6, s52, v6")
    a("v_fract_f32 v6, v6")
    for i in range(16): a(f"v_fract_f32 v{PH+i}, v{PH+i}")
    a("v_cos_f32 v19, v6")
    for i in range(16): a(f"v_sin_f32 v{SB[1][0]+i}, v{PH+i}")
    for i in range(16): a(f"v_subrev_f32 v{PH+i}, s53, v{PH+i}")
    for i in range(16): a(f"v_cos_f32 v{SB[0][0]+i}, v{PH+i}")
    a("v_add_f32 v19, v19, v19")
    for r in range(32): a(f"v_mov_b32 v{224+r}, 0")
    def cvts(jb, g): return [f"v_cvt_pk_bf16_f32 v{HB[jb][g]+d}, v{SB[jb][g]+2*d}, v{SB[jb][g]+2*d+1}" for d in range(4)]
    def rot(jb, cur): return [f"v_fma_f32 v{SB[jb][cur^1]+i}, v19, v{SB[jb][cur]+i}, -v{SB[jb][cur^1]+i}" for i in range(8)]
    for x in cvts(0, 0) + cvts(1, 0): a(x)
    a(f"s_cmp_lt_u32 s{sWAVE}, 5")
    a("s_cbranch_scc1 L_fold_go")
    if not OPT.get('sw2'):
        side_work(a)
        side_work_finish(a)
    a("s_branch L_fold_done")
    a("L_fold_go:")
    a("s_cmp_lg_u32 s27, 0")
    a("s_cselect_b32 s46, -1.0, 1.0")
    a("s_mov_b32 s47, s46")
    a("s_mov_b32 s48, 0xffff0000")
    T = 112; R = 144; H = 20
    ng = "neg_lo:[0,1] neg_hi:[0,1]"
    def dfold(src, dst):
        for d in range(4):
            a(f"v_lshlrev_b32 v{dst+2*d}, 16, v{src+d}")
            a(f"v_and_b32 v{dst+2*d+1}, s48, v{src+d}")
            a(f"v_lshlrev_b32 v{H+2*(d&1)}, 16, v{src+4+d}")
            a(f"v_and_b32 v{H+2*(d&1)+1}, s48, v{src+4+d}")
            a(f"v_pk_fma_f32 {vr(dst+2*d,2)}, {vr(H+2*(d&1),2)}, s[46:47], {vr(dst+2*d,2)}")
    for n in range(2):
        a("s_waitcnt vmcnt(%d)" % (8 if n == 0 else 0))
        if n == 0: stamp(a, 9)
        b = LD + 32*n
        for r in range(4): dfold(b + 8*r, T + 8*r)
        for d in range(4):
            p = lambda r: vr(T+8*r+2*d, 2)
            q = lambda r: vr(R+8*r+2*d, 2)
            a(f"v_pk_add_f32 {q(0)}, {p(0)}, {p(1)}")
            a(f"v_pk_add_f32 {q(1)}, {p(0)}, {p(1)} {ng}")
            a(f"v_pk_add_f32 {q(2)}, {p(2)}, {p(3)}")
            a(f"v_pk_add_f32 {q(3)}, {p(2)}, {p(3)} {ng}")
            a(f"v_pk_add_f32 {p(0)}, {q(0)}, {q(2)}")
            a(f"v_pk_add_f32 {p(1)}, {q(0)}, {q(2)} {ng}")
            a(f"v_pk_add_f32 {p(2)}, {q(1)}, {q(3)} {ng}")
            a(f"v_pk_add_f32 {p(3)}, {q(1)}, {q(3)}")
        if n == 0:
            a("s_cmp_lg_u32 s26, 0")
            a("s_cbranch_scc1 L_fold_sp")
            a("s_waitcnt vmcnt(0)")
            dfold(XL, R); dfold(XL + 8, R + 8)
            for d in range(4):
                a(f"v_pk_add_f32 {vr(R+16+2*d,2)}, {vr(R+2*d,2)}, {vr(R+8+2*d,2)}")
                a(f"v_pk_add_f32 {vr(R+2*d,2)}, {vr(R+2*d,2)}, {vr(R+8+2*d,2)} {ng}")
            for e in range(8): a(f"v_cndmask_b32 v{T+24+e}, v{R+e}, v{T+24+e}, vcc")
            for d in range(4): a(f"v_cvt_pk_bf16_f32 v{R+d}, v{R+16+2*d}, v{R+17+2*d}")
            a(f"ds_write_b128 v17, {vr(R,4)}")
            a("L_fold_sp:")
        for i in range(4):
            for d in range(4): a(f"v_cvt_pk_bf16_f32 v{b+4*i+d}, v{T+8*i+2*d}, v{T+8*i+2*d+1}")
            a(f"ds_write_b128 v{16+2*n}, {vr(b+4*i,4)} offset:{(i>>1)*20480 + (i&1)*256}")
    a("L_fold_done:")
    for r in range(16): a(f"v_mov_b32 v{32+r}, 0")
    a("s_waitcnt lgkmcnt(0)")
    stamp(a, 14)
    a("s_barrier")
    stamp(a, 2)
    make_srd(a, 28, pDBG, 0, 256)
    a("v_mov_b32 v16, 0")
    a("buffer_load_dwordx2 v[4:5], v16, s[28:31], 0 offen sc1")
    a("s_mul_i32 s42, s27, 6")
    a("s_add_u32 s42, s42, s49")
    a("s_cmp_gt_u32 s42, 10")
    a("s_cbranch_scc0 L_f1_go")
    a("s_waitcnt vmcnt(0)")
    a("s_branch L_prep_done")
    a("L_f1_go:")
    def ureads(j, kinds):
        jj = j & 3; o = (j >> 2) * 4096; b = UB[j & 3]; r = []
        for k in kinds:
            if k == 2: r.append(f"ds_read_b128 {vr(b+8,4)}, v{AU+4} offset:{j*32}")
            else: r.append(f"ds_read_b128 {vr(b+4*k,4)}, v{AU+jj} offset:{o + k*20480}")
        return r
    a("s_mov_b32 s45, 5")
    a("s_or_b32 s51, s26, s50")
    a("s_cmp_eq_u32 s51, 0")
    a("s_cselect_b32 s40, 1, 0")
    a(f"s_cmp_lt_u32 s{sWAVE}, 4")
    a("s_cselect_b32 s41, 2, 0")
    a("s_add_u32 s40, s40, s41")
    variants = [[0], [0, 2], [0, 1], [0, 1, 2]]
    for v in range(1, 4):
        a(f"s_cmp_eq_u32 s40, {v}")
        a(f"s_cbranch_scc1 L_f1_v{v}")
    for v, kinds in enumerate(variants):
        a(f"L_f1_v{v}:")
        nm = len(kinds)
        for x in ureads(0, kinds) + ureads(1, kinds): a(x)
        a(f"L_f1_loop{v}:")
        for jj in range(4):
            buf = jj & 1
            va = rot(0, buf) + cvts(0, buf ^ 1)
            if 1 in kinds: va = rot(0, buf) + rot(1, buf) + cvts(0, buf ^ 1) + cvts(1, buf ^ 1)
            rd = ureads(jj + 2, kinds)
            a(f"s_waitcnt lgkmcnt({nm})")
            a("s_nop 0")
            per = len(va) // nm
            for m, k in enumerate(kinds):
                d = vr(ACC3[k], 16)
                a(f"v_mfma_f32_32x32x16_bf16 {d}, {vr(UB[jj]+4*k,4)}, {vr(HB[k & 1][buf],4)}, {d}")
                a(rd[m])
                for x in va[per*m:per*m+per]: a(x)
        for r in range(4): a(f"v_add_u32 v{AU+r}, 4096, v{AU+r}")
        if 2 in kinds: a(f"v_add_u32 v{AU+4}, 128, v{AU+4}")
        a("s_sub_u32 s45, s45, 1")
        a("s_cmp_lg_u32 s45, 0")
        a(f"s_cbranch_scc1 L_f1_loop{v}")
        if v < 3: a("s_branch L_f1_done")
    a("L_f1_done:")
    stamp(a, 5)
    a("s_mul_i32 s43, s42, 33")
    a("s_and_b32 s44, s26, 1")
    a("s_lshl_b32 s44, s44, 4")
    a("s_lshr_b32 s45, s26, 1")
    a("s_add_u32 s44, s44, s45")
    a("s_add_u32 s44, s44, s43")
    a(f"s_mul_i32 s45, s50, {22*33}")
    a("s_add_u32 s44, s44, s45")
    a("s_lshl_b32 s44, s44, 10")
    a("s_waitcnt vmcnt(0) lgkmcnt(0)")
    a("s_nop 5")
    for jb in range(2):
        b = ACC3[jb]
        if jb == 1:
            a(f"s_cmp_ge_u32 s{sWAVE}, 4")
            a("s_cbranch_scc1 L_f1_one")
        for r in range(8): a(f"v_cvt_pk_bf16_f32 v{b+r}, v{b+2*r}, v{b+2*r+1}")
        for hf in range(2):
            a(f"buffer_store_dwordx4 {vr(b+4*hf,4)}, v15, s[36:39], s44 offen sc1")
            a(f"s_add_u32 s44, s44, {11*33*1024}")
    a("L_f1_one:")
    a("s_cmp_lg_u32 s51, 0")
    a("s_cbranch_scc1 L_prep_done")
    b = ACC3[2]
    for r in range(4): a(f"v_cvt_pk_bf16_f32 v{b+r}, v{b+2*r}, v{b+2*r+1}")
    a("s_add_u32 s43, s43, 32")
    a("s_lshl_b32 s43, s43, 10")
    a(f"buffer_store_dwordx4 {vr(b,4)}, v15, s[36:39], s43 offen sc1")
    a("L_prep_done:")
    if OPT.get('sw2'):
        a(f"s_cmp_lt_u32 s{sWAVE}, 5")
        a("s_cbranch_scc1 L_prep_fin")
        side_work(a)
        side_work_finish(a)
        a("L_prep_fin:")
    a(f"v_readfirstlane_b32 s{sNON}, v4")
    a(f"v_readfirstlane_b32 s{sNON+1}, v5")
    a("s_nop 0")
    a(f"s_cmp_lg_u32 s{sNON}, 0")
    a("s_cbranch_scc1 L_A_done")
    get_nonce(a, 2)

W_PROG, W_GO, W_CNT, W_PASS, W_XCH, W_NON = 0, 4, 8, 16, 32, 48
def a_done(a):
    a("L_A_done:")
    stamp(a, 6)
    a(f"v_mov_b32 v23, {LDS_PROG}")
    a(f"s_cmp_lg_u32 s{sWAVE}, 4")
    a("s_cbranch_scc1 L_A_bar")
    a(f"v_mov_b32 v2, s{sNON}")
    a(f"v_mov_b32 v3, s{sNON+1}")
    a(f"ds_write_b64 v23, v[2:3] offset:{W_NON}")
    a("L_A_bar:")
    a("s_waitcnt lgkmcnt(0)")
    a("s_barrier")
    stamp(a, 4)
    a(f"s_lshr_b32 s26, s{sXCD}, 1")
    a("s_lshl_b32 s26, s26, 3")
    a(f"s_and_b32 s27, s{sSLOT}, 7")
    a("s_add_u32 s26, s26, s27")
    a(f"s_and_b32 s27, s{sXCD}, 1")
    a("s_lshl_b32 s27, s27, 2")
    a(f"s_lshr_b32 s40, s{sSLOT}, 3")
    a("s_add_u32 s27, s27, s40")
    a(f"s_cmp_ge_u32 s{sWAVE}, 4")
    a("s_cbranch_scc1 L_aux")

def drained(a, vt):
    a(f"v_mov_b32 v{vt}, 1")
    a("s_mov_b64 exec, 1")
    a(f"ds_add_u32 v23, v{vt} offset:{W_CNT}")
    a("s_mov_b64 exec, -1")

def attention(a):
    SL = OPT.get('slot', 1)
    AKA, AKB, AV, AKB2 = 4, 5, 168, 172
    AREGS = [AKA, AV, AV+1, AV+2, AV+3] + ([AKB2, AKB2+1] if SL else [AKB])
    QA = [8, 14]
    NEG = [32, 48]; S = [64, 80]; O = [96, 112]; P = 128
    KB = [136, 142]; VB = [148, 156]
    PR = 164
    a("L_attn:")
    a(f"ds_read_b32 v24, v23 offset:{W_GO}")
    a(f"ds_read_b64 v[26:27], v23 offset:{W_NON}")
    a(f"s_setprio {OPT.get('pattn', 2)}")
    a(f"s_mul_i32 s40, s26, {Q_HEAD}")
    a(f"s_add_u32 s40, s40, {Q_OFF}")
    make_srd(a, 28, pWS, "s40", Q_HEAD)
    a(f"s_mul_i32 s40, s26, {KV_HEAD}")
    make_srd(a, 32, pWS, "s40", KV_HEAD)
    a("v_and_b32 v2, 31, v1")
    a("v_lshrrev_b32 v3, 5, v1")
    a(f"v_lshlrev_b32 v{AKA}, 4, v1")
    a(f"v_lshlrev_b32 v{AKB}, 3, v2")
    a(f"v_add_u32 v{AKB}, 1024, v{AKB}")
    a(f"v_mov_b32 v20, {HUGE}")
    a("v_cmp_gt_u32 vcc, 32, v1")
    a("s_lshl_b32 s41, s27, 3")
    a(f"s_lshl_b32 s42, s{sWAVE}, 1")
    a("s_add_u32 s41, s41, s42")
    a(f"v_cndmask_b32 v20, v20, v{AKB}, vcc")
    a(f"s_mul_i32 s42, s41, {TQ}")
    a("v_and_b32 v21, 28, v2")
    a("v_add_u32 v21, v21, v2")
    a("v_lshl_add_u32 v21, v3, 2, v21")
    a("v_lshlrev_b32 v21, 4, v21")
    a("v_add_u32 v29, 1280, v21")
    a("s_mov_b32 s48, 0x000fffff")
    a("s_mov_b32 s49, 0x000fffff")
    a("s_mov_b32 s52, 0x07060302")
    a("s_waitcnt lgkmcnt(0)")
    a("v_readfirstlane_b32 s47, v24")
    a(f"v_readfirstlane_b32 s{sNON}, v26")
    a(f"v_readfirstlane_b32 s{sNON+1}, v27")
    a("s_mov_b32 s50, s47")
    a("s_cmp_lg_u32 s47, 0")
    a("s_cbranch_scc1 L_attn_go")
    a("s_waitcnt vmcnt(0)")
    stamp(a, 3)
    drained(a, 24)
    a("L_attn_spin:")
    a(f"s_sleep {OPT.get('asl', 1)}")
    a(f"ds_read_b32 v24, v23 offset:{W_GO}")
    a("s_waitcnt lgkmcnt(0)")
    a("v_readfirstlane_b32 s47, v24")
    a("s_nop 0")
    a("s_cmp_eq_u32 s47, 0")
    a("s_cbranch_scc1 L_attn_spin")
    a("L_attn_go:")
    stamp(a, 7); stamp(a, 7, 2); stamp_real(a, 8, 2)
    a("s_sub_u32 s47, s47, 1")
    a(f"s_mul_i32 s47, s47, {4*TKV}")
    for q in range(2):
        a(f"buffer_load_dwordx4 {vr(QA[q],4)}, v{AKA}, s[28:31], s42 offen offset:{q*TQ} sc1")
        a(f"buffer_load_dwordx2 {vr(QA[q]+4,2)}, v20, s[28:31], s42 offen offset:{q*TQ} sc1")
    a(f"buffer_load_dwordx4 {vr(KB[0],4)}, v{AKA}, s[32:35], s47 offen sc1")
    if SL:
        for b in KB:
            a(f"v_mov_b32 v{b+4}, 0x3f803f80")
            a(f"v_mov_b32 v{b+5}, 0x3f80")
        a("s_mov_b32 exec_hi, 0")
    a(f"buffer_load_dwordx2 {vr(KB[0]+4,2)}, v{AKB}, s[32:35], s47 offen sc1")
    if SL: a("s_mov_b64 exec, -1")
    a("v_mov_b32 v24, 0x3f803f80")
    a("v_cmp_eq_u32 vcc, 20, v2")
    a(f"s_add_u32 s43, s47, {TKV}")
    a("s_nop 0")
    a("v_cndmask_b32 v24, 0, v24, vcc")
    for r in range(16): a(f"v_mov_b32 v{VB[0]+r}, v24")
    a(f"buffer_load_dwordx4 {vr(KB[1],4)}, v{AKA}, s[32:35], s43 offen sc1")
    if SL: a("s_mov_b32 exec_hi, 0")
    a(f"buffer_load_dwordx2 {vr(KB[1]+4,2)}, v{AKB}, s[32:35], s43 offen sc1")
    a("s_mov_b64 exec, s[48:49]")
    a(f"buffer_load_dwordx4 {vr(VB[0],4)}, v29, s[32:35], s47 offen sc1")
    a(f"buffer_load_dwordx4 {vr(VB[0]+4,4)}, v29, s[32:35], s47 offen offset:640 sc1")
    a(f"buffer_load_dwordx4 {vr(VB[1],4)}, v29, s[32:35], s43 offen sc1")
    a(f"buffer_load_dwordx4 {vr(VB[1]+4,4)}, v29, s[32:35], s43 offen offset:640 sc1")
    a("s_mov_b64 exec, -1")
    a("s_cmp_eq_u32 s50, 0")
    a("s_cbranch_scc1 L_attn_cnt")
    a("s_waitcnt vmcnt(12)")
    stamp(a, 3)
    drained(a, 24)
    a("L_attn_cnt:")
    a("v_mov_b32 v22, 5120")
    if OPT.get('zr', 1):
        a("v_cmp_lt_u32 vcc, 20, v2")
        a("v_mov_b32 v21, 5136")
        a("s_nop 0")
        a("v_cndmask_b32 v22, v22, v21, vcc")
    a("v_cmp_gt_u32 vcc, 20, v2")
    for i in range(4): a(f"v_add_u32 v{AV+i}, {(i>>1)*TKV + (i&1)*640}, v29")
    for i in range(4): a(f"v_cndmask_b32 v{AV+i}, v22, v{AV+i}, vcc")
    if SL:
        a("v_cmp_gt_u32 vcc, 32, v1")
        a("v_mov_b32 v22, 5152")
        a(f"v_add_u32 v21, {TKV}, v{AKB}")
        a(f"v_cndmask_b32 v{AKB2}, v22, v{AKB}, vcc")
        a(f"v_cndmask_b32 v{AKB2+1}, v22, v21, vcc")
    make_srd(a, 36, pWS, O_OFF, O_SIZE)
    for q in range(2):
        for r in range(16): a(f"v_mov_b32 v{O[q]+r}, 0")
    LOOPED = [False]
    mm16 = "v_mfma_f32_32x32x16_bf16"; mm8 = "v_mfma_f32_32x32x8_bf16"
    def M1(s, t, q, c): return "s_nop 1" if OPT.get('nom1') and c == "0" and LOOPED[0] else f"{mm16} {vr(s,16)}, {vr(KB[t&1],4)}, {vr(QA[q],4)}, {c}"
    def M2(s, t, q): return "s_nop 0" if OPT.get('nom2') and LOOPED[0] else f"{mm8} {vr(s,16)}, {vr(KB[t&1]+4,2)}, {vr(QA[q]+4,2)}, {vr(s,16)}"
    def M3(t, q): return "s_nop 1" if OPT.get('nopv') else f"{mm16} {vr(O[q],16)}, {vr(VB[t&1],4)}, {vr(P,4)}, {vr(O[q],16)}"
    def M4(t, q): return "s_nop 1" if OPT.get('nopv') else f"{mm16} {vr(O[q],16)}, {vr(VB[t&1]+4,4)}, {vr(P+4,4)}, {vr(O[q],16)}"
    def rowmax(src, dst, first):
        if first:
            a(f"v_max3_f32 v{dst}, v{src}, v{src+1}, v{src+2}")
            a(f"v_max_f32 v{dst}, v{dst}, v{src+15}")
            rng = range(3, 15, 2)
        else: rng = range(0, 16, 2)
        for r in rng: a(f"v_max3_f32 v{dst}, v{dst}, v{src+r}, v{src+r+1}")
    def finish_neg(add):
        a("v_mov_b32 v26, v24")
        a("v_mov_b32 v27, v25")
        a("s_nop 1")
        a("v_permlane32_swap_b32 v24, v26")
        a("v_permlane32_swap_b32 v25, v27")
        a("s_nop 1")
        a("v_max_f32 v24, v24, v26")
        a("v_max_f32 v25, v25, v27")
        if not SL:
            for q in range(2):
                a(f"v_sub_f32 v{NEG[q]}, {add}, v{24+q}")
                for r in range(1, 16): a(f"v_mov_b32 v{NEG[q]+r}, v{NEG[q]}")
            return
        a("s_mov_b32 s45, 0xffff0000")
        a("s_mov_b32 s46, 0x07060302")
        for q in range(2):
            a(f"v_sub_f32 v{24+q}, {add}, v{24+q}")
        for q in range(2):
            a(f"v_and_b32 v26, s45, v{24+q}")
            a(f"v_sub_f32 v27, v{24+q}, v26")
            a("v_and_b32 v28, s45, v27")
            a("v_sub_f32 v27, v27, v28")
            a("v_perm_b32 v26, v28, v26, s46")
            a("v_lshrrev_b32 v27, 16, v27")
            a("s_mov_b32 exec_lo, 0")
            a(f"v_mov_b32 v{QA[q]+4}, v26")
            a(f"v_mov_b32 v{QA[q]+5}, v27")
            a("s_mov_b64 exec, -1")
        a("s_nop 1")
    CNEG = lambda q: "0" if SL else vr(NEG[q], 16)
    a("s_waitcnt vmcnt(6)")
    stamp(a, 8)
    def neg_one(q, add):
        a(f"v_mov_b32 v26, v{24+q}")
        a("s_nop 1")
        a(f"v_permlane32_swap_b32 v{24+q}, v26")
        a("s_nop 0")
        a(f"v_max_f32 v{24+q}, v{24+q}, v26")
        a(f"v_sub_f32 v{24+q}, {add}, v{24+q}")
        a(f"v_and_b32 v26, s45, v{24+q}")
        a(f"v_sub_f32 v27, v{24+q}, v26")
        a("v_and_b32 v28, s45, v27")
        a("v_sub_f32 v27, v27, v28")
        a("s_mov_b32 exec_lo, 0")
        a(f"v_perm_b32 v{QA[q]+4}, v28, v26, s46")
        a(f"v_lshrrev_b32 v{QA[q]+5}, 16, v27")
        a("s_mov_b64 exec, -1")
    OFFS = hex(f32bits(-float(OPT.get('off', 100))))
    a(M1(S[0], 0, 0, "0")); a(M2(S[0], 0, 0))
    a(M1(S[1], 0, 1, "0")); a(M2(S[1], 0, 1))
    a("s_mov_b32 s45, 0xffff0000")
    a("s_mov_b32 s46, 0x07060302")
    a(f"ds_read_b32 v{PR}, v23")
    a("s_nop 6")
    rowmax(S[0], 24, True)
    neg_one(0, OFFS)
    a("s_nop 0")
    a(M1(S[0], 0, 0, CNEG(0)))
    a(M2(S[0], 0, 0))
    rowmax(S[1], 25, True)
    neg_one(1, OFFS)
    a("s_waitcnt vmcnt(0)")
    def check(need):
        l = a.label("L_chk"); ok = a.label("L_chkok")
        a(f"{l}:")
        a("s_waitcnt lgkmcnt(0)")
        a(f"v_readfirstlane_b32 s44, v{PR}")
        a("s_nop 0")
        a(f"s_cmp_ge_u32 s44, {need}")
        a(f"s_cbranch_scc1 {ok}")
        a(f"ds_read_b32 v{PR}, v23")
        a(f"s_branch {l}")
        a(".p2align 3")
        a(f"{ok}:")
    def unit(t, q, s4=(), s1=(), s2=(), s3=(), first=False, nonext=False):
        s = S[q]; sn = S[q ^ 1]
        t1, q1 = (t, 1) if q == 0 else (t + 1, 0)
        tp, qp = (t - 1, 1) if q == 0 else (t, 0)
        E = lambda r: a(f"v_exp_f32 v{s+r}, v{s+r}")
        C = lambda j: a(f"v_perm_b32 v{P+j}, v{s+2*j+1}, v{s+2*j}, s52" if OPT.get('perm') else f"v_cvt_pk_bf16_f32 v{P+j}, v{s+2*j}, v{s+2*j+1}")
        al = OPT.get('al', 0)
        EW = lambda r: a(f"v_exp_f32_e64 v{s+r}, v{s+r}") if al else E(r)
        odd = lambda xs: sum(1 for x in xs if x.startswith("s_")) & 1
        E(0); E(1)
        if not first: a(M4(tp, qp))
        for x in s4: a(x)
        (E if odd(s4) else EW)(2); E(3); E(4)
        if not nonext: a(M1(sn, t1, q1, CNEG(q1)))
        for x in s1: a(x)
        EW(5); E(6); E(7)
        for j in range(4): C(j)
        if not nonext: a(M2(sn, t1, q1))
        for x in s2: a(x)
        EW(8)
        for r in range(9, 13): E(r)
        a(M3(t, q))
        for x in s3: a(x)
        (E if odd(s3) else EW)(13); E(14); E(15)
        for j in range(4, 8): C(j)
    def period(t, o, extra3=()):
        if OPT.get('nods') and LOOPED[0]: o = None
        if o is None:
            if extra3:
                unit(t, 1, s4=["s_waitcnt lgkmcnt(0)"]); unit(t + 1, 0, s3=extra3); return
            unit(t, 1, s4=["s_waitcnt lgkmcnt(0)"]); unit(t + 1, 0); return
        kb = KB[t & 1]; vb = VB[t & 1]
        ok = lds_tile(o + 2); ov = (o >> 1) * LPAIR; av = AV + 2*(o & 1)
        unit(t, 1, s4=["s_waitcnt lgkmcnt(0)"],
             s1=[f"ds_read_b128 {vr(kb,4)}, v{AKA} offset:{ok}"],
             s3=[f"ds_read_b64 {vr(kb+4,2)}, v{AKB2+(o&1)} offset:{ov}" if SL else f"ds_read_b64 {vr(kb+4,2)}, v{AKB} offset:{ok}"])
        unit(t + 1, 0, s4=[f"ds_read_b128 {vr(vb,4)}, v{av} offset:{ov}"],
             s1=[f"ds_read_b128 {vr(vb+4,4)}, v{av+1} offset:{ov}"], s3=extra3)
    rdp = [f"ds_read_b32 v{PR}, v23"]
    a(".p2align 3")
    unit(0, 0, first=True)
    stamp(a, 9)
    check(1)
    for t in range(6):
        if t == 2: check(2)
        period(t, t, rdp if t in (1, 5) else ())
    for r in AREGS: a(f"v_add_u32 v{r}, {3*LPAIR}, v{r}")
    a(f"s_lshl_b32 s45, s{sWAVE}, 2")
    a("v_add_u32 v24, s45, v23")
    a(f"ds_write_b32 v24, v23 offset:{W_PASS}")
    a("s_mov_b32 s45, 2")
    a("s_mov_b32 s46, 7")
    stamp(a, 10); stamp(a, 10, 2); stamp_real(a, 12, 2)
    LOOPED[0] = True
    def body(chk):
        for k in range(8):
            ex = ()
            if k == 7: ex = (rdp if chk else [])
            if k == 6: ex = ["s_sub_u32 s46, s46, 1"]
            if k == 7 and not chk: ex = ["s_cmp_lg_u32 s46, 0"]
            period(k, k, ex)
        for r in AREGS: a(f"v_add_u32 v{r}, {4*LPAIR}, v{r}")
    a("s_cmp_eq_u32 s44, 16")
    a("s_cbranch_scc1 L_attn_fast")
    a(".p2align 3")
    a("L_attn_loop:")
    a("s_add_u32 s45, s45, 2")
    check("s45")
    body(True)
    a("s_cmp_eq_u32 s46, 0")
    a("s_cbranch_scc1 L_attn_last")
    a("s_cmp_lg_u32 s44, 16")
    a("s_cbranch_scc1 L_attn_loop")
    a(".p2align 3")
    a("L_attn_fast:")
    body(False)
    a("s_cbranch_scc1 L_attn_fast")
    a(".p2align 3")
    a("L_attn_last:")
    period(62, None)
    unit(63, 1, nonext=True)
    a("s_nop 1")
    a(M4(63, 1))
    stamp(a, 11); stamp(a, 11, 2); stamp_real(a, 13, 2)
    a("L_attn_post:")
    a("s_lshl_b32 s42, s41, 5")
    a("s_add_u32 s42, s42, s26")
    a("s_mul_i32 s42, s42, 1280")
    a("v_lshlrev_b32 v21, 4, v1")
    for q in range(2):
        a(f"v_mov_b32 v{24+q}, v{O[q]+8}")
        a(f"v_mov_b32 v26, v{O[q]+8}")
        a("s_nop 1")
        a(f"v_permlane32_swap_b32 v26, v{24+q}")
        a("s_nop 0")
        a(f"v_rcp_f32 v26, v{24+q}")
        a("s_nop 0")
        for r in range(12): a(f"v_mul_f32 v{S[q]+r}, v{O[q]+r}, v26")
        for r in range(6): a(f"v_cvt_pk_bf16_f32 v{S[q]+r}, v{S[q]+2*r}, v{S[q]+2*r+1}")
        a(f"buffer_store_dwordx4 {vr(S[q],4)}, v21, s[36:39], s42 offen sc1")
        a(f"buffer_store_dwordx2 {vr(S[q]+4,2)}, v20, s[36:39], s42 offen sc1")
        if q == 0: a(f"s_add_u32 s42, s42, {32*1280}")
    a("s_cmp_eq_u32 s46, 0")
    a("s_cbranch_scc0 L_attn_fin")
    for q in range(2):
        a(f"v_max3_f32 v{30+q}, abs(v{O[q]}), abs(v{O[q]+1}), abs(v{O[q]+2})")
        a(f"v_mul_f32 v{26+q}, 0, v{24+q}")
    for r in range(12):
        for q in range(2): a(f"v_fma_f32 v{26+q}, v{O[q]+r}, 0, v{26+q}")
    for q in range(2):
        a(f"v_max3_f32 v{30+q}, v{30+q}, abs(v{O[q]+3}), abs(v{O[q]+4})")
        a(f"v_max3_f32 v{30+q}, v{30+q}, abs(v{O[q]+5}), abs(v{O[q]+6})")
        a(f"v_max_f32 v{30+q}, v{30+q}, abs(v{O[q]+7})")
    a("v_max_f32 v24, v24, v25")
    a("v_min_f32 v30, v30, v31")
    a("v_mov_b32 v28, 0x76800000")
    a("v_mov_b32 v31, 0x08800000")
    a("v_cmp_u_f32 s[44:45], v26, v27")
    a("v_cmp_nlt_f32 vcc, v24, v28")
    a("v_cmp_lt_f32 s[50:51], v30, v31")
    a("s_nop 1")
    a("s_or_b64 vcc, vcc, s[44:45]")
    a("s_or_b64 vcc, vcc, s[50:51]")
    if OPT.get('forcefb'): a("s_mov_b64 vcc, -1")
    a("s_cbranch_vccnz L_attn_fallback")
    a("L_attn_fin:")
    if OPT.get('apoll', 0): prod_flags(a, 12, 13)
    a("s_lshl_b32 s40, s2, 2")
    a(f"s_add_u32 s40, s40, s{sWAVE}")
    a(f"s_add_u32 s40, s40, {FB}")
    a("s_lshl_b32 s40, s40, 7")
    for i in range(4): a(f"v_mov_b32 v{8+i}, s{sNON+(i&1)}")
    a("s_waitcnt vmcnt(0)")
    stamp(a, 12)
    a("s_mov_b64 exec, 0xff")
    a(f"buffer_store_dwordx4 v[8:11], v21, {sr(sFL,4)}, s40 offen sc1")
    a("s_mov_b64 exec, -1")
    a("s_barrier")
    if OPT.get('apoll', 0):
        a(f"s_cmp_lg_u32 s{sWAVE}, 0")
        a("s_cbranch_scc1 L_end")
        if OPT.get('apoll', 0) > 1: poll_piped(a, 12, 14, OPT.get('apoll', 0))
        else: poll(a, 12, 14, sleep=0)
        a("s_barrier")
    a("s_branch L_end")
    a("L_attn_fallback:")
    a("s_waitcnt vmcnt(0)")
    for r in ((AKA,) if SL else (AKA, AKB)): a(f"v_subrev_u32 v{r}, {31*LPAIR}, v{r}")
    if SL:
        a("s_mov_b32 exec_lo, 0")
        for q in range(2):
            a(f"v_mov_b32 v{QA[q]+4}, 0")
            a(f"v_mov_b32 v{QA[q]+5}, 0")
        a("s_mov_b64 exec, -1")
    a("v_mov_b32 v24, 0xff800000")
    a("v_mov_b32 v25, 0xff800000")
    a("s_mov_b32 s46, 0")
    a("L_fb_max:")
    a(f"buffer_load_dwordx4 {vr(KB[0],4)}, v{AKA}, s[32:35], s46 offen sc1")
    if SL: a("s_mov_b32 exec_hi, 0")
    a(f"buffer_load_dwordx2 {vr(KB[0]+4,2)}, v{AKB}, s[32:35], s46 offen sc1")
    if SL: a("s_mov_b64 exec, -1")
    a("s_waitcnt vmcnt(0)")
    for q in range(2): a(M1(S[q], 0, q, "0"))
    for q in range(2): a(M2(S[q], 0, q))
    a("s_nop 15")
    rowmax(S[0], 24, False)
    rowmax(S[1], 25, False)
    a(f"s_add_u32 s46, s46, {TKV}")
    a(f"s_cmp_lt_u32 s46, {KV_HEAD}")
    a("s_cbranch_scc1 L_fb_max")
    finish_neg("0")
    for q in range(2):
        for r in range(16): a(f"v_mov_b32 v{O[q]+r}, 0")
    a("s_mov_b32 s46, 0")
    a("L_fb_main:")
    a(f"buffer_load_dwordx4 {vr(KB[0],4)}, v{AKA}, s[32:35], s46 offen sc1")
    if SL: a("s_mov_b32 exec_hi, 0")
    a(f"buffer_load_dwordx2 {vr(KB[0]+4,2)}, v{AKB}, s[32:35], s46 offen sc1")
    if SL: a("s_mov_b64 exec, -1")
    a("s_mov_b64 exec, s[48:49]")
    a(f"buffer_load_dwordx4 {vr(VB[0],4)}, v29, s[32:35], s46 offen sc1")
    a(f"buffer_load_dwordx4 {vr(VB[0]+4,4)}, v29, s[32:35], s46 offen offset:640 sc1")
    a("s_mov_b64 exec, -1")
    a("s_waitcnt vmcnt(0)")
    for q in range(2): a(M1(S[q], 0, q, CNEG(q)))
    for q in range(2): a(M2(S[q], 0, q))
    a("s_nop 15")
    for q in range(2):
        for r in range(16): a(f"v_exp_f32 v{S[q]+r}, v{S[q]+r}")
        a("s_nop 0")
        for j in range(8): a(f"v_cvt_pk_bf16_f32 v{P+j}, v{S[q]+2*j}, v{S[q]+2*j+1}")
        a("s_nop 1")
        a(M3(0, q)); a(M4(0, q))
    a(f"s_add_u32 s46, s46, {TKV}")
    a(f"s_cmp_lt_u32 s46, {KV_HEAD}")
    a("s_cbranch_scc1 L_fb_main")
    a("s_nop 15")
    a("s_branch L_attn_post")

def aux(a):
    a("L_aux:")
    a(f"s_setprio {OPT.get('paux', 0)}")
    a(f"s_sub_u32 s44, s{sWAVE}, 4")
    a("v_lshlrev_b32 v2, 4, v1")
    a("s_waitcnt vmcnt(0)")
    drained(a, 3)
    a("s_cmp_eq_u32 s44, 0")
    a("s_cbranch_scc1 L_kv")
    a("s_cmp_lg_u32 s44, 1")
    a("s_cbranch_scc1 L_aux_wait")
    a("s_lshl_b32 s40, s2, 7")
    a("L_cnt_spin:")
    a(f"s_sleep {OPT.get('asl', 1)}")
    a(f"ds_read_b32 v3, v23 offset:{W_CNT}")
    a("s_waitcnt lgkmcnt(0)")
    a("v_readfirstlane_b32 s41, v3")
    a("s_nop 0")
    a("s_cmp_lt_u32 s41, 8")
    a("s_cbranch_scc1 L_cnt_spin")
    stamp(a, 7)
    set_flag(a, 40, 8, also=FL1*128 if OPT.get('lf', 1) else None)
    a("L_aux_wait:")
    a(f"s_sleep {OPT.get('wsl', 16)}")
    a(f"ds_read_b32 v3, v23 offset:{W_PROG}")
    a("s_waitcnt lgkmcnt(0)")
    a("v_readfirstlane_b32 s41, v3")
    a("s_nop 0")
    a(f"s_cmp_lt_u32 s41, {OPT.get('f2w', 6)}")
    a("s_cbranch_scc1 L_aux_wait")
    if OPT.get('dyn', 1):
        a("s_cmp_lg_u32 s44, 1")
        a("s_cbranch_scc1 L_kv_done")
        make_srd(a, 28, pDBG, 0, 256)
        a("v_mov_b32 v3, 1")
        a("v_mov_b32 v4, 128")
        a("s_mov_b64 exec, 1")
        a("buffer_atomic_add v3, v4, s[28:31], 0 offen sc0")
        a("s_waitcnt vmcnt(0)")
        a("v_add_u32 v3, 1, v3")
        a("ds_write_b32 v23, v3 offset:12")
        a("s_mov_b64 exec, -1")
    a("s_branch L_kv_done")
    a("L_kv:")
    a(f"s_mul_i32 s40, s26, {KV_HEAD}")
    make_srd(a, 28, pWS, "s40", KV_HEAD)
    a(f"v_mul_u32_u24 v6, {LPAIR}, v1")
    a("v_min_u32 v6, %d, v6" % (30*LPAIR))
    for r in range(4): a(f"v_mov_b32 v{8+r}, 0x3f803f80")
    a("ds_write_b128 v6, v[8:11] offset:5120")
    for r in range(4): a(f"v_mov_b32 v{12+r}, 0")
    a("ds_write_b128 v6, v[12:15] offset:5136")
    a("v_mov_b32 v16, 0x3f803f80")
    a("v_mov_b32 v17, 0x3f80")
    a("ds_write_b64 v6, v[16:17] offset:5152")
    a("s_lshr_b32 s41, s26, 3")
    a("s_lshl_b32 s41, s41, 1")
    a(f"s_and_b32 s43, s{sXCD}, 1")
    a("s_lshl_b32 s43, s43, 3")
    a("s_lshl_b32 s42, s27, 1")
    a("v_and_b32 v3, 15, v1")
    a("v_lshrrev_b32 v5, 4, v1")
    a("v_add_u32 v5, 1, v5")
    a("v_and_b32 v4, 7, v1")
    a("v_add_u32 v4, s43, v4")
    a("v_bfe_u32 v6, v1, 3, 1")
    a("v_add_u32 v6, 1, v6")
    a("v_cmp_gt_u32 vcc, 32, v1")
    a("v_and_b32 v7, 1, v1")
    a("v_add_u32 v7, s42, v7")
    a("v_cndmask_b32 v3, v4, v3, vcc")
    a("v_cndmask_b32 v5, v6, v5, vcc")
    a("v_cmp_gt_u32 vcc, 48, v1")
    a("v_add_u32 v6, -48, v1")
    a(f"v_mov_b32 v4, {FL1}")
    a("v_cndmask_b32 v3, v7, v3, vcc")
    a("v_cndmask_b32 v5, 0, v5, vcc")
    a("v_cmp_gt_u32 vcc, 2, v6")
    a("v_cmp_gt_u32 s[46:47], 32, v1")
    a("v_and_b32 v7, 7, v3")
    a("v_lshl_add_u32 v5, v5, 3, v7")
    a("s_or_b64 vcc, vcc, s[46:47]")
    a("v_lshrrev_b32 v3, 3, v3")
    a("v_add_u32 v3, s41, v3")
    a("v_cndmask_b32 v4, v4, 0, vcc")
    a("v_lshl_add_u32 v5, v5, 3, v3")
    a("v_add_u32 v5, v5, v4")
    a("v_lshlrev_b32 v5, 7, v5")
    def poll_once(first=False):
        if first and OPT.get('lf', 1):
            a("s_and_b32 s48, s40, 7")
            a("s_cmp_eq_u32 s48, 0")
            a("s_cselect_b32 exec_lo, -1, 0")
            a("s_cselect_b32 exec_hi, -1, 0xcffff")
        a(f"buffer_load_dwordx2 v[6:7], v5, {sr(sFL,4)}, 0 offen sc1")
        if first and OPT.get('lf', 1): a("s_mov_b64 exec, -1")
        a("s_waitcnt vmcnt(0)")
        a(f"v_cmp_eq_u64 vcc, {sr(sNON,2)}, v[6:7]")
        a("s_sub_u32 s40, s40, 1")
        a("s_cselect_b32 s47, 0xffff, 0")
        a("s_and_b32 s48, vcc_hi, 0xff")
        a("s_lshl_b32 s48, s48, s43")
        a("s_or_b32 s48, s48, vcc_lo")
        a("s_bfe_u32 s49, vcc_hi, 0x80008")
        a("s_lshl_b32 s49, s49, s43")
        a("s_lshr_b32 s45, vcc_lo, 16")
        a("s_or_b32 s45, s45, s49")
        a("s_and_b32 s45, s45, s48")
        a("s_or_b32 s45, s45, s47")
    def pub(off, sreg):
        a(f"v_mov_b32 v4, s{sreg}")
        a(f"ds_write_b32 v23, v4 offset:{off}")
    a(f"s_mov_b32 s40, {POLL_MAX - 1}")
    a("v_mov_b32 v6, 0")
    a("v_mov_b32 v7, 0")
    if OPT.get('padgo'):
        a("L_padgo:")
        a("s_memrealtime s[42:43]")
        a("s_waitcnt lgkmcnt(0)")
        a(f"s_sub_u32 s42, s42, s{sNON}")
        a(f"s_cmp_lt_u32 s42, {OPT['padgo']}")
        a("s_cbranch_scc1 L_padgo")
    a("L_kv_p1:")
    a(f"s_sleep {OPT.get('ksl', 1)}")
    poll_once(True)
    a("s_cmp_lg_u32 s47, 0")
    a("s_cbranch_scc1 L_kv_first")
    a("s_lshr_b32 s48, vcc_hi, 16")
    a("s_lshr_b32 s49, vcc_hi, 18")
    a("s_or_b32 s48, s48, s49")
    a("s_and_b32 s48, s48, 3")
    a("s_cmp_eq_u32 s48, 3")
    a("s_cselect_b32 s48, s45, 0")
    a("s_cmp_eq_u32 s48, 0")
    a("s_cbranch_scc1 L_kv_p1")
    a("L_kv_first:")
    a("s_ff1_i32_b32 s48, s45")
    a("s_add_u32 s49, s48, 1")
    pub(W_GO, 49)
    stamp(a, 7)
    a("s_lshl_b32 s46, 1, s48")
    a(f"s_mul_i32 s48, s48, {4*TKV}")
    a(f"s_add_u32 s48, s48, {2*TKV}")
    for i in range(5):
        a(f"s_mov_b32 m0, {i*1024}")
        a("s_nop 0")
        a("buffer_load_dwordx4 v2, s[28:31], s48 offen sc1 lds")
        if i < 4: a("s_add_u32 s48, s48, 1024")
    a("s_mov_b32 s50, 1")
    a(f"s_mov_b32 s51, {LPAIR}")
    a("L_kv_next:")
    a("s_andn2_b32 s48, s45, s46")
    a("s_cbranch_scc0 L_kv_poll")
    a("s_ff1_i32_b32 s48, s48")
    a("s_bitset1_b32 s46, s48")
    a(f"s_mul_i32 s48, s48, {4*TKV}")
    for i in range(10):
        a(f"s_add_u32 m0, s51, {i*1024 + (64 if i >= 5 else 0)}")
        if i: a("s_add_u32 s48, s48, 1024")
        else: a("s_nop 0")
        a("buffer_load_dwordx4 v2, s[28:31], s48 offen sc1 lds")
    a(f"s_add_u32 s51, s51, {2*LPAIR}")
    a("s_cmp_eq_u32 s50, 1")
    a("s_cbranch_scc0 L_kv_w20")
    a("s_waitcnt vmcnt(10)")
    pub(W_PROG, 50)
    a("s_mov_b32 s50, 2")
    a("s_branch L_kv_next")
    a("L_kv_w20:")
    a("s_waitcnt vmcnt(20)")
    a("s_sub_u32 s49, s50, 1")
    pub(W_PROG, 49)
    a("s_add_u32 s50, s50, 1")
    a("s_branch L_kv_next")
    a("L_kv_poll:")
    a("s_waitcnt vmcnt(0)")
    pub(W_PROG, 50)
    a("s_cmp_eq_u32 s50, 16")
    a("s_cbranch_scc1 L_kv_done")
    poll_once()
    a("s_branch L_kv_next")
    a("L_kv_done:")
    if OPT.get('f2s', 16):
        a("s_branch L_all0")
        a("L_all:")
        a(f"s_sleep {OPT.get('wsl', 16)}")
        a("L_all0:")
        a(f"ds_read_b32 v3, v23 offset:{W_PROG}")
        a("s_waitcnt lgkmcnt(0)")
        a("v_readfirstlane_b32 s41, v3")
        a("s_nop 0")
        a(f"s_cmp_lt_u32 s41, {OPT.get('f2s', 16)}")
        a("s_cbranch_scc1 L_all")
    stamp(a, 8)
    a("v_lshlrev_b32 v5, 7, v1")
    a(f"v_add_u32 v5, {192*128}, v5")
    poll(a, 5, 6, sleep=4)
    a(f"s_setprio {OPT.get('pf2', 3)}")
    if OPT.get('dyn', 1):
        a("s_branch L_item0")
        a("L_item:")
        a("s_sleep 8")
        a("L_item0:")
        a("ds_read_b32 v3, v23 offset:12")
        a("s_waitcnt lgkmcnt(0)")
        a("v_readfirstlane_b32 s40, v3")
        a("s_nop 0")
        a("s_cmp_eq_u32 s40, 0")
        a("s_cbranch_scc1 L_item")
        a("s_sub_u32 s40, s40, 1")
    else:
        a(f"s_sub_u32 s40, 31, s{sSLOT}")
        a("s_cmp_ge_u32 s40, 24")
        a("s_cbranch_scc1 L_wo")
        a(f"s_mul_i32 s41, s{sXCD}, 24")
        a("s_add_u32 s40, s40, s41")
    a("s_cmp_ge_u32 s40, %d" % (0 if OPT.get('nof2') else 187))
    a("s_cbranch_scc1 L_wo")
    a("s_mul_i32 s41, s40, 373")
    a("s_lshr_b32 s41, s41, 12")
    a("s_mul_i32 s42, s41, 11")
    a("s_sub_u32 s42, s40, s42")
    a("s_lshl_b32 s41, s41, 1")
    a("s_cmp_ge_u32 s41, 18")
    a("s_cselect_b32 s43, 17, 0")
    a("s_sub_u32 s41, s41, s43")
    a("s_and_b32 s43, s41, 1")
    a("s_lshl_b32 s45, s44, 4")
    a("s_min_u32 s46, s44, 1")
    a("s_add_u32 s46, s46, s45")
    a("s_mul_i32 s47, s41, 65")
    a("s_add_u32 s47, s47, s46")
    a("s_lshl_b32 s47, s47, 10")
    a(f"s_add_u32 s47, s47, {SEQ_OFF}")
    make_srd(a, 28, pWS, "s47", 17*1024)
    a("s_and_b32 s47, s44, 2")
    a("s_add_u32 s47, s47, s43")
    a("s_mul_i32 s48, s47, 11")
    a("s_add_u32 s48, s48, s42")
    a("s_mul_i32 s48, s48, 33")
    a("s_and_b32 s45, s45, 16")
    a("s_add_u32 s48, s48, s45")
    a("s_lshl_b32 s48, s48, 10")
    a(f"s_add_u32 s48, s48, {AB_OFF}")
    make_srd(a, 32, pWS, "s48", 33*1024)
    make_srd(a, 36, pOUT, 0, OUT_SIZE)
    FB = 64; AC = 8
    a("s_or_b32 s47, s44, s43")
    a("s_cmp_lg_u32 s47, 0")
    a("s_cbranch_scc1 L_f2_nox")
    a(f"s_mov_b32 s49, {16*1024}")
    a("buffer_load_dwordx4 v[24:27], v2, s[28:31], s49 offen sc1")
    a(f"s_mov_b32 s49, {32*1024}")
    a("buffer_load_dwordx4 v[28:31], v2, s[32:35], s49 offen sc1")
    a("L_f2_nox:")
    for k in range(16):
        b = FB + k * 8
        if k % 4 == 0: a(f"s_mov_b32 s49, {(k//4)*4096}")
        a(f"buffer_load_dwordx4 {vr(b,4)}, v2, s[28:31], s49 offen offset:{(k%4)*1024} sc1")
        a(f"buffer_load_dwordx4 {vr(b+4,4)}, v2, s[32:35], s49 offen offset:{(k%4)*1024} sc1")
    stamp(a, 9)
    a("v_and_b32 v5, 31, v1")
    a("v_lshrrev_b32 v4, 5, v1")
    a("s_lshr_b32 s48, s41, 1")
    a("s_lshl_b32 s48, s48, 6")
    a("s_add_u32 s48, s48, s43")
    a("s_lshl_b32 s49, s44, 4")
    a("s_add_u32 s48, s48, s49")
    a("v_lshl_add_u32 v47, v4, 3, s48")
    a("v_mul_u32_u24 v47, 2560, v47")
    a("s_cmp_ge_u32 s42, 6")
    a("s_cselect_b32 s48, 383, 0")
    a("s_lshl_b32 s49, s42, 6")
    a("s_sub_u32 s48, s49, s48")
    a("v_lshl_add_u32 v5, v5, 1, s48")
    a(f"v_mov_b32 v46, {HUGE}")
    a("v_lshlrev_b32 v6, 1, v5")
    a("v_add_u32 v40, 1280, v6")
    a("v_cmp_ge_u32 vcc, 320, v5")
    a("v_sub_u32 v41, 2560, v6")
    a("v_add_u32 v6, -1, v5")
    a("v_cndmask_b32 v40, v46, v40, vcc")
    a("v_cmp_gt_u32 vcc, 319, v6")
    a(f"v_add_u32 v33, {(2048-6)*2560}, v40")
    a("v_sub_u32 v33, v33, v47")
    a("v_cndmask_b32 v41, v46, v41, vcc")
    a("v_add_u32 v32, v47, v40")
    a("v_add_u32 v36, v47, v41")
    a(f"v_add_u32 v37, {(2048-6)*2560}, v41")
    a("v_sub_u32 v37, v37, v47")
    a(f"v_subrev_u32 v34, {1024*2560}, v33")
    a(f"v_subrev_u32 v38, {1024*2560}, v37")
    a(f"v_add_u32 v35, {1024*2560}, v32")
    a(f"v_add_u32 v39, {1024*2560}, v36")
    a(f"v_add_u32 v42, {3*5120}, v33")
    a(f"v_add_u32 v43, {3*5120}, v37")
    a(f"v_mov_b32 v3, {LDS_PROG}")
    a("s_lshl_b32 s48, s44, 10")
    a("v_add_u32 v6, s48, v2")
    a("s_add_u32 s49, s48, 12288")
    a("s_lshl_b32 s50, s44, 12")
    a("s_add_u32 s51, s50, 3072")
    a("s_cmp_eq_u32 s44, 3")
    a(f"s_cmov_b32 s49, {LDS_PROG + 1024}")
    a(f"s_cmov_b32 s51, {LDS_PROG + 1024}")
    a("v_add_u32 v7, s49, v2")
    a("v_add_u32 v44, s50, v2")
    a("v_add_u32 v45, s51, v2")
    a("s_lshl_b32 s49, s44, 2")
    a("v_add_u32 v5, s49, v3")
    a(f"s_setprio {OPT.get('pmf', 1)}")
    for k in range(16):
        a(f"s_waitcnt vmcnt({2*(15-k)})")
        b = FB + k * 8
        d = vr(AC, 16)
        a(f"v_mfma_f32_32x32x16_bf16 {d}, {vr(b,4)}, {vr(b+4,4)}, {'0' if k == 0 else d}")
    a("s_cmp_lg_u32 s47, 0")
    a("s_cbranch_scc1 L_f2_nox2")
    a(f"v_mfma_f32_32x32x16_bf16 {vr(AC,16)}, v[24:27], v[28:31], {vr(AC,16)}")
    a("L_f2_nox2:")
    a(f"s_setprio {OPT.get('pep', 3)}")
    def spin_min(lbl, off, sl):
        a(f"{lbl}:")
        a(f"ds_read_b128 v[48:51], v3 offset:{off}")
        a("s_waitcnt lgkmcnt(0)")
        a("v_min3_u32 v48, v48, v49, v50")
        a("v_min_u32 v48, v48, v51")
        a("s_nop 0")
        a("v_readfirstlane_b32 s48, v48")
        a("s_nop 0")
        a("s_cmp_lg_u32 s48, 0")
        a(f"s_cbranch_scc1 {lbl}_ok")
        a(f"s_sleep {sl}")
        a(f"s_branch {lbl}")
        a(f"{lbl}_ok:")
    spin_min("L_f2_dead", W_PASS, 16)
    a("s_nop 3")
    for j in range(3): a(f"ds_write_b128 v6, {vr(AC+4*j,4)} offset:{j*4096}")
    a(f"ds_write_b128 v7, {vr(AC+12,4)}")
    a(f"ds_write_b32 v5, v3 offset:{W_XCH}")
    spin_min("L_f2_wait", W_XCH, OPT.get('xsl', 8))
    for i in range(3): a(f"ds_read_b128 {vr(8+4*i,4)}, v44 offset:{i*1024}")
    a("ds_read_b128 v[20:23], v45")
    a("s_waitcnt lgkmcnt(0)")
    ng = "neg_lo:[0,1] neg_hi:[0,1]"
    for r in (0, 2):
        a(f"v_pk_add_f32 {vr(48+r,2)}, {vr(8+r,2)}, {vr(12+r,2)}")
        a(f"v_pk_add_f32 {vr(52+r,2)}, {vr(8+r,2)}, {vr(12+r,2)} {ng}")
        a(f"v_pk_add_f32 {vr(56+r,2)}, {vr(20+r,2)}, {vr(16+r,2)}")
        a(f"v_pk_add_f32 {vr(60+r,2)}, {vr(20+r,2)}, {vr(16+r,2)} {ng}")
    for r in (0, 2):
        a(f"v_pk_add_f32 {vr(8+r,2)}, {vr(48+r,2)}, {vr(56+r,2)} {ng}")
        a(f"v_pk_add_f32 {vr(12+r,2)}, {vr(48+r,2)}, {vr(56+r,2)}")
        a(f"v_pk_add_f32 {vr(16+r,2)}, {vr(52+r,2)}, {vr(60+r,2)} {ng}")
        a(f"v_pk_add_f32 {vr(20+r,2)}, {vr(52+r,2)}, {vr(60+r,2)}")
    for k in range(8): a(f"v_cvt_pk_bf16_f32 v{48+k}, v{8+2*k}, v{9+2*k}")
    a("s_cmp_eq_u32 s41, 16")
    a("s_cbranch_scc1 L_f2_nyq")
    for i in range(4):
        st = "buffer_store_short_d16_hi" if i & 1 else "buffer_store_short"
        m1, p1, m2, p2 = (48 + 2*k + (i >> 1) for k in range(4))
        a(f"s_mov_b32 s47, {i*5120}")
        a(f"s_mov_b32 s48, {(3-i)*5120}")
        for val, adr, so in [(m1, 32, "s47"), (p1, 36, "s47"), (p2, 35, "s47"), (m2, 39, "s47"), (m2, 34, "s48"), (p2, 38, "s48"),
                             (p1, 33 if i else 42, "s48" if i else "0"), (m1, 37 if i else 43, "s48" if i else "0")]:
            a(f"{st} v{val}, v{adr}, s[36:39], {so} offen{FLF()}")
    a("s_branch L_wo")
    a("L_f2_nyq:")
    a("s_cmp_lg_u32 s44, 0")
    a("s_cbranch_scc1 L_wo")
    a("s_mov_b32 exec_hi, 0")
    for val, adr in [(48, 32), (50, 36), (50, 42), (48, 43)]:
        a(f"buffer_store_short v{val}, v{adr}, s[36:39], 0 offen{FLF()}")
    a("s_mov_b64 exec, -1")
    a("L_wo:")
    a(f"s_setprio {OPT.get('pwo', 3)}")
    stamp(a, 10)
    a("s_and_b32 s40, s26, 3")
    a("s_lshl_b32 s40, s40, 2")
    a("s_add_u32 s40, s40, s44")
    a(f"s_mul_i32 s40, s40, {50*1024}")
    a(f"s_add_u32 s40, s40, {WO_OFF}")
    make_srd(a, 28, pWS, "s40", 50*1024)
    a("s_waitcnt vmcnt(0)")
    for k in range(OPT.get('nwo', 50)):
        if k % 4 == 0: a(f"s_mov_b32 s49, {(k//4)*4096}")
        a(f"buffer_load_dwordx4 {vr(56+4*k,4)}, v2, s[28:31], s49 offen offset:{(k%4)*1024} sc1")

def tail(a):
    PADS = OPT.get('pads', 1)
    padn = [0]
    def pad(chain, last=None):
        if not PADS: return
        a(f"L_pad_{chain}_{padn[0]}:")
        padn[0] += 1
        a(f"s_cbranch_vccnz {last or f'L_pad_{chain}_{padn[0]}'}")
    a("L_B_done:")
    a("s_lshr_b32 s40, s26, 2")
    a("s_lshl_b32 s41, s27, 3")
    a("s_add_u32 s41, s41, s40")
    a(f"s_mul_i32 s42, s41, {32*1280}")
    a(f"s_add_u32 s42, s42, {O_OFF}")
    make_srd(a, 28, pWS, "s42", 32*1280)
    a("v_and_b32 v4, 7, v1")
    a("v_bfe_u32 v5, v1, 3, 2")
    a("v_lshlrev_b32 v5, 1, v5")
    a("v_lshl_add_u32 v4, v4, 3, v5")
    a("s_and_b32 s42, s27, 3")
    a("s_lshl_b32 s42, s42, 6")
    a("s_lshr_b32 s43, s27, 2")
    a("s_add_u32 s42, s42, s43")
    a("s_lshl_b32 s42, s42, 2")
    a("s_lshr_b32 s40, s40, 1")
    a("s_add_u32 s42, s42, s40")
    a(f"s_add_u32 s42, s42, {FB}")
    a("v_lshl_add_u32 v4, v4, 2, s42")
    a("v_lshlrev_b32 v4, 7, v4")
    a("v_mov_b32 v8, v4")
    a("v_and_b32 v3, 31, v1")
    a("v_lshrrev_b32 v4, 5, v1")
    a("v_mul_u32_u24 v5, 2560, v4")
    a("v_lshl_add_u32 v5, v3, 3, v5")
    a("v_add_u32 v5, 1024, v5")
    make_srd(a, 32, pOUT, 0, OUT_SIZE)
    a("s_lshl_b32 s41, s41, 5")
    a("v_add_u32 v6, s41, v3")
    a("v_mul_u32_u24 v6, 2560, v6")
    a("s_and_b32 s42, s26, 3")
    a("s_mul_i32 s42, s42, 320")
    a("s_mul_i32 s43, s44, 12800")
    a("v_add_u32 v7, s43, v2")
    a("s_lshl_b32 s43, s44, 12")
    a("s_add_u32 s43, s43, 40960")
    a("v_add_u32 v3, s43, v2")
    a("s_lshl_b32 s43, s44, 10")
    a("s_add_u32 s43, s43, 40960")
    a("v_add_u32 v1, s43, v2")
    a("s_lshl_b32 s45, s44, 4")
    a("s_add_u32 s45, s45, s42")
    a("v_lshl_add_u32 v0, v4, 3, v6")
    a("s_lshl_b32 s43, s44, 6")
    a("s_add_u32 s43, s43, s42")
    a("v_lshl_add_u32 v6, v4, 4, v6")
    if PADS:
        a("s_mov_b64 vcc, -1")
        a("s_nop 0")
        a("s_branch L_pad_a_0")
        a("L_pad_ret:")
        a("s_setprio 3")
    a("s_waitcnt vmcnt(0)")
    stamp(a, 12)
    a("s_barrier")
    stamp(a, 1)
    if not OPT.get('apoll', 0):
        a("s_cmp_lg_u32 s44, 0")
        a("s_cbranch_scc1 L_onep")
        poll(a, 8, 10, sleep=OPT.get('sl', 0))
        a("L_onep:")
    a("s_barrier")
    stamp(a, 13)
    if PADS: a("s_mov_b64 vcc, 0")
    a("s_lshl_b32 s40, s44, 10")
    for j in range(10):
        if j % 3 == 0: pad('a')
        a("s_mov_b32 m0, s40")
        a("s_nop 0")
        a("buffer_load_dwordx4 v2, s[28:31], s40 offen sc1 lds")
        if j < 9: a("s_add_u32 s40, s40, 4096")
    a("s_waitcnt vmcnt(%d)" % (6 if OPT.get('prog', 1) else 0))
    a("s_barrier")
    stamp(a, 14)
    if lib.STAMP: a("s_waitcnt lgkmcnt(0)")
    A5, AM, OB = 8, 24, 40
    def rd(buf, kap, base=None):
        b = OB + 4*buf
        if base is not None: return f"ds_read_b128 {vr(b,4)}, v{base} offset:{kap*1280}"
        if kap < 32: return f"ds_read_b128 {vr(b,4)}, v2 offset:{kap*1280}"
        o = (kap - 32) * 5120 // 8
        return None
    def rd_main(buf, kap):
        b = OB + 4*buf
        if kap < 32: return [f"ds_read_b128 {vr(b,4)}, v2 offset:{kap*1280}"]
        g = kap - 32
        return [f"ds_read_b64 {vr(b,2)}, v5 offset:{g*5120}", f"ds_read_b64 {vr(b+2,2)}, v5 offset:{g*5120+1280}"]
    PG = 10 if OPT.get('prog', 1) else 0
    def stream(steps, chain):
        padn[0] = 0
        n = len(steps); cnt = [0]*n
        PF = 3
        for k in range(PF):
            r = steps[k][0](k % 4); cnt[k] = len(r)
            for x in r: a(x)
        for k in range(n):
            out = sum(cnt[k+1:min(n, k+PF)])
            a(f"s_waitcnt lgkmcnt({out})")
            d = vr(steps[k][1], 16)
            a(f"v_mfma_f32_32x32x16_bf16 {d}, {vr(steps[k][2],4)}, {vr(OB+4*(k%4),4)}, {'0' if steps[k][3] else d}")
            if k % 2 == 0 or k in (PG + 13, 32, 38, 40): pad(chain, "L_pad_z_0" if k == n - 2 else None)
            if PG and k + PF == PG:
                a("s_waitcnt vmcnt(0)")
                a("s_barrier")
            if k + PF < n:
                r = steps[k+PF][0]((k+PF) % 4); cnt[k+PF] = len(r)
                for x in r: a(x)
            if k == PG + 13:
                for j in range(4): a(f"ds_write_b128 v3, {vr(A5+4*j,4)} offset:{j*1024}")
                cnt[k+PF] += 4
            if k == 32:
                a("s_barrier")
                for i in range(4): a(f"ds_read_b128 {vr(A5+4*i,4)}, v1 offset:{i*4096}")
                cnt[k+PF] += 4
            if k == 38:
                for i in range(1, 4):
                    a(f"v_pk_add_f32 {vr(A5,2)}, {vr(A5,2)}, {vr(A5+4*i,2)}")
                    a(f"v_pk_add_f32 {vr(A5+2,2)}, {vr(A5+2,2)}, {vr(A5+4*i+2,2)}")
            if k == 40:
                a(f"v_cvt_pk_bf16_f32 v{A5}, v{A5}, v{A5+1}")
                a(f"v_cvt_pk_bf16_f32 v{A5+1}, v{A5+2}, v{A5+3}")
                a(f"buffer_store_dwordx2 {vr(A5,2)}, v0, s[32:35], s45 offen offset:256{FLP()}")
    main = [((lambda kap: lambda buf: rd_main(buf, kap))(kap), AM, 56 + 4*(10+kap), kap == 0) for kap in range(40)]
    if PADS:
        a(f"L_pad_a_{padn[0]}:")
        a("s_cmp_eq_u32 s44, 3")
        a("s_cbranch_vccz L_nopad")
        a("s_cbranch_scc1 L_pad_c_0")
        a("s_branch L_pad_b_0")
        a("L_nopad:")
    a("s_cmp_eq_u32 s44, 3")
    a("s_cbranch_scc1 L_tail3")
    q5 = [((lambda i: lambda buf: [f"ds_read_b128 {vr(OB+4*buf,4)}, v7 offset:{i*1280}"])(i), A5, 56 + 4*i, i == 0) for i in range(10)]
    stream(main[:PG] + q5 + main[PG:], 'b')
    a("s_branch L_tail_join")
    a("L_tail3:")
    q5 = [((lambda i: lambda buf: rd_main(buf, 30 + i))(i), A5, 56 + 4*i, i == 0) for i in range(10)]
    stream(main[:PG] + q5 + main[PG:], 'c')
    a("L_tail_join:")
    stamp(a, 11)
    padn[0] = 0
    pad('z')
    a("s_nop 11")
    for r in range(8): a(f"v_cvt_pk_bf16_f32 v{AM+r}, v{AM+2*r}, v{AM+2*r+1}")
    pad('z', "L_pad_ret")
    a("s_nop 1")
    for h2 in range(2):
        a(f"v_permlane32_swap_b32 v{AM+4*h2}, v{AM+4*h2+2}")
        a(f"v_permlane32_swap_b32 v{AM+4*h2+1}, v{AM+4*h2+3}")
    for h2 in range(2):
        a(f"buffer_store_dwordx4 {vr(AM+4*h2,4)}, v6, s[32:35], s43 offen offset:{32*h2}{FLP()}")
    a("L_end:")
    if OPT.get('pad'):
        a("L_pad:")
        a("s_memrealtime s[40:41]")
        a("s_waitcnt lgkmcnt(0)")
        a(f"s_sub_u32 s40, s40, s{sNON}")
        a(f"s_cmp_lt_u32 s40, {OPT['pad']}")
        a("s_cbranch_scc1 L_pad")
    if lib.STAMP:
        a("s_waitcnt vmcnt(0)")
        stamp(a, 15); stamp_real(a, 17)
        stamp_flush(a, 18, pWS, sWAVE, 0)
    a("L_exit:")
    a("s_endpgm")

KNAME = "concat_heads__mha_block__spectral_fnet__prompt_kernel"
def kernel(a):
    kernel_header(a, KNAME)
    if OPT.get('early'): a("s_memrealtime s[98:99]")
    a("s_cmp_ge_u32 s2, 256")
    a("s_cbranch_scc1 L_exit")
    if lib.STAMP:
        for i in range(18): a(f"s_mov_b32 s{60+2*i}, 0")
    stamp(a, 0); stamp_real(a, 16)
    a("s_load_dwordx8 s[4:11], s[0:1], 0")
    a("s_load_dwordx4 s[12:15], s[0:1], 64")
    a("s_load_dwordx2 s[16:17], s[0:1], 80")
    a("v_lshrrev_b32 v1, 6, v0")
    a(f"s_and_b32 s{sXCD}, s2, 7")
    a(f"v_readfirstlane_b32 s{sWAVE}, v1")
    a(f"s_lshr_b32 s{sSLOT}, s2, 3")
    a("v_and_b32 v1, 63, v0")
    a(f"s_and_b32 s26, s{sXCD}, 1")
    a("s_lshl_b32 s26, s26, 3")
    a(f"s_and_b32 s27, s{sSLOT}, 7")
    a("s_add_u32 s26, s26, s27")
    a(f"s_lshr_b32 s27, s{sSLOT}, 3")
    a("s_lshl_b32 s27, s27, 2")
    a(f"s_lshr_b32 s40, s{sXCD}, 1")
    a("s_add_u32 s27, s27, s40")
    a(f"s_cmp_ge_u32 s{sSLOT}, 24")
    a("s_cselect_b32 s40, 0, s%d" % sWAVE)
    a("s_cmp_lt_u32 s40, 4")
    a("s_cbranch_scc1 L_other")
    gemm_loader(a)
    a("L_other:")
    a("s_waitcnt lgkmcnt(0)")
    make_srd(a, sFL, pWS, FL_OFF, FL_SIZE)
    a(f"s_cmp_lg_u32 s{sWAVE}, 0")
    a("s_cbranch_scc1 L_no_init")
    a(f"v_mov_b32 v2, {LDS_PROG}")
    a("v_mov_b32 v4, 0")
    a("v_mov_b32 v5, 0")
    for i in range(8): a(f"ds_write_b64 v2, v[4:5] offset:{8*i}")
    a("s_cmp_lg_u32 s2, 0")
    a("s_cbranch_scc1 L_no_nonce")
    if OPT.get('early'): a("s_mov_b64 s[40:41], s[98:99]")
    else: a("s_memrealtime s[40:41]")
    make_srd(a, 28, pDBG, 0, 256)
    a("s_waitcnt lgkmcnt(0)")
    a("s_or_b32 s40, s40, 1")
    a("v_mov_b32 v2, s40")
    a("v_mov_b32 v3, s41")
    a("buffer_store_dwordx2 v[2:3], v4, s[28:31], 0 offen sc1")
    a("L_no_nonce:")
    a("s_waitcnt lgkmcnt(0)")
    a("L_no_init:")
    a(f"s_cmp_ge_u32 s{sSLOT}, 24")
    a("s_cbranch_scc1 L_prep")
    if OPT.get('touch', 1):
        a(f"s_cmp_lg_u32 s{sWAVE}, 1")
        a("s_cbranch_scc1 L_no_code")
        a("s_getpc_b64 s[40:41]")
        a("L_pc:")
        a(f"s_sub_u32 s40, s40, L_pc-{KNAME}")
        a("s_subb_u32 s41, s41, 0")
        a(f"s_mul_i32 s42, s{sSLOT}, 1792")
        a("v_lshlrev_b32 v2, 4, v1")
        a("v_add_u32 v2, s42, v2")
        a(f"v_min_u32 v2, L_exit-{KNAME}-1024-16, v2")
        for i in range(2): a(f"global_load_dwordx4 v[250:253], v2, s[40:41] offset:{i*1024}")
        a("L_no_code:")
    gemm_compute(a)
    prep(a)
    a_done(a)
    attention(a)
    aux(a)
    tail(a)
    return kernel_desc(KNAME, 256, 100)

HEADER = open('concat_heads__mha_block__spectral_fnet__prompt.s.ref').read().split("; Override")[0]
def main(out):
    a = Asm()
    a('.amdgcn_target "amdgcn-amd-amdhsa--gfx950"')
    a(".text")
    d = kernel(a)
    txt = HEADER + "; @launch grid=(256,1,1) block=(512,1,1) lds=163840\n" + a.text() + '.section .rodata,"a"\n.p2align 6\n' + d
    open(out, "w").write(txt)

if __name__ == "__main__":
    for x in sys.argv[2:]:
        if x == "stamp": lib.STAMP = True
        elif x == "rt": lib.STAMP = True; lib.STAMPRT = True
        elif x == "gst": lib.STAMP = True; lib.STAMPSET = 1; lib.STAMPRT = True
        elif x == "cst": lib.STAMP = True; lib.STAMPSET = 2
        else:
            k, _, v = x.partition("=")
            OPT[k] = int(v) if v else 1
    main(sys.argv[1] if len(sys.argv) > 1 else "v31.s")
```

```python
import sys, struct
from lib import *
import lib

TKV = 2560; KV_HEAD = 64*TKV; KV_OFF = 0; KV_SIZE = 32*KV_HEAD
TQ = 1280; Q_HEAD = 64*TQ; Q_OFF = KV_SIZE; Q_SIZE = 32*Q_HEAD
O_OFF = Q_OFF + Q_SIZE; O_SIZE = 64*32*1280
SEQ_OFF = O_OFF + O_SIZE; SEQ_SIZE = 17*65*1024
AB_OFF = SEQ_OFF + SEQ_SIZE; AB_SIZE = 4*11*33*1024
WO_OFF = AB_OFF + AB_SIZE; WO_SIZE = 16*50*1024
FL_OFF = 16*1024*1024; FL_SIZE = 1536*128
FA, FB, FL1 = 0, 256, 1280
X_SIZE = 2048*1280; OUT_SIZE = 2048*2560
HUGE = 0x40000000
QSCALE = (20 ** -0.5) * 1.4426950408889634
NDMA = 155; LPAIR = 5184
LDS_PROG = 31*LPAIR
def lds_tile(t): return ((t-2)>>1)*LPAIR + ((t-2)&1)*TKV
def need(tile): return ((tile-1)*TKV + 4095)//4096
NEED = [need(4), need(7), need(15), need(23), 39]
POLL_MAX = 200000
def f32bits(x): return struct.unpack('<I', struct.pack('<f', x))[0]
OPT = {}
FLS = ['', ' sc1', ' nt', ' sc0 sc1', ' sc1 nt']
def FLP(): return FLS[OPT.get('flp', 0)]
def FLF(): return FLS[OPT.get('flf', 1)]

sWAVE = 3
pX, pW, pWO, pBX, pOUT, pDBG, pWS = 4, 6, 8, 10, 12, 14, 16
sNON = 18
sFL = 20
sXCD, sSLOT = 24, 25
STG = 36864
NS = 4

def poll(a, vaddr, vtmp, cnt=40, sleep=1, shrink=False):
    l = a.label("L_poll"); d = a.label("L_pollok")
    a(f"s_mov_b32 s{cnt}, {POLL_MAX}")
    a(f"{l}:")
    a(f"buffer_load_dwordx2 {vr(vtmp,2)}, v{vaddr}, {sr(sFL,4)}, 0 offen sc1")
    a("s_waitcnt vmcnt(0)")
    a(f"v_cmp_ne_u64 vcc, {sr(sNON,2)}, {vr(vtmp,2)}")
    a(f"s_sub_u32 s{cnt}, s{cnt}, 1")
    a(f"s_cbranch_vccz {d}")
    a(f"s_cmp_eq_u32 s{cnt}, 0")
    a(f"s_cbranch_scc1 {d}")
    if sleep: a(f"s_sleep {sleep}")
    if shrink: a("s_mov_b64 exec, vcc")
    a(f"s_branch {l}")
    a(f"{d}:")
    if shrink: a("s_mov_b64 exec, -1")

def poll_piped(a, vaddr, vtmp, depth, cnt=40):
    l = a.label("L_ppoll"); d = a.label("L_ppollok")
    a(f"s_mov_b32 s{cnt}, {POLL_MAX}")
    for i in range(depth - 1):
        a(f"buffer_load_dwordx2 {vr(vtmp+2*i,2)}, v{vaddr}, {sr(sFL,4)}, 0 offen sc1")
        a(f"s_sleep {OPT.get('pgap', 4)}")
    a(f"{l}:")
    for i in range(depth):
        a(f"buffer_load_dwordx2 {vr(vtmp+2*((i+depth-1)%depth),2)}, v{vaddr}, {sr(sFL,4)}, 0 offen sc1")
        a(f"s_waitcnt vmcnt({depth-1})")
        a(f"v_cmp_ne_u64 vcc, {sr(sNON,2)}, {vr(vtmp+2*i,2)}")
        a(f"s_sub_u32 s{cnt}, s{cnt}, 1")
        a(f"s_cbranch_vccz {d}")
        a(f"s_cbranch_scc1 {d}")
        a("s_mov_b64 exec, vcc")
    a(f"s_branch {l}")
    a(f"{d}:")
    a("s_mov_b64 exec, -1")

def prod_flags(a, vd, vt):
    a("s_lshr_b32 s40, s26, 3")
    a(f"v_and_b32 v{vd}, 7, v1")
    a(f"v_bfe_u32 v{vt}, v1, 3, 2")
    a(f"v_lshlrev_b32 v{vt}, 1, v{vt}")
    a(f"v_lshl_add_u32 v{vd}, v{vd}, 3, v{vt}")
    a("s_and_b32 s42, s27, 3")
    a("s_lshl_b32 s42, s42, 6")
    a("s_lshr_b32 s43, s27, 2")
    a("s_add_u32 s42, s42, s43")
    a("s_lshl_b32 s42, s42, 2")
    a("s_add_u32 s42, s42, s40")
    a(f"s_add_u32 s42, s42, {FB}")
    a(f"v_lshl_add_u32 v{vd}, v{vd}, 2, s42")
    a(f"v_lshlrev_b32 v{vd}, 7, v{vd}")

def get_nonce(a, vt, srd=28, cnt=40):
    make_srd(a, srd, pDBG, 0, 256)
    l = a.label("L_non"); d = a.label("L_nonok")
    a(f"v_mov_b32 v{vt}, 0")
    a(f"s_mov_b32 s{cnt}, {POLL_MAX}")
    a(f"{l}:")
    a(f"buffer_load_dwordx2 {vr(vt+2,2)}, v{vt}, {sr(srd,4)}, 0 offen sc1")
    a("s_waitcnt vmcnt(0)")
    a(f"v_readfirstlane_b32 s{sNON}, v{vt+2}")
    a(f"v_readfirstlane_b32 s{sNON+1}, v{vt+3}")
    a(f"s_sub_u32 s{cnt}, s{cnt}, 1")
    a(f"s_cmp_lg_u32 s{sNON}, 0")
    a(f"s_cbranch_scc1 {d}")
    a(f"s_cmp_eq_u32 s{cnt}, 0")
    a(f"s_cbranch_scc1 {d}")
    a("s_sleep 2")
    a(f"s_branch {l}")
    a(f"{d}:")

def set_flag(a, sidx, vt, also=None):
    for i in range(4): a(f"v_mov_b32 v{vt+i}, s{sNON+(i&1)}")
    a(f"v_lshlrev_b32 v{vt+4}, 4, v1")
    a("s_mov_b64 exec, 0xff")
    if also is not None:
        a(f"s_add_u32 s41, s{sidx}, {also}")
        a(f"buffer_store_dwordx4 {vr(vt,4)}, v{vt+4}, {sr(sFL,4)}, s41 offen")
    a(f"buffer_store_dwordx4 {vr(vt,4)}, v{vt+4}, {sr(sFL,4)}, s{sidx} offen sc1")
    a("s_mov_b64 exec, -1")

def gemm_loader(a):
    sA, sB = 28, 32
    a("L_loader:")
    a(f"s_sub_u32 s44, s{sWAVE}, 4")
    a("v_lshrrev_b32 v2, 3, v1")
    a("s_lshl_b32 s40, s44, 3")
    a("v_add_u32 v2, s40, v2")
    a("v_mul_u32_u24 v2, 1280, v2")
    a("v_lshrrev_b32 v3, 4, v1")
    a("s_and_b32 s40, s44, 1")
    a("s_lshl_b32 s40, s40, 2")
    a("v_or_b32 v4, s40, v3")
    a("v_and_b32 v5, 7, v1")
    a("v_xor_b32 v4, v4, v5")
    a("v_lshl_add_u32 v10, v4, 4, v2")
    a("s_lshl_b32 s45, s44, 10")
    a(f"s_lshr_b32 s40, s{sSLOT}, 3")
    a(f"s_mul_i32 s40, s40, {OPT.get('ra', 5)}")
    a(f"s_and_b32 s41, s{sSLOT}, 7")
    a(f"s_mul_i32 s41, s41, {OPT.get('rb', 5)}")
    a("s_add_u32 s40, s40, s41")
    if OPT.get('ph'):
        n = OPT['ph']
        a(f"s_lshr_b32 s40, s{sSLOT}, 3")
        a(f"s_and_b32 s41, s{sSLOT}, 7")
        a("s_add_u32 s40, s40, s41")
        a(f"s_mul_i32 s41, s40, {(256 + n - 1)//n}")
        a("s_lshr_b32 s41, s41, 8")
        a(f"s_mul_i32 s41, s41, {n}")
        a("s_sub_u32 s40, s40, s41")
        a(f"s_mul_i32 s40, s40, {OPT.get('pstep', 3)}")
    a(f"s_mul_i32 s41, s{sXCD}, {OPT.get('rc', 3)}")
    a("s_add_u32 s40, s40, s41")
    a("s_mul_i32 s41, s40, 6554")
    a("s_lshr_b32 s41, s41, 16")
    a("s_mul_i32 s41, s41, 10")
    a("s_sub_u32 s47, s40, s41")
    a("s_lshl_b32 s40, s44, 4")
    a("v_lshrrev_b32 v2, 2, v1")
    a("v_add_u32 v2, s40, v2")
    a("v_mul_u32_u24 v2, 3840, v2")
    a("v_and_b32 v3, 3, v1")
    a("v_lshrrev_b32 v4, 5, v1")
    a("v_lshlrev_b32 v4, 1, v4")
    a("v_xor_b32 v3, v3, v4")
    a("v_lshl_add_u32 v11, v3, 4, v2")
    a("s_mul_i32 s46, s44, 5120")
    a("s_mul_i32 s50, s26, 163840")
    a("s_mul_i32 s51, s27, 320")
    a("s_sub_u32 s52, 2457600, s51")
    a("s_waitcnt lgkmcnt(0)")
    make_srd(a, sA, pX, "s50", 163840)
    def issue_x(c):
        sl = c % NS
        a("s_lshl_b32 s48, s47, 7")
        for j in range(4):
            a(f"s_add_u32 m0, s45, {sl*STG + j*4096}")
            if j: a(f"s_add_u32 s48, s48, 40960")
            else: a("s_mul_i32 s49, s47, 245760")
            a(f"buffer_load_dwordx4 v10, {sr(sA,4)}, s48 offen lds")
    def issue_w(c):
        sl = c % NS
        for i in range(5):
            a(f"s_add_u32 m0, s46, {sl*STG + 16384 + i*1024 - i*64}")
            if i == 0:
                a("s_add_u32 s47, s47, 1")
            elif i == 1:
                a("s_cmp_eq_u32 s47, 10")
                a("s_cmov_b32 s47, 0")
            else: a("s_nop 0")
            a(f"buffer_load_dwordx4 v11, {sr(sB,4)}, s49 offen offset:{i*64} lds")
    def issue(c): issue_x(c); issue_w(c)
    stamp(a, 3)
    issue_x(0)
    make_srd(a, sB, pW, "s51", "s52")
    issue_w(0)
    issued = 1
    pre = OPT.get('pre', 2)
    for c in range(1, pre): issue(c); issued += 1
    for c in range(10):
        a(f"s_waitcnt vmcnt({9*(issued-c-1)})")
        if c in (0, 9): stamp(a, {0: 2, 9: 5}[c])
        stamp(a, c + 1, 1)
        a("s_barrier")
        if c in (1, 3, 5, 7): stamp(a, 11 + c // 2, 1)
        while issued < min(10, c + 1 + (OPT.get('dep', 2) if c < OPT.get('depsw', 10) else 3)): issue(issued); issued += 1
    make_srd(a, sFL, pWS, FL_OFF, FL_SIZE)
    get_nonce(a, 2)
    a("s_branch L_A_done")

AX, AWA, EA = 8, 10, 16
FR = 24
ACC = 96
def gemm_loop(a, isv, epi):
    XB = [FR, FR + 36, 176, 212]
    def rdx(kk, m, b): sl, st = divmod(kk, 2); return f"ds_read_b128 {vr(b+4*m,4)}, v{AX+st} offset:{sl*STG + m*2048}"
    def rdw(kk, T, b): sl, st = divmod(kk, 2); return [f"ds_read_b64_tr_b16 {vr(b+16+4*T+2*t,2)}, v{AWA+T} offset:{sl*STG + st*10240 + t*256}" for t in range(2)]
    def reads(kk, b):
        r = rdw(kk, 0, b) + [rdx(kk, m, b) for m in range(4)]
        for T in range(1, 5): r += rdw(kk, T, b)
        return r
    def mfma(b, T, m):
        d = vr(ACC + 16*T + 4*m, 4); w = vr(b + 16 + 4*T, 4); x = vr(b + 4*m, 4)
        return f"v_mfma_f32_16x16x32_bf16 {d}, {x}, {w}, {d}" if isv else f"v_mfma_f32_16x16x32_bf16 {d}, {w}, {x}, {d}"
    for r in range(80): a(f"v_mov_b32 v{ACC+r}, 0")
    a(f"s_mov_b32 s40, {2*STG}")
    a("s_mov_b32 s41, 4")
    stamp(a, 13)
    a("s_barrier")
    stamp(a, 2)
    for r in reads(0, XB[0]): a(r)
    lp = a.label("L_gemm"); last = a.label("L_gemm_last")
    a(".p2align 3")
    a(f"{lp}:")
    for kk in range(4):
        a("s_waitcnt lgkmcnt(0)")
        ms = [mfma(XB[kk & 1], T, m) for T in range(5) for m in range(4)]
        a(ms[0])
        if kk == 1: a("s_barrier")
        if kk == 3:
            for i in range(2): a(f"v_add_u32 v{AX+i}, s40, v{AX+i}")
            for i in range(5): a(f"v_add_u32 v{AWA+i}, s40, v{AWA+i}")
            a("s_sub_u32 s40, 0, s40")
            a("s_sub_u32 s41, s41, 1")
            a("s_barrier")
            a("s_cmp_eq_u32 s41, 0")
            a(f"s_cbranch_scc1 {last}")
        nx = reads((kk + 1) & 3, XB[(kk + 1) & 1])
        for i in range(1, 20):
            if i - 1 < len(nx): a(nx[i-1])
            a(ms[i])
    a(f"s_branch {lp}")
    a(f"{last}:")
    bufs = [XB[0], XB[2], XB[3], XB[1]]
    def order(k0):
        r = []
        for k in (k0, k0 + 1): r += rdw(k, 0, bufs[k]) + [rdx(k, m, bufs[k]) for m in range(4)]
        return r
    first = order(0)
    rest01 = [x for T in range(1, 5) for k in (0, 1) for x in rdw(k, T, bufs[k])]
    second = order(2)
    rest23 = [[x for k in (2, 3) for x in rdw(k, T, bufs[k])] for T in range(5)]
    ms = [mfma(XB[1], T, m) for T in range(5) for m in range(4)]
    q = first + rest01
    pos = 0
    for i in range(1, 20):
        for _ in range(2 if i < 10 else 1):
            if pos < len(q): a(q[pos]); pos += 1
        a(ms[i])
    a("s_barrier")
    q = second + rest23[1] + rest23[2] + rest23[3] + rest23[4]
    a("s_waitcnt lgkmcnt(0)")
    pos = 0
    for T in range(5):
        e = epi(T - 1) if T >= 1 else []
        per = -(-len(e) // 12)
        for i in range(16):
            if i == 8 and T < 2: a(f"s_waitcnt lgkmcnt({min(15, pos - (12 + 4*T))})" if T == 0 else "s_waitcnt lgkmcnt(0)")
            a(mfma(bufs[i >> 2], T, i & 3))
            for _ in range(2):
                if pos < len(q): a(q[pos]); pos += 1
            if i >= 4:
                for x in e[per*(i-4):per*(i-3)]: a(x)
    stamp(a, 5)
    a("s_nop 7")
    for x in epi(4): a(x)

def gemm_compute(a):
    a("L_compute:")
    a("v_and_b32 v2, 15, v1")
    a("v_lshrrev_b32 v3, 4, v1")
    a(f"s_and_b32 s42, s{sWAVE}, 1")
    a(f"s_lshr_b32 s43, s{sWAVE}, 1")
    a("s_lshl_b32 s40, s42, 6")
    a("v_add_u32 v4, s40, v2")
    a("v_lshlrev_b32 v4, 7, v4")
    a("v_lshrrev_b32 v5, 1, v2")
    a("v_xor_b32 v5, v5, v3")
    a(f"v_lshl_add_u32 v{AX}, v5, 4, v4")
    a(f"v_xor_b32 v{AX+1}, 64, v{AX}")
    a("v_lshrrev_b32 v4, 5, v1")
    a("v_mul_u32_u24 v4, 5120, v4")
    a("v_and_b32 v5, 1, v3")
    a("v_lshrrev_b32 v6, 2, v2")
    a("v_lshl_add_u32 v6, v5, 3, v6")
    a("v_lshl_add_u32 v4, v6, 6, v4")
    a("v_add_u32 v4, 16384, v4")
    a("v_lshlrev_b32 v5, 2, v5")
    a("v_and_b32 v6, 3, v1")
    a("s_mul_i32 s44, s43, 20")
    def waddr(T, g):
        a(f"v_and_b32 v15, 7, v{g}")
        a("v_xor_b32 v15, v15, v5")
        a("v_lshl_add_u32 v15, v15, 3, v4")
        a(f"v_lshrrev_b32 v{g}, 3, v{g}")
        a(f"v_lshl_add_u32 v{AWA+T}, v{g}, 10, v15")
    a("s_lshl_b32 s45, s26, 2")
    a("s_lshl_b32 s42, s42, 1")
    a("s_add_u32 s42, s42, s45")
    a("s_and_b32 s45, s27, 3")
    a("s_lshl_b32 s45, s45, 3")
    a("s_lshl_b32 s43, s43, 2")
    a("s_add_u32 s43, s43, s45")
    a("s_cmp_ge_u32 s27, 8")
    a("s_cbranch_scc1 L_compute_v")
    for T in range(5):
        if T < 4:
            a(f"s_add_u32 s45, s44, {5*T}")
            a("v_add_u32 v7, s45, v6")
        else:
            a("s_add_u32 s45, s44, 4")
            a("v_mad_u32_u24 v7, v6, 5, s45")
        waddr(T, 7)
    a("s_cmp_ge_u32 s27, 4")
    for reg, k, q in [(44, KV_HEAD, Q_HEAD), (45, TKV, TQ), (46, f32bits(1.0), f32bits(QSCALE)), (47, KV_OFF, Q_OFF), (48, KV_SIZE, Q_SIZE)]:
        a(f"s_mov_b32 s{reg}, {q}")
        a(f"s_cmov_b32 s{reg}, {k}")
    make_srd(a, 28, pWS, "s47", "s48")
    a("s_mul_i32 s47, s43, s44")
    a("s_mul_i32 s48, s42, s45")
    a("s_add_u32 s47, s47, s48")
    a(f"v_lshlrev_b32 v{EA}, 4, v1")
    a(f"v_add_u32 v{EA+1}, s45, v{EA}")
    a("v_lshrrev_b32 v4, 5, v1")
    a("v_mul_lo_u32 v4, v4, s44")
    a("v_and_b32 v5, 31, v1")
    a("v_lshlrev_b32 v5, 3, v5")
    a("v_lshl_add_u32 v4, v4, 1, v5")
    a(f"v_add_u32 v{EA+2}, 1024, v4")
    a(f"v_add_u32 v{EA+3}, s45, v{EA+2}")
    a("s_mov_b32 s48, s47")
    a("s_add_u32 s49, s47, s44")
    def epi_qk(T):
        b = ACC + 16*T; e = []
        for r in range(16): e.append(f"v_mul_f32 v{b+r}, s46, v{b+r}")
        for r in range(8): e.append(f"v_cvt_pk_bf16_f32 v{b+r}, v{b+2*r}, v{b+2*r+1}")
        e.append("s_nop 0")
        for u in range(2):
            e.append(f"v_permlane16_swap_b32 v{b+4*u}, v{b+4*u+2}")
            e.append(f"v_permlane16_swap_b32 v{b+4*u+1}, v{b+4*u+3}")
        for u in range(2):
            if T < 4: e.append(f"buffer_store_dwordx4 {vr(b+4*u,4)}, v{EA+u}, s[28:31], s48 offen sc1")
            else:
                e.append(f"buffer_store_dwordx2 {vr(b+4*u,2)}, v{EA+2+u}, s[28:31], s47 offen sc1")
                e.append(f"buffer_store_dwordx2 {vr(b+4*u+2,2)}, v{EA+2+u}, s[28:31], s49 offen sc1")
        if T < 3: e.append("s_add_u32 s48, s48, s44")
        return e
    gemm_loop(a, False, epi_qk)
    a("s_branch L_A_done")
    a("L_compute_v:")
    for T in range(5):
        a(f"s_add_u32 s45, s44, {4*T}")
        a("v_add_u32 v7, s45, v6")
        waddr(T, 7)
    make_srd(a, 28, pWS, KV_OFF, KV_SIZE)
    a(f"s_mov_b32 s44, {KV_HEAD}")
    a("s_mul_i32 s47, s43, s44")
    a(f"s_mul_i32 s48, s42, {TKV}")
    a("s_add_u32 s47, s47, s48")
    a("v_lshrrev_b32 v7, 5, v1")
    a("v_mul_u32_u24 v7, 640, v7")
    a("v_and_b32 v15, 1, v3")
    a("v_lshl_add_u32 v7, v15, 6, v7")
    a("v_add_u32 v7, 1280, v7")
    for T in range(5):
        a(f"v_add_u32 v4, {16*T}, v2")
        a("v_mul_u32_u24 v5, 3277, v4")
        a("v_lshrrev_b32 v5, 16, v5")
        a("v_mul_u32_u24 v6, 20, v5")
        a("v_sub_u32 v4, v4, v6")
        a("v_and_b32 v6, 28, v4")
        a("v_add_u32 v4, v4, v6")
        a("v_mul_lo_u32 v5, v5, s44")
        a("v_lshl_add_u32 v4, v4, 4, v5")
        a(f"v_add_u32 v{EA+T}, v7, v4")
    def epi_v(T):
        b = ACC + 16*T; e = []
        for r in range(8): e.append(f"v_cvt_pk_bf16_f32 v{b+r}, v{b+2*r}, v{b+2*r+1}")
        e.append("s_nop 0")
        for u in range(2):
            e.append(f"v_permlane32_swap_b32 v{b+4*u}, v{b+4*u+2}")
            e.append(f"v_permlane32_swap_b32 v{b+4*u+1}, v{b+4*u+3}")
        for u in range(2): e.append(f"buffer_store_dwordx4 {vr(b+4*u,4)}, v{EA+T}, s[28:31], s47 offen offset:{u*TKV} sc1")
        return e
    gemm_loop(a, True, epi_v)
    a("s_branch L_A_done")

SWD = [42, 43, 44, 56, 57]
def side_work(a):
    a("s_sub_u32 s53, s2, 192")
    a("s_mul_i32 s53, s53, 3")
    a(f"s_add_u32 s53, s53, s{sWAVE}")
    a("s_sub_u32 s53, s53, 5")
    a("v_lshlrev_b32 v22, 4, v1")
    make_srd(a, 32, pWO, 0, 819200)
    make_srd(a, 28, pWS, SEQ_OFF, WO_OFF + WO_SIZE - SEQ_OFF)
    WR = 32
    for n in range(5):
        if n == 4:
            a("s_cmp_ge_u32 s53, 32")
            a("s_cbranch_scc1 L_sw_wo_ld")
        a(f"s_add_u32 s40, s53, {192*n}")
        a("s_mul_i32 s41, s40, 1639")
        a("s_lshr_b32 s41, s41, 16")
        a("s_mul_i32 s58, s41, 40")
        a("s_sub_u32 s58, s40, s58")
        a("s_mul_i32 s59, s58, 20")
        a("s_mul_i32 s55, s58, 80")
        a("s_sub_u32 s55, s55, %d" % (32*80 - 16))
        a("s_cmp_lt_u32 s58, 32")
        a("s_cselect_b32 s45, 4, 40")
        a("s_cselect_b32 s59, s59, s55")
        a(f"s_mov_b32 s46, {20*1280}")
        a(f"s_cmov_b32 s46, {8*1280}")
        a("v_mul_u32_u24 v4, s45, v3")
        a("v_add_u32 v4, s59, v4")
        a("v_mul_u32_u24 v4, 1280, v4")
        a("s_lshl_b32 s59, s41, 6")
        a("v_lshl_add_u32 v4, v2, 1, v4")
        a("v_add_u32 v4, s59, v4")
        b = WR + 8*n
        for grp in range(2):
            so = "s46" if grp else "0"
            for i in range(4):
                a(f"buffer_load_ushort v{b+4*grp+i}, v4, s[32:35], {so} offen offset:{i*1280}")
        a("s_mul_i32 s59, s41, 52")
        a("s_lshr_b32 s59, s59, 8")
        a("s_mul_i32 s55, s59, 5")
        a("s_sub_u32 s55, s41, s55")
        a("s_mul_i32 s45, s58, 26")
        a("s_lshr_b32 s45, s45, 8")
        a("s_mul_i32 s47, s45, 10")
        a("s_sub_u32 s47, s58, s47")
        a("s_add_u32 s58, s58, 10")
        a("s_cmp_lt_u32 s55, 4")
        a("s_cselect_b32 s55, s55, s45")
        a("s_cselect_b32 s58, s58, s47")
        a("s_lshl_b32 s59, s59, 2")
        a("s_add_u32 s59, s59, s55")
        a("s_mul_i32 s59, s59, 50")
        a("s_add_u32 s59, s59, s58")
        a("s_lshl_b32 s59, s59, 10")
        a(f"s_add_u32 s{SWD[n]}, s59, {WO_OFF - SEQ_OFF}")
    a("L_sw_wo_ld:")
    G = 80
    a("s_mov_b32 s54, s53")
    a("v_lshlrev_b32 v23, 4, v3")
    a(f"s_mov_b32 s55, {f32bits(1.0/2048)}")
    a("v_cmp_gt_u32 vcc, 32, v1")
    a("L_sw_gen:")
    a("s_lshr_b32 s41, s54, 5")
    a("s_and_b32 s58, s54, 31")
    a("s_lshr_b32 s59, s41, 1")
    a("s_lshl_b32 s59, s59, 6")
    a("s_and_b32 s47, s41, 1")
    a("s_add_u32 s59, s59, s47")
    a("v_lshl_add_u32 v4, v2, 1, s59")
    a("s_lshr_b32 s47, s58, 4")
    a("s_mul_i32 s45, s41, 65")
    a("s_add_u32 s45, s45, s58")
    a("s_add_u32 s46, s45, 33")
    a("s_add_u32 s45, s45, s47")
    a("s_lshl_b32 s45, s45, 10")
    a("s_lshl_b32 s46, s46, 10")
    a("s_and_b32 s48, s58, 15")
    a("s_lshl_b32 s48, s48, 5")
    a("s_add_u32 s48, s48, s47")
    a("v_add_u32 v5, s48, v23")
    a("v_mul_u32_u24 v5, v4, v5")
    a("v_cvt_f32_u32 v5, v5")
    a("v_cvt_f32_u32 v4, v4")
    for i in range(8):
        if i: a("v_fma_f32 v5, 2.0, v4, v5")
        a(f"v_mul_f32 v{G+i}, s55, v5")
    for i in range(8): a(f"v_fract_f32 v{G+i}, v{G+i}")
    for i in range(8): a(f"v_cos_f32 v{G+8+i}, v{G+i}")
    a("s_cmp_lg_u32 s58, 0")
    a("s_cbranch_scc1 L_gen_plain")
    a("v_mul_f32 v6, 0x3e800000, v4")
    a("v_fract_f32 v6, v6")
    a(f"v_cndmask_b32 v{G}, v{G}, v6, vcc")
    a("v_cos_f32 v7, v6")
    a(f"v_mov_b32 v{G+25}, 0")
    a(f"v_mov_b32 v{G+26}, 0")
    a(f"v_mov_b32 v{G+27}, 0")
    a("v_cndmask_b32 v7, 0, v7, vcc")
    a(f"v_cvt_pk_bf16_f32 v{G+24}, v7, 0")
    a(f"s_add_u32 s48, s45, {16*1024}")
    a(f"buffer_store_dwordx4 {vr(G+24,4)}, v22, s[28:31], s48 offen sc1")
    a("L_gen_plain:")
    for i in range(8): a(f"v_sin_f32 v{G+i}, v{G+i}")
    for i in range(4): a(f"v_cvt_pk_bf16_f32 v{G+16+i}, v{G+8+2*i}, v{G+9+2*i}")
    for i in range(4): a(f"v_cvt_pk_bf16_f32 v{G+20+i}, v{G+2*i}, v{G+1+2*i}")
    a(f"buffer_store_dwordx4 {vr(G+16,4)}, v22, s[28:31], s45 offen sc1")
    a(f"buffer_store_dwordx4 {vr(G+20,4)}, v22, s[28:31], s46 offen sc1")
    a("s_add_u32 s54, s54, 192")
    a("s_cmp_lt_u32 s54, 544")
    a("s_cbranch_scc1 L_sw_gen")

def side_work_finish(a):
    WR = 32
    l = a.label("L_sw_fin")
    a("s_waitcnt vmcnt(4)")
    for n in range(5):
        if n == 4:
            a("s_cmp_ge_u32 s53, 32")
            a(f"s_cbranch_scc1 {l}")
        b = WR + 8*n
        for i in range(4): a(f"v_lshl_or_b32 v{b+i}, v{b+2*i+1}, 16, v{b+2*i}")
        a(f"buffer_store_dwordx4 {vr(b,4)}, v22, s[28:31], s{SWD[n]} offen sc1")
    a(f"{l}:")

def prep(a):
    a("L_prep:")
    a(f"s_sub_u32 s40, s{sSLOT}, 24")
    a("s_and_b32 s27, s40, 1")
    a("s_lshr_b32 s26, s40, 1")
    a("s_lshl_b32 s26, s26, 3")
    a(f"s_add_u32 s26, s26, s{sXCD}")
    make_srd(a, 36, pWS, AB_OFF, AB_SIZE)
    a(f"s_cmp_ge_u32 s{sWAVE}, 5")
    a("s_cbranch_scc1 L_fold_skip")
    make_srd(a, 28, pBX, 0, X_SIZE)
    a("s_lshr_b32 s42, s26, 1")
    a("s_lshl_b32 s42, s42, 5")
    a("s_and_b32 s43, s26, 1")
    a("s_add_u32 s42, s42, s43")
    a("v_lshrrev_b32 v2, 3, v1")
    a("v_and_b32 v3, 7, v1")
    a("v_lshl_add_u32 v4, v2, 1, s42")
    a("v_mul_u32_u24 v5, 1280, v4")
    a("v_lshlrev_b32 v6, 4, v3")
    a("v_add_u32 v10, v5, v6")
    a("v_sub_u32 v7, v6, v5")
    a(f"s_lshl_b32 s44, s27, 1")
    a(f"s_add_u32 s44, s44, s{sWAVE}")
    a("s_cmp_ge_u32 s44, 5")
    a("s_cselect_b32 s45, 5, 0")
    a("s_sub_u32 s44, s44, s45")
    a("s_lshl_b32 s44, s44, 7")
    a("s_add_u32 s45, s44, 20480")
    a(f"v_add_u32 v11, {2048*1280}, v7")
    a(f"v_add_u32 v12, {1024*1280}, v7")
    a("v_cmp_ne_u32 vcc, 0, v4")
    a(f"v_mov_b32 v8, {HUGE}")
    a(f"v_add_u32 v9, {1024*1280}, v10")
    a("v_cndmask_b32 v13, v8, v9, vcc")
    LD = 32
    for hf in range(2):
        for r in range(4): a(f"buffer_load_dwordx4 {vr(LD+8*r+4*hf,4)}, v{10+r}, s[28:31], s44 offen offset:{640*hf}")
    a("v_subrev_u32 v11, 20480, v11")
    a("v_subrev_u32 v12, 20480, v12")
    for hf in range(2):
        for r, (vv, so) in enumerate([(10, 45), (11, 44), (12, 44), (9, 45)]):
            a(f"buffer_load_dwordx4 {vr(LD+32+8*r+4*hf,4)}, v{vv}, s[28:31], s{so} offen offset:{640*hf}")
    XL = 96
    a("s_cmp_lg_u32 s26, 0")
    a("s_cbranch_scc1 L_fold_nx")
    a(f"v_add_u32 v14, {512*1280}, v6")
    a(f"v_add_u32 v15, {1536*1280}, v6")
    a("v_cndmask_b32 v14, v14, v8, vcc")
    a("v_cndmask_b32 v15, v15, v8, vcc")
    for r in range(2):
        for hf in range(2):
            a(f"buffer_load_dwordx4 {vr(XL+8*r+4*hf,4)}, v{14+r}, s[28:31], s44 offen offset:{640*hf}")
    a("L_fold_nx:")
    a("v_and_b32 v5, 3, v2")
    a("v_lshrrev_b32 v4, 2, v2")
    a("v_lshl_or_b32 v5, v4, 3, v5")
    a("v_xor_b32 v5, v5, v3")
    a("v_and_b32 v4, 1, v3")
    a("v_lshl_add_u32 v5, v4, 5, v5")
    a("v_lshlrev_b32 v5, 4, v5")
    a("v_lshrrev_b32 v4, 1, v3")
    a("v_lshl_add_u32 v5, v4, 10, v5")
    a("s_lshl_b32 s45, s44, 5")
    a("v_add_u32 v16, s45, v5")
    a("v_xor_b32 v18, 64, v16")
    a("v_add_u32 v5, s44, v6")
    a("v_add_u32 v17, 40960, v5")
    a("v_lshlrev_b32 v6, 4, v1")
    a("v_add_u32 v6, 43008, v6")
    a("v_cndmask_b32 v17, v17, v6, vcc")
    a("L_fold_skip:")
    a("v_and_b32 v2, 31, v1")
    a("v_lshrrev_b32 v3, 5, v1")
    a("v_lshlrev_b32 v15, 4, v1")
    a(f"s_lshr_b32 s40, s{sWAVE}, 1")
    a("s_add_u32 s40, s40, 2")
    a(f"s_and_b32 s41, s{sWAVE}, 1")
    a(f"s_cmp_lt_u32 s{sWAVE}, 4")
    a(f"s_cselect_b32 s49, s{sWAVE}, s40")
    a("s_cselect_b32 s50, 0, s41")
    a("s_lshl_b32 s54, s49, 6")
    a("s_add_u32 s54, s54, s27")
    a("v_lshl_add_u32 v4, v2, 1, s54")
    AU = 10; SB = [[176, 184], [192, 200]]; HB = [[208, 212], [216, 220]]; UB = [72, 84, 96, 108]; ACC3 = [224, 240, 32]; PH = 112
    a("s_mul_i32 s52, s50, 20480")
    for jj in range(4):
        a(f"v_xor_b32 v5, {2*jj}, v3")
        a("v_xor_b32 v5, v5, v2")
        a("v_lshl_add_u32 v5, v3, 5, v5")
        a("v_lshlrev_b32 v5, 4, v5")
        a(f"v_add_u32 v5, {jj*1024}, v5")
        a(f"v_add_u32 v{AU+jj}, s52, v5")
    a(f"v_lshlrev_b32 v{AU+4}, 4, v3")
    a(f"v_add_u32 v{AU+4}, 40960, v{AU+4}")
    a(f"s_mov_b32 s52, {f32bits(1.0/640)}")
    a("s_cmp_lg_u32 s50, 0")
    a("s_cselect_b32 s53, 0x3e800000, 0")
    a("v_lshlrev_b32 v5, 3, v3")
    a("v_mul_u32_u24 v5, v4, v5")
    a("v_cvt_f32_u32 v5, v5")
    a("v_cvt_f32_u32 v4, v4")
    a("v_mul_f32 v6, 0x41800000, v4")
    for i in range(8):
        if i: a("v_add_f32 v5, v5, v4")
        a(f"v_mul_f32 v{PH+i}, s52, v5")
        a("v_sub_f32 v7, v5, v6")
        a(f"v_mul_f32 v{PH+8+i}, s52, v7")
    a("v_mul_f32 v6, s52, v6")
    a("v_fract_f32 v6, v6")
    for i in range(16): a(f"v_fract_f32 v{PH+i}, v{PH+i}")
    a("v_cos_f32 v19, v6")
    for i in range(16): a(f"v_sin_f32 v{SB[1][0]+i}, v{PH+i}")
    for i in range(16): a(f"v_subrev_f32 v{PH+i}, s53, v{PH+i}")
    for i in range(16): a(f"v_cos_f32 v{SB[0][0]+i}, v{PH+i}")
    a("v_add_f32 v19, v19, v19")
    for r in range(32): a(f"v_mov_b32 v{224+r}, 0")
    def cvts(jb, g): return [f"v_cvt_pk_bf16_f32 v{HB[jb][g]+d}, v{SB[jb][g]+2*d}, v{SB[jb][g]+2*d+1}" for d in range(4)]
    def rot(jb, cur): return [f"v_fma_f32 v{SB[jb][cur^1]+i}, v19, v{SB[jb][cur]+i}, -v{SB[jb][cur^1]+i}" for i in range(8)]
    for x in cvts(0, 0) + cvts(1, 0): a(x)
    a(f"s_cmp_lt_u32 s{sWAVE}, 5")
    a("s_cbranch_scc1 L_fold_go")
    if not OPT.get('sw2'):
        side_work(a)
        side_work_finish(a)
    a("s_branch L_fold_done")
    a("L_fold_go:")
    a("s_cmp_lg_u32 s27, 0")
    a("s_cselect_b32 s46, -1.0, 1.0")
    a("s_mov_b32 s47, s46")
    a("s_mov_b32 s48, 0xffff0000")
    T = 112; R = 144; H = 20
    ng = "neg_lo:[0,1] neg_hi:[0,1]"
    def dfold(src, dst):
        for d in range(4):
            a(f"v_lshlrev_b32 v{dst+2*d}, 16, v{src+d}")
            a(f"v_and_b32 v{dst+2*d+1}, s48, v{src+d}")
            a(f"v_lshlrev_b32 v{H+2*(d&1)}, 16, v{src+4+d}")
            a(f"v_and_b32 v{H+2*(d&1)+1}, s48, v{src+4+d}")
            a(f"v_pk_fma_f32 {vr(dst+2*d,2)}, {vr(H+2*(d&1),2)}, s[46:47], {vr(dst+2*d,2)}")
    for n in range(2):
        a("s_waitcnt vmcnt(%d)" % (8 if n == 0 else 0))
        if n == 0: stamp(a, 9)
        b = LD + 32*n
        for r in range(4): dfold(b + 8*r, T + 8*r)
        for d in range(4):
            p = lambda r: vr(T+8*r+2*d, 2)
            q = lambda r: vr(R+8*r+2*d, 2)
            a(f"v_pk_add_f32 {q(0)}, {p(0)}, {p(1)}")
            a(f"v_pk_add_f32 {q(1)}, {p(0)}, {p(1)} {ng}")
            a(f"v_pk_add_f32 {q(2)}, {p(2)}, {p(3)}")
            a(f"v_pk_add_f32 {q(3)}, {p(2)}, {p(3)} {ng}")
            a(f"v_pk_add_f32 {p(0)}, {q(0)}, {q(2)}")
            a(f"v_pk_add_f32 {p(1)}, {q(0)}, {q(2)} {ng}")
            a(f"v_pk_add_f32 {p(2)}, {q(1)}, {q(3)} {ng}")
            a(f"v_pk_add_f32 {p(3)}, {q(1)}, {q(3)}")
        if n == 0:
            a("s_cmp_lg_u32 s26, 0")
            a("s_cbranch_scc1 L_fold_sp")
            a("s_waitcnt vmcnt(0)")
            dfold(XL, R); dfold(XL + 8, R + 8)
            for d in range(4):
                a(f"v_pk_add_f32 {vr(R+16+2*d,2)}, {vr(R+2*d,2)}, {vr(R+8+2*d,2)}")
                a(f"v_pk_add_f32 {vr(R+2*d,2)}, {vr(R+2*d,2)}, {vr(R+8+2*d,2)} {ng}")
            for e in range(8): a(f"v_cndmask_b32 v{T+24+e}, v{R+e}, v{T+24+e}, vcc")
            for d in range(4): a(f"v_cvt_pk_bf16_f32 v{R+d}, v{R+16+2*d}, v{R+17+2*d}")
            a(f"ds_write_b128 v17, {vr(R,4)}")
            a("L_fold_sp:")
        for i in range(4):
            for d in range(4): a(f"v_cvt_pk_bf16_f32 v{b+4*i+d}, v{T+8*i+2*d}, v{T+8*i+2*d+1}")
            a(f"ds_write_b128 v{16+2*n}, {vr(b+4*i,4)} offset:{(i>>1)*20480 + (i&1)*256}")
    a("L_fold_done:")
    for r in range(16): a(f"v_mov_b32 v{32+r}, 0")
    a("s_waitcnt lgkmcnt(0)")
    stamp(a, 14)
    a("s_barrier")
    stamp(a, 2)
    make_srd(a, 28, pDBG, 0, 256)
    a("v_mov_b32 v16, 0")
    a("buffer_load_dwordx2 v[4:5], v16, s[28:31], 0 offen sc1")
    a("s_mul_i32 s42, s27, 6")
    a("s_add_u32 s42, s42, s49")
    a("s_cmp_gt_u32 s42, 10")
    a("s_cbranch_scc0 L_f1_go")
    a("s_waitcnt vmcnt(0)")
    a("s_branch L_prep_done")
    a("L_f1_go:")
    def ureads(j, kinds):
        jj = j & 3; o = (j >> 2) * 4096; b = UB[j & 3]; r = []
        for k in kinds:
            if k == 2: r.append(f"ds_read_b128 {vr(b+8,4)}, v{AU+4} offset:{j*32}")
            else: r.append(f"ds_read_b128 {vr(b+4*k,4)}, v{AU+jj} offset:{o + k*20480}")
        return r
    a("s_mov_b32 s45, 5")
    a("s_or_b32 s51, s26, s50")
    a("s_cmp_eq_u32 s51, 0")
    a("s_cselect_b32 s40, 1, 0")
    a(f"s_cmp_lt_u32 s{sWAVE}, 4")
    a("s_cselect_b32 s41, 2, 0")
    a("s_add_u32 s40, s40, s41")
    variants = [[0], [0, 2], [0, 1], [0, 1, 2]]
    for v in range(1, 4):
        a(f"s_cmp_eq_u32 s40, {v}")
        a(f"s_cbranch_scc1 L_f1_v{v}")
    for v, kinds in enumerate(variants):
        a(f"L_f1_v{v}:")
        nm = len(kinds)
        for x in ureads(0, kinds) + ureads(1, kinds): a(x)
        a(f"L_f1_loop{v}:")
        for jj in range(4):
            buf = jj & 1
            va = rot(0, buf) + cvts(0, buf ^ 1)
            if 1 in kinds: va = rot(0, buf) + rot(1, buf) + cvts(0, buf ^ 1) + cvts(1, buf ^ 1)
            rd = ureads(jj + 2, kinds)
            a(f"s_waitcnt lgkmcnt({nm})")
            a("s_nop 0")
            per = len(va) // nm
            for m, k in enumerate(kinds):
                d = vr(ACC3[k], 16)
                a(f"v_mfma_f32_32x32x16_bf16 {d}, {vr(UB[jj]+4*k,4)}, {vr(HB[k & 1][buf],4)}, {d}")
                a(rd[m])
                for x in va[per*m:per*m+per]: a(x)
        for r in range(4): a(f"v_add_u32 v{AU+r}, 4096, v{AU+r}")
        if 2 in kinds: a(f"v_add_u32 v{AU+4}, 128, v{AU+4}")
        a("s_sub_u32 s45, s45, 1")
        a("s_cmp_lg_u32 s45, 0")
        a(f"s_cbranch_scc1 L_f1_loop{v}")
        if v < 3: a("s_branch L_f1_done")
    a("L_f1_done:")
    stamp(a, 5)
    a("s_mul_i32 s43, s42, 33")
    a("s_and_b32 s44, s26, 1")
    a("s_lshl_b32 s44, s44, 4")
    a("s_lshr_b32 s45, s26, 1")
    a("s_add_u32 s44, s44, s45")
    a("s_add_u32 s44, s44, s43")
    a(f"s_mul_i32 s45, s50, {22*33}")
    a("s_add_u32 s44, s44, s45")
    a("s_lshl_b32 s44, s44, 10")
    a("s_waitcnt vmcnt(0) lgkmcnt(0)")
    a("s_nop 5")
    for jb in range(2):
        b = ACC3[jb]
        if jb == 1:
            a(f"s_cmp_ge_u32 s{sWAVE}, 4")
            a("s_cbranch_scc1 L_f1_one")
        for r in range(8): a(f"v_cvt_pk_bf16_f32 v{b+r}, v{b+2*r}, v{b+2*r+1}")
        for hf in range(2):
            a(f"buffer_store_dwordx4 {vr(b+4*hf,4)}, v15, s[36:39], s44 offen sc1")
            a(f"s_add_u32 s44, s44, {11*33*1024}")
    a("L_f1_one:")
    a("s_cmp_lg_u32 s51, 0")
    a("s_cbranch_scc1 L_prep_done")
    b = ACC3[2]
    for r in range(4): a(f"v_cvt_pk_bf16_f32 v{b+r}, v{b+2*r}, v{b+2*r+1}")
    a("s_add_u32 s43, s43, 32")
    a("s_lshl_b32 s43, s43, 10")
    a(f"buffer_store_dwordx4 {vr(b,4)}, v15, s[36:39], s43 offen sc1")
    a("L_prep_done:")
    if OPT.get('sw2'):
        a(f"s_cmp_lt_u32 s{sWAVE}, 5")
        a("s_cbranch_scc1 L_prep_fin")
        side_work(a)
        side_work_finish(a)
        a("L_prep_fin:")
    a(f"v_readfirstlane_b32 s{sNON}, v4")
    a(f"v_readfirstlane_b32 s{sNON+1}, v5")
    a("s_nop 0")
    a(f"s_cmp_lg_u32 s{sNON}, 0")
    a("s_cbranch_scc1 L_A_done")
    get_nonce(a, 2)

W_PROG, W_GO, W_CNT, W_PASS, W_XCH, W_NON = 0, 4, 8, 16, 32, 48
def a_done(a):
    a("L_A_done:")
    stamp(a, 6)
    a(f"v_mov_b32 v23, {LDS_PROG}")
    a(f"s_cmp_lg_u32 s{sWAVE}, 4")
    a("s_cbranch_scc1 L_A_bar")
    a(f"v_mov_b32 v2, s{sNON}")
    a(f"v_mov_b32 v3, s{sNON+1}")
    a(f"ds_write_b64 v23, v[2:3] offset:{W_NON}")
    a("L_A_bar:")
    a("s_waitcnt lgkmcnt(0)")
    a("s_barrier")
    stamp(a, 4)
    a(f"s_lshr_b32 s26, s{sXCD}, 1")
    a("s_lshl_b32 s26, s26, 3")
    a(f"s_and_b32 s27, s{sSLOT}, 7")
    a("s_add_u32 s26, s26, s27")
    a(f"s_and_b32 s27, s{sXCD}, 1")
    a("s_lshl_b32 s27, s27, 2")
    a(f"s_lshr_b32 s40, s{sSLOT}, 3")
    a("s_add_u32 s27, s27, s40")
    a(f"s_cmp_ge_u32 s{sWAVE}, 4")
    a("s_cbranch_scc1 L_aux")

def drained(a, vt):
    a(f"v_mov_b32 v{vt}, 1")
    a("s_mov_b64 exec, 1")
    a(f"ds_add_u32 v23, v{vt} offset:{W_CNT}")
    a("s_mov_b64 exec, -1")

def attention(a):
    SL = OPT.get('slot', 1)
    AKA, AKB, AV, AKB2 = 4, 5, 168, 172
    AREGS = [AKA, AV, AV+1, AV+2, AV+3] + ([AKB2, AKB2+1] if SL else [AKB])
    QA = [8, 14]
    NEG = [32, 48]; S = [64, 80]; O = [96, 112]; P = 128
    KB = [136, 142]; VB = [148, 156]
    PR = 164
    a("L_attn:")
    a(f"ds_read_b32 v24, v23 offset:{W_GO}")
    a(f"ds_read_b64 v[26:27], v23 offset:{W_NON}")
    a(f"s_setprio {OPT.get('pattn', 2)}")
    a(f"s_mul_i32 s40, s26, {Q_HEAD}")
    a(f"s_add_u32 s40, s40, {Q_OFF}")
    make_srd(a, 28, pWS, "s40", Q_HEAD)
    a(f"s_mul_i32 s40, s26, {KV_HEAD}")
    make_srd(a, 32, pWS, "s40", KV_HEAD)
    a("v_and_b32 v2, 31, v1")
    a("v_lshrrev_b32 v3, 5, v1")
    a(f"v_lshlrev_b32 v{AKA}, 4, v1")
    a(f"v_lshlrev_b32 v{AKB}, 3, v2")
    a(f"v_add_u32 v{AKB}, 1024, v{AKB}")
    a(f"v_mov_b32 v20, {HUGE}")
    a("v_cmp_gt_u32 vcc, 32, v1")
    a("s_lshl_b32 s41, s27, 3")
    a(f"s_lshl_b32 s42, s{sWAVE}, 1")
    a("s_add_u32 s41, s41, s42")
    a(f"v_cndmask_b32 v20, v20, v{AKB}, vcc")
    a(f"s_mul_i32 s42, s41, {TQ}")
    a("v_and_b32 v21, 28, v2")
    a("v_add_u32 v21, v21, v2")
    a("v_lshl_add_u32 v21, v3, 2, v21")
    a("v_lshlrev_b32 v21, 4, v21")
    a("v_add_u32 v29, 1280, v21")
    a("s_mov_b32 s48, 0x000fffff")
    a("s_mov_b32 s49, 0x000fffff")
    a("s_mov_b32 s52, 0x07060302")
    a("s_waitcnt lgkmcnt(0)")
    a("v_readfirstlane_b32 s47, v24")
    a(f"v_readfirstlane_b32 s{sNON}, v26")
    a(f"v_readfirstlane_b32 s{sNON+1}, v27")
    a("s_mov_b32 s50, s47")
    a("s_cmp_lg_u32 s47, 0")
    a("s_cbranch_scc1 L_attn_go")
    a("s_waitcnt vmcnt(0)")
    stamp(a, 3)
    drained(a, 24)
    a("L_attn_spin:")
    a(f"s_sleep {OPT.get('asl', 1)}")
    a(f"ds_read_b32 v24, v23 offset:{W_GO}")
    a("s_waitcnt lgkmcnt(0)")
    a("v_readfirstlane_b32 s47, v24")
    a("s_nop 0")
    a("s_cmp_eq_u32 s47, 0")
    a("s_cbranch_scc1 L_attn_spin")
    a("L_attn_go:")
    stamp(a, 7); stamp(a, 7, 2); stamp_real(a, 8, 2)
    a("s_sub_u32 s47, s47, 1")
    a(f"s_mul_i32 s47, s47, {4*TKV}")
    for q in range(2):
        a(f"buffer_load_dwordx4 {vr(QA[q],4)}, v{AKA}, s[28:31], s42 offen offset:{q*TQ} sc1")
        a(f"buffer_load_dwordx2 {vr(QA[q]+4,2)}, v20, s[28:31], s42 offen offset:{q*TQ} sc1")
    a(f"buffer_load_dwordx4 {vr(KB[0],4)}, v{AKA}, s[32:35], s47 offen sc1")
    if SL:
        for b in KB:
            a(f"v_mov_b32 v{b+4}, 0x3f803f80")
            a(f"v_mov_b32 v{b+5}, 0x3f80")
        a("s_mov_b32 exec_hi, 0")
    a(f"buffer_load_dwordx2 {vr(KB[0]+4,2)}, v{AKB}, s[32:35], s47 offen sc1")
    if SL: a("s_mov_b64 exec, -1")
    a("v_mov_b32 v24, 0x3f803f80")
    a("v_cmp_eq_u32 vcc, 20, v2")
    a(f"s_add_u32 s43, s47, {TKV}")
    a("s_nop 0")
    a("v_cndmask_b32 v24, 0, v24, vcc")
    for r in range(16): a(f"v_mov_b32 v{VB[0]+r}, v24")
    a(f"buffer_load_dwordx4 {vr(KB[1],4)}, v{AKA}, s[32:35], s43 offen sc1")
    if SL: a("s_mov_b32 exec_hi, 0")
    a(f"buffer_load_dwordx2 {vr(KB[1]+4,2)}, v{AKB}, s[32:35], s43 offen sc1")
    a("s_mov_b64 exec, s[48:49]")
    a(f"buffer_load_dwordx4 {vr(VB[0],4)}, v29, s[32:35], s47 offen sc1")
    a(f"buffer_load_dwordx4 {vr(VB[0]+4,4)}, v29, s[32:35], s47 offen offset:640 sc1")
    a(f"buffer_load_dwordx4 {vr(VB[1],4)}, v29, s[32:35], s43 offen sc1")
    a(f"buffer_load_dwordx4 {vr(VB[1]+4,4)}, v29, s[32:35], s43 offen offset:640 sc1")
    a("s_mov_b64 exec, -1")
    a("s_cmp_eq_u32 s50, 0")
    a("s_cbranch_scc1 L_attn_cnt")
    a("s_waitcnt vmcnt(12)")
    stamp(a, 3)
    drained(a, 24)
    a("L_attn_cnt:")
    a("v_mov_b32 v22, 5120")
    if OPT.get('zr', 1):
        a("v_cmp_lt_u32 vcc, 20, v2")
        a("v_mov_b32 v21, 5136")
        a("s_nop 0")
        a("v_cndmask_b32 v22, v22, v21, vcc")
    a("v_cmp_gt_u32 vcc, 20, v2")
    for i in range(4): a(f"v_add_u32 v{AV+i}, {(i>>1)*TKV + (i&1)*640}, v29")
    for i in range(4): a(f"v_cndmask_b32 v{AV+i}, v22, v{AV+i}, vcc")
    if SL:
        a("v_cmp_gt_u32 vcc, 32, v1")
        a("v_mov_b32 v22, 5152")
        a(f"v_add_u32 v21, {TKV}, v{AKB}")
        a(f"v_cndmask_b32 v{AKB2}, v22, v{AKB}, vcc")
        a(f"v_cndmask_b32 v{AKB2+1}, v22, v21, vcc")
    make_srd(a, 36, pWS, O_OFF, O_SIZE)
    for q in range(2):
        for r in range(16): a(f"v_mov_b32 v{O[q]+r}, 0")
    LOOPED = [False]
    mm16 = "v_mfma_f32_32x32x16_bf16"; mm8 = "v_mfma_f32_32x32x8_bf16"
    def M1(s, t, q, c): return "s_nop 1" if OPT.get('nom1') and c == "0" and LOOPED[0] else f"{mm16} {vr(s,16)}, {vr(KB[t&1],4)}, {vr(QA[q],4)}, {c}"
    def M2(s, t, q): return "s_nop 0" if OPT.get('nom2') and LOOPED[0] else f"{mm8} {vr(s,16)}, {vr(KB[t&1]+4,2)}, {vr(QA[q]+4,2)}, {vr(s,16)}"
    def M3(t, q): return "s_nop 1" if OPT.get('nopv') else f"{mm16} {vr(O[q],16)}, {vr(VB[t&1],4)}, {vr(P,4)}, {vr(O[q],16)}"
    def M4(t, q): return "s_nop 1" if OPT.get('nopv') else f"{mm16} {vr(O[q],16)}, {vr(VB[t&1]+4,4)}, {vr(P+4,4)}, {vr(O[q],16)}"
    def rowmax(src, dst, first):
        if first:
            a(f"v_max3_f32 v{dst}, v{src}, v{src+1}, v{src+2}")
            a(f"v_max_f32 v{dst}, v{dst}, v{src+15}")
            rng = range(3, 15, 2)
        else: rng = range(0, 16, 2)
        for r in rng: a(f"v_max3_f32 v{dst}, v{dst}, v{src+r}, v{src+r+1}")
    def finish_neg(add):
        a("v_mov_b32 v26, v24")
        a("v_mov_b32 v27, v25")
        a("s_nop 1")
        a("v_permlane32_swap_b32 v24, v26")
        a("v_permlane32_swap_b32 v25, v27")
        a("s_nop 1")
        a("v_max_f32 v24, v24, v26")
        a("v_max_f32 v25, v25, v27")
        if not SL:
            for q in range(2):
                a(f"v_sub_f32 v{NEG[q]}, {add}, v{24+q}")
                for r in range(1, 16): a(f"v_mov_b32 v{NEG[q]+r}, v{NEG[q]}")
            return
        a("s_mov_b32 s45, 0xffff0000")
        a("s_mov_b32 s46, 0x07060302")
        for q in range(2):
            a(f"v_sub_f32 v{24+q}, {add}, v{24+q}")
        for q in range(2):
            a(f"v_and_b32 v26, s45, v{24+q}")
            a(f"v_sub_f32 v27, v{24+q}, v26")
            a("v_and_b32 v28, s45, v27")
            a("v_sub_f32 v27, v27, v28")
            a("v_perm_b32 v26, v28, v26, s46")
            a("v_lshrrev_b32 v27, 16, v27")
            a("s_mov_b32 exec_lo, 0")
            a(f"v_mov_b32 v{QA[q]+4}, v26")
            a(f"v_mov_b32 v{QA[q]+5}, v27")
            a("s_mov_b64 exec, -1")
        a("s_nop 1")
    CNEG = lambda q: "0" if SL else vr(NEG[q], 16)
    a("s_waitcnt vmcnt(6)")
    stamp(a, 8)
    def neg_one(q, add):
        a(f"v_mov_b32 v26, v{24+q}")
        a("s_nop 1")
        a(f"v_permlane32_swap_b32 v{24+q}, v26")
        a("s_nop 0")
        a(f"v_max_f32 v{24+q}, v{24+q}, v26")
        a(f"v_sub_f32 v{24+q}, {add}, v{24+q}")
        a(f"v_and_b32 v26, s45, v{24+q}")
        a(f"v_sub_f32 v27, v{24+q}, v26")
        a("v_and_b32 v28, s45, v27")
        a("v_sub_f32 v27, v27, v28")
        a("s_mov_b32 exec_lo, 0")
        a(f"v_perm_b32 v{QA[q]+4}, v28, v26, s46")
        a(f"v_lshrrev_b32 v{QA[q]+5}, 16, v27")
        a("s_mov_b64 exec, -1")
    OFFS = hex(f32bits(-float(OPT.get('off', 100))))
    a(M1(S[0], 0, 0, "0")); a(M2(S[0], 0, 0))
    a(M1(S[1], 0, 1, "0")); a(M2(S[1], 0, 1))
    a("s_mov_b32 s45, 0xffff0000")
    a("s_mov_b32 s46, 0x07060302")
    a(f"ds_read_b32 v{PR}, v23")
    a("s_nop 6")
    rowmax(S[0], 24, True)
    neg_one(0, OFFS)
    a("s_nop 0")
    a(M1(S[0], 0, 0, CNEG(0)))
    a(M2(S[0], 0, 0))
    rowmax(S[1], 25, True)
    neg_one(1, OFFS)
    a("s_waitcnt vmcnt(0)")
    def check(need):
        l = a.label("L_chk"); ok = a.label("L_chkok")
        a(f"{l}:")
        a("s_waitcnt lgkmcnt(0)")
        a(f"v_readfirstlane_b32 s44, v{PR}")
        a("s_nop 0")
        a(f"s_cmp_ge_u32 s44, {need}")
        a(f"s_cbranch_scc1 {ok}")
        a(f"ds_read_b32 v{PR}, v23")
        a(f"s_branch {l}")
        a(".p2align 3")
        a(f"{ok}:")
    def unit(t, q, s4=(), s1=(), s2=(), s3=(), first=False, nonext=False):
        s = S[q]; sn = S[q ^ 1]
        t1, q1 = (t, 1) if q == 0 else (t + 1, 0)
        tp, qp = (t - 1, 1) if q == 0 else (t, 0)
        E = lambda r: a(f"v_exp_f32 v{s+r}, v{s+r}")
        C = lambda j: a(f"v_perm_b32 v{P+j}, v{s+2*j+1}, v{s+2*j}, s52" if OPT.get('perm') else f"v_cvt_pk_bf16_f32 v{P+j}, v{s+2*j}, v{s+2*j+1}")
        al = OPT.get('al', 0)
        EW = lambda r: a(f"v_exp_f32_e64 v{s+r}, v{s+r}") if al else E(r)
        odd = lambda xs: sum(1 for x in xs if x.startswith("s_")) & 1
        E(0); E(1)
        if not first: a(M4(tp, qp))
        for x in s4: a(x)
        (E if odd(s4) else EW)(2); E(3); E(4)
        if not nonext: a(M1(sn, t1, q1, CNEG(q1)))
        for x in s1: a(x)
        EW(5); E(6); E(7)
        for j in range(4): C(j)
        if OPT.get('m2l'): EW(8)
        if not nonext: a(M2(sn, t1, q1))
        for x in s2: a(x)
        if not OPT.get('m2l'): EW(8)
        for r in range(9, 13): E(r)
        a(M3(t, q))
        for x in s3: a(x)
        (E if odd(s3) else EW)(13); E(14); E(15)
        for j in range(4, 8): C(j)
    def period(t, o, extra3=()):
        if OPT.get('nods') and LOOPED[0]: o = None
        if o is None:
            if extra3:
                unit(t, 1, s4=["s_waitcnt lgkmcnt(0)"]); unit(t + 1, 0, s3=extra3); return
            unit(t, 1, s4=["s_waitcnt lgkmcnt(0)"]); unit(t + 1, 0); return
        kb = KB[t & 1]; vb = VB[t & 1]
        ok = lds_tile(o + 2); ov = (o >> 1) * LPAIR; av = AV + 2*(o & 1)
        unit(t, 1, s4=["s_waitcnt lgkmcnt(0)"],
             s1=[f"ds_read_b128 {vr(kb,4)}, v{AKA} offset:{ok}"],
             s3=[f"ds_read_b64 {vr(kb+4,2)}, v{AKB2+(o&1)} offset:{ov}" if SL else f"ds_read_b64 {vr(kb+4,2)}, v{AKB} offset:{ok}"])
        unit(t + 1, 0, s4=[f"ds_read_b128 {vr(vb,4)}, v{av} offset:{ov}"],
             s1=[f"ds_read_b128 {vr(vb+4,4)}, v{av+1} offset:{ov}"], s3=extra3)
    rdp = [f"ds_read_b32 v{PR}, v23"]
    a(".p2align 3")
    unit(0, 0, first=True)
    stamp(a, 9)
    check(1)
    for t in range(6):
        if t == 2: check(2)
        period(t, t, rdp if t in (1, 5) else ())
    for r in AREGS: a(f"v_add_u32 v{r}, {3*LPAIR}, v{r}")
    a(f"s_lshl_b32 s45, s{sWAVE}, 2")
    a("v_add_u32 v24, s45, v23")
    a(f"ds_write_b32 v24, v23 offset:{W_PASS}")
    a("s_mov_b32 s45, 2")
    a("s_mov_b32 s46, 7")
    stamp(a, 10); stamp(a, 10, 2); stamp_real(a, 12, 2)
    LOOPED[0] = True
    def body(chk):
        for k in range(8):
            ex = ()
            if k == 7: ex = (rdp if chk else [])
            if k == 6: ex = ["s_sub_u32 s46, s46, 1"]
            if k == 7 and not chk: ex = ["s_cmp_lg_u32 s46, 0"]
            period(k, k, ex)
        for r in AREGS: a(f"v_add_u32 v{r}, {4*LPAIR}, v{r}")
    a("s_cmp_eq_u32 s44, 16")
    a("s_cbranch_scc1 L_attn_fast")
    a(".p2align 3")
    a("L_attn_loop:")
    a("s_add_u32 s45, s45, 2")
    check("s45")
    body(True)
    a("s_cmp_eq_u32 s46, 0")
    a("s_cbranch_scc1 L_attn_last")
    a("s_cmp_lg_u32 s44, 16")
    a("s_cbranch_scc1 L_attn_loop")
    a(f".p2align {OPT.get('lal', 3)}")
    a("L_attn_fast:")
    body(False)
    a("s_cbranch_scc1 L_attn_fast")
    a(".p2align 3")
    a("L_attn_last:")
    period(62, None)
    unit(63, 1, nonext=True)
    a("s_nop 1")
    a(M4(63, 1))
    stamp(a, 11); stamp(a, 11, 2); stamp_real(a, 13, 2)
    a("L_attn_post:")
    a("s_lshl_b32 s42, s41, 5")
    a("s_add_u32 s42, s42, s26")
    a("s_mul_i32 s42, s42, 1280")
    a("v_lshlrev_b32 v21, 4, v1")
    for q in range(2):
        a(f"v_mov_b32 v{24+q}, v{O[q]+8}")
        a(f"v_mov_b32 v26, v{O[q]+8}")
        a("s_nop 1")
        a(f"v_permlane32_swap_b32 v26, v{24+q}")
        a("s_nop 0")
        a(f"v_rcp_f32 v26, v{24+q}")
        a("s_nop 0")
        for r in range(12): a(f"v_mul_f32 v{S[q]+r}, v{O[q]+r}, v26")
        for r in range(6): a(f"v_cvt_pk_bf16_f32 v{S[q]+r}, v{S[q]+2*r}, v{S[q]+2*r+1}")
        a(f"buffer_store_dwordx4 {vr(S[q],4)}, v21, s[36:39], s42 offen sc1")
        a(f"buffer_store_dwordx2 {vr(S[q]+4,2)}, v20, s[36:39], s42 offen sc1")
        if q == 0: a(f"s_add_u32 s42, s42, {32*1280}")
    a("s_cmp_eq_u32 s46, 0")
    a("s_cbranch_scc0 L_attn_fin")
    for q in range(2):
        a(f"v_max3_f32 v{30+q}, abs(v{O[q]}), abs(v{O[q]+1}), abs(v{O[q]+2})")
        a(f"v_mul_f32 v{26+q}, 0, v{24+q}")
    for r in range(12):
        for q in range(2): a(f"v_fma_f32 v{26+q}, v{O[q]+r}, 0, v{26+q}")
    for q in range(2):
        a(f"v_max3_f32 v{30+q}, v{30+q}, abs(v{O[q]+3}), abs(v{O[q]+4})")
        a(f"v_max3_f32 v{30+q}, v{30+q}, abs(v{O[q]+5}), abs(v{O[q]+6})")
        a(f"v_max_f32 v{30+q}, v{30+q}, abs(v{O[q]+7})")
    a("v_max_f32 v24, v24, v25")
    a("v_min_f32 v30, v30, v31")
    a("v_mov_b32 v28, 0x76800000")
    a("v_mov_b32 v31, 0x08800000")
    a("v_cmp_u_f32 s[44:45], v26, v27")
    a("v_cmp_nlt_f32 vcc, v24, v28")
    a("v_cmp_lt_f32 s[50:51], v30, v31")
    a("s_nop 1")
    a("s_or_b64 vcc, vcc, s[44:45]")
    a("s_or_b64 vcc, vcc, s[50:51]")
    if OPT.get('forcefb'): a("s_mov_b64 vcc, -1")
    a("s_cbranch_vccnz L_attn_fallback")
    a("L_attn_fin:")
    if OPT.get('apoll', 0): prod_flags(a, 12, 13)
    a("s_lshl_b32 s40, s2, 2")
    a(f"s_add_u32 s40, s40, s{sWAVE}")
    a(f"s_add_u32 s40, s40, {FB}")
    a("s_lshl_b32 s40, s40, 7")
    for i in range(4): a(f"v_mov_b32 v{8+i}, s{sNON+(i&1)}")
    a("s_waitcnt vmcnt(0)")
    stamp(a, 12)
    a("s_mov_b64 exec, %s" % ("1" if OPT.get('f16') or OPT.get('fat') else "0xff"))
    if OPT.get('fat'): a(f"buffer_atomic_swap_x2 v[8:9], v21, {sr(sFL,4)}, s40 offen" + (" sc1" if OPT['fat'] == 2 else ""))
    elif OPT.get('fnt'): a(f"buffer_store_dwordx4 v[8:11], v21, {sr(sFL,4)}, s40 offen sc0 sc1")
    else: a(f"buffer_store_dwordx4 v[8:11], v21, {sr(sFL,4)}, s40 offen sc1")
    a("s_mov_b64 exec, -1")
    a("s_barrier")
    if OPT.get('apoll', 0):
        a(f"s_cmp_lg_u32 s{sWAVE}, 0")
        a("s_cbranch_scc1 L_end")
        if OPT.get('apoll', 0) > 1: poll_piped(a, 12, 14, OPT.get('apoll', 0))
        else: poll(a, 12, 14, sleep=0)
        a("s_barrier")
    a("s_branch L_end")
    a("L_attn_fallback:")
    a("s_waitcnt vmcnt(0)")
    for r in ((AKA,) if SL else (AKA, AKB)): a(f"v_subrev_u32 v{r}, {31*LPAIR}, v{r}")
    if SL:
        a("s_mov_b32 exec_lo, 0")
        for q in range(2):
            a(f"v_mov_b32 v{QA[q]+4}, 0")
            a(f"v_mov_b32 v{QA[q]+5}, 0")
        a("s_mov_b64 exec, -1")
    a("v_mov_b32 v24, 0xff800000")
    a("v_mov_b32 v25, 0xff800000")
    a("s_mov_b32 s46, 0")
    a("L_fb_max:")
    a(f"buffer_load_dwordx4 {vr(KB[0],4)}, v{AKA}, s[32:35], s46 offen sc1")
    if SL: a("s_mov_b32 exec_hi, 0")
    a(f"buffer_load_dwordx2 {vr(KB[0]+4,2)}, v{AKB}, s[32:35], s46 offen sc1")
    if SL: a("s_mov_b64 exec, -1")
    a("s_waitcnt vmcnt(0)")
    for q in range(2): a(M1(S[q], 0, q, "0"))
    for q in range(2): a(M2(S[q], 0, q))
    a("s_nop 15")
    rowmax(S[0], 24, False)
    rowmax(S[1], 25, False)
    a(f"s_add_u32 s46, s46, {TKV}")
    a(f"s_cmp_lt_u32 s46, {KV_HEAD}")
    a("s_cbranch_scc1 L_fb_max")
    finish_neg("0")
    for q in range(2):
        for r in range(16): a(f"v_mov_b32 v{O[q]+r}, 0")
    a("s_mov_b32 s46, 0")
    a("L_fb_main:")
    a(f"buffer_load_dwordx4 {vr(KB[0],4)}, v{AKA}, s[32:35], s46 offen sc1")
    if SL: a("s_mov_b32 exec_hi, 0")
    a(f"buffer_load_dwordx2 {vr(KB[0]+4,2)}, v{AKB}, s[32:35], s46 offen sc1")
    if SL: a("s_mov_b64 exec, -1")
    a("s_mov_b64 exec, s[48:49]")
    a(f"buffer_load_dwordx4 {vr(VB[0],4)}, v29, s[32:35], s46 offen sc1")
    a(f"buffer_load_dwordx4 {vr(VB[0]+4,4)}, v29, s[32:35], s46 offen offset:640 sc1")
    a("s_mov_b64 exec, -1")
    a("s_waitcnt vmcnt(0)")
    for q in range(2): a(M1(S[q], 0, q, CNEG(q)))
    for q in range(2): a(M2(S[q], 0, q))
    a("s_nop 15")
    for q in range(2):
        for r in range(16): a(f"v_exp_f32 v{S[q]+r}, v{S[q]+r}")
        a("s_nop 0")
        for j in range(8): a(f"v_cvt_pk_bf16_f32 v{P+j}, v{S[q]+2*j}, v{S[q]+2*j+1}")
        a("s_nop 1")
        a(M3(0, q)); a(M4(0, q))
    a(f"s_add_u32 s46, s46, {TKV}")
    a(f"s_cmp_lt_u32 s46, {KV_HEAD}")
    a("s_cbranch_scc1 L_fb_main")
    a("s_nop 15")
    a("s_branch L_attn_post")

def aux(a):
    a("L_aux:")
    a(f"s_setprio {OPT.get('paux', 0)}")
    a(f"s_sub_u32 s44, s{sWAVE}, 4")
    a("v_lshlrev_b32 v2, 4, v1")
    a("s_waitcnt vmcnt(0)")
    drained(a, 3)
    a("s_cmp_eq_u32 s44, 0")
    a("s_cbranch_scc1 L_kv")
    a("s_cmp_lg_u32 s44, 1")
    a("s_cbranch_scc1 L_aux_wait")
    a("s_lshl_b32 s40, s2, 7")
    a("L_cnt_spin:")
    a(f"s_sleep {OPT.get('asl', 1)}")
    a(f"ds_read_b32 v3, v23 offset:{W_CNT}")
    a("s_waitcnt lgkmcnt(0)")
    a("v_readfirstlane_b32 s41, v3")
    a("s_nop 0")
    a("s_cmp_lt_u32 s41, 8")
    a("s_cbranch_scc1 L_cnt_spin")
    stamp(a, 7)
    set_flag(a, 40, 8, also=FL1*128 if OPT.get('lf', 1) else None)
    a("L_aux_wait:")
    a(f"s_sleep {OPT.get('wsl', 16)}")
    a(f"ds_read_b32 v3, v23 offset:{W_PROG}")
    a("s_waitcnt lgkmcnt(0)")
    a("v_readfirstlane_b32 s41, v3")
    a("s_nop 0")
    a(f"s_cmp_lt_u32 s41, {OPT.get('f2w', 6)}")
    a("s_cbranch_scc1 L_aux_wait")
    if OPT.get('dyn', 1):
        a("s_cmp_lg_u32 s44, 1")
        a("s_cbranch_scc1 L_kv_done")
        make_srd(a, 28, pDBG, 0, 256)
        a("v_mov_b32 v3, 1")
        a("v_mov_b32 v4, 128")
        a("s_mov_b64 exec, 1")
        a("buffer_atomic_add v3, v4, s[28:31], 0 offen sc0")
        a("s_waitcnt vmcnt(0)")
        a("v_add_u32 v3, 1, v3")
        a("ds_write_b32 v23, v3 offset:12")
        a("s_mov_b64 exec, -1")
    a("s_branch L_kv_done")
    a("L_kv:")
    a(f"s_mul_i32 s40, s26, {KV_HEAD}")
    make_srd(a, 28, pWS, "s40", KV_HEAD)
    a(f"v_mul_u32_u24 v6, {LPAIR}, v1")
    a("v_min_u32 v6, %d, v6" % (30*LPAIR))
    for r in range(4): a(f"v_mov_b32 v{8+r}, 0x3f803f80")
    a("ds_write_b128 v6, v[8:11] offset:5120")
    for r in range(4): a(f"v_mov_b32 v{12+r}, 0")
    a("ds_write_b128 v6, v[12:15] offset:5136")
    a("v_mov_b32 v16, 0x3f803f80")
    a("v_mov_b32 v17, 0x3f80")
    a("ds_write_b64 v6, v[16:17] offset:5152")
    a("s_lshr_b32 s41, s26, 3")
    a("s_lshl_b32 s41, s41, 1")
    a(f"s_and_b32 s43, s{sXCD}, 1")
    a("s_lshl_b32 s43, s43, 3")
    a("s_lshl_b32 s42, s27, 1")
    a("v_and_b32 v3, 15, v1")
    a("v_lshrrev_b32 v5, 4, v1")
    a("v_add_u32 v5, 1, v5")
    a("v_and_b32 v4, 7, v1")
    a("v_add_u32 v4, s43, v4")
    a("v_bfe_u32 v6, v1, 3, 1")
    a("v_add_u32 v6, 1, v6")
    a("v_cmp_gt_u32 vcc, 32, v1")
    a("v_and_b32 v7, 1, v1")
    a("v_add_u32 v7, s42, v7")
    a("v_cndmask_b32 v3, v4, v3, vcc")
    a("v_cndmask_b32 v5, v6, v5, vcc")
    a("v_cmp_gt_u32 vcc, 48, v1")
    a("v_add_u32 v6, -48, v1")
    a(f"v_mov_b32 v4, {FL1}")
    a("v_cndmask_b32 v3, v7, v3, vcc")
    a("v_cndmask_b32 v5, 0, v5, vcc")
    a("v_cmp_gt_u32 vcc, 2, v6")
    a("v_cmp_gt_u32 s[46:47], 32, v1")
    a("v_and_b32 v7, 7, v3")
    a("v_lshl_add_u32 v5, v5, 3, v7")
    a("s_or_b64 vcc, vcc, s[46:47]")
    a("v_lshrrev_b32 v3, 3, v3")
    a("v_add_u32 v3, s41, v3")
    a("v_cndmask_b32 v4, v4, 0, vcc")
    a("v_lshl_add_u32 v5, v5, 3, v3")
    a("v_add_u32 v5, v5, v4")
    a("v_lshlrev_b32 v5, 7, v5")
    def poll_once(first=False):
        if first and OPT.get('lf', 1):
            a("s_and_b32 s48, s40, 7")
            a("s_cmp_eq_u32 s48, 0")
            a("s_cselect_b32 exec_lo, -1, 0")
            a("s_cselect_b32 exec_hi, -1, 0xcffff")
        a(f"buffer_load_dwordx2 v[6:7], v5, {sr(sFL,4)}, 0 offen sc1")
        if first and OPT.get('lf', 1): a("s_mov_b64 exec, -1")
        a("s_waitcnt vmcnt(0)")
        a(f"v_cmp_eq_u64 vcc, {sr(sNON,2)}, v[6:7]")
        a("s_sub_u32 s40, s40, 1")
        a("s_cselect_b32 s47, 0xffff, 0")
        a("s_and_b32 s48, vcc_hi, 0xff")
        a("s_lshl_b32 s48, s48, s43")
        a("s_or_b32 s48, s48, vcc_lo")
        a("s_bfe_u32 s49, vcc_hi, 0x80008")
        a("s_lshl_b32 s49, s49, s43")
        a("s_lshr_b32 s45, vcc_lo, 16")
        a("s_or_b32 s45, s45, s49")
        a("s_and_b32 s45, s45, s48")
        a("s_or_b32 s45, s45, s47")
    def pub(off, sreg):
        a(f"v_mov_b32 v4, s{sreg}")
        a(f"ds_write_b32 v23, v4 offset:{off}")
    a(f"s_mov_b32 s40, {POLL_MAX - 1}")
    a("v_mov_b32 v6, 0")
    a("v_mov_b32 v7, 0")
    if OPT.get('padgo'):
        a("L_padgo:")
        a("s_memrealtime s[42:43]")
        a("s_waitcnt lgkmcnt(0)")
        a(f"s_sub_u32 s42, s42, s{sNON}")
        a(f"s_cmp_lt_u32 s42, {OPT['padgo']}")
        a("s_cbranch_scc1 L_padgo")
    a("L_kv_p1:")
    a(f"s_sleep {OPT.get('ksl', 1)}")
    poll_once(True)
    a("s_cmp_lg_u32 s47, 0")
    a("s_cbranch_scc1 L_kv_first")
    a("s_lshr_b32 s48, vcc_hi, 16")
    a("s_lshr_b32 s49, vcc_hi, 18")
    a("s_or_b32 s48, s48, s49")
    a("s_and_b32 s48, s48, 3")
    a("s_cmp_eq_u32 s48, 3")
    a("s_cselect_b32 s48, s45, 0")
    a("s_cmp_eq_u32 s48, 0")
    a("s_cbranch_scc1 L_kv_p1")
    a("L_kv_first:")
    a("s_ff1_i32_b32 s48, s45")
    a("s_add_u32 s49, s48, 1")
    pub(W_GO, 49)
    stamp(a, 7)
    a("s_lshl_b32 s46, 1, s48")
    a(f"s_mul_i32 s48, s48, {4*TKV}")
    a(f"s_add_u32 s48, s48, {2*TKV}")
    for i in range(5):
        a(f"s_mov_b32 m0, {i*1024}")
        a("s_nop 0")
        a("buffer_load_dwordx4 v2, s[28:31], s48 offen sc1 lds")
        if i < 4: a("s_add_u32 s48, s48, 1024")
    a("s_mov_b32 s50, 1")
    a(f"s_mov_b32 s51, {LPAIR}")
    a("L_kv_next:")
    a("s_andn2_b32 s48, s45, s46")
    a("s_cbranch_scc0 L_kv_poll")
    a("s_ff1_i32_b32 s48, s48")
    a("s_bitset1_b32 s46, s48")
    a(f"s_mul_i32 s48, s48, {4*TKV}")
    for i in range(10):
        a(f"s_add_u32 m0, s51, {i*1024 + (64 if i >= 5 else 0)}")
        if i: a("s_add_u32 s48, s48, 1024")
        else: a("s_nop 0")
        a("buffer_load_dwordx4 v2, s[28:31], s48 offen sc1 lds")
    a(f"s_add_u32 s51, s51, {2*LPAIR}")
    a("s_cmp_eq_u32 s50, 1")
    a("s_cbranch_scc0 L_kv_w20")
    a("s_waitcnt vmcnt(10)")
    pub(W_PROG, 50)
    a("s_mov_b32 s50, 2")
    a("s_branch L_kv_next")
    a("L_kv_w20:")
    a("s_waitcnt vmcnt(20)")
    a("s_sub_u32 s49, s50, 1")
    pub(W_PROG, 49)
    a("s_add_u32 s50, s50, 1")
    a("s_branch L_kv_next")
    a("L_kv_poll:")
    a("s_waitcnt vmcnt(0)")
    pub(W_PROG, 50)
    a("s_cmp_eq_u32 s50, 16")
    a("s_cbranch_scc1 L_kv_done")
    poll_once()
    a("s_branch L_kv_next")
    a("L_kv_done:")
    if OPT.get('f2s', 16):
        a("s_branch L_all0")
        a("L_all:")
        a(f"s_sleep {OPT.get('wsl', 16)}")
        a("L_all0:")
        a(f"ds_read_b32 v3, v23 offset:{W_PROG}")
        a("s_waitcnt lgkmcnt(0)")
        a("v_readfirstlane_b32 s41, v3")
        a("s_nop 0")
        a(f"s_cmp_lt_u32 s41, {OPT.get('f2s', 16)}")
        a("s_cbranch_scc1 L_all")
    stamp(a, 8)
    a("v_lshlrev_b32 v5, 7, v1")
    a(f"v_add_u32 v5, {192*128}, v5")
    poll(a, 5, 6, sleep=4)
    a(f"s_setprio {OPT.get('pf2', 3)}")
    if OPT.get('dyn', 1):
        a("s_branch L_item0")
        a("L_item:")
        a("s_sleep 8")
        a("L_item0:")
        a("ds_read_b32 v3, v23 offset:12")
        a("s_waitcnt lgkmcnt(0)")
        a("v_readfirstlane_b32 s40, v3")
        a("s_nop 0")
        a("s_cmp_eq_u32 s40, 0")
        a("s_cbranch_scc1 L_item")
        a("s_sub_u32 s40, s40, 1")
    else:
        a(f"s_sub_u32 s40, 31, s{sSLOT}")
        a("s_cmp_ge_u32 s40, 24")
        a("s_cbranch_scc1 L_wo")
        a(f"s_mul_i32 s41, s{sXCD}, 24")
        a("s_add_u32 s40, s40, s41")
    a("s_cmp_ge_u32 s40, %d" % (0 if OPT.get('nof2') else 187))
    a("s_cbranch_scc1 L_wo")
    a("s_mul_i32 s41, s40, 373")
    a("s_lshr_b32 s41, s41, 12")
    a("s_mul_i32 s42, s41, 11")
    a("s_sub_u32 s42, s40, s42")
    a("s_lshl_b32 s41, s41, 1")
    a("s_cmp_ge_u32 s41, 18")
    a("s_cselect_b32 s43, 17, 0")
    a("s_sub_u32 s41, s41, s43")
    a("s_and_b32 s43, s41, 1")
    a("s_lshl_b32 s45, s44, 4")
    a("s_min_u32 s46, s44, 1")
    a("s_add_u32 s46, s46, s45")
    a("s_mul_i32 s47, s41, 65")
    a("s_add_u32 s47, s47, s46")
    a("s_lshl_b32 s47, s47, 10")
    a(f"s_add_u32 s47, s47, {SEQ_OFF}")
    make_srd(a, 28, pWS, "s47", 17*1024)
    a("s_and_b32 s47, s44, 2")
    a("s_add_u32 s47, s47, s43")
    a("s_mul_i32 s48, s47, 11")
    a("s_add_u32 s48, s48, s42")
    a("s_mul_i32 s48, s48, 33")
    a("s_and_b32 s45, s45, 16")
    a("s_add_u32 s48, s48, s45")
    a("s_lshl_b32 s48, s48, 10")
    a(f"s_add_u32 s48, s48, {AB_OFF}")
    make_srd(a, 32, pWS, "s48", 33*1024)
    make_srd(a, 36, pOUT, 0, OUT_SIZE)
    FB = 64; AC = 8
    a("s_or_b32 s47, s44, s43")
    a("s_cmp_lg_u32 s47, 0")
    a("s_cbranch_scc1 L_f2_nox")
    a(f"s_mov_b32 s49, {16*1024}")
    a("buffer_load_dwordx4 v[24:27], v2, s[28:31], s49 offen sc1")
    a(f"s_mov_b32 s49, {32*1024}")
    a("buffer_load_dwordx4 v[28:31], v2, s[32:35], s49 offen sc1")
    a("L_f2_nox:")
    for k in range(16):
        b = FB + k * 8
        if k % 4 == 0: a(f"s_mov_b32 s49, {(k//4)*4096}")
        a(f"buffer_load_dwordx4 {vr(b,4)}, v2, s[28:31], s49 offen offset:{(k%4)*1024} sc1")
        a(f"buffer_load_dwordx4 {vr(b+4,4)}, v2, s[32:35], s49 offen offset:{(k%4)*1024} sc1")
    stamp(a, 9)
    a("v_and_b32 v5, 31, v1")
    a("v_lshrrev_b32 v4, 5, v1")
    a("s_lshr_b32 s48, s41, 1")
    a("s_lshl_b32 s48, s48, 6")
    a("s_add_u32 s48, s48, s43")
    a("s_lshl_b32 s49, s44, 4")
    a("s_add_u32 s48, s48, s49")
    a("v_lshl_add_u32 v47, v4, 3, s48")
    a("v_mul_u32_u24 v47, 2560, v47")
    a("s_cmp_ge_u32 s42, 6")
    a("s_cselect_b32 s48, 383, 0")
    a("s_lshl_b32 s49, s42, 6")
    a("s_sub_u32 s48, s49, s48")
    a("v_lshl_add_u32 v5, v5, 1, s48")
    a(f"v_mov_b32 v46, {HUGE}")
    a("v_lshlrev_b32 v6, 1, v5")
    a("v_add_u32 v40, 1280, v6")
    a("v_cmp_ge_u32 vcc, 320, v5")
    a("v_sub_u32 v41, 2560, v6")
    a("v_add_u32 v6, -1, v5")
    a("v_cndmask_b32 v40, v46, v40, vcc")
    a("v_cmp_gt_u32 vcc, 319, v6")
    a(f"v_add_u32 v33, {(2048-6)*2560}, v40")
    a("v_sub_u32 v33, v33, v47")
    a("v_cndmask_b32 v41, v46, v41, vcc")
    a("v_add_u32 v32, v47, v40")
    a("v_add_u32 v36, v47, v41")
    a(f"v_add_u32 v37, {(2048-6)*2560}, v41")
    a("v_sub_u32 v37, v37, v47")
    a(f"v_subrev_u32 v34, {1024*2560}, v33")
    a(f"v_subrev_u32 v38, {1024*2560}, v37")
    a(f"v_add_u32 v35, {1024*2560}, v32")
    a(f"v_add_u32 v39, {1024*2560}, v36")
    a(f"v_add_u32 v42, {3*5120}, v33")
    a(f"v_add_u32 v43, {3*5120}, v37")
    a(f"v_mov_b32 v3, {LDS_PROG}")
    a("s_lshl_b32 s48, s44, 10")
    a("v_add_u32 v6, s48, v2")
    a("s_add_u32 s49, s48, 12288")
    a("s_lshl_b32 s50, s44, 12")
    a("s_add_u32 s51, s50, 3072")
    a("s_cmp_eq_u32 s44, 3")
    a(f"s_cmov_b32 s49, {LDS_PROG + 1024}")
    a(f"s_cmov_b32 s51, {LDS_PROG + 1024}")
    a("v_add_u32 v7, s49, v2")
    a("v_add_u32 v44, s50, v2")
    a("v_add_u32 v45, s51, v2")
    a("s_lshl_b32 s49, s44, 2")
    a("v_add_u32 v5, s49, v3")
    a(f"s_setprio {OPT.get('pmf', 1)}")
    for k in range(16):
        a(f"s_waitcnt vmcnt({2*(15-k)})")
        b = FB + k * 8
        d = vr(AC, 16)
        a(f"v_mfma_f32_32x32x16_bf16 {d}, {vr(b,4)}, {vr(b+4,4)}, {'0' if k == 0 else d}")
    a("s_cmp_lg_u32 s47, 0")
    a("s_cbranch_scc1 L_f2_nox2")
    a(f"v_mfma_f32_32x32x16_bf16 {vr(AC,16)}, v[24:27], v[28:31], {vr(AC,16)}")
    a("L_f2_nox2:")
    a(f"s_setprio {OPT.get('pep', 3)}")
    def spin_min(lbl, off, sl):
        a(f"{lbl}:")
        a(f"ds_read_b128 v[48:51], v3 offset:{off}")
        a("s_waitcnt lgkmcnt(0)")
        a("v_min3_u32 v48, v48, v49, v50")
        a("v_min_u32 v48, v48, v51")
        a("s_nop 0")
        a("v_readfirstlane_b32 s48, v48")
        a("s_nop 0")
        a("s_cmp_lg_u32 s48, 0")
        a(f"s_cbranch_scc1 {lbl}_ok")
        a(f"s_sleep {sl}")
        a(f"s_branch {lbl}")
        a(f"{lbl}_ok:")
    spin_min("L_f2_dead", W_PASS, 16)
    a("s_nop 3")
    for j in range(3): a(f"ds_write_b128 v6, {vr(AC+4*j,4)} offset:{j*4096}")
    a(f"ds_write_b128 v7, {vr(AC+12,4)}")
    a(f"ds_write_b32 v5, v3 offset:{W_XCH}")
    spin_min("L_f2_wait", W_XCH, OPT.get('xsl', 8))
    for i in range(3): a(f"ds_read_b128 {vr(8+4*i,4)}, v44 offset:{i*1024}")
    a("ds_read_b128 v[20:23], v45")
    a("s_waitcnt lgkmcnt(0)")
    ng = "neg_lo:[0,1] neg_hi:[0,1]"
    for r in (0, 2):
        a(f"v_pk_add_f32 {vr(48+r,2)}, {vr(8+r,2)}, {vr(12+r,2)}")
        a(f"v_pk_add_f32 {vr(52+r,2)}, {vr(8+r,2)}, {vr(12+r,2)} {ng}")
        a(f"v_pk_add_f32 {vr(56+r,2)}, {vr(20+r,2)}, {vr(16+r,2)}")
        a(f"v_pk_add_f32 {vr(60+r,2)}, {vr(20+r,2)}, {vr(16+r,2)} {ng}")
    for r in (0, 2):
        a(f"v_pk_add_f32 {vr(8+r,2)}, {vr(48+r,2)}, {vr(56+r,2)} {ng}")
        a(f"v_pk_add_f32 {vr(12+r,2)}, {vr(48+r,2)}, {vr(56+r,2)}")
        a(f"v_pk_add_f32 {vr(16+r,2)}, {vr(52+r,2)}, {vr(60+r,2)} {ng}")
        a(f"v_pk_add_f32 {vr(20+r,2)}, {vr(52+r,2)}, {vr(60+r,2)}")
    for k in range(8): a(f"v_cvt_pk_bf16_f32 v{48+k}, v{8+2*k}, v{9+2*k}")
    a("s_cmp_eq_u32 s41, 16")
    a("s_cbranch_scc1 L_f2_nyq")
    for i in range(4):
        st = "buffer_store_short_d16_hi" if i & 1 else "buffer_store_short"
        m1, p1, m2, p2 = (48 + 2*k + (i >> 1) for k in range(4))
        a(f"s_mov_b32 s47, {i*5120}")
        a(f"s_mov_b32 s48, {(3-i)*5120}")
        for val, adr, so in [(m1, 32, "s47"), (p1, 36, "s47"), (p2, 35, "s47"), (m2, 39, "s47"), (m2, 34, "s48"), (p2, 38, "s48"),
                             (p1, 33 if i else 42, "s48" if i else "0"), (m1, 37 if i else 43, "s48" if i else "0")]:
            a(f"{st} v{val}, v{adr}, s[36:39], {so} offen{FLF()}")
    a("s_branch L_wo")
    a("L_f2_nyq:")
    a("s_cmp_lg_u32 s44, 0")
    a("s_cbranch_scc1 L_wo")
    a("s_mov_b32 exec_hi, 0")
    for val, adr in [(48, 32), (50, 36), (50, 42), (48, 43)]:
        a(f"buffer_store_short v{val}, v{adr}, s[36:39], 0 offen{FLF()}")
    a("s_mov_b64 exec, -1")
    a("L_wo:")
    a(f"s_setprio {OPT.get('pwo', 3)}")
    stamp(a, 10)
    a("s_and_b32 s40, s26, 3")
    a("s_lshl_b32 s40, s40, 2")
    a("s_add_u32 s40, s40, s44")
    a(f"s_mul_i32 s40, s40, {50*1024}")
    a(f"s_add_u32 s40, s40, {WO_OFF}")
    make_srd(a, 28, pWS, "s40", 50*1024)
    a("s_waitcnt vmcnt(0)")
    for k in range(OPT.get('nwo', 50)):
        if k % 4 == 0: a(f"s_mov_b32 s49, {(k//4)*4096}")
        a(f"buffer_load_dwordx4 {vr(56+4*k,4)}, v2, s[28:31], s49 offen offset:{(k%4)*1024} sc1")

def tail(a):
    PADS = OPT.get('pads', 1)
    padn = [0]
    def pad(chain, last=None):
        if not PADS: return
        a(f"L_pad_{chain}_{padn[0]}:")
        padn[0] += 1
        a(f"s_cbranch_vccnz {last or f'L_pad_{chain}_{padn[0]}'}")
    a("L_B_done:")
    a("s_lshr_b32 s40, s26, 2")
    a("s_lshl_b32 s41, s27, 3")
    a("s_add_u32 s41, s41, s40")
    a(f"s_mul_i32 s42, s41, {32*1280}")
    a(f"s_add_u32 s42, s42, {O_OFF}")
    make_srd(a, 28, pWS, "s42", 32*1280)
    a("v_and_b32 v4, 7, v1")
    a("v_bfe_u32 v5, v1, 3, 2")
    a("v_lshlrev_b32 v5, 1, v5")
    a("v_lshl_add_u32 v4, v4, 3, v5")
    a("s_and_b32 s42, s27, 3")
    a("s_lshl_b32 s42, s42, 6")
    a("s_lshr_b32 s43, s27, 2")
    a("s_add_u32 s42, s42, s43")
    a("s_lshl_b32 s42, s42, 2")
    a("s_lshr_b32 s40, s40, 1")
    a("s_add_u32 s42, s42, s40")
    a(f"s_add_u32 s42, s42, {FB}")
    a("v_lshl_add_u32 v4, v4, 2, s42")
    a("v_lshlrev_b32 v4, 7, v4")
    a("v_mov_b32 v8, v4")
    if OPT.get('ppre', 1): a(f"buffer_load_dwordx2 v[10:11], v8, {sr(sFL,4)}, 0 offen sc1")
    a("v_and_b32 v3, 31, v1")
    a("v_lshrrev_b32 v4, 5, v1")
    a("v_mul_u32_u24 v5, 2560, v4")
    a("v_lshl_add_u32 v5, v3, 3, v5")
    a("v_add_u32 v5, 1024, v5")
    make_srd(a, 32, pOUT, 0, OUT_SIZE)
    a("s_lshl_b32 s41, s41, 5")
    a("v_add_u32 v6, s41, v3")
    a("v_mul_u32_u24 v6, 2560, v6")
    a("s_and_b32 s42, s26, 3")
    a("s_mul_i32 s42, s42, 320")
    a("s_mul_i32 s43, s44, 12800")
    a("v_add_u32 v7, s43, v2")
    a("s_lshl_b32 s43, s44, 12")
    a("s_add_u32 s43, s43, 40960")
    a("v_add_u32 v3, s43, v2")
    a("s_lshl_b32 s43, s44, 10")
    a("s_add_u32 s43, s43, 40960")
    a("v_add_u32 v1, s43, v2")
    a("s_lshl_b32 s45, s44, 4")
    a("s_add_u32 s45, s45, s42")
    a("v_lshl_add_u32 v0, v4, 3, v6")
    a("s_lshl_b32 s43, s44, 6")
    a("s_add_u32 s43, s43, s42")
    a("v_lshl_add_u32 v6, v4, 4, v6")
    if PADS:
        a("s_mov_b64 vcc, -1")
        a("s_nop 0")
        a("s_branch L_pad_a_0")
        a("L_pad_ret:")
        a("s_setprio 3")
    a("s_waitcnt vmcnt(0)")
    stamp(a, 12)
    a("s_barrier")
    stamp(a, 1)
    if not OPT.get('apoll', 0):
        a("s_cmp_lg_u32 s44, 0")
        a("s_cbranch_scc1 L_onep")
        if OPT.get('pp', 1) > 1: poll_piped(a, 8, 10, OPT['pp'])
        else: poll(a, 8, 10, sleep=OPT.get('sl', 0), shrink=OPT.get('shr', 1))
        a("L_onep:")
    a("s_barrier")
    stamp(a, 13)
    if PADS: a("s_mov_b64 vcc, 0")
    a("s_lshl_b32 s40, s44, 10")
    for j in range(10):
        if j % 3 == 0: pad('a')
        a("s_mov_b32 m0, s40")
        a("s_nop 0")
        a("buffer_load_dwordx4 v2, s[28:31], s40 offen sc1 lds")
        if j < 9: a("s_add_u32 s40, s40, 4096")
    a("s_waitcnt vmcnt(%d)" % (6 if OPT.get('prog', 1) else 0))
    a("s_barrier")
    stamp(a, 14)
    if lib.STAMP: a("s_waitcnt lgkmcnt(0)")
    A5, AM, OB = 8, 24, 40
    def rd(buf, kap, base=None):
        b = OB + 4*buf
        if base is not None: return f"ds_read_b128 {vr(b,4)}, v{base} offset:{kap*1280}"
        if kap < 32: return f"ds_read_b128 {vr(b,4)}, v2 offset:{kap*1280}"
        o = (kap - 32) * 5120 // 8
        return None
    def rd_main(buf, kap):
        b = OB + 4*buf
        if kap < 32: return [f"ds_read_b128 {vr(b,4)}, v2 offset:{kap*1280}"]
        g = kap - 32
        return [f"ds_read_b64 {vr(b,2)}, v5 offset:{g*5120}", f"ds_read_b64 {vr(b+2,2)}, v5 offset:{g*5120+1280}"]
    PG = 10 if OPT.get('prog', 1) else 0
    def stream(steps, chain):
        padn[0] = 0
        n = len(steps); cnt = [0]*n
        PF = 3
        for k in range(PF):
            r = steps[k][0](k % 4); cnt[k] = len(r)
            for x in r: a(x)
        for k in range(n):
            out = sum(cnt[k+1:min(n, k+PF)])
            a(f"s_waitcnt lgkmcnt({out})")
            d = vr(steps[k][1], 16)
            a(f"v_mfma_f32_32x32x16_bf16 {d}, {vr(steps[k][2],4)}, {vr(OB+4*(k%4),4)}, {'0' if steps[k][3] else d}")
            if k % 2 == 0 or k in (PG + 13, 32, 38, 40): pad(chain, "L_pad_z_0" if k == n - 2 else None)
            if PG and k + PF == PG:
                a("s_waitcnt vmcnt(0)")
                a("s_barrier")
            if k + PF < n:
                r = steps[k+PF][0]((k+PF) % 4); cnt[k+PF] = len(r)
                for x in r: a(x)
            if k == PG + 13:
                for j in range(4): a(f"ds_write_b128 v3, {vr(A5+4*j,4)} offset:{j*1024}")
                cnt[k+PF] += 4
            if k == 32:
                a("s_barrier")
                for i in range(4): a(f"ds_read_b128 {vr(A5+4*i,4)}, v1 offset:{i*4096}")
                cnt[k+PF] += 4
            if k == 38:
                for i in range(1, 4):
                    a(f"v_pk_add_f32 {vr(A5,2)}, {vr(A5,2)}, {vr(A5+4*i,2)}")
                    a(f"v_pk_add_f32 {vr(A5+2,2)}, {vr(A5+2,2)}, {vr(A5+4*i+2,2)}")
            if k == 40:
                a(f"v_cvt_pk_bf16_f32 v{A5}, v{A5}, v{A5+1}")
                a(f"v_cvt_pk_bf16_f32 v{A5+1}, v{A5+2}, v{A5+3}")
                a(f"buffer_store_dwordx2 {vr(A5,2)}, v0, s[32:35], s45 offen offset:256{FLP()}")
    main = [((lambda kap: lambda buf: rd_main(buf, kap))(kap), AM, 56 + 4*(10+kap), kap == 0) for kap in range(40)]
    if PADS:
        a(f"L_pad_a_{padn[0]}:")
        a("s_cmp_eq_u32 s44, 3")
        a("s_cbranch_vccz L_nopad")
        a("s_cbranch_scc1 L_pad_c_0")
        a("s_branch L_pad_b_0")
        a("L_nopad:")
    a("s_cmp_eq_u32 s44, 3")
    a("s_cbranch_scc1 L_tail3")
    q5 = [((lambda i: lambda buf: [f"ds_read_b128 {vr(OB+4*buf,4)}, v7 offset:{i*1280}"])(i), A5, 56 + 4*i, i == 0) for i in range(10)]
    stream(main[:PG] + q5 + main[PG:], 'b')
    a("s_branch L_tail_join")
    a("L_tail3:")
    q5 = [((lambda i: lambda buf: rd_main(buf, 30 + i))(i), A5, 56 + 4*i, i == 0) for i in range(10)]
    stream(main[:PG] + q5 + main[PG:], 'c')
    a("L_tail_join:")
    stamp(a, 11)
    padn[0] = 0
    pad('z')
    a("s_nop 11")
    for r in range(8): a(f"v_cvt_pk_bf16_f32 v{AM+r}, v{AM+2*r}, v{AM+2*r+1}")
    pad('z', "L_pad_ret")
    a("s_nop 1")
    for h2 in range(2):
        a(f"v_permlane32_swap_b32 v{AM+4*h2}, v{AM+4*h2+2}")
        a(f"v_permlane32_swap_b32 v{AM+4*h2+1}, v{AM+4*h2+3}")
    for h2 in range(2):
        a(f"buffer_store_dwordx4 {vr(AM+4*h2,4)}, v6, s[32:35], s43 offen offset:{32*h2}{FLP()}")
    a("L_end:")
    if OPT.get('pad'):
        a("L_pad:")
        a("s_memrealtime s[40:41]")
        a("s_waitcnt lgkmcnt(0)")
        a(f"s_sub_u32 s40, s40, s{sNON}")
        a(f"s_cmp_lt_u32 s40, {OPT['pad']}")
        a("s_cbranch_scc1 L_pad")
    if lib.STAMP:
        a("s_waitcnt vmcnt(0)")
        stamp(a, 15); stamp_real(a, 17)
        stamp_flush(a, 18, pWS, sWAVE, 0)
    a("L_exit:")
    a("s_endpgm")

KNAME = "concat_heads__mha_block__spectral_fnet__prompt_kernel"
def kernel(a):
    kernel_header(a, KNAME)
    if OPT.get('early'): a("s_memrealtime s[98:99]")
    a("s_cmp_ge_u32 s2, 256")
    a("s_cbranch_scc1 L_exit")
    if lib.STAMP:
        for i in range(18): a(f"s_mov_b32 s{60+2*i}, 0")
    stamp(a, 0); stamp_real(a, 16)
    a("s_load_dwordx8 s[4:11], s[0:1], 0")
    a("s_load_dwordx4 s[12:15], s[0:1], 64")
    a("s_load_dwordx2 s[16:17], s[0:1], 80")
    a("v_lshrrev_b32 v1, 6, v0")
    a(f"s_and_b32 s{sXCD}, s2, 7")
    a(f"v_readfirstlane_b32 s{sWAVE}, v1")
    a(f"s_lshr_b32 s{sSLOT}, s2, 3")
    a("v_and_b32 v1, 63, v0")
    a(f"s_and_b32 s26, s{sXCD}, 1")
    a("s_lshl_b32 s26, s26, 3")
    a(f"s_and_b32 s27, s{sSLOT}, 7")
    a("s_add_u32 s26, s26, s27")
    a(f"s_lshr_b32 s27, s{sSLOT}, 3")
    a("s_lshl_b32 s27, s27, 2")
    a(f"s_lshr_b32 s40, s{sXCD}, 1")
    a("s_add_u32 s27, s27, s40")
    a(f"s_cmp_ge_u32 s{sSLOT}, 24")
    a("s_cselect_b32 s40, 0, s%d" % sWAVE)
    a("s_cmp_lt_u32 s40, 4")
    a("s_cbranch_scc1 L_other")
    gemm_loader(a)
    a("L_other:")
    a("s_waitcnt lgkmcnt(0)")
    make_srd(a, sFL, pWS, FL_OFF, FL_SIZE)
    a(f"s_cmp_lg_u32 s{sWAVE}, 0")
    a("s_cbranch_scc1 L_no_init")
    a(f"v_mov_b32 v2, {LDS_PROG}")
    a("v_mov_b32 v4, 0")
    a("v_mov_b32 v5, 0")
    for i in range(8): a(f"ds_write_b64 v2, v[4:5] offset:{8*i}")
    a("s_cmp_lg_u32 s2, 0")
    a("s_cbranch_scc1 L_no_nonce")
    if OPT.get('early'): a("s_mov_b64 s[40:41], s[98:99]")
    else: a("s_memrealtime s[40:41]")
    make_srd(a, 28, pDBG, 0, 256)
    a("s_waitcnt lgkmcnt(0)")
    a("s_or_b32 s40, s40, 1")
    a("v_mov_b32 v2, s40")
    a("v_mov_b32 v3, s41")
    a("buffer_store_dwordx2 v[2:3], v4, s[28:31], 0 offen sc1")
    a("L_no_nonce:")
    a("s_waitcnt lgkmcnt(0)")
    a("L_no_init:")
    a(f"s_cmp_ge_u32 s{sSLOT}, 24")
    a("s_cbranch_scc1 L_prep")
    if OPT.get('touch', 1):
        a(f"s_cmp_lg_u32 s{sWAVE}, 1")
        a("s_cbranch_scc1 L_no_code")
        a("s_getpc_b64 s[40:41]")
        a("L_pc:")
        a(f"s_sub_u32 s40, s40, L_pc-{KNAME}")
        a("s_subb_u32 s41, s41, 0")
        a(f"s_mul_i32 s42, s{sSLOT}, 1792")
        a("v_lshlrev_b32 v2, 4, v1")
        a("v_add_u32 v2, s42, v2")
        a(f"v_min_u32 v2, L_exit-{KNAME}-1024-16, v2")
        for i in range(2): a(f"global_load_dwordx4 v[250:253], v2, s[40:41] offset:{i*1024}")
        a("L_no_code:")
    gemm_compute(a)
    prep(a)
    a_done(a)
    attention(a)
    aux(a)
    tail(a)
    return kernel_desc(KNAME, 256, 100)

HEADER = open('concat_heads__mha_block__spectral_fnet__prompt.s.ref').read().split("; Override")[0]
def main(out):
    a = Asm()
    a('.amdgcn_target "amdgcn-amd-amdhsa--gfx950"')
    a(".text")
    d = kernel(a)
    txt = HEADER + "; @launch grid=(256,1,1) block=(512,1,1) lds=163840\n" + a.text() + '.section .rodata,"a"\n.p2align 6\n' + d
    open(out, "w").write(txt)

if __name__ == "__main__":
    for x in sys.argv[2:]:
        if x == "stamp": lib.STAMP = True
        elif x == "rt": lib.STAMP = True; lib.STAMPRT = True
        elif x == "gst": lib.STAMP = True; lib.STAMPSET = 1; lib.STAMPRT = True
        elif x == "cst": lib.STAMP = True; lib.STAMPSET = 2
        else:
            k, _, v = x.partition("=")
            OPT[k] = int(v) if v else 1
    main(sys.argv[1] if len(sys.argv) > 1 else "v32.s")
```

```python
import sys, struct
from lib import *
import lib

TKV = 2560; KV_HEAD = 64*TKV; KV_OFF = 0; KV_SIZE = 32*KV_HEAD
TQ = 1280; Q_HEAD = 64*TQ; Q_OFF = KV_SIZE; Q_SIZE = 32*Q_HEAD
O_OFF = Q_OFF + Q_SIZE; O_SIZE = 64*32*1280
SEQ_OFF = O_OFF + O_SIZE; SEQ_SIZE = 17*65*1024
AB_OFF = SEQ_OFF + SEQ_SIZE; AB_SIZE = 4*11*33*1024
WO_OFF = AB_OFF + AB_SIZE; WO_SIZE = 16*50*1024
FL_OFF = 16*1024*1024; FL_SIZE = 1536*128
FA, FB, FL1 = 0, 256, 1280
X_SIZE = 2048*1280; OUT_SIZE = 2048*2560
HUGE = 0x40000000
QSCALE = (20 ** -0.5) * 1.4426950408889634
NDMA = 155; LPAIR = 5184
LDS_PROG = 31*LPAIR
def lds_tile(t): return ((t-2)>>1)*LPAIR + ((t-2)&1)*TKV
def need(tile): return ((tile-1)*TKV + 4095)//4096
NEED = [need(4), need(7), need(15), need(23), 39]
POLL_MAX = 200000
def f32bits(x): return struct.unpack('<I', struct.pack('<f', x))[0]
OPT = {}
FLS = ['', ' sc1', ' nt', ' sc0 sc1', ' sc1 nt']
def FLP(): return FLS[OPT.get('flp', 0)]
def FLF(): return FLS[OPT.get('flf', 1)]

sWAVE = 3
pX, pW, pWO, pBX, pOUT, pDBG, pWS = 4, 6, 8, 10, 12, 14, 16
sNON = 18
sFL = 20
sXCD, sSLOT = 24, 25
STG = 36864
NS = 4

def poll(a, vaddr, vtmp, cnt=40, sleep=1, shrink=False):
    l = a.label("L_poll"); d = a.label("L_pollok")
    a(f"s_mov_b32 s{cnt}, {POLL_MAX}")
    a(f"{l}:")
    a(f"buffer_load_dwordx2 {vr(vtmp,2)}, v{vaddr}, {sr(sFL,4)}, 0 offen sc1")
    a("s_waitcnt vmcnt(0)")
    a(f"v_cmp_ne_u64 vcc, {sr(sNON,2)}, {vr(vtmp,2)}")
    a(f"s_sub_u32 s{cnt}, s{cnt}, 1")
    a(f"s_cbranch_vccz {d}")
    a(f"s_cmp_eq_u32 s{cnt}, 0")
    a(f"s_cbranch_scc1 {d}")
    if sleep: a(f"s_sleep {sleep}")
    if shrink: a("s_mov_b64 exec, vcc")
    a(f"s_branch {l}")
    a(f"{d}:")
    if shrink: a("s_mov_b64 exec, -1")

def poll_piped(a, vaddr, vtmp, depth, cnt=40):
    l = a.label("L_ppoll"); d = a.label("L_ppollok")
    a(f"s_mov_b32 s{cnt}, {POLL_MAX}")
    for i in range(depth - 1):
        a(f"buffer_load_dwordx2 {vr(vtmp+2*i,2)}, v{vaddr}, {sr(sFL,4)}, 0 offen sc1")
        a(f"s_sleep {OPT.get('pgap', 4)}")
    a(f"{l}:")
    for i in range(depth):
        a(f"buffer_load_dwordx2 {vr(vtmp+2*((i+depth-1)%depth),2)}, v{vaddr}, {sr(sFL,4)}, 0 offen sc1")
        a(f"s_waitcnt vmcnt({depth-1})")
        a(f"v_cmp_ne_u64 vcc, {sr(sNON,2)}, {vr(vtmp+2*i,2)}")
        a(f"s_sub_u32 s{cnt}, s{cnt}, 1")
        a(f"s_cbranch_vccz {d}")
        a(f"s_cbranch_scc1 {d}")
        a("s_mov_b64 exec, vcc")
    a(f"s_branch {l}")
    a(f"{d}:")
    a("s_mov_b64 exec, -1")

def prod_flags(a, vd, vt):
    a("s_lshr_b32 s40, s26, 3")
    a(f"v_and_b32 v{vd}, 7, v1")
    a(f"v_bfe_u32 v{vt}, v1, 3, 2")
    a(f"v_lshlrev_b32 v{vt}, 1, v{vt}")
    a(f"v_lshl_add_u32 v{vd}, v{vd}, 3, v{vt}")
    a("s_and_b32 s42, s27, 3")
    a("s_lshl_b32 s42, s42, 6")
    a("s_lshr_b32 s43, s27, 2")
    a("s_add_u32 s42, s42, s43")
    a("s_lshl_b32 s42, s42, 2")
    a("s_add_u32 s42, s42, s40")
    a(f"s_add_u32 s42, s42, {FB}")
    a(f"v_lshl_add_u32 v{vd}, v{vd}, 2, s42")
    a(f"v_lshlrev_b32 v{vd}, 7, v{vd}")

def get_nonce(a, vt, srd=28, cnt=40):
    make_srd(a, srd, pDBG, 0, 256)
    l = a.label("L_non"); d = a.label("L_nonok")
    a(f"v_mov_b32 v{vt}, 0")
    a(f"s_mov_b32 s{cnt}, {POLL_MAX}")
    a(f"{l}:")
    a(f"buffer_load_dwordx2 {vr(vt+2,2)}, v{vt}, {sr(srd,4)}, 0 offen sc1")
    a("s_waitcnt vmcnt(0)")
    a(f"v_readfirstlane_b32 s{sNON}, v{vt+2}")
    a(f"v_readfirstlane_b32 s{sNON+1}, v{vt+3}")
    a(f"s_sub_u32 s{cnt}, s{cnt}, 1")
    a(f"s_cmp_lg_u32 s{sNON}, 0")
    a(f"s_cbranch_scc1 {d}")
    a(f"s_cmp_eq_u32 s{cnt}, 0")
    a(f"s_cbranch_scc1 {d}")
    a("s_sleep 2")
    a(f"s_branch {l}")
    a(f"{d}:")

def set_flag(a, sidx, vt, also=None):
    for i in range(4): a(f"v_mov_b32 v{vt+i}, s{sNON+(i&1)}")
    a(f"v_lshlrev_b32 v{vt+4}, 4, v1")
    a("s_mov_b64 exec, 0xff")
    if also is not None:
        a(f"s_add_u32 s41, s{sidx}, {also}")
        a(f"buffer_store_dwordx4 {vr(vt,4)}, v{vt+4}, {sr(sFL,4)}, s41 offen")
    a(f"buffer_store_dwordx4 {vr(vt,4)}, v{vt+4}, {sr(sFL,4)}, s{sidx} offen sc1")
    a("s_mov_b64 exec, -1")

def gemm_loader(a):
    sA, sB = 28, 32
    a("L_loader:")
    a(f"s_sub_u32 s44, s{sWAVE}, 4")
    a("v_lshrrev_b32 v2, 3, v1")
    a("s_lshl_b32 s40, s44, 3")
    a("v_add_u32 v2, s40, v2")
    a("v_mul_u32_u24 v2, 1280, v2")
    a("v_lshrrev_b32 v3, 4, v1")
    a("s_and_b32 s40, s44, 1")
    a("s_lshl_b32 s40, s40, 2")
    a("v_or_b32 v4, s40, v3")
    a("v_and_b32 v5, 7, v1")
    a("v_xor_b32 v4, v4, v5")
    a("v_lshl_add_u32 v10, v4, 4, v2")
    a("s_lshl_b32 s45, s44, 10")
    a(f"s_lshr_b32 s40, s{sSLOT}, 3")
    a(f"s_mul_i32 s40, s40, {OPT.get('ra', 5)}")
    a(f"s_and_b32 s41, s{sSLOT}, 7")
    a(f"s_mul_i32 s41, s41, {OPT.get('rb', 5)}")
    a("s_add_u32 s40, s40, s41")
    if OPT.get('ph'):
        n = OPT['ph']
        a(f"s_lshr_b32 s40, s{sSLOT}, 3")
        a(f"s_and_b32 s41, s{sSLOT}, 7")
        a("s_add_u32 s40, s40, s41")
        a(f"s_mul_i32 s41, s40, {(256 + n - 1)//n}")
        a("s_lshr_b32 s41, s41, 8")
        a(f"s_mul_i32 s41, s41, {n}")
        a("s_sub_u32 s40, s40, s41")
        a(f"s_mul_i32 s40, s40, {OPT.get('pstep', 3)}")
    a(f"s_mul_i32 s41, s{sXCD}, {OPT.get('rc', 3)}")
    a("s_add_u32 s40, s40, s41")
    a("s_mul_i32 s41, s40, 6554")
    a("s_lshr_b32 s41, s41, 16")
    a("s_mul_i32 s41, s41, 10")
    a("s_sub_u32 s47, s40, s41")
    a("s_lshl_b32 s40, s44, 4")
    a("v_lshrrev_b32 v2, 2, v1")
    a("v_add_u32 v2, s40, v2")
    a("v_mul_u32_u24 v2, 3840, v2")
    a("v_and_b32 v3, 3, v1")
    a("v_lshrrev_b32 v4, 5, v1")
    a("v_lshlrev_b32 v4, 1, v4")
    a("v_xor_b32 v3, v3, v4")
    a("v_lshl_add_u32 v11, v3, 4, v2")
    a("s_mul_i32 s46, s44, 5120")
    a("s_mul_i32 s50, s26, 163840")
    a("s_mul_i32 s51, s27, 320")
    a("s_sub_u32 s52, 2457600, s51")
    a("s_waitcnt lgkmcnt(0)")
    make_srd(a, sA, pX, "s50", 163840)
    def issue_x(c):
        sl = c % NS
        a("s_lshl_b32 s48, s47, 7")
        for j in range(4):
            a(f"s_add_u32 m0, s45, {sl*STG + j*4096}")
            if j: a(f"s_add_u32 s48, s48, 40960")
            else: a("s_mul_i32 s49, s47, 245760")
            a(f"buffer_load_dwordx4 v10, {sr(sA,4)}, s48 offen lds")
    def issue_w(c):
        sl = c % NS
        for i in range(5):
            a(f"s_add_u32 m0, s46, {sl*STG + 16384 + i*1024 - i*64}")
            if i == 0:
                a("s_add_u32 s47, s47, 1")
            elif i == 1:
                a("s_cmp_eq_u32 s47, 10")
                a("s_cmov_b32 s47, 0")
            else: a("s_nop 0")
            a(f"buffer_load_dwordx4 v11, {sr(sB,4)}, s49 offen offset:{i*64} lds")
    def issue(c): issue_x(c); issue_w(c)
    stamp(a, 3)
    issue_x(0)
    make_srd(a, sB, pW, "s51", "s52")
    issue_w(0)
    issued = 1
    pre = OPT.get('pre', 2)
    for c in range(1, pre): issue(c); issued += 1
    for c in range(10):
        a(f"s_waitcnt vmcnt({9*(issued-c-1)})")
        if c in (0, 9): stamp(a, {0: 2, 9: 5}[c])
        stamp(a, c + 1, 1)
        a("s_barrier")
        if c in (1, 3, 5, 7): stamp(a, 11 + c // 2, 1)
        while issued < min(10, c + 1 + (OPT.get('dep', 2) if c < OPT.get('depsw', 10) else 3)): issue(issued); issued += 1
    make_srd(a, sFL, pWS, FL_OFF, FL_SIZE)
    a(f"s_cmp_lg_u32 s{sWAVE}, 4")
    a("s_cbranch_scc1 L_ld_nf")
    early_flags(a)
    a("L_ld_nf:")
    get_nonce(a, 2)
    a("s_branch L_A_done")

AX, AWA, EA = 8, 10, 16
FR = 24
ACC = 96
def gemm_loop(a, isv, epi):
    XB = [FR, FR + 36, 176, 212]
    def rdx(kk, m, b): sl, st = divmod(kk, 2); return f"ds_read_b128 {vr(b+4*m,4)}, v{AX+st} offset:{sl*STG + m*2048}"
    def rdw(kk, T, b): sl, st = divmod(kk, 2); return [f"ds_read_b64_tr_b16 {vr(b+16+4*T+2*t,2)}, v{AWA+T} offset:{sl*STG + st*10240 + t*256}" for t in range(2)]
    def reads(kk, b):
        r = rdw(kk, 0, b) + [rdx(kk, m, b) for m in range(4)]
        for T in range(1, 5): r += rdw(kk, T, b)
        return r
    def mfma(b, T, m):
        d = vr(ACC + 16*T + 4*m, 4); w = vr(b + 16 + 4*T, 4); x = vr(b + 4*m, 4)
        return f"v_mfma_f32_16x16x32_bf16 {d}, {x}, {w}, {d}" if isv else f"v_mfma_f32_16x16x32_bf16 {d}, {w}, {x}, {d}"
    for r in range(80): a(f"v_mov_b32 v{ACC+r}, 0")
    a(f"s_mov_b32 s40, {2*STG}")
    a("s_mov_b32 s41, 4")
    stamp(a, 13)
    a("s_barrier")
    stamp(a, 2)
    for r in reads(0, XB[0]): a(r)
    lp = a.label("L_gemm"); last = a.label("L_gemm_last")
    a(".p2align 3")
    a(f"{lp}:")
    for kk in range(4):
        a("s_waitcnt lgkmcnt(0)")
        ms = [mfma(XB[kk & 1], T, m) for T in range(5) for m in range(4)]
        a(ms[0])
        if kk == 1: a("s_barrier")
        if kk == 3:
            for i in range(2): a(f"v_add_u32 v{AX+i}, s40, v{AX+i}")
            for i in range(5): a(f"v_add_u32 v{AWA+i}, s40, v{AWA+i}")
            a("s_sub_u32 s40, 0, s40")
            a("s_sub_u32 s41, s41, 1")
            a("s_barrier")
            a("s_cmp_eq_u32 s41, 0")
            a(f"s_cbranch_scc1 {last}")
        nx = reads((kk + 1) & 3, XB[(kk + 1) & 1])
        for i in range(1, 20):
            if i - 1 < len(nx): a(nx[i-1])
            a(ms[i])
    a(f"s_branch {lp}")
    a(f"{last}:")
    bufs = [XB[0], XB[2], XB[3], XB[1]]
    def order(k0):
        r = []
        for k in (k0, k0 + 1): r += rdw(k, 0, bufs[k]) + [rdx(k, m, bufs[k]) for m in range(4)]
        return r
    first = order(0)
    rest01 = [x for T in range(1, 5) for k in (0, 1) for x in rdw(k, T, bufs[k])]
    second = order(2)
    rest23 = [[x for k in (2, 3) for x in rdw(k, T, bufs[k])] for T in range(5)]
    ms = [mfma(XB[1], T, m) for T in range(5) for m in range(4)]
    q = first + rest01
    pos = 0
    for i in range(1, 20):
        for _ in range(2 if i < 10 else 1):
            if pos < len(q): a(q[pos]); pos += 1
        a(ms[i])
    a("s_barrier")
    q = second + rest23[1] + rest23[2] + rest23[3] + rest23[4]
    a("s_waitcnt lgkmcnt(0)")
    pos = 0
    for T in range(5):
        e = epi(T - 1) if T >= 1 else []
        per = -(-len(e) // 12)
        for i in range(16):
            if i == 8 and T < 2: a(f"s_waitcnt lgkmcnt({min(15, pos - (12 + 4*T))})" if T == 0 else "s_waitcnt lgkmcnt(0)")
            a(mfma(bufs[i >> 2], T, i & 3))
            for _ in range(2):
                if pos < len(q): a(q[pos]); pos += 1
            if i >= 4:
                for x in e[per*(i-4):per*(i-3)]: a(x)
    stamp(a, 5)
    a("s_nop 7")
    for x in epi(4): a(x)

def gemm_compute(a):
    a("L_compute:")
    a("v_and_b32 v2, 15, v1")
    a("v_lshrrev_b32 v3, 4, v1")
    a(f"s_and_b32 s42, s{sWAVE}, 1")
    a(f"s_lshr_b32 s43, s{sWAVE}, 1")
    a("s_lshl_b32 s40, s42, 6")
    a("v_add_u32 v4, s40, v2")
    a("v_lshlrev_b32 v4, 7, v4")
    a("v_lshrrev_b32 v5, 1, v2")
    a("v_xor_b32 v5, v5, v3")
    a(f"v_lshl_add_u32 v{AX}, v5, 4, v4")
    a(f"v_xor_b32 v{AX+1}, 64, v{AX}")
    a("v_lshrrev_b32 v4, 5, v1")
    a("v_mul_u32_u24 v4, 5120, v4")
    a("v_and_b32 v5, 1, v3")
    a("v_lshrrev_b32 v6, 2, v2")
    a("v_lshl_add_u32 v6, v5, 3, v6")
    a("v_lshl_add_u32 v4, v6, 6, v4")
    a("v_add_u32 v4, 16384, v4")
    a("v_lshlrev_b32 v5, 2, v5")
    a("v_and_b32 v6, 3, v1")
    a("s_mul_i32 s44, s43, 20")
    def waddr(T, g):
        a(f"v_and_b32 v15, 7, v{g}")
        a("v_xor_b32 v15, v15, v5")
        a("v_lshl_add_u32 v15, v15, 3, v4")
        a(f"v_lshrrev_b32 v{g}, 3, v{g}")
        a(f"v_lshl_add_u32 v{AWA+T}, v{g}, 10, v15")
    a("s_lshl_b32 s45, s26, 2")
    a("s_lshl_b32 s42, s42, 1")
    a("s_add_u32 s42, s42, s45")
    a("s_and_b32 s45, s27, 3")
    a("s_lshl_b32 s45, s45, 3")
    a("s_lshl_b32 s43, s43, 2")
    a("s_add_u32 s43, s43, s45")
    a("s_cmp_ge_u32 s27, 8")
    a("s_cbranch_scc1 L_compute_v")
    for T in range(5):
        if T < 4:
            a(f"s_add_u32 s45, s44, {5*T}")
            a("v_add_u32 v7, s45, v6")
        else:
            a("s_add_u32 s45, s44, 4")
            a("v_mad_u32_u24 v7, v6, 5, s45")
        waddr(T, 7)
    a("s_cmp_ge_u32 s27, 4")
    for reg, k, q in [(44, KV_HEAD, Q_HEAD), (45, TKV, TQ), (46, f32bits(1.0), f32bits(QSCALE)), (47, KV_OFF, Q_OFF), (48, KV_SIZE, Q_SIZE)]:
        a(f"s_mov_b32 s{reg}, {q}")
        a(f"s_cmov_b32 s{reg}, {k}")
    make_srd(a, 28, pWS, "s47", "s48")
    a("s_mul_i32 s47, s43, s44")
    a("s_mul_i32 s48, s42, s45")
    a("s_add_u32 s47, s47, s48")
    a(f"v_lshlrev_b32 v{EA}, 4, v1")
    a(f"v_add_u32 v{EA+1}, s45, v{EA}")
    a("v_lshrrev_b32 v4, 5, v1")
    a("v_mul_lo_u32 v4, v4, s44")
    a("v_and_b32 v5, 31, v1")
    a("v_lshlrev_b32 v5, 3, v5")
    a("v_lshl_add_u32 v4, v4, 1, v5")
    a(f"v_add_u32 v{EA+2}, 1024, v4")
    a(f"v_add_u32 v{EA+3}, s45, v{EA+2}")
    a("s_mov_b32 s48, s47")
    a("s_add_u32 s49, s47, s44")
    def epi_qk(T):
        b = ACC + 16*T; e = []
        for r in range(16): e.append(f"v_mul_f32 v{b+r}, s46, v{b+r}")
        for r in range(8): e.append(f"v_cvt_pk_bf16_f32 v{b+r}, v{b+2*r}, v{b+2*r+1}")
        e.append("s_nop 0")
        for u in range(2):
            e.append(f"v_permlane16_swap_b32 v{b+4*u}, v{b+4*u+2}")
            e.append(f"v_permlane16_swap_b32 v{b+4*u+1}, v{b+4*u+3}")
        for u in range(2):
            if T < 4: e.append(f"buffer_store_dwordx4 {vr(b+4*u,4)}, v{EA+u}, s[28:31], s48 offen sc1")
            else:
                e.append(f"buffer_store_dwordx2 {vr(b+4*u,2)}, v{EA+2+u}, s[28:31], s47 offen sc1")
                e.append(f"buffer_store_dwordx2 {vr(b+4*u+2,2)}, v{EA+2+u}, s[28:31], s49 offen sc1")
        if T < 3: e.append("s_add_u32 s48, s48, s44")
        return e
    gemm_loop(a, False, epi_qk)
    a("s_branch L_A_done")
    a("L_compute_v:")
    for T in range(5):
        a(f"s_add_u32 s45, s44, {4*T}")
        a("v_add_u32 v7, s45, v6")
        waddr(T, 7)
    make_srd(a, 28, pWS, KV_OFF, KV_SIZE)
    a(f"s_mov_b32 s44, {KV_HEAD}")
    a("s_mul_i32 s47, s43, s44")
    a(f"s_mul_i32 s48, s42, {TKV}")
    a("s_add_u32 s47, s47, s48")
    a("v_lshrrev_b32 v7, 5, v1")
    a("v_mul_u32_u24 v7, 640, v7")
    a("v_and_b32 v15, 1, v3")
    a("v_lshl_add_u32 v7, v15, 6, v7")
    a("v_add_u32 v7, 1280, v7")
    for T in range(5):
        a(f"v_add_u32 v4, {16*T}, v2")
        a("v_mul_u32_u24 v5, 3277, v4")
        a("v_lshrrev_b32 v5, 16, v5")
        a("v_mul_u32_u24 v6, 20, v5")
        a("v_sub_u32 v4, v4, v6")
        a("v_and_b32 v6, 28, v4")
        a("v_add_u32 v4, v4, v6")
        a("v_mul_lo_u32 v5, v5, s44")
        a("v_lshl_add_u32 v4, v4, 4, v5")
        a(f"v_add_u32 v{EA+T}, v7, v4")
    def epi_v(T):
        b = ACC + 16*T; e = []
        for r in range(8): e.append(f"v_cvt_pk_bf16_f32 v{b+r}, v{b+2*r}, v{b+2*r+1}")
        e.append("s_nop 0")
        for u in range(2):
            e.append(f"v_permlane32_swap_b32 v{b+4*u}, v{b+4*u+2}")
            e.append(f"v_permlane32_swap_b32 v{b+4*u+1}, v{b+4*u+3}")
        for u in range(2): e.append(f"buffer_store_dwordx4 {vr(b+4*u,4)}, v{EA+T}, s[28:31], s47 offen offset:{u*TKV} sc1")
        return e
    gemm_loop(a, True, epi_v)
    a("s_branch L_A_done")

SWD = [42, 43, 44, 56, 57]
def side_work(a):
    a("s_sub_u32 s53, s2, 192")
    a("s_mul_i32 s53, s53, 3")
    a(f"s_add_u32 s53, s53, s{sWAVE}")
    a("s_sub_u32 s53, s53, 5")
    a("v_lshlrev_b32 v22, 4, v1")
    make_srd(a, 32, pWO, 0, 819200)
    make_srd(a, 28, pWS, SEQ_OFF, WO_OFF + WO_SIZE - SEQ_OFF)
    WR = 32
    for n in range(5):
        if n == 4:
            a("s_cmp_ge_u32 s53, 32")
            a("s_cbranch_scc1 L_sw_wo_ld")
        a(f"s_add_u32 s40, s53, {192*n}")
        a("s_mul_i32 s41, s40, 1639")
        a("s_lshr_b32 s41, s41, 16")
        a("s_mul_i32 s58, s41, 40")
        a("s_sub_u32 s58, s40, s58")
        a("s_mul_i32 s59, s58, 20")
        a("s_mul_i32 s55, s58, 80")
        a("s_sub_u32 s55, s55, %d" % (32*80 - 16))
        a("s_cmp_lt_u32 s58, 32")
        a("s_cselect_b32 s45, 4, 40")
        a("s_cselect_b32 s59, s59, s55")
        a(f"s_mov_b32 s46, {20*1280}")
        a(f"s_cmov_b32 s46, {8*1280}")
        a("v_mul_u32_u24 v4, s45, v3")
        a("v_add_u32 v4, s59, v4")
        a("v_mul_u32_u24 v4, 1280, v4")
        a("s_lshl_b32 s59, s41, 6")
        a("v_lshl_add_u32 v4, v2, 1, v4")
        a("v_add_u32 v4, s59, v4")
        b = WR + 8*n
        for grp in range(2):
            so = "s46" if grp else "0"
            for i in range(4):
                a(f"buffer_load_ushort v{b+4*grp+i}, v4, s[32:35], {so} offen offset:{i*1280}")
        a("s_mul_i32 s59, s41, 52")
        a("s_lshr_b32 s59, s59, 8")
        a("s_mul_i32 s55, s59, 5")
        a("s_sub_u32 s55, s41, s55")
        a("s_mul_i32 s45, s58, 26")
        a("s_lshr_b32 s45, s45, 8")
        a("s_mul_i32 s47, s45, 10")
        a("s_sub_u32 s47, s58, s47")
        a("s_add_u32 s58, s58, 10")
        a("s_cmp_lt_u32 s55, 4")
        a("s_cselect_b32 s55, s55, s45")
        a("s_cselect_b32 s58, s58, s47")
        a("s_lshl_b32 s59, s59, 2")
        a("s_add_u32 s59, s59, s55")
        a("s_mul_i32 s59, s59, 50")
        a("s_add_u32 s59, s59, s58")
        a("s_lshl_b32 s59, s59, 10")
        a(f"s_add_u32 s{SWD[n]}, s59, {WO_OFF - SEQ_OFF}")
    a("L_sw_wo_ld:")
    G = 80
    a("s_mov_b32 s54, s53")
    a("v_lshlrev_b32 v23, 4, v3")
    a(f"s_mov_b32 s55, {f32bits(1.0/2048)}")
    a("v_cmp_gt_u32 vcc, 32, v1")
    a("L_sw_gen:")
    a("s_lshr_b32 s41, s54, 5")
    a("s_and_b32 s58, s54, 31")
    a("s_lshr_b32 s59, s41, 1")
    a("s_lshl_b32 s59, s59, 6")
    a("s_and_b32 s47, s41, 1")
    a("s_add_u32 s59, s59, s47")
    a("v_lshl_add_u32 v4, v2, 1, s59")
    a("s_lshr_b32 s47, s58, 4")
    a("s_mul_i32 s45, s41, 65")
    a("s_add_u32 s45, s45, s58")
    a("s_add_u32 s46, s45, 33")
    a("s_add_u32 s45, s45, s47")
    a("s_lshl_b32 s45, s45, 10")
    a("s_lshl_b32 s46, s46, 10")
    a("s_and_b32 s48, s58, 15")
    a("s_lshl_b32 s48, s48, 5")
    a("s_add_u32 s48, s48, s47")
    a("v_add_u32 v5, s48, v23")
    a("v_mul_u32_u24 v5, v4, v5")
    a("v_cvt_f32_u32 v5, v5")
    a("v_cvt_f32_u32 v4, v4")
    for i in range(8):
        if i: a("v_fma_f32 v5, 2.0, v4, v5")
        a(f"v_mul_f32 v{G+i}, s55, v5")
    for i in range(8): a(f"v_fract_f32 v{G+i}, v{G+i}")
    for i in range(8): a(f"v_cos_f32 v{G+8+i}, v{G+i}")
    a("s_cmp_lg_u32 s58, 0")
    a("s_cbranch_scc1 L_gen_plain")
    a("v_mul_f32 v6, 0x3e800000, v4")
    a("v_fract_f32 v6, v6")
    a(f"v_cndmask_b32 v{G}, v{G}, v6, vcc")
    a("v_cos_f32 v7, v6")
    a(f"v_mov_b32 v{G+25}, 0")
    a(f"v_mov_b32 v{G+26}, 0")
    a(f"v_mov_b32 v{G+27}, 0")
    a("v_cndmask_b32 v7, 0, v7, vcc")
    a(f"v_cvt_pk_bf16_f32 v{G+24}, v7, 0")
    a(f"s_add_u32 s48, s45, {16*1024}")
    a(f"buffer_store_dwordx4 {vr(G+24,4)}, v22, s[28:31], s48 offen sc1")
    a("L_gen_plain:")
    for i in range(8): a(f"v_sin_f32 v{G+i}, v{G+i}")
    for i in range(4): a(f"v_cvt_pk_bf16_f32 v{G+16+i}, v{G+8+2*i}, v{G+9+2*i}")
    for i in range(4): a(f"v_cvt_pk_bf16_f32 v{G+20+i}, v{G+2*i}, v{G+1+2*i}")
    a(f"buffer_store_dwordx4 {vr(G+16,4)}, v22, s[28:31], s45 offen sc1")
    a(f"buffer_store_dwordx4 {vr(G+20,4)}, v22, s[28:31], s46 offen sc1")
    a("s_add_u32 s54, s54, 192")
    a("s_cmp_lt_u32 s54, 544")
    a("s_cbranch_scc1 L_sw_gen")

def side_work_finish(a):
    WR = 32
    l = a.label("L_sw_fin")
    a("s_waitcnt vmcnt(4)")
    for n in range(5):
        if n == 4:
            a("s_cmp_ge_u32 s53, 32")
            a(f"s_cbranch_scc1 {l}")
        b = WR + 8*n
        for i in range(4): a(f"v_lshl_or_b32 v{b+i}, v{b+2*i+1}, 16, v{b+2*i}")
        a(f"buffer_store_dwordx4 {vr(b,4)}, v22, s[28:31], s{SWD[n]} offen sc1")
    a(f"{l}:")

def prep(a):
    a("L_prep:")
    a(f"s_sub_u32 s40, s{sSLOT}, 24")
    a("s_and_b32 s27, s40, 1")
    a("s_lshr_b32 s26, s40, 1")
    a("s_lshl_b32 s26, s26, 3")
    a(f"s_add_u32 s26, s26, s{sXCD}")
    make_srd(a, 36, pWS, AB_OFF, AB_SIZE)
    a(f"s_cmp_ge_u32 s{sWAVE}, 5")
    a("s_cbranch_scc1 L_fold_skip")
    make_srd(a, 28, pBX, 0, X_SIZE)
    a("s_lshr_b32 s42, s26, 1")
    a("s_lshl_b32 s42, s42, 5")
    a("s_and_b32 s43, s26, 1")
    a("s_add_u32 s42, s42, s43")
    a("v_lshrrev_b32 v2, 3, v1")
    a("v_and_b32 v3, 7, v1")
    a("v_lshl_add_u32 v4, v2, 1, s42")
    a("v_mul_u32_u24 v5, 1280, v4")
    a("v_lshlrev_b32 v6, 4, v3")
    a("v_add_u32 v10, v5, v6")
    a("v_sub_u32 v7, v6, v5")
    a(f"s_lshl_b32 s44, s27, 1")
    a(f"s_add_u32 s44, s44, s{sWAVE}")
    a("s_cmp_ge_u32 s44, 5")
    a("s_cselect_b32 s45, 5, 0")
    a("s_sub_u32 s44, s44, s45")
    a("s_lshl_b32 s44, s44, 7")
    a("s_add_u32 s45, s44, 20480")
    a(f"v_add_u32 v11, {2048*1280}, v7")
    a(f"v_add_u32 v12, {1024*1280}, v7")
    a("v_cmp_ne_u32 vcc, 0, v4")
    a(f"v_mov_b32 v8, {HUGE}")
    a(f"v_add_u32 v9, {1024*1280}, v10")
    a("v_cndmask_b32 v13, v8, v9, vcc")
    LD = 32
    for hf in range(2):
        for r in range(4): a(f"buffer_load_dwordx4 {vr(LD+8*r+4*hf,4)}, v{10+r}, s[28:31], s44 offen offset:{640*hf}")
    a("v_subrev_u32 v11, 20480, v11")
    a("v_subrev_u32 v12, 20480, v12")
    for hf in range(2):
        for r, (vv, so) in enumerate([(10, 45), (11, 44), (12, 44), (9, 45)]):
            a(f"buffer_load_dwordx4 {vr(LD+32+8*r+4*hf,4)}, v{vv}, s[28:31], s{so} offen offset:{640*hf}")
    XL = 96
    a("s_cmp_lg_u32 s26, 0")
    a("s_cbranch_scc1 L_fold_nx")
    a(f"v_add_u32 v14, {512*1280}, v6")
    a(f"v_add_u32 v15, {1536*1280}, v6")
    a("v_cndmask_b32 v14, v14, v8, vcc")
    a("v_cndmask_b32 v15, v15, v8, vcc")
    for r in range(2):
        for hf in range(2):
            a(f"buffer_load_dwordx4 {vr(XL+8*r+4*hf,4)}, v{14+r}, s[28:31], s44 offen offset:{640*hf}")
    a("L_fold_nx:")
    a("v_and_b32 v5, 3, v2")
    a("v_lshrrev_b32 v4, 2, v2")
    a("v_lshl_or_b32 v5, v4, 3, v5")
    a("v_xor_b32 v5, v5, v3")
    a("v_and_b32 v4, 1, v3")
    a("v_lshl_add_u32 v5, v4, 5, v5")
    a("v_lshlrev_b32 v5, 4, v5")
    a("v_lshrrev_b32 v4, 1, v3")
    a("v_lshl_add_u32 v5, v4, 10, v5")
    a("s_lshl_b32 s45, s44, 5")
    a("v_add_u32 v16, s45, v5")
    a("v_xor_b32 v18, 64, v16")
    a("v_add_u32 v5, s44, v6")
    a("v_add_u32 v17, 40960, v5")
    a("v_lshlrev_b32 v6, 4, v1")
    a("v_add_u32 v6, 43008, v6")
    a("v_cndmask_b32 v17, v17, v6, vcc")
    a("L_fold_skip:")
    a("v_and_b32 v2, 31, v1")
    a("v_lshrrev_b32 v3, 5, v1")
    a("v_lshlrev_b32 v15, 4, v1")
    a(f"s_lshr_b32 s40, s{sWAVE}, 1")
    a("s_add_u32 s40, s40, 2")
    a(f"s_and_b32 s41, s{sWAVE}, 1")
    a(f"s_cmp_lt_u32 s{sWAVE}, 4")
    a(f"s_cselect_b32 s49, s{sWAVE}, s40")
    a("s_cselect_b32 s50, 0, s41")
    a("s_lshl_b32 s54, s49, 6")
    a("s_add_u32 s54, s54, s27")
    a("v_lshl_add_u32 v4, v2, 1, s54")
    AU = 10; SB = [[176, 184], [192, 200]]; HB = [[208, 212], [216, 220]]; UB = [72, 84, 96, 108]; ACC3 = [224, 240, 32]; PH = 112
    a("s_mul_i32 s52, s50, 20480")
    for jj in range(4):
        a(f"v_xor_b32 v5, {2*jj}, v3")
        a("v_xor_b32 v5, v5, v2")
        a("v_lshl_add_u32 v5, v3, 5, v5")
        a("v_lshlrev_b32 v5, 4, v5")
        a(f"v_add_u32 v5, {jj*1024}, v5")
        a(f"v_add_u32 v{AU+jj}, s52, v5")
    a(f"v_lshlrev_b32 v{AU+4}, 4, v3")
    a(f"v_add_u32 v{AU+4}, 40960, v{AU+4}")
    a(f"s_mov_b32 s52, {f32bits(1.0/640)}")
    a("s_cmp_lg_u32 s50, 0")
    a("s_cselect_b32 s53, 0x3e800000, 0")
    a("v_lshlrev_b32 v5, 3, v3")
    a("v_mul_u32_u24 v5, v4, v5")
    a("v_cvt_f32_u32 v5, v5")
    a("v_cvt_f32_u32 v4, v4")
    a("v_mul_f32 v6, 0x41800000, v4")
    for i in range(8):
        if i: a("v_add_f32 v5, v5, v4")
        a(f"v_mul_f32 v{PH+i}, s52, v5")
        a("v_sub_f32 v7, v5, v6")
        a(f"v_mul_f32 v{PH+8+i}, s52, v7")
    a("v_mul_f32 v6, s52, v6")
    a("v_fract_f32 v6, v6")
    for i in range(16): a(f"v_fract_f32 v{PH+i}, v{PH+i}")
    a("v_cos_f32 v19, v6")
    for i in range(16): a(f"v_sin_f32 v{SB[1][0]+i}, v{PH+i}")
    for i in range(16): a(f"v_subrev_f32 v{PH+i}, s53, v{PH+i}")
    for i in range(16): a(f"v_cos_f32 v{SB[0][0]+i}, v{PH+i}")
    a("v_add_f32 v19, v19, v19")
    for r in range(32): a(f"v_mov_b32 v{224+r}, 0")
    def cvts(jb, g): return [f"v_cvt_pk_bf16_f32 v{HB[jb][g]+d}, v{SB[jb][g]+2*d}, v{SB[jb][g]+2*d+1}" for d in range(4)]
    def rot(jb, cur): return [f"v_fma_f32 v{SB[jb][cur^1]+i}, v19, v{SB[jb][cur]+i}, -v{SB[jb][cur^1]+i}" for i in range(8)]
    for x in cvts(0, 0) + cvts(1, 0): a(x)
    a(f"s_cmp_lt_u32 s{sWAVE}, 5")
    a("s_cbranch_scc1 L_fold_go")
    if not OPT.get('sw2'):
        side_work(a)
        side_work_finish(a)
    a("s_branch L_fold_done")
    a("L_fold_go:")
    a("s_cmp_lg_u32 s27, 0")
    a("s_cselect_b32 s46, -1.0, 1.0")
    a("s_mov_b32 s47, s46")
    a("s_mov_b32 s48, 0xffff0000")
    T = 112; R = 144; H = 20
    ng = "neg_lo:[0,1] neg_hi:[0,1]"
    def dfold(src, dst):
        for d in range(4):
            a(f"v_lshlrev_b32 v{dst+2*d}, 16, v{src+d}")
            a(f"v_and_b32 v{dst+2*d+1}, s48, v{src+d}")
            a(f"v_lshlrev_b32 v{H+2*(d&1)}, 16, v{src+4+d}")
            a(f"v_and_b32 v{H+2*(d&1)+1}, s48, v{src+4+d}")
            a(f"v_pk_fma_f32 {vr(dst+2*d,2)}, {vr(H+2*(d&1),2)}, s[46:47], {vr(dst+2*d,2)}")
    for n in range(2):
        a("s_waitcnt vmcnt(%d)" % (8 if n == 0 else 0))
        if n == 0: stamp(a, 9)
        b = LD + 32*n
        for r in range(4): dfold(b + 8*r, T + 8*r)
        for d in range(4):
            p = lambda r: vr(T+8*r+2*d, 2)
            q = lambda r: vr(R+8*r+2*d, 2)
            a(f"v_pk_add_f32 {q(0)}, {p(0)}, {p(1)}")
            a(f"v_pk_add_f32 {q(1)}, {p(0)}, {p(1)} {ng}")
            a(f"v_pk_add_f32 {q(2)}, {p(2)}, {p(3)}")
            a(f"v_pk_add_f32 {q(3)}, {p(2)}, {p(3)} {ng}")
            a(f"v_pk_add_f32 {p(0)}, {q(0)}, {q(2)}")
            a(f"v_pk_add_f32 {p(1)}, {q(0)}, {q(2)} {ng}")
            a(f"v_pk_add_f32 {p(2)}, {q(1)}, {q(3)} {ng}")
            a(f"v_pk_add_f32 {p(3)}, {q(1)}, {q(3)}")
        if n == 0:
            a("s_cmp_lg_u32 s26, 0")
            a("s_cbranch_scc1 L_fold_sp")
            a("s_waitcnt vmcnt(0)")
            dfold(XL, R); dfold(XL + 8, R + 8)
            for d in range(4):
                a(f"v_pk_add_f32 {vr(R+16+2*d,2)}, {vr(R+2*d,2)}, {vr(R+8+2*d,2)}")
                a(f"v_pk_add_f32 {vr(R+2*d,2)}, {vr(R+2*d,2)}, {vr(R+8+2*d,2)} {ng}")
            for e in range(8): a(f"v_cndmask_b32 v{T+24+e}, v{R+e}, v{T+24+e}, vcc")
            for d in range(4): a(f"v_cvt_pk_bf16_f32 v{R+d}, v{R+16+2*d}, v{R+17+2*d}")
            a(f"ds_write_b128 v17, {vr(R,4)}")
            a("L_fold_sp:")
        for i in range(4):
            for d in range(4): a(f"v_cvt_pk_bf16_f32 v{b+4*i+d}, v{T+8*i+2*d}, v{T+8*i+2*d+1}")
            a(f"ds_write_b128 v{16+2*n}, {vr(b+4*i,4)} offset:{(i>>1)*20480 + (i&1)*256}")
    a("L_fold_done:")
    for r in range(16): a(f"v_mov_b32 v{32+r}, 0")
    a("s_waitcnt lgkmcnt(0)")
    stamp(a, 14)
    a("s_barrier")
    stamp(a, 2)
    make_srd(a, 28, pDBG, 0, 256)
    a("v_mov_b32 v16, 0")
    a("buffer_load_dwordx2 v[4:5], v16, s[28:31], 0 offen sc1")
    a("s_mul_i32 s42, s27, 6")
    a("s_add_u32 s42, s42, s49")
    a("s_cmp_gt_u32 s42, 10")
    a("s_cbranch_scc0 L_f1_go")
    a("s_waitcnt vmcnt(0)")
    a("s_branch L_prep_done")
    a("L_f1_go:")
    def ureads(j, kinds):
        jj = j & 3; o = (j >> 2) * 4096; b = UB[j & 3]; r = []
        for k in kinds:
            if k == 2: r.append(f"ds_read_b128 {vr(b+8,4)}, v{AU+4} offset:{j*32}")
            else: r.append(f"ds_read_b128 {vr(b+4*k,4)}, v{AU+jj} offset:{o + k*20480}")
        return r
    a("s_mov_b32 s45, 5")
    a("s_or_b32 s51, s26, s50")
    a("s_cmp_eq_u32 s51, 0")
    a("s_cselect_b32 s40, 1, 0")
    a(f"s_cmp_lt_u32 s{sWAVE}, 4")
    a("s_cselect_b32 s41, 2, 0")
    a("s_add_u32 s40, s40, s41")
    variants = [[0], [0, 2], [0, 1], [0, 1, 2]]
    for v in range(1, 4):
        a(f"s_cmp_eq_u32 s40, {v}")
        a(f"s_cbranch_scc1 L_f1_v{v}")
    for v, kinds in enumerate(variants):
        a(f"L_f1_v{v}:")
        nm = len(kinds)
        for x in ureads(0, kinds) + ureads(1, kinds): a(x)
        a(f"L_f1_loop{v}:")
        for jj in range(4):
            buf = jj & 1
            va = rot(0, buf) + cvts(0, buf ^ 1)
            if 1 in kinds: va = rot(0, buf) + rot(1, buf) + cvts(0, buf ^ 1) + cvts(1, buf ^ 1)
            rd = ureads(jj + 2, kinds)
            a(f"s_waitcnt lgkmcnt({nm})")
            a("s_nop 0")
            per = len(va) // nm
            for m, k in enumerate(kinds):
                d = vr(ACC3[k], 16)
                a(f"v_mfma_f32_32x32x16_bf16 {d}, {vr(UB[jj]+4*k,4)}, {vr(HB[k & 1][buf],4)}, {d}")
                a(rd[m])
                for x in va[per*m:per*m+per]: a(x)
        for r in range(4): a(f"v_add_u32 v{AU+r}, 4096, v{AU+r}")
        if 2 in kinds: a(f"v_add_u32 v{AU+4}, 128, v{AU+4}")
        a("s_sub_u32 s45, s45, 1")
        a("s_cmp_lg_u32 s45, 0")
        a(f"s_cbranch_scc1 L_f1_loop{v}")
        if v < 3: a("s_branch L_f1_done")
    a("L_f1_done:")
    stamp(a, 5)
    a("s_mul_i32 s43, s42, 33")
    a("s_and_b32 s44, s26, 1")
    a("s_lshl_b32 s44, s44, 4")
    a("s_lshr_b32 s45, s26, 1")
    a("s_add_u32 s44, s44, s45")
    a("s_add_u32 s44, s44, s43")
    a(f"s_mul_i32 s45, s50, {22*33}")
    a("s_add_u32 s44, s44, s45")
    a("s_lshl_b32 s44, s44, 10")
    a("s_waitcnt vmcnt(0) lgkmcnt(0)")
    a("s_nop 5")
    for jb in range(2):
        b = ACC3[jb]
        if jb == 1:
            a(f"s_cmp_ge_u32 s{sWAVE}, 4")
            a("s_cbranch_scc1 L_f1_one")
        for r in range(8): a(f"v_cvt_pk_bf16_f32 v{b+r}, v{b+2*r}, v{b+2*r+1}")
        for hf in range(2):
            a(f"buffer_store_dwordx4 {vr(b+4*hf,4)}, v15, s[36:39], s44 offen sc1")
            a(f"s_add_u32 s44, s44, {11*33*1024}")
    a("L_f1_one:")
    a("s_cmp_lg_u32 s51, 0")
    a("s_cbranch_scc1 L_prep_done")
    b = ACC3[2]
    for r in range(4): a(f"v_cvt_pk_bf16_f32 v{b+r}, v{b+2*r}, v{b+2*r+1}")
    a("s_add_u32 s43, s43, 32")
    a("s_lshl_b32 s43, s43, 10")
    a(f"buffer_store_dwordx4 {vr(b,4)}, v15, s[36:39], s43 offen sc1")
    a("L_prep_done:")
    if OPT.get('sw2'):
        a(f"s_cmp_lt_u32 s{sWAVE}, 5")
        a("s_cbranch_scc1 L_prep_fin")
        side_work(a)
        side_work_finish(a)
        a("L_prep_fin:")
    a(f"v_readfirstlane_b32 s{sNON}, v4")
    a(f"v_readfirstlane_b32 s{sNON+1}, v5")
    a(f"s_cmp_lg_u32 s{sWAVE}, 4")
    a("s_cbranch_scc1 L_pr_nf")
    early_flags(a)
    a("L_pr_nf:")
    a(f"s_cmp_lg_u32 s{sNON}, 0")
    a("s_cbranch_scc1 L_A_done")
    get_nonce(a, 2)

W_PROG, W_GO, W_CNT, W_PASS, W_XCH, W_NON = 0, 4, 8, 16, 32, 48
def attn_ids(a):
    a(f"s_lshr_b32 s26, s{sXCD}, 1")
    a("s_lshl_b32 s26, s26, 3")
    a(f"s_and_b32 s27, s{sSLOT}, 7")
    a("s_add_u32 s26, s26, s27")
    a(f"s_and_b32 s27, s{sXCD}, 1")
    a("s_lshl_b32 s27, s27, 2")
    a(f"s_lshr_b32 s40, s{sSLOT}, 3")
    a("s_add_u32 s27, s27, s40")

def kv_flags(a):
    a("s_lshr_b32 s41, s26, 3")
    a("s_lshl_b32 s41, s41, 1")
    a(f"s_and_b32 s43, s{sXCD}, 1")
    a("s_lshl_b32 s43, s43, 3")
    a("s_lshl_b32 s42, s27, 1")
    a("v_and_b32 v3, 15, v1")
    a("v_lshrrev_b32 v5, 4, v1")
    a("v_add_u32 v5, 1, v5")
    a("v_and_b32 v4, 7, v1")
    a("v_add_u32 v4, s43, v4")
    a("v_bfe_u32 v6, v1, 3, 1")
    a("v_add_u32 v6, 1, v6")
    a("v_cmp_gt_u32 vcc, 32, v1")
    a("v_and_b32 v7, 1, v1")
    a("v_add_u32 v7, s42, v7")
    a("v_cndmask_b32 v3, v4, v3, vcc")
    a("v_cndmask_b32 v5, v6, v5, vcc")
    a("v_cmp_gt_u32 vcc, 48, v1")
    a("v_add_u32 v6, -48, v1")
    a(f"v_mov_b32 v4, {FL1}")
    a("v_cndmask_b32 v3, v7, v3, vcc")
    a("v_cndmask_b32 v5, 0, v5, vcc")
    a("v_cmp_gt_u32 vcc, 2, v6")
    a("v_cmp_gt_u32 s[46:47], 32, v1")
    a("v_and_b32 v7, 7, v3")
    a("v_lshl_add_u32 v5, v5, 3, v7")
    a("s_or_b64 vcc, vcc, s[46:47]")
    a("v_lshrrev_b32 v3, 3, v3")
    a("v_add_u32 v3, s41, v3")
    a("v_cndmask_b32 v4, v4, 0, vcc")
    a("v_lshl_add_u32 v5, v5, 3, v3")
    a("v_add_u32 v5, v5, v4")
    a("v_lshlrev_b32 v5, 7, v5")

def early_flags(a):
    if not OPT.get('apre', 1): return
    attn_ids(a)
    kv_flags(a)
    a("v_mov_b32 v20, v5")
    a(f"buffer_load_dwordx2 v[6:7], v5, {sr(sFL,4)}, 0 offen sc1")

def a_done(a):
    a("L_A_done:")
    stamp(a, 6)
    a(f"v_mov_b32 v23, {LDS_PROG}")
    a(f"s_cmp_lg_u32 s{sWAVE}, 4")
    a("s_cbranch_scc1 L_A_bar")
    a(f"v_mov_b32 v2, s{sNON}")
    a(f"v_mov_b32 v3, s{sNON+1}")
    a(f"ds_write_b64 v23, v[2:3] offset:{W_NON}")
    a("L_A_bar:")
    a("s_waitcnt lgkmcnt(0)")
    a("s_barrier")
    stamp(a, 4)
    attn_ids(a)
    a(f"s_cmp_ge_u32 s{sWAVE}, 4")
    a("s_cbranch_scc1 L_aux")

def drained(a, vt):
    a(f"v_mov_b32 v{vt}, 1")
    a("s_mov_b64 exec, 1")
    a(f"ds_add_u32 v23, v{vt} offset:{W_CNT}")
    a("s_mov_b64 exec, -1")

def attention(a):
    SL = OPT.get('slot', 1)
    AKA, AKB, AV, AKB2 = 4, 5, 168, 172
    AREGS = [AKA, AV, AV+1, AV+2, AV+3] + ([AKB2, AKB2+1] if SL else [AKB])
    QA = [8, 14]
    NEG = [32, 48]; S = [64, 80]; O = [96, 112]; P = 128
    KB = [136, 142]; VB = [148, 156]
    PR = 164
    a("L_attn:")
    a(f"ds_read_b32 v24, v23 offset:{W_GO}")
    a(f"ds_read_b64 v[26:27], v23 offset:{W_NON}")
    a(f"s_setprio {OPT.get('pattn', 2)}")
    a(f"s_mul_i32 s40, s26, {Q_HEAD}")
    a(f"s_add_u32 s40, s40, {Q_OFF}")
    make_srd(a, 28, pWS, "s40", Q_HEAD)
    a(f"s_mul_i32 s40, s26, {KV_HEAD}")
    make_srd(a, 32, pWS, "s40", KV_HEAD)
    a("v_and_b32 v2, 31, v1")
    a("v_lshrrev_b32 v3, 5, v1")
    a(f"v_lshlrev_b32 v{AKA}, 4, v1")
    a(f"v_lshlrev_b32 v{AKB}, 3, v2")
    a(f"v_add_u32 v{AKB}, 1024, v{AKB}")
    a(f"v_mov_b32 v20, {HUGE}")
    a("v_cmp_gt_u32 vcc, 32, v1")
    a("s_lshl_b32 s41, s27, 3")
    a(f"s_lshl_b32 s42, s{sWAVE}, 1")
    a("s_add_u32 s41, s41, s42")
    a(f"v_cndmask_b32 v20, v20, v{AKB}, vcc")
    a(f"s_mul_i32 s42, s41, {TQ}")
    a("v_and_b32 v21, 28, v2")
    a("v_add_u32 v21, v21, v2")
    a("v_lshl_add_u32 v21, v3, 2, v21")
    a("v_lshlrev_b32 v21, 4, v21")
    a("v_add_u32 v29, 1280, v21")
    a("s_mov_b32 s48, 0x000fffff")
    a("s_mov_b32 s49, 0x000fffff")
    a("s_mov_b32 s52, 0x07060302")
    a("s_waitcnt lgkmcnt(0)")
    a("v_readfirstlane_b32 s47, v24")
    a(f"v_readfirstlane_b32 s{sNON}, v26")
    a(f"v_readfirstlane_b32 s{sNON+1}, v27")
    a("s_mov_b32 s50, s47")
    a("s_cmp_lg_u32 s47, 0")
    a("s_cbranch_scc1 L_attn_go")
    a("s_waitcnt vmcnt(0)")
    stamp(a, 3)
    drained(a, 24)
    a("L_attn_spin:")
    a(f"s_sleep {OPT.get('asl', 1)}")
    a(f"ds_read_b32 v24, v23 offset:{W_GO}")
    a("s_waitcnt lgkmcnt(0)")
    a("v_readfirstlane_b32 s47, v24")
    a("s_nop 0")
    a("s_cmp_eq_u32 s47, 0")
    a("s_cbranch_scc1 L_attn_spin")
    a("L_attn_go:")
    stamp(a, 7); stamp(a, 7, 2); stamp_real(a, 8, 2)
    a("s_sub_u32 s47, s47, 1")
    a(f"s_mul_i32 s47, s47, {4*TKV}")
    for q in range(2):
        a(f"buffer_load_dwordx4 {vr(QA[q],4)}, v{AKA}, s[28:31], s42 offen offset:{q*TQ} sc1")
        a(f"buffer_load_dwordx2 {vr(QA[q]+4,2)}, v20, s[28:31], s42 offen offset:{q*TQ} sc1")
    a(f"buffer_load_dwordx4 {vr(KB[0],4)}, v{AKA}, s[32:35], s47 offen sc1")
    if SL:
        for b in KB:
            a(f"v_mov_b32 v{b+4}, 0x3f803f80")
            a(f"v_mov_b32 v{b+5}, 0x3f80")
        a("s_mov_b32 exec_hi, 0")
    a(f"buffer_load_dwordx2 {vr(KB[0]+4,2)}, v{AKB}, s[32:35], s47 offen sc1")
    if SL: a("s_mov_b64 exec, -1")
    a("v_mov_b32 v24, 0x3f803f80")
    a("v_cmp_eq_u32 vcc, 20, v2")
    a(f"s_add_u32 s43, s47, {TKV}")
    a("s_nop 0")
    a("v_cndmask_b32 v24, 0, v24, vcc")
    for r in range(16): a(f"v_mov_b32 v{VB[0]+r}, v24")
    a(f"buffer_load_dwordx4 {vr(KB[1],4)}, v{AKA}, s[32:35], s43 offen sc1")
    if SL: a("s_mov_b32 exec_hi, 0")
    a(f"buffer_load_dwordx2 {vr(KB[1]+4,2)}, v{AKB}, s[32:35], s43 offen sc1")
    a("s_mov_b64 exec, s[48:49]")
    a(f"buffer_load_dwordx4 {vr(VB[0],4)}, v29, s[32:35], s47 offen sc1")
    a(f"buffer_load_dwordx4 {vr(VB[0]+4,4)}, v29, s[32:35], s47 offen offset:640 sc1")
    a(f"buffer_load_dwordx4 {vr(VB[1],4)}, v29, s[32:35], s43 offen sc1")
    a(f"buffer_load_dwordx4 {vr(VB[1]+4,4)}, v29, s[32:35], s43 offen offset:640 sc1")
    a("s_mov_b64 exec, -1")
    a("s_cmp_eq_u32 s50, 0")
    a("s_cbranch_scc1 L_attn_cnt")
    a("s_waitcnt vmcnt(12)")
    stamp(a, 3)
    drained(a, 24)
    a("L_attn_cnt:")
    a("v_mov_b32 v22, 5120")
    if OPT.get('zr', 1):
        a("v_cmp_lt_u32 vcc, 20, v2")
        a("v_mov_b32 v21, 5136")
        a("s_nop 0")
        a("v_cndmask_b32 v22, v22, v21, vcc")
    a("v_cmp_gt_u32 vcc, 20, v2")
    for i in range(4): a(f"v_add_u32 v{AV+i}, {(i>>1)*TKV + (i&1)*640}, v29")
    for i in range(4): a(f"v_cndmask_b32 v{AV+i}, v22, v{AV+i}, vcc")
    if SL:
        a("v_cmp_gt_u32 vcc, 32, v1")
        a("v_mov_b32 v22, 5152")
        a(f"v_add_u32 v21, {TKV}, v{AKB}")
        a(f"v_cndmask_b32 v{AKB2}, v22, v{AKB}, vcc")
        a(f"v_cndmask_b32 v{AKB2+1}, v22, v21, vcc")
    make_srd(a, 36, pWS, O_OFF, O_SIZE)
    for q in range(2):
        for r in range(16): a(f"v_mov_b32 v{O[q]+r}, 0")
    LOOPED = [False]
    mm16 = "v_mfma_f32_32x32x16_bf16"; mm8 = "v_mfma_f32_32x32x8_bf16"
    def M1(s, t, q, c): return "s_nop 1" if OPT.get('nom1') and c == "0" and LOOPED[0] else f"{mm16} {vr(s,16)}, {vr(KB[t&1],4)}, {vr(QA[q],4)}, {c}"
    def M2(s, t, q): return "s_nop 0" if OPT.get('nom2') and LOOPED[0] else f"{mm8} {vr(s,16)}, {vr(KB[t&1]+4,2)}, {vr(QA[q]+4,2)}, {vr(s,16)}"
    def M3(t, q): return "s_nop 1" if OPT.get('nopv') else f"{mm16} {vr(O[q],16)}, {vr(VB[t&1],4)}, {vr(P,4)}, {vr(O[q],16)}"
    def M4(t, q): return "s_nop 1" if OPT.get('nopv') else f"{mm16} {vr(O[q],16)}, {vr(VB[t&1]+4,4)}, {vr(P+4,4)}, {vr(O[q],16)}"
    def rowmax(src, dst, first):
        if first:
            a(f"v_max3_f32 v{dst}, v{src}, v{src+1}, v{src+2}")
            a(f"v_max_f32 v{dst}, v{dst}, v{src+15}")
            rng = range(3, 15, 2)
        else: rng = range(0, 16, 2)
        for r in rng: a(f"v_max3_f32 v{dst}, v{dst}, v{src+r}, v{src+r+1}")
    def finish_neg(add):
        a("v_mov_b32 v26, v24")
        a("v_mov_b32 v27, v25")
        a("s_nop 1")
        a("v_permlane32_swap_b32 v24, v26")
        a("v_permlane32_swap_b32 v25, v27")
        a("s_nop 1")
        a("v_max_f32 v24, v24, v26")
        a("v_max_f32 v25, v25, v27")
        if not SL:
            for q in range(2):
                a(f"v_sub_f32 v{NEG[q]}, {add}, v{24+q}")
                for r in range(1, 16): a(f"v_mov_b32 v{NEG[q]+r}, v{NEG[q]}")
            return
        a("s_mov_b32 s45, 0xffff0000")
        a("s_mov_b32 s46, 0x07060302")
        for q in range(2):
            a(f"v_sub_f32 v{24+q}, {add}, v{24+q}")
        for q in range(2):
            a(f"v_and_b32 v26, s45, v{24+q}")
            a(f"v_sub_f32 v27, v{24+q}, v26")
            a("v_and_b32 v28, s45, v27")
            a("v_sub_f32 v27, v27, v28")
            a("v_perm_b32 v26, v28, v26, s46")
            a("v_lshrrev_b32 v27, 16, v27")
            a("s_mov_b32 exec_lo, 0")
            a(f"v_mov_b32 v{QA[q]+4}, v26")
            a(f"v_mov_b32 v{QA[q]+5}, v27")
            a("s_mov_b64 exec, -1")
        a("s_nop 1")
    CNEG = lambda q: "0" if SL else vr(NEG[q], 16)
    a("s_waitcnt vmcnt(6)")
    stamp(a, 8)
    def neg_one(q, add):
        a(f"v_mov_b32 v26, v{24+q}")
        a("s_nop 1")
        a(f"v_permlane32_swap_b32 v{24+q}, v26")
        a("s_nop 0")
        a(f"v_max_f32 v{24+q}, v{24+q}, v26")
        a(f"v_sub_f32 v{24+q}, {add}, v{24+q}")
        a(f"v_and_b32 v26, s45, v{24+q}")
        a(f"v_sub_f32 v27, v{24+q}, v26")
        a("v_and_b32 v28, s45, v27")
        a("v_sub_f32 v27, v27, v28")
        a("s_mov_b32 exec_lo, 0")
        a(f"v_perm_b32 v{QA[q]+4}, v28, v26, s46")
        a(f"v_lshrrev_b32 v{QA[q]+5}, 16, v27")
        a("s_mov_b64 exec, -1")
    OFFS = hex(f32bits(-float(OPT.get('off', 100))))
    a(M1(S[0], 0, 0, "0")); a(M2(S[0], 0, 0))
    a(M1(S[1], 0, 1, "0")); a(M2(S[1], 0, 1))
    a("s_mov_b32 s45, 0xffff0000")
    a("s_mov_b32 s46, 0x07060302")
    a(f"ds_read_b32 v{PR}, v23")
    a("s_nop 6")
    rowmax(S[0], 24, True)
    neg_one(0, OFFS)
    a("s_nop 0")
    a(M1(S[0], 0, 0, CNEG(0)))
    a(M2(S[0], 0, 0))
    rowmax(S[1], 25, True)
    neg_one(1, OFFS)
    a("s_waitcnt vmcnt(0)")
    def check(need):
        l = a.label("L_chk"); ok = a.label("L_chkok")
        a(f"{l}:")
        a("s_waitcnt lgkmcnt(0)")
        a(f"v_readfirstlane_b32 s44, v{PR}")
        a("s_nop 0")
        a(f"s_cmp_ge_u32 s44, {need}")
        a(f"s_cbranch_scc1 {ok}")
        a(f"ds_read_b32 v{PR}, v23")
        a(f"s_branch {l}")
        a(".p2align 3")
        a(f"{ok}:")
    def unit(t, q, s4=(), s1=(), s2=(), s3=(), first=False, nonext=False):
        s = S[q]; sn = S[q ^ 1]
        t1, q1 = (t, 1) if q == 0 else (t + 1, 0)
        tp, qp = (t - 1, 1) if q == 0 else (t, 0)
        E = lambda r: a(f"v_exp_f32 v{s+r}, v{s+r}")
        C = lambda j: a(f"v_perm_b32 v{P+j}, v{s+2*j+1}, v{s+2*j}, s52" if OPT.get('perm') else f"v_cvt_pk_bf16_f32 v{P+j}, v{s+2*j}, v{s+2*j+1}")
        al = OPT.get('al', 0)
        EW = lambda r: a(f"v_exp_f32_e64 v{s+r}, v{s+r}") if al else E(r)
        odd = lambda xs: sum(1 for x in xs if x.startswith("s_")) & 1
        E(0); E(1)
        if not first: a(M4(tp, qp))
        for x in s4: a(x)
        (E if odd(s4) else EW)(2); E(3); E(4)
        if not nonext: a(M1(sn, t1, q1, CNEG(q1)))
        for x in s1: a(x)
        EW(5); E(6); E(7)
        for j in range(4): C(j)
        if not nonext: a(M2(sn, t1, q1))
        for x in s2: a(x)
        EW(8)
        for r in range(9, 13): E(r)
        a(M3(t, q))
        for x in s3: a(x)
        (E if odd(s3) else EW)(13); E(14); E(15)
        for j in range(4, 8): C(j)
    def period(t, o, extra3=()):
        if OPT.get('nods') and LOOPED[0]: o = None
        if o is None:
            if extra3:
                unit(t, 1, s4=["s_waitcnt lgkmcnt(0)"]); unit(t + 1, 0, s3=extra3); return
            unit(t, 1, s4=["s_waitcnt lgkmcnt(0)"]); unit(t + 1, 0); return
        kb = KB[t & 1]; vb = VB[t & 1]
        ok = lds_tile(o + 2); ov = (o >> 1) * LPAIR; av = AV + 2*(o & 1)
        unit(t, 1, s4=["s_waitcnt lgkmcnt(0)"],
             s1=[f"ds_read_b128 {vr(kb,4)}, v{AKA} offset:{ok}"],
             s3=[f"ds_read_b64 {vr(kb+4,2)}, v{AKB2+(o&1)} offset:{ov}" if SL else f"ds_read_b64 {vr(kb+4,2)}, v{AKB} offset:{ok}"])
        unit(t + 1, 0, s4=[f"ds_read_b128 {vr(vb,4)}, v{av} offset:{ov}"],
             s1=[f"ds_read_b128 {vr(vb+4,4)}, v{av+1} offset:{ov}"], s3=extra3)
    rdp = [f"ds_read_b32 v{PR}, v23"]
    a(".p2align 3")
    unit(0, 0, first=True)
    stamp(a, 9)
    check(1)
    for t in range(6):
        if t == 2: check(2)
        period(t, t, rdp if t in (1, 5) else ())
    for r in AREGS: a(f"v_add_u32 v{r}, {3*LPAIR}, v{r}")
    a(f"s_lshl_b32 s45, s{sWAVE}, 2")
    a("v_add_u32 v24, s45, v23")
    a(f"ds_write_b32 v24, v23 offset:{W_PASS}")
    a("s_mov_b32 s45, 2")
    a("s_mov_b32 s46, 7")
    stamp(a, 10); stamp(a, 10, 2); stamp_real(a, 12, 2)
    LOOPED[0] = True
    def body(chk):
        for k in range(8):
            ex = ()
            if k == 7: ex = (rdp if chk else [])
            if k == 6: ex = ["s_sub_u32 s46, s46, 1"]
            if k == 7 and not chk: ex = ["s_cmp_lg_u32 s46, 0"]
            period(k, k, ex)
        for r in AREGS: a(f"v_add_u32 v{r}, {4*LPAIR}, v{r}")
    a("s_cmp_eq_u32 s44, 16")
    a("s_cbranch_scc1 L_attn_fast")
    a(".p2align 3")
    a("L_attn_loop:")
    a("s_add_u32 s45, s45, 2")
    check("s45")
    body(True)
    a("s_cmp_eq_u32 s46, 0")
    a("s_cbranch_scc1 L_attn_last")
    a("s_cmp_lg_u32 s44, 16")
    a("s_cbranch_scc1 L_attn_loop")
    a(".p2align 3")
    a("L_attn_fast:")
    body(False)
    a("s_cbranch_scc1 L_attn_fast")
    a(".p2align 3")
    a("L_attn_last:")
    period(62, None)
    unit(63, 1, nonext=True)
    a("s_nop 1")
    a(M4(63, 1))
    stamp(a, 11); stamp(a, 11, 2); stamp_real(a, 13, 2)
    a("L_attn_post:")
    a("s_lshl_b32 s42, s41, 5")
    a("s_add_u32 s42, s42, s26")
    a("s_mul_i32 s42, s42, 1280")
    a("v_lshlrev_b32 v21, 4, v1")
    for q in range(2):
        a(f"v_mov_b32 v{24+q}, v{O[q]+8}")
        a(f"v_mov_b32 v26, v{O[q]+8}")
        a("s_nop 1")
        a(f"v_permlane32_swap_b32 v26, v{24+q}")
        a("s_nop 0")
        a(f"v_rcp_f32 v26, v{24+q}")
        a("s_nop 0")
        for r in range(12): a(f"v_mul_f32 v{S[q]+r}, v{O[q]+r}, v26")
        for r in range(6): a(f"v_cvt_pk_bf16_f32 v{S[q]+r}, v{S[q]+2*r}, v{S[q]+2*r+1}")
        a(f"buffer_store_dwordx4 {vr(S[q],4)}, v21, s[36:39], s42 offen sc1")
        a(f"buffer_store_dwordx2 {vr(S[q]+4,2)}, v20, s[36:39], s42 offen sc1")
        if q == 0: a(f"s_add_u32 s42, s42, {32*1280}")
    a("s_cmp_eq_u32 s46, 0")
    a("s_cbranch_scc0 L_attn_fin")
    for q in range(2):
        a(f"v_max3_f32 v{30+q}, abs(v{O[q]}), abs(v{O[q]+1}), abs(v{O[q]+2})")
        a(f"v_mul_f32 v{26+q}, 0, v{24+q}")
    for r in range(12):
        for q in range(2): a(f"v_fma_f32 v{26+q}, v{O[q]+r}, 0, v{26+q}")
    for q in range(2):
        a(f"v_max3_f32 v{30+q}, v{30+q}, abs(v{O[q]+3}), abs(v{O[q]+4})")
        a(f"v_max3_f32 v{30+q}, v{30+q}, abs(v{O[q]+5}), abs(v{O[q]+6})")
        a(f"v_max_f32 v{30+q}, v{30+q}, abs(v{O[q]+7})")
    a("v_max_f32 v24, v24, v25")
    a("v_min_f32 v30, v30, v31")
    a("v_mov_b32 v28, 0x76800000")
    a("v_mov_b32 v31, 0x08800000")
    a("v_cmp_u_f32 s[44:45], v26, v27")
    a("v_cmp_nlt_f32 vcc, v24, v28")
    a("v_cmp_lt_f32 s[50:51], v30, v31")
    a("s_nop 1")
    a("s_or_b64 vcc, vcc, s[44:45]")
    a("s_or_b64 vcc, vcc, s[50:51]")
    if OPT.get('forcefb'): a("s_mov_b64 vcc, -1")
    a("s_cbranch_vccnz L_attn_fallback")
    a("L_attn_fin:")
    if OPT.get('apoll', 0): prod_flags(a, 12, 13)
    a("s_lshl_b32 s40, s2, 2")
    a(f"s_add_u32 s40, s40, s{sWAVE}")
    a(f"s_add_u32 s40, s40, {FB}")
    a("s_lshl_b32 s40, s40, 7")
    for i in range(4): a(f"v_mov_b32 v{8+i}, s{sNON+(i&1)}")
    a("s_waitcnt vmcnt(0)")
    stamp(a, 12)
    a("s_mov_b64 exec, %s" % ("1" if OPT.get('f16') or OPT.get('fat') else "0xff"))
    if OPT.get('fat'): a(f"buffer_atomic_swap_x2 v[8:9], v21, {sr(sFL,4)}, s40 offen" + (" sc1" if OPT['fat'] == 2 else ""))
    elif OPT.get('fnt'): a(f"buffer_store_dwordx4 v[8:11], v21, {sr(sFL,4)}, s40 offen sc0 sc1")
    else: a(f"buffer_store_dwordx4 v[8:11], v21, {sr(sFL,4)}, s40 offen sc1")
    a("s_mov_b64 exec, -1")
    a("s_barrier")
    if OPT.get('apoll', 0):
        a(f"s_cmp_lg_u32 s{sWAVE}, 0")
        a("s_cbranch_scc1 L_end")
        if OPT.get('apoll', 0) > 1: poll_piped(a, 12, 14, OPT.get('apoll', 0))
        else: poll(a, 12, 14, sleep=0)
        a("s_barrier")
    a("s_branch L_end")
    a("L_attn_fallback:")
    a("s_waitcnt vmcnt(0)")
    for r in ((AKA,) if SL else (AKA, AKB)): a(f"v_subrev_u32 v{r}, {31*LPAIR}, v{r}")
    if SL:
        a("s_mov_b32 exec_lo, 0")
        for q in range(2):
            a(f"v_mov_b32 v{QA[q]+4}, 0")
            a(f"v_mov_b32 v{QA[q]+5}, 0")
        a("s_mov_b64 exec, -1")
    a("v_mov_b32 v24, 0xff800000")
    a("v_mov_b32 v25, 0xff800000")
    a("s_mov_b32 s46, 0")
    a("L_fb_max:")
    a(f"buffer_load_dwordx4 {vr(KB[0],4)}, v{AKA}, s[32:35], s46 offen sc1")
    if SL: a("s_mov_b32 exec_hi, 0")
    a(f"buffer_load_dwordx2 {vr(KB[0]+4,2)}, v{AKB}, s[32:35], s46 offen sc1")
    if SL: a("s_mov_b64 exec, -1")
    a("s_waitcnt vmcnt(0)")
    for q in range(2): a(M1(S[q], 0, q, "0"))
    for q in range(2): a(M2(S[q], 0, q))
    a("s_nop 15")
    rowmax(S[0], 24, False)
    rowmax(S[1], 25, False)
    a(f"s_add_u32 s46, s46, {TKV}")
    a(f"s_cmp_lt_u32 s46, {KV_HEAD}")
    a("s_cbranch_scc1 L_fb_max")
    finish_neg("0")
    for q in range(2):
        for r in range(16): a(f"v_mov_b32 v{O[q]+r}, 0")
    a("s_mov_b32 s46, 0")
    a("L_fb_main:")
    a(f"buffer_load_dwordx4 {vr(KB[0],4)}, v{AKA}, s[32:35], s46 offen sc1")
    if SL: a("s_mov_b32 exec_hi, 0")
    a(f"buffer_load_dwordx2 {vr(KB[0]+4,2)}, v{AKB}, s[32:35], s46 offen sc1")
    if SL: a("s_mov_b64 exec, -1")
    a("s_mov_b64 exec, s[48:49]")
    a(f"buffer_load_dwordx4 {vr(VB[0],4)}, v29, s[32:35], s46 offen sc1")
    a(f"buffer_load_dwordx4 {vr(VB[0]+4,4)}, v29, s[32:35], s46 offen offset:640 sc1")
    a("s_mov_b64 exec, -1")
    a("s_waitcnt vmcnt(0)")
    for q in range(2): a(M1(S[q], 0, q, CNEG(q)))
    for q in range(2): a(M2(S[q], 0, q))
    a("s_nop 15")
    for q in range(2):
        for r in range(16): a(f"v_exp_f32 v{S[q]+r}, v{S[q]+r}")
        a("s_nop 0")
        for j in range(8): a(f"v_cvt_pk_bf16_f32 v{P+j}, v{S[q]+2*j}, v{S[q]+2*j+1}")
        a("s_nop 1")
        a(M3(0, q)); a(M4(0, q))
    a(f"s_add_u32 s46, s46, {TKV}")
    a(f"s_cmp_lt_u32 s46, {KV_HEAD}")
    a("s_cbranch_scc1 L_fb_main")
    a("s_nop 15")
    a("s_branch L_attn_post")

def aux(a):
    a("L_aux:")
    a(f"s_setprio {OPT.get('paux', 0)}")
    a(f"s_sub_u32 s44, s{sWAVE}, 4")
    a("v_lshlrev_b32 v2, 4, v1")
    a("s_waitcnt vmcnt(0)")
    drained(a, 3)
    a("s_cmp_eq_u32 s44, 0")
    a("s_cbranch_scc1 L_kv")
    a("s_cmp_lg_u32 s44, 1")
    a("s_cbranch_scc1 L_aux_wait")
    a("s_lshl_b32 s40, s2, 7")
    a("L_cnt_spin:")
    a(f"s_sleep {OPT.get('asl', 1)}")
    a(f"ds_read_b32 v3, v23 offset:{W_CNT}")
    a("s_waitcnt lgkmcnt(0)")
    a("v_readfirstlane_b32 s41, v3")
    a("s_nop 0")
    a("s_cmp_lt_u32 s41, 8")
    a("s_cbranch_scc1 L_cnt_spin")
    stamp(a, 7)
    set_flag(a, 40, 8, also=FL1*128 if OPT.get('lf', 1) else None)
    a("L_aux_wait:")
    a(f"s_sleep {OPT.get('wsl', 16)}")
    a(f"ds_read_b32 v3, v23 offset:{W_PROG}")
    a("s_waitcnt lgkmcnt(0)")
    a("v_readfirstlane_b32 s41, v3")
    a("s_nop 0")
    a(f"s_cmp_lt_u32 s41, {OPT.get('f2w', 6)}")
    a("s_cbranch_scc1 L_aux_wait")
    if OPT.get('dyn', 1):
        a("s_cmp_lg_u32 s44, 1")
        a("s_cbranch_scc1 L_kv_done")
        make_srd(a, 28, pDBG, 0, 256)
        a("v_mov_b32 v3, 1")
        a("v_mov_b32 v4, 128")
        a("s_mov_b64 exec, 1")
        a("buffer_atomic_add v3, v4, s[28:31], 0 offen sc0")
        a("s_waitcnt vmcnt(0)")
        a("v_add_u32 v3, 1, v3")
        a("ds_write_b32 v23, v3 offset:12")
        a("s_mov_b64 exec, -1")
    a("s_branch L_kv_done")
    a("L_kv:")
    a(f"s_mul_i32 s40, s26, {KV_HEAD}")
    make_srd(a, 28, pWS, "s40", KV_HEAD)
    a(f"v_mul_u32_u24 v6, {LPAIR}, v1")
    a("v_min_u32 v6, %d, v6" % (30*LPAIR))
    for r in range(4): a(f"v_mov_b32 v{8+r}, 0x3f803f80")
    a("ds_write_b128 v6, v[8:11] offset:5120")
    for r in range(4): a(f"v_mov_b32 v{12+r}, 0")
    a("ds_write_b128 v6, v[12:15] offset:5136")
    a("v_mov_b32 v16, 0x3f803f80")
    a("v_mov_b32 v17, 0x3f80")
    a("ds_write_b64 v6, v[16:17] offset:5152")
    if OPT.get('apre', 1):
        a(f"s_and_b32 s43, s{sXCD}, 1")
        a("s_lshl_b32 s43, s43, 3")
        a("v_mov_b32 v5, v20")
    else: kv_flags(a)
    def poll_once(first=False):
        if first and OPT.get('lf', 1):
            a("s_and_b32 s48, s40, 7")
            a("s_cmp_eq_u32 s48, 0")
            a("s_cselect_b32 exec_lo, -1, 0")
            a("s_cselect_b32 exec_hi, -1, 0xcffff")
        a(f"buffer_load_dwordx2 v[6:7], v5, {sr(sFL,4)}, 0 offen sc1")
        if first and OPT.get('lf', 1): a("s_mov_b64 exec, -1")
        a("s_waitcnt vmcnt(0)")
        a(f"v_cmp_eq_u64 vcc, {sr(sNON,2)}, v[6:7]")
        a("s_sub_u32 s40, s40, 1")
        a("s_cselect_b32 s47, 0xffff, 0")
        a("s_and_b32 s48, vcc_hi, 0xff")
        a("s_lshl_b32 s48, s48, s43")
        a("s_or_b32 s48, s48, vcc_lo")
        a("s_bfe_u32 s49, vcc_hi, 0x80008")
        a("s_lshl_b32 s49, s49, s43")
        a("s_lshr_b32 s45, vcc_lo, 16")
        a("s_or_b32 s45, s45, s49")
        a("s_and_b32 s45, s45, s48")
        a("s_or_b32 s45, s45, s47")
    def pub(off, sreg):
        a(f"v_mov_b32 v4, s{sreg}")
        a(f"ds_write_b32 v23, v4 offset:{off}")
    a(f"s_mov_b32 s40, {POLL_MAX - 1}")
    a("v_mov_b32 v6, 0")
    a("v_mov_b32 v7, 0")
    if OPT.get('padgo'):
        a("L_padgo:")
        a("s_memrealtime s[42:43]")
        a("s_waitcnt lgkmcnt(0)")
        a(f"s_sub_u32 s42, s42, s{sNON}")
        a(f"s_cmp_lt_u32 s42, {OPT['padgo']}")
        a("s_cbranch_scc1 L_padgo")
    a("L_kv_p1:")
    a(f"s_sleep {OPT.get('ksl', 1)}")
    poll_once(True)
    a("s_cmp_lg_u32 s47, 0")
    a("s_cbranch_scc1 L_kv_first")
    a("s_lshr_b32 s48, vcc_hi, 16")
    a("s_lshr_b32 s49, vcc_hi, 18")
    a("s_or_b32 s48, s48, s49")
    a("s_and_b32 s48, s48, 3")
    a("s_cmp_eq_u32 s48, 3")
    a("s_cselect_b32 s48, s45, 0")
    a("s_cmp_eq_u32 s48, 0")
    a("s_cbranch_scc1 L_kv_p1")
    a("L_kv_first:")
    a("s_ff1_i32_b32 s48, s45")
    a("s_add_u32 s49, s48, 1")
    pub(W_GO, 49)
    stamp(a, 7)
    a("s_lshl_b32 s46, 1, s48")
    a(f"s_mul_i32 s48, s48, {4*TKV}")
    a(f"s_add_u32 s48, s48, {2*TKV}")
    for i in range(5):
        a(f"s_mov_b32 m0, {i*1024}")
        a("s_nop 0")
        a("buffer_load_dwordx4 v2, s[28:31], s48 offen sc1 lds")
        if i < 4: a("s_add_u32 s48, s48, 1024")
    a("s_mov_b32 s50, 1")
    a(f"s_mov_b32 s51, {LPAIR}")
    a("L_kv_next:")
    a("s_andn2_b32 s48, s45, s46")
    a("s_cbranch_scc0 L_kv_poll")
    a("s_ff1_i32_b32 s48, s48")
    a("s_bitset1_b32 s46, s48")
    a(f"s_mul_i32 s48, s48, {4*TKV}")
    for i in range(10):
        a(f"s_add_u32 m0, s51, {i*1024 + (64 if i >= 5 else 0)}")
        if i: a("s_add_u32 s48, s48, 1024")
        else: a("s_nop 0")
        a("buffer_load_dwordx4 v2, s[28:31], s48 offen sc1 lds")
    a(f"s_add_u32 s51, s51, {2*LPAIR}")
    a("s_cmp_eq_u32 s50, 1")
    a("s_cbranch_scc0 L_kv_w20")
    a("s_waitcnt vmcnt(10)")
    pub(W_PROG, 50)
    a("s_mov_b32 s50, 2")
    a("s_branch L_kv_next")
    a("L_kv_w20:")
    a("s_waitcnt vmcnt(20)")
    a("s_sub_u32 s49, s50, 1")
    pub(W_PROG, 49)
    a("s_add_u32 s50, s50, 1")
    a("s_branch L_kv_next")
    a("L_kv_poll:")
    a("s_waitcnt vmcnt(0)")
    pub(W_PROG, 50)
    a("s_cmp_eq_u32 s50, 16")
    a("s_cbranch_scc1 L_kv_done")
    poll_once()
    a("s_branch L_kv_next")
    a("L_kv_done:")
    if OPT.get('f2s', 16):
        a("s_branch L_all0")
        a("L_all:")
        a(f"s_sleep {OPT.get('wsl', 16)}")
        a("L_all0:")
        a(f"ds_read_b32 v3, v23 offset:{W_PROG}")
        a("s_waitcnt lgkmcnt(0)")
        a("v_readfirstlane_b32 s41, v3")
        a("s_nop 0")
        a(f"s_cmp_lt_u32 s41, {OPT.get('f2s', 16)}")
        a("s_cbranch_scc1 L_all")
    stamp(a, 8)
    a("v_lshlrev_b32 v5, 7, v1")
    a(f"v_add_u32 v5, {192*128}, v5")
    poll(a, 5, 6, sleep=4)
    a(f"s_setprio {OPT.get('pf2', 3)}")
    if OPT.get('dyn', 1):
        a("s_branch L_item0")
        a("L_item:")
        a("s_sleep 8")
        a("L_item0:")
        a("ds_read_b32 v3, v23 offset:12")
        a("s_waitcnt lgkmcnt(0)")
        a("v_readfirstlane_b32 s40, v3")
        a("s_nop 0")
        a("s_cmp_eq_u32 s40, 0")
        a("s_cbranch_scc1 L_item")
        a("s_sub_u32 s40, s40, 1")
    else:
        a(f"s_sub_u32 s40, 31, s{sSLOT}")
        a("s_cmp_ge_u32 s40, 24")
        a("s_cbranch_scc1 L_wo")
        a(f"s_mul_i32 s41, s{sXCD}, 24")
        a("s_add_u32 s40, s40, s41")
    a("s_cmp_ge_u32 s40, %d" % (0 if OPT.get('nof2') else 187))
    a("s_cbranch_scc1 L_wo")
    a("s_mul_i32 s41, s40, 373")
    a("s_lshr_b32 s41, s41, 12")
    a("s_mul_i32 s42, s41, 11")
    a("s_sub_u32 s42, s40, s42")
    a("s_lshl_b32 s41, s41, 1")
    a("s_cmp_ge_u32 s41, 18")
    a("s_cselect_b32 s43, 17, 0")
    a("s_sub_u32 s41, s41, s43")
    a("s_and_b32 s43, s41, 1")
    a("s_lshl_b32 s45, s44, 4")
    a("s_min_u32 s46, s44, 1")
    a("s_add_u32 s46, s46, s45")
    a("s_mul_i32 s47, s41, 65")
    a("s_add_u32 s47, s47, s46")
    a("s_lshl_b32 s47, s47, 10")
    a(f"s_add_u32 s47, s47, {SEQ_OFF}")
    make_srd(a, 28, pWS, "s47", 17*1024)
    a("s_and_b32 s47, s44, 2")
    a("s_add_u32 s47, s47, s43")
    a("s_mul_i32 s48, s47, 11")
    a("s_add_u32 s48, s48, s42")
    a("s_mul_i32 s48, s48, 33")
    a("s_and_b32 s45, s45, 16")
    a("s_add_u32 s48, s48, s45")
    a("s_lshl_b32 s48, s48, 10")
    a(f"s_add_u32 s48, s48, {AB_OFF}")
    make_srd(a, 32, pWS, "s48", 33*1024)
    make_srd(a, 36, pOUT, 0, OUT_SIZE)
    FB = 64; AC = 8
    a("s_or_b32 s47, s44, s43")
    a("s_cmp_lg_u32 s47, 0")
    a("s_cbranch_scc1 L_f2_nox")
    a(f"s_mov_b32 s49, {16*1024}")
    a("buffer_load_dwordx4 v[24:27], v2, s[28:31], s49 offen sc1")
    a(f"s_mov_b32 s49, {32*1024}")
    a("buffer_load_dwordx4 v[28:31], v2, s[32:35], s49 offen sc1")
    a("L_f2_nox:")
    for k in range(16):
        b = FB + k * 8
        if k % 4 == 0: a(f"s_mov_b32 s49, {(k//4)*4096}")
        a(f"buffer_load_dwordx4 {vr(b,4)}, v2, s[28:31], s49 offen offset:{(k%4)*1024} sc1")
        a(f"buffer_load_dwordx4 {vr(b+4,4)}, v2, s[32:35], s49 offen offset:{(k%4)*1024} sc1")
    stamp(a, 9)
    a("v_and_b32 v5, 31, v1")
    a("v_lshrrev_b32 v4, 5, v1")
    a("s_lshr_b32 s48, s41, 1")
    a("s_lshl_b32 s48, s48, 6")
    a("s_add_u32 s48, s48, s43")
    a("s_lshl_b32 s49, s44, 4")
    a("s_add_u32 s48, s48, s49")
    a("v_lshl_add_u32 v47, v4, 3, s48")
    a("v_mul_u32_u24 v47, 2560, v47")
    a("s_cmp_ge_u32 s42, 6")
    a("s_cselect_b32 s48, 383, 0")
    a("s_lshl_b32 s49, s42, 6")
    a("s_sub_u32 s48, s49, s48")
    a("v_lshl_add_u32 v5, v5, 1, s48")
    a(f"v_mov_b32 v46, {HUGE}")
    a("v_lshlrev_b32 v6, 1, v5")
    a("v_add_u32 v40, 1280, v6")
    a("v_cmp_ge_u32 vcc, 320, v5")
    a("v_sub_u32 v41, 2560, v6")
    a("v_add_u32 v6, -1, v5")
    a("v_cndmask_b32 v40, v46, v40, vcc")
    a("v_cmp_gt_u32 vcc, 319, v6")
    a(f"v_add_u32 v33, {(2048-6)*2560}, v40")
    a("v_sub_u32 v33, v33, v47")
    a("v_cndmask_b32 v41, v46, v41, vcc")
    a("v_add_u32 v32, v47, v40")
    a("v_add_u32 v36, v47, v41")
    a(f"v_add_u32 v37, {(2048-6)*2560}, v41")
    a("v_sub_u32 v37, v37, v47")
    a(f"v_subrev_u32 v34, {1024*2560}, v33")
    a(f"v_subrev_u32 v38, {1024*2560}, v37")
    a(f"v_add_u32 v35, {1024*2560}, v32")
    a(f"v_add_u32 v39, {1024*2560}, v36")
    a(f"v_add_u32 v42, {3*5120}, v33")
    a(f"v_add_u32 v43, {3*5120}, v37")
    a(f"v_mov_b32 v3, {LDS_PROG}")
    a("s_lshl_b32 s48, s44, 10")
    a("v_add_u32 v6, s48, v2")
    a("s_add_u32 s49, s48, 12288")
    a("s_lshl_b32 s50, s44, 12")
    a("s_add_u32 s51, s50, 3072")
    a("s_cmp_eq_u32 s44, 3")
    a(f"s_cmov_b32 s49, {LDS_PROG + 1024}")
    a(f"s_cmov_b32 s51, {LDS_PROG + 1024}")
    a("v_add_u32 v7, s49, v2")
    a("v_add_u32 v44, s50, v2")
    a("v_add_u32 v45, s51, v2")
    a("s_lshl_b32 s49, s44, 2")
    a("v_add_u32 v5, s49, v3")
    a(f"s_setprio {OPT.get('pmf', 1)}")
    for k in range(16):
        a(f"s_waitcnt vmcnt({2*(15-k)})")
        b = FB + k * 8
        d = vr(AC, 16)
        a(f"v_mfma_f32_32x32x16_bf16 {d}, {vr(b,4)}, {vr(b+4,4)}, {'0' if k == 0 else d}")
    a("s_cmp_lg_u32 s47, 0")
    a("s_cbranch_scc1 L_f2_nox2")
    a(f"v_mfma_f32_32x32x16_bf16 {vr(AC,16)}, v[24:27], v[28:31], {vr(AC,16)}")
    a("L_f2_nox2:")
    a(f"s_setprio {OPT.get('pep', 3)}")
    def spin_min(lbl, off, sl):
        a(f"{lbl}:")
        a(f"ds_read_b128 v[48:51], v3 offset:{off}")
        a("s_waitcnt lgkmcnt(0)")
        a("v_min3_u32 v48, v48, v49, v50")
        a("v_min_u32 v48, v48, v51")
        a("s_nop 0")
        a("v_readfirstlane_b32 s48, v48")
        a("s_nop 0")
        a("s_cmp_lg_u32 s48, 0")
        a(f"s_cbranch_scc1 {lbl}_ok")
        a(f"s_sleep {sl}")
        a(f"s_branch {lbl}")
        a(f"{lbl}_ok:")
    spin_min("L_f2_dead", W_PASS, 16)
    a("s_nop 3")
    for j in range(3): a(f"ds_write_b128 v6, {vr(AC+4*j,4)} offset:{j*4096}")
    a(f"ds_write_b128 v7, {vr(AC+12,4)}")
    a(f"ds_write_b32 v5, v3 offset:{W_XCH}")
    spin_min("L_f2_wait", W_XCH, OPT.get('xsl', 8))
    for i in range(3): a(f"ds_read_b128 {vr(8+4*i,4)}, v44 offset:{i*1024}")
    a("ds_read_b128 v[20:23], v45")
    a("s_waitcnt lgkmcnt(0)")
    ng = "neg_lo:[0,1] neg_hi:[0,1]"
    for r in (0, 2):
        a(f"v_pk_add_f32 {vr(48+r,2)}, {vr(8+r,2)}, {vr(12+r,2)}")
        a(f"v_pk_add_f32 {vr(52+r,2)}, {vr(8+r,2)}, {vr(12+r,2)} {ng}")
        a(f"v_pk_add_f32 {vr(56+r,2)}, {vr(20+r,2)}, {vr(16+r,2)}")
        a(f"v_pk_add_f32 {vr(60+r,2)}, {vr(20+r,2)}, {vr(16+r,2)} {ng}")
    for r in (0, 2):
        a(f"v_pk_add_f32 {vr(8+r,2)}, {vr(48+r,2)}, {vr(56+r,2)} {ng}")
        a(f"v_pk_add_f32 {vr(12+r,2)}, {vr(48+r,2)}, {vr(56+r,2)}")
        a(f"v_pk_add_f32 {vr(16+r,2)}, {vr(52+r,2)}, {vr(60+r,2)} {ng}")
        a(f"v_pk_add_f32 {vr(20+r,2)}, {vr(52+r,2)}, {vr(60+r,2)}")
    for k in range(8): a(f"v_cvt_pk_bf16_f32 v{48+k}, v{8+2*k}, v{9+2*k}")
    a("s_cmp_eq_u32 s41, 16")
    a("s_cbranch_scc1 L_f2_nyq")
    for i in range(4):
        st = "buffer_store_short_d16_hi" if i & 1 else "buffer_store_short"
        m1, p1, m2, p2 = (48 + 2*k + (i >> 1) for k in range(4))
        a(f"s_mov_b32 s47, {i*5120}")
        a(f"s_mov_b32 s48, {(3-i)*5120}")
        for val, adr, so in [(m1, 32, "s47"), (p1, 36, "s47"), (p2, 35, "s47"), (m2, 39, "s47"), (m2, 34, "s48"), (p2, 38, "s48"),
                             (p1, 33 if i else 42, "s48" if i else "0"), (m1, 37 if i else 43, "s48" if i else "0")]:
            a(f"{st} v{val}, v{adr}, s[36:39], {so} offen{FLF()}")
    a("s_branch L_wo")
    a("L_f2_nyq:")
    a("s_cmp_lg_u32 s44, 0")
    a("s_cbranch_scc1 L_wo")
    a("s_mov_b32 exec_hi, 0")
    for val, adr in [(48, 32), (50, 36), (50, 42), (48, 43)]:
        a(f"buffer_store_short v{val}, v{adr}, s[36:39], 0 offen{FLF()}")
    a("s_mov_b64 exec, -1")
    a("L_wo:")
    a(f"s_setprio {OPT.get('pwo', 3)}")
    stamp(a, 10)
    a("s_and_b32 s40, s26, 3")
    a("s_lshl_b32 s40, s40, 2")
    a("s_add_u32 s40, s40, s44")
    a(f"s_mul_i32 s40, s40, {50*1024}")
    a(f"s_add_u32 s40, s40, {WO_OFF}")
    make_srd(a, 28, pWS, "s40", 50*1024)
    a("s_waitcnt vmcnt(0)")
    for k in range(OPT.get('nwo', 50)):
        if k % 4 == 0: a(f"s_mov_b32 s49, {(k//4)*4096}")
        a(f"buffer_load_dwordx4 {vr(56+4*k,4)}, v2, s[28:31], s49 offen offset:{(k%4)*1024} sc1")

def tail(a):
    PADS = OPT.get('pads', 1)
    padn = [0]
    def pad(chain, last=None):
        if not PADS: return
        a(f"L_pad_{chain}_{padn[0]}:")
        padn[0] += 1
        a(f"s_cbranch_vccnz {last or f'L_pad_{chain}_{padn[0]}'}")
    a("L_B_done:")
    a("s_lshr_b32 s40, s26, 2")
    a("s_lshl_b32 s41, s27, 3")
    a("s_add_u32 s41, s41, s40")
    a(f"s_mul_i32 s42, s41, {32*1280}")
    a(f"s_add_u32 s42, s42, {O_OFF}")
    make_srd(a, 28, pWS, "s42", 32*1280)
    a("v_and_b32 v4, 7, v1")
    a("v_bfe_u32 v5, v1, 3, 2")
    a("v_lshlrev_b32 v5, 1, v5")
    a("v_lshl_add_u32 v4, v4, 3, v5")
    a("s_and_b32 s42, s27, 3")
    a("s_lshl_b32 s42, s42, 6")
    a("s_lshr_b32 s43, s27, 2")
    a("s_add_u32 s42, s42, s43")
    a("s_lshl_b32 s42, s42, 2")
    a("s_lshr_b32 s40, s40, 1")
    a("s_add_u32 s42, s42, s40")
    a(f"s_add_u32 s42, s42, {FB}")
    a("v_lshl_add_u32 v4, v4, 2, s42")
    a("v_lshlrev_b32 v4, 7, v4")
    a("v_mov_b32 v8, v4")
    if OPT.get('ppre', 1): a(f"buffer_load_dwordx2 v[10:11], v8, {sr(sFL,4)}, 0 offen sc1")
    a("v_and_b32 v3, 31, v1")
    a("v_lshrrev_b32 v4, 5, v1")
    a("v_mul_u32_u24 v5, 2560, v4")
    a("v_lshl_add_u32 v5, v3, 3, v5")
    a("v_add_u32 v5, 1024, v5")
    make_srd(a, 32, pOUT, 0, OUT_SIZE)
    a("s_lshl_b32 s41, s41, 5")
    a("v_add_u32 v6, s41, v3")
    a("v_mul_u32_u24 v6, 2560, v6")
    a("s_and_b32 s42, s26, 3")
    a("s_mul_i32 s42, s42, 320")
    a("s_mul_i32 s43, s44, 12800")
    a("v_add_u32 v7, s43, v2")
    a("s_lshl_b32 s43, s44, 12")
    a("s_add_u32 s43, s43, 40960")
    a("v_add_u32 v3, s43, v2")
    a("s_lshl_b32 s43, s44, 10")
    a("s_add_u32 s43, s43, 40960")
    a("v_add_u32 v1, s43, v2")
    a("s_lshl_b32 s45, s44, 4")
    a("s_add_u32 s45, s45, s42")
    a("v_lshl_add_u32 v0, v4, 3, v6")
    a("s_lshl_b32 s43, s44, 6")
    a("s_add_u32 s43, s43, s42")
    a("v_lshl_add_u32 v6, v4, 4, v6")
    if OPT.get('opre', 1):
        a("buffer_load_dword v12, v6, s[32:35], s43 offen")
        make_srd(a, 36, pWS, O_OFF, O_SIZE)
        a("v_mul_u32_u24 v13, 2560, v2")
        a("buffer_load_dword v12, v13, s[36:39], 0 offen sc1")
    if PADS:
        a("s_mov_b64 vcc, -1")
        a("s_nop 0")
        a("s_branch L_pad_a_0")
        a("L_pad_ret:")
        a("s_setprio 3")
    a("s_waitcnt vmcnt(0)")
    stamp(a, 12)
    a("s_barrier")
    stamp(a, 1)
    if not OPT.get('apoll', 0):
        a("s_cmp_lg_u32 s44, 0")
        a("s_cbranch_scc1 L_onep")
        if OPT.get('pp', 1) > 1: poll_piped(a, 8, 10, OPT['pp'])
        else: poll(a, 8, 10, sleep=OPT.get('sl', 0), shrink=OPT.get('shr', 1))
        a("L_onep:")
    a("s_barrier")
    stamp(a, 13)
    if PADS: a("s_mov_b64 vcc, 0")
    a("s_lshl_b32 s40, s44, 10")
    for j in range(10):
        if j % 3 == 0: pad('a')
        a("s_mov_b32 m0, s40")
        a("s_nop 0")
        a("buffer_load_dwordx4 v2, s[28:31], s40 offen sc1 lds")
        if j < 9: a("s_add_u32 s40, s40, 4096")
    a("s_waitcnt vmcnt(%d)" % (6 if OPT.get('prog', 1) else 0))
    a("s_barrier")
    stamp(a, 14)
    if lib.STAMP: a("s_waitcnt lgkmcnt(0)")
    A5, AM, OB = 8, 24, 40
    def rd(buf, kap, base=None):
        b = OB + 4*buf
        if base is not None: return f"ds_read_b128 {vr(b,4)}, v{base} offset:{kap*1280}"
        if kap < 32: return f"ds_read_b128 {vr(b,4)}, v2 offset:{kap*1280}"
        o = (kap - 32) * 5120 // 8
        return None
    def rd_main(buf, kap):
        b = OB + 4*buf
        if kap < 32: return [f"ds_read_b128 {vr(b,4)}, v2 offset:{kap*1280}"]
        g = kap - 32
        return [f"ds_read_b64 {vr(b,2)}, v5 offset:{g*5120}", f"ds_read_b64 {vr(b+2,2)}, v5 offset:{g*5120+1280}"]
    PG = 10 if OPT.get('prog', 1) else 0
    def stream(steps, chain):
        padn[0] = 0
        n = len(steps); cnt = [0]*n
        PF = 3
        for k in range(PF):
            r = steps[k][0](k % 4); cnt[k] = len(r)
            for x in r: a(x)
        for k in range(n):
            out = sum(cnt[k+1:min(n, k+PF)])
            a(f"s_waitcnt lgkmcnt({out})")
            d = vr(steps[k][1], 16)
            a(f"v_mfma_f32_32x32x16_bf16 {d}, {vr(steps[k][2],4)}, {vr(OB+4*(k%4),4)}, {'0' if steps[k][3] else d}")
            if k % 2 == 0 or k in (PG + 13, 32, 38, 40): pad(chain, "L_pad_z_0" if k == n - 2 else None)
            if PG and k + PF == PG:
                a("s_waitcnt vmcnt(0)")
                a("s_barrier")
            if k + PF < n:
                r = steps[k+PF][0]((k+PF) % 4); cnt[k+PF] = len(r)
                for x in r: a(x)
            if k == PG + 13:
                for j in range(4): a(f"ds_write_b128 v3, {vr(A5+4*j,4)} offset:{j*1024}")
                cnt[k+PF] += 4
            if k == 32:
                a("s_barrier")
                for i in range(4): a(f"ds_read_b128 {vr(A5+4*i,4)}, v1 offset:{i*4096}")
                cnt[k+PF] += 4
            if k == 38:
                for i in range(1, 4):
                    a(f"v_pk_add_f32 {vr(A5,2)}, {vr(A5,2)}, {vr(A5+4*i,2)}")
                    a(f"v_pk_add_f32 {vr(A5+2,2)}, {vr(A5+2,2)}, {vr(A5+4*i+2,2)}")
            if k == 40:
                a(f"v_cvt_pk_bf16_f32 v{A5}, v{A5}, v{A5+1}")
                a(f"v_cvt_pk_bf16_f32 v{A5+1}, v{A5+2}, v{A5+3}")
                a(f"buffer_store_dwordx2 {vr(A5,2)}, v0, s[32:35], s45 offen offset:256{FLP()}")
    main = [((lambda kap: lambda buf: rd_main(buf, kap))(kap), AM, 56 + 4*(10+kap), kap == 0) for kap in range(40)]
    if PADS:
        a(f"L_pad_a_{padn[0]}:")
        a("s_cmp_eq_u32 s44, 3")
        a("s_cbranch_vccz L_nopad")
        a("s_cbranch_scc1 L_pad_c_0")
        a("s_branch L_pad_b_0")
        a("L_nopad:")
    a("s_cmp_eq_u32 s44, 3")
    a("s_cbranch_scc1 L_tail3")
    q5 = [((lambda i: lambda buf: [f"ds_read_b128 {vr(OB+4*buf,4)}, v7 offset:{i*1280}"])(i), A5, 56 + 4*i, i == 0) for i in range(10)]
    stream(main[:PG] + q5 + main[PG:], 'b')
    a("s_branch L_tail_join")
    a("L_tail3:")
    q5 = [((lambda i: lambda buf: rd_main(buf, 30 + i))(i), A5, 56 + 4*i, i == 0) for i in range(10)]
    stream(main[:PG] + q5 + main[PG:], 'c')
    a("L_tail_join:")
    stamp(a, 11)
    padn[0] = 0
    pad('z')
    a("s_nop 11")
    for r in range(8): a(f"v_cvt_pk_bf16_f32 v{AM+r}, v{AM+2*r}, v{AM+2*r+1}")
    pad('z', "L_pad_ret")
    a("s_nop 1")
    for h2 in range(2):
        a(f"v_permlane32_swap_b32 v{AM+4*h2}, v{AM+4*h2+2}")
        a(f"v_permlane32_swap_b32 v{AM+4*h2+1}, v{AM+4*h2+3}")
    for h2 in range(2):
        a(f"buffer_store_dwordx4 {vr(AM+4*h2,4)}, v6, s[32:35], s43 offen offset:{32*h2}{FLP()}")
    a("L_end:")
    if OPT.get('pad'):
        a("L_pad:")
        a("s_memrealtime s[40:41]")
        a("s_waitcnt lgkmcnt(0)")
        a(f"s_sub_u32 s40, s40, s{sNON}")
        a(f"s_cmp_lt_u32 s40, {OPT['pad']}")
        a("s_cbranch_scc1 L_pad")
    if lib.STAMP:
        a("s_waitcnt vmcnt(0)")
        stamp(a, 15); stamp_real(a, 17)
        stamp_flush(a, 18, pWS, sWAVE, 0)
    a("L_exit:")
    a("s_endpgm")

KNAME = "concat_heads__mha_block__spectral_fnet__prompt_kernel"
def kernel(a):
    kernel_header(a, KNAME)
    if OPT.get('early'): a("s_memrealtime s[98:99]")
    a("s_cmp_ge_u32 s2, 256")
    a("s_cbranch_scc1 L_exit")
    if lib.STAMP:
        for i in range(18): a(f"s_mov_b32 s{60+2*i}, 0")
    stamp(a, 0); stamp_real(a, 16)
    a("s_load_dwordx8 s[4:11], s[0:1], 0")
    a("s_load_dwordx4 s[12:15], s[0:1], 64")
    a("s_load_dwordx2 s[16:17], s[0:1], 80")
    a("v_lshrrev_b32 v1, 6, v0")
    a(f"s_and_b32 s{sXCD}, s2, 7")
    a(f"v_readfirstlane_b32 s{sWAVE}, v1")
    a(f"s_lshr_b32 s{sSLOT}, s2, 3")
    a("v_and_b32 v1, 63, v0")
    a("v_mov_b32 v20, 0")
    a(f"s_and_b32 s26, s{sXCD}, 1")
    a("s_lshl_b32 s26, s26, 3")
    a(f"s_and_b32 s27, s{sSLOT}, 7")
    a("s_add_u32 s26, s26, s27")
    a(f"s_lshr_b32 s27, s{sSLOT}, 3")
    a("s_lshl_b32 s27, s27, 2")
    a(f"s_lshr_b32 s40, s{sXCD}, 1")
    a("s_add_u32 s27, s27, s40")
    a(f"s_cmp_ge_u32 s{sSLOT}, 24")
    a("s_cselect_b32 s40, 0, s%d" % sWAVE)
    a("s_cmp_lt_u32 s40, 4")
    a("s_cbranch_scc1 L_other")
    gemm_loader(a)
    a("L_other:")
    a("s_waitcnt lgkmcnt(0)")
    make_srd(a, sFL, pWS, FL_OFF, FL_SIZE)
    a(f"s_cmp_lg_u32 s{sWAVE}, 0")
    a("s_cbranch_scc1 L_no_init")
    a(f"v_mov_b32 v2, {LDS_PROG}")
    a("v_mov_b32 v4, 0")
    a("v_mov_b32 v5, 0")
    for i in range(8): a(f"ds_write_b64 v2, v[4:5] offset:{8*i}")
    a("s_cmp_lg_u32 s2, 0")
    a("s_cbranch_scc1 L_no_nonce")
    if OPT.get('early'): a("s_mov_b64 s[40:41], s[98:99]")
    else: a("s_memrealtime s[40:41]")
    make_srd(a, 28, pDBG, 0, 256)
    a("s_waitcnt lgkmcnt(0)")
    a("s_or_b32 s40, s40, 1")
    a("v_mov_b32 v2, s40")
    a("v_mov_b32 v3, s41")
    a("buffer_store_dwordx2 v[2:3], v4, s[28:31], 0 offen sc1")
    a("L_no_nonce:")
    a("s_waitcnt lgkmcnt(0)")
    a("L_no_init:")
    a(f"s_cmp_ge_u32 s{sSLOT}, 24")
    a("s_cbranch_scc1 L_prep")
    if OPT.get('touch', 1):
        a(f"s_cmp_lg_u32 s{sWAVE}, 1")
        a("s_cbranch_scc1 L_no_code")
        a("s_getpc_b64 s[40:41]")
        a("L_pc:")
        a(f"s_sub_u32 s40, s40, L_pc-{KNAME}")
        a("s_subb_u32 s41, s41, 0")
        a(f"s_mul_i32 s42, s{sSLOT}, 1792")
        a("v_lshlrev_b32 v2, 4, v1")
        a("v_add_u32 v2, s42, v2")
        a(f"v_min_u32 v2, L_exit-{KNAME}-1024-16, v2")
        for i in range(2): a(f"global_load_dwordx4 v[250:253], v2, s[40:41] offset:{i*1024}")
        a("L_no_code:")
    if OPT.get('tlb'):
        a(f"s_cmp_lg_u32 s{sWAVE}, 2")
        a("s_cbranch_scc1 L_no_tlb")
        make_srd(a, 28, pWS, 0, FL_OFF + FL_SIZE)
        a("v_lshlrev_b32 v2, 20, v1")
        a("buffer_load_dword v250, v2, s[28:31], 0 offen sc1")
        a("L_no_tlb:")
    gemm_compute(a)
    prep(a)
    a_done(a)
    attention(a)
    aux(a)
    tail(a)
    return kernel_desc(KNAME, 256, 100)

HEADER = open('concat_heads__mha_block__spectral_fnet__prompt.s.ref').read().split("; Override")[0]
def main(out):
    a = Asm()
    a('.amdgcn_target "amdgcn-amd-amdhsa--gfx950"')
    a(".text")
    d = kernel(a)
    txt = HEADER + "; @launch grid=(256,1,1) block=(512,1,1) lds=163840\n" + a.text() + '.section .rodata,"a"\n.p2align 6\n' + d
    open(out, "w").write(txt)

if __name__ == "__main__":
    for x in sys.argv[2:]:
        if x == "stamp": lib.STAMP = True
        elif x == "rt": lib.STAMP = True; lib.STAMPRT = True
        elif x == "gst": lib.STAMP = True; lib.STAMPSET = 1; lib.STAMPRT = True
        elif x == "cst": lib.STAMP = True; lib.STAMPSET = 2
        else:
            k, _, v = x.partition("=")
            OPT[k] = int(v) if v else 1
    main(sys.argv[1] if len(sys.argv) > 1 else "v34.s")
```

```python
import sys, struct
from lib import *
import lib

TKV = 2560; KV_HEAD = 64*TKV; KV_OFF = 0; KV_SIZE = 32*KV_HEAD
TQ = 1280; Q_HEAD = 64*TQ; Q_OFF = KV_SIZE; Q_SIZE = 32*Q_HEAD
O_OFF = Q_OFF + Q_SIZE; O_SIZE = 64*32*1280
SEQ_OFF = O_OFF + O_SIZE; SEQ_SIZE = 17*65*1024
AB_OFF = SEQ_OFF + SEQ_SIZE; AB_SIZE = 4*11*33*1024
WO_OFF = AB_OFF + AB_SIZE; WO_SIZE = 16*50*1024
FL_OFF = 16*1024*1024; FL_SIZE = 1536*128
FA, FB, FL1 = 0, 256, 1280
X_SIZE = 2048*1280; OUT_SIZE = 2048*2560
HUGE = 0x40000000
QSCALE = (20 ** -0.5) * 1.4426950408889634
NDMA = 155; LPAIR = 5184
LDS_PROG = 31*LPAIR
def lds_tile(t): return ((t-2)>>1)*LPAIR + ((t-2)&1)*TKV
def need(tile): return ((tile-1)*TKV + 4095)//4096
NEED = [need(4), need(7), need(15), need(23), 39]
POLL_MAX = 200000
def f32bits(x): return struct.unpack('<I', struct.pack('<f', x))[0]
OPT = {}
FLS = ['', ' sc1', ' nt', ' sc0 sc1', ' sc1 nt']
def FLP(): return FLS[OPT.get('flp', 0)]
def FLF(): return FLS[OPT.get('flf', 1)]

sWAVE = 3
pX, pW, pWO, pBX, pOUT, pDBG, pWS = 4, 6, 8, 10, 12, 14, 16
sNON = 18
sFL = 20
sXCD, sSLOT = 24, 25
STG = 36864
NS = 4

def poll(a, vaddr, vtmp, cnt=40, sleep=1, shrink=False):
    l = a.label("L_poll"); d = a.label("L_pollok")
    a(f"s_mov_b32 s{cnt}, {POLL_MAX}")
    a(f"{l}:")
    a(f"buffer_load_dwordx2 {vr(vtmp,2)}, v{vaddr}, {sr(sFL,4)}, 0 offen sc1")
    a("s_waitcnt vmcnt(0)")
    a(f"v_cmp_ne_u64 vcc, {sr(sNON,2)}, {vr(vtmp,2)}")
    a(f"s_sub_u32 s{cnt}, s{cnt}, 1")
    a(f"s_cbranch_vccz {d}")
    a(f"s_cmp_eq_u32 s{cnt}, 0")
    a(f"s_cbranch_scc1 {d}")
    if sleep: a(f"s_sleep {sleep}")
    if shrink: a("s_mov_b64 exec, vcc")
    a(f"s_branch {l}")
    a(f"{d}:")
    if shrink: a("s_mov_b64 exec, -1")

def poll_piped(a, vaddr, vtmp, depth, cnt=40):
    l = a.label("L_ppoll"); d = a.label("L_ppollok")
    a(f"s_mov_b32 s{cnt}, {POLL_MAX}")
    for i in range(depth - 1):
        a(f"buffer_load_dwordx2 {vr(vtmp+2*i,2)}, v{vaddr}, {sr(sFL,4)}, 0 offen sc1")
        a(f"s_sleep {OPT.get('pgap', 4)}")
    a(f"{l}:")
    for i in range(depth):
        a(f"buffer_load_dwordx2 {vr(vtmp+2*((i+depth-1)%depth),2)}, v{vaddr}, {sr(sFL,4)}, 0 offen sc1")
        a(f"s_waitcnt vmcnt({depth-1})")
        a(f"v_cmp_ne_u64 vcc, {sr(sNON,2)}, {vr(vtmp+2*i,2)}")
        a(f"s_sub_u32 s{cnt}, s{cnt}, 1")
        a(f"s_cbranch_vccz {d}")
        a(f"s_cbranch_scc1 {d}")
        a("s_mov_b64 exec, vcc")
    a(f"s_branch {l}")
    a(f"{d}:")
    a("s_mov_b64 exec, -1")

def prod_flags(a, vd, vt):
    a("s_lshr_b32 s40, s26, 3")
    a(f"v_and_b32 v{vd}, 7, v1")
    a(f"v_bfe_u32 v{vt}, v1, 3, 2")
    a(f"v_lshlrev_b32 v{vt}, 1, v{vt}")
    a(f"v_lshl_add_u32 v{vd}, v{vd}, 3, v{vt}")
    a("s_and_b32 s42, s27, 3")
    a("s_lshl_b32 s42, s42, 6")
    a("s_lshr_b32 s43, s27, 2")
    a("s_add_u32 s42, s42, s43")
    a("s_lshl_b32 s42, s42, 2")
    a("s_add_u32 s42, s42, s40")
    a(f"s_add_u32 s42, s42, {FB}")
    a(f"v_lshl_add_u32 v{vd}, v{vd}, 2, s42")
    a(f"v_lshlrev_b32 v{vd}, 7, v{vd}")

def get_nonce(a, vt, srd=28, cnt=40):
    make_srd(a, srd, pDBG, 0, 256)
    l = a.label("L_non"); d = a.label("L_nonok")
    a(f"v_mov_b32 v{vt}, 0")
    a(f"s_mov_b32 s{cnt}, {POLL_MAX}")
    a(f"{l}:")
    a(f"buffer_load_dwordx2 {vr(vt+2,2)}, v{vt}, {sr(srd,4)}, 0 offen sc1")
    a("s_waitcnt vmcnt(0)")
    a(f"v_readfirstlane_b32 s{sNON}, v{vt+2}")
    a(f"v_readfirstlane_b32 s{sNON+1}, v{vt+3}")
    a(f"s_sub_u32 s{cnt}, s{cnt}, 1")
    a(f"s_cmp_lg_u32 s{sNON}, 0")
    a(f"s_cbranch_scc1 {d}")
    a(f"s_cmp_eq_u32 s{cnt}, 0")
    a(f"s_cbranch_scc1 {d}")
    a("s_sleep 2")
    a(f"s_branch {l}")
    a(f"{d}:")

def set_flag(a, sidx, vt, also=None):
    for i in range(4): a(f"v_mov_b32 v{vt+i}, s{sNON+(i&1)}")
    a(f"v_lshlrev_b32 v{vt+4}, 4, v1")
    a("s_mov_b64 exec, 0xff")
    if also is not None:
        a(f"s_add_u32 s41, s{sidx}, {also}")
        a(f"buffer_store_dwordx4 {vr(vt,4)}, v{vt+4}, {sr(sFL,4)}, s41 offen")
    a(f"buffer_store_dwordx4 {vr(vt,4)}, v{vt+4}, {sr(sFL,4)}, s{sidx} offen sc1")
    a("s_mov_b64 exec, -1")

def gemm_loader(a):
    sA, sB = 28, 32
    a("L_loader:")
    a(f"s_sub_u32 s44, s{sWAVE}, 4")
    a("v_lshrrev_b32 v2, 3, v1")
    a("s_lshl_b32 s40, s44, 3")
    a("v_add_u32 v2, s40, v2")
    a("v_mul_u32_u24 v2, 1280, v2")
    a("v_lshrrev_b32 v3, 4, v1")
    a("s_and_b32 s40, s44, 1")
    a("s_lshl_b32 s40, s40, 2")
    a("v_or_b32 v4, s40, v3")
    a("v_and_b32 v5, 7, v1")
    a("v_xor_b32 v4, v4, v5")
    a("v_lshl_add_u32 v10, v4, 4, v2")
    a("s_lshl_b32 s45, s44, 10")
    a(f"s_lshr_b32 s40, s{sSLOT}, 3")
    a(f"s_mul_i32 s40, s40, {OPT.get('ra', 5)}")
    a(f"s_and_b32 s41, s{sSLOT}, 7")
    a(f"s_mul_i32 s41, s41, {OPT.get('rb', 5)}")
    a("s_add_u32 s40, s40, s41")
    if OPT.get('ph'):
        n = OPT['ph']
        a(f"s_lshr_b32 s40, s{sSLOT}, 3")
        a(f"s_and_b32 s41, s{sSLOT}, 7")
        a("s_add_u32 s40, s40, s41")
        a(f"s_mul_i32 s41, s40, {(256 + n - 1)//n}")
        a("s_lshr_b32 s41, s41, 8")
        a(f"s_mul_i32 s41, s41, {n}")
        a("s_sub_u32 s40, s40, s41")
        a(f"s_mul_i32 s40, s40, {OPT.get('pstep', 3)}")
    a(f"s_mul_i32 s41, s{sXCD}, {OPT.get('rc', 3)}")
    a("s_add_u32 s40, s40, s41")
    a("s_mul_i32 s41, s40, 6554")
    a("s_lshr_b32 s41, s41, 16")
    a("s_mul_i32 s41, s41, 10")
    a("s_sub_u32 s47, s40, s41")
    a("s_lshl_b32 s40, s44, 4")
    a("v_lshrrev_b32 v2, 2, v1")
    a("v_add_u32 v2, s40, v2")
    a("v_mul_u32_u24 v2, 3840, v2")
    a("v_and_b32 v3, 3, v1")
    a("v_lshrrev_b32 v4, 5, v1")
    a("v_lshlrev_b32 v4, 1, v4")
    a("v_xor_b32 v3, v3, v4")
    a("v_lshl_add_u32 v11, v3, 4, v2")
    a("s_mul_i32 s46, s44, 5120")
    a("s_mul_i32 s50, s26, 163840")
    a("s_mul_i32 s51, s27, 320")
    a("s_sub_u32 s52, 2457600, s51")
    a("s_waitcnt lgkmcnt(0)")
    make_srd(a, sA, pX, "s50", 163840)
    def issue_x(c):
        sl = c % NS
        a("s_lshl_b32 s48, s47, 7")
        for j in range(4):
            a(f"s_add_u32 m0, s45, {sl*STG + j*4096}")
            if j: a(f"s_add_u32 s48, s48, 40960")
            else: a("s_mul_i32 s49, s47, 245760")
            a(f"buffer_load_dwordx4 v10, {sr(sA,4)}, s48 offen lds")
    def issue_w(c):
        sl = c % NS
        for i in range(5):
            a(f"s_add_u32 m0, s46, {sl*STG + 16384 + i*1024 - i*64}")
            if i == 0:
                a("s_add_u32 s47, s47, 1")
            elif i == 1:
                a("s_cmp_eq_u32 s47, 10")
                a("s_cmov_b32 s47, 0")
            else: a("s_nop 0")
            a(f"buffer_load_dwordx4 v11, {sr(sB,4)}, s49 offen offset:{i*64} lds")
    def issue(c): issue_x(c); issue_w(c)
    stamp(a, 3)
    issue_x(0)
    make_srd(a, sB, pW, "s51", "s52")
    issue_w(0)
    issued = 1
    pre = OPT.get('pre', 2)
    for c in range(1, pre): issue(c); issued += 1
    for c in range(10):
        a(f"s_waitcnt vmcnt({9*(issued-c-1)})")
        if c in (0, 9): stamp(a, {0: 2, 9: 5}[c])
        stamp(a, c + 1, 1)
        a("s_barrier")
        if c in (1, 3, 5, 7): stamp(a, 11 + c // 2, 1)
        while issued < min(10, c + 1 + (OPT.get('dep', 2) if c < OPT.get('depsw', 10) else 3)): issue(issued); issued += 1
    make_srd(a, sFL, pWS, FL_OFF, FL_SIZE)
    get_nonce(a, 2)
    a("s_branch L_A_done")

AX, AWA, EA = 8, 10, 16
FR = 24
ACC = 96
def gemm_loop(a, isv, epi):
    XB = [FR, FR + 36, 176, 212]
    def rdx(kk, m, b): sl, st = divmod(kk, 2); return f"ds_read_b128 {vr(b+4*m,4)}, v{AX+st} offset:{sl*STG + m*2048}"
    def rdw(kk, T, b): sl, st = divmod(kk, 2); return [f"ds_read_b64_tr_b16 {vr(b+16+4*T+2*t,2)}, v{AWA+T} offset:{sl*STG + st*10240 + t*256}" for t in range(2)]
    def reads(kk, b):
        r = rdw(kk, 0, b) + [rdx(kk, m, b) for m in range(4)]
        for T in range(1, 5): r += rdw(kk, T, b)
        return r
    def mfma(b, T, m):
        d = vr(ACC + 16*T + 4*m, 4); w = vr(b + 16 + 4*T, 4); x = vr(b + 4*m, 4)
        return f"v_mfma_f32_16x16x32_bf16 {d}, {x}, {w}, {d}" if isv else f"v_mfma_f32_16x16x32_bf16 {d}, {w}, {x}, {d}"
    for r in range(80): a(f"v_mov_b32 v{ACC+r}, 0")
    a(f"s_mov_b32 s40, {2*STG}")
    a("s_mov_b32 s41, 4")
    stamp(a, 13)
    a("s_barrier")
    stamp(a, 2)
    for r in reads(0, XB[0]): a(r)
    lp = a.label("L_gemm"); last = a.label("L_gemm_last")
    a(".p2align 3")
    a(f"{lp}:")
    for kk in range(4):
        a("s_waitcnt lgkmcnt(0)")
        ms = [mfma(XB[kk & 1], T, m) for T in range(5) for m in range(4)]
        a(ms[0])
        if kk == 1: a("s_barrier")
        if kk == 3:
            for i in range(2): a(f"v_add_u32 v{AX+i}, s40, v{AX+i}")
            for i in range(5): a(f"v_add_u32 v{AWA+i}, s40, v{AWA+i}")
            a("s_sub_u32 s40, 0, s40")
            a("s_sub_u32 s41, s41, 1")
            a("s_barrier")
            a("s_cmp_eq_u32 s41, 0")
            a(f"s_cbranch_scc1 {last}")
        nx = reads((kk + 1) & 3, XB[(kk + 1) & 1])
        for i in range(1, 20):
            if i - 1 < len(nx): a(nx[i-1])
            a(ms[i])
    a(f"s_branch {lp}")
    a(f"{last}:")
    bufs = [XB[0], XB[2], XB[3], XB[1]]
    def order(k0):
        r = []
        for k in (k0, k0 + 1): r += rdw(k, 0, bufs[k]) + [rdx(k, m, bufs[k]) for m in range(4)]
        return r
    first = order(0)
    rest01 = [x for T in range(1, 5) for k in (0, 1) for x in rdw(k, T, bufs[k])]
    second = order(2)
    rest23 = [[x for k in (2, 3) for x in rdw(k, T, bufs[k])] for T in range(5)]
    ms = [mfma(XB[1], T, m) for T in range(5) for m in range(4)]
    q = first + rest01
    pos = 0
    for i in range(1, 20):
        for _ in range(2 if i < 10 else 1):
            if pos < len(q): a(q[pos]); pos += 1
        a(ms[i])
    a("s_barrier")
    q = second + rest23[1] + rest23[2] + rest23[3] + rest23[4]
    a("s_waitcnt lgkmcnt(0)")
    pos = 0
    for T in range(5):
        e = epi(T - 1) if T >= 1 else []
        per = -(-len(e) // 12)
        for i in range(16):
            if i == 8 and T < 2: a(f"s_waitcnt lgkmcnt({min(15, pos - (12 + 4*T))})" if T == 0 else "s_waitcnt lgkmcnt(0)")
            a(mfma(bufs[i >> 2], T, i & 3))
            for _ in range(2):
                if pos < len(q): a(q[pos]); pos += 1
            if i >= 4:
                for x in e[per*(i-4):per*(i-3)]: a(x)
    stamp(a, 5)
    a("s_nop 7")
    for x in epi(4): a(x)

def gemm_compute(a):
    a("L_compute:")
    a("v_and_b32 v2, 15, v1")
    a("v_lshrrev_b32 v3, 4, v1")
    a(f"s_and_b32 s42, s{sWAVE}, 1")
    a(f"s_lshr_b32 s43, s{sWAVE}, 1")
    a("s_lshl_b32 s40, s42, 6")
    a("v_add_u32 v4, s40, v2")
    a("v_lshlrev_b32 v4, 7, v4")
    a("v_lshrrev_b32 v5, 1, v2")
    a("v_xor_b32 v5, v5, v3")
    a(f"v_lshl_add_u32 v{AX}, v5, 4, v4")
    a(f"v_xor_b32 v{AX+1}, 64, v{AX}")
    a("v_lshrrev_b32 v4, 5, v1")
    a("v_mul_u32_u24 v4, 5120, v4")
    a("v_and_b32 v5, 1, v3")
    a("v_lshrrev_b32 v6, 2, v2")
    a("v_lshl_add_u32 v6, v5, 3, v6")
    a("v_lshl_add_u32 v4, v6, 6, v4")
    a("v_add_u32 v4, 16384, v4")
    a("v_lshlrev_b32 v5, 2, v5")
    a("v_and_b32 v6, 3, v1")
    a("s_mul_i32 s44, s43, 20")
    def waddr(T, g):
        a(f"v_and_b32 v15, 7, v{g}")
        a("v_xor_b32 v15, v15, v5")
        a("v_lshl_add_u32 v15, v15, 3, v4")
        a(f"v_lshrrev_b32 v{g}, 3, v{g}")
        a(f"v_lshl_add_u32 v{AWA+T}, v{g}, 10, v15")
    a("s_lshl_b32 s45, s26, 2")
    a("s_lshl_b32 s42, s42, 1")
    a("s_add_u32 s42, s42, s45")
    a("s_and_b32 s45, s27, 3")
    a("s_lshl_b32 s45, s45, 3")
    a("s_lshl_b32 s43, s43, 2")
    a("s_add_u32 s43, s43, s45")
    a("s_cmp_ge_u32 s27, 8")
    a("s_cbranch_scc1 L_compute_v")
    for T in range(5):
        if T < 4:
            a(f"s_add_u32 s45, s44, {5*T}")
            a("v_add_u32 v7, s45, v6")
        else:
            a("s_add_u32 s45, s44, 4")
            a("v_mad_u32_u24 v7, v6, 5, s45")
        waddr(T, 7)
    a("s_cmp_ge_u32 s27, 4")
    for reg, k, q in [(44, KV_HEAD, Q_HEAD), (45, TKV, TQ), (46, f32bits(1.0), f32bits(QSCALE)), (47, KV_OFF, Q_OFF), (48, KV_SIZE, Q_SIZE)]:
        a(f"s_mov_b32 s{reg}, {q}")
        a(f"s_cmov_b32 s{reg}, {k}")
    make_srd(a, 28, pWS, "s47", "s48")
    a("s_mul_i32 s47, s43, s44")
    a("s_mul_i32 s48, s42, s45")
    a("s_add_u32 s47, s47, s48")
    a(f"v_lshlrev_b32 v{EA}, 4, v1")
    a(f"v_add_u32 v{EA+1}, s45, v{EA}")
    a("v_lshrrev_b32 v4, 5, v1")
    a("v_mul_lo_u32 v4, v4, s44")
    a("v_and_b32 v5, 31, v1")
    a("v_lshlrev_b32 v5, 3, v5")
    a("v_lshl_add_u32 v4, v4, 1, v5")
    a(f"v_add_u32 v{EA+2}, 1024, v4")
    a(f"v_add_u32 v{EA+3}, s45, v{EA+2}")
    a("s_mov_b32 s48, s47")
    a("s_add_u32 s49, s47, s44")
    def epi_qk(T):
        b = ACC + 16*T; e = []
        for r in range(16): e.append(f"v_mul_f32 v{b+r}, s46, v{b+r}")
        for r in range(8): e.append(f"v_cvt_pk_bf16_f32 v{b+r}, v{b+2*r}, v{b+2*r+1}")
        e.append("s_nop 0")
        for u in range(2):
            e.append(f"v_permlane16_swap_b32 v{b+4*u}, v{b+4*u+2}")
            e.append(f"v_permlane16_swap_b32 v{b+4*u+1}, v{b+4*u+3}")
        for u in range(2):
            if T < 4: e.append(f"buffer_store_dwordx4 {vr(b+4*u,4)}, v{EA+u}, s[28:31], s48 offen sc1")
            else:
                e.append(f"buffer_store_dwordx2 {vr(b+4*u,2)}, v{EA+2+u}, s[28:31], s47 offen sc1")
                e.append(f"buffer_store_dwordx2 {vr(b+4*u+2,2)}, v{EA+2+u}, s[28:31], s49 offen sc1")
        if T < 3: e.append("s_add_u32 s48, s48, s44")
        return e
    gemm_loop(a, False, epi_qk)
    a("s_branch L_A_done")
    a("L_compute_v:")
    for T in range(5):
        a(f"s_add_u32 s45, s44, {4*T}")
        a("v_add_u32 v7, s45, v6")
        waddr(T, 7)
    make_srd(a, 28, pWS, KV_OFF, KV_SIZE)
    a(f"s_mov_b32 s44, {KV_HEAD}")
    a("s_mul_i32 s47, s43, s44")
    a(f"s_mul_i32 s48, s42, {TKV}")
    a("s_add_u32 s47, s47, s48")
    a("v_lshrrev_b32 v7, 5, v1")
    a("v_mul_u32_u24 v7, 640, v7")
    a("v_and_b32 v15, 1, v3")
    a("v_lshl_add_u32 v7, v15, 6, v7")
    a("v_add_u32 v7, 1280, v7")
    for T in range(5):
        a(f"v_add_u32 v4, {16*T}, v2")
        a("v_mul_u32_u24 v5, 3277, v4")
        a("v_lshrrev_b32 v5, 16, v5")
        a("v_mul_u32_u24 v6, 20, v5")
        a("v_sub_u32 v4, v4, v6")
        a("v_and_b32 v6, 28, v4")
        a("v_add_u32 v4, v4, v6")
        a("v_mul_lo_u32 v5, v5, s44")
        a("v_lshl_add_u32 v4, v4, 4, v5")
        a(f"v_add_u32 v{EA+T}, v7, v4")
    def epi_v(T):
        b = ACC + 16*T; e = []
        for r in range(8): e.append(f"v_cvt_pk_bf16_f32 v{b+r}, v{b+2*r}, v{b+2*r+1}")
        e.append("s_nop 0")
        for u in range(2):
            e.append(f"v_permlane32_swap_b32 v{b+4*u}, v{b+4*u+2}")
            e.append(f"v_permlane32_swap_b32 v{b+4*u+1}, v{b+4*u+3}")
        for u in range(2): e.append(f"buffer_store_dwordx4 {vr(b+4*u,4)}, v{EA+T}, s[28:31], s47 offen offset:{u*TKV} sc1")
        return e
    gemm_loop(a, True, epi_v)
    a("s_branch L_A_done")

SWD = [56, 57, 96, 97, 100]
SEQR = [48, 56, 64]; SEQX = [24, 28, 160]; SEQS = [[40, 42], [43, 44], [51, 52]]
def side_ids(a):
    a("s_sub_u32 s53, s2, 192")
    a("s_mul_i32 s53, s53, 3")
    a(f"s_add_u32 s53, s53, s{sWAVE}")
    a("s_sub_u32 s53, s53, 5")

def side_gen(a):
    side_ids(a)
    G = 120
    a("v_lshlrev_b32 v23, 4, v3")
    a(f"s_mov_b32 s55, {f32bits(1.0/2048)}")
    a("v_cmp_gt_u32 vcc, 32, v1")
    for n in range(3):
        if n == 2:
            a("s_cmp_ge_u32 s53, 160")
            a("s_cbranch_scc1 L_sw_gen_done")
        a(f"s_add_u32 s54, s53, {192*n}")
        lp = a.label("L_gen_plain")
        a("s_lshr_b32 s41, s54, 5")
        a("s_and_b32 s58, s54, 31")
        a("s_lshr_b32 s59, s41, 1")
        a("s_lshl_b32 s59, s59, 6")
        a("s_and_b32 s47, s41, 1")
        a("s_add_u32 s59, s59, s47")
        a("v_lshl_add_u32 v4, v2, 1, s59")
        a("s_lshr_b32 s47, s58, 4")
        a("s_mul_i32 s45, s41, 65")
        a("s_add_u32 s45, s45, s58")
        a("s_add_u32 s46, s45, 33")
        a("s_add_u32 s45, s45, s47")
        a("s_lshl_b32 s45, s45, 10")
        a("s_lshl_b32 s46, s46, 10")
        a("s_and_b32 s48, s58, 15")
        a("s_lshl_b32 s48, s48, 5")
        a("s_add_u32 s48, s48, s47")
        a("v_add_u32 v5, s48, v23")
        a("v_mul_u32_u24 v5, v4, v5")
        a("v_cvt_f32_u32 v5, v5")
        a("v_cvt_f32_u32 v4, v4")
        for i in range(8):
            if i: a("v_fma_f32 v5, 2.0, v4, v5")
            a(f"v_mul_f32 v{G+i}, s55, v5")
        for i in range(8): a(f"v_fract_f32 v{G+i}, v{G+i}")
        for i in range(8): a(f"v_cos_f32 v{G+8+i}, v{G+i}")
        a("s_cmp_lg_u32 s58, 0")
        a(f"s_cbranch_scc1 {lp}")
        a("v_mul_f32 v6, 0x3e800000, v4")
        a("v_fract_f32 v6, v6")
        a(f"v_cndmask_b32 v{G}, v{G}, v6, vcc")
        a("v_cos_f32 v7, v6")
        a(f"v_mov_b32 v{SEQX[n]+1}, 0")
        a(f"v_mov_b32 v{SEQX[n]+2}, 0")
        a(f"v_mov_b32 v{SEQX[n]+3}, 0")
        a("v_cndmask_b32 v7, 0, v7, vcc")
        a(f"v_cvt_pk_bf16_f32 v{SEQX[n]}, v7, 0")
        a(f"{lp}:")
        for i in range(8): a(f"v_sin_f32 v{G+i}, v{G+i}")
        for i in range(4): a(f"v_cvt_pk_bf16_f32 v{SEQR[n]+i}, v{G+8+2*i}, v{G+9+2*i}")
        for i in range(4): a(f"v_cvt_pk_bf16_f32 v{SEQR[n]+4+i}, v{G+2*i}, v{G+1+2*i}")
        a(f"s_mov_b32 s{SEQS[n][0]}, s45")
        a(f"s_mov_b32 s{SEQS[n][1]}, s46")
    a("L_sw_gen_done:")

def side_issue(a):
    side_ids(a)
    make_srd(a, 32, pWO, 0, 819200)
    make_srd(a, 28, pWS, SEQ_OFF, WO_OFF + WO_SIZE - SEQ_OFF)
    for n in range(3):
        if n == 2:
            a("s_cmp_ge_u32 s53, 160")
            a("s_cbranch_scc1 L_sw_st_done")
        for k in range(2): a(f"buffer_store_dwordx4 {vr(SEQR[n]+4*k,4)}, v15, s[28:31], s{SEQS[n][k]} offen sc1")
        l = a.label("L_sw_nx")
        a("s_and_b32 s41, s53, 31")
        a(f"s_cbranch_scc1 {l}")
        a(f"s_add_u32 s41, s{SEQS[n][0]}, {16*1024}")
        a(f"buffer_store_dwordx4 {vr(SEQX[n],4)}, v15, s[28:31], s41 offen sc1")
        a(f"{l}:")
    a("L_sw_st_done:")
    WR = 120
    for n in range(5):
        if n == 4:
            a("s_cmp_ge_u32 s53, 32")
            a("s_cbranch_scc1 L_sw_wo_ld")
        a(f"s_add_u32 s40, s53, {192*n}")
        a("s_mul_i32 s41, s40, 1639")
        a("s_lshr_b32 s41, s41, 16")
        a("s_mul_i32 s58, s41, 40")
        a("s_sub_u32 s58, s40, s58")
        a("s_mul_i32 s59, s58, 20")
        a("s_mul_i32 s55, s58, 80")
        a("s_sub_u32 s55, s55, %d" % (32*80 - 16))
        a("s_cmp_lt_u32 s58, 32")
        a("s_cselect_b32 s45, 4, 40")
        a("s_cselect_b32 s59, s59, s55")
        a(f"s_mov_b32 s46, {20*1280}")
        a(f"s_cmov_b32 s46, {8*1280}")
        a("v_mul_u32_u24 v4, s45, v3")
        a("v_add_u32 v4, s59, v4")
        a("v_mul_u32_u24 v4, 1280, v4")
        a("s_lshl_b32 s59, s41, 6")
        a("v_lshl_add_u32 v4, v2, 1, v4")
        a("v_add_u32 v4, s59, v4")
        b = WR + 8*n
        for grp in range(2):
            so = "s46" if grp else "0"
            for i in range(4):
                a(f"buffer_load_ushort v{b+4*grp+i}, v4, s[32:35], {so} offen offset:{i*1280}")
        a("s_mul_i32 s59, s41, 52")
        a("s_lshr_b32 s59, s59, 8")
        a("s_mul_i32 s55, s59, 5")
        a("s_sub_u32 s55, s41, s55")
        a("s_mul_i32 s45, s58, 26")
        a("s_lshr_b32 s45, s45, 8")
        a("s_mul_i32 s47, s45, 10")
        a("s_sub_u32 s47, s58, s47")
        a("s_add_u32 s58, s58, 10")
        a("s_cmp_lt_u32 s55, 4")
        a("s_cselect_b32 s55, s55, s45")
        a("s_cselect_b32 s58, s58, s47")
        a("s_lshl_b32 s59, s59, 2")
        a("s_add_u32 s59, s59, s55")
        a("s_mul_i32 s59, s59, 50")
        a("s_add_u32 s59, s59, s58")
        a("s_lshl_b32 s59, s59, 10")
        a(f"s_add_u32 s{SWD[n]}, s59, {WO_OFF - SEQ_OFF}")
    a("L_sw_wo_ld:")

def side_work_finish(a):
    WR = 120
    l = a.label("L_sw_fin")
    for n in range(5):
        if n == 4:
            a("s_cmp_ge_u32 s53, 32")
            a(f"s_cbranch_scc1 {l}")
        b = WR + 8*n
        for i in range(4): a(f"v_lshl_or_b32 v{b+i}, v{b+2*i+1}, 16, v{b+2*i}")
        a(f"buffer_store_dwordx4 {vr(b,4)}, v15, s[28:31], s{SWD[n]} offen sc1")
    a(f"{l}:")

def prep(a):
    a("L_prep:")
    a(f"s_sub_u32 s40, s{sSLOT}, 24")
    a("s_and_b32 s27, s40, 1")
    a("s_lshr_b32 s26, s40, 1")
    a("s_lshl_b32 s26, s26, 3")
    a(f"s_add_u32 s26, s26, s{sXCD}")
    make_srd(a, 36, pWS, AB_OFF, AB_SIZE)
    a(f"s_cmp_ge_u32 s{sWAVE}, 5")
    a("s_cbranch_scc1 L_fold_skip")
    make_srd(a, 28, pBX, 0, X_SIZE)
    a("s_lshr_b32 s42, s26, 1")
    a("s_lshl_b32 s42, s42, 5")
    a("s_and_b32 s43, s26, 1")
    a("s_add_u32 s42, s42, s43")
    a("v_lshrrev_b32 v2, 3, v1")
    a("v_and_b32 v3, 7, v1")
    a("v_lshl_add_u32 v4, v2, 1, s42")
    a("v_mul_u32_u24 v5, 1280, v4")
    a("v_lshlrev_b32 v6, 4, v3")
    a("v_add_u32 v10, v5, v6")
    a("v_sub_u32 v7, v6, v5")
    a(f"s_lshl_b32 s44, s27, 1")
    a(f"s_add_u32 s44, s44, s{sWAVE}")
    a("s_cmp_ge_u32 s44, 5")
    a("s_cselect_b32 s45, 5, 0")
    a("s_sub_u32 s44, s44, s45")
    a("s_lshl_b32 s44, s44, 7")
    a("s_add_u32 s45, s44, 20480")
    a(f"v_add_u32 v11, {2048*1280}, v7")
    a(f"v_add_u32 v12, {1024*1280}, v7")
    a("v_cmp_ne_u32 vcc, 0, v4")
    a(f"v_mov_b32 v8, {HUGE}")
    a(f"v_add_u32 v9, {1024*1280}, v10")
    a("v_cndmask_b32 v13, v8, v9, vcc")
    LD = 32
    for hf in range(2):
        for r in range(4): a(f"buffer_load_dwordx4 {vr(LD+8*r+4*hf,4)}, v{10+r}, s[28:31], s44 offen offset:{640*hf}")
    a("v_subrev_u32 v11, 20480, v11")
    a("v_subrev_u32 v12, 20480, v12")
    for hf in range(2):
        for r, (vv, so) in enumerate([(10, 45), (11, 44), (12, 44), (9, 45)]):
            a(f"buffer_load_dwordx4 {vr(LD+32+8*r+4*hf,4)}, v{vv}, s[28:31], s{so} offen offset:{640*hf}")
    XL = 96
    a("s_cmp_lg_u32 s26, 0")
    a("s_cbranch_scc1 L_fold_nx")
    a(f"v_add_u32 v14, {512*1280}, v6")
    a(f"v_add_u32 v15, {1536*1280}, v6")
    a("v_cndmask_b32 v14, v14, v8, vcc")
    a("v_cndmask_b32 v15, v15, v8, vcc")
    for r in range(2):
        for hf in range(2):
            a(f"buffer_load_dwordx4 {vr(XL+8*r+4*hf,4)}, v{14+r}, s[28:31], s44 offen offset:{640*hf}")
    a("L_fold_nx:")
    a("v_and_b32 v5, 3, v2")
    a("v_lshrrev_b32 v4, 2, v2")
    a("v_lshl_or_b32 v5, v4, 3, v5")
    a("v_xor_b32 v5, v5, v3")
    a("v_and_b32 v4, 1, v3")
    a("v_lshl_add_u32 v5, v4, 5, v5")
    a("v_lshlrev_b32 v5, 4, v5")
    a("v_lshrrev_b32 v4, 1, v3")
    a("v_lshl_add_u32 v5, v4, 10, v5")
    a("s_lshl_b32 s45, s44, 5")
    a("v_add_u32 v16, s45, v5")
    a("v_xor_b32 v18, 64, v16")
    a("v_add_u32 v5, s44, v6")
    a("v_add_u32 v17, 40960, v5")
    a("v_lshlrev_b32 v6, 4, v1")
    a("v_add_u32 v6, 43008, v6")
    a("v_cndmask_b32 v17, v17, v6, vcc")
    a("L_fold_skip:")
    a("v_and_b32 v2, 31, v1")
    a("v_lshrrev_b32 v3, 5, v1")
    a("v_lshlrev_b32 v15, 4, v1")
    a(f"s_lshr_b32 s40, s{sWAVE}, 1")
    a("s_add_u32 s40, s40, 2")
    a(f"s_and_b32 s41, s{sWAVE}, 1")
    a(f"s_cmp_lt_u32 s{sWAVE}, 4")
    a(f"s_cselect_b32 s49, s{sWAVE}, s40")
    a("s_cselect_b32 s50, 0, s41")
    a("s_lshl_b32 s54, s49, 6")
    a("s_add_u32 s54, s54, s27")
    a("v_lshl_add_u32 v4, v2, 1, s54")
    AU = 10; SB = [[176, 184], [192, 200]]; HB = [[208, 212], [216, 220]]; UB = [72, 84, 96, 108]; ACC3 = [224, 240, 32]; PH = 112
    a("s_mul_i32 s52, s50, 20480")
    for jj in range(4):
        a(f"v_xor_b32 v5, {2*jj}, v3")
        a("v_xor_b32 v5, v5, v2")
        a("v_lshl_add_u32 v5, v3, 5, v5")
        a("v_lshlrev_b32 v5, 4, v5")
        a(f"v_add_u32 v5, {jj*1024}, v5")
        a(f"v_add_u32 v{AU+jj}, s52, v5")
    a(f"v_lshlrev_b32 v{AU+4}, 4, v3")
    a(f"v_add_u32 v{AU+4}, 40960, v{AU+4}")
    a(f"s_mov_b32 s52, {f32bits(1.0/640)}")
    a("s_cmp_lg_u32 s50, 0")
    a("s_cselect_b32 s53, 0x3e800000, 0")
    a("v_lshlrev_b32 v5, 3, v3")
    a("v_mul_u32_u24 v5, v4, v5")
    a("v_cvt_f32_u32 v5, v5")
    a("v_cvt_f32_u32 v4, v4")
    a("v_mul_f32 v6, 0x41800000, v4")
    for i in range(8):
        if i: a("v_add_f32 v5, v5, v4")
        a(f"v_mul_f32 v{PH+i}, s52, v5")
        a("v_sub_f32 v7, v5, v6")
        a(f"v_mul_f32 v{PH+8+i}, s52, v7")
    a("v_mul_f32 v6, s52, v6")
    a("v_fract_f32 v6, v6")
    for i in range(16): a(f"v_fract_f32 v{PH+i}, v{PH+i}")
    a("v_cos_f32 v19, v6")
    for i in range(16): a(f"v_sin_f32 v{SB[1][0]+i}, v{PH+i}")
    for i in range(16): a(f"v_subrev_f32 v{PH+i}, s53, v{PH+i}")
    for i in range(16): a(f"v_cos_f32 v{SB[0][0]+i}, v{PH+i}")
    a("v_add_f32 v19, v19, v19")
    for r in range(32): a(f"v_mov_b32 v{224+r}, 0")
    def cvts(jb, g): return [f"v_cvt_pk_bf16_f32 v{HB[jb][g]+d}, v{SB[jb][g]+2*d}, v{SB[jb][g]+2*d+1}" for d in range(4)]
    def rot(jb, cur): return [f"v_fma_f32 v{SB[jb][cur^1]+i}, v19, v{SB[jb][cur]+i}, -v{SB[jb][cur^1]+i}" for i in range(8)]
    for x in cvts(0, 0) + cvts(1, 0): a(x)
    a(f"s_cmp_lt_u32 s{sWAVE}, 5")
    a("s_cbranch_scc1 L_fold_go")
    side_gen(a)
    a("s_branch L_fold_done")
    a("L_fold_go:")
    a("s_cmp_lg_u32 s27, 0")
    a("s_cselect_b32 s46, -1.0, 1.0")
    a("s_mov_b32 s47, s46")
    a("s_mov_b32 s48, 0xffff0000")
    T = 112; R = 144; H = 20
    ng = "neg_lo:[0,1] neg_hi:[0,1]"
    def dfold(src, dst):
        for d in range(4):
            a(f"v_lshlrev_b32 v{dst+2*d}, 16, v{src+d}")
            a(f"v_and_b32 v{dst+2*d+1}, s48, v{src+d}")
            a(f"v_lshlrev_b32 v{H+2*(d&1)}, 16, v{src+4+d}")
            a(f"v_and_b32 v{H+2*(d&1)+1}, s48, v{src+4+d}")
            a(f"v_pk_fma_f32 {vr(dst+2*d,2)}, {vr(H+2*(d&1),2)}, s[46:47], {vr(dst+2*d,2)}")
    for n in range(2):
        a("s_waitcnt vmcnt(%d)" % (8 if n == 0 else 0))
        if n == 0: stamp(a, 9)
        b = LD + 32*n
        for r in range(4): dfold(b + 8*r, T + 8*r)
        for d in range(4):
            p = lambda r: vr(T+8*r+2*d, 2)
            q = lambda r: vr(R+8*r+2*d, 2)
            a(f"v_pk_add_f32 {q(0)}, {p(0)}, {p(1)}")
            a(f"v_pk_add_f32 {q(1)}, {p(0)}, {p(1)} {ng}")
            a(f"v_pk_add_f32 {q(2)}, {p(2)}, {p(3)}")
            a(f"v_pk_add_f32 {q(3)}, {p(2)}, {p(3)} {ng}")
            a(f"v_pk_add_f32 {p(0)}, {q(0)}, {q(2)}")
            a(f"v_pk_add_f32 {p(1)}, {q(0)}, {q(2)} {ng}")
            a(f"v_pk_add_f32 {p(2)}, {q(1)}, {q(3)} {ng}")
            a(f"v_pk_add_f32 {p(3)}, {q(1)}, {q(3)}")
        if n == 0:
            a("s_cmp_lg_u32 s26, 0")
            a("s_cbranch_scc1 L_fold_sp")
            a("s_waitcnt vmcnt(0)")
            dfold(XL, R); dfold(XL + 8, R + 8)
            for d in range(4):
                a(f"v_pk_add_f32 {vr(R+16+2*d,2)}, {vr(R+2*d,2)}, {vr(R+8+2*d,2)}")
                a(f"v_pk_add_f32 {vr(R+2*d,2)}, {vr(R+2*d,2)}, {vr(R+8+2*d,2)} {ng}")
            for e in range(8): a(f"v_cndmask_b32 v{T+24+e}, v{R+e}, v{T+24+e}, vcc")
            for d in range(4): a(f"v_cvt_pk_bf16_f32 v{R+d}, v{R+16+2*d}, v{R+17+2*d}")
            a(f"ds_write_b128 v17, {vr(R,4)}")
            a("L_fold_sp:")
        for i in range(4):
            for d in range(4): a(f"v_cvt_pk_bf16_f32 v{b+4*i+d}, v{T+8*i+2*d}, v{T+8*i+2*d+1}")
            a(f"ds_write_b128 v{16+2*n}, {vr(b+4*i,4)} offset:{(i>>1)*20480 + (i&1)*256}")
    a("L_fold_done:")
    for r in range(16): a(f"v_mov_b32 v{32+r}, 0")
    a("s_waitcnt lgkmcnt(0)")
    stamp(a, 14)
    a("s_barrier")
    stamp(a, 2)
    a(f"s_cmp_lt_u32 s{sWAVE}, 5")
    a("s_cbranch_scc1 L_no_side")
    side_issue(a)
    a("L_no_side:")
    make_srd(a, 28, pDBG, 0, 256)
    a("v_mov_b32 v16, 0")
    a("buffer_load_dwordx2 v[4:5], v16, s[28:31], 0 offen sc1")
    a("s_mul_i32 s42, s27, 6")
    a("s_add_u32 s42, s42, s49")
    a("s_cmp_gt_u32 s42, 10")
    a("s_cbranch_scc0 L_f1_go")
    a("s_waitcnt vmcnt(0)")
    a("s_branch L_prep_done")
    a("L_f1_go:")
    def ureads(j, kinds):
        jj = j & 3; o = (j >> 2) * 4096; b = UB[j & 3]; r = []
        for k in kinds:
            if k == 2: r.append(f"ds_read_b128 {vr(b+8,4)}, v{AU+4} offset:{j*32}")
            else: r.append(f"ds_read_b128 {vr(b+4*k,4)}, v{AU+jj} offset:{o + k*20480}")
        return r
    a("s_mov_b32 s45, 5")
    a("s_or_b32 s51, s26, s50")
    a("s_cmp_eq_u32 s51, 0")
    a("s_cselect_b32 s40, 1, 0")
    a(f"s_cmp_lt_u32 s{sWAVE}, 4")
    a("s_cselect_b32 s41, 2, 0")
    a("s_add_u32 s40, s40, s41")
    variants = [[0], [0, 2], [0, 1], [0, 1, 2]]
    for v in range(1, 4):
        a(f"s_cmp_eq_u32 s40, {v}")
        a(f"s_cbranch_scc1 L_f1_v{v}")
    for v, kinds in enumerate(variants):
        a(f"L_f1_v{v}:")
        nm = len(kinds)
        for x in ureads(0, kinds) + ureads(1, kinds): a(x)
        a(f"L_f1_loop{v}:")
        for jj in range(4):
            buf = jj & 1
            va = rot(0, buf) + cvts(0, buf ^ 1)
            if 1 in kinds: va = rot(0, buf) + rot(1, buf) + cvts(0, buf ^ 1) + cvts(1, buf ^ 1)
            rd = ureads(jj + 2, kinds)
            a(f"s_waitcnt lgkmcnt({nm})")
            a("s_nop 0")
            per = len(va) // nm
            for m, k in enumerate(kinds):
                d = vr(ACC3[k], 16)
                a(f"v_mfma_f32_32x32x16_bf16 {d}, {vr(UB[jj]+4*k,4)}, {vr(HB[k & 1][buf],4)}, {d}")
                a(rd[m])
                for x in va[per*m:per*m+per]: a(x)
        for r in range(4): a(f"v_add_u32 v{AU+r}, 4096, v{AU+r}")
        if 2 in kinds: a(f"v_add_u32 v{AU+4}, 128, v{AU+4}")
        a("s_sub_u32 s45, s45, 1")
        a("s_cmp_lg_u32 s45, 0")
        a(f"s_cbranch_scc1 L_f1_loop{v}")
        if v < 3: a("s_branch L_f1_done")
    a("L_f1_done:")
    stamp(a, 5)
    a("s_mul_i32 s43, s42, 33")
    a("s_and_b32 s44, s26, 1")
    a("s_lshl_b32 s44, s44, 4")
    a("s_lshr_b32 s45, s26, 1")
    a("s_add_u32 s44, s44, s45")
    a("s_add_u32 s44, s44, s43")
    a(f"s_mul_i32 s45, s50, {22*33}")
    a("s_add_u32 s44, s44, s45")
    a("s_lshl_b32 s44, s44, 10")
    a("s_waitcnt vmcnt(0) lgkmcnt(0)")
    a("s_nop 5")
    for jb in range(2):
        b = ACC3[jb]
        if jb == 1:
            a(f"s_cmp_ge_u32 s{sWAVE}, 4")
            a("s_cbranch_scc1 L_f1_one")
        for r in range(8): a(f"v_cvt_pk_bf16_f32 v{b+r}, v{b+2*r}, v{b+2*r+1}")
        for hf in range(2):
            a(f"buffer_store_dwordx4 {vr(b+4*hf,4)}, v15, s[36:39], s44 offen sc1")
            a(f"s_add_u32 s44, s44, {11*33*1024}")
    a("L_f1_one:")
    a("s_cmp_lg_u32 s51, 0")
    a("s_cbranch_scc1 L_prep_done")
    b = ACC3[2]
    for r in range(4): a(f"v_cvt_pk_bf16_f32 v{b+r}, v{b+2*r}, v{b+2*r+1}")
    a("s_add_u32 s43, s43, 32")
    a("s_lshl_b32 s43, s43, 10")
    a(f"buffer_store_dwordx4 {vr(b,4)}, v15, s[36:39], s43 offen sc1")
    a("L_prep_done:")
    a(f"s_cmp_lt_u32 s{sWAVE}, 5")
    a("s_cbranch_scc1 L_prep_fin")
    make_srd(a, 28, pWS, SEQ_OFF, WO_OFF + WO_SIZE - SEQ_OFF)
    side_work_finish(a)
    a("L_prep_fin:")
    a(f"v_readfirstlane_b32 s{sNON}, v4")
    a(f"v_readfirstlane_b32 s{sNON+1}, v5")
    a("s_nop 0")
    a(f"s_cmp_lg_u32 s{sNON}, 0")
    a("s_cbranch_scc1 L_A_done")
    get_nonce(a, 2)

W_PROG, W_GO, W_CNT, W_PASS, W_XCH, W_NON = 0, 4, 8, 16, 32, 48
def a_done(a):
    a("L_A_done:")
    stamp(a, 6)
    a(f"v_mov_b32 v23, {LDS_PROG}")
    a(f"s_cmp_lg_u32 s{sWAVE}, 4")
    a("s_cbranch_scc1 L_A_bar")
    a(f"v_mov_b32 v2, s{sNON}")
    a(f"v_mov_b32 v3, s{sNON+1}")
    a(f"ds_write_b64 v23, v[2:3] offset:{W_NON}")
    a("L_A_bar:")
    a("s_waitcnt lgkmcnt(0)")
    a("s_barrier")
    stamp(a, 4)
    a(f"s_lshr_b32 s26, s{sXCD}, 1")
    a("s_lshl_b32 s26, s26, 3")
    a(f"s_and_b32 s27, s{sSLOT}, 7")
    a("s_add_u32 s26, s26, s27")
    a(f"s_and_b32 s27, s{sXCD}, 1")
    a("s_lshl_b32 s27, s27, 2")
    a(f"s_lshr_b32 s40, s{sSLOT}, 3")
    a("s_add_u32 s27, s27, s40")
    a(f"s_cmp_ge_u32 s{sWAVE}, 4")
    a("s_cbranch_scc1 L_aux")

def drained(a, vt):
    a(f"v_mov_b32 v{vt}, 1")
    a("s_mov_b64 exec, 1")
    a(f"ds_add_u32 v23, v{vt} offset:{W_CNT}")
    a("s_mov_b64 exec, -1")

def attention(a):
    SL = OPT.get('slot', 1)
    AKA, AKB, AV, AKB2 = 4, 5, 168, 172
    AREGS = [AKA, AV, AV+1, AV+2, AV+3] + ([AKB2, AKB2+1] if SL else [AKB])
    QA = [8, 14]
    NEG = [32, 48]; S = [64, 80]; O = [96, 112]; P = 128
    KB = [136, 142]; VB = [148, 156]
    PR = 164
    a("L_attn:")
    a(f"ds_read_b32 v24, v23 offset:{W_GO}")
    a(f"ds_read_b64 v[26:27], v23 offset:{W_NON}")
    a(f"s_setprio {OPT.get('pattn', 2)}")
    a(f"s_mul_i32 s40, s26, {Q_HEAD}")
    a(f"s_add_u32 s40, s40, {Q_OFF}")
    make_srd(a, 28, pWS, "s40", Q_HEAD)
    a(f"s_mul_i32 s40, s26, {KV_HEAD}")
    make_srd(a, 32, pWS, "s40", KV_HEAD)
    a("v_and_b32 v2, 31, v1")
    a("v_lshrrev_b32 v3, 5, v1")
    a(f"v_lshlrev_b32 v{AKA}, 4, v1")
    a(f"v_lshlrev_b32 v{AKB}, 3, v2")
    a(f"v_add_u32 v{AKB}, 1024, v{AKB}")
    a(f"v_mov_b32 v20, {HUGE}")
    a("v_cmp_gt_u32 vcc, 32, v1")
    a("s_lshl_b32 s41, s27, 3")
    a(f"s_lshl_b32 s42, s{sWAVE}, 1")
    a("s_add_u32 s41, s41, s42")
    a(f"v_cndmask_b32 v20, v20, v{AKB}, vcc")
    a(f"s_mul_i32 s42, s41, {TQ}")
    a("v_and_b32 v21, 28, v2")
    a("v_add_u32 v21, v21, v2")
    a("v_lshl_add_u32 v21, v3, 2, v21")
    a("v_lshlrev_b32 v21, 4, v21")
    a("v_add_u32 v29, 1280, v21")
    a("s_mov_b32 s48, 0x000fffff")
    a("s_mov_b32 s49, 0x000fffff")
    a("s_mov_b32 s52, 0x07060302")
    a("s_waitcnt lgkmcnt(0)")
    a("v_readfirstlane_b32 s47, v24")
    a(f"v_readfirstlane_b32 s{sNON}, v26")
    a(f"v_readfirstlane_b32 s{sNON+1}, v27")
    a("s_mov_b32 s50, s47")
    a("s_cmp_lg_u32 s47, 0")
    a("s_cbranch_scc1 L_attn_go")
    a("s_waitcnt vmcnt(0)")
    stamp(a, 3)
    drained(a, 24)
    a("L_attn_spin:")
    a(f"s_sleep {OPT.get('asl', 1)}")
    a(f"ds_read_b32 v24, v23 offset:{W_GO}")
    a("s_waitcnt lgkmcnt(0)")
    a("v_readfirstlane_b32 s47, v24")
    a("s_nop 0")
    a("s_cmp_eq_u32 s47, 0")
    a("s_cbranch_scc1 L_attn_spin")
    a("L_attn_go:")
    stamp(a, 7); stamp(a, 7, 2); stamp_real(a, 8, 2)
    a("s_sub_u32 s47, s47, 1")
    a(f"s_mul_i32 s47, s47, {4*TKV}")
    for q in range(2):
        a(f"buffer_load_dwordx4 {vr(QA[q],4)}, v{AKA}, s[28:31], s42 offen offset:{q*TQ} sc1")
        a(f"buffer_load_dwordx2 {vr(QA[q]+4,2)}, v20, s[28:31], s42 offen offset:{q*TQ} sc1")
    a(f"buffer_load_dwordx4 {vr(KB[0],4)}, v{AKA}, s[32:35], s47 offen sc1")
    if SL:
        for b in KB:
            a(f"v_mov_b32 v{b+4}, 0x3f803f80")
            a(f"v_mov_b32 v{b+5}, 0x3f80")
        a("s_mov_b32 exec_hi, 0")
    a(f"buffer_load_dwordx2 {vr(KB[0]+4,2)}, v{AKB}, s[32:35], s47 offen sc1")
    if SL: a("s_mov_b64 exec, -1")
    a("v_mov_b32 v24, 0x3f803f80")
    a("v_cmp_eq_u32 vcc, 20, v2")
    a(f"s_add_u32 s43, s47, {TKV}")
    a("s_nop 0")
    a("v_cndmask_b32 v24, 0, v24, vcc")
    for r in range(16): a(f"v_mov_b32 v{VB[0]+r}, v24")
    a(f"buffer_load_dwordx4 {vr(KB[1],4)}, v{AKA}, s[32:35], s43 offen sc1")
    if SL: a("s_mov_b32 exec_hi, 0")
    a(f"buffer_load_dwordx2 {vr(KB[1]+4,2)}, v{AKB}, s[32:35], s43 offen sc1")
    a("s_mov_b64 exec, s[48:49]")
    a(f"buffer_load_dwordx4 {vr(VB[0],4)}, v29, s[32:35], s47 offen sc1")
    a(f"buffer_load_dwordx4 {vr(VB[0]+4,4)}, v29, s[32:35], s47 offen offset:640 sc1")
    a(f"buffer_load_dwordx4 {vr(VB[1],4)}, v29, s[32:35], s43 offen sc1")
    a(f"buffer_load_dwordx4 {vr(VB[1]+4,4)}, v29, s[32:35], s43 offen offset:640 sc1")
    a("s_mov_b64 exec, -1")
    a("s_cmp_eq_u32 s50, 0")
    a("s_cbranch_scc1 L_attn_cnt")
    a("s_waitcnt vmcnt(12)")
    stamp(a, 3)
    drained(a, 24)
    a("L_attn_cnt:")
    a("v_mov_b32 v22, 5120")
    if OPT.get('zr', 1):
        a("v_cmp_lt_u32 vcc, 20, v2")
        a("v_mov_b32 v21, 5136")
        a("s_nop 0")
        a("v_cndmask_b32 v22, v22, v21, vcc")
    a("v_cmp_gt_u32 vcc, 20, v2")
    for i in range(4): a(f"v_add_u32 v{AV+i}, {(i>>1)*TKV + (i&1)*640}, v29")
    for i in range(4): a(f"v_cndmask_b32 v{AV+i}, v22, v{AV+i}, vcc")
    if SL:
        a("v_cmp_gt_u32 vcc, 32, v1")
        a("v_mov_b32 v22, 5152")
        a(f"v_add_u32 v21, {TKV}, v{AKB}")
        a(f"v_cndmask_b32 v{AKB2}, v22, v{AKB}, vcc")
        a(f"v_cndmask_b32 v{AKB2+1}, v22, v21, vcc")
    make_srd(a, 36, pWS, O_OFF, O_SIZE)
    for q in range(2):
        for r in range(16): a(f"v_mov_b32 v{O[q]+r}, 0")
    LOOPED = [False]
    mm16 = "v_mfma_f32_32x32x16_bf16"; mm8 = "v_mfma_f32_32x32x8_bf16"
    def M1(s, t, q, c): return "s_nop 1" if OPT.get('nom1') and c == "0" and LOOPED[0] else f"{mm16} {vr(s,16)}, {vr(KB[t&1],4)}, {vr(QA[q],4)}, {c}"
    def M2(s, t, q): return "s_nop 0" if OPT.get('nom2') and LOOPED[0] else f"{mm8} {vr(s,16)}, {vr(KB[t&1]+4,2)}, {vr(QA[q]+4,2)}, {vr(s,16)}"
    def M3(t, q): return "s_nop 1" if OPT.get('nopv') else f"{mm16} {vr(O[q],16)}, {vr(VB[t&1],4)}, {vr(P,4)}, {vr(O[q],16)}"
    def M4(t, q): return "s_nop 1" if OPT.get('nopv') else f"{mm16} {vr(O[q],16)}, {vr(VB[t&1]+4,4)}, {vr(P+4,4)}, {vr(O[q],16)}"
    def rowmax(src, dst, first):
        if first:
            a(f"v_max3_f32 v{dst}, v{src}, v{src+1}, v{src+2}")
            a(f"v_max_f32 v{dst}, v{dst}, v{src+15}")
            rng = range(3, 15, 2)
        else: rng = range(0, 16, 2)
        for r in rng: a(f"v_max3_f32 v{dst}, v{dst}, v{src+r}, v{src+r+1}")
    def finish_neg(add):
        a("v_mov_b32 v26, v24")
        a("v_mov_b32 v27, v25")
        a("s_nop 1")
        a("v_permlane32_swap_b32 v24, v26")
        a("v_permlane32_swap_b32 v25, v27")
        a("s_nop 1")
        a("v_max_f32 v24, v24, v26")
        a("v_max_f32 v25, v25, v27")
        if not SL:
            for q in range(2):
                a(f"v_sub_f32 v{NEG[q]}, {add}, v{24+q}")
                for r in range(1, 16): a(f"v_mov_b32 v{NEG[q]+r}, v{NEG[q]}")
            return
        a("s_mov_b32 s45, 0xffff0000")
        a("s_mov_b32 s46, 0x07060302")
        for q in range(2):
            a(f"v_sub_f32 v{24+q}, {add}, v{24+q}")
        for q in range(2):
            a(f"v_and_b32 v26, s45, v{24+q}")
            a(f"v_sub_f32 v27, v{24+q}, v26")
            a("v_and_b32 v28, s45, v27")
            a("v_sub_f32 v27, v27, v28")
            a("v_perm_b32 v26, v28, v26, s46")
            a("v_lshrrev_b32 v27, 16, v27")
            a("s_mov_b32 exec_lo, 0")
            a(f"v_mov_b32 v{QA[q]+4}, v26")
            a(f"v_mov_b32 v{QA[q]+5}, v27")
            a("s_mov_b64 exec, -1")
        a("s_nop 1")
    CNEG = lambda q: "0" if SL else vr(NEG[q], 16)
    a("s_waitcnt vmcnt(6)")
    stamp(a, 8)
    def neg_one(q, add):
        a(f"v_mov_b32 v26, v{24+q}")
        a("s_nop 1")
        a(f"v_permlane32_swap_b32 v{24+q}, v26")
        a("s_nop 0")
        a(f"v_max_f32 v{24+q}, v{24+q}, v26")
        a(f"v_sub_f32 v{24+q}, {add}, v{24+q}")
        a(f"v_and_b32 v26, s45, v{24+q}")
        a(f"v_sub_f32 v27, v{24+q}, v26")
        a("v_and_b32 v28, s45, v27")
        a("v_sub_f32 v27, v27, v28")
        a("s_mov_b32 exec_lo, 0")
        a(f"v_perm_b32 v{QA[q]+4}, v28, v26, s46")
        a(f"v_lshrrev_b32 v{QA[q]+5}, 16, v27")
        a("s_mov_b64 exec, -1")
    OFFS = hex(f32bits(-float(OPT.get('off', 100))))
    a(M1(S[0], 0, 0, "0")); a(M2(S[0], 0, 0))
    a(M1(S[1], 0, 1, "0")); a(M2(S[1], 0, 1))
    a("s_mov_b32 s45, 0xffff0000")
    a("s_mov_b32 s46, 0x07060302")
    a(f"ds_read_b32 v{PR}, v23")
    a("s_nop 6")
    rowmax(S[0], 24, True)
    neg_one(0, OFFS)
    a("s_nop 0")
    a(M1(S[0], 0, 0, CNEG(0)))
    a(M2(S[0], 0, 0))
    rowmax(S[1], 25, True)
    neg_one(1, OFFS)
    a("s_waitcnt vmcnt(0)")
    def check(need):
        l = a.label("L_chk"); ok = a.label("L_chkok")
        a(f"{l}:")
        a("s_waitcnt lgkmcnt(0)")
        a(f"v_readfirstlane_b32 s44, v{PR}")
        a("s_nop 0")
        a(f"s_cmp_ge_u32 s44, {need}")
        a(f"s_cbranch_scc1 {ok}")
        a(f"ds_read_b32 v{PR}, v23")
        a(f"s_branch {l}")
        a(".p2align 3")
        a(f"{ok}:")
    def unit(t, q, s4=(), s1=(), s2=(), s3=(), first=False, nonext=False):
        s = S[q]; sn = S[q ^ 1]
        t1, q1 = (t, 1) if q == 0 else (t + 1, 0)
        tp, qp = (t - 1, 1) if q == 0 else (t, 0)
        E = lambda r: a(f"v_exp_f32 v{s+r}, v{s+r}")
        C = lambda j: a(f"v_perm_b32 v{P+j}, v{s+2*j+1}, v{s+2*j}, s52" if OPT.get('perm') else f"v_cvt_pk_bf16_f32 v{P+j}, v{s+2*j}, v{s+2*j+1}")
        al = OPT.get('al', 0)
        EW = lambda r: a(f"v_exp_f32_e64 v{s+r}, v{s+r}") if al else E(r)
        odd = lambda xs: sum(1 for x in xs if x.startswith("s_")) & 1
        E(0); E(1)
        if not first: a(M4(tp, qp))
        for x in s4: a(x)
        (E if odd(s4) else EW)(2); E(3); E(4)
        if not nonext: a(M1(sn, t1, q1, CNEG(q1)))
        for x in s1: a(x)
        EW(5); E(6); E(7)
        for j in range(4): C(j)
        if OPT.get('m2l'): EW(8)
        if not nonext: a(M2(sn, t1, q1))
        for x in s2: a(x)
        if not OPT.get('m2l'): EW(8)
        for r in range(9, 13): E(r)
        a(M3(t, q))
        for x in s3: a(x)
        (E if odd(s3) else EW)(13); E(14); E(15)
        for j in range(4, 8): C(j)
    def period(t, o, extra3=()):
        if OPT.get('nods') and LOOPED[0]: o = None
        if o is None:
            if extra3:
                unit(t, 1, s4=["s_waitcnt lgkmcnt(0)"]); unit(t + 1, 0, s3=extra3); return
            unit(t, 1, s4=["s_waitcnt lgkmcnt(0)"]); unit(t + 1, 0); return
        kb = KB[t & 1]; vb = VB[t & 1]
        ok = lds_tile(o + 2); ov = (o >> 1) * LPAIR; av = AV + 2*(o & 1)
        unit(t, 1, s4=["s_waitcnt lgkmcnt(0)"],
             s1=[f"ds_read_b128 {vr(kb,4)}, v{AKA} offset:{ok}"],
             s3=[f"ds_read_b64 {vr(kb+4,2)}, v{AKB2+(o&1)} offset:{ov}" if SL else f"ds_read_b64 {vr(kb+4,2)}, v{AKB} offset:{ok}"])
        unit(t + 1, 0, s4=[f"ds_read_b128 {vr(vb,4)}, v{av} offset:{ov}"],
             s1=[f"ds_read_b128 {vr(vb+4,4)}, v{av+1} offset:{ov}"], s3=extra3)
    rdp = [f"ds_read_b32 v{PR}, v23"]
    a(".p2align 3")
    unit(0, 0, first=True)
    stamp(a, 9)
    check(1)
    for t in range(6):
        if t == 2: check(2)
        period(t, t, rdp if t in (1, 5) else ())
    for r in AREGS: a(f"v_add_u32 v{r}, {3*LPAIR}, v{r}")
    a(f"s_lshl_b32 s45, s{sWAVE}, 2")
    a("v_add_u32 v24, s45, v23")
    a(f"ds_write_b32 v24, v23 offset:{W_PASS}")
    a("s_mov_b32 s45, 2")
    a("s_mov_b32 s46, 7")
    stamp(a, 10); stamp(a, 10, 2); stamp_real(a, 12, 2)
    LOOPED[0] = True
    def body(chk):
        for k in range(8):
            ex = ()
            if k == 7: ex = (rdp if chk else [])
            if k == 6: ex = ["s_sub_u32 s46, s46, 1"]
            if k == 7 and not chk: ex = ["s_cmp_lg_u32 s46, 0"]
            period(k, k, ex)
        for r in AREGS: a(f"v_add_u32 v{r}, {4*LPAIR}, v{r}")
    a("s_cmp_eq_u32 s44, 16")
    a("s_cbranch_scc1 L_attn_fast")
    a(".p2align 3")
    a("L_attn_loop:")
    a("s_add_u32 s45, s45, 2")
    check("s45")
    body(True)
    a("s_cmp_eq_u32 s46, 0")
    a("s_cbranch_scc1 L_attn_last")
    a("s_cmp_lg_u32 s44, 16")
    a("s_cbranch_scc1 L_attn_loop")
    a(f".p2align {OPT.get('lal', 3)}")
    a("L_attn_fast:")
    body(False)
    a("s_cbranch_scc1 L_attn_fast")
    a(".p2align 3")
    a("L_attn_last:")
    period(62, None)
    unit(63, 1, nonext=True)
    a("s_nop 1")
    a(M4(63, 1))
    stamp(a, 11); stamp(a, 11, 2); stamp_real(a, 13, 2)
    a("L_attn_post:")
    a("s_lshl_b32 s42, s41, 5")
    a("s_add_u32 s42, s42, s26")
    a("s_mul_i32 s42, s42, 1280")
    a("v_lshlrev_b32 v21, 4, v1")
    for q in range(2):
        a(f"v_mov_b32 v{24+q}, v{O[q]+8}")
        a(f"v_mov_b32 v26, v{O[q]+8}")
        a("s_nop 1")
        a(f"v_permlane32_swap_b32 v26, v{24+q}")
        a("s_nop 0")
        a(f"v_rcp_f32 v26, v{24+q}")
        a("s_nop 0")
        for r in range(12): a(f"v_mul_f32 v{S[q]+r}, v{O[q]+r}, v26")
        for r in range(6): a(f"v_cvt_pk_bf16_f32 v{S[q]+r}, v{S[q]+2*r}, v{S[q]+2*r+1}")
        a(f"buffer_store_dwordx4 {vr(S[q],4)}, v21, s[36:39], s42 offen sc1")
        a(f"buffer_store_dwordx2 {vr(S[q]+4,2)}, v20, s[36:39], s42 offen sc1")
        if q == 0: a(f"s_add_u32 s42, s42, {32*1280}")
    a("s_cmp_eq_u32 s46, 0")
    a("s_cbranch_scc0 L_attn_fin")
    for q in range(2):
        a(f"v_max3_f32 v{30+q}, abs(v{O[q]}), abs(v{O[q]+1}), abs(v{O[q]+2})")
        a(f"v_mul_f32 v{26+q}, 0, v{24+q}")
    for r in range(12):
        for q in range(2): a(f"v_fma_f32 v{26+q}, v{O[q]+r}, 0, v{26+q}")
    for q in range(2):
        a(f"v_max3_f32 v{30+q}, v{30+q}, abs(v{O[q]+3}), abs(v{O[q]+4})")
        a(f"v_max3_f32 v{30+q}, v{30+q}, abs(v{O[q]+5}), abs(v{O[q]+6})")
        a(f"v_max_f32 v{30+q}, v{30+q}, abs(v{O[q]+7})")
    a("v_max_f32 v24, v24, v25")
    a("v_min_f32 v30, v30, v31")
    a("v_mov_b32 v28, 0x76800000")
    a("v_mov_b32 v31, 0x08800000")
    a("v_cmp_u_f32 s[44:45], v26, v27")
    a("v_cmp_nlt_f32 vcc, v24, v28")
    a("v_cmp_lt_f32 s[50:51], v30, v31")
    a("s_nop 1")
    a("s_or_b64 vcc, vcc, s[44:45]")
    a("s_or_b64 vcc, vcc, s[50:51]")
    if OPT.get('forcefb'): a("s_mov_b64 vcc, -1")
    a("s_cbranch_vccnz L_attn_fallback")
    a("L_attn_fin:")
    if OPT.get('apoll', 0): prod_flags(a, 12, 13)
    a("s_lshl_b32 s40, s2, 2")
    a(f"s_add_u32 s40, s40, s{sWAVE}")
    a(f"s_add_u32 s40, s40, {FB}")
    a("s_lshl_b32 s40, s40, 7")
    for i in range(4): a(f"v_mov_b32 v{8+i}, s{sNON+(i&1)}")
    a("s_waitcnt vmcnt(0)")
    stamp(a, 12)
    a("s_mov_b64 exec, %s" % ("1" if OPT.get('f16') or OPT.get('fat') else "0xff"))
    if OPT.get('fat'): a(f"buffer_atomic_swap_x2 v[8:9], v21, {sr(sFL,4)}, s40 offen" + (" sc1" if OPT['fat'] == 2 else ""))
    elif OPT.get('fnt'): a(f"buffer_store_dwordx4 v[8:11], v21, {sr(sFL,4)}, s40 offen sc0 sc1")
    else: a(f"buffer_store_dwordx4 v[8:11], v21, {sr(sFL,4)}, s40 offen sc1")
    a("s_mov_b64 exec, -1")
    a("s_barrier")
    if OPT.get('apoll', 0):
        a(f"s_cmp_lg_u32 s{sWAVE}, 0")
        a("s_cbranch_scc1 L_end")
        if OPT.get('apoll', 0) > 1: poll_piped(a, 12, 14, OPT.get('apoll', 0))
        else: poll(a, 12, 14, sleep=0)
        a("s_barrier")
    a("s_branch L_end")
    a("L_attn_fallback:")
    a("s_waitcnt vmcnt(0)")
    for r in ((AKA,) if SL else (AKA, AKB)): a(f"v_subrev_u32 v{r}, {31*LPAIR}, v{r}")
    if SL:
        a("s_mov_b32 exec_lo, 0")
        for q in range(2):
            a(f"v_mov_b32 v{QA[q]+4}, 0")
            a(f"v_mov_b32 v{QA[q]+5}, 0")
        a("s_mov_b64 exec, -1")
    a("v_mov_b32 v24, 0xff800000")
    a("v_mov_b32 v25, 0xff800000")
    a("s_mov_b32 s46, 0")
    a("L_fb_max:")
    a(f"buffer_load_dwordx4 {vr(KB[0],4)}, v{AKA}, s[32:35], s46 offen sc1")
    if SL: a("s_mov_b32 exec_hi, 0")
    a(f"buffer_load_dwordx2 {vr(KB[0]+4,2)}, v{AKB}, s[32:35], s46 offen sc1")
    if SL: a("s_mov_b64 exec, -1")
    a("s_waitcnt vmcnt(0)")
    for q in range(2): a(M1(S[q], 0, q, "0"))
    for q in range(2): a(M2(S[q], 0, q))
    a("s_nop 15")
    rowmax(S[0], 24, False)
    rowmax(S[1], 25, False)
    a(f"s_add_u32 s46, s46, {TKV}")
    a(f"s_cmp_lt_u32 s46, {KV_HEAD}")
    a("s_cbranch_scc1 L_fb_max")
    finish_neg("0")
    for q in range(2):
        for r in range(16): a(f"v_mov_b32 v{O[q]+r}, 0")
    a("s_mov_b32 s46, 0")
    a("L_fb_main:")
    a(f"buffer_load_dwordx4 {vr(KB[0],4)}, v{AKA}, s[32:35], s46 offen sc1")
    if SL: a("s_mov_b32 exec_hi, 0")
    a(f"buffer_load_dwordx2 {vr(KB[0]+4,2)}, v{AKB}, s[32:35], s46 offen sc1")
    if SL: a("s_mov_b64 exec, -1")
    a("s_mov_b64 exec, s[48:49]")
    a(f"buffer_load_dwordx4 {vr(VB[0],4)}, v29, s[32:35], s46 offen sc1")
    a(f"buffer_load_dwordx4 {vr(VB[0]+4,4)}, v29, s[32:35], s46 offen offset:640 sc1")
    a("s_mov_b64 exec, -1")
    a("s_waitcnt vmcnt(0)")
    for q in range(2): a(M1(S[q], 0, q, CNEG(q)))
    for q in range(2): a(M2(S[q], 0, q))
    a("s_nop 15")
    for q in range(2):
        for r in range(16): a(f"v_exp_f32 v{S[q]+r}, v{S[q]+r}")
        a("s_nop 0")
        for j in range(8): a(f"v_cvt_pk_bf16_f32 v{P+j}, v{S[q]+2*j}, v{S[q]+2*j+1}")
        a("s_nop 1")
        a(M3(0, q)); a(M4(0, q))
    a(f"s_add_u32 s46, s46, {TKV}")
    a(f"s_cmp_lt_u32 s46, {KV_HEAD}")
    a("s_cbranch_scc1 L_fb_main")
    a("s_nop 15")
    a("s_branch L_attn_post")

def aux(a):
    a("L_aux:")
    a(f"s_setprio {OPT.get('paux', 0)}")
    a(f"s_sub_u32 s44, s{sWAVE}, 4")
    a("v_lshlrev_b32 v2, 4, v1")
    a("s_waitcnt vmcnt(0)")
    drained(a, 3)
    a("s_cmp_eq_u32 s44, 0")
    a("s_cbranch_scc1 L_kv")
    a("s_cmp_lg_u32 s44, 1")
    a("s_cbranch_scc1 L_aux_wait")
    a("s_lshl_b32 s40, s2, 7")
    a("L_cnt_spin:")
    a(f"s_sleep {OPT.get('asl', 1)}")
    a(f"ds_read_b32 v3, v23 offset:{W_CNT}")
    a("s_waitcnt lgkmcnt(0)")
    a("v_readfirstlane_b32 s41, v3")
    a("s_nop 0")
    a("s_cmp_lt_u32 s41, 8")
    a("s_cbranch_scc1 L_cnt_spin")
    stamp(a, 7)
    set_flag(a, 40, 8, also=FL1*128 if OPT.get('lf', 1) else None)
    a("L_aux_wait:")
    a(f"s_sleep {OPT.get('wsl', 16)}")
    a(f"ds_read_b32 v3, v23 offset:{W_PROG}")
    a("s_waitcnt lgkmcnt(0)")
    a("v_readfirstlane_b32 s41, v3")
    a("s_nop 0")
    a(f"s_cmp_lt_u32 s41, {OPT.get('f2w', 6)}")
    a("s_cbranch_scc1 L_aux_wait")
    if OPT.get('dyn', 1):
        a("s_cmp_lg_u32 s44, 1")
        a("s_cbranch_scc1 L_kv_done")
        make_srd(a, 28, pDBG, 0, 256)
        a("v_mov_b32 v3, 1")
        a("v_mov_b32 v4, 128")
        a("s_mov_b64 exec, 1")
        a("buffer_atomic_add v3, v4, s[28:31], 0 offen sc0")
        a("s_waitcnt vmcnt(0)")
        a("v_add_u32 v3, 1, v3")
        a("ds_write_b32 v23, v3 offset:12")
        a("s_mov_b64 exec, -1")
    a("s_branch L_kv_done")
    a("L_kv:")
    a(f"s_mul_i32 s40, s26, {KV_HEAD}")
    make_srd(a, 28, pWS, "s40", KV_HEAD)
    a(f"v_mul_u32_u24 v6, {LPAIR}, v1")
    a("v_min_u32 v6, %d, v6" % (30*LPAIR))
    for r in range(4): a(f"v_mov_b32 v{8+r}, 0x3f803f80")
    a("ds_write_b128 v6, v[8:11] offset:5120")
    for r in range(4): a(f"v_mov_b32 v{12+r}, 0")
    a("ds_write_b128 v6, v[12:15] offset:5136")
    a("v_mov_b32 v16, 0x3f803f80")
    a("v_mov_b32 v17, 0x3f80")
    a("ds_write_b64 v6, v[16:17] offset:5152")
    a("s_lshr_b32 s41, s26, 3")
    a("s_lshl_b32 s41, s41, 1")
    a(f"s_and_b32 s43, s{sXCD}, 1")
    a("s_lshl_b32 s43, s43, 3")
    a("s_lshl_b32 s42, s27, 1")
    a("v_and_b32 v3, 15, v1")
    a("v_lshrrev_b32 v5, 4, v1")
    a("v_add_u32 v5, 1, v5")
    a("v_and_b32 v4, 7, v1")
    a("v_add_u32 v4, s43, v4")
    a("v_bfe_u32 v6, v1, 3, 1")
    a("v_add_u32 v6, 1, v6")
    a("v_cmp_gt_u32 vcc, 32, v1")
    a("v_and_b32 v7, 1, v1")
    a("v_add_u32 v7, s42, v7")
    a("v_cndmask_b32 v3, v4, v3, vcc")
    a("v_cndmask_b32 v5, v6, v5, vcc")
    a("v_cmp_gt_u32 vcc, 48, v1")
    a("v_add_u32 v6, -48, v1")
    a(f"v_mov_b32 v4, {FL1}")
    a("v_cndmask_b32 v3, v7, v3, vcc")
    a("v_cndmask_b32 v5, 0, v5, vcc")
    a("v_cmp_gt_u32 vcc, 2, v6")
    a("v_cmp_gt_u32 s[46:47], 32, v1")
    a("v_and_b32 v7, 7, v3")
    a("v_lshl_add_u32 v5, v5, 3, v7")
    a("s_or_b64 vcc, vcc, s[46:47]")
    a("v_lshrrev_b32 v3, 3, v3")
    a("v_add_u32 v3, s41, v3")
    a("v_cndmask_b32 v4, v4, 0, vcc")
    a("v_lshl_add_u32 v5, v5, 3, v3")
    a("v_add_u32 v5, v5, v4")
    a("v_lshlrev_b32 v5, 7, v5")
    def poll_once(first=False):
        if first and OPT.get('lf', 1):
            a("s_and_b32 s48, s40, 7")
            a("s_cmp_eq_u32 s48, 0")
            a("s_cselect_b32 exec_lo, -1, 0")
            a("s_cselect_b32 exec_hi, -1, 0xcffff")
        a(f"buffer_load_dwordx2 v[6:7], v5, {sr(sFL,4)}, 0 offen sc1")
        if first and OPT.get('lf', 1): a("s_mov_b64 exec, -1")
        a("s_waitcnt vmcnt(0)")
        a(f"v_cmp_eq_u64 vcc, {sr(sNON,2)}, v[6:7]")
        a("s_sub_u32 s40, s40, 1")
        a("s_cselect_b32 s47, 0xffff, 0")
        a("s_and_b32 s48, vcc_hi, 0xff")
        a("s_lshl_b32 s48, s48, s43")
        a("s_or_b32 s48, s48, vcc_lo")
        a("s_bfe_u32 s49, vcc_hi, 0x80008")
        a("s_lshl_b32 s49, s49, s43")
        a("s_lshr_b32 s45, vcc_lo, 16")
        a("s_or_b32 s45, s45, s49")
        a("s_and_b32 s45, s45, s48")
        a("s_or_b32 s45, s45, s47")
    def pub(off, sreg):
        a(f"v_mov_b32 v4, s{sreg}")
        a(f"ds_write_b32 v23, v4 offset:{off}")
    a(f"s_mov_b32 s40, {POLL_MAX - 1}")
    a("v_mov_b32 v6, 0")
    a("v_mov_b32 v7, 0")
    if OPT.get('padgo'):
        a("L_padgo:")
        a("s_memrealtime s[42:43]")
        a("s_waitcnt lgkmcnt(0)")
        a(f"s_sub_u32 s42, s42, s{sNON}")
        a(f"s_cmp_lt_u32 s42, {OPT['padgo']}")
        a("s_cbranch_scc1 L_padgo")
    a("L_kv_p1:")
    a(f"s_sleep {OPT.get('ksl', 1)}")
    poll_once(True)
    a("s_cmp_lg_u32 s47, 0")
    a("s_cbranch_scc1 L_kv_first")
    a("s_lshr_b32 s48, vcc_hi, 16")
    a("s_lshr_b32 s49, vcc_hi, 18")
    a("s_or_b32 s48, s48, s49")
    a("s_and_b32 s48, s48, 3")
    a("s_cmp_eq_u32 s48, 3")
    a("s_cselect_b32 s48, s45, 0")
    a("s_cmp_eq_u32 s48, 0")
    a("s_cbranch_scc1 L_kv_p1")
    a("L_kv_first:")
    a("s_ff1_i32_b32 s48, s45")
    a("s_add_u32 s49, s48, 1")
    pub(W_GO, 49)
    stamp(a, 7)
    a("s_lshl_b32 s46, 1, s48")
    a(f"s_mul_i32 s48, s48, {4*TKV}")
    a(f"s_add_u32 s48, s48, {2*TKV}")
    for i in range(5):
        a(f"s_mov_b32 m0, {i*1024}")
        a("s_nop 0")
        a("buffer_load_dwordx4 v2, s[28:31], s48 offen sc1 lds")
        if i < 4: a("s_add_u32 s48, s48, 1024")
    a("s_mov_b32 s50, 1")
    a(f"s_mov_b32 s51, {LPAIR}")
    a("L_kv_next:")
    a("s_andn2_b32 s48, s45, s46")
    a("s_cbranch_scc0 L_kv_poll")
    a("s_ff1_i32_b32 s48, s48")
    a("s_bitset1_b32 s46, s48")
    a(f"s_mul_i32 s48, s48, {4*TKV}")
    for i in range(10):
        a(f"s_add_u32 m0, s51, {i*1024 + (64 if i >= 5 else 0)}")
        if i: a("s_add_u32 s48, s48, 1024")
        else: a("s_nop 0")
        a("buffer_load_dwordx4 v2, s[28:31], s48 offen sc1 lds")
    a(f"s_add_u32 s51, s51, {2*LPAIR}")
    a("s_cmp_eq_u32 s50, 1")
    a("s_cbranch_scc0 L_kv_w20")
    a("s_waitcnt vmcnt(10)")
    pub(W_PROG, 50)
    a("s_mov_b32 s50, 2")
    a("s_branch L_kv_next")
    a("L_kv_w20:")
    a("s_waitcnt vmcnt(20)")
    a("s_sub_u32 s49, s50, 1")
    pub(W_PROG, 49)
    a("s_add_u32 s50, s50, 1")
    a("s_branch L_kv_next")
    a("L_kv_poll:")
    a("s_waitcnt vmcnt(0)")
    pub(W_PROG, 50)
    a("s_cmp_eq_u32 s50, 16")
    a("s_cbranch_scc1 L_kv_done")
    poll_once()
    a("s_branch L_kv_next")
    a("L_kv_done:")
    if OPT.get('f2s', 16):
        a("s_branch L_all0")
        a("L_all:")
        a(f"s_sleep {OPT.get('wsl', 16)}")
        a("L_all0:")
        a(f"ds_read_b32 v3, v23 offset:{W_PROG}")
        a("s_waitcnt lgkmcnt(0)")
        a("v_readfirstlane_b32 s41, v3")
        a("s_nop 0")
        a(f"s_cmp_lt_u32 s41, {OPT.get('f2s', 16)}")
        a("s_cbranch_scc1 L_all")
    stamp(a, 8)
    a("v_lshlrev_b32 v5, 7, v1")
    a(f"v_add_u32 v5, {192*128}, v5")
    poll(a, 5, 6, sleep=4)
    a(f"s_setprio {OPT.get('pf2', 3)}")
    if OPT.get('dyn', 1):
        a("s_branch L_item0")
        a("L_item:")
        a("s_sleep 8")
        a("L_item0:")
        a("ds_read_b32 v3, v23 offset:12")
        a("s_waitcnt lgkmcnt(0)")
        a("v_readfirstlane_b32 s40, v3")
        a("s_nop 0")
        a("s_cmp_eq_u32 s40, 0")
        a("s_cbranch_scc1 L_item")
        a("s_sub_u32 s40, s40, 1")
    else:
        a(f"s_sub_u32 s40, 31, s{sSLOT}")
        a("s_cmp_ge_u32 s40, 24")
        a("s_cbranch_scc1 L_wo")
        a(f"s_mul_i32 s41, s{sXCD}, 24")
        a("s_add_u32 s40, s40, s41")
    a("s_cmp_ge_u32 s40, %d" % (0 if OPT.get('nof2') else 187))
    a("s_cbranch_scc1 L_wo")
    a("s_mul_i32 s41, s40, 373")
    a("s_lshr_b32 s41, s41, 12")
    a("s_mul_i32 s42, s41, 11")
    a("s_sub_u32 s42, s40, s42")
    a("s_lshl_b32 s41, s41, 1")
    a("s_cmp_ge_u32 s41, 18")
    a("s_cselect_b32 s43, 17, 0")
    a("s_sub_u32 s41, s41, s43")
    a("s_and_b32 s43, s41, 1")
    a("s_lshl_b32 s45, s44, 4")
    a("s_min_u32 s46, s44, 1")
    a("s_add_u32 s46, s46, s45")
    a("s_mul_i32 s47, s41, 65")
    a("s_add_u32 s47, s47, s46")
    a("s_lshl_b32 s47, s47, 10")
    a(f"s_add_u32 s47, s47, {SEQ_OFF}")
    make_srd(a, 28, pWS, "s47", 17*1024)
    a("s_and_b32 s47, s44, 2")
    a("s_add_u32 s47, s47, s43")
    a("s_mul_i32 s48, s47, 11")
    a("s_add_u32 s48, s48, s42")
    a("s_mul_i32 s48, s48, 33")
    a("s_and_b32 s45, s45, 16")
    a("s_add_u32 s48, s48, s45")
    a("s_lshl_b32 s48, s48, 10")
    a(f"s_add_u32 s48, s48, {AB_OFF}")
    make_srd(a, 32, pWS, "s48", 33*1024)
    make_srd(a, 36, pOUT, 0, OUT_SIZE)
    FB = 64; AC = 8
    a("s_or_b32 s47, s44, s43")
    a("s_cmp_lg_u32 s47, 0")
    a("s_cbranch_scc1 L_f2_nox")
    a(f"s_mov_b32 s49, {16*1024}")
    a("buffer_load_dwordx4 v[24:27], v2, s[28:31], s49 offen sc1")
    a(f"s_mov_b32 s49, {32*1024}")
    a("buffer_load_dwordx4 v[28:31], v2, s[32:35], s49 offen sc1")
    a("L_f2_nox:")
    for k in range(16):
        b = FB + k * 8
        if k % 4 == 0: a(f"s_mov_b32 s49, {(k//4)*4096}")
        a(f"buffer_load_dwordx4 {vr(b,4)}, v2, s[28:31], s49 offen offset:{(k%4)*1024} sc1")
        a(f"buffer_load_dwordx4 {vr(b+4,4)}, v2, s[32:35], s49 offen offset:{(k%4)*1024} sc1")
    stamp(a, 9)
    a("v_and_b32 v5, 31, v1")
    a("v_lshrrev_b32 v4, 5, v1")
    a("s_lshr_b32 s48, s41, 1")
    a("s_lshl_b32 s48, s48, 6")
    a("s_add_u32 s48, s48, s43")
    a("s_lshl_b32 s49, s44, 4")
    a("s_add_u32 s48, s48, s49")
    a("v_lshl_add_u32 v47, v4, 3, s48")
    a("v_mul_u32_u24 v47, 2560, v47")
    a("s_cmp_ge_u32 s42, 6")
    a("s_cselect_b32 s48, 383, 0")
    a("s_lshl_b32 s49, s42, 6")
    a("s_sub_u32 s48, s49, s48")
    a("v_lshl_add_u32 v5, v5, 1, s48")
    a(f"v_mov_b32 v46, {HUGE}")
    a("v_lshlrev_b32 v6, 1, v5")
    a("v_add_u32 v40, 1280, v6")
    a("v_cmp_ge_u32 vcc, 320, v5")
    a("v_sub_u32 v41, 2560, v6")
    a("v_add_u32 v6, -1, v5")
    a("v_cndmask_b32 v40, v46, v40, vcc")
    a("v_cmp_gt_u32 vcc, 319, v6")
    a(f"v_add_u32 v33, {(2048-6)*2560}, v40")
    a("v_sub_u32 v33, v33, v47")
    a("v_cndmask_b32 v41, v46, v41, vcc")
    a("v_add_u32 v32, v47, v40")
    a("v_add_u32 v36, v47, v41")
    a(f"v_add_u32 v37, {(2048-6)*2560}, v41")
    a("v_sub_u32 v37, v37, v47")
    a(f"v_subrev_u32 v34, {1024*2560}, v33")
    a(f"v_subrev_u32 v38, {1024*2560}, v37")
    a(f"v_add_u32 v35, {1024*2560}, v32")
    a(f"v_add_u32 v39, {1024*2560}, v36")
    a(f"v_add_u32 v42, {3*5120}, v33")
    a(f"v_add_u32 v43, {3*5120}, v37")
    a(f"v_mov_b32 v3, {LDS_PROG}")
    a("s_lshl_b32 s48, s44, 10")
    a("v_add_u32 v6, s48, v2")
    a("s_add_u32 s49, s48, 12288")
    a("s_lshl_b32 s50, s44, 12")
    a("s_add_u32 s51, s50, 3072")
    a("s_cmp_eq_u32 s44, 3")
    a(f"s_cmov_b32 s49, {LDS_PROG + 1024}")
    a(f"s_cmov_b32 s51, {LDS_PROG + 1024}")
    a("v_add_u32 v7, s49, v2")
    a("v_add_u32 v44, s50, v2")
    a("v_add_u32 v45, s51, v2")
    a("s_lshl_b32 s49, s44, 2")
    a("v_add_u32 v5, s49, v3")
    a(f"s_setprio {OPT.get('pmf', 1)}")
    for k in range(16):
        a(f"s_waitcnt vmcnt({2*(15-k)})")
        b = FB + k * 8
        d = vr(AC, 16)
        a(f"v_mfma_f32_32x32x16_bf16 {d}, {vr(b,4)}, {vr(b+4,4)}, {'0' if k == 0 else d}")
    a("s_cmp_lg_u32 s47, 0")
    a("s_cbranch_scc1 L_f2_nox2")
    a(f"v_mfma_f32_32x32x16_bf16 {vr(AC,16)}, v[24:27], v[28:31], {vr(AC,16)}")
    a("L_f2_nox2:")
    a(f"s_setprio {OPT.get('pep', 3)}")
    def spin_min(lbl, off, sl):
        a(f"{lbl}:")
        a(f"ds_read_b128 v[48:51], v3 offset:{off}")
        a("s_waitcnt lgkmcnt(0)")
        a("v_min3_u32 v48, v48, v49, v50")
        a("v_min_u32 v48, v48, v51")
        a("s_nop 0")
        a("v_readfirstlane_b32 s48, v48")
        a("s_nop 0")
        a("s_cmp_lg_u32 s48, 0")
        a(f"s_cbranch_scc1 {lbl}_ok")
        a(f"s_sleep {sl}")
        a(f"s_branch {lbl}")
        a(f"{lbl}_ok:")
    spin_min("L_f2_dead", W_PASS, 16)
    a("s_nop 3")
    for j in range(3): a(f"ds_write_b128 v6, {vr(AC+4*j,4)} offset:{j*4096}")
    a(f"ds_write_b128 v7, {vr(AC+12,4)}")
    a(f"ds_write_b32 v5, v3 offset:{W_XCH}")
    spin_min("L_f2_wait", W_XCH, OPT.get('xsl', 8))
    for i in range(3): a(f"ds_read_b128 {vr(8+4*i,4)}, v44 offset:{i*1024}")
    a("ds_read_b128 v[20:23], v45")
    a("s_waitcnt lgkmcnt(0)")
    ng = "neg_lo:[0,1] neg_hi:[0,1]"
    for r in (0, 2):
        a(f"v_pk_add_f32 {vr(48+r,2)}, {vr(8+r,2)}, {vr(12+r,2)}")
        a(f"v_pk_add_f32 {vr(52+r,2)}, {vr(8+r,2)}, {vr(12+r,2)} {ng}")
        a(f"v_pk_add_f32 {vr(56+r,2)}, {vr(20+r,2)}, {vr(16+r,2)}")
        a(f"v_pk_add_f32 {vr(60+r,2)}, {vr(20+r,2)}, {vr(16+r,2)} {ng}")
    for r in (0, 2):
        a(f"v_pk_add_f32 {vr(8+r,2)}, {vr(48+r,2)}, {vr(56+r,2)} {ng}")
        a(f"v_pk_add_f32 {vr(12+r,2)}, {vr(48+r,2)}, {vr(56+r,2)}")
        a(f"v_pk_add_f32 {vr(16+r,2)}, {vr(52+r,2)}, {vr(60+r,2)} {ng}")
        a(f"v_pk_add_f32 {vr(20+r,2)}, {vr(52+r,2)}, {vr(60+r,2)}")
    for k in range(8): a(f"v_cvt_pk_bf16_f32 v{48+k}, v{8+2*k}, v{9+2*k}")
    a("s_cmp_eq_u32 s41, 16")
    a("s_cbranch_scc1 L_f2_nyq")
    for i in range(4):
        st = "buffer_store_short_d16_hi" if i & 1 else "buffer_store_short"
        m1, p1, m2, p2 = (48 + 2*k + (i >> 1) for k in range(4))
        a(f"s_mov_b32 s47, {i*5120}")
        a(f"s_mov_b32 s48, {(3-i)*5120}")
        for val, adr, so in [(m1, 32, "s47"), (p1, 36, "s47"), (p2, 35, "s47"), (m2, 39, "s47"), (m2, 34, "s48"), (p2, 38, "s48"),
                             (p1, 33 if i else 42, "s48" if i else "0"), (m1, 37 if i else 43, "s48" if i else "0")]:
            a(f"{st} v{val}, v{adr}, s[36:39], {so} offen{FLF()}")
    a("s_branch L_wo")
    a("L_f2_nyq:")
    a("s_cmp_lg_u32 s44, 0")
    a("s_cbranch_scc1 L_wo")
    a("s_mov_b32 exec_hi, 0")
    for val, adr in [(48, 32), (50, 36), (50, 42), (48, 43)]:
        a(f"buffer_store_short v{val}, v{adr}, s[36:39], 0 offen{FLF()}")
    a("s_mov_b64 exec, -1")
    a("L_wo:")
    a(f"s_setprio {OPT.get('pwo', 3)}")
    stamp(a, 10)
    a("s_and_b32 s40, s26, 3")
    a("s_lshl_b32 s40, s40, 2")
    a("s_add_u32 s40, s40, s44")
    a(f"s_mul_i32 s40, s40, {50*1024}")
    a(f"s_add_u32 s40, s40, {WO_OFF}")
    make_srd(a, 28, pWS, "s40", 50*1024)
    a("s_waitcnt vmcnt(0)")
    for k in range(OPT.get('nwo', 50)):
        if k % 4 == 0: a(f"s_mov_b32 s49, {(k//4)*4096}")
        a(f"buffer_load_dwordx4 {vr(56+4*k,4)}, v2, s[28:31], s49 offen offset:{(k%4)*1024} sc1")

def tail(a):
    PADS = OPT.get('pads', 1)
    padn = [0]
    def pad(chain, last=None):
        if not PADS: return
        a(f"L_pad_{chain}_{padn[0]}:")
        padn[0] += 1
        a(f"s_cbranch_vccnz {last or f'L_pad_{chain}_{padn[0]}'}")
    a("L_B_done:")
    a("s_lshr_b32 s40, s26, 2")
    a("s_lshl_b32 s41, s27, 3")
    a("s_add_u32 s41, s41, s40")
    a(f"s_mul_i32 s42, s41, {32*1280}")
    a(f"s_add_u32 s42, s42, {O_OFF}")
    make_srd(a, 28, pWS, "s42", 32*1280)
    a("v_and_b32 v4, 7, v1")
    a("v_bfe_u32 v5, v1, 3, 2")
    a("v_lshlrev_b32 v5, 1, v5")
    a("v_lshl_add_u32 v4, v4, 3, v5")
    a("s_and_b32 s42, s27, 3")
    a("s_lshl_b32 s42, s42, 6")
    a("s_lshr_b32 s43, s27, 2")
    a("s_add_u32 s42, s42, s43")
    a("s_lshl_b32 s42, s42, 2")
    a("s_lshr_b32 s40, s40, 1")
    a("s_add_u32 s42, s42, s40")
    a(f"s_add_u32 s42, s42, {FB}")
    a("v_lshl_add_u32 v4, v4, 2, s42")
    a("v_lshlrev_b32 v4, 7, v4")
    a("v_mov_b32 v8, v4")
    if OPT.get('ppre', 1): a(f"buffer_load_dwordx2 v[10:11], v8, {sr(sFL,4)}, 0 offen sc1")
    a("v_and_b32 v3, 31, v1")
    a("v_lshrrev_b32 v4, 5, v1")
    a("v_mul_u32_u24 v5, 2560, v4")
    a("v_lshl_add_u32 v5, v3, 3, v5")
    a("v_add_u32 v5, 1024, v5")
    make_srd(a, 32, pOUT, 0, OUT_SIZE)
    a("s_lshl_b32 s41, s41, 5")
    a("v_add_u32 v6, s41, v3")
    a("v_mul_u32_u24 v6, 2560, v6")
    a("s_and_b32 s42, s26, 3")
    a("s_mul_i32 s42, s42, 320")
    a("s_mul_i32 s43, s44, 12800")
    a("v_add_u32 v7, s43, v2")
    a("s_lshl_b32 s43, s44, 12")
    a("s_add_u32 s43, s43, 40960")
    a("v_add_u32 v3, s43, v2")
    a("s_lshl_b32 s43, s44, 10")
    a("s_add_u32 s43, s43, 40960")
    a("v_add_u32 v1, s43, v2")
    a("s_lshl_b32 s45, s44, 4")
    a("s_add_u32 s45, s45, s42")
    a("v_lshl_add_u32 v0, v4, 3, v6")
    a("s_lshl_b32 s43, s44, 6")
    a("s_add_u32 s43, s43, s42")
    a("v_lshl_add_u32 v6, v4, 4, v6")
    if PADS:
        a("s_mov_b64 vcc, -1")
        a("s_nop 0")
        a("s_branch L_pad_a_0")
        a("L_pad_ret:")
        a("s_setprio 3")
    a("s_waitcnt vmcnt(0)")
    stamp(a, 12)
    a("s_barrier")
    stamp(a, 1)
    if not OPT.get('apoll', 0):
        a("s_cmp_lg_u32 s44, 0")
        a("s_cbranch_scc1 L_onep")
        if OPT.get('pp', 1) > 1: poll_piped(a, 8, 10, OPT['pp'])
        else: poll(a, 8, 10, sleep=OPT.get('sl', 0), shrink=OPT.get('shr', 1))
        a("L_onep:")
    a("s_barrier")
    stamp(a, 13)
    if PADS: a("s_mov_b64 vcc, 0")
    a("s_lshl_b32 s40, s44, 10")
    for j in range(10):
        if j % 3 == 0: pad('a')
        a("s_mov_b32 m0, s40")
        a("s_nop 0")
        a("buffer_load_dwordx4 v2, s[28:31], s40 offen sc1 lds")
        if j < 9: a("s_add_u32 s40, s40, 4096")
    a("s_waitcnt vmcnt(%d)" % (6 if OPT.get('prog', 1) else 0))
    a("s_barrier")
    stamp(a, 14)
    if lib.STAMP: a("s_waitcnt lgkmcnt(0)")
    A5, AM, OB = 8, 24, 40
    def rd(buf, kap, base=None):
        b = OB + 4*buf
        if base is not None: return f"ds_read_b128 {vr(b,4)}, v{base} offset:{kap*1280}"
        if kap < 32: return f"ds_read_b128 {vr(b,4)}, v2 offset:{kap*1280}"
        o = (kap - 32) * 5120 // 8
        return None
    def rd_main(buf, kap):
        b = OB + 4*buf
        if kap < 32: return [f"ds_read_b128 {vr(b,4)}, v2 offset:{kap*1280}"]
        g = kap - 32
        return [f"ds_read_b64 {vr(b,2)}, v5 offset:{g*5120}", f"ds_read_b64 {vr(b+2,2)}, v5 offset:{g*5120+1280}"]
    PG = 10 if OPT.get('prog', 1) else 0
    def stream(steps, chain):
        padn[0] = 0
        n = len(steps); cnt = [0]*n
        PF = 3
        for k in range(PF):
            r = steps[k][0](k % 4); cnt[k] = len(r)
            for x in r: a(x)
        for k in range(n):
            out = sum(cnt[k+1:min(n, k+PF)])
            a(f"s_waitcnt lgkmcnt({out})")
            d = vr(steps[k][1], 16)
            a(f"v_mfma_f32_32x32x16_bf16 {d}, {vr(steps[k][2],4)}, {vr(OB+4*(k%4),4)}, {'0' if steps[k][3] else d}")
            if k % 2 == 0 or k in (PG + 13, 32, 38, 40): pad(chain, "L_pad_z_0" if k == n - 2 else None)
            if PG and k + PF == PG:
                a("s_waitcnt vmcnt(0)")
                a("s_barrier")
            if k + PF < n:
                r = steps[k+PF][0]((k+PF) % 4); cnt[k+PF] = len(r)
                for x in r: a(x)
            if k == PG + 13:
                for j in range(4): a(f"ds_write_b128 v3, {vr(A5+4*j,4)} offset:{j*1024}")
                cnt[k+PF] += 4
            if k == 32:
                a("s_barrier")
                for i in range(4): a(f"ds_read_b128 {vr(A5+4*i,4)}, v1 offset:{i*4096}")
                cnt[k+PF] += 4
            if k == 38:
                for i in range(1, 4):
                    a(f"v_pk_add_f32 {vr(A5,2)}, {vr(A5,2)}, {vr(A5+4*i,2)}")
                    a(f"v_pk_add_f32 {vr(A5+2,2)}, {vr(A5+2,2)}, {vr(A5+4*i+2,2)}")
            if k == 40:
                a(f"v_cvt_pk_bf16_f32 v{A5}, v{A5}, v{A5+1}")
                a(f"v_cvt_pk_bf16_f32 v{A5+1}, v{A5+2}, v{A5+3}")
                a(f"buffer_store_dwordx2 {vr(A5,2)}, v0, s[32:35], s45 offen offset:256{FLP()}")
    main = [((lambda kap: lambda buf: rd_main(buf, kap))(kap), AM, 56 + 4*(10+kap), kap == 0) for kap in range(40)]
    if PADS:
        a(f"L_pad_a_{padn[0]}:")
        a("s_cmp_eq_u32 s44, 3")
        a("s_cbranch_vccz L_nopad")
        a("s_cbranch_scc1 L_pad_c_0")
        a("s_branch L_pad_b_0")
        a("L_nopad:")
    a("s_cmp_eq_u32 s44, 3")
    a("s_cbranch_scc1 L_tail3")
    q5 = [((lambda i: lambda buf: [f"ds_read_b128 {vr(OB+4*buf,4)}, v7 offset:{i*1280}"])(i), A5, 56 + 4*i, i == 0) for i in range(10)]
    stream(main[:PG] + q5 + main[PG:], 'b')
    a("s_branch L_tail_join")
    a("L_tail3:")
    q5 = [((lambda i: lambda buf: rd_main(buf, 30 + i))(i), A5, 56 + 4*i, i == 0) for i in range(10)]
    stream(main[:PG] + q5 + main[PG:], 'c')
    a("L_tail_join:")
    stamp(a, 11)
    padn[0] = 0
    pad('z')
    a("s_nop 11")
    for r in range(8): a(f"v_cvt_pk_bf16_f32 v{AM+r}, v{AM+2*r}, v{AM+2*r+1}")
    pad('z', "L_pad_ret")
    a("s_nop 1")
    for h2 in range(2):
        a(f"v_permlane32_swap_b32 v{AM+4*h2}, v{AM+4*h2+2}")
        a(f"v_permlane32_swap_b32 v{AM+4*h2+1}, v{AM+4*h2+3}")
    for h2 in range(2):
        a(f"buffer_store_dwordx4 {vr(AM+4*h2,4)}, v6, s[32:35], s43 offen offset:{32*h2}{FLP()}")
    a("L_end:")
    if OPT.get('pad'):
        a("L_pad:")
        a("s_memrealtime s[40:41]")
        a("s_waitcnt lgkmcnt(0)")
        a(f"s_sub_u32 s40, s40, s{sNON}")
        a(f"s_cmp_lt_u32 s40, {OPT['pad']}")
        a("s_cbranch_scc1 L_pad")
    if lib.STAMP:
        a("s_waitcnt vmcnt(0)")
        stamp(a, 15); stamp_real(a, 17)
        stamp_flush(a, 18, pWS, sWAVE, 0)
    a("L_exit:")
    a("s_endpgm")

KNAME = "concat_heads__mha_block__spectral_fnet__prompt_kernel"
def kernel(a):
    kernel_header(a, KNAME)
    if OPT.get('early'): a("s_memrealtime s[98:99]")
    a("s_cmp_ge_u32 s2, 256")
    a("s_cbranch_scc1 L_exit")
    if lib.STAMP:
        for i in range(18): a(f"s_mov_b32 s{60+2*i}, 0")
    stamp(a, 0); stamp_real(a, 16)
    a("s_load_dwordx8 s[4:11], s[0:1], 0")
    a("s_load_dwordx4 s[12:15], s[0:1], 64")
    a("s_load_dwordx2 s[16:17], s[0:1], 80")
    a("v_lshrrev_b32 v1, 6, v0")
    a(f"s_and_b32 s{sXCD}, s2, 7")
    a(f"v_readfirstlane_b32 s{sWAVE}, v1")
    a(f"s_lshr_b32 s{sSLOT}, s2, 3")
    a("v_and_b32 v1, 63, v0")
    a(f"s_and_b32 s26, s{sXCD}, 1")
    a("s_lshl_b32 s26, s26, 3")
    a(f"s_and_b32 s27, s{sSLOT}, 7")
    a("s_add_u32 s26, s26, s27")
    a(f"s_lshr_b32 s27, s{sSLOT}, 3")
    a("s_lshl_b32 s27, s27, 2")
    a(f"s_lshr_b32 s40, s{sXCD}, 1")
    a("s_add_u32 s27, s27, s40")
    a(f"s_cmp_ge_u32 s{sSLOT}, 24")
    a("s_cselect_b32 s40, 0, s%d" % sWAVE)
    a("s_cmp_lt_u32 s40, 4")
    a("s_cbranch_scc1 L_other")
    gemm_loader(a)
    a("L_other:")
    a("s_waitcnt lgkmcnt(0)")
    make_srd(a, sFL, pWS, FL_OFF, FL_SIZE)
    a(f"s_cmp_lg_u32 s{sWAVE}, 0")
    a("s_cbranch_scc1 L_no_init")
    a(f"v_mov_b32 v2, {LDS_PROG}")
    a("v_mov_b32 v4, 0")
    a("v_mov_b32 v5, 0")
    for i in range(8): a(f"ds_write_b64 v2, v[4:5] offset:{8*i}")
    a("s_cmp_lg_u32 s2, 0")
    a("s_cbranch_scc1 L_no_nonce")
    if OPT.get('early'): a("s_mov_b64 s[40:41], s[98:99]")
    else: a("s_memrealtime s[40:41]")
    make_srd(a, 28, pDBG, 0, 256)
    a("s_waitcnt lgkmcnt(0)")
    a("s_or_b32 s40, s40, 1")
    a("v_mov_b32 v2, s40")
    a("v_mov_b32 v3, s41")
    a("buffer_store_dwordx2 v[2:3], v4, s[28:31], 0 offen sc1")
    a("L_no_nonce:")
    a("s_waitcnt lgkmcnt(0)")
    a("L_no_init:")
    a(f"s_cmp_ge_u32 s{sSLOT}, 24")
    a("s_cbranch_scc1 L_prep")
    if OPT.get('touch', 1):
        a(f"s_cmp_lg_u32 s{sWAVE}, 1")
        a("s_cbranch_scc1 L_no_code")
        a("s_getpc_b64 s[40:41]")
        a("L_pc:")
        a(f"s_sub_u32 s40, s40, L_pc-{KNAME}")
        a("s_subb_u32 s41, s41, 0")
        a(f"s_mul_i32 s42, s{sSLOT}, 1792")
        a("v_lshlrev_b32 v2, 4, v1")
        a("v_add_u32 v2, s42, v2")
        a(f"v_min_u32 v2, L_exit-{KNAME}-1024-16, v2")
        for i in range(2): a(f"global_load_dwordx4 v[250:253], v2, s[40:41] offset:{i*1024}")
        a("L_no_code:")
    gemm_compute(a)
    prep(a)
    a_done(a)
    attention(a)
    aux(a)
    tail(a)
    return kernel_desc(KNAME, 256, 102)

HEADER = open('concat_heads__mha_block__spectral_fnet__prompt.s.ref').read().split("; Override")[0]
def main(out):
    a = Asm()
    a('.amdgcn_target "amdgcn-amd-amdhsa--gfx950"')
    a(".text")
    d = kernel(a)
    txt = HEADER + "; @launch grid=(256,1,1) block=(512,1,1) lds=163840\n" + a.text() + '.section .rodata,"a"\n.p2align 6\n' + d
    open(out, "w").write(txt)

if __name__ == "__main__":
    for x in sys.argv[2:]:
        if x == "stamp": lib.STAMP = True
        elif x == "rt": lib.STAMP = True; lib.STAMPRT = True
        elif x == "gst": lib.STAMP = True; lib.STAMPSET = 1; lib.STAMPRT = True
        elif x == "cst": lib.STAMP = True; lib.STAMPSET = 2
        else:
            k, _, v = x.partition("=")
            OPT[k] = int(v) if v else 1
    main(sys.argv[1] if len(sys.argv) > 1 else "v37.s")
```

```python
import sys, struct
from lib import *
import lib

TKV = 2560; KV_HEAD = 64*TKV; KV_OFF = 0; KV_SIZE = 32*KV_HEAD
TQ = 1280; Q_HEAD = 64*TQ; Q_OFF = KV_SIZE; Q_SIZE = 32*Q_HEAD
O_OFF = Q_OFF + Q_SIZE; O_SIZE = 64*32*1280
SEQ_OFF = O_OFF + O_SIZE; SEQ_SIZE = 17*65*1024
AB_OFF = SEQ_OFF + SEQ_SIZE; AB_SIZE = 4*11*33*1024
WO_OFF = AB_OFF + AB_SIZE; WO_SIZE = 16*50*1024
FL_OFF = 16*1024*1024; FL_SIZE = 1536*128
FA, FB, FL1 = 0, 256, 1280
X_SIZE = 2048*1280; OUT_SIZE = 2048*2560
HUGE = 0x40000000
QSCALE = (20 ** -0.5) * 1.4426950408889634
NDMA = 155; LPAIR = 5184
LDS_PROG = 31*LPAIR
def lds_tile(t): return ((t-2)>>1)*LPAIR + ((t-2)&1)*TKV
def need(tile): return ((tile-1)*TKV + 4095)//4096
NEED = [need(4), need(7), need(15), need(23), 39]
POLL_MAX = 200000
def f32bits(x): return struct.unpack('<I', struct.pack('<f', x))[0]
OPT = {}
FLS = ['', ' sc1', ' nt', ' sc0 sc1', ' sc1 nt']
def FLP(): return FLS[OPT.get('flp', 0)]
def FLF(): return FLS[OPT.get('flf', 1)]

sWAVE = 3
pX, pW, pWO, pBX, pOUT, pDBG, pWS = 4, 6, 8, 10, 12, 14, 16
sNON = 18
sFL = 20
sXCD, sSLOT = 24, 25
STG = 36864
NS = 4

def poll(a, vaddr, vtmp, cnt=40, sleep=1, shrink=False):
    l = a.label("L_poll"); d = a.label("L_pollok")
    a(f"s_mov_b32 s{cnt}, {POLL_MAX}")
    a(f"{l}:")
    a(f"buffer_load_dwordx2 {vr(vtmp,2)}, v{vaddr}, {sr(sFL,4)}, 0 offen sc1")
    a("s_waitcnt vmcnt(0)")
    a(f"v_cmp_ne_u64 vcc, {sr(sNON,2)}, {vr(vtmp,2)}")
    a(f"s_sub_u32 s{cnt}, s{cnt}, 1")
    a(f"s_cbranch_vccz {d}")
    a(f"s_cmp_eq_u32 s{cnt}, 0")
    a(f"s_cbranch_scc1 {d}")
    if sleep: a(f"s_sleep {sleep}")
    if shrink: a("s_mov_b64 exec, vcc")
    a(f"s_branch {l}")
    a(f"{d}:")
    if shrink: a("s_mov_b64 exec, -1")

def poll_piped(a, vaddr, vtmp, depth, cnt=40):
    l = a.label("L_ppoll"); d = a.label("L_ppollok")
    a(f"s_mov_b32 s{cnt}, {POLL_MAX}")
    for i in range(depth - 1):
        a(f"buffer_load_dwordx2 {vr(vtmp+2*i,2)}, v{vaddr}, {sr(sFL,4)}, 0 offen sc1")
        a(f"s_sleep {OPT.get('pgap', 4)}")
    a(f"{l}:")
    for i in range(depth):
        a(f"buffer_load_dwordx2 {vr(vtmp+2*((i+depth-1)%depth),2)}, v{vaddr}, {sr(sFL,4)}, 0 offen sc1")
        a(f"s_waitcnt vmcnt({depth-1})")
        a(f"v_cmp_ne_u64 vcc, {sr(sNON,2)}, {vr(vtmp+2*i,2)}")
        a(f"s_sub_u32 s{cnt}, s{cnt}, 1")
        a(f"s_cbranch_vccz {d}")
        a(f"s_cbranch_scc1 {d}")
        a("s_mov_b64 exec, vcc")
    a(f"s_branch {l}")
    a(f"{d}:")
    a("s_mov_b64 exec, -1")

def prod_flags(a, vd, vt):
    a("s_lshr_b32 s40, s26, 3")
    a(f"v_and_b32 v{vd}, 7, v1")
    a(f"v_bfe_u32 v{vt}, v1, 3, 2")
    a(f"v_lshlrev_b32 v{vt}, 1, v{vt}")
    a(f"v_lshl_add_u32 v{vd}, v{vd}, 3, v{vt}")
    a("s_and_b32 s42, s27, 3")
    a("s_lshl_b32 s42, s42, 6")
    a("s_lshr_b32 s43, s27, 2")
    a("s_add_u32 s42, s42, s43")
    a("s_lshl_b32 s42, s42, 2")
    a("s_add_u32 s42, s42, s40")
    a(f"s_add_u32 s42, s42, {FB}")
    a(f"v_lshl_add_u32 v{vd}, v{vd}, 2, s42")
    a(f"v_lshlrev_b32 v{vd}, 7, v{vd}")

def get_nonce(a, vt, srd=28, cnt=40):
    make_srd(a, srd, pDBG, 0, 256)
    l = a.label("L_non"); d = a.label("L_nonok")
    a(f"v_mov_b32 v{vt}, 0")
    a(f"s_mov_b32 s{cnt}, {POLL_MAX}")
    a(f"{l}:")
    a(f"buffer_load_dwordx2 {vr(vt+2,2)}, v{vt}, {sr(srd,4)}, 0 offen sc1")
    a("s_waitcnt vmcnt(0)")
    a(f"v_readfirstlane_b32 s{sNON}, v{vt+2}")
    a(f"v_readfirstlane_b32 s{sNON+1}, v{vt+3}")
    a(f"s_sub_u32 s{cnt}, s{cnt}, 1")
    a(f"s_cmp_lg_u32 s{sNON}, 0")
    a(f"s_cbranch_scc1 {d}")
    a(f"s_cmp_eq_u32 s{cnt}, 0")
    a(f"s_cbranch_scc1 {d}")
    a("s_sleep 2")
    a(f"s_branch {l}")
    a(f"{d}:")

def set_flag(a, sidx, vt, also=None):
    for i in range(4): a(f"v_mov_b32 v{vt+i}, s{sNON+(i&1)}")
    a(f"v_lshlrev_b32 v{vt+4}, 4, v1")
    a("s_mov_b64 exec, 0xff")
    if also is not None:
        a(f"s_add_u32 s41, s{sidx}, {also}")
        a(f"buffer_store_dwordx4 {vr(vt,4)}, v{vt+4}, {sr(sFL,4)}, s41 offen")
    a(f"buffer_store_dwordx4 {vr(vt,4)}, v{vt+4}, {sr(sFL,4)}, s{sidx} offen sc1")
    a("s_mov_b64 exec, -1")

def gemm_loader(a):
    sA, sB = 28, 32
    a("L_loader:")
    a(f"s_sub_u32 s44, s{sWAVE}, 4")
    a("v_lshrrev_b32 v2, 3, v1")
    a("s_lshl_b32 s40, s44, 3")
    a("v_add_u32 v2, s40, v2")
    a("v_mul_u32_u24 v2, 1280, v2")
    a("v_lshrrev_b32 v3, 4, v1")
    a("s_and_b32 s40, s44, 1")
    a("s_lshl_b32 s40, s40, 2")
    a("v_or_b32 v4, s40, v3")
    a("v_and_b32 v5, 7, v1")
    a("v_xor_b32 v4, v4, v5")
    a("v_lshl_add_u32 v10, v4, 4, v2")
    a("s_lshl_b32 s45, s44, 10")
    a(f"s_lshr_b32 s40, s{sSLOT}, 3")
    a(f"s_add_u32 s40, s40, s{sSLOT}")
    a("s_and_b32 s40, s40, 1")
    a(f"s_mul_i32 s40, s40, {OPT.get('pstep', 6)}")
    a(f"s_mul_i32 s41, s{sXCD}, {OPT.get('rc', 3)}")
    a("s_add_u32 s40, s40, s41")
    a("s_mul_i32 s41, s40, 6554")
    a("s_lshr_b32 s41, s41, 16")
    a("s_mul_i32 s41, s41, 10")
    a("s_sub_u32 s47, s40, s41")
    a("s_lshl_b32 s40, s44, 4")
    a("v_lshrrev_b32 v2, 2, v1")
    a("v_add_u32 v2, s40, v2")
    a("v_mul_u32_u24 v2, 3840, v2")
    a("v_and_b32 v3, 3, v1")
    a("v_lshrrev_b32 v4, 5, v1")
    a("v_lshlrev_b32 v4, 1, v4")
    a("v_xor_b32 v3, v3, v4")
    a("v_lshl_add_u32 v11, v3, 4, v2")
    a("s_mul_i32 s46, s44, 5120")
    a("s_mul_i32 s50, s26, 163840")
    a("s_mul_i32 s51, s27, 320")
    a("s_sub_u32 s52, 2457600, s51")
    a("s_waitcnt lgkmcnt(0)")
    make_srd(a, sA, pX, "s50", 163840)
    def issue_x(c):
        sl = c % NS
        a("s_lshl_b32 s48, s47, 7")
        for j in range(4):
            a(f"s_add_u32 m0, s45, {sl*STG + j*4096}")
            if j: a(f"s_add_u32 s48, s48, 40960")
            else: a("s_mul_i32 s49, s47, 245760")
            a(f"buffer_load_dwordx4 v10, {sr(sA,4)}, s48 offen lds")
    def issue_w(c):
        sl = c % NS
        for i in range(5):
            a(f"s_add_u32 m0, s46, {sl*STG + 16384 + i*1024 - i*64}")
            if i == 0:
                a("s_add_u32 s47, s47, 1")
            elif i == 1:
                a("s_cmp_eq_u32 s47, 10")
                a("s_cmov_b32 s47, 0")
            else: a("s_nop 0")
            a(f"buffer_load_dwordx4 v11, {sr(sB,4)}, s49 offen offset:{i*64} lds")
    def issue(c): issue_x(c); issue_w(c)
    stamp(a, 3)
    issue_x(0)
    make_srd(a, sB, pW, "s51", "s52")
    issue_w(0)
    issued = 1
    pre = OPT.get('pre', 2)
    for c in range(1, pre): issue(c); issued += 1
    for c in range(10):
        a(f"s_waitcnt vmcnt({9*(issued-c-1)})")
        if c in (0, 9): stamp(a, {0: 2, 9: 5}[c])
        stamp(a, c + 1, 1)
        a("s_barrier")
        if c in (1, 3, 5, 7): stamp(a, 11 + c // 2, 1)
        while issued < min(10, c + 1 + (OPT.get('dep', 2) if c < OPT.get('depsw', 10) else 3)): issue(issued); issued += 1
    make_srd(a, sFL, pWS, FL_OFF, FL_SIZE)
    get_nonce(a, 2)
    a("s_branch L_A_done")

AX, AWA, EA = 8, 10, 16
FR = 24
ACC = 96
def gemm_loop(a, isv, epi):
    XB = [FR, FR + 36, 176, 212]
    def rdx(kk, m, b): sl, st = divmod(kk, 2); return f"ds_read_b128 {vr(b+4*m,4)}, v{AX+st} offset:{sl*STG + m*2048}"
    def rdw(kk, T, b): sl, st = divmod(kk, 2); return [f"ds_read_b64_tr_b16 {vr(b+16+4*T+2*t,2)}, v{AWA+T} offset:{sl*STG + st*10240 + t*256}" for t in range(2)]
    def reads(kk, b):
        r = rdw(kk, 0, b) + [rdx(kk, m, b) for m in range(4)]
        for T in range(1, 5): r += rdw(kk, T, b)
        return r
    def mfma(b, T, m):
        d = vr(ACC + 16*T + 4*m, 4); w = vr(b + 16 + 4*T, 4); x = vr(b + 4*m, 4)
        return f"v_mfma_f32_16x16x32_bf16 {d}, {x}, {w}, {d}" if isv else f"v_mfma_f32_16x16x32_bf16 {d}, {w}, {x}, {d}"
    for r in range(80): a(f"v_mov_b32 v{ACC+r}, 0")
    a(f"s_mov_b32 s40, {2*STG}")
    a("s_mov_b32 s41, 4")
    stamp(a, 13)
    a("s_barrier")
    stamp(a, 2)
    for r in reads(0, XB[0]): a(r)
    lp = a.label("L_gemm"); last = a.label("L_gemm_last")
    a(".p2align 3")
    a(f"{lp}:")
    for kk in range(4):
        a("s_waitcnt lgkmcnt(0)")
        ms = [mfma(XB[kk & 1], T, m) for T in range(5) for m in range(4)]
        a(ms[0])
        if kk == 1: a("s_barrier")
        if kk == 3:
            for i in range(2): a(f"v_add_u32 v{AX+i}, s40, v{AX+i}")
            for i in range(5): a(f"v_add_u32 v{AWA+i}, s40, v{AWA+i}")
            a("s_sub_u32 s40, 0, s40")
            a("s_sub_u32 s41, s41, 1")
            a("s_barrier")
            a("s_cmp_eq_u32 s41, 0")
            a(f"s_cbranch_scc1 {last}")
        nx = reads((kk + 1) & 3, XB[(kk + 1) & 1])
        for i in range(1, 20):
            if i - 1 < len(nx): a(nx[i-1])
            a(ms[i])
    a(f"s_branch {lp}")
    a(f"{last}:")
    bufs = [XB[0], XB[2], XB[3], XB[1]]
    def order(k0):
        r = []
        for k in (k0, k0 + 1): r += rdw(k, 0, bufs[k]) + [rdx(k, m, bufs[k]) for m in range(4)]
        return r
    first = order(0)
    rest01 = [x for T in range(1, 5) for k in (0, 1) for x in rdw(k, T, bufs[k])]
    second = order(2)
    rest23 = [[x for k in (2, 3) for x in rdw(k, T, bufs[k])] for T in range(5)]
    ms = [mfma(XB[1], T, m) for T in range(5) for m in range(4)]
    q = first + rest01
    pos = 0
    for i in range(1, 20):
        for _ in range(2 if i < 10 else 1):
            if pos < len(q): a(q[pos]); pos += 1
        a(ms[i])
    a("s_barrier")
    q = second + rest23[1] + rest23[2] + rest23[3] + rest23[4]
    a("s_waitcnt lgkmcnt(0)")
    pos = 0
    for T in range(5):
        e = epi(T - 1) if T >= 1 else []
        per = -(-len(e) // 12)
        for i in range(16):
            if i == 8 and T < 2: a(f"s_waitcnt lgkmcnt({min(15, pos - (12 + 4*T))})" if T == 0 else "s_waitcnt lgkmcnt(0)")
            a(mfma(bufs[i >> 2], T, i & 3))
            for _ in range(2):
                if pos < len(q): a(q[pos]); pos += 1
            if i >= 4:
                for x in e[per*(i-4):per*(i-3)]: a(x)
    stamp(a, 5)
    a("s_nop 7")
    for x in epi(4): a(x)

def gemm_compute(a):
    a("L_compute:")
    a("v_and_b32 v2, 15, v1")
    a("v_lshrrev_b32 v3, 4, v1")
    a(f"s_and_b32 s42, s{sWAVE}, 1")
    a(f"s_lshr_b32 s43, s{sWAVE}, 1")
    a("s_lshl_b32 s40, s42, 6")
    a("v_add_u32 v4, s40, v2")
    a("v_lshlrev_b32 v4, 7, v4")
    a("v_lshrrev_b32 v5, 1, v2")
    a("v_xor_b32 v5, v5, v3")
    a(f"v_lshl_add_u32 v{AX}, v5, 4, v4")
    a(f"v_xor_b32 v{AX+1}, 64, v{AX}")
    a("v_lshrrev_b32 v4, 5, v1")
    a("v_mul_u32_u24 v4, 5120, v4")
    a("v_and_b32 v5, 1, v3")
    a("v_lshrrev_b32 v6, 2, v2")
    a("v_lshl_add_u32 v6, v5, 3, v6")
    a("v_lshl_add_u32 v4, v6, 6, v4")
    a("v_add_u32 v4, 16384, v4")
    a("v_lshlrev_b32 v5, 2, v5")
    a("v_and_b32 v6, 3, v1")
    a("s_mul_i32 s44, s43, 20")
    def waddr(T, g):
        a(f"v_and_b32 v15, 7, v{g}")
        a("v_xor_b32 v15, v15, v5")
        a("v_lshl_add_u32 v15, v15, 3, v4")
        a(f"v_lshrrev_b32 v{g}, 3, v{g}")
        a(f"v_lshl_add_u32 v{AWA+T}, v{g}, 10, v15")
    a("s_lshl_b32 s45, s26, 2")
    a("s_lshl_b32 s42, s42, 1")
    a("s_add_u32 s42, s42, s45")
    a("s_and_b32 s45, s27, 3")
    a("s_lshl_b32 s45, s45, 3")
    a("s_lshl_b32 s43, s43, 2")
    a("s_add_u32 s43, s43, s45")
    a("s_cmp_ge_u32 s27, 8")
    a("s_cbranch_scc1 L_compute_v")
    for T in range(5):
        if T < 4:
            a(f"s_add_u32 s45, s44, {5*T}")
            a("v_add_u32 v7, s45, v6")
        else:
            a("s_add_u32 s45, s44, 4")
            a("v_mad_u32_u24 v7, v6, 5, s45")
        waddr(T, 7)
    a("s_cmp_ge_u32 s27, 4")
    for reg, k, q in [(44, KV_HEAD, Q_HEAD), (45, TKV, TQ), (46, f32bits(1.0), f32bits(QSCALE)), (47, KV_OFF, Q_OFF), (48, KV_SIZE, Q_SIZE)]:
        a(f"s_mov_b32 s{reg}, {q}")
        a(f"s_cmov_b32 s{reg}, {k}")
    make_srd(a, 28, pWS, "s47", "s48")
    a("s_mul_i32 s47, s43, s44")
    a("s_mul_i32 s48, s42, s45")
    a("s_add_u32 s47, s47, s48")
    a(f"v_lshlrev_b32 v{EA}, 4, v1")
    a(f"v_add_u32 v{EA+1}, s45, v{EA}")
    a("v_lshrrev_b32 v4, 5, v1")
    a("v_mul_lo_u32 v4, v4, s44")
    a("v_and_b32 v5, 31, v1")
    a("v_lshlrev_b32 v5, 3, v5")
    a("v_lshl_add_u32 v4, v4, 1, v5")
    a(f"v_add_u32 v{EA+2}, 1024, v4")
    a(f"v_add_u32 v{EA+3}, s45, v{EA+2}")
    a("s_mov_b32 s48, s47")
    a("s_add_u32 s49, s47, s44")
    def epi_qk(T):
        b = ACC + 16*T; e = []
        for r in range(16): e.append(f"v_mul_f32 v{b+r}, s46, v{b+r}")
        for r in range(8): e.append(f"v_cvt_pk_bf16_f32 v{b+r}, v{b+2*r}, v{b+2*r+1}")
        e.append("s_nop 0")
        for u in range(2):
            e.append(f"v_permlane16_swap_b32 v{b+4*u}, v{b+4*u+2}")
            e.append(f"v_permlane16_swap_b32 v{b+4*u+1}, v{b+4*u+3}")
        for u in range(2):
            if T < 4: e.append(f"buffer_store_dwordx4 {vr(b+4*u,4)}, v{EA+u}, s[28:31], s48 offen sc1")
            else:
                e.append(f"buffer_store_dwordx2 {vr(b+4*u,2)}, v{EA+2+u}, s[28:31], s47 offen sc1")
                e.append(f"buffer_store_dwordx2 {vr(b+4*u+2,2)}, v{EA+2+u}, s[28:31], s49 offen sc1")
        if T < 3: e.append("s_add_u32 s48, s48, s44")
        return e
    gemm_loop(a, False, epi_qk)
    a("s_branch L_A_done")
    a("L_compute_v:")
    for T in range(5):
        a(f"s_add_u32 s45, s44, {4*T}")
        a("v_add_u32 v7, s45, v6")
        waddr(T, 7)
    make_srd(a, 28, pWS, KV_OFF, KV_SIZE)
    a(f"s_mov_b32 s44, {KV_HEAD}")
    a("s_mul_i32 s47, s43, s44")
    a(f"s_mul_i32 s48, s42, {TKV}")
    a("s_add_u32 s47, s47, s48")
    a("v_lshrrev_b32 v7, 5, v1")
    a("v_mul_u32_u24 v7, 640, v7")
    a("v_and_b32 v15, 1, v3")
    a("v_lshl_add_u32 v7, v15, 6, v7")
    a("v_add_u32 v7, 1280, v7")
    for T in range(5):
        a(f"v_add_u32 v4, {16*T}, v2")
        a("v_mul_u32_u24 v5, 3277, v4")
        a("v_lshrrev_b32 v5, 16, v5")
        a("v_mul_u32_u24 v6, 20, v5")
        a("v_sub_u32 v4, v4, v6")
        a("v_and_b32 v6, 28, v4")
        a("v_add_u32 v4, v4, v6")
        a("v_mul_lo_u32 v5, v5, s44")
        a("v_lshl_add_u32 v4, v4, 4, v5")
        a(f"v_add_u32 v{EA+T}, v7, v4")
    def epi_v(T):
        b = ACC + 16*T; e = []
        for r in range(8): e.append(f"v_cvt_pk_bf16_f32 v{b+r}, v{b+2*r}, v{b+2*r+1}")
        e.append("s_nop 0")
        for u in range(2):
            e.append(f"v_permlane32_swap_b32 v{b+4*u}, v{b+4*u+2}")
            e.append(f"v_permlane32_swap_b32 v{b+4*u+1}, v{b+4*u+3}")
        for u in range(2): e.append(f"buffer_store_dwordx4 {vr(b+4*u,4)}, v{EA+T}, s[28:31], s47 offen offset:{u*TKV} sc1")
        return e
    gemm_loop(a, True, epi_v)
    a("s_branch L_A_done")

SWD = [56, 57, 96, 97, 100]
SEQR = [48, 56, 64]; SEQX = [24, 28, 160]; SEQS = [[40, 42], [43, 44], [51, 52]]
def side_ids(a):
    a("s_sub_u32 s53, s2, 192")
    a("s_mul_i32 s53, s53, 3")
    a(f"s_add_u32 s53, s53, s{sWAVE}")
    a("s_sub_u32 s53, s53, 5")

def side_gen(a):
    side_ids(a)
    G = 120
    a("v_lshlrev_b32 v23, 4, v3")
    a(f"s_mov_b32 s55, {f32bits(1.0/2048)}")
    a("v_cmp_gt_u32 vcc, 32, v1")
    for n in range(3):
        if n == 2:
            a("s_cmp_ge_u32 s53, 160")
            a("s_cbranch_scc1 L_sw_gen_done")
        a(f"s_add_u32 s54, s53, {192*n}")
        lp = a.label("L_gen_plain")
        a("s_lshr_b32 s41, s54, 5")
        a("s_and_b32 s58, s54, 31")
        a("s_lshr_b32 s59, s41, 1")
        a("s_lshl_b32 s59, s59, 6")
        a("s_and_b32 s47, s41, 1")
        a("s_add_u32 s59, s59, s47")
        a("v_lshl_add_u32 v4, v2, 1, s59")
        a("s_lshr_b32 s47, s58, 4")
        a("s_mul_i32 s45, s41, 65")
        a("s_add_u32 s45, s45, s58")
        a("s_add_u32 s46, s45, 33")
        a("s_add_u32 s45, s45, s47")
        a("s_lshl_b32 s45, s45, 10")
        a("s_lshl_b32 s46, s46, 10")
        a("s_and_b32 s48, s58, 15")
        a("s_lshl_b32 s48, s48, 5")
        a("s_add_u32 s48, s48, s47")
        a("v_add_u32 v5, s48, v23")
        a("v_mul_u32_u24 v5, v4, v5")
        a("v_cvt_f32_u32 v5, v5")
        a("v_cvt_f32_u32 v4, v4")
        for i in range(8):
            if i: a("v_fma_f32 v5, 2.0, v4, v5")
            a(f"v_mul_f32 v{G+i}, s55, v5")
        for i in range(8): a(f"v_fract_f32 v{G+i}, v{G+i}")
        for i in range(8): a(f"v_cos_f32 v{G+8+i}, v{G+i}")
        a("s_cmp_lg_u32 s58, 0")
        a(f"s_cbranch_scc1 {lp}")
        a("v_mul_f32 v6, 0x3e800000, v4")
        a("v_fract_f32 v6, v6")
        a(f"v_cndmask_b32 v{G}, v{G}, v6, vcc")
        a("v_cos_f32 v7, v6")
        a(f"v_mov_b32 v{SEQX[n]+1}, 0")
        a(f"v_mov_b32 v{SEQX[n]+2}, 0")
        a(f"v_mov_b32 v{SEQX[n]+3}, 0")
        a("v_cndmask_b32 v7, 0, v7, vcc")
        a(f"v_cvt_pk_bf16_f32 v{SEQX[n]}, v7, 0")
        a(f"{lp}:")
        for i in range(8): a(f"v_sin_f32 v{G+i}, v{G+i}")
        for i in range(4): a(f"v_cvt_pk_bf16_f32 v{SEQR[n]+i}, v{G+8+2*i}, v{G+9+2*i}")
        for i in range(4): a(f"v_cvt_pk_bf16_f32 v{SEQR[n]+4+i}, v{G+2*i}, v{G+1+2*i}")
        a(f"s_mov_b32 s{SEQS[n][0]}, s45")
        a(f"s_mov_b32 s{SEQS[n][1]}, s46")
    a("L_sw_gen_done:")

def side_issue(a):
    side_ids(a)
    make_srd(a, 32, pWO, 0, 819200)
    make_srd(a, 28, pWS, SEQ_OFF, WO_OFF + WO_SIZE - SEQ_OFF)
    for n in range(3):
        if n == 2:
            a("s_cmp_ge_u32 s53, 160")
            a("s_cbranch_scc1 L_sw_st_done")
        for k in range(2): a(f"buffer_store_dwordx4 {vr(SEQR[n]+4*k,4)}, v15, s[28:31], s{SEQS[n][k]} offen sc1")
        l = a.label("L_sw_nx")
        a("s_and_b32 s41, s53, 31")
        a(f"s_cbranch_scc1 {l}")
        a(f"s_add_u32 s41, s{SEQS[n][0]}, {16*1024}")
        a(f"buffer_store_dwordx4 {vr(SEQX[n],4)}, v15, s[28:31], s41 offen sc1")
        a(f"{l}:")
    a("L_sw_st_done:")
    WR = 120
    for n in range(5):
        if n == 4:
            a("s_cmp_ge_u32 s53, 32")
            a("s_cbranch_scc1 L_sw_wo_ld")
        a(f"s_add_u32 s40, s53, {192*n}")
        a("s_mul_i32 s41, s40, 1639")
        a("s_lshr_b32 s41, s41, 16")
        a("s_mul_i32 s58, s41, 40")
        a("s_sub_u32 s58, s40, s58")
        a("s_mul_i32 s59, s58, 20")
        a("s_mul_i32 s55, s58, 80")
        a("s_sub_u32 s55, s55, %d" % (32*80 - 16))
        a("s_cmp_lt_u32 s58, 32")
        a("s_cselect_b32 s45, 4, 40")
        a("s_cselect_b32 s59, s59, s55")
        a(f"s_mov_b32 s46, {20*1280}")
        a(f"s_cmov_b32 s46, {8*1280}")
        a("v_mul_u32_u24 v4, s45, v3")
        a("v_add_u32 v4, s59, v4")
        a("v_mul_u32_u24 v4, 1280, v4")
        a("s_lshl_b32 s59, s41, 6")
        a("v_lshl_add_u32 v4, v2, 1, v4")
        a("v_add_u32 v4, s59, v4")
        b = WR + 8*n
        for grp in range(2):
            so = "s46" if grp else "0"
            for i in range(4):
                a(f"buffer_load_ushort v{b+4*grp+i}, v4, s[32:35], {so} offen offset:{i*1280}")
        a("s_mul_i32 s59, s41, 52")
        a("s_lshr_b32 s59, s59, 8")
        a("s_mul_i32 s55, s59, 5")
        a("s_sub_u32 s55, s41, s55")
        a("s_mul_i32 s45, s58, 26")
        a("s_lshr_b32 s45, s45, 8")
        a("s_mul_i32 s47, s45, 10")
        a("s_sub_u32 s47, s58, s47")
        a("s_add_u32 s58, s58, 10")
        a("s_cmp_lt_u32 s55, 4")
        a("s_cselect_b32 s55, s55, s45")
        a("s_cselect_b32 s58, s58, s47")
        a("s_lshl_b32 s59, s59, 2")
        a("s_add_u32 s59, s59, s55")
        a("s_mul_i32 s59, s59, 50")
        a("s_add_u32 s59, s59, s58")
        a("s_lshl_b32 s59, s59, 10")
        a(f"s_add_u32 s{SWD[n]}, s59, {WO_OFF - SEQ_OFF}")
    a("L_sw_wo_ld:")

def side_work_finish(a):
    WR = 120
    l = a.label("L_sw_fin")
    for n in range(5):
        if n == 4:
            a("s_cmp_ge_u32 s53, 32")
            a(f"s_cbranch_scc1 {l}")
        b = WR + 8*n
        for i in range(4): a(f"v_lshl_or_b32 v{b+i}, v{b+2*i+1}, 16, v{b+2*i}")
        a(f"buffer_store_dwordx4 {vr(b,4)}, v15, s[28:31], s{SWD[n]} offen sc1")
    a(f"{l}:")

def prep(a):
    a("L_prep:")
    a(f"s_sub_u32 s40, s{sSLOT}, 24")
    a("s_and_b32 s27, s40, 1")
    a("s_lshr_b32 s26, s40, 1")
    a("s_lshl_b32 s26, s26, 3")
    a(f"s_add_u32 s26, s26, s{sXCD}")
    make_srd(a, 36, pWS, AB_OFF, AB_SIZE)
    a(f"s_cmp_ge_u32 s{sWAVE}, 5")
    a("s_cbranch_scc1 L_fold_skip")
    make_srd(a, 28, pBX, 0, X_SIZE)
    a("s_lshr_b32 s42, s26, 1")
    a("s_lshl_b32 s42, s42, 5")
    a("s_and_b32 s43, s26, 1")
    a("s_add_u32 s42, s42, s43")
    a("v_lshrrev_b32 v2, 3, v1")
    a("v_and_b32 v3, 7, v1")
    a("v_lshl_add_u32 v4, v2, 1, s42")
    a("v_mul_u32_u24 v5, 1280, v4")
    a("v_lshlrev_b32 v6, 4, v3")
    a("v_add_u32 v10, v5, v6")
    a("v_sub_u32 v7, v6, v5")
    a(f"s_lshl_b32 s44, s27, 1")
    a(f"s_add_u32 s44, s44, s{sWAVE}")
    a("s_cmp_ge_u32 s44, 5")
    a("s_cselect_b32 s45, 5, 0")
    a("s_sub_u32 s44, s44, s45")
    a("s_lshl_b32 s44, s44, 7")
    a("s_add_u32 s45, s44, 20480")
    a(f"v_add_u32 v11, {2048*1280}, v7")
    a(f"v_add_u32 v12, {1024*1280}, v7")
    a("v_cmp_ne_u32 vcc, 0, v4")
    a(f"v_mov_b32 v8, {HUGE}")
    a(f"v_add_u32 v9, {1024*1280}, v10")
    a("v_cndmask_b32 v13, v8, v9, vcc")
    LD = 32
    for hf in range(2):
        for r in range(4): a(f"buffer_load_dwordx4 {vr(LD+8*r+4*hf,4)}, v{10+r}, s[28:31], s44 offen offset:{640*hf}")
    a("v_subrev_u32 v11, 20480, v11")
    a("v_subrev_u32 v12, 20480, v12")
    for hf in range(2):
        for r, (vv, so) in enumerate([(10, 45), (11, 44), (12, 44), (9, 45)]):
            a(f"buffer_load_dwordx4 {vr(LD+32+8*r+4*hf,4)}, v{vv}, s[28:31], s{so} offen offset:{640*hf}")
    XL = 96
    a("s_cmp_lg_u32 s26, 0")
    a("s_cbranch_scc1 L_fold_nx")
    a(f"v_add_u32 v14, {512*1280}, v6")
    a(f"v_add_u32 v15, {1536*1280}, v6")
    a("v_cndmask_b32 v14, v14, v8, vcc")
    a("v_cndmask_b32 v15, v15, v8, vcc")
    for r in range(2):
        for hf in range(2):
            a(f"buffer_load_dwordx4 {vr(XL+8*r+4*hf,4)}, v{14+r}, s[28:31], s44 offen offset:{640*hf}")
    a("L_fold_nx:")
    a("v_and_b32 v5, 3, v2")
    a("v_lshrrev_b32 v4, 2, v2")
    a("v_lshl_or_b32 v5, v4, 3, v5")
    a("v_xor_b32 v5, v5, v3")
    a("v_and_b32 v4, 1, v3")
    a("v_lshl_add_u32 v5, v4, 5, v5")
    a("v_lshlrev_b32 v5, 4, v5")
    a("v_lshrrev_b32 v4, 1, v3")
    a("v_lshl_add_u32 v5, v4, 10, v5")
    a("s_lshl_b32 s45, s44, 5")
    a("v_add_u32 v16, s45, v5")
    a("v_xor_b32 v18, 64, v16")
    a("v_add_u32 v5, s44, v6")
    a("v_add_u32 v17, 40960, v5")
    a("v_lshlrev_b32 v6, 4, v1")
    a("v_add_u32 v6, 43008, v6")
    a("v_cndmask_b32 v17, v17, v6, vcc")
    a("L_fold_skip:")
    a("v_and_b32 v2, 31, v1")
    a("v_lshrrev_b32 v3, 5, v1")
    a("v_lshlrev_b32 v15, 4, v1")
    a(f"s_lshr_b32 s40, s{sWAVE}, 1")
    a("s_add_u32 s40, s40, 2")
    a(f"s_and_b32 s41, s{sWAVE}, 1")
    a(f"s_cmp_lt_u32 s{sWAVE}, 4")
    a(f"s_cselect_b32 s49, s{sWAVE}, s40")
    a("s_cselect_b32 s50, 0, s41")
    a("s_lshl_b32 s54, s49, 6")
    a("s_add_u32 s54, s54, s27")
    a("v_lshl_add_u32 v4, v2, 1, s54")
    AU = 10; SB = [[176, 184], [192, 200]]; HB = [[208, 212], [216, 220]]; UB = [72, 84, 96, 108]; ACC3 = [224, 240, 32]; PH = 112
    a("s_mul_i32 s52, s50, 20480")
    for jj in range(4):
        a(f"v_xor_b32 v5, {2*jj}, v3")
        a("v_xor_b32 v5, v5, v2")
        a("v_lshl_add_u32 v5, v3, 5, v5")
        a("v_lshlrev_b32 v5, 4, v5")
        a(f"v_add_u32 v5, {jj*1024}, v5")
        a(f"v_add_u32 v{AU+jj}, s52, v5")
    a(f"v_lshlrev_b32 v{AU+4}, 4, v3")
    a(f"v_add_u32 v{AU+4}, 40960, v{AU+4}")
    a(f"s_mov_b32 s52, {f32bits(1.0/640)}")
    a("s_cmp_lg_u32 s50, 0")
    a("s_cselect_b32 s53, 0x3e800000, 0")
    a("v_lshlrev_b32 v5, 3, v3")
    a("v_mul_u32_u24 v5, v4, v5")
    a("v_cvt_f32_u32 v5, v5")
    a("v_cvt_f32_u32 v4, v4")
    a("v_mul_f32 v6, 0x41800000, v4")
    for i in range(8):
        if i: a("v_add_f32 v5, v5, v4")
        a(f"v_mul_f32 v{PH+i}, s52, v5")
        a("v_sub_f32 v7, v5, v6")
        a(f"v_mul_f32 v{PH+8+i}, s52, v7")
    a("v_mul_f32 v6, s52, v6")
    a("v_fract_f32 v6, v6")
    for i in range(16): a(f"v_fract_f32 v{PH+i}, v{PH+i}")
    a("v_cos_f32 v19, v6")
    for i in range(16): a(f"v_sin_f32 v{SB[1][0]+i}, v{PH+i}")
    for i in range(16): a(f"v_subrev_f32 v{PH+i}, s53, v{PH+i}")
    for i in range(16): a(f"v_cos_f32 v{SB[0][0]+i}, v{PH+i}")
    a("v_add_f32 v19, v19, v19")
    for r in range(32): a(f"v_mov_b32 v{224+r}, 0")
    def cvts(jb, g): return [f"v_cvt_pk_bf16_f32 v{HB[jb][g]+d}, v{SB[jb][g]+2*d}, v{SB[jb][g]+2*d+1}" for d in range(4)]
    def rot(jb, cur): return [f"v_fma_f32 v{SB[jb][cur^1]+i}, v19, v{SB[jb][cur]+i}, -v{SB[jb][cur^1]+i}" for i in range(8)]
    for x in cvts(0, 0) + cvts(1, 0): a(x)
    a(f"s_cmp_lt_u32 s{sWAVE}, 5")
    a("s_cbranch_scc1 L_fold_go")
    side_gen(a)
    a("s_branch L_fold_done")
    a("L_fold_go:")
    a("s_cmp_lg_u32 s27, 0")
    a("s_cselect_b32 s46, -1.0, 1.0")
    a("s_mov_b32 s47, s46")
    a("s_mov_b32 s48, 0xffff0000")
    T = 112; R = 144; H = 20
    ng = "neg_lo:[0,1] neg_hi:[0,1]"
    def dfold(src, dst):
        for d in range(4):
            a(f"v_lshlrev_b32 v{dst+2*d}, 16, v{src+d}")
            a(f"v_and_b32 v{dst+2*d+1}, s48, v{src+d}")
            a(f"v_lshlrev_b32 v{H+2*(d&1)}, 16, v{src+4+d}")
            a(f"v_and_b32 v{H+2*(d&1)+1}, s48, v{src+4+d}")
            a(f"v_pk_fma_f32 {vr(dst+2*d,2)}, {vr(H+2*(d&1),2)}, s[46:47], {vr(dst+2*d,2)}")
    for n in range(2):
        a("s_waitcnt vmcnt(%d)" % (8 if n == 0 else 0))
        if n == 0: stamp(a, 9)
        b = LD + 32*n
        for r in range(4): dfold(b + 8*r, T + 8*r)
        for d in range(4):
            p = lambda r: vr(T+8*r+2*d, 2)
            q = lambda r: vr(R+8*r+2*d, 2)
            a(f"v_pk_add_f32 {q(0)}, {p(0)}, {p(1)}")
            a(f"v_pk_add_f32 {q(1)}, {p(0)}, {p(1)} {ng}")
            a(f"v_pk_add_f32 {q(2)}, {p(2)}, {p(3)}")
            a(f"v_pk_add_f32 {q(3)}, {p(2)}, {p(3)} {ng}")
            a(f"v_pk_add_f32 {p(0)}, {q(0)}, {q(2)}")
            a(f"v_pk_add_f32 {p(1)}, {q(0)}, {q(2)} {ng}")
            a(f"v_pk_add_f32 {p(2)}, {q(1)}, {q(3)} {ng}")
            a(f"v_pk_add_f32 {p(3)}, {q(1)}, {q(3)}")
        if n == 0:
            a("s_cmp_lg_u32 s26, 0")
            a("s_cbranch_scc1 L_fold_sp")
            a("s_waitcnt vmcnt(0)")
            dfold(XL, R); dfold(XL + 8, R + 8)
            for d in range(4):
                a(f"v_pk_add_f32 {vr(R+16+2*d,2)}, {vr(R+2*d,2)}, {vr(R+8+2*d,2)}")
                a(f"v_pk_add_f32 {vr(R+2*d,2)}, {vr(R+2*d,2)}, {vr(R+8+2*d,2)} {ng}")
            for e in range(8): a(f"v_cndmask_b32 v{T+24+e}, v{R+e}, v{T+24+e}, vcc")
            for d in range(4): a(f"v_cvt_pk_bf16_f32 v{R+d}, v{R+16+2*d}, v{R+17+2*d}")
            a(f"ds_write_b128 v17, {vr(R,4)}")
            a("L_fold_sp:")
        for i in range(4):
            for d in range(4): a(f"v_cvt_pk_bf16_f32 v{b+4*i+d}, v{T+8*i+2*d}, v{T+8*i+2*d+1}")
            a(f"ds_write_b128 v{16+2*n}, {vr(b+4*i,4)} offset:{(i>>1)*20480 + (i&1)*256}")
    a("L_fold_done:")
    for r in range(16): a(f"v_mov_b32 v{32+r}, 0")
    a("s_waitcnt lgkmcnt(0)")
    stamp(a, 14)
    a("s_barrier")
    stamp(a, 2)
    a(f"s_cmp_lt_u32 s{sWAVE}, 5")
    a("s_cbranch_scc1 L_no_side")
    side_issue(a)
    a("L_no_side:")
    make_srd(a, 28, pDBG, 0, 256)
    a("v_mov_b32 v16, 0")
    a("buffer_load_dwordx2 v[4:5], v16, s[28:31], 0 offen sc1")
    a("s_mul_i32 s42, s27, 6")
    a("s_add_u32 s42, s42, s49")
    a("s_cmp_gt_u32 s42, 10")
    a("s_cbranch_scc0 L_f1_go")
    a("s_waitcnt vmcnt(0)")
    a("s_branch L_prep_done")
    a("L_f1_go:")
    def ureads(j, kinds):
        jj = j & 3; o = (j >> 2) * 4096; b = UB[j & 3]; r = []
        for k in kinds:
            if k == 2: r.append(f"ds_read_b128 {vr(b+8,4)}, v{AU+4} offset:{j*32}")
            else: r.append(f"ds_read_b128 {vr(b+4*k,4)}, v{AU+jj} offset:{o + k*20480}")
        return r
    a("s_mov_b32 s45, 5")
    a("s_or_b32 s51, s26, s50")
    a("s_cmp_eq_u32 s51, 0")
    a("s_cselect_b32 s40, 1, 0")
    a(f"s_cmp_lt_u32 s{sWAVE}, 4")
    a("s_cselect_b32 s41, 2, 0")
    a("s_add_u32 s40, s40, s41")
    variants = [[0], [0, 2], [0, 1], [0, 1, 2]]
    for v in range(1, 4):
        a(f"s_cmp_eq_u32 s40, {v}")
        a(f"s_cbranch_scc1 L_f1_v{v}")
    for v, kinds in enumerate(variants):
        a(f"L_f1_v{v}:")
        nm = len(kinds)
        for x in ureads(0, kinds) + ureads(1, kinds): a(x)
        a(f"L_f1_loop{v}:")
        for jj in range(4):
            buf = jj & 1
            va = rot(0, buf) + cvts(0, buf ^ 1)
            if 1 in kinds: va = rot(0, buf) + rot(1, buf) + cvts(0, buf ^ 1) + cvts(1, buf ^ 1)
            rd = ureads(jj + 2, kinds)
            a(f"s_waitcnt lgkmcnt({nm})")
            a("s_nop 0")
            per = len(va) // nm
            for m, k in enumerate(kinds):
                d = vr(ACC3[k], 16)
                a(f"v_mfma_f32_32x32x16_bf16 {d}, {vr(UB[jj]+4*k,4)}, {vr(HB[k & 1][buf],4)}, {d}")
                a(rd[m])
                for x in va[per*m:per*m+per]: a(x)
        for r in range(4): a(f"v_add_u32 v{AU+r}, 4096, v{AU+r}")
        if 2 in kinds: a(f"v_add_u32 v{AU+4}, 128, v{AU+4}")
        a("s_sub_u32 s45, s45, 1")
        a("s_cmp_lg_u32 s45, 0")
        a(f"s_cbranch_scc1 L_f1_loop{v}")
        if v < 3: a("s_branch L_f1_done")
    a("L_f1_done:")
    stamp(a, 5)
    a("s_mul_i32 s43, s42, 33")
    a("s_and_b32 s44, s26, 1")
    a("s_lshl_b32 s44, s44, 4")
    a("s_lshr_b32 s45, s26, 1")
    a("s_add_u32 s44, s44, s45")
    a("s_add_u32 s44, s44, s43")
    a(f"s_mul_i32 s45, s50, {22*33}")
    a("s_add_u32 s44, s44, s45")
    a("s_lshl_b32 s44, s44, 10")
    a("s_waitcnt vmcnt(0) lgkmcnt(0)")
    a("s_nop 5")
    for jb in range(2):
        b = ACC3[jb]
        if jb == 1:
            a(f"s_cmp_ge_u32 s{sWAVE}, 4")
            a("s_cbranch_scc1 L_f1_one")
        for r in range(8): a(f"v_cvt_pk_bf16_f32 v{b+r}, v{b+2*r}, v{b+2*r+1}")
        for hf in range(2):
            a(f"buffer_store_dwordx4 {vr(b+4*hf,4)}, v15, s[36:39], s44 offen sc1")
            a(f"s_add_u32 s44, s44, {11*33*1024}")
    a("L_f1_one:")
    a("s_cmp_lg_u32 s51, 0")
    a("s_cbranch_scc1 L_prep_done")
    b = ACC3[2]
    for r in range(4): a(f"v_cvt_pk_bf16_f32 v{b+r}, v{b+2*r}, v{b+2*r+1}")
    a("s_add_u32 s43, s43, 32")
    a("s_lshl_b32 s43, s43, 10")
    a(f"buffer_store_dwordx4 {vr(b,4)}, v15, s[36:39], s43 offen sc1")
    a("L_prep_done:")
    a(f"s_cmp_lt_u32 s{sWAVE}, 5")
    a("s_cbranch_scc1 L_prep_fin")
    make_srd(a, 28, pWS, SEQ_OFF, WO_OFF + WO_SIZE - SEQ_OFF)
    side_work_finish(a)
    a("L_prep_fin:")
    a(f"v_readfirstlane_b32 s{sNON}, v4")
    a(f"v_readfirstlane_b32 s{sNON+1}, v5")
    a("s_nop 0")
    a(f"s_cmp_lg_u32 s{sNON}, 0")
    a("s_cbranch_scc1 L_A_done")
    get_nonce(a, 2)

W_PROG, W_GO, W_CNT, W_PASS, W_XCH, W_NON = 0, 4, 8, 16, 32, 48
def a_done(a):
    a("L_A_done:")
    stamp(a, 6)
    a(f"v_mov_b32 v23, {LDS_PROG}")
    a(f"s_cmp_lg_u32 s{sWAVE}, 4")
    a("s_cbranch_scc1 L_A_bar")
    a(f"v_mov_b32 v2, s{sNON}")
    a(f"v_mov_b32 v3, s{sNON+1}")
    a(f"ds_write_b64 v23, v[2:3] offset:{W_NON}")
    a("L_A_bar:")
    a("s_waitcnt lgkmcnt(0)")
    a("s_barrier")
    stamp(a, 4)
    a(f"s_lshr_b32 s26, s{sXCD}, 1")
    a("s_lshl_b32 s26, s26, 3")
    a(f"s_and_b32 s27, s{sSLOT}, 7")
    a("s_add_u32 s26, s26, s27")
    a(f"s_and_b32 s27, s{sXCD}, 1")
    a("s_lshl_b32 s27, s27, 2")
    a(f"s_lshr_b32 s40, s{sSLOT}, 3")
    a("s_add_u32 s27, s27, s40")
    a(f"s_cmp_ge_u32 s{sWAVE}, 4")
    a("s_cbranch_scc1 L_aux")

def drained(a, vt):
    a(f"v_mov_b32 v{vt}, 1")
    a("s_mov_b64 exec, 1")
    a(f"ds_add_u32 v23, v{vt} offset:{W_CNT}")
    a("s_mov_b64 exec, -1")

def attention(a):
    SL = OPT.get('slot', 1)
    AKA, AKB, AV, AKB2 = 4, 5, 168, 172
    AREGS = [AKA, AV, AV+1, AV+2, AV+3] + ([AKB2, AKB2+1] if SL else [AKB])
    QA = [8, 14]
    NEG = [32, 48]; S = [64, 80]; O = [96, 112]; P = 128
    KB = [136, 142]; VB = [148, 156]
    PR = 164
    a("L_attn:")
    a(f"ds_read_b32 v24, v23 offset:{W_GO}")
    a(f"ds_read_b64 v[26:27], v23 offset:{W_NON}")
    a(f"s_setprio {OPT.get('pattn', 2)}")
    a(f"s_mul_i32 s40, s26, {Q_HEAD}")
    a(f"s_add_u32 s40, s40, {Q_OFF}")
    make_srd(a, 28, pWS, "s40", Q_HEAD)
    a(f"s_mul_i32 s40, s26, {KV_HEAD}")
    make_srd(a, 32, pWS, "s40", KV_HEAD)
    a("v_and_b32 v2, 31, v1")
    a("v_lshrrev_b32 v3, 5, v1")
    a(f"v_lshlrev_b32 v{AKA}, 4, v1")
    a(f"v_lshlrev_b32 v{AKB}, 3, v2")
    a(f"v_add_u32 v{AKB}, 1024, v{AKB}")
    a(f"v_mov_b32 v20, {HUGE}")
    a("v_cmp_gt_u32 vcc, 32, v1")
    a("s_lshl_b32 s41, s27, 3")
    a(f"s_lshl_b32 s42, s{sWAVE}, 1")
    a("s_add_u32 s41, s41, s42")
    a(f"v_cndmask_b32 v20, v20, v{AKB}, vcc")
    a(f"s_mul_i32 s42, s41, {TQ}")
    a("v_and_b32 v21, 28, v2")
    a("v_add_u32 v21, v21, v2")
    a("v_lshl_add_u32 v21, v3, 2, v21")
    a("v_lshlrev_b32 v21, 4, v21")
    a("v_add_u32 v29, 1280, v21")
    a("s_mov_b32 s48, 0x000fffff")
    a("s_mov_b32 s49, 0x000fffff")
    a("s_mov_b32 s52, 0x07060302")
    a("s_waitcnt lgkmcnt(0)")
    a("v_readfirstlane_b32 s47, v24")
    a(f"v_readfirstlane_b32 s{sNON}, v26")
    a(f"v_readfirstlane_b32 s{sNON+1}, v27")
    a("s_mov_b32 s50, s47")
    a("s_cmp_lg_u32 s47, 0")
    a("s_cbranch_scc1 L_attn_go")
    a("s_waitcnt vmcnt(0)")
    stamp(a, 3)
    drained(a, 24)
    a("L_attn_spin:")
    a(f"s_sleep {OPT.get('asl', 1)}")
    a(f"ds_read_b32 v24, v23 offset:{W_GO}")
    a("s_waitcnt lgkmcnt(0)")
    a("v_readfirstlane_b32 s47, v24")
    a("s_nop 0")
    a("s_cmp_eq_u32 s47, 0")
    a("s_cbranch_scc1 L_attn_spin")
    a("L_attn_go:")
    stamp(a, 7); stamp(a, 7, 2); stamp_real(a, 8, 2)
    a("s_sub_u32 s47, s47, 1")
    a(f"s_mul_i32 s47, s47, {4*TKV}")
    for q in range(2):
        a(f"buffer_load_dwordx4 {vr(QA[q],4)}, v{AKA}, s[28:31], s42 offen offset:{q*TQ} sc1")
        a(f"buffer_load_dwordx2 {vr(QA[q]+4,2)}, v20, s[28:31], s42 offen offset:{q*TQ} sc1")
    a(f"buffer_load_dwordx4 {vr(KB[0],4)}, v{AKA}, s[32:35], s47 offen sc1")
    if SL:
        for b in KB:
            a(f"v_mov_b32 v{b+4}, 0x3f803f80")
            a(f"v_mov_b32 v{b+5}, 0x3f80")
        a("s_mov_b32 exec_hi, 0")
    a(f"buffer_load_dwordx2 {vr(KB[0]+4,2)}, v{AKB}, s[32:35], s47 offen sc1")
    if SL: a("s_mov_b64 exec, -1")
    a("v_mov_b32 v24, 0x3f803f80")
    a("v_cmp_eq_u32 vcc, 20, v2")
    a(f"s_add_u32 s43, s47, {TKV}")
    a("s_nop 0")
    a("v_cndmask_b32 v24, 0, v24, vcc")
    for r in range(16): a(f"v_mov_b32 v{VB[0]+r}, v24")
    a(f"buffer_load_dwordx4 {vr(KB[1],4)}, v{AKA}, s[32:35], s43 offen sc1")
    if SL: a("s_mov_b32 exec_hi, 0")
    a(f"buffer_load_dwordx2 {vr(KB[1]+4,2)}, v{AKB}, s[32:35], s43 offen sc1")
    a("s_mov_b64 exec, s[48:49]")
    a(f"buffer_load_dwordx4 {vr(VB[0],4)}, v29, s[32:35], s47 offen sc1")
    a(f"buffer_load_dwordx4 {vr(VB[0]+4,4)}, v29, s[32:35], s47 offen offset:640 sc1")
    a(f"buffer_load_dwordx4 {vr(VB[1],4)}, v29, s[32:35], s43 offen sc1")
    a(f"buffer_load_dwordx4 {vr(VB[1]+4,4)}, v29, s[32:35], s43 offen offset:640 sc1")
    a("s_mov_b64 exec, -1")
    a("s_cmp_eq_u32 s50, 0")
    a("s_cbranch_scc1 L_attn_cnt")
    a("s_waitcnt vmcnt(12)")
    stamp(a, 3)
    drained(a, 24)
    a("L_attn_cnt:")
    a("v_mov_b32 v22, 5120")
    if OPT.get('zr', 1):
        a("v_cmp_lt_u32 vcc, 20, v2")
        a("v_mov_b32 v21, 5136")
        a("s_nop 0")
        a("v_cndmask_b32 v22, v22, v21, vcc")
    a("v_cmp_gt_u32 vcc, 20, v2")
    for i in range(4): a(f"v_add_u32 v{AV+i}, {(i>>1)*TKV + (i&1)*640}, v29")
    for i in range(4): a(f"v_cndmask_b32 v{AV+i}, v22, v{AV+i}, vcc")
    if SL:
        a("v_cmp_gt_u32 vcc, 32, v1")
        a("v_mov_b32 v22, 5152")
        a(f"v_add_u32 v21, {TKV}, v{AKB}")
        a(f"v_cndmask_b32 v{AKB2}, v22, v{AKB}, vcc")
        a(f"v_cndmask_b32 v{AKB2+1}, v22, v21, vcc")
    make_srd(a, 36, pWS, O_OFF, O_SIZE)
    for q in range(2):
        for r in range(16): a(f"v_mov_b32 v{O[q]+r}, 0")
    LOOPED = [False]
    mm16 = "v_mfma_f32_32x32x16_bf16"; mm8 = "v_mfma_f32_32x32x8_bf16"
    def M1(s, t, q, c): return "s_nop 1" if OPT.get('nom1') and c == "0" and LOOPED[0] else f"{mm16} {vr(s,16)}, {vr(KB[t&1],4)}, {vr(QA[q],4)}, {c}"
    def M2(s, t, q): return "s_nop 0" if OPT.get('nom2') and LOOPED[0] else f"{mm8} {vr(s,16)}, {vr(KB[t&1]+4,2)}, {vr(QA[q]+4,2)}, {vr(s,16)}"
    def M3(t, q): return "s_nop 1" if OPT.get('nopv') else f"{mm16} {vr(O[q],16)}, {vr(VB[t&1],4)}, {vr(P,4)}, {vr(O[q],16)}"
    def M4(t, q): return "s_nop 1" if OPT.get('nopv') else f"{mm16} {vr(O[q],16)}, {vr(VB[t&1]+4,4)}, {vr(P+4,4)}, {vr(O[q],16)}"
    def rowmax(src, dst, first):
        if first:
            a(f"v_max3_f32 v{dst}, v{src}, v{src+1}, v{src+2}")
            a(f"v_max_f32 v{dst}, v{dst}, v{src+15}")
            rng = range(3, 15, 2)
        else: rng = range(0, 16, 2)
        for r in rng: a(f"v_max3_f32 v{dst}, v{dst}, v{src+r}, v{src+r+1}")
    def finish_neg(add):
        a("v_mov_b32 v26, v24")
        a("v_mov_b32 v27, v25")
        a("s_nop 1")
        a("v_permlane32_swap_b32 v24, v26")
        a("v_permlane32_swap_b32 v25, v27")
        a("s_nop 1")
        a("v_max_f32 v24, v24, v26")
        a("v_max_f32 v25, v25, v27")
        if not SL:
            for q in range(2):
                a(f"v_sub_f32 v{NEG[q]}, {add}, v{24+q}")
                for r in range(1, 16): a(f"v_mov_b32 v{NEG[q]+r}, v{NEG[q]}")
            return
        a("s_mov_b32 s45, 0xffff0000")
        a("s_mov_b32 s46, 0x07060302")
        for q in range(2):
            a(f"v_sub_f32 v{24+q}, {add}, v{24+q}")
        for q in range(2):
            a(f"v_and_b32 v26, s45, v{24+q}")
            a(f"v_sub_f32 v27, v{24+q}, v26")
            a("v_and_b32 v28, s45, v27")
            a("v_sub_f32 v27, v27, v28")
            a("v_perm_b32 v26, v28, v26, s46")
            a("v_lshrrev_b32 v27, 16, v27")
            a("s_mov_b32 exec_lo, 0")
            a(f"v_mov_b32 v{QA[q]+4}, v26")
            a(f"v_mov_b32 v{QA[q]+5}, v27")
            a("s_mov_b64 exec, -1")
        a("s_nop 1")
    CNEG = lambda q: "0" if SL else vr(NEG[q], 16)
    a("s_waitcnt vmcnt(6)")
    stamp(a, 8)
    def neg_one(q, add):
        a(f"v_mov_b32 v26, v{24+q}")
        a("s_nop 1")
        a(f"v_permlane32_swap_b32 v{24+q}, v26")
        a("s_nop 0")
        a(f"v_max_f32 v{24+q}, v{24+q}, v26")
        a(f"v_sub_f32 v{24+q}, {add}, v{24+q}")
        a(f"v_and_b32 v26, s45, v{24+q}")
        a(f"v_sub_f32 v27, v{24+q}, v26")
        a("v_and_b32 v28, s45, v27")
        a("v_sub_f32 v27, v27, v28")
        a("s_mov_b32 exec_lo, 0")
        a(f"v_perm_b32 v{QA[q]+4}, v28, v26, s46")
        a(f"v_lshrrev_b32 v{QA[q]+5}, 16, v27")
        a("s_mov_b64 exec, -1")
    OFFS = hex(f32bits(-float(OPT.get('off', 100))))
    a(M1(S[0], 0, 0, "0")); a(M2(S[0], 0, 0))
    a(M1(S[1], 0, 1, "0")); a(M2(S[1], 0, 1))
    a("s_mov_b32 s45, 0xffff0000")
    a("s_mov_b32 s46, 0x07060302")
    a(f"ds_read_b32 v{PR}, v23")
    a("s_nop 6")
    rowmax(S[0], 24, True)
    neg_one(0, OFFS)
    a("s_nop 0")
    a(M1(S[0], 0, 0, CNEG(0)))
    a(M2(S[0], 0, 0))
    rowmax(S[1], 25, True)
    neg_one(1, OFFS)
    a("s_waitcnt vmcnt(0)")
    def check(need):
        l = a.label("L_chk"); ok = a.label("L_chkok")
        a(f"{l}:")
        a("s_waitcnt lgkmcnt(0)")
        a(f"v_readfirstlane_b32 s44, v{PR}")
        a("s_nop 0")
        a(f"s_cmp_ge_u32 s44, {need}")
        a(f"s_cbranch_scc1 {ok}")
        a(f"ds_read_b32 v{PR}, v23")
        a(f"s_branch {l}")
        a(".p2align 3")
        a(f"{ok}:")
    def unit(t, q, s4=(), s1=(), s2=(), s3=(), first=False, nonext=False):
        s = S[q]; sn = S[q ^ 1]
        t1, q1 = (t, 1) if q == 0 else (t + 1, 0)
        tp, qp = (t - 1, 1) if q == 0 else (t, 0)
        E = lambda r: a(f"v_exp_f32 v{s+r}, v{s+r}")
        C = lambda j: a(f"v_perm_b32 v{P+j}, v{s+2*j+1}, v{s+2*j}, s52" if OPT.get('perm') else f"v_cvt_pk_bf16_f32 v{P+j}, v{s+2*j}, v{s+2*j+1}")
        al = OPT.get('al', 0)
        EW = lambda r: a(f"v_exp_f32_e64 v{s+r}, v{s+r}") if al else E(r)
        odd = lambda xs: sum(1 for x in xs if x.startswith("s_")) & 1
        E(0); E(1)
        if not first: a(M4(tp, qp))
        for x in s4: a(x)
        (E if odd(s4) else EW)(2); E(3); E(4)
        if not nonext: a(M1(sn, t1, q1, CNEG(q1)))
        for x in s1: a(x)
        EW(5); E(6); E(7)
        for j in range(4): C(j)
        if OPT.get('m2l'): EW(8)
        if not nonext: a(M2(sn, t1, q1))
        for x in s2: a(x)
        if not OPT.get('m2l'): EW(8)
        for r in range(9, 13): E(r)
        a(M3(t, q))
        for x in s3: a(x)
        (E if odd(s3) else EW)(13); E(14); E(15)
        for j in range(4, 8): C(j)
    def period(t, o, extra3=()):
        if OPT.get('nods') and LOOPED[0]: o = None
        if o is None:
            if extra3:
                unit(t, 1, s4=["s_waitcnt lgkmcnt(0)"]); unit(t + 1, 0, s3=extra3); return
            unit(t, 1, s4=["s_waitcnt lgkmcnt(0)"]); unit(t + 1, 0); return
        kb = KB[t & 1]; vb = VB[t & 1]
        ok = lds_tile(o + 2); ov = (o >> 1) * LPAIR; av = AV + 2*(o & 1)
        unit(t, 1, s4=["s_waitcnt lgkmcnt(0)"],
             s1=[f"ds_read_b128 {vr(kb,4)}, v{AKA} offset:{ok}"],
             s3=[f"ds_read_b64 {vr(kb+4,2)}, v{AKB2+(o&1)} offset:{ov}" if SL else f"ds_read_b64 {vr(kb+4,2)}, v{AKB} offset:{ok}"])
        unit(t + 1, 0, s4=[f"ds_read_b128 {vr(vb,4)}, v{av} offset:{ov}"],
             s1=[f"ds_read_b128 {vr(vb+4,4)}, v{av+1} offset:{ov}"], s3=extra3)
    rdp = [f"ds_read_b32 v{PR}, v23"]
    a(".p2align 3")
    unit(0, 0, first=True)
    stamp(a, 9)
    check(1)
    for t in range(6):
        if t == 2: check(2)
        period(t, t, rdp if t in (1, 5) else ())
    for r in AREGS: a(f"v_add_u32 v{r}, {3*LPAIR}, v{r}")
    a(f"s_lshl_b32 s45, s{sWAVE}, 2")
    a("v_add_u32 v24, s45, v23")
    a(f"ds_write_b32 v24, v23 offset:{W_PASS}")
    a("s_mov_b32 s45, 2")
    a("s_mov_b32 s46, 7")
    stamp(a, 10); stamp(a, 10, 2); stamp_real(a, 12, 2)
    LOOPED[0] = True
    def body(chk):
        for k in range(8):
            ex = ()
            if k == 7: ex = (rdp if chk else [])
            if k == 6: ex = ["s_sub_u32 s46, s46, 1"]
            if k == 7 and not chk: ex = ["s_cmp_lg_u32 s46, 0"]
            period(k, k, ex)
        for r in AREGS: a(f"v_add_u32 v{r}, {4*LPAIR}, v{r}")
    a("s_cmp_eq_u32 s44, 16")
    a("s_cbranch_scc1 L_attn_fast")
    a(".p2align 3")
    a("L_attn_loop:")
    a("s_add_u32 s45, s45, 2")
    check("s45")
    body(True)
    a("s_cmp_eq_u32 s46, 0")
    a("s_cbranch_scc1 L_attn_last")
    a("s_cmp_lg_u32 s44, 16")
    a("s_cbranch_scc1 L_attn_loop")
    a(f".p2align {OPT.get('lal', 3)}")
    a("L_attn_fast:")
    body(False)
    a("s_cbranch_scc1 L_attn_fast")
    a(".p2align 3")
    a("L_attn_last:")
    period(62, None)
    unit(63, 1, nonext=True)
    a("s_nop 1")
    a(M4(63, 1))
    stamp(a, 11); stamp(a, 11, 2); stamp_real(a, 13, 2)
    a("L_attn_post:")
    a("s_lshl_b32 s42, s41, 5")
    a("s_add_u32 s42, s42, s26")
    a("s_mul_i32 s42, s42, 1280")
    a("v_lshlrev_b32 v21, 4, v1")
    for q in range(2):
        a(f"v_mov_b32 v{24+q}, v{O[q]+8}")
        a(f"v_mov_b32 v26, v{O[q]+8}")
        a("s_nop 1")
        a(f"v_permlane32_swap_b32 v26, v{24+q}")
        a("s_nop 0")
        a(f"v_rcp_f32 v26, v{24+q}")
        a("s_nop 0")
        for r in range(12): a(f"v_mul_f32 v{S[q]+r}, v{O[q]+r}, v26")
        for r in range(6): a(f"v_cvt_pk_bf16_f32 v{S[q]+r}, v{S[q]+2*r}, v{S[q]+2*r+1}")
        a(f"buffer_store_dwordx4 {vr(S[q],4)}, v21, s[36:39], s42 offen sc1")
        a(f"buffer_store_dwordx2 {vr(S[q]+4,2)}, v20, s[36:39], s42 offen sc1")
        if q == 0: a(f"s_add_u32 s42, s42, {32*1280}")
    a("s_cmp_eq_u32 s46, 0")
    a("s_cbranch_scc0 L_attn_fin")
    for q in range(2):
        a(f"v_max3_f32 v{30+q}, abs(v{O[q]}), abs(v{O[q]+1}), abs(v{O[q]+2})")
        a(f"v_mul_f32 v{26+q}, 0, v{24+q}")
    for r in range(12):
        for q in range(2): a(f"v_fma_f32 v{26+q}, v{O[q]+r}, 0, v{26+q}")
    for q in range(2):
        a(f"v_max3_f32 v{30+q}, v{30+q}, abs(v{O[q]+3}), abs(v{O[q]+4})")
        a(f"v_max3_f32 v{30+q}, v{30+q}, abs(v{O[q]+5}), abs(v{O[q]+6})")
        a(f"v_max_f32 v{30+q}, v{30+q}, abs(v{O[q]+7})")
    a("v_max_f32 v24, v24, v25")
    a("v_min_f32 v30, v30, v31")
    a("v_mov_b32 v28, 0x76800000")
    a("v_mov_b32 v31, 0x08800000")
    a("v_cmp_u_f32 s[44:45], v26, v27")
    a("v_cmp_nlt_f32 vcc, v24, v28")
    a("v_cmp_lt_f32 s[50:51], v30, v31")
    a("s_nop 1")
    a("s_or_b64 vcc, vcc, s[44:45]")
    a("s_or_b64 vcc, vcc, s[50:51]")
    if OPT.get('forcefb'): a("s_mov_b64 vcc, -1")
    a("s_cbranch_vccnz L_attn_fallback")
    a("L_attn_fin:")
    if OPT.get('apoll', 0): prod_flags(a, 12, 13)
    a("s_lshl_b32 s40, s2, 2")
    a(f"s_add_u32 s40, s40, s{sWAVE}")
    a(f"s_add_u32 s40, s40, {FB}")
    a("s_lshl_b32 s40, s40, 7")
    for i in range(4): a(f"v_mov_b32 v{8+i}, s{sNON+(i&1)}")
    a("s_waitcnt vmcnt(0)")
    stamp(a, 12)
    a("s_mov_b64 exec, %s" % ("1" if OPT.get('f16') or OPT.get('fat') else "0xff"))
    if OPT.get('fat'): a(f"buffer_atomic_swap_x2 v[8:9], v21, {sr(sFL,4)}, s40 offen" + (" sc1" if OPT['fat'] == 2 else ""))
    elif OPT.get('fnt'): a(f"buffer_store_dwordx4 v[8:11], v21, {sr(sFL,4)}, s40 offen sc0 sc1")
    else: a(f"buffer_store_dwordx4 v[8:11], v21, {sr(sFL,4)}, s40 offen sc1")
    a("s_mov_b64 exec, -1")
    a("s_barrier")
    if OPT.get('apoll', 0):
        a(f"s_cmp_lg_u32 s{sWAVE}, 0")
        a("s_cbranch_scc1 L_end")
        if OPT.get('apoll', 0) > 1: poll_piped(a, 12, 14, OPT.get('apoll', 0))
        else: poll(a, 12, 14, sleep=0)
        a("s_barrier")
    a("s_branch L_end")
    a("L_attn_fallback:")
    a("s_waitcnt vmcnt(0)")
    for r in ((AKA,) if SL else (AKA, AKB)): a(f"v_subrev_u32 v{r}, {31*LPAIR}, v{r}")
    if SL:
        a("s_mov_b32 exec_lo, 0")
        for q in range(2):
            a(f"v_mov_b32 v{QA[q]+4}, 0")
            a(f"v_mov_b32 v{QA[q]+5}, 0")
        a("s_mov_b64 exec, -1")
    a("v_mov_b32 v24, 0xff800000")
    a("v_mov_b32 v25, 0xff800000")
    a("s_mov_b32 s46, 0")
    a("L_fb_max:")
    a(f"buffer_load_dwordx4 {vr(KB[0],4)}, v{AKA}, s[32:35], s46 offen sc1")
    if SL: a("s_mov_b32 exec_hi, 0")
    a(f"buffer_load_dwordx2 {vr(KB[0]+4,2)}, v{AKB}, s[32:35], s46 offen sc1")
    if SL: a("s_mov_b64 exec, -1")
    a("s_waitcnt vmcnt(0)")
    for q in range(2): a(M1(S[q], 0, q, "0"))
    for q in range(2): a(M2(S[q], 0, q))
    a("s_nop 15")
    rowmax(S[0], 24, False)
    rowmax(S[1], 25, False)
    a(f"s_add_u32 s46, s46, {TKV}")
    a(f"s_cmp_lt_u32 s46, {KV_HEAD}")
    a("s_cbranch_scc1 L_fb_max")
    finish_neg("0")
    for q in range(2):
        for r in range(16): a(f"v_mov_b32 v{O[q]+r}, 0")
    a("s_mov_b32 s46, 0")
    a("L_fb_main:")
    a(f"buffer_load_dwordx4 {vr(KB[0],4)}, v{AKA}, s[32:35], s46 offen sc1")
    if SL: a("s_mov_b32 exec_hi, 0")
    a(f"buffer_load_dwordx2 {vr(KB[0]+4,2)}, v{AKB}, s[32:35], s46 offen sc1")
    if SL: a("s_mov_b64 exec, -1")
    a("s_mov_b64 exec, s[48:49]")
    a(f"buffer_load_dwordx4 {vr(VB[0],4)}, v29, s[32:35], s46 offen sc1")
    a(f"buffer_load_dwordx4 {vr(VB[0]+4,4)}, v29, s[32:35], s46 offen offset:640 sc1")
    a("s_mov_b64 exec, -1")
    a("s_waitcnt vmcnt(0)")
    for q in range(2): a(M1(S[q], 0, q, CNEG(q)))
    for q in range(2): a(M2(S[q], 0, q))
    a("s_nop 15")
    for q in range(2):
        for r in range(16): a(f"v_exp_f32 v{S[q]+r}, v{S[q]+r}")
        a("s_nop 0")
        for j in range(8): a(f"v_cvt_pk_bf16_f32 v{P+j}, v{S[q]+2*j}, v{S[q]+2*j+1}")
        a("s_nop 1")
        a(M3(0, q)); a(M4(0, q))
    a(f"s_add_u32 s46, s46, {TKV}")
    a(f"s_cmp_lt_u32 s46, {KV_HEAD}")
    a("s_cbranch_scc1 L_fb_main")
    a("s_nop 15")
    a("s_branch L_attn_post")

def aux(a):
    a("L_aux:")
    a(f"s_setprio {OPT.get('paux', 0)}")
    a(f"s_sub_u32 s44, s{sWAVE}, 4")
    a("v_lshlrev_b32 v2, 4, v1")
    a("s_waitcnt vmcnt(0)")
    drained(a, 3)
    a("s_cmp_eq_u32 s44, 0")
    a("s_cbranch_scc1 L_kv")
    a("s_cmp_lg_u32 s44, 1")
    a("s_cbranch_scc1 L_aux_wait")
    a("s_lshl_b32 s40, s2, 7")
    a("L_cnt_spin:")
    a(f"s_sleep {OPT.get('asl', 1)}")
    a(f"ds_read_b32 v3, v23 offset:{W_CNT}")
    a("s_waitcnt lgkmcnt(0)")
    a("v_readfirstlane_b32 s41, v3")
    a("s_nop 0")
    a("s_cmp_lt_u32 s41, 8")
    a("s_cbranch_scc1 L_cnt_spin")
    stamp(a, 7)
    set_flag(a, 40, 8, also=FL1*128 if OPT.get('lf', 1) else None)
    a("L_aux_wait:")
    a(f"s_sleep {OPT.get('wsl', 16)}")
    a(f"ds_read_b32 v3, v23 offset:{W_PROG}")
    a("s_waitcnt lgkmcnt(0)")
    a("v_readfirstlane_b32 s41, v3")
    a("s_nop 0")
    a(f"s_cmp_lt_u32 s41, {OPT.get('f2w', 6)}")
    a("s_cbranch_scc1 L_aux_wait")
    if OPT.get('dyn', 0):
        a("s_cmp_lg_u32 s44, 1")
        a("s_cbranch_scc1 L_kv_done")
        make_srd(a, 28, pDBG, 0, 256)
        a("v_mov_b32 v3, 1")
        if OPT.get('dyn', 0) == 2:
            a(f"s_lshl_b32 s40, s{sXCD}, 2")
            a("s_add_u32 s40, s40, 128")
            a("v_mov_b32 v4, s40")
        else: a("v_mov_b32 v4, 128")
        a("s_mov_b64 exec, 1")
        a("buffer_atomic_add v3, v4, s[28:31], 0 offen sc0")
        a("s_waitcnt vmcnt(0)")
        a("v_add_u32 v3, 1, v3")
        a("ds_write_b32 v23, v3 offset:12")
        a("s_mov_b64 exec, -1")
    a("s_branch L_kv_done")
    a("L_kv:")
    a(f"s_mul_i32 s40, s26, {KV_HEAD}")
    make_srd(a, 28, pWS, "s40", KV_HEAD)
    a(f"v_mul_u32_u24 v6, {LPAIR}, v1")
    a("v_min_u32 v6, %d, v6" % (30*LPAIR))
    for r in range(4): a(f"v_mov_b32 v{8+r}, 0x3f803f80")
    a("ds_write_b128 v6, v[8:11] offset:5120")
    for r in range(4): a(f"v_mov_b32 v{12+r}, 0")
    a("ds_write_b128 v6, v[12:15] offset:5136")
    a("v_mov_b32 v16, 0x3f803f80")
    a("v_mov_b32 v17, 0x3f80")
    a("ds_write_b64 v6, v[16:17] offset:5152")
    a("s_lshr_b32 s41, s26, 3")
    a("s_lshl_b32 s41, s41, 1")
    a(f"s_and_b32 s43, s{sXCD}, 1")
    a("s_lshl_b32 s43, s43, 3")
    a("s_lshl_b32 s42, s27, 1")
    a("v_and_b32 v3, 15, v1")
    a("v_lshrrev_b32 v5, 4, v1")
    a("v_add_u32 v5, 1, v5")
    a("v_and_b32 v4, 7, v1")
    a("v_add_u32 v4, s43, v4")
    a("v_bfe_u32 v6, v1, 3, 1")
    a("v_add_u32 v6, 1, v6")
    a("v_cmp_gt_u32 vcc, 32, v1")
    a("v_and_b32 v7, 1, v1")
    a("v_add_u32 v7, s42, v7")
    a("v_cndmask_b32 v3, v4, v3, vcc")
    a("v_cndmask_b32 v5, v6, v5, vcc")
    a("v_cmp_gt_u32 vcc, 48, v1")
    a("v_add_u32 v6, -48, v1")
    a(f"v_mov_b32 v4, {FL1}")
    a("v_cndmask_b32 v3, v7, v3, vcc")
    a("v_cndmask_b32 v5, 0, v5, vcc")
    a("v_cmp_gt_u32 vcc, 2, v6")
    a("v_cmp_gt_u32 s[46:47], 32, v1")
    a("v_and_b32 v7, 7, v3")
    a("v_lshl_add_u32 v5, v5, 3, v7")
    a("s_or_b64 vcc, vcc, s[46:47]")
    a("v_lshrrev_b32 v3, 3, v3")
    a("v_add_u32 v3, s41, v3")
    a("v_cndmask_b32 v4, v4, 0, vcc")
    a("v_lshl_add_u32 v5, v5, 3, v3")
    a("v_add_u32 v5, v5, v4")
    a("v_lshlrev_b32 v5, 7, v5")
    def poll_once(first=False):
        if first and OPT.get('lf', 1):
            a("s_and_b32 s48, s40, 7")
            a("s_cmp_eq_u32 s48, 0")
            a("s_cselect_b32 exec_lo, -1, 0")
            a("s_cselect_b32 exec_hi, -1, 0xcffff")
        a(f"buffer_load_dwordx2 v[6:7], v5, {sr(sFL,4)}, 0 offen sc1")
        if first and OPT.get('lf', 1): a("s_mov_b64 exec, -1")
        a("s_waitcnt vmcnt(0)")
        a(f"v_cmp_eq_u64 vcc, {sr(sNON,2)}, v[6:7]")
        a("s_sub_u32 s40, s40, 1")
        a("s_cselect_b32 s47, 0xffff, 0")
        a("s_and_b32 s48, vcc_hi, 0xff")
        a("s_lshl_b32 s48, s48, s43")
        a("s_or_b32 s48, s48, vcc_lo")
        a("s_bfe_u32 s49, vcc_hi, 0x80008")
        a("s_lshl_b32 s49, s49, s43")
        a("s_lshr_b32 s45, vcc_lo, 16")
        a("s_or_b32 s45, s45, s49")
        a("s_and_b32 s45, s45, s48")
        a("s_or_b32 s45, s45, s47")
    def pub(off, sreg):
        a(f"v_mov_b32 v4, s{sreg}")
        a(f"ds_write_b32 v23, v4 offset:{off}")
    a(f"s_mov_b32 s40, {POLL_MAX - 1}")
    a("v_mov_b32 v6, 0")
    a("v_mov_b32 v7, 0")
    if OPT.get('padgo'):
        a("L_padgo:")
        a("s_memrealtime s[42:43]")
        a("s_waitcnt lgkmcnt(0)")
        a(f"s_sub_u32 s42, s42, s{sNON}")
        a(f"s_cmp_lt_u32 s42, {OPT['padgo']}")
        a("s_cbranch_scc1 L_padgo")
    a("L_kv_p1:")
    a(f"s_sleep {OPT.get('ksl', 1)}")
    poll_once(True)
    a("s_cmp_lg_u32 s47, 0")
    a("s_cbranch_scc1 L_kv_first")
    a("s_lshr_b32 s48, vcc_hi, 16")
    a("s_lshr_b32 s49, vcc_hi, 18")
    a("s_or_b32 s48, s48, s49")
    a("s_and_b32 s48, s48, 3")
    a("s_cmp_eq_u32 s48, 3")
    a("s_cselect_b32 s48, s45, 0")
    a("s_cmp_eq_u32 s48, 0")
    a("s_cbranch_scc1 L_kv_p1")
    a("L_kv_first:")
    a("s_ff1_i32_b32 s48, s45")
    a("s_add_u32 s49, s48, 1")
    pub(W_GO, 49)
    stamp(a, 7)
    a("s_lshl_b32 s46, 1, s48")
    a(f"s_mul_i32 s48, s48, {4*TKV}")
    a(f"s_add_u32 s48, s48, {2*TKV}")
    for i in range(5):
        a(f"s_mov_b32 m0, {i*1024}")
        a("s_nop 0")
        a("buffer_load_dwordx4 v2, s[28:31], s48 offen sc1 lds")
        if i < 4: a("s_add_u32 s48, s48, 1024")
    a("s_mov_b32 s50, 1")
    a(f"s_mov_b32 s51, {LPAIR}")
    a("L_kv_next:")
    a("s_andn2_b32 s48, s45, s46")
    a("s_cbranch_scc0 L_kv_poll")
    a("s_ff1_i32_b32 s48, s48")
    a("s_bitset1_b32 s46, s48")
    a(f"s_mul_i32 s48, s48, {4*TKV}")
    for i in range(10):
        a(f"s_add_u32 m0, s51, {i*1024 + (64 if i >= 5 else 0)}")
        if i: a("s_add_u32 s48, s48, 1024")
        else: a("s_nop 0")
        a("buffer_load_dwordx4 v2, s[28:31], s48 offen sc1 lds")
    a(f"s_add_u32 s51, s51, {2*LPAIR}")
    a("s_cmp_eq_u32 s50, 1")
    a("s_cbranch_scc0 L_kv_w20")
    a("s_waitcnt vmcnt(10)")
    pub(W_PROG, 50)
    a("s_mov_b32 s50, 2")
    a("s_branch L_kv_next")
    a("L_kv_w20:")
    a("s_waitcnt vmcnt(20)")
    a("s_sub_u32 s49, s50, 1")
    pub(W_PROG, 49)
    a("s_add_u32 s50, s50, 1")
    a("s_branch L_kv_next")
    a("L_kv_poll:")
    a("s_waitcnt vmcnt(0)")
    pub(W_PROG, 50)
    a("s_cmp_eq_u32 s50, 16")
    a("s_cbranch_scc1 L_kv_done")
    poll_once()
    a("s_branch L_kv_next")
    a("L_kv_done:")
    if OPT.get('f2s', 16):
        a("s_branch L_all0")
        a("L_all:")
        a(f"s_sleep {OPT.get('wsl', 16)}")
        a("L_all0:")
        a(f"ds_read_b32 v3, v23 offset:{W_PROG}")
        a("s_waitcnt lgkmcnt(0)")
        a("v_readfirstlane_b32 s41, v3")
        a("s_nop 0")
        a(f"s_cmp_lt_u32 s41, {OPT.get('f2s', 16)}")
        a("s_cbranch_scc1 L_all")
    stamp(a, 8)
    a("v_lshlrev_b32 v5, 7, v1")
    a(f"v_add_u32 v5, {192*128}, v5")
    poll(a, 5, 6, sleep=4)
    a(f"s_setprio {OPT.get('pf2', 3)}")
    if OPT.get('dyn', 0):
        a("s_branch L_item0")
        a("L_item:")
        a("s_sleep 8")
        a("L_item0:")
        a("ds_read_b32 v3, v23 offset:12")
        a("s_waitcnt lgkmcnt(0)")
        a("v_readfirstlane_b32 s40, v3")
        a("s_nop 0")
        a("s_cmp_eq_u32 s40, 0")
        a("s_cbranch_scc1 L_item")
        a("s_sub_u32 s40, s40, 1")
        if OPT.get('dyn', 0) == 2:
            a("s_cmp_ge_u32 s40, 24")
            a("s_cbranch_scc1 L_wo")
            a(f"s_mul_i32 s41, s{sXCD}, 24")
            a("s_add_u32 s40, s40, s41")
    else:
        a(f"s_sub_u32 s40, 31, s{sSLOT}")
        a("s_cmp_ge_u32 s40, 24")
        a("s_cbranch_scc1 L_wo")
        a(f"s_mul_i32 s41, s{sXCD}, 24")
        a("s_add_u32 s40, s40, s41")
    a("s_cmp_ge_u32 s40, %d" % (0 if OPT.get('nof2') else 187))
    a("s_cbranch_scc1 L_wo")
    a("s_mul_i32 s41, s40, 373")
    a("s_lshr_b32 s41, s41, 12")
    a("s_mul_i32 s42, s41, 11")
    a("s_sub_u32 s42, s40, s42")
    a("s_lshl_b32 s41, s41, 1")
    a("s_cmp_ge_u32 s41, 18")
    a("s_cselect_b32 s43, 17, 0")
    a("s_sub_u32 s41, s41, s43")
    a("s_and_b32 s43, s41, 1")
    a("s_lshl_b32 s45, s44, 4")
    a("s_min_u32 s46, s44, 1")
    a("s_add_u32 s46, s46, s45")
    a("s_mul_i32 s47, s41, 65")
    a("s_add_u32 s47, s47, s46")
    a("s_lshl_b32 s47, s47, 10")
    a(f"s_add_u32 s47, s47, {SEQ_OFF}")
    make_srd(a, 28, pWS, "s47", 17*1024)
    a("s_and_b32 s47, s44, 2")
    a("s_add_u32 s47, s47, s43")
    a("s_mul_i32 s48, s47, 11")
    a("s_add_u32 s48, s48, s42")
    a("s_mul_i32 s48, s48, 33")
    a("s_and_b32 s45, s45, 16")
    a("s_add_u32 s48, s48, s45")
    a("s_lshl_b32 s48, s48, 10")
    a(f"s_add_u32 s48, s48, {AB_OFF}")
    make_srd(a, 32, pWS, "s48", 33*1024)
    make_srd(a, 36, pOUT, 0, OUT_SIZE)
    FB = 64; AC = 8
    a("s_or_b32 s47, s44, s43")
    a("s_cmp_lg_u32 s47, 0")
    a("s_cbranch_scc1 L_f2_nox")
    a(f"s_mov_b32 s49, {16*1024}")
    a("buffer_load_dwordx4 v[24:27], v2, s[28:31], s49 offen sc1")
    a(f"s_mov_b32 s49, {32*1024}")
    a("buffer_load_dwordx4 v[28:31], v2, s[32:35], s49 offen sc1")
    a("L_f2_nox:")
    for k in range(16):
        b = FB + k * 8
        if k % 4 == 0: a(f"s_mov_b32 s49, {(k//4)*4096}")
        a(f"buffer_load_dwordx4 {vr(b,4)}, v2, s[28:31], s49 offen offset:{(k%4)*1024} sc1")
        a(f"buffer_load_dwordx4 {vr(b+4,4)}, v2, s[32:35], s49 offen offset:{(k%4)*1024} sc1")
    stamp(a, 9)
    a("v_and_b32 v5, 31, v1")
    a("v_lshrrev_b32 v4, 5, v1")
    a("s_lshr_b32 s48, s41, 1")
    a("s_lshl_b32 s48, s48, 6")
    a("s_add_u32 s48, s48, s43")
    a("s_lshl_b32 s49, s44, 4")
    a("s_add_u32 s48, s48, s49")
    a("v_lshl_add_u32 v47, v4, 3, s48")
    a("v_mul_u32_u24 v47, 2560, v47")
    a("s_cmp_ge_u32 s42, 6")
    a("s_cselect_b32 s48, 383, 0")
    a("s_lshl_b32 s49, s42, 6")
    a("s_sub_u32 s48, s49, s48")
    a("v_lshl_add_u32 v5, v5, 1, s48")
    a(f"v_mov_b32 v46, {HUGE}")
    a("v_lshlrev_b32 v6, 1, v5")
    a("v_add_u32 v40, 1280, v6")
    a("v_cmp_ge_u32 vcc, 320, v5")
    a("v_sub_u32 v41, 2560, v6")
    a("v_add_u32 v6, -1, v5")
    a("v_cndmask_b32 v40, v46, v40, vcc")
    a("v_cmp_gt_u32 vcc, 319, v6")
    a(f"v_add_u32 v33, {(2048-6)*2560}, v40")
    a("v_sub_u32 v33, v33, v47")
    a("v_cndmask_b32 v41, v46, v41, vcc")
    a("v_add_u32 v32, v47, v40")
    a("v_add_u32 v36, v47, v41")
    a(f"v_add_u32 v37, {(2048-6)*2560}, v41")
    a("v_sub_u32 v37, v37, v47")
    a(f"v_subrev_u32 v34, {1024*2560}, v33")
    a(f"v_subrev_u32 v38, {1024*2560}, v37")
    a(f"v_add_u32 v35, {1024*2560}, v32")
    a(f"v_add_u32 v39, {1024*2560}, v36")
    a(f"v_add_u32 v42, {3*5120}, v33")
    a(f"v_add_u32 v43, {3*5120}, v37")
    a(f"v_mov_b32 v3, {LDS_PROG}")
    a("s_lshl_b32 s48, s44, 10")
    a("v_add_u32 v6, s48, v2")
    a("s_add_u32 s49, s48, 12288")
    a("s_lshl_b32 s50, s44, 12")
    a("s_add_u32 s51, s50, 3072")
    a("s_cmp_eq_u32 s44, 3")
    a(f"s_cmov_b32 s49, {LDS_PROG + 1024}")
    a(f"s_cmov_b32 s51, {LDS_PROG + 1024}")
    a("v_add_u32 v7, s49, v2")
    a("v_add_u32 v44, s50, v2")
    a("v_add_u32 v45, s51, v2")
    a("s_lshl_b32 s49, s44, 2")
    a("v_add_u32 v5, s49, v3")
    a(f"s_setprio {OPT.get('pmf', 1)}")
    for k in range(16):
        a(f"s_waitcnt vmcnt({2*(15-k)})")
        b = FB + k * 8
        d = vr(AC, 16)
        a(f"v_mfma_f32_32x32x16_bf16 {d}, {vr(b,4)}, {vr(b+4,4)}, {'0' if k == 0 else d}")
    a("s_cmp_lg_u32 s47, 0")
    a("s_cbranch_scc1 L_f2_nox2")
    a(f"v_mfma_f32_32x32x16_bf16 {vr(AC,16)}, v[24:27], v[28:31], {vr(AC,16)}")
    a("L_f2_nox2:")
    a(f"s_setprio {OPT.get('pep', 3)}")
    def spin_min(lbl, off, sl):
        a(f"{lbl}:")
        a(f"ds_read_b128 v[48:51], v3 offset:{off}")
        a("s_waitcnt lgkmcnt(0)")
        a("v_min3_u32 v48, v48, v49, v50")
        a("v_min_u32 v48, v48, v51")
        a("s_nop 0")
        a("v_readfirstlane_b32 s48, v48")
        a("s_nop 0")
        a("s_cmp_lg_u32 s48, 0")
        a(f"s_cbranch_scc1 {lbl}_ok")
        a(f"s_sleep {sl}")
        a(f"s_branch {lbl}")
        a(f"{lbl}_ok:")
    spin_min("L_f2_dead", W_PASS, 16)
    a("s_nop 3")
    for j in range(3): a(f"ds_write_b128 v6, {vr(AC+4*j,4)} offset:{j*4096}")
    a(f"ds_write_b128 v7, {vr(AC+12,4)}")
    a(f"ds_write_b32 v5, v3 offset:{W_XCH}")
    spin_min("L_f2_wait", W_XCH, OPT.get('xsl', 8))
    for i in range(3): a(f"ds_read_b128 {vr(8+4*i,4)}, v44 offset:{i*1024}")
    a("ds_read_b128 v[20:23], v45")
    a("s_waitcnt lgkmcnt(0)")
    ng = "neg_lo:[0,1] neg_hi:[0,1]"
    for r in (0, 2):
        a(f"v_pk_add_f32 {vr(48+r,2)}, {vr(8+r,2)}, {vr(12+r,2)}")
        a(f"v_pk_add_f32 {vr(52+r,2)}, {vr(8+r,2)}, {vr(12+r,2)} {ng}")
        a(f"v_pk_add_f32 {vr(56+r,2)}, {vr(20+r,2)}, {vr(16+r,2)}")
        a(f"v_pk_add_f32 {vr(60+r,2)}, {vr(20+r,2)}, {vr(16+r,2)} {ng}")
    for r in (0, 2):
        a(f"v_pk_add_f32 {vr(8+r,2)}, {vr(48+r,2)}, {vr(56+r,2)} {ng}")
        a(f"v_pk_add_f32 {vr(12+r,2)}, {vr(48+r,2)}, {vr(56+r,2)}")
        a(f"v_pk_add_f32 {vr(16+r,2)}, {vr(52+r,2)}, {vr(60+r,2)} {ng}")
        a(f"v_pk_add_f32 {vr(20+r,2)}, {vr(52+r,2)}, {vr(60+r,2)}")
    for k in range(8): a(f"v_cvt_pk_bf16_f32 v{48+k}, v{8+2*k}, v{9+2*k}")
    a("s_cmp_eq_u32 s41, 16")
    a("s_cbranch_scc1 L_f2_nyq")
    for i in range(4):
        st = "buffer_store_short_d16_hi" if i & 1 else "buffer_store_short"
        m1, p1, m2, p2 = (48 + 2*k + (i >> 1) for k in range(4))
        a(f"s_mov_b32 s47, {i*5120}")
        a(f"s_mov_b32 s48, {(3-i)*5120}")
        for val, adr, so in [(m1, 32, "s47"), (p1, 36, "s47"), (p2, 35, "s47"), (m2, 39, "s47"), (m2, 34, "s48"), (p2, 38, "s48"),
                             (p1, 33 if i else 42, "s48" if i else "0"), (m1, 37 if i else 43, "s48" if i else "0")]:
            a(f"{st} v{val}, v{adr}, s[36:39], {so} offen{FLF()}")
    a("s_branch L_wo")
    a("L_f2_nyq:")
    a("s_cmp_lg_u32 s44, 0")
    a("s_cbranch_scc1 L_wo")
    a("s_mov_b32 exec_hi, 0")
    for val, adr in [(48, 32), (50, 36), (50, 42), (48, 43)]:
        a(f"buffer_store_short v{val}, v{adr}, s[36:39], 0 offen{FLF()}")
    a("s_mov_b64 exec, -1")
    a("L_wo:")
    a(f"s_setprio {OPT.get('pwo', 3)}")
    stamp(a, 10)
    a("s_and_b32 s40, s26, 3")
    a("s_lshl_b32 s40, s40, 2")
    a("s_add_u32 s40, s40, s44")
    a(f"s_mul_i32 s40, s40, {50*1024}")
    a(f"s_add_u32 s40, s40, {WO_OFF}")
    make_srd(a, 28, pWS, "s40", 50*1024)
    a("s_waitcnt vmcnt(0)")
    for k in range(OPT.get('nwo', 50)):
        if k % 4 == 0: a(f"s_mov_b32 s49, {(k//4)*4096}")
        a(f"buffer_load_dwordx4 {vr(56+4*k,4)}, v2, s[28:31], s49 offen offset:{(k%4)*1024} sc1")

def tail(a):
    PADS = OPT.get('pads', 1)
    padn = [0]
    def pad(chain, last=None):
        if not PADS: return
        a(f"L_pad_{chain}_{padn[0]}:")
        padn[0] += 1
        a(f"s_cbranch_vccnz {last or f'L_pad_{chain}_{padn[0]}'}")
    a("L_B_done:")
    a("s_lshr_b32 s40, s26, 2")
    a("s_lshl_b32 s41, s27, 3")
    a("s_add_u32 s41, s41, s40")
    a(f"s_mul_i32 s42, s41, {32*1280}")
    a(f"s_add_u32 s42, s42, {O_OFF}")
    make_srd(a, 28, pWS, "s42", 32*1280)
    a("v_and_b32 v4, 7, v1")
    a("v_bfe_u32 v5, v1, 3, 2")
    a("v_lshlrev_b32 v5, 1, v5")
    a("v_lshl_add_u32 v4, v4, 3, v5")
    a("s_and_b32 s42, s27, 3")
    a("s_lshl_b32 s42, s42, 6")
    a("s_lshr_b32 s43, s27, 2")
    a("s_add_u32 s42, s42, s43")
    a("s_lshl_b32 s42, s42, 2")
    a("s_lshr_b32 s40, s40, 1")
    a("s_add_u32 s42, s42, s40")
    a(f"s_add_u32 s42, s42, {FB}")
    a("v_lshl_add_u32 v4, v4, 2, s42")
    a("v_lshlrev_b32 v4, 7, v4")
    a("v_mov_b32 v8, v4")
    if OPT.get('ppre', 1): a(f"buffer_load_dwordx2 v[10:11], v8, {sr(sFL,4)}, 0 offen sc1")
    a("v_and_b32 v3, 31, v1")
    a("v_lshrrev_b32 v4, 5, v1")
    a("v_mul_u32_u24 v5, 2560, v4")
    a("v_lshl_add_u32 v5, v3, 3, v5")
    a("v_add_u32 v5, 1024, v5")
    make_srd(a, 32, pOUT, 0, OUT_SIZE)
    a("s_lshl_b32 s41, s41, 5")
    a("v_add_u32 v6, s41, v3")
    a("v_mul_u32_u24 v6, 2560, v6")
    a("s_and_b32 s42, s26, 3")
    a("s_mul_i32 s42, s42, 320")
    a("s_mul_i32 s43, s44, 12800")
    a("v_add_u32 v7, s43, v2")
    a("s_lshl_b32 s43, s44, 12")
    a("s_add_u32 s43, s43, 40960")
    a("v_add_u32 v3, s43, v2")
    a("s_lshl_b32 s43, s44, 10")
    a("s_add_u32 s43, s43, 40960")
    a("v_add_u32 v1, s43, v2")
    a("s_lshl_b32 s45, s44, 4")
    a("s_add_u32 s45, s45, s42")
    a("v_lshl_add_u32 v0, v4, 3, v6")
    a("s_lshl_b32 s43, s44, 6")
    a("s_add_u32 s43, s43, s42")
    a("v_lshl_add_u32 v6, v4, 4, v6")
    if PADS:
        a("s_mov_b64 vcc, -1")
        a("s_nop 0")
        a("s_branch L_pad_a_0")
        a("L_pad_ret:")
        a("s_setprio 3")
    a("s_waitcnt vmcnt(0)")
    stamp(a, 12)
    a("s_barrier")
    stamp(a, 1)
    if not OPT.get('apoll', 0):
        a("s_cmp_lg_u32 s44, 0")
        a("s_cbranch_scc1 L_onep")
        if OPT.get('pp', 1) > 1: poll_piped(a, 8, 10, OPT['pp'])
        else: poll(a, 8, 10, sleep=OPT.get('sl', 0), shrink=OPT.get('shr', 1))
        a("L_onep:")
    a("s_barrier")
    stamp(a, 13)
    if PADS: a("s_mov_b64 vcc, 0")
    a("s_lshl_b32 s40, s44, 10")
    for j in range(10):
        if j % 3 == 0: pad('a')
        a("s_mov_b32 m0, s40")
        a("s_nop 0")
        a("buffer_load_dwordx4 v2, s[28:31], s40 offen sc1 lds")
        if j < 9: a("s_add_u32 s40, s40, 4096")
    a("s_waitcnt vmcnt(%d)" % (6 if OPT.get('prog', 1) else 0))
    a("s_barrier")
    stamp(a, 14)
    if lib.STAMP: a("s_waitcnt lgkmcnt(0)")
    A5, AM, OB = 8, 24, 40
    def rd(buf, kap, base=None):
        b = OB + 4*buf
        if base is not None: return f"ds_read_b128 {vr(b,4)}, v{base} offset:{kap*1280}"
        if kap < 32: return f"ds_read_b128 {vr(b,4)}, v2 offset:{kap*1280}"
        o = (kap - 32) * 5120 // 8
        return None
    def rd_main(buf, kap):
        b = OB + 4*buf
        if kap < 32: return [f"ds_read_b128 {vr(b,4)}, v2 offset:{kap*1280}"]
        g = kap - 32
        return [f"ds_read_b64 {vr(b,2)}, v5 offset:{g*5120}", f"ds_read_b64 {vr(b+2,2)}, v5 offset:{g*5120+1280}"]
    PG = 10 if OPT.get('prog', 1) else 0
    def stream(steps, chain):
        padn[0] = 0
        n = len(steps); cnt = [0]*n
        PF = 3
        for k in range(PF):
            r = steps[k][0](k % 4); cnt[k] = len(r)
            for x in r: a(x)
        for k in range(n):
            out = sum(cnt[k+1:min(n, k+PF)])
            a(f"s_waitcnt lgkmcnt({out})")
            d = vr(steps[k][1], 16)
            a(f"v_mfma_f32_32x32x16_bf16 {d}, {vr(steps[k][2],4)}, {vr(OB+4*(k%4),4)}, {'0' if steps[k][3] else d}")
            if k % 2 == 0 or k in (PG + 13, 32, 38, 40): pad(chain, "L_pad_z_0" if k == n - 2 else None)
            if PG and k + PF == PG:
                a("s_waitcnt vmcnt(0)")
                a("s_barrier")
            if k + PF < n:
                r = steps[k+PF][0]((k+PF) % 4); cnt[k+PF] = len(r)
                for x in r: a(x)
            if k == PG + 13:
                for j in range(4): a(f"ds_write_b128 v3, {vr(A5+4*j,4)} offset:{j*1024}")
                cnt[k+PF] += 4
            if k == 32:
                a("s_barrier")
                for i in range(4): a(f"ds_read_b128 {vr(A5+4*i,4)}, v1 offset:{i*4096}")
                cnt[k+PF] += 4
            if k == 38:
                for i in range(1, 4):
                    a(f"v_pk_add_f32 {vr(A5,2)}, {vr(A5,2)}, {vr(A5+4*i,2)}")
                    a(f"v_pk_add_f32 {vr(A5+2,2)}, {vr(A5+2,2)}, {vr(A5+4*i+2,2)}")
            if k == 40:
                a(f"v_cvt_pk_bf16_f32 v{A5}, v{A5}, v{A5+1}")
                a(f"v_cvt_pk_bf16_f32 v{A5+1}, v{A5+2}, v{A5+3}")
                a(f"buffer_store_dwordx2 {vr(A5,2)}, v0, s[32:35], s45 offen offset:256{FLP()}")
    main = [((lambda kap: lambda buf: rd_main(buf, kap))(kap), AM, 56 + 4*(10+kap), kap == 0) for kap in range(40)]
    if PADS:
        a(f"L_pad_a_{padn[0]}:")
        a("s_cmp_eq_u32 s44, 3")
        a("s_cbranch_vccz L_nopad")
        a("s_cbranch_scc1 L_pad_c_0")
        a("s_branch L_pad_b_0")
        a("L_nopad:")
    a("s_cmp_eq_u32 s44, 3")
    a("s_cbranch_scc1 L_tail3")
    q5 = [((lambda i: lambda buf: [f"ds_read_b128 {vr(OB+4*buf,4)}, v7 offset:{i*1280}"])(i), A5, 56 + 4*i, i == 0) for i in range(10)]
    stream(main[:PG] + q5 + main[PG:], 'b')
    a("s_branch L_tail_join")
    a("L_tail3:")
    q5 = [((lambda i: lambda buf: rd_main(buf, 30 + i))(i), A5, 56 + 4*i, i == 0) for i in range(10)]
    stream(main[:PG] + q5 + main[PG:], 'c')
    a("L_tail_join:")
    stamp(a, 11)
    padn[0] = 0
    pad('z')
    a("s_nop 11")
    for r in range(8): a(f"v_cvt_pk_bf16_f32 v{AM+r}, v{AM+2*r}, v{AM+2*r+1}")
    pad('z', "L_pad_ret")
    a("s_nop 1")
    for h2 in range(2):
        a(f"v_permlane32_swap_b32 v{AM+4*h2}, v{AM+4*h2+2}")
        a(f"v_permlane32_swap_b32 v{AM+4*h2+1}, v{AM+4*h2+3}")
    for h2 in range(2):
        a(f"buffer_store_dwordx4 {vr(AM+4*h2,4)}, v6, s[32:35], s43 offen offset:{32*h2}{FLP()}")
    a("L_end:")
    if OPT.get('pad'):
        a("L_pad:")
        a("s_memrealtime s[40:41]")
        a("s_waitcnt lgkmcnt(0)")
        a(f"s_sub_u32 s40, s40, s{sNON}")
        a(f"s_cmp_lt_u32 s40, {OPT['pad']}")
        a("s_cbranch_scc1 L_pad")
    if lib.STAMP:
        a("s_waitcnt vmcnt(0)")
        stamp(a, 15); stamp_real(a, 17)
        stamp_flush(a, 18, pWS, sWAVE, 0)
    a("L_exit:")
    a("s_endpgm")

KNAME = "concat_heads__mha_block__spectral_fnet__prompt_kernel"
def kernel(a):
    kernel_header(a, KNAME)
    if OPT.get('early'): a("s_memrealtime s[98:99]")
    a("s_cmp_ge_u32 s2, 256")
    a("s_cbranch_scc1 L_exit")
    if lib.STAMP:
        for i in range(18): a(f"s_mov_b32 s{60+2*i}, 0")
    stamp(a, 0); stamp_real(a, 16)
    a("s_load_dwordx8 s[4:11], s[0:1], 0")
    a("s_load_dwordx4 s[12:15], s[0:1], 64")
    a("s_load_dwordx2 s[16:17], s[0:1], 80")
    a("v_lshrrev_b32 v1, 6, v0")
    a(f"s_and_b32 s{sXCD}, s2, 7")
    a(f"v_readfirstlane_b32 s{sWAVE}, v1")
    a(f"s_lshr_b32 s{sSLOT}, s2, 3")
    a("v_and_b32 v1, 63, v0")
    a(f"s_and_b32 s26, s{sXCD}, 1")
    a("s_lshl_b32 s26, s26, 3")
    a(f"s_and_b32 s27, s{sSLOT}, 7")
    a("s_add_u32 s26, s26, s27")
    a(f"s_lshr_b32 s27, s{sSLOT}, 3")
    a("s_lshl_b32 s27, s27, 2")
    a(f"s_lshr_b32 s40, s{sXCD}, 1")
    a("s_add_u32 s27, s27, s40")
    a(f"s_cmp_ge_u32 s{sSLOT}, 24")
    a("s_cselect_b32 s40, 0, s%d" % sWAVE)
    a("s_cmp_lt_u32 s40, 4")
    a("s_cbranch_scc1 L_other")
    gemm_loader(a)
    a("L_other:")
    a("s_waitcnt lgkmcnt(0)")
    make_srd(a, sFL, pWS, FL_OFF, FL_SIZE)
    a(f"s_cmp_lg_u32 s{sWAVE}, 0")
    a("s_cbranch_scc1 L_no_init")
    a(f"v_mov_b32 v2, {LDS_PROG}")
    a("v_mov_b32 v4, 0")
    a("v_mov_b32 v5, 0")
    for i in range(8): a(f"ds_write_b64 v2, v[4:5] offset:{8*i}")
    a("s_cmp_lg_u32 s2, 0")
    a("s_cbranch_scc1 L_no_nonce")
    if OPT.get('early'): a("s_mov_b64 s[40:41], s[98:99]")
    else: a("s_memrealtime s[40:41]")
    make_srd(a, 28, pDBG, 0, 256)
    a("s_waitcnt lgkmcnt(0)")
    a("s_or_b32 s40, s40, 1")
    a("v_mov_b32 v2, s40")
    a("v_mov_b32 v3, s41")
    a("buffer_store_dwordx2 v[2:3], v4, s[28:31], 0 offen sc1")
    a("L_no_nonce:")
    a("s_waitcnt lgkmcnt(0)")
    a("L_no_init:")
    a(f"s_cmp_ge_u32 s{sSLOT}, 24")
    a("s_cbranch_scc1 L_prep")
    if OPT.get('touch', 1):
        a(f"s_cmp_lg_u32 s{sWAVE}, 1")
        a("s_cbranch_scc1 L_no_code")
        a("s_getpc_b64 s[40:41]")
        a("L_pc:")
        a(f"s_sub_u32 s40, s40, L_pc-{KNAME}")
        a("s_subb_u32 s41, s41, 0")
        a(f"s_mul_i32 s42, s{sSLOT}, 1792")
        a("v_lshlrev_b32 v2, 4, v1")
        a("v_add_u32 v2, s42, v2")
        a(f"v_min_u32 v2, L_exit-{KNAME}-1024-16, v2")
        for i in range(2): a(f"global_load_dwordx4 v[250:253], v2, s[40:41] offset:{i*1024}")
        a("L_no_code:")
    gemm_compute(a)
    prep(a)
    a_done(a)
    attention(a)
    aux(a)
    tail(a)
    return kernel_desc(KNAME, 256, 102)

HEADER = open('concat_heads__mha_block__spectral_fnet__prompt.s.ref').read().split("; Override")[0]
def main(out):
    a = Asm()
    a('.amdgcn_target "amdgcn-amd-amdhsa--gfx950"')
    a(".text")
    d = kernel(a)
    txt = HEADER + "; @launch grid=(256,1,1) block=(512,1,1) lds=163840\n" + a.text() + '.section .rodata,"a"\n.p2align 6\n' + d
    open(out, "w").write(txt)

if __name__ == "__main__":
    for x in sys.argv[2:]:
        if x == "stamp": lib.STAMP = True
        elif x == "rt": lib.STAMP = True; lib.STAMPRT = True
        elif x == "gst": lib.STAMP = True; lib.STAMPSET = 1; lib.STAMPRT = True
        elif x == "cst": lib.STAMP = True; lib.STAMPSET = 2
        else:
            k, _, v = x.partition("=")
            OPT[k] = int(v) if v else 1
    main(sys.argv[1] if len(sys.argv) > 1 else "v39.s")
```

```python
import sys, struct
from lib import *
import lib

TKV = 2560; KV_HEAD = 64*TKV; KV_OFF = 0; KV_SIZE = 32*KV_HEAD
TQ = 1280; Q_HEAD = 64*TQ; Q_OFF = KV_SIZE; Q_SIZE = 32*Q_HEAD
O_OFF = Q_OFF + Q_SIZE; O_SIZE = 64*32*1280
SEQ_OFF = O_OFF + O_SIZE; SEQ_SIZE = 17*65*1024
AB_OFF = SEQ_OFF + SEQ_SIZE; AB_SIZE = 4*11*33*1024
WO_OFF = AB_OFF + AB_SIZE; WO_SIZE = 16*50*1024
FL_OFF = 16*1024*1024; FL_SIZE = 1536*128
FA, FB, FL1 = 0, 256, 1280
X_SIZE = 2048*1280; OUT_SIZE = 2048*2560
HUGE = 0x40000000
QSCALE = (20 ** -0.5) * 1.4426950408889634
NDMA = 155; LPAIR = 5184
LDS_PROG = 31*LPAIR
def lds_tile(t): return ((t-2)>>1)*LPAIR + ((t-2)&1)*TKV
def need(tile): return ((tile-1)*TKV + 4095)//4096
NEED = [need(4), need(7), need(15), need(23), 39]
POLL_MAX = 200000
def f32bits(x): return struct.unpack('<I', struct.pack('<f', x))[0]
OPT = {}
FLS = ['', ' sc1', ' nt', ' sc0 sc1', ' sc1 nt']
def FLP(): return FLS[OPT.get('flp', 0)]
def FLF(): return FLS[OPT.get('flf', 1)]

sWAVE = 3
pX, pW, pWO, pBX, pOUT, pDBG, pWS = 4, 6, 8, 10, 12, 14, 16
sNON = 18
sFL = 20
sXCD, sSLOT = 24, 25
STG = 36864
NS = 4

def poll(a, vaddr, vtmp, cnt=40, sleep=1, shrink=False):
    l = a.label("L_poll"); d = a.label("L_pollok")
    a(f"s_mov_b32 s{cnt}, {POLL_MAX}")
    a(f"{l}:")
    a(f"buffer_load_dwordx2 {vr(vtmp,2)}, v{vaddr}, {sr(sFL,4)}, 0 offen sc1")
    a("s_waitcnt vmcnt(0)")
    a(f"v_cmp_ne_u64 vcc, {sr(sNON,2)}, {vr(vtmp,2)}")
    a(f"s_sub_u32 s{cnt}, s{cnt}, 1")
    a(f"s_cbranch_vccz {d}")
    a(f"s_cmp_eq_u32 s{cnt}, 0")
    a(f"s_cbranch_scc1 {d}")
    if sleep: a(f"s_sleep {sleep}")
    if shrink: a("s_mov_b64 exec, vcc")
    a(f"s_branch {l}")
    a(f"{d}:")
    if shrink: a("s_mov_b64 exec, -1")

def poll_piped(a, vaddr, vtmp, depth, cnt=40):
    l = a.label("L_ppoll"); d = a.label("L_ppollok")
    a(f"s_mov_b32 s{cnt}, {POLL_MAX}")
    for i in range(depth - 1):
        a(f"buffer_load_dwordx2 {vr(vtmp+2*i,2)}, v{vaddr}, {sr(sFL,4)}, 0 offen sc1")
        a(f"s_sleep {OPT.get('pgap', 4)}")
    a(f"{l}:")
    for i in range(depth):
        a(f"buffer_load_dwordx2 {vr(vtmp+2*((i+depth-1)%depth),2)}, v{vaddr}, {sr(sFL,4)}, 0 offen sc1")
        a(f"s_waitcnt vmcnt({depth-1})")
        a(f"v_cmp_ne_u64 vcc, {sr(sNON,2)}, {vr(vtmp+2*i,2)}")
        a(f"s_sub_u32 s{cnt}, s{cnt}, 1")
        a(f"s_cbranch_vccz {d}")
        a(f"s_cbranch_scc1 {d}")
        a("s_mov_b64 exec, vcc")
    a(f"s_branch {l}")
    a(f"{d}:")
    a("s_mov_b64 exec, -1")

def prod_flags(a, vd, vt):
    a("s_lshr_b32 s40, s26, 3")
    a(f"v_and_b32 v{vd}, 7, v1")
    a(f"v_bfe_u32 v{vt}, v1, 3, 2")
    a(f"v_lshlrev_b32 v{vt}, 1, v{vt}")
    a(f"v_lshl_add_u32 v{vd}, v{vd}, 3, v{vt}")
    a("s_and_b32 s42, s27, 3")
    a("s_lshl_b32 s42, s42, 6")
    a("s_lshr_b32 s43, s27, 2")
    a("s_add_u32 s42, s42, s43")
    a("s_lshl_b32 s42, s42, 2")
    a("s_add_u32 s42, s42, s40")
    a(f"s_add_u32 s42, s42, {FB}")
    a(f"v_lshl_add_u32 v{vd}, v{vd}, 2, s42")
    a(f"v_lshlrev_b32 v{vd}, 7, v{vd}")

def get_nonce(a, vt, srd=28, cnt=40):
    make_srd(a, srd, pDBG, 0, 256)
    l = a.label("L_non"); d = a.label("L_nonok")
    a(f"v_mov_b32 v{vt}, 0")
    a(f"s_mov_b32 s{cnt}, {POLL_MAX}")
    a(f"{l}:")
    a(f"buffer_load_dwordx2 {vr(vt+2,2)}, v{vt}, {sr(srd,4)}, 0 offen sc1")
    a("s_waitcnt vmcnt(0)")
    a(f"v_readfirstlane_b32 s{sNON}, v{vt+2}")
    a(f"v_readfirstlane_b32 s{sNON+1}, v{vt+3}")
    a(f"s_sub_u32 s{cnt}, s{cnt}, 1")
    a(f"s_cmp_lg_u32 s{sNON}, 0")
    a(f"s_cbranch_scc1 {d}")
    a(f"s_cmp_eq_u32 s{cnt}, 0")
    a(f"s_cbranch_scc1 {d}")
    a("s_sleep 2")
    a(f"s_branch {l}")
    a(f"{d}:")

def set_flag(a, sidx, vt, also=None):
    for i in range(4): a(f"v_mov_b32 v{vt+i}, s{sNON+(i&1)}")
    a(f"v_lshlrev_b32 v{vt+4}, 4, v1")
    a("s_mov_b64 exec, 0xff")
    if also is not None:
        a(f"s_add_u32 s41, s{sidx}, {also}")
        a(f"buffer_store_dwordx4 {vr(vt,4)}, v{vt+4}, {sr(sFL,4)}, s41 offen")
    a(f"buffer_store_dwordx4 {vr(vt,4)}, v{vt+4}, {sr(sFL,4)}, s{sidx} offen sc1")
    a("s_mov_b64 exec, -1")

def gemm_loader(a):
    sA, sB = 28, 32
    a("L_loader:")
    a(f"s_sub_u32 s44, s{sWAVE}, 4")
    a("v_lshrrev_b32 v2, 3, v1")
    a("s_lshl_b32 s40, s44, 3")
    a("v_add_u32 v2, s40, v2")
    a("v_mul_u32_u24 v2, 1280, v2")
    a("v_lshrrev_b32 v3, 4, v1")
    a("s_and_b32 s40, s44, 1")
    a("s_lshl_b32 s40, s40, 2")
    a("v_or_b32 v4, s40, v3")
    a("v_and_b32 v5, 7, v1")
    a("v_xor_b32 v4, v4, v5")
    a("v_lshl_add_u32 v10, v4, 4, v2")
    a("s_lshl_b32 s45, s44, 10")
    a(f"s_lshr_b32 s40, s{sSLOT}, 3")
    a(f"s_add_u32 s40, s40, s{sSLOT}")
    a("s_and_b32 s40, s40, 1")
    a(f"s_mul_i32 s40, s40, {OPT.get('pstep', 6)}")
    a(f"s_mul_i32 s41, s{sXCD}, {OPT.get('rc', 3)}")
    a("s_add_u32 s40, s40, s41")
    a("s_mul_i32 s41, s40, 6554")
    a("s_lshr_b32 s41, s41, 16")
    a("s_mul_i32 s41, s41, 10")
    a("s_sub_u32 s47, s40, s41")
    a("s_lshl_b32 s40, s44, 4")
    a("v_lshrrev_b32 v2, 2, v1")
    a("v_add_u32 v2, s40, v2")
    a("v_mul_u32_u24 v2, 3840, v2")
    a("v_and_b32 v3, 3, v1")
    a("v_lshrrev_b32 v4, 5, v1")
    a("v_lshlrev_b32 v4, 1, v4")
    a("v_xor_b32 v3, v3, v4")
    a("v_lshl_add_u32 v11, v3, 4, v2")
    a("s_mul_i32 s46, s44, 5120")
    a("s_mul_i32 s50, s26, 163840")
    a("s_mul_i32 s51, s27, 320")
    a("s_sub_u32 s52, 2457600, s51")
    a("s_waitcnt lgkmcnt(0)")
    make_srd(a, sA, pX, "s50", 163840)
    def issue_x(c):
        sl = c % NS
        a("s_lshl_b32 s48, s47, 7")
        for j in range(4):
            a(f"s_add_u32 m0, s45, {sl*STG + j*4096}")
            if j: a(f"s_add_u32 s48, s48, 40960")
            else: a("s_mul_i32 s49, s47, 245760")
            a(f"buffer_load_dwordx4 v10, {sr(sA,4)}, s48 offen lds")
    def issue_w(c):
        sl = c % NS
        for i in range(5):
            a(f"s_add_u32 m0, s46, {sl*STG + 16384 + i*1024 - i*64}")
            if i == 0:
                a("s_add_u32 s47, s47, 1")
            elif i == 1:
                a("s_cmp_eq_u32 s47, 10")
                a("s_cmov_b32 s47, 0")
            else: a("s_nop 0")
            a(f"buffer_load_dwordx4 v11, {sr(sB,4)}, s49 offen offset:{i*64} lds")
    def issue(c): issue_x(c); issue_w(c)
    stamp(a, 3)
    issue_x(0)
    make_srd(a, sB, pW, "s51", "s52")
    issue_w(0)
    issued = 1
    pre = OPT.get('pre', 2)
    for c in range(1, pre): issue(c); issued += 1
    for c in range(10):
        a(f"s_waitcnt vmcnt({9*(issued-c-1)})")
        if c in (0, 9): stamp(a, {0: 2, 9: 5}[c])
        stamp(a, c + 1, 1)
        a("s_barrier")
        if c in (1, 3, 5, 7): stamp(a, 11 + c // 2, 1)
        while issued < min(10, c + 1 + (OPT.get('dep', 2) if c < OPT.get('depsw', 10) else 3)): issue(issued); issued += 1
    make_srd(a, sFL, pWS, FL_OFF, FL_SIZE)
    get_nonce(a, 2)
    a("s_branch L_A_done")

AX, AWA, EA = 8, 10, 16
FR = 24
ACC = 96
def gemm_loop(a, isv, epi):
    XB = [FR, FR + 36, 176, 212]
    def rdx(kk, m, b): sl, st = divmod(kk, 2); return f"ds_read_b128 {vr(b+4*m,4)}, v{AX+st} offset:{sl*STG + m*2048}"
    def rdw(kk, T, b): sl, st = divmod(kk, 2); return [f"ds_read_b64_tr_b16 {vr(b+16+4*T+2*t,2)}, v{AWA+T} offset:{sl*STG + st*10240 + t*256}" for t in range(2)]
    def reads(kk, b):
        r = rdw(kk, 0, b) + [rdx(kk, m, b) for m in range(4)]
        for T in range(1, 5): r += rdw(kk, T, b)
        return r
    def mfma(b, T, m):
        d = vr(ACC + 16*T + 4*m, 4); w = vr(b + 16 + 4*T, 4); x = vr(b + 4*m, 4)
        return f"v_mfma_f32_16x16x32_bf16 {d}, {x}, {w}, {d}" if isv else f"v_mfma_f32_16x16x32_bf16 {d}, {w}, {x}, {d}"
    for r in range(80): a(f"v_mov_b32 v{ACC+r}, 0")
    a(f"s_mov_b32 s40, {2*STG}")
    a("s_mov_b32 s41, 4")
    stamp(a, 13)
    a("s_barrier")
    stamp(a, 2)
    for r in reads(0, XB[0]): a(r)
    lp = a.label("L_gemm"); last = a.label("L_gemm_last")
    a(".p2align 3")
    a(f"{lp}:")
    for kk in range(4):
        a("s_waitcnt lgkmcnt(0)")
        ms = [mfma(XB[kk & 1], T, m) for T in range(5) for m in range(4)]
        a(ms[0])
        if kk == 1: a("s_barrier")
        if kk == 3:
            for i in range(2): a(f"v_add_u32 v{AX+i}, s40, v{AX+i}")
            for i in range(5): a(f"v_add_u32 v{AWA+i}, s40, v{AWA+i}")
            a("s_sub_u32 s40, 0, s40")
            a("s_sub_u32 s41, s41, 1")
            a("s_barrier")
            a("s_cmp_eq_u32 s41, 0")
            a(f"s_cbranch_scc1 {last}")
        nx = reads((kk + 1) & 3, XB[(kk + 1) & 1])
        for i in range(1, 20):
            if i - 1 < len(nx): a(nx[i-1])
            a(ms[i])
    a(f"s_branch {lp}")
    a(f"{last}:")
    bufs = [XB[0], XB[2], XB[3], XB[1]]
    def order(k0):
        r = []
        for k in (k0, k0 + 1): r += rdw(k, 0, bufs[k]) + [rdx(k, m, bufs[k]) for m in range(4)]
        return r
    first = order(0)
    rest01 = [x for T in range(1, 5) for k in (0, 1) for x in rdw(k, T, bufs[k])]
    second = order(2)
    rest23 = [[x for k in (2, 3) for x in rdw(k, T, bufs[k])] for T in range(5)]
    ms = [mfma(XB[1], T, m) for T in range(5) for m in range(4)]
    q = first + rest01
    pos = 0
    for i in range(1, 20):
        for _ in range(2 if i < 10 else 1):
            if pos < len(q): a(q[pos]); pos += 1
        a(ms[i])
    a("s_barrier")
    q = second + rest23[1] + rest23[2] + rest23[3] + rest23[4]
    a("s_waitcnt lgkmcnt(0)")
    pos = 0
    for T in range(5):
        e = epi(T - 1) if T >= 1 else []
        per = -(-len(e) // 12)
        for i in range(16):
            if i == 8 and T < 2: a(f"s_waitcnt lgkmcnt({min(15, pos - (12 + 4*T))})" if T == 0 else "s_waitcnt lgkmcnt(0)")
            a(mfma(bufs[i >> 2], T, i & 3))
            for _ in range(2):
                if pos < len(q): a(q[pos]); pos += 1
            if i >= 4:
                for x in e[per*(i-4):per*(i-3)]: a(x)
    stamp(a, 5)
    a("s_nop 7")
    for x in epi(4): a(x)

def gemm_compute(a):
    a("L_compute:")
    a("v_and_b32 v2, 15, v1")
    a("v_lshrrev_b32 v3, 4, v1")
    a(f"s_and_b32 s42, s{sWAVE}, 1")
    a(f"s_lshr_b32 s43, s{sWAVE}, 1")
    a("s_lshl_b32 s40, s42, 6")
    a("v_add_u32 v4, s40, v2")
    a("v_lshlrev_b32 v4, 7, v4")
    a("v_lshrrev_b32 v5, 1, v2")
    a("v_xor_b32 v5, v5, v3")
    a(f"v_lshl_add_u32 v{AX}, v5, 4, v4")
    a(f"v_xor_b32 v{AX+1}, 64, v{AX}")
    a("v_lshrrev_b32 v4, 5, v1")
    a("v_mul_u32_u24 v4, 5120, v4")
    a("v_and_b32 v5, 1, v3")
    a("v_lshrrev_b32 v6, 2, v2")
    a("v_lshl_add_u32 v6, v5, 3, v6")
    a("v_lshl_add_u32 v4, v6, 6, v4")
    a("v_add_u32 v4, 16384, v4")
    a("v_lshlrev_b32 v5, 2, v5")
    a("v_and_b32 v6, 3, v1")
    a("s_mul_i32 s44, s43, 20")
    def waddr(T, g):
        a(f"v_and_b32 v15, 7, v{g}")
        a("v_xor_b32 v15, v15, v5")
        a("v_lshl_add_u32 v15, v15, 3, v4")
        a(f"v_lshrrev_b32 v{g}, 3, v{g}")
        a(f"v_lshl_add_u32 v{AWA+T}, v{g}, 10, v15")
    a("s_lshl_b32 s45, s26, 2")
    a("s_lshl_b32 s42, s42, 1")
    a("s_add_u32 s42, s42, s45")
    a("s_and_b32 s45, s27, 3")
    a("s_lshl_b32 s45, s45, 3")
    a("s_lshl_b32 s43, s43, 2")
    a("s_add_u32 s43, s43, s45")
    a("s_cmp_ge_u32 s27, 8")
    a("s_cbranch_scc1 L_compute_v")
    for T in range(5):
        if T < 4:
            a(f"s_add_u32 s45, s44, {5*T}")
            a("v_add_u32 v7, s45, v6")
        else:
            a("s_add_u32 s45, s44, 4")
            a("v_mad_u32_u24 v7, v6, 5, s45")
        waddr(T, 7)
    a("s_cmp_ge_u32 s27, 4")
    for reg, k, q in [(44, KV_HEAD, Q_HEAD), (45, TKV, TQ), (46, f32bits(1.0), f32bits(QSCALE)), (47, KV_OFF, Q_OFF), (48, KV_SIZE, Q_SIZE)]:
        a(f"s_mov_b32 s{reg}, {q}")
        a(f"s_cmov_b32 s{reg}, {k}")
    make_srd(a, 28, pWS, "s47", "s48")
    a("s_mul_i32 s47, s43, s44")
    a("s_mul_i32 s48, s42, s45")
    a("s_add_u32 s47, s47, s48")
    a(f"v_lshlrev_b32 v{EA}, 4, v1")
    a(f"v_add_u32 v{EA+1}, s45, v{EA}")
    a("v_lshrrev_b32 v4, 5, v1")
    a("v_mul_lo_u32 v4, v4, s44")
    a("v_and_b32 v5, 31, v1")
    a("v_lshlrev_b32 v5, 3, v5")
    a("v_lshl_add_u32 v4, v4, 1, v5")
    a(f"v_add_u32 v{EA+2}, 1024, v4")
    a(f"v_add_u32 v{EA+3}, s45, v{EA+2}")
    a("s_mov_b32 s48, s47")
    a("s_add_u32 s49, s47, s44")
    def epi_qk(T):
        b = ACC + 16*T; e = []
        for r in range(16): e.append(f"v_mul_f32 v{b+r}, s46, v{b+r}")
        for r in range(8): e.append(f"v_cvt_pk_bf16_f32 v{b+r}, v{b+2*r}, v{b+2*r+1}")
        e.append("s_nop 0")
        for u in range(2):
            e.append(f"v_permlane16_swap_b32 v{b+4*u}, v{b+4*u+2}")
            e.append(f"v_permlane16_swap_b32 v{b+4*u+1}, v{b+4*u+3}")
        for u in range(2):
            if T < 4: e.append(f"buffer_store_dwordx4 {vr(b+4*u,4)}, v{EA+u}, s[28:31], s48 offen sc1")
            else:
                e.append(f"buffer_store_dwordx2 {vr(b+4*u,2)}, v{EA+2+u}, s[28:31], s47 offen sc1")
                e.append(f"buffer_store_dwordx2 {vr(b+4*u+2,2)}, v{EA+2+u}, s[28:31], s49 offen sc1")
        if T < 3: e.append("s_add_u32 s48, s48, s44")
        return e
    gemm_loop(a, False, epi_qk)
    a("s_branch L_A_done")
    a("L_compute_v:")
    for T in range(5):
        a(f"s_add_u32 s45, s44, {4*T}")
        a("v_add_u32 v7, s45, v6")
        waddr(T, 7)
    make_srd(a, 28, pWS, KV_OFF, KV_SIZE)
    a(f"s_mov_b32 s44, {KV_HEAD}")
    a("s_mul_i32 s47, s43, s44")
    a(f"s_mul_i32 s48, s42, {TKV}")
    a("s_add_u32 s47, s47, s48")
    a("v_lshrrev_b32 v7, 5, v1")
    a("v_mul_u32_u24 v7, 640, v7")
    a("v_and_b32 v15, 1, v3")
    a("v_lshl_add_u32 v7, v15, 6, v7")
    a("v_add_u32 v7, 1280, v7")
    for T in range(5):
        a(f"v_add_u32 v4, {16*T}, v2")
        a("v_mul_u32_u24 v5, 3277, v4")
        a("v_lshrrev_b32 v5, 16, v5")
        a("v_mul_u32_u24 v6, 20, v5")
        a("v_sub_u32 v4, v4, v6")
        a("v_and_b32 v6, 28, v4")
        a("v_add_u32 v4, v4, v6")
        a("v_mul_lo_u32 v5, v5, s44")
        a("v_lshl_add_u32 v4, v4, 4, v5")
        a(f"v_add_u32 v{EA+T}, v7, v4")
    def epi_v(T):
        b = ACC + 16*T; e = []
        for r in range(8): e.append(f"v_cvt_pk_bf16_f32 v{b+r}, v{b+2*r}, v{b+2*r+1}")
        e.append("s_nop 0")
        for u in range(2):
            e.append(f"v_permlane32_swap_b32 v{b+4*u}, v{b+4*u+2}")
            e.append(f"v_permlane32_swap_b32 v{b+4*u+1}, v{b+4*u+3}")
        for u in range(2): e.append(f"buffer_store_dwordx4 {vr(b+4*u,4)}, v{EA+T}, s[28:31], s47 offen offset:{u*TKV} sc1")
        return e
    gemm_loop(a, True, epi_v)
    a("s_branch L_A_done")

SWD = [56, 57, 96, 97, 100]
SEQR = [48, 56, 64]; SEQX = [24, 28, 160]; SEQS = [[40, 42], [43, 44], [51, 52]]
def side_ids(a):
    a("s_sub_u32 s53, s2, 192")
    a("s_mul_i32 s53, s53, 3")
    a(f"s_add_u32 s53, s53, s{sWAVE}")
    a("s_sub_u32 s53, s53, 5")

def side_gen(a):
    side_ids(a)
    G = 120
    a("v_lshlrev_b32 v23, 4, v3")
    a(f"s_mov_b32 s55, {f32bits(1.0/2048)}")
    a("v_cmp_gt_u32 vcc, 32, v1")
    for n in range(3):
        if n == 2:
            a("s_cmp_ge_u32 s53, 160")
            a("s_cbranch_scc1 L_sw_gen_done")
        a(f"s_add_u32 s54, s53, {192*n}")
        lp = a.label("L_gen_plain")
        a("s_lshr_b32 s41, s54, 5")
        a("s_and_b32 s58, s54, 31")
        a("s_lshr_b32 s59, s41, 1")
        a("s_lshl_b32 s59, s59, 6")
        a("s_and_b32 s47, s41, 1")
        a("s_add_u32 s59, s59, s47")
        a("v_lshl_add_u32 v4, v2, 1, s59")
        a("s_lshr_b32 s47, s58, 4")
        a("s_mul_i32 s45, s41, 65")
        a("s_add_u32 s45, s45, s58")
        a("s_add_u32 s46, s45, 33")
        a("s_add_u32 s45, s45, s47")
        a("s_lshl_b32 s45, s45, 10")
        a("s_lshl_b32 s46, s46, 10")
        a("s_and_b32 s48, s58, 15")
        a("s_lshl_b32 s48, s48, 5")
        a("s_add_u32 s48, s48, s47")
        a("v_add_u32 v5, s48, v23")
        a("v_mul_u32_u24 v5, v4, v5")
        a("v_cvt_f32_u32 v5, v5")
        a("v_cvt_f32_u32 v4, v4")
        for i in range(8):
            if i: a("v_fma_f32 v5, 2.0, v4, v5")
            a(f"v_mul_f32 v{G+i}, s55, v5")
        for i in range(8): a(f"v_fract_f32 v{G+i}, v{G+i}")
        for i in range(8): a(f"v_cos_f32 v{G+8+i}, v{G+i}")
        a("s_cmp_lg_u32 s58, 0")
        a(f"s_cbranch_scc1 {lp}")
        a("v_mul_f32 v6, 0x3e800000, v4")
        a("v_fract_f32 v6, v6")
        a(f"v_cndmask_b32 v{G}, v{G}, v6, vcc")
        a("v_cos_f32 v7, v6")
        a(f"v_mov_b32 v{SEQX[n]+1}, 0")
        a(f"v_mov_b32 v{SEQX[n]+2}, 0")
        a(f"v_mov_b32 v{SEQX[n]+3}, 0")
        a("v_cndmask_b32 v7, 0, v7, vcc")
        a(f"v_cvt_pk_bf16_f32 v{SEQX[n]}, v7, 0")
        a(f"{lp}:")
        for i in range(8): a(f"v_sin_f32 v{G+i}, v{G+i}")
        for i in range(4): a(f"v_cvt_pk_bf16_f32 v{SEQR[n]+i}, v{G+8+2*i}, v{G+9+2*i}")
        for i in range(4): a(f"v_cvt_pk_bf16_f32 v{SEQR[n]+4+i}, v{G+2*i}, v{G+1+2*i}")
        a(f"s_mov_b32 s{SEQS[n][0]}, s45")
        a(f"s_mov_b32 s{SEQS[n][1]}, s46")
    a("L_sw_gen_done:")

def side_issue(a):
    side_ids(a)
    make_srd(a, 32, pWO, 0, 819200)
    make_srd(a, 28, pWS, SEQ_OFF, WO_OFF + WO_SIZE - SEQ_OFF)
    for n in range(3):
        if n == 2:
            a("s_cmp_ge_u32 s53, 160")
            a("s_cbranch_scc1 L_sw_st_done")
        for k in range(2): a(f"buffer_store_dwordx4 {vr(SEQR[n]+4*k,4)}, v15, s[28:31], s{SEQS[n][k]} offen sc1")
        l = a.label("L_sw_nx")
        a("s_and_b32 s41, s53, 31")
        a(f"s_cbranch_scc1 {l}")
        a(f"s_add_u32 s41, s{SEQS[n][0]}, {16*1024}")
        a(f"buffer_store_dwordx4 {vr(SEQX[n],4)}, v15, s[28:31], s41 offen sc1")
        a(f"{l}:")
    a("L_sw_st_done:")
    WR = 120
    for n in range(5):
        if n == 4:
            a("s_cmp_ge_u32 s53, 32")
            a("s_cbranch_scc1 L_sw_wo_ld")
        a(f"s_add_u32 s40, s53, {192*n}")
        a("s_mul_i32 s41, s40, 1639")
        a("s_lshr_b32 s41, s41, 16")
        a("s_mul_i32 s58, s41, 40")
        a("s_sub_u32 s58, s40, s58")
        a("s_mul_i32 s59, s58, 20")
        a("s_mul_i32 s55, s58, 80")
        a("s_sub_u32 s55, s55, %d" % (32*80 - 16))
        a("s_cmp_lt_u32 s58, 32")
        a("s_cselect_b32 s45, 4, 40")
        a("s_cselect_b32 s59, s59, s55")
        a(f"s_mov_b32 s46, {20*1280}")
        a(f"s_cmov_b32 s46, {8*1280}")
        a("v_mul_u32_u24 v4, s45, v3")
        a("v_add_u32 v4, s59, v4")
        a("v_mul_u32_u24 v4, 1280, v4")
        a("s_lshl_b32 s59, s41, 6")
        a("v_lshl_add_u32 v4, v2, 1, v4")
        a("v_add_u32 v4, s59, v4")
        b = WR + 8*n
        for grp in range(2):
            so = "s46" if grp else "0"
            for i in range(4):
                a(f"buffer_load_ushort v{b+4*grp+i}, v4, s[32:35], {so} offen offset:{i*1280}")
        a("s_mul_i32 s59, s41, 52")
        a("s_lshr_b32 s59, s59, 8")
        a("s_mul_i32 s55, s59, 5")
        a("s_sub_u32 s55, s41, s55")
        a("s_mul_i32 s45, s58, 26")
        a("s_lshr_b32 s45, s45, 8")
        a("s_mul_i32 s47, s45, 10")
        a("s_sub_u32 s47, s58, s47")
        a("s_add_u32 s58, s58, 10")
        a("s_cmp_lt_u32 s55, 4")
        a("s_cselect_b32 s55, s55, s45")
        a("s_cselect_b32 s58, s58, s47")
        a("s_lshl_b32 s59, s59, 2")
        a("s_add_u32 s59, s59, s55")
        a("s_mul_i32 s59, s59, 50")
        a("s_add_u32 s59, s59, s58")
        a("s_lshl_b32 s59, s59, 10")
        a(f"s_add_u32 s{SWD[n]}, s59, {WO_OFF - SEQ_OFF}")
    a("L_sw_wo_ld:")

def side_work_finish(a):
    WR = 120
    l = a.label("L_sw_fin")
    for n in range(5):
        if n == 4:
            a("s_cmp_ge_u32 s53, 32")
            a(f"s_cbranch_scc1 {l}")
        b = WR + 8*n
        for i in range(4): a(f"v_lshl_or_b32 v{b+i}, v{b+2*i+1}, 16, v{b+2*i}")
        a(f"buffer_store_dwordx4 {vr(b,4)}, v15, s[28:31], s{SWD[n]} offen sc1")
    a(f"{l}:")

def prep(a):
    a("L_prep:")
    a(f"s_sub_u32 s40, s{sSLOT}, 24")
    a("s_and_b32 s27, s40, 1")
    a("s_lshr_b32 s26, s40, 1")
    a("s_lshl_b32 s26, s26, 3")
    a(f"s_add_u32 s26, s26, s{sXCD}")
    make_srd(a, 36, pWS, AB_OFF, AB_SIZE)
    a(f"s_cmp_ge_u32 s{sWAVE}, 5")
    a("s_cbranch_scc1 L_fold_skip")
    make_srd(a, 28, pBX, 0, X_SIZE)
    a("s_lshr_b32 s42, s26, 1")
    a("s_lshl_b32 s42, s42, 5")
    a("s_and_b32 s43, s26, 1")
    a("s_add_u32 s42, s42, s43")
    a("v_lshrrev_b32 v2, 3, v1")
    a("v_and_b32 v3, 7, v1")
    a("v_lshl_add_u32 v4, v2, 1, s42")
    a("v_mul_u32_u24 v5, 1280, v4")
    a("v_lshlrev_b32 v6, 4, v3")
    a("v_add_u32 v10, v5, v6")
    a("v_sub_u32 v7, v6, v5")
    a(f"s_lshl_b32 s44, s27, 1")
    a(f"s_add_u32 s44, s44, s{sWAVE}")
    a("s_cmp_ge_u32 s44, 5")
    a("s_cselect_b32 s45, 5, 0")
    a("s_sub_u32 s44, s44, s45")
    a("s_lshl_b32 s44, s44, 7")
    a("s_add_u32 s45, s44, 20480")
    a(f"v_add_u32 v11, {2048*1280}, v7")
    a(f"v_add_u32 v12, {1024*1280}, v7")
    a("v_cmp_ne_u32 vcc, 0, v4")
    a(f"v_mov_b32 v8, {HUGE}")
    a(f"v_add_u32 v9, {1024*1280}, v10")
    a("v_cndmask_b32 v13, v8, v9, vcc")
    LD = 32
    for hf in range(2):
        for r in range(4): a(f"buffer_load_dwordx4 {vr(LD+8*r+4*hf,4)}, v{10+r}, s[28:31], s44 offen offset:{640*hf}")
    a("v_subrev_u32 v11, 20480, v11")
    a("v_subrev_u32 v12, 20480, v12")
    for hf in range(2):
        for r, (vv, so) in enumerate([(10, 45), (11, 44), (12, 44), (9, 45)]):
            a(f"buffer_load_dwordx4 {vr(LD+32+8*r+4*hf,4)}, v{vv}, s[28:31], s{so} offen offset:{640*hf}")
    XL = 96
    a("s_cmp_lg_u32 s26, 0")
    a("s_cbranch_scc1 L_fold_nx")
    a(f"v_add_u32 v14, {512*1280}, v6")
    a(f"v_add_u32 v15, {1536*1280}, v6")
    a("v_cndmask_b32 v14, v14, v8, vcc")
    a("v_cndmask_b32 v15, v15, v8, vcc")
    for r in range(2):
        for hf in range(2):
            a(f"buffer_load_dwordx4 {vr(XL+8*r+4*hf,4)}, v{14+r}, s[28:31], s44 offen offset:{640*hf}")
    a("L_fold_nx:")
    a("v_and_b32 v5, 3, v2")
    a("v_lshrrev_b32 v4, 2, v2")
    a("v_lshl_or_b32 v5, v4, 3, v5")
    a("v_xor_b32 v5, v5, v3")
    a("v_and_b32 v4, 1, v3")
    a("v_lshl_add_u32 v5, v4, 5, v5")
    a("v_lshlrev_b32 v5, 4, v5")
    a("v_lshrrev_b32 v4, 1, v3")
    a("v_lshl_add_u32 v5, v4, 10, v5")
    a("s_lshl_b32 s45, s44, 5")
    a("v_add_u32 v16, s45, v5")
    a("v_xor_b32 v18, 64, v16")
    a("v_add_u32 v5, s44, v6")
    a("v_add_u32 v17, 40960, v5")
    a("v_lshlrev_b32 v6, 4, v1")
    a("v_add_u32 v6, 43008, v6")
    a("v_cndmask_b32 v17, v17, v6, vcc")
    a("L_fold_skip:")
    a("v_and_b32 v2, 31, v1")
    a("v_lshrrev_b32 v3, 5, v1")
    a("v_lshlrev_b32 v15, 4, v1")
    a(f"s_lshr_b32 s40, s{sWAVE}, 1")
    a("s_add_u32 s40, s40, 2")
    a(f"s_and_b32 s41, s{sWAVE}, 1")
    a(f"s_cmp_lt_u32 s{sWAVE}, 4")
    a(f"s_cselect_b32 s49, s{sWAVE}, s40")
    a("s_cselect_b32 s50, 0, s41")
    a("s_lshl_b32 s54, s49, 6")
    a("s_add_u32 s54, s54, s27")
    a("v_lshl_add_u32 v4, v2, 1, s54")
    AU = 10; SB = [[176, 184], [192, 200]]; HB = [[208, 212], [216, 220]]; UB = [72, 84, 96, 108]; ACC3 = [224, 240, 32]; PH = 112
    a("s_mul_i32 s52, s50, 20480")
    for jj in range(4):
        a(f"v_xor_b32 v5, {2*jj}, v3")
        a("v_xor_b32 v5, v5, v2")
        a("v_lshl_add_u32 v5, v3, 5, v5")
        a("v_lshlrev_b32 v5, 4, v5")
        a(f"v_add_u32 v5, {jj*1024}, v5")
        a(f"v_add_u32 v{AU+jj}, s52, v5")
    a(f"v_lshlrev_b32 v{AU+4}, 4, v3")
    a(f"v_add_u32 v{AU+4}, 40960, v{AU+4}")
    a(f"s_mov_b32 s52, {f32bits(1.0/640)}")
    a("s_cmp_lg_u32 s50, 0")
    a("s_cselect_b32 s53, 0x3e800000, 0")
    a("v_lshlrev_b32 v5, 3, v3")
    a("v_mul_u32_u24 v5, v4, v5")
    a("v_cvt_f32_u32 v5, v5")
    a("v_cvt_f32_u32 v4, v4")
    a("v_mul_f32 v6, 0x41800000, v4")
    for i in range(8):
        if i: a("v_add_f32 v5, v5, v4")
        a(f"v_mul_f32 v{PH+i}, s52, v5")
        a("v_sub_f32 v7, v5, v6")
        a(f"v_mul_f32 v{PH+8+i}, s52, v7")
    a("v_mul_f32 v6, s52, v6")
    a("v_fract_f32 v6, v6")
    for i in range(16): a(f"v_fract_f32 v{PH+i}, v{PH+i}")
    a("v_cos_f32 v19, v6")
    for i in range(16): a(f"v_sin_f32 v{SB[1][0]+i}, v{PH+i}")
    for i in range(16): a(f"v_subrev_f32 v{PH+i}, s53, v{PH+i}")
    for i in range(16): a(f"v_cos_f32 v{SB[0][0]+i}, v{PH+i}")
    a("v_add_f32 v19, v19, v19")
    for r in range(32): a(f"v_mov_b32 v{224+r}, 0")
    def cvts(jb, g): return [f"v_cvt_pk_bf16_f32 v{HB[jb][g]+d}, v{SB[jb][g]+2*d}, v{SB[jb][g]+2*d+1}" for d in range(4)]
    def rot(jb, cur): return [f"v_fma_f32 v{SB[jb][cur^1]+i}, v19, v{SB[jb][cur]+i}, -v{SB[jb][cur^1]+i}" for i in range(8)]
    for x in cvts(0, 0) + cvts(1, 0): a(x)
    a(f"s_cmp_lt_u32 s{sWAVE}, 5")
    a("s_cbranch_scc1 L_fold_go")
    side_gen(a)
    a("s_branch L_fold_done")
    a("L_fold_go:")
    a("s_cmp_lg_u32 s27, 0")
    a("s_cselect_b32 s46, -1.0, 1.0")
    a("s_mov_b32 s47, s46")
    a("s_mov_b32 s48, 0xffff0000")
    T = 112; R = 144; H = 20
    ng = "neg_lo:[0,1] neg_hi:[0,1]"
    def dfold(src, dst):
        for d in range(4):
            a(f"v_lshlrev_b32 v{dst+2*d}, 16, v{src+d}")
            a(f"v_and_b32 v{dst+2*d+1}, s48, v{src+d}")
            a(f"v_lshlrev_b32 v{H+2*(d&1)}, 16, v{src+4+d}")
            a(f"v_and_b32 v{H+2*(d&1)+1}, s48, v{src+4+d}")
            a(f"v_pk_fma_f32 {vr(dst+2*d,2)}, {vr(H+2*(d&1),2)}, s[46:47], {vr(dst+2*d,2)}")
    for n in range(2):
        a("s_waitcnt vmcnt(%d)" % (8 if n == 0 else 0))
        if n == 0: stamp(a, 9)
        b = LD + 32*n
        for r in range(4): dfold(b + 8*r, T + 8*r)
        for d in range(4):
            p = lambda r: vr(T+8*r+2*d, 2)
            q = lambda r: vr(R+8*r+2*d, 2)
            a(f"v_pk_add_f32 {q(0)}, {p(0)}, {p(1)}")
            a(f"v_pk_add_f32 {q(1)}, {p(0)}, {p(1)} {ng}")
            a(f"v_pk_add_f32 {q(2)}, {p(2)}, {p(3)}")
            a(f"v_pk_add_f32 {q(3)}, {p(2)}, {p(3)} {ng}")
            a(f"v_pk_add_f32 {p(0)}, {q(0)}, {q(2)}")
            a(f"v_pk_add_f32 {p(1)}, {q(0)}, {q(2)} {ng}")
            a(f"v_pk_add_f32 {p(2)}, {q(1)}, {q(3)} {ng}")
            a(f"v_pk_add_f32 {p(3)}, {q(1)}, {q(3)}")
        if n == 0:
            a("s_cmp_lg_u32 s26, 0")
            a("s_cbranch_scc1 L_fold_sp")
            a("s_waitcnt vmcnt(0)")
            dfold(XL, R); dfold(XL + 8, R + 8)
            for d in range(4):
                a(f"v_pk_add_f32 {vr(R+16+2*d,2)}, {vr(R+2*d,2)}, {vr(R+8+2*d,2)}")
                a(f"v_pk_add_f32 {vr(R+2*d,2)}, {vr(R+2*d,2)}, {vr(R+8+2*d,2)} {ng}")
            for e in range(8): a(f"v_cndmask_b32 v{T+24+e}, v{R+e}, v{T+24+e}, vcc")
            for d in range(4): a(f"v_cvt_pk_bf16_f32 v{R+d}, v{R+16+2*d}, v{R+17+2*d}")
            a(f"ds_write_b128 v17, {vr(R,4)}")
            a("L_fold_sp:")
        for i in range(4):
            for d in range(4): a(f"v_cvt_pk_bf16_f32 v{b+4*i+d}, v{T+8*i+2*d}, v{T+8*i+2*d+1}")
            a(f"ds_write_b128 v{16+2*n}, {vr(b+4*i,4)} offset:{(i>>1)*20480 + (i&1)*256}")
    a("L_fold_done:")
    for r in range(16): a(f"v_mov_b32 v{32+r}, 0")
    a("s_waitcnt lgkmcnt(0)")
    stamp(a, 14)
    a("s_barrier")
    stamp(a, 2)
    a(f"s_cmp_lt_u32 s{sWAVE}, 5")
    a("s_cbranch_scc1 L_no_side")
    side_issue(a)
    a("L_no_side:")
    make_srd(a, 28, pDBG, 0, 256)
    a("v_mov_b32 v16, 0")
    a("buffer_load_dwordx2 v[4:5], v16, s[28:31], 0 offen sc1")
    a("s_mul_i32 s42, s27, 6")
    a("s_add_u32 s42, s42, s49")
    a("s_cmp_gt_u32 s42, 10")
    a("s_cbranch_scc0 L_f1_go")
    a("s_waitcnt vmcnt(0)")
    a("s_branch L_prep_done")
    a("L_f1_go:")
    def ureads(j, kinds):
        jj = j & 3; o = (j >> 2) * 4096; b = UB[j & 3]; r = []
        for k in kinds:
            if k == 2: r.append(f"ds_read_b128 {vr(b+8,4)}, v{AU+4} offset:{j*32}")
            else: r.append(f"ds_read_b128 {vr(b+4*k,4)}, v{AU+jj} offset:{o + k*20480}")
        return r
    a("s_mov_b32 s45, 5")
    a("s_or_b32 s51, s26, s50")
    a("s_cmp_eq_u32 s51, 0")
    a("s_cselect_b32 s40, 1, 0")
    a(f"s_cmp_lt_u32 s{sWAVE}, 4")
    a("s_cselect_b32 s41, 2, 0")
    a("s_add_u32 s40, s40, s41")
    variants = [[0], [0, 2], [0, 1], [0, 1, 2]]
    for v in range(1, 4):
        a(f"s_cmp_eq_u32 s40, {v}")
        a(f"s_cbranch_scc1 L_f1_v{v}")
    for v, kinds in enumerate(variants):
        a(f"L_f1_v{v}:")
        nm = len(kinds)
        for x in ureads(0, kinds) + ureads(1, kinds): a(x)
        a(f"L_f1_loop{v}:")
        for jj in range(4):
            buf = jj & 1
            va = rot(0, buf) + cvts(0, buf ^ 1)
            if 1 in kinds: va = rot(0, buf) + rot(1, buf) + cvts(0, buf ^ 1) + cvts(1, buf ^ 1)
            rd = ureads(jj + 2, kinds)
            a(f"s_waitcnt lgkmcnt({nm})")
            a("s_nop 0")
            per = len(va) // nm
            for m, k in enumerate(kinds):
                d = vr(ACC3[k], 16)
                a(f"v_mfma_f32_32x32x16_bf16 {d}, {vr(UB[jj]+4*k,4)}, {vr(HB[k & 1][buf],4)}, {d}")
                a(rd[m])
                for x in va[per*m:per*m+per]: a(x)
        for r in range(4): a(f"v_add_u32 v{AU+r}, 4096, v{AU+r}")
        if 2 in kinds: a(f"v_add_u32 v{AU+4}, 128, v{AU+4}")
        a("s_sub_u32 s45, s45, 1")
        a("s_cmp_lg_u32 s45, 0")
        a(f"s_cbranch_scc1 L_f1_loop{v}")
        if v < 3: a("s_branch L_f1_done")
    a("L_f1_done:")
    stamp(a, 5)
    a("s_mul_i32 s43, s42, 33")
    a("s_and_b32 s44, s26, 1")
    a("s_lshl_b32 s44, s44, 4")
    a("s_lshr_b32 s45, s26, 1")
    a("s_add_u32 s44, s44, s45")
    a("s_add_u32 s44, s44, s43")
    a(f"s_mul_i32 s45, s50, {22*33}")
    a("s_add_u32 s44, s44, s45")
    a("s_lshl_b32 s44, s44, 10")
    a("s_waitcnt vmcnt(0) lgkmcnt(0)")
    a("s_nop 5")
    for jb in range(2):
        b = ACC3[jb]
        if jb == 1:
            a(f"s_cmp_ge_u32 s{sWAVE}, 4")
            a("s_cbranch_scc1 L_f1_one")
        for r in range(8): a(f"v_cvt_pk_bf16_f32 v{b+r}, v{b+2*r}, v{b+2*r+1}")
        for hf in range(2):
            a(f"buffer_store_dwordx4 {vr(b+4*hf,4)}, v15, s[36:39], s44 offen sc1")
            a(f"s_add_u32 s44, s44, {11*33*1024}")
    a("L_f1_one:")
    a("s_cmp_lg_u32 s51, 0")
    a("s_cbranch_scc1 L_prep_done")
    b = ACC3[2]
    for r in range(4): a(f"v_cvt_pk_bf16_f32 v{b+r}, v{b+2*r}, v{b+2*r+1}")
    a("s_add_u32 s43, s43, 32")
    a("s_lshl_b32 s43, s43, 10")
    a(f"buffer_store_dwordx4 {vr(b,4)}, v15, s[36:39], s43 offen sc1")
    a("L_prep_done:")
    a(f"s_cmp_lt_u32 s{sWAVE}, 5")
    a("s_cbranch_scc1 L_prep_fin")
    make_srd(a, 28, pWS, SEQ_OFF, WO_OFF + WO_SIZE - SEQ_OFF)
    side_work_finish(a)
    a("L_prep_fin:")
    a(f"v_readfirstlane_b32 s{sNON}, v4")
    a(f"v_readfirstlane_b32 s{sNON+1}, v5")
    a("s_nop 0")
    a(f"s_cmp_lg_u32 s{sNON}, 0")
    a("s_cbranch_scc1 L_A_done")
    get_nonce(a, 2)

W_PROG, W_GO, W_CNT, W_PASS, W_XCH, W_NON = 0, 4, 8, 16, 32, 48
def a_done(a):
    a("L_A_done:")
    stamp(a, 6)
    a(f"v_mov_b32 v23, {LDS_PROG}")
    a(f"s_cmp_lg_u32 s{sWAVE}, 4")
    a("s_cbranch_scc1 L_A_bar")
    a(f"v_mov_b32 v2, s{sNON}")
    a(f"v_mov_b32 v3, s{sNON+1}")
    a(f"ds_write_b64 v23, v[2:3] offset:{W_NON}")
    a("L_A_bar:")
    a("s_waitcnt lgkmcnt(0)")
    a("s_barrier")
    stamp(a, 4)
    a(f"s_lshr_b32 s26, s{sXCD}, 1")
    a("s_lshl_b32 s26, s26, 3")
    a(f"s_and_b32 s27, s{sSLOT}, 7")
    a("s_add_u32 s26, s26, s27")
    a(f"s_and_b32 s27, s{sXCD}, 1")
    a("s_lshl_b32 s27, s27, 2")
    a(f"s_lshr_b32 s40, s{sSLOT}, 3")
    a("s_add_u32 s27, s27, s40")
    a(f"s_cmp_ge_u32 s{sWAVE}, 4")
    a("s_cbranch_scc1 L_aux")

def drained(a, vt):
    a(f"v_mov_b32 v{vt}, 1")
    a("s_mov_b64 exec, 1")
    a(f"ds_add_u32 v23, v{vt} offset:{W_CNT}")
    a("s_mov_b64 exec, -1")

def attention(a):
    SL = OPT.get('slot', 1)
    AKA, AKB, AV, AKB2 = 4, 5, 168, 172
    AREGS = [AKA, AV, AV+1, AV+2, AV+3] + ([AKB2, AKB2+1] if SL else [AKB])
    QA = [8, 14]
    NEG = [32, 48]; S = [64, 80]; O = [96, 112]; P = 128
    KB = [136, 142]; VB = [148, 156]
    PR = 164
    a("L_attn:")
    a(f"ds_read_b32 v24, v23 offset:{W_GO}")
    a(f"ds_read_b64 v[26:27], v23 offset:{W_NON}")
    a(f"s_setprio {OPT.get('pattn', 2)}")
    a(f"s_mul_i32 s40, s26, {Q_HEAD}")
    a(f"s_add_u32 s40, s40, {Q_OFF}")
    make_srd(a, 28, pWS, "s40", Q_HEAD)
    a(f"s_mul_i32 s40, s26, {KV_HEAD}")
    make_srd(a, 32, pWS, "s40", KV_HEAD)
    a("v_and_b32 v2, 31, v1")
    a("v_lshrrev_b32 v3, 5, v1")
    a(f"v_lshlrev_b32 v{AKA}, 4, v1")
    a(f"v_lshlrev_b32 v{AKB}, 3, v2")
    a(f"v_add_u32 v{AKB}, 1024, v{AKB}")
    a(f"v_mov_b32 v20, {HUGE}")
    a("v_cmp_gt_u32 vcc, 32, v1")
    a("s_lshl_b32 s41, s27, 3")
    a(f"s_lshl_b32 s42, s{sWAVE}, 1")
    a("s_add_u32 s41, s41, s42")
    a(f"v_cndmask_b32 v20, v20, v{AKB}, vcc")
    a(f"s_mul_i32 s42, s41, {TQ}")
    a("v_and_b32 v21, 28, v2")
    a("v_add_u32 v21, v21, v2")
    a("v_lshl_add_u32 v21, v3, 2, v21")
    a("v_lshlrev_b32 v21, 4, v21")
    a("v_add_u32 v29, 1280, v21")
    a("s_mov_b32 s48, 0x000fffff")
    a("s_mov_b32 s49, 0x000fffff")
    a("s_mov_b32 s52, 0x07060302")
    a("s_waitcnt lgkmcnt(0)")
    a("v_readfirstlane_b32 s47, v24")
    a(f"v_readfirstlane_b32 s{sNON}, v26")
    a(f"v_readfirstlane_b32 s{sNON+1}, v27")
    a("s_mov_b32 s50, s47")
    a("s_cmp_lg_u32 s47, 0")
    a("s_cbranch_scc1 L_attn_go")
    a("s_waitcnt vmcnt(0)")
    stamp(a, 3)
    drained(a, 24)
    a("L_attn_spin:")
    a(f"s_sleep {OPT.get('asl', 1)}")
    a(f"ds_read_b32 v24, v23 offset:{W_GO}")
    a("s_waitcnt lgkmcnt(0)")
    a("v_readfirstlane_b32 s47, v24")
    a("s_nop 0")
    a("s_cmp_eq_u32 s47, 0")
    a("s_cbranch_scc1 L_attn_spin")
    a("L_attn_go:")
    stamp(a, 7); stamp(a, 7, 2); stamp_real(a, 8, 2)
    a("s_sub_u32 s47, s47, 1")
    a(f"s_mul_i32 s47, s47, {4*TKV}")
    for q in range(2):
        a(f"buffer_load_dwordx4 {vr(QA[q],4)}, v{AKA}, s[28:31], s42 offen offset:{q*TQ} sc1")
        a(f"buffer_load_dwordx2 {vr(QA[q]+4,2)}, v20, s[28:31], s42 offen offset:{q*TQ} sc1")
    a(f"buffer_load_dwordx4 {vr(KB[0],4)}, v{AKA}, s[32:35], s47 offen sc1")
    if SL:
        for b in KB:
            a(f"v_mov_b32 v{b+4}, 0x3f803f80")
            a(f"v_mov_b32 v{b+5}, 0x3f80")
        a("s_mov_b32 exec_hi, 0")
    a(f"buffer_load_dwordx2 {vr(KB[0]+4,2)}, v{AKB}, s[32:35], s47 offen sc1")
    if SL: a("s_mov_b64 exec, -1")
    a("v_mov_b32 v24, 0x3f803f80")
    a("v_cmp_eq_u32 vcc, 20, v2")
    a(f"s_add_u32 s43, s47, {TKV}")
    a("s_nop 0")
    a("v_cndmask_b32 v24, 0, v24, vcc")
    for r in range(16): a(f"v_mov_b32 v{VB[0]+r}, v24")
    a(f"buffer_load_dwordx4 {vr(KB[1],4)}, v{AKA}, s[32:35], s43 offen sc1")
    if SL: a("s_mov_b32 exec_hi, 0")
    a(f"buffer_load_dwordx2 {vr(KB[1]+4,2)}, v{AKB}, s[32:35], s43 offen sc1")
    a("s_mov_b64 exec, s[48:49]")
    a(f"buffer_load_dwordx4 {vr(VB[0],4)}, v29, s[32:35], s47 offen sc1")
    a(f"buffer_load_dwordx4 {vr(VB[0]+4,4)}, v29, s[32:35], s47 offen offset:640 sc1")
    a(f"buffer_load_dwordx4 {vr(VB[1],4)}, v29, s[32:35], s43 offen sc1")
    a(f"buffer_load_dwordx4 {vr(VB[1]+4,4)}, v29, s[32:35], s43 offen offset:640 sc1")
    a("s_mov_b64 exec, -1")
    a("s_cmp_eq_u32 s50, 0")
    a("s_cbranch_scc1 L_attn_cnt")
    a("s_waitcnt vmcnt(12)")
    stamp(a, 3)
    drained(a, 24)
    a("L_attn_cnt:")
    a("v_mov_b32 v22, 5120")
    if OPT.get('zr', 1):
        a("v_cmp_lt_u32 vcc, 20, v2")
        a("v_mov_b32 v21, 5136")
        a("s_nop 0")
        a("v_cndmask_b32 v22, v22, v21, vcc")
    a("v_cmp_gt_u32 vcc, 20, v2")
    for i in range(4): a(f"v_add_u32 v{AV+i}, {(i>>1)*TKV + (i&1)*640}, v29")
    for i in range(4): a(f"v_cndmask_b32 v{AV+i}, v22, v{AV+i}, vcc")
    if SL:
        a("v_cmp_gt_u32 vcc, 32, v1")
        a("v_mov_b32 v22, 5152")
        a(f"v_add_u32 v21, {TKV}, v{AKB}")
        a(f"v_cndmask_b32 v{AKB2}, v22, v{AKB}, vcc")
        a(f"v_cndmask_b32 v{AKB2+1}, v22, v21, vcc")
    make_srd(a, 36, pWS, O_OFF, O_SIZE)
    for q in range(2):
        for r in range(16): a(f"v_mov_b32 v{O[q]+r}, 0")
    LOOPED = [False]
    mm16 = "v_mfma_f32_32x32x16_bf16"; mm8 = "v_mfma_f32_32x32x8_bf16"
    def M1(s, t, q, c): return "s_nop 1" if OPT.get('nom1') and c == "0" and LOOPED[0] else f"{mm16} {vr(s,16)}, {vr(KB[t&1],4)}, {vr(QA[q],4)}, {c}"
    def M2(s, t, q): return "s_nop 0" if OPT.get('nom2') and LOOPED[0] else f"{mm8} {vr(s,16)}, {vr(KB[t&1]+4,2)}, {vr(QA[q]+4,2)}, {vr(s,16)}"
    def M3(t, q): return "s_nop 1" if OPT.get('nopv') else f"{mm16} {vr(O[q],16)}, {vr(VB[t&1],4)}, {vr(P,4)}, {vr(O[q],16)}"
    def M4(t, q): return "s_nop 1" if OPT.get('nopv') else f"{mm16} {vr(O[q],16)}, {vr(VB[t&1]+4,4)}, {vr(P+4,4)}, {vr(O[q],16)}"
    def rowmax(src, dst, first):
        if first:
            a(f"v_max3_f32 v{dst}, v{src}, v{src+1}, v{src+2}")
            a(f"v_max_f32 v{dst}, v{dst}, v{src+15}")
            rng = range(3, 15, 2)
        else: rng = range(0, 16, 2)
        for r in rng: a(f"v_max3_f32 v{dst}, v{dst}, v{src+r}, v{src+r+1}")
    def finish_neg(add):
        a("v_mov_b32 v26, v24")
        a("v_mov_b32 v27, v25")
        a("s_nop 1")
        a("v_permlane32_swap_b32 v24, v26")
        a("v_permlane32_swap_b32 v25, v27")
        a("s_nop 1")
        a("v_max_f32 v24, v24, v26")
        a("v_max_f32 v25, v25, v27")
        if not SL:
            for q in range(2):
                a(f"v_sub_f32 v{NEG[q]}, {add}, v{24+q}")
                for r in range(1, 16): a(f"v_mov_b32 v{NEG[q]+r}, v{NEG[q]}")
            return
        a("s_mov_b32 s45, 0xffff0000")
        a("s_mov_b32 s46, 0x07060302")
        for q in range(2):
            a(f"v_sub_f32 v{24+q}, {add}, v{24+q}")
        for q in range(2):
            a(f"v_and_b32 v26, s45, v{24+q}")
            a(f"v_sub_f32 v27, v{24+q}, v26")
            a("v_and_b32 v28, s45, v27")
            a("v_sub_f32 v27, v27, v28")
            a("v_perm_b32 v26, v28, v26, s46")
            a("v_lshrrev_b32 v27, 16, v27")
            a("s_mov_b32 exec_lo, 0")
            a(f"v_mov_b32 v{QA[q]+4}, v26")
            a(f"v_mov_b32 v{QA[q]+5}, v27")
            a("s_mov_b64 exec, -1")
        a("s_nop 1")
    CNEG = lambda q: "0" if SL else vr(NEG[q], 16)
    a("s_waitcnt vmcnt(6)")
    stamp(a, 8)
    def neg_one(q, add):
        a(f"v_mov_b32 v26, v{24+q}")
        a("s_nop 1")
        a(f"v_permlane32_swap_b32 v{24+q}, v26")
        a("s_nop 0")
        a(f"v_max_f32 v{24+q}, v{24+q}, v26")
        a(f"v_sub_f32 v{24+q}, {add}, v{24+q}")
        a(f"v_and_b32 v26, s45, v{24+q}")
        a(f"v_sub_f32 v27, v{24+q}, v26")
        a("v_and_b32 v28, s45, v27")
        a("v_sub_f32 v27, v27, v28")
        a("s_mov_b32 exec_lo, 0")
        a(f"v_perm_b32 v{QA[q]+4}, v28, v26, s46")
        a(f"v_lshrrev_b32 v{QA[q]+5}, 16, v27")
        a("s_mov_b64 exec, -1")
    OFFS = hex(f32bits(-float(OPT.get('off', 100))))
    a(M1(S[0], 0, 0, "0")); a(M2(S[0], 0, 0))
    a(M1(S[1], 0, 1, "0")); a(M2(S[1], 0, 1))
    a("s_mov_b32 s45, 0xffff0000")
    a("s_mov_b32 s46, 0x07060302")
    a(f"ds_read_b32 v{PR}, v23")
    a("s_nop 6")
    rowmax(S[0], 24, True)
    neg_one(0, OFFS)
    a("s_nop 0")
    a(M1(S[0], 0, 0, CNEG(0)))
    a(M2(S[0], 0, 0))
    rowmax(S[1], 25, True)
    neg_one(1, OFFS)
    a("s_waitcnt vmcnt(0)")
    def check(need):
        l = a.label("L_chk"); ok = a.label("L_chkok")
        a(f"{l}:")
        a("s_waitcnt lgkmcnt(0)")
        a(f"v_readfirstlane_b32 s44, v{PR}")
        a("s_nop 0")
        a(f"s_cmp_ge_u32 s44, {need}")
        a(f"s_cbranch_scc1 {ok}")
        a(f"ds_read_b32 v{PR}, v23")
        a(f"s_branch {l}")
        a(".p2align 3")
        a(f"{ok}:")
    def unit(t, q, s4=(), s1=(), s2=(), s3=(), first=False, nonext=False):
        s = S[q]; sn = S[q ^ 1]
        t1, q1 = (t, 1) if q == 0 else (t + 1, 0)
        tp, qp = (t - 1, 1) if q == 0 else (t, 0)
        E = lambda r: a(f"v_exp_f32 v{s+r}, v{s+r}")
        C = lambda j: a(f"v_perm_b32 v{P+j}, v{s+2*j+1}, v{s+2*j}, s52" if OPT.get('perm') else f"v_cvt_pk_bf16_f32 v{P+j}, v{s+2*j}, v{s+2*j+1}")
        al = OPT.get('al', 0)
        EW = lambda r: a(f"v_exp_f32_e64 v{s+r}, v{s+r}") if al else E(r)
        odd = lambda xs: sum(1 for x in xs if x.startswith("s_")) & 1
        E(0); E(1)
        if not first: a(M4(tp, qp))
        for x in s4: a(x)
        (E if odd(s4) else EW)(2); E(3); E(4)
        if not nonext: a(M1(sn, t1, q1, CNEG(q1)))
        for x in s1: a(x)
        EW(5); E(6); E(7)
        for j in range(4): C(j)
        if OPT.get('m2l'): EW(8)
        if not nonext: a(M2(sn, t1, q1))
        for x in s2: a(x)
        if not OPT.get('m2l'): EW(8)
        for r in range(9, 13): E(r)
        a(M3(t, q))
        for x in s3: a(x)
        (E if odd(s3) else EW)(13); E(14); E(15)
        for j in range(4, 8): C(j)
    def period(t, o, extra3=()):
        if OPT.get('nods') and LOOPED[0]: o = None
        if o is None:
            if extra3:
                unit(t, 1, s4=["s_waitcnt lgkmcnt(0)"]); unit(t + 1, 0, s3=extra3); return
            unit(t, 1, s4=["s_waitcnt lgkmcnt(0)"]); unit(t + 1, 0); return
        kb = KB[t & 1]; vb = VB[t & 1]
        ok = lds_tile(o + 2); ov = (o >> 1) * LPAIR; av = AV + 2*(o & 1)
        unit(t, 1, s4=["s_waitcnt lgkmcnt(0)"],
             s1=[f"ds_read_b128 {vr(kb,4)}, v{AKA} offset:{ok}"],
             s3=[f"ds_read_b64 {vr(kb+4,2)}, v{AKB2+(o&1)} offset:{ov}" if SL else f"ds_read_b64 {vr(kb+4,2)}, v{AKB} offset:{ok}"])
        unit(t + 1, 0, s4=[f"ds_read_b128 {vr(vb,4)}, v{av} offset:{ov}"],
             s1=[f"ds_read_b128 {vr(vb+4,4)}, v{av+1} offset:{ov}"], s3=extra3)
    rdp = [f"ds_read_b32 v{PR}, v23"]
    a(".p2align 3")
    unit(0, 0, first=True)
    stamp(a, 9)
    check(1)
    for t in range(6):
        if t == 2: check(2)
        period(t, t, rdp if t in (1, 5) else ())
    for r in AREGS: a(f"v_add_u32 v{r}, {3*LPAIR}, v{r}")
    a(f"s_lshl_b32 s45, s{sWAVE}, 2")
    a("v_add_u32 v24, s45, v23")
    a(f"ds_write_b32 v24, v23 offset:{W_PASS}")
    a("s_mov_b32 s45, 2")
    a("s_mov_b32 s46, 7")
    stamp(a, 10); stamp(a, 10, 2); stamp_real(a, 12, 2)
    LOOPED[0] = True
    def body(chk):
        for k in range(8):
            ex = ()
            if k == 7: ex = (rdp if chk else [])
            if k == 6: ex = ["s_sub_u32 s46, s46, 1"]
            if k == 7 and not chk: ex = ["s_cmp_lg_u32 s46, 0"]
            period(k, k, ex)
        for r in AREGS: a(f"v_add_u32 v{r}, {4*LPAIR}, v{r}")
    a("s_cmp_eq_u32 s44, 16")
    a("s_cbranch_scc1 L_attn_fast")
    a(".p2align 3")
    a("L_attn_loop:")
    a("s_add_u32 s45, s45, 2")
    check("s45")
    body(True)
    a("s_cmp_eq_u32 s46, 0")
    a("s_cbranch_scc1 L_attn_last")
    a("s_cmp_lg_u32 s44, 16")
    a("s_cbranch_scc1 L_attn_loop")
    a(f".p2align {OPT.get('lal', 3)}")
    a("L_attn_fast:")
    body(False)
    a("s_cbranch_scc1 L_attn_fast")
    a(".p2align 3")
    a("L_attn_last:")
    period(62, None)
    unit(63, 1, nonext=True)
    a("s_nop 1")
    a(M4(63, 1))
    stamp(a, 11); stamp(a, 11, 2); stamp_real(a, 13, 2)
    a("L_attn_post:")
    a("s_lshl_b32 s42, s41, 5")
    a("s_add_u32 s42, s42, s26")
    a("s_mul_i32 s42, s42, 1280")
    a("v_lshlrev_b32 v21, 4, v1")
    for q in range(2):
        a(f"v_mov_b32 v{24+q}, v{O[q]+8}")
        a(f"v_mov_b32 v26, v{O[q]+8}")
        a("s_nop 1")
        a(f"v_permlane32_swap_b32 v26, v{24+q}")
        a("s_nop 0")
        a(f"v_rcp_f32 v26, v{24+q}")
        a("s_nop 0")
        for r in range(12): a(f"v_mul_f32 v{S[q]+r}, v{O[q]+r}, v26")
        for r in range(6): a(f"v_cvt_pk_bf16_f32 v{S[q]+r}, v{S[q]+2*r}, v{S[q]+2*r+1}")
        a(f"buffer_store_dwordx4 {vr(S[q],4)}, v21, s[36:39], s42 offen sc1")
        a(f"buffer_store_dwordx2 {vr(S[q]+4,2)}, v20, s[36:39], s42 offen sc1")
        if q == 0: a(f"s_add_u32 s42, s42, {32*1280}")
    a("s_cmp_eq_u32 s46, 0")
    a("s_cbranch_scc0 L_attn_fin")
    for q in range(2):
        a(f"v_max3_f32 v{30+q}, abs(v{O[q]}), abs(v{O[q]+1}), abs(v{O[q]+2})")
        a(f"v_mul_f32 v{26+q}, 0, v{24+q}")
    for r in range(12):
        for q in range(2): a(f"v_fma_f32 v{26+q}, v{O[q]+r}, 0, v{26+q}")
    for q in range(2):
        a(f"v_max3_f32 v{30+q}, v{30+q}, abs(v{O[q]+3}), abs(v{O[q]+4})")
        a(f"v_max3_f32 v{30+q}, v{30+q}, abs(v{O[q]+5}), abs(v{O[q]+6})")
        a(f"v_max_f32 v{30+q}, v{30+q}, abs(v{O[q]+7})")
    a("v_max_f32 v24, v24, v25")
    a("v_min_f32 v30, v30, v31")
    a("v_mov_b32 v28, 0x76800000")
    a("v_mov_b32 v31, 0x08800000")
    a("v_cmp_u_f32 s[44:45], v26, v27")
    a("v_cmp_nlt_f32 vcc, v24, v28")
    a("v_cmp_lt_f32 s[50:51], v30, v31")
    a("s_nop 1")
    a("s_or_b64 vcc, vcc, s[44:45]")
    a("s_or_b64 vcc, vcc, s[50:51]")
    if OPT.get('forcefb'): a("s_mov_b64 vcc, -1")
    a("s_cbranch_vccnz L_attn_fallback")
    a("L_attn_fin:")
    if OPT.get('apoll', 0): prod_flags(a, 12, 13)
    a("s_lshl_b32 s40, s2, 2")
    a(f"s_add_u32 s40, s40, s{sWAVE}")
    a(f"s_add_u32 s40, s40, {FB}")
    a("s_lshl_b32 s40, s40, 7")
    for i in range(4): a(f"v_mov_b32 v{8+i}, s{sNON+(i&1)}")
    a("s_waitcnt vmcnt(0)")
    stamp(a, 12)
    a("s_mov_b64 exec, %s" % ("1" if OPT.get('f16') or OPT.get('fat') else "0xff"))
    if OPT.get('fat'): a(f"buffer_atomic_swap_x2 v[8:9], v21, {sr(sFL,4)}, s40 offen" + (" sc1" if OPT['fat'] == 2 else ""))
    elif OPT.get('fnt'): a(f"buffer_store_dwordx4 v[8:11], v21, {sr(sFL,4)}, s40 offen sc0 sc1")
    else: a(f"buffer_store_dwordx4 v[8:11], v21, {sr(sFL,4)}, s40 offen sc1")
    a("s_mov_b64 exec, -1")
    a("s_barrier")
    if OPT.get('apoll', 0):
        a(f"s_cmp_lg_u32 s{sWAVE}, 0")
        a("s_cbranch_scc1 L_end")
        if OPT.get('apoll', 0) > 1: poll_piped(a, 12, 14, OPT.get('apoll', 0))
        else: poll(a, 12, 14, sleep=0)
        a("s_barrier")
    a("s_branch L_end")
    a("L_attn_fallback:")
    a("s_waitcnt vmcnt(0)")
    for r in ((AKA,) if SL else (AKA, AKB)): a(f"v_subrev_u32 v{r}, {31*LPAIR}, v{r}")
    if SL:
        a("s_mov_b32 exec_lo, 0")
        for q in range(2):
            a(f"v_mov_b32 v{QA[q]+4}, 0")
            a(f"v_mov_b32 v{QA[q]+5}, 0")
        a("s_mov_b64 exec, -1")
    a("v_mov_b32 v24, 0xff800000")
    a("v_mov_b32 v25, 0xff800000")
    a("s_mov_b32 s46, 0")
    a("L_fb_max:")
    a(f"buffer_load_dwordx4 {vr(KB[0],4)}, v{AKA}, s[32:35], s46 offen sc1")
    if SL: a("s_mov_b32 exec_hi, 0")
    a(f"buffer_load_dwordx2 {vr(KB[0]+4,2)}, v{AKB}, s[32:35], s46 offen sc1")
    if SL: a("s_mov_b64 exec, -1")
    a("s_waitcnt vmcnt(0)")
    for q in range(2): a(M1(S[q], 0, q, "0"))
    for q in range(2): a(M2(S[q], 0, q))
    a("s_nop 15")
    rowmax(S[0], 24, False)
    rowmax(S[1], 25, False)
    a(f"s_add_u32 s46, s46, {TKV}")
    a(f"s_cmp_lt_u32 s46, {KV_HEAD}")
    a("s_cbranch_scc1 L_fb_max")
    finish_neg("0")
    for q in range(2):
        for r in range(16): a(f"v_mov_b32 v{O[q]+r}, 0")
    a("s_mov_b32 s46, 0")
    a("L_fb_main:")
    a(f"buffer_load_dwordx4 {vr(KB[0],4)}, v{AKA}, s[32:35], s46 offen sc1")
    if SL: a("s_mov_b32 exec_hi, 0")
    a(f"buffer_load_dwordx2 {vr(KB[0]+4,2)}, v{AKB}, s[32:35], s46 offen sc1")
    if SL: a("s_mov_b64 exec, -1")
    a("s_mov_b64 exec, s[48:49]")
    a(f"buffer_load_dwordx4 {vr(VB[0],4)}, v29, s[32:35], s46 offen sc1")
    a(f"buffer_load_dwordx4 {vr(VB[0]+4,4)}, v29, s[32:35], s46 offen offset:640 sc1")
    a("s_mov_b64 exec, -1")
    a("s_waitcnt vmcnt(0)")
    for q in range(2): a(M1(S[q], 0, q, CNEG(q)))
    for q in range(2): a(M2(S[q], 0, q))
    a("s_nop 15")
    for q in range(2):
        for r in range(16): a(f"v_exp_f32 v{S[q]+r}, v{S[q]+r}")
        a("s_nop 0")
        for j in range(8): a(f"v_cvt_pk_bf16_f32 v{P+j}, v{S[q]+2*j}, v{S[q]+2*j+1}")
        a("s_nop 1")
        a(M3(0, q)); a(M4(0, q))
    a(f"s_add_u32 s46, s46, {TKV}")
    a(f"s_cmp_lt_u32 s46, {KV_HEAD}")
    a("s_cbranch_scc1 L_fb_main")
    a("s_nop 15")
    a("s_branch L_attn_post")

def aux(a):
    a("L_aux:")
    a(f"s_setprio {OPT.get('paux', 0)}")
    a(f"s_sub_u32 s44, s{sWAVE}, 4")
    a("v_lshlrev_b32 v2, 4, v1")
    a("s_waitcnt vmcnt(0)")
    drained(a, 3)
    a("s_cmp_eq_u32 s44, 0")
    a("s_cbranch_scc1 L_kv")
    a("s_cmp_lg_u32 s44, 1")
    a("s_cbranch_scc1 L_aux_wait")
    a("s_lshl_b32 s40, s2, 7")
    a("L_cnt_spin:")
    a(f"s_sleep {OPT.get('asl', 1)}")
    a(f"ds_read_b32 v3, v23 offset:{W_CNT}")
    a("s_waitcnt lgkmcnt(0)")
    a("v_readfirstlane_b32 s41, v3")
    a("s_nop 0")
    a("s_cmp_lt_u32 s41, 8")
    a("s_cbranch_scc1 L_cnt_spin")
    stamp(a, 7)
    set_flag(a, 40, 8, also=FL1*128 if OPT.get('lf', 1) else None)
    a("L_aux_wait:")
    a(f"s_sleep {OPT.get('wsl', 16)}")
    a(f"ds_read_b32 v3, v23 offset:{W_PROG}")
    a("s_waitcnt lgkmcnt(0)")
    a("v_readfirstlane_b32 s41, v3")
    a("s_nop 0")
    a(f"s_cmp_lt_u32 s41, {OPT.get('f2w', 6)}")
    a("s_cbranch_scc1 L_aux_wait")
    if OPT.get('dyn', 0):
        a("s_cmp_lg_u32 s44, 1")
        a("s_cbranch_scc1 L_kv_done")
        make_srd(a, 28, pDBG, 0, 256)
        a("v_mov_b32 v3, 1")
        if OPT.get('dyn', 0) == 2:
            a(f"s_lshl_b32 s40, s{sXCD}, 2")
            a("s_add_u32 s40, s40, 128")
            a("v_mov_b32 v4, s40")
        else: a("v_mov_b32 v4, 128")
        a("s_mov_b64 exec, 1")
        a("buffer_atomic_add v3, v4, s[28:31], 0 offen sc0")
        a("s_waitcnt vmcnt(0)")
        a("v_add_u32 v3, 1, v3")
        a("ds_write_b32 v23, v3 offset:12")
        a("s_mov_b64 exec, -1")
    a("s_branch L_kv_done")
    a("L_kv:")
    a(f"s_mul_i32 s40, s26, {KV_HEAD}")
    make_srd(a, 28, pWS, "s40", KV_HEAD)
    a(f"v_mul_u32_u24 v6, {LPAIR}, v1")
    a("v_min_u32 v6, %d, v6" % (30*LPAIR))
    for r in range(4): a(f"v_mov_b32 v{8+r}, 0x3f803f80")
    a("ds_write_b128 v6, v[8:11] offset:5120")
    for r in range(4): a(f"v_mov_b32 v{12+r}, 0")
    a("ds_write_b128 v6, v[12:15] offset:5136")
    a("v_mov_b32 v16, 0x3f803f80")
    a("v_mov_b32 v17, 0x3f80")
    a("ds_write_b64 v6, v[16:17] offset:5152")
    a("s_lshr_b32 s41, s26, 3")
    a("s_lshl_b32 s41, s41, 1")
    a(f"s_and_b32 s43, s{sXCD}, 1")
    a("s_lshl_b32 s43, s43, 3")
    a("s_lshl_b32 s42, s27, 1")
    a("v_and_b32 v3, 15, v1")
    a("v_lshrrev_b32 v5, 4, v1")
    a("v_add_u32 v5, 1, v5")
    a("v_and_b32 v4, 7, v1")
    a("v_add_u32 v4, s43, v4")
    a("v_bfe_u32 v6, v1, 3, 1")
    a("v_add_u32 v6, 1, v6")
    a("v_cmp_gt_u32 vcc, 32, v1")
    a("v_and_b32 v7, 1, v1")
    a("v_add_u32 v7, s42, v7")
    a("v_cndmask_b32 v3, v4, v3, vcc")
    a("v_cndmask_b32 v5, v6, v5, vcc")
    a("v_cmp_gt_u32 vcc, 48, v1")
    a("v_add_u32 v6, -48, v1")
    a(f"v_mov_b32 v4, {FL1}")
    a("v_cndmask_b32 v3, v7, v3, vcc")
    a("v_cndmask_b32 v5, 0, v5, vcc")
    a("v_cmp_gt_u32 vcc, 2, v6")
    a("v_cmp_gt_u32 s[46:47], 32, v1")
    a("v_and_b32 v7, 7, v3")
    a("v_lshl_add_u32 v5, v5, 3, v7")
    a("s_or_b64 vcc, vcc, s[46:47]")
    a("v_lshrrev_b32 v3, 3, v3")
    a("v_add_u32 v3, s41, v3")
    a("v_cndmask_b32 v4, v4, 0, vcc")
    a("v_lshl_add_u32 v5, v5, 3, v3")
    a("v_add_u32 v5, v5, v4")
    a("v_lshlrev_b32 v5, 7, v5")
    def poll_once(first=False):
        if first and OPT.get('lf', 1):
            a("s_and_b32 s48, s40, 7")
            a("s_cmp_eq_u32 s48, 0")
            a("s_cselect_b32 exec_lo, -1, 0")
            a("s_cselect_b32 exec_hi, -1, 0xcffff")
        a(f"buffer_load_dwordx2 v[6:7], v5, {sr(sFL,4)}, 0 offen sc1")
        if first and OPT.get('lf', 1): a("s_mov_b64 exec, -1")
        a("s_waitcnt vmcnt(0)")
        a(f"v_cmp_eq_u64 vcc, {sr(sNON,2)}, v[6:7]")
        a("s_sub_u32 s40, s40, 1")
        a("s_cselect_b32 s47, 0xffff, 0")
        a("s_and_b32 s48, vcc_hi, 0xff")
        a("s_lshl_b32 s48, s48, s43")
        a("s_or_b32 s48, s48, vcc_lo")
        a("s_bfe_u32 s49, vcc_hi, 0x80008")
        a("s_lshl_b32 s49, s49, s43")
        a("s_lshr_b32 s45, vcc_lo, 16")
        a("s_or_b32 s45, s45, s49")
        a("s_and_b32 s45, s45, s48")
        a("s_or_b32 s45, s45, s47")
    def pub(off, sreg):
        a(f"v_mov_b32 v4, s{sreg}")
        a(f"ds_write_b32 v23, v4 offset:{off}")
    a(f"s_mov_b32 s40, {POLL_MAX - 1}")
    a("v_mov_b32 v6, 0")
    a("v_mov_b32 v7, 0")
    if OPT.get('padgo'):
        a("L_padgo:")
        a("s_memrealtime s[42:43]")
        a("s_waitcnt lgkmcnt(0)")
        a(f"s_sub_u32 s42, s42, s{sNON}")
        a(f"s_cmp_lt_u32 s42, {OPT['padgo']}")
        a("s_cbranch_scc1 L_padgo")
    a("L_kv_p1:")
    a(f"s_sleep {OPT.get('ksl', 1)}")
    poll_once(True)
    a("s_cmp_lg_u32 s47, 0")
    a("s_cbranch_scc1 L_kv_first")
    a("s_lshr_b32 s48, vcc_hi, 16")
    a("s_lshr_b32 s49, vcc_hi, 18")
    a("s_or_b32 s48, s48, s49")
    a("s_and_b32 s48, s48, 3")
    a("s_cmp_eq_u32 s48, 3")
    a("s_cselect_b32 s48, s45, 0")
    a("s_cmp_eq_u32 s48, 0")
    a("s_cbranch_scc1 L_kv_p1")
    a("L_kv_first:")
    a("s_ff1_i32_b32 s48, s45")
    a("s_add_u32 s49, s48, 1")
    pub(W_GO, 49)
    stamp(a, 7)
    a("s_lshl_b32 s46, 1, s48")
    a(f"s_mul_i32 s48, s48, {4*TKV}")
    a(f"s_add_u32 s48, s48, {2*TKV}")
    for i in range(5):
        a(f"s_mov_b32 m0, {i*1024}")
        a("s_nop 0")
        a("buffer_load_dwordx4 v2, s[28:31], s48 offen sc1 lds")
        if i < 4: a("s_add_u32 s48, s48, 1024")
    a("s_mov_b32 s50, 1")
    a(f"s_mov_b32 s51, {LPAIR}")
    a("L_kv_next:")
    a("s_andn2_b32 s48, s45, s46")
    a("s_cbranch_scc0 L_kv_poll")
    a("s_ff1_i32_b32 s48, s48")
    a("s_bitset1_b32 s46, s48")
    a(f"s_mul_i32 s48, s48, {4*TKV}")
    for i in range(10):
        a(f"s_add_u32 m0, s51, {i*1024 + (64 if i >= 5 else 0)}")
        if i: a("s_add_u32 s48, s48, 1024")
        else: a("s_nop 0")
        a("buffer_load_dwordx4 v2, s[28:31], s48 offen sc1 lds")
    a(f"s_add_u32 s51, s51, {2*LPAIR}")
    a("s_cmp_eq_u32 s50, 1")
    a("s_cbranch_scc0 L_kv_w20")
    a("s_waitcnt vmcnt(10)")
    pub(W_PROG, 50)
    a("s_mov_b32 s50, 2")
    a("s_branch L_kv_next")
    a("L_kv_w20:")
    a("s_waitcnt vmcnt(20)")
    a("s_sub_u32 s49, s50, 1")
    pub(W_PROG, 49)
    a("s_add_u32 s50, s50, 1")
    a("s_branch L_kv_next")
    a("L_kv_poll:")
    a("s_waitcnt vmcnt(0)")
    pub(W_PROG, 50)
    a("s_cmp_eq_u32 s50, 16")
    a("s_cbranch_scc1 L_kv_done")
    poll_once()
    a("s_branch L_kv_next")
    a("L_kv_done:")
    if OPT.get('f2s', 16):
        a("s_branch L_all0")
        a("L_all:")
        a(f"s_sleep {OPT.get('wsl', 16)}")
        a("L_all0:")
        a(f"ds_read_b32 v3, v23 offset:{W_PROG}")
        a("s_waitcnt lgkmcnt(0)")
        a("v_readfirstlane_b32 s41, v3")
        a("s_nop 0")
        a(f"s_cmp_lt_u32 s41, {OPT.get('f2s', 16)}")
        a("s_cbranch_scc1 L_all")
    stamp(a, 8)
    a("v_lshlrev_b32 v5, 7, v1")
    a(f"v_add_u32 v5, {192*128}, v5")
    poll(a, 5, 6, sleep=4)
    a(f"s_setprio {OPT.get('pf2', 3)}")
    if OPT.get('dyn', 0):
        a("s_branch L_item0")
        a("L_item:")
        a("s_sleep 8")
        a("L_item0:")
        a("ds_read_b32 v3, v23 offset:12")
        a("s_waitcnt lgkmcnt(0)")
        a("v_readfirstlane_b32 s40, v3")
        a("s_nop 0")
        a("s_cmp_eq_u32 s40, 0")
        a("s_cbranch_scc1 L_item")
        a("s_sub_u32 s40, s40, 1")
        if OPT.get('dyn', 0) == 2:
            a("s_cmp_ge_u32 s40, 24")
            a("s_cbranch_scc1 L_wo")
            a(f"s_mul_i32 s41, s{sXCD}, 24")
            a("s_add_u32 s40, s40, s41")
    else:
        a(f"s_sub_u32 s40, 31, s{sSLOT}")
        a("s_cmp_ge_u32 s40, 24")
        a("s_cbranch_scc1 L_wo")
        a(f"s_mul_i32 s41, s{sXCD}, 24")
        a("s_add_u32 s40, s40, s41")
    a("s_cmp_ge_u32 s40, %d" % (0 if OPT.get('nof2') else 187))
    a("s_cbranch_scc1 L_wo")
    a("s_mul_i32 s41, s40, 373")
    a("s_lshr_b32 s41, s41, 12")
    a("s_mul_i32 s42, s41, 11")
    a("s_sub_u32 s42, s40, s42")
    a("s_lshl_b32 s41, s41, 1")
    a("s_cmp_ge_u32 s41, 18")
    a("s_cselect_b32 s43, 17, 0")
    a("s_sub_u32 s41, s41, s43")
    a("s_and_b32 s43, s41, 1")
    a("s_lshl_b32 s45, s44, 4")
    a("s_min_u32 s46, s44, 1")
    a("s_add_u32 s46, s46, s45")
    a("s_mul_i32 s47, s41, 65")
    a("s_add_u32 s47, s47, s46")
    a("s_lshl_b32 s47, s47, 10")
    a(f"s_add_u32 s47, s47, {SEQ_OFF}")
    make_srd(a, 28, pWS, "s47", 17*1024)
    a("s_and_b32 s47, s44, 2")
    a("s_add_u32 s47, s47, s43")
    a("s_mul_i32 s48, s47, 11")
    a("s_add_u32 s48, s48, s42")
    a("s_mul_i32 s48, s48, 33")
    a("s_and_b32 s45, s45, 16")
    a("s_add_u32 s48, s48, s45")
    a("s_lshl_b32 s48, s48, 10")
    a(f"s_add_u32 s48, s48, {AB_OFF}")
    make_srd(a, 32, pWS, "s48", 33*1024)
    make_srd(a, 36, pOUT, 0, OUT_SIZE)
    FB = 64; AC = 8
    a("s_or_b32 s47, s44, s43")
    a("s_cmp_lg_u32 s47, 0")
    a("s_cbranch_scc1 L_f2_nox")
    a(f"s_mov_b32 s49, {16*1024}")
    a("buffer_load_dwordx4 v[24:27], v2, s[28:31], s49 offen sc1")
    a(f"s_mov_b32 s49, {32*1024}")
    a("buffer_load_dwordx4 v[28:31], v2, s[32:35], s49 offen sc1")
    a("L_f2_nox:")
    for k in range(16):
        b = FB + k * 8
        if k % 4 == 0: a(f"s_mov_b32 s49, {(k//4)*4096}")
        a(f"buffer_load_dwordx4 {vr(b,4)}, v2, s[28:31], s49 offen offset:{(k%4)*1024} sc1")
        a(f"buffer_load_dwordx4 {vr(b+4,4)}, v2, s[32:35], s49 offen offset:{(k%4)*1024} sc1")
    stamp(a, 9)
    a("v_and_b32 v5, 31, v1")
    a("v_lshrrev_b32 v4, 5, v1")
    a("s_lshr_b32 s48, s41, 1")
    a("s_lshl_b32 s48, s48, 6")
    a("s_add_u32 s48, s48, s43")
    a("s_lshl_b32 s49, s44, 4")
    a("s_add_u32 s48, s48, s49")
    a("v_lshl_add_u32 v47, v4, 3, s48")
    a("v_mul_u32_u24 v47, 2560, v47")
    a("s_cmp_ge_u32 s42, 6")
    a("s_cselect_b32 s48, 383, 0")
    a("s_lshl_b32 s49, s42, 6")
    a("s_sub_u32 s48, s49, s48")
    a("v_lshl_add_u32 v5, v5, 1, s48")
    a(f"v_mov_b32 v46, {HUGE}")
    a("v_lshlrev_b32 v6, 1, v5")
    a("v_add_u32 v40, 1280, v6")
    a("v_cmp_ge_u32 vcc, 320, v5")
    a("v_sub_u32 v41, 2560, v6")
    a("v_add_u32 v6, -1, v5")
    a("v_cndmask_b32 v40, v46, v40, vcc")
    a("v_cmp_gt_u32 vcc, 319, v6")
    a(f"v_add_u32 v33, {(2048-6)*2560}, v40")
    a("v_sub_u32 v33, v33, v47")
    a("v_cndmask_b32 v41, v46, v41, vcc")
    a("v_add_u32 v32, v47, v40")
    a("v_add_u32 v36, v47, v41")
    a(f"v_add_u32 v37, {(2048-6)*2560}, v41")
    a("v_sub_u32 v37, v37, v47")
    a(f"v_subrev_u32 v34, {1024*2560}, v33")
    a(f"v_subrev_u32 v38, {1024*2560}, v37")
    a(f"v_add_u32 v35, {1024*2560}, v32")
    a(f"v_add_u32 v39, {1024*2560}, v36")
    a(f"v_add_u32 v42, {3*5120}, v33")
    a(f"v_add_u32 v43, {3*5120}, v37")
    a(f"v_mov_b32 v3, {LDS_PROG}")
    a("s_lshl_b32 s48, s44, 10")
    a("v_add_u32 v6, s48, v2")
    a("s_add_u32 s49, s48, 12288")
    a("s_lshl_b32 s50, s44, 12")
    a("s_add_u32 s51, s50, 3072")
    a("s_cmp_eq_u32 s44, 3")
    a(f"s_cmov_b32 s49, {LDS_PROG + 1024}")
    a(f"s_cmov_b32 s51, {LDS_PROG + 1024}")
    a("v_add_u32 v7, s49, v2")
    a("v_add_u32 v44, s50, v2")
    a("v_add_u32 v45, s51, v2")
    a("s_lshl_b32 s49, s44, 2")
    a("v_add_u32 v5, s49, v3")
    a(f"s_setprio {OPT.get('pmf', 1)}")
    for k in range(16):
        a(f"s_waitcnt vmcnt({2*(15-k)})")
        b = FB + k * 8
        d = vr(AC, 16)
        a(f"v_mfma_f32_32x32x16_bf16 {d}, {vr(b,4)}, {vr(b+4,4)}, {'0' if k == 0 else d}")
    a("s_cmp_lg_u32 s47, 0")
    a("s_cbranch_scc1 L_f2_nox2")
    a(f"v_mfma_f32_32x32x16_bf16 {vr(AC,16)}, v[24:27], v[28:31], {vr(AC,16)}")
    a("L_f2_nox2:")
    a(f"s_setprio {OPT.get('pep', 3)}")
    def spin_min(lbl, off, sl):
        a(f"{lbl}:")
        a(f"ds_read_b128 v[48:51], v3 offset:{off}")
        a("s_waitcnt lgkmcnt(0)")
        a("v_min3_u32 v48, v48, v49, v50")
        a("v_min_u32 v48, v48, v51")
        a("s_nop 0")
        a("v_readfirstlane_b32 s48, v48")
        a("s_nop 0")
        a("s_cmp_lg_u32 s48, 0")
        a(f"s_cbranch_scc1 {lbl}_ok")
        a(f"s_sleep {sl}")
        a(f"s_branch {lbl}")
        a(f"{lbl}_ok:")
    spin_min("L_f2_dead", W_PASS, 16)
    a("s_nop 3")
    for j in range(3): a(f"ds_write_b128 v6, {vr(AC+4*j,4)} offset:{j*4096}")
    a(f"ds_write_b128 v7, {vr(AC+12,4)}")
    a(f"ds_write_b32 v5, v3 offset:{W_XCH}")
    spin_min("L_f2_wait", W_XCH, OPT.get('xsl', 8))
    for i in range(3): a(f"ds_read_b128 {vr(8+4*i,4)}, v44 offset:{i*1024}")
    a("ds_read_b128 v[20:23], v45")
    a("s_waitcnt lgkmcnt(0)")
    ng = "neg_lo:[0,1] neg_hi:[0,1]"
    for r in (0, 2):
        a(f"v_pk_add_f32 {vr(48+r,2)}, {vr(8+r,2)}, {vr(12+r,2)}")
        a(f"v_pk_add_f32 {vr(52+r,2)}, {vr(8+r,2)}, {vr(12+r,2)} {ng}")
        a(f"v_pk_add_f32 {vr(56+r,2)}, {vr(20+r,2)}, {vr(16+r,2)}")
        a(f"v_pk_add_f32 {vr(60+r,2)}, {vr(20+r,2)}, {vr(16+r,2)} {ng}")
    for r in (0, 2):
        a(f"v_pk_add_f32 {vr(8+r,2)}, {vr(48+r,2)}, {vr(56+r,2)} {ng}")
        a(f"v_pk_add_f32 {vr(12+r,2)}, {vr(48+r,2)}, {vr(56+r,2)}")
        a(f"v_pk_add_f32 {vr(16+r,2)}, {vr(52+r,2)}, {vr(60+r,2)} {ng}")
        a(f"v_pk_add_f32 {vr(20+r,2)}, {vr(52+r,2)}, {vr(60+r,2)}")
    for k in range(8): a(f"v_cvt_pk_bf16_f32 v{48+k}, v{8+2*k}, v{9+2*k}")
    a("s_cmp_eq_u32 s41, 16")
    a("s_cbranch_scc1 L_f2_nyq")
    for i in range(4):
        st = "buffer_store_short_d16_hi" if i & 1 else "buffer_store_short"
        m1, p1, m2, p2 = (48 + 2*k + (i >> 1) for k in range(4))
        a(f"s_mov_b32 s47, {i*5120}")
        a(f"s_mov_b32 s48, {(3-i)*5120}")
        for val, adr, so in [(m1, 32, "s47"), (p1, 36, "s47"), (p2, 35, "s47"), (m2, 39, "s47"), (m2, 34, "s48"), (p2, 38, "s48"),
                             (p1, 33 if i else 42, "s48" if i else "0"), (m1, 37 if i else 43, "s48" if i else "0")]:
            a(f"{st} v{val}, v{adr}, s[36:39], {so} offen{FLF()}")
    a("s_branch L_wo")
    a("L_f2_nyq:")
    a("s_cmp_lg_u32 s44, 0")
    a("s_cbranch_scc1 L_wo")
    a("s_mov_b32 exec_hi, 0")
    for val, adr in [(48, 32), (50, 36), (50, 42), (48, 43)]:
        a(f"buffer_store_short v{val}, v{adr}, s[36:39], 0 offen{FLF()}")
    a("s_mov_b64 exec, -1")
    a("L_wo:")
    a(f"s_setprio {OPT.get('pwo', 3)}")
    stamp(a, 10)
    a("s_and_b32 s40, s26, 3")
    a("s_lshl_b32 s40, s40, 2")
    a("s_add_u32 s40, s40, s44")
    a(f"s_mul_i32 s40, s40, {50*1024}")
    a(f"s_add_u32 s40, s40, {WO_OFF}")
    make_srd(a, 28, pWS, "s40", 50*1024)
    a("s_waitcnt vmcnt(0)")
    for k in range(OPT.get('nwo', 50)):
        if k % 4 == 0: a(f"s_mov_b32 s49, {(k//4)*4096}")
        a(f"buffer_load_dwordx4 {vr(56+4*k,4)}, v2, s[28:31], s49 offen offset:{(k%4)*1024} sc1")

def tail(a):
    PADS = OPT.get('pads', 1)
    padn = [0]
    def pad(chain, last=None):
        if not PADS: return
        a(f"L_pad_{chain}_{padn[0]}:")
        padn[0] += 1
        a(f"s_cbranch_vccnz {last or f'L_pad_{chain}_{padn[0]}'}")
    a("L_B_done:")
    a("s_lshr_b32 s40, s26, 2")
    a("s_lshl_b32 s41, s27, 3")
    a("s_add_u32 s41, s41, s40")
    a(f"s_mul_i32 s42, s41, {32*1280}")
    a(f"s_add_u32 s42, s42, {O_OFF}")
    make_srd(a, 28, pWS, "s42", 32*1280)
    a("v_and_b32 v4, 7, v1")
    a("v_bfe_u32 v5, v1, 3, 2")
    a("v_lshlrev_b32 v5, 1, v5")
    a("v_lshl_add_u32 v4, v4, 3, v5")
    a("s_and_b32 s42, s27, 3")
    a("s_lshl_b32 s42, s42, 6")
    a("s_lshr_b32 s43, s27, 2")
    a("s_add_u32 s42, s42, s43")
    a("s_lshl_b32 s42, s42, 2")
    a("s_lshr_b32 s40, s40, 1")
    a("s_add_u32 s42, s42, s40")
    a(f"s_add_u32 s42, s42, {FB}")
    a("v_lshl_add_u32 v4, v4, 2, s42")
    a("v_lshlrev_b32 v4, 7, v4")
    a("v_mov_b32 v8, v4")
    if OPT.get('ppre', 1): a(f"buffer_load_dwordx2 v[10:11], v8, {sr(sFL,4)}, 0 offen sc1")
    a("v_and_b32 v3, 31, v1")
    a("v_lshrrev_b32 v4, 5, v1")
    a("v_mul_u32_u24 v5, 2560, v4")
    a("v_lshl_add_u32 v5, v3, 3, v5")
    a("v_add_u32 v5, 1024, v5")
    make_srd(a, 32, pOUT, 0, OUT_SIZE)
    a("s_lshl_b32 s41, s41, 5")
    a("v_add_u32 v6, s41, v3")
    a("v_mul_u32_u24 v6, 2560, v6")
    a("s_and_b32 s42, s26, 3")
    a("s_mul_i32 s42, s42, 320")
    a("s_mul_i32 s43, s44, 12800")
    a("v_add_u32 v7, s43, v2")
    a("s_lshl_b32 s43, s44, 12")
    a("s_add_u32 s43, s43, 40960")
    a("v_add_u32 v3, s43, v2")
    a("s_lshl_b32 s43, s44, 10")
    a("s_add_u32 s43, s43, 40960")
    a("v_add_u32 v1, s43, v2")
    a("s_lshl_b32 s45, s44, 4")
    a("s_add_u32 s45, s45, s42")
    a("v_lshl_add_u32 v0, v4, 3, v6")
    a("s_lshl_b32 s43, s44, 6")
    a("s_add_u32 s43, s43, s42")
    a("v_lshl_add_u32 v6, v4, 4, v6")
    if PADS:
        a("s_mov_b64 vcc, -1")
        a("s_nop 0")
        a("s_branch L_pad_a_0")
        a("L_pad_ret:")
        a("s_setprio 3")
    a("s_waitcnt vmcnt(0)")
    stamp(a, 12)
    a("s_barrier")
    stamp(a, 1)
    if not OPT.get('apoll', 0):
        a("s_cmp_lg_u32 s44, 0")
        a("s_cbranch_scc1 L_onep")
        if OPT.get('pp', 1) > 1: poll_piped(a, 8, 10, OPT['pp'])
        else: poll(a, 8, 10, sleep=OPT.get('sl', 0), shrink=OPT.get('shr', 1))
        a("L_onep:")
    a("s_barrier")
    stamp(a, 13)
    if PADS: a("s_mov_b64 vcc, 0")
    a("s_lshl_b32 s40, s44, 10")
    for j in range(10):
        if j % 3 == 0: pad('a')
        a("s_mov_b32 m0, s40")
        a("s_nop 0")
        a("buffer_load_dwordx4 v2, s[28:31], s40 offen sc1 lds")
        if j < 9: a("s_add_u32 s40, s40, 4096")
    a("s_waitcnt vmcnt(%d)" % (6 if OPT.get('prog', 1) else 0))
    a("s_barrier")
    stamp(a, 14)
    if lib.STAMP: a("s_waitcnt lgkmcnt(0)")
    A5, AM, OB = 8, 24, 40
    def rd(buf, kap, base=None):
        b = OB + 4*buf
        if base is not None: return f"ds_read_b128 {vr(b,4)}, v{base} offset:{kap*1280}"
        if kap < 32: return f"ds_read_b128 {vr(b,4)}, v2 offset:{kap*1280}"
        o = (kap - 32) * 5120 // 8
        return None
    def rd_main(buf, kap):
        b = OB + 4*buf
        if kap < 32: return [f"ds_read_b128 {vr(b,4)}, v2 offset:{kap*1280}"]
        g = kap - 32
        return [f"ds_read_b64 {vr(b,2)}, v5 offset:{g*5120}", f"ds_read_b64 {vr(b+2,2)}, v5 offset:{g*5120+1280}"]
    PG = 10 if OPT.get('prog', 1) else 0
    def stream(steps, chain):
        padn[0] = 0
        n = len(steps); cnt = [0]*n
        PF = 3
        for k in range(PF):
            r = steps[k][0](k % 4); cnt[k] = len(r)
            for x in r: a(x)
        for k in range(n):
            out = sum(cnt[k+1:min(n, k+PF)])
            a(f"s_waitcnt lgkmcnt({out})")
            d = vr(steps[k][1], 16)
            a(f"v_mfma_f32_32x32x16_bf16 {d}, {vr(steps[k][2],4)}, {vr(OB+4*(k%4),4)}, {'0' if steps[k][3] else d}")
            if k % 2 == 0 or k in (PG + 13, 32, 38, 40): pad(chain, "L_pad_z_0" if k == n - 2 else None)
            if PG and k + PF == PG:
                a("s_waitcnt vmcnt(0)")
                a("s_barrier")
            if k + PF < n:
                r = steps[k+PF][0]((k+PF) % 4); cnt[k+PF] = len(r)
                for x in r: a(x)
            if k == PG + 13:
                for j in range(4): a(f"ds_write_b128 v3, {vr(A5+4*j,4)} offset:{j*1024}")
                cnt[k+PF] += 4
            if k == 32:
                a("s_barrier")
                for i in range(4): a(f"ds_read_b128 {vr(A5+4*i,4)}, v1 offset:{i*4096}")
                cnt[k+PF] += 4
            if k == 38:
                for i in range(1, 4):
                    a(f"v_pk_add_f32 {vr(A5,2)}, {vr(A5,2)}, {vr(A5+4*i,2)}")
                    a(f"v_pk_add_f32 {vr(A5+2,2)}, {vr(A5+2,2)}, {vr(A5+4*i+2,2)}")
            if k == 40:
                a(f"v_cvt_pk_bf16_f32 v{A5}, v{A5}, v{A5+1}")
                a(f"v_cvt_pk_bf16_f32 v{A5+1}, v{A5+2}, v{A5+3}")
                a(f"buffer_store_dwordx2 {vr(A5,2)}, v0, s[32:35], s45 offen offset:256{FLP()}")
    main = [((lambda kap: lambda buf: rd_main(buf, kap))(kap), AM, 56 + 4*(10+kap), kap == 0) for kap in range(40)]
    if PADS:
        a(f"L_pad_a_{padn[0]}:")
        a("s_cmp_eq_u32 s44, 3")
        a("s_cbranch_vccz L_nopad")
        a("s_cbranch_scc1 L_pad_c_0")
        a("s_branch L_pad_b_0")
        a("L_nopad:")
    a("s_cmp_eq_u32 s44, 3")
    a("s_cbranch_scc1 L_tail3")
    q5 = [((lambda i: lambda buf: [f"ds_read_b128 {vr(OB+4*buf,4)}, v7 offset:{i*1280}"])(i), A5, 56 + 4*i, i == 0) for i in range(10)]
    stream(main[:PG] + q5 + main[PG:], 'b')
    a("s_branch L_tail_join")
    a("L_tail3:")
    q5 = [((lambda i: lambda buf: rd_main(buf, 30 + i))(i), A5, 56 + 4*i, i == 0) for i in range(10)]
    stream(main[:PG] + q5 + main[PG:], 'c')
    a("L_tail_join:")
    stamp(a, 11)
    padn[0] = 0
    pad('z')
    a("s_nop 11")
    for r in range(8): a(f"v_cvt_pk_bf16_f32 v{AM+r}, v{AM+2*r}, v{AM+2*r+1}")
    pad('z', "L_pad_ret")
    a("s_nop 1")
    for h2 in range(2):
        a(f"v_permlane32_swap_b32 v{AM+4*h2}, v{AM+4*h2+2}")
        a(f"v_permlane32_swap_b32 v{AM+4*h2+1}, v{AM+4*h2+3}")
    for h2 in range(2):
        a(f"buffer_store_dwordx4 {vr(AM+4*h2,4)}, v6, s[32:35], s43 offen offset:{32*h2}{FLP()}")
    a("L_end:")
    if OPT.get('pad'):
        a("L_pad:")
        a("s_memrealtime s[40:41]")
        a("s_waitcnt lgkmcnt(0)")
        a(f"s_sub_u32 s40, s40, s{sNON}")
        a(f"s_cmp_lt_u32 s40, {OPT['pad']}")
        a("s_cbranch_scc1 L_pad")
    if lib.STAMP:
        a("s_waitcnt vmcnt(0)")
        stamp(a, 15); stamp_real(a, 17)
        stamp_flush(a, 18, pWS, sWAVE, 0)
    a("L_exit:")
    a("s_endpgm")

KNAME = "concat_heads__mha_block__spectral_fnet__prompt_kernel"
def kernel(a):
    kernel_header(a, KNAME)
    if OPT.get('early'): a("s_memrealtime s[98:99]")
    a("s_cmp_ge_u32 s2, 256")
    a("s_cbranch_scc1 L_exit")
    if lib.STAMP:
        for i in range(18): a(f"s_mov_b32 s{60+2*i}, 0")
    stamp(a, 0); stamp_real(a, 16)
    a("s_load_dwordx8 s[4:11], s[0:1], 0")
    a("s_load_dwordx4 s[12:15], s[0:1], 64")
    a("s_load_dwordx2 s[16:17], s[0:1], 80")
    a("v_lshrrev_b32 v1, 6, v0")
    a(f"s_and_b32 s{sXCD}, s2, 7")
    a(f"v_readfirstlane_b32 s{sWAVE}, v1")
    a(f"s_lshr_b32 s{sSLOT}, s2, 3")
    a("v_and_b32 v1, 63, v0")
    a(f"s_and_b32 s26, s{sXCD}, 1")
    a("s_lshl_b32 s26, s26, 3")
    a(f"s_and_b32 s27, s{sSLOT}, 7")
    a("s_add_u32 s26, s26, s27")
    a(f"s_lshr_b32 s27, s{sSLOT}, 3")
    a("s_lshl_b32 s27, s27, 2")
    a(f"s_lshr_b32 s40, s{sXCD}, 1")
    a("s_add_u32 s27, s27, s40")
    a(f"s_cmp_ge_u32 s{sSLOT}, 24")
    a("s_cselect_b32 s40, 0, s%d" % sWAVE)
    a("s_cmp_lt_u32 s40, 4")
    a("s_cbranch_scc1 L_other")
    gemm_loader(a)
    a("L_other:")
    a("s_waitcnt lgkmcnt(0)")
    make_srd(a, sFL, pWS, FL_OFF, FL_SIZE)
    a(f"s_cmp_lg_u32 s{sWAVE}, 0")
    a("s_cbranch_scc1 L_no_init")
    a(f"v_mov_b32 v2, {LDS_PROG}")
    a("v_mov_b32 v4, 0")
    a("v_mov_b32 v5, 0")
    for i in range(8): a(f"ds_write_b64 v2, v[4:5] offset:{8*i}")
    a("s_cmp_lg_u32 s2, 0")
    a("s_cbranch_scc1 L_no_nonce")
    if OPT.get('early'): a("s_mov_b64 s[40:41], s[98:99]")
    else: a("s_memrealtime s[40:41]")
    make_srd(a, 28, pDBG, 0, 256)
    a("s_waitcnt lgkmcnt(0)")
    a("s_or_b32 s40, s40, 1")
    a("v_mov_b32 v2, s40")
    a("v_mov_b32 v3, s41")
    a("buffer_store_dwordx2 v[2:3], v4, s[28:31], 0 offen sc1")
    a("L_no_nonce:")
    a("s_waitcnt lgkmcnt(0)")
    a("L_no_init:")
    a(f"s_cmp_ge_u32 s{sSLOT}, 24")
    a("s_cbranch_scc1 L_prep")
    if OPT.get('touch', 1):
        a(f"s_cmp_lg_u32 s{sWAVE}, 1")
        a("s_cbranch_scc1 L_no_code")
        a("s_getpc_b64 s[40:41]")
        a("L_pc:")
        a(f"s_sub_u32 s40, s40, L_pc-{KNAME}")
        a("s_subb_u32 s41, s41, 0")
        a(f"s_mul_i32 s42, s{sSLOT}, 1792")
        a("v_lshlrev_b32 v2, 4, v1")
        a("v_add_u32 v2, s42, v2")
        a(f"v_min_u32 v2, L_exit-{KNAME}-1024-16, v2")
        for i in range(2): a(f"global_load_dwordx4 v[250:253], v2, s[40:41] offset:{i*1024}")
        a("L_no_code:")
    gemm_compute(a)
    prep(a)
    a_done(a)
    attention(a)
    aux(a)
    tail(a)
    return kernel_desc(KNAME, 256, 102)

HEADER = open('concat_heads__mha_block__spectral_fnet__prompt.s.ref').read().split("; Override")[0]
DESC = """
One persistent launch: 256 workgroups (one per CU) x 8 waves. Hand-written via a generator script.
Phase A  slots 0-23 of each group of 32: QKV projection, 128x160 tile, waves 0-3 MFMA (16x16x32), waves 4-7 LDS-DMA loaders;
         outputs are stored write-through in MFMA fragment order.
         slots 24-31: FNet stage 1. Rows are folded with the DFT symmetries, the hidden-dimension cos/sin fragments come from a
         Chebyshev recurrence, the sequence-DFT fragments are generated (the DFT matrices are constants), wo is re-laid out.
Phase B  waves 0-3: attention for one head and 64 queries each, K/V resident in LDS, streamed in as producers finish.
         exp2(S - m) with m = max over the first key tile + 100 (folded into spare k-slots of the MFMA); row sums from a ones row.
         After the pass every row is checked (overflow, non-finite or vanishing accumulators); a failing wave recomputes with the true row max.
         waves 4-7: K/V streaming, FNet stage 2 (four symmetric output quadrants per tile), wo fragments into registers.
Phase C  waves 4-7: output projection of 32 rows x 160 columns.
Hand-offs between workgroups: write-through stores, drained, then a flag line holding a per-launch tag (published through d_debug).
"""
def main(out):
    a = Asm()
    a('.amdgcn_target "amdgcn-amd-amdhsa--gfx950"')
    a(".text")
    for l in DESC.strip("\n").split("\n"): a.lines.append("; " + l)
    d = kernel(a)
    txt = HEADER + "; @launch grid=(256,1,1) block=(512,1,1) lds=163840\n" + a.text() + '.section .rodata,"a"\n.p2align 6\n' + d
    open(out, "w").write(txt)

if __name__ == "__main__":
    for x in sys.argv[2:]:
        if x == "stamp": lib.STAMP = True
        elif x == "rt": lib.STAMP = True; lib.STAMPRT = True
        elif x == "gst": lib.STAMP = True; lib.STAMPSET = 1; lib.STAMPRT = True
        elif x == "cst": lib.STAMP = True; lib.STAMPSET = 2
        else:
            k, _, v = x.partition("=")
            OPT[k] = int(v) if v else 1
    main(sys.argv[1] if len(sys.argv) > 1 else "concat_heads__mha_block__spectral_fnet__prompt.s")
```

```python
import sys, struct
from lib import *
import lib

TKV = 2560; KV_HEAD = 64*TKV; KV_OFF = 0; KV_SIZE = 32*KV_HEAD
TQ = 1280; Q_HEAD = 64*TQ; Q_OFF = KV_SIZE; Q_SIZE = 32*Q_HEAD
O_OFF = Q_OFF + Q_SIZE; O_SIZE = 64*32*1280
SEQ_OFF = O_OFF + O_SIZE; SEQ_SIZE = 17*65*1024
AB_OFF = SEQ_OFF + SEQ_SIZE; AB_SIZE = 4*11*33*1024
WO_OFF = AB_OFF + AB_SIZE; WO_SIZE = 16*50*1024
FL_OFF = 16*1024*1024; FL_SIZE = 1536*128
FA, FB, FL1 = 0, 256, 1280
X_SIZE = 2048*1280; OUT_SIZE = 2048*2560
HUGE = 0x40000000
QSCALE = (20 ** -0.5) * 1.4426950408889634
NDMA = 155; LPAIR = 5184
LDS_PROG = 31*LPAIR
def lds_tile(t): return ((t-2)>>1)*LPAIR + ((t-2)&1)*TKV
def need(tile): return ((tile-1)*TKV + 4095)//4096
NEED = [need(4), need(7), need(15), need(23), 39]
POLL_MAX = 200000
def f32bits(x): return struct.unpack('<I', struct.pack('<f', x))[0]
OPT = {}
FLS = ['', ' sc1', ' nt', ' sc0 sc1', ' sc1 nt']
def FLP(): return FLS[OPT.get('flp', 0)]
def FLF(): return FLS[OPT.get('flf', 1)]

sWAVE = 3
pX, pW, pWO, pBX, pOUT, pDBG, pWS = 4, 6, 8, 10, 12, 14, 16
sNON = 18
sFL = 20
sXCD, sSLOT = 24, 25
STG = 36864
NS = 4

def poll(a, vaddr, vtmp, cnt=40, sleep=1, shrink=False):
    l = a.label("L_poll"); d = a.label("L_pollok")
    a(f"s_mov_b32 s{cnt}, {POLL_MAX}")
    a(f"{l}:")
    a(f"buffer_load_dwordx2 {vr(vtmp,2)}, v{vaddr}, {sr(sFL,4)}, 0 offen sc1")
    a("s_waitcnt vmcnt(0)")
    a(f"v_cmp_ne_u64 vcc, {sr(sNON,2)}, {vr(vtmp,2)}")
    a(f"s_sub_u32 s{cnt}, s{cnt}, 1")
    a(f"s_cbranch_vccz {d}")
    a(f"s_cmp_eq_u32 s{cnt}, 0")
    a(f"s_cbranch_scc1 {d}")
    if sleep: a(f"s_sleep {sleep}")
    if shrink: a("s_mov_b64 exec, vcc")
    a(f"s_branch {l}")
    a(f"{d}:")
    if shrink: a("s_mov_b64 exec, -1")

def poll_piped(a, vaddr, vtmp, depth, cnt=40):
    l = a.label("L_ppoll"); d = a.label("L_ppollok")
    a(f"s_mov_b32 s{cnt}, {POLL_MAX}")
    for i in range(depth - 1):
        a(f"buffer_load_dwordx2 {vr(vtmp+2*i,2)}, v{vaddr}, {sr(sFL,4)}, 0 offen sc1")
        a(f"s_sleep {OPT.get('pgap', 4)}")
    a(f"{l}:")
    for i in range(depth):
        a(f"buffer_load_dwordx2 {vr(vtmp+2*((i+depth-1)%depth),2)}, v{vaddr}, {sr(sFL,4)}, 0 offen sc1")
        a(f"s_waitcnt vmcnt({depth-1})")
        a(f"v_cmp_ne_u64 vcc, {sr(sNON,2)}, {vr(vtmp+2*i,2)}")
        a(f"s_sub_u32 s{cnt}, s{cnt}, 1")
        a(f"s_cbranch_vccz {d}")
        a(f"s_cbranch_scc1 {d}")
        a("s_mov_b64 exec, vcc")
    a(f"s_branch {l}")
    a(f"{d}:")
    a("s_mov_b64 exec, -1")

def prod_flags(a, vd, vt):
    a("s_lshr_b32 s40, s26, 3")
    a(f"v_and_b32 v{vd}, 7, v1")
    a(f"v_bfe_u32 v{vt}, v1, 3, 2")
    a(f"v_lshlrev_b32 v{vt}, 1, v{vt}")
    a(f"v_lshl_add_u32 v{vd}, v{vd}, 3, v{vt}")
    a("s_and_b32 s42, s27, 3")
    a("s_lshl_b32 s42, s42, 6")
    a("s_lshr_b32 s43, s27, 2")
    a("s_add_u32 s42, s42, s43")
    a("s_lshl_b32 s42, s42, 2")
    a("s_add_u32 s42, s42, s40")
    a(f"s_add_u32 s42, s42, {FB}")
    a(f"v_lshl_add_u32 v{vd}, v{vd}, 2, s42")
    a(f"v_lshlrev_b32 v{vd}, 7, v{vd}")

def get_nonce(a, vt, srd=28, cnt=40):
    make_srd(a, srd, pDBG, 0, 256)
    l = a.label("L_non"); d = a.label("L_nonok")
    a(f"v_mov_b32 v{vt}, 0")
    a(f"s_mov_b32 s{cnt}, {POLL_MAX}")
    a(f"{l}:")
    a(f"buffer_load_dwordx2 {vr(vt+2,2)}, v{vt}, {sr(srd,4)}, 0 offen sc1")
    a("s_waitcnt vmcnt(0)")
    a(f"v_readfirstlane_b32 s{sNON}, v{vt+2}")
    a(f"v_readfirstlane_b32 s{sNON+1}, v{vt+3}")
    a(f"s_sub_u32 s{cnt}, s{cnt}, 1")
    a(f"s_cmp_lg_u32 s{sNON}, 0")
    a(f"s_cbranch_scc1 {d}")
    a(f"s_cmp_eq_u32 s{cnt}, 0")
    a(f"s_cbranch_scc1 {d}")
    a("s_sleep 2")
    a(f"s_branch {l}")
    a(f"{d}:")

def set_flag(a, sidx, vt, also=None):
    for i in range(4): a(f"v_mov_b32 v{vt+i}, s{sNON+(i&1)}")
    a(f"v_lshlrev_b32 v{vt+4}, 4, v1")
    a("s_mov_b64 exec, 0xff")
    if also is not None:
        a(f"s_add_u32 s41, s{sidx}, {also}")
        a(f"buffer_store_dwordx4 {vr(vt,4)}, v{vt+4}, {sr(sFL,4)}, s41 offen")
    a(f"buffer_store_dwordx4 {vr(vt,4)}, v{vt+4}, {sr(sFL,4)}, s{sidx} offen sc1")
    a("s_mov_b64 exec, -1")

def gemm_loader(a):
    sA, sB = 28, 32
    a("L_loader:")
    a(f"s_sub_u32 s44, s{sWAVE}, 4")
    a("v_lshrrev_b32 v2, 3, v1")
    a("s_lshl_b32 s40, s44, 3")
    a("v_add_u32 v2, s40, v2")
    a("v_mul_u32_u24 v2, 1280, v2")
    a("v_lshrrev_b32 v3, 4, v1")
    a("s_and_b32 s40, s44, 1")
    a("s_lshl_b32 s40, s40, 2")
    a("v_or_b32 v4, s40, v3")
    a("v_and_b32 v5, 7, v1")
    a("v_xor_b32 v4, v4, v5")
    a("v_lshl_add_u32 v10, v4, 4, v2")
    a("s_lshl_b32 s45, s44, 10")
    a(f"s_lshr_b32 s40, s{sSLOT}, 3")
    a(f"s_add_u32 s40, s40, s{sSLOT}")
    a("s_and_b32 s40, s40, 1")
    a(f"s_mul_i32 s40, s40, {OPT.get('pstep', 6)}")
    a(f"s_mul_i32 s41, s{sXCD}, {OPT.get('rc', 3)}")
    a("s_add_u32 s40, s40, s41")
    a("s_mul_i32 s41, s40, 6554")
    a("s_lshr_b32 s41, s41, 16")
    a("s_mul_i32 s41, s41, 10")
    a("s_sub_u32 s47, s40, s41")
    a("s_lshl_b32 s40, s44, 4")
    a("v_lshrrev_b32 v2, 2, v1")
    a("v_add_u32 v2, s40, v2")
    a("v_mul_u32_u24 v2, 3840, v2")
    a("v_and_b32 v3, 3, v1")
    a("v_lshrrev_b32 v4, 5, v1")
    a("v_lshlrev_b32 v4, 1, v4")
    a("v_xor_b32 v3, v3, v4")
    a("v_lshl_add_u32 v11, v3, 4, v2")
    a("s_mul_i32 s46, s44, 5120")
    a("s_mul_i32 s50, s26, 163840")
    a("s_mul_i32 s51, s27, 320")
    a("s_sub_u32 s52, 2457600, s51")
    a("s_waitcnt lgkmcnt(0)")
    make_srd(a, sA, pX, "s50", 163840)
    def issue_x(c):
        sl = c % NS
        a("s_lshl_b32 s48, s47, 7")
        for j in range(4):
            a(f"s_add_u32 m0, s45, {sl*STG + j*4096}")
            if j: a(f"s_add_u32 s48, s48, 40960")
            else: a("s_mul_i32 s49, s47, 245760")
            a(f"buffer_load_dwordx4 v10, {sr(sA,4)}, s48 offen lds")
    def issue_w(c):
        sl = c % NS
        for i in range(5):
            a(f"s_add_u32 m0, s46, {sl*STG + 16384 + i*1024 - i*64}")
            if i == 0:
                a("s_add_u32 s47, s47, 1")
            elif i == 1:
                a("s_cmp_eq_u32 s47, 10")
                a("s_cmov_b32 s47, 0")
            else: a("s_nop 0")
            a(f"buffer_load_dwordx4 v11, {sr(sB,4)}, s49 offen offset:{i*64} lds")
    def issue(c): issue_x(c); issue_w(c)
    stamp(a, 3)
    issue_x(0)
    make_srd(a, sB, pW, "s51", "s52")
    issue_w(0)
    issued = 1
    pre = OPT.get('pre', 2)
    for c in range(1, pre): issue(c); issued += 1
    for c in range(10):
        a(f"s_waitcnt vmcnt({9*(issued-c-1)})")
        if c in (0, 9): stamp(a, {0: 2, 9: 5}[c])
        stamp(a, c + 1, 1)
        a("s_barrier")
        if c in (1, 3, 5, 7): stamp(a, 11 + c // 2, 1)
        while issued < min(10, c + 1 + (OPT.get('dep', 2) if c < OPT.get('depsw', 10) else 3)): issue(issued); issued += 1
    make_srd(a, sFL, pWS, FL_OFF, FL_SIZE)
    get_nonce(a, 2)
    a("s_branch L_A_done")

AX, AWA, EA = 8, 10, 16
FR = 24
ACC = 96
def gemm_loop(a, isv, epi):
    XB = [FR, FR + 36, 176, 212]
    def rdx(kk, m, b): sl, st = divmod(kk, 2); return f"ds_read_b128 {vr(b+4*m,4)}, v{AX+st} offset:{sl*STG + m*2048}"
    def rdw(kk, T, b): sl, st = divmod(kk, 2); return [f"ds_read_b64_tr_b16 {vr(b+16+4*T+2*t,2)}, v{AWA+T} offset:{sl*STG + st*10240 + t*256}" for t in range(2)]
    def reads(kk, b):
        r = rdw(kk, 0, b) + [rdx(kk, m, b) for m in range(4)]
        for T in range(1, 5): r += rdw(kk, T, b)
        return r
    def mfma(b, T, m):
        d = vr(ACC + 16*T + 4*m, 4); w = vr(b + 16 + 4*T, 4); x = vr(b + 4*m, 4)
        return f"v_mfma_f32_16x16x32_bf16 {d}, {x}, {w}, {d}" if isv else f"v_mfma_f32_16x16x32_bf16 {d}, {w}, {x}, {d}"
    for r in range(80): a(f"v_mov_b32 v{ACC+r}, 0")
    a(f"s_mov_b32 s40, {2*STG}")
    a("s_mov_b32 s41, 4")
    stamp(a, 13)
    a("s_barrier")
    stamp(a, 2)
    for r in reads(0, XB[0]): a(r)
    lp = a.label("L_gemm"); last = a.label("L_gemm_last")
    a(".p2align 3")
    a(f"{lp}:")
    for kk in range(4):
        a("s_waitcnt lgkmcnt(0)")
        ms = [mfma(XB[kk & 1], T, m) for T in range(5) for m in range(4)]
        a(ms[0])
        if kk == 1: a("s_barrier")
        if kk == 3:
            for i in range(2): a(f"v_add_u32 v{AX+i}, s40, v{AX+i}")
            for i in range(5): a(f"v_add_u32 v{AWA+i}, s40, v{AWA+i}")
            a("s_sub_u32 s40, 0, s40")
            a("s_sub_u32 s41, s41, 1")
            a("s_barrier")
            a("s_cmp_eq_u32 s41, 0")
            a(f"s_cbranch_scc1 {last}")
        nx = reads((kk + 1) & 3, XB[(kk + 1) & 1])
        for i in range(1, 20):
            if i - 1 < len(nx): a(nx[i-1])
            a(ms[i])
    a(f"s_branch {lp}")
    a(f"{last}:")
    bufs = [XB[0], XB[2], XB[3], XB[1]]
    def order(k0):
        r = []
        for k in (k0, k0 + 1): r += rdw(k, 0, bufs[k]) + [rdx(k, m, bufs[k]) for m in range(4)]
        return r
    first = order(0)
    rest01 = [x for T in range(1, 5) for k in (0, 1) for x in rdw(k, T, bufs[k])]
    second = order(2)
    rest23 = [[x for k in (2, 3) for x in rdw(k, T, bufs[k])] for T in range(5)]
    ms = [mfma(XB[1], T, m) for T in range(5) for m in range(4)]
    q = first + rest01
    pos = 0
    for i in range(1, 20):
        for _ in range(2 if i < 10 else 1):
            if pos < len(q): a(q[pos]); pos += 1
        a(ms[i])
    a("s_barrier")
    q = second + rest23[1] + rest23[2] + rest23[3] + rest23[4]
    a("s_waitcnt lgkmcnt(0)")
    pos = 0
    for T in range(5):
        e = epi(T - 1) if T >= 1 else []
        per = -(-len(e) // 12)
        for i in range(16):
            if i == 8 and T < 2: a(f"s_waitcnt lgkmcnt({min(15, pos - (12 + 4*T))})" if T == 0 else "s_waitcnt lgkmcnt(0)")
            a(mfma(bufs[i >> 2], T, i & 3))
            for _ in range(2):
                if pos < len(q): a(q[pos]); pos += 1
            if i >= 4:
                for x in e[per*(i-4):per*(i-3)]: a(x)
    stamp(a, 5)
    a("s_nop 7")
    for x in epi(4): a(x)

def gemm_compute(a):
    a("L_compute:")
    a("v_and_b32 v2, 15, v1")
    a("v_lshrrev_b32 v3, 4, v1")
    a(f"s_and_b32 s42, s{sWAVE}, 1")
    a(f"s_lshr_b32 s43, s{sWAVE}, 1")
    a("s_lshl_b32 s40, s42, 6")
    a("v_add_u32 v4, s40, v2")
    a("v_lshlrev_b32 v4, 7, v4")
    a("v_lshrrev_b32 v5, 1, v2")
    a("v_xor_b32 v5, v5, v3")
    a(f"v_lshl_add_u32 v{AX}, v5, 4, v4")
    a(f"v_xor_b32 v{AX+1}, 64, v{AX}")
    a("v_lshrrev_b32 v4, 5, v1")
    a("v_mul_u32_u24 v4, 5120, v4")
    a("v_and_b32 v5, 1, v3")
    a("v_lshrrev_b32 v6, 2, v2")
    a("v_lshl_add_u32 v6, v5, 3, v6")
    a("v_lshl_add_u32 v4, v6, 6, v4")
    a("v_add_u32 v4, 16384, v4")
    a("v_lshlrev_b32 v5, 2, v5")
    a("v_and_b32 v6, 3, v1")
    a("s_mul_i32 s44, s43, 20")
    def waddr(T, g):
        a(f"v_and_b32 v15, 7, v{g}")
        a("v_xor_b32 v15, v15, v5")
        a("v_lshl_add_u32 v15, v15, 3, v4")
        a(f"v_lshrrev_b32 v{g}, 3, v{g}")
        a(f"v_lshl_add_u32 v{AWA+T}, v{g}, 10, v15")
    a("s_lshl_b32 s45, s26, 2")
    a("s_lshl_b32 s42, s42, 1")
    a("s_add_u32 s42, s42, s45")
    a("s_and_b32 s45, s27, 3")
    a("s_lshl_b32 s45, s45, 3")
    a("s_lshl_b32 s43, s43, 2")
    a("s_add_u32 s43, s43, s45")
    a("s_cmp_ge_u32 s27, 8")
    a("s_cbranch_scc1 L_compute_v")
    for T in range(5):
        if T < 4:
            a(f"s_add_u32 s45, s44, {5*T}")
            a("v_add_u32 v7, s45, v6")
        else:
            a("s_add_u32 s45, s44, 4")
            a("v_mad_u32_u24 v7, v6, 5, s45")
        waddr(T, 7)
    a("s_cmp_ge_u32 s27, 4")
    for reg, k, q in [(44, KV_HEAD, Q_HEAD), (45, TKV, TQ), (46, f32bits(1.0), f32bits(QSCALE)), (47, KV_OFF, Q_OFF), (48, KV_SIZE, Q_SIZE)]:
        a(f"s_mov_b32 s{reg}, {q}")
        a(f"s_cmov_b32 s{reg}, {k}")
    make_srd(a, 28, pWS, "s47", "s48")
    a("s_mul_i32 s47, s43, s44")
    a("s_mul_i32 s48, s42, s45")
    a("s_add_u32 s47, s47, s48")
    a(f"v_lshlrev_b32 v{EA}, 4, v1")
    a(f"v_add_u32 v{EA+1}, s45, v{EA}")
    a("v_lshrrev_b32 v4, 5, v1")
    a("v_mul_lo_u32 v4, v4, s44")
    a("v_and_b32 v5, 31, v1")
    a("v_lshlrev_b32 v5, 3, v5")
    a("v_lshl_add_u32 v4, v4, 1, v5")
    a(f"v_add_u32 v{EA+2}, 1024, v4")
    a(f"v_add_u32 v{EA+3}, s45, v{EA+2}")
    a("s_mov_b32 s48, s47")
    a("s_add_u32 s49, s47, s44")
    def epi_qk(T):
        b = ACC + 16*T; e = []
        for r in range(16): e.append(f"v_mul_f32 v{b+r}, s46, v{b+r}")
        for r in range(8): e.append(f"v_cvt_pk_bf16_f32 v{b+r}, v{b+2*r}, v{b+2*r+1}")
        e.append("s_nop 0")
        for u in range(2):
            e.append(f"v_permlane16_swap_b32 v{b+4*u}, v{b+4*u+2}")
            e.append(f"v_permlane16_swap_b32 v{b+4*u+1}, v{b+4*u+3}")
        for u in range(2):
            if T < 4: e.append(f"buffer_store_dwordx4 {vr(b+4*u,4)}, v{EA+u}, s[28:31], s48 offen sc1")
            else:
                e.append(f"buffer_store_dwordx2 {vr(b+4*u,2)}, v{EA+2+u}, s[28:31], s47 offen sc1")
                e.append(f"buffer_store_dwordx2 {vr(b+4*u+2,2)}, v{EA+2+u}, s[28:31], s49 offen sc1")
        if T < 3: e.append("s_add_u32 s48, s48, s44")
        return e
    gemm_loop(a, False, epi_qk)
    a("s_branch L_A_done")
    a("L_compute_v:")
    for T in range(5):
        a(f"s_add_u32 s45, s44, {4*T}")
        a("v_add_u32 v7, s45, v6")
        waddr(T, 7)
    make_srd(a, 28, pWS, KV_OFF, KV_SIZE)
    a(f"s_mov_b32 s44, {KV_HEAD}")
    a("s_mul_i32 s47, s43, s44")
    a(f"s_mul_i32 s48, s42, {TKV}")
    a("s_add_u32 s47, s47, s48")
    a("v_lshrrev_b32 v7, 5, v1")
    a("v_mul_u32_u24 v7, 640, v7")
    a("v_and_b32 v15, 1, v3")
    a("v_lshl_add_u32 v7, v15, 6, v7")
    a("v_add_u32 v7, 1280, v7")
    for T in range(5):
        a(f"v_add_u32 v4, {16*T}, v2")
        a("v_mul_u32_u24 v5, 3277, v4")
        a("v_lshrrev_b32 v5, 16, v5")
        a("v_mul_u32_u24 v6, 20, v5")
        a("v_sub_u32 v4, v4, v6")
        a("v_and_b32 v6, 28, v4")
        a("v_add_u32 v4, v4, v6")
        a("v_mul_lo_u32 v5, v5, s44")
        a("v_lshl_add_u32 v4, v4, 4, v5")
        a(f"v_add_u32 v{EA+T}, v7, v4")
    def epi_v(T):
        b = ACC + 16*T; e = []
        for r in range(8): e.append(f"v_cvt_pk_bf16_f32 v{b+r}, v{b+2*r}, v{b+2*r+1}")
        e.append("s_nop 0")
        for u in range(2):
            e.append(f"v_permlane32_swap_b32 v{b+4*u}, v{b+4*u+2}")
            e.append(f"v_permlane32_swap_b32 v{b+4*u+1}, v{b+4*u+3}")
        for u in range(2): e.append(f"buffer_store_dwordx4 {vr(b+4*u,4)}, v{EA+T}, s[28:31], s47 offen offset:{u*TKV} sc1")
        return e
    gemm_loop(a, True, epi_v)
    a("s_branch L_A_done")

SWD = [56, 57, 96, 97, 100]
SEQR = [48, 56, 64]; SEQX = [24, 28, 160]; SEQS = [[40, 42], [43, 44], [51, 52]]
def side_ids(a):
    a("s_sub_u32 s53, s2, 192")
    a("s_mul_i32 s53, s53, 3")
    a(f"s_add_u32 s53, s53, s{sWAVE}")
    a("s_sub_u32 s53, s53, 5")

def side_gen(a):
    side_ids(a)
    G = 120
    a("v_lshlrev_b32 v23, 4, v3")
    a(f"s_mov_b32 s55, {f32bits(1.0/2048)}")
    a("v_cmp_gt_u32 vcc, 32, v1")
    for n in range(3):
        if n == 2:
            a("s_cmp_ge_u32 s53, 160")
            a("s_cbranch_scc1 L_sw_gen_done")
        a(f"s_add_u32 s54, s53, {192*n}")
        lp = a.label("L_gen_plain")
        a("s_lshr_b32 s41, s54, 5")
        a("s_and_b32 s58, s54, 31")
        a("s_lshr_b32 s59, s41, 1")
        a("s_lshl_b32 s59, s59, 6")
        a("s_and_b32 s47, s41, 1")
        a("s_add_u32 s59, s59, s47")
        a("v_lshl_add_u32 v4, v2, 1, s59")
        a("s_lshr_b32 s47, s58, 4")
        a("s_mul_i32 s45, s41, 65")
        a("s_add_u32 s45, s45, s58")
        a("s_add_u32 s46, s45, 33")
        a("s_add_u32 s45, s45, s47")
        a("s_lshl_b32 s45, s45, 10")
        a("s_lshl_b32 s46, s46, 10")
        a("s_and_b32 s48, s58, 15")
        a("s_lshl_b32 s48, s48, 5")
        a("s_add_u32 s48, s48, s47")
        a("v_add_u32 v5, s48, v23")
        a("v_mul_u32_u24 v5, v4, v5")
        a("v_cvt_f32_u32 v5, v5")
        a("v_cvt_f32_u32 v4, v4")
        for i in range(8):
            if i: a("v_fma_f32 v5, 2.0, v4, v5")
            a(f"v_mul_f32 v{G+i}, s55, v5")
        for i in range(8): a(f"v_fract_f32 v{G+i}, v{G+i}")
        for i in range(8): a(f"v_cos_f32 v{G+8+i}, v{G+i}")
        a("s_cmp_lg_u32 s58, 0")
        a(f"s_cbranch_scc1 {lp}")
        a("v_mul_f32 v6, 0x3e800000, v4")
        a("v_fract_f32 v6, v6")
        a(f"v_cndmask_b32 v{G}, v{G}, v6, vcc")
        a("v_cos_f32 v7, v6")
        a(f"v_mov_b32 v{SEQX[n]+1}, 0")
        a(f"v_mov_b32 v{SEQX[n]+2}, 0")
        a(f"v_mov_b32 v{SEQX[n]+3}, 0")
        a("v_cndmask_b32 v7, 0, v7, vcc")
        a(f"v_cvt_pk_bf16_f32 v{SEQX[n]}, v7, 0")
        a(f"{lp}:")
        for i in range(8): a(f"v_sin_f32 v{G+i}, v{G+i}")
        for i in range(4): a(f"v_cvt_pk_bf16_f32 v{SEQR[n]+i}, v{G+8+2*i}, v{G+9+2*i}")
        for i in range(4): a(f"v_cvt_pk_bf16_f32 v{SEQR[n]+4+i}, v{G+2*i}, v{G+1+2*i}")
        a(f"s_mov_b32 s{SEQS[n][0]}, s45")
        a(f"s_mov_b32 s{SEQS[n][1]}, s46")
    a("L_sw_gen_done:")

def side_issue(a):
    side_ids(a)
    make_srd(a, 32, pWO, 0, 819200)
    make_srd(a, 28, pWS, SEQ_OFF, WO_OFF + WO_SIZE - SEQ_OFF)
    for n in range(3):
        if n == 2:
            a("s_cmp_ge_u32 s53, 160")
            a("s_cbranch_scc1 L_sw_st_done")
        for k in range(2): a(f"buffer_store_dwordx4 {vr(SEQR[n]+4*k,4)}, v15, s[28:31], s{SEQS[n][k]} offen sc1")
        l = a.label("L_sw_nx")
        a("s_and_b32 s41, s53, 31")
        a(f"s_cbranch_scc1 {l}")
        a(f"s_add_u32 s41, s{SEQS[n][0]}, {16*1024}")
        a(f"buffer_store_dwordx4 {vr(SEQX[n],4)}, v15, s[28:31], s41 offen sc1")
        a(f"{l}:")
    a("L_sw_st_done:")
    WR = 120
    for n in range(5):
        if n == 4:
            a("s_cmp_ge_u32 s53, 32")
            a("s_cbranch_scc1 L_sw_wo_ld")
        a(f"s_add_u32 s40, s53, {192*n}")
        a("s_mul_i32 s41, s40, 1639")
        a("s_lshr_b32 s41, s41, 16")
        a("s_mul_i32 s58, s41, 40")
        a("s_sub_u32 s58, s40, s58")
        a("s_mul_i32 s59, s58, 20")
        a("s_mul_i32 s55, s58, 80")
        a("s_sub_u32 s55, s55, %d" % (32*80 - 16))
        a("s_cmp_lt_u32 s58, 32")
        a("s_cselect_b32 s45, 4, 40")
        a("s_cselect_b32 s59, s59, s55")
        a(f"s_mov_b32 s46, {20*1280}")
        a(f"s_cmov_b32 s46, {8*1280}")
        a("v_mul_u32_u24 v4, s45, v3")
        a("v_add_u32 v4, s59, v4")
        a("v_mul_u32_u24 v4, 1280, v4")
        a("s_lshl_b32 s59, s41, 6")
        a("v_lshl_add_u32 v4, v2, 1, v4")
        a("v_add_u32 v4, s59, v4")
        b = WR + 8*n
        for grp in range(2):
            so = "s46" if grp else "0"
            for i in range(4):
                a(f"buffer_load_ushort v{b+4*grp+i}, v4, s[32:35], {so} offen offset:{i*1280}")
        a("s_mul_i32 s59, s41, 52")
        a("s_lshr_b32 s59, s59, 8")
        a("s_mul_i32 s55, s59, 5")
        a("s_sub_u32 s55, s41, s55")
        a("s_mul_i32 s45, s58, 26")
        a("s_lshr_b32 s45, s45, 8")
        a("s_mul_i32 s47, s45, 10")
        a("s_sub_u32 s47, s58, s47")
        a("s_add_u32 s58, s58, 10")
        a("s_cmp_lt_u32 s55, 4")
        a("s_cselect_b32 s55, s55, s45")
        a("s_cselect_b32 s58, s58, s47")
        a("s_lshl_b32 s59, s59, 2")
        a("s_add_u32 s59, s59, s55")
        a("s_mul_i32 s59, s59, 50")
        a("s_add_u32 s59, s59, s58")
        a("s_lshl_b32 s59, s59, 10")
        a(f"s_add_u32 s{SWD[n]}, s59, {WO_OFF - SEQ_OFF}")
    a("L_sw_wo_ld:")

def side_work_finish(a):
    WR = 120
    l = a.label("L_sw_fin")
    for n in range(5):
        if n == 4:
            a("s_cmp_ge_u32 s53, 32")
            a(f"s_cbranch_scc1 {l}")
        b = WR + 8*n
        for i in range(4): a(f"v_lshl_or_b32 v{b+i}, v{b+2*i+1}, 16, v{b+2*i}")
        a(f"buffer_store_dwordx4 {vr(b,4)}, v15, s[28:31], s{SWD[n]} offen sc1")
    a(f"{l}:")

def prep(a):
    a("L_prep:")
    a(f"s_sub_u32 s40, s{sSLOT}, 24")
    a("s_and_b32 s27, s40, 1")
    a("s_lshr_b32 s26, s40, 1")
    a("s_lshl_b32 s26, s26, 3")
    a(f"s_add_u32 s26, s26, s{sXCD}")
    make_srd(a, 36, pWS, AB_OFF, AB_SIZE)
    a(f"s_cmp_ge_u32 s{sWAVE}, 5")
    a("s_cbranch_scc1 L_fold_skip")
    make_srd(a, 28, pBX, 0, X_SIZE)
    a("s_lshr_b32 s42, s26, 1")
    a("s_lshl_b32 s42, s42, 5")
    a("s_and_b32 s43, s26, 1")
    a("s_add_u32 s42, s42, s43")
    a("v_lshrrev_b32 v2, 3, v1")
    a("v_and_b32 v3, 7, v1")
    a("v_lshl_add_u32 v4, v2, 1, s42")
    a("v_mul_u32_u24 v5, 1280, v4")
    a("v_lshlrev_b32 v6, 4, v3")
    a("v_add_u32 v10, v5, v6")
    a("v_sub_u32 v7, v6, v5")
    a(f"s_lshl_b32 s44, s27, 1")
    a(f"s_add_u32 s44, s44, s{sWAVE}")
    a("s_cmp_ge_u32 s44, 5")
    a("s_cselect_b32 s45, 5, 0")
    a("s_sub_u32 s44, s44, s45")
    a("s_lshl_b32 s44, s44, 7")
    a("s_add_u32 s45, s44, 20480")
    a(f"v_add_u32 v11, {2048*1280}, v7")
    a(f"v_add_u32 v12, {1024*1280}, v7")
    a("v_cmp_ne_u32 vcc, 0, v4")
    a(f"v_mov_b32 v8, {HUGE}")
    a(f"v_add_u32 v9, {1024*1280}, v10")
    a("v_cndmask_b32 v13, v8, v9, vcc")
    LD = 32
    for hf in range(2):
        for r in range(4): a(f"buffer_load_dwordx4 {vr(LD+8*r+4*hf,4)}, v{10+r}, s[28:31], s44 offen offset:{640*hf}")
    a("v_subrev_u32 v11, 20480, v11")
    a("v_subrev_u32 v12, 20480, v12")
    for hf in range(2):
        for r, (vv, so) in enumerate([(10, 45), (11, 44), (12, 44), (9, 45)]):
            a(f"buffer_load_dwordx4 {vr(LD+32+8*r+4*hf,4)}, v{vv}, s[28:31], s{so} offen offset:{640*hf}")
    XL = 96
    a("s_cmp_lg_u32 s26, 0")
    a("s_cbranch_scc1 L_fold_nx")
    a(f"v_add_u32 v14, {512*1280}, v6")
    a(f"v_add_u32 v15, {1536*1280}, v6")
    a("v_cndmask_b32 v14, v14, v8, vcc")
    a("v_cndmask_b32 v15, v15, v8, vcc")
    for r in range(2):
        for hf in range(2):
            a(f"buffer_load_dwordx4 {vr(XL+8*r+4*hf,4)}, v{14+r}, s[28:31], s44 offen offset:{640*hf}")
    a("L_fold_nx:")
    a("v_and_b32 v5, 3, v2")
    a("v_lshrrev_b32 v4, 2, v2")
    a("v_lshl_or_b32 v5, v4, 3, v5")
    a("v_xor_b32 v5, v5, v3")
    a("v_and_b32 v4, 1, v3")
    a("v_lshl_add_u32 v5, v4, 5, v5")
    a("v_lshlrev_b32 v5, 4, v5")
    a("v_lshrrev_b32 v4, 1, v3")
    a("v_lshl_add_u32 v5, v4, 10, v5")
    a("s_lshl_b32 s45, s44, 5")
    a("v_add_u32 v16, s45, v5")
    a("v_xor_b32 v18, 64, v16")
    a("v_add_u32 v5, s44, v6")
    a("v_add_u32 v17, 40960, v5")
    a("v_lshlrev_b32 v6, 4, v1")
    a("v_add_u32 v6, 43008, v6")
    a("v_cndmask_b32 v17, v17, v6, vcc")
    a("L_fold_skip:")
    a("v_and_b32 v2, 31, v1")
    a("v_lshrrev_b32 v3, 5, v1")
    a("v_lshlrev_b32 v15, 4, v1")
    a(f"s_lshr_b32 s40, s{sWAVE}, 1")
    a("s_add_u32 s40, s40, 2")
    a(f"s_and_b32 s41, s{sWAVE}, 1")
    a(f"s_cmp_lt_u32 s{sWAVE}, 4")
    a(f"s_cselect_b32 s49, s{sWAVE}, s40")
    a("s_cselect_b32 s50, 0, s41")
    a("s_lshl_b32 s54, s49, 6")
    a("s_add_u32 s54, s54, s27")
    a("v_lshl_add_u32 v4, v2, 1, s54")
    AU = 10; SB = [[176, 184], [192, 200]]; HB = [[208, 212], [216, 220]]; UB = [72, 84, 96, 108]; ACC3 = [224, 240, 32]; PH = 112
    a("s_mul_i32 s52, s50, 20480")
    for jj in range(4):
        a(f"v_xor_b32 v5, {2*jj}, v3")
        a("v_xor_b32 v5, v5, v2")
        a("v_lshl_add_u32 v5, v3, 5, v5")
        a("v_lshlrev_b32 v5, 4, v5")
        a(f"v_add_u32 v5, {jj*1024}, v5")
        a(f"v_add_u32 v{AU+jj}, s52, v5")
    a(f"v_lshlrev_b32 v{AU+4}, 4, v3")
    a(f"v_add_u32 v{AU+4}, 40960, v{AU+4}")
    a(f"s_mov_b32 s52, {f32bits(1.0/640)}")
    a("s_cmp_lg_u32 s50, 0")
    a("s_cselect_b32 s53, 0x3e800000, 0")
    a("v_lshlrev_b32 v5, 3, v3")
    a("v_mul_u32_u24 v5, v4, v5")
    a("v_cvt_f32_u32 v5, v5")
    a("v_cvt_f32_u32 v4, v4")
    a("v_mul_f32 v6, 0x41800000, v4")
    for i in range(8):
        if i: a("v_add_f32 v5, v5, v4")
        a(f"v_mul_f32 v{PH+i}, s52, v5")
        a("v_sub_f32 v7, v5, v6")
        a(f"v_mul_f32 v{PH+8+i}, s52, v7")
    a("v_mul_f32 v6, s52, v6")
    a("v_fract_f32 v6, v6")
    for i in range(16): a(f"v_fract_f32 v{PH+i}, v{PH+i}")
    a("v_cos_f32 v19, v6")
    for i in range(16): a(f"v_sin_f32 v{SB[1][0]+i}, v{PH+i}")
    for i in range(16): a(f"v_subrev_f32 v{PH+i}, s53, v{PH+i}")
    for i in range(16): a(f"v_cos_f32 v{SB[0][0]+i}, v{PH+i}")
    a("v_add_f32 v19, v19, v19")
    for r in range(32): a(f"v_mov_b32 v{224+r}, 0")
    def cvts(jb, g): return [f"v_cvt_pk_bf16_f32 v{HB[jb][g]+d}, v{SB[jb][g]+2*d}, v{SB[jb][g]+2*d+1}" for d in range(4)]
    def rot(jb, cur): return [f"v_fma_f32 v{SB[jb][cur^1]+i}, v19, v{SB[jb][cur]+i}, -v{SB[jb][cur^1]+i}" for i in range(8)]
    for x in cvts(0, 0) + cvts(1, 0): a(x)
    a(f"s_cmp_lt_u32 s{sWAVE}, 5")
    a("s_cbranch_scc1 L_fold_go")
    side_gen(a)
    a("s_branch L_fold_done")
    a("L_fold_go:")
    a("s_cmp_lg_u32 s27, 0")
    a("s_cselect_b32 s46, -1.0, 1.0")
    a("s_mov_b32 s47, s46")
    a("s_mov_b32 s48, 0xffff0000")
    T = 112; R = 144; H = 20
    ng = "neg_lo:[0,1] neg_hi:[0,1]"
    def dfold(src, dst):
        for d in range(4):
            a(f"v_lshlrev_b32 v{dst+2*d}, 16, v{src+d}")
            a(f"v_and_b32 v{dst+2*d+1}, s48, v{src+d}")
            a(f"v_lshlrev_b32 v{H+2*(d&1)}, 16, v{src+4+d}")
            a(f"v_and_b32 v{H+2*(d&1)+1}, s48, v{src+4+d}")
            a(f"v_pk_fma_f32 {vr(dst+2*d,2)}, {vr(H+2*(d&1),2)}, s[46:47], {vr(dst+2*d,2)}")
    for n in range(2):
        a("s_waitcnt vmcnt(%d)" % (8 if n == 0 else 0))
        if n == 0: stamp(a, 9)
        b = LD + 32*n
        for r in range(4): dfold(b + 8*r, T + 8*r)
        for d in range(4):
            p = lambda r: vr(T+8*r+2*d, 2)
            q = lambda r: vr(R+8*r+2*d, 2)
            a(f"v_pk_add_f32 {q(0)}, {p(0)}, {p(1)}")
            a(f"v_pk_add_f32 {q(1)}, {p(0)}, {p(1)} {ng}")
            a(f"v_pk_add_f32 {q(2)}, {p(2)}, {p(3)}")
            a(f"v_pk_add_f32 {q(3)}, {p(2)}, {p(3)} {ng}")
            a(f"v_pk_add_f32 {p(0)}, {q(0)}, {q(2)}")
            a(f"v_pk_add_f32 {p(1)}, {q(0)}, {q(2)} {ng}")
            a(f"v_pk_add_f32 {p(2)}, {q(1)}, {q(3)} {ng}")
            a(f"v_pk_add_f32 {p(3)}, {q(1)}, {q(3)}")
        if n == 0:
            a("s_cmp_lg_u32 s26, 0")
            a("s_cbranch_scc1 L_fold_sp")
            a("s_waitcnt vmcnt(0)")
            dfold(XL, R); dfold(XL + 8, R + 8)
            for d in range(4):
                a(f"v_pk_add_f32 {vr(R+16+2*d,2)}, {vr(R+2*d,2)}, {vr(R+8+2*d,2)}")
                a(f"v_pk_add_f32 {vr(R+2*d,2)}, {vr(R+2*d,2)}, {vr(R+8+2*d,2)} {ng}")
            for e in range(8): a(f"v_cndmask_b32 v{T+24+e}, v{R+e}, v{T+24+e}, vcc")
            for d in range(4): a(f"v_cvt_pk_bf16_f32 v{R+d}, v{R+16+2*d}, v{R+17+2*d}")
            a(f"ds_write_b128 v17, {vr(R,4)}")
            a("L_fold_sp:")
        for i in range(4):
            for d in range(4): a(f"v_cvt_pk_bf16_f32 v{b+4*i+d}, v{T+8*i+2*d}, v{T+8*i+2*d+1}")
            a(f"ds_write_b128 v{16+2*n}, {vr(b+4*i,4)} offset:{(i>>1)*20480 + (i&1)*256}")
    a("L_fold_done:")
    for r in range(16): a(f"v_mov_b32 v{32+r}, 0")
    a("s_waitcnt lgkmcnt(0)")
    stamp(a, 14)
    a("s_barrier")
    stamp(a, 2)
    a(f"s_cmp_lt_u32 s{sWAVE}, 5")
    a("s_cbranch_scc1 L_no_side")
    side_issue(a)
    a("L_no_side:")
    make_srd(a, 28, pDBG, 0, 256)
    a("v_mov_b32 v16, 0")
    a("buffer_load_dwordx2 v[4:5], v16, s[28:31], 0 offen sc1")
    a("s_mul_i32 s42, s27, 6")
    a("s_add_u32 s42, s42, s49")
    a("s_cmp_gt_u32 s42, 10")
    a("s_cbranch_scc0 L_f1_go")
    a("s_waitcnt vmcnt(0)")
    a("s_branch L_prep_done")
    a("L_f1_go:")
    def ureads(j, kinds):
        jj = j & 3; o = (j >> 2) * 4096; b = UB[j & 3]; r = []
        for k in kinds:
            if k == 2: r.append(f"ds_read_b128 {vr(b+8,4)}, v{AU+4} offset:{j*32}")
            else: r.append(f"ds_read_b128 {vr(b+4*k,4)}, v{AU+jj} offset:{o + k*20480}")
        return r
    a("s_mov_b32 s45, 5")
    a("s_or_b32 s51, s26, s50")
    a("s_cmp_eq_u32 s51, 0")
    a("s_cselect_b32 s40, 1, 0")
    a(f"s_cmp_lt_u32 s{sWAVE}, 4")
    a("s_cselect_b32 s41, 2, 0")
    a("s_add_u32 s40, s40, s41")
    variants = [[0], [0, 2], [0, 1], [0, 1, 2]]
    for v in range(1, 4):
        a(f"s_cmp_eq_u32 s40, {v}")
        a(f"s_cbranch_scc1 L_f1_v{v}")
    for v, kinds in enumerate(variants):
        a(f"L_f1_v{v}:")
        nm = len(kinds)
        for x in ureads(0, kinds) + ureads(1, kinds): a(x)
        a(f"L_f1_loop{v}:")
        for jj in range(4):
            buf = jj & 1
            va = rot(0, buf) + cvts(0, buf ^ 1)
            if 1 in kinds: va = rot(0, buf) + rot(1, buf) + cvts(0, buf ^ 1) + cvts(1, buf ^ 1)
            rd = ureads(jj + 2, kinds)
            a(f"s_waitcnt lgkmcnt({nm})")
            a("s_nop 0")
            per = len(va) // nm
            for m, k in enumerate(kinds):
                d = vr(ACC3[k], 16)
                a(f"v_mfma_f32_32x32x16_bf16 {d}, {vr(UB[jj]+4*k,4)}, {vr(HB[k & 1][buf],4)}, {d}")
                a(rd[m])
                for x in va[per*m:per*m+per]: a(x)
        for r in range(4): a(f"v_add_u32 v{AU+r}, 4096, v{AU+r}")
        if 2 in kinds: a(f"v_add_u32 v{AU+4}, 128, v{AU+4}")
        a("s_sub_u32 s45, s45, 1")
        a("s_cmp_lg_u32 s45, 0")
        a(f"s_cbranch_scc1 L_f1_loop{v}")
        if v < 3: a("s_branch L_f1_done")
    a("L_f1_done:")
    stamp(a, 5)
    a("s_mul_i32 s43, s42, 33")
    a("s_and_b32 s44, s26, 1")
    a("s_lshl_b32 s44, s44, 4")
    a("s_lshr_b32 s45, s26, 1")
    a("s_add_u32 s44, s44, s45")
    a("s_add_u32 s44, s44, s43")
    a(f"s_mul_i32 s45, s50, {22*33}")
    a("s_add_u32 s44, s44, s45")
    a("s_lshl_b32 s44, s44, 10")
    a("s_waitcnt vmcnt(0) lgkmcnt(0)")
    a("s_nop 5")
    for jb in range(2):
        b = ACC3[jb]
        if jb == 1:
            a(f"s_cmp_ge_u32 s{sWAVE}, 4")
            a("s_cbranch_scc1 L_f1_one")
        for r in range(8): a(f"v_cvt_pk_bf16_f32 v{b+r}, v{b+2*r}, v{b+2*r+1}")
        for hf in range(2):
            a(f"buffer_store_dwordx4 {vr(b+4*hf,4)}, v15, s[36:39], s44 offen sc1")
            a(f"s_add_u32 s44, s44, {11*33*1024}")
    a("L_f1_one:")
    a("s_cmp_lg_u32 s51, 0")
    a("s_cbranch_scc1 L_prep_done")
    b = ACC3[2]
    for r in range(4): a(f"v_cvt_pk_bf16_f32 v{b+r}, v{b+2*r}, v{b+2*r+1}")
    a("s_add_u32 s43, s43, 32")
    a("s_lshl_b32 s43, s43, 10")
    a(f"buffer_store_dwordx4 {vr(b,4)}, v15, s[36:39], s43 offen sc1")
    a("L_prep_done:")
    a(f"s_cmp_lt_u32 s{sWAVE}, 5")
    a("s_cbranch_scc1 L_prep_fin")
    make_srd(a, 28, pWS, SEQ_OFF, WO_OFF + WO_SIZE - SEQ_OFF)
    side_work_finish(a)
    a("L_prep_fin:")
    a(f"v_readfirstlane_b32 s{sNON}, v4")
    a(f"v_readfirstlane_b32 s{sNON+1}, v5")
    a("s_nop 0")
    a(f"s_cmp_lg_u32 s{sNON}, 0")
    a("s_cbranch_scc1 L_A_done")
    get_nonce(a, 2)

W_PROG, W_GO, W_CNT, W_PASS, W_XCH, W_NON = 0, 4, 8, 16, 32, 48
def a_done(a):
    a("L_A_done:")
    stamp(a, 6)
    a(f"v_mov_b32 v23, {LDS_PROG}")
    a(f"s_cmp_lg_u32 s{sWAVE}, 4")
    a("s_cbranch_scc1 L_A_bar")
    a(f"v_mov_b32 v2, s{sNON}")
    a(f"v_mov_b32 v3, s{sNON+1}")
    a(f"ds_write_b64 v23, v[2:3] offset:{W_NON}")
    a("L_A_bar:")
    a("s_waitcnt lgkmcnt(0)")
    a("s_barrier")
    stamp(a, 4)
    a(f"s_lshr_b32 s26, s{sXCD}, 1")
    a("s_lshl_b32 s26, s26, 3")
    a(f"s_and_b32 s27, s{sSLOT}, 7")
    a("s_add_u32 s26, s26, s27")
    a(f"s_and_b32 s27, s{sXCD}, 1")
    a("s_lshl_b32 s27, s27, 2")
    a(f"s_lshr_b32 s40, s{sSLOT}, 3")
    a("s_add_u32 s27, s27, s40")
    a(f"s_cmp_ge_u32 s{sWAVE}, 4")
    a("s_cbranch_scc1 L_aux")

def drained(a, vt):
    a(f"v_mov_b32 v{vt}, 1")
    a("s_mov_b64 exec, 1")
    a(f"ds_add_u32 v23, v{vt} offset:{W_CNT}")
    a("s_mov_b64 exec, -1")

def attention(a):
    SL = OPT.get('slot', 1)
    AKA, AKB, AV, AKB2 = 4, 5, 168, 172
    AREGS = [AKA, AV, AV+1, AV+2, AV+3] + ([AKB2, AKB2+1] if SL else [AKB])
    QA = [8, 14]
    NEG = [32, 48]; S = [64, 80]; O = [96, 112]; P = 128
    KB = [136, 142]; VB = [148, 156]
    PR = 164
    a("L_attn:")
    a(f"ds_read_b32 v24, v23 offset:{W_GO}")
    a(f"ds_read_b64 v[26:27], v23 offset:{W_NON}")
    a(f"s_setprio {OPT.get('pattn', 2)}")
    a(f"s_mul_i32 s40, s26, {Q_HEAD}")
    a(f"s_add_u32 s40, s40, {Q_OFF}")
    make_srd(a, 28, pWS, "s40", Q_HEAD)
    a(f"s_mul_i32 s40, s26, {KV_HEAD}")
    make_srd(a, 32, pWS, "s40", KV_HEAD)
    a("v_and_b32 v2, 31, v1")
    a("v_lshrrev_b32 v3, 5, v1")
    a(f"v_lshlrev_b32 v{AKA}, 4, v1")
    a(f"v_lshlrev_b32 v{AKB}, 3, v2")
    a(f"v_add_u32 v{AKB}, 1024, v{AKB}")
    a(f"v_mov_b32 v20, {HUGE}")
    a("v_cmp_gt_u32 vcc, 32, v1")
    a("s_lshl_b32 s41, s27, 3")
    a(f"s_lshl_b32 s42, s{sWAVE}, 1")
    a("s_add_u32 s41, s41, s42")
    a(f"v_cndmask_b32 v20, v20, v{AKB}, vcc")
    a(f"s_mul_i32 s42, s41, {TQ}")
    a("v_and_b32 v21, 28, v2")
    a("v_add_u32 v21, v21, v2")
    a("v_lshl_add_u32 v21, v3, 2, v21")
    a("v_lshlrev_b32 v21, 4, v21")
    a("v_add_u32 v29, 1280, v21")
    a("s_mov_b32 s48, 0x000fffff")
    a("s_mov_b32 s49, 0x000fffff")
    a("s_mov_b32 s52, 0x07060302")
    a("s_waitcnt lgkmcnt(0)")
    a("v_readfirstlane_b32 s47, v24")
    a(f"v_readfirstlane_b32 s{sNON}, v26")
    a(f"v_readfirstlane_b32 s{sNON+1}, v27")
    a("s_mov_b32 s50, s47")
    a("s_cmp_lg_u32 s47, 0")
    a("s_cbranch_scc1 L_attn_go")
    a("s_waitcnt vmcnt(0)")
    stamp(a, 3)
    drained(a, 24)
    a("L_attn_spin:")
    a(f"s_sleep {OPT.get('asl', 1)}")
    a(f"ds_read_b32 v24, v23 offset:{W_GO}")
    a("s_waitcnt lgkmcnt(0)")
    a("v_readfirstlane_b32 s47, v24")
    a("s_nop 0")
    a("s_cmp_eq_u32 s47, 0")
    a("s_cbranch_scc1 L_attn_spin")
    a("L_attn_go:")
    stamp(a, 7); stamp(a, 7, 2); stamp_real(a, 8, 2)
    a("s_sub_u32 s47, s47, 1")
    a(f"s_mul_i32 s47, s47, {4*TKV}")
    for q in range(2):
        a(f"buffer_load_dwordx4 {vr(QA[q],4)}, v{AKA}, s[28:31], s42 offen offset:{q*TQ} sc1")
        a(f"buffer_load_dwordx2 {vr(QA[q]+4,2)}, v20, s[28:31], s42 offen offset:{q*TQ} sc1")
    a(f"buffer_load_dwordx4 {vr(KB[0],4)}, v{AKA}, s[32:35], s47 offen sc1")
    if SL:
        for b in KB:
            a(f"v_mov_b32 v{b+4}, 0x3f803f80")
            a(f"v_mov_b32 v{b+5}, 0x3f80")
        a("s_mov_b32 exec_hi, 0")
    a(f"buffer_load_dwordx2 {vr(KB[0]+4,2)}, v{AKB}, s[32:35], s47 offen sc1")
    if SL: a("s_mov_b64 exec, -1")
    a("v_mov_b32 v24, 0x3f803f80")
    a("v_cmp_eq_u32 vcc, 20, v2")
    a(f"s_add_u32 s43, s47, {TKV}")
    a("s_nop 0")
    a("v_cndmask_b32 v24, 0, v24, vcc")
    for r in range(16): a(f"v_mov_b32 v{VB[0]+r}, v24")
    a(f"buffer_load_dwordx4 {vr(KB[1],4)}, v{AKA}, s[32:35], s43 offen sc1")
    if SL: a("s_mov_b32 exec_hi, 0")
    a(f"buffer_load_dwordx2 {vr(KB[1]+4,2)}, v{AKB}, s[32:35], s43 offen sc1")
    a("s_mov_b64 exec, s[48:49]")
    a(f"buffer_load_dwordx4 {vr(VB[0],4)}, v29, s[32:35], s47 offen sc1")
    a(f"buffer_load_dwordx4 {vr(VB[0]+4,4)}, v29, s[32:35], s47 offen offset:640 sc1")
    a(f"buffer_load_dwordx4 {vr(VB[1],4)}, v29, s[32:35], s43 offen sc1")
    a(f"buffer_load_dwordx4 {vr(VB[1]+4,4)}, v29, s[32:35], s43 offen offset:640 sc1")
    a("s_mov_b64 exec, -1")
    a("s_cmp_eq_u32 s50, 0")
    a("s_cbranch_scc1 L_attn_cnt")
    a("s_waitcnt vmcnt(12)")
    stamp(a, 3)
    drained(a, 24)
    a("L_attn_cnt:")
    a("v_mov_b32 v22, 5120")
    if OPT.get('zr', 1):
        a("v_cmp_lt_u32 vcc, 20, v2")
        a("v_mov_b32 v21, 5136")
        a("s_nop 0")
        a("v_cndmask_b32 v22, v22, v21, vcc")
    a("v_cmp_gt_u32 vcc, 20, v2")
    for i in range(4): a(f"v_add_u32 v{AV+i}, {(i>>1)*TKV + (i&1)*640}, v29")
    for i in range(4): a(f"v_cndmask_b32 v{AV+i}, v22, v{AV+i}, vcc")
    if SL:
        a("v_cmp_gt_u32 vcc, 32, v1")
        a("v_mov_b32 v22, 5152")
        a(f"v_add_u32 v21, {TKV}, v{AKB}")
        a(f"v_cndmask_b32 v{AKB2}, v22, v{AKB}, vcc")
        a(f"v_cndmask_b32 v{AKB2+1}, v22, v21, vcc")
    make_srd(a, 36, pWS, O_OFF, O_SIZE)
    for q in range(2):
        for r in range(16): a(f"v_mov_b32 v{O[q]+r}, 0")
    LOOPED = [False]
    mm16 = "v_mfma_f32_32x32x16_bf16"; mm8 = "v_mfma_f32_32x32x8_bf16"
    def M1(s, t, q, c): return "s_nop 1" if OPT.get('nom1') and c == "0" and LOOPED[0] else f"{mm16} {vr(s,16)}, {vr(KB[t&1],4)}, {vr(QA[q],4)}, {c}"
    def M2(s, t, q): return "s_nop 0" if OPT.get('nom2') and LOOPED[0] else f"{mm8} {vr(s,16)}, {vr(KB[t&1]+4,2)}, {vr(QA[q]+4,2)}, {vr(s,16)}"
    def M3(t, q): return "s_nop 1" if OPT.get('nopv') else f"{mm16} {vr(O[q],16)}, {vr(VB[t&1],4)}, {vr(P,4)}, {vr(O[q],16)}"
    def M4(t, q): return "s_nop 1" if OPT.get('nopv') else f"{mm16} {vr(O[q],16)}, {vr(VB[t&1]+4,4)}, {vr(P+4,4)}, {vr(O[q],16)}"
    def rowmax(src, dst, first):
        if first:
            a(f"v_max3_f32 v{dst}, v{src}, v{src+1}, v{src+2}")
            a(f"v_max_f32 v{dst}, v{dst}, v{src+15}")
            rng = range(3, 15, 2)
        else: rng = range(0, 16, 2)
        for r in rng: a(f"v_max3_f32 v{dst}, v{dst}, v{src+r}, v{src+r+1}")
    def finish_neg(add):
        a("v_mov_b32 v26, v24")
        a("v_mov_b32 v27, v25")
        a("s_nop 1")
        a("v_permlane32_swap_b32 v24, v26")
        a("v_permlane32_swap_b32 v25, v27")
        a("s_nop 1")
        a("v_max_f32 v24, v24, v26")
        a("v_max_f32 v25, v25, v27")
        if not SL:
            for q in range(2):
                a(f"v_sub_f32 v{NEG[q]}, {add}, v{24+q}")
                for r in range(1, 16): a(f"v_mov_b32 v{NEG[q]+r}, v{NEG[q]}")
            return
        a("s_mov_b32 s45, 0xffff0000")
        a("s_mov_b32 s46, 0x07060302")
        for q in range(2):
            a(f"v_sub_f32 v{24+q}, {add}, v{24+q}")
        for q in range(2):
            a(f"v_and_b32 v26, s45, v{24+q}")
            a(f"v_sub_f32 v27, v{24+q}, v26")
            a("v_and_b32 v28, s45, v27")
            a("v_sub_f32 v27, v27, v28")
            a("v_perm_b32 v26, v28, v26, s46")
            a("v_lshrrev_b32 v27, 16, v27")
            a("s_mov_b32 exec_lo, 0")
            a(f"v_mov_b32 v{QA[q]+4}, v26")
            a(f"v_mov_b32 v{QA[q]+5}, v27")
            a("s_mov_b64 exec, -1")
        a("s_nop 1")
    CNEG = lambda q: "0" if SL else vr(NEG[q], 16)
    a("s_waitcnt vmcnt(6)")
    stamp(a, 8)
    def neg_one(q, add):
        a(f"v_mov_b32 v26, v{24+q}")
        a("s_nop 1")
        a(f"v_permlane32_swap_b32 v{24+q}, v26")
        a("s_nop 0")
        a(f"v_max_f32 v{24+q}, v{24+q}, v26")
        a(f"v_sub_f32 v{24+q}, {add}, v{24+q}")
        a(f"v_and_b32 v26, s45, v{24+q}")
        a(f"v_sub_f32 v27, v{24+q}, v26")
        a("v_and_b32 v28, s45, v27")
        a("v_sub_f32 v27, v27, v28")
        a("s_mov_b32 exec_lo, 0")
        a(f"v_perm_b32 v{QA[q]+4}, v28, v26, s46")
        a(f"v_lshrrev_b32 v{QA[q]+5}, 16, v27")
        a("s_mov_b64 exec, -1")
    OFFS = hex(f32bits(-float(OPT.get('off', 100))))
    a(M1(S[0], 0, 0, "0")); a(M2(S[0], 0, 0))
    a(M1(S[1], 0, 1, "0")); a(M2(S[1], 0, 1))
    a("s_mov_b32 s45, 0xffff0000")
    a("s_mov_b32 s46, 0x07060302")
    a(f"ds_read_b32 v{PR}, v23")
    a("s_nop 6")
    rowmax(S[0], 24, True)
    neg_one(0, OFFS)
    a("s_nop 0")
    a(M1(S[0], 0, 0, CNEG(0)))
    a(M2(S[0], 0, 0))
    rowmax(S[1], 25, True)
    neg_one(1, OFFS)
    a("s_waitcnt vmcnt(0)")
    def check(need):
        l = a.label("L_chk"); ok = a.label("L_chkok")
        a(f"{l}:")
        a("s_waitcnt lgkmcnt(0)")
        a(f"v_readfirstlane_b32 s44, v{PR}")
        a("s_nop 0")
        a(f"s_cmp_ge_u32 s44, {need}")
        a(f"s_cbranch_scc1 {ok}")
        a(f"ds_read_b32 v{PR}, v23")
        a(f"s_branch {l}")
        a(".p2align 3")
        a(f"{ok}:")
    def unit(t, q, s4=(), s1=(), s2=(), s3=(), first=False, nonext=False):
        s = S[q]; sn = S[q ^ 1]
        t1, q1 = (t, 1) if q == 0 else (t + 1, 0)
        tp, qp = (t - 1, 1) if q == 0 else (t, 0)
        E = lambda r: a(f"v_exp_f32 v{s+r}, v{s+r}")
        C = lambda j: a(f"v_perm_b32 v{P+j}, v{s+2*j+1}, v{s+2*j}, s52" if OPT.get('perm') else f"v_cvt_pk_bf16_f32 v{P+j}, v{s+2*j}, v{s+2*j+1}")
        al = OPT.get('al', 0)
        EW = lambda r: a(f"v_exp_f32_e64 v{s+r}, v{s+r}") if al else E(r)
        odd = lambda xs: sum(1 for x in xs if x.startswith("s_")) & 1
        E(0); E(1)
        if not first: a(M4(tp, qp))
        for x in s4: a(x)
        (E if odd(s4) else EW)(2); E(3); E(4)
        if not nonext: a(M1(sn, t1, q1, CNEG(q1)))
        for x in s1: a(x)
        EW(5); E(6); E(7)
        for j in range(4): C(j)
        if OPT.get('m2l'): EW(8)
        if not nonext: a(M2(sn, t1, q1))
        for x in s2: a(x)
        if not OPT.get('m2l'): EW(8)
        for r in range(9, 13): E(r)
        a(M3(t, q))
        for x in s3: a(x)
        (E if odd(s3) else EW)(13); E(14); E(15)
        for j in range(4, 8): C(j)
    def period(t, o, extra3=()):
        if OPT.get('nods') and LOOPED[0]: o = None
        if o is None:
            if extra3:
                unit(t, 1, s4=["s_waitcnt lgkmcnt(0)"]); unit(t + 1, 0, s3=extra3); return
            unit(t, 1, s4=["s_waitcnt lgkmcnt(0)"]); unit(t + 1, 0); return
        kb = KB[t & 1]; vb = VB[t & 1]
        ok = lds_tile(o + 2); ov = (o >> 1) * LPAIR; av = AV + 2*(o & 1)
        unit(t, 1, s4=["s_waitcnt lgkmcnt(0)"],
             s1=[f"ds_read_b128 {vr(kb,4)}, v{AKA} offset:{ok}"],
             s3=[f"ds_read_b64 {vr(kb+4,2)}, v{AKB2+(o&1)} offset:{ov}" if SL else f"ds_read_b64 {vr(kb+4,2)}, v{AKB} offset:{ok}"])
        unit(t + 1, 0, s4=[f"ds_read_b128 {vr(vb,4)}, v{av} offset:{ov}"],
             s1=[f"ds_read_b128 {vr(vb+4,4)}, v{av+1} offset:{ov}"], s3=extra3)
    rdp = [f"ds_read_b32 v{PR}, v23"]
    a(".p2align 3")
    unit(0, 0, first=True)
    stamp(a, 9)
    check(1)
    for t in range(6):
        if t == 2: check(2)
        period(t, t, rdp if t in (1, 5) else ())
    for r in AREGS: a(f"v_add_u32 v{r}, {3*LPAIR}, v{r}")
    a(f"s_lshl_b32 s45, s{sWAVE}, 2")
    a("v_add_u32 v24, s45, v23")
    a(f"ds_write_b32 v24, v23 offset:{W_PASS}")
    a("s_mov_b32 s45, 2")
    a("s_mov_b32 s46, 7")
    stamp(a, 10); stamp(a, 10, 2); stamp_real(a, 12, 2)
    LOOPED[0] = True
    def body(chk):
        for k in range(8):
            ex = ()
            if k == 7: ex = (rdp if chk else [])
            if k == 6: ex = ["s_sub_u32 s46, s46, 1"]
            if k == 7 and not chk: ex = ["s_cmp_lg_u32 s46, 0"]
            period(k, k, ex)
        for r in AREGS: a(f"v_add_u32 v{r}, {4*LPAIR}, v{r}")
    a("s_cmp_eq_u32 s44, 16")
    a("s_cbranch_scc1 L_attn_fast")
    a(".p2align 3")
    a("L_attn_loop:")
    a("s_add_u32 s45, s45, 2")
    check("s45")
    body(True)
    a("s_cmp_eq_u32 s46, 0")
    a("s_cbranch_scc1 L_attn_last")
    a("s_cmp_lg_u32 s44, 16")
    a("s_cbranch_scc1 L_attn_loop")
    a(f".p2align {OPT.get('lal', 3)}")
    a("L_attn_fast:")
    body(False)
    a("s_cbranch_scc1 L_attn_fast")
    a(".p2align 3")
    a("L_attn_last:")
    period(62, None)
    unit(63, 1, nonext=True)
    a("s_nop 1")
    a(M4(63, 1))
    stamp(a, 11); stamp(a, 11, 2); stamp_real(a, 13, 2)
    a("L_attn_post:")
    a("s_lshl_b32 s42, s41, 5")
    a("s_add_u32 s42, s42, s26")
    a("s_mul_i32 s42, s42, 1280")
    a("v_lshlrev_b32 v21, 4, v1")
    for q in range(2):
        a(f"v_mov_b32 v{24+q}, v{O[q]+8}")
        a(f"v_mov_b32 v26, v{O[q]+8}")
        a("s_nop 1")
        a(f"v_permlane32_swap_b32 v26, v{24+q}")
        a("s_nop 0")
        a(f"v_rcp_f32 v26, v{24+q}")
        a("s_nop 0")
        for r in range(12): a(f"v_mul_f32 v{S[q]+r}, v{O[q]+r}, v26")
        for r in range(6): a(f"v_cvt_pk_bf16_f32 v{S[q]+r}, v{S[q]+2*r}, v{S[q]+2*r+1}")
        a(f"buffer_store_dwordx4 {vr(S[q],4)}, v21, s[36:39], s42 offen sc1")
        a(f"buffer_store_dwordx2 {vr(S[q]+4,2)}, v20, s[36:39], s42 offen sc1")
        if q == 0: a(f"s_add_u32 s42, s42, {32*1280}")
    a("s_cmp_eq_u32 s46, 0")
    a("s_cbranch_scc0 L_attn_fin")
    for q in range(2):
        a(f"v_max3_f32 v{30+q}, abs(v{O[q]}), abs(v{O[q]+1}), abs(v{O[q]+2})")
        a(f"v_mul_f32 v{26+q}, 0, v{24+q}")
    for r in range(12):
        for q in range(2): a(f"v_fma_f32 v{26+q}, v{O[q]+r}, 0, v{26+q}")
    for q in range(2):
        a(f"v_max3_f32 v{30+q}, v{30+q}, abs(v{O[q]+3}), abs(v{O[q]+4})")
        a(f"v_max3_f32 v{30+q}, v{30+q}, abs(v{O[q]+5}), abs(v{O[q]+6})")
        a(f"v_max_f32 v{30+q}, v{30+q}, abs(v{O[q]+7})")
    a("v_max_f32 v24, v24, v25")
    a("v_min_f32 v30, v30, v31")
    a("v_mov_b32 v28, 0x76800000")
    a("v_mov_b32 v31, 0x08800000")
    a("v_cmp_u_f32 s[44:45], v26, v27")
    a("v_cmp_nlt_f32 vcc, v24, v28")
    a("v_cmp_lt_f32 s[50:51], v30, v31")
    a("s_nop 1")
    a("s_or_b64 vcc, vcc, s[44:45]")
    a("s_or_b64 vcc, vcc, s[50:51]")
    if OPT.get('forcefb'): a("s_mov_b64 vcc, -1")
    a("s_cbranch_vccnz L_attn_fallback")
    a("L_attn_fin:")
    if OPT.get('apoll', 0): prod_flags(a, 12, 13)
    a("s_lshl_b32 s40, s2, 2")
    a(f"s_add_u32 s40, s40, s{sWAVE}")
    a(f"s_add_u32 s40, s40, {FB}")
    a("s_lshl_b32 s40, s40, 7")
    for i in range(4): a(f"v_mov_b32 v{8+i}, s{sNON+(i&1)}")
    a("s_waitcnt vmcnt(0)")
    stamp(a, 12)
    a("s_mov_b64 exec, %s" % ("1" if OPT.get('f16') or OPT.get('fat') else "0xff"))
    if OPT.get('fat'): a(f"buffer_atomic_swap_x2 v[8:9], v21, {sr(sFL,4)}, s40 offen" + (" sc1" if OPT['fat'] == 2 else ""))
    elif OPT.get('fnt'): a(f"buffer_store_dwordx4 v[8:11], v21, {sr(sFL,4)}, s40 offen sc0 sc1")
    else: a(f"buffer_store_dwordx4 v[8:11], v21, {sr(sFL,4)}, s40 offen sc1")
    a("s_mov_b64 exec, -1")
    a("s_barrier")
    if OPT.get('apoll', 0):
        a(f"s_cmp_lg_u32 s{sWAVE}, 0")
        a("s_cbranch_scc1 L_end")
        if OPT.get('apoll', 0) > 1: poll_piped(a, 12, 14, OPT.get('apoll', 0))
        else: poll(a, 12, 14, sleep=0)
        a("s_barrier")
    a("s_branch L_end")
    a("L_attn_fallback:")
    a("s_waitcnt vmcnt(0)")
    for r in ((AKA,) if SL else (AKA, AKB)): a(f"v_subrev_u32 v{r}, {31*LPAIR}, v{r}")
    if SL:
        a("s_mov_b32 exec_lo, 0")
        for q in range(2):
            a(f"v_mov_b32 v{QA[q]+4}, 0")
            a(f"v_mov_b32 v{QA[q]+5}, 0")
        a("s_mov_b64 exec, -1")
    a("v_mov_b32 v24, 0xff800000")
    a("v_mov_b32 v25, 0xff800000")
    a("s_mov_b32 s46, 0")
    a("L_fb_max:")
    a(f"buffer_load_dwordx4 {vr(KB[0],4)}, v{AKA}, s[32:35], s46 offen sc1")
    if SL: a("s_mov_b32 exec_hi, 0")
    a(f"buffer_load_dwordx2 {vr(KB[0]+4,2)}, v{AKB}, s[32:35], s46 offen sc1")
    if SL: a("s_mov_b64 exec, -1")
    a("s_waitcnt vmcnt(0)")
    for q in range(2): a(M1(S[q], 0, q, "0"))
    for q in range(2): a(M2(S[q], 0, q))
    a("s_nop 15")
    rowmax(S[0], 24, False)
    rowmax(S[1], 25, False)
    a(f"s_add_u32 s46, s46, {TKV}")
    a(f"s_cmp_lt_u32 s46, {KV_HEAD}")
    a("s_cbranch_scc1 L_fb_max")
    finish_neg("0")
    for q in range(2):
        for r in range(16): a(f"v_mov_b32 v{O[q]+r}, 0")
    a("s_mov_b32 s46, 0")
    a("L_fb_main:")
    a(f"buffer_load_dwordx4 {vr(KB[0],4)}, v{AKA}, s[32:35], s46 offen sc1")
    if SL: a("s_mov_b32 exec_hi, 0")
    a(f"buffer_load_dwordx2 {vr(KB[0]+4,2)}, v{AKB}, s[32:35], s46 offen sc1")
    if SL: a("s_mov_b64 exec, -1")
    a("s_mov_b64 exec, s[48:49]")
    a(f"buffer_load_dwordx4 {vr(VB[0],4)}, v29, s[32:35], s46 offen sc1")
    a(f"buffer_load_dwordx4 {vr(VB[0]+4,4)}, v29, s[32:35], s46 offen offset:640 sc1")
    a("s_mov_b64 exec, -1")
    a("s_waitcnt vmcnt(0)")
    for q in range(2): a(M1(S[q], 0, q, CNEG(q)))
    for q in range(2): a(M2(S[q], 0, q))
    a("s_nop 15")
    for q in range(2):
        for r in range(16): a(f"v_exp_f32 v{S[q]+r}, v{S[q]+r}")
        a("s_nop 0")
        for j in range(8): a(f"v_cvt_pk_bf16_f32 v{P+j}, v{S[q]+2*j}, v{S[q]+2*j+1}")
        a("s_nop 1")
        a(M3(0, q)); a(M4(0, q))
    a(f"s_add_u32 s46, s46, {TKV}")
    a(f"s_cmp_lt_u32 s46, {KV_HEAD}")
    a("s_cbranch_scc1 L_fb_main")
    a("s_nop 15")
    a("s_branch L_attn_post")

def aux(a):
    a("L_aux:")
    a(f"s_setprio {OPT.get('paux', 0)}")
    a(f"s_sub_u32 s44, s{sWAVE}, 4")
    a("v_lshlrev_b32 v2, 4, v1")
    a("s_waitcnt vmcnt(0)")
    drained(a, 3)
    a("s_cmp_eq_u32 s44, 0")
    a("s_cbranch_scc1 L_kv")
    a("s_cmp_lg_u32 s44, 1")
    a("s_cbranch_scc1 L_aux_wait")
    a("s_lshl_b32 s40, s2, 7")
    a("L_cnt_spin:")
    a(f"s_sleep {OPT.get('asl', 1)}")
    a(f"ds_read_b32 v3, v23 offset:{W_CNT}")
    a("s_waitcnt lgkmcnt(0)")
    a("v_readfirstlane_b32 s41, v3")
    a("s_nop 0")
    a("s_cmp_lt_u32 s41, 8")
    a("s_cbranch_scc1 L_cnt_spin")
    stamp(a, 7)
    set_flag(a, 40, 8, also=FL1*128 if OPT.get('lf', 1) else None)
    a("L_aux_wait:")
    a(f"s_sleep {OPT.get('wsl', 16)}")
    a(f"ds_read_b32 v3, v23 offset:{W_PROG}")
    a("s_waitcnt lgkmcnt(0)")
    a("v_readfirstlane_b32 s41, v3")
    a("s_nop 0")
    a(f"s_cmp_lt_u32 s41, {OPT.get('f2w', 6)}")
    a("s_cbranch_scc1 L_aux_wait")
    if OPT.get('dyn', 0):
        a("s_cmp_lg_u32 s44, 1")
        a("s_cbranch_scc1 L_kv_done")
        make_srd(a, 28, pDBG, 0, 256)
        a("v_mov_b32 v3, 1")
        if OPT.get('dyn', 0) == 2:
            a(f"s_lshl_b32 s40, s{sXCD}, 2")
            a("s_add_u32 s40, s40, 128")
            a("v_mov_b32 v4, s40")
        else: a("v_mov_b32 v4, 128")
        a("s_mov_b64 exec, 1")
        a("buffer_atomic_add v3, v4, s[28:31], 0 offen sc0")
        a("s_waitcnt vmcnt(0)")
        a("v_add_u32 v3, 1, v3")
        a("ds_write_b32 v23, v3 offset:12")
        a("s_mov_b64 exec, -1")
    a("s_branch L_kv_done")
    a("L_kv:")
    a(f"s_mul_i32 s40, s26, {KV_HEAD}")
    make_srd(a, 28, pWS, "s40", KV_HEAD)
    a(f"v_mul_u32_u24 v6, {LPAIR}, v1")
    a("v_min_u32 v6, %d, v6" % (30*LPAIR))
    for r in range(4): a(f"v_mov_b32 v{8+r}, 0x3f803f80")
    a("ds_write_b128 v6, v[8:11] offset:5120")
    for r in range(4): a(f"v_mov_b32 v{12+r}, 0")
    a("ds_write_b128 v6, v[12:15] offset:5136")
    a("v_mov_b32 v16, 0x3f803f80")
    a("v_mov_b32 v17, 0x3f80")
    a("ds_write_b64 v6, v[16:17] offset:5152")
    a("s_lshr_b32 s41, s26, 3")
    a("s_lshl_b32 s41, s41, 1")
    a(f"s_and_b32 s43, s{sXCD}, 1")
    a("s_lshl_b32 s43, s43, 3")
    a("s_lshl_b32 s42, s27, 1")
    a("v_and_b32 v3, 15, v1")
    a("v_lshrrev_b32 v5, 4, v1")
    a("v_add_u32 v5, 1, v5")
    a("v_and_b32 v4, 7, v1")
    a("v_add_u32 v4, s43, v4")
    a("v_bfe_u32 v6, v1, 3, 1")
    a("v_add_u32 v6, 1, v6")
    a("v_cmp_gt_u32 vcc, 32, v1")
    a("v_and_b32 v7, 1, v1")
    a("v_add_u32 v7, s42, v7")
    a("v_cndmask_b32 v3, v4, v3, vcc")
    a("v_cndmask_b32 v5, v6, v5, vcc")
    a("v_cmp_gt_u32 vcc, 48, v1")
    a("v_add_u32 v6, -48, v1")
    a(f"v_mov_b32 v4, {FL1}")
    a("v_cndmask_b32 v3, v7, v3, vcc")
    a("v_cndmask_b32 v5, 0, v5, vcc")
    a("v_cmp_gt_u32 vcc, 2, v6")
    a("v_cmp_gt_u32 s[46:47], 32, v1")
    a("v_and_b32 v7, 7, v3")
    a("v_lshl_add_u32 v5, v5, 3, v7")
    a("s_or_b64 vcc, vcc, s[46:47]")
    a("v_lshrrev_b32 v3, 3, v3")
    a("v_add_u32 v3, s41, v3")
    a("v_cndmask_b32 v4, v4, 0, vcc")
    a("v_lshl_add_u32 v5, v5, 3, v3")
    a("v_add_u32 v5, v5, v4")
    a("v_lshlrev_b32 v5, 7, v5")
    def poll_once(first=False):
        if first and OPT.get('lf', 1):
            a("s_and_b32 s48, s40, 7")
            a("s_cmp_eq_u32 s48, 0")
            a("s_cselect_b32 exec_lo, -1, 0")
            a("s_cselect_b32 exec_hi, -1, 0xcffff")
        a(f"buffer_load_dwordx2 v[6:7], v5, {sr(sFL,4)}, 0 offen sc1")
        if first and OPT.get('lf', 1): a("s_mov_b64 exec, -1")
        a("s_waitcnt vmcnt(0)")
        a(f"v_cmp_eq_u64 vcc, {sr(sNON,2)}, v[6:7]")
        a("s_sub_u32 s40, s40, 1")
        a("s_cselect_b32 s47, 0xffff, 0")
        a("s_and_b32 s48, vcc_hi, 0xff")
        a("s_lshl_b32 s48, s48, s43")
        a("s_or_b32 s48, s48, vcc_lo")
        a("s_bfe_u32 s49, vcc_hi, 0x80008")
        a("s_lshl_b32 s49, s49, s43")
        a("s_lshr_b32 s45, vcc_lo, 16")
        a("s_or_b32 s45, s45, s49")
        a("s_and_b32 s45, s45, s48")
        a("s_or_b32 s45, s45, s47")
    def pub(off, sreg):
        a(f"v_mov_b32 v4, s{sreg}")
        a(f"ds_write_b32 v23, v4 offset:{off}")
    a(f"s_mov_b32 s40, {POLL_MAX - 1}")
    a("v_mov_b32 v6, 0")
    a("v_mov_b32 v7, 0")
    if OPT.get('padgo'):
        a("L_padgo:")
        a("s_memrealtime s[42:43]")
        a("s_waitcnt lgkmcnt(0)")
        a(f"s_sub_u32 s42, s42, s{sNON}")
        a(f"s_cmp_lt_u32 s42, {OPT['padgo']}")
        a("s_cbranch_scc1 L_padgo")
    a("L_kv_p1:")
    a(f"s_sleep {OPT.get('ksl', 1)}")
    poll_once(True)
    a("s_cmp_lg_u32 s47, 0")
    a("s_cbranch_scc1 L_kv_first")
    a("s_lshr_b32 s48, vcc_hi, 16")
    a("s_lshr_b32 s49, vcc_hi, 18")
    a("s_or_b32 s48, s48, s49")
    a("s_and_b32 s48, s48, 3")
    a("s_cmp_eq_u32 s48, 3")
    a("s_cselect_b32 s48, s45, 0")
    a("s_cmp_eq_u32 s48, 0")
    a("s_cbranch_scc1 L_kv_p1")
    a("L_kv_first:")
    a("s_ff1_i32_b32 s48, s45")
    a("s_add_u32 s49, s48, 1")
    pub(W_GO, 49)
    stamp(a, 7)
    a("s_lshl_b32 s46, 1, s48")
    a(f"s_mul_i32 s48, s48, {4*TKV}")
    a(f"s_add_u32 s48, s48, {2*TKV}")
    for i in range(5):
        a(f"s_mov_b32 m0, {i*1024}")
        a("s_nop 0")
        a("buffer_load_dwordx4 v2, s[28:31], s48 offen sc1 lds")
        if i < 4: a("s_add_u32 s48, s48, 1024")
    a("s_mov_b32 s50, 1")
    a(f"s_mov_b32 s51, {LPAIR}")
    a("L_kv_next:")
    a("s_andn2_b32 s48, s45, s46")
    a("s_cbranch_scc0 L_kv_poll")
    a("s_ff1_i32_b32 s48, s48")
    a("s_bitset1_b32 s46, s48")
    a(f"s_mul_i32 s48, s48, {4*TKV}")
    for i in range(10):
        a(f"s_add_u32 m0, s51, {i*1024 + (64 if i >= 5 else 0)}")
        if i: a("s_add_u32 s48, s48, 1024")
        else: a("s_nop 0")
        a("buffer_load_dwordx4 v2, s[28:31], s48 offen sc1 lds")
    a(f"s_add_u32 s51, s51, {2*LPAIR}")
    a("s_cmp_eq_u32 s50, 1")
    a("s_cbranch_scc0 L_kv_w20")
    a("s_waitcnt vmcnt(10)")
    pub(W_PROG, 50)
    a("s_mov_b32 s50, 2")
    a("s_branch L_kv_next")
    a("L_kv_w20:")
    a("s_waitcnt vmcnt(20)")
    a("s_sub_u32 s49, s50, 1")
    pub(W_PROG, 49)
    a("s_add_u32 s50, s50, 1")
    a("s_branch L_kv_next")
    a("L_kv_poll:")
    a("s_waitcnt vmcnt(0)")
    pub(W_PROG, 50)
    a("s_cmp_eq_u32 s50, 16")
    a("s_cbranch_scc1 L_kv_done")
    poll_once()
    a("s_branch L_kv_next")
    a("L_kv_done:")
    if OPT.get('f2s', 16):
        a("s_branch L_all0")
        a("L_all:")
        a(f"s_sleep {OPT.get('wsl', 16)}")
        a("L_all0:")
        a(f"ds_read_b32 v3, v23 offset:{W_PROG}")
        a("s_waitcnt lgkmcnt(0)")
        a("v_readfirstlane_b32 s41, v3")
        a("s_nop 0")
        a(f"s_cmp_lt_u32 s41, {OPT.get('f2s', 16)}")
        a("s_cbranch_scc1 L_all")
    stamp(a, 8)
    a("v_lshlrev_b32 v5, 7, v1")
    a(f"v_add_u32 v5, {192*128}, v5")
    poll(a, 5, 6, sleep=4)
    a(f"s_setprio {OPT.get('pf2', 3)}")
    if OPT.get('dyn', 0):
        a("s_branch L_item0")
        a("L_item:")
        a("s_sleep 8")
        a("L_item0:")
        a("ds_read_b32 v3, v23 offset:12")
        a("s_waitcnt lgkmcnt(0)")
        a("v_readfirstlane_b32 s40, v3")
        a("s_nop 0")
        a("s_cmp_eq_u32 s40, 0")
        a("s_cbranch_scc1 L_item")
        a("s_sub_u32 s40, s40, 1")
        if OPT.get('dyn', 0) == 2:
            a("s_cmp_ge_u32 s40, 24")
            a("s_cbranch_scc1 L_wo")
            a(f"s_mul_i32 s41, s{sXCD}, 24")
            a("s_add_u32 s40, s40, s41")
    else:
        a(f"s_sub_u32 s40, 31, s{sSLOT}")
        a("s_cmp_ge_u32 s40, 24")
        a("s_cbranch_scc1 L_wo")
        a(f"s_mul_i32 s41, s{sXCD}, 24")
        a("s_add_u32 s40, s40, s41")
    a("s_cmp_ge_u32 s40, %d" % (0 if OPT.get('nof2') else 187))
    a("s_cbranch_scc1 L_wo")
    a("s_mul_i32 s41, s40, 373")
    a("s_lshr_b32 s41, s41, 12")
    a("s_mul_i32 s42, s41, 11")
    a("s_sub_u32 s42, s40, s42")
    a("s_lshl_b32 s41, s41, 1")
    a("s_cmp_ge_u32 s41, 18")
    a("s_cselect_b32 s43, 17, 0")
    a("s_sub_u32 s41, s41, s43")
    a("s_and_b32 s43, s41, 1")
    a("s_lshl_b32 s45, s44, 4")
    a("s_min_u32 s46, s44, 1")
    a("s_add_u32 s46, s46, s45")
    a("s_mul_i32 s47, s41, 65")
    a("s_add_u32 s47, s47, s46")
    a("s_lshl_b32 s47, s47, 10")
    a(f"s_add_u32 s47, s47, {SEQ_OFF}")
    make_srd(a, 28, pWS, "s47", 17*1024)
    a("s_and_b32 s47, s44, 2")
    a("s_add_u32 s47, s47, s43")
    a("s_mul_i32 s48, s47, 11")
    a("s_add_u32 s48, s48, s42")
    a("s_mul_i32 s48, s48, 33")
    a("s_and_b32 s45, s45, 16")
    a("s_add_u32 s48, s48, s45")
    a("s_lshl_b32 s48, s48, 10")
    a(f"s_add_u32 s48, s48, {AB_OFF}")
    make_srd(a, 32, pWS, "s48", 33*1024)
    make_srd(a, 36, pOUT, 0, OUT_SIZE)
    FB = 64; AC = 8
    a("s_or_b32 s47, s44, s43")
    a("s_cmp_lg_u32 s47, 0")
    a("s_cbranch_scc1 L_f2_nox")
    a(f"s_mov_b32 s49, {16*1024}")
    a("buffer_load_dwordx4 v[24:27], v2, s[28:31], s49 offen sc1")
    a(f"s_mov_b32 s49, {32*1024}")
    a("buffer_load_dwordx4 v[28:31], v2, s[32:35], s49 offen sc1")
    a("L_f2_nox:")
    for k in range(16):
        b = FB + k * 8
        if k % 4 == 0: a(f"s_mov_b32 s49, {(k//4)*4096}")
        a(f"buffer_load_dwordx4 {vr(b,4)}, v2, s[28:31], s49 offen offset:{(k%4)*1024} sc1")
        a(f"buffer_load_dwordx4 {vr(b+4,4)}, v2, s[32:35], s49 offen offset:{(k%4)*1024} sc1")
    stamp(a, 9)
    a("v_and_b32 v5, 31, v1")
    a("v_lshrrev_b32 v4, 5, v1")
    a("s_lshr_b32 s48, s41, 1")
    a("s_lshl_b32 s48, s48, 6")
    a("s_add_u32 s48, s48, s43")
    a("s_lshl_b32 s49, s44, 4")
    a("s_add_u32 s48, s48, s49")
    a("v_lshl_add_u32 v47, v4, 3, s48")
    a("v_mul_u32_u24 v47, 2560, v47")
    a("s_cmp_ge_u32 s42, 6")
    a("s_cselect_b32 s48, 383, 0")
    a("s_lshl_b32 s49, s42, 6")
    a("s_sub_u32 s48, s49, s48")
    a("v_lshl_add_u32 v5, v5, 1, s48")
    a(f"v_mov_b32 v46, {HUGE}")
    a("v_lshlrev_b32 v6, 1, v5")
    a("v_add_u32 v40, 1280, v6")
    a("v_cmp_ge_u32 vcc, 320, v5")
    a("v_sub_u32 v41, 2560, v6")
    a("v_add_u32 v6, -1, v5")
    a("v_cndmask_b32 v40, v46, v40, vcc")
    a("v_cmp_gt_u32 vcc, 319, v6")
    a(f"v_add_u32 v33, {(2048-6)*2560}, v40")
    a("v_sub_u32 v33, v33, v47")
    a("v_cndmask_b32 v41, v46, v41, vcc")
    a("v_add_u32 v32, v47, v40")
    a("v_add_u32 v36, v47, v41")
    a(f"v_add_u32 v37, {(2048-6)*2560}, v41")
    a("v_sub_u32 v37, v37, v47")
    a(f"v_subrev_u32 v34, {1024*2560}, v33")
    a(f"v_subrev_u32 v38, {1024*2560}, v37")
    a(f"v_add_u32 v35, {1024*2560}, v32")
    a(f"v_add_u32 v39, {1024*2560}, v36")
    a(f"v_add_u32 v42, {3*5120}, v33")
    a(f"v_add_u32 v43, {3*5120}, v37")
    a(f"v_mov_b32 v3, {LDS_PROG}")
    a("s_lshl_b32 s48, s44, 10")
    a("v_add_u32 v6, s48, v2")
    a("s_add_u32 s49, s48, 12288")
    a("s_lshl_b32 s50, s44, 12")
    a("s_add_u32 s51, s50, 3072")
    a("s_cmp_eq_u32 s44, 3")
    a(f"s_cmov_b32 s49, {LDS_PROG + 1024}")
    a(f"s_cmov_b32 s51, {LDS_PROG + 1024}")
    a("v_add_u32 v7, s49, v2")
    a("v_add_u32 v44, s50, v2")
    a("v_add_u32 v45, s51, v2")
    a("s_lshl_b32 s49, s44, 2")
    a("v_add_u32 v5, s49, v3")
    a(f"s_setprio {OPT.get('pmf', 1)}")
    for k in range(16):
        a(f"s_waitcnt vmcnt({2*(15-k)})")
        b = FB + k * 8
        d = vr(AC, 16)
        a(f"v_mfma_f32_32x32x16_bf16 {d}, {vr(b,4)}, {vr(b+4,4)}, {'0' if k == 0 else d}")
    a("s_cmp_lg_u32 s47, 0")
    a("s_cbranch_scc1 L_f2_nox2")
    a(f"v_mfma_f32_32x32x16_bf16 {vr(AC,16)}, v[24:27], v[28:31], {vr(AC,16)}")
    a("L_f2_nox2:")
    a(f"s_setprio {OPT.get('pep', 3)}")
    def spin_min(lbl, off, sl):
        a(f"{lbl}:")
        a(f"ds_read_b128 v[48:51], v3 offset:{off}")
        a("s_waitcnt lgkmcnt(0)")
        a("v_min3_u32 v48, v48, v49, v50")
        a("v_min_u32 v48, v48, v51")
        a("s_nop 0")
        a("v_readfirstlane_b32 s48, v48")
        a("s_nop 0")
        a("s_cmp_lg_u32 s48, 0")
        a(f"s_cbranch_scc1 {lbl}_ok")
        a(f"s_sleep {sl}")
        a(f"s_branch {lbl}")
        a(f"{lbl}_ok:")
    spin_min("L_f2_dead", W_PASS, 16)
    a("s_nop 3")
    for j in range(3): a(f"ds_write_b128 v6, {vr(AC+4*j,4)} offset:{j*4096}")
    a(f"ds_write_b128 v7, {vr(AC+12,4)}")
    a(f"ds_write_b32 v5, v3 offset:{W_XCH}")
    spin_min("L_f2_wait", W_XCH, OPT.get('xsl', 8))
    for i in range(3): a(f"ds_read_b128 {vr(8+4*i,4)}, v44 offset:{i*1024}")
    a("ds_read_b128 v[20:23], v45")
    a("s_waitcnt lgkmcnt(0)")
    ng = "neg_lo:[0,1] neg_hi:[0,1]"
    for r in (0, 2):
        a(f"v_pk_add_f32 {vr(48+r,2)}, {vr(8+r,2)}, {vr(12+r,2)}")
        a(f"v_pk_add_f32 {vr(52+r,2)}, {vr(8+r,2)}, {vr(12+r,2)} {ng}")
        a(f"v_pk_add_f32 {vr(56+r,2)}, {vr(20+r,2)}, {vr(16+r,2)}")
        a(f"v_pk_add_f32 {vr(60+r,2)}, {vr(20+r,2)}, {vr(16+r,2)} {ng}")
    for r in (0, 2):
        a(f"v_pk_add_f32 {vr(8+r,2)}, {vr(48+r,2)}, {vr(56+r,2)} {ng}")
        a(f"v_pk_add_f32 {vr(12+r,2)}, {vr(48+r,2)}, {vr(56+r,2)}")
        a(f"v_pk_add_f32 {vr(16+r,2)}, {vr(52+r,2)}, {vr(60+r,2)} {ng}")
        a(f"v_pk_add_f32 {vr(20+r,2)}, {vr(52+r,2)}, {vr(60+r,2)}")
    for k in range(8): a(f"v_cvt_pk_bf16_f32 v{48+k}, v{8+2*k}, v{9+2*k}")
    a("s_cmp_eq_u32 s41, 16")
    a("s_cbranch_scc1 L_f2_nyq")
    for i in range(4):
        st = "buffer_store_short_d16_hi" if i & 1 else "buffer_store_short"
        m1, p1, m2, p2 = (48 + 2*k + (i >> 1) for k in range(4))
        a(f"s_mov_b32 s47, {i*5120}")
        a(f"s_mov_b32 s48, {(3-i)*5120}")
        for val, adr, so in [(m1, 32, "s47"), (p1, 36, "s47"), (p2, 35, "s47"), (m2, 39, "s47"), (m2, 34, "s48"), (p2, 38, "s48"),
                             (p1, 33 if i else 42, "s48" if i else "0"), (m1, 37 if i else 43, "s48" if i else "0")]:
            a(f"{st} v{val}, v{adr}, s[36:39], {so} offen{FLF()}")
    a("s_branch L_wo")
    a("L_f2_nyq:")
    a("s_cmp_lg_u32 s44, 0")
    a("s_cbranch_scc1 L_wo")
    a("s_mov_b32 exec_hi, 0")
    for val, adr in [(48, 32), (50, 36), (50, 42), (48, 43)]:
        a(f"buffer_store_short v{val}, v{adr}, s[36:39], 0 offen{FLF()}")
    a("s_mov_b64 exec, -1")
    a("L_wo:")
    a(f"s_setprio {OPT.get('pwo', 3)}")
    stamp(a, 10)
    a("s_and_b32 s40, s26, 3")
    a("s_lshl_b32 s40, s40, 2")
    a("s_add_u32 s40, s40, s44")
    a(f"s_mul_i32 s40, s40, {50*1024}")
    a(f"s_add_u32 s40, s40, {WO_OFF}")
    make_srd(a, 28, pWS, "s40", 50*1024)
    a("s_waitcnt vmcnt(0)")
    for k in range(OPT.get('nwo', 50)):
        if k % 4 == 0: a(f"s_mov_b32 s49, {(k//4)*4096}")
        a(f"buffer_load_dwordx4 {vr(56+4*k,4)}, v2, s[28:31], s49 offen offset:{(k%4)*1024} sc1")

def tail(a):
    PADS = OPT.get('pads', 1)
    padn = [0]
    def pad(chain, last=None):
        if not PADS: return
        a(f"L_pad_{chain}_{padn[0]}:")
        padn[0] += 1
        a(f"s_cbranch_vccnz {last or f'L_pad_{chain}_{padn[0]}'}")
    a("L_B_done:")
    a("s_lshr_b32 s40, s26, 2")
    a("s_lshl_b32 s41, s27, 3")
    a("s_add_u32 s41, s41, s40")
    a(f"s_mul_i32 s42, s41, {32*1280}")
    a(f"s_add_u32 s42, s42, {O_OFF}")
    make_srd(a, 28, pWS, "s42", 32*1280)
    a("v_and_b32 v4, 7, v1")
    a("v_bfe_u32 v5, v1, 3, 2")
    a("v_lshlrev_b32 v5, 1, v5")
    a("v_lshl_add_u32 v4, v4, 3, v5")
    a("s_and_b32 s42, s27, 3")
    a("s_lshl_b32 s42, s42, 6")
    a("s_lshr_b32 s43, s27, 2")
    a("s_add_u32 s42, s42, s43")
    a("s_lshl_b32 s42, s42, 2")
    a("s_lshr_b32 s40, s40, 1")
    a("s_add_u32 s42, s42, s40")
    a(f"s_add_u32 s42, s42, {FB}")
    a("v_lshl_add_u32 v4, v4, 2, s42")
    a("v_lshlrev_b32 v4, 7, v4")
    a("v_mov_b32 v8, v4")
    if OPT.get('ppre', 1): a(f"buffer_load_dwordx2 v[10:11], v8, {sr(sFL,4)}, 0 offen sc1")
    a("v_and_b32 v3, 31, v1")
    a("v_lshrrev_b32 v4, 5, v1")
    a("v_mul_u32_u24 v5, 2560, v4")
    a("v_lshl_add_u32 v5, v3, 3, v5")
    a("v_add_u32 v5, 1024, v5")
    make_srd(a, 32, pOUT, 0, OUT_SIZE)
    a("s_lshl_b32 s41, s41, 5")
    a("v_and_b32 v6, 15, v1")
    a("v_add_u32 v6, s41, v6")
    a("v_mul_u32_u24 v6, 2560, v6")
    a("v_bfe_u32 v9, v1, 4, 1")
    a("v_lshl_add_u32 v6, v9, 5, v6")
    a("v_lshl_add_u32 v6, v4, 4, v6")
    a("s_lshl_b32 s43, s44, 3")
    a("v_lshrrev_b32 v9, 3, v1")
    a("v_add_u32 v9, s43, v9")
    a("v_add_u32 v0, s41, v9")
    a("v_mul_u32_u24 v0, 2560, v0")
    a("v_and_b32 v12, 7, v1")
    a("v_lshl_add_u32 v0, v12, 3, v0")
    a("v_lshlrev_b32 v12, 9, v12")
    a("v_lshl_add_u32 v12, v9, 4, v12")
    a("s_and_b32 s42, s26, 3")
    a("s_mul_i32 s42, s42, 320")
    a("s_mul_i32 s43, s44, 12800")
    a("v_add_u32 v7, s43, v2")
    a("s_lshl_b32 s43, s44, 12")
    a("s_add_u32 s43, s43, 40960")
    a("v_add_u32 v3, s43, v2")
    a("v_add_u32 v1, 40960, v12")
    a("s_mov_b32 s45, s42")
    a("s_lshl_b32 s43, s44, 6")
    a("s_add_u32 s43, s43, s42")
    a(f"s_add_u32 s46, s43, {16*2560}")
    if PADS:
        a("s_mov_b64 vcc, -1")
        a("s_nop 0")
        a("s_branch L_pad_a_0")
        a("L_pad_ret:")
        a("s_setprio 3")
    a("s_waitcnt vmcnt(0)")
    stamp(a, 12)
    a("s_barrier")
    stamp(a, 1)
    if not OPT.get('apoll', 0):
        a("s_cmp_lg_u32 s44, 0")
        a("s_cbranch_scc1 L_onep")
        if OPT.get('pp', 1) > 1: poll_piped(a, 8, 10, OPT['pp'])
        else: poll(a, 8, 10, sleep=OPT.get('sl', 0), shrink=OPT.get('shr', 1))
        a("L_onep:")
    a("s_barrier")
    stamp(a, 13)
    if PADS: a("s_mov_b64 vcc, 0")
    a("s_lshl_b32 s40, s44, 10")
    for j in range(10):
        if j % 3 == 0: pad('a')
        a("s_mov_b32 m0, s40")
        a("s_nop 0")
        a("buffer_load_dwordx4 v2, s[28:31], s40 offen sc1 lds")
        if j < 9: a("s_add_u32 s40, s40, 4096")
    a("s_waitcnt vmcnt(%d)" % (6 if OPT.get('prog', 1) else 0))
    a("s_barrier")
    stamp(a, 14)
    if lib.STAMP: a("s_waitcnt lgkmcnt(0)")
    A5, AM, OB = 8, 24, 40
    def rd(buf, kap, base=None):
        b = OB + 4*buf
        if base is not None: return f"ds_read_b128 {vr(b,4)}, v{base} offset:{kap*1280}"
        if kap < 32: return f"ds_read_b128 {vr(b,4)}, v2 offset:{kap*1280}"
        o = (kap - 32) * 5120 // 8
        return None
    def rd_main(buf, kap):
        b = OB + 4*buf
        if kap < 32: return [f"ds_read_b128 {vr(b,4)}, v2 offset:{kap*1280}"]
        g = kap - 32
        return [f"ds_read_b64 {vr(b,2)}, v5 offset:{g*5120}", f"ds_read_b64 {vr(b+2,2)}, v5 offset:{g*5120+1280}"]
    PG = 10 if OPT.get('prog', 1) else 0
    def stream(steps, chain):
        padn[0] = 0
        n = len(steps); cnt = [0]*n
        PF = 3
        for k in range(PF):
            r = steps[k][0](k % 4); cnt[k] = len(r)
            for x in r: a(x)
        for k in range(n):
            out = sum(cnt[k+1:min(n, k+PF)])
            a(f"s_waitcnt lgkmcnt({out})")
            d = vr(steps[k][1], 16)
            a(f"v_mfma_f32_32x32x16_bf16 {d}, {vr(steps[k][2],4)}, {vr(OB+4*(k%4),4)}, {'0' if steps[k][3] else d}")
            if k % 2 == 0 or k in (PG + 13, 32, 38, 40): pad(chain, "L_pad_z_0" if k == n - 2 else None)
            if PG and k + PF == PG:
                a("s_waitcnt vmcnt(0)")
                a("s_barrier")
            if k + PF < n:
                r = steps[k+PF][0]((k+PF) % 4); cnt[k+PF] = len(r)
                for x in r: a(x)
            if k == PG + 13:
                for j in range(4): a(f"ds_write_b128 v3, {vr(A5+4*j,4)} offset:{j*1024}")
                cnt[k+PF] += 4
            if k == 32:
                a("s_barrier")
                for i in range(4): a(f"ds_read_b128 {vr(A5+4*i,4)}, v1 offset:{i*4096}")
                cnt[k+PF] += 4
            if k == 38:
                for i in range(1, 4):
                    a(f"v_pk_add_f32 {vr(A5,2)}, {vr(A5,2)}, {vr(A5+4*i,2)}")
                    a(f"v_pk_add_f32 {vr(A5+2,2)}, {vr(A5+2,2)}, {vr(A5+4*i+2,2)}")
            if k == 40:
                a(f"v_cvt_pk_bf16_f32 v{A5}, v{A5}, v{A5+1}")
                a(f"v_cvt_pk_bf16_f32 v{A5+1}, v{A5+2}, v{A5+3}")
                a(f"buffer_store_dwordx2 {vr(A5,2)}, v0, s[32:35], s45 offen offset:256{FLP()}")
    main = [((lambda kap: lambda buf: rd_main(buf, kap))(kap), AM, 56 + 4*(10+kap), kap == 0) for kap in range(40)]
    if PADS:
        a(f"L_pad_a_{padn[0]}:")
        a("s_cmp_eq_u32 s44, 3")
        a("s_cbranch_vccz L_nopad")
        a("s_cbranch_scc1 L_pad_c_0")
        a("s_branch L_pad_b_0")
        a("L_nopad:")
    a("s_cmp_eq_u32 s44, 3")
    a("s_cbranch_scc1 L_tail3")
    q5 = [((lambda i: lambda buf: [f"ds_read_b128 {vr(OB+4*buf,4)}, v7 offset:{i*1280}"])(i), A5, 56 + 4*i, i == 0) for i in range(10)]
    stream(main[:PG] + q5 + main[PG:], 'b')
    a("s_branch L_tail_join")
    a("L_tail3:")
    q5 = [((lambda i: lambda buf: rd_main(buf, 30 + i))(i), A5, 56 + 4*i, i == 0) for i in range(10)]
    stream(main[:PG] + q5 + main[PG:], 'c')
    a("L_tail_join:")
    stamp(a, 11)
    padn[0] = 0
    pad('z')
    a("s_nop 11")
    for r in range(8): a(f"v_cvt_pk_bf16_f32 v{AM+r}, v{AM+2*r}, v{AM+2*r+1}")
    pad('z', "L_pad_ret")
    a("s_nop 1")
    for h2 in range(2):
        a(f"v_permlane32_swap_b32 v{AM+4*h2}, v{AM+4*h2+2}")
        a(f"v_permlane32_swap_b32 v{AM+4*h2+1}, v{AM+4*h2+3}")
    a("s_nop 0")
    for r in range(4): a(f"v_permlane16_swap_b32 v{AM+r}, v{AM+4+r}")
    for h2 in range(2):
        a(f"buffer_store_dwordx4 {vr(AM+4*h2,4)}, v6, s[32:35], s{43+3*h2} offen{FLP()}")
    a("L_end:")
    if OPT.get('pad'):
        a("L_pad:")
        a("s_memrealtime s[40:41]")
        a("s_waitcnt lgkmcnt(0)")
        a(f"s_sub_u32 s40, s40, s{sNON}")
        a(f"s_cmp_lt_u32 s40, {OPT['pad']}")
        a("s_cbranch_scc1 L_pad")
    if lib.STAMP:
        a("s_waitcnt vmcnt(0)")
        stamp(a, 15); stamp_real(a, 17)
        stamp_flush(a, 18, pWS, sWAVE, 0)
    a("L_exit:")
    a("s_endpgm")

KNAME = "concat_heads__mha_block__spectral_fnet__prompt_kernel"
def kernel(a):
    kernel_header(a, KNAME)
    if OPT.get('early'): a("s_memrealtime s[98:99]")
    a("s_cmp_ge_u32 s2, 256")
    a("s_cbranch_scc1 L_exit")
    if lib.STAMP:
        for i in range(18): a(f"s_mov_b32 s{60+2*i}, 0")
    stamp(a, 0); stamp_real(a, 16)
    a("s_load_dwordx8 s[4:11], s[0:1], 0")
    a("s_load_dwordx4 s[12:15], s[0:1], 64")
    a("s_load_dwordx2 s[16:17], s[0:1], 80")
    a("v_lshrrev_b32 v1, 6, v0")
    a(f"s_and_b32 s{sXCD}, s2, 7")
    a(f"v_readfirstlane_b32 s{sWAVE}, v1")
    a(f"s_lshr_b32 s{sSLOT}, s2, 3")
    a("v_and_b32 v1, 63, v0")
    a(f"s_and_b32 s26, s{sXCD}, 1")
    a("s_lshl_b32 s26, s26, 3")
    a(f"s_and_b32 s27, s{sSLOT}, 7")
    a("s_add_u32 s26, s26, s27")
    a(f"s_lshr_b32 s27, s{sSLOT}, 3")
    a("s_lshl_b32 s27, s27, 2")
    a(f"s_lshr_b32 s40, s{sXCD}, 1")
    a("s_add_u32 s27, s27, s40")
    a(f"s_cmp_ge_u32 s{sSLOT}, 24")
    a("s_cselect_b32 s40, 0, s%d" % sWAVE)
    a("s_cmp_lt_u32 s40, 4")
    a("s_cbranch_scc1 L_other")
    gemm_loader(a)
    a("L_other:")
    a("s_waitcnt lgkmcnt(0)")
    make_srd(a, sFL, pWS, FL_OFF, FL_SIZE)
    a(f"s_cmp_lg_u32 s{sWAVE}, 0")
    a("s_cbranch_scc1 L_no_init")
    a(f"v_mov_b32 v2, {LDS_PROG}")
    a("v_mov_b32 v4, 0")
    a("v_mov_b32 v5, 0")
    for i in range(8): a(f"ds_write_b64 v2, v[4:5] offset:{8*i}")
    a("s_cmp_lg_u32 s2, 0")
    a("s_cbranch_scc1 L_no_nonce")
    if OPT.get('early'): a("s_mov_b64 s[40:41], s[98:99]")
    else: a("s_memrealtime s[40:41]")
    make_srd(a, 28, pDBG, 0, 256)
    a("s_waitcnt lgkmcnt(0)")
    a("s_or_b32 s40, s40, 1")
    a("v_mov_b32 v2, s40")
    a("v_mov_b32 v3, s41")
    a("buffer_store_dwordx2 v[2:3], v4, s[28:31], 0 offen sc1")
    a("L_no_nonce:")
    a("s_waitcnt lgkmcnt(0)")
    a("L_no_init:")
    a(f"s_cmp_ge_u32 s{sSLOT}, 24")
    a("s_cbranch_scc1 L_prep")
    if OPT.get('touch', 1):
        a(f"s_cmp_lg_u32 s{sWAVE}, 1")
        a("s_cbranch_scc1 L_no_code")
        a("s_getpc_b64 s[40:41]")
        a("L_pc:")
        a(f"s_sub_u32 s40, s40, L_pc-{KNAME}")
        a("s_subb_u32 s41, s41, 0")
        a(f"s_mul_i32 s42, s{sSLOT}, 1792")
        a("v_lshlrev_b32 v2, 4, v1")
        a("v_add_u32 v2, s42, v2")
        a(f"v_min_u32 v2, L_exit-{KNAME}-1024-16, v2")
        for i in range(2): a(f"global_load_dwordx4 v[250:253], v2, s[40:41] offset:{i*1024}")
        a("L_no_code:")
    gemm_compute(a)
    prep(a)
    a_done(a)
    attention(a)
    aux(a)
    tail(a)
    return kernel_desc(KNAME, 256, 102)

HEADER = open('concat_heads__mha_block__spectral_fnet__prompt.s.ref').read().split("; Override")[0]
def main(out):
    a = Asm()
    a('.amdgcn_target "amdgcn-amd-amdhsa--gfx950"')
    a(".text")
    d = kernel(a)
    txt = HEADER + "; @launch grid=(256,1,1) block=(512,1,1) lds=163840\n" + a.text() + '.section .rodata,"a"\n.p2align 6\n' + d
    open(out, "w").write(txt)

if __name__ == "__main__":
    for x in sys.argv[2:]:
        if x == "stamp": lib.STAMP = True
        elif x == "rt": lib.STAMP = True; lib.STAMPRT = True
        elif x == "gst": lib.STAMP = True; lib.STAMPSET = 1; lib.STAMPRT = True
        elif x == "cst": lib.STAMP = True; lib.STAMPSET = 2
        else:
            k, _, v = x.partition("=")
            OPT[k] = int(v) if v else 1
    main(sys.argv[1] if len(sys.argv) > 1 else "v43.s")
```

```python
import sys, struct
from lib import *
import lib

TKV = 2560; KV_HEAD = 64*TKV; KV_OFF = 0; KV_SIZE = 32*KV_HEAD
TQ = 1280; Q_HEAD = 64*TQ; Q_OFF = KV_SIZE; Q_SIZE = 32*Q_HEAD
O_OFF = Q_OFF + Q_SIZE; O_SIZE = 64*32*1280
SEQ_OFF = O_OFF + O_SIZE; SEQ_SIZE = 17*65*1024
AB_OFF = SEQ_OFF + SEQ_SIZE; AB_SIZE = 4*11*33*1024
WO_OFF = AB_OFF + AB_SIZE; WO_SIZE = 16*50*1024
FL_OFF = 16*1024*1024; FL_SIZE = 1536*128
FA, FB, FL1 = 0, 256, 1280
X_SIZE = 2048*1280; OUT_SIZE = 2048*2560
HUGE = 0x40000000
QSCALE = (20 ** -0.5) * 1.4426950408889634
NDMA = 155; LPAIR = 5184
LDS_PROG = 31*LPAIR
def lds_tile(t): return ((t-2)>>1)*LPAIR + ((t-2)&1)*TKV
def need(tile): return ((tile-1)*TKV + 4095)//4096
NEED = [need(4), need(7), need(15), need(23), 39]
POLL_MAX = 200000
def f32bits(x): return struct.unpack('<I', struct.pack('<f', x))[0]
OPT = {}
FLS = ['', ' sc1', ' nt', ' sc0 sc1', ' sc1 nt']
def FLP(): return FLS[OPT.get('flp', 1)]
def FLF(): return FLS[OPT.get('flf', 1)]

sWAVE = 3
pX, pW, pWO, pBX, pOUT, pDBG, pWS = 4, 6, 8, 10, 12, 14, 16
sNON = 18
sFL = 20
sXCD, sSLOT = 24, 25
STG = 36864
NS = 4

def poll(a, vaddr, vtmp, cnt=40, sleep=1, shrink=False):
    l = a.label("L_poll"); d = a.label("L_pollok")
    a(f"s_mov_b32 s{cnt}, {POLL_MAX}")
    a(f"{l}:")
    a(f"buffer_load_dwordx2 {vr(vtmp,2)}, v{vaddr}, {sr(sFL,4)}, 0 offen sc1")
    a("s_waitcnt vmcnt(0)")
    a(f"v_cmp_ne_u64 vcc, {sr(sNON,2)}, {vr(vtmp,2)}")
    a(f"s_sub_u32 s{cnt}, s{cnt}, 1")
    a(f"s_cbranch_vccz {d}")
    a(f"s_cmp_eq_u32 s{cnt}, 0")
    a(f"s_cbranch_scc1 {d}")
    if sleep: a(f"s_sleep {sleep}")
    if shrink: a("s_mov_b64 exec, vcc")
    a(f"s_branch {l}")
    a(f"{d}:")
    if shrink: a("s_mov_b64 exec, -1")

def poll_piped(a, vaddr, vtmp, depth, cnt=40):
    l = a.label("L_ppoll"); d = a.label("L_ppollok")
    a(f"s_mov_b32 s{cnt}, {POLL_MAX}")
    for i in range(depth - 1):
        a(f"buffer_load_dwordx2 {vr(vtmp+2*i,2)}, v{vaddr}, {sr(sFL,4)}, 0 offen sc1")
        a(f"s_sleep {OPT.get('pgap', 4)}")
    a(f"{l}:")
    for i in range(depth):
        a(f"buffer_load_dwordx2 {vr(vtmp+2*((i+depth-1)%depth),2)}, v{vaddr}, {sr(sFL,4)}, 0 offen sc1")
        a(f"s_waitcnt vmcnt({depth-1})")
        a(f"v_cmp_ne_u64 vcc, {sr(sNON,2)}, {vr(vtmp+2*i,2)}")
        a(f"s_sub_u32 s{cnt}, s{cnt}, 1")
        a(f"s_cbranch_vccz {d}")
        a(f"s_cbranch_scc1 {d}")
        a("s_mov_b64 exec, vcc")
    a(f"s_branch {l}")
    a(f"{d}:")
    a("s_mov_b64 exec, -1")

def prod_flags(a, vd, vt):
    a("s_lshr_b32 s40, s26, 3")
    a(f"v_and_b32 v{vd}, 7, v1")
    a(f"v_bfe_u32 v{vt}, v1, 3, 2")
    a(f"v_lshlrev_b32 v{vt}, 1, v{vt}")
    a(f"v_lshl_add_u32 v{vd}, v{vd}, 3, v{vt}")
    a("s_and_b32 s42, s27, 3")
    a("s_lshl_b32 s42, s42, 6")
    a("s_lshr_b32 s43, s27, 2")
    a("s_add_u32 s42, s42, s43")
    a("s_lshl_b32 s42, s42, 2")
    a("s_add_u32 s42, s42, s40")
    a(f"s_add_u32 s42, s42, {FB}")
    a(f"v_lshl_add_u32 v{vd}, v{vd}, 2, s42")
    a(f"v_lshlrev_b32 v{vd}, 7, v{vd}")

def get_nonce(a, vt, srd=28, cnt=40):
    make_srd(a, srd, pDBG, 0, 256)
    l = a.label("L_non"); d = a.label("L_nonok")
    a(f"v_mov_b32 v{vt}, 0")
    a(f"s_mov_b32 s{cnt}, {POLL_MAX}")
    a(f"{l}:")
    a(f"buffer_load_dwordx2 {vr(vt+2,2)}, v{vt}, {sr(srd,4)}, 0 offen sc1")
    a("s_waitcnt vmcnt(0)")
    a(f"v_readfirstlane_b32 s{sNON}, v{vt+2}")
    a(f"v_readfirstlane_b32 s{sNON+1}, v{vt+3}")
    a(f"s_sub_u32 s{cnt}, s{cnt}, 1")
    a(f"s_cmp_lg_u32 s{sNON}, 0")
    a(f"s_cbranch_scc1 {d}")
    a(f"s_cmp_eq_u32 s{cnt}, 0")
    a(f"s_cbranch_scc1 {d}")
    a("s_sleep 2")
    a(f"s_branch {l}")
    a(f"{d}:")

def set_flag(a, sidx, vt, also=None):
    for i in range(4): a(f"v_mov_b32 v{vt+i}, s{sNON+(i&1)}")
    a(f"v_lshlrev_b32 v{vt+4}, 4, v1")
    a("s_mov_b64 exec, 0xff")
    if also is not None:
        a(f"s_add_u32 s41, s{sidx}, {also}")
        a(f"buffer_store_dwordx4 {vr(vt,4)}, v{vt+4}, {sr(sFL,4)}, s41 offen")
    a(f"buffer_store_dwordx4 {vr(vt,4)}, v{vt+4}, {sr(sFL,4)}, s{sidx} offen sc1")
    a("s_mov_b64 exec, -1")

def gemm_loader(a):
    sA, sB = 28, 32
    a("L_loader:")
    a(f"s_sub_u32 s44, s{sWAVE}, 4")
    a("v_lshrrev_b32 v2, 3, v1")
    a("s_lshl_b32 s40, s44, 3")
    a("v_add_u32 v2, s40, v2")
    a("v_mul_u32_u24 v2, 1280, v2")
    a("v_lshrrev_b32 v3, 4, v1")
    a("s_and_b32 s40, s44, 1")
    a("s_lshl_b32 s40, s40, 2")
    a("v_or_b32 v4, s40, v3")
    a("v_and_b32 v5, 7, v1")
    a("v_xor_b32 v4, v4, v5")
    a("v_lshl_add_u32 v10, v4, 4, v2")
    a("s_lshl_b32 s45, s44, 10")
    a(f"s_lshr_b32 s40, s{sSLOT}, 3")
    a(f"s_add_u32 s40, s40, s{sSLOT}")
    a("s_and_b32 s40, s40, 1")
    a(f"s_mul_i32 s40, s40, {OPT.get('pstep', 6)}")
    a(f"s_mul_i32 s41, s{sXCD}, {OPT.get('rc', 3)}")
    a("s_add_u32 s40, s40, s41")
    a("s_mul_i32 s41, s40, 6554")
    a("s_lshr_b32 s41, s41, 16")
    a("s_mul_i32 s41, s41, 10")
    a("s_sub_u32 s47, s40, s41")
    a("s_lshl_b32 s40, s44, 4")
    a("v_lshrrev_b32 v2, 2, v1")
    a("v_add_u32 v2, s40, v2")
    a("v_mul_u32_u24 v2, 3840, v2")
    a("v_and_b32 v3, 3, v1")
    a("v_lshrrev_b32 v4, 5, v1")
    a("v_lshlrev_b32 v4, 1, v4")
    a("v_xor_b32 v3, v3, v4")
    a("v_lshl_add_u32 v11, v3, 4, v2")
    a("s_mul_i32 s46, s44, 5120")
    a("s_mul_i32 s50, s26, 163840")
    a("s_mul_i32 s51, s27, 320")
    a("s_sub_u32 s52, 2457600, s51")
    a("s_waitcnt lgkmcnt(0)")
    make_srd(a, sA, pX, "s50", 163840)
    def issue_x(c):
        sl = c % NS
        a("s_lshl_b32 s48, s47, 7")
        for j in range(4):
            a(f"s_add_u32 m0, s45, {sl*STG + j*4096}")
            if j: a(f"s_add_u32 s48, s48, 40960")
            else: a("s_mul_i32 s49, s47, 245760")
            a(f"buffer_load_dwordx4 v10, {sr(sA,4)}, s48 offen lds")
    def issue_w(c):
        sl = c % NS
        for i in range(5):
            a(f"s_add_u32 m0, s46, {sl*STG + 16384 + i*1024 - i*64}")
            if i == 0:
                a("s_add_u32 s47, s47, 1")
            elif i == 1:
                a("s_cmp_eq_u32 s47, 10")
                a("s_cmov_b32 s47, 0")
            else: a("s_nop 0")
            a(f"buffer_load_dwordx4 v11, {sr(sB,4)}, s49 offen offset:{i*64} lds")
    def issue(c): issue_x(c); issue_w(c)
    stamp(a, 3)
    issue_x(0)
    make_srd(a, sB, pW, "s51", "s52")
    issue_w(0)
    issued = 1
    pre = OPT.get('pre', 2)
    for c in range(1, pre): issue(c); issued += 1
    for c in range(10):
        a(f"s_waitcnt vmcnt({9*(issued-c-1)})")
        if c in (0, 9): stamp(a, {0: 2, 9: 5}[c])
        stamp(a, c + 1, 1)
        a("s_barrier")
        if c in (1, 3, 5, 7): stamp(a, 11 + c // 2, 1)
        while issued < min(10, c + 1 + (OPT.get('dep', 2) if c < OPT.get('depsw', 10) else 3)): issue(issued); issued += 1
    make_srd(a, sFL, pWS, FL_OFF, FL_SIZE)
    get_nonce(a, 2)
    a("s_branch L_A_done")

AX, AWA, EA = 8, 10, 16
FR = 24
ACC = 96
def gemm_loop(a, isv, epi):
    XB = [FR, FR + 36, 176, 212]
    def rdx(kk, m, b): sl, st = divmod(kk, 2); return f"ds_read_b128 {vr(b+4*m,4)}, v{AX+st} offset:{sl*STG + m*2048}"
    def rdw(kk, T, b): sl, st = divmod(kk, 2); return [f"ds_read_b64_tr_b16 {vr(b+16+4*T+2*t,2)}, v{AWA+T} offset:{sl*STG + st*10240 + t*256}" for t in range(2)]
    def reads(kk, b):
        r = rdw(kk, 0, b) + [rdx(kk, m, b) for m in range(4)]
        for T in range(1, 5): r += rdw(kk, T, b)
        return r
    def mfma(b, T, m):
        d = vr(ACC + 16*T + 4*m, 4); w = vr(b + 16 + 4*T, 4); x = vr(b + 4*m, 4)
        return f"v_mfma_f32_16x16x32_bf16 {d}, {x}, {w}, {d}" if isv else f"v_mfma_f32_16x16x32_bf16 {d}, {w}, {x}, {d}"
    for r in range(80): a(f"v_mov_b32 v{ACC+r}, 0")
    a(f"s_mov_b32 s40, {2*STG}")
    a("s_mov_b32 s41, 4")
    stamp(a, 13)
    a("s_barrier")
    stamp(a, 2)
    for r in reads(0, XB[0]): a(r)
    lp = a.label("L_gemm"); last = a.label("L_gemm_last")
    a(".p2align 3")
    a(f"{lp}:")
    for kk in range(4):
        a("s_waitcnt lgkmcnt(0)")
        ms = [mfma(XB[kk & 1], T, m) for T in range(5) for m in range(4)]
        a(ms[0])
        if kk == 1: a("s_barrier")
        if kk == 3:
            for i in range(2): a(f"v_add_u32 v{AX+i}, s40, v{AX+i}")
            for i in range(5): a(f"v_add_u32 v{AWA+i}, s40, v{AWA+i}")
            a("s_sub_u32 s40, 0, s40")
            a("s_sub_u32 s41, s41, 1")
            a("s_barrier")
            a("s_cmp_eq_u32 s41, 0")
            a(f"s_cbranch_scc1 {last}")
        nx = reads((kk + 1) & 3, XB[(kk + 1) & 1])
        for i in range(1, 20):
            if i - 1 < len(nx): a(nx[i-1])
            a(ms[i])
    a(f"s_branch {lp}")
    a(f"{last}:")
    bufs = [XB[0], XB[2], XB[3], XB[1]]
    def order(k0):
        r = []
        for k in (k0, k0 + 1): r += rdw(k, 0, bufs[k]) + [rdx(k, m, bufs[k]) for m in range(4)]
        return r
    first = order(0)
    rest01 = [x for T in range(1, 5) for k in (0, 1) for x in rdw(k, T, bufs[k])]
    second = order(2)
    rest23 = [[x for k in (2, 3) for x in rdw(k, T, bufs[k])] for T in range(5)]
    ms = [mfma(XB[1], T, m) for T in range(5) for m in range(4)]
    q = first + rest01
    pos = 0
    for i in range(1, 20):
        for _ in range(2 if i < 10 else 1):
            if pos < len(q): a(q[pos]); pos += 1
        a(ms[i])
    a("s_barrier")
    q = second + rest23[1] + rest23[2] + rest23[3] + rest23[4]
    a("s_waitcnt lgkmcnt(0)")
    pos = 0
    for T in range(5):
        e = epi(T - 1) if T >= 1 else []
        per = -(-len(e) // 12)
        for i in range(16):
            if i == 8 and T < 2: a(f"s_waitcnt lgkmcnt({min(15, pos - (12 + 4*T))})" if T == 0 else "s_waitcnt lgkmcnt(0)")
            a(mfma(bufs[i >> 2], T, i & 3))
            for _ in range(2):
                if pos < len(q): a(q[pos]); pos += 1
            if i >= 4:
                for x in e[per*(i-4):per*(i-3)]: a(x)
    stamp(a, 5)
    a("s_nop 7")
    for x in epi(4): a(x)

def gemm_compute(a):
    a("L_compute:")
    a("v_and_b32 v2, 15, v1")
    a("v_lshrrev_b32 v3, 4, v1")
    a(f"s_and_b32 s42, s{sWAVE}, 1")
    a(f"s_lshr_b32 s43, s{sWAVE}, 1")
    a("s_lshl_b32 s40, s42, 6")
    a("v_add_u32 v4, s40, v2")
    a("v_lshlrev_b32 v4, 7, v4")
    a("v_lshrrev_b32 v5, 1, v2")
    a("v_xor_b32 v5, v5, v3")
    a(f"v_lshl_add_u32 v{AX}, v5, 4, v4")
    a(f"v_xor_b32 v{AX+1}, 64, v{AX}")
    a("v_lshrrev_b32 v4, 5, v1")
    a("v_mul_u32_u24 v4, 5120, v4")
    a("v_and_b32 v5, 1, v3")
    a("v_lshrrev_b32 v6, 2, v2")
    a("v_lshl_add_u32 v6, v5, 3, v6")
    a("v_lshl_add_u32 v4, v6, 6, v4")
    a("v_add_u32 v4, 16384, v4")
    a("v_lshlrev_b32 v5, 2, v5")
    a("v_and_b32 v6, 3, v1")
    a("s_mul_i32 s44, s43, 20")
    def waddr(T, g):
        a(f"v_and_b32 v15, 7, v{g}")
        a("v_xor_b32 v15, v15, v5")
        a("v_lshl_add_u32 v15, v15, 3, v4")
        a(f"v_lshrrev_b32 v{g}, 3, v{g}")
        a(f"v_lshl_add_u32 v{AWA+T}, v{g}, 10, v15")
    a("s_lshl_b32 s45, s26, 2")
    a("s_lshl_b32 s42, s42, 1")
    a("s_add_u32 s42, s42, s45")
    a("s_and_b32 s45, s27, 3")
    a("s_lshl_b32 s45, s45, 3")
    a("s_lshl_b32 s43, s43, 2")
    a("s_add_u32 s43, s43, s45")
    a("s_cmp_ge_u32 s27, 8")
    a("s_cbranch_scc1 L_compute_v")
    for T in range(5):
        if T < 4:
            a(f"s_add_u32 s45, s44, {5*T}")
            a("v_add_u32 v7, s45, v6")
        else:
            a("s_add_u32 s45, s44, 4")
            a("v_mad_u32_u24 v7, v6, 5, s45")
        waddr(T, 7)
    a("s_cmp_ge_u32 s27, 4")
    for reg, k, q in [(44, KV_HEAD, Q_HEAD), (45, TKV, TQ), (46, f32bits(1.0), f32bits(QSCALE)), (47, KV_OFF, Q_OFF), (48, KV_SIZE, Q_SIZE)]:
        a(f"s_mov_b32 s{reg}, {q}")
        a(f"s_cmov_b32 s{reg}, {k}")
    make_srd(a, 28, pWS, "s47", "s48")
    a("s_mul_i32 s47, s43, s44")
    a("s_mul_i32 s48, s42, s45")
    a("s_add_u32 s47, s47, s48")
    a(f"v_lshlrev_b32 v{EA}, 4, v1")
    a(f"v_add_u32 v{EA+1}, s45, v{EA}")
    a("v_lshrrev_b32 v4, 5, v1")
    a("v_mul_lo_u32 v4, v4, s44")
    a("v_and_b32 v5, 31, v1")
    a("v_lshlrev_b32 v5, 3, v5")
    a("v_lshl_add_u32 v4, v4, 1, v5")
    a(f"v_add_u32 v{EA+2}, 1024, v4")
    a(f"v_add_u32 v{EA+3}, s45, v{EA+2}")
    a("s_mov_b32 s48, s47")
    a("s_add_u32 s49, s47, s44")
    def epi_qk(T):
        b = ACC + 16*T; e = []
        for r in range(16): e.append(f"v_mul_f32 v{b+r}, s46, v{b+r}")
        for r in range(8): e.append(f"v_cvt_pk_bf16_f32 v{b+r}, v{b+2*r}, v{b+2*r+1}")
        e.append("s_nop 0")
        for u in range(2):
            e.append(f"v_permlane16_swap_b32 v{b+4*u}, v{b+4*u+2}")
            e.append(f"v_permlane16_swap_b32 v{b+4*u+1}, v{b+4*u+3}")
        for u in range(2):
            if T < 4: e.append(f"buffer_store_dwordx4 {vr(b+4*u,4)}, v{EA+u}, s[28:31], s48 offen sc1")
            else:
                e.append(f"buffer_store_dwordx2 {vr(b+4*u,2)}, v{EA+2+u}, s[28:31], s47 offen sc1")
                e.append(f"buffer_store_dwordx2 {vr(b+4*u+2,2)}, v{EA+2+u}, s[28:31], s49 offen sc1")
        if T < 3: e.append("s_add_u32 s48, s48, s44")
        return e
    gemm_loop(a, False, epi_qk)
    a("s_branch L_A_done")
    a("L_compute_v:")
    for T in range(5):
        a(f"s_add_u32 s45, s44, {4*T}")
        a("v_add_u32 v7, s45, v6")
        waddr(T, 7)
    make_srd(a, 28, pWS, KV_OFF, KV_SIZE)
    a(f"s_mov_b32 s44, {KV_HEAD}")
    a("s_mul_i32 s47, s43, s44")
    a(f"s_mul_i32 s48, s42, {TKV}")
    a("s_add_u32 s47, s47, s48")
    a("v_lshrrev_b32 v7, 5, v1")
    a("v_mul_u32_u24 v7, 640, v7")
    a("v_and_b32 v15, 1, v3")
    a("v_lshl_add_u32 v7, v15, 6, v7")
    a("v_add_u32 v7, 1280, v7")
    for T in range(5):
        a(f"v_add_u32 v4, {16*T}, v2")
        a("v_mul_u32_u24 v5, 3277, v4")
        a("v_lshrrev_b32 v5, 16, v5")
        a("v_mul_u32_u24 v6, 20, v5")
        a("v_sub_u32 v4, v4, v6")
        a("v_and_b32 v6, 28, v4")
        a("v_add_u32 v4, v4, v6")
        a("v_mul_lo_u32 v5, v5, s44")
        a("v_lshl_add_u32 v4, v4, 4, v5")
        a(f"v_add_u32 v{EA+T}, v7, v4")
    def epi_v(T):
        b = ACC + 16*T; e = []
        for r in range(8): e.append(f"v_cvt_pk_bf16_f32 v{b+r}, v{b+2*r}, v{b+2*r+1}")
        e.append("s_nop 0")
        for u in range(2):
            e.append(f"v_permlane32_swap_b32 v{b+4*u}, v{b+4*u+2}")
            e.append(f"v_permlane32_swap_b32 v{b+4*u+1}, v{b+4*u+3}")
        for u in range(2): e.append(f"buffer_store_dwordx4 {vr(b+4*u,4)}, v{EA+T}, s[28:31], s47 offen offset:{u*TKV} sc1")
        return e
    gemm_loop(a, True, epi_v)
    a("s_branch L_A_done")

SWD = [56, 57, 96, 97, 100]
SEQR = [48, 56, 64]; SEQX = [24, 28, 160]; SEQS = [[40, 42], [43, 44], [51, 52]]
def side_ids(a):
    a("s_sub_u32 s53, s2, 192")
    a("s_mul_i32 s53, s53, 3")
    a(f"s_add_u32 s53, s53, s{sWAVE}")
    a("s_sub_u32 s53, s53, 5")

def side_gen(a):
    side_ids(a)
    G = 120
    a("v_lshlrev_b32 v23, 4, v3")
    a(f"s_mov_b32 s55, {f32bits(1.0/2048)}")
    a("v_cmp_gt_u32 vcc, 32, v1")
    for n in range(3):
        if n == 2:
            a("s_cmp_ge_u32 s53, 160")
            a("s_cbranch_scc1 L_sw_gen_done")
        a(f"s_add_u32 s54, s53, {192*n}")
        lp = a.label("L_gen_plain")
        a("s_lshr_b32 s41, s54, 5")
        a("s_and_b32 s58, s54, 31")
        a("s_lshr_b32 s59, s41, 1")
        a("s_lshl_b32 s59, s59, 6")
        a("s_and_b32 s47, s41, 1")
        a("s_add_u32 s59, s59, s47")
        a("v_lshl_add_u32 v4, v2, 1, s59")
        a("s_lshr_b32 s47, s58, 4")
        a("s_mul_i32 s45, s41, 65")
        a("s_add_u32 s45, s45, s58")
        a("s_add_u32 s46, s45, 33")
        a("s_add_u32 s45, s45, s47")
        a("s_lshl_b32 s45, s45, 10")
        a("s_lshl_b32 s46, s46, 10")
        a("s_and_b32 s48, s58, 15")
        a("s_lshl_b32 s48, s48, 5")
        a("s_add_u32 s48, s48, s47")
        a("v_add_u32 v5, s48, v23")
        a("v_mul_u32_u24 v5, v4, v5")
        a("v_cvt_f32_u32 v5, v5")
        a("v_cvt_f32_u32 v4, v4")
        for i in range(8):
            if i: a("v_fma_f32 v5, 2.0, v4, v5")
            a(f"v_mul_f32 v{G+i}, s55, v5")
        for i in range(8): a(f"v_fract_f32 v{G+i}, v{G+i}")
        for i in range(8): a(f"v_cos_f32 v{G+8+i}, v{G+i}")
        a("s_cmp_lg_u32 s58, 0")
        a(f"s_cbranch_scc1 {lp}")
        a("v_mul_f32 v6, 0x3e800000, v4")
        a("v_fract_f32 v6, v6")
        a(f"v_cndmask_b32 v{G}, v{G}, v6, vcc")
        a("v_cos_f32 v7, v6")
        a(f"v_mov_b32 v{SEQX[n]+1}, 0")
        a(f"v_mov_b32 v{SEQX[n]+2}, 0")
        a(f"v_mov_b32 v{SEQX[n]+3}, 0")
        a("v_cndmask_b32 v7, 0, v7, vcc")
        a(f"v_cvt_pk_bf16_f32 v{SEQX[n]}, v7, 0")
        a(f"{lp}:")
        for i in range(8): a(f"v_sin_f32 v{G+i}, v{G+i}")
        for i in range(4): a(f"v_cvt_pk_bf16_f32 v{SEQR[n]+i}, v{G+8+2*i}, v{G+9+2*i}")
        for i in range(4): a(f"v_cvt_pk_bf16_f32 v{SEQR[n]+4+i}, v{G+2*i}, v{G+1+2*i}")
        a(f"s_mov_b32 s{SEQS[n][0]}, s45")
        a(f"s_mov_b32 s{SEQS[n][1]}, s46")
    a("L_sw_gen_done:")

def side_issue(a):
    side_ids(a)
    make_srd(a, 32, pWO, 0, 819200)
    make_srd(a, 28, pWS, SEQ_OFF, WO_OFF + WO_SIZE - SEQ_OFF)
    for n in range(3):
        if n == 2:
            a("s_cmp_ge_u32 s53, 160")
            a("s_cbranch_scc1 L_sw_st_done")
        for k in range(2): a(f"buffer_store_dwordx4 {vr(SEQR[n]+4*k,4)}, v15, s[28:31], s{SEQS[n][k]} offen sc1")
        l = a.label("L_sw_nx")
        a("s_and_b32 s41, s53, 31")
        a(f"s_cbranch_scc1 {l}")
        a(f"s_add_u32 s41, s{SEQS[n][0]}, {16*1024}")
        a(f"buffer_store_dwordx4 {vr(SEQX[n],4)}, v15, s[28:31], s41 offen sc1")
        a(f"{l}:")
    a("L_sw_st_done:")
    WR = 120
    for n in range(5):
        if n == 4:
            a("s_cmp_ge_u32 s53, 32")
            a("s_cbranch_scc1 L_sw_wo_ld")
        a(f"s_add_u32 s40, s53, {192*n}")
        a("s_mul_i32 s41, s40, 1639")
        a("s_lshr_b32 s41, s41, 16")
        a("s_mul_i32 s58, s41, 40")
        a("s_sub_u32 s58, s40, s58")
        a("s_mul_i32 s59, s58, 20")
        a("s_mul_i32 s55, s58, 80")
        a("s_sub_u32 s55, s55, %d" % (32*80 - 16))
        a("s_cmp_lt_u32 s58, 32")
        a("s_cselect_b32 s45, 4, 40")
        a("s_cselect_b32 s59, s59, s55")
        a(f"s_mov_b32 s46, {20*1280}")
        a(f"s_cmov_b32 s46, {8*1280}")
        a("v_mul_u32_u24 v4, s45, v3")
        a("v_add_u32 v4, s59, v4")
        a("v_mul_u32_u24 v4, 1280, v4")
        a("s_lshl_b32 s59, s41, 6")
        a("v_lshl_add_u32 v4, v2, 1, v4")
        a("v_add_u32 v4, s59, v4")
        b = WR + 8*n
        for grp in range(2):
            so = "s46" if grp else "0"
            for i in range(4):
                a(f"buffer_load_ushort v{b+4*grp+i}, v4, s[32:35], {so} offen offset:{i*1280}")
        a("s_mul_i32 s59, s41, 52")
        a("s_lshr_b32 s59, s59, 8")
        a("s_mul_i32 s55, s59, 5")
        a("s_sub_u32 s55, s41, s55")
        a("s_mul_i32 s45, s58, 26")
        a("s_lshr_b32 s45, s45, 8")
        a("s_mul_i32 s47, s45, 10")
        a("s_sub_u32 s47, s58, s47")
        a("s_add_u32 s58, s58, 10")
        a("s_cmp_lt_u32 s55, 4")
        a("s_cselect_b32 s55, s55, s45")
        a("s_cselect_b32 s58, s58, s47")
        a("s_lshl_b32 s59, s59, 2")
        a("s_add_u32 s59, s59, s55")
        a("s_mul_i32 s59, s59, 50")
        a("s_add_u32 s59, s59, s58")
        a("s_lshl_b32 s59, s59, 10")
        a(f"s_add_u32 s{SWD[n]}, s59, {WO_OFF - SEQ_OFF}")
    a("L_sw_wo_ld:")

def side_work_finish(a):
    WR = 120
    l = a.label("L_sw_fin")
    for n in range(5):
        if n == 4:
            a("s_cmp_ge_u32 s53, 32")
            a(f"s_cbranch_scc1 {l}")
        b = WR + 8*n
        for i in range(4): a(f"v_lshl_or_b32 v{b+i}, v{b+2*i+1}, 16, v{b+2*i}")
        a(f"buffer_store_dwordx4 {vr(b,4)}, v15, s[28:31], s{SWD[n]} offen sc1")
    a(f"{l}:")

def prep(a):
    a("L_prep:")
    a(f"s_sub_u32 s40, s{sSLOT}, 24")
    a("s_and_b32 s27, s40, 1")
    a("s_lshr_b32 s26, s40, 1")
    a("s_lshl_b32 s26, s26, 3")
    a(f"s_add_u32 s26, s26, s{sXCD}")
    make_srd(a, 36, pWS, AB_OFF, AB_SIZE)
    a(f"s_cmp_ge_u32 s{sWAVE}, 5")
    a("s_cbranch_scc1 L_fold_skip")
    make_srd(a, 28, pBX, 0, X_SIZE)
    a("s_lshr_b32 s42, s26, 1")
    a("s_lshl_b32 s42, s42, 5")
    a("s_and_b32 s43, s26, 1")
    a("s_add_u32 s42, s42, s43")
    a("v_lshrrev_b32 v2, 3, v1")
    a("v_and_b32 v3, 7, v1")
    a("v_lshl_add_u32 v4, v2, 1, s42")
    a("v_mul_u32_u24 v5, 1280, v4")
    a("v_lshlrev_b32 v6, 4, v3")
    a("v_add_u32 v10, v5, v6")
    a("v_sub_u32 v7, v6, v5")
    a(f"s_lshl_b32 s44, s27, 1")
    a(f"s_add_u32 s44, s44, s{sWAVE}")
    a("s_cmp_ge_u32 s44, 5")
    a("s_cselect_b32 s45, 5, 0")
    a("s_sub_u32 s44, s44, s45")
    a("s_lshl_b32 s44, s44, 7")
    a("s_add_u32 s45, s44, 20480")
    a(f"v_add_u32 v11, {2048*1280}, v7")
    a(f"v_add_u32 v12, {1024*1280}, v7")
    a("v_cmp_ne_u32 vcc, 0, v4")
    a(f"v_mov_b32 v8, {HUGE}")
    a(f"v_add_u32 v9, {1024*1280}, v10")
    a("v_cndmask_b32 v13, v8, v9, vcc")
    LD = 32
    for hf in range(2):
        for r in range(4): a(f"buffer_load_dwordx4 {vr(LD+8*r+4*hf,4)}, v{10+r}, s[28:31], s44 offen offset:{640*hf}")
    a("v_subrev_u32 v11, 20480, v11")
    a("v_subrev_u32 v12, 20480, v12")
    for hf in range(2):
        for r, (vv, so) in enumerate([(10, 45), (11, 44), (12, 44), (9, 45)]):
            a(f"buffer_load_dwordx4 {vr(LD+32+8*r+4*hf,4)}, v{vv}, s[28:31], s{so} offen offset:{640*hf}")
    XL = 96
    a("s_cmp_lg_u32 s26, 0")
    a("s_cbranch_scc1 L_fold_nx")
    a(f"v_add_u32 v14, {512*1280}, v6")
    a(f"v_add_u32 v15, {1536*1280}, v6")
    a("v_cndmask_b32 v14, v14, v8, vcc")
    a("v_cndmask_b32 v15, v15, v8, vcc")
    for r in range(2):
        for hf in range(2):
            a(f"buffer_load_dwordx4 {vr(XL+8*r+4*hf,4)}, v{14+r}, s[28:31], s44 offen offset:{640*hf}")
    a("L_fold_nx:")
    a("v_and_b32 v5, 3, v2")
    a("v_lshrrev_b32 v4, 2, v2")
    a("v_lshl_or_b32 v5, v4, 3, v5")
    a("v_xor_b32 v5, v5, v3")
    a("v_and_b32 v4, 1, v3")
    a("v_lshl_add_u32 v5, v4, 5, v5")
    a("v_lshlrev_b32 v5, 4, v5")
    a("v_lshrrev_b32 v4, 1, v3")
    a("v_lshl_add_u32 v5, v4, 10, v5")
    a("s_lshl_b32 s45, s44, 5")
    a("v_add_u32 v16, s45, v5")
    a("v_xor_b32 v18, 64, v16")
    a("v_add_u32 v5, s44, v6")
    a("v_add_u32 v17, 40960, v5")
    a("v_lshlrev_b32 v6, 4, v1")
    a("v_add_u32 v6, 43008, v6")
    a("v_cndmask_b32 v17, v17, v6, vcc")
    a("L_fold_skip:")
    a("v_and_b32 v2, 31, v1")
    a("v_lshrrev_b32 v3, 5, v1")
    a("v_lshlrev_b32 v15, 4, v1")
    a(f"s_lshr_b32 s40, s{sWAVE}, 1")
    a("s_add_u32 s40, s40, 2")
    a(f"s_and_b32 s41, s{sWAVE}, 1")
    a(f"s_cmp_lt_u32 s{sWAVE}, 4")
    a(f"s_cselect_b32 s49, s{sWAVE}, s40")
    a("s_cselect_b32 s50, 0, s41")
    a("s_lshl_b32 s54, s49, 6")
    a("s_add_u32 s54, s54, s27")
    a("v_lshl_add_u32 v4, v2, 1, s54")
    AU = 10; SB = [[176, 184], [192, 200]]; HB = [[208, 212], [216, 220]]; UB = [72, 84, 96, 108]; ACC3 = [224, 240, 32]; PH = 112
    a("s_mul_i32 s52, s50, 20480")
    for jj in range(4):
        a(f"v_xor_b32 v5, {2*jj}, v3")
        a("v_xor_b32 v5, v5, v2")
        a("v_lshl_add_u32 v5, v3, 5, v5")
        a("v_lshlrev_b32 v5, 4, v5")
        a(f"v_add_u32 v5, {jj*1024}, v5")
        a(f"v_add_u32 v{AU+jj}, s52, v5")
    a(f"v_lshlrev_b32 v{AU+4}, 4, v3")
    a(f"v_add_u32 v{AU+4}, 40960, v{AU+4}")
    a(f"s_mov_b32 s52, {f32bits(1.0/640)}")
    a("s_cmp_lg_u32 s50, 0")
    a("s_cselect_b32 s53, 0x3e800000, 0")
    a("v_lshlrev_b32 v5, 3, v3")
    a("v_mul_u32_u24 v5, v4, v5")
    a("v_cvt_f32_u32 v5, v5")
    a("v_cvt_f32_u32 v4, v4")
    a("v_mul_f32 v6, 0x41800000, v4")
    for i in range(8):
        if i: a("v_add_f32 v5, v5, v4")
        a(f"v_mul_f32 v{PH+i}, s52, v5")
        a("v_sub_f32 v7, v5, v6")
        a(f"v_mul_f32 v{PH+8+i}, s52, v7")
    a("v_mul_f32 v6, s52, v6")
    a("v_fract_f32 v6, v6")
    for i in range(16): a(f"v_fract_f32 v{PH+i}, v{PH+i}")
    a("v_cos_f32 v19, v6")
    for i in range(16): a(f"v_sin_f32 v{SB[1][0]+i}, v{PH+i}")
    for i in range(16): a(f"v_subrev_f32 v{PH+i}, s53, v{PH+i}")
    for i in range(16): a(f"v_cos_f32 v{SB[0][0]+i}, v{PH+i}")
    a("v_add_f32 v19, v19, v19")
    for r in range(32): a(f"v_mov_b32 v{224+r}, 0")
    def cvts(jb, g): return [f"v_cvt_pk_bf16_f32 v{HB[jb][g]+d}, v{SB[jb][g]+2*d}, v{SB[jb][g]+2*d+1}" for d in range(4)]
    def rot(jb, cur): return [f"v_fma_f32 v{SB[jb][cur^1]+i}, v19, v{SB[jb][cur]+i}, -v{SB[jb][cur^1]+i}" for i in range(8)]
    for x in cvts(0, 0) + cvts(1, 0): a(x)
    a(f"s_cmp_lt_u32 s{sWAVE}, 5")
    a("s_cbranch_scc1 L_fold_go")
    side_gen(a)
    a("s_branch L_fold_done")
    a("L_fold_go:")
    a("s_cmp_lg_u32 s27, 0")
    a("s_cselect_b32 s46, -1.0, 1.0")
    a("s_mov_b32 s47, s46")
    a("s_mov_b32 s48, 0xffff0000")
    T = 112; R = 144; H = 20
    ng = "neg_lo:[0,1] neg_hi:[0,1]"
    def dfold(src, dst):
        for d in range(4):
            a(f"v_lshlrev_b32 v{dst+2*d}, 16, v{src+d}")
            a(f"v_and_b32 v{dst+2*d+1}, s48, v{src+d}")
            a(f"v_lshlrev_b32 v{H+2*(d&1)}, 16, v{src+4+d}")
            a(f"v_and_b32 v{H+2*(d&1)+1}, s48, v{src+4+d}")
            a(f"v_pk_fma_f32 {vr(dst+2*d,2)}, {vr(H+2*(d&1),2)}, s[46:47], {vr(dst+2*d,2)}")
    for n in range(2):
        a("s_waitcnt vmcnt(%d)" % (8 if n == 0 else 0))
        if n == 0: stamp(a, 9)
        b = LD + 32*n
        for r in range(4): dfold(b + 8*r, T + 8*r)
        for d in range(4):
            p = lambda r: vr(T+8*r+2*d, 2)
            q = lambda r: vr(R+8*r+2*d, 2)
            a(f"v_pk_add_f32 {q(0)}, {p(0)}, {p(1)}")
            a(f"v_pk_add_f32 {q(1)}, {p(0)}, {p(1)} {ng}")
            a(f"v_pk_add_f32 {q(2)}, {p(2)}, {p(3)}")
            a(f"v_pk_add_f32 {q(3)}, {p(2)}, {p(3)} {ng}")
            a(f"v_pk_add_f32 {p(0)}, {q(0)}, {q(2)}")
            a(f"v_pk_add_f32 {p(1)}, {q(0)}, {q(2)} {ng}")
            a(f"v_pk_add_f32 {p(2)}, {q(1)}, {q(3)} {ng}")
            a(f"v_pk_add_f32 {p(3)}, {q(1)}, {q(3)}")
        if n == 0:
            a("s_cmp_lg_u32 s26, 0")
            a("s_cbranch_scc1 L_fold_sp")
            a("s_waitcnt vmcnt(0)")
            dfold(XL, R); dfold(XL + 8, R + 8)
            for d in range(4):
                a(f"v_pk_add_f32 {vr(R+16+2*d,2)}, {vr(R+2*d,2)}, {vr(R+8+2*d,2)}")
                a(f"v_pk_add_f32 {vr(R+2*d,2)}, {vr(R+2*d,2)}, {vr(R+8+2*d,2)} {ng}")
            for e in range(8): a(f"v_cndmask_b32 v{T+24+e}, v{R+e}, v{T+24+e}, vcc")
            for d in range(4): a(f"v_cvt_pk_bf16_f32 v{R+d}, v{R+16+2*d}, v{R+17+2*d}")
            a(f"ds_write_b128 v17, {vr(R,4)}")
            a("L_fold_sp:")
        for i in range(4):
            for d in range(4): a(f"v_cvt_pk_bf16_f32 v{b+4*i+d}, v{T+8*i+2*d}, v{T+8*i+2*d+1}")
            a(f"ds_write_b128 v{16+2*n}, {vr(b+4*i,4)} offset:{(i>>1)*20480 + (i&1)*256}")
    a("L_fold_done:")
    for r in range(16): a(f"v_mov_b32 v{32+r}, 0")
    a("s_waitcnt lgkmcnt(0)")
    stamp(a, 14)
    a("s_barrier")
    stamp(a, 2)
    a(f"s_cmp_lt_u32 s{sWAVE}, 5")
    a("s_cbranch_scc1 L_no_side")
    side_issue(a)
    a("L_no_side:")
    make_srd(a, 28, pDBG, 0, 256)
    a("v_mov_b32 v16, 0")
    a("buffer_load_dwordx2 v[4:5], v16, s[28:31], 0 offen sc1")
    a("s_mul_i32 s42, s27, 6")
    a("s_add_u32 s42, s42, s49")
    a("s_cmp_gt_u32 s42, 10")
    a("s_cbranch_scc0 L_f1_go")
    a("s_waitcnt vmcnt(0)")
    a("s_branch L_prep_done")
    a("L_f1_go:")
    def ureads(j, kinds):
        jj = j & 3; o = (j >> 2) * 4096; b = UB[j & 3]; r = []
        for k in kinds:
            if k == 2: r.append(f"ds_read_b128 {vr(b+8,4)}, v{AU+4} offset:{j*32}")
            else: r.append(f"ds_read_b128 {vr(b+4*k,4)}, v{AU+jj} offset:{o + k*20480}")
        return r
    a("s_mov_b32 s45, 5")
    a("s_or_b32 s51, s26, s50")
    a("s_cmp_eq_u32 s51, 0")
    a("s_cselect_b32 s40, 1, 0")
    a(f"s_cmp_lt_u32 s{sWAVE}, 4")
    a("s_cselect_b32 s41, 2, 0")
    a("s_add_u32 s40, s40, s41")
    variants = [[0], [0, 2], [0, 1], [0, 1, 2]]
    for v in range(1, 4):
        a(f"s_cmp_eq_u32 s40, {v}")
        a(f"s_cbranch_scc1 L_f1_v{v}")
    for v, kinds in enumerate(variants):
        a(f"L_f1_v{v}:")
        nm = len(kinds)
        for x in ureads(0, kinds) + ureads(1, kinds): a(x)
        a(f"L_f1_loop{v}:")
        for jj in range(4):
            buf = jj & 1
            va = rot(0, buf) + cvts(0, buf ^ 1)
            if 1 in kinds: va = rot(0, buf) + rot(1, buf) + cvts(0, buf ^ 1) + cvts(1, buf ^ 1)
            rd = ureads(jj + 2, kinds)
            a(f"s_waitcnt lgkmcnt({nm})")
            a("s_nop 0")
            per = len(va) // nm
            for m, k in enumerate(kinds):
                d = vr(ACC3[k], 16)
                a(f"v_mfma_f32_32x32x16_bf16 {d}, {vr(UB[jj]+4*k,4)}, {vr(HB[k & 1][buf],4)}, {d}")
                a(rd[m])
                for x in va[per*m:per*m+per]: a(x)
        for r in range(4): a(f"v_add_u32 v{AU+r}, 4096, v{AU+r}")
        if 2 in kinds: a(f"v_add_u32 v{AU+4}, 128, v{AU+4}")
        a("s_sub_u32 s45, s45, 1")
        a("s_cmp_lg_u32 s45, 0")
        a(f"s_cbranch_scc1 L_f1_loop{v}")
        if v < 3: a("s_branch L_f1_done")
    a("L_f1_done:")
    stamp(a, 5)
    a("s_mul_i32 s43, s42, 33")
    a("s_and_b32 s44, s26, 1")
    a("s_lshl_b32 s44, s44, 4")
    a("s_lshr_b32 s45, s26, 1")
    a("s_add_u32 s44, s44, s45")
    a("s_add_u32 s44, s44, s43")
    a(f"s_mul_i32 s45, s50, {22*33}")
    a("s_add_u32 s44, s44, s45")
    a("s_lshl_b32 s44, s44, 10")
    a("s_waitcnt vmcnt(0) lgkmcnt(0)")
    a("s_nop 5")
    for jb in range(2):
        b = ACC3[jb]
        if jb == 1:
            a(f"s_cmp_ge_u32 s{sWAVE}, 4")
            a("s_cbranch_scc1 L_f1_one")
        for r in range(8): a(f"v_cvt_pk_bf16_f32 v{b+r}, v{b+2*r}, v{b+2*r+1}")
        for hf in range(2):
            a(f"buffer_store_dwordx4 {vr(b+4*hf,4)}, v15, s[36:39], s44 offen sc1")
            a(f"s_add_u32 s44, s44, {11*33*1024}")
    a("L_f1_one:")
    a("s_cmp_lg_u32 s51, 0")
    a("s_cbranch_scc1 L_prep_done")
    b = ACC3[2]
    for r in range(4): a(f"v_cvt_pk_bf16_f32 v{b+r}, v{b+2*r}, v{b+2*r+1}")
    a("s_add_u32 s43, s43, 32")
    a("s_lshl_b32 s43, s43, 10")
    a(f"buffer_store_dwordx4 {vr(b,4)}, v15, s[36:39], s43 offen sc1")
    a("L_prep_done:")
    a(f"s_cmp_lt_u32 s{sWAVE}, 5")
    a("s_cbranch_scc1 L_prep_fin")
    make_srd(a, 28, pWS, SEQ_OFF, WO_OFF + WO_SIZE - SEQ_OFF)
    side_work_finish(a)
    a("L_prep_fin:")
    a(f"v_readfirstlane_b32 s{sNON}, v4")
    a(f"v_readfirstlane_b32 s{sNON+1}, v5")
    a("s_nop 0")
    a(f"s_cmp_lg_u32 s{sNON}, 0")
    a("s_cbranch_scc1 L_A_done")
    get_nonce(a, 2)

W_PROG, W_GO, W_CNT, W_PASS, W_XCH, W_NON = 0, 4, 8, 16, 32, 48
def a_done(a):
    a("L_A_done:")
    stamp(a, 6)
    a(f"v_mov_b32 v23, {LDS_PROG}")
    a(f"s_cmp_lg_u32 s{sWAVE}, 4")
    a("s_cbranch_scc1 L_A_bar")
    a(f"v_mov_b32 v2, s{sNON}")
    a(f"v_mov_b32 v3, s{sNON+1}")
    a(f"ds_write_b64 v23, v[2:3] offset:{W_NON}")
    a("L_A_bar:")
    a("s_waitcnt lgkmcnt(0)")
    a("s_barrier")
    stamp(a, 4)
    a(f"s_lshr_b32 s26, s{sXCD}, 1")
    a("s_lshl_b32 s26, s26, 3")
    a(f"s_and_b32 s27, s{sSLOT}, 7")
    a("s_add_u32 s26, s26, s27")
    a(f"s_and_b32 s27, s{sXCD}, 1")
    a("s_lshl_b32 s27, s27, 2")
    a(f"s_lshr_b32 s40, s{sSLOT}, 3")
    a("s_add_u32 s27, s27, s40")
    a(f"s_cmp_ge_u32 s{sWAVE}, 4")
    a("s_cbranch_scc1 L_aux")

def drained(a, vt):
    a(f"v_mov_b32 v{vt}, 1")
    a("s_mov_b64 exec, 1")
    a(f"ds_add_u32 v23, v{vt} offset:{W_CNT}")
    a("s_mov_b64 exec, -1")

def attention(a):
    SL = OPT.get('slot', 1)
    AKA, AKB, AV, AKB2 = 4, 5, 168, 172
    AREGS = [AKA, AV, AV+1, AV+2, AV+3] + ([AKB2, AKB2+1] if SL else [AKB])
    QA = [8, 14]
    NEG = [32, 48]; S = [64, 80]; O = [96, 112]; P = 128
    KB = [136, 142]; VB = [148, 156]
    PR = 164
    a("L_attn:")
    a(f"ds_read_b32 v24, v23 offset:{W_GO}")
    a(f"ds_read_b64 v[26:27], v23 offset:{W_NON}")
    a(f"s_setprio {OPT.get('pattn', 2)}")
    a(f"s_mul_i32 s40, s26, {Q_HEAD}")
    a(f"s_add_u32 s40, s40, {Q_OFF}")
    make_srd(a, 28, pWS, "s40", Q_HEAD)
    a(f"s_mul_i32 s40, s26, {KV_HEAD}")
    make_srd(a, 32, pWS, "s40", KV_HEAD)
    a("v_and_b32 v2, 31, v1")
    a("v_lshrrev_b32 v3, 5, v1")
    a(f"v_lshlrev_b32 v{AKA}, 4, v1")
    a(f"v_lshlrev_b32 v{AKB}, 3, v2")
    a(f"v_add_u32 v{AKB}, 1024, v{AKB}")
    a(f"v_mov_b32 v20, {HUGE}")
    a("v_cmp_gt_u32 vcc, 32, v1")
    a("s_lshl_b32 s41, s27, 3")
    a(f"s_lshl_b32 s42, s{sWAVE}, 1")
    a("s_add_u32 s41, s41, s42")
    a(f"v_cndmask_b32 v20, v20, v{AKB}, vcc")
    a(f"s_mul_i32 s42, s41, {TQ}")
    a("v_and_b32 v21, 28, v2")
    a("v_add_u32 v21, v21, v2")
    a("v_lshl_add_u32 v21, v3, 2, v21")
    a("v_lshlrev_b32 v21, 4, v21")
    a("v_add_u32 v29, 1280, v21")
    a("s_mov_b32 s48, 0x000fffff")
    a("s_mov_b32 s49, 0x000fffff")
    a("s_mov_b32 s52, 0x07060302")
    a("s_waitcnt lgkmcnt(0)")
    a("v_readfirstlane_b32 s47, v24")
    a(f"v_readfirstlane_b32 s{sNON}, v26")
    a(f"v_readfirstlane_b32 s{sNON+1}, v27")
    a("s_mov_b32 s50, s47")
    a("s_cmp_lg_u32 s47, 0")
    a("s_cbranch_scc1 L_attn_go")
    a("s_waitcnt vmcnt(0)")
    stamp(a, 3)
    drained(a, 24)
    a("L_attn_spin:")
    a(f"s_sleep {OPT.get('asl', 1)}")
    a(f"ds_read_b32 v24, v23 offset:{W_GO}")
    a("s_waitcnt lgkmcnt(0)")
    a("v_readfirstlane_b32 s47, v24")
    a("s_nop 0")
    a("s_cmp_eq_u32 s47, 0")
    a("s_cbranch_scc1 L_attn_spin")
    a("L_attn_go:")
    stamp(a, 7); stamp(a, 7, 2); stamp_real(a, 8, 2)
    a("s_sub_u32 s47, s47, 1")
    a(f"s_mul_i32 s47, s47, {4*TKV}")
    for q in range(2):
        a(f"buffer_load_dwordx4 {vr(QA[q],4)}, v{AKA}, s[28:31], s42 offen offset:{q*TQ} sc1")
        a(f"buffer_load_dwordx2 {vr(QA[q]+4,2)}, v20, s[28:31], s42 offen offset:{q*TQ} sc1")
    a(f"buffer_load_dwordx4 {vr(KB[0],4)}, v{AKA}, s[32:35], s47 offen sc1")
    if SL:
        for b in KB:
            a(f"v_mov_b32 v{b+4}, 0x3f803f80")
            a(f"v_mov_b32 v{b+5}, 0x3f80")
        a("s_mov_b32 exec_hi, 0")
    a(f"buffer_load_dwordx2 {vr(KB[0]+4,2)}, v{AKB}, s[32:35], s47 offen sc1")
    if SL: a("s_mov_b64 exec, -1")
    a("v_mov_b32 v24, 0x3f803f80")
    a("v_cmp_eq_u32 vcc, 20, v2")
    a(f"s_add_u32 s43, s47, {TKV}")
    a("s_nop 0")
    a("v_cndmask_b32 v24, 0, v24, vcc")
    for r in range(16): a(f"v_mov_b32 v{VB[0]+r}, v24")
    a(f"buffer_load_dwordx4 {vr(KB[1],4)}, v{AKA}, s[32:35], s43 offen sc1")
    if SL: a("s_mov_b32 exec_hi, 0")
    a(f"buffer_load_dwordx2 {vr(KB[1]+4,2)}, v{AKB}, s[32:35], s43 offen sc1")
    a("s_mov_b64 exec, s[48:49]")
    a(f"buffer_load_dwordx4 {vr(VB[0],4)}, v29, s[32:35], s47 offen sc1")
    a(f"buffer_load_dwordx4 {vr(VB[0]+4,4)}, v29, s[32:35], s47 offen offset:640 sc1")
    a(f"buffer_load_dwordx4 {vr(VB[1],4)}, v29, s[32:35], s43 offen sc1")
    a(f"buffer_load_dwordx4 {vr(VB[1]+4,4)}, v29, s[32:35], s43 offen offset:640 sc1")
    a("s_mov_b64 exec, -1")
    a("s_cmp_eq_u32 s50, 0")
    a("s_cbranch_scc1 L_attn_cnt")
    a("s_waitcnt vmcnt(12)")
    stamp(a, 3)
    drained(a, 24)
    a("L_attn_cnt:")
    a("v_mov_b32 v22, 5120")
    if OPT.get('zr', 1):
        a("v_cmp_lt_u32 vcc, 20, v2")
        a("v_mov_b32 v21, 5136")
        a("s_nop 0")
        a("v_cndmask_b32 v22, v22, v21, vcc")
    a("v_cmp_gt_u32 vcc, 20, v2")
    for i in range(4): a(f"v_add_u32 v{AV+i}, {(i>>1)*TKV + (i&1)*640}, v29")
    for i in range(4): a(f"v_cndmask_b32 v{AV+i}, v22, v{AV+i}, vcc")
    if SL:
        a("v_cmp_gt_u32 vcc, 32, v1")
        a("v_mov_b32 v22, 5152")
        a(f"v_add_u32 v21, {TKV}, v{AKB}")
        a(f"v_cndmask_b32 v{AKB2}, v22, v{AKB}, vcc")
        a(f"v_cndmask_b32 v{AKB2+1}, v22, v21, vcc")
    make_srd(a, 36, pWS, O_OFF, O_SIZE)
    for q in range(2):
        for r in range(16): a(f"v_mov_b32 v{O[q]+r}, 0")
    LOOPED = [False]
    mm16 = "v_mfma_f32_32x32x16_bf16"; mm8 = "v_mfma_f32_32x32x8_bf16"
    def M1(s, t, q, c): return "s_nop 1" if OPT.get('nom1') and c == "0" and LOOPED[0] else f"{mm16} {vr(s,16)}, {vr(KB[t&1],4)}, {vr(QA[q],4)}, {c}"
    def M2(s, t, q): return "s_nop 0" if OPT.get('nom2') and LOOPED[0] else f"{mm8} {vr(s,16)}, {vr(KB[t&1]+4,2)}, {vr(QA[q]+4,2)}, {vr(s,16)}"
    def M3(t, q): return "s_nop 1" if OPT.get('nopv') else f"{mm16} {vr(O[q],16)}, {vr(VB[t&1],4)}, {vr(P,4)}, {vr(O[q],16)}"
    def M4(t, q): return "s_nop 1" if OPT.get('nopv') else f"{mm16} {vr(O[q],16)}, {vr(VB[t&1]+4,4)}, {vr(P+4,4)}, {vr(O[q],16)}"
    def rowmax(src, dst, first):
        if first:
            a(f"v_max3_f32 v{dst}, v{src}, v{src+1}, v{src+2}")
            a(f"v_max_f32 v{dst}, v{dst}, v{src+15}")
            rng = range(3, 15, 2)
        else: rng = range(0, 16, 2)
        for r in rng: a(f"v_max3_f32 v{dst}, v{dst}, v{src+r}, v{src+r+1}")
    def finish_neg(add):
        a("v_mov_b32 v26, v24")
        a("v_mov_b32 v27, v25")
        a("s_nop 1")
        a("v_permlane32_swap_b32 v24, v26")
        a("v_permlane32_swap_b32 v25, v27")
        a("s_nop 1")
        a("v_max_f32 v24, v24, v26")
        a("v_max_f32 v25, v25, v27")
        if not SL:
            for q in range(2):
                a(f"v_sub_f32 v{NEG[q]}, {add}, v{24+q}")
                for r in range(1, 16): a(f"v_mov_b32 v{NEG[q]+r}, v{NEG[q]}")
            return
        a("s_mov_b32 s45, 0xffff0000")
        a("s_mov_b32 s46, 0x07060302")
        for q in range(2):
            a(f"v_sub_f32 v{24+q}, {add}, v{24+q}")
        for q in range(2):
            a(f"v_and_b32 v26, s45, v{24+q}")
            a(f"v_sub_f32 v27, v{24+q}, v26")
            a("v_and_b32 v28, s45, v27")
            a("v_sub_f32 v27, v27, v28")
            a("v_perm_b32 v26, v28, v26, s46")
            a("v_lshrrev_b32 v27, 16, v27")
            a("s_mov_b32 exec_lo, 0")
            a(f"v_mov_b32 v{QA[q]+4}, v26")
            a(f"v_mov_b32 v{QA[q]+5}, v27")
            a("s_mov_b64 exec, -1")
        a("s_nop 1")
    CNEG = lambda q: "0" if SL else vr(NEG[q], 16)
    a("s_waitcnt vmcnt(6)")
    stamp(a, 8)
    def neg_one(q, add):
        a(f"v_mov_b32 v26, v{24+q}")
        a("s_nop 1")
        a(f"v_permlane32_swap_b32 v{24+q}, v26")
        a("s_nop 0")
        a(f"v_max_f32 v{24+q}, v{24+q}, v26")
        a(f"v_sub_f32 v{24+q}, {add}, v{24+q}")
        a(f"v_and_b32 v26, s45, v{24+q}")
        a(f"v_sub_f32 v27, v{24+q}, v26")
        a("v_and_b32 v28, s45, v27")
        a("v_sub_f32 v27, v27, v28")
        a("s_mov_b32 exec_lo, 0")
        a(f"v_perm_b32 v{QA[q]+4}, v28, v26, s46")
        a(f"v_lshrrev_b32 v{QA[q]+5}, 16, v27")
        a("s_mov_b64 exec, -1")
    OFFS = hex(f32bits(-float(OPT.get('off', 100))))
    a(M1(S[0], 0, 0, "0")); a(M2(S[0], 0, 0))
    a(M1(S[1], 0, 1, "0")); a(M2(S[1], 0, 1))
    a("s_mov_b32 s45, 0xffff0000")
    a("s_mov_b32 s46, 0x07060302")
    a(f"ds_read_b32 v{PR}, v23")
    a("s_nop 6")
    rowmax(S[0], 24, True)
    neg_one(0, OFFS)
    a("s_nop 0")
    a(M1(S[0], 0, 0, CNEG(0)))
    a(M2(S[0], 0, 0))
    rowmax(S[1], 25, True)
    neg_one(1, OFFS)
    a("s_waitcnt vmcnt(0)")
    def check(need):
        l = a.label("L_chk"); ok = a.label("L_chkok")
        a(f"{l}:")
        a("s_waitcnt lgkmcnt(0)")
        a(f"v_readfirstlane_b32 s44, v{PR}")
        a("s_nop 0")
        a(f"s_cmp_ge_u32 s44, {need}")
        a(f"s_cbranch_scc1 {ok}")
        a(f"ds_read_b32 v{PR}, v23")
        a(f"s_branch {l}")
        a(".p2align 3")
        a(f"{ok}:")
    def unit(t, q, s4=(), s1=(), s2=(), s3=(), first=False, nonext=False):
        s = S[q]; sn = S[q ^ 1]
        t1, q1 = (t, 1) if q == 0 else (t + 1, 0)
        tp, qp = (t - 1, 1) if q == 0 else (t, 0)
        E = lambda r: a(f"v_exp_f32 v{s+r}, v{s+r}")
        C = lambda j: a(f"v_perm_b32 v{P+j}, v{s+2*j+1}, v{s+2*j}, s52" if OPT.get('perm') else f"v_cvt_pk_bf16_f32 v{P+j}, v{s+2*j}, v{s+2*j+1}")
        al = OPT.get('al', 0)
        EW = lambda r: a(f"v_exp_f32_e64 v{s+r}, v{s+r}") if al else E(r)
        odd = lambda xs: sum(1 for x in xs if x.startswith("s_")) & 1
        E(0); E(1)
        if not first: a(M4(tp, qp))
        for x in s4: a(x)
        (E if odd(s4) else EW)(2); E(3); E(4)
        if not nonext: a(M1(sn, t1, q1, CNEG(q1)))
        for x in s1: a(x)
        EW(5); E(6); E(7)
        for j in range(4): C(j)
        if OPT.get('m2l'): EW(8)
        if not nonext: a(M2(sn, t1, q1))
        for x in s2: a(x)
        if not OPT.get('m2l'): EW(8)
        for r in range(9, 13): E(r)
        a(M3(t, q))
        for x in s3: a(x)
        (E if odd(s3) else EW)(13); E(14); E(15)
        for j in range(4, 8): C(j)
    def period(t, o, extra3=()):
        if OPT.get('nods') and LOOPED[0]: o = None
        if o is None:
            if extra3:
                unit(t, 1, s4=["s_waitcnt lgkmcnt(0)"]); unit(t + 1, 0, s3=extra3); return
            unit(t, 1, s4=["s_waitcnt lgkmcnt(0)"]); unit(t + 1, 0); return
        kb = KB[t & 1]; vb = VB[t & 1]
        ok = lds_tile(o + 2); ov = (o >> 1) * LPAIR; av = AV + 2*(o & 1)
        unit(t, 1, s4=["s_waitcnt lgkmcnt(0)"],
             s1=[f"ds_read_b128 {vr(kb,4)}, v{AKA} offset:{ok}"],
             s3=[f"ds_read_b64 {vr(kb+4,2)}, v{AKB2+(o&1)} offset:{ov}" if SL else f"ds_read_b64 {vr(kb+4,2)}, v{AKB} offset:{ok}"])
        unit(t + 1, 0, s4=[f"ds_read_b128 {vr(vb,4)}, v{av} offset:{ov}"],
             s1=[f"ds_read_b128 {vr(vb+4,4)}, v{av+1} offset:{ov}"], s3=extra3)
    rdp = [f"ds_read_b32 v{PR}, v23"]
    a(".p2align 3")
    unit(0, 0, first=True)
    stamp(a, 9)
    check(1)
    for t in range(6):
        if t == 2: check(2)
        period(t, t, rdp if t in (1, 5) else ())
    for r in AREGS: a(f"v_add_u32 v{r}, {3*LPAIR}, v{r}")
    a(f"s_lshl_b32 s45, s{sWAVE}, 2")
    a("v_add_u32 v24, s45, v23")
    a(f"ds_write_b32 v24, v23 offset:{W_PASS}")
    a("s_mov_b32 s45, 2")
    a("s_mov_b32 s46, 7")
    stamp(a, 10); stamp(a, 10, 2); stamp_real(a, 12, 2)
    LOOPED[0] = True
    def body(chk):
        for k in range(8):
            ex = ()
            if k == 7: ex = (rdp if chk else [])
            if k == 6: ex = ["s_sub_u32 s46, s46, 1"]
            if k == 7 and not chk: ex = ["s_cmp_lg_u32 s46, 0"]
            period(k, k, ex)
        for r in AREGS: a(f"v_add_u32 v{r}, {4*LPAIR}, v{r}")
    a("s_cmp_eq_u32 s44, 16")
    a("s_cbranch_scc1 L_attn_fast")
    a(".p2align 3")
    a("L_attn_loop:")
    a("s_add_u32 s45, s45, 2")
    check("s45")
    body(True)
    a("s_cmp_eq_u32 s46, 0")
    a("s_cbranch_scc1 L_attn_last")
    a("s_cmp_lg_u32 s44, 16")
    a("s_cbranch_scc1 L_attn_loop")
    a(f".p2align {OPT.get('lal', 3)}")
    a("L_attn_fast:")
    body(False)
    a("s_cbranch_scc1 L_attn_fast")
    a(".p2align 3")
    a("L_attn_last:")
    period(62, None)
    unit(63, 1, nonext=True)
    a("s_nop 1")
    a(M4(63, 1))
    stamp(a, 11); stamp(a, 11, 2); stamp_real(a, 13, 2)
    a("L_attn_post:")
    a("s_lshl_b32 s42, s41, 5")
    a("s_add_u32 s42, s42, s26")
    a("s_mul_i32 s42, s42, 1280")
    a("v_lshlrev_b32 v21, 4, v1")
    for q in range(2):
        a(f"v_mov_b32 v{24+q}, v{O[q]+8}")
        a(f"v_mov_b32 v26, v{O[q]+8}")
        a("s_nop 1")
        a(f"v_permlane32_swap_b32 v26, v{24+q}")
        a("s_nop 0")
        a(f"v_rcp_f32 v26, v{24+q}")
        a("s_nop 0")
        for r in range(12): a(f"v_mul_f32 v{S[q]+r}, v{O[q]+r}, v26")
        for r in range(6): a(f"v_cvt_pk_bf16_f32 v{S[q]+r}, v{S[q]+2*r}, v{S[q]+2*r+1}")
        a(f"buffer_store_dwordx4 {vr(S[q],4)}, v21, s[36:39], s42 offen sc1")
        a(f"buffer_store_dwordx2 {vr(S[q]+4,2)}, v20, s[36:39], s42 offen sc1")
        if q == 0: a(f"s_add_u32 s42, s42, {32*1280}")
    a("s_cmp_eq_u32 s46, 0")
    a("s_cbranch_scc0 L_attn_fin")
    for q in range(2):
        a(f"v_max3_f32 v{30+q}, abs(v{O[q]}), abs(v{O[q]+1}), abs(v{O[q]+2})")
        a(f"v_mul_f32 v{26+q}, 0, v{24+q}")
    for r in range(12):
        for q in range(2): a(f"v_fma_f32 v{26+q}, v{O[q]+r}, 0, v{26+q}")
    for q in range(2):
        a(f"v_max3_f32 v{30+q}, v{30+q}, abs(v{O[q]+3}), abs(v{O[q]+4})")
        a(f"v_max3_f32 v{30+q}, v{30+q}, abs(v{O[q]+5}), abs(v{O[q]+6})")
        a(f"v_max_f32 v{30+q}, v{30+q}, abs(v{O[q]+7})")
    a("v_max_f32 v24, v24, v25")
    a("v_min_f32 v30, v30, v31")
    a("v_mov_b32 v28, 0x76800000")
    a("v_mov_b32 v31, 0x08800000")
    a("v_cmp_u_f32 s[44:45], v26, v27")
    a("v_cmp_nlt_f32 vcc, v24, v28")
    a("v_cmp_lt_f32 s[50:51], v30, v31")
    a("s_nop 1")
    a("s_or_b64 vcc, vcc, s[44:45]")
    a("s_or_b64 vcc, vcc, s[50:51]")
    if OPT.get('forcefb'): a("s_mov_b64 vcc, -1")
    a("s_cbranch_vccnz L_attn_fallback")
    a("L_attn_fin:")
    if OPT.get('apoll', 0): prod_flags(a, 12, 13)
    a("s_lshl_b32 s40, s2, 2")
    a(f"s_add_u32 s40, s40, s{sWAVE}")
    a(f"s_add_u32 s40, s40, {FB}")
    a("s_lshl_b32 s40, s40, 7")
    for i in range(4): a(f"v_mov_b32 v{8+i}, s{sNON+(i&1)}")
    a("s_waitcnt vmcnt(0)")
    stamp(a, 12)
    a("s_mov_b64 exec, %s" % ("1" if OPT.get('f16') or OPT.get('fat') else "0xff"))
    if OPT.get('fat'): a(f"buffer_atomic_swap_x2 v[8:9], v21, {sr(sFL,4)}, s40 offen" + (" sc1" if OPT['fat'] == 2 else ""))
    elif OPT.get('fnt'): a(f"buffer_store_dwordx4 v[8:11], v21, {sr(sFL,4)}, s40 offen sc0 sc1")
    else: a(f"buffer_store_dwordx4 v[8:11], v21, {sr(sFL,4)}, s40 offen sc1")
    a("s_mov_b64 exec, -1")
    a("s_barrier")
    if OPT.get('apoll', 0):
        a(f"s_cmp_lg_u32 s{sWAVE}, 0")
        a("s_cbranch_scc1 L_end")
        if OPT.get('apoll', 0) > 1: poll_piped(a, 12, 14, OPT.get('apoll', 0))
        else: poll(a, 12, 14, sleep=0)
        a("s_barrier")
    a("s_branch L_end")
    a("L_attn_fallback:")
    a("s_waitcnt vmcnt(0)")
    for r in ((AKA,) if SL else (AKA, AKB)): a(f"v_subrev_u32 v{r}, {31*LPAIR}, v{r}")
    if SL:
        a("s_mov_b32 exec_lo, 0")
        for q in range(2):
            a(f"v_mov_b32 v{QA[q]+4}, 0")
            a(f"v_mov_b32 v{QA[q]+5}, 0")
        a("s_mov_b64 exec, -1")
    a("v_mov_b32 v24, 0xff800000")
    a("v_mov_b32 v25, 0xff800000")
    a("s_mov_b32 s46, 0")
    a("L_fb_max:")
    a(f"buffer_load_dwordx4 {vr(KB[0],4)}, v{AKA}, s[32:35], s46 offen sc1")
    if SL: a("s_mov_b32 exec_hi, 0")
    a(f"buffer_load_dwordx2 {vr(KB[0]+4,2)}, v{AKB}, s[32:35], s46 offen sc1")
    if SL: a("s_mov_b64 exec, -1")
    a("s_waitcnt vmcnt(0)")
    for q in range(2): a(M1(S[q], 0, q, "0"))
    for q in range(2): a(M2(S[q], 0, q))
    a("s_nop 15")
    rowmax(S[0], 24, False)
    rowmax(S[1], 25, False)
    a(f"s_add_u32 s46, s46, {TKV}")
    a(f"s_cmp_lt_u32 s46, {KV_HEAD}")
    a("s_cbranch_scc1 L_fb_max")
    finish_neg("0")
    for q in range(2):
        for r in range(16): a(f"v_mov_b32 v{O[q]+r}, 0")
    a("s_mov_b32 s46, 0")
    a("L_fb_main:")
    a(f"buffer_load_dwordx4 {vr(KB[0],4)}, v{AKA}, s[32:35], s46 offen sc1")
    if SL: a("s_mov_b32 exec_hi, 0")
    a(f"buffer_load_dwordx2 {vr(KB[0]+4,2)}, v{AKB}, s[32:35], s46 offen sc1")
    if SL: a("s_mov_b64 exec, -1")
    a("s_mov_b64 exec, s[48:49]")
    a(f"buffer_load_dwordx4 {vr(VB[0],4)}, v29, s[32:35], s46 offen sc1")
    a(f"buffer_load_dwordx4 {vr(VB[0]+4,4)}, v29, s[32:35], s46 offen offset:640 sc1")
    a("s_mov_b64 exec, -1")
    a("s_waitcnt vmcnt(0)")
    for q in range(2): a(M1(S[q], 0, q, CNEG(q)))
    for q in range(2): a(M2(S[q], 0, q))
    a("s_nop 15")
    for q in range(2):
        for r in range(16): a(f"v_exp_f32 v{S[q]+r}, v{S[q]+r}")
        a("s_nop 0")
        for j in range(8): a(f"v_cvt_pk_bf16_f32 v{P+j}, v{S[q]+2*j}, v{S[q]+2*j+1}")
        a("s_nop 1")
        a(M3(0, q)); a(M4(0, q))
    a(f"s_add_u32 s46, s46, {TKV}")
    a(f"s_cmp_lt_u32 s46, {KV_HEAD}")
    a("s_cbranch_scc1 L_fb_main")
    a("s_nop 15")
    a("s_branch L_attn_post")

def aux(a):
    a("L_aux:")
    a(f"s_setprio {OPT.get('paux', 0)}")
    a(f"s_sub_u32 s44, s{sWAVE}, 4")
    a("v_lshlrev_b32 v2, 4, v1")
    a("s_waitcnt vmcnt(0)")
    drained(a, 3)
    a("s_cmp_eq_u32 s44, 0")
    a("s_cbranch_scc1 L_kv")
    a("s_cmp_lg_u32 s44, 1")
    a("s_cbranch_scc1 L_aux_wait")
    a("s_lshl_b32 s40, s2, 7")
    a("L_cnt_spin:")
    a(f"s_sleep {OPT.get('asl', 1)}")
    a(f"ds_read_b32 v3, v23 offset:{W_CNT}")
    a("s_waitcnt lgkmcnt(0)")
    a("v_readfirstlane_b32 s41, v3")
    a("s_nop 0")
    a("s_cmp_lt_u32 s41, 8")
    a("s_cbranch_scc1 L_cnt_spin")
    stamp(a, 7)
    set_flag(a, 40, 8, also=FL1*128 if OPT.get('lf', 1) else None)
    a("L_aux_wait:")
    a(f"s_sleep {OPT.get('wsl', 16)}")
    a(f"ds_read_b32 v3, v23 offset:{W_PROG}")
    a("s_waitcnt lgkmcnt(0)")
    a("v_readfirstlane_b32 s41, v3")
    a("s_nop 0")
    a(f"s_cmp_lt_u32 s41, {OPT.get('f2w', 6)}")
    a("s_cbranch_scc1 L_aux_wait")
    if OPT.get('dyn', 0):
        a("s_cmp_lg_u32 s44, 1")
        a("s_cbranch_scc1 L_kv_done")
        make_srd(a, 28, pDBG, 0, 256)
        a("v_mov_b32 v3, 1")
        if OPT.get('dyn', 0) == 2:
            a(f"s_lshl_b32 s40, s{sXCD}, 2")
            a("s_add_u32 s40, s40, 128")
            a("v_mov_b32 v4, s40")
        else: a("v_mov_b32 v4, 128")
        a("s_mov_b64 exec, 1")
        a("buffer_atomic_add v3, v4, s[28:31], 0 offen sc0")
        a("s_waitcnt vmcnt(0)")
        a("v_add_u32 v3, 1, v3")
        a("ds_write_b32 v23, v3 offset:12")
        a("s_mov_b64 exec, -1")
    a("s_branch L_kv_done")
    a("L_kv:")
    a(f"s_mul_i32 s40, s26, {KV_HEAD}")
    make_srd(a, 28, pWS, "s40", KV_HEAD)
    a(f"v_mul_u32_u24 v6, {LPAIR}, v1")
    a("v_min_u32 v6, %d, v6" % (30*LPAIR))
    for r in range(4): a(f"v_mov_b32 v{8+r}, 0x3f803f80")
    a("ds_write_b128 v6, v[8:11] offset:5120")
    for r in range(4): a(f"v_mov_b32 v{12+r}, 0")
    a("ds_write_b128 v6, v[12:15] offset:5136")
    a("v_mov_b32 v16, 0x3f803f80")
    a("v_mov_b32 v17, 0x3f80")
    a("ds_write_b64 v6, v[16:17] offset:5152")
    a("s_lshr_b32 s41, s26, 3")
    a("s_lshl_b32 s41, s41, 1")
    a(f"s_and_b32 s43, s{sXCD}, 1")
    a("s_lshl_b32 s43, s43, 3")
    a("s_lshl_b32 s42, s27, 1")
    a("v_and_b32 v3, 15, v1")
    a("v_lshrrev_b32 v5, 4, v1")
    a("v_add_u32 v5, 1, v5")
    a("v_and_b32 v4, 7, v1")
    a("v_add_u32 v4, s43, v4")
    a("v_bfe_u32 v6, v1, 3, 1")
    a("v_add_u32 v6, 1, v6")
    a("v_cmp_gt_u32 vcc, 32, v1")
    a("v_and_b32 v7, 1, v1")
    a("v_add_u32 v7, s42, v7")
    a("v_cndmask_b32 v3, v4, v3, vcc")
    a("v_cndmask_b32 v5, v6, v5, vcc")
    a("v_cmp_gt_u32 vcc, 48, v1")
    a("v_add_u32 v6, -48, v1")
    a(f"v_mov_b32 v4, {FL1}")
    a("v_cndmask_b32 v3, v7, v3, vcc")
    a("v_cndmask_b32 v5, 0, v5, vcc")
    a("v_cmp_gt_u32 vcc, 2, v6")
    a("v_cmp_gt_u32 s[46:47], 32, v1")
    a("v_and_b32 v7, 7, v3")
    a("v_lshl_add_u32 v5, v5, 3, v7")
    a("s_or_b64 vcc, vcc, s[46:47]")
    a("v_lshrrev_b32 v3, 3, v3")
    a("v_add_u32 v3, s41, v3")
    a("v_cndmask_b32 v4, v4, 0, vcc")
    a("v_lshl_add_u32 v5, v5, 3, v3")
    a("v_add_u32 v5, v5, v4")
    a("v_lshlrev_b32 v5, 7, v5")
    def poll_once(first=False):
        if first and OPT.get('lf', 1):
            a("s_and_b32 s48, s40, 7")
            a("s_cmp_eq_u32 s48, 0")
            a("s_cselect_b32 exec_lo, -1, 0")
            a("s_cselect_b32 exec_hi, -1, 0xcffff")
        a(f"buffer_load_dwordx2 v[6:7], v5, {sr(sFL,4)}, 0 offen sc1")
        if first and OPT.get('lf', 1): a("s_mov_b64 exec, -1")
        a("s_waitcnt vmcnt(0)")
        a(f"v_cmp_eq_u64 vcc, {sr(sNON,2)}, v[6:7]")
        a("s_sub_u32 s40, s40, 1")
        a("s_cselect_b32 s47, 0xffff, 0")
        a("s_and_b32 s48, vcc_hi, 0xff")
        a("s_lshl_b32 s48, s48, s43")
        a("s_or_b32 s48, s48, vcc_lo")
        a("s_bfe_u32 s49, vcc_hi, 0x80008")
        a("s_lshl_b32 s49, s49, s43")
        a("s_lshr_b32 s45, vcc_lo, 16")
        a("s_or_b32 s45, s45, s49")
        a("s_and_b32 s45, s45, s48")
        a("s_or_b32 s45, s45, s47")
    def pub(off, sreg):
        a(f"v_mov_b32 v4, s{sreg}")
        a(f"ds_write_b32 v23, v4 offset:{off}")
    a(f"s_mov_b32 s40, {POLL_MAX - 1}")
    a("v_mov_b32 v6, 0")
    a("v_mov_b32 v7, 0")
    if OPT.get('padgo'):
        a("L_padgo:")
        a("s_memrealtime s[42:43]")
        a("s_waitcnt lgkmcnt(0)")
        a(f"s_sub_u32 s42, s42, s{sNON}")
        a(f"s_cmp_lt_u32 s42, {OPT['padgo']}")
        a("s_cbranch_scc1 L_padgo")
    a("L_kv_p1:")
    a(f"s_sleep {OPT.get('ksl', 1)}")
    poll_once(True)
    a("s_cmp_lg_u32 s47, 0")
    a("s_cbranch_scc1 L_kv_first")
    a("s_lshr_b32 s48, vcc_hi, 16")
    a("s_lshr_b32 s49, vcc_hi, 18")
    a("s_or_b32 s48, s48, s49")
    a("s_and_b32 s48, s48, 3")
    a("s_cmp_eq_u32 s48, 3")
    a("s_cselect_b32 s48, s45, 0")
    a("s_cmp_eq_u32 s48, 0")
    a("s_cbranch_scc1 L_kv_p1")
    a("L_kv_first:")
    a("s_ff1_i32_b32 s48, s45")
    a("s_add_u32 s49, s48, 1")
    pub(W_GO, 49)
    stamp(a, 7)
    a("s_lshl_b32 s46, 1, s48")
    a(f"s_mul_i32 s48, s48, {4*TKV}")
    a(f"s_add_u32 s48, s48, {2*TKV}")
    for i in range(5):
        a(f"s_mov_b32 m0, {i*1024}")
        a("s_nop 0")
        a("buffer_load_dwordx4 v2, s[28:31], s48 offen sc1 lds")
        if i < 4: a("s_add_u32 s48, s48, 1024")
    a("s_mov_b32 s50, 1")
    a(f"s_mov_b32 s51, {LPAIR}")
    a("L_kv_next:")
    a("s_andn2_b32 s48, s45, s46")
    a("s_cbranch_scc0 L_kv_poll")
    a("s_ff1_i32_b32 s48, s48")
    a("s_bitset1_b32 s46, s48")
    a(f"s_mul_i32 s48, s48, {4*TKV}")
    for i in range(10):
        a(f"s_add_u32 m0, s51, {i*1024 + (64 if i >= 5 else 0)}")
        if i: a("s_add_u32 s48, s48, 1024")
        else: a("s_nop 0")
        a("buffer_load_dwordx4 v2, s[28:31], s48 offen sc1 lds")
    a(f"s_add_u32 s51, s51, {2*LPAIR}")
    a("s_cmp_eq_u32 s50, 1")
    a("s_cbranch_scc0 L_kv_w20")
    a("s_waitcnt vmcnt(10)")
    pub(W_PROG, 50)
    a("s_mov_b32 s50, 2")
    a("s_branch L_kv_next")
    a("L_kv_w20:")
    a("s_waitcnt vmcnt(20)")
    a("s_sub_u32 s49, s50, 1")
    pub(W_PROG, 49)
    a("s_add_u32 s50, s50, 1")
    a("s_branch L_kv_next")
    a("L_kv_poll:")
    a("s_waitcnt vmcnt(0)")
    pub(W_PROG, 50)
    a("s_cmp_eq_u32 s50, 16")
    a("s_cbranch_scc1 L_kv_done")
    poll_once()
    a("s_branch L_kv_next")
    a("L_kv_done:")
    if OPT.get('f2s', 16):
        a("s_branch L_all0")
        a("L_all:")
        a(f"s_sleep {OPT.get('wsl', 16)}")
        a("L_all0:")
        a(f"ds_read_b32 v3, v23 offset:{W_PROG}")
        a("s_waitcnt lgkmcnt(0)")
        a("v_readfirstlane_b32 s41, v3")
        a("s_nop 0")
        a(f"s_cmp_lt_u32 s41, {OPT.get('f2s', 16)}")
        a("s_cbranch_scc1 L_all")
    stamp(a, 8)
    a("v_lshlrev_b32 v5, 7, v1")
    a(f"v_add_u32 v5, {192*128}, v5")
    poll(a, 5, 6, sleep=4)
    a(f"s_setprio {OPT.get('pf2', 3)}")
    if OPT.get('dyn', 0):
        a("s_branch L_item0")
        a("L_item:")
        a("s_sleep 8")
        a("L_item0:")
        a("ds_read_b32 v3, v23 offset:12")
        a("s_waitcnt lgkmcnt(0)")
        a("v_readfirstlane_b32 s40, v3")
        a("s_nop 0")
        a("s_cmp_eq_u32 s40, 0")
        a("s_cbranch_scc1 L_item")
        a("s_sub_u32 s40, s40, 1")
        if OPT.get('dyn', 0) == 2:
            a("s_cmp_ge_u32 s40, 24")
            a("s_cbranch_scc1 L_wo")
            a(f"s_mul_i32 s41, s{sXCD}, 24")
            a("s_add_u32 s40, s40, s41")
    else:
        a(f"s_sub_u32 s40, 31, s{sSLOT}")
        a("s_cmp_ge_u32 s40, 24")
        a("s_cbranch_scc1 L_wo")
        a(f"s_mul_i32 s41, s{sXCD}, 24")
        a("s_add_u32 s40, s40, s41")
    a("s_cmp_ge_u32 s40, %d" % (0 if OPT.get('nof2') else 187))
    a("s_cbranch_scc1 L_wo")
    a("s_mul_i32 s41, s40, 373")
    a("s_lshr_b32 s41, s41, 12")
    a("s_mul_i32 s42, s41, 11")
    a("s_sub_u32 s42, s40, s42")
    a("s_lshl_b32 s41, s41, 1")
    a("s_cmp_ge_u32 s41, 18")
    a("s_cselect_b32 s43, 17, 0")
    a("s_sub_u32 s41, s41, s43")
    a("s_and_b32 s43, s41, 1")
    a("s_lshl_b32 s45, s44, 4")
    a("s_min_u32 s46, s44, 1")
    a("s_add_u32 s46, s46, s45")
    a("s_mul_i32 s47, s41, 65")
    a("s_add_u32 s47, s47, s46")
    a("s_lshl_b32 s47, s47, 10")
    a(f"s_add_u32 s47, s47, {SEQ_OFF}")
    make_srd(a, 28, pWS, "s47", 17*1024)
    a("s_and_b32 s47, s44, 2")
    a("s_add_u32 s47, s47, s43")
    a("s_mul_i32 s48, s47, 11")
    a("s_add_u32 s48, s48, s42")
    a("s_mul_i32 s48, s48, 33")
    a("s_and_b32 s45, s45, 16")
    a("s_add_u32 s48, s48, s45")
    a("s_lshl_b32 s48, s48, 10")
    a(f"s_add_u32 s48, s48, {AB_OFF}")
    make_srd(a, 32, pWS, "s48", 33*1024)
    make_srd(a, 36, pOUT, 0, OUT_SIZE)
    FB = 64; AC = 8
    a("s_or_b32 s47, s44, s43")
    a("s_cmp_lg_u32 s47, 0")
    a("s_cbranch_scc1 L_f2_nox")
    a(f"s_mov_b32 s49, {16*1024}")
    a("buffer_load_dwordx4 v[24:27], v2, s[28:31], s49 offen sc1")
    a(f"s_mov_b32 s49, {32*1024}")
    a("buffer_load_dwordx4 v[28:31], v2, s[32:35], s49 offen sc1")
    a("L_f2_nox:")
    for k in range(16):
        b = FB + k * 8
        if k % 4 == 0: a(f"s_mov_b32 s49, {(k//4)*4096}")
        a(f"buffer_load_dwordx4 {vr(b,4)}, v2, s[28:31], s49 offen offset:{(k%4)*1024} sc1")
        a(f"buffer_load_dwordx4 {vr(b+4,4)}, v2, s[32:35], s49 offen offset:{(k%4)*1024} sc1")
    stamp(a, 9)
    a("v_and_b32 v5, 31, v1")
    a("v_lshrrev_b32 v4, 5, v1")
    a("s_lshr_b32 s48, s41, 1")
    a("s_lshl_b32 s48, s48, 6")
    a("s_add_u32 s48, s48, s43")
    a("s_lshl_b32 s49, s44, 4")
    a("s_add_u32 s48, s48, s49")
    a("v_lshl_add_u32 v47, v4, 3, s48")
    a("v_mul_u32_u24 v47, 2560, v47")
    a("s_cmp_ge_u32 s42, 6")
    a("s_cselect_b32 s48, 383, 0")
    a("s_lshl_b32 s49, s42, 6")
    a("s_sub_u32 s48, s49, s48")
    a("v_lshl_add_u32 v5, v5, 1, s48")
    a(f"v_mov_b32 v46, {HUGE}")
    a("v_lshlrev_b32 v6, 1, v5")
    a("v_add_u32 v40, 1280, v6")
    a("v_cmp_ge_u32 vcc, 320, v5")
    a("v_sub_u32 v41, 2560, v6")
    a("v_add_u32 v6, -1, v5")
    a("v_cndmask_b32 v40, v46, v40, vcc")
    a("v_cmp_gt_u32 vcc, 319, v6")
    a(f"v_add_u32 v33, {(2048-6)*2560}, v40")
    a("v_sub_u32 v33, v33, v47")
    a("v_cndmask_b32 v41, v46, v41, vcc")
    a("v_add_u32 v32, v47, v40")
    a("v_add_u32 v36, v47, v41")
    a(f"v_add_u32 v37, {(2048-6)*2560}, v41")
    a("v_sub_u32 v37, v37, v47")
    a(f"v_subrev_u32 v34, {1024*2560}, v33")
    a(f"v_subrev_u32 v38, {1024*2560}, v37")
    a(f"v_add_u32 v35, {1024*2560}, v32")
    a(f"v_add_u32 v39, {1024*2560}, v36")
    a(f"v_add_u32 v42, {3*5120}, v33")
    a(f"v_add_u32 v43, {3*5120}, v37")
    a(f"v_mov_b32 v3, {LDS_PROG}")
    a("s_lshl_b32 s48, s44, 10")
    a("v_add_u32 v6, s48, v2")
    a("s_add_u32 s49, s48, 12288")
    a("s_lshl_b32 s50, s44, 12")
    a("s_add_u32 s51, s50, 3072")
    a("s_cmp_eq_u32 s44, 3")
    a(f"s_cmov_b32 s49, {LDS_PROG + 1024}")
    a(f"s_cmov_b32 s51, {LDS_PROG + 1024}")
    a("v_add_u32 v7, s49, v2")
    a("v_add_u32 v44, s50, v2")
    a("v_add_u32 v45, s51, v2")
    a("s_lshl_b32 s49, s44, 2")
    a("v_add_u32 v5, s49, v3")
    a(f"s_setprio {OPT.get('pmf', 1)}")
    for k in range(16):
        a(f"s_waitcnt vmcnt({2*(15-k)})")
        b = FB + k * 8
        d = vr(AC, 16)
        a(f"v_mfma_f32_32x32x16_bf16 {d}, {vr(b,4)}, {vr(b+4,4)}, {'0' if k == 0 else d}")
    a("s_cmp_lg_u32 s47, 0")
    a("s_cbranch_scc1 L_f2_nox2")
    a(f"v_mfma_f32_32x32x16_bf16 {vr(AC,16)}, v[24:27], v[28:31], {vr(AC,16)}")
    a("L_f2_nox2:")
    a(f"s_setprio {OPT.get('pep', 3)}")
    def spin_min(lbl, off, sl):
        a(f"{lbl}:")
        a(f"ds_read_b128 v[48:51], v3 offset:{off}")
        a("s_waitcnt lgkmcnt(0)")
        a("v_min3_u32 v48, v48, v49, v50")
        a("v_min_u32 v48, v48, v51")
        a("s_nop 0")
        a("v_readfirstlane_b32 s48, v48")
        a("s_nop 0")
        a("s_cmp_lg_u32 s48, 0")
        a(f"s_cbranch_scc1 {lbl}_ok")
        a(f"s_sleep {sl}")
        a(f"s_branch {lbl}")
        a(f"{lbl}_ok:")
    spin_min("L_f2_dead", W_PASS, 16)
    a("s_nop 3")
    for j in range(3): a(f"ds_write_b128 v6, {vr(AC+4*j,4)} offset:{j*4096}")
    a(f"ds_write_b128 v7, {vr(AC+12,4)}")
    a(f"ds_write_b32 v5, v3 offset:{W_XCH}")
    spin_min("L_f2_wait", W_XCH, OPT.get('xsl', 8))
    for i in range(3): a(f"ds_read_b128 {vr(8+4*i,4)}, v44 offset:{i*1024}")
    a("ds_read_b128 v[20:23], v45")
    a("s_waitcnt lgkmcnt(0)")
    ng = "neg_lo:[0,1] neg_hi:[0,1]"
    for r in (0, 2):
        a(f"v_pk_add_f32 {vr(48+r,2)}, {vr(8+r,2)}, {vr(12+r,2)}")
        a(f"v_pk_add_f32 {vr(52+r,2)}, {vr(8+r,2)}, {vr(12+r,2)} {ng}")
        a(f"v_pk_add_f32 {vr(56+r,2)}, {vr(20+r,2)}, {vr(16+r,2)}")
        a(f"v_pk_add_f32 {vr(60+r,2)}, {vr(20+r,2)}, {vr(16+r,2)} {ng}")
    for r in (0, 2):
        a(f"v_pk_add_f32 {vr(8+r,2)}, {vr(48+r,2)}, {vr(56+r,2)} {ng}")
        a(f"v_pk_add_f32 {vr(12+r,2)}, {vr(48+r,2)}, {vr(56+r,2)}")
        a(f"v_pk_add_f32 {vr(16+r,2)}, {vr(52+r,2)}, {vr(60+r,2)} {ng}")
        a(f"v_pk_add_f32 {vr(20+r,2)}, {vr(52+r,2)}, {vr(60+r,2)}")
    for k in range(8): a(f"v_cvt_pk_bf16_f32 v{48+k}, v{8+2*k}, v{9+2*k}")
    a("s_cmp_eq_u32 s41, 16")
    a("s_cbranch_scc1 L_f2_nyq")
    for i in range(4):
        st = "buffer_store_short_d16_hi" if i & 1 else "buffer_store_short"
        m1, p1, m2, p2 = (48 + 2*k + (i >> 1) for k in range(4))
        a(f"s_mov_b32 s47, {i*5120}")
        a(f"s_mov_b32 s48, {(3-i)*5120}")
        for val, adr, so in [(m1, 32, "s47"), (p1, 36, "s47"), (p2, 35, "s47"), (m2, 39, "s47"), (m2, 34, "s48"), (p2, 38, "s48"),
                             (p1, 33 if i else 42, "s48" if i else "0"), (m1, 37 if i else 43, "s48" if i else "0")]:
            a(f"{st} v{val}, v{adr}, s[36:39], {so} offen{FLF()}")
    a("s_branch L_wo")
    a("L_f2_nyq:")
    a("s_cmp_lg_u32 s44, 0")
    a("s_cbranch_scc1 L_wo")
    a("s_mov_b32 exec_hi, 0")
    for val, adr in [(48, 32), (50, 36), (50, 42), (48, 43)]:
        a(f"buffer_store_short v{val}, v{adr}, s[36:39], 0 offen{FLF()}")
    a("s_mov_b64 exec, -1")
    a("L_wo:")
    a(f"s_setprio {OPT.get('pwo', 3)}")
    stamp(a, 10)
    a("s_and_b32 s40, s26, 3")
    a("s_lshl_b32 s40, s40, 2")
    a("s_add_u32 s40, s40, s44")
    a(f"s_mul_i32 s40, s40, {50*1024}")
    a(f"s_add_u32 s40, s40, {WO_OFF}")
    make_srd(a, 28, pWS, "s40", 50*1024)
    a("s_waitcnt vmcnt(0)")
    for k in range(OPT.get('nwo', 50)):
        if k % 4 == 0: a(f"s_mov_b32 s49, {(k//4)*4096}")
        a(f"buffer_load_dwordx4 {vr(56+4*k,4)}, v2, s[28:31], s49 offen offset:{(k%4)*1024} sc1")

def tail(a):
    PADS = OPT.get('pads', 1)
    padn = [0]
    def pad(chain, last=None):
        if not PADS: return
        a(f"L_pad_{chain}_{padn[0]}:")
        padn[0] += 1
        a(f"s_cbranch_vccnz {last or f'L_pad_{chain}_{padn[0]}'}")
    a("L_B_done:")
    a("s_lshr_b32 s40, s26, 2")
    a("s_lshl_b32 s41, s27, 3")
    a("s_add_u32 s41, s41, s40")
    a(f"s_mul_i32 s42, s41, {32*1280}")
    a(f"s_add_u32 s42, s42, {O_OFF}")
    make_srd(a, 28, pWS, "s42", 32*1280)
    a("v_and_b32 v4, 7, v1")
    a("v_bfe_u32 v5, v1, 3, 2")
    a("v_lshlrev_b32 v5, 1, v5")
    a("v_lshl_add_u32 v4, v4, 3, v5")
    a("s_and_b32 s42, s27, 3")
    a("s_lshl_b32 s42, s42, 6")
    a("s_lshr_b32 s43, s27, 2")
    a("s_add_u32 s42, s42, s43")
    a("s_lshl_b32 s42, s42, 2")
    a("s_lshr_b32 s40, s40, 1")
    a("s_add_u32 s42, s42, s40")
    a(f"s_add_u32 s42, s42, {FB}")
    a("v_lshl_add_u32 v4, v4, 2, s42")
    a("v_lshlrev_b32 v4, 7, v4")
    a("v_mov_b32 v8, v4")
    if OPT.get('ppre', 1): a(f"buffer_load_dwordx2 v[10:11], v8, {sr(sFL,4)}, 0 offen sc1")
    a("v_and_b32 v3, 31, v1")
    a("v_lshrrev_b32 v4, 5, v1")
    a("v_mul_u32_u24 v5, 2560, v4")
    a("v_lshl_add_u32 v5, v3, 3, v5")
    a("v_add_u32 v5, 1024, v5")
    make_srd(a, 32, pOUT, 0, OUT_SIZE)
    a("s_lshl_b32 s41, s41, 5")
    a("v_and_b32 v6, 15, v1")
    a("v_add_u32 v6, s41, v6")
    a("v_mul_u32_u24 v6, 2560, v6")
    a("v_bfe_u32 v9, v1, 4, 1")
    a("v_lshl_add_u32 v6, v9, 5, v6")
    a("v_lshl_add_u32 v6, v4, 4, v6")
    a("s_lshl_b32 s43, s44, 3")
    a("v_lshrrev_b32 v9, 3, v1")
    a("v_add_u32 v9, s43, v9")
    a("v_add_u32 v0, s41, v9")
    a("v_mul_u32_u24 v0, 2560, v0")
    a("v_and_b32 v12, 7, v1")
    a("v_lshl_add_u32 v0, v12, 3, v0")
    a("v_lshlrev_b32 v12, 9, v12")
    a("v_lshl_add_u32 v12, v9, 4, v12")
    a("s_and_b32 s42, s26, 3")
    a("s_mul_i32 s42, s42, 320")
    a("s_mul_i32 s43, s44, 12800")
    a("v_add_u32 v7, s43, v2")
    a("s_lshl_b32 s43, s44, 12")
    a("s_add_u32 s43, s43, 40960")
    a("v_add_u32 v3, s43, v2")
    a("v_add_u32 v1, 40960, v12")
    a("s_mov_b32 s45, s42")
    a("s_lshl_b32 s43, s44, 6")
    a("s_add_u32 s43, s43, s42")
    a(f"s_add_u32 s46, s43, {16*2560}")
    if PADS:
        a("s_mov_b64 vcc, -1")
        a("s_nop 0")
        a("s_branch L_pad_a_0")
        a("L_pad_ret:")
        a("s_setprio 3")
    a("s_waitcnt vmcnt(0)")
    stamp(a, 12)
    a("s_barrier")
    stamp(a, 1)
    if not OPT.get('apoll', 0):
        a("s_cmp_lg_u32 s44, 0")
        a("s_cbranch_scc1 L_onep")
        if OPT.get('pp', 1) > 1: poll_piped(a, 8, 10, OPT['pp'])
        else: poll(a, 8, 10, sleep=OPT.get('sl', 0), shrink=OPT.get('shr', 1))
        a("L_onep:")
    a("s_barrier")
    stamp(a, 13)
    if PADS: a("s_mov_b64 vcc, 0")
    a("s_lshl_b32 s40, s44, 10")
    for j in range(10):
        if j % 3 == 0: pad('a')
        a("s_mov_b32 m0, s40")
        a("s_nop 0")
        a("buffer_load_dwordx4 v2, s[28:31], s40 offen sc1 lds")
        if j < 9: a("s_add_u32 s40, s40, 4096")
    a("s_waitcnt vmcnt(%d)" % (6 if OPT.get('prog', 1) else 0))
    a("s_barrier")
    stamp(a, 14)
    if lib.STAMP: a("s_waitcnt lgkmcnt(0)")
    A5, AM, OB = 8, 24, 40
    def rd(buf, kap, base=None):
        b = OB + 4*buf
        if base is not None: return f"ds_read_b128 {vr(b,4)}, v{base} offset:{kap*1280}"
        if kap < 32: return f"ds_read_b128 {vr(b,4)}, v2 offset:{kap*1280}"
        o = (kap - 32) * 5120 // 8
        return None
    def rd_main(buf, kap):
        b = OB + 4*buf
        if kap < 32: return [f"ds_read_b128 {vr(b,4)}, v2 offset:{kap*1280}"]
        g = kap - 32
        return [f"ds_read_b64 {vr(b,2)}, v5 offset:{g*5120}", f"ds_read_b64 {vr(b+2,2)}, v5 offset:{g*5120+1280}"]
    PG = 10 if OPT.get('prog', 1) else 0
    def stream(steps, chain):
        padn[0] = 0
        n = len(steps); cnt = [0]*n
        PF = 3
        for k in range(PF):
            r = steps[k][0](k % 4); cnt[k] = len(r)
            for x in r: a(x)
        for k in range(n):
            out = sum(cnt[k+1:min(n, k+PF)])
            a(f"s_waitcnt lgkmcnt({out})")
            d = vr(steps[k][1], 16)
            a(f"v_mfma_f32_32x32x16_bf16 {d}, {vr(steps[k][2],4)}, {vr(OB+4*(k%4),4)}, {'0' if steps[k][3] else d}")
            if k % 2 == 0 or k in (PG + 13, 32, 38, 40): pad(chain, "L_pad_z_0" if k == n - 2 else None)
            if PG and k + PF == PG:
                a("s_waitcnt vmcnt(0)")
                a("s_barrier")
            if k + PF < n:
                r = steps[k+PF][0]((k+PF) % 4); cnt[k+PF] = len(r)
                for x in r: a(x)
            if k == PG + 13:
                for j in range(4): a(f"ds_write_b128 v3, {vr(A5+4*j,4)} offset:{j*1024}")
                cnt[k+PF] += 4
            if k == 32:
                a("s_barrier")
                for i in range(4): a(f"ds_read_b128 {vr(A5+4*i,4)}, v1 offset:{i*4096}")
                cnt[k+PF] += 4
            if k == 38:
                for i in range(1, 4):
                    a(f"v_pk_add_f32 {vr(A5,2)}, {vr(A5,2)}, {vr(A5+4*i,2)}")
                    a(f"v_pk_add_f32 {vr(A5+2,2)}, {vr(A5+2,2)}, {vr(A5+4*i+2,2)}")
            if k == 40:
                a(f"v_cvt_pk_bf16_f32 v{A5}, v{A5}, v{A5+1}")
                a(f"v_cvt_pk_bf16_f32 v{A5+1}, v{A5+2}, v{A5+3}")
                a(f"buffer_store_dwordx2 {vr(A5,2)}, v0, s[32:35], s45 offen offset:256{FLP()}")
    main = [((lambda kap: lambda buf: rd_main(buf, kap))(kap), AM, 56 + 4*(10+kap), kap == 0) for kap in range(40)]
    if PADS:
        a(f"L_pad_a_{padn[0]}:")
        a("s_cmp_eq_u32 s44, 3")
        a("s_cbranch_vccz L_nopad")
        a("s_cbranch_scc1 L_pad_c_0")
        a("s_branch L_pad_b_0")
        a("L_nopad:")
    a("s_cmp_eq_u32 s44, 3")
    a("s_cbranch_scc1 L_tail3")
    q5 = [((lambda i: lambda buf: [f"ds_read_b128 {vr(OB+4*buf,4)}, v7 offset:{i*1280}"])(i), A5, 56 + 4*i, i == 0) for i in range(10)]
    stream(main[:PG] + q5 + main[PG:], 'b')
    a("s_branch L_tail_join")
    a("L_tail3:")
    q5 = [((lambda i: lambda buf: rd_main(buf, 30 + i))(i), A5, 56 + 4*i, i == 0) for i in range(10)]
    stream(main[:PG] + q5 + main[PG:], 'c')
    a("L_tail_join:")
    stamp(a, 11)
    padn[0] = 0
    pad('z')
    a("s_nop 11")
    for r in range(8): a(f"v_cvt_pk_bf16_f32 v{AM+r}, v{AM+2*r}, v{AM+2*r+1}")
    pad('z', "L_pad_ret")
    a("s_nop 1")
    for h2 in range(2):
        a(f"v_permlane32_swap_b32 v{AM+4*h2}, v{AM+4*h2+2}")
        a(f"v_permlane32_swap_b32 v{AM+4*h2+1}, v{AM+4*h2+3}")
    a("s_nop 0")
    for r in range(4): a(f"v_permlane16_swap_b32 v{AM+r}, v{AM+4+r}")
    for h2 in range(2):
        a(f"buffer_store_dwordx4 {vr(AM+4*h2,4)}, v6, s[32:35], s{43+3*h2} offen{FLP()}")
    a("L_end:")
    if OPT.get('pad'):
        a("L_pad:")
        a("s_memrealtime s[40:41]")
        a("s_waitcnt lgkmcnt(0)")
        a(f"s_sub_u32 s40, s40, s{sNON}")
        a(f"s_cmp_lt_u32 s40, {OPT['pad']}")
        a("s_cbranch_scc1 L_pad")
    if lib.STAMP:
        a("s_waitcnt vmcnt(0)")
        stamp(a, 15); stamp_real(a, 17)
        stamp_flush(a, 18, pWS, sWAVE, 0)
    a("L_exit:")
    a("s_endpgm")

KNAME = "concat_heads__mha_block__spectral_fnet__prompt_kernel"
def kernel(a):
    kernel_header(a, KNAME)
    if OPT.get('early'): a("s_memrealtime s[98:99]")
    a("s_cmp_ge_u32 s2, 256")
    a("s_cbranch_scc1 L_exit")
    if lib.STAMP:
        for i in range(18): a(f"s_mov_b32 s{60+2*i}, 0")
    stamp(a, 0); stamp_real(a, 16)
    a("s_load_dwordx8 s[4:11], s[0:1], 0")
    a("s_load_dwordx4 s[12:15], s[0:1], 64")
    a("s_load_dwordx2 s[16:17], s[0:1], 80")
    a("v_lshrrev_b32 v1, 6, v0")
    a(f"s_and_b32 s{sXCD}, s2, 7")
    a(f"v_readfirstlane_b32 s{sWAVE}, v1")
    a(f"s_lshr_b32 s{sSLOT}, s2, 3")
    a("v_and_b32 v1, 63, v0")
    a(f"s_and_b32 s26, s{sXCD}, 1")
    a("s_lshl_b32 s26, s26, 3")
    a(f"s_and_b32 s27, s{sSLOT}, 7")
    a("s_add_u32 s26, s26, s27")
    a(f"s_lshr_b32 s27, s{sSLOT}, 3")
    a("s_lshl_b32 s27, s27, 2")
    a(f"s_lshr_b32 s40, s{sXCD}, 1")
    a("s_add_u32 s27, s27, s40")
    a(f"s_cmp_ge_u32 s{sSLOT}, 24")
    a("s_cselect_b32 s40, 0, s%d" % sWAVE)
    a("s_cmp_lt_u32 s40, 4")
    a("s_cbranch_scc1 L_other")
    gemm_loader(a)
    a("L_other:")
    a("s_waitcnt lgkmcnt(0)")
    make_srd(a, sFL, pWS, FL_OFF, FL_SIZE)
    a(f"s_cmp_lg_u32 s{sWAVE}, 0")
    a("s_cbranch_scc1 L_no_init")
    a(f"v_mov_b32 v2, {LDS_PROG}")
    a("v_mov_b32 v4, 0")
    a("v_mov_b32 v5, 0")
    for i in range(8): a(f"ds_write_b64 v2, v[4:5] offset:{8*i}")
    a("s_cmp_lg_u32 s2, 0")
    a("s_cbranch_scc1 L_no_nonce")
    if OPT.get('early'): a("s_mov_b64 s[40:41], s[98:99]")
    else: a("s_memrealtime s[40:41]")
    make_srd(a, 28, pDBG, 0, 256)
    a("s_waitcnt lgkmcnt(0)")
    a("s_or_b32 s40, s40, 1")
    a("v_mov_b32 v2, s40")
    a("v_mov_b32 v3, s41")
    a("buffer_store_dwordx2 v[2:3], v4, s[28:31], 0 offen sc1")
    a("L_no_nonce:")
    a("s_waitcnt lgkmcnt(0)")
    a("L_no_init:")
    a(f"s_cmp_ge_u32 s{sSLOT}, 24")
    a("s_cbranch_scc1 L_prep")
    if OPT.get('touch', 1):
        a(f"s_cmp_lg_u32 s{sWAVE}, 1")
        a("s_cbranch_scc1 L_no_code")
        a("s_getpc_b64 s[40:41]")
        a("L_pc:")
        a(f"s_sub_u32 s40, s40, L_pc-{KNAME}")
        a("s_subb_u32 s41, s41, 0")
        a(f"s_mul_i32 s42, s{sSLOT}, 1792")
        a("v_lshlrev_b32 v2, 4, v1")
        a("v_add_u32 v2, s42, v2")
        a(f"v_min_u32 v2, L_exit-{KNAME}-1024-16, v2")
        for i in range(2): a(f"global_load_dwordx4 v[250:253], v2, s[40:41] offset:{i*1024}")
        a("L_no_code:")
    gemm_compute(a)
    prep(a)
    a_done(a)
    attention(a)
    aux(a)
    tail(a)
    return kernel_desc(KNAME, 256, 102)

HEADER = open('concat_heads__mha_block__spectral_fnet__prompt.s.ref').read().split("; Override")[0]
DESC = """
One persistent launch: 256 workgroups (one per CU) x 8 waves. Hand-written via a generator script.
Phase A  slots 0-23 of each group of 32: QKV projection, 128x160 tile, waves 0-3 MFMA (16x16x32), waves 4-7 LDS-DMA loaders;
         outputs are stored write-through in MFMA fragment order.
         slots 24-31: FNet stage 1. Rows are folded with the DFT symmetries, the hidden-dimension cos/sin fragments come from a
         Chebyshev recurrence, the sequence-DFT fragments are generated (the DFT matrices are constants), wo is re-laid out.
Phase B  waves 0-3: attention for one head and 64 queries each, K/V resident in LDS, streamed in as producers finish.
         exp2(S - m) with m = max over the first key tile + 100 (folded into spare k-slots of the MFMA); row sums from a ones row.
         After the pass every row is checked (overflow, non-finite or vanishing accumulators); a failing wave recomputes with the true row max.
         waves 4-7: K/V streaming, FNet stage 2 (four symmetric output quadrants per tile), wo fragments into registers.
Phase C  waves 4-7: output projection of 32 rows x 160 columns.
Hand-offs between workgroups: write-through stores, drained, then a flag line holding a per-launch tag (published through d_debug).
"""
def main(out):
    a = Asm()
    a('.amdgcn_target "amdgcn-amd-amdhsa--gfx950"')
    a(".text")
    for l in DESC.strip("\n").split("\n"): a.lines.append("; " + l)
    d = kernel(a)
    txt = HEADER + "; @launch grid=(256,1,1) block=(512,1,1) lds=163840\n" + a.text() + '.section .rodata,"a"\n.p2align 6\n' + d
    open(out, "w").write(txt)

if __name__ == "__main__":
    for x in sys.argv[2:]:
        if x == "stamp": lib.STAMP = True
        elif x == "rt": lib.STAMP = True; lib.STAMPRT = True
        elif x == "gst": lib.STAMP = True; lib.STAMPSET = 1; lib.STAMPRT = True
        elif x == "cst": lib.STAMP = True; lib.STAMPSET = 2
        else:
            k, _, v = x.partition("=")
            OPT[k] = int(v) if v else 1
    main(sys.argv[1] if len(sys.argv) > 1 else "concat_heads__mha_block__spectral_fnet__prompt.s")
```
